```python
import torch

def _softmax(x, axis=-1):
    return torch.softmax(x, dim=axis)
def _gelu(x):
    return torch.nn.functional.gelu(x, approximate="tanh")
def _silu(x):
    return torch.nn.functional.silu(x)
def _sigmoid(x):
    return torch.sigmoid(x)
def _layernorm(x, axis=-1, eps=1e-5):
    m = x.mean(dim=axis, keepdim=True)
    v = x.var(dim=axis, keepdim=True, unbiased=False)
    return (x - m) / torch.sqrt(v + eps)
def _scatter_add(tgt, idx, src, axis=0):
    return tgt.clone().index_add_(axis, idx, src)
def _segment_sum(src, seg, n):
    out = torch.zeros((n,) + src.shape[1:], dtype=src.dtype)
    return out.index_add_(0, seg, src)
def _pad(x, pw):
    flat = tuple(v for pair in reversed(pw) for v in pair)
    return torch.nn.functional.pad(x, flat)

kernel_name = 'parallel_sum__ssm_conv_s4d__dense_activation_mish__prompt'

def setup_inputs():

    _w = (lambda a: (lambda t: t.to(torch.bfloat16) if t.is_floating_point() else t)(torch.as_tensor(a)))
    def _A_setup():
        Bsz, L, D, N = 1, 2048, 640, 128
        return {
            "u": _w((lambda *s: torch.randn(*s, dtype=torch.bfloat16) * 0.05)(Bsz, L, D)),
            "log_A_real": _w((lambda *s: torch.randn(*s, dtype=torch.bfloat16) * 3.2)(D, N) * 0.5),
            "A_imag": _w((lambda *s: torch.randn(*s, dtype=torch.bfloat16) * 0.05)(D, N) * 3.14),
            "C_real": _w((lambda *s: torch.randn(*s, dtype=torch.bfloat16) * 0.2)(D, N) / N ** 0.5),
            "C_imag": _w((lambda *s: torch.randn(*s, dtype=torch.bfloat16) * 0.2)(D, N) / N ** 0.5),
            "log_dt": _w((lambda *s: torch.randn(*s, dtype=torch.bfloat16) * 0.05)(D) * 0.5 - 4.0),
            "D_skip": _w((lambda *s: torch.randn(*s, dtype=torch.bfloat16) * 0.05)(D)),
        }
    _A_in = _A_setup()

    def _B_setup():
        B, S, D, F = 1, 2048, 640, 1728
        return {
            "x": _w((lambda *s: torch.randn(*s, dtype=torch.bfloat16) * 0.05)(B, S, D)),
            "w1": _w((lambda *s: torch.randn(*s, dtype=torch.bfloat16) * 0.8)(D, F) * (D ** -0.5)),
            "b1": _w((lambda *s: torch.randn(*s, dtype=torch.bfloat16) * 0.2)(F)),
            "w2": _w((lambda *s: torch.randn(*s, dtype=torch.bfloat16) * 0.2)(F, D) * (F ** -0.5)),
        }
    _B_in = _B_setup()

    return {
        "A_u": _A_in["u"],
        "A_log_A_real": _A_in["log_A_real"],
        "A_A_imag": _A_in["A_imag"],
        "A_C_real": _A_in["C_real"],
        "A_C_imag": _A_in["C_imag"],
        "A_log_dt": _A_in["log_dt"],
        "A_D_skip": _A_in["D_skip"],
        "B_x": _B_in["x"],
        "B_w1": _B_in["w1"],
        "B_b1": _B_in["b1"],
        "B_w2": _B_in["w2"],
    }

def reference(A_u, A_log_A_real, A_A_imag, A_C_real, A_C_imag, A_log_dt, A_D_skip, B_x, B_w1, B_b1, B_w2):
    def _A_ref(u, log_A_real, A_imag, C_real, C_imag, log_dt, D_skip):
        L = u.shape[1]
        dt = torch.exp(log_dt)
        A = -torch.exp(log_A_real) + 1j * A_imag
        C = (C_real + 1j * C_imag) * dt[:, None]
        pos = (lambda x, dt: x.to(dt))(torch.arange(L), log_dt.dtype)
        P = torch.exp((A * dt[:, None])[:, :, None] * pos[None, None, :])
        K = 2.0 * torch.einsum("dn,dnl->dl", C, P).real
        L2 = 2 * L
        u_t = (lambda x, *d: x.permute(*d))(u, 0, 2, 1)
        Kf = (lambda x, *a, **k: torch.fft.rfft(x.float(), *a, **k))(K, L2)
        Uf = (lambda x, *a, **k: torch.fft.rfft(x.float(), *a, **k))(u_t, L2)
        y = (lambda x, *a, **k: torch.fft.irfft(x, *a, **k).to(torch.bfloat16))(Uf * Kf[None, :, :], L2)[:, :, :L]
        y = (lambda x, *d: x.permute(*d))(y, 0, 2, 1)
        return y + u * D_skip[None, None, :]

    def _B_ref(x, w1, b1, w2):
        h = torch.einsum("bsd,df->bsf", x, w1) + b1
        sp = torch.log1p(torch.exp(-torch.abs(h))) + torch.where(h > 0, h, torch.zeros_like(h))
        act = h * torch.tanh(sp)
        return torch.einsum("bsf,fd->bsd", act, w2)

    x = A_u
    xn = _layernorm(x, axis=-1)
    return x + _A_ref(xn, A_log_A_real, A_A_imag, A_C_real, A_C_imag, A_log_dt, A_D_skip) + _B_ref(xn, B_w1, B_b1, B_w2)
```

```python
import sys
NAME = "parallel_sum__ssm_conv_s4d__dense_activation_mish__prompt"
L, D, N, F = 2048, 640, 128, 1728
WS_XNF = 0x0000000
WS_XNT = 0x0280000
WS_W1F = 0x0500000
WS_W2F = WS_W1F + 2160 * 1024
WS_KR = 0x0A00000
KR_STRIDE = 4224
WS_ACT = 0x0D00000
WS_AT = 0x1400000
WS_SIZE = 268435456
LOG2E = 0x3fb8aa3b
INV2PI = 0x3e22f983

out = []
def e(s):
    out.append("    " + s)
def lab(s):
    out.append(s + ":")
def cm(s):
    out.append("    ; " + s)

def srd(dst, ptr, size):
    e(f"s_mov_b32 s{dst}, s{ptr}")
    e(f"s_and_b32 s{dst+1}, s{ptr+1}, 0xffff")
    e(f"s_mov_b32 s{dst+2}, {size}")
    e(f"s_mov_b32 s{dst+3}, 0x00020000")

def kernel_begin(name):
    out.append(".text")
    out.append(f".globl {name}")
    out.append(".p2align 8")
    out.append(f".type {name},@function")
    lab(name)

def kernel_desc(name, vgpr, sgpr=96):
    out.append('.section .rodata,"a"')
    out.append(".p2align 6")
    out.append(f".amdhsa_kernel {name}")
    out.append(f"  .amdhsa_next_free_vgpr {vgpr}")
    out.append(f"  .amdhsa_next_free_sgpr {sgpr}")
    out.append(f"  .amdhsa_accum_offset {(vgpr+3)//4*4}")
    out.append("  .amdhsa_group_segment_fixed_size 0")
    out.append("  .amdhsa_kernarg_size 112")
    out.append("  .amdhsa_user_sgpr_count 2")
    out.append("  .amdhsa_user_sgpr_kernarg_segment_ptr 1")
    out.append("  .amdhsa_system_sgpr_workgroup_id_x 1")
    out.append(".end_amdhsa_kernel")

KG_WGS, LN_WGS, WT_WGS = 160, 64, 135
PREP_WGS = KG_WGS + LN_WGS + WT_WGS
KG_LDS_WAVE = 10304
PREP_LDS = 4 * KG_LDS_WAVE

def gen_prep():
    kernel_begin("prep_kernel")
    e("s_cmp_ge_u32 s2, %d" % PREP_WGS)
    e("s_cbranch_scc1 prep_end")
    e("s_load_dwordx2 s[56:57], s[0:1], 104")
    e("v_lshrrev_b32 v1, 6, v0")
    e("v_and_b32 v2, 63, v0")
    e("s_nop 0")
    e("v_readfirstlane_b32 s3, v1")
    e("s_cmp_ge_u32 s2, %d" % (KG_WGS + LN_WGS))
    e("s_cbranch_scc1 prep_wt")
    e("s_cmp_ge_u32 s2, %d" % KG_WGS)
    e("s_cbranch_scc1 prep_ln")
    e("s_load_dwordx4 s[40:43], s[0:1], 8")
    e("s_load_dwordx4 s[44:47], s[0:1], 24")
    e("s_load_dwordx2 s[48:49], s[0:1], 40")
    e("s_waitcnt lgkmcnt(0)")
    srd(8, 40, D*N*2); srd(12, 42, D*N*2); srd(16, 44, D*N*2); srd(20, 46, D*N*2)
    srd(24, 48, D*2); srd(28, 56, WS_SIZE)
    e("s_lshl_b32 s4, s2, 2")
    e("s_add_u32 s4, s4, s3")
    e("s_mul_i32 s5, s3, %d" % KG_LDS_WAVE)
    e("s_lshl_b32 s6, s4, 8")
    e("v_lshl_add_u32 v3, v2, 1, s6")
    e("s_lshl_b32 s7, s4, 1")
    e("v_mov_b32 v4, s7")
    for k, sr in enumerate((8, 12, 16, 20)):
        e(f"buffer_load_ushort v{10+2*k}, v3, s[{sr}:{sr+3}], 0 offen")
        e(f"buffer_load_ushort v{11+2*k}, v3, s[{sr}:{sr+3}], 0 offen offset:128")
    e("buffer_load_ushort v18, v4, s[24:27], 0 offen")
    e("s_waitcnt vmcnt(0)")
    for r in range(10, 19):
        e(f"v_lshlrev_b32 v{r}, 16, v{r}")
    e(f"v_mul_f32 v18, {LOG2E:#x}, v18")
    e(f"v_mul_f32 v10, {LOG2E:#x}, v10")
    e(f"v_mul_f32 v11, {LOG2E:#x}, v11")
    e("v_exp_f32 v18, v18")
    e("v_exp_f32 v10, v10")
    e("v_exp_f32 v11, v11")
    e("s_nop 0")
    e("v_cvt_pk_bf16_f32 v18, v18, v18")
    e("v_cvt_pk_bf16_f32 v19, v10, v11")
    e("v_lshlrev_b32 v18, 16, v18")
    e("v_lshlrev_b32 v10, 16, v19")
    e("v_and_b32 v11, 0xffff0000, v19")
    e("v_add_f32 v19, v18, v18")
    e("s_add_u32 s6, s5, 0")
    e("v_lshl_add_u32 v5, v2, 4, s6")
    for q in range(2):
        b = 20 + 4*q
        e(f"v_mul_f32 v{b}, v{10+q}, v18")
        e(f"v_mul_f32 v{b}, {LOG2E|0x80000000:#x}, v{b}")
        e(f"v_mul_f32 v{b+1}, v{12+q}, v18")
        e(f"v_mul_f32 v{b+1}, {INV2PI:#x}, v{b+1}")
        e(f"v_mul_f32 v{b+2}, v{14+q}, v19")
        e(f"v_mul_f32 v{b+3}, v{16+q}, v19")
    e("ds_write_b128 v5, v[20:23]")
    e("ds_write_b128 v5, v[24:27] offset:1024")
    e("v_add_f32 v6, v22, v26")
    for m in (1, 2, 4, 8, 16, 32):
        e(f"v_xor_b32 v7, {m}, v2")
        e("v_lshlrev_b32 v7, 2, v7")
        e("ds_bpermute_b32 v8, v7, v6")
        e("s_waitcnt lgkmcnt(0)")
        e("v_add_f32 v6, v6, v8")
    e("s_add_u32 s6, s5, 2048")
    e("v_mov_b32 v7, s6")
    e("ds_write_b32 v7, v6")
    e("v_and_b32 v8, 15, v2")
    e("v_lshrrev_b32 v9, 4, v2")
    for t in range(4):
        e(f"v_lshlrev_b32 v{28+t}, 5, v8")
        e(f"v_add_u32 v{28+t}, {512*t}, v{28+t}")
        e(f"v_cvt_f32_u32 v{28+t}, v{28+t}")
    e("v_lshl_add_u32 v34, v8, 3, 8")
    e("v_lshlrev_b32 v35, 3, v8")
    e("v_subrev_u32 v35, 28, v35")
    e("v_lshlrev_b32 v36, 2, v8")
    e("v_subrev_u32 v36, 30, v36")
    e("v_cmp_gt_u32 vcc, 8, v8")
    e("s_nop 1")
    e("v_cndmask_b32 v36, v36, v35, vcc")
    e("v_cmp_gt_u32 vcc, 4, v8")
    e("s_nop 1")
    e("v_cndmask_b32 v36, v36, v34, vcc")
    e("v_lshl_add_u32 v37, v8, 1, 1")
    e("v_cvt_f32_u32 v32, v36")
    e("v_cvt_f32_u32 v33, v37")
    e("v_lshlrev_b32 v34, 9, v9")
    e("v_add_u32 v34, s6, v34")
    e("v_lshl_add_u32 v35, v37, 2, v34")
    e("v_lshl_add_u32 v34, v36, 2, v34")
    e("v_lshl_add_u32 v38, v9, 4, s5")
    for r in range(40, 60):
        e(f"v_mov_b32 v{r}, 0")
    e("s_waitcnt lgkmcnt(0)")
    e("ds_read_b128 v[60:63], v38")
    e("s_mov_b32 s7, 0")
    lab("kg_loop")
    for half in range(2):
        P = 60 + 4*half
        Pn = 60 + 4*(1-half)
        e("s_waitcnt lgkmcnt(0)")
        e(f"ds_read_b128 v[{Pn}:{Pn+3}], v38 offset:{64*(half+1)}")
        for t in range(6):
            e(f"v_mul_f32 v{68+t}, v{P}, v{28+t}")
            e(f"v_mul_f32 v{74+t}, v{P+1}, v{28+t}")
        for t in range(6):
            e(f"v_exp_f32 v{68+t}, v{68+t}")
            e(f"v_fract_f32 v{74+t}, v{74+t}")
        for t in range(6):
            e(f"v_cos_f32 v{80+t}, v{74+t}")
            e(f"v_sin_f32 v{86+t}, v{74+t}")
        for c in range(2):
            e(f"v_mul_f32 v{92+c}, v{72+c}, v{84+c}")
            e(f"v_mul_f32_e64 v{94+c}, -v{72+c}, v{90+c}")
        for t in range(4):
            e(f"v_mul_f32 v104, v{68+t}, v{P+2}")
            e(f"v_mul_f32 v105, v{68+t}, v{P+3}")
            e(f"v_mul_f32 v{96+t}, v104, v{80+t}")
            e(f"v_mul_f32 v{100+t}, v104, v{86+t}")
            e(f"v_fma_f32 v{96+t}, -v105, v{86+t}, v{96+t}")
            e(f"v_fma_f32 v{100+t}, v105, v{80+t}, v{100+t}")
        e("s_nop 1")
        tiles = [(0, 0), (0, 1), (1, 0), (2, 0), (3, 0)]
        for ti, (t, c) in enumerate(tiles):
            a = 40 + 4*ti
            e(f"v_mfma_f32_16x16x4_f32 v[{a}:{a+3}], v{96+t}, v{92+c}, v[{a}:{a+3}]")
            e(f"v_mfma_f32_16x16x4_f32 v[{a}:{a+3}], v{100+t}, v{94+c}, v[{a}:{a+3}]")
    e("v_add_u32 v38, 128, v38")
    e("s_add_u32 s7, s7, 1")
    e("s_cmp_lt_u32 s7, 16")
    e("s_cbranch_scc1 kg_loop")
    e("s_nop 15")
    e("s_waitcnt lgkmcnt(0)")
    tiles = [(0, 0), (0, 1), (1, 0), (2, 0), (3, 0)]
    for ti, (t, c) in enumerate(tiles):
        for r in range(4):
            e(f"ds_write_b32 v{34+c}, v{40+4*ti+r} offset:{128*(16*t+r)}")
    e("s_waitcnt lgkmcnt(0)")
    e("s_mul_i32 s4, s4, %d" % KR_STRIDE)
    e("s_add_u32 s4, s4, %d" % WS_KR)
    e("v_lshlrev_b32 v39, 4, v2")
    e("v_lshlrev_b32 v64, 3, v2")
    e("v_sub_u32 v64, 2047, v64")
    for it in range(4):
        for k in range(8):
            e(f"v_subrev_u32 v{68+k}, {512*it+k}, v64")
            e(f"v_cvt_f32_u32 v{68+k}, v{68+k}")
        for k in range(8):
            e(f"v_cvt_pk_bf16_f32 v{68+k}, v{68+k}, v{68+k}")
            e(f"v_lshlrev_b32 v{68+k}, 16, v{68+k}")
            e(f"v_cvt_u32_f32 v{68+k}, v{68+k}")
            e(f"v_lshl_add_u32 v{68+k}, v{68+k}, 2, s6")
            e(f"ds_read_b32 v{76+k}, v{68+k}")
        e("s_waitcnt lgkmcnt(0)")
        for k in range(4):
            e(f"v_cvt_pk_bf16_f32 v{84+4*(it&1)+k}, v{76+2*k}, v{77+2*k}")
        b = 84+4*(it&1)
        e(f"buffer_store_dwordx4 v[{b}:{b+3}], v39, s[28:31], s4 offen offset:{1024*it}")
    for k in range(4):
        e(f"v_mov_b32 v{92+k}, 0")
    e("v_cmp_gt_u32 vcc, 8, v2")
    e("s_and_saveexec_b64 s[32:33], vcc")
    e("s_add_u32 s4, s4, 4096")
    e("buffer_store_dwordx4 v[92:95], v39, s[28:31], s4 offen")
    e("s_endpgm")
    lab("prep_ln")
    e("s_load_dwordx2 s[40:41], s[0:1], 0")
    e("s_waitcnt lgkmcnt(0)")
    srd(8, 40, L*D*2); srd(28, 56, WS_SIZE)
    e("s_sub_u32 s4, s2, %d" % KG_WGS)
    e("v_and_b32 v3, 31, v2")
    e("v_lshrrev_b32 v4, 5, v2")
    e("s_lshl_b32 s5, s4, 5")
    e("v_add_u32 v5, s5, v3")
    e("v_mul_u32_u24 v6, 1280, v5")
    e("s_mul_i32 s6, s3, 320")
    e("v_lshl_add_u32 v6, v4, 4, v6")
    e("v_add_u32 v6, s6, v6")
    for kc in range(10):
        e(f"buffer_load_dwordx4 v[{40+4*kc}:{43+4*kc}], v6, s[8:11], 0 offen offset:{32*kc}")
    e("s_waitcnt vmcnt(0)")
    for k in range(40):
        e(f"v_lshlrev_b32 v{80+2*k}, 16, v{40+k}")
        e(f"v_and_b32 v{81+2*k}, 0xffff0000, v{40+k}")
    def lane_sum(srcs, dst_tmp):
        acc = dst_tmp
        for a in range(4):
            e(f"v_add_f32 v{acc+a}, v{srcs[a]}, v{srcs[a+4]}")
        for k in range(8, len(srcs)):
            e(f"v_add_f32 v{acc+(k%4)}, v{acc+(k%4)}, v{srcs[k]}")
        e(f"v_add_f32 v{acc}, v{acc}, v{acc+1}")
        e(f"v_add_f32 v{acc+2}, v{acc+2}, v{acc+3}")
        e(f"v_add_f32 v{acc}, v{acc}, v{acc+2}")
    lane_sum(list(range(80, 160)), 8)
    e("v_lshlrev_b32 v12, 2, v0")
    e("v_lshlrev_b32 v13, 2, v3")
    e("ds_write_b32 v12, v8")
    e("s_waitcnt lgkmcnt(0)")
    e("s_barrier")
    for ww in range(4):
        e(f"ds_read2_b32 v[{16+2*ww}:{17+2*ww}], v13 offset0:{64*ww} offset1:{64*ww+32}")
    e("s_waitcnt lgkmcnt(0)")
    lane_sum(list(range(16, 24)), 8)
    e("v_mul_f32 v14, 0x3acccccd, v8")
    for k in range(80):
        e(f"v_sub_f32 v{160+k}, v{80+k}, v14")
        e(f"v_mul_f32 v{160+k}, v{160+k}, v{160+k}")
    lane_sum(list(range(160, 240)), 8)
    e("ds_write_b32 v12, v8 offset:1024")
    e("s_waitcnt lgkmcnt(0)")
    e("s_barrier")
    e("v_add_u32 v13, 1024, v13")
    for ww in range(4):
        e(f"ds_read2_b32 v[{16+2*ww}:{17+2*ww}], v13 offset0:{64*ww} offset1:{64*ww+32}")
    e("s_waitcnt lgkmcnt(0)")
    lane_sum(list(range(16, 24)), 8)
    e("v_mul_f32 v8, 0x3acccccd, v8")
    e("v_cvt_pk_bf16_f32 v8, v8, v14")
    e("v_and_b32 v14, 0xffff0000, v8")
    e("v_lshlrev_b32 v8, 16, v8")
    e("v_add_f32 v8, 0x3727c5ac, v8")
    e("v_cvt_pk_bf16_f32 v8, v8, v8")
    e("v_lshlrev_b32 v8, 16, v8")
    e("v_sqrt_f32 v8, v8")
    e("s_nop 0")
    e("v_cvt_pk_bf16_f32 v8, v8, v8")
    e("v_lshlrev_b32 v8, 16, v8")
    e("v_rcp_f32 v9, v8")
    e("s_nop 0")
    e("v_fma_f32 v10, -v8, v9, 2.0")
    e("v_mul_f32 v9, v9, v10")
    for k in range(40):
        e(f"v_sub_f32 v{80+2*k}, v{80+2*k}, v14")
        e(f"v_sub_f32 v{81+2*k}, v{81+2*k}, v14")
        e(f"v_cvt_pk_bf16_f32 v{40+k}, v{80+2*k}, v{81+2*k}")
        e(f"v_lshlrev_b32 v{80+2*k}, 16, v{40+k}")
        e(f"v_and_b32 v{81+2*k}, 0xffff0000, v{40+k}")
        e(f"v_mul_f32 v{80+2*k}, v{80+2*k}, v9")
        e(f"v_mul_f32 v{81+2*k}, v{81+2*k}, v9")
        e(f"v_cvt_pk_bf16_f32 v{40+k}, v{80+2*k}, v{81+2*k}")
    e("s_mul_i32 s6, s4, 40")
    e("s_mul_i32 s7, s3, 10")
    e("s_add_u32 s6, s6, s7")
    e("s_lshl_b32 s6, s6, 10")
    e("s_add_u32 s6, s6, %d" % WS_XNF)
    e("v_lshlrev_b32 v15, 4, v2")
    for kc in range(10):
        if kc % 4 == 0 and kc:
            e("s_add_u32 s6, s6, 4096")
        e(f"buffer_store_dwordx4 v[{40+4*kc}:{43+4*kc}], v15, s[28:31], s6 offen offset:{1024*(kc%4)}")
    e("v_lshlrev_b32 v16, 15, v4")
    e("v_lshl_add_u32 v16, v5, 1, v16")
    e("s_mul_i32 s6, s3, %d" % (160*4096))
    e("s_add_u32 s6, s6, %d" % WS_XNT)
    for kc in range(10):
        for el in range(8):
            r = 40 + 4*kc + el//2
            op = "buffer_store_short_d16_hi" if el & 1 else "buffer_store_short"
            e(f"{op} v{r}, v16, s[28:31], s6 offen")
            e("s_add_u32 s6, s6, %d" % (4096 if el < 7 else 4096*9))
    e("s_endpgm")
    lab("prep_wt")
    e("s_load_dwordx2 s[40:41], s[0:1], 64")
    e("s_load_dwordx2 s[42:43], s[0:1], 80")
    e("s_sub_u32 s4, s2, %d" % (KG_WGS + LN_WGS))
    e("s_lshl_b32 s4, s4, 2")
    e("s_add_u32 s4, s4, s3")
    e("s_waitcnt lgkmcnt(0)")
    e("s_cmp_ge_u32 s4, 270")
    e("s_cselect_b32 s40, s42, s40")
    e("s_cselect_b32 s41, s43, s41")
    e("s_mov_b32 s5, 1728")
    e("s_mov_b32 s7, 107374183")
    e("s_cselect_b32 s5, 640, s5")
    e("s_cselect_b32 s6, 108, 40")
    e("s_cselect_b32 s7, 39768216, s7")
    e("s_cselect_b32 s32, 2160, 0")
    srd(8, 40, D*F*2); srd(28, 56, WS_SIZE)
    e("s_lshl_b32 s33, s4, 3")
    e("s_sub_u32 s32, s33, s32")
    e("v_and_b32 v3, 31, v2")
    e("v_lshrrev_b32 v4, 5, v2")
    e("s_lshl_b32 s34, s5, 4")
    e("v_mul_lo_u32 v5, v4, s34")
    e("v_lshl_add_u32 v5, v3, 1, v5")
    e("v_lshlrev_b32 v6, 4, v2")
    e("s_lshl_b32 s35, s5, 1")
    e("s_lshl_b32 s36, s33, 10")
    e("s_add_u32 s36, s36, %d" % WS_W1F)
    for batch in range(2):
        for q4 in range(4):
            q = batch*4 + q4
            e(f"s_add_u32 s37, s32, {q}")
            e("s_mul_hi_u32 s38, s37, s7")
            e("s_mul_i32 s39, s38, s6")
            e("s_sub_u32 s39, s37, s39")
            e("s_lshl_b32 s39, s39, 4")
            e("s_mul_i32 s39, s39, s35")
            e("s_lshl_b32 s38, s38, 6")
            e("s_add_u32 s39, s39, s38")
            for el in range(8):
                r = 40 + 8*q4 + el
                e(f"buffer_load_ushort v{r}, v5, s[8:11], s39 offen")
                if el < 7:
                    e("s_add_u32 s39, s39, s35")
        e("s_waitcnt vmcnt(0)")
        for q4 in range(4):
            for j in range(4):
                e(f"v_lshl_or_b32 v{8+4*q4+j}, v{41+8*q4+2*j}, 16, v{40+8*q4+2*j}")
        for q4 in range(4):
            q = batch*4 + q4
            e(f"buffer_store_dwordx4 v[{8+4*q4}:{11+4*q4}], v6, s[28:31], s36 offen offset:{1024*q4}")
        if batch == 0:
            e("s_add_u32 s36, s36, 4096")
            e("s_waitcnt vmcnt(0)")
    lab("prep_end")
    e("s_endpgm")
    kernel_desc("prep_kernel", 240)

G1_WGS = 288
CV_WGS = 640
MID_WGS = G1_WGS + CV_WGS
CS = 4160
UB = 8 * CS
MID_LDS = 57344

def mish_pairs(acc0, acc1, b0, b1r, dst, t):
    e(f"v_cvt_pk_bf16_f32 v{t}, v{acc0}, v{acc1}")
    e(f"v_lshlrev_b32 v{t+1}, 16, v{t}")
    e(f"v_and_b32 v{t+2}, 0xffff0000, v{t}")
    e(f"v_add_f32 v{t+1}, v{t+1}, v{b0}")
    e(f"v_add_f32 v{t+2}, v{t+2}, v{b1r}")
    e(f"v_cvt_pk_bf16_f32 v{t}, v{t+1}, v{t+2}")
    e(f"v_lshlrev_b32 v{t+1}, 16, v{t}")
    e(f"v_and_b32 v{t+2}, 0xffff0000, v{t}")
    e(f"v_min_f32 v{t+3}, 0x41a00000, v{t+1}")
    e(f"v_min_f32 v{t+4}, 0x41a00000, v{t+2}")
    e(f"v_mul_f32 v{t+3}, {LOG2E:#x}, v{t+3}")
    e(f"v_mul_f32 v{t+4}, {LOG2E:#x}, v{t+4}")
    e(f"v_exp_f32 v{t+3}, v{t+3}")
    e(f"v_exp_f32 v{t+4}, v{t+4}")
    e(f"s_nop 0")
    e(f"v_add_f32 v{t}, 2.0, v{t+3}")
    e(f"v_add_f32 v{t+5}, 2.0, v{t+4}")
    e(f"v_mul_f32 v{t+3}, v{t+3}, v{t}")
    e(f"v_mul_f32 v{t+4}, v{t+4}, v{t+5}")
    e(f"v_add_f32 v{t}, 2.0, v{t+3}")
    e(f"v_add_f32 v{t+5}, 2.0, v{t+4}")
    e(f"v_rcp_f32 v{t}, v{t}")
    e(f"v_rcp_f32 v{t+5}, v{t+5}")
    e(f"v_mul_f32 v{t+1}, v{t+1}, v{t+3}")
    e(f"v_mul_f32 v{t+2}, v{t+2}, v{t+4}")
    e(f"v_mul_f32 v{t+1}, v{t+1}, v{t}")
    e(f"v_mul_f32 v{t+2}, v{t+2}, v{t+5}")
    e(f"v_cvt_pk_bf16_f32 v{dst}, v{t+1}, v{t+2}")

def gemm_loop(nA, nchunks, stage_reg, frag_reg, acc_reg, voff, srdws, sreg_base, vlds_w, vlds_r_b, vlds_r_lane, bufsz):
    nR = nA + 4
    def loads():
        for j in range(nR):
            e(f"buffer_load_dwordx4 v[{stage_reg+4*j}:{stage_reg+4*j+3}], v{voff}, s[{srdws}:{srdws+3}], s{sreg_base+j} offen")
        e(f"v_add_u32 v{voff}, 4096, v{voff}")
    def writes(buf):
        for j in range(nR):
            e(f"ds_write_b128 v{vlds_w}, v[{stage_reg+4*j}:{stage_reg+4*j+3}] offset:{buf*bufsz + j*4096}")
    per = nA + 1
    def reads(buf, q):
        fr = frag_reg + 4*per*q
        e(f"ds_read_b128 v[{fr}:{fr+3}], v{vlds_r_b} offset:{buf*bufsz + q*1024}")
        for a in range(nA):
            e(f"ds_read_b128 v[{fr+4+4*a}:{fr+7+4*a}], v{vlds_r_lane} offset:{buf*bufsz + a*4096 + q*1024}")
    def mfmas(q):
        fr = frag_reg + 4*per*q
        for a in range(nA):
            ac = acc_reg + 16*a
            e(f"v_mfma_f32_32x32x16_bf16 v[{ac}:{ac+15}], v[{fr+4+4*a}:{fr+7+4*a}], v[{fr}:{fr+3}], v[{ac}:{ac+15}]")
    loads()
    e("s_waitcnt vmcnt(0)")
    writes(0)
    if nchunks > 1:
        loads()
    e("s_waitcnt lgkmcnt(0)")
    e("s_barrier")
    for c in range(nchunks):
        buf = c & 1
        reads(buf, 0); reads(buf, 1); reads(buf, 2)
        e(f"s_waitcnt lgkmcnt({2*per})")
        mfmas(0)
        reads(buf, 3)
        e(f"s_waitcnt lgkmcnt({2*per})")
        mfmas(1)
        e(f"s_waitcnt lgkmcnt({per})")
        mfmas(2)
        e(f"s_waitcnt lgkmcnt(0)")
        mfmas(3)
        if c + 1 < nchunks:
            e("s_waitcnt vmcnt(0)")
            writes(1 - buf)
            if c + 2 < nchunks:
                loads()
            e("s_waitcnt lgkmcnt(0)")
            e("s_barrier")

def gen_mid():
    kernel_begin("mid_kernel")
    e("s_cmp_ge_u32 s2, %d" % MID_WGS)
    e("s_cbranch_scc1 mid_end")
    e("s_load_dwordx2 s[56:57], s[0:1], 104")
    e("s_load_dwordx2 s[58:59], s[0:1], 72")
    e("s_load_dwordx2 s[60:61], s[0:1], 48")
    e("v_lshrrev_b32 v1, 6, v0")
    e("v_and_b32 v2, 63, v0")
    e("s_nop 0")
    e("v_readfirstlane_b32 s3, v1")
    e("s_waitcnt lgkmcnt(0)")
    srd(28, 56, WS_SIZE)
    e("s_cmp_ge_u32 s2, %d" % G1_WGS)
    e("s_cbranch_scc1 mid_conv")
    srd(8, 58, F*2)
    e("s_lshr_b32 s4, s2, 4")
    e("s_and_b32 s5, s2, 15")
    e("s_mul_i32 s6, s4, %d" % (3*40*1024))
    e("s_add_u32 s40, s6, %d" % WS_W1F)
    e("s_add_u32 s41, s40, %d" % (40*1024))
    e("s_add_u32 s42, s41, %d" % (40*1024))
    e("s_mul_i32 s6, s5, %d" % (4*40*1024))
    e("s_add_u32 s43, s6, %d" % WS_XNF)
    for j in range(1, 4):
        e(f"s_add_u32 s{43+j}, s{42+j}, {40*1024}")
    e("v_lshlrev_b32 v3, 4, v0")
    e("v_mov_b32 v4, v3")
    e("v_lshlrev_b32 v5, 4, v2")
    e("s_lshl_b32 s6, s3, 12")
    e("s_add_u32 s6, s6, %d" % (3*4096))
    e("v_add_u32 v6, s6, v5")
    e("v_lshrrev_b32 v7, 5, v2")
    e("s_mul_i32 s6, s4, 192")
    e("v_lshl_add_u32 v8, v7, 3, s6")
    for a in range(3):
        for g in range(4):
            r = 200 + 2*(4*a+g)
            e(f"buffer_load_dwordx2 v[{r}:{r+1}], v8, s[8:11], 0 offen offset:{64*a+16*g}")
    for r in range(16, 64):
        e(f"v_mov_b32 v{r}, 0")
    gemm_loop(3, 10, 64, 96, 16, 4, 28, 40, 3, 6, 5, 28672)
    e("s_nop 15")
    e("s_lshl_b32 s6, s5, 2")
    e("s_add_u32 s6, s6, s3")
    e("s_mul_i32 s6, s6, 108")
    e("s_mul_i32 s7, s4, 6")
    e("s_add_u32 s6, s6, s7")
    e("s_lshl_b32 s6, s6, 10")
    e("s_add_u32 s6, s6, %d" % WS_ACT)
    e("v_and_b32 v9, 31, v2")
    e("v_lshlrev_b32 v9, 4, v9")
    e("v_lshl_add_u32 v9, v7, 3, v9")
    for a in range(3):
        for g in range(4):
            r = 200 + 2*(4*a+g)
            e(f"v_lshlrev_b32 v{96}, 16, v{r}")
            e(f"v_and_b32 v{97}, 0xffff0000, v{r}")
            e(f"v_lshlrev_b32 v{98}, 16, v{r+1}")
            e(f"v_and_b32 v{99}, 0xffff0000, v{r+1}")
            ac = 16 + 16*a + 4*g
            d0 = 112 + 2*((4*a+g) % 4)
            mish_pairs(ac, ac+1, 96, 97, d0, 100)
            mish_pairs(ac+2, ac+3, 98, 99, d0+1, 106)
            off = (2*a + (g >> 1))*1024 + 512*(g & 1)
            if off >= 4096:
                e(f"s_add_u32 s7, s6, 4096")
                e(f"buffer_store_dwordx2 v[{d0}:{d0+1}], v9, s[28:31], s7 offen offset:{off-4096}")
            else:
                e(f"buffer_store_dwordx2 v[{d0}:{d0+1}], v9, s[28:31], s6 offen offset:{off}")
    e("s_endpgm")
    lab("mid_conv")
    srd(8, 60, D*2)
    e("s_sub_u32 s4, s2, %d" % G1_WGS)
    e("s_lshl_b32 s5, s4, 1")
    e("v_mov_b32 v3, s5")
    e("buffer_load_ushort v200, v3, s[8:11], 0 offen")
    e("s_lshl_b32 s5, s4, 12")
    e("s_add_u32 s5, s5, %d" % WS_XNT)
    e("v_lshlrev_b32 v4, 4, v0")
    e("buffer_load_dwordx4 v[8:11], v4, s[28:31], s5 offen")
    e("s_mul_i32 s6, s4, %d" % KR_STRIDE)
    e("s_add_u32 s6, s6, %d" % WS_KR)
    e("buffer_load_dwordx4 v[12:15], v4, s[28:31], s6 offen")
    e("buffer_load_dwordx4 v[16:19], v4, s[28:31], s6 offen offset:16")
    e("v_min_u32 v5, 3, v0")
    e("v_lshlrev_b32 v5, 4, v5")
    e("v_add_u32 v5, 4096, v5")
    e("buffer_load_dwordx4 v[20:23], v5, s[28:31], s6 offen")
    e("buffer_load_dwordx4 v[24:27], v5, s[28:31], s6 offen offset:16")
    for k in range(4):
        e(f"v_mov_b32 v{28+k}, 0")
    e("v_min_u32 v6, 159, v0")
    e("v_lshlrev_b32 v6, 4, v6")
    e(f"ds_write_b128 v6, v[28:31] offset:{UB}")
    e("v_lshrrev_b32 v6, 2, v0")
    e("v_mul_u32_u24 v6, 80, v6")
    e("v_and_b32 v7, 3, v0")
    e("v_lshl_add_u32 v6, v7, 4, v6")
    e("s_waitcnt vmcnt(4)")
    e(f"ds_write_b128 v6, v[8:11] offset:{UB + 32*80}")
    def copies(w, vaddr):
        for c in range(8):
            if c % 2 == 0:
                e(f"ds_write_b128 v{vaddr}, v[{w+c//2}:{w+c//2+3}] offset:{c*CS}") if (w + c//2) % 2 == 0 else None
                if (w + c//2) % 2:
                    for j in range(4):
                        e(f"v_mov_b32 v{32+j}, v{w+c//2+j}")
                    e(f"ds_write_b128 v{vaddr}, v[32:35] offset:{c*CS}")
            else:
                for j in range(4):
                    e(f"v_alignbit_b32 v{36+j}, v{w+(c+1)//2+j}, v{w+(c-1)//2+j}, 16")
                e(f"ds_write_b128 v{vaddr}, v[36:39] offset:{c*CS}")
    e("s_waitcnt vmcnt(2)")
    copies(12, 4)
    e("s_waitcnt vmcnt(0)")
    copies(20, 5)
    e("s_waitcnt lgkmcnt(0)")
    e("s_barrier")
    e("v_and_b32 v3, 31, v2")
    e("v_lshrrev_b32 v4, 5, v2")
    e("v_sub_u32 v5, 7, v3")
    e("v_and_b32 v5, 7, v5")
    e("v_sub_u32 v6, 2047, v3")
    e("v_lshl_add_u32 v6, v4, 3, v6")
    e("v_sub_u32 v6, v6, v5")
    e("v_mul_u32_u24 v7, %d, v5" % CS)
    e("v_lshl_add_u32 v6, v6, 1, v7")
    e("v_mul_u32_u24 v7, 80, v3")
    e("v_lshl_add_u32 v7, v4, 4, v7")
    e(f"v_add_u32 v7, {UB + 32*80}, v7")
    for r in range(16, 32):
        e(f"v_mov_b32 v{r}, 0")
    ranges = [(0, 0, 32), (1, 0, 22), (1, 22, 43), (1, 43, 64)]
    for w in range(4):
        if w < 3:
            e(f"s_cmp_lg_u32 s3, {w}")
            e(f"s_cbranch_scc1 cv_w{w+1}")
        ct, k0, k1 = ranges[w]
        e(f"v_subrev_u32 v8, {64*(k1-1)}, v6")
        e(f"v_add_u32 v9, {ct*32*80 - 80*(k1-1)}, v7")
        ks = list(range(k0, k1))
        G = 4
        groups = [ks[i:i+G] for i in range(0, len(ks), G)]
        def rd(gi):
            base = 32 + (gi & 1)*64
            for q, k in enumerate(groups[gi]):
                for t in range(2):
                    fa = base + 16*q + 8*t
                    e(f"ds_read_b128 v[{fa}:{fa+3}], v8 offset:{64*(k1-1-k) + 32*t}")
                    e(f"ds_read_b128 v[{fa+4}:{fa+7}], v9 offset:{80*(k1-1-k) + 32*t}")
        def mm(gi):
            base = 32 + (gi & 1)*64
            for q, k in enumerate(groups[gi]):
                for t in range(2):
                    fa = base + 16*q + 8*t
                    e(f"v_mfma_f32_32x32x16_bf16 v[16:31], v[{fa}:{fa+3}], v[{fa+4}:{fa+7}], v[16:31]")
        rd(0)
        for gi in range(len(groups)):
            if gi + 1 < len(groups):
                e("s_waitcnt lgkmcnt(0)")
                rd(gi + 1)
            else:
                e("s_waitcnt lgkmcnt(0)")
            mm(gi)
        e("s_branch cv_red")
        if w < 3:
            lab(f"cv_w{w+1}")
    lab("cv_red")
    e("s_nop 15")
    e("s_barrier")
    e("v_lshlrev_b32 v10, 2, v2")
    e("s_cmp_lt_u32 s3, 2")
    e("s_cbranch_scc1 cv_skipw")
    e("s_sub_u32 s5, s3, 2")
    e("s_lshl_b32 s5, s5, 12")
    e("v_add_u32 v11, s5, v10")
    for r in range(16):
        e(f"ds_write_b32 v11, v{16+r} offset:{256*r}")
    e("s_waitcnt lgkmcnt(0)")
    lab("cv_skipw")
    e("s_barrier")
    e("s_cmp_ge_u32 s3, 2")
    e("s_cbranch_scc1 mid_end")
    e("s_cmp_eq_u32 s3, 0")
    e("s_cbranch_scc1 cv_epi")
    for half in range(2):
        for r in range(16):
            e(f"ds_read_b32 v{32+r}, v10 offset:{4096*half + 256*r}")
        e("s_waitcnt lgkmcnt(0)")
        for r in range(16):
            e(f"v_add_f32 v{16+r}, v{16+r}, v{32+r}")
    lab("cv_epi")
    e("s_mul_i32 s5, s3, %d" % (32*80))
    e("v_mul_u32_u24 v11, 80, v3")
    e("v_lshl_add_u32 v11, v4, 3, v11")
    e("v_add_u32 v11, s5, v11")
    for g in range(4):
        e(f"ds_read_b64 v[{32+2*g}:{33+2*g}], v11 offset:{UB + 32*80 + 16*g}")
    e("s_lshl_b32 s5, s4, 12")
    e("s_lshl_b32 s6, s3, 11")
    e("s_add_u32 s5, s5, s6")
    e("s_add_u32 s5, s5, %d" % WS_AT)
    e("v_lshlrev_b32 v12, 6, v3")
    e("v_lshl_add_u32 v12, v4, 3, v12")
    e("s_waitcnt vmcnt(0) lgkmcnt(0)")
    e("v_lshlrev_b32 v200, 16, v200")
    for g in range(4):
        for p in range(2):
            u = 32 + 2*g + p
            y0 = 16 + 4*g + 2*p
            e(f"v_lshlrev_b32 v44, 16, v{u}")
            e(f"v_and_b32 v45, 0xffff0000, v{u}")
            e(f"v_mul_f32 v44, v44, v200")
            e(f"v_mul_f32 v45, v45, v200")
            e(f"v_cvt_pk_bf16_f32 v44, v44, v45")
            e(f"v_cvt_pk_bf16_f32 v46, v{y0}, v{y0+1}")
            e(f"v_lshlrev_b32 v47, 16, v44")
            e(f"v_and_b32 v48, 0xffff0000, v44")
            e(f"v_lshlrev_b32 v49, 16, v46")
            e(f"v_and_b32 v50, 0xffff0000, v46")
            e(f"v_add_f32 v47, v47, v49")
            e(f"v_add_f32 v48, v48, v50")
            e(f"v_cvt_pk_bf16_f32 v{52+2*g+p}, v47, v48")
        e(f"buffer_store_dwordx2 v[{52+2*g}:{53+2*g}], v12, s[28:31], s5 offen offset:{16*g}")
    lab("mid_end")
    e("s_endpgm")
    kernel_desc("mid_kernel", 224)

G2_WGS = 160
FIN_LDS = 49152
def gen_fin():
    kernel_begin("fin_kernel")
    e("s_cmp_ge_u32 s2, %d" % G2_WGS)
    e("s_cbranch_scc1 fin_end")
    e("s_load_dwordx2 s[56:57], s[0:1], 104")
    e("s_load_dwordx2 s[58:59], s[0:1], 0")
    e("s_load_dwordx2 s[60:61], s[0:1], 88")
    e("v_lshrrev_b32 v1, 6, v0")
    e("v_and_b32 v2, 63, v0")
    e("s_nop 0")
    e("v_readfirstlane_b32 s3, v1")
    e("s_waitcnt lgkmcnt(0)")
    srd(28, 56, WS_SIZE); srd(8, 58, L*D*2); srd(12, 60, L*D*2)
    e("s_lshr_b32 s4, s2, 4")
    e("s_and_b32 s5, s2, 15")
    e("s_mul_i32 s6, s4, %d" % (2*108*1024))
    e("s_add_u32 s40, s6, %d" % WS_W2F)
    e("s_add_u32 s41, s40, %d" % (108*1024))
    e("s_mul_i32 s6, s5, %d" % (4*108*1024))
    e("s_add_u32 s42, s6, %d" % WS_ACT)
    for j in range(1, 4):
        e(f"s_add_u32 s{42+j}, s{41+j}, {108*1024}")
    e("v_lshlrev_b32 v3, 4, v0")
    e("v_mov_b32 v4, v3")
    e("v_lshlrev_b32 v5, 4, v2")
    e("s_lshl_b32 s6, s3, 12")
    e("s_add_u32 s6, s6, %d" % (2*4096))
    e("v_add_u32 v6, s6, v5")
    e("v_lshrrev_b32 v7, 5, v2")
    e("v_and_b32 v8, 31, v2")
    e("s_lshl_b32 s6, s5, 2")
    e("s_add_u32 s6, s6, s3")
    e("s_lshl_b32 s6, s6, 5")
    e("v_add_u32 v8, s6, v8")
    e("v_mul_u32_u24 v9, 1280, v8")
    e("v_lshl_add_u32 v9, v7, 3, v9")
    e("s_lshl_b32 s6, s4, 7")
    e("v_add_u32 v9, s6, v9")
    for a in range(2):
        for g in range(4):
            r = 160 + 2*(4*a+g)
            e(f"buffer_load_dwordx2 v[{r}:{r+1}], v9, s[8:11], 0 offen offset:{64*a+16*g}")
    e("v_lshlrev_b32 v10, 14, v7")
    e("v_lshl_add_u32 v10, v8, 1, v10")
    e("s_lshl_b32 s6, s4, 18")
    e("s_add_u32 s6, s6, %d" % WS_AT)
    for a in range(2):
        for g in range(4):
            for j in range(4):
                r = 176 + 4*(4*a+g) + j
                e(f"buffer_load_ushort v{r}, v10, s[28:31], s6 offen")
                e("s_add_u32 s6, s6, %d" % (4096 if j < 3 else 4096*5))
    for r in range(16, 48):
        e(f"v_mov_b32 v{r}, 0")
    gemm_loop(2, 27, 64, 96, 16, 4, 28, 40, 3, 6, 5, 24576)
    e("s_nop 15")
    for a in range(2):
        for g in range(4):
            rx = 160 + 2*(4*a+g)
            ra = 176 + 4*(4*a+g)
            for p in range(2):
                ac = 16 + 16*a + 4*g + 2*p
                e(f"v_lshlrev_b32 v96, 16, v{rx+p}")
                e(f"v_and_b32 v97, 0xffff0000, v{rx+p}")
                e(f"v_lshlrev_b32 v98, 16, v{ra+2*p}")
                e(f"v_lshlrev_b32 v99, 16, v{ra+2*p+1}")
                e(f"v_add_f32 v96, v96, v98")
                e(f"v_add_f32 v97, v97, v99")
                e(f"v_cvt_pk_bf16_f32 v96, v96, v97")
                e(f"v_cvt_pk_bf16_f32 v98, v{ac}, v{ac+1}")
                e(f"v_lshlrev_b32 v100, 16, v96")
                e(f"v_and_b32 v101, 0xffff0000, v96")
                e(f"v_lshlrev_b32 v102, 16, v98")
                e(f"v_and_b32 v103, 0xffff0000, v98")
                e(f"v_add_f32 v100, v100, v102")
                e(f"v_add_f32 v101, v101, v103")
                e(f"v_cvt_pk_bf16_f32 v{rx+p}, v100, v101")
            e(f"buffer_store_dwordx2 v[{rx}:{rx+1}], v9, s[12:15], 0 offen offset:{64*a+16*g}")
    lab("fin_end")
    e("s_endpgm")
    kernel_desc("fin_kernel", 208)

hdr = open("cdna_kernels/%s.s.ref" % NAME).read().split("; Override launch")[0]
text = hdr
text += f"; @launch kernel=prep_kernel grid=({PREP_WGS},1,1) block=(256,1,1) lds={PREP_LDS}\n"
text += f"; @launch kernel=mid_kernel grid=({MID_WGS},1,1) block=(256,1,1) lds={MID_LDS}\n"
text += f"; @launch kernel=fin_kernel grid=({G2_WGS},1,1) block=(256,1,1) lds={FIN_LDS}\n"
text += '.amdgcn_target "amdgcn-amd-amdhsa--gfx950"\n'
gen_prep(); gen_mid(); gen_fin()
text += "\n".join(out) + "\n"
dst = sys.argv[1] if len(sys.argv) > 1 else "cdna_kernels/%s.s" % NAME
open(dst, "w").write(text)
print("wrote", dst, len(text))
```

```python
import sys, os
SKIP = os.environ.get("SKIP", "").split(",")
NAME = "parallel_sum__ssm_conv_s4d__dense_activation_mish__prompt"
L, D, N, F = 2048, 640, 128, 1728
WS_XNF = 0x0000000
WS_XNT = 0x0280000
WS_W1F = 0x0500000
WS_W2F = WS_W1F + 2160 * 1024
WS_KR = 0x0A00000
KR_STRIDE = 4224
WS_ACT = 0x0D00000
WS_AT = 0x1400000
WS_SIZE = 268435456
LOG2E = 0x3fb8aa3b
INV2PI = 0x3e22f983

out = []
def e(s):
    out.append("    " + s)
def lab(s):
    out.append(s + ":")
def cm(s):
    out.append("    ; " + s)

def srd(dst, ptr, size):
    e(f"s_mov_b32 s{dst}, s{ptr}")
    e(f"s_and_b32 s{dst+1}, s{ptr+1}, 0xffff")
    e(f"s_mov_b32 s{dst+2}, {size}")
    e(f"s_mov_b32 s{dst+3}, 0x00020000")

def kernel_begin(name):
    out.append(".text")
    out.append(f".globl {name}")
    out.append(".p2align 8")
    out.append(f".type {name},@function")
    lab(name)

def kernel_desc(name, vgpr, sgpr=96):
    out.append('.section .rodata,"a"')
    out.append(".p2align 6")
    out.append(f".amdhsa_kernel {name}")
    out.append(f"  .amdhsa_next_free_vgpr {vgpr}")
    out.append(f"  .amdhsa_next_free_sgpr {sgpr}")
    out.append(f"  .amdhsa_accum_offset {(vgpr+3)//4*4}")
    out.append("  .amdhsa_group_segment_fixed_size 0")
    out.append("  .amdhsa_kernarg_size 112")
    out.append("  .amdhsa_user_sgpr_count 2")
    out.append("  .amdhsa_user_sgpr_kernarg_segment_ptr 1")
    out.append("  .amdhsa_system_sgpr_workgroup_id_x 1")
    out.append(".end_amdhsa_kernel")

KG_WGS, LN_WGS, WT_WGS = 640, 64, 135
PREP_WGS = KG_WGS + LN_WGS + WT_WGS
KG_LDS_WAVE = 8768
PREP_LDS = 4 * KG_LDS_WAVE

def gen_prep():
    kernel_begin("prep_kernel")
    e("s_cmp_ge_u32 s2, %d" % PREP_WGS)
    e("s_cbranch_scc1 prep_end")
    e("s_load_dwordx2 s[56:57], s[0:1], 104")
    e("v_lshrrev_b32 v1, 6, v0")
    e("v_and_b32 v2, 63, v0")
    e("s_nop 0")
    e("v_readfirstlane_b32 s3, v1")
    e("s_cmp_ge_u32 s2, %d" % (KG_WGS + LN_WGS))
    e("s_cbranch_scc1 prep_wt")
    e("s_cmp_ge_u32 s2, %d" % KG_WGS)
    e("s_cbranch_scc1 prep_ln")
    if "kg" in SKIP: e("s_endpgm")
    e("s_load_dwordx4 s[40:43], s[0:1], 8")
    e("s_load_dwordx4 s[44:47], s[0:1], 24")
    e("s_load_dwordx2 s[48:49], s[0:1], 40")
    e("s_waitcnt lgkmcnt(0)")
    srd(8, 40, D*N*2); srd(12, 42, D*N*2); srd(16, 44, D*N*2); srd(20, 46, D*N*2)
    srd(24, 48, D*2); srd(28, 56, WS_SIZE)
    e("s_mov_b32 s4, s2")
    e("s_mul_i32 s5, s3, %d" % KG_LDS_WAVE)
    e("s_lshl_b32 s6, s4, 8")
    e("s_lshl_b32 s7, s3, 6")
    e("s_add_u32 s6, s6, s7")
    e("v_and_b32 v3, 31, v2")
    e("v_lshl_add_u32 v3, v3, 1, s6")
    e("s_lshl_b32 s7, s4, 1")
    e("v_mov_b32 v4, s7")
    for k, sr in enumerate((8, 12, 16, 20)):
        e(f"buffer_load_ushort v{10+k}, v3, s[{sr}:{sr+3}], 0 offen")
    e("buffer_load_ushort v18, v4, s[24:27], 0 offen")
    e("s_waitcnt vmcnt(0)")
    for r in (10, 11, 12, 13, 18):
        e(f"v_lshlrev_b32 v{r}, 16, v{r}")
    e(f"v_mul_f32 v18, {LOG2E:#x}, v18")
    e(f"v_mul_f32 v10, {LOG2E:#x}, v10")
    e("v_exp_f32 v18, v18")
    e("v_exp_f32 v10, v10")
    e("s_nop 0")
    e("v_cvt_pk_bf16_f32 v18, v18, v18")
    e("v_cvt_pk_bf16_f32 v10, v10, v10")
    e("v_lshlrev_b32 v18, 16, v18")
    e("v_lshlrev_b32 v10, 16, v10")
    e("v_add_f32 v19, v18, v18")
    e("v_and_b32 v5, 31, v2")
    e("v_lshl_add_u32 v5, v5, 4, s5")
    e("v_mul_f32 v20, v10, v18")
    e(f"v_mul_f32 v20, {LOG2E|0x80000000:#x}, v20")
    e("v_mul_f32 v21, v11, v18")
    e(f"v_mul_f32 v21, {INV2PI:#x}, v21")
    e("v_mul_f32 v22, v12, v19")
    e("v_mul_f32 v23, v13, v19")
    e("ds_write_b128 v5, v[20:23]")
    e("v_mov_b32 v6, v22")
    for m in (1, 2, 4, 8, 16):
        e(f"v_xor_b32 v7, {m}, v2")
        e("v_lshlrev_b32 v7, 2, v7")
        e("ds_bpermute_b32 v8, v7, v6")
        e("s_waitcnt lgkmcnt(0)")
        e("v_add_f32 v6, v6, v8")
    e("s_add_u32 s6, s5, 512")
    e("v_mov_b32 v7, s6")
    e("ds_write_b32 v7, v6")
    e("v_and_b32 v8, 15, v2")
    e("v_lshrrev_b32 v9, 4, v2")
    for t in range(4):
        e(f"v_lshlrev_b32 v{28+t}, 5, v8")
        e(f"v_add_u32 v{28+t}, {512*t}, v{28+t}")
        e(f"v_cvt_f32_u32 v{28+t}, v{28+t}")
    e("v_lshl_add_u32 v34, v8, 3, 8")
    e("v_lshlrev_b32 v35, 3, v8")
    e("v_subrev_u32 v35, 28, v35")
    e("v_lshlrev_b32 v36, 2, v8")
    e("v_subrev_u32 v36, 30, v36")
    e("v_cmp_gt_u32 vcc, 8, v8")
    e("s_nop 1")
    e("v_cndmask_b32 v36, v36, v35, vcc")
    e("v_cmp_gt_u32 vcc, 4, v8")
    e("s_nop 1")
    e("v_cndmask_b32 v36, v36, v34, vcc")
    e("v_lshl_add_u32 v37, v8, 1, 1")
    e("v_cvt_f32_u32 v32, v36")
    e("v_cvt_f32_u32 v33, v37")
    e("v_lshlrev_b32 v34, 9, v9")
    e("v_add_u32 v34, s6, v34")
    e("v_lshl_add_u32 v35, v37, 2, v34")
    e("v_lshl_add_u32 v34, v36, 2, v34")
    e("v_lshl_add_u32 v38, v9, 4, s5")
    for r in range(40, 60):
        e(f"v_mov_b32 v{r}, 0")
    e("s_waitcnt lgkmcnt(0)")
    for st in range(8):
        e(f"ds_read_b128 v[{120+4*st}:{123+4*st}], v38 offset:{64*st}")
    e("s_waitcnt lgkmcnt(0)")
    tiles = [(0, 0), (0, 1), (1, 0), (2, 0), (3, 0)]
    def kg_valu(st):
        P = 120 + 4*st
        O = 92 + 14*(st & 1)
        v = []
        for t in range(6):
            v.append(f"v_mul_f32 v{68+t}, v{P}, v{28+t}")
            v.append(f"v_mul_f32 v{74+t}, v{P+1}, v{28+t}")
        for t in range(6):
            v.append(f"v_exp_f32 v{68+t}, v{68+t}")
            v.append(f"v_fract_f32 v{74+t}, v{74+t}")
        for t in range(6):
            v.append(f"v_cos_f32 v{80+t}, v{74+t}")
            v.append(f"v_sin_f32 v{86+t}, v{74+t}")
        for c in range(2):
            v.append(f"v_mul_f32 v{O+c}, v{72+c}, v{84+c}")
            v.append(f"v_mul_f32_e64 v{O+2+c}, -v{72+c}, v{90+c}")
        for t in range(4):
            v.append(f"v_mul_f32 v{O+12}, v{68+t}, v{P+2}")
            v.append(f"v_mul_f32 v{O+13}, v{68+t}, v{P+3}")
            v.append(f"v_mul_f32 v{O+4+t}, v{O+12}, v{80+t}")
            v.append(f"v_mul_f32 v{O+8+t}, v{O+12}, v{86+t}")
            v.append(f"v_fma_f32 v{O+4+t}, -v{O+13}, v{86+t}, v{O+4+t}")
            v.append(f"v_fma_f32 v{O+8+t}, v{O+13}, v{80+t}, v{O+8+t}")
        return v
    def kg_mfma(st):
        O = 92 + 14*(st & 1)
        m = []
        for ti, (t, c) in enumerate(tiles):
            a = 40 + 4*ti
            m.append(f"v_mfma_f32_16x16x4_f32 v[{a}:{a+3}], v{O+4+t}, v{O+c}, v[{a}:{a+3}]")
            m.append(f"v_mfma_f32_16x16x4_f32 v[{a}:{a+3}], v{O+8+t}, v{O+2+c}, v[{a}:{a+3}]")
        return m
    for st in range(9):
        v = kg_valu(st) if st < 8 else []
        m = kg_mfma(st-1) if st > 0 else []
        if "kgm" in SKIP: m = []
        if "kgv" in SKIP: v = []
        if not v:
            e("s_nop 1")
        vi = 0
        for mi, mm_ in enumerate(m):
            tgt = 2 + 6*mi
            while vi < min(tgt, len(v)):
                e(v[vi]); vi += 1
            e(mm_)
        while vi < len(v):
            e(v[vi]); vi += 1
    e("s_nop 15")
    for ti, (t, c) in enumerate(tiles):
        for r in range(4):
            e(f"ds_write_b32 v{34+c}, v{40+4*ti+r} offset:{128*(16*t+r)}")
    e("s_waitcnt lgkmcnt(0)")
    e("s_barrier")
    e("s_mul_i32 s4, s4, %d" % KR_STRIDE)
    e("s_add_u32 s4, s4, %d" % WS_KR)
    e("v_lshlrev_b32 v39, 4, v0")
    e("v_lshlrev_b32 v64, 3, v0")
    e("v_sub_u32 v64, 2047, v64")
    for k in range(8):
        e(f"v_subrev_u32 v{68+k}, {k}, v64")
        e(f"v_cvt_f32_u32 v{68+k}, v{68+k}")
    for k in range(8):
        e(f"v_cvt_pk_bf16_f32 v{68+k}, v{68+k}, v{68+k}")
        e(f"v_lshlrev_b32 v{68+k}, 16, v{68+k}")
        e(f"v_cvt_u32_f32 v{68+k}, v{68+k}")
        e(f"v_lshlrev_b32 v{68+k}, 2, v{68+k}")
    for half in range(2):
        for k in range(8):
            for ww in range(2):
                e(f"ds_read_b32 v{100+16*half+2*k+ww}, v{68+k} offset:{512 + (2*half+ww)*KG_LDS_WAVE}")
        e("s_waitcnt lgkmcnt(0)") if half == 1 else None
    e("s_waitcnt lgkmcnt(0)")
    for k in range(8):
        e(f"v_add_f32 v{76+k}, v{100+2*k}, v{101+2*k}")
        e(f"v_add_f32 v{84+k}, v{116+2*k}, v{117+2*k}")
        e(f"v_add_f32 v{76+k}, v{76+k}, v{84+k}")
    for k in range(4):
        e(f"v_cvt_pk_bf16_f32 v{92+k}, v{76+2*k}, v{77+2*k}")
    e(f"buffer_store_dwordx4 v[92:95], v39, s[28:31], s4 offen")
    for k in range(4):
        e(f"v_mov_b32 v{96+k}, 0")
    e("v_cmp_gt_u32 vcc, 8, v0")
    e("s_and_saveexec_b64 s[32:33], vcc")
    e("s_cbranch_execz prep_end")
    e("s_add_u32 s4, s4, 4096")
    e("buffer_store_dwordx4 v[96:99], v39, s[28:31], s4 offen")
    e("s_endpgm")
    lab("prep_ln")
    if "ln" in SKIP: e("s_endpgm")
    e("s_load_dwordx2 s[40:41], s[0:1], 0")
    e("s_waitcnt lgkmcnt(0)")
    srd(8, 40, L*D*2); srd(28, 56, WS_SIZE)
    e("s_sub_u32 s4, s2, %d" % KG_WGS)
    e("v_and_b32 v3, 31, v2")
    e("v_lshrrev_b32 v4, 5, v2")
    e("s_lshl_b32 s5, s4, 5")
    e("v_add_u32 v5, s5, v3")
    e("v_mul_u32_u24 v6, 1280, v5")
    e("s_mul_i32 s6, s3, 320")
    e("v_lshl_add_u32 v6, v4, 4, v6")
    e("v_add_u32 v6, s6, v6")
    for kc in range(10):
        e(f"buffer_load_dwordx4 v[{40+4*kc}:{43+4*kc}], v6, s[8:11], 0 offen offset:{32*kc}")
    e("s_waitcnt vmcnt(0)")
    for k in range(40):
        e(f"v_lshlrev_b32 v{80+2*k}, 16, v{40+k}")
        e(f"v_and_b32 v{81+2*k}, 0xffff0000, v{40+k}")
    def lane_sum(srcs, dst_tmp):
        acc = dst_tmp
        for a in range(4):
            e(f"v_add_f32 v{acc+a}, v{srcs[a]}, v{srcs[a+4]}")
        for k in range(8, len(srcs)):
            e(f"v_add_f32 v{acc+(k%4)}, v{acc+(k%4)}, v{srcs[k]}")
        e(f"v_add_f32 v{acc}, v{acc}, v{acc+1}")
        e(f"v_add_f32 v{acc+2}, v{acc+2}, v{acc+3}")
        e(f"v_add_f32 v{acc}, v{acc}, v{acc+2}")
    lane_sum(list(range(80, 160)), 8)
    e("v_lshlrev_b32 v12, 2, v0")
    e("v_lshlrev_b32 v13, 2, v3")
    e("ds_write_b32 v12, v8")
    e("s_waitcnt lgkmcnt(0)")
    e("s_barrier")
    for ww in range(4):
        e(f"ds_read2_b32 v[{16+2*ww}:{17+2*ww}], v13 offset0:{64*ww} offset1:{64*ww+32}")
    e("s_waitcnt lgkmcnt(0)")
    lane_sum(list(range(16, 24)), 8)
    e("v_mul_f32 v14, 0x3acccccd, v8")
    for k in range(80):
        e(f"v_sub_f32 v{160+k}, v{80+k}, v14")
        e(f"v_mul_f32 v{160+k}, v{160+k}, v{160+k}")
    lane_sum(list(range(160, 240)), 8)
    e("ds_write_b32 v12, v8 offset:1024")
    e("s_waitcnt lgkmcnt(0)")
    e("s_barrier")
    e("v_add_u32 v13, 1024, v13")
    for ww in range(4):
        e(f"ds_read2_b32 v[{16+2*ww}:{17+2*ww}], v13 offset0:{64*ww} offset1:{64*ww+32}")
    e("s_waitcnt lgkmcnt(0)")
    lane_sum(list(range(16, 24)), 8)
    e("v_mul_f32 v8, 0x3acccccd, v8")
    e("v_cvt_pk_bf16_f32 v8, v8, v14")
    e("v_and_b32 v14, 0xffff0000, v8")
    e("v_lshlrev_b32 v8, 16, v8")
    e("v_add_f32 v8, 0x3727c5ac, v8")
    e("v_cvt_pk_bf16_f32 v8, v8, v8")
    e("v_lshlrev_b32 v8, 16, v8")
    e("v_sqrt_f32 v8, v8")
    e("s_nop 0")
    e("v_cvt_pk_bf16_f32 v8, v8, v8")
    e("v_lshlrev_b32 v8, 16, v8")
    e("v_rcp_f32 v9, v8")
    e("s_nop 0")
    e("v_fma_f32 v10, -v8, v9, 2.0")
    e("v_mul_f32 v9, v9, v10")
    for k in range(40):
        e(f"v_sub_f32 v{80+2*k}, v{80+2*k}, v14")
        e(f"v_sub_f32 v{81+2*k}, v{81+2*k}, v14")
        e(f"v_cvt_pk_bf16_f32 v{40+k}, v{80+2*k}, v{81+2*k}")
        e(f"v_lshlrev_b32 v{80+2*k}, 16, v{40+k}")
        e(f"v_and_b32 v{81+2*k}, 0xffff0000, v{40+k}")
        e(f"v_mul_f32 v{80+2*k}, v{80+2*k}, v9")
        e(f"v_mul_f32 v{81+2*k}, v{81+2*k}, v9")
        e(f"v_cvt_pk_bf16_f32 v{40+k}, v{80+2*k}, v{81+2*k}")
    e("s_mul_i32 s6, s4, 40")
    e("s_mul_i32 s7, s3, 10")
    e("s_add_u32 s6, s6, s7")
    e("s_lshl_b32 s6, s6, 10")
    e("s_add_u32 s6, s6, %d" % WS_XNF)
    e("v_lshlrev_b32 v15, 4, v2")
    for kc in range(10):
        if kc % 4 == 0 and kc:
            e("s_add_u32 s6, s6, 4096")
        e(f"buffer_store_dwordx4 v[{40+4*kc}:{43+4*kc}], v15, s[28:31], s6 offen offset:{1024*(kc%4)}")
    e("v_lshlrev_b32 v16, 15, v4")
    e("v_lshl_add_u32 v16, v5, 1, v16")
    e("s_mul_i32 s6, s3, %d" % (160*4096))
    e("s_add_u32 s6, s6, %d" % WS_XNT)
    for kc in range(10):
        for el in range(8):
            r = 40 + 4*kc + el//2
            op = "buffer_store_short_d16_hi" if el & 1 else "buffer_store_short"
            e(f"{op} v{r}, v16, s[28:31], s6 offen")
            e("s_add_u32 s6, s6, %d" % (4096 if el < 7 else 4096*9))
    e("s_endpgm")
    lab("prep_wt")
    if "wt" in SKIP: e("s_endpgm")
    e("s_load_dwordx2 s[40:41], s[0:1], 64")
    e("s_load_dwordx2 s[42:43], s[0:1], 80")
    e("s_sub_u32 s4, s2, %d" % (KG_WGS + LN_WGS))
    e("s_lshl_b32 s4, s4, 2")
    e("s_add_u32 s4, s4, s3")
    e("s_waitcnt lgkmcnt(0)")
    e("s_cmp_ge_u32 s4, 270")
    e("s_cselect_b32 s40, s42, s40")
    e("s_cselect_b32 s41, s43, s41")
    e("s_mov_b32 s5, 1728")
    e("s_mov_b32 s7, 107374183")
    e("s_cselect_b32 s5, 640, s5")
    e("s_cselect_b32 s6, 108, 40")
    e("s_cselect_b32 s7, 39768216, s7")
    e("s_cselect_b32 s32, 2160, 0")
    srd(8, 40, D*F*2); srd(28, 56, WS_SIZE)
    e("s_lshl_b32 s33, s4, 3")
    e("s_sub_u32 s32, s33, s32")
    e("v_and_b32 v3, 31, v2")
    e("v_lshrrev_b32 v4, 5, v2")
    e("s_lshl_b32 s34, s5, 4")
    e("v_mul_lo_u32 v5, v4, s34")
    e("v_lshl_add_u32 v5, v3, 1, v5")
    e("v_lshlrev_b32 v6, 4, v2")
    e("s_lshl_b32 s35, s5, 1")
    e("s_lshl_b32 s36, s33, 10")
    e("s_add_u32 s36, s36, %d" % WS_W1F)
    for batch in range(2):
        for q4 in range(4):
            q = batch*4 + q4
            e(f"s_add_u32 s37, s32, {q}")
            e("s_mul_hi_u32 s38, s37, s7")
            e("s_mul_i32 s39, s38, s6")
            e("s_sub_u32 s39, s37, s39")
            e("s_lshl_b32 s39, s39, 4")
            e("s_mul_i32 s39, s39, s35")
            e("s_lshl_b32 s38, s38, 6")
            e("s_add_u32 s39, s39, s38")
            for el in range(8):
                r = 40 + 8*q4 + el
                e(f"buffer_load_ushort v{r}, v5, s[8:11], s39 offen")
                if el < 7:
                    e("s_add_u32 s39, s39, s35")
        e("s_waitcnt vmcnt(0)")
        for q4 in range(4):
            for j in range(4):
                e(f"v_lshl_or_b32 v{8+4*q4+j}, v{41+8*q4+2*j}, 16, v{40+8*q4+2*j}")
        for q4 in range(4):
            q = batch*4 + q4
            e(f"buffer_store_dwordx4 v[{8+4*q4}:{11+4*q4}], v6, s[28:31], s36 offen offset:{1024*q4}")
        if batch == 0:
            e("s_add_u32 s36, s36, 4096")
            e("s_waitcnt vmcnt(0)")
    lab("prep_end")
    e("s_endpgm")
    kernel_desc("prep_kernel", 240)

G1_WGS = 288
CV_WGS = 640
MID_WGS = G1_WGS + CV_WGS
CS = 4160
UB = 8 * CS
G1_KS, G1_NS = 2, int(os.environ.get('G1NS', 5))
MID_LDS = max(7*G1_KS*1024*G1_NS, 41984)

def mish_pairs(acc0, acc1, b0, b1r, dst, t):
    e(f"v_cvt_pk_bf16_f32 v{t}, v{acc0}, v{acc1}")
    e(f"v_lshlrev_b32 v{t+1}, 16, v{t}")
    e(f"v_and_b32 v{t+2}, 0xffff0000, v{t}")
    e(f"v_add_f32 v{t+1}, v{t+1}, v{b0}")
    e(f"v_add_f32 v{t+2}, v{t+2}, v{b1r}")
    e(f"v_cvt_pk_bf16_f32 v{t}, v{t+1}, v{t+2}")
    e(f"v_lshlrev_b32 v{t+1}, 16, v{t}")
    e(f"v_and_b32 v{t+2}, 0xffff0000, v{t}")
    e(f"v_min_f32 v{t+3}, 0x41a00000, v{t+1}")
    e(f"v_min_f32 v{t+4}, 0x41a00000, v{t+2}")
    e(f"v_mul_f32 v{t+3}, {LOG2E:#x}, v{t+3}")
    e(f"v_mul_f32 v{t+4}, {LOG2E:#x}, v{t+4}")
    e(f"v_exp_f32 v{t+3}, v{t+3}")
    e(f"v_exp_f32 v{t+4}, v{t+4}")
    e(f"s_nop 0")
    e(f"v_add_f32 v{t}, 2.0, v{t+3}")
    e(f"v_add_f32 v{t+5}, 2.0, v{t+4}")
    e(f"v_mul_f32 v{t+3}, v{t+3}, v{t}")
    e(f"v_mul_f32 v{t+4}, v{t+4}, v{t+5}")
    e(f"v_add_f32 v{t}, 2.0, v{t+3}")
    e(f"v_add_f32 v{t+5}, 2.0, v{t+4}")
    e(f"v_rcp_f32 v{t}, v{t}")
    e(f"v_rcp_f32 v{t+5}, v{t+5}")
    e(f"v_mul_f32 v{t+1}, v{t+1}, v{t+3}")
    e(f"v_mul_f32 v{t+2}, v{t+2}, v{t+4}")
    e(f"v_mul_f32 v{t+1}, v{t+1}, v{t}")
    e(f"v_mul_f32 v{t+2}, v{t+2}, v{t+5}")
    e(f"v_cvt_pk_bf16_f32 v{dst}, v{t+1}, v{t+2}")

def gemm_loop(nA, nsteps, KS, NS, frag_reg, acc_reg, voff, srdws, sA0, sB0, stride, spiece, vlds_r_b, vlds_r_lane):
    nR = nA + 4
    npieces = nR * KS
    npw = (npieces + 3) // 4
    SZ = npieces * 1024
    nchunks = nsteps // KS
    assert nsteps % KS == 0
    e(f"s_sub_u32 s{sB0}, s{sB0}, {nA*stride}")
    for i in range(npw):
        g, l = spiece + 2*i, spiece + 2*i + 1
        e(f"s_add_u32 s{l}, s3, {4*i}")
        e(f"s_min_u32 s{l}, s{l}, {npieces-1}")
        sh = {1: 0, 2: 1, 4: 2}[KS]
        e(f"s_lshr_b32 s{g}, s{l}, {sh}")
        e(f"s_cmp_lt_u32 s{g}, {nA}")
        e(f"s_cselect_b32 s6, s{sA0}, s{sB0}")
        e(f"s_mul_i32 s{g}, s{g}, {stride}")
        e(f"s_add_u32 s{g}, s{g}, s6")
        e(f"s_and_b32 s6, s{l}, {KS-1}")
        e(f"s_lshl_b32 s6, s6, 10")
        e(f"s_add_u32 s{g}, s{g}, s6")
        e(f"s_lshl_b32 s{l}, s{l}, 10")
    def dma(c):
        slot = c % NS
        for i in range(npw):
            e(f"s_add_u32 m0, s{spiece+2*i+1}, {slot*SZ}")
            e("s_nop 0")
            e(f"buffer_load_dwordx4 v{voff}, s[{srdws}:{srdws+3}], s{spiece+2*i} offen lds")
        e(f"v_add_u32 v{voff}, {KS*1024}, v{voff}")
    per = nA + 1
    HALF = 2*SZ
    e(f"v_add_u32 v12, {HALF}, v{vlds_r_b}")
    e(f"v_add_u32 v13, {HALF}, v{vlds_r_lane}")
    e(f"v_add_u32 v14, {2*HALF}, v{vlds_r_b}")
    e(f"v_add_u32 v15, {2*HALF}, v{vlds_r_lane}")
    def reads(slot, q):
        fr = frag_reg + 4*per*q
        vb, vl, so = [(vlds_r_b, vlds_r_lane, slot*SZ), (12, 13, slot*SZ - HALF), (14, 15, slot*SZ - 2*HALF)][slot//2]
        e(f"ds_read_b128 v[{fr}:{fr+3}], v{vb} offset:{so + q*1024}")
        for a in range(nA):
            e(f"ds_read_b128 v[{fr+4+4*a}:{fr+7+4*a}], v{vl} offset:{so + a*KS*1024 + q*1024}")
    def mfmas(q):
        fr = frag_reg + 4*per*q
        for a in range(nA):
            ac = acc_reg + 16*a
            e(f"v_mfma_f32_32x32x16_bf16 v[{ac}:{ac+15}], v[{fr+4+4*a}:{fr+7+4*a}], v[{fr}:{fr+3}], v[{ac}:{ac+15}]")
    for c in range(min(NS-1, nchunks)):
        dma(c)
    for c in range(nchunks):
        inflight = min(NS-2, nchunks-1-c)
        e(f"s_waitcnt vmcnt({inflight*npw})")
        e("s_barrier")
        slot = c % NS
        for q in range(KS):
            reads(slot, q)
        if c + NS - 1 < nchunks:
            dma(c + NS - 1)
        for q in range(KS):
            e(f"s_waitcnt lgkmcnt({(KS-1-q)*per})")
            mfmas(q)

def gen_mid():
    kernel_begin("mid_kernel")
    e("s_cmp_ge_u32 s2, %d" % MID_WGS)
    e("s_cbranch_scc1 mid_end")
    e("s_load_dwordx2 s[56:57], s[0:1], 104")
    e("s_load_dwordx2 s[58:59], s[0:1], 72")
    e("s_load_dwordx2 s[60:61], s[0:1], 48")
    e("v_lshrrev_b32 v1, 6, v0")
    e("v_and_b32 v2, 63, v0")
    e("s_nop 0")
    e("v_readfirstlane_b32 s3, v1")
    e("s_waitcnt lgkmcnt(0)")
    srd(28, 56, WS_SIZE)
    e("s_cmp_ge_u32 s2, %d" % G1_WGS)
    e("s_cbranch_scc1 mid_conv")
    if "g1" in SKIP: e("s_endpgm")
    srd(8, 58, F*2)
    e("s_lshr_b32 s4, s2, 4")
    e("s_and_b32 s5, s2, 15")
    e("s_mul_i32 s6, s4, %d" % (3*40*1024))
    e("s_add_u32 s40, s6, %d" % WS_W1F)
    e("s_mul_i32 s6, s5, %d" % (4*40*1024))
    e("s_add_u32 s41, s6, %d" % WS_XNF)
    e("v_lshlrev_b32 v5, 4, v2")
    e("v_mov_b32 v4, v5")
    e("s_mul_i32 s6, s3, %d" % (G1_KS*1024))
    e("s_add_u32 s6, s6, %d" % (3*G1_KS*1024))
    e("v_add_u32 v6, s6, v5")
    e("v_lshrrev_b32 v7, 5, v2")
    e("s_mul_i32 s6, s4, 192")
    e("v_lshl_add_u32 v8, v7, 3, s6")
    for a in range(3):
        for g in range(4):
            r = 200 + 2*(4*a+g)
            e(f"buffer_load_dwordx2 v[{r}:{r+1}], v8, s[8:11], 0 offen offset:{64*a+16*g}")
    for r in range(16, 64):
        e(f"v_mov_b32 v{r}, 0")
    gemm_loop(3, 40, G1_KS, G1_NS, 96, 16, 4, 28, 40, 41, 40*1024, 64, 6, 5)
    e("s_nop 15")
    e("s_lshl_b32 s6, s5, 2")
    e("s_add_u32 s6, s6, s3")
    e("s_mul_i32 s6, s6, 108")
    e("s_mul_i32 s7, s4, 6")
    e("s_add_u32 s6, s6, s7")
    e("s_lshl_b32 s6, s6, 10")
    e("s_add_u32 s6, s6, %d" % WS_ACT)
    e("v_and_b32 v9, 31, v2")
    e("v_lshlrev_b32 v9, 4, v9")
    e("v_lshl_add_u32 v9, v7, 3, v9")
    for a in range(3):
        for g in range(4):
            r = 200 + 2*(4*a+g)
            e(f"v_lshlrev_b32 v{96}, 16, v{r}")
            e(f"v_and_b32 v{97}, 0xffff0000, v{r}")
            e(f"v_lshlrev_b32 v{98}, 16, v{r+1}")
            e(f"v_and_b32 v{99}, 0xffff0000, v{r+1}")
            ac = 16 + 16*a + 4*g
            d0 = 112 + 2*((4*a+g) % 4)
            mish_pairs(ac, ac+1, 96, 97, d0, 100)
            mish_pairs(ac+2, ac+3, 98, 99, d0+1, 106)
            off = (2*a + (g >> 1))*1024 + 512*(g & 1)
            if off >= 4096:
                e(f"s_add_u32 s7, s6, 4096")
                e(f"buffer_store_dwordx2 v[{d0}:{d0+1}], v9, s[28:31], s7 offen offset:{off-4096}")
            else:
                e(f"buffer_store_dwordx2 v[{d0}:{d0+1}], v9, s[28:31], s6 offen offset:{off}")
    e("s_endpgm")
    lab("mid_conv")
    if "cv" in SKIP: e("s_endpgm")
    srd(8, 60, D*2)
    e("s_sub_u32 s4, s2, %d" % G1_WGS)
    e("s_lshl_b32 s5, s4, 1")
    e("v_mov_b32 v3, s5")
    e("buffer_load_ushort v200, v3, s[8:11], 0 offen")
    e("s_lshl_b32 s5, s4, 12")
    e("s_add_u32 s5, s5, %d" % WS_XNT)
    e("v_lshlrev_b32 v4, 4, v0")
    e("buffer_load_dwordx4 v[8:11], v4, s[28:31], s5 offen")
    e("s_mul_i32 s6, s4, %d" % KR_STRIDE)
    e("s_add_u32 s6, s6, %d" % WS_KR)
    e("buffer_load_dwordx4 v[12:15], v4, s[28:31], s6 offen")
    e("buffer_load_dwordx4 v[16:19], v4, s[28:31], s6 offen offset:16")
    e("v_min_u32 v5, 3, v0")
    e("v_lshlrev_b32 v5, 4, v5")
    e("v_add_u32 v5, 4096, v5")
    e("buffer_load_dwordx4 v[20:23], v5, s[28:31], s6 offen")
    e("buffer_load_dwordx4 v[24:27], v5, s[28:31], s6 offen offset:16")
    for k in range(4):
        e(f"v_mov_b32 v{28+k}, 0")
    e("v_min_u32 v6, 159, v0")
    e("v_lshlrev_b32 v6, 4, v6")
    e(f"ds_write_b128 v6, v[28:31] offset:{UB}")
    e("v_lshrrev_b32 v6, 2, v0")
    e("v_mul_u32_u24 v6, 80, v6")
    e("v_and_b32 v7, 3, v0")
    e("v_lshl_add_u32 v6, v7, 4, v6")
    e("s_waitcnt vmcnt(4)")
    e(f"ds_write_b128 v6, v[8:11] offset:{UB + 32*80}")
    def copies(w, vaddr):
        for c in range(8):
            if c % 2 == 0:
                e(f"ds_write_b128 v{vaddr}, v[{w+c//2}:{w+c//2+3}] offset:{c*CS}") if (w + c//2) % 2 == 0 else None
                if (w + c//2) % 2:
                    for j in range(4):
                        e(f"v_mov_b32 v{32+j}, v{w+c//2+j}")
                    e(f"ds_write_b128 v{vaddr}, v[32:35] offset:{c*CS}")
            else:
                for j in range(4):
                    e(f"v_alignbit_b32 v{36+j}, v{w+(c+1)//2+j}, v{w+(c-1)//2+j}, 16")
                e(f"ds_write_b128 v{vaddr}, v[36:39] offset:{c*CS}")
    e("s_waitcnt vmcnt(2)")
    copies(12, 4)
    e("s_waitcnt vmcnt(0)")
    copies(20, 5)
    e("s_waitcnt lgkmcnt(0)")
    e("s_barrier")
    e("v_and_b32 v3, 31, v2")
    e("v_lshrrev_b32 v4, 5, v2")
    e("v_sub_u32 v5, 7, v3")
    e("v_and_b32 v5, 7, v5")
    e("v_sub_u32 v6, 2047, v3")
    e("v_lshl_add_u32 v6, v4, 3, v6")
    e("v_sub_u32 v6, v6, v5")
    e("v_mul_u32_u24 v7, %d, v5" % CS)
    e("v_lshl_add_u32 v6, v6, 1, v7")
    e("v_mul_u32_u24 v7, 80, v3")
    e("v_lshl_add_u32 v7, v4, 4, v7")
    e(f"v_add_u32 v7, {UB + 32*80}, v7")
    for r in range(16, 32):
        e(f"v_mov_b32 v{r}, 0")
    ranges = [(0, 0, 32), (1, 0, 22), (1, 22, 43), (1, 43, 64)]
    for w in range(4):
        if w < 3:
            e(f"s_cmp_lg_u32 s3, {w}")
            e(f"s_cbranch_scc1 cv_w{w+1}")
        ct, k0, k1 = ranges[w]
        e(f"v_subrev_u32 v8, {64*(k1-1)}, v6")
        e(f"v_add_u32 v9, {ct*32*80 - 80*(k1-1)}, v7")
        ks = list(range(k0, k1))
        G = 4
        groups = [ks[i:i+G] for i in range(0, len(ks), G)]
        def rd(gi):
            base = 32 + (gi & 1)*64
            for q, k in enumerate(groups[gi]):
                for t in range(2):
                    fa = base + 16*q + 8*t
                    e(f"ds_read_b128 v[{fa}:{fa+3}], v8 offset:{64*(k1-1-k) + 32*t}")
                    e(f"ds_read_b128 v[{fa+4}:{fa+7}], v9 offset:{80*(k1-1-k) + 32*t}")
        def mm(gi):
            base = 32 + (gi & 1)*64
            for q, k in enumerate(groups[gi]):
                for t in range(2):
                    fa = base + 16*q + 8*t
                    e(f"v_mfma_f32_32x32x16_bf16 v[16:31], v[{fa}:{fa+3}], v[{fa+4}:{fa+7}], v[16:31]")
        rd(0)
        for gi in range(len(groups)):
            if gi + 1 < len(groups):
                e("s_waitcnt lgkmcnt(0)")
                rd(gi + 1)
            else:
                e("s_waitcnt lgkmcnt(0)")
            mm(gi)
        e("s_branch cv_red")
        if w < 3:
            lab(f"cv_w{w+1}")
    lab("cv_red")
    e("s_nop 15")
    e("s_barrier")
    e("v_lshlrev_b32 v10, 2, v2")
    e("s_cmp_lt_u32 s3, 2")
    e("s_cbranch_scc1 cv_skipw")
    e("s_sub_u32 s5, s3, 2")
    e("s_lshl_b32 s5, s5, 12")
    e("v_add_u32 v11, s5, v10")
    for r in range(16):
        e(f"ds_write_b32 v11, v{16+r} offset:{256*r}")
    e("s_waitcnt lgkmcnt(0)")
    lab("cv_skipw")
    e("s_barrier")
    e("s_cmp_ge_u32 s3, 2")
    e("s_cbranch_scc1 mid_end")
    e("s_cmp_eq_u32 s3, 0")
    e("s_cbranch_scc1 cv_epi")
    for half in range(2):
        for r in range(16):
            e(f"ds_read_b32 v{32+r}, v10 offset:{4096*half + 256*r}")
        e("s_waitcnt lgkmcnt(0)")
        for r in range(16):
            e(f"v_add_f32 v{16+r}, v{16+r}, v{32+r}")
    lab("cv_epi")
    e("s_mul_i32 s5, s3, %d" % (32*80))
    e("v_mul_u32_u24 v11, 80, v3")
    e("v_lshl_add_u32 v11, v4, 3, v11")
    e("v_add_u32 v11, s5, v11")
    for g in range(4):
        e(f"ds_read_b64 v[{32+2*g}:{33+2*g}], v11 offset:{UB + 32*80 + 16*g}")
    e("s_lshl_b32 s5, s4, 12")
    e("s_lshl_b32 s6, s3, 11")
    e("s_add_u32 s5, s5, s6")
    e("s_add_u32 s5, s5, %d" % WS_AT)
    e("v_lshlrev_b32 v12, 6, v3")
    e("v_lshl_add_u32 v12, v4, 3, v12")
    e("s_waitcnt vmcnt(0) lgkmcnt(0)")
    e("v_lshlrev_b32 v200, 16, v200")
    for g in range(4):
        for p in range(2):
            u = 32 + 2*g + p
            y0 = 16 + 4*g + 2*p
            e(f"v_lshlrev_b32 v44, 16, v{u}")
            e(f"v_and_b32 v45, 0xffff0000, v{u}")
            e(f"v_mul_f32 v44, v44, v200")
            e(f"v_mul_f32 v45, v45, v200")
            e(f"v_cvt_pk_bf16_f32 v44, v44, v45")
            e(f"v_cvt_pk_bf16_f32 v46, v{y0}, v{y0+1}")
            e(f"v_lshlrev_b32 v47, 16, v44")
            e(f"v_and_b32 v48, 0xffff0000, v44")
            e(f"v_lshlrev_b32 v49, 16, v46")
            e(f"v_and_b32 v50, 0xffff0000, v46")
            e(f"v_add_f32 v47, v47, v49")
            e(f"v_add_f32 v48, v48, v50")
            e(f"v_cvt_pk_bf16_f32 v{52+2*g+p}, v47, v48")
        e(f"buffer_store_dwordx2 v[{52+2*g}:{53+2*g}], v12, s[28:31], s5 offen offset:{16*g}")
    lab("mid_end")
    e("s_endpgm")
    kernel_desc("mid_kernel", 224)

G2_WGS = 160
G2_KS, G2_NS = 4, int(os.environ.get('G2NS', 6))
FIN_LDS = 6*G2_KS*1024*G2_NS
def gen_fin():
    kernel_begin("fin_kernel")
    e("s_cmp_ge_u32 s2, %d" % G2_WGS)
    e("s_cbranch_scc1 fin_end")
    e("s_load_dwordx2 s[56:57], s[0:1], 104")
    e("s_load_dwordx2 s[58:59], s[0:1], 0")
    e("s_load_dwordx2 s[60:61], s[0:1], 88")
    e("v_lshrrev_b32 v1, 6, v0")
    e("v_and_b32 v2, 63, v0")
    e("s_nop 0")
    e("v_readfirstlane_b32 s3, v1")
    e("s_waitcnt lgkmcnt(0)")
    srd(28, 56, WS_SIZE); srd(8, 58, L*D*2); srd(12, 60, L*D*2)
    e("s_lshr_b32 s4, s2, 4")
    e("s_and_b32 s5, s2, 15")
    e("s_mul_i32 s6, s4, %d" % (2*108*1024))
    e("s_add_u32 s40, s6, %d" % WS_W2F)
    e("s_mul_i32 s6, s5, %d" % (4*108*1024))
    e("s_add_u32 s41, s6, %d" % WS_ACT)
    e("v_lshlrev_b32 v5, 4, v2")
    e("v_mov_b32 v4, v5")
    e("s_mul_i32 s6, s3, %d" % (G2_KS*1024))
    e("s_add_u32 s6, s6, %d" % (2*G2_KS*1024))
    e("v_add_u32 v6, s6, v5")
    e("v_lshrrev_b32 v7, 5, v2")
    e("v_and_b32 v8, 31, v2")
    e("s_lshl_b32 s6, s5, 2")
    e("s_add_u32 s6, s6, s3")
    e("s_lshl_b32 s6, s6, 5")
    e("v_add_u32 v8, s6, v8")
    e("v_mul_u32_u24 v9, 1280, v8")
    e("v_lshl_add_u32 v9, v7, 3, v9")
    e("s_lshl_b32 s6, s4, 7")
    e("v_add_u32 v9, s6, v9")
    for a in range(2):
        for g in range(4):
            r = 160 + 2*(4*a+g)
            e(f"buffer_load_dwordx2 v[{r}:{r+1}], v9, s[8:11], 0 offen offset:{64*a+16*g}")
    e("v_lshlrev_b32 v10, 14, v7")
    e("v_lshl_add_u32 v10, v8, 1, v10")
    e("s_lshl_b32 s6, s4, 18")
    e("s_add_u32 s6, s6, %d" % WS_AT)
    for a in range(2):
        for g in range(4):
            for j in range(4):
                r = 176 + 4*(4*a+g) + j
                e(f"buffer_load_ushort v{r}, v10, s[28:31], s6 offen")
                e("s_add_u32 s6, s6, %d" % (4096 if j < 3 else 4096*5))
    for r in range(16, 48):
        e(f"v_mov_b32 v{r}, 0")
    gemm_loop(2, 108, G2_KS, G2_NS, 96, 16, 4, 28, 40, 41, 108*1024, 64, 6, 5)
    e("s_nop 15")
    for a in range(2):
        for g in range(4):
            rx = 160 + 2*(4*a+g)
            ra = 176 + 4*(4*a+g)
            for p in range(2):
                ac = 16 + 16*a + 4*g + 2*p
                e(f"v_lshlrev_b32 v96, 16, v{rx+p}")
                e(f"v_and_b32 v97, 0xffff0000, v{rx+p}")
                e(f"v_lshlrev_b32 v98, 16, v{ra+2*p}")
                e(f"v_lshlrev_b32 v99, 16, v{ra+2*p+1}")
                e(f"v_add_f32 v96, v96, v98")
                e(f"v_add_f32 v97, v97, v99")
                e(f"v_cvt_pk_bf16_f32 v96, v96, v97")
                e(f"v_cvt_pk_bf16_f32 v98, v{ac}, v{ac+1}")
                e(f"v_lshlrev_b32 v100, 16, v96")
                e(f"v_and_b32 v101, 0xffff0000, v96")
                e(f"v_lshlrev_b32 v102, 16, v98")
                e(f"v_and_b32 v103, 0xffff0000, v98")
                e(f"v_add_f32 v100, v100, v102")
                e(f"v_add_f32 v101, v101, v103")
                e(f"v_cvt_pk_bf16_f32 v{rx+p}, v100, v101")
            e(f"buffer_store_dwordx2 v[{rx}:{rx+1}], v9, s[12:15], 0 offen offset:{64*a+16*g}")
    lab("fin_end")
    e("s_endpgm")
    kernel_desc("fin_kernel", 208)

hdr = open("cdna_kernels/%s.s.ref" % NAME).read().split("; Override launch")[0]
text = hdr
text += f"; @launch kernel=prep_kernel grid=({PREP_WGS},1,1) block=(256,1,1) lds={PREP_LDS}\n"
text += f"; @launch kernel=mid_kernel grid=({MID_WGS},1,1) block=(256,1,1) lds={MID_LDS}\n"
text += f"; @launch kernel=fin_kernel grid=({G2_WGS},1,1) block=(256,1,1) lds={FIN_LDS}\n"
text += '.amdgcn_target "amdgcn-amd-amdhsa--gfx950"\n'
gen_prep(); gen_mid(); gen_fin()
text += "\n".join(out) + "\n"
dst = sys.argv[1] if len(sys.argv) > 1 else "cdna_kernels/%s.s" % NAME
open(dst, "w").write(text)
print("wrote", dst, len(text))
```

```python
import sys, os
SKIP = os.environ.get("SKIP", "").split(",")
NAME = "parallel_sum__ssm_conv_s4d__dense_activation_mish__prompt"
L, D, N, F = 2048, 640, 128, 1728
WS_XNF = 0x0000000
WS_XNT = 0x0280000
WS_W1F = 0x0500000
WS_W2F = WS_W1F + 2160 * 1024
WS_KR = 0x0A00000
KR_STRIDE = 4224
WS_ACT = 0x0D00000
WS_AT = 0x1400000
WS_CNT = 0x1700000
WS_SIZE = 268435456
LOG2E = 0x3fb8aa3b
INV2PI = 0x3e22f983

out = []
def e(s):
    out.append("    " + s)
def lab(s):
    out.append(s + ":")
def cm(s):
    out.append("    ; " + s)

STAMP = os.environ.get("STAMP")
def stamp_init():
    if not STAMP: return
    e("s_load_dwordx2 s[84:85], s[0:1], 96")
    e("s_waitcnt lgkmcnt(0)")
    e("s_mov_b32 s80, s84"); e("s_and_b32 s81, s85, 0xffff"); e("s_mov_b32 s82, 256"); e("s_mov_b32 s83, 0x00020000")
def stamp(i):
    if not STAMP: return
    e("s_memtime s[86:87]")
    e("s_waitcnt lgkmcnt(0)")
    e(f"s_cmp_lg_u32 s2, {int(STAMP)}")
    e(f"s_cbranch_scc1 st_{stamp.n}")
    e(f"v_mov_b32 v255, s86")
    e(f"v_lshrrev_b32 v254, 6, v0")
    e(f"v_lshlrev_b32 v254, 6, v254")
    e(f"v_add_u32 v254, {4*i}, v254")
    e(f"buffer_store_dword v255, v254, s[80:83], 0 offen")
    lab(f"st_{stamp.n}")
    stamp.n += 1
stamp.n = 0

def srd(dst, ptr, size):
    e(f"s_mov_b32 s{dst}, s{ptr}")
    e(f"s_and_b32 s{dst+1}, s{ptr+1}, 0xffff")
    e(f"s_mov_b32 s{dst+2}, {size}")
    e(f"s_mov_b32 s{dst+3}, 0x00020000")

def kernel_begin(name):
    out.append(".text")
    out.append(f".globl {name}")
    out.append(".p2align 8")
    out.append(f".type {name},@function")
    lab(name)

def kernel_desc(name, vgpr, sgpr=96, agpr=0):
    if STAMP: vgpr = 256
    out.append('.section .rodata,"a"')
    out.append(".p2align 6")
    out.append(f".amdhsa_kernel {name}")
    out.append(f"  .amdhsa_next_free_vgpr {vgpr + agpr}")
    out.append(f"  .amdhsa_next_free_sgpr {sgpr}")
    out.append(f"  .amdhsa_accum_offset {(vgpr+3)//4*4}")
    out.append("  .amdhsa_group_segment_fixed_size 0")
    out.append("  .amdhsa_kernarg_size 112")
    out.append("  .amdhsa_user_sgpr_count 2")
    out.append("  .amdhsa_user_sgpr_kernarg_segment_ptr 1")
    out.append("  .amdhsa_system_sgpr_workgroup_id_x 1")
    out.append(".end_amdhsa_kernel")


def claim_tile(cnt_off, per, lds_off, lbl):
    e("s_cmp_lg_u32 s3, 0")
    e(f"s_cbranch_scc1 {lbl}_w")
    e("s_getreg_b32 s20, hwreg(HW_REG_XCC_ID)")
    e("s_and_b32 s20, s20, 7")
    e("s_mov_b32 s21, 0")
    e("s_mov_b64 s[22:23], exec")
    e("s_mov_b64 exec, 1")
    e("v_mov_b32 v12, 1")
    lab(f"{lbl}_l")
    e("s_lshl_b32 s24, s20, 6")
    e(f"s_add_u32 s24, s24, {WS_CNT + cnt_off}")
    e("v_mov_b32 v13, 0")
    e("v_mov_b32 v14, v12")
    e("buffer_atomic_add v14, v13, s[28:31], s24 offen sc0")
    e("s_waitcnt vmcnt(0)")
    e("v_readfirstlane_b32 s25, v14")
    e(f"s_cmp_lt_u32 s25, {per}")
    e(f"s_cbranch_scc1 {lbl}_f")
    e("s_add_u32 s20, s20, 1")
    e("s_and_b32 s20, s20, 7")
    e("s_add_u32 s21, s21, 1")
    e("s_cmp_lt_u32 s21, 8")
    e(f"s_cbranch_scc1 {lbl}_l")
    e("s_mov_b32 s25, 0")
    lab(f"{lbl}_f")
    e(f"s_mul_i32 s20, s20, {per}")
    e("s_add_u32 s20, s20, s25")
    e("v_mov_b32 v14, s20")
    e(f"v_mov_b32 v13, {lds_off}")
    e("ds_write_b32 v13, v14")
    e("s_mov_b64 exec, s[22:23]")
    e("s_waitcnt lgkmcnt(0)")
    lab(f"{lbl}_w")
    e("s_barrier")
    e(f"v_mov_b32 v13, {lds_off}")
    e("ds_read_b32 v14, v13")
    e("s_waitcnt lgkmcnt(0)")
    e("v_readfirstlane_b32 s2, v14")

LN_WGS, WT_WGS, KG_WGS = 128, 135, 640
PREP_WGS = KG_WGS + LN_WGS + WT_WGS
KG_LDS_WAVE = 512
KG_TAB0 = 2048
KG_TAB = 2688
KG_FIN = KG_TAB0 + 4*KG_TAB
PREP_LDS = 23552
LNS = 36

def gen_prep():
    kernel_begin("prep_kernel")
    e("s_cmp_ge_u32 s2, %d" % PREP_WGS)
    e("s_cbranch_scc1 prep_end")
    e("s_load_dwordx2 s[56:57], s[0:1], 104")
    e("v_lshrrev_b32 v1, 6, v0")
    e("v_and_b32 v2, 63, v0")
    e("s_nop 0")
    e("v_readfirstlane_b32 s3, v1")
    e("s_cmp_ge_u32 s2, %d" % (KG_WGS + LN_WGS))
    e("s_cbranch_scc1 prep_wt")
    e("s_cmp_ge_u32 s2, %d" % KG_WGS)
    e("s_cbranch_scc1 prep_ln")
    if "kg" in SKIP: e("s_endpgm")
    e("s_load_dwordx4 s[40:43], s[0:1], 8")
    e("s_load_dwordx4 s[44:47], s[0:1], 24")
    e("s_load_dwordx2 s[48:49], s[0:1], 40")
    e("s_mov_b32 s4, s2")
    e("s_mul_i32 s5, s3, %d" % KG_LDS_WAVE)
    e("s_lshl_b32 s6, s4, 8")
    e("s_lshl_b32 s7, s3, 6")
    e("s_add_u32 s6, s6, s7")
    e("v_and_b32 v3, 31, v2")
    e("v_lshl_add_u32 v3, v3, 1, s6")
    e("s_lshl_b32 s7, s4, 1")
    e("v_mov_b32 v4, s7")
    e("s_waitcnt lgkmcnt(0)")
    srd(8, 40, D*N*2); srd(12, 42, D*N*2); srd(16, 44, D*N*2); srd(20, 46, D*N*2)
    srd(24, 48, D*2); srd(28, 56, WS_SIZE)
    for k, sr in enumerate((8, 12, 16, 20)):
        e(f"buffer_load_ushort v{10+k}, v3, s[{sr}:{sr+3}], 0 offen")
    e("buffer_load_ushort v18, v4, s[24:27], 0 offen")
    e("v_and_b32 v8, 15, v2")
    e("v_lshrrev_b32 v9, 4, v2")
    e("v_and_b32 v24, 7, v8")
    e("v_lshrrev_b32 v25, 3, v8")
    e("v_lshl_add_u32 v28, v25, 7, v24")
    e("v_and_b32 v24, 3, v8")
    e("v_lshlrev_b32 v24, 1, v24")
    e("v_bfe_u32 v25, v8, 2, 1")
    e("v_lshl_add_u32 v24, v25, 7, v24")
    e("v_add_u32 v24, 256, v24")
    e("v_and_b32 v25, 1, v8")
    e("v_lshlrev_b32 v25, 2, v25")
    e("v_bfe_u32 v26, v8, 1, 2")
    e("v_lshl_add_u32 v25, v26, 7, v25")
    e("v_add_u32 v25, 512, v25")
    e("v_cmp_gt_u32 vcc, 8, v8")
    e("s_nop 1")
    e("v_cndmask_b32 v29, v25, v24, vcc")
    e("v_lshlrev_b32 v30, 7, v8")
    e("v_add_u32 v30, 0x400, v30")
    e("v_lshlrev_b32 v31, 3, v8")
    for t in range(4):
        e(f"v_cvt_f32_u32 v{28+t}, v{28+t}")
    e("s_mul_i32 s6, s3, %d" % KG_TAB)
    e("s_add_u32 s6, s6, %d" % KG_TAB0)
    e("v_and_b32 v24, 1, v9")
    e("v_lshrrev_b32 v25, 1, v9")
    e("v_lshl_add_u32 v33, v8, 5, s6")
    e("v_lshl_add_u32 v33, v24, 4, v33")
    e("v_lshl_add_u32 v33, v25, 9, v33")
    e("v_lshlrev_b32 v24, 4, v8")
    e("v_lshlrev_b32 v25, 3, v8")
    e("v_cmp_gt_u32 vcc, 2, v9")
    e("s_nop 1")
    e("v_cndmask_b32 v24, v25, v24, vcc")
    e("v_lshl_add_u32 v24, v9, 8, v24")
    e("v_add_u32 v24, s6, v24")
    e("v_add_u32 v34, 1024, v24")
    e("v_mov_b32 v25, 128")
    e("v_cndmask_b32_e64 v24, v25, 8, vcc")
    e("v_add_u32 v36, v34, v24")
    e("v_lshl_add_u32 v38, v8, 2, s6")
    e("v_lshl_add_u32 v38, v9, 8, v38")
    e("v_add_u32 v38, 2048, v38")
    e("v_lshl_add_u32 v39, v9, 4, s5")
    for r in range(40, 52):
        e(f"v_mov_b32 v{r}, 0")
    e("s_waitcnt vmcnt(0)")
    for r in (10, 11, 12, 13, 18):
        e(f"v_lshlrev_b32 v{r}, 16, v{r}")
    e(f"v_mul_f32 v18, {LOG2E:#x}, v18")
    e(f"v_mul_f32 v10, {LOG2E:#x}, v10")
    e("v_exp_f32 v18, v18")
    e("v_exp_f32 v10, v10")
    e("s_nop 0")
    e("v_cvt_pk_bf16_f32 v18, v18, v18")
    e("v_cvt_pk_bf16_f32 v10, v10, v10")
    e("v_lshlrev_b32 v18, 16, v18")
    e("v_lshlrev_b32 v10, 16, v10")
    e("v_add_f32 v19, v18, v18")
    e("v_and_b32 v5, 31, v2")
    e("v_lshl_add_u32 v5, v5, 4, s5")
    e("v_mul_f32 v20, v10, v18")
    e(f"v_mul_f32 v20, {LOG2E|0x80000000:#x}, v20")
    e("v_mul_f32 v21, v11, v18")
    e(f"v_mul_f32 v21, {INV2PI:#x}, v21")
    e("v_mul_f32 v22, v12, v19")
    e("v_mul_f32 v23, v13, v19")
    e("ds_write_b128 v5, v[20:23]")
    e("s_waitcnt lgkmcnt(0)")
    for st in range(8):
        e(f"ds_read_b128 v[{96+4*st}:{99+4*st}], v39 offset:{64*st}")
    e("s_waitcnt lgkmcnt(0)")
    def kg_valu(st):
        P = 96 + 4*st
        O = 72 + 10*(st & 1)
        v = []
        for t in range(4):
            v.append(f"v_mul_f32 v{52+t}, v{P}, v{28+t}")
            v.append(f"v_mul_f32 v{56+t}, v{P+1}, v{28+t}")
        for t in range(4):
            v.append(f"v_exp_f32 v{52+t}, v{52+t}")
            v.append(f"v_fract_f32 v{56+t}, v{56+t}")
        for t in range(4):
            v.append(f"v_cos_f32 v{60+t}, v{56+t}")
            v.append(f"v_sin_f32 v{64+t}, v{56+t}")
        for t in range(4):
            v.append(f"v_mul_f32 v{60+t}, v{52+t}, v{60+t}")
            v.append(f"v_mul_f32 v{64+t}, v{52+t}, v{64+t}")
        v.append(f"v_mul_f32 v55, v63, v{P+2}")
        v.append(f"v_mul_f32_e64 v59, -v63, v{P+3}")
        v.append(f"v_fma_f32 v55, -v67, v{P+3}, v55")
        v.append(f"v_fma_f32 v59, -v67, v{P+2}, v59")
        def split(xr, xi, H, Lo, t0, t1):
            v.append(f"v_cvt_pk_bf16_f32 v{H}, v{xr}, v{xi}")
            v.append(f"v_lshlrev_b32 v{t0}, 16, v{H}")
            v.append(f"v_and_b32 v{t1}, 0xffff0000, v{H}")
            v.append(f"v_sub_f32 v{t0}, v{xr}, v{t0}")
            v.append(f"v_sub_f32 v{t1}, v{xi}, v{t1}")
            v.append(f"v_cvt_pk_bf16_f32 v{Lo}, v{t0}, v{t1}")
        split(55, 59, O, O+2, 68, 69)
        v.append(f"v_mov_b32 v{O+1}, v{O}")
        v.append(f"v_mov_b32 v{O+3}, v{O+2}")
        for t in range(3):
            split(60+t, 64+t, O+4+2*t, O+5+2*t, 52+t, 56+t)
        return v
    def kg_mfma(st):
        O = 72 + 10*(st & 1)
        m = []
        for h in range(2):
            for t in range(3):
                a = 40 + 4*t
                m.append(f"v_mfma_f32_16x16x16_bf16 v[{a}:{a+3}], v[{O+4+2*t}:{O+5+2*t}], v[{O+2*h}:{O+2*h+1}], v[{a}:{a+3}]")
        return m
    for st in range(9):
        v = kg_valu(st) if st < 8 else []
        m = kg_mfma(st-1) if st > 0 else []
        if "kgm" in SKIP: m = []
        if "kgv" in SKIP: v = []
        if not v:
            e("s_nop 1")
        vi = 0
        for mi, mm_ in enumerate(m):
            tgt = 2 + 7*mi
            while vi < min(tgt, len(v)):
                e(v[vi]); vi += 1
            e(mm_)
        while vi < len(v):
            e(v[vi]); vi += 1
    e("s_nop 15")
    for r in range(4):
        e(f"ds_write_b32 v33, v{40+r} offset:{4*r}")
    e("ds_write_b32 v34, v44")
    e("ds_write_b32 v34, v45 offset:4")
    e("ds_write_b32 v36, v46")
    e("ds_write_b32 v36, v47 offset:4")
    e("s_mov_b32 exec_hi, 0xffff")
    e("ds_write_b32 v38, v48")
    e("s_mov_b32 exec_hi, 0")
    for r in range(1, 4):
        e(f"ds_write_b32 v38, v{48+r} offset:{64*r}")
    e("s_mov_b32 exec_hi, -1")
    e("s_mul_i32 s4, s4, %d" % KR_STRIDE)
    e("s_add_u32 s4, s4, %d" % WS_KR)
    e("v_lshlrev_b32 v39, 4, v0")
    e("v_lshlrev_b32 v64, 3, v0")
    e("v_sub_u32 v64, 2047, v64")
    e("v_lshlrev_b32 v65, 2, v0")
    e("v_lshlrev_b32 v66, 1, v0")
    for k in range(8):
        e(f"v_subrev_u32 v{52+k}, {k}, v64")
        e(f"v_cvt_f32_u32 v{72+k}, v{52+k}")
    for k in range(4):
        e(f"v_cvt_pk_bf16_f32 v{80+k}, v{72+2*k}, v{73+2*k}")
        e(f"v_and_b32 v{72+2*k}, 0xffff, v{80+k}")
        e(f"v_lshrrev_b32 v{73+2*k}, 16, v{80+k}")
    for k in range(8):
        e(f"v_subrev_u32 v{72+k}, 17024, v{72+k}")
        e(f"v_cmp_gt_u32 vcc, 256, v{52+k}")
        e("s_nop 1")
        e(f"v_cndmask_b32 v{52+k}, v{72+k}, v{52+k}, vcc")
        e(f"v_lshlrev_b32 v{52+k}, 1, v{52+k}")
    e("s_waitcnt lgkmcnt(0)")
    e("s_barrier")
    for m in range(3):
        for ww in range(4):
            e(f"ds_read_b32 v{72+4*m+ww}, v65 offset:{KG_TAB0 + ww*KG_TAB + 1024*m}")
    for m in range(3):
        e(f"s_waitcnt lgkmcnt({8-4*m})")
        e(f"v_add_f32 v{72+4*m}, v{72+4*m}, v{73+4*m}")
        e(f"v_add_f32 v{74+4*m}, v{74+4*m}, v{75+4*m}")
        e(f"v_add_f32 v{72+4*m}, v{72+4*m}, v{74+4*m}")
        e(f"v_cvt_pk_bf16_f32 v{72+4*m}, v{72+4*m}, v{72+4*m}")
        e(f"ds_write_b16 v66, v{72+4*m} offset:{KG_FIN + 512*m}")
    e("s_waitcnt lgkmcnt(0)")
    e("s_barrier")
    for k in range(8):
        e(f"ds_read_u16 v{96+k}, v{52+k} offset:{KG_FIN}")
    e("s_waitcnt lgkmcnt(0)")
    for k in range(4):
        e(f"v_lshl_or_b32 v{112+k}, v{97+2*k}, 16, v{96+2*k}")
    e(f"buffer_store_dwordx4 v[112:115], v39, s[28:31], s4 offen")
    for k in range(4):
        e(f"v_mov_b32 v{116+k}, 0")
    e("v_cmp_gt_u32 vcc, 8, v0")
    e("s_and_saveexec_b64 s[32:33], vcc")
    e("s_cbranch_execz prep_end")
    e("s_add_u32 s4, s4, 4096")
    e("buffer_store_dwordx4 v[116:119], v39, s[28:31], s4 offen")
    e("s_cmp_lg_u32 s2, 0")
    e("s_cbranch_scc1 prep_end")
    e("v_lshlrev_b32 v39, 6, v0")
    e("s_mov_b32 s4, %d" % WS_CNT)
    e("buffer_store_dword v116, v39, s[28:31], s4 offen")
    e("buffer_store_dword v116, v39, s[28:31], s4 offen offset:512")
    e("s_endpgm")
    lab("prep_ln")
    if "ln" in SKIP: e("s_endpgm")
    e("s_load_dwordx2 s[40:41], s[0:1], 0")
    e("s_sub_u32 s2, s2, %d" % KG_WGS)
    e("v_and_b32 v3, 15, v0")
    e("v_lshrrev_b32 v4, 4, v0")
    e("s_lshl_b32 s5, s2, 4")
    e("v_add_u32 v5, s5, v4")
    e("v_mul_u32_u24 v6, 1280, v5")
    e("v_lshl_add_u32 v6, v3, 4, v6")
    e("s_waitcnt lgkmcnt(0)")
    srd(8, 40, L*D*2); srd(28, 56, WS_SIZE)
    for j in range(5):
        e(f"buffer_load_dwordx4 v[{16+4*j}:{19+4*j}], v6, s[8:11], 0 offen offset:{256*j}")
    e("s_lshr_b32 s6, s2, 1")
    e("s_mul_i32 s6, s6, %d" % (40*1024))
    e("s_add_u32 s6, s6, %d" % WS_XNF)
    e("v_lshrrev_b32 v7, 1, v3")
    e("v_lshlrev_b32 v7, 10, v7")
    e("v_and_b32 v8, 1, v3")
    e("v_lshl_add_u32 v7, v8, 9, v7")
    e("v_and_b32 v8, 31, v5")
    e("v_lshl_add_u32 v7, v8, 4, v7")
    e(f"v_mul_u32_u24 v9, {8*LNS}, v3")
    e("v_lshl_add_u32 v9, v4, 1, v9")
    e("s_waitcnt vmcnt(0)")
    for k in range(20):
        e(f"v_lshlrev_b32 v{40+2*k}, 16, v{16+k}")
        e(f"v_and_b32 v{41+2*k}, 0xffff0000, v{16+k}")
    def lane_sum(srcs, acc):
        for a in range(4):
            e(f"v_add_f32 v{acc+a}, v{srcs[a]}, v{srcs[a+4]}")
        for k in range(8, len(srcs)):
            e(f"v_add_f32 v{acc+(k%4)}, v{acc+(k%4)}, v{srcs[k]}")
        e(f"v_add_f32 v{acc}, v{acc}, v{acc+1}")
        e(f"v_add_f32 v{acc+2}, v{acc+2}, v{acc+3}")
        e(f"v_add_f32 v{acc}, v{acc}, v{acc+2}")
        for sh in (8, 4, 2, 1):
            e("s_nop 1")
            e(f"v_add_f32_dpp v{acc}, v{acc}, v{acc} row_ror:{sh} row_mask:0xf bank_mask:0xf")
    lane_sum(list(range(40, 80)), 10)
    e("v_mul_f32 v14, 0x3acccccd, v10")
    for k in range(40):
        e(f"v_sub_f32 v{80+k}, v{40+k}, v14")
        e(f"v_mul_f32 v{80+k}, v{80+k}, v{80+k}")
    lane_sum(list(range(80, 120)), 10)
    e("v_mul_f32 v10, 0x3acccccd, v10")
    e("v_cvt_pk_bf16_f32 v10, v10, v14")
    e("v_and_b32 v14, 0xffff0000, v10")
    e("v_lshlrev_b32 v10, 16, v10")
    e("v_add_f32 v10, 0x3727c5ac, v10")
    e("v_cvt_pk_bf16_f32 v10, v10, v10")
    e("v_lshlrev_b32 v10, 16, v10")
    e("v_sqrt_f32 v10, v10")
    e("s_nop 0")
    e("v_cvt_pk_bf16_f32 v10, v10, v10")
    e("v_lshlrev_b32 v10, 16, v10")
    e("v_rcp_f32 v11, v10")
    e("s_nop 0")
    e("v_fma_f32 v12, -v10, v11, 2.0")
    e("v_mul_f32 v11, v11, v12")
    for k in range(20):
        e(f"v_sub_f32 v{40+2*k}, v{40+2*k}, v14")
        e(f"v_sub_f32 v{41+2*k}, v{41+2*k}, v14")
        e(f"v_cvt_pk_bf16_f32 v{16+k}, v{40+2*k}, v{41+2*k}")
        e(f"v_lshlrev_b32 v{40+2*k}, 16, v{16+k}")
        e(f"v_and_b32 v{41+2*k}, 0xffff0000, v{16+k}")
        e(f"v_mul_f32 v{40+2*k}, v{40+2*k}, v11")
        e(f"v_mul_f32 v{41+2*k}, v{41+2*k}, v11")
        e(f"v_cvt_pk_bf16_f32 v{16+k}, v{40+2*k}, v{41+2*k}")
    for j in range(5):
        e(f"buffer_store_dwordx4 v[{16+4*j}:{19+4*j}], v7, s[28:31], s6 offen")
        if j < 4: e("s_add_u32 s6, s6, 8192")
    for j in range(5):
        for el in range(8):
            r = 16 + 4*j + el//2
            op = "ds_write_b16_d16_hi" if el & 1 else "ds_write_b16"
            e(f"{op} v9, v{r} offset:{(128*j + el)*LNS}")
    e("v_lshrrev_b32 v10, 1, v0")
    e("v_and_b32 v11, 1, v0")
    e(f"v_mul_u32_u24 v12, {LNS}, v10")
    e("v_lshl_add_u32 v12, v11, 4, v12")
    e("v_lshlrev_b32 v13, 12, v10")
    e("v_lshl_add_u32 v13, v11, 4, v13")
    e("s_lshl_b32 s6, s2, 5")
    e("s_add_u32 s6, s6, %d" % WS_XNT)
    e("s_waitcnt lgkmcnt(0)")
    e("s_barrier")
    for j in range(5):
        e(f"ds_read2_b32 v[{40+4*j}:{41+4*j}], v12 offset0:{(128*j*LNS)//4 % 256} offset1:{(128*j*LNS)//4 % 256 + 1}")
        e(f"ds_read2_b32 v[{42+4*j}:{43+4*j}], v12 offset0:{(128*j*LNS)//4 % 256 + 2} offset1:{(128*j*LNS)//4 % 256 + 3}")
        if j < 4:
            nxt = (128*(j+1)*LNS)//4 // 256 - (128*j*LNS)//4 // 256
            e(f"v_add_u32 v12, {nxt*1024}, v12")
    for j in range(5):
        e(f"s_waitcnt lgkmcnt({2*(4-j)})")
        e(f"buffer_store_dwordx4 v[{40+4*j}:{43+4*j}], v13, s[28:31], s6 offen")
        if j < 4: e("s_add_u32 s6, s6, %d" % (128*4096))
    e("s_endpgm")
    lab("prep_wt")
    if "wt" in SKIP: e("s_endpgm")
    e("s_load_dwordx2 s[40:41], s[0:1], 64")
    e("s_load_dwordx2 s[42:43], s[0:1], 80")
    e("s_sub_u32 s4, s2, %d" % (KG_WGS + LN_WGS))
    e("s_lshl_b32 s4, s4, 2")
    e("s_add_u32 s4, s4, s3")
    e("s_waitcnt lgkmcnt(0)")
    e("s_cmp_ge_u32 s4, 270")
    e("s_cselect_b32 s40, s42, s40")
    e("s_cselect_b32 s41, s43, s41")
    e("s_mov_b32 s5, 1728")
    e("s_mov_b32 s7, 107374183")
    e("s_cselect_b32 s5, 640, s5")
    e("s_cselect_b32 s6, 108, 40")
    e("s_cselect_b32 s7, 39768216, s7")
    e("s_cselect_b32 s32, 2160, 0")
    srd(8, 40, D*F*2); srd(28, 56, WS_SIZE)
    e("s_lshl_b32 s33, s4, 3")
    e("s_sub_u32 s32, s33, s32")
    e("v_and_b32 v3, 31, v2")
    e("v_lshrrev_b32 v4, 5, v2")
    e("s_lshl_b32 s34, s5, 4")
    e("v_mul_lo_u32 v5, v4, s34")
    e("v_lshl_add_u32 v5, v3, 1, v5")
    e("v_lshlrev_b32 v6, 4, v2")
    e("s_lshl_b32 s35, s5, 1")
    e("s_lshl_b32 s36, s33, 10")
    e("s_add_u32 s36, s36, %d" % WS_W1F)
    for batch in range(2):
        for q4 in range(4):
            q = batch*4 + q4
            e(f"s_add_u32 s37, s32, {q}")
            e("s_mul_hi_u32 s38, s37, s7")
            e("s_mul_i32 s39, s38, s6")
            e("s_sub_u32 s39, s37, s39")
            e("s_lshl_b32 s39, s39, 4")
            e("s_mul_i32 s39, s39, s35")
            e("s_lshl_b32 s38, s38, 6")
            e("s_add_u32 s39, s39, s38")
            for el in range(8):
                r = 40 + 8*q4 + el
                e(f"buffer_load_ushort v{r}, v5, s[8:11], s39 offen")
                if el < 7:
                    e("s_add_u32 s39, s39, s35")
        e("s_waitcnt vmcnt(0)")
        for q4 in range(4):
            for j in range(4):
                e(f"v_lshl_or_b32 v{8+4*q4+j}, v{41+8*q4+2*j}, 16, v{40+8*q4+2*j}")
        for q4 in range(4):
            q = batch*4 + q4
            e(f"buffer_store_dwordx4 v[{8+4*q4}:{11+4*q4}], v6, s[28:31], s36 offen offset:{1024*q4}")
        if batch == 0:
            e("s_add_u32 s36, s36, 4096")
            e("s_waitcnt vmcnt(0)")
    lab("prep_end")
    e("s_endpgm")
    kernel_desc("prep_kernel", 128)

G1_WGS = 256
CV_WGS = 640
MID_WGS = G1_WGS + CV_WGS
CS = 4160
UB = 8 * CS
G1_NS, G1_BD = int(os.environ.get('G1NS', 5)), int(os.environ.get('G1BD', 3))
MID_LDS = 40960

def mish_pairs(acc0, acc1, b0, b1r, dst, t):
    e(f"v_cvt_pk_bf16_f32 v{t}, v{acc0}, v{acc1}")
    e(f"v_lshlrev_b32 v{t+1}, 16, v{t}")
    e(f"v_and_b32 v{t+2}, 0xffff0000, v{t}")
    e(f"v_add_f32 v{t+1}, v{t+1}, v{b0}")
    e(f"v_add_f32 v{t+2}, v{t+2}, v{b1r}")
    e(f"v_cvt_pk_bf16_f32 v{t}, v{t+1}, v{t+2}")
    e(f"v_lshlrev_b32 v{t+1}, 16, v{t}")
    e(f"v_and_b32 v{t+2}, 0xffff0000, v{t}")
    e(f"v_min_f32 v{t+3}, 0x41a00000, v{t+1}")
    e(f"v_min_f32 v{t+4}, 0x41a00000, v{t+2}")
    e(f"v_mul_f32 v{t+3}, {LOG2E:#x}, v{t+3}")
    e(f"v_mul_f32 v{t+4}, {LOG2E:#x}, v{t+4}")
    e(f"v_exp_f32 v{t+3}, v{t+3}")
    e(f"v_exp_f32 v{t+4}, v{t+4}")
    e(f"s_nop 0")
    e(f"v_add_f32 v{t}, 2.0, v{t+3}")
    e(f"v_add_f32 v{t+5}, 2.0, v{t+4}")
    e(f"v_mul_f32 v{t+3}, v{t+3}, v{t}")
    e(f"v_mul_f32 v{t+4}, v{t+4}, v{t+5}")
    e(f"v_add_f32 v{t}, 2.0, v{t+3}")
    e(f"v_add_f32 v{t+5}, 2.0, v{t+4}")
    e(f"v_rcp_f32 v{t}, v{t}")
    e(f"v_rcp_f32 v{t+5}, v{t+5}")
    e(f"v_mul_f32 v{t+1}, v{t+1}, v{t+3}")
    e(f"v_mul_f32 v{t+2}, v{t+2}, v{t+4}")
    e(f"v_mul_f32 v{t+1}, v{t+1}, v{t}")
    e(f"v_mul_f32 v{t+2}, v{t+2}, v{t+5}")
    e(f"v_cvt_pk_bf16_f32 v{dst}, v{t+1}, v{t+2}")

def gemm_loop(nA, nsteps, KS, NS, frag_reg, acc_reg, voff, srdws, sA0, sB0, stride, spiece, vlds_r_b, vlds_r_lane):
    nR = nA + 4
    npieces = nR * KS
    npw = (npieces + 3) // 4
    SZ = npieces * 1024
    nchunks = nsteps // KS
    assert nsteps % KS == 0
    e(f"s_sub_u32 s{sB0}, s{sB0}, {nA*stride}")
    for i in range(npw):
        g, l = spiece + 2*i, spiece + 2*i + 1
        e(f"s_add_u32 s{l}, s3, {4*i}")
        e(f"s_min_u32 s{l}, s{l}, {npieces-1}")
        sh = {1: 0, 2: 1, 4: 2}[KS]
        e(f"s_lshr_b32 s{g}, s{l}, {sh}")
        e(f"s_cmp_lt_u32 s{g}, {nA}")
        e(f"s_cselect_b32 s6, s{sA0}, s{sB0}")
        e(f"s_mul_i32 s{g}, s{g}, {stride}")
        e(f"s_add_u32 s{g}, s{g}, s6")
        e(f"s_and_b32 s6, s{l}, {KS-1}")
        e(f"s_lshl_b32 s6, s6, 10")
        e(f"s_add_u32 s{g}, s{g}, s6")
        e(f"s_lshl_b32 s{l}, s{l}, 10")
    def dma(c):
        slot = c % NS
        for i in range(npw):
            e(f"s_add_u32 m0, s{spiece+2*i+1}, {slot*SZ}")
            e("s_nop 0")
            e(f"buffer_load_dwordx4 v{voff}, s[{srdws}:{srdws+3}], s{spiece+2*i} offen lds")
        e(f"v_add_u32 v{voff}, {KS*1024}, v{voff}")
    per = nA + 1
    HALF = 2*SZ
    e(f"v_add_u32 v12, {HALF}, v{vlds_r_b}")
    e(f"v_add_u32 v13, {HALF}, v{vlds_r_lane}")
    e(f"v_add_u32 v14, {2*HALF}, v{vlds_r_b}")
    e(f"v_add_u32 v15, {2*HALF}, v{vlds_r_lane}")
    def reads(slot, q):
        fr = frag_reg + 4*per*q
        vb, vl, so = [(vlds_r_b, vlds_r_lane, slot*SZ), (12, 13, slot*SZ - HALF), (14, 15, slot*SZ - 2*HALF)][slot//2]
        e(f"ds_read_b128 v[{fr}:{fr+3}], v{vb} offset:{so + q*1024}")
        for a in range(nA):
            e(f"ds_read_b128 v[{fr+4+4*a}:{fr+7+4*a}], v{vl} offset:{so + a*KS*1024 + q*1024}")
    def mfmas(q):
        fr = frag_reg + 4*per*q
        for a in range(nA):
            ac = acc_reg + 16*a
            e(f"v_mfma_f32_32x32x16_bf16 v[{ac}:{ac+15}], v[{fr+4+4*a}:{fr+7+4*a}], v[{fr}:{fr+3}], v[{ac}:{ac+15}]")
    for c in range(min(NS-1, nchunks)):
        dma(c)
    for c in range(nchunks):
        inflight = min(NS-2, nchunks-1-c)
        e(f"s_waitcnt vmcnt({inflight*npw})")
        e("s_barrier")
        if nA == 2 and c == 0: stamp(2)
        if nA == 2 and c == 1: stamp(3)
        slot = c % NS
        if "rd" not in SKIP:
            for q in range(KS):
                reads(slot, q)
        if c + NS - 1 < nchunks and "dma" not in SKIP:
            dma(c + NS - 1)
        for q in range(KS):
            e(f"s_waitcnt lgkmcnt({(KS-1-q)*per})")
            if "mf" not in SKIP: mfmas(q)

def gen_mid():
    kernel_begin("mid_kernel")
    e("s_cmp_ge_u32 s2, %d" % MID_WGS)
    e("s_cbranch_scc1 mid_end")
    e("s_load_dwordx2 s[56:57], s[0:1], 104")
    e("s_load_dwordx2 s[58:59], s[0:1], 72")
    e("s_load_dwordx2 s[60:61], s[0:1], 48")
    e("v_lshrrev_b32 v1, 6, v0")
    e("v_and_b32 v2, 63, v0")
    e("s_nop 0")
    e("v_readfirstlane_b32 s3, v1")
    e("s_waitcnt lgkmcnt(0)")
    srd(28, 56, WS_SIZE)
    e("s_cmp_ge_u32 s2, %d" % G1_WGS)
    e("s_cbranch_scc1 mid_conv")
    if "g1" in SKIP: e("s_endpgm")
    srd(8, 58, F*2)
    claim_tile(0, 32, 7168*G1_NS, "mcl")
    e("s_lshr_b32 s5, s2, 4")
    e("s_and_b32 s4, s2, 15")
    e("s_mul_i32 s6, s4, 7")
    e("s_sub_u32 s7, s4, 12")
    e("s_cmp_lt_u32 s4, 12")
    e("s_cselect_b32 s7, 0, s7")
    e("s_cselect_b32 s26, 7, 6")
    e("s_sub_u32 s4, s6, s7")
    e("v_and_b32 v3, 15, v2")
    e("v_lshrrev_b32 v4, 4, v2")
    e("v_lshrrev_b32 v5, 1, v4")
    e("v_and_b32 v6, 1, v4")
    e("v_lshlrev_b32 v7, 4, v3")
    e("v_lshl_add_u32 v7, v5, 10, v7")
    e("v_lshl_add_u32 v7, v6, 9, v7")
    e("v_mov_b32 v8, v7")
    for k in range(2):
        e(f"s_add_u32 s6, s3, {4*k}")
        e("s_min_u32 s6, s6, 6")
        e(f"s_lshl_b32 s{42+k}, s6, 10")
        e("s_add_u32 s6, s6, s4")
        e("s_min_u32 s6, s6, 107")
        e(f"s_lshr_b32 s{40+k}, s6, 1")
        e(f"s_mul_i32 s{40+k}, s{40+k}, {40*1024}")
        e("s_and_b32 s6, s6, 1")
        e("s_lshl_b32 s6, s6, 8")
        e(f"s_add_u32 s{40+k}, s{40+k}, s6")
        e(f"s_add_u32 s{40+k}, s{40+k}, {WS_W1F}")
    e("s_lshl_b32 s6, s5, 2")
    e("s_add_u32 s27, s6, s3")
    e("s_mul_i32 s44, s27, %d" % (40*1024))
    e("s_add_u32 s44, s44, %d" % WS_XNF)
    e("v_lshlrev_b32 v9, 4, v2")
    NS, BD, NSTEP = G1_NS, G1_BD, 20
    AF, BF, ACC, BI = 16, 44, 44 + 8*G1_BD, 44
    pend = []
    def dma(st):
        for k in range(2):
            e(f"s_add_u32 m0, s{42+k}, {(st % NS)*7168}")
            e("s_nop 0")
            e(f"buffer_load_dwordx4 v7, s[28:31], s{40+k} offen lds")
            pend.append(("a", st))
        e("v_add_u32 v7, 2048, v7")
    def bld(st):
        r = BF + 8*(st % BD)
        e(f"buffer_load_dwordx4 v[{r}:{r+3}], v8, s[28:31], s44 offen")
        e(f"buffer_load_dwordx4 v[{r+4}:{r+7}], v8, s[28:31], s44 offen offset:256")
        pend.append(("b", st)); pend.append(("b", st))
        e("v_add_u32 v8, 2048, v8")
    def wait_for(*tags):
        idx = [i for i, p in enumerate(pend) if p in tags]
        if not idx: return
        last = max(idx)
        e(f"s_waitcnt vmcnt({len(pend) - 1 - last})")
        del pend[:last+1]
    def rdA(st, t):
        e(f"ds_read_b128 v[{AF+4*t}:{AF+4*t+3}], v9 offset:{(st % NS)*7168 + 1024*t}")
    for st in range(max(NS-1, BD)):
        if st < NS-1: dma(st)
        if st < BD: bld(st)
    e("s_lshl_b32 s6, s4, 5")
    e("v_lshl_add_u32 v10, v4, 3, s6")
    for r in range(ACC, ACC+56):
        e(f"v_mov_b32 v{r}, 0")
    wait_for(("a", 0))
    e("s_barrier")
    for t in range(7): rdA(0, t)
    for st in range(NSTEP):
        if st + 1 < NSTEP:
            wait_for(("a", st+1), ("b", st))
            e("s_barrier")
            if st - 1 + NS < NSTEP: dma(st - 1 + NS)
        else:
            wait_for(("b", st))
        rb = BF + 8*(st % BD)
        for t in range(7):
            e(f"s_waitcnt lgkmcnt({6 if st + 1 < NSTEP else 6 - t})")
            for b_ in range(2):
                ac = ACC + 4*(2*t + b_)
                e(f"v_mfma_f32_16x16x32_bf16 v[{ac}:{ac+3}], v[{AF+4*t}:{AF+4*t+3}], v[{rb+4*b_}:{rb+4*b_+3}], v[{ac}:{ac+3}]")
            if st + 1 < NSTEP: rdA(st+1, t)
        if st + BD < NSTEP: bld(st + BD)
        if st == NSTEP - 2:
            assert BD == 3
            free = [BF + 8*((NSTEP-3) % BD), BF + 8*((NSTEP-2) % BD)]
            BIr = [free[0] + 2*k for k in range(4)] + [free[1] + 2*k for k in range(3)]
            for t in range(7):
                e(f"buffer_load_dwordx2 v[{BIr[t]}:{BIr[t]+1}], v10, s[8:11], 0 offen offset:{32*t}")
                pend.append(("c", 0))
    e("s_nop 7")
    e("s_waitcnt vmcnt(0)")
    e("s_mul_i32 s6, s27, 108")
    e("s_add_u32 s6, s6, s4")
    e("s_lshl_b32 s6, s6, 10")
    e("s_add_u32 s6, s6, %d" % WS_ACT)
    e("v_lshlrev_b32 v9, 4, v3")
    e("v_lshl_add_u32 v9, v5, 9, v9")
    e("v_lshl_add_u32 v9, v6, 3, v9")
    T = 16
    for t in range(7):
        if t == 6:
            e("s_cmp_lt_u32 s26, 7")
            e("s_cbranch_scc1 mid_end")
        r = BIr[t]
        e(f"v_lshlrev_b32 v{T}, 16, v{r}")
        e(f"v_and_b32 v{T+1}, 0xffff0000, v{r}")
        e(f"v_lshlrev_b32 v{T+2}, 16, v{r+1}")
        e(f"v_and_b32 v{T+3}, 0xffff0000, v{r+1}")
        for b_ in range(2):
            ac = ACC + 4*(2*t + b_)
            d0 = T + 16 + 2*((2*t + b_) % 4)
            mish_pairs(ac, ac+1, T, T+1, d0, T+4)
            mish_pairs(ac+2, ac+3, T+2, T+3, d0+1, T+10)
            off = (t % 4)*1024 + 256*b_
            e(f"buffer_store_dwordx2 v[{d0}:{d0+1}], v9, s[28:31], s6 offen offset:{off}")
        if t == 3: e("s_add_u32 s6, s6, 4096")
    e("s_endpgm")
    lab("mid_conv")
    if "cv" in SKIP: e("s_endpgm")
    srd(8, 60, D*2)
    e("s_sub_u32 s4, s2, %d" % G1_WGS)
    e("s_lshl_b32 s5, s4, 1")
    e("v_mov_b32 v3, s5")
    e("buffer_load_ushort v1, v3, s[8:11], 0 offen")
    e("s_lshl_b32 s5, s4, 12")
    e("s_add_u32 s5, s5, %d" % WS_XNT)
    e("v_lshlrev_b32 v4, 4, v0")
    e("buffer_load_dwordx4 v[8:11], v4, s[28:31], s5 offen")
    e("s_mul_i32 s6, s4, %d" % KR_STRIDE)
    e("s_add_u32 s6, s6, %d" % WS_KR)
    e("buffer_load_dwordx4 v[12:15], v4, s[28:31], s6 offen")
    e("buffer_load_dwordx4 v[16:19], v4, s[28:31], s6 offen offset:16")
    e("v_min_u32 v5, 3, v0")
    e("v_lshlrev_b32 v5, 4, v5")
    e("v_add_u32 v5, 4096, v5")
    e("buffer_load_dwordx4 v[20:23], v5, s[28:31], s6 offen")
    e("buffer_load_dwordx4 v[24:27], v5, s[28:31], s6 offen offset:16")
    for k in range(4):
        e(f"v_mov_b32 v{28+k}, 0")
    e("v_min_u32 v6, 159, v0")
    e("v_lshlrev_b32 v6, 4, v6")
    e(f"ds_write_b128 v6, v[28:31] offset:{UB}")
    e("v_lshrrev_b32 v6, 2, v0")
    e("v_mul_u32_u24 v6, 80, v6")
    e("v_and_b32 v7, 3, v0")
    e("v_lshl_add_u32 v6, v7, 4, v6")
    e("s_waitcnt vmcnt(4)")
    e(f"ds_write_b128 v6, v[8:11] offset:{UB + 32*80}")
    def copies(w, vaddr):
        for c in range(8):
            if c % 2 == 0:
                e(f"ds_write_b128 v{vaddr}, v[{w+c//2}:{w+c//2+3}] offset:{c*CS}") if (w + c//2) % 2 == 0 else None
                if (w + c//2) % 2:
                    for j in range(4):
                        e(f"v_mov_b32 v{32+j}, v{w+c//2+j}")
                    e(f"ds_write_b128 v{vaddr}, v[32:35] offset:{c*CS}")
            else:
                for j in range(4):
                    e(f"v_alignbit_b32 v{36+j}, v{w+(c+1)//2+j}, v{w+(c-1)//2+j}, 16")
                e(f"ds_write_b128 v{vaddr}, v[36:39] offset:{c*CS}")
    e("s_waitcnt vmcnt(2)")
    copies(12, 4)
    e("s_waitcnt vmcnt(0)")
    copies(20, 5)
    e("s_waitcnt lgkmcnt(0)")
    e("s_barrier")
    e("v_and_b32 v3, 31, v2")
    e("v_lshrrev_b32 v4, 5, v2")
    e("v_sub_u32 v5, 7, v3")
    e("v_and_b32 v5, 7, v5")
    e("v_sub_u32 v6, 2047, v3")
    e("v_lshl_add_u32 v6, v4, 3, v6")
    e("v_sub_u32 v6, v6, v5")
    e("v_mul_u32_u24 v7, %d, v5" % CS)
    e("v_lshl_add_u32 v6, v6, 1, v7")
    e("v_mul_u32_u24 v7, 80, v3")
    e("v_lshl_add_u32 v7, v4, 4, v7")
    e(f"v_add_u32 v7, {UB + 32*80}, v7")
    for r in range(16, 32):
        e(f"v_mov_b32 v{r}, 0")
    ranges = [(0, 0, 32), (1, 0, 22), (1, 22, 43), (1, 43, 64)]
    for w in range(4):
        if w < 3:
            e(f"s_cmp_lg_u32 s3, {w}")
            e(f"s_cbranch_scc1 cv_w{w+1}")
        ct, k0, k1 = ranges[w]
        e(f"v_subrev_u32 v8, {64*(k1-1)}, v6")
        e(f"v_add_u32 v9, {ct*32*80 - 80*(k1-1)}, v7")
        ks = list(range(k0, k1))
        G = 3
        groups = [ks[i:i+G] for i in range(0, len(ks), G)]
        def rd(gi):
            base = 32 + (gi & 1)*48
            for q, k in enumerate(groups[gi]):
                for t in range(2):
                    fa = base + 16*q + 8*t
                    e(f"ds_read_b128 v[{fa}:{fa+3}], v8 offset:{64*(k1-1-k) + 32*t}")
                    e(f"ds_read_b128 v[{fa+4}:{fa+7}], v9 offset:{80*(k1-1-k) + 32*t}")
        def mm(gi):
            base = 32 + (gi & 1)*48
            for q, k in enumerate(groups[gi]):
                for t in range(2):
                    fa = base + 16*q + 8*t
                    e(f"v_mfma_f32_32x32x16_bf16 v[16:31], v[{fa}:{fa+3}], v[{fa+4}:{fa+7}], v[16:31]")
        rd(0)
        for gi in range(len(groups)):
            if gi + 1 < len(groups):
                e("s_waitcnt lgkmcnt(0)")
                rd(gi + 1)
            else:
                e("s_waitcnt lgkmcnt(0)")
            mm(gi)
        e("s_branch cv_red")
        if w < 3:
            lab(f"cv_w{w+1}")
    lab("cv_red")
    e("s_nop 15")
    e("s_barrier")
    e("v_lshlrev_b32 v10, 2, v2")
    e("s_cmp_lt_u32 s3, 2")
    e("s_cbranch_scc1 cv_skipw")
    e("s_sub_u32 s5, s3, 2")
    e("s_lshl_b32 s5, s5, 12")
    e("v_add_u32 v11, s5, v10")
    for r in range(16):
        e(f"ds_write_b32 v11, v{16+r} offset:{256*r}")
    e("s_waitcnt lgkmcnt(0)")
    lab("cv_skipw")
    e("s_barrier")
    e("s_cmp_ge_u32 s3, 2")
    e("s_cbranch_scc1 mid_end")
    e("s_cmp_eq_u32 s3, 0")
    e("s_cbranch_scc1 cv_epi")
    for half in range(2):
        for r in range(16):
            e(f"ds_read_b32 v{32+r}, v10 offset:{4096*half + 256*r}")
        e("s_waitcnt lgkmcnt(0)")
        for r in range(16):
            e(f"v_add_f32 v{16+r}, v{16+r}, v{32+r}")
    lab("cv_epi")
    e("s_mul_i32 s5, s3, %d" % (32*80))
    e("v_mul_u32_u24 v11, 80, v3")
    e("v_lshl_add_u32 v11, v4, 3, v11")
    e("v_add_u32 v11, s5, v11")
    for g in range(4):
        e(f"ds_read_b64 v[{32+2*g}:{33+2*g}], v11 offset:{UB + 32*80 + 16*g}")
    e("s_lshl_b32 s5, s4, 12")
    e("s_lshl_b32 s6, s3, 11")
    e("s_add_u32 s5, s5, s6")
    e("s_add_u32 s5, s5, %d" % WS_AT)
    e("v_lshlrev_b32 v12, 6, v3")
    e("v_lshl_add_u32 v12, v4, 3, v12")
    e("s_waitcnt vmcnt(0) lgkmcnt(0)")
    e("v_lshlrev_b32 v1, 16, v1")
    for g in range(4):
        for p in range(2):
            u = 32 + 2*g + p
            y0 = 16 + 4*g + 2*p
            e(f"v_lshlrev_b32 v44, 16, v{u}")
            e(f"v_and_b32 v45, 0xffff0000, v{u}")
            e(f"v_mul_f32 v44, v44, v1")
            e(f"v_mul_f32 v45, v45, v1")
            e(f"v_cvt_pk_bf16_f32 v44, v44, v45")
            e(f"v_cvt_pk_bf16_f32 v46, v{y0}, v{y0+1}")
            e(f"v_lshlrev_b32 v47, 16, v44")
            e(f"v_and_b32 v48, 0xffff0000, v44")
            e(f"v_lshlrev_b32 v49, 16, v46")
            e(f"v_and_b32 v50, 0xffff0000, v46")
            e(f"v_add_f32 v47, v47, v49")
            e(f"v_add_f32 v48, v48, v50")
            e(f"v_cvt_pk_bf16_f32 v{52+2*g+p}, v47, v48")
        e(f"buffer_store_dwordx2 v[{52+2*g}:{53+2*g}], v12, s[28:31], s5 offen offset:{16*g}")
    lab("mid_end")
    e("s_endpgm")
    kernel_desc("mid_kernel", 128)

G2_WGS = 256
FIN_LDS = 61440 + 64
FDEPTH = int(os.environ.get('FDEPTH', 4))
def gen_fin():
    kernel_begin("fin_kernel")
    e("s_cmp_ge_u32 s2, %d" % G2_WGS)
    e("s_cbranch_scc1 fin_end")
    e("s_load_dwordx2 s[56:57], s[0:1], 104")
    e("s_load_dwordx2 s[58:59], s[0:1], 0")
    e("s_load_dwordx2 s[60:61], s[0:1], 88")
    e("v_lshrrev_b32 v1, 6, v0")
    e("v_and_b32 v2, 63, v0")
    e("s_nop 0")
    e("v_readfirstlane_b32 s3, v1")
    if "xcc" in SKIP:
        e("s_and_b32 s5, s2, 31")
        e("s_lshr_b32 s4, s2, 5")
    else:
        e("s_waitcnt lgkmcnt(0)")
        srd(28, 56, WS_SIZE)
        claim_tile(512, 32, 61440, "fcl")
        e("s_lshr_b32 s5, s2, 5")
        e("s_lshl_b32 s5, s5, 2")
        e("s_and_b32 s6, s2, 3")
        e("s_add_u32 s5, s5, s6")
        e("s_bfe_u32 s4, s2, 0x30002")
    e("v_and_b32 v3, 15, v2")
    e("v_lshrrev_b32 v4, 4, v2")
    e("v_lshrrev_b32 v5, 1, v4")
    e("v_and_b32 v6, 1, v4")
    e("v_lshlrev_b32 v7, 4, v3")
    e("v_lshl_add_u32 v7, v5, 10, v7")
    e("v_lshl_add_u32 v7, v6, 9, v7")
    e("s_lshl_b32 s6, s3, 11")
    e("v_add_u32 v7, s6, v7")
    e("s_mul_i32 s6, s4, 5")
    for a_ in range(5):
        e(f"s_add_u32 s7, s6, {a_}")
        e(f"s_lshr_b32 s{40+a_}, s7, 1")
        e(f"s_mul_i32 s{40+a_}, s{40+a_}, {108*1024}")
        e(f"s_and_b32 s7, s7, 1")
        e(f"s_lshl_b32 s7, s7, 8")
        e(f"s_add_u32 s{40+a_}, s{40+a_}, s7")
        e(f"s_add_u32 s{40+a_}, s{40+a_}, {WS_W2F}")
    e("s_mul_i32 s6, s5, %d" % (2*108*1024))
    e("s_add_u32 s45, s6, %d" % WS_ACT)
    e("s_add_u32 s46, s45, 256")
    e("s_add_u32 s47, s45, %d" % (108*1024))
    e("s_add_u32 s48, s47, 256")
    e("s_waitcnt lgkmcnt(0)")
    srd(28, 56, WS_SIZE); srd(8, 58, L*D*2); srd(12, 60, L*D*2)
    FR = 16
    ACC = 0
    EP = FR + 36*FDEPTH
    pend = []
    def issue(m):
        base = FR + 36*(m % FDEPTH)
        for t in range(9):
            e(f"buffer_load_dwordx4 v[{base+4*t}:{base+4*t+3}], v7, s[28:31], s{40+t} offen")
            pend.append(("f", m))
        e("v_add_u32 v7, 8192, v7")
    def wait_for(tag):
        last = max(i for i, p in enumerate(pend) if p == tag)
        n = len(pend) - 1 - last
        e(f"s_waitcnt vmcnt({n})")
        del pend[:last+1]
    NST = 14
    for m in range(FDEPTH):
        issue(m)
    e("s_lshl_b32 s6, s5, 6")
    e("s_lshl_b32 s7, s3, 4")
    e("s_add_u32 s6, s6, s7")
    e("v_add_u32 v8, s6, v3")
    e("v_mul_u32_u24 v9, 1280, v8")
    e("v_lshl_add_u32 v9, v4, 3, v9")
    e("s_mul_i32 s6, s4, 160")
    e("v_add_u32 v9, s6, v9")
    for a_ in range(5):
        e(f"buffer_load_dwordx2 v[{EP+2*a_}:{EP+2*a_+1}], v9, s[8:11], 0 offen offset:{32*a_}")
        pend.append(("e", 0))
    e("v_lshlrev_b32 v10, 14, v4")
    e("v_lshl_add_u32 v10, v8, 1, v10")
    e("s_mul_i32 s6, s4, %d" % (80*4096))
    e("s_add_u32 s6, s6, %d" % WS_AT)
    for a_ in range(5):
        for j in range(4):
            e(f"buffer_load_ushort v{EP+10+4*a_+j}, v10, s[28:31], s6 offen")
            pend.append(("e", 0))
            e("s_add_u32 s6, s6, %d" % (4096 if j < 3 else 4096*13))
    for r in range(ACC, ACC+80):
        e(f"v_accvgpr_write_b32 a{r}, 0")
    for m in range(NST):
        if m == NST - 1:
            e("s_cmp_ge_u32 s3, 2")
            e("s_cbranch_scc1 fin_red")
        wait_for(("f", m))
        base = FR + 36*(m % FDEPTH)
        for b_ in range(4):
            for a_ in range(5):
                ac = ACC + 4*(5*b_ + a_)
                e(f"v_mfma_f32_16x16x32_bf16 a[{ac}:{ac+3}], v[{base+4*a_}:{base+4*a_+3}], v[{base+20+4*b_}:{base+23+4*b_}], a[{ac}:{ac+3}]")
        if m + FDEPTH < NST:
            if m + FDEPTH == NST - 1:
                e("s_cmp_ge_u32 s3, 2")
                e("s_cselect_b32 s6, 8192, 0")
                e("v_subrev_u32 v7, s6, v7")
            issue(m + FDEPTH)
    lab("fin_red")
    e("s_nop 15")
    e("s_waitcnt vmcnt(0)")
    e("v_lshlrev_b32 v11, 4, v2")
    for w in range(4):
        if w < 3:
            e(f"s_cmp_lg_u32 s3, {w}")
            e(f"s_cbranch_scc1 fin_w{w+1}")
        for b_ in range(4):
            if b_ == w: continue
            slot = w if w < b_ else w - 1
            for a_ in range(5):
                ac = ACC + 4*(5*b_ + a_)
                e(f"ds_write_b128 v11, a[{ac}:{ac+3}] offset:{(b_*3 + slot)*5120 + a_*1024}")
        for r in range(20):
            e(f"v_accvgpr_read_b32 v{16+r}, a{ACC+20*w+r}")
        if w < 3:
            e("s_branch fin_rd")
            lab(f"fin_w{w+1}")
    lab("fin_rd")
    e("s_mul_i32 s6, s3, %d" % (3*5120))
    e("v_add_u32 v11, s6, v11")
    e("s_waitcnt lgkmcnt(0)")
    e("s_barrier")
    for sl in range(3):
        for a_ in range(5):
            r = 36 + 20*sl + 4*a_
            e(f"ds_read_b128 v[{r}:{r+3}], v11 offset:{sl*5120 + a_*1024}")
    for sl in range(3):
        e(f"s_waitcnt lgkmcnt({10-5*sl})")
        for r in range(20):
            e(f"v_add_f32 v{16+r}, v{16+r}, v{36+20*sl+r}")
    e("s_waitcnt vmcnt(0)")
    for a_ in range(5):
        rx = EP + 2*a_
        ra = EP + 10 + 4*a_
        for p in range(2):
            ac = 16 + 4*a_ + 2*p
            e(f"v_lshlrev_b32 v96, 16, v{rx+p}")
            e(f"v_and_b32 v97, 0xffff0000, v{rx+p}")
            e(f"v_lshlrev_b32 v98, 16, v{ra+2*p}")
            e(f"v_lshlrev_b32 v99, 16, v{ra+2*p+1}")
            e(f"v_add_f32 v96, v96, v98")
            e(f"v_add_f32 v97, v97, v99")
            e(f"v_cvt_pk_bf16_f32 v96, v96, v97")
            e(f"v_cvt_pk_bf16_f32 v98, v{ac}, v{ac+1}")
            e(f"v_lshlrev_b32 v100, 16, v96")
            e(f"v_and_b32 v101, 0xffff0000, v96")
            e(f"v_lshlrev_b32 v102, 16, v98")
            e(f"v_and_b32 v103, 0xffff0000, v98")
            e(f"v_add_f32 v100, v100, v102")
            e(f"v_add_f32 v101, v101, v103")
            e(f"v_cvt_pk_bf16_f32 v{rx+p}, v100, v101")
        e(f"buffer_store_dwordx2 v[{rx}:{rx+1}], v9, s[12:15], 0 offen offset:{32*a_}")
    lab("fin_end")
    e("s_endpgm")
    kernel_desc("fin_kernel", ((EP + 30) + 7)//8*8, agpr=80)

hdr = open("cdna_kernels/%s.s.ref" % NAME).read().split("; Override launch")[0]
text = hdr
text += f"; @launch kernel=prep_kernel grid=({PREP_WGS},1,1) block=(256,1,1) lds={PREP_LDS}\n"
text += f"; @launch kernel=mid_kernel grid=({MID_WGS},1,1) block=(256,1,1) lds={MID_LDS}\n"
text += f"; @launch kernel=fin_kernel grid=({G2_WGS},1,1) block=(256,1,1) lds={FIN_LDS}\n"
text += '.amdgcn_target "amdgcn-amd-amdhsa--gfx950"\n'
gen_prep(); gen_mid(); gen_fin()
_o = []; _in = False
for _l in out:
    if _l.startswith("fin_kernel:"): _in = True
    if _l.strip().startswith("buffer_store") and not _in and "nosc" not in SKIP: _l += " sc1"
    _o.append(_l)
out = _o
text += "\n".join(out) + "\n"
dst = sys.argv[1] if len(sys.argv) > 1 else "cdna_kernels/%s.s" % NAME
open(dst, "w").write(text)
print("wrote", dst, len(text))
```

```python
import sys, os
SKIP = os.environ.get("SKIP", "").split(",")
NAME = "parallel_sum__ssm_conv_s4d__dense_activation_mish__prompt"
L, D, N, F = 2048, 640, 128, 1728
WS_XNF = 0x0000000
WS_XNT = 0x0280000
WS_W1F = 0x0500000
WS_W2F = WS_W1F + 2160 * 1024
WS_KR = 0x0A00000
KR_STRIDE = 4224
WS_ACT = 0x0D00000
WS_AT = 0x1400000
WS_CNT = 0x1700000
WS_SIZE = 268435456
LOG2E = 0x3fb8aa3b
INV2PI = 0x3e22f983

out = []
def e(s):
    out.append("    " + s)
def lab(s):
    out.append(s + ":")
def cm(s):
    out.append("    ; " + s)

STAMP = os.environ.get("STAMP")
def stamp_init():
    if not STAMP: return
    e("s_load_dwordx2 s[84:85], s[0:1], 96")
    e("s_waitcnt lgkmcnt(0)")
    e("s_mov_b32 s80, s84"); e("s_and_b32 s81, s85, 0xffff"); e("s_mov_b32 s82, 256"); e("s_mov_b32 s83, 0x00020000")
def stamp(i):
    if not STAMP: return
    e("s_memtime s[86:87]")
    e("s_waitcnt lgkmcnt(0)")
    e(f"s_cmp_lg_u32 s2, {int(STAMP)}")
    e(f"s_cbranch_scc1 st_{stamp.n}")
    e(f"v_mov_b32 v255, s86")
    e(f"v_lshrrev_b32 v254, 6, v0")
    e(f"v_lshlrev_b32 v254, 6, v254")
    e(f"v_add_u32 v254, {4*i}, v254")
    e(f"buffer_store_dword v255, v254, s[80:83], 0 offen")
    lab(f"st_{stamp.n}")
    stamp.n += 1
stamp.n = 0


TL = os.environ.get("TL")
WS_TL = 0x1800000
def tl(i):
    if not TL: return
    e("s_memrealtime s[80:81]")
    e("s_waitcnt lgkmcnt(0)")
    e(f"s_mov_b32 s{84+i}, s80")
def tl_begin():
    if not TL: return
    e("s_mov_b32 s83, s2")
    for i in range(8): e(f"s_mov_b32 s{84+i}, 0")
    tl(0)
def tl_end(kern):
    if not TL: return
    tl(7)
    e("s_cmp_lg_u32 s3, 0")
    e(f"s_cbranch_scc1 tle_{tl_end.n}")
    e("s_lshl_b32 s83, s83, 5")
    e(f"s_add_u32 s83, s83, {WS_TL + kern*65536}")
    e("v_mov_b32 v1, 0")
    for i in range(8):
        e(f"v_mov_b32 v0, s{84+i}")
        e(f"buffer_store_dword v0, v1, s[28:31], s83 offen offset:{4*i}")
    lab(f"tle_{tl_end.n}")
    tl_end.n += 1
tl_end.n = 0

def srd(dst, ptr, size):
    e(f"s_mov_b32 s{dst}, s{ptr}")
    e(f"s_and_b32 s{dst+1}, s{ptr+1}, 0xffff")
    e(f"s_mov_b32 s{dst+2}, {size}")
    e(f"s_mov_b32 s{dst+3}, 0x00020000")

def kernel_begin(name):
    out.append(".text")
    out.append(f".globl {name}")
    out.append(".p2align 8")
    out.append(f".type {name},@function")
    lab(name)

def kernel_desc(name, vgpr, sgpr=96, agpr=0):
    if STAMP: vgpr = 256
    out.append('.section .rodata,"a"')
    out.append(".p2align 6")
    out.append(f".amdhsa_kernel {name}")
    out.append(f"  .amdhsa_next_free_vgpr {vgpr + agpr}")
    out.append(f"  .amdhsa_next_free_sgpr {sgpr}")
    out.append(f"  .amdhsa_accum_offset {(vgpr+3)//4*4}")
    out.append("  .amdhsa_group_segment_fixed_size 0")
    out.append("  .amdhsa_kernarg_size 112")
    out.append("  .amdhsa_user_sgpr_count 2")
    out.append("  .amdhsa_user_sgpr_kernarg_segment_ptr 1")
    out.append("  .amdhsa_system_sgpr_workgroup_id_x 1")
    out.append(".end_amdhsa_kernel")


def claim_tile(cnt_off, per, lds_off, lbl):
    e("s_cmp_lg_u32 s3, 0")
    e(f"s_cbranch_scc1 {lbl}_w")
    e("s_getreg_b32 s20, hwreg(HW_REG_XCC_ID)")
    e("s_and_b32 s20, s20, 7")
    e("s_mov_b32 s21, 0")
    e("s_mov_b64 s[22:23], exec")
    e("s_mov_b64 exec, 1")
    e("v_mov_b32 v12, 1")
    lab(f"{lbl}_l")
    e("s_lshl_b32 s24, s20, 6")
    e(f"s_add_u32 s24, s24, {WS_CNT + cnt_off}")
    e("v_mov_b32 v13, 0")
    e("v_mov_b32 v14, v12")
    e("buffer_atomic_add v14, v13, s[28:31], s24 offen sc0")
    e("s_waitcnt vmcnt(0)")
    e("v_readfirstlane_b32 s25, v14")
    e(f"s_cmp_lt_u32 s25, {per}")
    e(f"s_cbranch_scc1 {lbl}_f")
    e("s_add_u32 s20, s20, 1")
    e("s_and_b32 s20, s20, 7")
    e("s_add_u32 s21, s21, 1")
    e("s_cmp_lt_u32 s21, 8")
    e(f"s_cbranch_scc1 {lbl}_l")
    e("s_mov_b32 s25, 0")
    lab(f"{lbl}_f")
    e(f"s_mul_i32 s20, s20, {per}")
    e("s_add_u32 s20, s20, s25")
    e("v_mov_b32 v14, s20")
    e(f"v_mov_b32 v13, {lds_off}")
    e("ds_write_b32 v13, v14")
    e("s_mov_b64 exec, s[22:23]")
    e("s_waitcnt lgkmcnt(0)")
    lab(f"{lbl}_w")
    e("s_barrier")
    e(f"v_mov_b32 v13, {lds_off}")
    e("ds_read_b32 v14, v13")
    e("s_waitcnt lgkmcnt(0)")
    e("v_readfirstlane_b32 s2, v14")

LN_WGS, WT_WGS, KG_WGS = 128, 135, 640
PREP_WGS = KG_WGS + LN_WGS + WT_WGS
KG_LDS_WAVE = 512
KG_TAB0 = 2048
KG_TAB = 2688
KG_FIN = KG_TAB0 + 4*KG_TAB
PREP_LDS = 36864
LNS = 36

def gen_prep():
    kernel_begin("prep_kernel")
    e("s_cmp_ge_u32 s2, %d" % PREP_WGS)
    e("s_cbranch_scc1 prep_end")
    e("s_load_dwordx2 s[56:57], s[0:1], 104")
    e("v_lshrrev_b32 v1, 6, v0")
    e("v_and_b32 v2, 63, v0")
    e("s_nop 0")
    e("v_readfirstlane_b32 s3, v1")
    e("s_cmp_ge_u32 s2, %d" % (KG_WGS + LN_WGS))
    e("s_cbranch_scc1 prep_wt")
    e("s_cmp_ge_u32 s2, %d" % KG_WGS)
    e("s_cbranch_scc1 prep_ln")
    if "kg" in SKIP: e("s_endpgm")
    e("s_load_dwordx4 s[40:43], s[0:1], 8")
    e("s_load_dwordx4 s[44:47], s[0:1], 24")
    e("s_load_dwordx2 s[48:49], s[0:1], 40")
    e("s_mov_b32 s4, s2")
    e("s_mul_i32 s5, s3, %d" % KG_LDS_WAVE)
    e("s_lshl_b32 s6, s4, 8")
    e("s_lshl_b32 s7, s3, 6")
    e("s_add_u32 s6, s6, s7")
    e("v_and_b32 v3, 31, v2")
    e("v_lshl_add_u32 v3, v3, 1, s6")
    e("s_lshl_b32 s7, s4, 1")
    e("v_mov_b32 v4, s7")
    e("s_waitcnt lgkmcnt(0)")
    srd(8, 40, D*N*2); srd(12, 42, D*N*2); srd(16, 44, D*N*2); srd(20, 46, D*N*2)
    srd(24, 48, D*2); srd(28, 56, WS_SIZE)
    for k, sr in enumerate((8, 12, 16, 20)):
        e(f"buffer_load_ushort v{10+k}, v3, s[{sr}:{sr+3}], 0 offen")
    e("buffer_load_ushort v18, v4, s[24:27], 0 offen")
    e("v_and_b32 v8, 15, v2")
    e("v_lshrrev_b32 v9, 4, v2")
    e("v_and_b32 v24, 7, v8")
    e("v_lshrrev_b32 v25, 3, v8")
    e("v_lshl_add_u32 v28, v25, 7, v24")
    e("v_and_b32 v24, 3, v8")
    e("v_lshlrev_b32 v24, 1, v24")
    e("v_bfe_u32 v25, v8, 2, 1")
    e("v_lshl_add_u32 v24, v25, 7, v24")
    e("v_add_u32 v24, 256, v24")
    e("v_and_b32 v25, 1, v8")
    e("v_lshlrev_b32 v25, 2, v25")
    e("v_bfe_u32 v26, v8, 1, 2")
    e("v_lshl_add_u32 v25, v26, 7, v25")
    e("v_add_u32 v25, 512, v25")
    e("v_cmp_gt_u32 vcc, 8, v8")
    e("s_nop 1")
    e("v_cndmask_b32 v29, v25, v24, vcc")
    e("v_lshlrev_b32 v30, 7, v8")
    e("v_add_u32 v30, 0x400, v30")
    e("v_lshlrev_b32 v31, 3, v8")
    for t in range(4):
        e(f"v_cvt_f32_u32 v{28+t}, v{28+t}")
    e("s_mul_i32 s6, s3, %d" % KG_TAB)
    e("s_add_u32 s6, s6, %d" % KG_TAB0)
    e("v_and_b32 v24, 1, v9")
    e("v_lshrrev_b32 v25, 1, v9")
    e("v_lshl_add_u32 v33, v8, 5, s6")
    e("v_lshl_add_u32 v33, v24, 4, v33")
    e("v_lshl_add_u32 v33, v25, 9, v33")
    e("v_lshlrev_b32 v24, 4, v8")
    e("v_lshlrev_b32 v25, 3, v8")
    e("v_cmp_gt_u32 vcc, 2, v9")
    e("s_nop 1")
    e("v_cndmask_b32 v24, v25, v24, vcc")
    e("v_lshl_add_u32 v24, v9, 8, v24")
    e("v_add_u32 v24, s6, v24")
    e("v_add_u32 v34, 1024, v24")
    e("v_mov_b32 v25, 128")
    e("v_cndmask_b32_e64 v24, v25, 8, vcc")
    e("v_add_u32 v36, v34, v24")
    e("v_lshl_add_u32 v38, v8, 2, s6")
    e("v_lshl_add_u32 v38, v9, 8, v38")
    e("v_add_u32 v38, 2048, v38")
    e("v_lshl_add_u32 v39, v9, 4, s5")
    for r in range(40, 52):
        e(f"v_mov_b32 v{r}, 0")
    e("s_waitcnt vmcnt(0)")
    for r in (10, 11, 12, 13, 18):
        e(f"v_lshlrev_b32 v{r}, 16, v{r}")
    e(f"v_mul_f32 v18, {LOG2E:#x}, v18")
    e(f"v_mul_f32 v10, {LOG2E:#x}, v10")
    e("v_exp_f32 v18, v18")
    e("v_exp_f32 v10, v10")
    e("s_nop 0")
    e("v_cvt_pk_bf16_f32 v18, v18, v18")
    e("v_cvt_pk_bf16_f32 v10, v10, v10")
    e("v_lshlrev_b32 v18, 16, v18")
    e("v_lshlrev_b32 v10, 16, v10")
    e("v_add_f32 v19, v18, v18")
    e("v_and_b32 v5, 31, v2")
    e("v_lshl_add_u32 v5, v5, 4, s5")
    e("v_mul_f32 v20, v10, v18")
    e(f"v_mul_f32 v20, {LOG2E|0x80000000:#x}, v20")
    e("v_mul_f32 v21, v11, v18")
    e(f"v_mul_f32 v21, {INV2PI:#x}, v21")
    e("v_mul_f32 v22, v12, v19")
    e("v_mul_f32 v23, v13, v19")
    e("ds_write_b128 v5, v[20:23]")
    e("s_waitcnt lgkmcnt(0)")
    for st in range(8):
        e(f"ds_read_b128 v[{96+4*st}:{99+4*st}], v39 offset:{64*st}")
    e("s_waitcnt lgkmcnt(0)")
    def kg_valu(st):
        P = 96 + 4*st
        O = 72 + 10*(st & 1)
        v = []
        for t in range(4):
            v.append(f"v_mul_f32 v{52+t}, v{P}, v{28+t}")
            v.append(f"v_mul_f32 v{56+t}, v{P+1}, v{28+t}")
        for t in range(4):
            v.append(f"v_exp_f32 v{52+t}, v{52+t}")
            v.append(f"v_fract_f32 v{56+t}, v{56+t}")
        for t in range(4):
            v.append(f"v_cos_f32 v{60+t}, v{56+t}")
            v.append(f"v_sin_f32 v{64+t}, v{56+t}")
        for t in range(4):
            v.append(f"v_mul_f32 v{60+t}, v{52+t}, v{60+t}")
            v.append(f"v_mul_f32 v{64+t}, v{52+t}, v{64+t}")
        v.append(f"v_mul_f32 v55, v63, v{P+2}")
        v.append(f"v_mul_f32_e64 v59, -v63, v{P+3}")
        v.append(f"v_fma_f32 v55, -v67, v{P+3}, v55")
        v.append(f"v_fma_f32 v59, -v67, v{P+2}, v59")
        def split(xr, xi, H, Lo, t0, t1):
            v.append(f"v_cvt_pk_bf16_f32 v{H}, v{xr}, v{xi}")
            v.append(f"v_lshlrev_b32 v{t0}, 16, v{H}")
            v.append(f"v_and_b32 v{t1}, 0xffff0000, v{H}")
            v.append(f"v_sub_f32 v{t0}, v{xr}, v{t0}")
            v.append(f"v_sub_f32 v{t1}, v{xi}, v{t1}")
            v.append(f"v_cvt_pk_bf16_f32 v{Lo}, v{t0}, v{t1}")
        split(55, 59, O, O+2, 68, 69)
        v.append(f"v_mov_b32 v{O+1}, v{O}")
        v.append(f"v_mov_b32 v{O+3}, v{O+2}")
        for t in range(3):
            split(60+t, 64+t, O+4+2*t, O+5+2*t, 52+t, 56+t)
        return v
    def kg_mfma(st):
        O = 72 + 10*(st & 1)
        m = []
        for h in range(2):
            for t in range(3):
                a = 40 + 4*t
                m.append(f"v_mfma_f32_16x16x16_bf16 v[{a}:{a+3}], v[{O+4+2*t}:{O+5+2*t}], v[{O+2*h}:{O+2*h+1}], v[{a}:{a+3}]")
        return m
    for st in range(9):
        v = kg_valu(st) if st < 8 else []
        m = kg_mfma(st-1) if st > 0 else []
        if "kgm" in SKIP: m = []
        if "kgv" in SKIP: v = []
        if not v:
            e("s_nop 1")
        vi = 0
        for mi, mm_ in enumerate(m):
            tgt = 2 + 7*mi
            while vi < min(tgt, len(v)):
                e(v[vi]); vi += 1
            e(mm_)
        while vi < len(v):
            e(v[vi]); vi += 1
    e("s_nop 15")
    for r in range(4):
        e(f"ds_write_b32 v33, v{40+r} offset:{4*r}")
    e("ds_write_b32 v34, v44")
    e("ds_write_b32 v34, v45 offset:4")
    e("ds_write_b32 v36, v46")
    e("ds_write_b32 v36, v47 offset:4")
    e("s_mov_b32 exec_hi, 0xffff")
    e("ds_write_b32 v38, v48")
    e("s_mov_b32 exec_hi, 0")
    for r in range(1, 4):
        e(f"ds_write_b32 v38, v{48+r} offset:{64*r}")
    e("s_mov_b32 exec_hi, -1")
    e("s_mul_i32 s4, s4, %d" % KR_STRIDE)
    e("s_add_u32 s4, s4, %d" % WS_KR)
    e("v_lshlrev_b32 v39, 4, v0")
    e("v_lshlrev_b32 v64, 3, v0")
    e("v_sub_u32 v64, 2047, v64")
    e("v_lshlrev_b32 v65, 2, v0")
    e("v_lshlrev_b32 v66, 1, v0")
    for k in range(8):
        e(f"v_subrev_u32 v{52+k}, {k}, v64")
        e(f"v_cvt_f32_u32 v{72+k}, v{52+k}")
    for k in range(4):
        e(f"v_cvt_pk_bf16_f32 v{80+k}, v{72+2*k}, v{73+2*k}")
        e(f"v_and_b32 v{72+2*k}, 0xffff, v{80+k}")
        e(f"v_lshrrev_b32 v{73+2*k}, 16, v{80+k}")
    for k in range(8):
        e(f"v_subrev_u32 v{72+k}, 17024, v{72+k}")
        e(f"v_cmp_gt_u32 vcc, 256, v{52+k}")
        e("s_nop 1")
        e(f"v_cndmask_b32 v{52+k}, v{72+k}, v{52+k}, vcc")
        e(f"v_lshlrev_b32 v{52+k}, 1, v{52+k}")
    e("s_waitcnt lgkmcnt(0)")
    e("s_barrier")
    for m in range(3):
        for ww in range(4):
            e(f"ds_read_b32 v{72+4*m+ww}, v65 offset:{KG_TAB0 + ww*KG_TAB + 1024*m}")
    for m in range(3):
        e(f"s_waitcnt lgkmcnt({8-4*m})")
        e(f"v_add_f32 v{72+4*m}, v{72+4*m}, v{73+4*m}")
        e(f"v_add_f32 v{74+4*m}, v{74+4*m}, v{75+4*m}")
        e(f"v_add_f32 v{72+4*m}, v{72+4*m}, v{74+4*m}")
        e(f"v_cvt_pk_bf16_f32 v{72+4*m}, v{72+4*m}, v{72+4*m}")
        e(f"ds_write_b16 v66, v{72+4*m} offset:{KG_FIN + 512*m}")
    e("s_waitcnt lgkmcnt(0)")
    e("s_barrier")
    for k in range(8):
        e(f"ds_read_u16 v{96+k}, v{52+k} offset:{KG_FIN}")
    e("s_waitcnt lgkmcnt(0)")
    for k in range(4):
        e(f"v_lshl_or_b32 v{112+k}, v{97+2*k}, 16, v{96+2*k}")
    e(f"buffer_store_dwordx4 v[112:115], v39, s[28:31], s4 offen")
    for k in range(4):
        e(f"v_mov_b32 v{116+k}, 0")
    e("v_cmp_gt_u32 vcc, 8, v0")
    e("s_and_saveexec_b64 s[32:33], vcc")
    e("s_cbranch_execz prep_end")
    e("s_add_u32 s4, s4, 4096")
    e("buffer_store_dwordx4 v[116:119], v39, s[28:31], s4 offen")
    e("s_cmp_lg_u32 s2, 0")
    e("s_cbranch_scc1 prep_end")
    e("v_lshlrev_b32 v39, 6, v0")
    e("s_mov_b32 s4, %d" % WS_CNT)
    e("buffer_store_dword v116, v39, s[28:31], s4 offen")
    e("buffer_store_dword v116, v39, s[28:31], s4 offen offset:512")
    e("s_endpgm")
    lab("prep_ln")
    if "ln" in SKIP: e("s_endpgm")
    e("s_load_dwordx2 s[40:41], s[0:1], 0")
    e("s_sub_u32 s2, s2, %d" % KG_WGS)
    e("v_and_b32 v3, 15, v0")
    e("v_lshrrev_b32 v4, 4, v0")
    e("s_lshl_b32 s5, s2, 4")
    e("v_add_u32 v5, s5, v4")
    e("v_mul_u32_u24 v6, 1280, v5")
    e("v_lshl_add_u32 v6, v3, 4, v6")
    e("s_waitcnt lgkmcnt(0)")
    srd(8, 40, L*D*2); srd(28, 56, WS_SIZE)
    for j in range(5):
        e(f"buffer_load_dwordx4 v[{16+4*j}:{19+4*j}], v6, s[8:11], 0 offen offset:{256*j}")
    e("s_lshr_b32 s6, s2, 1")
    e("s_mul_i32 s6, s6, %d" % (40*1024))
    e("s_add_u32 s6, s6, %d" % WS_XNF)
    e("v_lshrrev_b32 v7, 1, v3")
    e("v_lshlrev_b32 v7, 10, v7")
    e("v_and_b32 v8, 1, v3")
    e("v_lshl_add_u32 v7, v8, 9, v7")
    e("v_and_b32 v8, 31, v5")
    e("v_lshl_add_u32 v7, v8, 4, v7")
    e(f"v_mul_u32_u24 v9, {8*LNS}, v3")
    e("v_lshl_add_u32 v9, v4, 1, v9")
    e("s_waitcnt vmcnt(0)")
    for k in range(20):
        e(f"v_lshlrev_b32 v{40+2*k}, 16, v{16+k}")
        e(f"v_and_b32 v{41+2*k}, 0xffff0000, v{16+k}")
    def lane_sum(srcs, acc):
        for a in range(4):
            e(f"v_add_f32 v{acc+a}, v{srcs[a]}, v{srcs[a+4]}")
        for k in range(8, len(srcs)):
            e(f"v_add_f32 v{acc+(k%4)}, v{acc+(k%4)}, v{srcs[k]}")
        e(f"v_add_f32 v{acc}, v{acc}, v{acc+1}")
        e(f"v_add_f32 v{acc+2}, v{acc+2}, v{acc+3}")
        e(f"v_add_f32 v{acc}, v{acc}, v{acc+2}")
        for sh in (8, 4, 2, 1):
            e("s_nop 1")
            e(f"v_add_f32_dpp v{acc}, v{acc}, v{acc} row_ror:{sh} row_mask:0xf bank_mask:0xf")
    lane_sum(list(range(40, 80)), 10)
    e("v_mul_f32 v14, 0x3acccccd, v10")
    for k in range(40):
        e(f"v_sub_f32 v{80+k}, v{40+k}, v14")
        e(f"v_mul_f32 v{80+k}, v{80+k}, v{80+k}")
    lane_sum(list(range(80, 120)), 10)
    e("v_mul_f32 v10, 0x3acccccd, v10")
    e("v_cvt_pk_bf16_f32 v10, v10, v14")
    e("v_and_b32 v14, 0xffff0000, v10")
    e("v_lshlrev_b32 v10, 16, v10")
    e("v_add_f32 v10, 0x3727c5ac, v10")
    e("v_cvt_pk_bf16_f32 v10, v10, v10")
    e("v_lshlrev_b32 v10, 16, v10")
    e("v_sqrt_f32 v10, v10")
    e("s_nop 0")
    e("v_cvt_pk_bf16_f32 v10, v10, v10")
    e("v_lshlrev_b32 v10, 16, v10")
    e("v_rcp_f32 v11, v10")
    e("s_nop 0")
    e("v_fma_f32 v12, -v10, v11, 2.0")
    e("v_mul_f32 v11, v11, v12")
    for k in range(20):
        e(f"v_sub_f32 v{40+2*k}, v{40+2*k}, v14")
        e(f"v_sub_f32 v{41+2*k}, v{41+2*k}, v14")
        e(f"v_cvt_pk_bf16_f32 v{16+k}, v{40+2*k}, v{41+2*k}")
        e(f"v_lshlrev_b32 v{40+2*k}, 16, v{16+k}")
        e(f"v_and_b32 v{41+2*k}, 0xffff0000, v{16+k}")
        e(f"v_mul_f32 v{40+2*k}, v{40+2*k}, v11")
        e(f"v_mul_f32 v{41+2*k}, v{41+2*k}, v11")
        e(f"v_cvt_pk_bf16_f32 v{16+k}, v{40+2*k}, v{41+2*k}")
    for j in range(5):
        e(f"buffer_store_dwordx4 v[{16+4*j}:{19+4*j}], v7, s[28:31], s6 offen")
        if j < 4: e("s_add_u32 s6, s6, 8192")
    for j in range(5):
        for el in range(8):
            r = 16 + 4*j + el//2
            op = "ds_write_b16_d16_hi" if el & 1 else "ds_write_b16"
            e(f"{op} v9, v{r} offset:{(128*j + el)*LNS}")
    e("v_lshrrev_b32 v10, 1, v0")
    e("v_and_b32 v11, 1, v0")
    e(f"v_mul_u32_u24 v12, {LNS}, v10")
    e("v_lshl_add_u32 v12, v11, 4, v12")
    e("v_lshlrev_b32 v13, 12, v10")
    e("v_lshl_add_u32 v13, v11, 4, v13")
    e("s_lshl_b32 s6, s2, 5")
    e("s_add_u32 s6, s6, %d" % WS_XNT)
    e("s_waitcnt lgkmcnt(0)")
    e("s_barrier")
    for j in range(5):
        e(f"ds_read2_b32 v[{40+4*j}:{41+4*j}], v12 offset0:{(128*j*LNS)//4 % 256} offset1:{(128*j*LNS)//4 % 256 + 1}")
        e(f"ds_read2_b32 v[{42+4*j}:{43+4*j}], v12 offset0:{(128*j*LNS)//4 % 256 + 2} offset1:{(128*j*LNS)//4 % 256 + 3}")
        if j < 4:
            nxt = (128*(j+1)*LNS)//4 // 256 - (128*j*LNS)//4 // 256
            e(f"v_add_u32 v12, {nxt*1024}, v12")
    for j in range(5):
        e(f"s_waitcnt lgkmcnt({2*(4-j)})")
        e(f"buffer_store_dwordx4 v[{40+4*j}:{43+4*j}], v13, s[28:31], s6 offen")
        if j < 4: e("s_add_u32 s6, s6, %d" % (128*4096))
    e("s_endpgm")
    lab("prep_wt")
    if "wt" in SKIP: e("s_endpgm")
    e("s_load_dwordx2 s[40:41], s[0:1], 64")
    e("s_load_dwordx2 s[42:43], s[0:1], 80")
    e("s_sub_u32 s4, s2, %d" % (KG_WGS + LN_WGS))
    e("s_lshl_b32 s4, s4, 2")
    e("s_add_u32 s4, s4, s3")
    e("s_waitcnt lgkmcnt(0)")
    e("s_cmp_ge_u32 s4, 270")
    e("s_cselect_b32 s40, s42, s40")
    e("s_cselect_b32 s41, s43, s41")
    e("s_mov_b32 s5, 3456")
    e("s_mov_b32 s7, 159072863")
    e("s_mov_b32 s34, %d" % WS_W1F)
    e("s_cselect_b32 s5, 1280, s5")
    e("s_cselect_b32 s6, 10, 27")
    e("s_cselect_b32 s7, 429496730, s7")
    e("s_cselect_b32 s32, 270, 0")
    e("s_cselect_b32 s33, 108, 40")
    e("s_cselect_b32 s34, %d, s34" % WS_W2F)
    srd(8, 40, D*F*2); srd(28, 56, WS_SIZE)
    e("s_sub_u32 s32, s4, s32")
    e("s_lshl_b32 s32, s32, 2")
    e("v_lshrrev_b32 v3, 3, v2")
    e("v_and_b32 v4, 7, v2")
    e("v_mul_lo_u32 v5, v3, s5")
    e("v_lshl_add_u32 v5, v4, 4, v5")
    e("s_lshl_b32 s35, s5, 3")
    e("s_mul_i32 s36, s3, %d" % (4*16*144))
    e("v_mul_u32_u24 v6, 144, v3")
    e("v_lshl_add_u32 v6, v4, 4, v6")
    e("v_add_u32 v6, s36, v6")
    e("v_and_b32 v7, 31, v2")
    e("v_lshrrev_b32 v8, 5, v2")
    e("v_mul_u32_u24 v8, %d, v8" % (8*144))
    e("v_lshl_add_u32 v8, v7, 1, v8")
    e("v_add_u32 v8, s36, v8")
    e("v_lshlrev_b32 v9, 4, v2")
    for q in range(4):
        e(f"s_add_u32 s37, s32, {q}")
        e("s_mul_hi_u32 s38, s37, s7")
        e("s_mul_i32 s39, s38, s6")
        e("s_sub_u32 s39, s37, s39")
        e(f"s_lshl_b32 s44, s38, 4")
        e(f"s_mul_i32 s44, s44, s5")
        e(f"s_lshl_b32 s45, s39, 7")
        e(f"s_add_u32 s44, s44, s45")
        e(f"buffer_load_dwordx4 v[{16+8*q}:{19+8*q}], v5, s[8:11], s44 offen")
        e(f"s_add_u32 s44, s44, s35")
        e(f"buffer_load_dwordx4 v[{20+8*q}:{23+8*q}], v5, s[8:11], s44 offen")
        e(f"s_lshl_b32 s45, s39, 1")
        e(f"s_mul_i32 s45, s45, s33")
        e(f"s_add_u32 s45, s45, s38")
        e(f"s_lshl_b32 s45, s45, 10")
        e(f"s_add_u32 s{48+q}, s45, s34")
    e("s_lshl_b32 s33, s33, 10")
    for q in range(4):
        e(f"s_waitcnt vmcnt({6-2*q})")
        e(f"ds_write_b128 v6, v[{16+8*q}:{19+8*q}] offset:{q*16*144}")
        e(f"ds_write_b128 v6, v[{20+8*q}:{23+8*q}] offset:{q*16*144 + 8*144}")
    for q in range(4):
        e("s_waitcnt lgkmcnt(0)") if q == 0 else None
        for f in range(2):
            for el in range(8):
                e(f"ds_read_u16 v{48+16*(q&1)*2+16*f+el}, v8 offset:{q*16*144 + el*144 + 64*f}")
        if q > 0:
            pass
        e("s_waitcnt lgkmcnt(0)")
        for f in range(2):
            for j in range(4):
                r = 48 + 16*(q&1)*2 + 16*f
                e(f"v_lshl_or_b32 v{112+4*f+j}, v{r+2*j+1}, 16, v{r+2*j}")
            if f == 0:
                e(f"buffer_store_dwordx4 v[112:115], v9, s[28:31], s{48+q} offen")
            else:
                e(f"s_add_u32 s{48+q}, s{48+q}, s33")
                e(f"buffer_store_dwordx4 v[116:119], v9, s[28:31], s{48+q} offen")
        if q < 3:
            e("s_nop 1")
    lab("prep_end")
    e("s_endpgm")
    kernel_desc("prep_kernel", 128)

G1_WGS = 256
CV_WGS = 640
MID_WGS = G1_WGS + CV_WGS
CS = 4160
def CB(c): return c*CS + (32 if c >= 4 else 0)
UB = CB(7) + CS - 80
G1_NS, G1_BD = int(os.environ.get('G1NS', 5)), int(os.environ.get('G1BD', 3))
MID_LDS = 40960

def mish_pairs(acc0, acc1, b0, b1r, dst, t):
    e(f"v_cvt_pk_bf16_f32 v{t}, v{acc0}, v{acc1}")
    e(f"v_lshlrev_b32 v{t+1}, 16, v{t}")
    e(f"v_and_b32 v{t+2}, 0xffff0000, v{t}")
    e(f"v_add_f32 v{t+1}, v{t+1}, v{b0}")
    e(f"v_add_f32 v{t+2}, v{t+2}, v{b1r}")
    e(f"v_cvt_pk_bf16_f32 v{t}, v{t+1}, v{t+2}")
    e(f"v_lshlrev_b32 v{t+1}, 16, v{t}")
    e(f"v_and_b32 v{t+2}, 0xffff0000, v{t}")
    e(f"v_min_f32 v{t+3}, 0x41a00000, v{t+1}")
    e(f"v_min_f32 v{t+4}, 0x41a00000, v{t+2}")
    e(f"v_mul_f32 v{t+3}, {LOG2E:#x}, v{t+3}")
    e(f"v_mul_f32 v{t+4}, {LOG2E:#x}, v{t+4}")
    e(f"v_exp_f32 v{t+3}, v{t+3}")
    e(f"v_exp_f32 v{t+4}, v{t+4}")
    e(f"s_nop 0")
    e(f"v_add_f32 v{t}, 2.0, v{t+3}")
    e(f"v_add_f32 v{t+5}, 2.0, v{t+4}")
    e(f"v_mul_f32 v{t+3}, v{t+3}, v{t}")
    e(f"v_mul_f32 v{t+4}, v{t+4}, v{t+5}")
    e(f"v_add_f32 v{t}, 2.0, v{t+3}")
    e(f"v_add_f32 v{t+5}, 2.0, v{t+4}")
    e(f"v_rcp_f32 v{t}, v{t}")
    e(f"v_rcp_f32 v{t+5}, v{t+5}")
    e(f"v_mul_f32 v{t+1}, v{t+1}, v{t+3}")
    e(f"v_mul_f32 v{t+2}, v{t+2}, v{t+4}")
    e(f"v_mul_f32 v{t+1}, v{t+1}, v{t}")
    e(f"v_mul_f32 v{t+2}, v{t+2}, v{t+5}")
    e(f"v_cvt_pk_bf16_f32 v{dst}, v{t+1}, v{t+2}")

def gemm_loop(nA, nsteps, KS, NS, frag_reg, acc_reg, voff, srdws, sA0, sB0, stride, spiece, vlds_r_b, vlds_r_lane):
    nR = nA + 4
    npieces = nR * KS
    npw = (npieces + 3) // 4
    SZ = npieces * 1024
    nchunks = nsteps // KS
    assert nsteps % KS == 0
    e(f"s_sub_u32 s{sB0}, s{sB0}, {nA*stride}")
    for i in range(npw):
        g, l = spiece + 2*i, spiece + 2*i + 1
        e(f"s_add_u32 s{l}, s3, {4*i}")
        e(f"s_min_u32 s{l}, s{l}, {npieces-1}")
        sh = {1: 0, 2: 1, 4: 2}[KS]
        e(f"s_lshr_b32 s{g}, s{l}, {sh}")
        e(f"s_cmp_lt_u32 s{g}, {nA}")
        e(f"s_cselect_b32 s6, s{sA0}, s{sB0}")
        e(f"s_mul_i32 s{g}, s{g}, {stride}")
        e(f"s_add_u32 s{g}, s{g}, s6")
        e(f"s_and_b32 s6, s{l}, {KS-1}")
        e(f"s_lshl_b32 s6, s6, 10")
        e(f"s_add_u32 s{g}, s{g}, s6")
        e(f"s_lshl_b32 s{l}, s{l}, 10")
    def dma(c):
        slot = c % NS
        for i in range(npw):
            e(f"s_add_u32 m0, s{spiece+2*i+1}, {slot*SZ}")
            e("s_nop 0")
            e(f"buffer_load_dwordx4 v{voff}, s[{srdws}:{srdws+3}], s{spiece+2*i} offen lds")
        e(f"v_add_u32 v{voff}, {KS*1024}, v{voff}")
    per = nA + 1
    HALF = 2*SZ
    e(f"v_add_u32 v12, {HALF}, v{vlds_r_b}")
    e(f"v_add_u32 v13, {HALF}, v{vlds_r_lane}")
    e(f"v_add_u32 v14, {2*HALF}, v{vlds_r_b}")
    e(f"v_add_u32 v15, {2*HALF}, v{vlds_r_lane}")
    def reads(slot, q):
        fr = frag_reg + 4*per*q
        vb, vl, so = [(vlds_r_b, vlds_r_lane, slot*SZ), (12, 13, slot*SZ - HALF), (14, 15, slot*SZ - 2*HALF)][slot//2]
        e(f"ds_read_b128 v[{fr}:{fr+3}], v{vb} offset:{so + q*1024}")
        for a in range(nA):
            e(f"ds_read_b128 v[{fr+4+4*a}:{fr+7+4*a}], v{vl} offset:{so + a*KS*1024 + q*1024}")
    def mfmas(q):
        fr = frag_reg + 4*per*q
        for a in range(nA):
            ac = acc_reg + 16*a
            e(f"v_mfma_f32_32x32x16_bf16 v[{ac}:{ac+15}], v[{fr+4+4*a}:{fr+7+4*a}], v[{fr}:{fr+3}], v[{ac}:{ac+15}]")
    for c in range(min(NS-1, nchunks)):
        dma(c)
    for c in range(nchunks):
        inflight = min(NS-2, nchunks-1-c)
        e(f"s_waitcnt vmcnt({inflight*npw})")
        e("s_barrier")
        if nA == 2 and c == 0: stamp(2)
        if nA == 2 and c == 1: stamp(3)
        slot = c % NS
        if "rd" not in SKIP:
            for q in range(KS):
                reads(slot, q)
        if c + NS - 1 < nchunks and "dma" not in SKIP:
            dma(c + NS - 1)
        for q in range(KS):
            e(f"s_waitcnt lgkmcnt({(KS-1-q)*per})")
            if "mf" not in SKIP: mfmas(q)

def gen_mid():
    kernel_begin("mid_kernel")
    e("s_cmp_ge_u32 s2, %d" % MID_WGS)
    e("s_cbranch_scc1 mid_end")
    tl_begin()
    e("s_load_dwordx2 s[56:57], s[0:1], 104")
    e("s_load_dwordx2 s[58:59], s[0:1], 72")
    e("s_load_dwordx2 s[60:61], s[0:1], 48")
    e("v_lshrrev_b32 v1, 6, v0")
    e("v_and_b32 v2, 63, v0")
    e("s_nop 0")
    e("v_readfirstlane_b32 s3, v1")
    e("s_waitcnt lgkmcnt(0)")
    srd(28, 56, WS_SIZE)
    e("s_cmp_ge_u32 s2, %d" % G1_WGS)
    e("s_cbranch_scc1 mid_conv")
    if "g1" in SKIP: e("s_endpgm")
    srd(8, 58, F*2)
    tl(1)
    claim_tile(0, 32, 7168*G1_NS, "mcl")
    tl(2)
    e("s_lshr_b32 s5, s2, 4")
    e("s_and_b32 s4, s2, 15")
    e("s_mul_i32 s6, s4, 7")
    e("s_sub_u32 s7, s4, 12")
    e("s_cmp_lt_u32 s4, 12")
    e("s_cselect_b32 s7, 0, s7")
    e("s_cselect_b32 s26, 7, 6")
    e("s_sub_u32 s4, s6, s7")
    e("v_and_b32 v3, 15, v2")
    e("v_lshrrev_b32 v4, 4, v2")
    e("v_lshrrev_b32 v5, 1, v4")
    e("v_and_b32 v6, 1, v4")
    e("v_lshlrev_b32 v7, 4, v3")
    e("v_lshl_add_u32 v7, v5, 10, v7")
    e("v_lshl_add_u32 v7, v6, 9, v7")
    e("v_mov_b32 v8, v7")
    for k in range(2):
        e(f"s_add_u32 s6, s3, {4*k}")
        e("s_min_u32 s6, s6, 6")
        e(f"s_lshl_b32 s{42+k}, s6, 10")
        e("s_add_u32 s6, s6, s4")
        e("s_min_u32 s6, s6, 107")
        e(f"s_lshr_b32 s{40+k}, s6, 1")
        e(f"s_mul_i32 s{40+k}, s{40+k}, {40*1024}")
        e("s_and_b32 s6, s6, 1")
        e("s_lshl_b32 s6, s6, 8")
        e(f"s_add_u32 s{40+k}, s{40+k}, s6")
        e(f"s_add_u32 s{40+k}, s{40+k}, {WS_W1F}")
    e("s_lshl_b32 s6, s5, 2")
    e("s_add_u32 s27, s6, s3")
    e("s_mul_i32 s44, s27, %d" % (40*1024))
    e("s_add_u32 s44, s44, %d" % WS_XNF)
    e("v_lshlrev_b32 v9, 4, v2")
    NS, BD, NSTEP = G1_NS, G1_BD, 20
    AF, BF, ACC, BI = 16, 44, 44 + 8*G1_BD, 44
    pend = []
    def dma(st):
        for k in range(2):
            e(f"s_add_u32 m0, s{42+k}, {(st % NS)*7168}")
            e("s_nop 0")
            e(f"buffer_load_dwordx4 v7, s[28:31], s{40+k} offen lds")
            pend.append(("a", st))
        e("v_add_u32 v7, 2048, v7")
    def bld(st):
        r = BF + 8*(st % BD)
        e(f"buffer_load_dwordx4 v[{r}:{r+3}], v8, s[28:31], s44 offen")
        e(f"buffer_load_dwordx4 v[{r+4}:{r+7}], v8, s[28:31], s44 offen offset:256")
        pend.append(("b", st)); pend.append(("b", st))
        e("v_add_u32 v8, 2048, v8")
    def wait_for(*tags):
        idx = [i for i, p in enumerate(pend) if p in tags]
        if not idx: return
        last = max(idx)
        e(f"s_waitcnt vmcnt({len(pend) - 1 - last})")
        del pend[:last+1]
    def rdA(st, t):
        e(f"ds_read_b128 v[{AF+4*t}:{AF+4*t+3}], v9 offset:{(st % NS)*7168 + 1024*t}")
    for st in range(max(NS-1, BD)):
        if st < NS-1: dma(st)
        if st < BD: bld(st)
    e("s_lshl_b32 s6, s4, 5")
    e("v_lshl_add_u32 v10, v4, 3, s6")
    for r in range(ACC, ACC+56):
        e(f"v_mov_b32 v{r}, 0")
    wait_for(("a", 0))
    e("s_barrier")
    tl(3)
    for t in range(7): rdA(0, t)
    for st in range(NSTEP):
        if st + 1 < NSTEP:
            wait_for(("a", st+1), ("b", st))
            e("s_barrier")
            if st - 1 + NS < NSTEP: dma(st - 1 + NS)
        else:
            wait_for(("b", st))
        rb = BF + 8*(st % BD)
        for t in range(7):
            e(f"s_waitcnt lgkmcnt({6 if st + 1 < NSTEP else 6 - t})")
            for b_ in range(2):
                ac = ACC + 4*(2*t + b_)
                e(f"v_mfma_f32_16x16x32_bf16 v[{ac}:{ac+3}], v[{AF+4*t}:{AF+4*t+3}], v[{rb+4*b_}:{rb+4*b_+3}], v[{ac}:{ac+3}]")
            if st + 1 < NSTEP: rdA(st+1, t)
        if st + BD < NSTEP: bld(st + BD)
        if st == NSTEP - 2:
            assert BD == 3
            free = [BF + 8*((NSTEP-3) % BD), BF + 8*((NSTEP-2) % BD)]
            BIr = [free[0] + 2*k for k in range(4)] + [free[1] + 2*k for k in range(3)]
            for t in range(7):
                e(f"buffer_load_dwordx2 v[{BIr[t]}:{BIr[t]+1}], v10, s[8:11], 0 offen offset:{32*t}")
                pend.append(("c", 0))
    e("s_nop 7")
    e("s_waitcnt vmcnt(0)")
    tl(4)
    e("s_mul_i32 s6, s27, 108")
    e("s_add_u32 s6, s6, s4")
    e("s_lshl_b32 s6, s6, 10")
    e("s_add_u32 s6, s6, %d" % WS_ACT)
    e("v_lshlrev_b32 v9, 4, v3")
    e("v_lshl_add_u32 v9, v5, 9, v9")
    e("v_lshl_add_u32 v9, v6, 3, v9")
    T = 16
    for t in range(7):
        if t == 6:
            e("s_cmp_lt_u32 s26, 7")
            e("s_cbranch_scc1 g1_end")
        r = BIr[t]
        e(f"v_lshlrev_b32 v{T}, 16, v{r}")
        e(f"v_and_b32 v{T+1}, 0xffff0000, v{r}")
        e(f"v_lshlrev_b32 v{T+2}, 16, v{r+1}")
        e(f"v_and_b32 v{T+3}, 0xffff0000, v{r+1}")
        for b_ in range(2):
            ac = ACC + 4*(2*t + b_)
            d0 = T + 16 + 2*((2*t + b_) % 4)
            mish_pairs(ac, ac+1, T, T+1, d0, T+4)
            mish_pairs(ac+2, ac+3, T+2, T+3, d0+1, T+10)
            off = (t % 4)*1024 + 256*b_
            e(f"buffer_store_dwordx2 v[{d0}:{d0+1}], v9, s[28:31], s6 offen offset:{off}")
        if t == 3: e("s_add_u32 s6, s6, 4096")
    lab("g1_end")
    tl(5)
    if TL: e("s_waitcnt vmcnt(0)")
    tl_end(1)
    e("s_endpgm")
    lab("mid_conv")
    if "cv" in SKIP: e("s_endpgm")
    srd(8, 60, D*2)
    e("s_sub_u32 s4, s2, %d" % G1_WGS)
    e("s_lshl_b32 s5, s4, 1")
    e("v_mov_b32 v3, s5")
    e("buffer_load_ushort v1, v3, s[8:11], 0 offen")
    e("s_lshl_b32 s5, s4, 12")
    e("s_add_u32 s5, s5, %d" % WS_XNT)
    e("v_lshlrev_b32 v4, 4, v0")
    e("buffer_load_dwordx4 v[8:11], v4, s[28:31], s5 offen")
    e("s_mul_i32 s6, s4, %d" % KR_STRIDE)
    e("s_add_u32 s6, s6, %d" % WS_KR)
    e("buffer_load_dwordx4 v[12:15], v4, s[28:31], s6 offen")
    e("buffer_load_dwordx4 v[16:19], v4, s[28:31], s6 offen offset:16")
    e("v_min_u32 v5, 3, v0")
    e("v_lshlrev_b32 v5, 4, v5")
    e("v_add_u32 v5, 4096, v5")
    e("buffer_load_dwordx4 v[20:23], v5, s[28:31], s6 offen")
    e("buffer_load_dwordx4 v[24:27], v5, s[28:31], s6 offen offset:16")
    for k in range(4):
        e(f"v_mov_b32 v{28+k}, 0")
    e("v_min_u32 v6, 154, v0")
    e("v_lshlrev_b32 v6, 4, v6")
    e(f"ds_write_b128 v6, v[28:31] offset:{UB + 80}")
    e("v_lshrrev_b32 v6, 2, v0")
    e("v_mul_u32_u24 v6, 80, v6")
    e("v_and_b32 v7, 3, v0")
    e("v_lshl_add_u32 v6, v7, 4, v6")
    e("s_waitcnt vmcnt(4)")
    e(f"ds_write_b128 v6, v[8:11] offset:{UB + 32*80}")
    def copies(w, vaddr):
        for c in range(8):
            if c % 2 == 0:
                e(f"ds_write_b128 v{vaddr}, v[{w+c//2}:{w+c//2+3}] offset:{CB(c)}") if (w + c//2) % 2 == 0 else None
                if (w + c//2) % 2:
                    for j in range(4):
                        e(f"v_mov_b32 v{32+j}, v{w+c//2+j}")
                    e(f"ds_write_b128 v{vaddr}, v[32:35] offset:{CB(c)}")
            else:
                for j in range(4):
                    e(f"v_alignbit_b32 v{36+j}, v{w+(c+1)//2+j}, v{w+(c-1)//2+j}, 16")
                e(f"ds_write_b128 v{vaddr}, v[36:39] offset:{CB(c)}")
    e("s_waitcnt vmcnt(2)")
    copies(12, 4)
    e("s_waitcnt vmcnt(0)")
    copies(20, 5)
    e("s_waitcnt lgkmcnt(0)")
    tl(2)
    e("s_barrier")
    tl(3)
    e("v_and_b32 v3, 31, v2")
    e("v_lshrrev_b32 v4, 5, v2")
    e("v_sub_u32 v5, 7, v3")
    e("v_and_b32 v5, 7, v5")
    e("v_sub_u32 v6, 2047, v3")
    e("v_lshl_add_u32 v6, v4, 3, v6")
    e("v_sub_u32 v6, v6, v5")
    e("v_mul_u32_u24 v7, %d, v5" % CS)
    e("v_lshrrev_b32 v8, 2, v5")
    e("v_lshl_add_u32 v7, v8, 5, v7")
    e("v_lshl_add_u32 v6, v6, 1, v7")
    e("v_mul_u32_u24 v7, 80, v3")
    e("v_lshl_add_u32 v7, v4, 4, v7")
    e(f"v_add_u32 v7, {UB + 32*80}, v7")
    for r in range(16, 48):
        e(f"v_mov_b32 v{r}, 0")
    e("s_lshl_b32 s5, s3, 9")
    e(f"s_add_u32 s5, s5, {64*7 + 64*32}")
    e("v_subrev_u32 v8, s5, v6")
    e("s_mul_i32 s5, s3, 640")
    e(f"s_add_u32 s5, s5, {80*7}")
    e("v_subrev_u32 v9, s5, v7")
    def rd(q):
        base = 48 + (q & 1)*32
        for t in range(2):
            fa = base + 16*t
            e(f"ds_read_b128 v[{fa}:{fa+3}], v8 offset:{64*(7-q) + 2048 + 32*t}")
            e(f"ds_read_b128 v[{fa+4}:{fa+7}], v9 offset:{80*(7-q) + 32*t}")
            e(f"ds_read_b128 v[{fa+8}:{fa+11}], v9 offset:{80*(7-q) + 2560 + 32*t}")
            e(f"ds_read_b128 v[{fa+12}:{fa+15}], v8 offset:{64*(7-q) + 32*t}")
    def mm(q):
        base = 48 + (q & 1)*32
        for t in range(2):
            fa = base + 16*t
            e(f"v_mfma_f32_32x32x16_bf16 v[16:31], v[{fa}:{fa+3}], v[{fa+4}:{fa+7}], v[16:31]")
            e(f"v_mfma_f32_32x32x16_bf16 v[32:47], v[{fa}:{fa+3}], v[{fa+8}:{fa+11}], v[32:47]")
            e(f"v_mfma_f32_32x32x16_bf16 v[32:47], v[{fa+12}:{fa+15}], v[{fa+4}:{fa+7}], v[32:47]")
    rd(0)
    for q in range(8):
        if q < 7:
            rd(q + 1)
            e("s_waitcnt lgkmcnt(8)")
        else:
            e("s_waitcnt lgkmcnt(0)")
        mm(q)
    tl(4)
    e("s_nop 15")
    e("s_barrier")
    e("v_lshlrev_b32 v10, 4, v2")
    e("s_cmp_eq_u32 s3, 0")
    e("s_cbranch_scc1 cv_w0")
    e("s_sub_u32 s5, s3, 1")
    e("s_lshl_b32 s5, s5, 12")
    e("v_add_u32 v11, s5, v10")
    for r in range(4):
        e(f"ds_write_b128 v11, v[{16+4*r}:{19+4*r}] offset:{1024*r}")
    lab("cv_w0")
    e("s_cmp_eq_u32 s3, 1")
    e("s_cbranch_scc1 cv_w1")
    e("s_sub_u32 s5, s3, 1")
    e("s_max_i32 s5, s5, 0")
    e("s_lshl_b32 s5, s5, 12")
    e("v_add_u32 v11, s5, v10")
    for r in range(4):
        e(f"ds_write_b128 v11, v[{32+4*r}:{35+4*r}] offset:{12288 + 1024*r}")
    e("s_branch cv_w2")
    lab("cv_w1")
    for r in range(16):
        e(f"v_mov_b32 v{16+r}, v{32+r}")
    e("v_add_u32 v10, 12288, v10")
    lab("cv_w2")
    e("s_waitcnt lgkmcnt(0)")
    e("s_barrier")
    e("s_cmp_ge_u32 s3, 2")
    e("s_cbranch_scc1 mid_end")
    for sl in range(3):
        for r in range(4):
            e(f"ds_read_b128 v[{48+16*sl+4*r}:{51+16*sl+4*r}], v10 offset:{4096*sl + 1024*r}")
    for sl in range(3):
        e(f"s_waitcnt lgkmcnt({8-4*sl})")
        for r in range(16):
            e(f"v_add_f32 v{16+r}, v{16+r}, v{48+16*sl+r}")
    lab("cv_epi")
    e("s_mul_i32 s5, s3, %d" % (32*80))
    e("v_mul_u32_u24 v11, 80, v3")
    e("v_lshl_add_u32 v11, v4, 3, v11")
    e("v_add_u32 v11, s5, v11")
    for g in range(4):
        e(f"ds_read_b64 v[{32+2*g}:{33+2*g}], v11 offset:{UB + 32*80 + 16*g}")
    e("s_lshl_b32 s5, s4, 12")
    e("s_lshl_b32 s6, s3, 11")
    e("s_add_u32 s5, s5, s6")
    e("s_add_u32 s5, s5, %d" % WS_AT)
    e("v_lshlrev_b32 v12, 6, v3")
    e("v_lshl_add_u32 v12, v4, 3, v12")
    e("s_waitcnt vmcnt(0) lgkmcnt(0)")
    e("v_lshlrev_b32 v1, 16, v1")
    for g in range(4):
        for p in range(2):
            u = 32 + 2*g + p
            y0 = 16 + 4*g + 2*p
            e(f"v_lshlrev_b32 v44, 16, v{u}")
            e(f"v_and_b32 v45, 0xffff0000, v{u}")
            e(f"v_mul_f32 v44, v44, v1")
            e(f"v_mul_f32 v45, v45, v1")
            e(f"v_cvt_pk_bf16_f32 v44, v44, v45")
            e(f"v_cvt_pk_bf16_f32 v46, v{y0}, v{y0+1}")
            e(f"v_lshlrev_b32 v47, 16, v44")
            e(f"v_and_b32 v48, 0xffff0000, v44")
            e(f"v_lshlrev_b32 v49, 16, v46")
            e(f"v_and_b32 v50, 0xffff0000, v46")
            e(f"v_add_f32 v47, v47, v49")
            e(f"v_add_f32 v48, v48, v50")
            e(f"v_cvt_pk_bf16_f32 v{52+2*g+p}, v47, v48")
        e(f"buffer_store_dwordx2 v[{52+2*g}:{53+2*g}], v12, s[28:31], s5 offen offset:{16*g}")
    tl(5)
    if TL: e("s_waitcnt vmcnt(0)")
    tl_end(1)
    lab("mid_end")
    e("s_endpgm")
    kernel_desc("mid_kernel", 128)

G2_WGS = 256
FIN_LDS = 61440 + 64
FDEPTH = int(os.environ.get('FDEPTH', 4))
def gen_fin():
    kernel_begin("fin_kernel")
    e("s_cmp_ge_u32 s2, %d" % G2_WGS)
    e("s_cbranch_scc1 fin_end")
    e("s_load_dwordx2 s[56:57], s[0:1], 104")
    e("s_load_dwordx2 s[58:59], s[0:1], 0")
    e("s_load_dwordx2 s[60:61], s[0:1], 88")
    e("v_lshrrev_b32 v1, 6, v0")
    e("v_and_b32 v2, 63, v0")
    e("s_nop 0")
    e("v_readfirstlane_b32 s3, v1")
    if "xcc" in SKIP:
        e("s_and_b32 s5, s2, 31")
        e("s_lshr_b32 s4, s2, 5")
    else:
        e("s_waitcnt lgkmcnt(0)")
        srd(28, 56, WS_SIZE)
        claim_tile(512, 32, 61440, "fcl")
        e("s_lshr_b32 s5, s2, 5")
        e("s_lshl_b32 s5, s5, 2")
        e("s_and_b32 s6, s2, 3")
        e("s_add_u32 s5, s5, s6")
        e("s_bfe_u32 s4, s2, 0x30002")
    e("v_and_b32 v3, 15, v2")
    e("v_lshrrev_b32 v4, 4, v2")
    e("v_lshrrev_b32 v5, 1, v4")
    e("v_and_b32 v6, 1, v4")
    e("v_lshlrev_b32 v7, 4, v3")
    e("v_lshl_add_u32 v7, v5, 10, v7")
    e("v_lshl_add_u32 v7, v6, 9, v7")
    e("s_lshl_b32 s6, s3, 11")
    e("v_add_u32 v7, s6, v7")
    e("s_mul_i32 s6, s4, 5")
    for a_ in range(5):
        e(f"s_add_u32 s7, s6, {a_}")
        e(f"s_lshr_b32 s{40+a_}, s7, 1")
        e(f"s_mul_i32 s{40+a_}, s{40+a_}, {108*1024}")
        e(f"s_and_b32 s7, s7, 1")
        e(f"s_lshl_b32 s7, s7, 8")
        e(f"s_add_u32 s{40+a_}, s{40+a_}, s7")
        e(f"s_add_u32 s{40+a_}, s{40+a_}, {WS_W2F}")
    e("s_mul_i32 s6, s5, %d" % (2*108*1024))
    e("s_add_u32 s45, s6, %d" % WS_ACT)
    e("s_add_u32 s46, s45, 256")
    e("s_add_u32 s47, s45, %d" % (108*1024))
    e("s_add_u32 s48, s47, 256")
    e("s_waitcnt lgkmcnt(0)")
    srd(28, 56, WS_SIZE); srd(8, 58, L*D*2); srd(12, 60, L*D*2)
    FR = 16
    ACC = 0
    EP = FR + 36*FDEPTH
    pend = []
    def issue(m):
        base = FR + 36*(m % FDEPTH)
        for t in range(9):
            e(f"buffer_load_dwordx4 v[{base+4*t}:{base+4*t+3}], v7, s[28:31], s{40+t} offen")
            pend.append(("f", m))
        e("v_add_u32 v7, 8192, v7")
    def wait_for(tag):
        last = max(i for i, p in enumerate(pend) if p == tag)
        n = len(pend) - 1 - last
        e(f"s_waitcnt vmcnt({n})")
        del pend[:last+1]
    NST = 14
    for m in range(FDEPTH):
        issue(m)
    e("s_lshl_b32 s6, s5, 6")
    e("s_lshl_b32 s7, s3, 4")
    e("s_add_u32 s6, s6, s7")
    e("v_add_u32 v8, s6, v3")
    e("v_mul_u32_u24 v9, 1280, v8")
    e("v_lshl_add_u32 v9, v4, 3, v9")
    e("s_mul_i32 s6, s4, 160")
    e("v_add_u32 v9, s6, v9")
    for a_ in range(5):
        e(f"buffer_load_dwordx2 v[{EP+2*a_}:{EP+2*a_+1}], v9, s[8:11], 0 offen offset:{32*a_}")
        pend.append(("e", 0))
    e("v_lshlrev_b32 v10, 14, v4")
    e("v_lshl_add_u32 v10, v8, 1, v10")
    e("s_mul_i32 s6, s4, %d" % (80*4096))
    e("s_add_u32 s6, s6, %d" % WS_AT)
    for a_ in range(5):
        for j in range(4):
            e(f"buffer_load_ushort v{EP+10+4*a_+j}, v10, s[28:31], s6 offen")
            pend.append(("e", 0))
            e("s_add_u32 s6, s6, %d" % (4096 if j < 3 else 4096*13))
    for r in range(ACC, ACC+80):
        e(f"v_accvgpr_write_b32 a{r}, 0")
    for m in range(NST):
        if m == NST - 1:
            e("s_cmp_ge_u32 s3, 2")
            e("s_cbranch_scc1 fin_red")
        wait_for(("f", m))
        base = FR + 36*(m % FDEPTH)
        for b_ in range(4):
            for a_ in range(5):
                ac = ACC + 4*(5*b_ + a_)
                e(f"v_mfma_f32_16x16x32_bf16 a[{ac}:{ac+3}], v[{base+4*a_}:{base+4*a_+3}], v[{base+20+4*b_}:{base+23+4*b_}], a[{ac}:{ac+3}]")
        if m + FDEPTH < NST:
            if m + FDEPTH == NST - 1:
                e("s_cmp_ge_u32 s3, 2")
                e("s_cselect_b32 s6, 8192, 0")
                e("v_subrev_u32 v7, s6, v7")
            issue(m + FDEPTH)
    lab("fin_red")
    e("s_nop 15")
    e("s_waitcnt vmcnt(0)")
    e("v_lshlrev_b32 v11, 4, v2")
    for w in range(4):
        if w < 3:
            e(f"s_cmp_lg_u32 s3, {w}")
            e(f"s_cbranch_scc1 fin_w{w+1}")
        for b_ in range(4):
            if b_ == w: continue
            slot = w if w < b_ else w - 1
            for a_ in range(5):
                ac = ACC + 4*(5*b_ + a_)
                e(f"ds_write_b128 v11, a[{ac}:{ac+3}] offset:{(b_*3 + slot)*5120 + a_*1024}")
        for r in range(20):
            e(f"v_accvgpr_read_b32 v{16+r}, a{ACC+20*w+r}")
        if w < 3:
            e("s_branch fin_rd")
            lab(f"fin_w{w+1}")
    lab("fin_rd")
    e("s_mul_i32 s6, s3, %d" % (3*5120))
    e("v_add_u32 v11, s6, v11")
    e("s_waitcnt lgkmcnt(0)")
    e("s_barrier")
    for sl in range(3):
        for a_ in range(5):
            r = 36 + 20*sl + 4*a_
            e(f"ds_read_b128 v[{r}:{r+3}], v11 offset:{sl*5120 + a_*1024}")
    for sl in range(3):
        e(f"s_waitcnt lgkmcnt({10-5*sl})")
        for r in range(20):
            e(f"v_add_f32 v{16+r}, v{16+r}, v{36+20*sl+r}")
    e("s_waitcnt vmcnt(0)")
    for a_ in range(5):
        rx = EP + 2*a_
        ra = EP + 10 + 4*a_
        for p in range(2):
            ac = 16 + 4*a_ + 2*p
            e(f"v_lshlrev_b32 v96, 16, v{rx+p}")
            e(f"v_and_b32 v97, 0xffff0000, v{rx+p}")
            e(f"v_lshlrev_b32 v98, 16, v{ra+2*p}")
            e(f"v_lshlrev_b32 v99, 16, v{ra+2*p+1}")
            e(f"v_add_f32 v96, v96, v98")
            e(f"v_add_f32 v97, v97, v99")
            e(f"v_cvt_pk_bf16_f32 v96, v96, v97")
            e(f"v_cvt_pk_bf16_f32 v98, v{ac}, v{ac+1}")
            e(f"v_lshlrev_b32 v100, 16, v96")
            e(f"v_and_b32 v101, 0xffff0000, v96")
            e(f"v_lshlrev_b32 v102, 16, v98")
            e(f"v_and_b32 v103, 0xffff0000, v98")
            e(f"v_add_f32 v100, v100, v102")
            e(f"v_add_f32 v101, v101, v103")
            e(f"v_cvt_pk_bf16_f32 v{rx+p}, v100, v101")
        e(f"buffer_store_dwordx2 v[{rx}:{rx+1}], v9, s[12:15], 0 offen offset:{32*a_}")
    lab("fin_end")
    e("s_endpgm")
    kernel_desc("fin_kernel", ((EP + 30) + 7)//8*8, agpr=80)

hdr = open("cdna_kernels/%s.s.ref" % NAME).read().split("; Override launch")[0]
text = hdr
text += f"; @launch kernel=prep_kernel grid=({PREP_WGS},1,1) block=(256,1,1) lds={PREP_LDS}\n"
text += f"; @launch kernel=mid_kernel grid=({MID_WGS},1,1) block=(256,1,1) lds={MID_LDS}\n"
text += f"; @launch kernel=fin_kernel grid=({G2_WGS},1,1) block=(256,1,1) lds={FIN_LDS}\n"
text += '.amdgcn_target "amdgcn-amd-amdhsa--gfx950"\n'
gen_prep(); gen_mid(); gen_fin()
_o = []; _in = False
for _l in out:
    if _l.startswith("fin_kernel:"): _in = True
    if _l.strip().startswith("buffer_store") and not _in and "nosc" not in SKIP: _l += " sc1"
    _o.append(_l)
out = _o
text += "\n".join(out) + "\n"
dst = sys.argv[1] if len(sys.argv) > 1 else "cdna_kernels/%s.s" % NAME
open(dst, "w").write(text)
print("wrote", dst, len(text))
```

```python
import sys, os
SKIP = os.environ.get("SKIP", "").split(",")
ORDER = int(os.environ.get("ORDER", 0))
PRIO = int(os.environ.get("PRIO", 0))
NAME = "parallel_sum__ssm_conv_s4d__dense_activation_mish__prompt"
L, D, N, F = 2048, 640, 128, 1728
WS_XNF = 0x0000000
WS_XNT = 0x0280000
WS_W1F = 0x0500000
WS_W2F = WS_W1F + 2160 * 1024
WS_KR = 0x0A00000
KR_STRIDE = 4224
WS_ACT = 0x0D00000
WS_AT = 0x1400000
WS_CNT = 0x1700000
WS_SIZE = 268435456
LOG2E = 0x3fb8aa3b
INV2PI = 0x3e22f983

out = []
def e(s):
    out.append("    " + s)
def lab(s):
    out.append(s + ":")
def cm(s):
    out.append("    ; " + s)

STAMP = os.environ.get("STAMP")
def stamp_init():
    if not STAMP: return
    e("s_load_dwordx2 s[84:85], s[0:1], 96")
    e("s_waitcnt lgkmcnt(0)")
    e("s_mov_b32 s80, s84"); e("s_and_b32 s81, s85, 0xffff"); e("s_mov_b32 s82, 256"); e("s_mov_b32 s83, 0x00020000")
def stamp(i):
    if not STAMP: return
    e("s_memtime s[86:87]")
    e("s_waitcnt lgkmcnt(0)")
    e(f"s_cmp_lg_u32 s2, {int(STAMP)}")
    e(f"s_cbranch_scc1 st_{stamp.n}")
    e(f"v_mov_b32 v255, s86")
    e(f"v_lshrrev_b32 v254, 6, v0")
    e(f"v_lshlrev_b32 v254, 6, v254")
    e(f"v_add_u32 v254, {4*i}, v254")
    e(f"buffer_store_dword v255, v254, s[80:83], 0 offen")
    lab(f"st_{stamp.n}")
    stamp.n += 1
stamp.n = 0


TL = os.environ.get("TL")
WS_TL = 0x1800000
def tl(i):
    if not TL: return
    e("s_memrealtime s[80:81]")
    e("s_waitcnt lgkmcnt(0)")
    e(f"s_mov_b32 s{84+i}, s80")
def tl_begin():
    if not TL: return
    e("s_mov_b32 s83, s2")
    for i in range(8): e(f"s_mov_b32 s{84+i}, 0")
    tl(0)
def tl_end(kern):
    if not TL: return
    tl(7)
    e("s_cmp_lg_u32 s3, 0")
    e(f"s_cbranch_scc1 tle_{tl_end.n}")
    e("s_lshl_b32 s83, s83, 5")
    e(f"s_add_u32 s83, s83, {WS_TL + kern*65536}")
    e("v_mov_b32 v1, 0")
    for i in range(8):
        e(f"v_mov_b32 v0, s{84+i}")
        e(f"buffer_store_dword v0, v1, s[28:31], s83 offen offset:{4*i}")
    lab(f"tle_{tl_end.n}")
    tl_end.n += 1
tl_end.n = 0

def srd(dst, ptr, size):
    e(f"s_mov_b32 s{dst}, s{ptr}")
    e(f"s_and_b32 s{dst+1}, s{ptr+1}, 0xffff")
    e(f"s_mov_b32 s{dst+2}, {size}")
    e(f"s_mov_b32 s{dst+3}, 0x00020000")

def kernel_begin(name):
    out.append(".text")
    out.append(f".globl {name}")
    out.append(".p2align 8")
    out.append(f".type {name},@function")
    lab(name)

def kernel_desc(name, vgpr, sgpr=96, agpr=0):
    if STAMP: vgpr = 256
    out.append('.section .rodata,"a"')
    out.append(".p2align 6")
    out.append(f".amdhsa_kernel {name}")
    out.append(f"  .amdhsa_next_free_vgpr {vgpr + agpr}")
    out.append(f"  .amdhsa_next_free_sgpr {sgpr}")
    out.append(f"  .amdhsa_accum_offset {(vgpr+3)//4*4}")
    out.append("  .amdhsa_group_segment_fixed_size 0")
    out.append("  .amdhsa_kernarg_size 112")
    out.append("  .amdhsa_user_sgpr_count 2")
    out.append("  .amdhsa_user_sgpr_kernarg_segment_ptr 1")
    out.append("  .amdhsa_system_sgpr_workgroup_id_x 1")
    out.append(".end_amdhsa_kernel")


def claim_tile(cnt_off, per, lds_off, lbl):
    e("s_cmp_lg_u32 s3, 0")
    e(f"s_cbranch_scc1 {lbl}_w")
    e("s_getreg_b32 s20, hwreg(HW_REG_XCC_ID)")
    e("s_and_b32 s20, s20, 7")
    e("s_mov_b32 s21, 0")
    e("s_mov_b64 s[22:23], exec")
    e("s_mov_b64 exec, 1")
    e("v_mov_b32 v12, 1")
    lab(f"{lbl}_l")
    e("s_lshl_b32 s24, s20, 6")
    e(f"s_add_u32 s24, s24, {WS_CNT + cnt_off}")
    e("v_mov_b32 v13, 0")
    e("v_mov_b32 v14, v12")
    e("buffer_atomic_add v14, v13, s[28:31], s24 offen sc0" + ("" if "asc" in SKIP else " sc1"))
    e("s_waitcnt vmcnt(0)")
    e("v_readfirstlane_b32 s25, v14")
    e(f"s_cmp_lt_u32 s25, {per}")
    e(f"s_cbranch_scc1 {lbl}_f")
    e("s_add_u32 s20, s20, 1")
    e("s_and_b32 s20, s20, 7")
    e("s_add_u32 s21, s21, 1")
    e("s_cmp_lt_u32 s21, 8")
    e(f"s_cbranch_scc1 {lbl}_l")
    e("s_mov_b32 s25, 0")
    lab(f"{lbl}_f")
    e(f"s_mul_i32 s20, s20, {per}")
    e("s_add_u32 s20, s20, s25")
    e("v_mov_b32 v14, s20")
    e(f"v_mov_b32 v13, {lds_off}")
    e("ds_write_b32 v13, v14")
    e("s_mov_b64 exec, s[22:23]")
    e("s_waitcnt lgkmcnt(0)")
    lab(f"{lbl}_w")
    e("s_barrier")
    e(f"v_mov_b32 v13, {lds_off}")
    e("ds_read_b32 v14, v13")
    e("s_waitcnt lgkmcnt(0)")
    e("v_readfirstlane_b32 s2, v14")

LN_WGS, WT_WGS, KG_WGS = 128, 135, 640
PREP_WGS = KG_WGS + LN_WGS + WT_WGS
KG_LDS_WAVE = 512
KG_TAB0 = 2048
KG_TAB = 2688
KG_FIN = KG_TAB0 + 4*KG_TAB
PREP_LDS = 36864
LNS = 36

def gen_prep():
    kernel_begin("prep_kernel")
    e("s_cmp_ge_u32 s2, %d" % PREP_WGS)
    e("s_cbranch_scc1 prep_end")
    e("s_load_dwordx2 s[56:57], s[0:1], 104")
    e("v_lshrrev_b32 v1, 6, v0")
    e("v_and_b32 v2, 63, v0")
    e("s_nop 0")
    e("v_readfirstlane_b32 s3, v1")
    if ORDER:
        e("s_add_u32 s2, s2, %d" % KG_WGS)
        e("s_cmp_ge_u32 s2, %d" % PREP_WGS)
        e("s_cselect_b32 s4, %d, 0" % PREP_WGS)
        e("s_sub_u32 s2, s2, s4")
    tl_begin()
    e("s_cmp_ge_u32 s2, %d" % (KG_WGS + LN_WGS))
    e("s_cbranch_scc1 prep_wt")
    e("s_cmp_ge_u32 s2, %d" % KG_WGS)
    e("s_cbranch_scc1 prep_ln")
    if "kg" in SKIP: e("s_endpgm")
    e("s_load_dwordx4 s[40:43], s[0:1], 8")
    e("s_load_dwordx4 s[44:47], s[0:1], 24")
    e("s_load_dwordx2 s[48:49], s[0:1], 40")
    e("s_mov_b32 s4, s2")
    e("s_mul_i32 s5, s3, %d" % KG_LDS_WAVE)
    e("s_lshl_b32 s6, s4, 8")
    e("s_lshl_b32 s7, s3, 6")
    e("s_add_u32 s6, s6, s7")
    e("v_and_b32 v3, 31, v2")
    e("v_lshl_add_u32 v3, v3, 1, s6")
    e("s_lshl_b32 s7, s4, 1")
    e("v_mov_b32 v4, s7")
    e("s_waitcnt lgkmcnt(0)")
    srd(8, 40, D*N*2); srd(12, 42, D*N*2); srd(16, 44, D*N*2); srd(20, 46, D*N*2)
    srd(24, 48, D*2); srd(28, 56, WS_SIZE)
    for k, sr in enumerate((8, 12, 16, 20)):
        e(f"buffer_load_ushort v{10+k}, v3, s[{sr}:{sr+3}], 0 offen")
    e("buffer_load_ushort v18, v4, s[24:27], 0 offen")
    e("v_and_b32 v8, 15, v2")
    e("v_lshrrev_b32 v9, 4, v2")
    e("v_and_b32 v24, 7, v8")
    e("v_lshrrev_b32 v25, 3, v8")
    e("v_lshl_add_u32 v28, v25, 7, v24")
    e("v_and_b32 v24, 3, v8")
    e("v_lshlrev_b32 v24, 1, v24")
    e("v_bfe_u32 v25, v8, 2, 1")
    e("v_lshl_add_u32 v24, v25, 7, v24")
    e("v_add_u32 v24, 256, v24")
    e("v_and_b32 v25, 1, v8")
    e("v_lshlrev_b32 v25, 2, v25")
    e("v_bfe_u32 v26, v8, 1, 2")
    e("v_lshl_add_u32 v25, v26, 7, v25")
    e("v_add_u32 v25, 512, v25")
    e("v_cmp_gt_u32 vcc, 8, v8")
    e("s_nop 1")
    e("v_cndmask_b32 v29, v25, v24, vcc")
    e("v_lshlrev_b32 v30, 7, v8")
    e("v_add_u32 v30, 0x400, v30")
    e("v_lshlrev_b32 v31, 3, v8")
    for t in range(4):
        e(f"v_cvt_f32_u32 v{28+t}, v{28+t}")
    e("s_mul_i32 s6, s3, %d" % KG_TAB)
    e("s_add_u32 s6, s6, %d" % KG_TAB0)
    e("v_and_b32 v24, 1, v9")
    e("v_lshrrev_b32 v25, 1, v9")
    e("v_lshl_add_u32 v33, v8, 5, s6")
    e("v_lshl_add_u32 v33, v24, 4, v33")
    e("v_lshl_add_u32 v33, v25, 9, v33")
    e("v_lshlrev_b32 v24, 4, v8")
    e("v_lshlrev_b32 v25, 3, v8")
    e("v_cmp_gt_u32 vcc, 2, v9")
    e("s_nop 1")
    e("v_cndmask_b32 v24, v25, v24, vcc")
    e("v_lshl_add_u32 v24, v9, 8, v24")
    e("v_add_u32 v24, s6, v24")
    e("v_add_u32 v34, 1024, v24")
    e("v_mov_b32 v25, 128")
    e("v_cndmask_b32_e64 v24, v25, 8, vcc")
    e("v_add_u32 v36, v34, v24")
    e("v_lshl_add_u32 v38, v8, 2, s6")
    e("v_lshl_add_u32 v38, v9, 8, v38")
    e("v_add_u32 v38, 2048, v38")
    e("v_lshl_add_u32 v39, v9, 4, s5")
    for r in range(40, 52):
        e(f"v_mov_b32 v{r}, 0")
    e("s_waitcnt vmcnt(0)")
    tl(1)
    for r in (10, 11, 12, 13, 18):
        e(f"v_lshlrev_b32 v{r}, 16, v{r}")
    e(f"v_mul_f32 v18, {LOG2E:#x}, v18")
    e(f"v_mul_f32 v10, {LOG2E:#x}, v10")
    e("v_exp_f32 v18, v18")
    e("v_exp_f32 v10, v10")
    e("s_nop 0")
    e("v_cvt_pk_bf16_f32 v18, v18, v18")
    e("v_cvt_pk_bf16_f32 v10, v10, v10")
    e("v_lshlrev_b32 v18, 16, v18")
    e("v_lshlrev_b32 v10, 16, v10")
    e("v_add_f32 v19, v18, v18")
    e("v_and_b32 v5, 31, v2")
    e("v_lshl_add_u32 v5, v5, 4, s5")
    e("v_mul_f32 v20, v10, v18")
    e(f"v_mul_f32 v20, {LOG2E|0x80000000:#x}, v20")
    e("v_mul_f32 v21, v11, v18")
    e(f"v_mul_f32 v21, {INV2PI:#x}, v21")
    e("v_mul_f32 v22, v12, v19")
    e("v_mul_f32 v23, v13, v19")
    e("ds_write_b128 v5, v[20:23]")
    e("s_waitcnt lgkmcnt(0)")
    for st in range(8):
        e(f"ds_read_b128 v[{96+4*st}:{99+4*st}], v39 offset:{64*st}")
    e("s_waitcnt lgkmcnt(0)")
    def kg_valu(st):
        P = 96 + 4*st
        O = 72 + 10*(st & 1)
        v = []
        for t in range(4):
            v.append(f"v_mul_f32 v{52+t}, v{P}, v{28+t}")
            v.append(f"v_mul_f32 v{56+t}, v{P+1}, v{28+t}")
        for t in range(4):
            v.append(f"v_exp_f32 v{52+t}, v{52+t}")
            v.append(f"v_fract_f32 v{56+t}, v{56+t}")
        for t in range(4):
            v.append(f"v_cos_f32 v{60+t}, v{56+t}")
            v.append(f"v_sin_f32 v{64+t}, v{56+t}")
        for t in range(4):
            v.append(f"v_mul_f32 v{60+t}, v{52+t}, v{60+t}")
            v.append(f"v_mul_f32 v{64+t}, v{52+t}, v{64+t}")
        v.append(f"v_mul_f32 v55, v63, v{P+2}")
        v.append(f"v_mul_f32_e64 v59, -v63, v{P+3}")
        v.append(f"v_fma_f32 v55, -v67, v{P+3}, v55")
        v.append(f"v_fma_f32 v59, -v67, v{P+2}, v59")
        def split(xr, xi, H, Lo, t0, t1):
            v.append(f"v_cvt_pk_bf16_f32 v{H}, v{xr}, v{xi}")
            v.append(f"v_lshlrev_b32 v{t0}, 16, v{H}")
            v.append(f"v_and_b32 v{t1}, 0xffff0000, v{H}")
            v.append(f"v_sub_f32 v{t0}, v{xr}, v{t0}")
            v.append(f"v_sub_f32 v{t1}, v{xi}, v{t1}")
            v.append(f"v_cvt_pk_bf16_f32 v{Lo}, v{t0}, v{t1}")
        split(55, 59, O, O+2, 68, 69)
        v.append(f"v_mov_b32 v{O+1}, v{O}")
        v.append(f"v_mov_b32 v{O+3}, v{O+2}")
        for t in range(3):
            split(60+t, 64+t, O+4+2*t, O+5+2*t, 52+t, 56+t)
        return v
    def kg_mfma(st):
        O = 72 + 10*(st & 1)
        m = []
        for h in range(2):
            for t in range(3):
                a = 40 + 4*t
                m.append(f"v_mfma_f32_16x16x16_bf16 v[{a}:{a+3}], v[{O+4+2*t}:{O+5+2*t}], v[{O+2*h}:{O+2*h+1}], v[{a}:{a+3}]")
        return m
    for st in range(9):
        v = kg_valu(st) if st < 8 else []
        m = kg_mfma(st-1) if st > 0 else []
        if "kgm" in SKIP: m = []
        if "kgv" in SKIP: v = []
        if not v:
            e("s_nop 1")
        vi = 0
        for mi, mm_ in enumerate(m):
            tgt = 2 + 7*mi
            while vi < min(tgt, len(v)):
                e(v[vi]); vi += 1
            e(mm_)
        while vi < len(v):
            e(v[vi]); vi += 1
    e("s_nop 15")
    tl(2)
    for r in range(4):
        e(f"ds_write_b32 v33, v{40+r} offset:{4*r}")
    e("ds_write_b32 v34, v44")
    e("ds_write_b32 v34, v45 offset:4")
    e("ds_write_b32 v36, v46")
    e("ds_write_b32 v36, v47 offset:4")
    e("s_mov_b32 exec_hi, 0xffff")
    e("ds_write_b32 v38, v48")
    e("s_mov_b32 exec_hi, 0")
    for r in range(1, 4):
        e(f"ds_write_b32 v38, v{48+r} offset:{64*r}")
    e("s_mov_b32 exec_hi, -1")
    e("s_mul_i32 s4, s4, %d" % KR_STRIDE)
    e("s_add_u32 s4, s4, %d" % WS_KR)
    e("v_lshlrev_b32 v39, 4, v0")
    e("v_lshlrev_b32 v64, 3, v0")
    e("v_sub_u32 v64, 2047, v64")
    e("v_lshlrev_b32 v65, 2, v0")
    e("v_lshlrev_b32 v66, 1, v0")
    for k in range(8):
        e(f"v_subrev_u32 v{52+k}, {k}, v64")
        e(f"v_cvt_f32_u32 v{72+k}, v{52+k}")
    for k in range(4):
        e(f"v_cvt_pk_bf16_f32 v{80+k}, v{72+2*k}, v{73+2*k}")
        e(f"v_and_b32 v{72+2*k}, 0xffff, v{80+k}")
        e(f"v_lshrrev_b32 v{73+2*k}, 16, v{80+k}")
    for k in range(8):
        e(f"v_subrev_u32 v{72+k}, 17024, v{72+k}")
        e(f"v_cmp_gt_u32 vcc, 256, v{52+k}")
        e("s_nop 1")
        e(f"v_cndmask_b32 v{52+k}, v{72+k}, v{52+k}, vcc")
        e(f"v_lshlrev_b32 v{52+k}, 1, v{52+k}")
    e("s_waitcnt lgkmcnt(0)")
    e("s_barrier")
    tl(3)
    for m in range(3):
        for ww in range(4):
            e(f"ds_read_b32 v{72+4*m+ww}, v65 offset:{KG_TAB0 + ww*KG_TAB + 1024*m}")
    for m in range(3):
        e(f"s_waitcnt lgkmcnt({8-4*m})")
        e(f"v_add_f32 v{72+4*m}, v{72+4*m}, v{73+4*m}")
        e(f"v_add_f32 v{74+4*m}, v{74+4*m}, v{75+4*m}")
        e(f"v_add_f32 v{72+4*m}, v{72+4*m}, v{74+4*m}")
        e(f"v_cvt_pk_bf16_f32 v{72+4*m}, v{72+4*m}, v{72+4*m}")
        e(f"ds_write_b16 v66, v{72+4*m} offset:{KG_FIN + 512*m}")
    e("s_waitcnt lgkmcnt(0)")
    e("s_barrier")
    tl(4)
    for k in range(8):
        e(f"ds_read_u16 v{96+k}, v{52+k} offset:{KG_FIN}")
    e("s_waitcnt lgkmcnt(0)")
    for k in range(4):
        e(f"v_lshl_or_b32 v{112+k}, v{97+2*k}, 16, v{96+2*k}")
    e(f"buffer_store_dwordx4 v[112:115], v39, s[28:31], s4 offen")
    for k in range(4):
        e(f"v_mov_b32 v{116+k}, 0")
    e("v_cmp_gt_u32 vcc, 8, v0")
    e("s_and_saveexec_b64 s[32:33], vcc")
    e("s_cbranch_execz prep_end")
    e("s_add_u32 s4, s4, 4096")
    e("buffer_store_dwordx4 v[116:119], v39, s[28:31], s4 offen")
    e("v_lshlrev_b32 v39, 6, v0")
    tl(5)
    if TL: e("s_waitcnt vmcnt(0)")
    tl_end(0)
    e("s_cmp_lg_u32 s2, 0")
    e("s_cbranch_scc1 prep_end")
    e("s_mov_b32 s4, %d" % WS_CNT)
    e("buffer_store_dword v116, v39, s[28:31], s4 offen")
    e("buffer_store_dword v116, v39, s[28:31], s4 offen offset:512")
    e("s_endpgm")
    lab("prep_ln")
    if "ln" in SKIP: e("s_endpgm")
    if PRIO & 1: e("s_setprio 3")
    e("s_load_dwordx2 s[40:41], s[0:1], 0")
    e("s_sub_u32 s2, s2, %d" % KG_WGS)
    e("v_and_b32 v3, 15, v0")
    e("v_lshrrev_b32 v4, 4, v0")
    e("s_lshl_b32 s5, s2, 4")
    e("v_add_u32 v5, s5, v4")
    e("v_mul_u32_u24 v6, 1280, v5")
    e("v_lshl_add_u32 v6, v3, 4, v6")
    e("s_waitcnt lgkmcnt(0)")
    srd(8, 40, L*D*2); srd(28, 56, WS_SIZE)
    for j in range(5):
        e(f"buffer_load_dwordx4 v[{16+4*j}:{19+4*j}], v6, s[8:11], 0 offen offset:{256*j}")
    e("s_lshr_b32 s6, s2, 1")
    e("s_mul_i32 s6, s6, %d" % (40*1024))
    e("s_add_u32 s6, s6, %d" % WS_XNF)
    e("v_lshrrev_b32 v7, 1, v3")
    e("v_lshlrev_b32 v7, 10, v7")
    e("v_and_b32 v8, 1, v3")
    e("v_lshl_add_u32 v7, v8, 9, v7")
    e("v_and_b32 v8, 31, v5")
    e("v_lshl_add_u32 v7, v8, 4, v7")
    e(f"v_mul_u32_u24 v9, {8*LNS}, v3")
    e("v_lshl_add_u32 v9, v4, 1, v9")
    e("s_waitcnt vmcnt(0)")
    tl(1)
    for k in range(20):
        e(f"v_lshlrev_b32 v{40+2*k}, 16, v{16+k}")
        e(f"v_and_b32 v{41+2*k}, 0xffff0000, v{16+k}")
    def lane_sum(srcs, acc):
        for a in range(4):
            e(f"v_add_f32 v{acc+a}, v{srcs[a]}, v{srcs[a+4]}")
        for k in range(8, len(srcs)):
            e(f"v_add_f32 v{acc+(k%4)}, v{acc+(k%4)}, v{srcs[k]}")
        e(f"v_add_f32 v{acc}, v{acc}, v{acc+1}")
        e(f"v_add_f32 v{acc+2}, v{acc+2}, v{acc+3}")
        e(f"v_add_f32 v{acc}, v{acc}, v{acc+2}")
        for sh in (8, 4, 2, 1):
            e("s_nop 1")
            e(f"v_add_f32_dpp v{acc}, v{acc}, v{acc} row_ror:{sh} row_mask:0xf bank_mask:0xf")
    lane_sum(list(range(40, 80)), 10)
    e("v_mul_f32 v14, 0x3acccccd, v10")
    for k in range(40):
        e(f"v_sub_f32 v{80+k}, v{40+k}, v14")
        e(f"v_mul_f32 v{80+k}, v{80+k}, v{80+k}")
    lane_sum(list(range(80, 120)), 10)
    e("v_mul_f32 v10, 0x3acccccd, v10")
    e("v_cvt_pk_bf16_f32 v10, v10, v14")
    e("v_and_b32 v14, 0xffff0000, v10")
    e("v_lshlrev_b32 v10, 16, v10")
    e("v_add_f32 v10, 0x3727c5ac, v10")
    e("v_cvt_pk_bf16_f32 v10, v10, v10")
    e("v_lshlrev_b32 v10, 16, v10")
    e("v_sqrt_f32 v10, v10")
    e("s_nop 0")
    e("v_cvt_pk_bf16_f32 v10, v10, v10")
    e("v_lshlrev_b32 v10, 16, v10")
    e("v_rcp_f32 v11, v10")
    e("s_nop 0")
    e("v_fma_f32 v12, -v10, v11, 2.0")
    e("v_mul_f32 v11, v11, v12")
    for k in range(20):
        e(f"v_sub_f32 v{40+2*k}, v{40+2*k}, v14")
        e(f"v_sub_f32 v{41+2*k}, v{41+2*k}, v14")
        e(f"v_cvt_pk_bf16_f32 v{16+k}, v{40+2*k}, v{41+2*k}")
        e(f"v_lshlrev_b32 v{40+2*k}, 16, v{16+k}")
        e(f"v_and_b32 v{41+2*k}, 0xffff0000, v{16+k}")
        e(f"v_mul_f32 v{40+2*k}, v{40+2*k}, v11")
        e(f"v_mul_f32 v{41+2*k}, v{41+2*k}, v11")
        e(f"v_cvt_pk_bf16_f32 v{16+k}, v{40+2*k}, v{41+2*k}")
    tl(2)
    for j in range(5):
        if "xnf" not in SKIP: e(f"buffer_store_dwordx4 v[{16+4*j}:{19+4*j}], v7, s[28:31], s6 offen")
        if j < 4: e("s_add_u32 s6, s6, 8192")
    for j in range(5):
        for el in range(8):
            r = 16 + 4*j + el//2
            op = "ds_write_b16_d16_hi" if el & 1 else "ds_write_b16"
            e(f"{op} v9, v{r} offset:{(128*j + el)*LNS}")
    e("v_lshrrev_b32 v10, 1, v0")
    e("v_and_b32 v11, 1, v0")
    e(f"v_mul_u32_u24 v12, {LNS}, v10")
    e("v_lshl_add_u32 v12, v11, 4, v12")
    e("v_lshlrev_b32 v13, 4, v0")
    e("s_mul_i32 s6, s2, 20480")
    e("s_add_u32 s6, s6, %d" % WS_XNT)
    e("s_waitcnt lgkmcnt(0)")
    e("s_barrier")
    tl(3)
    for j in range(5):
        e(f"ds_read2_b32 v[{40+4*j}:{41+4*j}], v12 offset0:{(128*j*LNS)//4 % 256} offset1:{(128*j*LNS)//4 % 256 + 1}")
        e(f"ds_read2_b32 v[{42+4*j}:{43+4*j}], v12 offset0:{(128*j*LNS)//4 % 256 + 2} offset1:{(128*j*LNS)//4 % 256 + 3}")
        if j < 4:
            nxt = (128*(j+1)*LNS)//4 // 256 - (128*j*LNS)//4 // 256
            e(f"v_add_u32 v12, {nxt*1024}, v12")
    for j in range(5):
        e(f"s_waitcnt lgkmcnt({2*(4-j)})")
        if "xnt" not in SKIP: e(f"buffer_store_dwordx4 v[{40+4*j}:{43+4*j}], v13, s[28:31], s6 offen")
        if j < 4: e("s_add_u32 s6, s6, %d" % (128*32))
    tl(5)
    if TL: e("s_waitcnt vmcnt(0)")
    tl_end(0)
    e("s_endpgm")
    lab("prep_wt")
    if "wt" in SKIP: e("s_endpgm")
    if PRIO & 2: e("s_setprio 3")
    e("s_load_dwordx2 s[40:41], s[0:1], 64")
    e("s_load_dwordx2 s[42:43], s[0:1], 80")
    e("s_sub_u32 s4, s2, %d" % (KG_WGS + LN_WGS))
    e("s_lshl_b32 s4, s4, 2")
    e("s_add_u32 s4, s4, s3")
    e("s_waitcnt lgkmcnt(0)")
    e("s_cmp_ge_u32 s4, 270")
    e("s_cselect_b32 s40, s42, s40")
    e("s_cselect_b32 s41, s43, s41")
    e("s_mov_b32 s5, 3456")
    e("s_mov_b32 s7, 159072863")
    e("s_mov_b32 s34, %d" % WS_W1F)
    e("s_cselect_b32 s5, 1280, s5")
    e("s_cselect_b32 s6, 10, 27")
    e("s_cselect_b32 s7, 429496730, s7")
    e("s_cselect_b32 s32, 270, 0")
    e("s_cselect_b32 s33, 108, 40")
    e("s_cselect_b32 s34, %d, s34" % WS_W2F)
    srd(8, 40, D*F*2); srd(28, 56, WS_SIZE)
    e("s_sub_u32 s32, s4, s32")
    e("s_lshl_b32 s32, s32, 2")
    e("v_lshrrev_b32 v3, 3, v2")
    e("v_and_b32 v4, 7, v2")
    e("v_mul_lo_u32 v5, v3, s5")
    e("v_lshl_add_u32 v5, v4, 4, v5")
    e("s_lshl_b32 s35, s5, 3")
    e("s_mul_i32 s36, s3, %d" % (4*16*144))
    e("v_mul_u32_u24 v6, 144, v3")
    e("v_lshl_add_u32 v6, v4, 4, v6")
    e("v_add_u32 v6, s36, v6")
    e("v_and_b32 v7, 31, v2")
    e("v_lshrrev_b32 v8, 5, v2")
    e("v_mul_u32_u24 v8, %d, v8" % (8*144))
    e("v_lshl_add_u32 v8, v7, 1, v8")
    e("v_add_u32 v8, s36, v8")
    e("v_lshlrev_b32 v9, 4, v2")
    for q in range(4):
        e(f"s_add_u32 s37, s32, {q}")
        e("s_mul_hi_u32 s38, s37, s7")
        e("s_mul_i32 s39, s38, s6")
        e("s_sub_u32 s39, s37, s39")
        e(f"s_lshl_b32 s44, s38, 4")
        e(f"s_mul_i32 s44, s44, s5")
        e(f"s_lshl_b32 s45, s39, 7")
        e(f"s_add_u32 s44, s44, s45")
        e(f"buffer_load_dwordx4 v[{16+8*q}:{19+8*q}], v5, s[8:11], s44 offen")
        e(f"s_add_u32 s44, s44, s35")
        e(f"buffer_load_dwordx4 v[{20+8*q}:{23+8*q}], v5, s[8:11], s44 offen")
        e(f"s_lshl_b32 s45, s39, 1")
        e(f"s_mul_i32 s45, s45, s33")
        e(f"s_add_u32 s45, s45, s38")
        e(f"s_lshl_b32 s45, s45, 10")
        e(f"s_add_u32 s{48+q}, s45, s34")
    e("s_lshl_b32 s33, s33, 10")
    for q in range(4):
        e(f"s_waitcnt vmcnt({6-2*q})")
        e(f"ds_write_b128 v6, v[{16+8*q}:{19+8*q}] offset:{q*16*144}")
        e(f"ds_write_b128 v6, v[{20+8*q}:{23+8*q}] offset:{q*16*144 + 8*144}")
    tl(1)
    for q in range(4):
        e("s_waitcnt lgkmcnt(0)") if q == 0 else None
        for f in range(2):
            for el in range(8):
                e(f"ds_read_u16 v{48+16*(q&1)*2+16*f+el}, v8 offset:{q*16*144 + el*144 + 64*f}")
        if q > 0:
            pass
        e("s_waitcnt lgkmcnt(0)")
        for f in range(2):
            for j in range(4):
                r = 48 + 16*(q&1)*2 + 16*f
                e(f"v_lshl_or_b32 v{112+4*f+j}, v{r+2*j+1}, 16, v{r+2*j}")
            if f == 0:
                e(f"buffer_store_dwordx4 v[112:115], v9, s[28:31], s{48+q} offen")
            else:
                e(f"s_add_u32 s{48+q}, s{48+q}, s33")
                e(f"buffer_store_dwordx4 v[116:119], v9, s[28:31], s{48+q} offen")
        if q < 3:
            e("s_nop 1")
    tl(5)
    if TL: e("s_waitcnt vmcnt(0)")
    tl_end(0)
    lab("prep_end")
    e("s_endpgm")
    kernel_desc("prep_kernel", 128)

G1_WGS = 256
CV_WGS = 640
MID_WGS = G1_WGS + CV_WGS
CS = 4160
def CB(c): return c*CS + (32 if c >= 4 else 0)
UB = CB(7) + CS - 80
G1_NS, G1_BD = int(os.environ.get('G1NS', 5)), int(os.environ.get('G1BD', 3))
MID_LDS = 40960

def mish_pairs(acc0, acc1, b0, b1r, dst, t):
    e(f"v_cvt_pk_bf16_f32 v{t}, v{acc0}, v{acc1}")
    e(f"v_lshlrev_b32 v{t+1}, 16, v{t}")
    e(f"v_and_b32 v{t+2}, 0xffff0000, v{t}")
    e(f"v_add_f32 v{t+1}, v{t+1}, v{b0}")
    e(f"v_add_f32 v{t+2}, v{t+2}, v{b1r}")
    e(f"v_cvt_pk_bf16_f32 v{t}, v{t+1}, v{t+2}")
    e(f"v_lshlrev_b32 v{t+1}, 16, v{t}")
    e(f"v_and_b32 v{t+2}, 0xffff0000, v{t}")
    e(f"v_min_f32 v{t+3}, 0x41a00000, v{t+1}")
    e(f"v_min_f32 v{t+4}, 0x41a00000, v{t+2}")
    e(f"v_mul_f32 v{t+3}, {LOG2E:#x}, v{t+3}")
    e(f"v_mul_f32 v{t+4}, {LOG2E:#x}, v{t+4}")
    e(f"v_exp_f32 v{t+3}, v{t+3}")
    e(f"v_exp_f32 v{t+4}, v{t+4}")
    e(f"s_nop 0")
    e(f"v_add_f32 v{t}, 2.0, v{t+3}")
    e(f"v_add_f32 v{t+5}, 2.0, v{t+4}")
    e(f"v_mul_f32 v{t+3}, v{t+3}, v{t}")
    e(f"v_mul_f32 v{t+4}, v{t+4}, v{t+5}")
    e(f"v_add_f32 v{t}, 2.0, v{t+3}")
    e(f"v_add_f32 v{t+5}, 2.0, v{t+4}")
    e(f"v_rcp_f32 v{t}, v{t}")
    e(f"v_rcp_f32 v{t+5}, v{t+5}")
    e(f"v_mul_f32 v{t+1}, v{t+1}, v{t+3}")
    e(f"v_mul_f32 v{t+2}, v{t+2}, v{t+4}")
    e(f"v_mul_f32 v{t+1}, v{t+1}, v{t}")
    e(f"v_mul_f32 v{t+2}, v{t+2}, v{t+5}")
    e(f"v_cvt_pk_bf16_f32 v{dst}, v{t+1}, v{t+2}")

def gemm_loop(nA, nsteps, KS, NS, frag_reg, acc_reg, voff, srdws, sA0, sB0, stride, spiece, vlds_r_b, vlds_r_lane):
    nR = nA + 4
    npieces = nR * KS
    npw = (npieces + 3) // 4
    SZ = npieces * 1024
    nchunks = nsteps // KS
    assert nsteps % KS == 0
    e(f"s_sub_u32 s{sB0}, s{sB0}, {nA*stride}")
    for i in range(npw):
        g, l = spiece + 2*i, spiece + 2*i + 1
        e(f"s_add_u32 s{l}, s3, {4*i}")
        e(f"s_min_u32 s{l}, s{l}, {npieces-1}")
        sh = {1: 0, 2: 1, 4: 2}[KS]
        e(f"s_lshr_b32 s{g}, s{l}, {sh}")
        e(f"s_cmp_lt_u32 s{g}, {nA}")
        e(f"s_cselect_b32 s6, s{sA0}, s{sB0}")
        e(f"s_mul_i32 s{g}, s{g}, {stride}")
        e(f"s_add_u32 s{g}, s{g}, s6")
        e(f"s_and_b32 s6, s{l}, {KS-1}")
        e(f"s_lshl_b32 s6, s6, 10")
        e(f"s_add_u32 s{g}, s{g}, s6")
        e(f"s_lshl_b32 s{l}, s{l}, 10")
    def dma(c):
        slot = c % NS
        for i in range(npw):
            e(f"s_add_u32 m0, s{spiece+2*i+1}, {slot*SZ}")
            e("s_nop 0")
            e(f"buffer_load_dwordx4 v{voff}, s[{srdws}:{srdws+3}], s{spiece+2*i} offen lds")
        e(f"v_add_u32 v{voff}, {KS*1024}, v{voff}")
    per = nA + 1
    HALF = 2*SZ
    e(f"v_add_u32 v12, {HALF}, v{vlds_r_b}")
    e(f"v_add_u32 v13, {HALF}, v{vlds_r_lane}")
    e(f"v_add_u32 v14, {2*HALF}, v{vlds_r_b}")
    e(f"v_add_u32 v15, {2*HALF}, v{vlds_r_lane}")
    def reads(slot, q):
        fr = frag_reg + 4*per*q
        vb, vl, so = [(vlds_r_b, vlds_r_lane, slot*SZ), (12, 13, slot*SZ - HALF), (14, 15, slot*SZ - 2*HALF)][slot//2]
        e(f"ds_read_b128 v[{fr}:{fr+3}], v{vb} offset:{so + q*1024}")
        for a in range(nA):
            e(f"ds_read_b128 v[{fr+4+4*a}:{fr+7+4*a}], v{vl} offset:{so + a*KS*1024 + q*1024}")
    def mfmas(q):
        fr = frag_reg + 4*per*q
        for a in range(nA):
            ac = acc_reg + 16*a
            e(f"v_mfma_f32_32x32x16_bf16 v[{ac}:{ac+15}], v[{fr+4+4*a}:{fr+7+4*a}], v[{fr}:{fr+3}], v[{ac}:{ac+15}]")
    for c in range(min(NS-1, nchunks)):
        dma(c)
    for c in range(nchunks):
        inflight = min(NS-2, nchunks-1-c)
        e(f"s_waitcnt vmcnt({inflight*npw})")
        e("s_barrier")
        if nA == 2 and c == 0: stamp(2)
        if nA == 2 and c == 1: stamp(3)
        slot = c % NS
        if "rd" not in SKIP:
            for q in range(KS):
                reads(slot, q)
        if c + NS - 1 < nchunks and "dma" not in SKIP:
            dma(c + NS - 1)
        for q in range(KS):
            e(f"s_waitcnt lgkmcnt({(KS-1-q)*per})")
            if "mf" not in SKIP: mfmas(q)

def gen_mid():
    kernel_begin("mid_kernel")
    e("s_cmp_ge_u32 s2, %d" % MID_WGS)
    e("s_cbranch_scc1 mid_end")
    tl_begin()
    e("s_load_dwordx2 s[56:57], s[0:1], 104")
    e("s_load_dwordx2 s[58:59], s[0:1], 72")
    e("s_load_dwordx2 s[60:61], s[0:1], 48")
    e("v_lshrrev_b32 v1, 6, v0")
    e("v_and_b32 v2, 63, v0")
    e("s_nop 0")
    e("v_readfirstlane_b32 s3, v1")
    e("s_waitcnt lgkmcnt(0)")
    srd(28, 56, WS_SIZE)
    e("s_cmp_ge_u32 s2, %d" % G1_WGS)
    e("s_cbranch_scc1 mid_conv")
    if "g1" in SKIP: e("s_endpgm")
    if PRIO & 4: e("s_setprio 3")
    srd(8, 58, F*2)
    tl(1)
    claim_tile(0, 32, 7168*G1_NS, "mcl")
    tl(2)
    e("s_lshr_b32 s5, s2, 4")
    e("s_and_b32 s4, s2, 15")
    e("s_mul_i32 s6, s4, 7")
    e("s_sub_u32 s7, s4, 12")
    e("s_cmp_lt_u32 s4, 12")
    e("s_cselect_b32 s7, 0, s7")
    e("s_cselect_b32 s26, 7, 6")
    e("s_sub_u32 s4, s6, s7")
    e("v_and_b32 v3, 15, v2")
    e("v_lshrrev_b32 v4, 4, v2")
    e("v_lshrrev_b32 v5, 1, v4")
    e("v_and_b32 v6, 1, v4")
    e("v_lshlrev_b32 v7, 4, v3")
    e("v_lshl_add_u32 v7, v5, 10, v7")
    e("v_lshl_add_u32 v7, v6, 9, v7")
    e("v_mov_b32 v8, v7")
    for k in range(2):
        e(f"s_add_u32 s6, s3, {4*k}")
        e("s_min_u32 s6, s6, 6")
        e(f"s_lshl_b32 s{42+k}, s6, 10")
        e("s_add_u32 s6, s6, s4")
        e("s_min_u32 s6, s6, 107")
        e(f"s_lshr_b32 s{40+k}, s6, 1")
        e(f"s_mul_i32 s{40+k}, s{40+k}, {40*1024}")
        e("s_and_b32 s6, s6, 1")
        e("s_lshl_b32 s6, s6, 8")
        e(f"s_add_u32 s{40+k}, s{40+k}, s6")
        e(f"s_add_u32 s{40+k}, s{40+k}, {WS_W1F}")
    e("s_lshl_b32 s6, s5, 2")
    e("s_add_u32 s27, s6, s3")
    e("s_mul_i32 s44, s27, %d" % (40*1024))
    e("s_add_u32 s44, s44, %d" % WS_XNF)
    e("v_lshlrev_b32 v9, 4, v2")
    NS, BD, NSTEP = G1_NS, G1_BD, 20
    AF, BF, ACC, BI = 16, 44, 44 + 8*G1_BD, 44
    pend = []
    def dma(st):
        for k in range(2):
            e(f"s_add_u32 m0, s{42+k}, {(st % NS)*7168}")
            e("s_nop 0")
            e(f"buffer_load_dwordx4 v7, s[28:31], s{40+k} offen lds")
            pend.append(("a", st))
        e("v_add_u32 v7, 2048, v7")
    def bld(st):
        r = BF + 8*(st % BD)
        e(f"buffer_load_dwordx4 v[{r}:{r+3}], v8, s[28:31], s44 offen")
        e(f"buffer_load_dwordx4 v[{r+4}:{r+7}], v8, s[28:31], s44 offen offset:256")
        pend.append(("b", st)); pend.append(("b", st))
        e("v_add_u32 v8, 2048, v8")
    def wait_for(*tags):
        idx = [i for i, p in enumerate(pend) if p in tags]
        if not idx: return
        last = max(idx)
        e(f"s_waitcnt vmcnt({len(pend) - 1 - last})")
        del pend[:last+1]
    def rdA(st, t):
        e(f"ds_read_b128 v[{AF+4*t}:{AF+4*t+3}], v9 offset:{(st % NS)*7168 + 1024*t}")
    for st in range(max(NS-1, BD)):
        if st < NS-1: dma(st)
        if st < BD: bld(st)
    e("s_lshl_b32 s6, s4, 5")
    e("v_lshl_add_u32 v10, v4, 3, s6")
    for r in range(ACC, ACC+56):
        e(f"v_mov_b32 v{r}, 0")
    wait_for(("a", 0))
    e("s_barrier")
    tl(3)
    for t in range(7): rdA(0, t)
    for st in range(NSTEP):
        if st + 1 < NSTEP:
            wait_for(("a", st+1), ("b", st))
            e("s_barrier")
            if st - 1 + NS < NSTEP: dma(st - 1 + NS)
        else:
            wait_for(("b", st))
        rb = BF + 8*(st % BD)
        for t in range(7):
            e(f"s_waitcnt lgkmcnt({6 if st + 1 < NSTEP else 6 - t})")
            for b_ in range(2):
                ac = ACC + 4*(2*t + b_)
                e(f"v_mfma_f32_16x16x32_bf16 v[{ac}:{ac+3}], v[{AF+4*t}:{AF+4*t+3}], v[{rb+4*b_}:{rb+4*b_+3}], v[{ac}:{ac+3}]")
            if st + 1 < NSTEP: rdA(st+1, t)
        if st + BD < NSTEP: bld(st + BD)
        if st == NSTEP - 2:
            assert BD == 3
            free = [BF + 8*((NSTEP-3) % BD), BF + 8*((NSTEP-2) % BD)]
            BIr = [free[0] + 2*k for k in range(4)] + [free[1] + 2*k for k in range(3)]
            for t in range(7):
                e(f"buffer_load_dwordx2 v[{BIr[t]}:{BIr[t]+1}], v10, s[8:11], 0 offen offset:{32*t}")
                pend.append(("c", 0))
    e("s_nop 7")
    e("s_waitcnt vmcnt(0)")
    tl(4)
    e("s_mul_i32 s6, s27, 108")
    e("s_add_u32 s6, s6, s4")
    e("s_lshl_b32 s6, s6, 10")
    e("s_add_u32 s6, s6, %d" % WS_ACT)
    e("v_lshlrev_b32 v9, 4, v3")
    e("v_lshl_add_u32 v9, v5, 9, v9")
    e("v_lshl_add_u32 v9, v6, 3, v9")
    T = 16
    for t in range(7):
        if t == 6:
            e("s_cmp_lt_u32 s26, 7")
            e("s_cbranch_scc1 g1_end")
        r = BIr[t]
        e(f"v_lshlrev_b32 v{T}, 16, v{r}")
        e(f"v_and_b32 v{T+1}, 0xffff0000, v{r}")
        e(f"v_lshlrev_b32 v{T+2}, 16, v{r+1}")
        e(f"v_and_b32 v{T+3}, 0xffff0000, v{r+1}")
        for b_ in range(2):
            ac = ACC + 4*(2*t + b_)
            d0 = T + 16 + 2*((2*t + b_) % 4)
            mish_pairs(ac, ac+1, T, T+1, d0, T+4)
            mish_pairs(ac+2, ac+3, T+2, T+3, d0+1, T+10)
            off = (t % 4)*1024 + 256*b_
            e(f"buffer_store_dwordx2 v[{d0}:{d0+1}], v9, s[28:31], s6 offen offset:{off}")
        if t == 3: e("s_add_u32 s6, s6, 4096")
    lab("g1_end")
    tl(5)
    if TL: e("s_waitcnt vmcnt(0)")
    tl_end(1)
    e("s_endpgm")
    lab("mid_conv")
    if "cv" in SKIP: e("s_endpgm")
    if PRIO & 8: e("s_setprio 3")
    srd(8, 60, D*2)
    e("s_sub_u32 s4, s2, %d" % G1_WGS)
    e("s_and_b32 s5, s4, 7")
    e("s_lshl_b32 s5, s5, 2")
    e("s_bfe_u32 s6, s4, 0x20003")
    e("s_or_b32 s5, s5, s6")
    e("s_andn2_b32 s4, s4, 31")
    e("s_or_b32 s4, s4, s5")
    e("s_lshl_b32 s5, s4, 1")
    e("v_mov_b32 v3, s5")
    e("buffer_load_ushort v1, v3, s[8:11], 0 offen")
    e("s_lshl_b32 s5, s4, 5")
    e("s_add_u32 s5, s5, %d" % WS_XNT)
    e("v_lshrrev_b32 v4, 1, v0")
    e("v_mul_u32_u24 v4, 20480, v4")
    e("v_and_b32 v5, 1, v0")
    e("v_lshl_add_u32 v4, v5, 4, v4")
    e("buffer_load_dwordx4 v[8:11], v4, s[28:31], s5 offen")
    e("v_lshlrev_b32 v4, 4, v0")
    e("s_mul_i32 s6, s4, %d" % KR_STRIDE)
    e("s_add_u32 s6, s6, %d" % WS_KR)
    e("buffer_load_dwordx4 v[12:15], v4, s[28:31], s6 offen")
    e("buffer_load_dwordx4 v[16:19], v4, s[28:31], s6 offen offset:16")
    e("v_min_u32 v5, 3, v0")
    e("v_lshlrev_b32 v5, 4, v5")
    e("v_add_u32 v5, 4096, v5")
    e("buffer_load_dwordx4 v[20:23], v5, s[28:31], s6 offen")
    e("buffer_load_dwordx4 v[24:27], v5, s[28:31], s6 offen offset:16")
    for k in range(4):
        e(f"v_mov_b32 v{28+k}, 0")
    e("v_min_u32 v6, 154, v0")
    e("v_lshlrev_b32 v6, 4, v6")
    e(f"ds_write_b128 v6, v[28:31] offset:{UB + 80}")
    e("v_lshrrev_b32 v6, 2, v0")
    e("v_mul_u32_u24 v6, 80, v6")
    e("v_and_b32 v7, 3, v0")
    e("v_lshl_add_u32 v6, v7, 4, v6")
    e("s_waitcnt vmcnt(4)")
    e(f"ds_write_b128 v6, v[8:11] offset:{UB + 32*80}")
    def copies(w, vaddr):
        for c in range(8):
            if c % 2 == 0:
                e(f"ds_write_b128 v{vaddr}, v[{w+c//2}:{w+c//2+3}] offset:{CB(c)}") if (w + c//2) % 2 == 0 else None
                if (w + c//2) % 2:
                    for j in range(4):
                        e(f"v_mov_b32 v{32+j}, v{w+c//2+j}")
                    e(f"ds_write_b128 v{vaddr}, v[32:35] offset:{CB(c)}")
            else:
                for j in range(4):
                    e(f"v_alignbit_b32 v{36+j}, v{w+(c+1)//2+j}, v{w+(c-1)//2+j}, 16")
                e(f"ds_write_b128 v{vaddr}, v[36:39] offset:{CB(c)}")
    e("s_waitcnt vmcnt(2)")
    copies(12, 4)
    e("s_waitcnt vmcnt(0)")
    copies(20, 5)
    e("s_waitcnt lgkmcnt(0)")
    tl(2)
    e("s_barrier")
    tl(3)
    e("v_and_b32 v3, 31, v2")
    e("v_lshrrev_b32 v4, 5, v2")
    e("v_sub_u32 v5, 7, v3")
    e("v_and_b32 v5, 7, v5")
    e("v_sub_u32 v6, 2047, v3")
    e("v_lshl_add_u32 v6, v4, 3, v6")
    e("v_sub_u32 v6, v6, v5")
    e("v_mul_u32_u24 v7, %d, v5" % CS)
    e("v_lshrrev_b32 v8, 2, v5")
    e("v_lshl_add_u32 v7, v8, 5, v7")
    e("v_lshl_add_u32 v6, v6, 1, v7")
    e("v_mul_u32_u24 v7, 80, v3")
    e("v_lshl_add_u32 v7, v4, 4, v7")
    e(f"v_add_u32 v7, {UB + 32*80}, v7")
    for r in range(16, 48):
        e(f"v_mov_b32 v{r}, 0")
    e("s_lshl_b32 s5, s3, 9")
    e(f"s_add_u32 s5, s5, {64*7 + 64*32}")
    e("v_subrev_u32 v8, s5, v6")
    e("s_mul_i32 s5, s3, 640")
    e(f"s_add_u32 s5, s5, {80*7}")
    e("v_subrev_u32 v9, s5, v7")
    def rd(q):
        base = 48 + (q & 1)*32
        for t in range(2):
            fa = base + 16*t
            e(f"ds_read_b128 v[{fa}:{fa+3}], v8 offset:{64*(7-q) + 2048 + 32*t}")
            e(f"ds_read_b128 v[{fa+4}:{fa+7}], v9 offset:{80*(7-q) + 32*t}")
            e(f"ds_read_b128 v[{fa+8}:{fa+11}], v9 offset:{80*(7-q) + 2560 + 32*t}")
            e(f"ds_read_b128 v[{fa+12}:{fa+15}], v8 offset:{64*(7-q) + 32*t}")
    def mm(q):
        base = 48 + (q & 1)*32
        for t in range(2):
            fa = base + 16*t
            e(f"v_mfma_f32_32x32x16_bf16 v[16:31], v[{fa}:{fa+3}], v[{fa+4}:{fa+7}], v[16:31]")
            e(f"v_mfma_f32_32x32x16_bf16 v[32:47], v[{fa}:{fa+3}], v[{fa+8}:{fa+11}], v[32:47]")
            e(f"v_mfma_f32_32x32x16_bf16 v[32:47], v[{fa+12}:{fa+15}], v[{fa+4}:{fa+7}], v[32:47]")
    rd(0)
    for q in range(8):
        if q < 7:
            rd(q + 1)
            e("s_waitcnt lgkmcnt(8)")
        else:
            e("s_waitcnt lgkmcnt(0)")
        mm(q)
    tl(4)
    e("s_nop 15")
    e("s_barrier")
    e("v_lshlrev_b32 v10, 4, v2")
    e("s_cmp_eq_u32 s3, 0")
    e("s_cbranch_scc1 cv_w0")
    e("s_sub_u32 s5, s3, 1")
    e("s_lshl_b32 s5, s5, 12")
    e("v_add_u32 v11, s5, v10")
    for r in range(4):
        e(f"ds_write_b128 v11, v[{16+4*r}:{19+4*r}] offset:{1024*r}")
    lab("cv_w0")
    e("s_cmp_eq_u32 s3, 1")
    e("s_cbranch_scc1 cv_w1")
    e("s_sub_u32 s5, s3, 1")
    e("s_max_i32 s5, s5, 0")
    e("s_lshl_b32 s5, s5, 12")
    e("v_add_u32 v11, s5, v10")
    for r in range(4):
        e(f"ds_write_b128 v11, v[{32+4*r}:{35+4*r}] offset:{12288 + 1024*r}")
    e("s_branch cv_w2")
    lab("cv_w1")
    for r in range(16):
        e(f"v_mov_b32 v{16+r}, v{32+r}")
    e("v_add_u32 v10, 12288, v10")
    lab("cv_w2")
    e("s_waitcnt lgkmcnt(0)")
    e("s_barrier")
    e("s_cmp_ge_u32 s3, 2")
    e("s_cbranch_scc1 mid_end")
    for sl in range(3):
        for r in range(4):
            e(f"ds_read_b128 v[{48+16*sl+4*r}:{51+16*sl+4*r}], v10 offset:{4096*sl + 1024*r}")
    for sl in range(3):
        e(f"s_waitcnt lgkmcnt({8-4*sl})")
        for r in range(16):
            e(f"v_add_f32 v{16+r}, v{16+r}, v{48+16*sl+r}")
    lab("cv_epi")
    e("s_mul_i32 s5, s3, %d" % (32*80))
    e("v_mul_u32_u24 v11, 80, v3")
    e("v_lshl_add_u32 v11, v4, 3, v11")
    e("v_add_u32 v11, s5, v11")
    for g in range(4):
        e(f"ds_read_b64 v[{32+2*g}:{33+2*g}], v11 offset:{UB + 32*80 + 16*g}")
    e("s_lshl_b32 s5, s4, 12")
    e("s_lshl_b32 s6, s3, 11")
    e("s_add_u32 s5, s5, s6")
    e("s_add_u32 s5, s5, %d" % WS_AT)
    e("v_lshlrev_b32 v12, 6, v3")
    e("v_lshl_add_u32 v12, v4, 3, v12")
    e("s_waitcnt vmcnt(0) lgkmcnt(0)")
    e("v_lshlrev_b32 v1, 16, v1")
    for g in range(4):
        for p in range(2):
            u = 32 + 2*g + p
            y0 = 16 + 4*g + 2*p
            e(f"v_lshlrev_b32 v44, 16, v{u}")
            e(f"v_and_b32 v45, 0xffff0000, v{u}")
            e(f"v_mul_f32 v44, v44, v1")
            e(f"v_mul_f32 v45, v45, v1")
            e(f"v_cvt_pk_bf16_f32 v44, v44, v45")
            e(f"v_cvt_pk_bf16_f32 v46, v{y0}, v{y0+1}")
            e(f"v_lshlrev_b32 v47, 16, v44")
            e(f"v_and_b32 v48, 0xffff0000, v44")
            e(f"v_lshlrev_b32 v49, 16, v46")
            e(f"v_and_b32 v50, 0xffff0000, v46")
            e(f"v_add_f32 v47, v47, v49")
            e(f"v_add_f32 v48, v48, v50")
            e(f"v_cvt_pk_bf16_f32 v{52+2*g+p}, v47, v48")
        e(f"buffer_store_dwordx2 v[{52+2*g}:{53+2*g}], v12, s[28:31], s5 offen offset:{16*g}")
    tl(5)
    if TL: e("s_waitcnt vmcnt(0)")
    tl_end(1)
    lab("mid_end")
    e("s_endpgm")
    kernel_desc("mid_kernel", 128)

G2_WGS = 256
FIN_LDS = 61440 + 64
FDEPTH = int(os.environ.get('FDEPTH', 4))
def gen_fin():
    kernel_begin("fin_kernel")
    e("s_cmp_ge_u32 s2, %d" % G2_WGS)
    e("s_cbranch_scc1 fin_end")
    e("s_load_dwordx2 s[56:57], s[0:1], 104")
    e("s_load_dwordx2 s[58:59], s[0:1], 0")
    e("s_load_dwordx2 s[60:61], s[0:1], 88")
    e("v_lshrrev_b32 v1, 6, v0")
    e("v_and_b32 v2, 63, v0")
    e("s_nop 0")
    e("v_readfirstlane_b32 s3, v1")
    if "xcc" in SKIP:
        e("s_and_b32 s5, s2, 31")
        e("s_lshr_b32 s4, s2, 5")
    else:
        e("s_waitcnt lgkmcnt(0)")
        srd(28, 56, WS_SIZE)
        claim_tile(512, 32, 61440, "fcl")
        e("s_lshr_b32 s5, s2, 5")
        e("s_lshl_b32 s5, s5, 2")
        e("s_and_b32 s6, s2, 3")
        e("s_add_u32 s5, s5, s6")
        e("s_bfe_u32 s4, s2, 0x30002")
    e("v_and_b32 v3, 15, v2")
    e("v_lshrrev_b32 v4, 4, v2")
    e("v_lshrrev_b32 v5, 1, v4")
    e("v_and_b32 v6, 1, v4")
    e("v_lshlrev_b32 v7, 4, v3")
    e("v_lshl_add_u32 v7, v5, 10, v7")
    e("v_lshl_add_u32 v7, v6, 9, v7")
    e("s_lshl_b32 s6, s3, 11")
    e("v_add_u32 v7, s6, v7")
    e("s_mul_i32 s6, s4, 5")
    for a_ in range(5):
        e(f"s_add_u32 s7, s6, {a_}")
        e(f"s_lshr_b32 s{40+a_}, s7, 1")
        e(f"s_mul_i32 s{40+a_}, s{40+a_}, {108*1024}")
        e(f"s_and_b32 s7, s7, 1")
        e(f"s_lshl_b32 s7, s7, 8")
        e(f"s_add_u32 s{40+a_}, s{40+a_}, s7")
        e(f"s_add_u32 s{40+a_}, s{40+a_}, {WS_W2F}")
    e("s_mul_i32 s6, s5, %d" % (2*108*1024))
    e("s_add_u32 s45, s6, %d" % WS_ACT)
    e("s_add_u32 s46, s45, 256")
    e("s_add_u32 s47, s45, %d" % (108*1024))
    e("s_add_u32 s48, s47, 256")
    e("s_waitcnt lgkmcnt(0)")
    srd(28, 56, WS_SIZE); srd(8, 58, L*D*2); srd(12, 60, L*D*2)
    FR = 16
    ACC = 0
    EP = FR + 36*FDEPTH
    pend = []
    def issue(m):
        base = FR + 36*(m % FDEPTH)
        for t in range(9):
            e(f"buffer_load_dwordx4 v[{base+4*t}:{base+4*t+3}], v7, s[28:31], s{40+t} offen")
            pend.append(("f", m))
        e("v_add_u32 v7, 8192, v7")
    def wait_for(tag):
        last = max(i for i, p in enumerate(pend) if p == tag)
        n = len(pend) - 1 - last
        e(f"s_waitcnt vmcnt({n})")
        del pend[:last+1]
    NST = 14
    for m in range(FDEPTH):
        issue(m)
    e("s_lshl_b32 s6, s5, 6")
    e("s_lshl_b32 s7, s3, 4")
    e("s_add_u32 s6, s6, s7")
    e("v_add_u32 v8, s6, v3")
    e("v_mul_u32_u24 v9, 1280, v8")
    e("v_lshl_add_u32 v9, v4, 3, v9")
    e("s_mul_i32 s6, s4, 160")
    e("v_add_u32 v9, s6, v9")
    for a_ in range(5):
        e(f"buffer_load_dwordx2 v[{EP+2*a_}:{EP+2*a_+1}], v9, s[8:11], 0 offen offset:{32*a_}")
        pend.append(("e", 0))
    e("v_lshlrev_b32 v10, 14, v4")
    e("v_lshl_add_u32 v10, v8, 1, v10")
    e("s_mul_i32 s6, s4, %d" % (80*4096))
    e("s_add_u32 s6, s6, %d" % WS_AT)
    for a_ in range(5):
        for j in range(4):
            e(f"buffer_load_ushort v{EP+10+4*a_+j}, v10, s[28:31], s6 offen")
            pend.append(("e", 0))
            e("s_add_u32 s6, s6, %d" % (4096 if j < 3 else 4096*13))
    for r in range(ACC, ACC+80):
        e(f"v_accvgpr_write_b32 a{r}, 0")
    for m in range(NST):
        if m == NST - 1:
            e("s_cmp_ge_u32 s3, 2")
            e("s_cbranch_scc1 fin_red")
        wait_for(("f", m))
        base = FR + 36*(m % FDEPTH)
        for b_ in range(4):
            for a_ in range(5):
                ac = ACC + 4*(5*b_ + a_)
                e(f"v_mfma_f32_16x16x32_bf16 a[{ac}:{ac+3}], v[{base+4*a_}:{base+4*a_+3}], v[{base+20+4*b_}:{base+23+4*b_}], a[{ac}:{ac+3}]")
        if m + FDEPTH < NST:
            if m + FDEPTH == NST - 1:
                e("s_cmp_ge_u32 s3, 2")
                e("s_cselect_b32 s6, 8192, 0")
                e("v_subrev_u32 v7, s6, v7")
            issue(m + FDEPTH)
    lab("fin_red")
    e("s_nop 15")
    e("s_waitcnt vmcnt(0)")
    e("v_lshlrev_b32 v11, 4, v2")
    for w in range(4):
        if w < 3:
            e(f"s_cmp_lg_u32 s3, {w}")
            e(f"s_cbranch_scc1 fin_w{w+1}")
        for b_ in range(4):
            if b_ == w: continue
            slot = w if w < b_ else w - 1
            for a_ in range(5):
                ac = ACC + 4*(5*b_ + a_)
                e(f"ds_write_b128 v11, a[{ac}:{ac+3}] offset:{(b_*3 + slot)*5120 + a_*1024}")
        for r in range(20):
            e(f"v_accvgpr_read_b32 v{16+r}, a{ACC+20*w+r}")
        if w < 3:
            e("s_branch fin_rd")
            lab(f"fin_w{w+1}")
    lab("fin_rd")
    e("s_mul_i32 s6, s3, %d" % (3*5120))
    e("v_add_u32 v11, s6, v11")
    e("s_waitcnt lgkmcnt(0)")
    e("s_barrier")
    for sl in range(3):
        for a_ in range(5):
            r = 36 + 20*sl + 4*a_
            e(f"ds_read_b128 v[{r}:{r+3}], v11 offset:{sl*5120 + a_*1024}")
    for sl in range(3):
        e(f"s_waitcnt lgkmcnt({10-5*sl})")
        for r in range(20):
            e(f"v_add_f32 v{16+r}, v{16+r}, v{36+20*sl+r}")
    e("s_waitcnt vmcnt(0)")
    for a_ in range(5):
        rx = EP + 2*a_
        ra = EP + 10 + 4*a_
        for p in range(2):
            ac = 16 + 4*a_ + 2*p
            e(f"v_lshlrev_b32 v96, 16, v{rx+p}")
            e(f"v_and_b32 v97, 0xffff0000, v{rx+p}")
            e(f"v_lshlrev_b32 v98, 16, v{ra+2*p}")
            e(f"v_lshlrev_b32 v99, 16, v{ra+2*p+1}")
            e(f"v_add_f32 v96, v96, v98")
            e(f"v_add_f32 v97, v97, v99")
            e(f"v_cvt_pk_bf16_f32 v96, v96, v97")
            e(f"v_cvt_pk_bf16_f32 v98, v{ac}, v{ac+1}")
            e(f"v_lshlrev_b32 v100, 16, v96")
            e(f"v_and_b32 v101, 0xffff0000, v96")
            e(f"v_lshlrev_b32 v102, 16, v98")
            e(f"v_and_b32 v103, 0xffff0000, v98")
            e(f"v_add_f32 v100, v100, v102")
            e(f"v_add_f32 v101, v101, v103")
            e(f"v_cvt_pk_bf16_f32 v{rx+p}, v100, v101")
        e(f"buffer_store_dwordx2 v[{rx}:{rx+1}], v9, s[12:15], 0 offen offset:{32*a_}")
    lab("fin_end")
    e("s_endpgm")
    kernel_desc("fin_kernel", ((EP + 30) + 7)//8*8, agpr=80)

hdr = open("cdna_kernels/%s.s.ref" % NAME).read().split("; Override launch")[0]
text = hdr
text += f"; @launch kernel=prep_kernel grid=({PREP_WGS},1,1) block=(256,1,1) lds={PREP_LDS}\n"
text += f"; @launch kernel=mid_kernel grid=({MID_WGS},1,1) block=(256,1,1) lds={MID_LDS}\n"
text += f"; @launch kernel=fin_kernel grid=({G2_WGS},1,1) block=(256,1,1) lds={FIN_LDS}\n"
text += '.amdgcn_target "amdgcn-amd-amdhsa--gfx950"\n'
gen_prep(); gen_mid(); gen_fin()
_o = []; _in = False
for _l in out:
    if _l.startswith("fin_kernel:"): _in = True
    if _l.strip().startswith("buffer_store") and not _in and "nosc" not in SKIP: _l += " sc1"
    _o.append(_l)
out = _o
text += "\n".join(out) + "\n"
dst = sys.argv[1] if len(sys.argv) > 1 else "cdna_kernels/%s.s" % NAME
open(dst, "w").write(text)
print("wrote", dst, len(text))
```

```python
import sys, os
SKIP = os.environ.get("SKIP", "").split(",")
ORDER = int(os.environ.get("ORDER", 0))
PRIO = int(os.environ.get("PRIO", 3))
W2MID = int(os.environ.get("W2MID", 1))
DLYL = int(os.environ.get("DLYL", 0))
DLYW = int(os.environ.get("DLYW", 0))
NAME = "parallel_sum__ssm_conv_s4d__dense_activation_mish__prompt"
L, D, N, F = 2048, 640, 128, 1728
WS_XNF = 0x0000000
WS_XNT = 0x0280000
WS_W1F = 0x0500000
WS_W2F = WS_W1F + 2160 * 1024
WS_KR = 0x0A00000
KR_STRIDE = 4224
WS_ACT = 0x0D00000
WS_AT = 0x1400000
WS_CNT = 0x1700000
WS_SIZE = 268435456
LOG2E = 0x3fb8aa3b
INV2PI = 0x3e22f983

out = []
def e(s):
    out.append("    " + s)
def lab(s):
    out.append(s + ":")
def cm(s):
    out.append("    ; " + s)

STAMP = os.environ.get("STAMP")
def stamp_init():
    if not STAMP: return
    e("s_load_dwordx2 s[84:85], s[0:1], 96")
    e("s_waitcnt lgkmcnt(0)")
    e("s_mov_b32 s80, s84"); e("s_and_b32 s81, s85, 0xffff"); e("s_mov_b32 s82, 256"); e("s_mov_b32 s83, 0x00020000")
def stamp(i):
    if not STAMP: return
    e("s_memtime s[86:87]")
    e("s_waitcnt lgkmcnt(0)")
    e(f"s_cmp_lg_u32 s2, {int(STAMP)}")
    e(f"s_cbranch_scc1 st_{stamp.n}")
    e(f"v_mov_b32 v255, s86")
    e(f"v_lshrrev_b32 v254, 6, v0")
    e(f"v_lshlrev_b32 v254, 6, v254")
    e(f"v_add_u32 v254, {4*i}, v254")
    e(f"buffer_store_dword v255, v254, s[80:83], 0 offen")
    lab(f"st_{stamp.n}")
    stamp.n += 1
stamp.n = 0


TL = os.environ.get("TL")
WS_TL = 0x1800000
def tl(i):
    if not TL: return
    e("s_memrealtime s[80:81]")
    e("s_waitcnt lgkmcnt(0)")
    e(f"s_mov_b32 s{84+i}, s80")
def tl_begin():
    if not TL: return
    e("s_mov_b32 s83, s2")
    for i in range(8): e(f"s_mov_b32 s{84+i}, 0")
    tl(0)
def tl_end(kern):
    if not TL: return
    tl(7)
    e("s_cmp_lg_u32 s3, 0")
    e(f"s_cbranch_scc1 tle_{tl_end.n}")
    e("s_lshl_b32 s83, s83, 5")
    e(f"s_add_u32 s83, s83, {WS_TL + kern*65536}")
    e("v_mov_b32 v1, 0")
    for i in range(8):
        e(f"v_mov_b32 v0, s{84+i}")
        e(f"buffer_store_dword v0, v1, s[28:31], s83 offen offset:{4*i}")
    lab(f"tle_{tl_end.n}")
    tl_end.n += 1
tl_end.n = 0

def srd(dst, ptr, size):
    e(f"s_mov_b32 s{dst}, s{ptr}")
    e(f"s_and_b32 s{dst+1}, s{ptr+1}, 0xffff")
    e(f"s_mov_b32 s{dst+2}, {size}")
    e(f"s_mov_b32 s{dst+3}, 0x00020000")

def kernel_begin(name):
    out.append(".text")
    out.append(f".globl {name}")
    out.append(".p2align 8")
    out.append(f".type {name},@function")
    lab(name)

def kernel_desc(name, vgpr, sgpr=96, agpr=0):
    if STAMP: vgpr = 256
    out.append('.section .rodata,"a"')
    out.append(".p2align 6")
    out.append(f".amdhsa_kernel {name}")
    out.append(f"  .amdhsa_next_free_vgpr {vgpr + agpr}")
    out.append(f"  .amdhsa_next_free_sgpr {sgpr}")
    out.append(f"  .amdhsa_accum_offset {(vgpr+3)//4*4}")
    out.append("  .amdhsa_group_segment_fixed_size 0")
    out.append("  .amdhsa_kernarg_size 112")
    out.append("  .amdhsa_user_sgpr_count 2")
    out.append("  .amdhsa_user_sgpr_kernarg_segment_ptr 1")
    out.append("  .amdhsa_system_sgpr_workgroup_id_x 1")
    out.append(".end_amdhsa_kernel")


def claim_tile(cnt_off, per, lds_off, lbl):
    e("s_cmp_lg_u32 s3, 0")
    e(f"s_cbranch_scc1 {lbl}_w")
    e("s_getreg_b32 s20, hwreg(HW_REG_XCC_ID)")
    e("s_and_b32 s20, s20, 7")
    e("s_mov_b32 s21, 0")
    e("s_mov_b64 s[22:23], exec")
    e("s_mov_b64 exec, 1")
    e("v_mov_b32 v12, 1")
    lab(f"{lbl}_l")
    e("s_lshl_b32 s24, s20, 6")
    e(f"s_add_u32 s24, s24, {WS_CNT + cnt_off}")
    e("v_mov_b32 v13, 0")
    e("v_mov_b32 v14, v12")
    e("buffer_atomic_add v14, v13, s[28:31], s24 offen sc0" + ("" if "asc" in SKIP else " sc1"))
    e("s_waitcnt vmcnt(0)")
    e("v_readfirstlane_b32 s25, v14")
    e(f"s_cmp_lt_u32 s25, {per}")
    e(f"s_cbranch_scc1 {lbl}_f")
    e("s_add_u32 s20, s20, 1")
    e("s_and_b32 s20, s20, 7")
    e("s_add_u32 s21, s21, 1")
    e("s_cmp_lt_u32 s21, 8")
    e(f"s_cbranch_scc1 {lbl}_l")
    e("s_mov_b32 s25, 0")
    lab(f"{lbl}_f")
    e(f"s_mul_i32 s20, s20, {per}")
    e("s_add_u32 s20, s20, s25")
    e("v_mov_b32 v14, s20")
    e(f"v_mov_b32 v13, {lds_off}")
    e("ds_write_b32 v13, v14")
    e("s_mov_b64 exec, s[22:23]")
    e("s_waitcnt lgkmcnt(0)")
    lab(f"{lbl}_w")
    e("s_barrier")
    e(f"v_mov_b32 v13, {lds_off}")
    e("ds_read_b32 v14, v13")
    e("s_waitcnt lgkmcnt(0)")
    e("v_readfirstlane_b32 s2, v14")

LN_WGS, WT_WGS, KG_WGS = 128, (68 if W2MID else 135), 640
PREP_WGS = KG_WGS + LN_WGS + WT_WGS
KG_LDS_WAVE = 512
KG_TAB0 = 2048
KG_TAB = 2688
KG_FIN = KG_TAB0 + 4*KG_TAB
PREP_LDS = 36864
LNS = 36

def gen_wt(wg0, wv0, wvend, endlab, kern, dly):
    if "wt" in SKIP: e("s_endpgm")
    if PRIO & 2: e("s_setprio 3")
    e("s_load_dwordx2 s[40:41], s[0:1], 64")
    e("s_load_dwordx2 s[42:43], s[0:1], 80")
    e("s_sub_u32 s4, s2, %d" % wg0)
    e("s_lshl_b32 s4, s4, 2")
    e("s_add_u32 s4, s4, s3")
    if wv0: e("s_add_u32 s4, s4, %d" % wv0)
    if wvend:
        e("s_cmp_ge_u32 s4, %d" % wvend)
        e("s_cbranch_scc1 %s" % endlab)
    e("s_waitcnt lgkmcnt(0)")
    e("s_cmp_ge_u32 s4, 270")
    e("s_cselect_b32 s40, s42, s40")
    e("s_cselect_b32 s41, s43, s41")
    e("s_mov_b32 s5, 3456")
    e("s_mov_b32 s7, 159072863")
    e("s_mov_b32 s34, %d" % WS_W1F)
    e("s_cselect_b32 s5, 1280, s5")
    e("s_cselect_b32 s6, 10, 27")
    e("s_cselect_b32 s7, 429496730, s7")
    e("s_cselect_b32 s32, 270, 0")
    e("s_cselect_b32 s33, 108, 40")
    e("s_cselect_b32 s34, %d, s34" % WS_W2F)
    srd(8, 40, D*F*2); srd(28, 56, WS_SIZE)
    e("s_sub_u32 s32, s4, s32")
    e("s_lshl_b32 s32, s32, 2")
    e("v_lshrrev_b32 v3, 3, v2")
    e("v_and_b32 v4, 7, v2")
    e("v_mul_lo_u32 v5, v3, s5")
    e("v_lshl_add_u32 v5, v4, 4, v5")
    e("s_lshl_b32 s35, s5, 3")
    e("s_mul_i32 s36, s3, %d" % (4*16*144))
    e("v_mul_u32_u24 v6, 144, v3")
    e("v_lshl_add_u32 v6, v4, 4, v6")
    e("v_add_u32 v6, s36, v6")
    e("v_and_b32 v7, 31, v2")
    e("v_lshrrev_b32 v8, 5, v2")
    e("v_mul_u32_u24 v8, %d, v8" % (8*144))
    e("v_lshl_add_u32 v8, v7, 1, v8")
    e("v_add_u32 v8, s36, v8")
    e("v_lshlrev_b32 v9, 4, v2")
    if dly: e(f"s_sleep {dly}")
    for q in range(4):
        e(f"s_add_u32 s37, s32, {q}")
        e("s_mul_hi_u32 s38, s37, s7")
        e("s_mul_i32 s39, s38, s6")
        e("s_sub_u32 s39, s37, s39")
        e(f"s_lshl_b32 s44, s38, 4")
        e(f"s_mul_i32 s44, s44, s5")
        e(f"s_lshl_b32 s45, s39, 7")
        e(f"s_add_u32 s44, s44, s45")
        e(f"buffer_load_dwordx4 v[{16+8*q}:{19+8*q}], v5, s[8:11], s44 offen")
        e(f"s_add_u32 s44, s44, s35")
        e(f"buffer_load_dwordx4 v[{20+8*q}:{23+8*q}], v5, s[8:11], s44 offen")
        e(f"s_lshl_b32 s45, s39, 1")
        e(f"s_mul_i32 s45, s45, s33")
        e(f"s_add_u32 s45, s45, s38")
        e(f"s_lshl_b32 s45, s45, 10")
        e(f"s_add_u32 s{48+q}, s45, s34")
    e("s_lshl_b32 s33, s33, 10")
    for q in range(4):
        e(f"s_waitcnt vmcnt({6-2*q})")
        e(f"ds_write_b128 v6, v[{16+8*q}:{19+8*q}] offset:{q*16*144}")
        e(f"ds_write_b128 v6, v[{20+8*q}:{23+8*q}] offset:{q*16*144 + 8*144}")
    tl(1)
    for q in range(4):
        e("s_waitcnt lgkmcnt(0)") if q == 0 else None
        for f in range(2):
            for el in range(8):
                e(f"ds_read_u16 v{48+16*(q&1)*2+16*f+el}, v8 offset:{q*16*144 + el*144 + 64*f}")
        if q > 0:
            pass
        e("s_waitcnt lgkmcnt(0)")
        for f in range(2):
            for j in range(4):
                r = 48 + 16*(q&1)*2 + 16*f
                e(f"v_lshl_or_b32 v{112+4*f+j}, v{r+2*j+1}, 16, v{r+2*j}")
            if f == 0:
                e(f"buffer_store_dwordx4 v[112:115], v9, s[28:31], s{48+q} offen")
            else:
                e(f"s_add_u32 s{48+q}, s{48+q}, s33")
                e(f"buffer_store_dwordx4 v[116:119], v9, s[28:31], s{48+q} offen")
        if q < 3:
            e("s_nop 1")
    tl(5)
    if TL: e("s_waitcnt vmcnt(0)")
    tl_end(kern)

def gen_prep():
    kernel_begin("prep_kernel")
    e("s_cmp_ge_u32 s2, %d" % PREP_WGS)
    e("s_cbranch_scc1 prep_end")
    e("s_load_dwordx2 s[56:57], s[0:1], 104")
    e("v_lshrrev_b32 v1, 6, v0")
    e("v_and_b32 v2, 63, v0")
    e("s_nop 0")
    e("v_readfirstlane_b32 s3, v1")
    if ORDER:
        e("s_add_u32 s2, s2, %d" % KG_WGS)
        e("s_cmp_ge_u32 s2, %d" % PREP_WGS)
        e("s_cselect_b32 s4, %d, 0" % PREP_WGS)
        e("s_sub_u32 s2, s2, s4")
    tl_begin()
    e("s_cmp_ge_u32 s2, %d" % (KG_WGS + LN_WGS))
    e("s_cbranch_scc1 prep_wt")
    e("s_cmp_ge_u32 s2, %d" % KG_WGS)
    e("s_cbranch_scc1 prep_ln")
    if "kg" in SKIP: e("s_endpgm")
    e("s_load_dwordx4 s[40:43], s[0:1], 8")
    e("s_load_dwordx4 s[44:47], s[0:1], 24")
    e("s_load_dwordx2 s[48:49], s[0:1], 40")
    e("s_mov_b32 s4, s2")
    e("s_mul_i32 s5, s3, %d" % KG_LDS_WAVE)
    e("s_lshl_b32 s6, s4, 8")
    e("s_lshl_b32 s7, s3, 6")
    e("s_add_u32 s6, s6, s7")
    e("v_and_b32 v3, 31, v2")
    e("v_lshl_add_u32 v3, v3, 1, s6")
    e("s_lshl_b32 s7, s4, 1")
    e("v_mov_b32 v4, s7")
    e("s_waitcnt lgkmcnt(0)")
    srd(8, 40, D*N*2); srd(12, 42, D*N*2); srd(16, 44, D*N*2); srd(20, 46, D*N*2)
    srd(24, 48, D*2); srd(28, 56, WS_SIZE)
    for k, sr in enumerate((8, 12, 16, 20)):
        e(f"buffer_load_ushort v{10+k}, v3, s[{sr}:{sr+3}], 0 offen")
    e("buffer_load_ushort v18, v4, s[24:27], 0 offen")
    e("v_and_b32 v8, 15, v2")
    e("v_lshrrev_b32 v9, 4, v2")
    e("v_and_b32 v24, 7, v8")
    e("v_lshrrev_b32 v25, 3, v8")
    e("v_lshl_add_u32 v28, v25, 7, v24")
    e("v_and_b32 v24, 3, v8")
    e("v_lshlrev_b32 v24, 1, v24")
    e("v_bfe_u32 v25, v8, 2, 1")
    e("v_lshl_add_u32 v24, v25, 7, v24")
    e("v_add_u32 v24, 256, v24")
    e("v_and_b32 v25, 1, v8")
    e("v_lshlrev_b32 v25, 2, v25")
    e("v_bfe_u32 v26, v8, 1, 2")
    e("v_lshl_add_u32 v25, v26, 7, v25")
    e("v_add_u32 v25, 512, v25")
    e("v_cmp_gt_u32 vcc, 8, v8")
    e("s_nop 1")
    e("v_cndmask_b32 v29, v25, v24, vcc")
    e("v_lshlrev_b32 v30, 7, v8")
    e("v_add_u32 v30, 0x400, v30")
    e("v_lshlrev_b32 v31, 3, v8")
    for t in range(4):
        e(f"v_cvt_f32_u32 v{28+t}, v{28+t}")
    e("s_mul_i32 s6, s3, %d" % KG_TAB)
    e("s_add_u32 s6, s6, %d" % KG_TAB0)
    e("v_and_b32 v24, 1, v9")
    e("v_lshrrev_b32 v25, 1, v9")
    e("v_lshl_add_u32 v33, v8, 5, s6")
    e("v_lshl_add_u32 v33, v24, 4, v33")
    e("v_lshl_add_u32 v33, v25, 9, v33")
    e("v_lshlrev_b32 v24, 4, v8")
    e("v_lshlrev_b32 v25, 3, v8")
    e("v_cmp_gt_u32 vcc, 2, v9")
    e("s_nop 1")
    e("v_cndmask_b32 v24, v25, v24, vcc")
    e("v_lshl_add_u32 v24, v9, 8, v24")
    e("v_add_u32 v24, s6, v24")
    e("v_add_u32 v34, 1024, v24")
    e("v_mov_b32 v25, 128")
    e("v_cndmask_b32_e64 v24, v25, 8, vcc")
    e("v_add_u32 v36, v34, v24")
    e("v_lshl_add_u32 v38, v8, 2, s6")
    e("v_lshl_add_u32 v38, v9, 8, v38")
    e("v_add_u32 v38, 2048, v38")
    e("v_lshl_add_u32 v39, v9, 4, s5")
    for r in range(40, 52):
        e(f"v_mov_b32 v{r}, 0")
    e("s_waitcnt vmcnt(0)")
    tl(1)
    for r in (10, 11, 12, 13, 18):
        e(f"v_lshlrev_b32 v{r}, 16, v{r}")
    e(f"v_mul_f32 v18, {LOG2E:#x}, v18")
    e(f"v_mul_f32 v10, {LOG2E:#x}, v10")
    e("v_exp_f32 v18, v18")
    e("v_exp_f32 v10, v10")
    e("s_nop 0")
    e("v_cvt_pk_bf16_f32 v18, v18, v18")
    e("v_cvt_pk_bf16_f32 v10, v10, v10")
    e("v_lshlrev_b32 v18, 16, v18")
    e("v_lshlrev_b32 v10, 16, v10")
    e("v_add_f32 v19, v18, v18")
    e("v_and_b32 v5, 31, v2")
    e("v_lshl_add_u32 v5, v5, 4, s5")
    e("v_mul_f32 v20, v10, v18")
    e(f"v_mul_f32 v20, {LOG2E|0x80000000:#x}, v20")
    e("v_mul_f32 v21, v11, v18")
    e(f"v_mul_f32 v21, {INV2PI:#x}, v21")
    e("v_mul_f32 v22, v12, v19")
    e("v_mul_f32 v23, v13, v19")
    e("ds_write_b128 v5, v[20:23]")
    e("s_waitcnt lgkmcnt(0)")
    for st in range(8):
        e(f"ds_read_b128 v[{96+4*st}:{99+4*st}], v39 offset:{64*st}")
    e("s_waitcnt lgkmcnt(0)")
    def kg_valu(st):
        P = 96 + 4*st
        O = 72 + 10*(st & 1)
        v = []
        for t in range(4):
            v.append(f"v_mul_f32 v{52+t}, v{P}, v{28+t}")
            v.append(f"v_mul_f32 v{56+t}, v{P+1}, v{28+t}")
        for t in range(4):
            v.append(f"v_exp_f32 v{52+t}, v{52+t}")
            v.append(f"v_fract_f32 v{56+t}, v{56+t}")
        for t in range(4):
            v.append(f"v_cos_f32 v{60+t}, v{56+t}")
            v.append(f"v_sin_f32 v{64+t}, v{56+t}")
        for t in range(4):
            v.append(f"v_mul_f32 v{60+t}, v{52+t}, v{60+t}")
            v.append(f"v_mul_f32 v{64+t}, v{52+t}, v{64+t}")
        v.append(f"v_mul_f32 v55, v63, v{P+2}")
        v.append(f"v_mul_f32_e64 v59, -v63, v{P+3}")
        v.append(f"v_fma_f32 v55, -v67, v{P+3}, v55")
        v.append(f"v_fma_f32 v59, -v67, v{P+2}, v59")
        def split(xr, xi, H, Lo, t0, t1):
            v.append(f"v_cvt_pk_bf16_f32 v{H}, v{xr}, v{xi}")
            v.append(f"v_lshlrev_b32 v{t0}, 16, v{H}")
            v.append(f"v_and_b32 v{t1}, 0xffff0000, v{H}")
            v.append(f"v_sub_f32 v{t0}, v{xr}, v{t0}")
            v.append(f"v_sub_f32 v{t1}, v{xi}, v{t1}")
            v.append(f"v_cvt_pk_bf16_f32 v{Lo}, v{t0}, v{t1}")
        split(55, 59, O, O+2, 68, 69)
        v.append(f"v_mov_b32 v{O+1}, v{O}")
        v.append(f"v_mov_b32 v{O+3}, v{O+2}")
        for t in range(3):
            split(60+t, 64+t, O+4+2*t, O+5+2*t, 52+t, 56+t)
        return v
    def kg_mfma(st):
        O = 72 + 10*(st & 1)
        m = []
        for h in range(2):
            for t in range(3):
                a = 40 + 4*t
                m.append(f"v_mfma_f32_16x16x16_bf16 v[{a}:{a+3}], v[{O+4+2*t}:{O+5+2*t}], v[{O+2*h}:{O+2*h+1}], v[{a}:{a+3}]")
        return m
    for st in range(9):
        v = kg_valu(st) if st < 8 else []
        m = kg_mfma(st-1) if st > 0 else []
        if "kgm" in SKIP: m = []
        if "kgv" in SKIP: v = []
        if not v:
            e("s_nop 1")
        vi = 0
        for mi, mm_ in enumerate(m):
            tgt = 2 + 7*mi
            while vi < min(tgt, len(v)):
                e(v[vi]); vi += 1
            e(mm_)
        while vi < len(v):
            e(v[vi]); vi += 1
    e("s_nop 15")
    tl(2)
    for r in range(4):
        e(f"ds_write_b32 v33, v{40+r} offset:{4*r}")
    e("ds_write_b32 v34, v44")
    e("ds_write_b32 v34, v45 offset:4")
    e("ds_write_b32 v36, v46")
    e("ds_write_b32 v36, v47 offset:4")
    e("s_mov_b32 exec_hi, 0xffff")
    e("ds_write_b32 v38, v48")
    e("s_mov_b32 exec_hi, 0")
    for r in range(1, 4):
        e(f"ds_write_b32 v38, v{48+r} offset:{64*r}")
    e("s_mov_b32 exec_hi, -1")
    e("s_mul_i32 s4, s4, %d" % KR_STRIDE)
    e("s_add_u32 s4, s4, %d" % WS_KR)
    e("v_lshlrev_b32 v39, 4, v0")
    e("v_lshlrev_b32 v64, 3, v0")
    e("v_sub_u32 v64, 2047, v64")
    e("v_lshlrev_b32 v65, 2, v0")
    e("v_lshlrev_b32 v66, 1, v0")
    for k in range(8):
        e(f"v_subrev_u32 v{52+k}, {k}, v64")
        e(f"v_cvt_f32_u32 v{72+k}, v{52+k}")
    for k in range(4):
        e(f"v_cvt_pk_bf16_f32 v{80+k}, v{72+2*k}, v{73+2*k}")
        e(f"v_and_b32 v{72+2*k}, 0xffff, v{80+k}")
        e(f"v_lshrrev_b32 v{73+2*k}, 16, v{80+k}")
    for k in range(8):
        e(f"v_subrev_u32 v{72+k}, 17024, v{72+k}")
        e(f"v_cmp_gt_u32 vcc, 256, v{52+k}")
        e("s_nop 1")
        e(f"v_cndmask_b32 v{52+k}, v{72+k}, v{52+k}, vcc")
        e(f"v_lshlrev_b32 v{52+k}, 1, v{52+k}")
    e("s_waitcnt lgkmcnt(0)")
    e("s_barrier")
    tl(3)
    for m in range(3):
        for ww in range(4):
            e(f"ds_read_b32 v{72+4*m+ww}, v65 offset:{KG_TAB0 + ww*KG_TAB + 1024*m}")
    for m in range(3):
        e(f"s_waitcnt lgkmcnt({8-4*m})")
        e(f"v_add_f32 v{72+4*m}, v{72+4*m}, v{73+4*m}")
        e(f"v_add_f32 v{74+4*m}, v{74+4*m}, v{75+4*m}")
        e(f"v_add_f32 v{72+4*m}, v{72+4*m}, v{74+4*m}")
        e(f"v_cvt_pk_bf16_f32 v{72+4*m}, v{72+4*m}, v{72+4*m}")
        e(f"ds_write_b16 v66, v{72+4*m} offset:{KG_FIN + 512*m}")
    e("s_waitcnt lgkmcnt(0)")
    e("s_barrier")
    tl(4)
    for k in range(8):
        e(f"ds_read_u16 v{96+k}, v{52+k} offset:{KG_FIN}")
    e("s_waitcnt lgkmcnt(0)")
    for k in range(4):
        e(f"v_lshl_or_b32 v{112+k}, v{97+2*k}, 16, v{96+2*k}")
    e(f"buffer_store_dwordx4 v[112:115], v39, s[28:31], s4 offen")
    for k in range(4):
        e(f"v_mov_b32 v{116+k}, 0")
    e("v_cmp_gt_u32 vcc, 8, v0")
    e("s_and_saveexec_b64 s[32:33], vcc")
    e("s_cbranch_execz prep_end")
    e("s_add_u32 s4, s4, 4096")
    e("buffer_store_dwordx4 v[116:119], v39, s[28:31], s4 offen")
    e("v_lshlrev_b32 v39, 6, v0")
    tl(5)
    if TL: e("s_waitcnt vmcnt(0)")
    tl_end(0)
    e("s_cmp_lg_u32 s2, 0")
    e("s_cbranch_scc1 prep_end")
    e("s_mov_b32 s4, %d" % WS_CNT)
    e("buffer_store_dword v116, v39, s[28:31], s4 offen")
    e("buffer_store_dword v116, v39, s[28:31], s4 offen offset:512")
    e("s_endpgm")
    lab("prep_ln")
    if "ln" in SKIP: e("s_endpgm")
    if PRIO & 1: e("s_setprio 3")
    e("s_load_dwordx2 s[40:41], s[0:1], 0")
    e("s_sub_u32 s2, s2, %d" % KG_WGS)
    e("v_and_b32 v3, 15, v0")
    e("v_lshrrev_b32 v4, 4, v0")
    e("s_lshl_b32 s5, s2, 4")
    e("v_add_u32 v5, s5, v4")
    e("v_mul_u32_u24 v6, 1280, v5")
    e("v_lshl_add_u32 v6, v3, 4, v6")
    e("s_waitcnt lgkmcnt(0)")
    srd(8, 40, L*D*2); srd(28, 56, WS_SIZE)
    if DLYL: e(f"s_sleep {DLYL}")
    for j in range(5):
        e(f"buffer_load_dwordx4 v[{16+4*j}:{19+4*j}], v6, s[8:11], 0 offen offset:{256*j}")
    e("s_lshr_b32 s6, s2, 1")
    e("s_mul_i32 s6, s6, %d" % (40*1024))
    e("s_add_u32 s6, s6, %d" % WS_XNF)
    e("v_lshrrev_b32 v7, 1, v3")
    e("v_lshlrev_b32 v7, 10, v7")
    e("v_and_b32 v8, 1, v3")
    e("v_lshl_add_u32 v7, v8, 9, v7")
    e("v_and_b32 v8, 31, v5")
    e("v_lshl_add_u32 v7, v8, 4, v7")
    e(f"v_mul_u32_u24 v9, {8*LNS}, v3")
    e("v_lshl_add_u32 v9, v4, 1, v9")
    e("s_waitcnt vmcnt(0)")
    tl(1)
    for k in range(20):
        e(f"v_lshlrev_b32 v{40+2*k}, 16, v{16+k}")
        e(f"v_and_b32 v{41+2*k}, 0xffff0000, v{16+k}")
    def lane_sum(srcs, acc):
        for a in range(4):
            e(f"v_add_f32 v{acc+a}, v{srcs[a]}, v{srcs[a+4]}")
        for k in range(8, len(srcs)):
            e(f"v_add_f32 v{acc+(k%4)}, v{acc+(k%4)}, v{srcs[k]}")
        e(f"v_add_f32 v{acc}, v{acc}, v{acc+1}")
        e(f"v_add_f32 v{acc+2}, v{acc+2}, v{acc+3}")
        e(f"v_add_f32 v{acc}, v{acc}, v{acc+2}")
        for sh in (8, 4, 2, 1):
            e("s_nop 1")
            e(f"v_add_f32_dpp v{acc}, v{acc}, v{acc} row_ror:{sh} row_mask:0xf bank_mask:0xf")
    lane_sum(list(range(40, 80)), 10)
    e("v_mul_f32 v14, 0x3acccccd, v10")
    for k in range(40):
        e(f"v_sub_f32 v{80+k}, v{40+k}, v14")
        e(f"v_mul_f32 v{80+k}, v{80+k}, v{80+k}")
    lane_sum(list(range(80, 120)), 10)
    e("v_mul_f32 v10, 0x3acccccd, v10")
    e("v_cvt_pk_bf16_f32 v10, v10, v14")
    e("v_and_b32 v14, 0xffff0000, v10")
    e("v_lshlrev_b32 v10, 16, v10")
    e("v_add_f32 v10, 0x3727c5ac, v10")
    e("v_cvt_pk_bf16_f32 v10, v10, v10")
    e("v_lshlrev_b32 v10, 16, v10")
    e("v_sqrt_f32 v10, v10")
    e("s_nop 0")
    e("v_cvt_pk_bf16_f32 v10, v10, v10")
    e("v_lshlrev_b32 v10, 16, v10")
    e("v_rcp_f32 v11, v10")
    e("s_nop 0")
    e("v_fma_f32 v12, -v10, v11, 2.0")
    e("v_mul_f32 v11, v11, v12")
    for k in range(20):
        e(f"v_sub_f32 v{40+2*k}, v{40+2*k}, v14")
        e(f"v_sub_f32 v{41+2*k}, v{41+2*k}, v14")
        e(f"v_cvt_pk_bf16_f32 v{16+k}, v{40+2*k}, v{41+2*k}")
        e(f"v_lshlrev_b32 v{40+2*k}, 16, v{16+k}")
        e(f"v_and_b32 v{41+2*k}, 0xffff0000, v{16+k}")
        e(f"v_mul_f32 v{40+2*k}, v{40+2*k}, v11")
        e(f"v_mul_f32 v{41+2*k}, v{41+2*k}, v11")
        e(f"v_cvt_pk_bf16_f32 v{16+k}, v{40+2*k}, v{41+2*k}")
    tl(2)
    for j in range(5):
        if "xnf" not in SKIP: e(f"buffer_store_dwordx4 v[{16+4*j}:{19+4*j}], v7, s[28:31], s6 offen")
        if j < 4: e("s_add_u32 s6, s6, 8192")
    for j in range(5):
        for el in range(8):
            r = 16 + 4*j + el//2
            op = "ds_write_b16_d16_hi" if el & 1 else "ds_write_b16"
            e(f"{op} v9, v{r} offset:{(128*j + el)*LNS}")
    e("v_lshrrev_b32 v10, 1, v0")
    e("v_and_b32 v11, 1, v0")
    e(f"v_mul_u32_u24 v12, {LNS}, v10")
    e("v_lshl_add_u32 v12, v11, 4, v12")
    e("v_lshlrev_b32 v13, 4, v0")
    e("s_mul_i32 s6, s2, 20480")
    e("s_add_u32 s6, s6, %d" % WS_XNT)
    e("s_waitcnt lgkmcnt(0)")
    e("s_barrier")
    tl(3)
    for j in range(5):
        e(f"ds_read2_b32 v[{40+4*j}:{41+4*j}], v12 offset0:{(128*j*LNS)//4 % 256} offset1:{(128*j*LNS)//4 % 256 + 1}")
        e(f"ds_read2_b32 v[{42+4*j}:{43+4*j}], v12 offset0:{(128*j*LNS)//4 % 256 + 2} offset1:{(128*j*LNS)//4 % 256 + 3}")
        if j < 4:
            nxt = (128*(j+1)*LNS)//4 // 256 - (128*j*LNS)//4 // 256
            e(f"v_add_u32 v12, {nxt*1024}, v12")
    for j in range(5):
        e(f"s_waitcnt lgkmcnt({2*(4-j)})")
        if "xnt" not in SKIP: e(f"buffer_store_dwordx4 v[{40+4*j}:{43+4*j}], v13, s[28:31], s6 offen")
        if j < 4: e("s_add_u32 s6, s6, %d" % (128*32))
    tl(5)
    if TL: e("s_waitcnt vmcnt(0)")
    tl_end(0)
    e("s_endpgm")
    lab("prep_wt")
    gen_wt(KG_WGS + LN_WGS, 0, 270 if W2MID else 0, "prep_end", 0, DLYW)
    lab("prep_end")
    e("s_endpgm")
    kernel_desc("prep_kernel", 128)

G1_WGS = 256
CV_WGS = 640
W2_WGS = 68 if W2MID else 0
MID_WGS = G1_WGS + CV_WGS + W2_WGS
CS = 4160
def CB(c): return c*CS + (32 if c >= 4 else 0)
UB = CB(7) + CS - 80
G1_NS, G1_BD = int(os.environ.get('G1NS', 5)), int(os.environ.get('G1BD', 3))
MID_LDS = 40960

def mish_pairs(acc0, acc1, b0, b1r, dst, t):
    e(f"v_cvt_pk_bf16_f32 v{t}, v{acc0}, v{acc1}")
    e(f"v_lshlrev_b32 v{t+1}, 16, v{t}")
    e(f"v_and_b32 v{t+2}, 0xffff0000, v{t}")
    e(f"v_add_f32 v{t+1}, v{t+1}, v{b0}")
    e(f"v_add_f32 v{t+2}, v{t+2}, v{b1r}")
    e(f"v_cvt_pk_bf16_f32 v{t}, v{t+1}, v{t+2}")
    e(f"v_lshlrev_b32 v{t+1}, 16, v{t}")
    e(f"v_and_b32 v{t+2}, 0xffff0000, v{t}")
    e(f"v_min_f32 v{t+3}, 0x41a00000, v{t+1}")
    e(f"v_min_f32 v{t+4}, 0x41a00000, v{t+2}")
    e(f"v_mul_f32 v{t+3}, {LOG2E:#x}, v{t+3}")
    e(f"v_mul_f32 v{t+4}, {LOG2E:#x}, v{t+4}")
    e(f"v_exp_f32 v{t+3}, v{t+3}")
    e(f"v_exp_f32 v{t+4}, v{t+4}")
    e(f"s_nop 0")
    e(f"v_add_f32 v{t}, 2.0, v{t+3}")
    e(f"v_add_f32 v{t+5}, 2.0, v{t+4}")
    e(f"v_mul_f32 v{t+3}, v{t+3}, v{t}")
    e(f"v_mul_f32 v{t+4}, v{t+4}, v{t+5}")
    e(f"v_add_f32 v{t}, 2.0, v{t+3}")
    e(f"v_add_f32 v{t+5}, 2.0, v{t+4}")
    e(f"v_rcp_f32 v{t}, v{t}")
    e(f"v_rcp_f32 v{t+5}, v{t+5}")
    e(f"v_mul_f32 v{t+1}, v{t+1}, v{t+3}")
    e(f"v_mul_f32 v{t+2}, v{t+2}, v{t+4}")
    e(f"v_mul_f32 v{t+1}, v{t+1}, v{t}")
    e(f"v_mul_f32 v{t+2}, v{t+2}, v{t+5}")
    e(f"v_cvt_pk_bf16_f32 v{dst}, v{t+1}, v{t+2}")

def gemm_loop(nA, nsteps, KS, NS, frag_reg, acc_reg, voff, srdws, sA0, sB0, stride, spiece, vlds_r_b, vlds_r_lane):
    nR = nA + 4
    npieces = nR * KS
    npw = (npieces + 3) // 4
    SZ = npieces * 1024
    nchunks = nsteps // KS
    assert nsteps % KS == 0
    e(f"s_sub_u32 s{sB0}, s{sB0}, {nA*stride}")
    for i in range(npw):
        g, l = spiece + 2*i, spiece + 2*i + 1
        e(f"s_add_u32 s{l}, s3, {4*i}")
        e(f"s_min_u32 s{l}, s{l}, {npieces-1}")
        sh = {1: 0, 2: 1, 4: 2}[KS]
        e(f"s_lshr_b32 s{g}, s{l}, {sh}")
        e(f"s_cmp_lt_u32 s{g}, {nA}")
        e(f"s_cselect_b32 s6, s{sA0}, s{sB0}")
        e(f"s_mul_i32 s{g}, s{g}, {stride}")
        e(f"s_add_u32 s{g}, s{g}, s6")
        e(f"s_and_b32 s6, s{l}, {KS-1}")
        e(f"s_lshl_b32 s6, s6, 10")
        e(f"s_add_u32 s{g}, s{g}, s6")
        e(f"s_lshl_b32 s{l}, s{l}, 10")
    def dma(c):
        slot = c % NS
        for i in range(npw):
            e(f"s_add_u32 m0, s{spiece+2*i+1}, {slot*SZ}")
            e("s_nop 0")
            e(f"buffer_load_dwordx4 v{voff}, s[{srdws}:{srdws+3}], s{spiece+2*i} offen lds")
        e(f"v_add_u32 v{voff}, {KS*1024}, v{voff}")
    per = nA + 1
    HALF = 2*SZ
    e(f"v_add_u32 v12, {HALF}, v{vlds_r_b}")
    e(f"v_add_u32 v13, {HALF}, v{vlds_r_lane}")
    e(f"v_add_u32 v14, {2*HALF}, v{vlds_r_b}")
    e(f"v_add_u32 v15, {2*HALF}, v{vlds_r_lane}")
    def reads(slot, q):
        fr = frag_reg + 4*per*q
        vb, vl, so = [(vlds_r_b, vlds_r_lane, slot*SZ), (12, 13, slot*SZ - HALF), (14, 15, slot*SZ - 2*HALF)][slot//2]
        e(f"ds_read_b128 v[{fr}:{fr+3}], v{vb} offset:{so + q*1024}")
        for a in range(nA):
            e(f"ds_read_b128 v[{fr+4+4*a}:{fr+7+4*a}], v{vl} offset:{so + a*KS*1024 + q*1024}")
    def mfmas(q):
        fr = frag_reg + 4*per*q
        for a in range(nA):
            ac = acc_reg + 16*a
            e(f"v_mfma_f32_32x32x16_bf16 v[{ac}:{ac+15}], v[{fr+4+4*a}:{fr+7+4*a}], v[{fr}:{fr+3}], v[{ac}:{ac+15}]")
    for c in range(min(NS-1, nchunks)):
        dma(c)
    for c in range(nchunks):
        inflight = min(NS-2, nchunks-1-c)
        e(f"s_waitcnt vmcnt({inflight*npw})")
        e("s_barrier")
        if nA == 2 and c == 0: stamp(2)
        if nA == 2 and c == 1: stamp(3)
        slot = c % NS
        if "rd" not in SKIP:
            for q in range(KS):
                reads(slot, q)
        if c + NS - 1 < nchunks and "dma" not in SKIP:
            dma(c + NS - 1)
        for q in range(KS):
            e(f"s_waitcnt lgkmcnt({(KS-1-q)*per})")
            if "mf" not in SKIP: mfmas(q)

def gen_mid():
    kernel_begin("mid_kernel")
    e("s_cmp_ge_u32 s2, %d" % MID_WGS)
    e("s_cbranch_scc1 mid_end")
    tl_begin()
    e("s_load_dwordx2 s[56:57], s[0:1], 104")
    e("s_load_dwordx2 s[58:59], s[0:1], 72")
    e("s_load_dwordx2 s[60:61], s[0:1], 48")
    e("v_lshrrev_b32 v1, 6, v0")
    e("v_and_b32 v2, 63, v0")
    e("s_nop 0")
    e("v_readfirstlane_b32 s3, v1")
    e("s_waitcnt lgkmcnt(0)")
    srd(28, 56, WS_SIZE)
    if W2MID:
        e("s_cmp_ge_u32 s2, %d" % (G1_WGS + CV_WGS))
        e("s_cbranch_scc1 mid_wt")
    e("s_cmp_ge_u32 s2, %d" % G1_WGS)
    e("s_cbranch_scc1 mid_conv")
    if "g1" in SKIP: e("s_endpgm")
    if PRIO & 4: e("s_setprio 3")
    srd(8, 58, F*2)
    tl(1)
    claim_tile(0, 32, 7168*G1_NS, "mcl")
    tl(2)
    e("s_lshr_b32 s5, s2, 4")
    e("s_and_b32 s4, s2, 15")
    e("s_mul_i32 s6, s4, 7")
    e("s_sub_u32 s7, s4, 12")
    e("s_cmp_lt_u32 s4, 12")
    e("s_cselect_b32 s7, 0, s7")
    e("s_cselect_b32 s26, 7, 6")
    e("s_sub_u32 s4, s6, s7")
    e("v_and_b32 v3, 15, v2")
    e("v_lshrrev_b32 v4, 4, v2")
    e("v_lshrrev_b32 v5, 1, v4")
    e("v_and_b32 v6, 1, v4")
    e("v_lshlrev_b32 v7, 4, v3")
    e("v_lshl_add_u32 v7, v5, 10, v7")
    e("v_lshl_add_u32 v7, v6, 9, v7")
    e("v_mov_b32 v8, v7")
    for k in range(2):
        e(f"s_add_u32 s6, s3, {4*k}")
        e("s_min_u32 s6, s6, 6")
        e(f"s_lshl_b32 s{42+k}, s6, 10")
        e("s_add_u32 s6, s6, s4")
        e("s_min_u32 s6, s6, 107")
        e(f"s_lshr_b32 s{40+k}, s6, 1")
        e(f"s_mul_i32 s{40+k}, s{40+k}, {40*1024}")
        e("s_and_b32 s6, s6, 1")
        e("s_lshl_b32 s6, s6, 8")
        e(f"s_add_u32 s{40+k}, s{40+k}, s6")
        e(f"s_add_u32 s{40+k}, s{40+k}, {WS_W1F}")
    e("s_lshl_b32 s6, s5, 2")
    e("s_add_u32 s27, s6, s3")
    e("s_mul_i32 s44, s27, %d" % (40*1024))
    e("s_add_u32 s44, s44, %d" % WS_XNF)
    e("v_lshlrev_b32 v9, 4, v2")
    NS, BD, NSTEP = G1_NS, G1_BD, 20
    AF, BF, ACC, BI = 16, 44, 44 + 8*G1_BD, 44
    pend = []
    def dma(st):
        for k in range(2):
            e(f"s_add_u32 m0, s{42+k}, {(st % NS)*7168}")
            e("s_nop 0")
            e(f"buffer_load_dwordx4 v7, s[28:31], s{40+k} offen lds")
            pend.append(("a", st))
        e("v_add_u32 v7, 2048, v7")
    def bld(st):
        r = BF + 8*(st % BD)
        e(f"buffer_load_dwordx4 v[{r}:{r+3}], v8, s[28:31], s44 offen")
        e(f"buffer_load_dwordx4 v[{r+4}:{r+7}], v8, s[28:31], s44 offen offset:256")
        pend.append(("b", st)); pend.append(("b", st))
        e("v_add_u32 v8, 2048, v8")
    def wait_for(*tags):
        idx = [i for i, p in enumerate(pend) if p in tags]
        if not idx: return
        last = max(idx)
        e(f"s_waitcnt vmcnt({len(pend) - 1 - last})")
        del pend[:last+1]
    def rdA(st, t):
        e(f"ds_read_b128 v[{AF+4*t}:{AF+4*t+3}], v9 offset:{(st % NS)*7168 + 1024*t}")
    for st in range(max(NS-1, BD)):
        if st < NS-1: dma(st)
        if st < BD: bld(st)
    e("s_lshl_b32 s6, s4, 5")
    e("v_lshl_add_u32 v10, v4, 3, s6")
    for r in range(ACC, ACC+56):
        e(f"v_mov_b32 v{r}, 0")
    wait_for(("a", 0))
    e("s_barrier")
    tl(3)
    for t in range(7): rdA(0, t)
    for st in range(NSTEP):
        if st + 1 < NSTEP:
            wait_for(("a", st+1), ("b", st))
            e("s_barrier")
            if st - 1 + NS < NSTEP: dma(st - 1 + NS)
        else:
            wait_for(("b", st))
        rb = BF + 8*(st % BD)
        for t in range(7):
            e(f"s_waitcnt lgkmcnt({6 if st + 1 < NSTEP else 6 - t})")
            for b_ in range(2):
                ac = ACC + 4*(2*t + b_)
                e(f"v_mfma_f32_16x16x32_bf16 v[{ac}:{ac+3}], v[{AF+4*t}:{AF+4*t+3}], v[{rb+4*b_}:{rb+4*b_+3}], v[{ac}:{ac+3}]")
            if st + 1 < NSTEP: rdA(st+1, t)
        if st + BD < NSTEP: bld(st + BD)
        if st == NSTEP - 2:
            assert BD == 3
            free = [BF + 8*((NSTEP-3) % BD), BF + 8*((NSTEP-2) % BD)]
            BIr = [free[0] + 2*k for k in range(4)] + [free[1] + 2*k for k in range(3)]
            for t in range(7):
                e(f"buffer_load_dwordx2 v[{BIr[t]}:{BIr[t]+1}], v10, s[8:11], 0 offen offset:{32*t}")
                pend.append(("c", 0))
    e("s_nop 7")
    e("s_waitcnt vmcnt(0)")
    tl(4)
    e("s_mul_i32 s6, s27, 108")
    e("s_add_u32 s6, s6, s4")
    e("s_lshl_b32 s6, s6, 10")
    e("s_add_u32 s6, s6, %d" % WS_ACT)
    e("v_lshlrev_b32 v9, 4, v3")
    e("v_lshl_add_u32 v9, v5, 9, v9")
    e("v_lshl_add_u32 v9, v6, 3, v9")
    T = 16
    for t in range(7):
        if t == 6:
            e("s_cmp_lt_u32 s26, 7")
            e("s_cbranch_scc1 g1_end")
        r = BIr[t]
        e(f"v_lshlrev_b32 v{T}, 16, v{r}")
        e(f"v_and_b32 v{T+1}, 0xffff0000, v{r}")
        e(f"v_lshlrev_b32 v{T+2}, 16, v{r+1}")
        e(f"v_and_b32 v{T+3}, 0xffff0000, v{r+1}")
        for b_ in range(2):
            ac = ACC + 4*(2*t + b_)
            d0 = T + 16 + 2*((2*t + b_) % 4)
            mish_pairs(ac, ac+1, T, T+1, d0, T+4)
            mish_pairs(ac+2, ac+3, T+2, T+3, d0+1, T+10)
            off = (t % 4)*1024 + 256*b_
            e(f"buffer_store_dwordx2 v[{d0}:{d0+1}], v9, s[28:31], s6 offen offset:{off}")
        if t == 3: e("s_add_u32 s6, s6, 4096")
    lab("g1_end")
    tl(5)
    if TL: e("s_waitcnt vmcnt(0)")
    tl_end(1)
    e("s_endpgm")
    lab("mid_conv")
    if "cv" in SKIP: e("s_endpgm")
    if PRIO & 8: e("s_setprio 3")
    srd(8, 60, D*2)
    e("s_sub_u32 s4, s2, %d" % G1_WGS)
    e("s_and_b32 s5, s4, 7")
    e("s_lshl_b32 s5, s5, 2")
    e("s_bfe_u32 s6, s4, 0x20003")
    e("s_or_b32 s5, s5, s6")
    e("s_andn2_b32 s4, s4, 31")
    e("s_or_b32 s4, s4, s5")
    e("s_lshl_b32 s5, s4, 1")
    e("v_mov_b32 v3, s5")
    e("buffer_load_ushort v1, v3, s[8:11], 0 offen")
    e("s_lshl_b32 s5, s4, 5")
    e("s_add_u32 s5, s5, %d" % WS_XNT)
    e("v_lshrrev_b32 v4, 1, v0")
    e("v_mul_u32_u24 v4, 20480, v4")
    e("v_and_b32 v5, 1, v0")
    e("v_lshl_add_u32 v4, v5, 4, v4")
    e("buffer_load_dwordx4 v[8:11], v4, s[28:31], s5 offen")
    e("v_lshlrev_b32 v4, 4, v0")
    e("s_mul_i32 s6, s4, %d" % KR_STRIDE)
    e("s_add_u32 s6, s6, %d" % WS_KR)
    e("buffer_load_dwordx4 v[12:15], v4, s[28:31], s6 offen")
    e("buffer_load_dwordx4 v[16:19], v4, s[28:31], s6 offen offset:16")
    e("v_min_u32 v5, 3, v0")
    e("v_lshlrev_b32 v5, 4, v5")
    e("v_add_u32 v5, 4096, v5")
    e("buffer_load_dwordx4 v[20:23], v5, s[28:31], s6 offen")
    e("buffer_load_dwordx4 v[24:27], v5, s[28:31], s6 offen offset:16")
    for k in range(4):
        e(f"v_mov_b32 v{28+k}, 0")
    e("v_min_u32 v6, 154, v0")
    e("v_lshlrev_b32 v6, 4, v6")
    e(f"ds_write_b128 v6, v[28:31] offset:{UB + 80}")
    e("v_lshrrev_b32 v6, 2, v0")
    e("v_mul_u32_u24 v6, 80, v6")
    e("v_and_b32 v7, 3, v0")
    e("v_lshl_add_u32 v6, v7, 4, v6")
    e("s_waitcnt vmcnt(4)")
    e(f"ds_write_b128 v6, v[8:11] offset:{UB + 32*80}")
    def copies(w, vaddr):
        for c in range(8):
            if c % 2 == 0:
                e(f"ds_write_b128 v{vaddr}, v[{w+c//2}:{w+c//2+3}] offset:{CB(c)}") if (w + c//2) % 2 == 0 else None
                if (w + c//2) % 2:
                    for j in range(4):
                        e(f"v_mov_b32 v{32+j}, v{w+c//2+j}")
                    e(f"ds_write_b128 v{vaddr}, v[32:35] offset:{CB(c)}")
            else:
                for j in range(4):
                    e(f"v_alignbit_b32 v{36+j}, v{w+(c+1)//2+j}, v{w+(c-1)//2+j}, 16")
                e(f"ds_write_b128 v{vaddr}, v[36:39] offset:{CB(c)}")
    e("s_waitcnt vmcnt(2)")
    copies(12, 4)
    e("s_waitcnt vmcnt(0)")
    copies(20, 5)
    e("s_waitcnt lgkmcnt(0)")
    tl(2)
    e("s_barrier")
    tl(3)
    e("v_and_b32 v3, 31, v2")
    e("v_lshrrev_b32 v4, 5, v2")
    e("v_sub_u32 v5, 7, v3")
    e("v_and_b32 v5, 7, v5")
    e("v_sub_u32 v6, 2047, v3")
    e("v_lshl_add_u32 v6, v4, 3, v6")
    e("v_sub_u32 v6, v6, v5")
    e("v_mul_u32_u24 v7, %d, v5" % CS)
    e("v_lshrrev_b32 v8, 2, v5")
    e("v_lshl_add_u32 v7, v8, 5, v7")
    e("v_lshl_add_u32 v6, v6, 1, v7")
    e("v_mul_u32_u24 v7, 80, v3")
    e("v_lshl_add_u32 v7, v4, 4, v7")
    e(f"v_add_u32 v7, {UB + 32*80}, v7")
    for r in range(16, 48):
        e(f"v_mov_b32 v{r}, 0")
    e("s_lshl_b32 s5, s3, 9")
    e(f"s_add_u32 s5, s5, {64*7 + 64*32}")
    e("v_subrev_u32 v8, s5, v6")
    e("s_mul_i32 s5, s3, 640")
    e(f"s_add_u32 s5, s5, {80*7}")
    e("v_subrev_u32 v9, s5, v7")
    def rd(q):
        base = 48 + (q & 1)*32
        for t in range(2):
            fa = base + 16*t
            e(f"ds_read_b128 v[{fa}:{fa+3}], v8 offset:{64*(7-q) + 2048 + 32*t}")
            e(f"ds_read_b128 v[{fa+4}:{fa+7}], v9 offset:{80*(7-q) + 32*t}")
            e(f"ds_read_b128 v[{fa+8}:{fa+11}], v9 offset:{80*(7-q) + 2560 + 32*t}")
            e(f"ds_read_b128 v[{fa+12}:{fa+15}], v8 offset:{64*(7-q) + 32*t}")
    def mm(q):
        base = 48 + (q & 1)*32
        for t in range(2):
            fa = base + 16*t
            e(f"v_mfma_f32_32x32x16_bf16 v[16:31], v[{fa}:{fa+3}], v[{fa+4}:{fa+7}], v[16:31]")
            e(f"v_mfma_f32_32x32x16_bf16 v[32:47], v[{fa}:{fa+3}], v[{fa+8}:{fa+11}], v[32:47]")
            e(f"v_mfma_f32_32x32x16_bf16 v[32:47], v[{fa+12}:{fa+15}], v[{fa+4}:{fa+7}], v[32:47]")
    rd(0)
    for q in range(8):
        if q < 7:
            rd(q + 1)
            e("s_waitcnt lgkmcnt(8)")
        else:
            e("s_waitcnt lgkmcnt(0)")
        mm(q)
    tl(4)
    e("s_nop 15")
    e("s_barrier")
    e("v_lshlrev_b32 v10, 4, v2")
    e("s_cmp_eq_u32 s3, 0")
    e("s_cbranch_scc1 cv_w0")
    e("s_sub_u32 s5, s3, 1")
    e("s_lshl_b32 s5, s5, 12")
    e("v_add_u32 v11, s5, v10")
    for r in range(4):
        e(f"ds_write_b128 v11, v[{16+4*r}:{19+4*r}] offset:{1024*r}")
    lab("cv_w0")
    e("s_cmp_eq_u32 s3, 1")
    e("s_cbranch_scc1 cv_w1")
    e("s_sub_u32 s5, s3, 1")
    e("s_max_i32 s5, s5, 0")
    e("s_lshl_b32 s5, s5, 12")
    e("v_add_u32 v11, s5, v10")
    for r in range(4):
        e(f"ds_write_b128 v11, v[{32+4*r}:{35+4*r}] offset:{12288 + 1024*r}")
    e("s_branch cv_w2")
    lab("cv_w1")
    for r in range(16):
        e(f"v_mov_b32 v{16+r}, v{32+r}")
    e("v_add_u32 v10, 12288, v10")
    lab("cv_w2")
    e("s_waitcnt lgkmcnt(0)")
    e("s_barrier")
    e("s_cmp_ge_u32 s3, 2")
    e("s_cbranch_scc1 mid_end")
    for sl in range(3):
        for r in range(4):
            e(f"ds_read_b128 v[{48+16*sl+4*r}:{51+16*sl+4*r}], v10 offset:{4096*sl + 1024*r}")
    for sl in range(3):
        e(f"s_waitcnt lgkmcnt({8-4*sl})")
        for r in range(16):
            e(f"v_add_f32 v{16+r}, v{16+r}, v{48+16*sl+r}")
    lab("cv_epi")
    e("s_mul_i32 s5, s3, %d" % (32*80))
    e("v_mul_u32_u24 v11, 80, v3")
    e("v_lshl_add_u32 v11, v4, 3, v11")
    e("v_add_u32 v11, s5, v11")
    for g in range(4):
        e(f"ds_read_b64 v[{32+2*g}:{33+2*g}], v11 offset:{UB + 32*80 + 16*g}")
    e("s_lshl_b32 s5, s4, 12")
    e("s_lshl_b32 s6, s3, 11")
    e("s_add_u32 s5, s5, s6")
    e("s_add_u32 s5, s5, %d" % WS_AT)
    e("v_lshlrev_b32 v12, 6, v3")
    e("v_lshl_add_u32 v12, v4, 3, v12")
    e("s_waitcnt vmcnt(0) lgkmcnt(0)")
    e("v_lshlrev_b32 v1, 16, v1")
    for g in range(4):
        for p in range(2):
            u = 32 + 2*g + p
            y0 = 16 + 4*g + 2*p
            e(f"v_lshlrev_b32 v44, 16, v{u}")
            e(f"v_and_b32 v45, 0xffff0000, v{u}")
            e(f"v_mul_f32 v44, v44, v1")
            e(f"v_mul_f32 v45, v45, v1")
            e(f"v_cvt_pk_bf16_f32 v44, v44, v45")
            e(f"v_cvt_pk_bf16_f32 v46, v{y0}, v{y0+1}")
            e(f"v_lshlrev_b32 v47, 16, v44")
            e(f"v_and_b32 v48, 0xffff0000, v44")
            e(f"v_lshlrev_b32 v49, 16, v46")
            e(f"v_and_b32 v50, 0xffff0000, v46")
            e(f"v_add_f32 v47, v47, v49")
            e(f"v_add_f32 v48, v48, v50")
            e(f"v_cvt_pk_bf16_f32 v{52+2*g+p}, v47, v48")
        e(f"buffer_store_dwordx2 v[{52+2*g}:{53+2*g}], v12, s[28:31], s5 offen offset:{16*g}")
    tl(5)
    if TL: e("s_waitcnt vmcnt(0)")
    tl_end(1)
    if W2MID:
        e("s_endpgm")
        lab("mid_wt")
        gen_wt(G1_WGS + CV_WGS, 270, 540, "mid_end", 1, 0)
    lab("mid_end")
    e("s_endpgm")
    kernel_desc("mid_kernel", 128)

G2_WGS = 256
FIN_LDS = 61440 + 64
FDEPTH = int(os.environ.get('FDEPTH', 4))
def gen_fin():
    kernel_begin("fin_kernel")
    e("s_cmp_ge_u32 s2, %d" % G2_WGS)
    e("s_cbranch_scc1 fin_end")
    e("s_load_dwordx2 s[56:57], s[0:1], 104")
    e("s_load_dwordx2 s[58:59], s[0:1], 0")
    e("s_load_dwordx2 s[60:61], s[0:1], 88")
    e("v_lshrrev_b32 v1, 6, v0")
    e("v_and_b32 v2, 63, v0")
    e("s_nop 0")
    e("v_readfirstlane_b32 s3, v1")
    if "xcc" in SKIP:
        e("s_and_b32 s5, s2, 31")
        e("s_lshr_b32 s4, s2, 5")
    else:
        e("s_waitcnt lgkmcnt(0)")
        srd(28, 56, WS_SIZE)
        claim_tile(512, 32, 61440, "fcl")
        e("s_lshr_b32 s5, s2, 5")
        e("s_lshl_b32 s5, s5, 2")
        e("s_and_b32 s6, s2, 3")
        e("s_add_u32 s5, s5, s6")
        e("s_bfe_u32 s4, s2, 0x30002")
    e("v_and_b32 v3, 15, v2")
    e("v_lshrrev_b32 v4, 4, v2")
    e("v_lshrrev_b32 v5, 1, v4")
    e("v_and_b32 v6, 1, v4")
    e("v_lshlrev_b32 v7, 4, v3")
    e("v_lshl_add_u32 v7, v5, 10, v7")
    e("v_lshl_add_u32 v7, v6, 9, v7")
    e("s_lshl_b32 s6, s3, 11")
    e("v_add_u32 v7, s6, v7")
    e("s_mul_i32 s6, s4, 5")
    for a_ in range(5):
        e(f"s_add_u32 s7, s6, {a_}")
        e(f"s_lshr_b32 s{40+a_}, s7, 1")
        e(f"s_mul_i32 s{40+a_}, s{40+a_}, {108*1024}")
        e(f"s_and_b32 s7, s7, 1")
        e(f"s_lshl_b32 s7, s7, 8")
        e(f"s_add_u32 s{40+a_}, s{40+a_}, s7")
        e(f"s_add_u32 s{40+a_}, s{40+a_}, {WS_W2F}")
    e("s_mul_i32 s6, s5, %d" % (2*108*1024))
    e("s_add_u32 s45, s6, %d" % WS_ACT)
    e("s_add_u32 s46, s45, 256")
    e("s_add_u32 s47, s45, %d" % (108*1024))
    e("s_add_u32 s48, s47, 256")
    e("s_waitcnt lgkmcnt(0)")
    srd(28, 56, WS_SIZE); srd(8, 58, L*D*2); srd(12, 60, L*D*2)
    FR = 16
    ACC = 0
    EP = FR + 36*FDEPTH
    pend = []
    def issue(m):
        base = FR + 36*(m % FDEPTH)
        for t in range(9):
            e(f"buffer_load_dwordx4 v[{base+4*t}:{base+4*t+3}], v7, s[28:31], s{40+t} offen")
            pend.append(("f", m))
        e("v_add_u32 v7, 8192, v7")
    def wait_for(tag):
        last = max(i for i, p in enumerate(pend) if p == tag)
        n = len(pend) - 1 - last
        e(f"s_waitcnt vmcnt({n})")
        del pend[:last+1]
    NST = 14
    for m in range(FDEPTH):
        issue(m)
    e("s_lshl_b32 s6, s5, 6")
    e("s_lshl_b32 s7, s3, 4")
    e("s_add_u32 s6, s6, s7")
    e("v_add_u32 v8, s6, v3")
    e("v_mul_u32_u24 v9, 1280, v8")
    e("v_lshl_add_u32 v9, v4, 3, v9")
    e("s_mul_i32 s6, s4, 160")
    e("v_add_u32 v9, s6, v9")
    for a_ in range(5):
        e(f"buffer_load_dwordx2 v[{EP+2*a_}:{EP+2*a_+1}], v9, s[8:11], 0 offen offset:{32*a_}")
        pend.append(("e", 0))
    e("v_lshlrev_b32 v10, 14, v4")
    e("v_lshl_add_u32 v10, v8, 1, v10")
    e("s_mul_i32 s6, s4, %d" % (80*4096))
    e("s_add_u32 s6, s6, %d" % WS_AT)
    for a_ in range(5):
        for j in range(4):
            e(f"buffer_load_ushort v{EP+10+4*a_+j}, v10, s[28:31], s6 offen")
            pend.append(("e", 0))
            e("s_add_u32 s6, s6, %d" % (4096 if j < 3 else 4096*13))
    for r in range(ACC, ACC+80):
        e(f"v_accvgpr_write_b32 a{r}, 0")
    for m in range(NST):
        if m == NST - 1:
            e("s_cmp_ge_u32 s3, 2")
            e("s_cbranch_scc1 fin_red")
        wait_for(("f", m))
        base = FR + 36*(m % FDEPTH)
        for b_ in range(4):
            for a_ in range(5):
                ac = ACC + 4*(5*b_ + a_)
                e(f"v_mfma_f32_16x16x32_bf16 a[{ac}:{ac+3}], v[{base+4*a_}:{base+4*a_+3}], v[{base+20+4*b_}:{base+23+4*b_}], a[{ac}:{ac+3}]")
        if m + FDEPTH < NST:
            if m + FDEPTH == NST - 1:
                e("s_cmp_ge_u32 s3, 2")
                e("s_cselect_b32 s6, 8192, 0")
                e("v_subrev_u32 v7, s6, v7")
            issue(m + FDEPTH)
    lab("fin_red")
    e("s_nop 15")
    e("s_waitcnt vmcnt(0)")
    e("v_lshlrev_b32 v11, 4, v2")
    for w in range(4):
        if w < 3:
            e(f"s_cmp_lg_u32 s3, {w}")
            e(f"s_cbranch_scc1 fin_w{w+1}")
        for b_ in range(4):
            if b_ == w: continue
            slot = w if w < b_ else w - 1
            for a_ in range(5):
                ac = ACC + 4*(5*b_ + a_)
                e(f"ds_write_b128 v11, a[{ac}:{ac+3}] offset:{(b_*3 + slot)*5120 + a_*1024}")
        for r in range(20):
            e(f"v_accvgpr_read_b32 v{16+r}, a{ACC+20*w+r}")
        if w < 3:
            e("s_branch fin_rd")
            lab(f"fin_w{w+1}")
    lab("fin_rd")
    e("s_mul_i32 s6, s3, %d" % (3*5120))
    e("v_add_u32 v11, s6, v11")
    e("s_waitcnt lgkmcnt(0)")
    e("s_barrier")
    for sl in range(3):
        for a_ in range(5):
            r = 36 + 20*sl + 4*a_
            e(f"ds_read_b128 v[{r}:{r+3}], v11 offset:{sl*5120 + a_*1024}")
    for sl in range(3):
        e(f"s_waitcnt lgkmcnt({10-5*sl})")
        for r in range(20):
            e(f"v_add_f32 v{16+r}, v{16+r}, v{36+20*sl+r}")
    e("s_waitcnt vmcnt(0)")
    for a_ in range(5):
        rx = EP + 2*a_
        ra = EP + 10 + 4*a_
        for p in range(2):
            ac = 16 + 4*a_ + 2*p
            e(f"v_lshlrev_b32 v96, 16, v{rx+p}")
            e(f"v_and_b32 v97, 0xffff0000, v{rx+p}")
            e(f"v_lshlrev_b32 v98, 16, v{ra+2*p}")
            e(f"v_lshlrev_b32 v99, 16, v{ra+2*p+1}")
            e(f"v_add_f32 v96, v96, v98")
            e(f"v_add_f32 v97, v97, v99")
            e(f"v_cvt_pk_bf16_f32 v96, v96, v97")
            e(f"v_cvt_pk_bf16_f32 v98, v{ac}, v{ac+1}")
            e(f"v_lshlrev_b32 v100, 16, v96")
            e(f"v_and_b32 v101, 0xffff0000, v96")
            e(f"v_lshlrev_b32 v102, 16, v98")
            e(f"v_and_b32 v103, 0xffff0000, v98")
            e(f"v_add_f32 v100, v100, v102")
            e(f"v_add_f32 v101, v101, v103")
            e(f"v_cvt_pk_bf16_f32 v{rx+p}, v100, v101")
        e(f"buffer_store_dwordx2 v[{rx}:{rx+1}], v9, s[12:15], 0 offen offset:{32*a_}")
    lab("fin_end")
    e("s_endpgm")
    kernel_desc("fin_kernel", ((EP + 30) + 7)//8*8, agpr=80)

hdr = open("cdna_kernels/%s.s.ref" % NAME).read().split("; Override launch")[0]
text = hdr
text += f"; @launch kernel=prep_kernel grid=({PREP_WGS},1,1) block=(256,1,1) lds={PREP_LDS}\n"
text += f"; @launch kernel=mid_kernel grid=({MID_WGS},1,1) block=(256,1,1) lds={MID_LDS}\n"
text += f"; @launch kernel=fin_kernel grid=({G2_WGS},1,1) block=(256,1,1) lds={FIN_LDS}\n"
text += '.amdgcn_target "amdgcn-amd-amdhsa--gfx950"\n'
gen_prep(); gen_mid(); gen_fin()
_o = []; _in = False
for _l in out:
    if _l.startswith("fin_kernel:"): _in = True
    if _l.strip().startswith("buffer_store") and not _in and "nosc" not in SKIP: _l += " sc1"
    _o.append(_l)
out = _o
text += "\n".join(out) + "\n"
dst = sys.argv[1] if len(sys.argv) > 1 else "cdna_kernels/%s.s" % NAME
open(dst, "w").write(text)
print("wrote", dst, len(text))
```

```python
import sys, os
SKIP = os.environ.get("SKIP", "").split(",")
ORDER = int(os.environ.get("ORDER", 0))
PRIO = int(os.environ.get("PRIO", 3))
W2MID = int(os.environ.get("W2MID", 0))
G1MAP = int(os.environ.get("G1MAP", 0))
FMAP = int(os.environ.get("FMAP", 0))
DLYL = int(os.environ.get("DLYL", 24))
DLYW = int(os.environ.get("DLYW", 24))
NAME = "parallel_sum__ssm_conv_s4d__dense_activation_mish__prompt"
L, D, N, F = 2048, 640, 128, 1728
WS_XNF = 0x0000000
WS_XNT = 0x0280000
WS_W1F = 0x0500000
WS_W2F = WS_W1F + 2160 * 1024
WS_KR = 0x0A00000
KR_STRIDE = 4224
WS_ACT = 0x0D00000
WS_AT = 0x1400000
WS_CNT = 0x1700000
WS_SIZE = 268435456
LOG2E = 0x3fb8aa3b
INV2PI = 0x3e22f983

out = []
def e(s):
    out.append("    " + s)
def lab(s):
    out.append(s + ":")
def cm(s):
    out.append("    ; " + s)

STAMP = os.environ.get("STAMP")
def stamp_init():
    if not STAMP: return
    e("s_load_dwordx2 s[84:85], s[0:1], 96")
    e("s_waitcnt lgkmcnt(0)")
    e("s_mov_b32 s80, s84"); e("s_and_b32 s81, s85, 0xffff"); e("s_mov_b32 s82, 256"); e("s_mov_b32 s83, 0x00020000")
def stamp(i):
    if not STAMP: return
    e("s_memtime s[86:87]")
    e("s_waitcnt lgkmcnt(0)")
    e(f"s_cmp_lg_u32 s2, {int(STAMP)}")
    e(f"s_cbranch_scc1 st_{stamp.n}")
    e(f"v_mov_b32 v255, s86")
    e(f"v_lshrrev_b32 v254, 6, v0")
    e(f"v_lshlrev_b32 v254, 6, v254")
    e(f"v_add_u32 v254, {4*i}, v254")
    e(f"buffer_store_dword v255, v254, s[80:83], 0 offen")
    lab(f"st_{stamp.n}")
    stamp.n += 1
stamp.n = 0


TL = os.environ.get("TL")
WS_TL = 0x1800000
def tl(i):
    if not TL: return
    e("s_memrealtime s[80:81]")
    e("s_waitcnt lgkmcnt(0)")
    e(f"s_mov_b32 s{84+i}, s80")
def tl_begin():
    if not TL: return
    e("s_mov_b32 s83, s2")
    for i in range(8): e(f"s_mov_b32 s{84+i}, 0")
    tl(0)
def tl_end(kern):
    if not TL: return
    tl(7)
    e("s_cmp_lg_u32 s3, 0")
    e(f"s_cbranch_scc1 tle_{tl_end.n}")
    e("s_lshl_b32 s83, s83, 5")
    e(f"s_add_u32 s83, s83, {WS_TL + kern*65536}")
    e("v_mov_b32 v1, 0")
    for i in range(8):
        e(f"v_mov_b32 v0, s{84+i}")
        e(f"buffer_store_dword v0, v1, s[28:31], s83 offen offset:{4*i}")
    lab(f"tle_{tl_end.n}")
    tl_end.n += 1
tl_end.n = 0

def srd(dst, ptr, size):
    e(f"s_mov_b32 s{dst}, s{ptr}")
    e(f"s_and_b32 s{dst+1}, s{ptr+1}, 0xffff")
    e(f"s_mov_b32 s{dst+2}, {size}")
    e(f"s_mov_b32 s{dst+3}, 0x00020000")

def kernel_begin(name):
    out.append(".text")
    out.append(f".globl {name}")
    out.append(".p2align 8")
    out.append(f".type {name},@function")
    lab(name)

def kernel_desc(name, vgpr, sgpr=96, agpr=0):
    if STAMP: vgpr = 256
    out.append('.section .rodata,"a"')
    out.append(".p2align 6")
    out.append(f".amdhsa_kernel {name}")
    out.append(f"  .amdhsa_next_free_vgpr {vgpr + agpr}")
    out.append(f"  .amdhsa_next_free_sgpr {sgpr}")
    out.append(f"  .amdhsa_accum_offset {(vgpr+3)//4*4}")
    out.append("  .amdhsa_group_segment_fixed_size 0")
    out.append("  .amdhsa_kernarg_size 112")
    out.append("  .amdhsa_user_sgpr_count 2")
    out.append("  .amdhsa_user_sgpr_kernarg_segment_ptr 1")
    out.append("  .amdhsa_system_sgpr_workgroup_id_x 1")
    out.append(".end_amdhsa_kernel")


def claim_tile(cnt_off, per, lds_off, lbl):
    e("s_cmp_lg_u32 s3, 0")
    e(f"s_cbranch_scc1 {lbl}_w")
    e("s_getreg_b32 s20, hwreg(HW_REG_XCC_ID)")
    e("s_and_b32 s20, s20, 7")
    e("s_mov_b32 s21, 0")
    e("s_mov_b64 s[22:23], exec")
    e("s_mov_b64 exec, 1")
    e("v_mov_b32 v12, 1")
    lab(f"{lbl}_l")
    e("s_lshl_b32 s24, s20, 6")
    e(f"s_add_u32 s24, s24, {WS_CNT + cnt_off}")
    e("v_mov_b32 v13, 0")
    e("v_mov_b32 v14, v12")
    e("buffer_atomic_add v14, v13, s[28:31], s24 offen sc0" + ("" if "asc" in SKIP else " sc1"))
    e("s_waitcnt vmcnt(0)")
    e("v_readfirstlane_b32 s25, v14")
    e(f"s_cmp_lt_u32 s25, {per}")
    e(f"s_cbranch_scc1 {lbl}_f")
    e("s_add_u32 s20, s20, 1")
    e("s_and_b32 s20, s20, 7")
    e("s_add_u32 s21, s21, 1")
    e("s_cmp_lt_u32 s21, 8")
    e(f"s_cbranch_scc1 {lbl}_l")
    e("s_mov_b32 s25, 0")
    lab(f"{lbl}_f")
    e(f"s_mul_i32 s20, s20, {per}")
    e("s_add_u32 s20, s20, s25")
    e("v_mov_b32 v14, s20")
    e(f"v_mov_b32 v13, {lds_off}")
    e("ds_write_b32 v13, v14")
    e("s_mov_b64 exec, s[22:23]")
    e("s_waitcnt lgkmcnt(0)")
    lab(f"{lbl}_w")
    e("s_barrier")
    e(f"v_mov_b32 v13, {lds_off}")
    e("ds_read_b32 v14, v13")
    e("s_waitcnt lgkmcnt(0)")
    e("v_readfirstlane_b32 s2, v14")

LN_WGS, WT_WGS, KG_WGS = 128, (68 if W2MID else 135), 640
PREP_WGS = KG_WGS + LN_WGS + WT_WGS
KG_LDS_WAVE = 512
KG_TAB0 = 2048
KG_TAB = 2688
KG_FIN = KG_TAB0 + 4*KG_TAB
PREP_LDS = 36864
LNS = 36

def gen_wt(wg0, wv0, wvend, endlab, kern, dly):
    if "wt" in SKIP: e("s_endpgm")
    if PRIO & 2: e("s_setprio 3")
    e("s_load_dwordx2 s[40:41], s[0:1], 64")
    e("s_load_dwordx2 s[42:43], s[0:1], 80")
    e("s_sub_u32 s4, s2, %d" % wg0)
    e("s_lshl_b32 s4, s4, 2")
    e("s_add_u32 s4, s4, s3")
    if wv0: e("s_add_u32 s4, s4, %d" % wv0)
    if wvend:
        e("s_cmp_ge_u32 s4, %d" % wvend)
        e("s_cbranch_scc1 %s" % endlab)
    e("s_waitcnt lgkmcnt(0)")
    e("s_cmp_ge_u32 s4, 270")
    e("s_cselect_b32 s40, s42, s40")
    e("s_cselect_b32 s41, s43, s41")
    e("s_mov_b32 s5, 3456")
    e("s_mov_b32 s7, 159072863")
    e("s_mov_b32 s34, %d" % WS_W1F)
    e("s_cselect_b32 s5, 1280, s5")
    e("s_cselect_b32 s6, 10, 27")
    e("s_cselect_b32 s7, 429496730, s7")
    e("s_cselect_b32 s32, 270, 0")
    e("s_cselect_b32 s33, 108, 40")
    e("s_cselect_b32 s34, %d, s34" % WS_W2F)
    srd(8, 40, D*F*2); srd(28, 56, WS_SIZE)
    e("s_sub_u32 s32, s4, s32")
    e("s_lshl_b32 s32, s32, 2")
    e("v_lshrrev_b32 v3, 3, v2")
    e("v_and_b32 v4, 7, v2")
    e("v_mul_lo_u32 v5, v3, s5")
    e("v_lshl_add_u32 v5, v4, 4, v5")
    e("s_lshl_b32 s35, s5, 3")
    e("s_mul_i32 s36, s3, %d" % (4*16*144))
    e("v_mul_u32_u24 v6, 144, v3")
    e("v_lshl_add_u32 v6, v4, 4, v6")
    e("v_add_u32 v6, s36, v6")
    e("v_and_b32 v7, 31, v2")
    e("v_lshrrev_b32 v8, 5, v2")
    e("v_mul_u32_u24 v8, %d, v8" % (8*144))
    e("v_lshl_add_u32 v8, v7, 1, v8")
    e("v_add_u32 v8, s36, v8")
    e("v_lshlrev_b32 v9, 4, v2")
    if dly: e(f"s_sleep {dly}")
    for q in range(4):
        e(f"s_add_u32 s37, s32, {q}")
        e("s_mul_hi_u32 s38, s37, s7")
        e("s_mul_i32 s39, s38, s6")
        e("s_sub_u32 s39, s37, s39")
        e(f"s_lshl_b32 s44, s38, 4")
        e(f"s_mul_i32 s44, s44, s5")
        e(f"s_lshl_b32 s45, s39, 7")
        e(f"s_add_u32 s44, s44, s45")
        e(f"buffer_load_dwordx4 v[{16+8*q}:{19+8*q}], v5, s[8:11], s44 offen")
        e(f"s_add_u32 s44, s44, s35")
        e(f"buffer_load_dwordx4 v[{20+8*q}:{23+8*q}], v5, s[8:11], s44 offen")
        e(f"s_lshl_b32 s45, s39, 1")
        e(f"s_mul_i32 s45, s45, s33")
        e(f"s_add_u32 s45, s45, s38")
        e(f"s_lshl_b32 s45, s45, 10")
        e(f"s_add_u32 s{48+q}, s45, s34")
    e("s_lshl_b32 s33, s33, 10")
    for q in range(4):
        e(f"s_waitcnt vmcnt({6-2*q})")
        e(f"ds_write_b128 v6, v[{16+8*q}:{19+8*q}] offset:{q*16*144}")
        e(f"ds_write_b128 v6, v[{20+8*q}:{23+8*q}] offset:{q*16*144 + 8*144}")
    tl(1)
    for q in range(4):
        e("s_waitcnt lgkmcnt(0)") if q == 0 else None
        for f in range(2):
            for el in range(8):
                e(f"ds_read_u16 v{48+16*(q&1)*2+16*f+el}, v8 offset:{q*16*144 + el*144 + 64*f}")
        if q > 0:
            pass
        e("s_waitcnt lgkmcnt(0)")
        for f in range(2):
            for j in range(4):
                r = 48 + 16*(q&1)*2 + 16*f
                e(f"v_lshl_or_b32 v{112+4*f+j}, v{r+2*j+1}, 16, v{r+2*j}")
            if f == 0:
                e(f"buffer_store_dwordx4 v[112:115], v9, s[28:31], s{48+q} offen")
            else:
                e(f"s_add_u32 s{48+q}, s{48+q}, s33")
                e(f"buffer_store_dwordx4 v[116:119], v9, s[28:31], s{48+q} offen")
        if q < 3:
            e("s_nop 1")
    tl(5)
    if TL: e("s_waitcnt vmcnt(0)")
    tl_end(kern)

def gen_prep():
    kernel_begin("prep_kernel")
    e("s_cmp_ge_u32 s2, %d" % PREP_WGS)
    e("s_cbranch_scc1 prep_end")
    e("s_load_dwordx2 s[56:57], s[0:1], 104")
    e("v_lshrrev_b32 v1, 6, v0")
    e("v_and_b32 v2, 63, v0")
    e("s_nop 0")
    e("v_readfirstlane_b32 s3, v1")
    if ORDER:
        e("s_add_u32 s2, s2, %d" % KG_WGS)
        e("s_cmp_ge_u32 s2, %d" % PREP_WGS)
        e("s_cselect_b32 s4, %d, 0" % PREP_WGS)
        e("s_sub_u32 s2, s2, s4")
    tl_begin()
    e("s_cmp_ge_u32 s2, %d" % (KG_WGS + LN_WGS))
    e("s_cbranch_scc1 prep_wt")
    e("s_cmp_ge_u32 s2, %d" % KG_WGS)
    e("s_cbranch_scc1 prep_ln")
    if "kg" in SKIP: e("s_endpgm")
    e("s_load_dwordx4 s[40:43], s[0:1], 8")
    e("s_load_dwordx4 s[44:47], s[0:1], 24")
    e("s_load_dwordx2 s[48:49], s[0:1], 40")
    e("s_mov_b32 s4, s2")
    e("s_mul_i32 s5, s3, %d" % KG_LDS_WAVE)
    e("s_lshl_b32 s6, s4, 8")
    e("s_lshl_b32 s7, s3, 6")
    e("s_add_u32 s6, s6, s7")
    e("v_and_b32 v3, 31, v2")
    e("v_lshl_add_u32 v3, v3, 1, s6")
    e("s_lshl_b32 s7, s4, 1")
    e("v_mov_b32 v4, s7")
    e("s_waitcnt lgkmcnt(0)")
    srd(8, 40, D*N*2); srd(12, 42, D*N*2); srd(16, 44, D*N*2); srd(20, 46, D*N*2)
    srd(24, 48, D*2); srd(28, 56, WS_SIZE)
    for k, sr in enumerate((8, 12, 16, 20)):
        e(f"buffer_load_ushort v{10+k}, v3, s[{sr}:{sr+3}], 0 offen")
    e("buffer_load_ushort v18, v4, s[24:27], 0 offen")
    e("v_and_b32 v8, 15, v2")
    e("v_lshrrev_b32 v9, 4, v2")
    e("v_and_b32 v24, 7, v8")
    e("v_lshrrev_b32 v25, 3, v8")
    e("v_lshl_add_u32 v28, v25, 7, v24")
    e("v_and_b32 v24, 3, v8")
    e("v_lshlrev_b32 v24, 1, v24")
    e("v_bfe_u32 v25, v8, 2, 1")
    e("v_lshl_add_u32 v24, v25, 7, v24")
    e("v_add_u32 v24, 256, v24")
    e("v_and_b32 v25, 1, v8")
    e("v_lshlrev_b32 v25, 2, v25")
    e("v_bfe_u32 v26, v8, 1, 2")
    e("v_lshl_add_u32 v25, v26, 7, v25")
    e("v_add_u32 v25, 512, v25")
    e("v_cmp_gt_u32 vcc, 8, v8")
    e("s_nop 1")
    e("v_cndmask_b32 v29, v25, v24, vcc")
    e("v_lshlrev_b32 v30, 7, v8")
    e("v_add_u32 v30, 0x400, v30")
    e("v_lshlrev_b32 v31, 3, v8")
    for t in range(4):
        e(f"v_cvt_f32_u32 v{28+t}, v{28+t}")
    e("s_mul_i32 s6, s3, %d" % KG_TAB)
    e("s_add_u32 s6, s6, %d" % KG_TAB0)
    e("v_and_b32 v24, 1, v9")
    e("v_lshrrev_b32 v25, 1, v9")
    e("v_lshl_add_u32 v33, v8, 5, s6")
    e("v_lshl_add_u32 v33, v24, 4, v33")
    e("v_lshl_add_u32 v33, v25, 9, v33")
    e("v_lshlrev_b32 v24, 4, v8")
    e("v_lshlrev_b32 v25, 3, v8")
    e("v_cmp_gt_u32 vcc, 2, v9")
    e("s_nop 1")
    e("v_cndmask_b32 v24, v25, v24, vcc")
    e("v_lshl_add_u32 v24, v9, 8, v24")
    e("v_add_u32 v24, s6, v24")
    e("v_add_u32 v34, 1024, v24")
    e("v_mov_b32 v25, 128")
    e("v_cndmask_b32_e64 v24, v25, 8, vcc")
    e("v_add_u32 v36, v34, v24")
    e("v_lshl_add_u32 v38, v8, 2, s6")
    e("v_lshl_add_u32 v38, v9, 8, v38")
    e("v_add_u32 v38, 2048, v38")
    e("v_lshl_add_u32 v39, v9, 4, s5")
    for r in range(40, 52):
        e(f"v_mov_b32 v{r}, 0")
    e("s_waitcnt vmcnt(0)")
    tl(1)
    for r in (10, 11, 12, 13, 18):
        e(f"v_lshlrev_b32 v{r}, 16, v{r}")
    e(f"v_mul_f32 v18, {LOG2E:#x}, v18")
    e(f"v_mul_f32 v10, {LOG2E:#x}, v10")
    e("v_exp_f32 v18, v18")
    e("v_exp_f32 v10, v10")
    e("s_nop 0")
    e("v_cvt_pk_bf16_f32 v18, v18, v18")
    e("v_cvt_pk_bf16_f32 v10, v10, v10")
    e("v_lshlrev_b32 v18, 16, v18")
    e("v_lshlrev_b32 v10, 16, v10")
    e("v_add_f32 v19, v18, v18")
    e("v_and_b32 v5, 31, v2")
    e("v_lshl_add_u32 v5, v5, 4, s5")
    e("v_mul_f32 v20, v10, v18")
    e(f"v_mul_f32 v20, {LOG2E|0x80000000:#x}, v20")
    e("v_mul_f32 v21, v11, v18")
    e(f"v_mul_f32 v21, {INV2PI:#x}, v21")
    e("v_mul_f32 v22, v12, v19")
    e("v_mul_f32 v23, v13, v19")
    e("ds_write_b128 v5, v[20:23]")
    e("s_waitcnt lgkmcnt(0)")
    for st in range(8):
        e(f"ds_read_b128 v[{96+4*st}:{99+4*st}], v39 offset:{64*st}")
    e("s_waitcnt lgkmcnt(0)")
    def kg_valu(st):
        P = 96 + 4*st
        O = 72 + 10*(st & 1)
        v = []
        for t in range(4):
            v.append(f"v_mul_f32 v{52+t}, v{P}, v{28+t}")
            v.append(f"v_mul_f32 v{56+t}, v{P+1}, v{28+t}")
        for t in range(4):
            v.append(f"v_exp_f32 v{52+t}, v{52+t}")
            v.append(f"v_fract_f32 v{56+t}, v{56+t}")
        for t in range(4):
            v.append(f"v_cos_f32 v{60+t}, v{56+t}")
            v.append(f"v_sin_f32 v{64+t}, v{56+t}")
        for t in range(4):
            v.append(f"v_mul_f32 v{60+t}, v{52+t}, v{60+t}")
            v.append(f"v_mul_f32 v{64+t}, v{52+t}, v{64+t}")
        v.append(f"v_mul_f32 v55, v63, v{P+2}")
        v.append(f"v_mul_f32_e64 v59, -v63, v{P+3}")
        v.append(f"v_fma_f32 v55, -v67, v{P+3}, v55")
        v.append(f"v_fma_f32 v59, -v67, v{P+2}, v59")
        def split(xr, xi, H, Lo, t0, t1):
            v.append(f"v_cvt_pk_bf16_f32 v{H}, v{xr}, v{xi}")
            v.append(f"v_lshlrev_b32 v{t0}, 16, v{H}")
            v.append(f"v_and_b32 v{t1}, 0xffff0000, v{H}")
            v.append(f"v_sub_f32 v{t0}, v{xr}, v{t0}")
            v.append(f"v_sub_f32 v{t1}, v{xi}, v{t1}")
            v.append(f"v_cvt_pk_bf16_f32 v{Lo}, v{t0}, v{t1}")
        split(55, 59, O, O+2, 68, 69)
        v.append(f"v_mov_b32 v{O+1}, v{O}")
        v.append(f"v_mov_b32 v{O+3}, v{O+2}")
        for t in range(3):
            split(60+t, 64+t, O+4+2*t, O+5+2*t, 52+t, 56+t)
        return v
    def kg_mfma(st):
        O = 72 + 10*(st & 1)
        m = []
        for h in range(2):
            for t in range(3):
                a = 40 + 4*t
                m.append(f"v_mfma_f32_16x16x16_bf16 v[{a}:{a+3}], v[{O+4+2*t}:{O+5+2*t}], v[{O+2*h}:{O+2*h+1}], v[{a}:{a+3}]")
        return m
    for st in range(9):
        v = kg_valu(st) if st < 8 else []
        m = kg_mfma(st-1) if st > 0 else []
        if "kgm" in SKIP: m = []
        if "kgv" in SKIP: v = []
        if not v:
            e("s_nop 1")
        vi = 0
        for mi, mm_ in enumerate(m):
            tgt = 2 + 7*mi
            while vi < min(tgt, len(v)):
                e(v[vi]); vi += 1
            e(mm_)
        while vi < len(v):
            e(v[vi]); vi += 1
    e("s_nop 15")
    tl(2)
    for r in range(4):
        e(f"ds_write_b32 v33, v{40+r} offset:{4*r}")
    e("ds_write_b32 v34, v44")
    e("ds_write_b32 v34, v45 offset:4")
    e("ds_write_b32 v36, v46")
    e("ds_write_b32 v36, v47 offset:4")
    e("s_mov_b32 exec_hi, 0xffff")
    e("ds_write_b32 v38, v48")
    e("s_mov_b32 exec_hi, 0")
    for r in range(1, 4):
        e(f"ds_write_b32 v38, v{48+r} offset:{64*r}")
    e("s_mov_b32 exec_hi, -1")
    e("s_mul_i32 s4, s4, %d" % KR_STRIDE)
    e("s_add_u32 s4, s4, %d" % WS_KR)
    e("v_lshlrev_b32 v39, 4, v0")
    e("v_lshlrev_b32 v64, 3, v0")
    e("v_sub_u32 v64, 2047, v64")
    e("v_lshlrev_b32 v65, 2, v0")
    e("v_lshlrev_b32 v66, 1, v0")
    for k in range(8):
        e(f"v_subrev_u32 v{52+k}, {k}, v64")
        e(f"v_cvt_f32_u32 v{72+k}, v{52+k}")
    for k in range(4):
        e(f"v_cvt_pk_bf16_f32 v{80+k}, v{72+2*k}, v{73+2*k}")
        e(f"v_and_b32 v{72+2*k}, 0xffff, v{80+k}")
        e(f"v_lshrrev_b32 v{73+2*k}, 16, v{80+k}")
    for k in range(8):
        e(f"v_subrev_u32 v{72+k}, 17024, v{72+k}")
        e(f"v_cmp_gt_u32 vcc, 256, v{52+k}")
        e("s_nop 1")
        e(f"v_cndmask_b32 v{52+k}, v{72+k}, v{52+k}, vcc")
        e(f"v_lshlrev_b32 v{52+k}, 1, v{52+k}")
    e("s_waitcnt lgkmcnt(0)")
    e("s_barrier")
    tl(3)
    for m in range(3):
        for ww in range(4):
            e(f"ds_read_b32 v{72+4*m+ww}, v65 offset:{KG_TAB0 + ww*KG_TAB + 1024*m}")
    for m in range(3):
        e(f"s_waitcnt lgkmcnt({8-4*m})")
        e(f"v_add_f32 v{72+4*m}, v{72+4*m}, v{73+4*m}")
        e(f"v_add_f32 v{74+4*m}, v{74+4*m}, v{75+4*m}")
        e(f"v_add_f32 v{72+4*m}, v{72+4*m}, v{74+4*m}")
        e(f"v_cvt_pk_bf16_f32 v{72+4*m}, v{72+4*m}, v{72+4*m}")
        e(f"ds_write_b16 v66, v{72+4*m} offset:{KG_FIN + 512*m}")
    e("s_waitcnt lgkmcnt(0)")
    e("s_barrier")
    tl(4)
    for k in range(8):
        e(f"ds_read_u16 v{96+k}, v{52+k} offset:{KG_FIN}")
    e("s_waitcnt lgkmcnt(0)")
    for k in range(4):
        e(f"v_lshl_or_b32 v{112+k}, v{97+2*k}, 16, v{96+2*k}")
    e(f"buffer_store_dwordx4 v[112:115], v39, s[28:31], s4 offen")
    for k in range(4):
        e(f"v_mov_b32 v{116+k}, 0")
    e("v_cmp_gt_u32 vcc, 8, v0")
    e("s_and_saveexec_b64 s[32:33], vcc")
    e("s_cbranch_execz prep_end")
    e("s_add_u32 s4, s4, 4096")
    e("buffer_store_dwordx4 v[116:119], v39, s[28:31], s4 offen")
    e("v_lshlrev_b32 v39, 6, v0")
    tl(5)
    if TL: e("s_waitcnt vmcnt(0)")
    tl_end(0)
    e("s_cmp_lg_u32 s2, 0")
    e("s_cbranch_scc1 prep_end")
    e("s_mov_b32 s4, %d" % WS_CNT)
    e("buffer_store_dword v116, v39, s[28:31], s4 offen")
    e("buffer_store_dword v116, v39, s[28:31], s4 offen offset:512")
    e("s_endpgm")
    lab("prep_ln")
    if "ln" in SKIP: e("s_endpgm")
    if PRIO & 1: e("s_setprio 3")
    e("s_load_dwordx2 s[40:41], s[0:1], 0")
    e("s_sub_u32 s2, s2, %d" % KG_WGS)
    e("v_and_b32 v3, 15, v0")
    e("v_lshrrev_b32 v4, 4, v0")
    e("s_lshl_b32 s5, s2, 4")
    e("v_add_u32 v5, s5, v4")
    e("v_mul_u32_u24 v6, 1280, v5")
    e("v_lshl_add_u32 v6, v3, 4, v6")
    e("s_waitcnt lgkmcnt(0)")
    srd(8, 40, L*D*2); srd(28, 56, WS_SIZE)
    if DLYL: e(f"s_sleep {DLYL}")
    for j in range(5):
        e(f"buffer_load_dwordx4 v[{16+4*j}:{19+4*j}], v6, s[8:11], 0 offen offset:{256*j}")
    e("s_lshr_b32 s6, s2, 1")
    e("s_mul_i32 s6, s6, %d" % (40*1024))
    e("s_add_u32 s6, s6, %d" % WS_XNF)
    e("v_lshrrev_b32 v7, 1, v3")
    e("v_lshlrev_b32 v7, 10, v7")
    e("v_and_b32 v8, 1, v3")
    e("v_lshl_add_u32 v7, v8, 9, v7")
    e("v_and_b32 v8, 31, v5")
    e("v_lshl_add_u32 v7, v8, 4, v7")
    e(f"v_mul_u32_u24 v9, {8*LNS}, v3")
    e("v_lshl_add_u32 v9, v4, 1, v9")
    e("s_waitcnt vmcnt(0)")
    tl(1)
    for k in range(20):
        e(f"v_lshlrev_b32 v{40+2*k}, 16, v{16+k}")
        e(f"v_and_b32 v{41+2*k}, 0xffff0000, v{16+k}")
    def lane_sum(srcs, acc):
        for a in range(4):
            e(f"v_add_f32 v{acc+a}, v{srcs[a]}, v{srcs[a+4]}")
        for k in range(8, len(srcs)):
            e(f"v_add_f32 v{acc+(k%4)}, v{acc+(k%4)}, v{srcs[k]}")
        e(f"v_add_f32 v{acc}, v{acc}, v{acc+1}")
        e(f"v_add_f32 v{acc+2}, v{acc+2}, v{acc+3}")
        e(f"v_add_f32 v{acc}, v{acc}, v{acc+2}")
        for sh in (8, 4, 2, 1):
            e("s_nop 1")
            e(f"v_add_f32_dpp v{acc}, v{acc}, v{acc} row_ror:{sh} row_mask:0xf bank_mask:0xf")
    lane_sum(list(range(40, 80)), 10)
    e("v_mul_f32 v14, 0x3acccccd, v10")
    for k in range(40):
        e(f"v_sub_f32 v{80+k}, v{40+k}, v14")
        e(f"v_mul_f32 v{80+k}, v{80+k}, v{80+k}")
    lane_sum(list(range(80, 120)), 10)
    e("v_mul_f32 v10, 0x3acccccd, v10")
    e("v_cvt_pk_bf16_f32 v10, v10, v14")
    e("v_and_b32 v14, 0xffff0000, v10")
    e("v_lshlrev_b32 v10, 16, v10")
    e("v_add_f32 v10, 0x3727c5ac, v10")
    e("v_cvt_pk_bf16_f32 v10, v10, v10")
    e("v_lshlrev_b32 v10, 16, v10")
    e("v_sqrt_f32 v10, v10")
    e("s_nop 0")
    e("v_cvt_pk_bf16_f32 v10, v10, v10")
    e("v_lshlrev_b32 v10, 16, v10")
    e("v_rcp_f32 v11, v10")
    e("s_nop 0")
    e("v_fma_f32 v12, -v10, v11, 2.0")
    e("v_mul_f32 v11, v11, v12")
    for k in range(20):
        e(f"v_sub_f32 v{40+2*k}, v{40+2*k}, v14")
        e(f"v_sub_f32 v{41+2*k}, v{41+2*k}, v14")
        e(f"v_cvt_pk_bf16_f32 v{16+k}, v{40+2*k}, v{41+2*k}")
        e(f"v_lshlrev_b32 v{40+2*k}, 16, v{16+k}")
        e(f"v_and_b32 v{41+2*k}, 0xffff0000, v{16+k}")
        e(f"v_mul_f32 v{40+2*k}, v{40+2*k}, v11")
        e(f"v_mul_f32 v{41+2*k}, v{41+2*k}, v11")
        e(f"v_cvt_pk_bf16_f32 v{16+k}, v{40+2*k}, v{41+2*k}")
    tl(2)
    for j in range(5):
        if "xnf" not in SKIP: e(f"buffer_store_dwordx4 v[{16+4*j}:{19+4*j}], v7, s[28:31], s6 offen")
        if j < 4: e("s_add_u32 s6, s6, 8192")
    for j in range(5):
        for el in range(8):
            r = 16 + 4*j + el//2
            op = "ds_write_b16_d16_hi" if el & 1 else "ds_write_b16"
            e(f"{op} v9, v{r} offset:{(128*j + el)*LNS}")
    e("v_lshrrev_b32 v10, 1, v0")
    e("v_and_b32 v11, 1, v0")
    e(f"v_mul_u32_u24 v12, {LNS}, v10")
    e("v_lshl_add_u32 v12, v11, 4, v12")
    e("v_lshlrev_b32 v13, 4, v0")
    e("s_mul_i32 s6, s2, 20480")
    e("s_add_u32 s6, s6, %d" % WS_XNT)
    e("s_waitcnt lgkmcnt(0)")
    e("s_barrier")
    tl(3)
    for j in range(5):
        e(f"ds_read2_b32 v[{40+4*j}:{41+4*j}], v12 offset0:{(128*j*LNS)//4 % 256} offset1:{(128*j*LNS)//4 % 256 + 1}")
        e(f"ds_read2_b32 v[{42+4*j}:{43+4*j}], v12 offset0:{(128*j*LNS)//4 % 256 + 2} offset1:{(128*j*LNS)//4 % 256 + 3}")
        if j < 4:
            nxt = (128*(j+1)*LNS)//4 // 256 - (128*j*LNS)//4 // 256
            e(f"v_add_u32 v12, {nxt*1024}, v12")
    for j in range(5):
        e(f"s_waitcnt lgkmcnt({2*(4-j)})")
        if "xnt" not in SKIP: e(f"buffer_store_dwordx4 v[{40+4*j}:{43+4*j}], v13, s[28:31], s6 offen")
        if j < 4: e("s_add_u32 s6, s6, %d" % (128*32))
    tl(5)
    if TL: e("s_waitcnt vmcnt(0)")
    tl_end(0)
    e("s_endpgm")
    lab("prep_wt")
    gen_wt(KG_WGS + LN_WGS, 0, 270 if W2MID else 0, "prep_end", 0, DLYW)
    lab("prep_end")
    e("s_endpgm")
    kernel_desc("prep_kernel", 128)

G1_WGS = 256
CV_WGS = 640
W2_WGS = 68 if W2MID else 0
MID_WGS = G1_WGS + CV_WGS + W2_WGS
CS = 4160
def CB(c): return c*CS + (32 if c >= 4 else 0)
UB = CB(7) + CS - 80
G1_NS, G1_BD = int(os.environ.get('G1NS', 5)), int(os.environ.get('G1BD', 3))
MID_LDS = 40960

def mish_pairs(acc0, acc1, b0, b1r, dst, t):
    e(f"v_cvt_pk_bf16_f32 v{t}, v{acc0}, v{acc1}")
    e(f"v_lshlrev_b32 v{t+1}, 16, v{t}")
    e(f"v_and_b32 v{t+2}, 0xffff0000, v{t}")
    e(f"v_add_f32 v{t+1}, v{t+1}, v{b0}")
    e(f"v_add_f32 v{t+2}, v{t+2}, v{b1r}")
    e(f"v_cvt_pk_bf16_f32 v{t}, v{t+1}, v{t+2}")
    e(f"v_lshlrev_b32 v{t+1}, 16, v{t}")
    e(f"v_and_b32 v{t+2}, 0xffff0000, v{t}")
    e(f"v_min_f32 v{t+3}, 0x41a00000, v{t+1}")
    e(f"v_min_f32 v{t+4}, 0x41a00000, v{t+2}")
    e(f"v_mul_f32 v{t+3}, {LOG2E:#x}, v{t+3}")
    e(f"v_mul_f32 v{t+4}, {LOG2E:#x}, v{t+4}")
    e(f"v_exp_f32 v{t+3}, v{t+3}")
    e(f"v_exp_f32 v{t+4}, v{t+4}")
    e(f"s_nop 0")
    e(f"v_add_f32 v{t}, 2.0, v{t+3}")
    e(f"v_add_f32 v{t+5}, 2.0, v{t+4}")
    e(f"v_mul_f32 v{t+3}, v{t+3}, v{t}")
    e(f"v_mul_f32 v{t+4}, v{t+4}, v{t+5}")
    e(f"v_add_f32 v{t}, 2.0, v{t+3}")
    e(f"v_add_f32 v{t+5}, 2.0, v{t+4}")
    e(f"v_rcp_f32 v{t}, v{t}")
    e(f"v_rcp_f32 v{t+5}, v{t+5}")
    e(f"v_mul_f32 v{t+1}, v{t+1}, v{t+3}")
    e(f"v_mul_f32 v{t+2}, v{t+2}, v{t+4}")
    e(f"v_mul_f32 v{t+1}, v{t+1}, v{t}")
    e(f"v_mul_f32 v{t+2}, v{t+2}, v{t+5}")
    e(f"v_cvt_pk_bf16_f32 v{dst}, v{t+1}, v{t+2}")

def gemm_loop(nA, nsteps, KS, NS, frag_reg, acc_reg, voff, srdws, sA0, sB0, stride, spiece, vlds_r_b, vlds_r_lane):
    nR = nA + 4
    npieces = nR * KS
    npw = (npieces + 3) // 4
    SZ = npieces * 1024
    nchunks = nsteps // KS
    assert nsteps % KS == 0
    e(f"s_sub_u32 s{sB0}, s{sB0}, {nA*stride}")
    for i in range(npw):
        g, l = spiece + 2*i, spiece + 2*i + 1
        e(f"s_add_u32 s{l}, s3, {4*i}")
        e(f"s_min_u32 s{l}, s{l}, {npieces-1}")
        sh = {1: 0, 2: 1, 4: 2}[KS]
        e(f"s_lshr_b32 s{g}, s{l}, {sh}")
        e(f"s_cmp_lt_u32 s{g}, {nA}")
        e(f"s_cselect_b32 s6, s{sA0}, s{sB0}")
        e(f"s_mul_i32 s{g}, s{g}, {stride}")
        e(f"s_add_u32 s{g}, s{g}, s6")
        e(f"s_and_b32 s6, s{l}, {KS-1}")
        e(f"s_lshl_b32 s6, s6, 10")
        e(f"s_add_u32 s{g}, s{g}, s6")
        e(f"s_lshl_b32 s{l}, s{l}, 10")
    def dma(c):
        slot = c % NS
        for i in range(npw):
            e(f"s_add_u32 m0, s{spiece+2*i+1}, {slot*SZ}")
            e("s_nop 0")
            e(f"buffer_load_dwordx4 v{voff}, s[{srdws}:{srdws+3}], s{spiece+2*i} offen lds")
        e(f"v_add_u32 v{voff}, {KS*1024}, v{voff}")
    per = nA + 1
    HALF = 2*SZ
    e(f"v_add_u32 v12, {HALF}, v{vlds_r_b}")
    e(f"v_add_u32 v13, {HALF}, v{vlds_r_lane}")
    e(f"v_add_u32 v14, {2*HALF}, v{vlds_r_b}")
    e(f"v_add_u32 v15, {2*HALF}, v{vlds_r_lane}")
    def reads(slot, q):
        fr = frag_reg + 4*per*q
        vb, vl, so = [(vlds_r_b, vlds_r_lane, slot*SZ), (12, 13, slot*SZ - HALF), (14, 15, slot*SZ - 2*HALF)][slot//2]
        e(f"ds_read_b128 v[{fr}:{fr+3}], v{vb} offset:{so + q*1024}")
        for a in range(nA):
            e(f"ds_read_b128 v[{fr+4+4*a}:{fr+7+4*a}], v{vl} offset:{so + a*KS*1024 + q*1024}")
    def mfmas(q):
        fr = frag_reg + 4*per*q
        for a in range(nA):
            ac = acc_reg + 16*a
            e(f"v_mfma_f32_32x32x16_bf16 v[{ac}:{ac+15}], v[{fr+4+4*a}:{fr+7+4*a}], v[{fr}:{fr+3}], v[{ac}:{ac+15}]")
    for c in range(min(NS-1, nchunks)):
        dma(c)
    for c in range(nchunks):
        inflight = min(NS-2, nchunks-1-c)
        e(f"s_waitcnt vmcnt({inflight*npw})")
        e("s_barrier")
        if nA == 2 and c == 0: stamp(2)
        if nA == 2 and c == 1: stamp(3)
        slot = c % NS
        if "rd" not in SKIP:
            for q in range(KS):
                reads(slot, q)
        if c + NS - 1 < nchunks and "dma" not in SKIP:
            dma(c + NS - 1)
        for q in range(KS):
            e(f"s_waitcnt lgkmcnt({(KS-1-q)*per})")
            if "mf" not in SKIP: mfmas(q)

def gen_mid():
    kernel_begin("mid_kernel")
    e("s_cmp_ge_u32 s2, %d" % MID_WGS)
    e("s_cbranch_scc1 mid_end")
    tl_begin()
    e("s_load_dwordx2 s[56:57], s[0:1], 104")
    e("s_load_dwordx2 s[58:59], s[0:1], 72")
    e("s_load_dwordx2 s[60:61], s[0:1], 48")
    e("v_lshrrev_b32 v1, 6, v0")
    e("v_and_b32 v2, 63, v0")
    e("s_nop 0")
    e("v_readfirstlane_b32 s3, v1")
    e("s_waitcnt lgkmcnt(0)")
    srd(28, 56, WS_SIZE)
    if W2MID:
        e("s_cmp_ge_u32 s2, %d" % (G1_WGS + CV_WGS))
        e("s_cbranch_scc1 mid_wt")
    e("s_cmp_ge_u32 s2, %d" % G1_WGS)
    e("s_cbranch_scc1 mid_conv")
    if "g1" in SKIP: e("s_endpgm")
    if PRIO & 4: e("s_setprio 3")
    srd(8, 58, F*2)
    tl(1)
    claim_tile(0, 32, 7168*G1_NS, "mcl")
    tl(2)
    if G1MAP == 0:
        e("s_lshr_b32 s5, s2, 4")
        e("s_and_b32 s4, s2, 15")
    else:
        e("s_lshr_b32 s5, s2, 6")
        e("s_lshl_b32 s5, s5, 2")
        e("s_bfe_u32 s6, s2, 0x20003")
        e("s_add_u32 s5, s5, s6")
        e("s_bfe_u32 s4, s2, 0x10005")
        e("s_lshl_b32 s4, s4, 3")
        e("s_and_b32 s6, s2, 7")
        e("s_add_u32 s4, s4, s6")
    e("s_mul_i32 s6, s4, 7")
    e("s_sub_u32 s7, s4, 12")
    e("s_cmp_lt_u32 s4, 12")
    e("s_cselect_b32 s7, 0, s7")
    e("s_cselect_b32 s26, 7, 6")
    e("s_sub_u32 s4, s6, s7")
    e("v_and_b32 v3, 15, v2")
    e("v_lshrrev_b32 v4, 4, v2")
    e("v_lshrrev_b32 v5, 1, v4")
    e("v_and_b32 v6, 1, v4")
    e("v_lshlrev_b32 v7, 4, v3")
    e("v_lshl_add_u32 v7, v5, 10, v7")
    e("v_lshl_add_u32 v7, v6, 9, v7")
    e("v_mov_b32 v8, v7")
    for k in range(2):
        e(f"s_add_u32 s6, s3, {4*k}")
        e("s_min_u32 s6, s6, 6")
        e(f"s_lshl_b32 s{42+k}, s6, 10")
        e("s_add_u32 s6, s6, s4")
        e("s_min_u32 s6, s6, 107")
        e(f"s_lshr_b32 s{40+k}, s6, 1")
        e(f"s_mul_i32 s{40+k}, s{40+k}, {40*1024}")
        e("s_and_b32 s6, s6, 1")
        e("s_lshl_b32 s6, s6, 8")
        e(f"s_add_u32 s{40+k}, s{40+k}, s6")
        e(f"s_add_u32 s{40+k}, s{40+k}, {WS_W1F}")
    e("s_lshl_b32 s6, s5, 2")
    e("s_add_u32 s27, s6, s3")
    e("s_mul_i32 s44, s27, %d" % (40*1024))
    e("s_add_u32 s44, s44, %d" % WS_XNF)
    e("v_lshlrev_b32 v9, 4, v2")
    NS, BD, NSTEP = G1_NS, G1_BD, 20
    AF, BF, ACC, BI = 16, 44, 44 + 8*G1_BD, 44
    pend = []
    def dma(st):
        for k in range(2):
            e(f"s_add_u32 m0, s{42+k}, {(st % NS)*7168}")
            e("s_nop 0")
            e(f"buffer_load_dwordx4 v7, s[28:31], s{40+k} offen lds")
            pend.append(("a", st))
        e("v_add_u32 v7, 2048, v7")
    def bld(st):
        r = BF + 8*(st % BD)
        e(f"buffer_load_dwordx4 v[{r}:{r+3}], v8, s[28:31], s44 offen")
        e(f"buffer_load_dwordx4 v[{r+4}:{r+7}], v8, s[28:31], s44 offen offset:256")
        pend.append(("b", st)); pend.append(("b", st))
        e("v_add_u32 v8, 2048, v8")
    def wait_for(*tags):
        idx = [i for i, p in enumerate(pend) if p in tags]
        if not idx: return
        last = max(idx)
        e(f"s_waitcnt vmcnt({len(pend) - 1 - last})")
        del pend[:last+1]
    def rdA(st, t):
        e(f"ds_read_b128 v[{AF+4*t}:{AF+4*t+3}], v9 offset:{(st % NS)*7168 + 1024*t}")
    for st in range(max(NS-1, BD)):
        if st < NS-1: dma(st)
        if st < BD: bld(st)
    e("s_lshl_b32 s6, s4, 5")
    e("v_lshl_add_u32 v10, v4, 3, s6")
    for r in range(ACC, ACC+56):
        e(f"v_mov_b32 v{r}, 0")
    wait_for(("a", 0))
    e("s_barrier")
    tl(3)
    for t in range(7): rdA(0, t)
    for st in range(NSTEP):
        if st + 1 < NSTEP:
            wait_for(("a", st+1), ("b", st))
            e("s_barrier")
            if st - 1 + NS < NSTEP: dma(st - 1 + NS)
        else:
            wait_for(("b", st))
        rb = BF + 8*(st % BD)
        for t in range(7):
            e(f"s_waitcnt lgkmcnt({6 if st + 1 < NSTEP else 6 - t})")
            for b_ in range(2):
                ac = ACC + 4*(2*t + b_)
                e(f"v_mfma_f32_16x16x32_bf16 v[{ac}:{ac+3}], v[{AF+4*t}:{AF+4*t+3}], v[{rb+4*b_}:{rb+4*b_+3}], v[{ac}:{ac+3}]")
            if st + 1 < NSTEP: rdA(st+1, t)
        if st + BD < NSTEP: bld(st + BD)
        if st == NSTEP - 2:
            assert BD == 3
            free = [BF + 8*((NSTEP-3) % BD), BF + 8*((NSTEP-2) % BD)]
            BIr = [free[0] + 2*k for k in range(4)] + [free[1] + 2*k for k in range(3)]
            for t in range(7):
                e(f"buffer_load_dwordx2 v[{BIr[t]}:{BIr[t]+1}], v10, s[8:11], 0 offen offset:{32*t}")
                pend.append(("c", 0))
    e("s_nop 7")
    e("s_waitcnt vmcnt(0)")
    tl(4)
    e("s_mul_i32 s6, s27, 108")
    e("s_add_u32 s6, s6, s4")
    e("s_lshl_b32 s6, s6, 10")
    e("s_add_u32 s6, s6, %d" % WS_ACT)
    e("v_lshlrev_b32 v9, 4, v3")
    e("v_lshl_add_u32 v9, v5, 9, v9")
    e("v_lshl_add_u32 v9, v6, 3, v9")
    T = 16
    for t in range(7):
        if t == 6:
            e("s_cmp_lt_u32 s26, 7")
            e("s_cbranch_scc1 g1_end")
        r = BIr[t]
        e(f"v_lshlrev_b32 v{T}, 16, v{r}")
        e(f"v_and_b32 v{T+1}, 0xffff0000, v{r}")
        e(f"v_lshlrev_b32 v{T+2}, 16, v{r+1}")
        e(f"v_and_b32 v{T+3}, 0xffff0000, v{r+1}")
        for b_ in range(2):
            ac = ACC + 4*(2*t + b_)
            d0 = T + 16 + 2*((2*t + b_) % 4)
            mish_pairs(ac, ac+1, T, T+1, d0, T+4)
            mish_pairs(ac+2, ac+3, T+2, T+3, d0+1, T+10)
            off = (t % 4)*1024 + 256*b_
            e(f"buffer_store_dwordx2 v[{d0}:{d0+1}], v9, s[28:31], s6 offen offset:{off}")
        if t == 3: e("s_add_u32 s6, s6, 4096")
    lab("g1_end")
    tl(5)
    if TL: e("s_waitcnt vmcnt(0)")
    tl_end(1)
    e("s_endpgm")
    lab("mid_conv")
    if "cv" in SKIP: e("s_endpgm")
    if PRIO & 8: e("s_setprio 3")
    srd(8, 60, D*2)
    e("s_sub_u32 s4, s2, %d" % G1_WGS)
    e("s_and_b32 s5, s4, 7")
    e("s_lshl_b32 s5, s5, 2")
    e("s_bfe_u32 s6, s4, 0x20003")
    e("s_or_b32 s5, s5, s6")
    e("s_andn2_b32 s4, s4, 31")
    e("s_or_b32 s4, s4, s5")
    e("s_lshl_b32 s5, s4, 1")
    e("v_mov_b32 v3, s5")
    e("buffer_load_ushort v1, v3, s[8:11], 0 offen")
    e("s_lshl_b32 s5, s4, 5")
    e("s_add_u32 s5, s5, %d" % WS_XNT)
    e("v_lshrrev_b32 v4, 1, v0")
    e("v_mul_u32_u24 v4, 20480, v4")
    e("v_and_b32 v5, 1, v0")
    e("v_lshl_add_u32 v4, v5, 4, v4")
    e("buffer_load_dwordx4 v[8:11], v4, s[28:31], s5 offen")
    e("v_lshlrev_b32 v4, 4, v0")
    e("s_mul_i32 s6, s4, %d" % KR_STRIDE)
    e("s_add_u32 s6, s6, %d" % WS_KR)
    e("buffer_load_dwordx4 v[12:15], v4, s[28:31], s6 offen")
    e("buffer_load_dwordx4 v[16:19], v4, s[28:31], s6 offen offset:16")
    e("v_min_u32 v5, 3, v0")
    e("v_lshlrev_b32 v5, 4, v5")
    e("v_add_u32 v5, 4096, v5")
    e("buffer_load_dwordx4 v[20:23], v5, s[28:31], s6 offen")
    e("buffer_load_dwordx4 v[24:27], v5, s[28:31], s6 offen offset:16")
    for k in range(4):
        e(f"v_mov_b32 v{28+k}, 0")
    e("v_min_u32 v6, 154, v0")
    e("v_lshlrev_b32 v6, 4, v6")
    e(f"ds_write_b128 v6, v[28:31] offset:{UB + 80}")
    e("v_lshrrev_b32 v6, 2, v0")
    e("v_mul_u32_u24 v6, 80, v6")
    e("v_and_b32 v7, 3, v0")
    e("v_lshl_add_u32 v6, v7, 4, v6")
    e("s_waitcnt vmcnt(4)")
    e(f"ds_write_b128 v6, v[8:11] offset:{UB + 32*80}")
    def copies(w, vaddr):
        for c in range(8):
            if c % 2 == 0:
                e(f"ds_write_b128 v{vaddr}, v[{w+c//2}:{w+c//2+3}] offset:{CB(c)}") if (w + c//2) % 2 == 0 else None
                if (w + c//2) % 2:
                    for j in range(4):
                        e(f"v_mov_b32 v{32+j}, v{w+c//2+j}")
                    e(f"ds_write_b128 v{vaddr}, v[32:35] offset:{CB(c)}")
            else:
                for j in range(4):
                    e(f"v_alignbit_b32 v{36+j}, v{w+(c+1)//2+j}, v{w+(c-1)//2+j}, 16")
                e(f"ds_write_b128 v{vaddr}, v[36:39] offset:{CB(c)}")
    e("s_waitcnt vmcnt(2)")
    copies(12, 4)
    e("s_waitcnt vmcnt(0)")
    copies(20, 5)
    e("s_waitcnt lgkmcnt(0)")
    tl(2)
    e("s_barrier")
    tl(3)
    e("v_and_b32 v3, 31, v2")
    e("v_lshrrev_b32 v4, 5, v2")
    e("v_sub_u32 v5, 7, v3")
    e("v_and_b32 v5, 7, v5")
    e("v_sub_u32 v6, 2047, v3")
    e("v_lshl_add_u32 v6, v4, 3, v6")
    e("v_sub_u32 v6, v6, v5")
    e("v_mul_u32_u24 v7, %d, v5" % CS)
    e("v_lshrrev_b32 v8, 2, v5")
    e("v_lshl_add_u32 v7, v8, 5, v7")
    e("v_lshl_add_u32 v6, v6, 1, v7")
    e("v_mul_u32_u24 v7, 80, v3")
    e("v_lshl_add_u32 v7, v4, 4, v7")
    e(f"v_add_u32 v7, {UB + 32*80}, v7")
    for r in range(16, 48):
        e(f"v_mov_b32 v{r}, 0")
    e("s_lshl_b32 s5, s3, 9")
    e(f"s_add_u32 s5, s5, {64*7 + 64*32}")
    e("v_subrev_u32 v8, s5, v6")
    e("s_mul_i32 s5, s3, 640")
    e(f"s_add_u32 s5, s5, {80*7}")
    e("v_subrev_u32 v9, s5, v7")
    def rd(q):
        base = 48 + (q & 1)*32
        for t in range(2):
            fa = base + 16*t
            e(f"ds_read_b128 v[{fa}:{fa+3}], v8 offset:{64*(7-q) + 2048 + 32*t}")
            e(f"ds_read_b128 v[{fa+4}:{fa+7}], v9 offset:{80*(7-q) + 32*t}")
            e(f"ds_read_b128 v[{fa+8}:{fa+11}], v9 offset:{80*(7-q) + 2560 + 32*t}")
            e(f"ds_read_b128 v[{fa+12}:{fa+15}], v8 offset:{64*(7-q) + 32*t}")
    def mm(q):
        base = 48 + (q & 1)*32
        for t in range(2):
            fa = base + 16*t
            e(f"v_mfma_f32_32x32x16_bf16 v[16:31], v[{fa}:{fa+3}], v[{fa+4}:{fa+7}], v[16:31]")
            e(f"v_mfma_f32_32x32x16_bf16 v[32:47], v[{fa}:{fa+3}], v[{fa+8}:{fa+11}], v[32:47]")
            e(f"v_mfma_f32_32x32x16_bf16 v[32:47], v[{fa+12}:{fa+15}], v[{fa+4}:{fa+7}], v[32:47]")
    rd(0)
    for q in range(8):
        if q < 7:
            rd(q + 1)
            e("s_waitcnt lgkmcnt(8)")
        else:
            e("s_waitcnt lgkmcnt(0)")
        mm(q)
    tl(4)
    e("s_nop 15")
    e("s_barrier")
    e("v_lshlrev_b32 v10, 4, v2")
    e("s_cmp_eq_u32 s3, 0")
    e("s_cbranch_scc1 cv_w0")
    e("s_sub_u32 s5, s3, 1")
    e("s_lshl_b32 s5, s5, 12")
    e("v_add_u32 v11, s5, v10")
    for r in range(4):
        e(f"ds_write_b128 v11, v[{16+4*r}:{19+4*r}] offset:{1024*r}")
    lab("cv_w0")
    e("s_cmp_eq_u32 s3, 1")
    e("s_cbranch_scc1 cv_w1")
    e("s_sub_u32 s5, s3, 1")
    e("s_max_i32 s5, s5, 0")
    e("s_lshl_b32 s5, s5, 12")
    e("v_add_u32 v11, s5, v10")
    for r in range(4):
        e(f"ds_write_b128 v11, v[{32+4*r}:{35+4*r}] offset:{12288 + 1024*r}")
    e("s_branch cv_w2")
    lab("cv_w1")
    for r in range(16):
        e(f"v_mov_b32 v{16+r}, v{32+r}")
    e("v_add_u32 v10, 12288, v10")
    lab("cv_w2")
    e("s_waitcnt lgkmcnt(0)")
    e("s_barrier")
    e("s_cmp_ge_u32 s3, 2")
    e("s_cbranch_scc1 mid_end")
    for sl in range(3):
        for r in range(4):
            e(f"ds_read_b128 v[{48+16*sl+4*r}:{51+16*sl+4*r}], v10 offset:{4096*sl + 1024*r}")
    for sl in range(3):
        e(f"s_waitcnt lgkmcnt({8-4*sl})")
        for r in range(16):
            e(f"v_add_f32 v{16+r}, v{16+r}, v{48+16*sl+r}")
    lab("cv_epi")
    e("s_mul_i32 s5, s3, %d" % (32*80))
    e("v_mul_u32_u24 v11, 80, v3")
    e("v_lshl_add_u32 v11, v4, 3, v11")
    e("v_add_u32 v11, s5, v11")
    for g in range(4):
        e(f"ds_read_b64 v[{32+2*g}:{33+2*g}], v11 offset:{UB + 32*80 + 16*g}")
    e("s_lshl_b32 s5, s4, 12")
    e("s_lshl_b32 s6, s3, 11")
    e("s_add_u32 s5, s5, s6")
    e("s_add_u32 s5, s5, %d" % WS_AT)
    e("v_lshlrev_b32 v12, 6, v3")
    e("v_lshl_add_u32 v12, v4, 3, v12")
    e("s_waitcnt vmcnt(0) lgkmcnt(0)")
    e("v_lshlrev_b32 v1, 16, v1")
    for g in range(4):
        for p in range(2):
            u = 32 + 2*g + p
            y0 = 16 + 4*g + 2*p
            e(f"v_lshlrev_b32 v44, 16, v{u}")
            e(f"v_and_b32 v45, 0xffff0000, v{u}")
            e(f"v_mul_f32 v44, v44, v1")
            e(f"v_mul_f32 v45, v45, v1")
            e(f"v_cvt_pk_bf16_f32 v44, v44, v45")
            e(f"v_cvt_pk_bf16_f32 v46, v{y0}, v{y0+1}")
            e(f"v_lshlrev_b32 v47, 16, v44")
            e(f"v_and_b32 v48, 0xffff0000, v44")
            e(f"v_lshlrev_b32 v49, 16, v46")
            e(f"v_and_b32 v50, 0xffff0000, v46")
            e(f"v_add_f32 v47, v47, v49")
            e(f"v_add_f32 v48, v48, v50")
            e(f"v_cvt_pk_bf16_f32 v{52+2*g+p}, v47, v48")
        e(f"buffer_store_dwordx2 v[{52+2*g}:{53+2*g}], v12, s[28:31], s5 offen offset:{16*g}")
    tl(5)
    if TL: e("s_waitcnt vmcnt(0)")
    tl_end(1)
    if W2MID:
        e("s_endpgm")
        lab("mid_wt")
        gen_wt(G1_WGS + CV_WGS, 270, 540, "mid_end", 1, 0)
    lab("mid_end")
    e("s_endpgm")
    kernel_desc("mid_kernel", 128)

G2_WGS = 256
FIN_LDS = 61440 + 64
FDEPTH = int(os.environ.get('FDEPTH', 4))
def gen_fin():
    kernel_begin("fin_kernel")
    e("s_cmp_ge_u32 s2, %d" % G2_WGS)
    e("s_cbranch_scc1 fin_end")
    e("s_load_dwordx2 s[56:57], s[0:1], 104")
    e("s_load_dwordx2 s[58:59], s[0:1], 0")
    e("s_load_dwordx2 s[60:61], s[0:1], 88")
    e("v_lshrrev_b32 v1, 6, v0")
    e("v_and_b32 v2, 63, v0")
    e("s_nop 0")
    e("v_readfirstlane_b32 s3, v1")
    if "xcc" in SKIP:
        e("s_and_b32 s5, s2, 31")
        e("s_lshr_b32 s4, s2, 5")
    else:
        e("s_waitcnt lgkmcnt(0)")
        srd(28, 56, WS_SIZE)
        claim_tile(512, 32, 61440, "fcl")
        if FMAP == 0:
            e("s_lshr_b32 s5, s2, 5")
            e("s_lshl_b32 s5, s5, 2")
            e("s_and_b32 s6, s2, 3")
            e("s_add_u32 s5, s5, s6")
            e("s_bfe_u32 s4, s2, 0x30002")
        else:
            e("s_lshr_b32 s5, s2, 6")
            e("s_lshl_b32 s5, s5, 3")
            e("s_and_b32 s6, s2, 7")
            e("s_add_u32 s5, s5, s6")
            e("s_bfe_u32 s4, s2, 0x10005")
            e("s_lshl_b32 s4, s4, 2")
            e("s_bfe_u32 s6, s2, 0x20003")
            e("s_add_u32 s4, s4, s6")
    e("v_and_b32 v3, 15, v2")
    e("v_lshrrev_b32 v4, 4, v2")
    e("v_lshrrev_b32 v5, 1, v4")
    e("v_and_b32 v6, 1, v4")
    e("v_lshlrev_b32 v7, 4, v3")
    e("v_lshl_add_u32 v7, v5, 10, v7")
    e("v_lshl_add_u32 v7, v6, 9, v7")
    e("s_lshl_b32 s6, s3, 11")
    e("v_add_u32 v7, s6, v7")
    e("s_mul_i32 s6, s4, 5")
    for a_ in range(5):
        e(f"s_add_u32 s7, s6, {a_}")
        e(f"s_lshr_b32 s{40+a_}, s7, 1")
        e(f"s_mul_i32 s{40+a_}, s{40+a_}, {108*1024}")
        e(f"s_and_b32 s7, s7, 1")
        e(f"s_lshl_b32 s7, s7, 8")
        e(f"s_add_u32 s{40+a_}, s{40+a_}, s7")
        e(f"s_add_u32 s{40+a_}, s{40+a_}, {WS_W2F}")
    e("s_mul_i32 s6, s5, %d" % (2*108*1024))
    e("s_add_u32 s45, s6, %d" % WS_ACT)
    e("s_add_u32 s46, s45, 256")
    e("s_add_u32 s47, s45, %d" % (108*1024))
    e("s_add_u32 s48, s47, 256")
    e("s_waitcnt lgkmcnt(0)")
    srd(28, 56, WS_SIZE); srd(8, 58, L*D*2); srd(12, 60, L*D*2)
    FR = 16
    ACC = 0
    EP = FR + 36*FDEPTH
    pend = []
    def issue(m):
        base = FR + 36*(m % FDEPTH)
        for t in range(9):
            e(f"buffer_load_dwordx4 v[{base+4*t}:{base+4*t+3}], v7, s[28:31], s{40+t} offen")
            pend.append(("f", m))
        e("v_add_u32 v7, 8192, v7")
    def wait_for(tag):
        last = max(i for i, p in enumerate(pend) if p == tag)
        n = len(pend) - 1 - last
        e(f"s_waitcnt vmcnt({n})")
        del pend[:last+1]
    NST = 14
    for m in range(FDEPTH):
        issue(m)
    e("s_lshl_b32 s6, s5, 6")
    e("s_lshl_b32 s7, s3, 4")
    e("s_add_u32 s6, s6, s7")
    e("v_add_u32 v8, s6, v3")
    e("v_mul_u32_u24 v9, 1280, v8")
    e("v_lshl_add_u32 v9, v4, 3, v9")
    e("s_mul_i32 s6, s4, 160")
    e("v_add_u32 v9, s6, v9")
    for a_ in range(5):
        e(f"buffer_load_dwordx2 v[{EP+2*a_}:{EP+2*a_+1}], v9, s[8:11], 0 offen offset:{32*a_}")
        pend.append(("e", 0))
    e("v_lshlrev_b32 v10, 14, v4")
    e("v_lshl_add_u32 v10, v8, 1, v10")
    e("s_mul_i32 s6, s4, %d" % (80*4096))
    e("s_add_u32 s6, s6, %d" % WS_AT)
    for a_ in range(5):
        for j in range(4):
            e(f"buffer_load_ushort v{EP+10+4*a_+j}, v10, s[28:31], s6 offen")
            pend.append(("e", 0))
            e("s_add_u32 s6, s6, %d" % (4096 if j < 3 else 4096*13))
    for r in range(ACC, ACC+80):
        e(f"v_accvgpr_write_b32 a{r}, 0")
    for m in range(NST):
        if m == NST - 1:
            e("s_cmp_ge_u32 s3, 2")
            e("s_cbranch_scc1 fin_red")
        wait_for(("f", m))
        base = FR + 36*(m % FDEPTH)
        for b_ in range(4):
            for a_ in range(5):
                ac = ACC + 4*(5*b_ + a_)
                e(f"v_mfma_f32_16x16x32_bf16 a[{ac}:{ac+3}], v[{base+4*a_}:{base+4*a_+3}], v[{base+20+4*b_}:{base+23+4*b_}], a[{ac}:{ac+3}]")
        if m + FDEPTH < NST:
            if m + FDEPTH == NST - 1:
                e("s_cmp_ge_u32 s3, 2")
                e("s_cselect_b32 s6, 8192, 0")
                e("v_subrev_u32 v7, s6, v7")
            issue(m + FDEPTH)
    lab("fin_red")
    e("s_nop 15")
    e("s_waitcnt vmcnt(0)")
    e("v_lshlrev_b32 v11, 4, v2")
    for w in range(4):
        if w < 3:
            e(f"s_cmp_lg_u32 s3, {w}")
            e(f"s_cbranch_scc1 fin_w{w+1}")
        for b_ in range(4):
            if b_ == w: continue
            slot = w if w < b_ else w - 1
            for a_ in range(5):
                ac = ACC + 4*(5*b_ + a_)
                e(f"ds_write_b128 v11, a[{ac}:{ac+3}] offset:{(b_*3 + slot)*5120 + a_*1024}")
        for r in range(20):
            e(f"v_accvgpr_read_b32 v{16+r}, a{ACC+20*w+r}")
        if w < 3:
            e("s_branch fin_rd")
            lab(f"fin_w{w+1}")
    lab("fin_rd")
    e("s_mul_i32 s6, s3, %d" % (3*5120))
    e("v_add_u32 v11, s6, v11")
    e("s_waitcnt lgkmcnt(0)")
    e("s_barrier")
    for sl in range(3):
        for a_ in range(5):
            r = 36 + 20*sl + 4*a_
            e(f"ds_read_b128 v[{r}:{r+3}], v11 offset:{sl*5120 + a_*1024}")
    for sl in range(3):
        e(f"s_waitcnt lgkmcnt({10-5*sl})")
        for r in range(20):
            e(f"v_add_f32 v{16+r}, v{16+r}, v{36+20*sl+r}")
    e("s_waitcnt vmcnt(0)")
    for a_ in range(5):
        rx = EP + 2*a_
        ra = EP + 10 + 4*a_
        for p in range(2):
            ac = 16 + 4*a_ + 2*p
            e(f"v_lshlrev_b32 v96, 16, v{rx+p}")
            e(f"v_and_b32 v97, 0xffff0000, v{rx+p}")
            e(f"v_lshlrev_b32 v98, 16, v{ra+2*p}")
            e(f"v_lshlrev_b32 v99, 16, v{ra+2*p+1}")
            e(f"v_add_f32 v96, v96, v98")
            e(f"v_add_f32 v97, v97, v99")
            e(f"v_cvt_pk_bf16_f32 v96, v96, v97")
            e(f"v_cvt_pk_bf16_f32 v98, v{ac}, v{ac+1}")
            e(f"v_lshlrev_b32 v100, 16, v96")
            e(f"v_and_b32 v101, 0xffff0000, v96")
            e(f"v_lshlrev_b32 v102, 16, v98")
            e(f"v_and_b32 v103, 0xffff0000, v98")
            e(f"v_add_f32 v100, v100, v102")
            e(f"v_add_f32 v101, v101, v103")
            e(f"v_cvt_pk_bf16_f32 v{rx+p}, v100, v101")
        e(f"buffer_store_dwordx2 v[{rx}:{rx+1}], v9, s[12:15], 0 offen offset:{32*a_}")
    lab("fin_end")
    e("s_endpgm")
    kernel_desc("fin_kernel", ((EP + 30) + 7)//8*8, agpr=80)

hdr = open("cdna_kernels/%s.s.ref" % NAME).read().split("; Override launch")[0]
text = hdr
text += f"; @launch kernel=prep_kernel grid=({PREP_WGS},1,1) block=(256,1,1) lds={PREP_LDS}\n"
text += f"; @launch kernel=mid_kernel grid=({MID_WGS},1,1) block=(256,1,1) lds={MID_LDS}\n"
text += f"; @launch kernel=fin_kernel grid=({G2_WGS},1,1) block=(256,1,1) lds={FIN_LDS}\n"
text += '.amdgcn_target "amdgcn-amd-amdhsa--gfx950"\n'
gen_prep(); gen_mid(); gen_fin()
_o = []; _in = False
for _l in out:
    if _l.startswith("fin_kernel:"): _in = True
    if _l.strip().startswith("buffer_store") and not _in and "nosc" not in SKIP: _l += " sc1"
    _o.append(_l)
out = _o
text += "\n".join(out) + "\n"
dst = sys.argv[1] if len(sys.argv) > 1 else "cdna_kernels/%s.s" % NAME
open(dst, "w").write(text)
print("wrote", dst, len(text))
```

```python
import sys, os
SKIP = os.environ.get("SKIP", "").split(",")
ORDER = int(os.environ.get("ORDER", 0))
PRIO = int(os.environ.get("PRIO", 3))
W2MID = int(os.environ.get("W2MID", 0))
MISH2 = int(os.environ.get("MISH2", 0))
DLYC = int(os.environ.get("DLYC", 24))
G1MAP = int(os.environ.get("G1MAP", 1))
FMAP = int(os.environ.get("FMAP", 1))
DLYL = int(os.environ.get("DLYL", 16))
DLYW = int(os.environ.get("DLYW", 24))
NAME = "parallel_sum__ssm_conv_s4d__dense_activation_mish__prompt"
L, D, N, F = 2048, 640, 128, 1728
WS_XNF = 0x0000000
WS_XNT = 0x0280000
WS_W1F = 0x0500000
WS_W2F = WS_W1F + 2160 * 1024
WS_KR = 0x0A00000
KR_STRIDE = 4224
WS_ACT = 0x0D00000
WS_AT = 0x1400000
WS_CNT = 0x1700000
WS_SIZE = 268435456
LOG2E = 0x3fb8aa3b
INV2PI = 0x3e22f983

out = []
def e(s):
    out.append("    " + s)
def lab(s):
    out.append(s + ":")
def cm(s):
    out.append("    ; " + s)

STAMP = os.environ.get("STAMP")
def stamp_init():
    if not STAMP: return
    e("s_load_dwordx2 s[84:85], s[0:1], 96")
    e("s_waitcnt lgkmcnt(0)")
    e("s_mov_b32 s80, s84"); e("s_and_b32 s81, s85, 0xffff"); e("s_mov_b32 s82, 256"); e("s_mov_b32 s83, 0x00020000")
def stamp(i):
    if not STAMP: return
    e("s_memtime s[86:87]")
    e("s_waitcnt lgkmcnt(0)")
    e(f"s_cmp_lg_u32 s2, {int(STAMP)}")
    e(f"s_cbranch_scc1 st_{stamp.n}")
    e(f"v_mov_b32 v255, s86")
    e(f"v_lshrrev_b32 v254, 6, v0")
    e(f"v_lshlrev_b32 v254, 6, v254")
    e(f"v_add_u32 v254, {4*i}, v254")
    e(f"buffer_store_dword v255, v254, s[80:83], 0 offen")
    lab(f"st_{stamp.n}")
    stamp.n += 1
stamp.n = 0


TL = os.environ.get("TL")
WS_TL = 0x1800000
def tl(i):
    if not TL: return
    e("s_memrealtime s[80:81]")
    e("s_waitcnt lgkmcnt(0)")
    e(f"s_mov_b32 s{84+i}, s80")
def tl_begin():
    if not TL: return
    e("s_mov_b32 s83, s2")
    for i in range(8): e(f"s_mov_b32 s{84+i}, 0")
    tl(0)
def tl_end(kern):
    if not TL: return
    tl(7)
    e("s_cmp_lg_u32 s3, 0")
    e(f"s_cbranch_scc1 tle_{tl_end.n}")
    e("s_lshl_b32 s83, s83, 5")
    e(f"s_add_u32 s83, s83, {WS_TL + kern*65536}")
    e("v_mov_b32 v1, 0")
    for i in range(8):
        e(f"v_mov_b32 v0, s{84+i}")
        e(f"buffer_store_dword v0, v1, s[28:31], s83 offen offset:{4*i}")
    lab(f"tle_{tl_end.n}")
    tl_end.n += 1
tl_end.n = 0

def srd(dst, ptr, size):
    e(f"s_mov_b32 s{dst}, s{ptr}")
    e(f"s_and_b32 s{dst+1}, s{ptr+1}, 0xffff")
    e(f"s_mov_b32 s{dst+2}, {size}")
    e(f"s_mov_b32 s{dst+3}, 0x00020000")

def kernel_begin(name):
    out.append(".text")
    out.append(f".globl {name}")
    out.append(".p2align 8")
    out.append(f".type {name},@function")
    lab(name)

def kernel_desc(name, vgpr, sgpr=96, agpr=0):
    if STAMP: vgpr = 256
    out.append('.section .rodata,"a"')
    out.append(".p2align 6")
    out.append(f".amdhsa_kernel {name}")
    out.append(f"  .amdhsa_next_free_vgpr {vgpr + agpr}")
    out.append(f"  .amdhsa_next_free_sgpr {sgpr}")
    out.append(f"  .amdhsa_accum_offset {(vgpr+3)//4*4}")
    out.append("  .amdhsa_group_segment_fixed_size 0")
    out.append("  .amdhsa_kernarg_size 112")
    out.append("  .amdhsa_user_sgpr_count 2")
    out.append("  .amdhsa_user_sgpr_kernarg_segment_ptr 1")
    out.append("  .amdhsa_system_sgpr_workgroup_id_x 1")
    out.append(".end_amdhsa_kernel")


def claim_tile(cnt_off, per, lds_off, lbl):
    e("s_cmp_lg_u32 s3, 0")
    e(f"s_cbranch_scc1 {lbl}_w")
    e("s_getreg_b32 s20, hwreg(HW_REG_XCC_ID)")
    e("s_and_b32 s20, s20, 7")
    e("s_mov_b32 s21, 0")
    e("s_mov_b64 s[22:23], exec")
    e("s_mov_b64 exec, 1")
    e("v_mov_b32 v12, 1")
    lab(f"{lbl}_l")
    e("s_lshl_b32 s24, s20, 6")
    e(f"s_add_u32 s24, s24, {WS_CNT + cnt_off}")
    e("v_mov_b32 v13, 0")
    e("v_mov_b32 v14, v12")
    e("buffer_atomic_add v14, v13, s[28:31], s24 offen sc0" + ("" if "asc" in SKIP else " sc1"))
    e("s_waitcnt vmcnt(0)")
    e("v_readfirstlane_b32 s25, v14")
    e(f"s_cmp_lt_u32 s25, {per}")
    e(f"s_cbranch_scc1 {lbl}_f")
    e("s_add_u32 s20, s20, 1")
    e("s_and_b32 s20, s20, 7")
    e("s_add_u32 s21, s21, 1")
    e("s_cmp_lt_u32 s21, 8")
    e(f"s_cbranch_scc1 {lbl}_l")
    e("s_mov_b32 s25, 0")
    lab(f"{lbl}_f")
    e(f"s_mul_i32 s20, s20, {per}")
    e("s_add_u32 s20, s20, s25")
    e("v_mov_b32 v14, s20")
    e(f"v_mov_b32 v13, {lds_off}")
    e("ds_write_b32 v13, v14")
    e("s_mov_b64 exec, s[22:23]")
    e("s_waitcnt lgkmcnt(0)")
    lab(f"{lbl}_w")
    e("s_barrier")
    e(f"v_mov_b32 v13, {lds_off}")
    e("ds_read_b32 v14, v13")
    e("s_waitcnt lgkmcnt(0)")
    e("v_readfirstlane_b32 s2, v14")

LN_WGS, WT_WGS, KG_WGS = 128, (68 if W2MID else 135), 640
PREP_WGS = KG_WGS + LN_WGS + WT_WGS
KG_LDS_WAVE = 512
KG_TAB0 = 2048
KG_TAB = 2688
KG_FIN = KG_TAB0 + 4*KG_TAB
PREP_LDS = 36864
LNS = 36

def gen_wt(wg0, wv0, wvend, endlab, kern, dly):
    if "wt" in SKIP: e("s_endpgm")
    if PRIO & 2: e("s_setprio 3")
    e("s_load_dwordx2 s[40:41], s[0:1], 64")
    e("s_load_dwordx2 s[42:43], s[0:1], 80")
    e("s_sub_u32 s4, s2, %d" % wg0)
    e("s_lshl_b32 s4, s4, 2")
    e("s_add_u32 s4, s4, s3")
    if wv0: e("s_add_u32 s4, s4, %d" % wv0)
    if wvend:
        e("s_cmp_ge_u32 s4, %d" % wvend)
        e("s_cbranch_scc1 %s" % endlab)
    e("s_waitcnt lgkmcnt(0)")
    e("s_cmp_ge_u32 s4, 270")
    e("s_cselect_b32 s40, s42, s40")
    e("s_cselect_b32 s41, s43, s41")
    e("s_mov_b32 s5, 3456")
    e("s_mov_b32 s7, 159072863")
    e("s_mov_b32 s34, %d" % WS_W1F)
    e("s_cselect_b32 s5, 1280, s5")
    e("s_cselect_b32 s6, 10, 27")
    e("s_cselect_b32 s7, 429496730, s7")
    e("s_cselect_b32 s32, 270, 0")
    e("s_cselect_b32 s33, 108, 40")
    e("s_cselect_b32 s34, %d, s34" % WS_W2F)
    srd(8, 40, D*F*2); srd(28, 56, WS_SIZE)
    e("s_sub_u32 s32, s4, s32")
    e("s_lshl_b32 s32, s32, 2")
    e("v_lshrrev_b32 v3, 3, v2")
    e("v_and_b32 v4, 7, v2")
    e("v_mul_lo_u32 v5, v3, s5")
    e("v_lshl_add_u32 v5, v4, 4, v5")
    e("s_lshl_b32 s35, s5, 3")
    e("s_mul_i32 s36, s3, %d" % (4*16*144))
    e("v_mul_u32_u24 v6, 144, v3")
    e("v_lshl_add_u32 v6, v4, 4, v6")
    e("v_add_u32 v6, s36, v6")
    e("v_and_b32 v7, 31, v2")
    e("v_lshrrev_b32 v8, 5, v2")
    e("v_mul_u32_u24 v8, %d, v8" % (8*144))
    e("v_lshl_add_u32 v8, v7, 1, v8")
    e("v_add_u32 v8, s36, v8")
    e("v_lshlrev_b32 v9, 4, v2")
    if dly: e(f"s_sleep {dly}")
    for q in range(4):
        e(f"s_add_u32 s37, s32, {q}")
        e("s_mul_hi_u32 s38, s37, s7")
        e("s_mul_i32 s39, s38, s6")
        e("s_sub_u32 s39, s37, s39")
        e(f"s_lshl_b32 s44, s38, 4")
        e(f"s_mul_i32 s44, s44, s5")
        e(f"s_lshl_b32 s45, s39, 7")
        e(f"s_add_u32 s44, s44, s45")
        e(f"buffer_load_dwordx4 v[{16+8*q}:{19+8*q}], v5, s[8:11], s44 offen")
        e(f"s_add_u32 s44, s44, s35")
        e(f"buffer_load_dwordx4 v[{20+8*q}:{23+8*q}], v5, s[8:11], s44 offen")
        e(f"s_lshl_b32 s45, s39, 1")
        e(f"s_mul_i32 s45, s45, s33")
        e(f"s_add_u32 s45, s45, s38")
        e(f"s_lshl_b32 s45, s45, 10")
        e(f"s_add_u32 s{48+q}, s45, s34")
    e("s_lshl_b32 s33, s33, 10")
    for q in range(4):
        e(f"s_waitcnt vmcnt({6-2*q})")
        e(f"ds_write_b128 v6, v[{16+8*q}:{19+8*q}] offset:{q*16*144}")
        e(f"ds_write_b128 v6, v[{20+8*q}:{23+8*q}] offset:{q*16*144 + 8*144}")
    tl(1)
    for q in range(4):
        e("s_waitcnt lgkmcnt(0)") if q == 0 else None
        for f in range(2):
            for el in range(8):
                e(f"ds_read_u16 v{48+16*(q&1)*2+16*f+el}, v8 offset:{q*16*144 + el*144 + 64*f}")
        if q > 0:
            pass
        e("s_waitcnt lgkmcnt(0)")
        for f in range(2):
            for j in range(4):
                r = 48 + 16*(q&1)*2 + 16*f
                e(f"v_lshl_or_b32 v{112+4*f+j}, v{r+2*j+1}, 16, v{r+2*j}")
            if f == 0:
                e(f"buffer_store_dwordx4 v[112:115], v9, s[28:31], s{48+q} offen")
            else:
                e(f"s_add_u32 s{48+q}, s{48+q}, s33")
                e(f"buffer_store_dwordx4 v[116:119], v9, s[28:31], s{48+q} offen")
        if q < 3:
            e("s_nop 1")
    tl(5)
    if TL: e("s_waitcnt vmcnt(0)")
    tl_end(kern)

def gen_prep():
    kernel_begin("prep_kernel")
    e("s_cmp_ge_u32 s2, %d" % PREP_WGS)
    e("s_cbranch_scc1 prep_end")
    e("s_load_dwordx2 s[56:57], s[0:1], 104")
    e("v_lshrrev_b32 v1, 6, v0")
    e("v_and_b32 v2, 63, v0")
    e("s_nop 0")
    e("v_readfirstlane_b32 s3, v1")
    if ORDER:
        e("s_add_u32 s2, s2, %d" % KG_WGS)
        e("s_cmp_ge_u32 s2, %d" % PREP_WGS)
        e("s_cselect_b32 s4, %d, 0" % PREP_WGS)
        e("s_sub_u32 s2, s2, s4")
    tl_begin()
    e("s_cmp_ge_u32 s2, %d" % (KG_WGS + LN_WGS))
    e("s_cbranch_scc1 prep_wt")
    e("s_cmp_ge_u32 s2, %d" % KG_WGS)
    e("s_cbranch_scc1 prep_ln")
    if "kg" in SKIP: e("s_endpgm")
    e("s_load_dwordx4 s[40:43], s[0:1], 8")
    e("s_load_dwordx4 s[44:47], s[0:1], 24")
    e("s_load_dwordx2 s[48:49], s[0:1], 40")
    e("s_mov_b32 s4, s2")
    e("s_mul_i32 s5, s3, %d" % KG_LDS_WAVE)
    e("s_lshl_b32 s6, s4, 8")
    e("s_lshl_b32 s7, s3, 6")
    e("s_add_u32 s6, s6, s7")
    e("v_and_b32 v3, 31, v2")
    e("v_lshl_add_u32 v3, v3, 1, s6")
    e("s_lshl_b32 s7, s4, 1")
    e("v_mov_b32 v4, s7")
    e("s_waitcnt lgkmcnt(0)")
    srd(8, 40, D*N*2); srd(12, 42, D*N*2); srd(16, 44, D*N*2); srd(20, 46, D*N*2)
    srd(24, 48, D*2); srd(28, 56, WS_SIZE)
    for k, sr in enumerate((8, 12, 16, 20)):
        e(f"buffer_load_ushort v{10+k}, v3, s[{sr}:{sr+3}], 0 offen")
    e("buffer_load_ushort v18, v4, s[24:27], 0 offen")
    e("v_and_b32 v8, 15, v2")
    e("v_lshrrev_b32 v9, 4, v2")
    e("v_and_b32 v24, 7, v8")
    e("v_lshrrev_b32 v25, 3, v8")
    e("v_lshl_add_u32 v28, v25, 7, v24")
    e("v_and_b32 v24, 3, v8")
    e("v_lshlrev_b32 v24, 1, v24")
    e("v_bfe_u32 v25, v8, 2, 1")
    e("v_lshl_add_u32 v24, v25, 7, v24")
    e("v_add_u32 v24, 256, v24")
    e("v_and_b32 v25, 1, v8")
    e("v_lshlrev_b32 v25, 2, v25")
    e("v_bfe_u32 v26, v8, 1, 2")
    e("v_lshl_add_u32 v25, v26, 7, v25")
    e("v_add_u32 v25, 512, v25")
    e("v_cmp_gt_u32 vcc, 8, v8")
    e("s_nop 1")
    e("v_cndmask_b32 v29, v25, v24, vcc")
    e("v_lshlrev_b32 v30, 7, v8")
    e("v_add_u32 v30, 0x400, v30")
    e("v_lshlrev_b32 v31, 3, v8")
    for t in range(4):
        e(f"v_cvt_f32_u32 v{28+t}, v{28+t}")
    e("s_mul_i32 s6, s3, %d" % KG_TAB)
    e("s_add_u32 s6, s6, %d" % KG_TAB0)
    e("v_and_b32 v24, 1, v9")
    e("v_lshrrev_b32 v25, 1, v9")
    e("v_lshl_add_u32 v33, v8, 5, s6")
    e("v_lshl_add_u32 v33, v24, 4, v33")
    e("v_lshl_add_u32 v33, v25, 9, v33")
    e("v_lshlrev_b32 v24, 4, v8")
    e("v_lshlrev_b32 v25, 3, v8")
    e("v_cmp_gt_u32 vcc, 2, v9")
    e("s_nop 1")
    e("v_cndmask_b32 v24, v25, v24, vcc")
    e("v_lshl_add_u32 v24, v9, 8, v24")
    e("v_add_u32 v24, s6, v24")
    e("v_add_u32 v34, 1024, v24")
    e("v_mov_b32 v25, 128")
    e("v_cndmask_b32_e64 v24, v25, 8, vcc")
    e("v_add_u32 v36, v34, v24")
    e("v_lshl_add_u32 v38, v8, 2, s6")
    e("v_lshl_add_u32 v38, v9, 8, v38")
    e("v_add_u32 v38, 2048, v38")
    e("v_lshl_add_u32 v39, v9, 4, s5")
    for r in range(40, 52):
        e(f"v_mov_b32 v{r}, 0")
    e("s_waitcnt vmcnt(0)")
    tl(1)
    for r in (10, 11, 12, 13, 18):
        e(f"v_lshlrev_b32 v{r}, 16, v{r}")
    e(f"v_mul_f32 v18, {LOG2E:#x}, v18")
    e(f"v_mul_f32 v10, {LOG2E:#x}, v10")
    e("v_exp_f32 v18, v18")
    e("v_exp_f32 v10, v10")
    e("s_nop 0")
    e("v_cvt_pk_bf16_f32 v18, v18, v18")
    e("v_cvt_pk_bf16_f32 v10, v10, v10")
    e("v_lshlrev_b32 v18, 16, v18")
    e("v_lshlrev_b32 v10, 16, v10")
    e("v_add_f32 v19, v18, v18")
    e("v_and_b32 v5, 31, v2")
    e("v_lshl_add_u32 v5, v5, 4, s5")
    e("v_mul_f32 v20, v10, v18")
    e(f"v_mul_f32 v20, {LOG2E|0x80000000:#x}, v20")
    e("v_mul_f32 v21, v11, v18")
    e(f"v_mul_f32 v21, {INV2PI:#x}, v21")
    e("v_mul_f32 v22, v12, v19")
    e("v_mul_f32 v23, v13, v19")
    e("ds_write_b128 v5, v[20:23]")
    e("s_waitcnt lgkmcnt(0)")
    for st in range(8):
        e(f"ds_read_b128 v[{96+4*st}:{99+4*st}], v39 offset:{64*st}")
    e("s_waitcnt lgkmcnt(0)")
    def kg_valu(st):
        P = 96 + 4*st
        O = 72 + 10*(st & 1)
        v = []
        for t in range(4):
            v.append(f"v_mul_f32 v{52+t}, v{P}, v{28+t}")
            v.append(f"v_mul_f32 v{56+t}, v{P+1}, v{28+t}")
        for t in range(4):
            v.append(f"v_exp_f32 v{52+t}, v{52+t}")
            v.append(f"v_fract_f32 v{56+t}, v{56+t}")
        for t in range(4):
            v.append(f"v_cos_f32 v{60+t}, v{56+t}")
            v.append(f"v_sin_f32 v{64+t}, v{56+t}")
        for t in range(4):
            v.append(f"v_mul_f32 v{60+t}, v{52+t}, v{60+t}")
            v.append(f"v_mul_f32 v{64+t}, v{52+t}, v{64+t}")
        v.append(f"v_mul_f32 v55, v63, v{P+2}")
        v.append(f"v_mul_f32_e64 v59, -v63, v{P+3}")
        v.append(f"v_fma_f32 v55, -v67, v{P+3}, v55")
        v.append(f"v_fma_f32 v59, -v67, v{P+2}, v59")
        def split(xr, xi, H, Lo, t0, t1):
            v.append(f"v_cvt_pk_bf16_f32 v{H}, v{xr}, v{xi}")
            v.append(f"v_lshlrev_b32 v{t0}, 16, v{H}")
            v.append(f"v_and_b32 v{t1}, 0xffff0000, v{H}")
            v.append(f"v_sub_f32 v{t0}, v{xr}, v{t0}")
            v.append(f"v_sub_f32 v{t1}, v{xi}, v{t1}")
            v.append(f"v_cvt_pk_bf16_f32 v{Lo}, v{t0}, v{t1}")
        split(55, 59, O, O+2, 68, 69)
        v.append(f"v_mov_b32 v{O+1}, v{O}")
        v.append(f"v_mov_b32 v{O+3}, v{O+2}")
        for t in range(3):
            split(60+t, 64+t, O+4+2*t, O+5+2*t, 52+t, 56+t)
        return v
    def kg_mfma(st):
        O = 72 + 10*(st & 1)
        m = []
        for h in range(2):
            for t in range(3):
                a = 40 + 4*t
                m.append(f"v_mfma_f32_16x16x16_bf16 v[{a}:{a+3}], v[{O+4+2*t}:{O+5+2*t}], v[{O+2*h}:{O+2*h+1}], v[{a}:{a+3}]")
        return m
    for st in range(9):
        v = kg_valu(st) if st < 8 else []
        m = kg_mfma(st-1) if st > 0 else []
        if "kgm" in SKIP: m = []
        if "kgv" in SKIP: v = []
        if not v:
            e("s_nop 1")
        vi = 0
        for mi, mm_ in enumerate(m):
            tgt = 2 + 7*mi
            while vi < min(tgt, len(v)):
                e(v[vi]); vi += 1
            e(mm_)
        while vi < len(v):
            e(v[vi]); vi += 1
    e("s_nop 15")
    tl(2)
    for r in range(4):
        e(f"ds_write_b32 v33, v{40+r} offset:{4*r}")
    e("ds_write_b32 v34, v44")
    e("ds_write_b32 v34, v45 offset:4")
    e("ds_write_b32 v36, v46")
    e("ds_write_b32 v36, v47 offset:4")
    e("s_mov_b32 exec_hi, 0xffff")
    e("ds_write_b32 v38, v48")
    e("s_mov_b32 exec_hi, 0")
    for r in range(1, 4):
        e(f"ds_write_b32 v38, v{48+r} offset:{64*r}")
    e("s_mov_b32 exec_hi, -1")
    e("s_mul_i32 s4, s4, %d" % KR_STRIDE)
    e("s_add_u32 s4, s4, %d" % WS_KR)
    e("v_lshlrev_b32 v39, 4, v0")
    e("v_lshlrev_b32 v64, 3, v0")
    e("v_sub_u32 v64, 2047, v64")
    e("v_lshlrev_b32 v65, 2, v0")
    e("v_lshlrev_b32 v66, 1, v0")
    for k in range(8):
        e(f"v_subrev_u32 v{52+k}, {k}, v64")
        e(f"v_cvt_f32_u32 v{72+k}, v{52+k}")
    for k in range(4):
        e(f"v_cvt_pk_bf16_f32 v{80+k}, v{72+2*k}, v{73+2*k}")
        e(f"v_and_b32 v{72+2*k}, 0xffff, v{80+k}")
        e(f"v_lshrrev_b32 v{73+2*k}, 16, v{80+k}")
    for k in range(8):
        e(f"v_subrev_u32 v{72+k}, 17024, v{72+k}")
        e(f"v_cmp_gt_u32 vcc, 256, v{52+k}")
        e("s_nop 1")
        e(f"v_cndmask_b32 v{52+k}, v{72+k}, v{52+k}, vcc")
        e(f"v_lshlrev_b32 v{52+k}, 1, v{52+k}")
    e("s_waitcnt lgkmcnt(0)")
    e("s_barrier")
    tl(3)
    for m in range(3):
        for ww in range(4):
            e(f"ds_read_b32 v{72+4*m+ww}, v65 offset:{KG_TAB0 + ww*KG_TAB + 1024*m}")
    for m in range(3):
        e(f"s_waitcnt lgkmcnt({8-4*m})")
        e(f"v_add_f32 v{72+4*m}, v{72+4*m}, v{73+4*m}")
        e(f"v_add_f32 v{74+4*m}, v{74+4*m}, v{75+4*m}")
        e(f"v_add_f32 v{72+4*m}, v{72+4*m}, v{74+4*m}")
        e(f"v_cvt_pk_bf16_f32 v{72+4*m}, v{72+4*m}, v{72+4*m}")
        e(f"ds_write_b16 v66, v{72+4*m} offset:{KG_FIN + 512*m}")
    e("s_waitcnt lgkmcnt(0)")
    e("s_barrier")
    tl(4)
    for k in range(8):
        e(f"ds_read_u16 v{96+k}, v{52+k} offset:{KG_FIN}")
    e("s_waitcnt lgkmcnt(0)")
    for k in range(4):
        e(f"v_lshl_or_b32 v{112+k}, v{97+2*k}, 16, v{96+2*k}")
    e(f"buffer_store_dwordx4 v[112:115], v39, s[28:31], s4 offen")
    for k in range(4):
        e(f"v_mov_b32 v{116+k}, 0")
    e("v_cmp_gt_u32 vcc, 8, v0")
    e("s_and_saveexec_b64 s[32:33], vcc")
    e("s_cbranch_execz prep_end")
    e("s_add_u32 s4, s4, 4096")
    e("buffer_store_dwordx4 v[116:119], v39, s[28:31], s4 offen")
    e("v_lshlrev_b32 v39, 6, v0")
    tl(5)
    if TL: e("s_waitcnt vmcnt(0)")
    tl_end(0)
    e("s_cmp_lg_u32 s2, 0")
    e("s_cbranch_scc1 prep_end")
    e("s_mov_b32 s4, %d" % WS_CNT)
    e("buffer_store_dword v116, v39, s[28:31], s4 offen")
    e("buffer_store_dword v116, v39, s[28:31], s4 offen offset:512")
    e("s_endpgm")
    lab("prep_ln")
    if "ln" in SKIP: e("s_endpgm")
    if PRIO & 1: e("s_setprio 3")
    e("s_load_dwordx2 s[40:41], s[0:1], 0")
    e("s_sub_u32 s2, s2, %d" % KG_WGS)
    e("v_and_b32 v3, 15, v0")
    e("v_lshrrev_b32 v4, 4, v0")
    e("s_lshl_b32 s5, s2, 4")
    e("v_add_u32 v5, s5, v4")
    e("v_mul_u32_u24 v6, 1280, v5")
    e("v_lshl_add_u32 v6, v3, 4, v6")
    e("s_waitcnt lgkmcnt(0)")
    srd(8, 40, L*D*2); srd(28, 56, WS_SIZE)
    if DLYL: e(f"s_sleep {DLYL}")
    for j in range(5):
        e(f"buffer_load_dwordx4 v[{16+4*j}:{19+4*j}], v6, s[8:11], 0 offen offset:{256*j}")
    e("s_lshr_b32 s6, s2, 1")
    e("s_mul_i32 s6, s6, %d" % (40*1024))
    e("s_add_u32 s6, s6, %d" % WS_XNF)
    e("v_lshrrev_b32 v7, 1, v3")
    e("v_lshlrev_b32 v7, 10, v7")
    e("v_and_b32 v8, 1, v3")
    e("v_lshl_add_u32 v7, v8, 9, v7")
    e("v_and_b32 v8, 31, v5")
    e("v_lshl_add_u32 v7, v8, 4, v7")
    e(f"v_mul_u32_u24 v9, {8*LNS}, v3")
    e("v_lshl_add_u32 v9, v4, 1, v9")
    e("s_waitcnt vmcnt(0)")
    tl(1)
    for k in range(20):
        e(f"v_lshlrev_b32 v{40+2*k}, 16, v{16+k}")
        e(f"v_and_b32 v{41+2*k}, 0xffff0000, v{16+k}")
    def lane_sum(srcs, acc):
        for a in range(4):
            e(f"v_add_f32 v{acc+a}, v{srcs[a]}, v{srcs[a+4]}")
        for k in range(8, len(srcs)):
            e(f"v_add_f32 v{acc+(k%4)}, v{acc+(k%4)}, v{srcs[k]}")
        e(f"v_add_f32 v{acc}, v{acc}, v{acc+1}")
        e(f"v_add_f32 v{acc+2}, v{acc+2}, v{acc+3}")
        e(f"v_add_f32 v{acc}, v{acc}, v{acc+2}")
        for sh in (8, 4, 2, 1):
            e("s_nop 1")
            e(f"v_add_f32_dpp v{acc}, v{acc}, v{acc} row_ror:{sh} row_mask:0xf bank_mask:0xf")
    lane_sum(list(range(40, 80)), 10)
    e("v_mul_f32 v14, 0x3acccccd, v10")
    for k in range(40):
        e(f"v_sub_f32 v{80+k}, v{40+k}, v14")
        e(f"v_mul_f32 v{80+k}, v{80+k}, v{80+k}")
    lane_sum(list(range(80, 120)), 10)
    e("v_mul_f32 v10, 0x3acccccd, v10")
    e("v_cvt_pk_bf16_f32 v10, v10, v14")
    e("v_and_b32 v14, 0xffff0000, v10")
    e("v_lshlrev_b32 v10, 16, v10")
    e("v_add_f32 v10, 0x3727c5ac, v10")
    e("v_cvt_pk_bf16_f32 v10, v10, v10")
    e("v_lshlrev_b32 v10, 16, v10")
    e("v_sqrt_f32 v10, v10")
    e("s_nop 0")
    e("v_cvt_pk_bf16_f32 v10, v10, v10")
    e("v_lshlrev_b32 v10, 16, v10")
    e("v_rcp_f32 v11, v10")
    e("s_nop 0")
    e("v_fma_f32 v12, -v10, v11, 2.0")
    e("v_mul_f32 v11, v11, v12")
    for k in range(20):
        e(f"v_sub_f32 v{40+2*k}, v{40+2*k}, v14")
        e(f"v_sub_f32 v{41+2*k}, v{41+2*k}, v14")
        e(f"v_cvt_pk_bf16_f32 v{16+k}, v{40+2*k}, v{41+2*k}")
        e(f"v_lshlrev_b32 v{40+2*k}, 16, v{16+k}")
        e(f"v_and_b32 v{41+2*k}, 0xffff0000, v{16+k}")
        e(f"v_mul_f32 v{40+2*k}, v{40+2*k}, v11")
        e(f"v_mul_f32 v{41+2*k}, v{41+2*k}, v11")
        e(f"v_cvt_pk_bf16_f32 v{16+k}, v{40+2*k}, v{41+2*k}")
    tl(2)
    for j in range(5):
        if "xnf" not in SKIP: e(f"buffer_store_dwordx4 v[{16+4*j}:{19+4*j}], v7, s[28:31], s6 offen")
        if j < 4: e("s_add_u32 s6, s6, 8192")
    for j in range(5):
        for el in range(8):
            r = 16 + 4*j + el//2
            op = "ds_write_b16_d16_hi" if el & 1 else "ds_write_b16"
            e(f"{op} v9, v{r} offset:{(128*j + el)*LNS}")
    e("v_lshrrev_b32 v10, 1, v0")
    e("v_and_b32 v11, 1, v0")
    e(f"v_mul_u32_u24 v12, {LNS}, v10")
    e("v_lshl_add_u32 v12, v11, 4, v12")
    e("v_lshlrev_b32 v13, 4, v0")
    e("s_mul_i32 s6, s2, 20480")
    e("s_add_u32 s6, s6, %d" % WS_XNT)
    e("s_waitcnt lgkmcnt(0)")
    e("s_barrier")
    tl(3)
    for j in range(5):
        e(f"ds_read2_b32 v[{40+4*j}:{41+4*j}], v12 offset0:{(128*j*LNS)//4 % 256} offset1:{(128*j*LNS)//4 % 256 + 1}")
        e(f"ds_read2_b32 v[{42+4*j}:{43+4*j}], v12 offset0:{(128*j*LNS)//4 % 256 + 2} offset1:{(128*j*LNS)//4 % 256 + 3}")
        if j < 4:
            nxt = (128*(j+1)*LNS)//4 // 256 - (128*j*LNS)//4 // 256
            e(f"v_add_u32 v12, {nxt*1024}, v12")
    for j in range(5):
        e(f"s_waitcnt lgkmcnt({2*(4-j)})")
        if "xnt" not in SKIP: e(f"buffer_store_dwordx4 v[{40+4*j}:{43+4*j}], v13, s[28:31], s6 offen")
        if j < 4: e("s_add_u32 s6, s6, %d" % (128*32))
    tl(5)
    if TL: e("s_waitcnt vmcnt(0)")
    tl_end(0)
    e("s_endpgm")
    lab("prep_wt")
    gen_wt(KG_WGS + LN_WGS, 0, 270 if W2MID else 0, "prep_end", 0, DLYW)
    lab("prep_end")
    e("s_endpgm")
    kernel_desc("prep_kernel", 128)

G1_WGS = 256
CV_WGS = 640
W2_WGS = 68 if W2MID else 0
MID_WGS = G1_WGS + CV_WGS + W2_WGS
CS = 4160
def CB(c): return c*CS + (32 if c >= 4 else 0)
UB = CB(7) + CS - 80
G1_NS, G1_BD = int(os.environ.get('G1NS', 5)), int(os.environ.get('G1BD', 3))
MID_LDS = 40960

def mish_pairs(acc0, acc1, b0, b1r, dst, t):
    e(f"v_cvt_pk_bf16_f32 v{t}, v{acc0}, v{acc1}")
    e(f"v_lshlrev_b32 v{t+1}, 16, v{t}")
    e(f"v_and_b32 v{t+2}, 0xffff0000, v{t}")
    e(f"v_add_f32 v{t+1}, v{t+1}, v{b0}")
    e(f"v_add_f32 v{t+2}, v{t+2}, v{b1r}")
    e(f"v_cvt_pk_bf16_f32 v{t}, v{t+1}, v{t+2}")
    e(f"v_lshlrev_b32 v{t+1}, 16, v{t}")
    e(f"v_and_b32 v{t+2}, 0xffff0000, v{t}")
    if MISH2:
        e(f"v_mul_f32 v{t+3}, {LOG2E:#x}, v{t+1}")
        e(f"v_mul_f32 v{t+4}, {LOG2E:#x}, v{t+2}")
        e(f"v_exp_f32 v{t+3}, v{t+3}")
        e(f"v_exp_f32 v{t+4}, v{t+4}")
        e(f"s_nop 0")
        e(f"v_add_f32 v{t+3}, 1.0, v{t+3}")
        e(f"v_add_f32 v{t+4}, 1.0, v{t+4}")
        e(f"v_fmaak_f32 v{t+3}, v{t+3}, v{t+3}, 0x3f800000")
        e(f"v_fmaak_f32 v{t+4}, v{t+4}, v{t+4}, 0x3f800000")
        e(f"v_rcp_f32 v{t+3}, v{t+3}")
        e(f"v_rcp_f32 v{t+4}, v{t+4}")
        e(f"s_nop 0")
        e(f"v_fmaak_f32 v{t+3}, -2.0, v{t+3}, 0x3f800000")
        e(f"v_fmaak_f32 v{t+4}, -2.0, v{t+4}, 0x3f800000")
        e(f"v_mul_f32 v{t+1}, v{t+1}, v{t+3}")
        e(f"v_mul_f32 v{t+2}, v{t+2}, v{t+4}")
    else:
        e(f"v_min_f32 v{t+3}, 0x41a00000, v{t+1}")
        e(f"v_min_f32 v{t+4}, 0x41a00000, v{t+2}")
        e(f"v_mul_f32 v{t+3}, {LOG2E:#x}, v{t+3}")
        e(f"v_mul_f32 v{t+4}, {LOG2E:#x}, v{t+4}")
        e(f"v_exp_f32 v{t+3}, v{t+3}")
        e(f"v_exp_f32 v{t+4}, v{t+4}")
        e(f"s_nop 0")
        e(f"v_add_f32 v{t}, 2.0, v{t+3}")
        e(f"v_add_f32 v{t+5}, 2.0, v{t+4}")
        e(f"v_mul_f32 v{t+3}, v{t+3}, v{t}")
        e(f"v_mul_f32 v{t+4}, v{t+4}, v{t+5}")
        e(f"v_add_f32 v{t}, 2.0, v{t+3}")
        e(f"v_add_f32 v{t+5}, 2.0, v{t+4}")
        e(f"v_rcp_f32 v{t}, v{t}")
        e(f"v_rcp_f32 v{t+5}, v{t+5}")
        e(f"v_mul_f32 v{t+1}, v{t+1}, v{t+3}")
        e(f"v_mul_f32 v{t+2}, v{t+2}, v{t+4}")
        e(f"v_mul_f32 v{t+1}, v{t+1}, v{t}")
        e(f"v_mul_f32 v{t+2}, v{t+2}, v{t+5}")
    e(f"v_cvt_pk_bf16_f32 v{dst}, v{t+1}, v{t+2}")

def gemm_loop(nA, nsteps, KS, NS, frag_reg, acc_reg, voff, srdws, sA0, sB0, stride, spiece, vlds_r_b, vlds_r_lane):
    nR = nA + 4
    npieces = nR * KS
    npw = (npieces + 3) // 4
    SZ = npieces * 1024
    nchunks = nsteps // KS
    assert nsteps % KS == 0
    e(f"s_sub_u32 s{sB0}, s{sB0}, {nA*stride}")
    for i in range(npw):
        g, l = spiece + 2*i, spiece + 2*i + 1
        e(f"s_add_u32 s{l}, s3, {4*i}")
        e(f"s_min_u32 s{l}, s{l}, {npieces-1}")
        sh = {1: 0, 2: 1, 4: 2}[KS]
        e(f"s_lshr_b32 s{g}, s{l}, {sh}")
        e(f"s_cmp_lt_u32 s{g}, {nA}")
        e(f"s_cselect_b32 s6, s{sA0}, s{sB0}")
        e(f"s_mul_i32 s{g}, s{g}, {stride}")
        e(f"s_add_u32 s{g}, s{g}, s6")
        e(f"s_and_b32 s6, s{l}, {KS-1}")
        e(f"s_lshl_b32 s6, s6, 10")
        e(f"s_add_u32 s{g}, s{g}, s6")
        e(f"s_lshl_b32 s{l}, s{l}, 10")
    def dma(c):
        slot = c % NS
        for i in range(npw):
            e(f"s_add_u32 m0, s{spiece+2*i+1}, {slot*SZ}")
            e("s_nop 0")
            e(f"buffer_load_dwordx4 v{voff}, s[{srdws}:{srdws+3}], s{spiece+2*i} offen lds")
        e(f"v_add_u32 v{voff}, {KS*1024}, v{voff}")
    per = nA + 1
    HALF = 2*SZ
    e(f"v_add_u32 v12, {HALF}, v{vlds_r_b}")
    e(f"v_add_u32 v13, {HALF}, v{vlds_r_lane}")
    e(f"v_add_u32 v14, {2*HALF}, v{vlds_r_b}")
    e(f"v_add_u32 v15, {2*HALF}, v{vlds_r_lane}")
    def reads(slot, q):
        fr = frag_reg + 4*per*q
        vb, vl, so = [(vlds_r_b, vlds_r_lane, slot*SZ), (12, 13, slot*SZ - HALF), (14, 15, slot*SZ - 2*HALF)][slot//2]
        e(f"ds_read_b128 v[{fr}:{fr+3}], v{vb} offset:{so + q*1024}")
        for a in range(nA):
            e(f"ds_read_b128 v[{fr+4+4*a}:{fr+7+4*a}], v{vl} offset:{so + a*KS*1024 + q*1024}")
    def mfmas(q):
        fr = frag_reg + 4*per*q
        for a in range(nA):
            ac = acc_reg + 16*a
            e(f"v_mfma_f32_32x32x16_bf16 v[{ac}:{ac+15}], v[{fr+4+4*a}:{fr+7+4*a}], v[{fr}:{fr+3}], v[{ac}:{ac+15}]")
    for c in range(min(NS-1, nchunks)):
        dma(c)
    for c in range(nchunks):
        inflight = min(NS-2, nchunks-1-c)
        e(f"s_waitcnt vmcnt({inflight*npw})")
        e("s_barrier")
        if nA == 2 and c == 0: stamp(2)
        if nA == 2 and c == 1: stamp(3)
        slot = c % NS
        if "rd" not in SKIP:
            for q in range(KS):
                reads(slot, q)
        if c + NS - 1 < nchunks and "dma" not in SKIP:
            dma(c + NS - 1)
        for q in range(KS):
            e(f"s_waitcnt lgkmcnt({(KS-1-q)*per})")
            if "mf" not in SKIP: mfmas(q)

def gen_mid():
    kernel_begin("mid_kernel")
    e("s_cmp_ge_u32 s2, %d" % MID_WGS)
    e("s_cbranch_scc1 mid_end")
    tl_begin()
    e("s_load_dwordx2 s[56:57], s[0:1], 104")
    e("s_load_dwordx2 s[58:59], s[0:1], 72")
    e("s_load_dwordx2 s[60:61], s[0:1], 48")
    e("v_lshrrev_b32 v1, 6, v0")
    e("v_and_b32 v2, 63, v0")
    e("s_nop 0")
    e("v_readfirstlane_b32 s3, v1")
    e("s_waitcnt lgkmcnt(0)")
    srd(28, 56, WS_SIZE)
    if W2MID:
        e("s_cmp_ge_u32 s2, %d" % (G1_WGS + CV_WGS))
        e("s_cbranch_scc1 mid_wt")
    e("s_cmp_ge_u32 s2, %d" % G1_WGS)
    e("s_cbranch_scc1 mid_conv")
    if "g1" in SKIP: e("s_endpgm")
    if PRIO & 4: e("s_setprio 3")
    srd(8, 58, F*2)
    tl(1)
    claim_tile(0, 32, 7168*G1_NS, "mcl")
    tl(2)
    if G1MAP == 0:
        e("s_lshr_b32 s5, s2, 4")
        e("s_and_b32 s4, s2, 15")
    else:
        e("s_lshr_b32 s5, s2, 6")
        e("s_lshl_b32 s5, s5, 2")
        e("s_bfe_u32 s6, s2, 0x20003")
        e("s_add_u32 s5, s5, s6")
        e("s_bfe_u32 s4, s2, 0x10005")
        e("s_lshl_b32 s4, s4, 3")
        e("s_and_b32 s6, s2, 7")
        e("s_add_u32 s4, s4, s6")
    e("s_mul_i32 s6, s4, 7")
    e("s_sub_u32 s7, s4, 12")
    e("s_cmp_lt_u32 s4, 12")
    e("s_cselect_b32 s7, 0, s7")
    e("s_cselect_b32 s26, 7, 6")
    e("s_sub_u32 s4, s6, s7")
    e("v_and_b32 v3, 15, v2")
    e("v_lshrrev_b32 v4, 4, v2")
    e("v_lshrrev_b32 v5, 1, v4")
    e("v_and_b32 v6, 1, v4")
    e("v_lshlrev_b32 v7, 4, v3")
    e("v_lshl_add_u32 v7, v5, 10, v7")
    e("v_lshl_add_u32 v7, v6, 9, v7")
    e("v_mov_b32 v8, v7")
    for k in range(2):
        e(f"s_add_u32 s6, s3, {4*k}")
        e("s_min_u32 s6, s6, 6")
        e(f"s_lshl_b32 s{42+k}, s6, 10")
        e("s_add_u32 s6, s6, s4")
        e("s_min_u32 s6, s6, 107")
        e(f"s_lshr_b32 s{40+k}, s6, 1")
        e(f"s_mul_i32 s{40+k}, s{40+k}, {40*1024}")
        e("s_and_b32 s6, s6, 1")
        e("s_lshl_b32 s6, s6, 8")
        e(f"s_add_u32 s{40+k}, s{40+k}, s6")
        e(f"s_add_u32 s{40+k}, s{40+k}, {WS_W1F}")
    e("s_lshl_b32 s6, s5, 2")
    e("s_add_u32 s27, s6, s3")
    e("s_mul_i32 s44, s27, %d" % (40*1024))
    e("s_add_u32 s44, s44, %d" % WS_XNF)
    e("v_lshlrev_b32 v9, 4, v2")
    NS, BD, NSTEP = G1_NS, G1_BD, 20
    AF, BF, ACC, BI = 16, 44, 44 + 8*G1_BD, 44
    pend = []
    def dma(st):
        for k in range(2):
            e(f"s_add_u32 m0, s{42+k}, {(st % NS)*7168}")
            e("s_nop 0")
            e(f"buffer_load_dwordx4 v7, s[28:31], s{40+k} offen lds")
            pend.append(("a", st))
        e("v_add_u32 v7, 2048, v7")
    def bld(st):
        r = BF + 8*(st % BD)
        e(f"buffer_load_dwordx4 v[{r}:{r+3}], v8, s[28:31], s44 offen")
        e(f"buffer_load_dwordx4 v[{r+4}:{r+7}], v8, s[28:31], s44 offen offset:256")
        pend.append(("b", st)); pend.append(("b", st))
        e("v_add_u32 v8, 2048, v8")
    def wait_for(*tags):
        idx = [i for i, p in enumerate(pend) if p in tags]
        if not idx: return
        last = max(idx)
        e(f"s_waitcnt vmcnt({len(pend) - 1 - last})")
        del pend[:last+1]
    def rdA(st, t):
        e(f"ds_read_b128 v[{AF+4*t}:{AF+4*t+3}], v9 offset:{(st % NS)*7168 + 1024*t}")
    for st in range(max(NS-1, BD)):
        if st < NS-1: dma(st)
        if st < BD: bld(st)
    e("s_lshl_b32 s6, s4, 5")
    e("v_lshl_add_u32 v10, v4, 3, s6")
    for r in range(ACC, ACC+56):
        e(f"v_mov_b32 v{r}, 0")
    wait_for(("a", 0))
    e("s_barrier")
    tl(3)
    for t in range(7): rdA(0, t)
    for st in range(NSTEP):
        if st + 1 < NSTEP:
            wait_for(("a", st+1), ("b", st))
            e("s_barrier")
            if st - 1 + NS < NSTEP: dma(st - 1 + NS)
        else:
            wait_for(("b", st))
        rb = BF + 8*(st % BD)
        for t in range(7):
            e(f"s_waitcnt lgkmcnt({6 if st + 1 < NSTEP else 6 - t})")
            for b_ in range(2):
                ac = ACC + 4*(2*t + b_)
                e(f"v_mfma_f32_16x16x32_bf16 v[{ac}:{ac+3}], v[{AF+4*t}:{AF+4*t+3}], v[{rb+4*b_}:{rb+4*b_+3}], v[{ac}:{ac+3}]")
            if st + 1 < NSTEP: rdA(st+1, t)
        if st + BD < NSTEP: bld(st + BD)
        if st == NSTEP - 2:
            assert BD == 3
            free = [BF + 8*((NSTEP-3) % BD), BF + 8*((NSTEP-2) % BD)]
            BIr = [free[0] + 2*k for k in range(4)] + [free[1] + 2*k for k in range(3)]
            for t in range(7):
                e(f"buffer_load_dwordx2 v[{BIr[t]}:{BIr[t]+1}], v10, s[8:11], 0 offen offset:{32*t}")
                pend.append(("c", 0))
    e("s_nop 7")
    e("s_waitcnt vmcnt(0)")
    tl(4)
    e("s_mul_i32 s6, s27, 108")
    e("s_add_u32 s6, s6, s4")
    e("s_lshl_b32 s6, s6, 10")
    e("s_add_u32 s6, s6, %d" % WS_ACT)
    e("v_lshlrev_b32 v9, 4, v3")
    e("v_lshl_add_u32 v9, v5, 9, v9")
    e("v_lshl_add_u32 v9, v6, 3, v9")
    T = 16
    for t in range(7):
        if t == 6:
            e("s_cmp_lt_u32 s26, 7")
            e("s_cbranch_scc1 g1_end")
        r = BIr[t]
        e(f"v_lshlrev_b32 v{T}, 16, v{r}")
        e(f"v_and_b32 v{T+1}, 0xffff0000, v{r}")
        e(f"v_lshlrev_b32 v{T+2}, 16, v{r+1}")
        e(f"v_and_b32 v{T+3}, 0xffff0000, v{r+1}")
        for b_ in range(2):
            ac = ACC + 4*(2*t + b_)
            d0 = T + 16 + 2*((2*t + b_) % 4)
            mish_pairs(ac, ac+1, T, T+1, d0, T+4)
            mish_pairs(ac+2, ac+3, T+2, T+3, d0+1, T+10)
            off = (t % 4)*1024 + 256*b_
            e(f"buffer_store_dwordx2 v[{d0}:{d0+1}], v9, s[28:31], s6 offen offset:{off}")
        if t == 3: e("s_add_u32 s6, s6, 4096")
    lab("g1_end")
    tl(5)
    if TL: e("s_waitcnt vmcnt(0)")
    tl_end(1)
    e("s_endpgm")
    lab("mid_conv")
    if "cv" in SKIP: e("s_endpgm")
    if PRIO & 8: e("s_setprio 3")
    srd(8, 60, D*2)
    e("s_sub_u32 s4, s2, %d" % G1_WGS)
    e("s_and_b32 s5, s4, 7")
    e("s_lshl_b32 s5, s5, 2")
    e("s_bfe_u32 s6, s4, 0x20003")
    e("s_or_b32 s5, s5, s6")
    e("s_andn2_b32 s4, s4, 31")
    e("s_or_b32 s4, s4, s5")
    e("s_lshl_b32 s5, s4, 1")
    e("v_mov_b32 v3, s5")
    if DLYC: e(f"s_sleep {DLYC}")
    e("buffer_load_ushort v1, v3, s[8:11], 0 offen")
    e("s_lshl_b32 s5, s4, 5")
    e("s_add_u32 s5, s5, %d" % WS_XNT)
    e("v_lshrrev_b32 v4, 1, v0")
    e("v_mul_u32_u24 v4, 20480, v4")
    e("v_and_b32 v5, 1, v0")
    e("v_lshl_add_u32 v4, v5, 4, v4")
    e("buffer_load_dwordx4 v[8:11], v4, s[28:31], s5 offen")
    e("v_lshlrev_b32 v4, 4, v0")
    e("s_mul_i32 s6, s4, %d" % KR_STRIDE)
    e("s_add_u32 s6, s6, %d" % WS_KR)
    e("buffer_load_dwordx4 v[12:15], v4, s[28:31], s6 offen")
    e("buffer_load_dwordx4 v[16:19], v4, s[28:31], s6 offen offset:16")
    e("v_min_u32 v5, 3, v0")
    e("v_lshlrev_b32 v5, 4, v5")
    e("v_add_u32 v5, 4096, v5")
    e("buffer_load_dwordx4 v[20:23], v5, s[28:31], s6 offen")
    e("buffer_load_dwordx4 v[24:27], v5, s[28:31], s6 offen offset:16")
    for k in range(4):
        e(f"v_mov_b32 v{28+k}, 0")
    e("v_min_u32 v6, 154, v0")
    e("v_lshlrev_b32 v6, 4, v6")
    e(f"ds_write_b128 v6, v[28:31] offset:{UB + 80}")
    e("v_lshrrev_b32 v6, 2, v0")
    e("v_mul_u32_u24 v6, 80, v6")
    e("v_and_b32 v7, 3, v0")
    e("v_lshl_add_u32 v6, v7, 4, v6")
    e("s_waitcnt vmcnt(4)")
    tl(6)
    e(f"ds_write_b128 v6, v[8:11] offset:{UB + 32*80}")
    def copies(w, vaddr):
        for c in range(8):
            if c % 2 == 0:
                e(f"ds_write_b128 v{vaddr}, v[{w+c//2}:{w+c//2+3}] offset:{CB(c)}") if (w + c//2) % 2 == 0 else None
                if (w + c//2) % 2:
                    for j in range(4):
                        e(f"v_mov_b32 v{32+j}, v{w+c//2+j}")
                    e(f"ds_write_b128 v{vaddr}, v[32:35] offset:{CB(c)}")
            else:
                for j in range(4):
                    e(f"v_alignbit_b32 v{36+j}, v{w+(c+1)//2+j}, v{w+(c-1)//2+j}, 16")
                e(f"ds_write_b128 v{vaddr}, v[36:39] offset:{CB(c)}")
    e("s_waitcnt vmcnt(2)")
    tl(1)
    copies(12, 4)
    e("s_waitcnt vmcnt(0)")
    copies(20, 5)
    e("s_waitcnt lgkmcnt(0)")
    tl(2)
    e("s_barrier")
    tl(3)
    e("v_and_b32 v3, 31, v2")
    e("v_lshrrev_b32 v4, 5, v2")
    e("v_sub_u32 v5, 7, v3")
    e("v_and_b32 v5, 7, v5")
    e("v_sub_u32 v6, 2047, v3")
    e("v_lshl_add_u32 v6, v4, 3, v6")
    e("v_sub_u32 v6, v6, v5")
    e("v_mul_u32_u24 v7, %d, v5" % CS)
    e("v_lshrrev_b32 v8, 2, v5")
    e("v_lshl_add_u32 v7, v8, 5, v7")
    e("v_lshl_add_u32 v6, v6, 1, v7")
    e("v_mul_u32_u24 v7, 80, v3")
    e("v_lshl_add_u32 v7, v4, 4, v7")
    e(f"v_add_u32 v7, {UB + 32*80}, v7")
    for r in range(16, 48):
        e(f"v_mov_b32 v{r}, 0")
    e("s_lshl_b32 s5, s3, 9")
    e(f"s_add_u32 s5, s5, {64*7 + 64*32}")
    e("v_subrev_u32 v8, s5, v6")
    e("s_mul_i32 s5, s3, 640")
    e(f"s_add_u32 s5, s5, {80*7}")
    e("v_subrev_u32 v9, s5, v7")
    def rd(q):
        base = 48 + (q & 1)*32
        for t in range(2):
            fa = base + 16*t
            e(f"ds_read_b128 v[{fa}:{fa+3}], v8 offset:{64*(7-q) + 2048 + 32*t}")
            e(f"ds_read_b128 v[{fa+4}:{fa+7}], v9 offset:{80*(7-q) + 32*t}")
            e(f"ds_read_b128 v[{fa+8}:{fa+11}], v9 offset:{80*(7-q) + 2560 + 32*t}")
            e(f"ds_read_b128 v[{fa+12}:{fa+15}], v8 offset:{64*(7-q) + 32*t}")
    def mm(q):
        base = 48 + (q & 1)*32
        for t in range(2):
            fa = base + 16*t
            e(f"v_mfma_f32_32x32x16_bf16 v[16:31], v[{fa}:{fa+3}], v[{fa+4}:{fa+7}], v[16:31]")
            e(f"v_mfma_f32_32x32x16_bf16 v[32:47], v[{fa}:{fa+3}], v[{fa+8}:{fa+11}], v[32:47]")
            e(f"v_mfma_f32_32x32x16_bf16 v[32:47], v[{fa+12}:{fa+15}], v[{fa+4}:{fa+7}], v[32:47]")
    rd(0)
    for q in range(8):
        if q < 7:
            rd(q + 1)
            e("s_waitcnt lgkmcnt(8)")
        else:
            e("s_waitcnt lgkmcnt(0)")
        mm(q)
    tl(4)
    e("s_nop 15")
    e("s_barrier")
    e("v_lshlrev_b32 v10, 4, v2")
    e("s_cmp_eq_u32 s3, 0")
    e("s_cbranch_scc1 cv_w0")
    e("s_sub_u32 s5, s3, 1")
    e("s_lshl_b32 s5, s5, 12")
    e("v_add_u32 v11, s5, v10")
    for r in range(4):
        e(f"ds_write_b128 v11, v[{16+4*r}:{19+4*r}] offset:{1024*r}")
    lab("cv_w0")
    e("s_cmp_eq_u32 s3, 1")
    e("s_cbranch_scc1 cv_w1")
    e("s_sub_u32 s5, s3, 1")
    e("s_max_i32 s5, s5, 0")
    e("s_lshl_b32 s5, s5, 12")
    e("v_add_u32 v11, s5, v10")
    for r in range(4):
        e(f"ds_write_b128 v11, v[{32+4*r}:{35+4*r}] offset:{12288 + 1024*r}")
    e("s_branch cv_w2")
    lab("cv_w1")
    for r in range(16):
        e(f"v_mov_b32 v{16+r}, v{32+r}")
    e("v_add_u32 v10, 12288, v10")
    lab("cv_w2")
    e("s_waitcnt lgkmcnt(0)")
    e("s_barrier")
    e("s_cmp_ge_u32 s3, 2")
    e("s_cbranch_scc1 mid_end")
    for sl in range(3):
        for r in range(4):
            e(f"ds_read_b128 v[{48+16*sl+4*r}:{51+16*sl+4*r}], v10 offset:{4096*sl + 1024*r}")
    for sl in range(3):
        e(f"s_waitcnt lgkmcnt({8-4*sl})")
        for r in range(16):
            e(f"v_add_f32 v{16+r}, v{16+r}, v{48+16*sl+r}")
    lab("cv_epi")
    e("s_mul_i32 s5, s3, %d" % (32*80))
    e("v_mul_u32_u24 v11, 80, v3")
    e("v_lshl_add_u32 v11, v4, 3, v11")
    e("v_add_u32 v11, s5, v11")
    for g in range(4):
        e(f"ds_read_b64 v[{32+2*g}:{33+2*g}], v11 offset:{UB + 32*80 + 16*g}")
    e("s_lshl_b32 s5, s4, 12")
    e("s_lshl_b32 s6, s3, 11")
    e("s_add_u32 s5, s5, s6")
    e("s_add_u32 s5, s5, %d" % WS_AT)
    e("v_lshlrev_b32 v12, 6, v3")
    e("v_lshl_add_u32 v12, v4, 3, v12")
    e("s_waitcnt vmcnt(0) lgkmcnt(0)")
    e("v_lshlrev_b32 v1, 16, v1")
    for g in range(4):
        for p in range(2):
            u = 32 + 2*g + p
            y0 = 16 + 4*g + 2*p
            e(f"v_lshlrev_b32 v44, 16, v{u}")
            e(f"v_and_b32 v45, 0xffff0000, v{u}")
            e(f"v_mul_f32 v44, v44, v1")
            e(f"v_mul_f32 v45, v45, v1")
            e(f"v_cvt_pk_bf16_f32 v44, v44, v45")
            e(f"v_cvt_pk_bf16_f32 v46, v{y0}, v{y0+1}")
            e(f"v_lshlrev_b32 v47, 16, v44")
            e(f"v_and_b32 v48, 0xffff0000, v44")
            e(f"v_lshlrev_b32 v49, 16, v46")
            e(f"v_and_b32 v50, 0xffff0000, v46")
            e(f"v_add_f32 v47, v47, v49")
            e(f"v_add_f32 v48, v48, v50")
            e(f"v_cvt_pk_bf16_f32 v{52+2*g+p}, v47, v48")
        e(f"buffer_store_dwordx2 v[{52+2*g}:{53+2*g}], v12, s[28:31], s5 offen offset:{16*g}")
    tl(5)
    if TL: e("s_waitcnt vmcnt(0)")
    tl_end(1)
    if W2MID:
        e("s_endpgm")
        lab("mid_wt")
        gen_wt(G1_WGS + CV_WGS, 270, 540, "mid_end", 1, int(os.environ.get("DLYW2", 0)))
    lab("mid_end")
    e("s_endpgm")
    kernel_desc("mid_kernel", 128)

G2_WGS = 256
FIN_LDS = 61440 + 64
FDEPTH = int(os.environ.get('FDEPTH', 4))
def gen_fin():
    kernel_begin("fin_kernel")
    e("s_cmp_ge_u32 s2, %d" % G2_WGS)
    e("s_cbranch_scc1 fin_end")
    e("s_load_dwordx2 s[56:57], s[0:1], 104")
    e("s_load_dwordx2 s[58:59], s[0:1], 0")
    e("s_load_dwordx2 s[60:61], s[0:1], 88")
    e("v_lshrrev_b32 v1, 6, v0")
    e("v_and_b32 v2, 63, v0")
    e("s_nop 0")
    e("v_readfirstlane_b32 s3, v1")
    if "xcc" in SKIP:
        e("s_and_b32 s5, s2, 31")
        e("s_lshr_b32 s4, s2, 5")
    else:
        e("s_waitcnt lgkmcnt(0)")
        srd(28, 56, WS_SIZE)
        claim_tile(512, 32, 61440, "fcl")
        if FMAP == 0:
            e("s_lshr_b32 s5, s2, 5")
            e("s_lshl_b32 s5, s5, 2")
            e("s_and_b32 s6, s2, 3")
            e("s_add_u32 s5, s5, s6")
            e("s_bfe_u32 s4, s2, 0x30002")
        else:
            e("s_lshr_b32 s5, s2, 6")
            e("s_lshl_b32 s5, s5, 3")
            e("s_and_b32 s6, s2, 7")
            e("s_add_u32 s5, s5, s6")
            e("s_bfe_u32 s4, s2, 0x10005")
            e("s_lshl_b32 s4, s4, 2")
            e("s_bfe_u32 s6, s2, 0x20003")
            e("s_add_u32 s4, s4, s6")
    e("v_and_b32 v3, 15, v2")
    e("v_lshrrev_b32 v4, 4, v2")
    e("v_lshrrev_b32 v5, 1, v4")
    e("v_and_b32 v6, 1, v4")
    e("v_lshlrev_b32 v7, 4, v3")
    e("v_lshl_add_u32 v7, v5, 10, v7")
    e("v_lshl_add_u32 v7, v6, 9, v7")
    e("s_lshl_b32 s6, s3, 11")
    e("v_add_u32 v7, s6, v7")
    e("s_mul_i32 s6, s4, 5")
    for a_ in range(5):
        e(f"s_add_u32 s7, s6, {a_}")
        e(f"s_lshr_b32 s{40+a_}, s7, 1")
        e(f"s_mul_i32 s{40+a_}, s{40+a_}, {108*1024}")
        e(f"s_and_b32 s7, s7, 1")
        e(f"s_lshl_b32 s7, s7, 8")
        e(f"s_add_u32 s{40+a_}, s{40+a_}, s7")
        e(f"s_add_u32 s{40+a_}, s{40+a_}, {WS_W2F}")
    e("s_mul_i32 s6, s5, %d" % (2*108*1024))
    e("s_add_u32 s45, s6, %d" % WS_ACT)
    e("s_add_u32 s46, s45, 256")
    e("s_add_u32 s47, s45, %d" % (108*1024))
    e("s_add_u32 s48, s47, 256")
    e("s_waitcnt lgkmcnt(0)")
    srd(28, 56, WS_SIZE); srd(8, 58, L*D*2); srd(12, 60, L*D*2)
    FR = 16
    ACC = 0
    EP = FR + 36*FDEPTH
    pend = []
    def issue(m):
        base = FR + 36*(m % FDEPTH)
        for t in range(9):
            e(f"buffer_load_dwordx4 v[{base+4*t}:{base+4*t+3}], v7, s[28:31], s{40+t} offen")
            pend.append(("f", m))
        e("v_add_u32 v7, 8192, v7")
    def wait_for(tag):
        last = max(i for i, p in enumerate(pend) if p == tag)
        n = len(pend) - 1 - last
        e(f"s_waitcnt vmcnt({n})")
        del pend[:last+1]
    NST = 14
    for m in range(FDEPTH):
        issue(m)
    e("s_lshl_b32 s6, s5, 6")
    e("s_lshl_b32 s7, s3, 4")
    e("s_add_u32 s6, s6, s7")
    e("v_add_u32 v8, s6, v3")
    e("v_mul_u32_u24 v9, 1280, v8")
    e("v_lshl_add_u32 v9, v4, 3, v9")
    e("s_mul_i32 s6, s4, 160")
    e("v_add_u32 v9, s6, v9")
    for a_ in range(5):
        e(f"buffer_load_dwordx2 v[{EP+2*a_}:{EP+2*a_+1}], v9, s[8:11], 0 offen offset:{32*a_}")
        pend.append(("e", 0))
    e("v_lshlrev_b32 v10, 14, v4")
    e("v_lshl_add_u32 v10, v8, 1, v10")
    e("s_mul_i32 s6, s4, %d" % (80*4096))
    e("s_add_u32 s6, s6, %d" % WS_AT)
    for a_ in range(5):
        for j in range(4):
            e(f"buffer_load_ushort v{EP+10+4*a_+j}, v10, s[28:31], s6 offen")
            pend.append(("e", 0))
            e("s_add_u32 s6, s6, %d" % (4096 if j < 3 else 4096*13))
    for r in range(ACC, ACC+80):
        e(f"v_accvgpr_write_b32 a{r}, 0")
    for m in range(NST):
        if m == NST - 1:
            e("s_cmp_ge_u32 s3, 2")
            e("s_cbranch_scc1 fin_red")
        wait_for(("f", m))
        base = FR + 36*(m % FDEPTH)
        for b_ in range(4):
            for a_ in range(5):
                ac = ACC + 4*(5*b_ + a_)
                e(f"v_mfma_f32_16x16x32_bf16 a[{ac}:{ac+3}], v[{base+4*a_}:{base+4*a_+3}], v[{base+20+4*b_}:{base+23+4*b_}], a[{ac}:{ac+3}]")
        if m + FDEPTH < NST:
            if m + FDEPTH == NST - 1:
                e("s_cmp_ge_u32 s3, 2")
                e("s_cselect_b32 s6, 8192, 0")
                e("v_subrev_u32 v7, s6, v7")
            issue(m + FDEPTH)
    lab("fin_red")
    e("s_nop 15")
    e("s_waitcnt vmcnt(0)")
    e("v_lshlrev_b32 v11, 4, v2")
    for w in range(4):
        if w < 3:
            e(f"s_cmp_lg_u32 s3, {w}")
            e(f"s_cbranch_scc1 fin_w{w+1}")
        for b_ in range(4):
            if b_ == w: continue
            slot = w if w < b_ else w - 1
            for a_ in range(5):
                ac = ACC + 4*(5*b_ + a_)
                e(f"ds_write_b128 v11, a[{ac}:{ac+3}] offset:{(b_*3 + slot)*5120 + a_*1024}")
        for r in range(20):
            e(f"v_accvgpr_read_b32 v{16+r}, a{ACC+20*w+r}")
        if w < 3:
            e("s_branch fin_rd")
            lab(f"fin_w{w+1}")
    lab("fin_rd")
    e("s_mul_i32 s6, s3, %d" % (3*5120))
    e("v_add_u32 v11, s6, v11")
    e("s_waitcnt lgkmcnt(0)")
    e("s_barrier")
    for sl in range(3):
        for a_ in range(5):
            r = 36 + 20*sl + 4*a_
            e(f"ds_read_b128 v[{r}:{r+3}], v11 offset:{sl*5120 + a_*1024}")
    for sl in range(3):
        e(f"s_waitcnt lgkmcnt({10-5*sl})")
        for r in range(20):
            e(f"v_add_f32 v{16+r}, v{16+r}, v{36+20*sl+r}")
    e("s_waitcnt vmcnt(0)")
    for a_ in range(5):
        rx = EP + 2*a_
        ra = EP + 10 + 4*a_
        for p in range(2):
            ac = 16 + 4*a_ + 2*p
            e(f"v_lshlrev_b32 v96, 16, v{rx+p}")
            e(f"v_and_b32 v97, 0xffff0000, v{rx+p}")
            e(f"v_lshlrev_b32 v98, 16, v{ra+2*p}")
            e(f"v_lshlrev_b32 v99, 16, v{ra+2*p+1}")
            e(f"v_add_f32 v96, v96, v98")
            e(f"v_add_f32 v97, v97, v99")
            e(f"v_cvt_pk_bf16_f32 v96, v96, v97")
            e(f"v_cvt_pk_bf16_f32 v98, v{ac}, v{ac+1}")
            e(f"v_lshlrev_b32 v100, 16, v96")
            e(f"v_and_b32 v101, 0xffff0000, v96")
            e(f"v_lshlrev_b32 v102, 16, v98")
            e(f"v_and_b32 v103, 0xffff0000, v98")
            e(f"v_add_f32 v100, v100, v102")
            e(f"v_add_f32 v101, v101, v103")
            e(f"v_cvt_pk_bf16_f32 v{rx+p}, v100, v101")
        e(f"buffer_store_dwordx2 v[{rx}:{rx+1}], v9, s[12:15], 0 offen offset:{32*a_}")
    lab("fin_end")
    e("s_endpgm")
    kernel_desc("fin_kernel", ((EP + 30) + 7)//8*8, agpr=80)

hdr = open("cdna_kernels/%s.s.ref" % NAME).read().split("; Override launch")[0]
text = hdr
text += f"; @launch kernel=prep_kernel grid=({PREP_WGS},1,1) block=(256,1,1) lds={PREP_LDS}\n"
text += f"; @launch kernel=mid_kernel grid=({MID_WGS},1,1) block=(256,1,1) lds={MID_LDS}\n"
text += f"; @launch kernel=fin_kernel grid=({G2_WGS},1,1) block=(256,1,1) lds={FIN_LDS}\n"
text += '.amdgcn_target "amdgcn-amd-amdhsa--gfx950"\n'
gen_prep(); gen_mid(); gen_fin()
_o = []; _in = False
for _l in out:
    if _l.startswith("fin_kernel:"): _in = True
    if _l.strip().startswith("buffer_store") and not _in and "nosc" not in SKIP: _l += " sc1"
    _o.append(_l)
out = _o
text += "\n".join(out) + "\n"
dst = sys.argv[1] if len(sys.argv) > 1 else "cdna_kernels/%s.s" % NAME
open(dst, "w").write(text)
print("wrote", dst, len(text))
```

```python
import sys, os
SKIP = os.environ.get("SKIP", "").split(",")
ORDER = int(os.environ.get("ORDER", 0))
PRIO = int(os.environ.get("PRIO", 3))
W2MID = int(os.environ.get("W2MID", 0))
MISH2 = int(os.environ.get("MISH2", 0))
DLYC = int(os.environ.get("DLYC", 0))
G1MAP = int(os.environ.get("G1MAP", 0))
FMAP = int(os.environ.get("FMAP", 1))
DLYL = int(os.environ.get("DLYL", 24))
DLYW = int(os.environ.get("DLYW", 24))
NAME = "parallel_sum__ssm_conv_s4d__dense_activation_mish__prompt"
L, D, N, F = 2048, 640, 128, 1728
WS_XNF = 0x0000000
WS_XNT = 0x0280000
WS_W1F = 0x0500000
WS_W2F = WS_W1F + 2160 * 1024
WS_KR = 0x0A00000
KR_STRIDE = 4224
WS_ACT = 0x0D00000
WS_AT = 0x1400000
WS_CNT = 0x1700000
WS_SIZE = 268435456
LOG2E = 0x3fb8aa3b
INV2PI = 0x3e22f983

out = []
def e(s):
    out.append("    " + s)
def lab(s):
    out.append(s + ":")
def cm(s):
    out.append("    ; " + s)

STAMP = os.environ.get("STAMP")
def stamp_init():
    if not STAMP: return
    e("s_load_dwordx2 s[84:85], s[0:1], 96")
    e("s_waitcnt lgkmcnt(0)")
    e("s_mov_b32 s80, s84"); e("s_and_b32 s81, s85, 0xffff"); e("s_mov_b32 s82, 256"); e("s_mov_b32 s83, 0x00020000")
def stamp(i):
    if not STAMP: return
    e("s_memtime s[86:87]")
    e("s_waitcnt lgkmcnt(0)")
    e(f"s_cmp_lg_u32 s2, {int(STAMP)}")
    e(f"s_cbranch_scc1 st_{stamp.n}")
    e(f"v_mov_b32 v255, s86")
    e(f"v_lshrrev_b32 v254, 6, v0")
    e(f"v_lshlrev_b32 v254, 6, v254")
    e(f"v_add_u32 v254, {4*i}, v254")
    e(f"buffer_store_dword v255, v254, s[80:83], 0 offen")
    lab(f"st_{stamp.n}")
    stamp.n += 1
stamp.n = 0


TL = os.environ.get("TL")
WS_TL = 0x1800000
def tl(i):
    if not TL: return
    e("s_memrealtime s[80:81]")
    e("s_waitcnt lgkmcnt(0)")
    e(f"s_mov_b32 s{84+i}, s80")
def tl_begin():
    if not TL: return
    e("s_mov_b32 s83, s2")
    for i in range(8): e(f"s_mov_b32 s{84+i}, 0")
    tl(0)
def tl_end(kern):
    if not TL: return
    tl(7)
    e("s_cmp_lg_u32 s3, 0")
    e(f"s_cbranch_scc1 tle_{tl_end.n}")
    e("s_lshl_b32 s83, s83, 5")
    e(f"s_add_u32 s83, s83, {WS_TL + kern*65536}")
    e("v_mov_b32 v1, 0")
    for i in range(8):
        e(f"v_mov_b32 v0, s{84+i}")
        e(f"buffer_store_dword v0, v1, s[28:31], s83 offen offset:{4*i}")
    lab(f"tle_{tl_end.n}")
    tl_end.n += 1
tl_end.n = 0

def srd(dst, ptr, size):
    e(f"s_mov_b32 s{dst}, s{ptr}")
    e(f"s_and_b32 s{dst+1}, s{ptr+1}, 0xffff")
    e(f"s_mov_b32 s{dst+2}, {size}")
    e(f"s_mov_b32 s{dst+3}, 0x00020000")

def kernel_begin(name):
    out.append(".text")
    out.append(f".globl {name}")
    out.append(".p2align 8")
    out.append(f".type {name},@function")
    lab(name)

def kernel_desc(name, vgpr, sgpr=96, agpr=0):
    if STAMP: vgpr = 256
    out.append('.section .rodata,"a"')
    out.append(".p2align 6")
    out.append(f".amdhsa_kernel {name}")
    out.append(f"  .amdhsa_next_free_vgpr {vgpr + agpr}")
    out.append(f"  .amdhsa_next_free_sgpr {sgpr}")
    out.append(f"  .amdhsa_accum_offset {(vgpr+3)//4*4}")
    out.append("  .amdhsa_group_segment_fixed_size 0")
    out.append("  .amdhsa_kernarg_size 112")
    out.append("  .amdhsa_user_sgpr_count 2")
    out.append("  .amdhsa_user_sgpr_kernarg_segment_ptr 1")
    out.append("  .amdhsa_system_sgpr_workgroup_id_x 1")
    out.append(".end_amdhsa_kernel")


def claim_tile(cnt_off, per, lds_off, lbl):
    e("s_cmp_lg_u32 s3, 0")
    e(f"s_cbranch_scc1 {lbl}_w")
    e("s_getreg_b32 s20, hwreg(HW_REG_XCC_ID)")
    e("s_and_b32 s20, s20, 7")
    e("s_mov_b32 s21, 0")
    e("s_mov_b64 s[22:23], exec")
    e("s_mov_b64 exec, 1")
    e("v_mov_b32 v12, 1")
    lab(f"{lbl}_l")
    e("s_lshl_b32 s24, s20, 6")
    e(f"s_add_u32 s24, s24, {WS_CNT + cnt_off}")
    e("v_mov_b32 v13, 0")
    e("v_mov_b32 v14, v12")
    e("buffer_atomic_add v14, v13, s[28:31], s24 offen sc0" + ("" if "asc" in SKIP else " sc1"))
    e("s_waitcnt vmcnt(0)")
    e("v_readfirstlane_b32 s25, v14")
    e(f"s_cmp_lt_u32 s25, {per}")
    e(f"s_cbranch_scc1 {lbl}_f")
    e("s_add_u32 s20, s20, 1")
    e("s_and_b32 s20, s20, 7")
    e("s_add_u32 s21, s21, 1")
    e("s_cmp_lt_u32 s21, 8")
    e(f"s_cbranch_scc1 {lbl}_l")
    e("s_mov_b32 s25, 0")
    lab(f"{lbl}_f")
    e(f"s_mul_i32 s20, s20, {per}")
    e("s_add_u32 s20, s20, s25")
    e("v_mov_b32 v14, s20")
    e(f"v_mov_b32 v13, {lds_off}")
    e("ds_write_b32 v13, v14")
    e("s_mov_b64 exec, s[22:23]")
    e("s_waitcnt lgkmcnt(0)")
    lab(f"{lbl}_w")
    e("s_barrier")
    e(f"v_mov_b32 v13, {lds_off}")
    e("ds_read_b32 v14, v13")
    e("s_waitcnt lgkmcnt(0)")
    e("v_readfirstlane_b32 s2, v14")

LN_WGS, WT_WGS, KG_WGS = 128, (68 if W2MID else 135), 640
PREP_WGS = KG_WGS + LN_WGS + WT_WGS
KG_LDS_WAVE = 512
KG_TAB0 = 2048
KG_TAB = 2688
KG_FIN = KG_TAB0 + 4*KG_TAB
PREP_LDS = 36864
LNS = 36

def gen_wt(wg0, wv0, wvend, endlab, kern, dly):
    if "wt" in SKIP: e("s_endpgm")
    if PRIO & 2: e("s_setprio 3")
    e("s_load_dwordx2 s[40:41], s[0:1], 64")
    e("s_load_dwordx2 s[42:43], s[0:1], 80")
    e("s_sub_u32 s4, s2, %d" % wg0)
    e("s_lshl_b32 s4, s4, 2")
    e("s_add_u32 s4, s4, s3")
    if wv0: e("s_add_u32 s4, s4, %d" % wv0)
    if wvend:
        e("s_cmp_ge_u32 s4, %d" % wvend)
        e("s_cbranch_scc1 %s" % endlab)
    e("s_waitcnt lgkmcnt(0)")
    e("s_cmp_ge_u32 s4, 270")
    e("s_cselect_b32 s40, s42, s40")
    e("s_cselect_b32 s41, s43, s41")
    e("s_mov_b32 s5, 3456")
    e("s_mov_b32 s7, 159072863")
    e("s_mov_b32 s34, %d" % WS_W1F)
    e("s_cselect_b32 s5, 1280, s5")
    e("s_cselect_b32 s6, 10, 27")
    e("s_cselect_b32 s7, 429496730, s7")
    e("s_cselect_b32 s32, 270, 0")
    e("s_cselect_b32 s33, 108, 40")
    e("s_cselect_b32 s34, %d, s34" % WS_W2F)
    srd(8, 40, D*F*2); srd(28, 56, WS_SIZE)
    e("s_sub_u32 s32, s4, s32")
    e("s_lshl_b32 s32, s32, 2")
    e("v_lshrrev_b32 v3, 3, v2")
    e("v_and_b32 v4, 7, v2")
    e("v_mul_lo_u32 v5, v3, s5")
    e("v_lshl_add_u32 v5, v4, 4, v5")
    e("s_lshl_b32 s35, s5, 3")
    e("s_mul_i32 s36, s3, %d" % (4*16*144))
    e("v_mul_u32_u24 v6, 144, v3")
    e("v_lshl_add_u32 v6, v4, 4, v6")
    e("v_add_u32 v6, s36, v6")
    e("v_and_b32 v7, 31, v2")
    e("v_lshrrev_b32 v8, 5, v2")
    e("v_mul_u32_u24 v8, %d, v8" % (8*144))
    e("v_lshl_add_u32 v8, v7, 1, v8")
    e("v_add_u32 v8, s36, v8")
    e("v_lshlrev_b32 v9, 4, v2")
    if dly: e(f"s_sleep {dly}")
    for q in range(4):
        e(f"s_add_u32 s37, s32, {q}")
        e("s_mul_hi_u32 s38, s37, s7")
        e("s_mul_i32 s39, s38, s6")
        e("s_sub_u32 s39, s37, s39")
        e(f"s_lshl_b32 s44, s38, 4")
        e(f"s_mul_i32 s44, s44, s5")
        e(f"s_lshl_b32 s45, s39, 7")
        e(f"s_add_u32 s44, s44, s45")
        e(f"buffer_load_dwordx4 v[{16+8*q}:{19+8*q}], v5, s[8:11], s44 offen")
        e(f"s_add_u32 s44, s44, s35")
        e(f"buffer_load_dwordx4 v[{20+8*q}:{23+8*q}], v5, s[8:11], s44 offen")
        e(f"s_lshl_b32 s45, s39, 1")
        e(f"s_mul_i32 s45, s45, s33")
        e(f"s_add_u32 s45, s45, s38")
        e(f"s_lshl_b32 s45, s45, 10")
        e(f"s_add_u32 s{48+q}, s45, s34")
    e("s_lshl_b32 s33, s33, 10")
    for q in range(4):
        e(f"s_waitcnt vmcnt({6-2*q})")
        e(f"ds_write_b128 v6, v[{16+8*q}:{19+8*q}] offset:{q*16*144}")
        e(f"ds_write_b128 v6, v[{20+8*q}:{23+8*q}] offset:{q*16*144 + 8*144}")
    tl(1)
    for q in range(4):
        e("s_waitcnt lgkmcnt(0)") if q == 0 else None
        for f in range(2):
            for el in range(8):
                e(f"ds_read_u16 v{48+16*(q&1)*2+16*f+el}, v8 offset:{q*16*144 + el*144 + 64*f}")
        if q > 0:
            pass
        e("s_waitcnt lgkmcnt(0)")
        for f in range(2):
            for j in range(4):
                r = 48 + 16*(q&1)*2 + 16*f
                e(f"v_lshl_or_b32 v{112+4*f+j}, v{r+2*j+1}, 16, v{r+2*j}")
            if f == 0:
                e(f"buffer_store_dwordx4 v[112:115], v9, s[28:31], s{48+q} offen")
            else:
                e(f"s_add_u32 s{48+q}, s{48+q}, s33")
                e(f"buffer_store_dwordx4 v[116:119], v9, s[28:31], s{48+q} offen")
        if q < 3:
            e("s_nop 1")
    tl(5)
    if TL: e("s_waitcnt vmcnt(0)")
    tl_end(kern)

def gen_prep():
    kernel_begin("prep_kernel")
    e("s_cmp_ge_u32 s2, %d" % PREP_WGS)
    e("s_cbranch_scc1 prep_end")
    e("s_load_dwordx2 s[56:57], s[0:1], 104")
    e("v_lshrrev_b32 v1, 6, v0")
    e("v_and_b32 v2, 63, v0")
    e("s_nop 0")
    e("v_readfirstlane_b32 s3, v1")
    if ORDER:
        e("s_add_u32 s2, s2, %d" % KG_WGS)
        e("s_cmp_ge_u32 s2, %d" % PREP_WGS)
        e("s_cselect_b32 s4, %d, 0" % PREP_WGS)
        e("s_sub_u32 s2, s2, s4")
    tl_begin()
    e("s_cmp_ge_u32 s2, %d" % (KG_WGS + LN_WGS))
    e("s_cbranch_scc1 prep_wt")
    e("s_cmp_ge_u32 s2, %d" % KG_WGS)
    e("s_cbranch_scc1 prep_ln")
    if "kg" in SKIP: e("s_endpgm")
    e("s_load_dwordx4 s[40:43], s[0:1], 8")
    e("s_load_dwordx4 s[44:47], s[0:1], 24")
    e("s_load_dwordx2 s[48:49], s[0:1], 40")
    e("s_mov_b32 s4, s2")
    e("s_mul_i32 s5, s3, %d" % KG_LDS_WAVE)
    e("s_lshl_b32 s6, s4, 8")
    e("s_lshl_b32 s7, s3, 6")
    e("s_add_u32 s6, s6, s7")
    e("v_and_b32 v3, 31, v2")
    e("v_lshl_add_u32 v3, v3, 1, s6")
    e("s_lshl_b32 s7, s4, 1")
    e("v_mov_b32 v4, s7")
    e("s_waitcnt lgkmcnt(0)")
    srd(8, 40, D*N*2); srd(12, 42, D*N*2); srd(16, 44, D*N*2); srd(20, 46, D*N*2)
    srd(24, 48, D*2); srd(28, 56, WS_SIZE)
    for k, sr in enumerate((8, 12, 16, 20)):
        e(f"buffer_load_ushort v{10+k}, v3, s[{sr}:{sr+3}], 0 offen")
    e("buffer_load_ushort v18, v4, s[24:27], 0 offen")
    e("v_and_b32 v8, 15, v2")
    e("v_lshrrev_b32 v9, 4, v2")
    e("v_and_b32 v24, 7, v8")
    e("v_lshrrev_b32 v25, 3, v8")
    e("v_lshl_add_u32 v28, v25, 7, v24")
    e("v_and_b32 v24, 3, v8")
    e("v_lshlrev_b32 v24, 1, v24")
    e("v_bfe_u32 v25, v8, 2, 1")
    e("v_lshl_add_u32 v24, v25, 7, v24")
    e("v_add_u32 v24, 256, v24")
    e("v_and_b32 v25, 1, v8")
    e("v_lshlrev_b32 v25, 2, v25")
    e("v_bfe_u32 v26, v8, 1, 2")
    e("v_lshl_add_u32 v25, v26, 7, v25")
    e("v_add_u32 v25, 512, v25")
    e("v_cmp_gt_u32 vcc, 8, v8")
    e("s_nop 1")
    e("v_cndmask_b32 v29, v25, v24, vcc")
    e("v_lshlrev_b32 v30, 7, v8")
    e("v_add_u32 v30, 0x400, v30")
    e("v_lshlrev_b32 v31, 3, v8")
    for t in range(4):
        e(f"v_cvt_f32_u32 v{28+t}, v{28+t}")
    e("s_mul_i32 s6, s3, %d" % KG_TAB)
    e("s_add_u32 s6, s6, %d" % KG_TAB0)
    e("v_and_b32 v24, 1, v9")
    e("v_lshrrev_b32 v25, 1, v9")
    e("v_lshl_add_u32 v33, v8, 5, s6")
    e("v_lshl_add_u32 v33, v24, 4, v33")
    e("v_lshl_add_u32 v33, v25, 9, v33")
    e("v_lshlrev_b32 v24, 4, v8")
    e("v_lshlrev_b32 v25, 3, v8")
    e("v_cmp_gt_u32 vcc, 2, v9")
    e("s_nop 1")
    e("v_cndmask_b32 v24, v25, v24, vcc")
    e("v_lshl_add_u32 v24, v9, 8, v24")
    e("v_add_u32 v24, s6, v24")
    e("v_add_u32 v34, 1024, v24")
    e("v_mov_b32 v25, 128")
    e("v_cndmask_b32_e64 v24, v25, 8, vcc")
    e("v_add_u32 v36, v34, v24")
    e("v_lshl_add_u32 v38, v8, 2, s6")
    e("v_lshl_add_u32 v38, v9, 8, v38")
    e("v_add_u32 v38, 2048, v38")
    e("v_lshl_add_u32 v39, v9, 4, s5")
    for r in range(40, 52):
        e(f"v_mov_b32 v{r}, 0")
    e("s_waitcnt vmcnt(0)")
    tl(1)
    for r in (10, 11, 12, 13, 18):
        e(f"v_lshlrev_b32 v{r}, 16, v{r}")
    e(f"v_mul_f32 v18, {LOG2E:#x}, v18")
    e(f"v_mul_f32 v10, {LOG2E:#x}, v10")
    e("v_exp_f32 v18, v18")
    e("v_exp_f32 v10, v10")
    e("s_nop 0")
    e("v_cvt_pk_bf16_f32 v18, v18, v18")
    e("v_cvt_pk_bf16_f32 v10, v10, v10")
    e("v_lshlrev_b32 v18, 16, v18")
    e("v_lshlrev_b32 v10, 16, v10")
    e("v_add_f32 v19, v18, v18")
    e("v_and_b32 v5, 31, v2")
    e("v_lshl_add_u32 v5, v5, 4, s5")
    e("v_mul_f32 v20, v10, v18")
    e(f"v_mul_f32 v20, {LOG2E|0x80000000:#x}, v20")
    e("v_mul_f32 v21, v11, v18")
    e(f"v_mul_f32 v21, {INV2PI:#x}, v21")
    e("v_mul_f32 v22, v12, v19")
    e("v_mul_f32 v23, v13, v19")
    e("ds_write_b128 v5, v[20:23]")
    e("s_waitcnt lgkmcnt(0)")
    for st in range(8):
        e(f"ds_read_b128 v[{96+4*st}:{99+4*st}], v39 offset:{64*st}")
    e("s_waitcnt lgkmcnt(0)")
    def kg_valu(st):
        P = 96 + 4*st
        O = 72 + 10*(st & 1)
        v = []
        for t in range(4):
            v.append(f"v_mul_f32 v{52+t}, v{P}, v{28+t}")
            v.append(f"v_mul_f32 v{56+t}, v{P+1}, v{28+t}")
        for t in range(4):
            v.append(f"v_exp_f32 v{52+t}, v{52+t}")
            v.append(f"v_fract_f32 v{56+t}, v{56+t}")
        for t in range(4):
            v.append(f"v_cos_f32 v{60+t}, v{56+t}")
            v.append(f"v_sin_f32 v{64+t}, v{56+t}")
        for t in range(4):
            v.append(f"v_mul_f32 v{60+t}, v{52+t}, v{60+t}")
            v.append(f"v_mul_f32 v{64+t}, v{52+t}, v{64+t}")
        v.append(f"v_mul_f32 v55, v63, v{P+2}")
        v.append(f"v_mul_f32_e64 v59, -v63, v{P+3}")
        v.append(f"v_fma_f32 v55, -v67, v{P+3}, v55")
        v.append(f"v_fma_f32 v59, -v67, v{P+2}, v59")
        def split(xr, xi, H, Lo, t0, t1):
            v.append(f"v_cvt_pk_bf16_f32 v{H}, v{xr}, v{xi}")
            v.append(f"v_lshlrev_b32 v{t0}, 16, v{H}")
            v.append(f"v_and_b32 v{t1}, 0xffff0000, v{H}")
            v.append(f"v_sub_f32 v{t0}, v{xr}, v{t0}")
            v.append(f"v_sub_f32 v{t1}, v{xi}, v{t1}")
            v.append(f"v_cvt_pk_bf16_f32 v{Lo}, v{t0}, v{t1}")
        split(55, 59, O, O+2, 68, 69)
        v.append(f"v_mov_b32 v{O+1}, v{O}")
        v.append(f"v_mov_b32 v{O+3}, v{O+2}")
        for t in range(3):
            split(60+t, 64+t, O+4+2*t, O+5+2*t, 52+t, 56+t)
        return v
    def kg_mfma(st):
        O = 72 + 10*(st & 1)
        m = []
        for h in range(2):
            for t in range(3):
                a = 40 + 4*t
                m.append(f"v_mfma_f32_16x16x16_bf16 v[{a}:{a+3}], v[{O+4+2*t}:{O+5+2*t}], v[{O+2*h}:{O+2*h+1}], v[{a}:{a+3}]")
        return m
    for st in range(9):
        v = kg_valu(st) if st < 8 else []
        m = kg_mfma(st-1) if st > 0 else []
        if "kgm" in SKIP: m = []
        if "kgv" in SKIP: v = []
        if not v:
            e("s_nop 1")
        vi = 0
        for mi, mm_ in enumerate(m):
            tgt = 2 + 7*mi
            while vi < min(tgt, len(v)):
                e(v[vi]); vi += 1
            e(mm_)
        while vi < len(v):
            e(v[vi]); vi += 1
    e("s_nop 15")
    tl(2)
    for r in range(4):
        e(f"ds_write_b32 v33, v{40+r} offset:{4*r}")
    e("ds_write_b32 v34, v44")
    e("ds_write_b32 v34, v45 offset:4")
    e("ds_write_b32 v36, v46")
    e("ds_write_b32 v36, v47 offset:4")
    e("s_mov_b32 exec_hi, 0xffff")
    e("ds_write_b32 v38, v48")
    e("s_mov_b32 exec_hi, 0")
    for r in range(1, 4):
        e(f"ds_write_b32 v38, v{48+r} offset:{64*r}")
    e("s_mov_b32 exec_hi, -1")
    e("s_mul_i32 s4, s4, %d" % KR_STRIDE)
    e("s_add_u32 s4, s4, %d" % WS_KR)
    e("v_lshlrev_b32 v39, 4, v0")
    e("v_lshlrev_b32 v64, 3, v0")
    e("v_sub_u32 v64, 2047, v64")
    e("v_lshlrev_b32 v65, 2, v0")
    e("v_lshlrev_b32 v66, 1, v0")
    for k in range(8):
        e(f"v_subrev_u32 v{52+k}, {k}, v64")
        e(f"v_cvt_f32_u32 v{72+k}, v{52+k}")
    for k in range(4):
        e(f"v_cvt_pk_bf16_f32 v{80+k}, v{72+2*k}, v{73+2*k}")
        e(f"v_and_b32 v{72+2*k}, 0xffff, v{80+k}")
        e(f"v_lshrrev_b32 v{73+2*k}, 16, v{80+k}")
    for k in range(8):
        e(f"v_subrev_u32 v{72+k}, 17024, v{72+k}")
        e(f"v_cmp_gt_u32 vcc, 256, v{52+k}")
        e("s_nop 1")
        e(f"v_cndmask_b32 v{52+k}, v{72+k}, v{52+k}, vcc")
        e(f"v_lshlrev_b32 v{52+k}, 1, v{52+k}")
    e("s_waitcnt lgkmcnt(0)")
    e("s_barrier")
    tl(3)
    for m in range(3):
        for ww in range(4):
            e(f"ds_read_b32 v{72+4*m+ww}, v65 offset:{KG_TAB0 + ww*KG_TAB + 1024*m}")
    for m in range(3):
        e(f"s_waitcnt lgkmcnt({8-4*m})")
        e(f"v_add_f32 v{72+4*m}, v{72+4*m}, v{73+4*m}")
        e(f"v_add_f32 v{74+4*m}, v{74+4*m}, v{75+4*m}")
        e(f"v_add_f32 v{72+4*m}, v{72+4*m}, v{74+4*m}")
        e(f"v_cvt_pk_bf16_f32 v{72+4*m}, v{72+4*m}, v{72+4*m}")
        e(f"ds_write_b16 v66, v{72+4*m} offset:{KG_FIN + 512*m}")
    e("s_waitcnt lgkmcnt(0)")
    e("s_barrier")
    tl(4)
    for k in range(8):
        e(f"ds_read_u16 v{96+k}, v{52+k} offset:{KG_FIN}")
    e("s_waitcnt lgkmcnt(0)")
    for k in range(4):
        e(f"v_lshl_or_b32 v{112+k}, v{97+2*k}, 16, v{96+2*k}")
    e(f"buffer_store_dwordx4 v[112:115], v39, s[28:31], s4 offen")
    for k in range(4):
        e(f"v_mov_b32 v{116+k}, 0")
    e("v_cmp_gt_u32 vcc, 8, v0")
    e("s_and_saveexec_b64 s[32:33], vcc")
    e("s_cbranch_execz prep_end")
    e("s_add_u32 s4, s4, 4096")
    e("buffer_store_dwordx4 v[116:119], v39, s[28:31], s4 offen")
    e("v_lshlrev_b32 v39, 6, v0")
    tl(5)
    if TL: e("s_waitcnt vmcnt(0)")
    tl_end(0)
    e("s_cmp_lg_u32 s2, 0")
    e("s_cbranch_scc1 prep_end")
    e("s_mov_b32 s4, %d" % WS_CNT)
    e("buffer_store_dword v116, v39, s[28:31], s4 offen")
    e("buffer_store_dword v116, v39, s[28:31], s4 offen offset:512")
    e("s_endpgm")
    lab("prep_ln")
    if "ln" in SKIP: e("s_endpgm")
    if PRIO & 1: e("s_setprio 3")
    e("s_load_dwordx2 s[40:41], s[0:1], 0")
    e("s_sub_u32 s2, s2, %d" % KG_WGS)
    e("v_and_b32 v3, 15, v0")
    e("v_lshrrev_b32 v4, 4, v0")
    e("s_lshl_b32 s5, s2, 4")
    e("v_add_u32 v5, s5, v4")
    e("v_mul_u32_u24 v6, 1280, v5")
    e("v_lshl_add_u32 v6, v3, 4, v6")
    e("s_waitcnt lgkmcnt(0)")
    srd(8, 40, L*D*2); srd(28, 56, WS_SIZE)
    if DLYL: e(f"s_sleep {DLYL}")
    for j in range(5):
        e(f"buffer_load_dwordx4 v[{16+4*j}:{19+4*j}], v6, s[8:11], 0 offen offset:{256*j}")
    e("s_lshr_b32 s6, s2, 1")
    e("s_mul_i32 s6, s6, %d" % (40*1024))
    e("s_add_u32 s6, s6, %d" % WS_XNF)
    e("v_lshrrev_b32 v7, 1, v3")
    e("v_lshlrev_b32 v7, 10, v7")
    e("v_and_b32 v8, 1, v3")
    e("v_lshl_add_u32 v7, v8, 9, v7")
    e("v_and_b32 v8, 31, v5")
    e("v_lshl_add_u32 v7, v8, 4, v7")
    e(f"v_mul_u32_u24 v9, {8*LNS}, v3")
    e("v_lshl_add_u32 v9, v4, 1, v9")
    e("s_waitcnt vmcnt(0)")
    tl(1)
    for k in range(20):
        e(f"v_lshlrev_b32 v{40+2*k}, 16, v{16+k}")
        e(f"v_and_b32 v{41+2*k}, 0xffff0000, v{16+k}")
    def lane_sum(srcs, acc):
        for a in range(4):
            e(f"v_add_f32 v{acc+a}, v{srcs[a]}, v{srcs[a+4]}")
        for k in range(8, len(srcs)):
            e(f"v_add_f32 v{acc+(k%4)}, v{acc+(k%4)}, v{srcs[k]}")
        e(f"v_add_f32 v{acc}, v{acc}, v{acc+1}")
        e(f"v_add_f32 v{acc+2}, v{acc+2}, v{acc+3}")
        e(f"v_add_f32 v{acc}, v{acc}, v{acc+2}")
        for sh in (8, 4, 2, 1):
            e("s_nop 1")
            e(f"v_add_f32_dpp v{acc}, v{acc}, v{acc} row_ror:{sh} row_mask:0xf bank_mask:0xf")
    lane_sum(list(range(40, 80)), 10)
    e("v_mul_f32 v14, 0x3acccccd, v10")
    for k in range(40):
        e(f"v_sub_f32 v{80+k}, v{40+k}, v14")
        e(f"v_mul_f32 v{80+k}, v{80+k}, v{80+k}")
    lane_sum(list(range(80, 120)), 10)
    e("v_mul_f32 v10, 0x3acccccd, v10")
    e("v_cvt_pk_bf16_f32 v10, v10, v14")
    e("v_and_b32 v14, 0xffff0000, v10")
    e("v_lshlrev_b32 v10, 16, v10")
    e("v_add_f32 v10, 0x3727c5ac, v10")
    e("v_cvt_pk_bf16_f32 v10, v10, v10")
    e("v_lshlrev_b32 v10, 16, v10")
    e("v_sqrt_f32 v10, v10")
    e("s_nop 0")
    e("v_cvt_pk_bf16_f32 v10, v10, v10")
    e("v_lshlrev_b32 v10, 16, v10")
    e("v_rcp_f32 v11, v10")
    e("s_nop 0")
    e("v_fma_f32 v12, -v10, v11, 2.0")
    e("v_mul_f32 v11, v11, v12")
    for k in range(20):
        e(f"v_sub_f32 v{40+2*k}, v{40+2*k}, v14")
        e(f"v_sub_f32 v{41+2*k}, v{41+2*k}, v14")
        e(f"v_cvt_pk_bf16_f32 v{16+k}, v{40+2*k}, v{41+2*k}")
        e(f"v_lshlrev_b32 v{40+2*k}, 16, v{16+k}")
        e(f"v_and_b32 v{41+2*k}, 0xffff0000, v{16+k}")
        e(f"v_mul_f32 v{40+2*k}, v{40+2*k}, v11")
        e(f"v_mul_f32 v{41+2*k}, v{41+2*k}, v11")
        e(f"v_cvt_pk_bf16_f32 v{16+k}, v{40+2*k}, v{41+2*k}")
    tl(2)
    for j in range(5):
        if "xnf" not in SKIP: e(f"buffer_store_dwordx4 v[{16+4*j}:{19+4*j}], v7, s[28:31], s6 offen")
        if j < 4: e("s_add_u32 s6, s6, 8192")
    for j in range(5):
        for el in range(8):
            r = 16 + 4*j + el//2
            op = "ds_write_b16_d16_hi" if el & 1 else "ds_write_b16"
            e(f"{op} v9, v{r} offset:{(128*j + el)*LNS}")
    e("v_lshrrev_b32 v10, 1, v0")
    e("v_and_b32 v11, 1, v0")
    e(f"v_mul_u32_u24 v12, {LNS}, v10")
    e("v_lshl_add_u32 v12, v11, 4, v12")
    e("v_lshlrev_b32 v13, 4, v0")
    e("s_mul_i32 s6, s2, 20480")
    e("s_add_u32 s6, s6, %d" % WS_XNT)
    e("s_waitcnt lgkmcnt(0)")
    e("s_barrier")
    tl(3)
    for j in range(5):
        e(f"ds_read2_b32 v[{40+4*j}:{41+4*j}], v12 offset0:{(128*j*LNS)//4 % 256} offset1:{(128*j*LNS)//4 % 256 + 1}")
        e(f"ds_read2_b32 v[{42+4*j}:{43+4*j}], v12 offset0:{(128*j*LNS)//4 % 256 + 2} offset1:{(128*j*LNS)//4 % 256 + 3}")
        if j < 4:
            nxt = (128*(j+1)*LNS)//4 // 256 - (128*j*LNS)//4 // 256
            e(f"v_add_u32 v12, {nxt*1024}, v12")
    for j in range(5):
        e(f"s_waitcnt lgkmcnt({2*(4-j)})")
        if "xnt" not in SKIP: e(f"buffer_store_dwordx4 v[{40+4*j}:{43+4*j}], v13, s[28:31], s6 offen")
        if j < 4: e("s_add_u32 s6, s6, %d" % (128*32))
    tl(5)
    if TL: e("s_waitcnt vmcnt(0)")
    tl_end(0)
    e("s_endpgm")
    lab("prep_wt")
    gen_wt(KG_WGS + LN_WGS, 0, 270 if W2MID else 0, "prep_end", 0, DLYW)
    lab("prep_end")
    e("s_endpgm")
    kernel_desc("prep_kernel", 128)

G1_WGS = 256
CV_WGS = 640
W2_WGS = 68 if W2MID else 0
MID_WGS = G1_WGS + CV_WGS + W2_WGS
CS = 4160
def CB(c): return c*CS + (32 if c >= 4 else 0)
UB = CB(7) + CS - 80
G1_NS, G1_BD = int(os.environ.get('G1NS', 5)), int(os.environ.get('G1BD', 3))
MID_LDS = 40960

def mish_pairs(acc0, acc1, b0, b1r, dst, t):
    e(f"v_cvt_pk_bf16_f32 v{t}, v{acc0}, v{acc1}")
    e(f"v_lshlrev_b32 v{t+1}, 16, v{t}")
    e(f"v_and_b32 v{t+2}, 0xffff0000, v{t}")
    e(f"v_add_f32 v{t+1}, v{t+1}, v{b0}")
    e(f"v_add_f32 v{t+2}, v{t+2}, v{b1r}")
    e(f"v_cvt_pk_bf16_f32 v{t}, v{t+1}, v{t+2}")
    e(f"v_lshlrev_b32 v{t+1}, 16, v{t}")
    e(f"v_and_b32 v{t+2}, 0xffff0000, v{t}")
    if MISH2:
        e(f"v_mul_f32 v{t+3}, {LOG2E:#x}, v{t+1}")
        e(f"v_mul_f32 v{t+4}, {LOG2E:#x}, v{t+2}")
        e(f"v_exp_f32 v{t+3}, v{t+3}")
        e(f"v_exp_f32 v{t+4}, v{t+4}")
        e(f"s_nop 0")
        e(f"v_add_f32 v{t+3}, 1.0, v{t+3}")
        e(f"v_add_f32 v{t+4}, 1.0, v{t+4}")
        e(f"v_fmaak_f32 v{t+3}, v{t+3}, v{t+3}, 0x3f800000")
        e(f"v_fmaak_f32 v{t+4}, v{t+4}, v{t+4}, 0x3f800000")
        e(f"v_rcp_f32 v{t+3}, v{t+3}")
        e(f"v_rcp_f32 v{t+4}, v{t+4}")
        e(f"s_nop 0")
        e(f"v_fmaak_f32 v{t+3}, -2.0, v{t+3}, 0x3f800000")
        e(f"v_fmaak_f32 v{t+4}, -2.0, v{t+4}, 0x3f800000")
        e(f"v_mul_f32 v{t+1}, v{t+1}, v{t+3}")
        e(f"v_mul_f32 v{t+2}, v{t+2}, v{t+4}")
    else:
        e(f"v_min_f32 v{t+3}, 0x41a00000, v{t+1}")
        e(f"v_min_f32 v{t+4}, 0x41a00000, v{t+2}")
        e(f"v_mul_f32 v{t+3}, {LOG2E:#x}, v{t+3}")
        e(f"v_mul_f32 v{t+4}, {LOG2E:#x}, v{t+4}")
        e(f"v_exp_f32 v{t+3}, v{t+3}")
        e(f"v_exp_f32 v{t+4}, v{t+4}")
        e(f"s_nop 0")
        e(f"v_add_f32 v{t}, 2.0, v{t+3}")
        e(f"v_add_f32 v{t+5}, 2.0, v{t+4}")
        e(f"v_mul_f32 v{t+3}, v{t+3}, v{t}")
        e(f"v_mul_f32 v{t+4}, v{t+4}, v{t+5}")
        e(f"v_add_f32 v{t}, 2.0, v{t+3}")
        e(f"v_add_f32 v{t+5}, 2.0, v{t+4}")
        e(f"v_rcp_f32 v{t}, v{t}")
        e(f"v_rcp_f32 v{t+5}, v{t+5}")
        e(f"v_mul_f32 v{t+1}, v{t+1}, v{t+3}")
        e(f"v_mul_f32 v{t+2}, v{t+2}, v{t+4}")
        e(f"v_mul_f32 v{t+1}, v{t+1}, v{t}")
        e(f"v_mul_f32 v{t+2}, v{t+2}, v{t+5}")
    e(f"v_cvt_pk_bf16_f32 v{dst}, v{t+1}, v{t+2}")

def gemm_loop(nA, nsteps, KS, NS, frag_reg, acc_reg, voff, srdws, sA0, sB0, stride, spiece, vlds_r_b, vlds_r_lane):
    nR = nA + 4
    npieces = nR * KS
    npw = (npieces + 3) // 4
    SZ = npieces * 1024
    nchunks = nsteps // KS
    assert nsteps % KS == 0
    e(f"s_sub_u32 s{sB0}, s{sB0}, {nA*stride}")
    for i in range(npw):
        g, l = spiece + 2*i, spiece + 2*i + 1
        e(f"s_add_u32 s{l}, s3, {4*i}")
        e(f"s_min_u32 s{l}, s{l}, {npieces-1}")
        sh = {1: 0, 2: 1, 4: 2}[KS]
        e(f"s_lshr_b32 s{g}, s{l}, {sh}")
        e(f"s_cmp_lt_u32 s{g}, {nA}")
        e(f"s_cselect_b32 s6, s{sA0}, s{sB0}")
        e(f"s_mul_i32 s{g}, s{g}, {stride}")
        e(f"s_add_u32 s{g}, s{g}, s6")
        e(f"s_and_b32 s6, s{l}, {KS-1}")
        e(f"s_lshl_b32 s6, s6, 10")
        e(f"s_add_u32 s{g}, s{g}, s6")
        e(f"s_lshl_b32 s{l}, s{l}, 10")
    def dma(c):
        slot = c % NS
        for i in range(npw):
            e(f"s_add_u32 m0, s{spiece+2*i+1}, {slot*SZ}")
            e("s_nop 0")
            e(f"buffer_load_dwordx4 v{voff}, s[{srdws}:{srdws+3}], s{spiece+2*i} offen lds")
        e(f"v_add_u32 v{voff}, {KS*1024}, v{voff}")
    per = nA + 1
    HALF = 2*SZ
    e(f"v_add_u32 v12, {HALF}, v{vlds_r_b}")
    e(f"v_add_u32 v13, {HALF}, v{vlds_r_lane}")
    e(f"v_add_u32 v14, {2*HALF}, v{vlds_r_b}")
    e(f"v_add_u32 v15, {2*HALF}, v{vlds_r_lane}")
    def reads(slot, q):
        fr = frag_reg + 4*per*q
        vb, vl, so = [(vlds_r_b, vlds_r_lane, slot*SZ), (12, 13, slot*SZ - HALF), (14, 15, slot*SZ - 2*HALF)][slot//2]
        e(f"ds_read_b128 v[{fr}:{fr+3}], v{vb} offset:{so + q*1024}")
        for a in range(nA):
            e(f"ds_read_b128 v[{fr+4+4*a}:{fr+7+4*a}], v{vl} offset:{so + a*KS*1024 + q*1024}")
    def mfmas(q):
        fr = frag_reg + 4*per*q
        for a in range(nA):
            ac = acc_reg + 16*a
            e(f"v_mfma_f32_32x32x16_bf16 v[{ac}:{ac+15}], v[{fr+4+4*a}:{fr+7+4*a}], v[{fr}:{fr+3}], v[{ac}:{ac+15}]")
    for c in range(min(NS-1, nchunks)):
        dma(c)
    for c in range(nchunks):
        inflight = min(NS-2, nchunks-1-c)
        e(f"s_waitcnt vmcnt({inflight*npw})")
        e("s_barrier")
        if nA == 2 and c == 0: stamp(2)
        if nA == 2 and c == 1: stamp(3)
        slot = c % NS
        if "rd" not in SKIP:
            for q in range(KS):
                reads(slot, q)
        if c + NS - 1 < nchunks and "dma" not in SKIP:
            dma(c + NS - 1)
        for q in range(KS):
            e(f"s_waitcnt lgkmcnt({(KS-1-q)*per})")
            if "mf" not in SKIP: mfmas(q)

def gen_mid():
    kernel_begin("mid_kernel")
    e("s_cmp_ge_u32 s2, %d" % MID_WGS)
    e("s_cbranch_scc1 mid_end")
    tl_begin()
    e("s_load_dwordx2 s[56:57], s[0:1], 104")
    e("s_load_dwordx2 s[58:59], s[0:1], 72")
    e("s_load_dwordx2 s[60:61], s[0:1], 48")
    e("v_lshrrev_b32 v1, 6, v0")
    e("v_and_b32 v2, 63, v0")
    e("s_nop 0")
    e("v_readfirstlane_b32 s3, v1")
    e("s_waitcnt lgkmcnt(0)")
    srd(28, 56, WS_SIZE)
    if W2MID:
        e("s_cmp_ge_u32 s2, %d" % (G1_WGS + CV_WGS))
        e("s_cbranch_scc1 mid_wt")
    e("s_cmp_ge_u32 s2, %d" % G1_WGS)
    e("s_cbranch_scc1 mid_conv")
    if "g1" in SKIP: e("s_endpgm")
    if PRIO & 4: e("s_setprio 3")
    srd(8, 58, F*2)
    tl(1)
    claim_tile(0, 32, 7168*G1_NS, "mcl")
    tl(2)
    if G1MAP == 0:
        e("s_lshr_b32 s5, s2, 4")
        e("s_and_b32 s4, s2, 15")
    else:
        e("s_lshr_b32 s5, s2, 6")
        e("s_lshl_b32 s5, s5, 2")
        e("s_bfe_u32 s6, s2, 0x20003")
        e("s_add_u32 s5, s5, s6")
        e("s_bfe_u32 s4, s2, 0x10005")
        e("s_lshl_b32 s4, s4, 3")
        e("s_and_b32 s6, s2, 7")
        e("s_add_u32 s4, s4, s6")
    e("s_mul_i32 s6, s4, 7")
    e("s_sub_u32 s7, s4, 12")
    e("s_cmp_lt_u32 s4, 12")
    e("s_cselect_b32 s7, 0, s7")
    e("s_cselect_b32 s26, 7, 6")
    e("s_sub_u32 s4, s6, s7")
    e("v_and_b32 v3, 15, v2")
    e("v_lshrrev_b32 v4, 4, v2")
    e("v_lshrrev_b32 v5, 1, v4")
    e("v_and_b32 v6, 1, v4")
    e("v_lshlrev_b32 v7, 4, v3")
    e("v_lshl_add_u32 v7, v5, 10, v7")
    e("v_lshl_add_u32 v7, v6, 9, v7")
    e("v_mov_b32 v8, v7")
    for k in range(2):
        e(f"s_add_u32 s6, s3, {4*k}")
        e("s_min_u32 s6, s6, 6")
        e(f"s_lshl_b32 s{42+k}, s6, 10")
        e("s_add_u32 s6, s6, s4")
        e("s_min_u32 s6, s6, 107")
        e(f"s_lshr_b32 s{40+k}, s6, 1")
        e(f"s_mul_i32 s{40+k}, s{40+k}, {40*1024}")
        e("s_and_b32 s6, s6, 1")
        e("s_lshl_b32 s6, s6, 8")
        e(f"s_add_u32 s{40+k}, s{40+k}, s6")
        e(f"s_add_u32 s{40+k}, s{40+k}, {WS_W1F}")
    e("s_lshl_b32 s6, s5, 2")
    e("s_add_u32 s27, s6, s3")
    e("s_mul_i32 s44, s27, %d" % (40*1024))
    e("s_add_u32 s44, s44, %d" % WS_XNF)
    e("v_lshlrev_b32 v9, 4, v2")
    NS, BD, NSTEP = G1_NS, G1_BD, 20
    AF, BF, ACC, BI = 16, 44, 44 + 8*G1_BD, 44
    pend = []
    def dma(st):
        for k in range(2):
            e(f"s_add_u32 m0, s{42+k}, {(st % NS)*7168}")
            e("s_nop 0")
            e(f"buffer_load_dwordx4 v7, s[28:31], s{40+k} offen lds")
            pend.append(("a", st))
        e("v_add_u32 v7, 2048, v7")
    def bld(st):
        r = BF + 8*(st % BD)
        e(f"buffer_load_dwordx4 v[{r}:{r+3}], v8, s[28:31], s44 offen")
        e(f"buffer_load_dwordx4 v[{r+4}:{r+7}], v8, s[28:31], s44 offen offset:256")
        pend.append(("b", st)); pend.append(("b", st))
        e("v_add_u32 v8, 2048, v8")
    def wait_for(*tags):
        idx = [i for i, p in enumerate(pend) if p in tags]
        if not idx: return
        last = max(idx)
        e(f"s_waitcnt vmcnt({len(pend) - 1 - last})")
        del pend[:last+1]
    def rdA(st, t):
        e(f"ds_read_b128 v[{AF+4*t}:{AF+4*t+3}], v9 offset:{(st % NS)*7168 + 1024*t}")
    for st in range(max(NS-1, BD)):
        if st < NS-1: dma(st)
        if st < BD: bld(st)
    e("s_lshl_b32 s6, s4, 5")
    e("v_lshl_add_u32 v10, v4, 3, s6")
    for r in range(ACC, ACC+56):
        e(f"v_mov_b32 v{r}, 0")
    wait_for(("a", 0))
    e("s_barrier")
    tl(3)
    for t in range(7): rdA(0, t)
    for st in range(NSTEP):
        if st + 1 < NSTEP:
            wait_for(("a", st+1), ("b", st))
            e("s_barrier")
            if st - 1 + NS < NSTEP: dma(st - 1 + NS)
        else:
            wait_for(("b", st))
        rb = BF + 8*(st % BD)
        for t in range(7):
            e(f"s_waitcnt lgkmcnt({6 if st + 1 < NSTEP else 6 - t})")
            for b_ in range(2):
                ac = ACC + 4*(2*t + b_)
                e(f"v_mfma_f32_16x16x32_bf16 v[{ac}:{ac+3}], v[{AF+4*t}:{AF+4*t+3}], v[{rb+4*b_}:{rb+4*b_+3}], v[{ac}:{ac+3}]")
            if st + 1 < NSTEP: rdA(st+1, t)
        if st + BD < NSTEP: bld(st + BD)
        if st == NSTEP - 2:
            assert BD == 3
            free = [BF + 8*((NSTEP-3) % BD), BF + 8*((NSTEP-2) % BD)]
            BIr = [free[0] + 2*k for k in range(4)] + [free[1] + 2*k for k in range(3)]
            for t in range(7):
                e(f"buffer_load_dwordx2 v[{BIr[t]}:{BIr[t]+1}], v10, s[8:11], 0 offen offset:{32*t}")
                pend.append(("c", 0))
    e("s_nop 7")
    e("s_waitcnt vmcnt(0)")
    tl(4)
    e("s_mul_i32 s6, s27, 108")
    e("s_add_u32 s6, s6, s4")
    e("s_lshl_b32 s6, s6, 10")
    e("s_add_u32 s6, s6, %d" % WS_ACT)
    e("v_lshlrev_b32 v9, 4, v3")
    e("v_lshl_add_u32 v9, v5, 9, v9")
    e("v_lshl_add_u32 v9, v6, 3, v9")
    T = 16
    for t in range(7):
        if t == 6:
            e("s_cmp_lt_u32 s26, 7")
            e("s_cbranch_scc1 g1_end")
        r = BIr[t]
        e(f"v_lshlrev_b32 v{T}, 16, v{r}")
        e(f"v_and_b32 v{T+1}, 0xffff0000, v{r}")
        e(f"v_lshlrev_b32 v{T+2}, 16, v{r+1}")
        e(f"v_and_b32 v{T+3}, 0xffff0000, v{r+1}")
        for b_ in range(2):
            ac = ACC + 4*(2*t + b_)
            d0 = T + 16 + 2*((2*t + b_) % 4)
            mish_pairs(ac, ac+1, T, T+1, d0, T+4)
            mish_pairs(ac+2, ac+3, T+2, T+3, d0+1, T+10)
            off = (t % 4)*1024 + 256*b_
            e(f"buffer_store_dwordx2 v[{d0}:{d0+1}], v9, s[28:31], s6 offen offset:{off}")
        if t == 3: e("s_add_u32 s6, s6, 4096")
    lab("g1_end")
    tl(5)
    if TL: e("s_waitcnt vmcnt(0)")
    tl_end(1)
    e("s_endpgm")
    lab("mid_conv")
    if "cv" in SKIP: e("s_endpgm")
    if PRIO & 8: e("s_setprio 3")
    srd(8, 60, D*2)
    e("s_sub_u32 s4, s2, %d" % G1_WGS)
    e("s_and_b32 s5, s4, 7")
    e("s_lshl_b32 s5, s5, 2")
    e("s_bfe_u32 s6, s4, 0x20003")
    e("s_or_b32 s5, s5, s6")
    e("s_andn2_b32 s4, s4, 31")
    e("s_or_b32 s4, s4, s5")
    e("s_lshl_b32 s5, s4, 1")
    e("v_mov_b32 v3, s5")
    if DLYC: e(f"s_sleep {DLYC}")
    e("buffer_load_ushort v1, v3, s[8:11], 0 offen")
    e("s_lshl_b32 s5, s4, 5")
    e("s_add_u32 s5, s5, %d" % WS_XNT)
    e("v_lshrrev_b32 v4, 1, v0")
    e("v_mul_u32_u24 v4, 20480, v4")
    e("v_and_b32 v5, 1, v0")
    e("v_lshl_add_u32 v4, v5, 4, v4")
    e("buffer_load_dwordx4 v[8:11], v4, s[28:31], s5 offen")
    e("v_lshlrev_b32 v4, 4, v0")
    e("s_mul_i32 s6, s4, %d" % KR_STRIDE)
    e("s_add_u32 s6, s6, %d" % WS_KR)
    e("buffer_load_dwordx4 v[12:15], v4, s[28:31], s6 offen")
    e("buffer_load_dwordx4 v[16:19], v4, s[28:31], s6 offen offset:16")
    e("v_min_u32 v5, 3, v0")
    e("v_lshlrev_b32 v5, 4, v5")
    e("v_add_u32 v5, 4096, v5")
    e("buffer_load_dwordx4 v[20:23], v5, s[28:31], s6 offen")
    e("buffer_load_dwordx4 v[24:27], v5, s[28:31], s6 offen offset:16")
    for k in range(4):
        e(f"v_mov_b32 v{28+k}, 0")
    e("v_min_u32 v6, 154, v0")
    e("v_lshlrev_b32 v6, 4, v6")
    e(f"ds_write_b128 v6, v[28:31] offset:{UB + 80}")
    e("v_lshrrev_b32 v6, 2, v0")
    e("v_mul_u32_u24 v6, 80, v6")
    e("v_and_b32 v7, 3, v0")
    e("v_lshl_add_u32 v6, v7, 4, v6")
    e("s_waitcnt vmcnt(4)")
    tl(6)
    e(f"ds_write_b128 v6, v[8:11] offset:{UB + 32*80}")
    def copies(w, vaddr):
        for c in range(8):
            if c % 2 == 0:
                e(f"ds_write_b128 v{vaddr}, v[{w+c//2}:{w+c//2+3}] offset:{CB(c)}") if (w + c//2) % 2 == 0 else None
                if (w + c//2) % 2:
                    for j in range(4):
                        e(f"v_mov_b32 v{32+j}, v{w+c//2+j}")
                    e(f"ds_write_b128 v{vaddr}, v[32:35] offset:{CB(c)}")
            else:
                for j in range(4):
                    e(f"v_alignbit_b32 v{36+j}, v{w+(c+1)//2+j}, v{w+(c-1)//2+j}, 16")
                e(f"ds_write_b128 v{vaddr}, v[36:39] offset:{CB(c)}")
    e("s_waitcnt vmcnt(2)")
    tl(1)
    copies(12, 4)
    e("s_waitcnt vmcnt(0)")
    copies(20, 5)
    e("s_waitcnt lgkmcnt(0)")
    tl(2)
    e("s_barrier")
    tl(3)
    e("v_and_b32 v3, 31, v2")
    e("v_lshrrev_b32 v4, 5, v2")
    e("v_sub_u32 v5, 7, v3")
    e("v_and_b32 v5, 7, v5")
    e("v_sub_u32 v6, 2047, v3")
    e("v_lshl_add_u32 v6, v4, 3, v6")
    e("v_sub_u32 v6, v6, v5")
    e("v_mul_u32_u24 v7, %d, v5" % CS)
    e("v_lshrrev_b32 v8, 2, v5")
    e("v_lshl_add_u32 v7, v8, 5, v7")
    e("v_lshl_add_u32 v6, v6, 1, v7")
    e("v_mul_u32_u24 v7, 80, v3")
    e("v_lshl_add_u32 v7, v4, 4, v7")
    e(f"v_add_u32 v7, {UB + 32*80}, v7")
    for r in range(16, 48):
        e(f"v_mov_b32 v{r}, 0")
    e("s_lshl_b32 s5, s3, 9")
    e(f"s_add_u32 s5, s5, {64*7 + 64*32}")
    e("v_subrev_u32 v8, s5, v6")
    e("s_mul_i32 s5, s3, 640")
    e(f"s_add_u32 s5, s5, {80*7}")
    e("v_subrev_u32 v9, s5, v7")
    def rd(q):
        base = 48 + (q & 1)*32
        for t in range(2):
            fa = base + 16*t
            e(f"ds_read_b128 v[{fa}:{fa+3}], v8 offset:{64*(7-q) + 2048 + 32*t}")
            e(f"ds_read_b128 v[{fa+4}:{fa+7}], v9 offset:{80*(7-q) + 32*t}")
            e(f"ds_read_b128 v[{fa+8}:{fa+11}], v9 offset:{80*(7-q) + 2560 + 32*t}")
            e(f"ds_read_b128 v[{fa+12}:{fa+15}], v8 offset:{64*(7-q) + 32*t}")
    def mm(q):
        base = 48 + (q & 1)*32
        for t in range(2):
            fa = base + 16*t
            e(f"v_mfma_f32_32x32x16_bf16 v[16:31], v[{fa}:{fa+3}], v[{fa+4}:{fa+7}], v[16:31]")
            e(f"v_mfma_f32_32x32x16_bf16 v[32:47], v[{fa}:{fa+3}], v[{fa+8}:{fa+11}], v[32:47]")
            e(f"v_mfma_f32_32x32x16_bf16 v[32:47], v[{fa+12}:{fa+15}], v[{fa+4}:{fa+7}], v[32:47]")
    rd(0)
    for q in range(8):
        if q < 7:
            rd(q + 1)
            e("s_waitcnt lgkmcnt(8)")
        else:
            e("s_waitcnt lgkmcnt(0)")
        mm(q)
    tl(4)
    e("s_nop 15")
    e("s_barrier")
    e("v_lshlrev_b32 v10, 4, v2")
    e("s_cmp_eq_u32 s3, 0")
    e("s_cbranch_scc1 cv_w0")
    e("s_sub_u32 s5, s3, 1")
    e("s_lshl_b32 s5, s5, 12")
    e("v_add_u32 v11, s5, v10")
    for r in range(4):
        e(f"ds_write_b128 v11, v[{16+4*r}:{19+4*r}] offset:{1024*r}")
    lab("cv_w0")
    e("s_cmp_eq_u32 s3, 1")
    e("s_cbranch_scc1 cv_w1")
    e("s_sub_u32 s5, s3, 1")
    e("s_max_i32 s5, s5, 0")
    e("s_lshl_b32 s5, s5, 12")
    e("v_add_u32 v11, s5, v10")
    for r in range(4):
        e(f"ds_write_b128 v11, v[{32+4*r}:{35+4*r}] offset:{12288 + 1024*r}")
    e("s_branch cv_w2")
    lab("cv_w1")
    for r in range(16):
        e(f"v_mov_b32 v{16+r}, v{32+r}")
    e("v_add_u32 v10, 12288, v10")
    lab("cv_w2")
    e("s_waitcnt lgkmcnt(0)")
    e("s_barrier")
    e("s_cmp_ge_u32 s3, 2")
    e("s_cbranch_scc1 mid_end")
    for sl in range(3):
        for r in range(4):
            e(f"ds_read_b128 v[{48+16*sl+4*r}:{51+16*sl+4*r}], v10 offset:{4096*sl + 1024*r}")
    for sl in range(3):
        e(f"s_waitcnt lgkmcnt({8-4*sl})")
        for r in range(16):
            e(f"v_add_f32 v{16+r}, v{16+r}, v{48+16*sl+r}")
    lab("cv_epi")
    e("s_mul_i32 s5, s3, %d" % (32*80))
    e("v_mul_u32_u24 v11, 80, v3")
    e("v_lshl_add_u32 v11, v4, 3, v11")
    e("v_add_u32 v11, s5, v11")
    for g in range(4):
        e(f"ds_read_b64 v[{32+2*g}:{33+2*g}], v11 offset:{UB + 32*80 + 16*g}")
    e("s_lshl_b32 s5, s4, 12")
    e("s_lshl_b32 s6, s3, 11")
    e("s_add_u32 s5, s5, s6")
    e("s_add_u32 s5, s5, %d" % WS_AT)
    e("v_lshlrev_b32 v12, 6, v3")
    e("v_lshl_add_u32 v12, v4, 3, v12")
    e("s_waitcnt vmcnt(0) lgkmcnt(0)")
    e("v_lshlrev_b32 v1, 16, v1")
    for g in range(4):
        for p in range(2):
            u = 32 + 2*g + p
            y0 = 16 + 4*g + 2*p
            e(f"v_lshlrev_b32 v44, 16, v{u}")
            e(f"v_and_b32 v45, 0xffff0000, v{u}")
            e(f"v_mul_f32 v44, v44, v1")
            e(f"v_mul_f32 v45, v45, v1")
            e(f"v_cvt_pk_bf16_f32 v44, v44, v45")
            e(f"v_cvt_pk_bf16_f32 v46, v{y0}, v{y0+1}")
            e(f"v_lshlrev_b32 v47, 16, v44")
            e(f"v_and_b32 v48, 0xffff0000, v44")
            e(f"v_lshlrev_b32 v49, 16, v46")
            e(f"v_and_b32 v50, 0xffff0000, v46")
            e(f"v_add_f32 v47, v47, v49")
            e(f"v_add_f32 v48, v48, v50")
            e(f"v_cvt_pk_bf16_f32 v{52+2*g+p}, v47, v48")
        e(f"buffer_store_dwordx2 v[{52+2*g}:{53+2*g}], v12, s[28:31], s5 offen offset:{16*g}")
    tl(5)
    if TL: e("s_waitcnt vmcnt(0)")
    tl_end(1)
    if W2MID:
        e("s_endpgm")
        lab("mid_wt")
        gen_wt(G1_WGS + CV_WGS, 270, 540, "mid_end", 1, 0)
    lab("mid_end")
    e("s_endpgm")
    kernel_desc("mid_kernel", 128)

G2_WGS = 256
FIN_LDS = 61440 + 64
FDEPTH = int(os.environ.get('FDEPTH', 4))
def gen_fin():
    kernel_begin("fin_kernel")
    e("s_cmp_ge_u32 s2, %d" % G2_WGS)
    e("s_cbranch_scc1 fin_end")
    e("s_load_dwordx2 s[56:57], s[0:1], 104")
    e("s_load_dwordx2 s[58:59], s[0:1], 0")
    e("s_load_dwordx2 s[60:61], s[0:1], 88")
    e("v_lshrrev_b32 v1, 6, v0")
    e("v_and_b32 v2, 63, v0")
    e("s_nop 0")
    e("v_readfirstlane_b32 s3, v1")
    if "xcc" in SKIP:
        e("s_and_b32 s5, s2, 31")
        e("s_lshr_b32 s4, s2, 5")
    else:
        e("s_waitcnt lgkmcnt(0)")
        srd(28, 56, WS_SIZE)
        claim_tile(512, 32, 61440, "fcl")
        if FMAP == 0:
            e("s_lshr_b32 s5, s2, 5")
            e("s_lshl_b32 s5, s5, 2")
            e("s_and_b32 s6, s2, 3")
            e("s_add_u32 s5, s5, s6")
            e("s_bfe_u32 s4, s2, 0x30002")
        else:
            e("s_lshr_b32 s5, s2, 6")
            e("s_lshl_b32 s5, s5, 3")
            e("s_and_b32 s6, s2, 7")
            e("s_add_u32 s5, s5, s6")
            e("s_bfe_u32 s4, s2, 0x10005")
            e("s_lshl_b32 s4, s4, 2")
            e("s_bfe_u32 s6, s2, 0x20003")
            e("s_add_u32 s4, s4, s6")
    e("v_and_b32 v3, 15, v2")
    e("v_lshrrev_b32 v4, 4, v2")
    e("v_lshrrev_b32 v5, 1, v4")
    e("v_and_b32 v6, 1, v4")
    e("v_lshlrev_b32 v7, 4, v3")
    e("v_lshl_add_u32 v7, v5, 10, v7")
    e("v_lshl_add_u32 v7, v6, 9, v7")
    e("s_lshl_b32 s6, s3, 11")
    e("v_add_u32 v7, s6, v7")
    e("s_mul_i32 s6, s4, 5")
    for a_ in range(5):
        e(f"s_add_u32 s7, s6, {a_}")
        e(f"s_lshr_b32 s{40+a_}, s7, 1")
        e(f"s_mul_i32 s{40+a_}, s{40+a_}, {108*1024}")
        e(f"s_and_b32 s7, s7, 1")
        e(f"s_lshl_b32 s7, s7, 8")
        e(f"s_add_u32 s{40+a_}, s{40+a_}, s7")
        e(f"s_add_u32 s{40+a_}, s{40+a_}, {WS_W2F}")
    e("s_mul_i32 s6, s5, %d" % (2*108*1024))
    e("s_add_u32 s45, s6, %d" % WS_ACT)
    e("s_add_u32 s46, s45, 256")
    e("s_add_u32 s47, s45, %d" % (108*1024))
    e("s_add_u32 s48, s47, 256")
    e("s_waitcnt lgkmcnt(0)")
    srd(28, 56, WS_SIZE); srd(8, 58, L*D*2); srd(12, 60, L*D*2)
    FR = 16
    ACC = 0
    EP = FR + 36*FDEPTH
    pend = []
    def issue(m):
        base = FR + 36*(m % FDEPTH)
        for t in range(9):
            e(f"buffer_load_dwordx4 v[{base+4*t}:{base+4*t+3}], v7, s[28:31], s{40+t} offen")
            pend.append(("f", m))
        e("v_add_u32 v7, 8192, v7")
    def wait_for(tag):
        last = max(i for i, p in enumerate(pend) if p == tag)
        n = len(pend) - 1 - last
        e(f"s_waitcnt vmcnt({n})")
        del pend[:last+1]
    NST = 14
    for m in range(FDEPTH):
        issue(m)
    e("s_lshl_b32 s6, s5, 6")
    e("s_lshl_b32 s7, s3, 4")
    e("s_add_u32 s6, s6, s7")
    e("v_add_u32 v8, s6, v3")
    e("v_mul_u32_u24 v9, 1280, v8")
    e("v_lshl_add_u32 v9, v4, 3, v9")
    e("s_mul_i32 s6, s4, 160")
    e("v_add_u32 v9, s6, v9")
    for a_ in range(5):
        e(f"buffer_load_dwordx2 v[{EP+2*a_}:{EP+2*a_+1}], v9, s[8:11], 0 offen offset:{32*a_}")
        pend.append(("e", 0))
    e("v_lshlrev_b32 v10, 14, v4")
    e("v_lshl_add_u32 v10, v8, 1, v10")
    e("s_mul_i32 s6, s4, %d" % (80*4096))
    e("s_add_u32 s6, s6, %d" % WS_AT)
    for a_ in range(5):
        for j in range(4):
            e(f"buffer_load_ushort v{EP+10+4*a_+j}, v10, s[28:31], s6 offen")
            pend.append(("e", 0))
            e("s_add_u32 s6, s6, %d" % (4096 if j < 3 else 4096*13))
    for r in range(ACC, ACC+80):
        e(f"v_accvgpr_write_b32 a{r}, 0")
    for m in range(NST):
        if m == NST - 1:
            e("s_cmp_ge_u32 s3, 2")
            e("s_cbranch_scc1 fin_red")
        wait_for(("f", m))
        base = FR + 36*(m % FDEPTH)
        for b_ in range(4):
            for a_ in range(5):
                ac = ACC + 4*(5*b_ + a_)
                e(f"v_mfma_f32_16x16x32_bf16 a[{ac}:{ac+3}], v[{base+4*a_}:{base+4*a_+3}], v[{base+20+4*b_}:{base+23+4*b_}], a[{ac}:{ac+3}]")
        if m + FDEPTH < NST:
            if m + FDEPTH == NST - 1:
                e("s_cmp_ge_u32 s3, 2")
                e("s_cselect_b32 s6, 8192, 0")
                e("v_subrev_u32 v7, s6, v7")
            issue(m + FDEPTH)
    lab("fin_red")
    e("s_nop 15")
    e("s_waitcnt vmcnt(0)")
    e("v_lshlrev_b32 v11, 4, v2")
    for w in range(4):
        if w < 3:
            e(f"s_cmp_lg_u32 s3, {w}")
            e(f"s_cbranch_scc1 fin_w{w+1}")
        for b_ in range(4):
            if b_ == w: continue
            slot = w if w < b_ else w - 1
            for a_ in range(5):
                ac = ACC + 4*(5*b_ + a_)
                e(f"ds_write_b128 v11, a[{ac}:{ac+3}] offset:{(b_*3 + slot)*5120 + a_*1024}")
        for r in range(20):
            e(f"v_accvgpr_read_b32 v{16+r}, a{ACC+20*w+r}")
        if w < 3:
            e("s_branch fin_rd")
            lab(f"fin_w{w+1}")
    lab("fin_rd")
    e("s_mul_i32 s6, s3, %d" % (3*5120))
    e("v_add_u32 v11, s6, v11")
    e("s_waitcnt lgkmcnt(0)")
    e("s_barrier")
    for sl in range(3):
        for a_ in range(5):
            r = 36 + 20*sl + 4*a_
            e(f"ds_read_b128 v[{r}:{r+3}], v11 offset:{sl*5120 + a_*1024}")
    for sl in range(3):
        e(f"s_waitcnt lgkmcnt({10-5*sl})")
        for r in range(20):
            e(f"v_add_f32 v{16+r}, v{16+r}, v{36+20*sl+r}")
    e("s_waitcnt vmcnt(0)")
    for a_ in range(5):
        rx = EP + 2*a_
        ra = EP + 10 + 4*a_
        for p in range(2):
            ac = 16 + 4*a_ + 2*p
            e(f"v_lshlrev_b32 v96, 16, v{rx+p}")
            e(f"v_and_b32 v97, 0xffff0000, v{rx+p}")
            e(f"v_lshlrev_b32 v98, 16, v{ra+2*p}")
            e(f"v_lshlrev_b32 v99, 16, v{ra+2*p+1}")
            e(f"v_add_f32 v96, v96, v98")
            e(f"v_add_f32 v97, v97, v99")
            e(f"v_cvt_pk_bf16_f32 v96, v96, v97")
            e(f"v_cvt_pk_bf16_f32 v98, v{ac}, v{ac+1}")
            e(f"v_lshlrev_b32 v100, 16, v96")
            e(f"v_and_b32 v101, 0xffff0000, v96")
            e(f"v_lshlrev_b32 v102, 16, v98")
            e(f"v_and_b32 v103, 0xffff0000, v98")
            e(f"v_add_f32 v100, v100, v102")
            e(f"v_add_f32 v101, v101, v103")
            e(f"v_cvt_pk_bf16_f32 v{rx+p}, v100, v101")
        e(f"buffer_store_dwordx2 v[{rx}:{rx+1}], v9, s[12:15], 0 offen offset:{32*a_}")
    lab("fin_end")
    e("s_endpgm")
    kernel_desc("fin_kernel", ((EP + 30) + 7)//8*8, agpr=80)

hdr = open("cdna_kernels/%s.s.ref" % NAME).read().split("; Override launch")[0]
text = hdr
text += f"; @launch kernel=prep_kernel grid=({PREP_WGS},1,1) block=(256,1,1) lds={PREP_LDS}\n"
text += f"; @launch kernel=mid_kernel grid=({MID_WGS},1,1) block=(256,1,1) lds={MID_LDS}\n"
text += f"; @launch kernel=fin_kernel grid=({G2_WGS},1,1) block=(256,1,1) lds={FIN_LDS}\n"
text += '.amdgcn_target "amdgcn-amd-amdhsa--gfx950"\n'
gen_prep(); gen_mid(); gen_fin()
_o = []; _in = False
for _l in out:
    if _l.startswith("fin_kernel:"): _in = True
    if _l.strip().startswith("buffer_store") and not _in and "nosc" not in SKIP: _l += " sc1"
    _o.append(_l)
out = _o
text += "\n".join(out) + "\n"
dst = sys.argv[1] if len(sys.argv) > 1 else "cdna_kernels/%s.s" % NAME
open(dst, "w").write(text)
print("wrote", dst, len(text))
```

```python
import sys, os
SKIP = os.environ.get("SKIP", "").split(",")
ORDER = int(os.environ.get("ORDER", 0))
PRIO = int(os.environ.get("PRIO", 3))
W2MID = int(os.environ.get("W2MID", 0))
CONV2 = int(os.environ.get("CONV2", 1))
MISH2 = int(os.environ.get("MISH2", 0))
DLYC = int(os.environ.get("DLYC", 24))
G1MAP = int(os.environ.get("G1MAP", 1))
FMAP = int(os.environ.get("FMAP", 1))
DLYL = int(os.environ.get("DLYL", 16))
DLYW = int(os.environ.get("DLYW", 24))
NAME = "parallel_sum__ssm_conv_s4d__dense_activation_mish__prompt"
L, D, N, F = 2048, 640, 128, 1728
WS_XNF = 0x0000000
WS_XNT = 0x0280000
WS_W1F = 0x0500000
WS_W2F = WS_W1F + 2160 * 1024
WS_KR = 0x0A00000
KR_STRIDE = 4224
WS_ACT = 0x0D00000
WS_AT = 0x1400000
WS_CNT = 0x1700000
WS_SIZE = 268435456
LOG2E = 0x3fb8aa3b
INV2PI = 0x3e22f983

out = []
def e(s):
    out.append("    " + s)
def lab(s):
    out.append(s + ":")
def cm(s):
    out.append("    ; " + s)

STAMP = os.environ.get("STAMP")
def stamp_init():
    if not STAMP: return
    e("s_load_dwordx2 s[84:85], s[0:1], 96")
    e("s_waitcnt lgkmcnt(0)")
    e("s_mov_b32 s80, s84"); e("s_and_b32 s81, s85, 0xffff"); e("s_mov_b32 s82, 256"); e("s_mov_b32 s83, 0x00020000")
def stamp(i):
    if not STAMP: return
    e("s_memtime s[86:87]")
    e("s_waitcnt lgkmcnt(0)")
    e(f"s_cmp_lg_u32 s2, {int(STAMP)}")
    e(f"s_cbranch_scc1 st_{stamp.n}")
    e(f"v_mov_b32 v255, s86")
    e(f"v_lshrrev_b32 v254, 6, v0")
    e(f"v_lshlrev_b32 v254, 6, v254")
    e(f"v_add_u32 v254, {4*i}, v254")
    e(f"buffer_store_dword v255, v254, s[80:83], 0 offen")
    lab(f"st_{stamp.n}")
    stamp.n += 1
stamp.n = 0


TL = os.environ.get("TL")
WS_TL = 0x1800000
def tl(i):
    if not TL: return
    e("s_memrealtime s[80:81]")
    e("s_waitcnt lgkmcnt(0)")
    e(f"s_mov_b32 s{84+i}, s80")
def tl_begin():
    if not TL: return
    e("s_mov_b32 s83, s2")
    for i in range(8): e(f"s_mov_b32 s{84+i}, 0")
    tl(0)
def tl_end(kern):
    if not TL: return
    tl(7)
    e("s_getreg_b32 s90, hwreg(HW_REG_HW_ID)")
    e("s_getreg_b32 s80, hwreg(HW_REG_XCC_ID)")
    e("s_and_b32 s90, s90, 0xffff")
    e("s_lshl_b32 s80, s80, 16")
    e("s_or_b32 s90, s90, s80")
    e("s_or_b32 s90, s90, 0x40000000")
    e("s_cmp_lg_u32 s3, 0")
    e(f"s_cbranch_scc1 tle_{tl_end.n}")
    e("s_lshl_b32 s83, s83, 5")
    e(f"s_add_u32 s83, s83, {WS_TL + kern*65536}")
    e("v_mov_b32 v1, 0")
    for i in range(8):
        e(f"v_mov_b32 v0, s{84+i}")
        e(f"buffer_store_dword v0, v1, s[28:31], s83 offen offset:{4*i}")
    lab(f"tle_{tl_end.n}")
    tl_end.n += 1
tl_end.n = 0

def srd(dst, ptr, size):
    e(f"s_mov_b32 s{dst}, s{ptr}")
    e(f"s_and_b32 s{dst+1}, s{ptr+1}, 0xffff")
    e(f"s_mov_b32 s{dst+2}, {size}")
    e(f"s_mov_b32 s{dst+3}, 0x00020000")

def kernel_begin(name):
    out.append(".text")
    out.append(f".globl {name}")
    out.append(".p2align 8")
    out.append(f".type {name},@function")
    lab(name)

def kernel_desc(name, vgpr, sgpr=96, agpr=0):
    if STAMP: vgpr = 256
    out.append('.section .rodata,"a"')
    out.append(".p2align 6")
    out.append(f".amdhsa_kernel {name}")
    out.append(f"  .amdhsa_next_free_vgpr {vgpr + agpr}")
    out.append(f"  .amdhsa_next_free_sgpr {sgpr}")
    out.append(f"  .amdhsa_accum_offset {(vgpr+3)//4*4}")
    out.append("  .amdhsa_group_segment_fixed_size 0")
    out.append("  .amdhsa_kernarg_size 112")
    out.append("  .amdhsa_user_sgpr_count 2")
    out.append("  .amdhsa_user_sgpr_kernarg_segment_ptr 1")
    out.append("  .amdhsa_system_sgpr_workgroup_id_x 1")
    out.append(".end_amdhsa_kernel")


def claim_tile(cnt_off, per, lds_off, lbl):
    e("s_cmp_lg_u32 s3, 0")
    e(f"s_cbranch_scc1 {lbl}_w")
    e("s_getreg_b32 s20, hwreg(HW_REG_XCC_ID)")
    e("s_and_b32 s20, s20, 7")
    e("s_mov_b32 s21, 0")
    e("s_mov_b64 s[22:23], exec")
    e("s_mov_b64 exec, 1")
    e("v_mov_b32 v12, 1")
    lab(f"{lbl}_l")
    e("s_lshl_b32 s24, s20, 6")
    e(f"s_add_u32 s24, s24, {WS_CNT + cnt_off}")
    e("v_mov_b32 v13, 0")
    e("v_mov_b32 v14, v12")
    e("buffer_atomic_add v14, v13, s[28:31], s24 offen sc0" + ("" if "asc" in SKIP else " sc1"))
    e("s_waitcnt vmcnt(0)")
    e("v_readfirstlane_b32 s25, v14")
    e(f"s_cmp_lt_u32 s25, {per}")
    e(f"s_cbranch_scc1 {lbl}_f")
    e("s_add_u32 s20, s20, 1")
    e("s_and_b32 s20, s20, 7")
    e("s_add_u32 s21, s21, 1")
    e("s_cmp_lt_u32 s21, 8")
    e(f"s_cbranch_scc1 {lbl}_l")
    e("s_mov_b32 s25, 0")
    lab(f"{lbl}_f")
    e(f"s_mul_i32 s20, s20, {per}")
    e("s_add_u32 s20, s20, s25")
    e("v_mov_b32 v14, s20")
    e(f"v_mov_b32 v13, {lds_off}")
    e("ds_write_b32 v13, v14")
    e("s_mov_b64 exec, s[22:23]")
    e("s_waitcnt lgkmcnt(0)")
    lab(f"{lbl}_w")
    e("s_barrier")
    e(f"v_mov_b32 v13, {lds_off}")
    e("ds_read_b32 v14, v13")
    e("s_waitcnt lgkmcnt(0)")
    e("v_readfirstlane_b32 s2, v14")

LN_WGS, WT_WGS, KG_WGS = 128, (68 if W2MID else 135), 640
PREP_WGS = KG_WGS + LN_WGS + WT_WGS
KG_LDS_WAVE = 512
KG_TAB0 = 2048
KG_TAB = 2688
KG_FIN = KG_TAB0 + 4*KG_TAB
PREP_LDS = 36864
LNS = 36

def gen_wt(wg0, wv0, wvend, endlab, kern, dly):
    if "wt" in SKIP: e("s_endpgm")
    if PRIO & 2: e("s_setprio 3")
    e("s_load_dwordx2 s[40:41], s[0:1], 64")
    e("s_load_dwordx2 s[42:43], s[0:1], 80")
    e("s_sub_u32 s4, s2, %d" % wg0)
    e("s_lshl_b32 s4, s4, 2")
    e("s_add_u32 s4, s4, s3")
    if wv0: e("s_add_u32 s4, s4, %d" % wv0)
    if wvend:
        e("s_cmp_ge_u32 s4, %d" % wvend)
        e("s_cbranch_scc1 %s" % endlab)
    e("s_waitcnt lgkmcnt(0)")
    e("s_cmp_ge_u32 s4, 270")
    e("s_cselect_b32 s40, s42, s40")
    e("s_cselect_b32 s41, s43, s41")
    e("s_mov_b32 s5, 3456")
    e("s_mov_b32 s7, 159072863")
    e("s_mov_b32 s34, %d" % WS_W1F)
    e("s_cselect_b32 s5, 1280, s5")
    e("s_cselect_b32 s6, 10, 27")
    e("s_cselect_b32 s7, 429496730, s7")
    e("s_cselect_b32 s32, 270, 0")
    e("s_cselect_b32 s33, 108, 40")
    e("s_cselect_b32 s34, %d, s34" % WS_W2F)
    srd(8, 40, D*F*2); srd(28, 56, WS_SIZE)
    e("s_sub_u32 s32, s4, s32")
    e("s_lshl_b32 s32, s32, 2")
    e("v_lshrrev_b32 v3, 3, v2")
    e("v_and_b32 v4, 7, v2")
    e("v_mul_lo_u32 v5, v3, s5")
    e("v_lshl_add_u32 v5, v4, 4, v5")
    e("s_lshl_b32 s35, s5, 3")
    e("s_mul_i32 s36, s3, %d" % (4*16*144))
    e("v_mul_u32_u24 v6, 144, v3")
    e("v_lshl_add_u32 v6, v4, 4, v6")
    e("v_add_u32 v6, s36, v6")
    e("v_and_b32 v7, 31, v2")
    e("v_lshrrev_b32 v8, 5, v2")
    e("v_mul_u32_u24 v8, %d, v8" % (8*144))
    e("v_lshl_add_u32 v8, v7, 1, v8")
    e("v_add_u32 v8, s36, v8")
    e("v_lshlrev_b32 v9, 4, v2")
    if dly: e(f"s_sleep {dly}")
    for q in range(4):
        e(f"s_add_u32 s37, s32, {q}")
        e("s_mul_hi_u32 s38, s37, s7")
        e("s_mul_i32 s39, s38, s6")
        e("s_sub_u32 s39, s37, s39")
        e(f"s_lshl_b32 s44, s38, 4")
        e(f"s_mul_i32 s44, s44, s5")
        e(f"s_lshl_b32 s45, s39, 7")
        e(f"s_add_u32 s44, s44, s45")
        e(f"buffer_load_dwordx4 v[{16+8*q}:{19+8*q}], v5, s[8:11], s44 offen")
        e(f"s_add_u32 s44, s44, s35")
        e(f"buffer_load_dwordx4 v[{20+8*q}:{23+8*q}], v5, s[8:11], s44 offen")
        e(f"s_lshl_b32 s45, s39, 1")
        e(f"s_mul_i32 s45, s45, s33")
        e(f"s_add_u32 s45, s45, s38")
        e(f"s_lshl_b32 s45, s45, 10")
        e(f"s_add_u32 s{48+q}, s45, s34")
    e("s_lshl_b32 s33, s33, 10")
    for q in range(4):
        e(f"s_waitcnt vmcnt({6-2*q})")
        e(f"ds_write_b128 v6, v[{16+8*q}:{19+8*q}] offset:{q*16*144}")
        e(f"ds_write_b128 v6, v[{20+8*q}:{23+8*q}] offset:{q*16*144 + 8*144}")
    tl(1)
    for q in range(4):
        e("s_waitcnt lgkmcnt(0)") if q == 0 else None
        for f in range(2):
            for el in range(8):
                e(f"ds_read_u16 v{48+16*(q&1)*2+16*f+el}, v8 offset:{q*16*144 + el*144 + 64*f}")
        if q > 0:
            pass
        e("s_waitcnt lgkmcnt(0)")
        for f in range(2):
            for j in range(4):
                r = 48 + 16*(q&1)*2 + 16*f
                e(f"v_lshl_or_b32 v{112+4*f+j}, v{r+2*j+1}, 16, v{r+2*j}")
            if f == 0:
                e(f"buffer_store_dwordx4 v[112:115], v9, s[28:31], s{48+q} offen")
            else:
                e(f"s_add_u32 s{48+q}, s{48+q}, s33")
                e(f"buffer_store_dwordx4 v[116:119], v9, s[28:31], s{48+q} offen")
        if q < 3:
            e("s_nop 1")
    tl(5)
    if TL: e("s_waitcnt vmcnt(0)")
    tl_end(kern)

def gen_prep():
    kernel_begin("prep_kernel")
    e("s_cmp_ge_u32 s2, %d" % PREP_WGS)
    e("s_cbranch_scc1 prep_end")
    e("s_load_dwordx2 s[56:57], s[0:1], 104")
    e("v_lshrrev_b32 v1, 6, v0")
    e("v_and_b32 v2, 63, v0")
    e("s_nop 0")
    e("v_readfirstlane_b32 s3, v1")
    if ORDER:
        e("s_add_u32 s2, s2, %d" % KG_WGS)
        e("s_cmp_ge_u32 s2, %d" % PREP_WGS)
        e("s_cselect_b32 s4, %d, 0" % PREP_WGS)
        e("s_sub_u32 s2, s2, s4")
    tl_begin()
    e("s_cmp_ge_u32 s2, %d" % (KG_WGS + LN_WGS))
    e("s_cbranch_scc1 prep_wt")
    e("s_cmp_ge_u32 s2, %d" % KG_WGS)
    e("s_cbranch_scc1 prep_ln")
    if "kg" in SKIP: e("s_endpgm")
    e("s_load_dwordx4 s[40:43], s[0:1], 8")
    e("s_load_dwordx4 s[44:47], s[0:1], 24")
    e("s_load_dwordx2 s[48:49], s[0:1], 40")
    e("s_mov_b32 s4, s2")
    e("s_mul_i32 s5, s3, %d" % KG_LDS_WAVE)
    e("s_lshl_b32 s6, s4, 8")
    e("s_lshl_b32 s7, s3, 6")
    e("s_add_u32 s6, s6, s7")
    e("v_and_b32 v3, 31, v2")
    e("v_lshl_add_u32 v3, v3, 1, s6")
    e("s_lshl_b32 s7, s4, 1")
    e("v_mov_b32 v4, s7")
    e("s_waitcnt lgkmcnt(0)")
    srd(8, 40, D*N*2); srd(12, 42, D*N*2); srd(16, 44, D*N*2); srd(20, 46, D*N*2)
    srd(24, 48, D*2); srd(28, 56, WS_SIZE)
    for k, sr in enumerate((8, 12, 16, 20)):
        e(f"buffer_load_ushort v{10+k}, v3, s[{sr}:{sr+3}], 0 offen")
    e("buffer_load_ushort v18, v4, s[24:27], 0 offen")
    e("v_and_b32 v8, 15, v2")
    e("v_lshrrev_b32 v9, 4, v2")
    e("v_and_b32 v24, 7, v8")
    e("v_lshrrev_b32 v25, 3, v8")
    e("v_lshl_add_u32 v28, v25, 7, v24")
    e("v_and_b32 v24, 3, v8")
    e("v_lshlrev_b32 v24, 1, v24")
    e("v_bfe_u32 v25, v8, 2, 1")
    e("v_lshl_add_u32 v24, v25, 7, v24")
    e("v_add_u32 v24, 256, v24")
    e("v_and_b32 v25, 1, v8")
    e("v_lshlrev_b32 v25, 2, v25")
    e("v_bfe_u32 v26, v8, 1, 2")
    e("v_lshl_add_u32 v25, v26, 7, v25")
    e("v_add_u32 v25, 512, v25")
    e("v_cmp_gt_u32 vcc, 8, v8")
    e("s_nop 1")
    e("v_cndmask_b32 v29, v25, v24, vcc")
    e("v_lshlrev_b32 v30, 7, v8")
    e("v_add_u32 v30, 0x400, v30")
    e("v_lshlrev_b32 v31, 3, v8")
    for t in range(4):
        e(f"v_cvt_f32_u32 v{28+t}, v{28+t}")
    e("s_mul_i32 s6, s3, %d" % KG_TAB)
    e("s_add_u32 s6, s6, %d" % KG_TAB0)
    e("v_and_b32 v24, 1, v9")
    e("v_lshrrev_b32 v25, 1, v9")
    e("v_lshl_add_u32 v33, v8, 5, s6")
    e("v_lshl_add_u32 v33, v24, 4, v33")
    e("v_lshl_add_u32 v33, v25, 9, v33")
    e("v_lshlrev_b32 v24, 4, v8")
    e("v_lshlrev_b32 v25, 3, v8")
    e("v_cmp_gt_u32 vcc, 2, v9")
    e("s_nop 1")
    e("v_cndmask_b32 v24, v25, v24, vcc")
    e("v_lshl_add_u32 v24, v9, 8, v24")
    e("v_add_u32 v24, s6, v24")
    e("v_add_u32 v34, 1024, v24")
    e("v_mov_b32 v25, 128")
    e("v_cndmask_b32_e64 v24, v25, 8, vcc")
    e("v_add_u32 v36, v34, v24")
    e("v_lshl_add_u32 v38, v8, 2, s6")
    e("v_lshl_add_u32 v38, v9, 8, v38")
    e("v_add_u32 v38, 2048, v38")
    e("v_lshl_add_u32 v39, v9, 4, s5")
    for r in range(40, 52):
        e(f"v_mov_b32 v{r}, 0")
    e("s_waitcnt vmcnt(0)")
    tl(1)
    for r in (10, 11, 12, 13, 18):
        e(f"v_lshlrev_b32 v{r}, 16, v{r}")
    e(f"v_mul_f32 v18, {LOG2E:#x}, v18")
    e(f"v_mul_f32 v10, {LOG2E:#x}, v10")
    e("v_exp_f32 v18, v18")
    e("v_exp_f32 v10, v10")
    e("s_nop 0")
    e("v_cvt_pk_bf16_f32 v18, v18, v18")
    e("v_cvt_pk_bf16_f32 v10, v10, v10")
    e("v_lshlrev_b32 v18, 16, v18")
    e("v_lshlrev_b32 v10, 16, v10")
    e("v_add_f32 v19, v18, v18")
    e("v_and_b32 v5, 31, v2")
    e("v_lshl_add_u32 v5, v5, 4, s5")
    e("v_mul_f32 v20, v10, v18")
    e(f"v_mul_f32 v20, {LOG2E|0x80000000:#x}, v20")
    e("v_mul_f32 v21, v11, v18")
    e(f"v_mul_f32 v21, {INV2PI:#x}, v21")
    e("v_mul_f32 v22, v12, v19")
    e("v_mul_f32 v23, v13, v19")
    e("ds_write_b128 v5, v[20:23]")
    e("s_waitcnt lgkmcnt(0)")
    for st in range(8):
        e(f"ds_read_b128 v[{96+4*st}:{99+4*st}], v39 offset:{64*st}")
    e("s_waitcnt lgkmcnt(0)")
    def kg_valu(st):
        P = 96 + 4*st
        O = 72 + 10*(st & 1)
        v = []
        for t in range(4):
            v.append(f"v_mul_f32 v{52+t}, v{P}, v{28+t}")
            v.append(f"v_mul_f32 v{56+t}, v{P+1}, v{28+t}")
        for t in range(4):
            v.append(f"v_exp_f32 v{52+t}, v{52+t}")
            v.append(f"v_fract_f32 v{56+t}, v{56+t}")
        for t in range(4):
            v.append(f"v_cos_f32 v{60+t}, v{56+t}")
            v.append(f"v_sin_f32 v{64+t}, v{56+t}")
        for t in range(4):
            v.append(f"v_mul_f32 v{60+t}, v{52+t}, v{60+t}")
            v.append(f"v_mul_f32 v{64+t}, v{52+t}, v{64+t}")
        v.append(f"v_mul_f32 v55, v63, v{P+2}")
        v.append(f"v_mul_f32_e64 v59, -v63, v{P+3}")
        v.append(f"v_fma_f32 v55, -v67, v{P+3}, v55")
        v.append(f"v_fma_f32 v59, -v67, v{P+2}, v59")
        def split(xr, xi, H, Lo, t0, t1):
            v.append(f"v_cvt_pk_bf16_f32 v{H}, v{xr}, v{xi}")
            v.append(f"v_lshlrev_b32 v{t0}, 16, v{H}")
            v.append(f"v_and_b32 v{t1}, 0xffff0000, v{H}")
            v.append(f"v_sub_f32 v{t0}, v{xr}, v{t0}")
            v.append(f"v_sub_f32 v{t1}, v{xi}, v{t1}")
            v.append(f"v_cvt_pk_bf16_f32 v{Lo}, v{t0}, v{t1}")
        split(55, 59, O, O+2, 68, 69)
        v.append(f"v_mov_b32 v{O+1}, v{O}")
        v.append(f"v_mov_b32 v{O+3}, v{O+2}")
        for t in range(3):
            split(60+t, 64+t, O+4+2*t, O+5+2*t, 52+t, 56+t)
        return v
    def kg_mfma(st):
        O = 72 + 10*(st & 1)
        m = []
        for h in range(2):
            for t in range(3):
                a = 40 + 4*t
                m.append(f"v_mfma_f32_16x16x16_bf16 v[{a}:{a+3}], v[{O+4+2*t}:{O+5+2*t}], v[{O+2*h}:{O+2*h+1}], v[{a}:{a+3}]")
        return m
    for st in range(9):
        v = kg_valu(st) if st < 8 else []
        m = kg_mfma(st-1) if st > 0 else []
        if "kgm" in SKIP: m = []
        if "kgv" in SKIP: v = []
        if not v:
            e("s_nop 1")
        vi = 0
        for mi, mm_ in enumerate(m):
            tgt = 2 + 7*mi
            while vi < min(tgt, len(v)):
                e(v[vi]); vi += 1
            e(mm_)
        while vi < len(v):
            e(v[vi]); vi += 1
    e("s_nop 15")
    tl(2)
    for r in range(4):
        e(f"ds_write_b32 v33, v{40+r} offset:{4*r}")
    e("ds_write_b32 v34, v44")
    e("ds_write_b32 v34, v45 offset:4")
    e("ds_write_b32 v36, v46")
    e("ds_write_b32 v36, v47 offset:4")
    e("s_mov_b32 exec_hi, 0xffff")
    e("ds_write_b32 v38, v48")
    e("s_mov_b32 exec_hi, 0")
    for r in range(1, 4):
        e(f"ds_write_b32 v38, v{48+r} offset:{64*r}")
    e("s_mov_b32 exec_hi, -1")
    e("s_mul_i32 s4, s4, %d" % KR_STRIDE)
    e("s_add_u32 s4, s4, %d" % WS_KR)
    e("v_lshlrev_b32 v39, 4, v0")
    e("v_lshlrev_b32 v64, 3, v0")
    e("v_sub_u32 v64, 2047, v64")
    e("v_lshlrev_b32 v65, 2, v0")
    e("v_lshlrev_b32 v66, 1, v0")
    for k in range(8):
        e(f"v_subrev_u32 v{52+k}, {k}, v64")
        e(f"v_cvt_f32_u32 v{72+k}, v{52+k}")
    for k in range(4):
        e(f"v_cvt_pk_bf16_f32 v{80+k}, v{72+2*k}, v{73+2*k}")
        e(f"v_and_b32 v{72+2*k}, 0xffff, v{80+k}")
        e(f"v_lshrrev_b32 v{73+2*k}, 16, v{80+k}")
    for k in range(8):
        e(f"v_subrev_u32 v{72+k}, 17024, v{72+k}")
        e(f"v_cmp_gt_u32 vcc, 256, v{52+k}")
        e("s_nop 1")
        e(f"v_cndmask_b32 v{52+k}, v{72+k}, v{52+k}, vcc")
        e(f"v_lshlrev_b32 v{52+k}, 1, v{52+k}")
    e("s_waitcnt lgkmcnt(0)")
    e("s_barrier")
    tl(3)
    for m in range(3):
        for ww in range(4):
            e(f"ds_read_b32 v{72+4*m+ww}, v65 offset:{KG_TAB0 + ww*KG_TAB + 1024*m}")
    for m in range(3):
        e(f"s_waitcnt lgkmcnt({8-4*m})")
        e(f"v_add_f32 v{72+4*m}, v{72+4*m}, v{73+4*m}")
        e(f"v_add_f32 v{74+4*m}, v{74+4*m}, v{75+4*m}")
        e(f"v_add_f32 v{72+4*m}, v{72+4*m}, v{74+4*m}")
        e(f"v_cvt_pk_bf16_f32 v{72+4*m}, v{72+4*m}, v{72+4*m}")
        e(f"ds_write_b16 v66, v{72+4*m} offset:{KG_FIN + 512*m}")
    e("s_waitcnt lgkmcnt(0)")
    e("s_barrier")
    tl(4)
    for k in range(8):
        e(f"ds_read_u16 v{96+k}, v{52+k} offset:{KG_FIN}")
    e("s_waitcnt lgkmcnt(0)")
    for k in range(4):
        e(f"v_lshl_or_b32 v{112+k}, v{97+2*k}, 16, v{96+2*k}")
    e(f"buffer_store_dwordx4 v[112:115], v39, s[28:31], s4 offen")
    for k in range(4):
        e(f"v_mov_b32 v{116+k}, 0")
    e("v_cmp_gt_u32 vcc, 8, v0")
    e("s_and_saveexec_b64 s[32:33], vcc")
    e("s_cbranch_execz prep_end")
    e("s_add_u32 s4, s4, 4096")
    e("buffer_store_dwordx4 v[116:119], v39, s[28:31], s4 offen")
    e("v_lshlrev_b32 v39, 6, v0")
    tl(5)
    if TL: e("s_waitcnt vmcnt(0)")
    tl_end(0)
    e("s_cmp_lg_u32 s2, 0")
    e("s_cbranch_scc1 prep_end")
    e("s_mov_b32 s4, %d" % WS_CNT)
    e("buffer_store_dword v116, v39, s[28:31], s4 offen")
    e("buffer_store_dword v116, v39, s[28:31], s4 offen offset:512")
    e("s_endpgm")
    lab("prep_ln")
    if "ln" in SKIP: e("s_endpgm")
    if PRIO & 1: e("s_setprio 3")
    e("s_load_dwordx2 s[40:41], s[0:1], 0")
    e("s_sub_u32 s2, s2, %d" % KG_WGS)
    e("v_and_b32 v3, 15, v0")
    e("v_lshrrev_b32 v4, 4, v0")
    e("s_lshl_b32 s5, s2, 4")
    e("v_add_u32 v5, s5, v4")
    e("v_mul_u32_u24 v6, 1280, v5")
    e("v_lshl_add_u32 v6, v3, 4, v6")
    e("s_waitcnt lgkmcnt(0)")
    srd(8, 40, L*D*2); srd(28, 56, WS_SIZE)
    if DLYL: e(f"s_sleep {DLYL}")
    for j in range(5):
        e(f"buffer_load_dwordx4 v[{16+4*j}:{19+4*j}], v6, s[8:11], 0 offen offset:{256*j}")
    e("s_lshr_b32 s6, s2, 1")
    e("s_mul_i32 s6, s6, %d" % (40*1024))
    e("s_add_u32 s6, s6, %d" % WS_XNF)
    e("v_lshrrev_b32 v7, 1, v3")
    e("v_lshlrev_b32 v7, 10, v7")
    e("v_and_b32 v8, 1, v3")
    e("v_lshl_add_u32 v7, v8, 9, v7")
    e("v_and_b32 v8, 31, v5")
    e("v_lshl_add_u32 v7, v8, 4, v7")
    e(f"v_mul_u32_u24 v9, {8*LNS}, v3")
    e("v_lshl_add_u32 v9, v4, 1, v9")
    e("s_waitcnt vmcnt(0)")
    tl(1)
    for k in range(20):
        e(f"v_lshlrev_b32 v{40+2*k}, 16, v{16+k}")
        e(f"v_and_b32 v{41+2*k}, 0xffff0000, v{16+k}")
    def lane_sum(srcs, acc):
        for a in range(4):
            e(f"v_add_f32 v{acc+a}, v{srcs[a]}, v{srcs[a+4]}")
        for k in range(8, len(srcs)):
            e(f"v_add_f32 v{acc+(k%4)}, v{acc+(k%4)}, v{srcs[k]}")
        e(f"v_add_f32 v{acc}, v{acc}, v{acc+1}")
        e(f"v_add_f32 v{acc+2}, v{acc+2}, v{acc+3}")
        e(f"v_add_f32 v{acc}, v{acc}, v{acc+2}")
        for sh in (8, 4, 2, 1):
            e("s_nop 1")
            e(f"v_add_f32_dpp v{acc}, v{acc}, v{acc} row_ror:{sh} row_mask:0xf bank_mask:0xf")
    lane_sum(list(range(40, 80)), 10)
    e("v_mul_f32 v14, 0x3acccccd, v10")
    for k in range(40):
        e(f"v_sub_f32 v{80+k}, v{40+k}, v14")
        e(f"v_mul_f32 v{80+k}, v{80+k}, v{80+k}")
    lane_sum(list(range(80, 120)), 10)
    e("v_mul_f32 v10, 0x3acccccd, v10")
    e("v_cvt_pk_bf16_f32 v10, v10, v14")
    e("v_and_b32 v14, 0xffff0000, v10")
    e("v_lshlrev_b32 v10, 16, v10")
    e("v_add_f32 v10, 0x3727c5ac, v10")
    e("v_cvt_pk_bf16_f32 v10, v10, v10")
    e("v_lshlrev_b32 v10, 16, v10")
    e("v_sqrt_f32 v10, v10")
    e("s_nop 0")
    e("v_cvt_pk_bf16_f32 v10, v10, v10")
    e("v_lshlrev_b32 v10, 16, v10")
    e("v_rcp_f32 v11, v10")
    e("s_nop 0")
    e("v_fma_f32 v12, -v10, v11, 2.0")
    e("v_mul_f32 v11, v11, v12")
    for k in range(20):
        e(f"v_sub_f32 v{40+2*k}, v{40+2*k}, v14")
        e(f"v_sub_f32 v{41+2*k}, v{41+2*k}, v14")
        e(f"v_cvt_pk_bf16_f32 v{16+k}, v{40+2*k}, v{41+2*k}")
        e(f"v_lshlrev_b32 v{40+2*k}, 16, v{16+k}")
        e(f"v_and_b32 v{41+2*k}, 0xffff0000, v{16+k}")
        e(f"v_mul_f32 v{40+2*k}, v{40+2*k}, v11")
        e(f"v_mul_f32 v{41+2*k}, v{41+2*k}, v11")
        e(f"v_cvt_pk_bf16_f32 v{16+k}, v{40+2*k}, v{41+2*k}")
    tl(2)
    for j in range(5):
        if "xnf" not in SKIP: e(f"buffer_store_dwordx4 v[{16+4*j}:{19+4*j}], v7, s[28:31], s6 offen")
        if j < 4: e("s_add_u32 s6, s6, 8192")
    for j in range(5):
        for el in range(8):
            r = 16 + 4*j + el//2
            op = "ds_write_b16_d16_hi" if el & 1 else "ds_write_b16"
            e(f"{op} v9, v{r} offset:{(128*j + el)*LNS}")
    e("v_lshrrev_b32 v10, 1, v0")
    e("v_and_b32 v11, 1, v0")
    e(f"v_mul_u32_u24 v12, {LNS}, v10")
    e("v_lshl_add_u32 v12, v11, 4, v12")
    e("v_lshlrev_b32 v13, 4, v0")
    e("s_mul_i32 s6, s2, 20480")
    e("s_add_u32 s6, s6, %d" % WS_XNT)
    e("s_waitcnt lgkmcnt(0)")
    e("s_barrier")
    tl(3)
    for j in range(5):
        e(f"ds_read2_b32 v[{40+4*j}:{41+4*j}], v12 offset0:{(128*j*LNS)//4 % 256} offset1:{(128*j*LNS)//4 % 256 + 1}")
        e(f"ds_read2_b32 v[{42+4*j}:{43+4*j}], v12 offset0:{(128*j*LNS)//4 % 256 + 2} offset1:{(128*j*LNS)//4 % 256 + 3}")
        if j < 4:
            nxt = (128*(j+1)*LNS)//4 // 256 - (128*j*LNS)//4 // 256
            e(f"v_add_u32 v12, {nxt*1024}, v12")
    for j in range(5):
        e(f"s_waitcnt lgkmcnt({2*(4-j)})")
        if "xnt" not in SKIP: e(f"buffer_store_dwordx4 v[{40+4*j}:{43+4*j}], v13, s[28:31], s6 offen")
        if j < 4: e("s_add_u32 s6, s6, %d" % (128*32))
    tl(5)
    if TL: e("s_waitcnt vmcnt(0)")
    tl_end(0)
    e("s_endpgm")
    lab("prep_wt")
    gen_wt(KG_WGS + LN_WGS, 0, 270 if W2MID else 0, "prep_end", 0, DLYW)
    lab("prep_end")
    e("s_endpgm")
    kernel_desc("prep_kernel", 128)

G1_WGS = 256
CV_WGS = 640
W2_WGS = 68 if W2MID else 0
MID_WGS = G1_WGS + CV_WGS + W2_WGS
CS = 4160
def CB(c): return c*CS + (32 if c >= 4 else 0)
UB = CB(7) + CS - 80
G1_NS, G1_BD = int(os.environ.get('G1NS', 5)), int(os.environ.get('G1BD', 3))
MID_LDS = 40960

def mish_pairs(acc0, acc1, b0, b1r, dst, t):
    e(f"v_cvt_pk_bf16_f32 v{t}, v{acc0}, v{acc1}")
    e(f"v_lshlrev_b32 v{t+1}, 16, v{t}")
    e(f"v_and_b32 v{t+2}, 0xffff0000, v{t}")
    e(f"v_add_f32 v{t+1}, v{t+1}, v{b0}")
    e(f"v_add_f32 v{t+2}, v{t+2}, v{b1r}")
    e(f"v_cvt_pk_bf16_f32 v{t}, v{t+1}, v{t+2}")
    e(f"v_lshlrev_b32 v{t+1}, 16, v{t}")
    e(f"v_and_b32 v{t+2}, 0xffff0000, v{t}")
    if MISH2:
        e(f"v_mul_f32 v{t+3}, {LOG2E:#x}, v{t+1}")
        e(f"v_mul_f32 v{t+4}, {LOG2E:#x}, v{t+2}")
        e(f"v_exp_f32 v{t+3}, v{t+3}")
        e(f"v_exp_f32 v{t+4}, v{t+4}")
        e(f"s_nop 0")
        e(f"v_add_f32 v{t+3}, 1.0, v{t+3}")
        e(f"v_add_f32 v{t+4}, 1.0, v{t+4}")
        e(f"v_fmaak_f32 v{t+3}, v{t+3}, v{t+3}, 0x3f800000")
        e(f"v_fmaak_f32 v{t+4}, v{t+4}, v{t+4}, 0x3f800000")
        e(f"v_rcp_f32 v{t+3}, v{t+3}")
        e(f"v_rcp_f32 v{t+4}, v{t+4}")
        e(f"s_nop 0")
        e(f"v_fmaak_f32 v{t+3}, -2.0, v{t+3}, 0x3f800000")
        e(f"v_fmaak_f32 v{t+4}, -2.0, v{t+4}, 0x3f800000")
        e(f"v_mul_f32 v{t+1}, v{t+1}, v{t+3}")
        e(f"v_mul_f32 v{t+2}, v{t+2}, v{t+4}")
    else:
        e(f"v_min_f32 v{t+3}, 0x41a00000, v{t+1}")
        e(f"v_min_f32 v{t+4}, 0x41a00000, v{t+2}")
        e(f"v_mul_f32 v{t+3}, {LOG2E:#x}, v{t+3}")
        e(f"v_mul_f32 v{t+4}, {LOG2E:#x}, v{t+4}")
        e(f"v_exp_f32 v{t+3}, v{t+3}")
        e(f"v_exp_f32 v{t+4}, v{t+4}")
        e(f"s_nop 0")
        e(f"v_add_f32 v{t}, 2.0, v{t+3}")
        e(f"v_add_f32 v{t+5}, 2.0, v{t+4}")
        e(f"v_mul_f32 v{t+3}, v{t+3}, v{t}")
        e(f"v_mul_f32 v{t+4}, v{t+4}, v{t+5}")
        e(f"v_add_f32 v{t}, 2.0, v{t+3}")
        e(f"v_add_f32 v{t+5}, 2.0, v{t+4}")
        e(f"v_rcp_f32 v{t}, v{t}")
        e(f"v_rcp_f32 v{t+5}, v{t+5}")
        e(f"v_mul_f32 v{t+1}, v{t+1}, v{t+3}")
        e(f"v_mul_f32 v{t+2}, v{t+2}, v{t+4}")
        e(f"v_mul_f32 v{t+1}, v{t+1}, v{t}")
        e(f"v_mul_f32 v{t+2}, v{t+2}, v{t+5}")
    e(f"v_cvt_pk_bf16_f32 v{dst}, v{t+1}, v{t+2}")

def gemm_loop(nA, nsteps, KS, NS, frag_reg, acc_reg, voff, srdws, sA0, sB0, stride, spiece, vlds_r_b, vlds_r_lane):
    nR = nA + 4
    npieces = nR * KS
    npw = (npieces + 3) // 4
    SZ = npieces * 1024
    nchunks = nsteps // KS
    assert nsteps % KS == 0
    e(f"s_sub_u32 s{sB0}, s{sB0}, {nA*stride}")
    for i in range(npw):
        g, l = spiece + 2*i, spiece + 2*i + 1
        e(f"s_add_u32 s{l}, s3, {4*i}")
        e(f"s_min_u32 s{l}, s{l}, {npieces-1}")
        sh = {1: 0, 2: 1, 4: 2}[KS]
        e(f"s_lshr_b32 s{g}, s{l}, {sh}")
        e(f"s_cmp_lt_u32 s{g}, {nA}")
        e(f"s_cselect_b32 s6, s{sA0}, s{sB0}")
        e(f"s_mul_i32 s{g}, s{g}, {stride}")
        e(f"s_add_u32 s{g}, s{g}, s6")
        e(f"s_and_b32 s6, s{l}, {KS-1}")
        e(f"s_lshl_b32 s6, s6, 10")
        e(f"s_add_u32 s{g}, s{g}, s6")
        e(f"s_lshl_b32 s{l}, s{l}, 10")
    def dma(c):
        slot = c % NS
        for i in range(npw):
            e(f"s_add_u32 m0, s{spiece+2*i+1}, {slot*SZ}")
            e("s_nop 0")
            e(f"buffer_load_dwordx4 v{voff}, s[{srdws}:{srdws+3}], s{spiece+2*i} offen lds")
        e(f"v_add_u32 v{voff}, {KS*1024}, v{voff}")
    per = nA + 1
    HALF = 2*SZ
    e(f"v_add_u32 v12, {HALF}, v{vlds_r_b}")
    e(f"v_add_u32 v13, {HALF}, v{vlds_r_lane}")
    e(f"v_add_u32 v14, {2*HALF}, v{vlds_r_b}")
    e(f"v_add_u32 v15, {2*HALF}, v{vlds_r_lane}")
    def reads(slot, q):
        fr = frag_reg + 4*per*q
        vb, vl, so = [(vlds_r_b, vlds_r_lane, slot*SZ), (12, 13, slot*SZ - HALF), (14, 15, slot*SZ - 2*HALF)][slot//2]
        e(f"ds_read_b128 v[{fr}:{fr+3}], v{vb} offset:{so + q*1024}")
        for a in range(nA):
            e(f"ds_read_b128 v[{fr+4+4*a}:{fr+7+4*a}], v{vl} offset:{so + a*KS*1024 + q*1024}")
    def mfmas(q):
        fr = frag_reg + 4*per*q
        for a in range(nA):
            ac = acc_reg + 16*a
            e(f"v_mfma_f32_32x32x16_bf16 v[{ac}:{ac+15}], v[{fr+4+4*a}:{fr+7+4*a}], v[{fr}:{fr+3}], v[{ac}:{ac+15}]")
    for c in range(min(NS-1, nchunks)):
        dma(c)
    for c in range(nchunks):
        inflight = min(NS-2, nchunks-1-c)
        e(f"s_waitcnt vmcnt({inflight*npw})")
        e("s_barrier")
        if nA == 2 and c == 0: stamp(2)
        if nA == 2 and c == 1: stamp(3)
        slot = c % NS
        if "rd" not in SKIP:
            for q in range(KS):
                reads(slot, q)
        if c + NS - 1 < nchunks and "dma" not in SKIP:
            dma(c + NS - 1)
        for q in range(KS):
            e(f"s_waitcnt lgkmcnt({(KS-1-q)*per})")
            if "mf" not in SKIP: mfmas(q)


UB2 = CB(7) + CS
HS = 2432
def gen_conv2():
    if "cv" in SKIP: e("s_endpgm")
    if PRIO & 8: e("s_setprio 3")
    srd(8, 60, D*2)
    e("s_sub_u32 s4, s2, %d" % G1_WGS)
    e("s_and_b32 s5, s4, 7")
    e("s_lshl_b32 s5, s5, 2")
    e("s_bfe_u32 s6, s4, 0x20003")
    e("s_or_b32 s5, s5, s6")
    e("s_andn2_b32 s4, s4, 31")
    e("s_or_b32 s4, s4, s5")
    e("s_lshl_b32 s5, s4, 1")
    e("v_mov_b32 v3, s5")
    if DLYC: e(f"s_sleep {DLYC}")
    e("buffer_load_ushort v1, v3, s[8:11], 0 offen")
    e("s_lshl_b32 s5, s4, 5")
    e("s_add_u32 s5, s5, %d" % WS_XNT)
    e("v_lshrrev_b32 v4, 1, v0")
    e("v_mul_u32_u24 v4, 20480, v4")
    e("v_and_b32 v5, 1, v0")
    e("v_lshl_add_u32 v4, v5, 4, v4")
    e("buffer_load_dwordx4 v[8:11], v4, s[28:31], s5 offen")
    e("v_lshlrev_b32 v4, 4, v0")
    e("s_mul_i32 s6, s4, %d" % KR_STRIDE)
    e("s_add_u32 s6, s6, %d" % WS_KR)
    e("buffer_load_dwordx4 v[12:15], v4, s[28:31], s6 offen")
    e("buffer_load_dwordx4 v[16:19], v4, s[28:31], s6 offen offset:16")
    e("v_min_u32 v5, 3, v0")
    e("v_lshlrev_b32 v5, 4, v5")
    e("v_add_u32 v5, 4096, v5")
    e("buffer_load_dwordx4 v[20:23], v5, s[28:31], s6 offen")
    e("buffer_load_dwordx4 v[24:27], v5, s[28:31], s6 offen offset:16")
    for k in range(4):
        e(f"v_mov_b32 v{28+k}, 0")
    e("v_min_u32 v6, 31, v0")
    e("v_lshrrev_b32 v7, 4, v6")
    e("v_and_b32 v6, 15, v6")
    e("v_lshlrev_b32 v6, 4, v6")
    e(f"v_mad_u32_u24 v6, v7, {HS}, v6") if False else (e(f"v_mul_u32_u24 v7, {HS}, v7"), e("v_add_u32 v6, v6, v7"))
    e(f"ds_write_b128 v6, v[28:31] offset:{UB2}")
    e("v_lshrrev_b32 v6, 1, v0")
    e("v_lshlrev_b32 v6, 4, v6")
    e("v_and_b32 v7, 1, v0")
    e(f"v_mul_u32_u24 v7, {HS}, v7")
    e("v_add_u32 v6, v6, v7")
    e("s_waitcnt vmcnt(4)")
    e(f"ds_write_b128 v6, v[8:11] offset:{UB2 + 256}")
    def copies(w, vaddr):
        for c in range(8):
            if c % 2 == 0:
                e(f"ds_write_b128 v{vaddr}, v[{w+c//2}:{w+c//2+3}] offset:{CB(c)}") if (w + c//2) % 2 == 0 else None
                if (w + c//2) % 2:
                    for j in range(4):
                        e(f"v_mov_b32 v{32+j}, v{w+c//2+j}")
                    e(f"ds_write_b128 v{vaddr}, v[32:35] offset:{CB(c)}")
            else:
                for j in range(4):
                    e(f"v_alignbit_b32 v{36+j}, v{w+(c+1)//2+j}, v{w+(c-1)//2+j}, 16")
                e(f"ds_write_b128 v{vaddr}, v[36:39] offset:{CB(c)}")
    e("s_waitcnt vmcnt(2)")
    tl(1)
    copies(12, 4)
    e("s_waitcnt vmcnt(0)")
    copies(20, 5)
    e("v_and_b32 v3, 15, v2")
    e("v_lshrrev_b32 v4, 4, v2")
    e("v_sub_u32 v5, 7, v3")
    e("v_and_b32 v5, 7, v5")
    e("v_sub_u32 v6, 2031, v3")
    e("v_lshl_add_u32 v6, v4, 3, v6")
    e("v_sub_u32 v6, v6, v5")
    e("v_mul_u32_u24 v7, %d, v5" % CS)
    e("v_lshrrev_b32 v8, 2, v5")
    e("v_lshl_add_u32 v7, v8, 5, v7")
    e("v_lshl_add_u32 v6, v6, 1, v7")
    e("s_lshl_b32 s5, s3, 7")
    e(f"s_add_u32 s5, s5, {64 + 3584}")
    e("v_subrev_u32 v8, s5, v6")
    e("v_and_b32 v5, 1, v4")
    e("v_lshrrev_b32 v6, 1, v4")
    e(f"v_mul_u32_u24 v7, {HS}, v5")
    e("v_add_u32 v9, v3, v6")
    e("v_lshl_add_u32 v9, v9, 4, v7")
    e("s_lshl_b32 s5, s3, 6")
    e(f"s_sub_u32 s5, {UB2 + 16*15 - 32}, s5")
    e("v_add_u32 v9, s5, v9")
    e(f"v_mul_u32_u24 v11, {HS}, v6")
    e("v_lshl_add_u32 v11, v3, 4, v11")
    e("v_lshl_add_u32 v11, v5, 3, v11")
    e("s_lshl_b32 s5, s3, 9")
    e("v_add_u32 v11, s5, v11")
    e("v_lshlrev_b32 v12, 5, v3")
    e("v_lshl_add_u32 v12, v4, 3, v12")
    e("v_lshlrev_b32 v10, 4, v2")
    e("s_lshl_b32 s5, s3, 13")
    e("v_add_u32 v13, s5, v10")
    e("s_lshl_b32 s5, s3, 10")
    e("v_add_u32 v10, s5, v10")
    for r in range(16, 48):
        e(f"v_mov_b32 v{r}, 0")
    e("s_waitcnt lgkmcnt(0)")
    tl(2)
    e("s_barrier")
    tl(3)
    free = list(range(48, 128, 4))
    loc = {}
    pend = []
    order = [("A",0),("B",7),("B",0),("A",7),("A",1),("B",6),("B",1),("A",6),("A",2),("B",5),("B",2),("A",5),("A",3),("B",4),("B",3),("A",4)]
    todo = [(st,) + o for st in range(2) for o in order]
    def rd(n):
        for _ in range(n):
            if not todo or not free or len(pend) >= 15: return
            key = todo.pop(0); r = free.pop(0); loc[key] = r
            st, ab, i = key
            if ab == "A": e(f"ds_read_b128 v[{r}:{r+3}], v8 offset:{512*(7-i) + 64*(1-st)}")
            else: e(f"ds_read_b128 v[{r}:{r+3}], v9 offset:{256*i + 32*(1-st)}")
            pend.append(key)
    def need(keys):
        idx = [pend.index(k) for k in keys if k in pend]
        if idx:
            last = max(idx)
            e(f"s_waitcnt lgkmcnt({len(pend) - 1 - last})")
            del pend[:last+1]
    groups = []
    for s_ in (7, 6, 5, 4, 3, 2, 1, 0):
        n = min(s_, 7 - s_)
        g = [(s_, m) for m in range(n + 1)] + [(j, s_) for j in range(min(s_ - 1, 7 - s_) + 1)]
        groups.append((s_, g))
    assert sum(len(g) for _, g in groups) == 36
    rd(20)
    for st in range(2):
        for s_, g in groups:
            need([(st, "B", j) for j, m in g] + [(st, "A", m) for j, m in g])
            for j, m in g:
                ac = 16 + 4*(j + m); a = loc[(st, "A", m)]; b = loc[(st, "B", j)]
                e(f"v_mfma_f32_16x16x32_bf16 v[{ac}:{ac+3}], v[{a}:{a+3}], v[{b}:{b+3}], v[{ac}:{ac+3}]")
            free.append(loc[(st, "A", s_)]); free.append(loc[(st, "B", s_)])
            rd(8)
    assert not todo and not pend
    tl(4)
    e("s_nop 15")
    e("s_barrier")
    for t in range(8):
        e(f"ds_write_b128 v10, v[{16+4*t}:{19+4*t}] offset:{4096*t}")
    for tt in range(2):
        e(f"ds_read_b64 v[{80+2*tt}:{81+2*tt}], v11 offset:{UB2 + 256 + 256*tt}")
    e("s_lshl_b32 s5, s4, 12")
    e("s_lshl_b32 s6, s3, 10")
    e("s_add_u32 s5, s5, s6")
    e("s_add_u32 s5, s5, %d" % WS_AT)
    e("v_lshlrev_b32 v1, 16, v1")
    e("s_waitcnt lgkmcnt(0)")
    e("s_barrier")
    for i in range(8):
        e(f"ds_read_b128 v[{48+4*i}:{51+4*i}], v13 offset:{1024*i}")
    for tt in range(2):
        for p_ in range(2):
            u = 80 + 2*tt + p_
            e(f"v_lshlrev_b32 v84, 16, v{u}")
            e(f"v_and_b32 v85, 0xffff0000, v{u}")
            e(f"v_mul_f32 v84, v84, v1")
            e(f"v_mul_f32 v85, v85, v1")
            e(f"v_cvt_pk_bf16_f32 v84, v84, v85")
            e(f"v_lshlrev_b32 v{88+4*tt+2*p_}, 16, v84")
            e(f"v_and_b32 v{89+4*tt+2*p_}, 0xffff0000, v84")
    for tt in range(2):
        e(f"s_waitcnt lgkmcnt({4 - 4*tt})")
        b0 = 48 + 16*tt
        for r in range(4):
            e(f"v_add_f32 v{b0+r}, v{b0+r}, v{b0+4+r}")
            e(f"v_add_f32 v{b0+8+r}, v{b0+8+r}, v{b0+12+r}")
        for r in range(4):
            e(f"v_add_f32 v{b0+r}, v{b0+r}, v{b0+8+r}")
        for p_ in range(2):
            e(f"v_cvt_pk_bf16_f32 v84, v{b0+2*p_}, v{b0+2*p_+1}")
            e(f"v_lshlrev_b32 v85, 16, v84")
            e(f"v_and_b32 v86, 0xffff0000, v84")
            e(f"v_add_f32 v85, v85, v{88+4*tt+2*p_}")
            e(f"v_add_f32 v86, v86, v{89+4*tt+2*p_}")
            e(f"v_cvt_pk_bf16_f32 v{96+2*tt+p_}, v85, v86")
        e(f"buffer_store_dwordx2 v[{96+2*tt}:{97+2*tt}], v12, s[28:31], s5 offen offset:{512*tt}")
    tl(5)
    if TL: e("s_waitcnt vmcnt(0)")
    tl_end(1)

def gen_mid():
    kernel_begin("mid_kernel")
    e("s_cmp_ge_u32 s2, %d" % MID_WGS)
    e("s_cbranch_scc1 mid_end")
    tl_begin()
    e("s_load_dwordx2 s[56:57], s[0:1], 104")
    e("s_load_dwordx2 s[58:59], s[0:1], 72")
    e("s_load_dwordx2 s[60:61], s[0:1], 48")
    e("v_lshrrev_b32 v1, 6, v0")
    e("v_and_b32 v2, 63, v0")
    e("s_nop 0")
    e("v_readfirstlane_b32 s3, v1")
    e("s_waitcnt lgkmcnt(0)")
    srd(28, 56, WS_SIZE)
    if W2MID:
        e("s_cmp_ge_u32 s2, %d" % (G1_WGS + CV_WGS))
        e("s_cbranch_scc1 mid_wt")
    e("s_cmp_ge_u32 s2, %d" % G1_WGS)
    e("s_cbranch_scc1 mid_conv")
    if "g1" in SKIP: e("s_endpgm")
    if PRIO & 4: e("s_setprio 3")
    srd(8, 58, F*2)
    tl(1)
    claim_tile(0, 32, 7168*G1_NS, "mcl")
    tl(2)
    if G1MAP == 0:
        e("s_lshr_b32 s5, s2, 4")
        e("s_and_b32 s4, s2, 15")
    else:
        e("s_lshr_b32 s5, s2, 6")
        e("s_lshl_b32 s5, s5, 2")
        e("s_bfe_u32 s6, s2, 0x20003")
        e("s_add_u32 s5, s5, s6")
        e("s_bfe_u32 s4, s2, 0x10005")
        e("s_lshl_b32 s4, s4, 3")
        e("s_and_b32 s6, s2, 7")
        e("s_add_u32 s4, s4, s6")
    e("s_mul_i32 s6, s4, 7")
    e("s_sub_u32 s7, s4, 12")
    e("s_cmp_lt_u32 s4, 12")
    e("s_cselect_b32 s7, 0, s7")
    e("s_cselect_b32 s26, 7, 6")
    e("s_sub_u32 s4, s6, s7")
    e("v_and_b32 v3, 15, v2")
    e("v_lshrrev_b32 v4, 4, v2")
    e("v_lshrrev_b32 v5, 1, v4")
    e("v_and_b32 v6, 1, v4")
    e("v_lshlrev_b32 v7, 4, v3")
    e("v_lshl_add_u32 v7, v5, 10, v7")
    e("v_lshl_add_u32 v7, v6, 9, v7")
    e("v_mov_b32 v8, v7")
    for k in range(2):
        e(f"s_add_u32 s6, s3, {4*k}")
        e("s_min_u32 s6, s6, 6")
        e(f"s_lshl_b32 s{42+k}, s6, 10")
        e("s_add_u32 s6, s6, s4")
        e("s_min_u32 s6, s6, 107")
        e(f"s_lshr_b32 s{40+k}, s6, 1")
        e(f"s_mul_i32 s{40+k}, s{40+k}, {40*1024}")
        e("s_and_b32 s6, s6, 1")
        e("s_lshl_b32 s6, s6, 8")
        e(f"s_add_u32 s{40+k}, s{40+k}, s6")
        e(f"s_add_u32 s{40+k}, s{40+k}, {WS_W1F}")
    e("s_lshl_b32 s6, s5, 2")
    e("s_add_u32 s27, s6, s3")
    e("s_mul_i32 s44, s27, %d" % (40*1024))
    e("s_add_u32 s44, s44, %d" % WS_XNF)
    if "g1y" in SKIP:
        e("s_xor_b32 s45, s27, 1")
        e("s_mul_i32 s45, s45, %d" % (40*1024))
    e("v_lshlrev_b32 v9, 4, v2")
    NS, BD, NSTEP = G1_NS, G1_BD, 20
    AF, BF, ACC, BI = 16, 44, 44 + 8*G1_BD, 44
    pend = []
    def dma(st):
        for k in range(2):
            e(f"s_add_u32 m0, s{42+k}, {(st % NS)*7168}")
            e("s_nop 0")
            e(f"buffer_load_dwordx4 v7, s[28:31], s{40+k} offen lds")
            pend.append(("a", st))
        e("v_add_u32 v7, 2048, v7")
    def bld(st):
        r = BF + 8*(st % BD)
        e(f"buffer_load_dwordx4 v[{r}:{r+3}], v8, s[28:31], s44 offen")
        e(f"buffer_load_dwordx4 v[{r+4}:{r+7}], v8, s[28:31], s44 offen offset:256")
        pend.append(("b", st)); pend.append(("b", st))
        if "g1y" in SKIP:
            e(f"buffer_load_dwordx4 v[{r}:{r+3}], v8, s[28:31], s45 offen")
            e(f"buffer_load_dwordx4 v[{r+4}:{r+7}], v8, s[28:31], s45 offen offset:256")
            pend.append(("b", st)); pend.append(("b", st))
        e("v_add_u32 v8, 2048, v8")
    def wait_for(*tags):
        idx = [i for i, p in enumerate(pend) if p in tags]
        if not idx: return
        last = max(idx)
        e(f"s_waitcnt vmcnt({len(pend) - 1 - last})")
        del pend[:last+1]
    def rdA(st, t):
        if "g1x" in SKIP and t >= 4: return
        e(f"ds_read_b128 v[{AF+4*t}:{AF+4*t+3}], v9 offset:{(st % NS)*7168 + 1024*t}")
    for st in range(max(NS-1, BD)):
        if st < NS-1: dma(st)
        if st < BD: bld(st)
    e("s_lshl_b32 s6, s4, 5")
    e("v_lshl_add_u32 v10, v4, 3, s6")
    for r in range(ACC, ACC+56):
        e(f"v_mov_b32 v{r}, 0")
    wait_for(("a", 0))
    e("s_barrier")
    tl(3)
    for t in range(7): rdA(0, t)
    for st in range(NSTEP):
        if st + 1 < NSTEP:
            wait_for(("a", st+1), ("b", st))
            e("s_barrier")
            if st - 1 + NS < NSTEP: dma(st - 1 + NS)
        else:
            wait_for(("b", st))
        rb = BF + 8*(st % BD)
        for t in range(7):
            if "g1x" in SKIP: e(f"s_waitcnt lgkmcnt({3 if st + 1 < NSTEP else max(3 - t, 0)})")
            else: e(f"s_waitcnt lgkmcnt({6 if st + 1 < NSTEP else 6 - t})")
            for b_ in range(2):
                ac = ACC + 4*(2*t + b_)
                e(f"v_mfma_f32_16x16x32_bf16 v[{ac}:{ac+3}], v[{AF+4*t}:{AF+4*t+3}], v[{rb+4*b_}:{rb+4*b_+3}], v[{ac}:{ac+3}]")
            if st + 1 < NSTEP: rdA(st+1, t)
        if st + BD < NSTEP: bld(st + BD)
        if st == NSTEP - 2:
            assert BD == 3
            free = [BF + 8*((NSTEP-3) % BD), BF + 8*((NSTEP-2) % BD)]
            BIr = [free[0] + 2*k for k in range(4)] + [free[1] + 2*k for k in range(3)]
            for t in range(7):
                e(f"buffer_load_dwordx2 v[{BIr[t]}:{BIr[t]+1}], v10, s[8:11], 0 offen offset:{32*t}")
                pend.append(("c", 0))
    e("s_nop 7")
    e("s_waitcnt vmcnt(0)")
    tl(4)
    e("s_mul_i32 s6, s27, 108")
    e("s_add_u32 s6, s6, s4")
    e("s_lshl_b32 s6, s6, 10")
    e("s_add_u32 s6, s6, %d" % WS_ACT)
    e("v_lshlrev_b32 v9, 4, v3")
    e("v_lshl_add_u32 v9, v5, 9, v9")
    e("v_lshl_add_u32 v9, v6, 3, v9")
    T = 16
    for t in range(7):
        if t == 6:
            e("s_cmp_lt_u32 s26, 7")
            e("s_cbranch_scc1 g1_end")
        r = BIr[t]
        e(f"v_lshlrev_b32 v{T}, 16, v{r}")
        e(f"v_and_b32 v{T+1}, 0xffff0000, v{r}")
        e(f"v_lshlrev_b32 v{T+2}, 16, v{r+1}")
        e(f"v_and_b32 v{T+3}, 0xffff0000, v{r+1}")
        for b_ in range(2):
            ac = ACC + 4*(2*t + b_)
            d0 = T + 16 + 2*((2*t + b_) % 4)
            mish_pairs(ac, ac+1, T, T+1, d0, T+4)
            mish_pairs(ac+2, ac+3, T+2, T+3, d0+1, T+10)
            off = (t % 4)*1024 + 256*b_
            e(f"buffer_store_dwordx2 v[{d0}:{d0+1}], v9, s[28:31], s6 offen offset:{off}")
        if t == 3: e("s_add_u32 s6, s6, 4096")
    lab("g1_end")
    tl(5)
    if TL: e("s_waitcnt vmcnt(0)")
    tl_end(1)
    e("s_endpgm")
    lab("mid_conv")
    if CONV2:
        gen_conv2()
    else:
        if "cv" in SKIP: e("s_endpgm")
        if PRIO & 8: e("s_setprio 3")
        srd(8, 60, D*2)
        e("s_sub_u32 s4, s2, %d" % G1_WGS)
        e("s_and_b32 s5, s4, 7")
        e("s_lshl_b32 s5, s5, 2")
        e("s_bfe_u32 s6, s4, 0x20003")
        e("s_or_b32 s5, s5, s6")
        e("s_andn2_b32 s4, s4, 31")
        e("s_or_b32 s4, s4, s5")
        e("s_lshl_b32 s5, s4, 1")
        e("v_mov_b32 v3, s5")
        if DLYC: e(f"s_sleep {DLYC}")
        e("buffer_load_ushort v1, v3, s[8:11], 0 offen")
        e("s_lshl_b32 s5, s4, 5")
        e("s_add_u32 s5, s5, %d" % WS_XNT)
        e("v_lshrrev_b32 v4, 1, v0")
        e("v_mul_u32_u24 v4, 20480, v4")
        e("v_and_b32 v5, 1, v0")
        e("v_lshl_add_u32 v4, v5, 4, v4")
        e("buffer_load_dwordx4 v[8:11], v4, s[28:31], s5 offen")
        e("v_lshlrev_b32 v4, 4, v0")
        e("s_mul_i32 s6, s4, %d" % KR_STRIDE)
        e("s_add_u32 s6, s6, %d" % WS_KR)
        e("buffer_load_dwordx4 v[12:15], v4, s[28:31], s6 offen")
        e("buffer_load_dwordx4 v[16:19], v4, s[28:31], s6 offen offset:16")
        e("v_min_u32 v5, 3, v0")
        e("v_lshlrev_b32 v5, 4, v5")
        e("v_add_u32 v5, 4096, v5")
        e("buffer_load_dwordx4 v[20:23], v5, s[28:31], s6 offen")
        e("buffer_load_dwordx4 v[24:27], v5, s[28:31], s6 offen offset:16")
        for k in range(4):
            e(f"v_mov_b32 v{28+k}, 0")
        e("v_min_u32 v6, 154, v0")
        e("v_lshlrev_b32 v6, 4, v6")
        e(f"ds_write_b128 v6, v[28:31] offset:{UB + 80}")
        e("v_lshrrev_b32 v6, 2, v0")
        e("v_mul_u32_u24 v6, 80, v6")
        e("v_and_b32 v7, 3, v0")
        e("v_lshl_add_u32 v6, v7, 4, v6")
        e("s_waitcnt vmcnt(4)")
        e(f"ds_write_b128 v6, v[8:11] offset:{UB + 32*80}")
        def copies(w, vaddr):
            for c in range(8):
                if c % 2 == 0:
                    e(f"ds_write_b128 v{vaddr}, v[{w+c//2}:{w+c//2+3}] offset:{CB(c)}") if (w + c//2) % 2 == 0 else None
                    if (w + c//2) % 2:
                        for j in range(4):
                            e(f"v_mov_b32 v{32+j}, v{w+c//2+j}")
                        e(f"ds_write_b128 v{vaddr}, v[32:35] offset:{CB(c)}")
                else:
                    for j in range(4):
                        e(f"v_alignbit_b32 v{36+j}, v{w+(c+1)//2+j}, v{w+(c-1)//2+j}, 16")
                    e(f"ds_write_b128 v{vaddr}, v[36:39] offset:{CB(c)}")
        e("s_waitcnt vmcnt(2)")
        tl(1)
        copies(12, 4)
        e("s_waitcnt vmcnt(0)")
        copies(20, 5)
        e("s_waitcnt lgkmcnt(0)")
        tl(2)
        e("s_barrier")
        tl(3)
        e("v_and_b32 v3, 31, v2")
        e("v_lshrrev_b32 v4, 5, v2")
        e("v_sub_u32 v5, 7, v3")
        e("v_and_b32 v5, 7, v5")
        e("v_sub_u32 v6, 2047, v3")
        e("v_lshl_add_u32 v6, v4, 3, v6")
        e("v_sub_u32 v6, v6, v5")
        e("v_mul_u32_u24 v7, %d, v5" % CS)
        e("v_lshrrev_b32 v8, 2, v5")
        e("v_lshl_add_u32 v7, v8, 5, v7")
        e("v_lshl_add_u32 v6, v6, 1, v7")
        e("v_mul_u32_u24 v7, 80, v3")
        e("v_lshl_add_u32 v7, v4, 4, v7")
        e(f"v_add_u32 v7, {UB + 32*80}, v7")
        for r in range(16, 48):
            e(f"v_mov_b32 v{r}, 0")
        e("s_lshl_b32 s5, s3, 9")
        e(f"s_add_u32 s5, s5, {64*7 + 64*32}")
        e("v_subrev_u32 v8, s5, v6")
        e("s_mul_i32 s5, s3, 640")
        e(f"s_add_u32 s5, s5, {80*7}")
        e("v_subrev_u32 v9, s5, v7")
        def rd(q):
            base = 48 + (q & 1)*32
            for t in range(2):
                fa = base + 16*t
                e(f"ds_read_b128 v[{fa}:{fa+3}], v8 offset:{64*(7-q) + 2048 + 32*t}")
                e(f"ds_read_b128 v[{fa+4}:{fa+7}], v9 offset:{80*(7-q) + 32*t}")
                e(f"ds_read_b128 v[{fa+8}:{fa+11}], v9 offset:{80*(7-q) + 2560 + 32*t}")
                e(f"ds_read_b128 v[{fa+12}:{fa+15}], v8 offset:{64*(7-q) + 32*t}")
        def mm(q):
            base = 48 + (q & 1)*32
            for t in range(2):
                fa = base + 16*t
                e(f"v_mfma_f32_32x32x16_bf16 v[16:31], v[{fa}:{fa+3}], v[{fa+4}:{fa+7}], v[16:31]")
                e(f"v_mfma_f32_32x32x16_bf16 v[32:47], v[{fa}:{fa+3}], v[{fa+8}:{fa+11}], v[32:47]")
                e(f"v_mfma_f32_32x32x16_bf16 v[32:47], v[{fa+12}:{fa+15}], v[{fa+4}:{fa+7}], v[32:47]")
        rd(0)
        for q in range(8):
            if q < 7:
                rd(q + 1)
                e("s_waitcnt lgkmcnt(8)")
            else:
                e("s_waitcnt lgkmcnt(0)")
            mm(q)
        tl(4)
        e("s_nop 15")
        e("s_barrier")
        e("v_lshlrev_b32 v10, 4, v2")
        e("s_cmp_eq_u32 s3, 0")
        e("s_cbranch_scc1 cv_w0")
        e("s_sub_u32 s5, s3, 1")
        e("s_lshl_b32 s5, s5, 12")
        e("v_add_u32 v11, s5, v10")
        for r in range(4):
            e(f"ds_write_b128 v11, v[{16+4*r}:{19+4*r}] offset:{1024*r}")
        lab("cv_w0")
        e("s_cmp_eq_u32 s3, 1")
        e("s_cbranch_scc1 cv_w1")
        e("s_sub_u32 s5, s3, 1")
        e("s_max_i32 s5, s5, 0")
        e("s_lshl_b32 s5, s5, 12")
        e("v_add_u32 v11, s5, v10")
        for r in range(4):
            e(f"ds_write_b128 v11, v[{32+4*r}:{35+4*r}] offset:{12288 + 1024*r}")
        e("s_branch cv_w2")
        lab("cv_w1")
        for r in range(16):
            e(f"v_mov_b32 v{16+r}, v{32+r}")
        e("v_add_u32 v10, 12288, v10")
        lab("cv_w2")
        e("s_waitcnt lgkmcnt(0)")
        e("s_barrier")
        e("s_cmp_ge_u32 s3, 2")
        e("s_cbranch_scc1 mid_end")
        for sl in range(3):
            for r in range(4):
                e(f"ds_read_b128 v[{48+16*sl+4*r}:{51+16*sl+4*r}], v10 offset:{4096*sl + 1024*r}")
        for sl in range(3):
            e(f"s_waitcnt lgkmcnt({8-4*sl})")
            for r in range(16):
                e(f"v_add_f32 v{16+r}, v{16+r}, v{48+16*sl+r}")
        lab("cv_epi")
        e("s_mul_i32 s5, s3, %d" % (32*80))
        e("v_mul_u32_u24 v11, 80, v3")
        e("v_lshl_add_u32 v11, v4, 3, v11")
        e("v_add_u32 v11, s5, v11")
        for g in range(4):
            e(f"ds_read_b64 v[{32+2*g}:{33+2*g}], v11 offset:{UB + 32*80 + 16*g}")
        e("s_lshl_b32 s5, s4, 12")
        e("s_lshl_b32 s6, s3, 11")
        e("s_add_u32 s5, s5, s6")
        e("s_add_u32 s5, s5, %d" % WS_AT)
        e("v_lshlrev_b32 v12, 6, v3")
        e("v_lshl_add_u32 v12, v4, 3, v12")
        e("s_waitcnt vmcnt(0) lgkmcnt(0)")
        e("v_lshlrev_b32 v1, 16, v1")
        for g in range(4):
            for p in range(2):
                u = 32 + 2*g + p
                y0 = 16 + 4*g + 2*p
                e(f"v_lshlrev_b32 v44, 16, v{u}")
                e(f"v_and_b32 v45, 0xffff0000, v{u}")
                e(f"v_mul_f32 v44, v44, v1")
                e(f"v_mul_f32 v45, v45, v1")
                e(f"v_cvt_pk_bf16_f32 v44, v44, v45")
                e(f"v_cvt_pk_bf16_f32 v46, v{y0}, v{y0+1}")
                e(f"v_lshlrev_b32 v47, 16, v44")
                e(f"v_and_b32 v48, 0xffff0000, v44")
                e(f"v_lshlrev_b32 v49, 16, v46")
                e(f"v_and_b32 v50, 0xffff0000, v46")
                e(f"v_add_f32 v47, v47, v49")
                e(f"v_add_f32 v48, v48, v50")
                e(f"v_cvt_pk_bf16_f32 v{52+2*g+p}, v47, v48")
            e(f"buffer_store_dwordx2 v[{52+2*g}:{53+2*g}], v12, s[28:31], s5 offen offset:{16*g}")
        tl(5)
        if TL: e("s_waitcnt vmcnt(0)")
        tl_end(1)
    if W2MID:
        e("s_endpgm")
        lab("mid_wt")
        gen_wt(G1_WGS + CV_WGS, 270, 540, "mid_end", 1, int(os.environ.get("DLYW2", 0)))
    lab("mid_end")
    e("s_endpgm")
    kernel_desc("mid_kernel", 128)

G2_WGS = 256
FIN_LDS = 61440 + 64
FDEPTH = int(os.environ.get('FDEPTH', 4))
def gen_fin():
    kernel_begin("fin_kernel")
    e("s_cmp_ge_u32 s2, %d" % G2_WGS)
    e("s_cbranch_scc1 fin_end")
    e("s_load_dwordx2 s[56:57], s[0:1], 104")
    e("s_load_dwordx2 s[58:59], s[0:1], 0")
    e("s_load_dwordx2 s[60:61], s[0:1], 88")
    e("v_lshrrev_b32 v1, 6, v0")
    e("v_and_b32 v2, 63, v0")
    e("s_nop 0")
    e("v_readfirstlane_b32 s3, v1")
    if "xcc" in SKIP:
        e("s_and_b32 s5, s2, 31")
        e("s_lshr_b32 s4, s2, 5")
    else:
        e("s_waitcnt lgkmcnt(0)")
        srd(28, 56, WS_SIZE)
        claim_tile(512, 32, 61440, "fcl")
        if FMAP == 0:
            e("s_lshr_b32 s5, s2, 5")
            e("s_lshl_b32 s5, s5, 2")
            e("s_and_b32 s6, s2, 3")
            e("s_add_u32 s5, s5, s6")
            e("s_bfe_u32 s4, s2, 0x30002")
        else:
            e("s_lshr_b32 s5, s2, 6")
            e("s_lshl_b32 s5, s5, 3")
            e("s_and_b32 s6, s2, 7")
            e("s_add_u32 s5, s5, s6")
            e("s_bfe_u32 s4, s2, 0x10005")
            e("s_lshl_b32 s4, s4, 2")
            e("s_bfe_u32 s6, s2, 0x20003")
            e("s_add_u32 s4, s4, s6")
    e("v_and_b32 v3, 15, v2")
    e("v_lshrrev_b32 v4, 4, v2")
    e("v_lshrrev_b32 v5, 1, v4")
    e("v_and_b32 v6, 1, v4")
    e("v_lshlrev_b32 v7, 4, v3")
    e("v_lshl_add_u32 v7, v5, 10, v7")
    e("v_lshl_add_u32 v7, v6, 9, v7")
    e("s_lshl_b32 s6, s3, 11")
    e("v_add_u32 v7, s6, v7")
    e("s_mul_i32 s6, s4, 5")
    for a_ in range(5):
        e(f"s_add_u32 s7, s6, {a_}")
        e(f"s_lshr_b32 s{40+a_}, s7, 1")
        e(f"s_mul_i32 s{40+a_}, s{40+a_}, {108*1024}")
        e(f"s_and_b32 s7, s7, 1")
        e(f"s_lshl_b32 s7, s7, 8")
        e(f"s_add_u32 s{40+a_}, s{40+a_}, s7")
        e(f"s_add_u32 s{40+a_}, s{40+a_}, {WS_W2F}")
    e("s_mul_i32 s6, s5, %d" % (2*108*1024))
    e("s_add_u32 s45, s6, %d" % WS_ACT)
    e("s_add_u32 s46, s45, 256")
    e("s_add_u32 s47, s45, %d" % (108*1024))
    e("s_add_u32 s48, s47, 256")
    e("s_waitcnt lgkmcnt(0)")
    srd(28, 56, WS_SIZE); srd(8, 58, L*D*2); srd(12, 60, L*D*2)
    FR = 16
    ACC = 0
    EP = FR + 36*FDEPTH
    pend = []
    def issue(m):
        base = FR + 36*(m % FDEPTH)
        for t in range(9):
            e(f"buffer_load_dwordx4 v[{base+4*t}:{base+4*t+3}], v7, s[28:31], s{40+t} offen")
            pend.append(("f", m))
        e("v_add_u32 v7, 8192, v7")
    def wait_for(tag):
        last = max(i for i, p in enumerate(pend) if p == tag)
        n = len(pend) - 1 - last
        e(f"s_waitcnt vmcnt({n})")
        del pend[:last+1]
    NST = 14
    for m in range(FDEPTH):
        issue(m)
    e("s_lshl_b32 s6, s5, 6")
    e("s_lshl_b32 s7, s3, 4")
    e("s_add_u32 s6, s6, s7")
    e("v_add_u32 v8, s6, v3")
    e("v_mul_u32_u24 v9, 1280, v8")
    e("v_lshl_add_u32 v9, v4, 3, v9")
    e("s_mul_i32 s6, s4, 160")
    e("v_add_u32 v9, s6, v9")
    for a_ in range(5):
        e(f"buffer_load_dwordx2 v[{EP+2*a_}:{EP+2*a_+1}], v9, s[8:11], 0 offen offset:{32*a_}")
        pend.append(("e", 0))
    e("v_lshlrev_b32 v10, 14, v4")
    e("v_lshl_add_u32 v10, v8, 1, v10")
    e("s_mul_i32 s6, s4, %d" % (80*4096))
    e("s_add_u32 s6, s6, %d" % WS_AT)
    for a_ in range(5):
        for j in range(4):
            e(f"buffer_load_ushort v{EP+10+4*a_+j}, v10, s[28:31], s6 offen")
            pend.append(("e", 0))
            e("s_add_u32 s6, s6, %d" % (4096 if j < 3 else 4096*13))
    for r in range(ACC, ACC+80):
        e(f"v_accvgpr_write_b32 a{r}, 0")
    for m in range(NST):
        if m == NST - 1:
            e("s_cmp_ge_u32 s3, 2")
            e("s_cbranch_scc1 fin_red")
        wait_for(("f", m))
        base = FR + 36*(m % FDEPTH)
        for b_ in range(4):
            for a_ in range(5):
                ac = ACC + 4*(5*b_ + a_)
                e(f"v_mfma_f32_16x16x32_bf16 a[{ac}:{ac+3}], v[{base+4*a_}:{base+4*a_+3}], v[{base+20+4*b_}:{base+23+4*b_}], a[{ac}:{ac+3}]")
        if m + FDEPTH < NST:
            if m + FDEPTH == NST - 1:
                e("s_cmp_ge_u32 s3, 2")
                e("s_cselect_b32 s6, 8192, 0")
                e("v_subrev_u32 v7, s6, v7")
            issue(m + FDEPTH)
    lab("fin_red")
    e("s_nop 15")
    e("s_waitcnt vmcnt(0)")
    e("v_lshlrev_b32 v11, 4, v2")
    for w in range(4):
        if w < 3:
            e(f"s_cmp_lg_u32 s3, {w}")
            e(f"s_cbranch_scc1 fin_w{w+1}")
        for b_ in range(4):
            if b_ == w: continue
            slot = w if w < b_ else w - 1
            for a_ in range(5):
                ac = ACC + 4*(5*b_ + a_)
                e(f"ds_write_b128 v11, a[{ac}:{ac+3}] offset:{(b_*3 + slot)*5120 + a_*1024}")
        for r in range(20):
            e(f"v_accvgpr_read_b32 v{16+r}, a{ACC+20*w+r}")
        if w < 3:
            e("s_branch fin_rd")
            lab(f"fin_w{w+1}")
    lab("fin_rd")
    e("s_mul_i32 s6, s3, %d" % (3*5120))
    e("v_add_u32 v11, s6, v11")
    e("s_waitcnt lgkmcnt(0)")
    e("s_barrier")
    for sl in range(3):
        for a_ in range(5):
            r = 36 + 20*sl + 4*a_
            e(f"ds_read_b128 v[{r}:{r+3}], v11 offset:{sl*5120 + a_*1024}")
    for sl in range(3):
        e(f"s_waitcnt lgkmcnt({10-5*sl})")
        for r in range(20):
            e(f"v_add_f32 v{16+r}, v{16+r}, v{36+20*sl+r}")
    e("s_waitcnt vmcnt(0)")
    for a_ in range(5):
        rx = EP + 2*a_
        ra = EP + 10 + 4*a_
        for p in range(2):
            ac = 16 + 4*a_ + 2*p
            e(f"v_lshlrev_b32 v96, 16, v{rx+p}")
            e(f"v_and_b32 v97, 0xffff0000, v{rx+p}")
            e(f"v_lshlrev_b32 v98, 16, v{ra+2*p}")
            e(f"v_lshlrev_b32 v99, 16, v{ra+2*p+1}")
            e(f"v_add_f32 v96, v96, v98")
            e(f"v_add_f32 v97, v97, v99")
            e(f"v_cvt_pk_bf16_f32 v96, v96, v97")
            e(f"v_cvt_pk_bf16_f32 v98, v{ac}, v{ac+1}")
            e(f"v_lshlrev_b32 v100, 16, v96")
            e(f"v_and_b32 v101, 0xffff0000, v96")
            e(f"v_lshlrev_b32 v102, 16, v98")
            e(f"v_and_b32 v103, 0xffff0000, v98")
            e(f"v_add_f32 v100, v100, v102")
            e(f"v_add_f32 v101, v101, v103")
            e(f"v_cvt_pk_bf16_f32 v{rx+p}, v100, v101")
        e(f"buffer_store_dwordx2 v[{rx}:{rx+1}], v9, s[12:15], 0 offen offset:{32*a_}")
    lab("fin_end")
    e("s_endpgm")
    kernel_desc("fin_kernel", ((EP + 30) + 7)//8*8, agpr=80)

hdr = open("cdna_kernels/%s.s.ref" % NAME).read().split("; Override launch")[0]
text = hdr
text += f"; @launch kernel=prep_kernel grid=({PREP_WGS},1,1) block=(256,1,1) lds={PREP_LDS}\n"
text += f"; @launch kernel=mid_kernel grid=({MID_WGS},1,1) block=(256,1,1) lds={MID_LDS}\n"
text += f"; @launch kernel=fin_kernel grid=({G2_WGS},1,1) block=(256,1,1) lds={FIN_LDS}\n"
text += '.amdgcn_target "amdgcn-amd-amdhsa--gfx950"\n'
gen_prep(); gen_mid(); gen_fin()
_o = []; _in = False
for _l in out:
    if _l.startswith("fin_kernel:"): _in = True
    if _l.strip().startswith("buffer_store") and not _in and "nosc" not in SKIP: _l += " sc1"
    _o.append(_l)
out = _o
text += "\n".join(out) + "\n"
dst = sys.argv[1] if len(sys.argv) > 1 else "cdna_kernels/%s.s" % NAME
open(dst, "w").write(text)
print("wrote", dst, len(text))
```

```python
import sys, os
SKIP = os.environ.get("SKIP", "").split(",")
ORDER = int(os.environ.get("ORDER", 0))
PRIO = int(os.environ.get("PRIO", 3))
W2MID = int(os.environ.get("W2MID", 0))
CONV2 = int(os.environ.get("CONV2", 1))
CV3 = int(os.environ.get("CV3", 1))
FEP = int(os.environ.get("FEP", 1))
PORD = int(os.environ.get("PORD", 0))
MISH2 = int(os.environ.get("MISH2", 2))
DLYC = int(os.environ.get("DLYC", 24))
G1MAP = int(os.environ.get("G1MAP", 1))
FMAP = int(os.environ.get("FMAP", 1))
DLYL = int(os.environ.get("DLYL", 16))
DLYW = int(os.environ.get("DLYW", 24))
NAME = "parallel_sum__ssm_conv_s4d__dense_activation_mish__prompt"
L, D, N, F = 2048, 640, 128, 1728
WS_XNF = 0x0000000
WS_XNT = 0x0280000
WS_W1F = 0x0500000
WS_W2F = WS_W1F + 2160 * 1024
WS_KR = 0x0A00000
KR_STRIDE = 4224
WS_ACT = 0x0D00000
WS_AT = 0x1400000
WS_CNT = 0x1700000
WS_SIZE = 268435456
LOG2E = 0x3fb8aa3b
INV2PI = 0x3e22f983

out = []
def e(s):
    out.append("    " + s)
def lab(s):
    out.append(s + ":")
def cm(s):
    out.append("    ; " + s)

STAMP = os.environ.get("STAMP")
def stamp_init():
    if not STAMP: return
    e("s_load_dwordx2 s[84:85], s[0:1], 96")
    e("s_waitcnt lgkmcnt(0)")
    e("s_mov_b32 s80, s84"); e("s_and_b32 s81, s85, 0xffff"); e("s_mov_b32 s82, 256"); e("s_mov_b32 s83, 0x00020000")
def stamp(i):
    if not STAMP: return
    e("s_memtime s[86:87]")
    e("s_waitcnt lgkmcnt(0)")
    e(f"s_cmp_lg_u32 s2, {int(STAMP)}")
    e(f"s_cbranch_scc1 st_{stamp.n}")
    e(f"v_mov_b32 v255, s86")
    e(f"v_lshrrev_b32 v254, 6, v0")
    e(f"v_lshlrev_b32 v254, 6, v254")
    e(f"v_add_u32 v254, {4*i}, v254")
    e(f"buffer_store_dword v255, v254, s[80:83], 0 offen")
    lab(f"st_{stamp.n}")
    stamp.n += 1
stamp.n = 0


TL = os.environ.get("TL")
WS_TL = 0x1800000
def tl(i):
    if not TL: return
    e("s_memrealtime s[80:81]")
    e("s_waitcnt lgkmcnt(0)")
    e(f"s_mov_b32 s{84+i}, s80")
def tl_begin():
    if not TL: return
    e("s_mov_b32 s83, s2")
    for i in range(8): e(f"s_mov_b32 s{84+i}, 0")
    tl(0)
def tl_end(kern):
    if not TL: return
    tl(7)
    e("s_getreg_b32 s90, hwreg(HW_REG_HW_ID)")
    e("s_getreg_b32 s80, hwreg(HW_REG_XCC_ID)")
    e("s_and_b32 s90, s90, 0xffff")
    e("s_lshl_b32 s80, s80, 16")
    e("s_or_b32 s90, s90, s80")
    e("s_or_b32 s90, s90, 0x40000000")
    e("s_cmp_lg_u32 s3, 0")
    e(f"s_cbranch_scc1 tle_{tl_end.n}")
    e("s_lshl_b32 s83, s83, 5")
    e(f"s_add_u32 s83, s83, {WS_TL + kern*65536}")
    e("v_mov_b32 v1, 0")
    for i in range(8):
        e(f"v_mov_b32 v0, s{84+i}")
        e(f"buffer_store_dword v0, v1, s[28:31], s83 offen offset:{4*i}")
    lab(f"tle_{tl_end.n}")
    tl_end.n += 1
tl_end.n = 0

def srd(dst, ptr, size):
    e(f"s_mov_b32 s{dst}, s{ptr}")
    e(f"s_and_b32 s{dst+1}, s{ptr+1}, 0xffff")
    e(f"s_mov_b32 s{dst+2}, {size}")
    e(f"s_mov_b32 s{dst+3}, 0x00020000")

def kernel_begin(name):
    out.append(".text")
    out.append(f".globl {name}")
    out.append(".p2align 8")
    out.append(f".type {name},@function")
    lab(name)

def kernel_desc(name, vgpr, sgpr=96, agpr=0):
    if STAMP: vgpr = 256
    out.append('.section .rodata,"a"')
    out.append(".p2align 6")
    out.append(f".amdhsa_kernel {name}")
    out.append(f"  .amdhsa_next_free_vgpr {vgpr + agpr}")
    out.append(f"  .amdhsa_next_free_sgpr {sgpr}")
    out.append(f"  .amdhsa_accum_offset {(vgpr+3)//4*4}")
    out.append("  .amdhsa_group_segment_fixed_size 0")
    out.append("  .amdhsa_kernarg_size 112")
    out.append("  .amdhsa_user_sgpr_count 2")
    out.append("  .amdhsa_user_sgpr_kernarg_segment_ptr 1")
    out.append("  .amdhsa_system_sgpr_workgroup_id_x 1")
    out.append(".end_amdhsa_kernel")


def claim_tile(cnt_off, per, lds_off, lbl):
    e("s_cmp_lg_u32 s3, 0")
    e(f"s_cbranch_scc1 {lbl}_w")
    e("s_getreg_b32 s20, hwreg(HW_REG_XCC_ID)")
    e("s_and_b32 s20, s20, 7")
    e("s_mov_b32 s21, 0")
    e("s_mov_b64 s[22:23], exec")
    e("s_mov_b64 exec, 1")
    e("v_mov_b32 v12, 1")
    lab(f"{lbl}_l")
    e("s_lshl_b32 s24, s20, 6")
    e(f"s_add_u32 s24, s24, {WS_CNT + cnt_off}")
    e("v_mov_b32 v13, 0")
    e("v_mov_b32 v14, v12")
    e("buffer_atomic_add v14, v13, s[28:31], s24 offen sc0" + ("" if "asc" in SKIP else " sc1"))
    e("s_waitcnt vmcnt(0)")
    e("v_readfirstlane_b32 s25, v14")
    e(f"s_cmp_lt_u32 s25, {per}")
    e(f"s_cbranch_scc1 {lbl}_f")
    e("s_add_u32 s20, s20, 1")
    e("s_and_b32 s20, s20, 7")
    e("s_add_u32 s21, s21, 1")
    e("s_cmp_lt_u32 s21, 8")
    e(f"s_cbranch_scc1 {lbl}_l")
    e("s_mov_b32 s25, 0")
    lab(f"{lbl}_f")
    e(f"s_mul_i32 s20, s20, {per}")
    e("s_add_u32 s20, s20, s25")
    e("v_mov_b32 v14, s20")
    e(f"v_mov_b32 v13, {lds_off}")
    e("ds_write_b32 v13, v14")
    e("s_mov_b64 exec, s[22:23]")
    e("s_waitcnt lgkmcnt(0)")
    lab(f"{lbl}_w")
    e("s_barrier")
    e(f"v_mov_b32 v13, {lds_off}")
    e("ds_read_b32 v14, v13")
    e("s_waitcnt lgkmcnt(0)")
    e("v_readfirstlane_b32 s2, v14")

LN_WGS, WT_WGS, KG_WGS = 128, (68 if W2MID else 135), 640
PREP_WGS = KG_WGS + LN_WGS + WT_WGS
KG_LDS_WAVE = 512
KG_TAB0 = 2048
KG_TAB = 2688
KG_FIN = KG_TAB0 + 4*KG_TAB
PREP_LDS = 36864
LNS = 36

def gen_wt(wg0, wv0, wvend, endlab, kern, dly):
    if "wt" in SKIP: e("s_endpgm")
    if PRIO & 2: e("s_setprio 3")
    e("s_load_dwordx2 s[40:41], s[0:1], 64")
    e("s_load_dwordx2 s[42:43], s[0:1], 80")
    e("s_sub_u32 s4, s2, %d" % wg0)
    e("s_lshl_b32 s4, s4, 2")
    e("s_add_u32 s4, s4, s3")
    if wv0: e("s_add_u32 s4, s4, %d" % wv0)
    if wvend:
        e("s_cmp_ge_u32 s4, %d" % wvend)
        e("s_cbranch_scc1 %s" % endlab)
    e("s_waitcnt lgkmcnt(0)")
    e("s_cmp_ge_u32 s4, 270")
    e("s_cselect_b32 s40, s42, s40")
    e("s_cselect_b32 s41, s43, s41")
    e("s_mov_b32 s5, 3456")
    e("s_mov_b32 s7, 159072863")
    e("s_mov_b32 s34, %d" % WS_W1F)
    e("s_cselect_b32 s5, 1280, s5")
    e("s_cselect_b32 s6, 10, 27")
    e("s_cselect_b32 s7, 429496730, s7")
    e("s_cselect_b32 s32, 270, 0")
    e("s_cselect_b32 s33, 108, 40")
    e("s_cselect_b32 s34, %d, s34" % WS_W2F)
    srd(8, 40, D*F*2); srd(28, 56, WS_SIZE)
    e("s_sub_u32 s32, s4, s32")
    e("s_lshl_b32 s32, s32, 2")
    e("v_lshrrev_b32 v3, 3, v2")
    e("v_and_b32 v4, 7, v2")
    e("v_mul_lo_u32 v5, v3, s5")
    e("v_lshl_add_u32 v5, v4, 4, v5")
    e("s_lshl_b32 s35, s5, 3")
    e("s_mul_i32 s36, s3, %d" % (4*16*144))
    e("v_mul_u32_u24 v6, 144, v3")
    e("v_lshl_add_u32 v6, v4, 4, v6")
    e("v_add_u32 v6, s36, v6")
    e("v_and_b32 v7, 31, v2")
    e("v_lshrrev_b32 v8, 5, v2")
    e("v_mul_u32_u24 v8, %d, v8" % (8*144))
    e("v_lshl_add_u32 v8, v7, 1, v8")
    e("v_add_u32 v8, s36, v8")
    e("v_lshlrev_b32 v9, 4, v2")
    if dly: e(f"s_sleep {dly}")
    for q in range(4):
        e(f"s_add_u32 s37, s32, {q}")
        e("s_mul_hi_u32 s38, s37, s7")
        e("s_mul_i32 s39, s38, s6")
        e("s_sub_u32 s39, s37, s39")
        e(f"s_lshl_b32 s44, s38, 4")
        e(f"s_mul_i32 s44, s44, s5")
        e(f"s_lshl_b32 s45, s39, 7")
        e(f"s_add_u32 s44, s44, s45")
        e(f"buffer_load_dwordx4 v[{16+8*q}:{19+8*q}], v5, s[8:11], s44 offen")
        e(f"s_add_u32 s44, s44, s35")
        e(f"buffer_load_dwordx4 v[{20+8*q}:{23+8*q}], v5, s[8:11], s44 offen")
        e(f"s_lshl_b32 s45, s39, 1")
        e(f"s_mul_i32 s45, s45, s33")
        e(f"s_add_u32 s45, s45, s38")
        e(f"s_lshl_b32 s45, s45, 10")
        e(f"s_add_u32 s{48+q}, s45, s34")
    e("s_lshl_b32 s33, s33, 10")
    for q in range(4):
        e(f"s_waitcnt vmcnt({6-2*q})")
        e(f"ds_write_b128 v6, v[{16+8*q}:{19+8*q}] offset:{q*16*144}")
        e(f"ds_write_b128 v6, v[{20+8*q}:{23+8*q}] offset:{q*16*144 + 8*144}")
    tl(1)
    for q in range(4):
        e("s_waitcnt lgkmcnt(0)") if q == 0 else None
        for f in range(2):
            for el in range(8):
                e(f"ds_read_u16 v{48+16*(q&1)*2+16*f+el}, v8 offset:{q*16*144 + el*144 + 64*f}")
        if q > 0:
            pass
        e("s_waitcnt lgkmcnt(0)")
        for f in range(2):
            for j in range(4):
                r = 48 + 16*(q&1)*2 + 16*f
                e(f"v_lshl_or_b32 v{112+4*f+j}, v{r+2*j+1}, 16, v{r+2*j}")
            if f == 0:
                e(f"buffer_store_dwordx4 v[112:115], v9, s[28:31], s{48+q} offen")
            else:
                e(f"s_add_u32 s{48+q}, s{48+q}, s33")
                e(f"buffer_store_dwordx4 v[116:119], v9, s[28:31], s{48+q} offen")
        if q < 3:
            e("s_nop 1")
    tl(5)
    if TL: e("s_waitcnt vmcnt(0)")
    tl_end(kern)

def gen_prep():
    kernel_begin("prep_kernel")
    if PORD:
        e("s_lshr_b32 s4, s2, 7")
        e("s_cmp_eq_u32 s4, 6")
        e("s_cbranch_scc1 prep_end")
        e("s_cmp_gt_u32 s4, 6")
        e("s_cselect_b32 s4, 128, 0")
        e("s_sub_u32 s2, s2, s4")
    e("s_cmp_ge_u32 s2, %d" % PREP_WGS)
    e("s_cbranch_scc1 prep_end")
    e("s_load_dwordx2 s[56:57], s[0:1], 104")
    e("v_lshrrev_b32 v1, 6, v0")
    e("v_and_b32 v2, 63, v0")
    e("s_nop 0")
    e("v_readfirstlane_b32 s3, v1")
    if ORDER:
        e("s_add_u32 s2, s2, %d" % KG_WGS)
        e("s_cmp_ge_u32 s2, %d" % PREP_WGS)
        e("s_cselect_b32 s4, %d, 0" % PREP_WGS)
        e("s_sub_u32 s2, s2, s4")
    tl_begin()
    e("s_cmp_ge_u32 s2, %d" % (KG_WGS + LN_WGS))
    e("s_cbranch_scc1 prep_wt")
    e("s_cmp_ge_u32 s2, %d" % KG_WGS)
    e("s_cbranch_scc1 prep_ln")
    if "kg" in SKIP: e("s_endpgm")
    e("s_load_dwordx4 s[40:43], s[0:1], 8")
    e("s_load_dwordx4 s[44:47], s[0:1], 24")
    e("s_load_dwordx2 s[48:49], s[0:1], 40")
    e("s_mov_b32 s4, s2")
    e("s_mul_i32 s5, s3, %d" % KG_LDS_WAVE)
    e("s_lshl_b32 s6, s4, 8")
    e("s_lshl_b32 s7, s3, 6")
    e("s_add_u32 s6, s6, s7")
    e("v_and_b32 v3, 31, v2")
    e("v_lshl_add_u32 v3, v3, 1, s6")
    e("s_lshl_b32 s7, s4, 1")
    e("v_mov_b32 v4, s7")
    e("s_waitcnt lgkmcnt(0)")
    srd(8, 40, D*N*2); srd(12, 42, D*N*2); srd(16, 44, D*N*2); srd(20, 46, D*N*2)
    srd(24, 48, D*2); srd(28, 56, WS_SIZE)
    for k, sr in enumerate((8, 12, 16, 20)):
        e(f"buffer_load_ushort v{10+k}, v3, s[{sr}:{sr+3}], 0 offen")
    e("buffer_load_ushort v18, v4, s[24:27], 0 offen")
    e("v_and_b32 v8, 15, v2")
    e("v_lshrrev_b32 v9, 4, v2")
    e("v_and_b32 v24, 7, v8")
    e("v_lshrrev_b32 v25, 3, v8")
    e("v_lshl_add_u32 v28, v25, 7, v24")
    e("v_and_b32 v24, 3, v8")
    e("v_lshlrev_b32 v24, 1, v24")
    e("v_bfe_u32 v25, v8, 2, 1")
    e("v_lshl_add_u32 v24, v25, 7, v24")
    e("v_add_u32 v24, 256, v24")
    e("v_and_b32 v25, 1, v8")
    e("v_lshlrev_b32 v25, 2, v25")
    e("v_bfe_u32 v26, v8, 1, 2")
    e("v_lshl_add_u32 v25, v26, 7, v25")
    e("v_add_u32 v25, 512, v25")
    e("v_cmp_gt_u32 vcc, 8, v8")
    e("s_nop 1")
    e("v_cndmask_b32 v29, v25, v24, vcc")
    e("v_lshlrev_b32 v30, 7, v8")
    e("v_add_u32 v30, 0x400, v30")
    e("v_lshlrev_b32 v31, 3, v8")
    for t in range(4):
        e(f"v_cvt_f32_u32 v{28+t}, v{28+t}")
    e("s_mul_i32 s6, s3, %d" % KG_TAB)
    e("s_add_u32 s6, s6, %d" % KG_TAB0)
    e("v_and_b32 v24, 1, v9")
    e("v_lshrrev_b32 v25, 1, v9")
    e("v_lshl_add_u32 v33, v8, 5, s6")
    e("v_lshl_add_u32 v33, v24, 4, v33")
    e("v_lshl_add_u32 v33, v25, 9, v33")
    e("v_lshlrev_b32 v24, 4, v8")
    e("v_lshlrev_b32 v25, 3, v8")
    e("v_cmp_gt_u32 vcc, 2, v9")
    e("s_nop 1")
    e("v_cndmask_b32 v24, v25, v24, vcc")
    e("v_lshl_add_u32 v24, v9, 8, v24")
    e("v_add_u32 v24, s6, v24")
    e("v_add_u32 v34, 1024, v24")
    e("v_mov_b32 v25, 128")
    e("v_cndmask_b32_e64 v24, v25, 8, vcc")
    e("v_add_u32 v36, v34, v24")
    e("v_lshl_add_u32 v38, v8, 2, s6")
    e("v_lshl_add_u32 v38, v9, 8, v38")
    e("v_add_u32 v38, 2048, v38")
    e("v_lshl_add_u32 v39, v9, 4, s5")
    for r in range(40, 52):
        e(f"v_mov_b32 v{r}, 0")
    e("s_waitcnt vmcnt(0)")
    tl(1)
    for r in (10, 11, 12, 13, 18):
        e(f"v_lshlrev_b32 v{r}, 16, v{r}")
    e(f"v_mul_f32 v18, {LOG2E:#x}, v18")
    e(f"v_mul_f32 v10, {LOG2E:#x}, v10")
    e("v_exp_f32 v18, v18")
    e("v_exp_f32 v10, v10")
    e("s_nop 0")
    e("v_cvt_pk_bf16_f32 v18, v18, v18")
    e("v_cvt_pk_bf16_f32 v10, v10, v10")
    e("v_lshlrev_b32 v18, 16, v18")
    e("v_lshlrev_b32 v10, 16, v10")
    e("v_add_f32 v19, v18, v18")
    e("v_and_b32 v5, 31, v2")
    e("v_lshl_add_u32 v5, v5, 4, s5")
    e("v_mul_f32 v20, v10, v18")
    e(f"v_mul_f32 v20, {LOG2E|0x80000000:#x}, v20")
    e("v_mul_f32 v21, v11, v18")
    e(f"v_mul_f32 v21, {INV2PI:#x}, v21")
    e("v_mul_f32 v22, v12, v19")
    e("v_mul_f32 v23, v13, v19")
    e("ds_write_b128 v5, v[20:23]")
    e("s_waitcnt lgkmcnt(0)")
    for st in range(8):
        e(f"ds_read_b128 v[{96+4*st}:{99+4*st}], v39 offset:{64*st}")
    e("s_waitcnt lgkmcnt(0)")
    def kg_valu(st):
        P = 96 + 4*st
        O = 72 + 10*(st & 1)
        v = []
        for t in range(4):
            v.append(f"v_mul_f32 v{52+t}, v{P}, v{28+t}")
            v.append(f"v_mul_f32 v{56+t}, v{P+1}, v{28+t}")
        for t in range(4):
            v.append(f"v_exp_f32 v{52+t}, v{52+t}")
            v.append(f"v_fract_f32 v{56+t}, v{56+t}")
        for t in range(4):
            v.append(f"v_cos_f32 v{60+t}, v{56+t}")
            v.append(f"v_sin_f32 v{64+t}, v{56+t}")
        for t in range(4):
            v.append(f"v_mul_f32 v{60+t}, v{52+t}, v{60+t}")
            v.append(f"v_mul_f32 v{64+t}, v{52+t}, v{64+t}")
        v.append(f"v_mul_f32 v55, v63, v{P+2}")
        v.append(f"v_mul_f32_e64 v59, -v63, v{P+3}")
        v.append(f"v_fma_f32 v55, -v67, v{P+3}, v55")
        v.append(f"v_fma_f32 v59, -v67, v{P+2}, v59")
        def split(xr, xi, H, Lo, t0, t1):
            v.append(f"v_cvt_pk_bf16_f32 v{H}, v{xr}, v{xi}")
            v.append(f"v_lshlrev_b32 v{t0}, 16, v{H}")
            v.append(f"v_and_b32 v{t1}, 0xffff0000, v{H}")
            v.append(f"v_sub_f32 v{t0}, v{xr}, v{t0}")
            v.append(f"v_sub_f32 v{t1}, v{xi}, v{t1}")
            v.append(f"v_cvt_pk_bf16_f32 v{Lo}, v{t0}, v{t1}")
        split(55, 59, O, O+2, 68, 69)
        v.append(f"v_mov_b32 v{O+1}, v{O}")
        v.append(f"v_mov_b32 v{O+3}, v{O+2}")
        for t in range(3):
            split(60+t, 64+t, O+4+2*t, O+5+2*t, 52+t, 56+t)
        return v
    def kg_mfma(st):
        O = 72 + 10*(st & 1)
        m = []
        for h in range(2):
            for t in range(3):
                a = 40 + 4*t
                m.append(f"v_mfma_f32_16x16x16_bf16 v[{a}:{a+3}], v[{O+4+2*t}:{O+5+2*t}], v[{O+2*h}:{O+2*h+1}], v[{a}:{a+3}]")
        return m
    for st in range(9):
        v = kg_valu(st) if st < 8 else []
        m = kg_mfma(st-1) if st > 0 else []
        if "kgm" in SKIP: m = []
        if "kgv" in SKIP: v = []
        if not v:
            e("s_nop 1")
        vi = 0
        for mi, mm_ in enumerate(m):
            tgt = 2 + 7*mi
            while vi < min(tgt, len(v)):
                e(v[vi]); vi += 1
            e(mm_)
        while vi < len(v):
            e(v[vi]); vi += 1
    e("s_nop 15")
    tl(2)
    for r in range(4):
        e(f"ds_write_b32 v33, v{40+r} offset:{4*r}")
    e("ds_write_b32 v34, v44")
    e("ds_write_b32 v34, v45 offset:4")
    e("ds_write_b32 v36, v46")
    e("ds_write_b32 v36, v47 offset:4")
    e("s_mov_b32 exec_hi, 0xffff")
    e("ds_write_b32 v38, v48")
    e("s_mov_b32 exec_hi, 0")
    for r in range(1, 4):
        e(f"ds_write_b32 v38, v{48+r} offset:{64*r}")
    e("s_mov_b32 exec_hi, -1")
    e("s_mul_i32 s4, s4, %d" % KR_STRIDE)
    e("s_add_u32 s4, s4, %d" % WS_KR)
    e("v_lshlrev_b32 v39, 4, v0")
    e("v_lshlrev_b32 v64, 3, v0")
    e("v_sub_u32 v64, 2047, v64")
    e("v_lshlrev_b32 v65, 2, v0")
    e("v_lshlrev_b32 v66, 1, v0")
    for k in range(8):
        e(f"v_subrev_u32 v{52+k}, {k}, v64")
        e(f"v_cvt_f32_u32 v{72+k}, v{52+k}")
    for k in range(4):
        e(f"v_cvt_pk_bf16_f32 v{80+k}, v{72+2*k}, v{73+2*k}")
        e(f"v_and_b32 v{72+2*k}, 0xffff, v{80+k}")
        e(f"v_lshrrev_b32 v{73+2*k}, 16, v{80+k}")
    for k in range(8):
        e(f"v_subrev_u32 v{72+k}, 17024, v{72+k}")
        e(f"v_cmp_gt_u32 vcc, 256, v{52+k}")
        e("s_nop 1")
        e(f"v_cndmask_b32 v{52+k}, v{72+k}, v{52+k}, vcc")
        e(f"v_lshlrev_b32 v{52+k}, 1, v{52+k}")
    e("s_waitcnt lgkmcnt(0)")
    e("s_barrier")
    tl(3)
    for m in range(3):
        for ww in range(4):
            e(f"ds_read_b32 v{72+4*m+ww}, v65 offset:{KG_TAB0 + ww*KG_TAB + 1024*m}")
    for m in range(3):
        e(f"s_waitcnt lgkmcnt({8-4*m})")
        e(f"v_add_f32 v{72+4*m}, v{72+4*m}, v{73+4*m}")
        e(f"v_add_f32 v{74+4*m}, v{74+4*m}, v{75+4*m}")
        e(f"v_add_f32 v{72+4*m}, v{72+4*m}, v{74+4*m}")
        e(f"v_cvt_pk_bf16_f32 v{72+4*m}, v{72+4*m}, v{72+4*m}")
        e(f"ds_write_b16 v66, v{72+4*m} offset:{KG_FIN + 512*m}")
    e("s_waitcnt lgkmcnt(0)")
    e("s_barrier")
    tl(4)
    for k in range(8):
        e(f"ds_read_u16 v{96+k}, v{52+k} offset:{KG_FIN}")
    e("s_waitcnt lgkmcnt(0)")
    for k in range(4):
        e(f"v_lshl_or_b32 v{112+k}, v{97+2*k}, 16, v{96+2*k}")
    e(f"buffer_store_dwordx4 v[112:115], v39, s[28:31], s4 offen")
    for k in range(4):
        e(f"v_mov_b32 v{116+k}, 0")
    e("v_cmp_gt_u32 vcc, 8, v0")
    e("s_and_saveexec_b64 s[32:33], vcc")
    e("s_cbranch_execz prep_end")
    e("s_add_u32 s4, s4, 4096")
    e("buffer_store_dwordx4 v[116:119], v39, s[28:31], s4 offen")
    e("v_lshlrev_b32 v39, 6, v0")
    tl(5)
    if TL: e("s_waitcnt vmcnt(0)")
    tl_end(0)
    e("s_cmp_lg_u32 s2, 0")
    e("s_cbranch_scc1 prep_end")
    e("s_mov_b32 s4, %d" % WS_CNT)
    e("buffer_store_dword v116, v39, s[28:31], s4 offen")
    e("buffer_store_dword v116, v39, s[28:31], s4 offen offset:512")
    e("s_endpgm")
    lab("prep_ln")
    if "ln" in SKIP: e("s_endpgm")
    if PRIO & 1: e("s_setprio 3")
    e("s_load_dwordx2 s[40:41], s[0:1], 0")
    e("s_sub_u32 s2, s2, %d" % KG_WGS)
    e("v_and_b32 v3, 15, v0")
    e("v_lshrrev_b32 v4, 4, v0")
    e("s_lshl_b32 s5, s2, 4")
    e("v_add_u32 v5, s5, v4")
    e("v_mul_u32_u24 v6, 1280, v5")
    e("v_lshl_add_u32 v6, v3, 4, v6")
    e("s_waitcnt lgkmcnt(0)")
    srd(8, 40, L*D*2); srd(28, 56, WS_SIZE)
    if DLYL: e(f"s_sleep {DLYL}")
    for j in range(5):
        e(f"buffer_load_dwordx4 v[{16+4*j}:{19+4*j}], v6, s[8:11], 0 offen offset:{256*j}")
    e("s_lshr_b32 s6, s2, 1")
    e("s_mul_i32 s6, s6, %d" % (40*1024))
    e("s_add_u32 s6, s6, %d" % WS_XNF)
    e("v_lshrrev_b32 v7, 1, v3")
    e("v_lshlrev_b32 v7, 10, v7")
    e("v_and_b32 v8, 1, v3")
    e("v_lshl_add_u32 v7, v8, 9, v7")
    e("v_and_b32 v8, 31, v5")
    e("v_lshl_add_u32 v7, v8, 4, v7")
    e(f"v_mul_u32_u24 v9, {8*LNS}, v3")
    e("v_lshl_add_u32 v9, v4, 1, v9")
    e("s_waitcnt vmcnt(0)")
    tl(1)
    for k in range(20):
        e(f"v_lshlrev_b32 v{40+2*k}, 16, v{16+k}")
        e(f"v_and_b32 v{41+2*k}, 0xffff0000, v{16+k}")
    def lane_sum(srcs, acc):
        for a in range(4):
            e(f"v_add_f32 v{acc+a}, v{srcs[a]}, v{srcs[a+4]}")
        for k in range(8, len(srcs)):
            e(f"v_add_f32 v{acc+(k%4)}, v{acc+(k%4)}, v{srcs[k]}")
        e(f"v_add_f32 v{acc}, v{acc}, v{acc+1}")
        e(f"v_add_f32 v{acc+2}, v{acc+2}, v{acc+3}")
        e(f"v_add_f32 v{acc}, v{acc}, v{acc+2}")
        for sh in (8, 4, 2, 1):
            e("s_nop 1")
            e(f"v_add_f32_dpp v{acc}, v{acc}, v{acc} row_ror:{sh} row_mask:0xf bank_mask:0xf")
    lane_sum(list(range(40, 80)), 10)
    e("v_mul_f32 v14, 0x3acccccd, v10")
    for k in range(40):
        e(f"v_sub_f32 v{80+k}, v{40+k}, v14")
        e(f"v_mul_f32 v{80+k}, v{80+k}, v{80+k}")
    lane_sum(list(range(80, 120)), 10)
    e("v_mul_f32 v10, 0x3acccccd, v10")
    e("v_cvt_pk_bf16_f32 v10, v10, v14")
    e("v_and_b32 v14, 0xffff0000, v10")
    e("v_lshlrev_b32 v10, 16, v10")
    e("v_add_f32 v10, 0x3727c5ac, v10")
    e("v_cvt_pk_bf16_f32 v10, v10, v10")
    e("v_lshlrev_b32 v10, 16, v10")
    e("v_sqrt_f32 v10, v10")
    e("s_nop 0")
    e("v_cvt_pk_bf16_f32 v10, v10, v10")
    e("v_lshlrev_b32 v10, 16, v10")
    e("v_rcp_f32 v11, v10")
    e("s_nop 0")
    e("v_fma_f32 v12, -v10, v11, 2.0")
    e("v_mul_f32 v11, v11, v12")
    for k in range(20):
        e(f"v_sub_f32 v{40+2*k}, v{40+2*k}, v14")
        e(f"v_sub_f32 v{41+2*k}, v{41+2*k}, v14")
        e(f"v_cvt_pk_bf16_f32 v{16+k}, v{40+2*k}, v{41+2*k}")
        e(f"v_lshlrev_b32 v{40+2*k}, 16, v{16+k}")
        e(f"v_and_b32 v{41+2*k}, 0xffff0000, v{16+k}")
        e(f"v_mul_f32 v{40+2*k}, v{40+2*k}, v11")
        e(f"v_mul_f32 v{41+2*k}, v{41+2*k}, v11")
        e(f"v_cvt_pk_bf16_f32 v{16+k}, v{40+2*k}, v{41+2*k}")
    tl(2)
    for j in range(5):
        if "xnf" not in SKIP: e(f"buffer_store_dwordx4 v[{16+4*j}:{19+4*j}], v7, s[28:31], s6 offen")
        if j < 4: e("s_add_u32 s6, s6, 8192")
    for j in range(5):
        for el in range(8):
            r = 16 + 4*j + el//2
            op = "ds_write_b16_d16_hi" if el & 1 else "ds_write_b16"
            e(f"{op} v9, v{r} offset:{(128*j + el)*LNS}")
    e("v_lshrrev_b32 v10, 1, v0")
    e("v_and_b32 v11, 1, v0")
    e(f"v_mul_u32_u24 v12, {LNS}, v10")
    e("v_lshl_add_u32 v12, v11, 4, v12")
    e("v_lshlrev_b32 v13, 4, v0")
    e("s_mul_i32 s6, s2, 20480")
    e("s_add_u32 s6, s6, %d" % WS_XNT)
    e("s_waitcnt lgkmcnt(0)")
    e("s_barrier")
    tl(3)
    for j in range(5):
        e(f"ds_read2_b32 v[{40+4*j}:{41+4*j}], v12 offset0:{(128*j*LNS)//4 % 256} offset1:{(128*j*LNS)//4 % 256 + 1}")
        e(f"ds_read2_b32 v[{42+4*j}:{43+4*j}], v12 offset0:{(128*j*LNS)//4 % 256 + 2} offset1:{(128*j*LNS)//4 % 256 + 3}")
        if j < 4:
            nxt = (128*(j+1)*LNS)//4 // 256 - (128*j*LNS)//4 // 256
            e(f"v_add_u32 v12, {nxt*1024}, v12")
    for j in range(5):
        e(f"s_waitcnt lgkmcnt({2*(4-j)})")
        if "xnt" not in SKIP: e(f"buffer_store_dwordx4 v[{40+4*j}:{43+4*j}], v13, s[28:31], s6 offen")
        if j < 4: e("s_add_u32 s6, s6, %d" % (128*32))
    tl(5)
    if TL: e("s_waitcnt vmcnt(0)")
    tl_end(0)
    e("s_endpgm")
    lab("prep_wt")
    gen_wt(KG_WGS + LN_WGS, 0, 270 if W2MID else 0, "prep_end", 0, DLYW)
    lab("prep_end")
    e("s_endpgm")
    kernel_desc("prep_kernel", 128)

G1_WGS = 256
CV_WGS = 640
W2_WGS = 68 if W2MID else 0
MID_WGS = G1_WGS + CV_WGS + W2_WGS
CS = 4160
def CB(c): return c*CS + (32 if c >= 4 else 0)
UB = CB(7) + CS - 80
G1_NS, G1_BD = int(os.environ.get('G1NS', 5)), int(os.environ.get('G1BD', 3))
MID_LDS = 40960

def mish_pairs(acc0, acc1, b0, b1r, dst, t):
    e(f"v_cvt_pk_bf16_f32 v{t}, v{acc0}, v{acc1}")
    e(f"v_lshlrev_b32 v{t+1}, 16, v{t}")
    e(f"v_and_b32 v{t+2}, 0xffff0000, v{t}")
    e(f"v_add_f32 v{t+1}, v{t+1}, v{b0}")
    e(f"v_add_f32 v{t+2}, v{t+2}, v{b1r}")
    e(f"v_cvt_pk_bf16_f32 v{t}, v{t+1}, v{t+2}")
    e(f"v_lshlrev_b32 v{t+1}, 16, v{t}")
    e(f"v_and_b32 v{t+2}, 0xffff0000, v{t}")
    if MISH2:
        e(f"v_mul_f32 v{t+3}, {LOG2E:#x}, v{t+1}")
        e(f"v_mul_f32 v{t+4}, {LOG2E:#x}, v{t+2}")
        e(f"v_exp_f32 v{t+3}, v{t+3}")
        e(f"v_exp_f32 v{t+4}, v{t+4}")
        e(f"s_nop 0")
        e(f"v_add_f32 v{t+3}, 1.0, v{t+3}")
        e(f"v_add_f32 v{t+4}, 1.0, v{t+4}")
        e(f"v_fmaak_f32 v{t+3}, v{t+3}, v{t+3}, 0x3f800000")
        e(f"v_fmaak_f32 v{t+4}, v{t+4}, v{t+4}, 0x3f800000")
        e(f"v_rcp_f32 v{t+3}, v{t+3}")
        e(f"v_rcp_f32 v{t+4}, v{t+4}")
        e(f"s_nop 0")
        e(f"v_fmaak_f32 v{t+3}, -2.0, v{t+3}, 0x3f800000")
        e(f"v_fmaak_f32 v{t+4}, -2.0, v{t+4}, 0x3f800000")
        e(f"v_mul_f32 v{t+1}, v{t+1}, v{t+3}")
        e(f"v_mul_f32 v{t+2}, v{t+2}, v{t+4}")
    else:
        e(f"v_min_f32 v{t+3}, 0x41a00000, v{t+1}")
        e(f"v_min_f32 v{t+4}, 0x41a00000, v{t+2}")
        e(f"v_mul_f32 v{t+3}, {LOG2E:#x}, v{t+3}")
        e(f"v_mul_f32 v{t+4}, {LOG2E:#x}, v{t+4}")
        e(f"v_exp_f32 v{t+3}, v{t+3}")
        e(f"v_exp_f32 v{t+4}, v{t+4}")
        e(f"s_nop 0")
        e(f"v_add_f32 v{t}, 2.0, v{t+3}")
        e(f"v_add_f32 v{t+5}, 2.0, v{t+4}")
        e(f"v_mul_f32 v{t+3}, v{t+3}, v{t}")
        e(f"v_mul_f32 v{t+4}, v{t+4}, v{t+5}")
        e(f"v_add_f32 v{t}, 2.0, v{t+3}")
        e(f"v_add_f32 v{t+5}, 2.0, v{t+4}")
        e(f"v_rcp_f32 v{t}, v{t}")
        e(f"v_rcp_f32 v{t+5}, v{t+5}")
        e(f"v_mul_f32 v{t+1}, v{t+1}, v{t+3}")
        e(f"v_mul_f32 v{t+2}, v{t+2}, v{t+4}")
        e(f"v_mul_f32 v{t+1}, v{t+1}, v{t}")
        e(f"v_mul_f32 v{t+2}, v{t+2}, v{t+5}")
    e(f"v_cvt_pk_bf16_f32 v{dst}, v{t+1}, v{t+2}")

def mish_quad(ac, T, dst):
    H = [T+4, T+8]; E = [T+6, T+10]; P = [T+12, T+13]
    pr = lambda r: f"v[{r}:{r+1}]"
    for q in range(2): e(f"v_cvt_pk_bf16_f32 v{P[q]}, v{ac+2*q}, v{ac+2*q+1}")
    for q in range(2):
        e(f"v_lshlrev_b32 v{H[q]}, 16, v{P[q]}")
        e(f"v_and_b32 v{H[q]+1}, 0xffff0000, v{P[q]}")
    for q in range(2): e(f"v_pk_add_f32 {pr(H[q])}, {pr(H[q])}, {pr(T+2*q)}")
    for q in range(2): e(f"v_cvt_pk_bf16_f32 v{P[q]}, v{H[q]}, v{H[q]+1}")
    for q in range(2):
        e(f"v_lshlrev_b32 v{H[q]}, 16, v{P[q]}")
        e(f"v_and_b32 v{H[q]+1}, 0xffff0000, v{P[q]}")
    for q in range(2): e(f"v_pk_mul_f32 {pr(E[q])}, {pr(H[q])}, s[46:47]")
    for q in range(2):
        e(f"v_exp_f32 v{E[q]}, v{E[q]}")
        e(f"v_exp_f32 v{E[q]+1}, v{E[q]+1}")
    for q in range(2): e(f"v_pk_add_f32 {pr(E[q])}, {pr(E[q])}, v[40:41]")
    for q in range(2): e(f"v_pk_fma_f32 {pr(E[q])}, {pr(E[q])}, {pr(E[q])}, v[40:41]")
    for q in range(2):
        e(f"v_rcp_f32 v{E[q]}, v{E[q]}")
        e(f"v_rcp_f32 v{E[q]+1}, v{E[q]+1}")
    for q in range(2): e(f"v_pk_fma_f32 {pr(E[q])}, {pr(E[q])}, v[42:43], v[40:41]")
    for q in range(2): e(f"v_pk_mul_f32 {pr(H[q])}, {pr(H[q])}, {pr(E[q])}")
    for q in range(2): e(f"v_cvt_pk_bf16_f32 v{dst+q}, v{H[q]}, v{H[q]+1}")

def gemm_loop(nA, nsteps, KS, NS, frag_reg, acc_reg, voff, srdws, sA0, sB0, stride, spiece, vlds_r_b, vlds_r_lane):
    nR = nA + 4
    npieces = nR * KS
    npw = (npieces + 3) // 4
    SZ = npieces * 1024
    nchunks = nsteps // KS
    assert nsteps % KS == 0
    e(f"s_sub_u32 s{sB0}, s{sB0}, {nA*stride}")
    for i in range(npw):
        g, l = spiece + 2*i, spiece + 2*i + 1
        e(f"s_add_u32 s{l}, s3, {4*i}")
        e(f"s_min_u32 s{l}, s{l}, {npieces-1}")
        sh = {1: 0, 2: 1, 4: 2}[KS]
        e(f"s_lshr_b32 s{g}, s{l}, {sh}")
        e(f"s_cmp_lt_u32 s{g}, {nA}")
        e(f"s_cselect_b32 s6, s{sA0}, s{sB0}")
        e(f"s_mul_i32 s{g}, s{g}, {stride}")
        e(f"s_add_u32 s{g}, s{g}, s6")
        e(f"s_and_b32 s6, s{l}, {KS-1}")
        e(f"s_lshl_b32 s6, s6, 10")
        e(f"s_add_u32 s{g}, s{g}, s6")
        e(f"s_lshl_b32 s{l}, s{l}, 10")
    def dma(c):
        slot = c % NS
        for i in range(npw):
            e(f"s_add_u32 m0, s{spiece+2*i+1}, {slot*SZ}")
            e("s_nop 0")
            e(f"buffer_load_dwordx4 v{voff}, s[{srdws}:{srdws+3}], s{spiece+2*i} offen lds")
        e(f"v_add_u32 v{voff}, {KS*1024}, v{voff}")
    per = nA + 1
    HALF = 2*SZ
    e(f"v_add_u32 v12, {HALF}, v{vlds_r_b}")
    e(f"v_add_u32 v13, {HALF}, v{vlds_r_lane}")
    e(f"v_add_u32 v14, {2*HALF}, v{vlds_r_b}")
    e(f"v_add_u32 v15, {2*HALF}, v{vlds_r_lane}")
    def reads(slot, q):
        fr = frag_reg + 4*per*q
        vb, vl, so = [(vlds_r_b, vlds_r_lane, slot*SZ), (12, 13, slot*SZ - HALF), (14, 15, slot*SZ - 2*HALF)][slot//2]
        e(f"ds_read_b128 v[{fr}:{fr+3}], v{vb} offset:{so + q*1024}")
        for a in range(nA):
            e(f"ds_read_b128 v[{fr+4+4*a}:{fr+7+4*a}], v{vl} offset:{so + a*KS*1024 + q*1024}")
    def mfmas(q):
        fr = frag_reg + 4*per*q
        for a in range(nA):
            ac = acc_reg + 16*a
            e(f"v_mfma_f32_32x32x16_bf16 v[{ac}:{ac+15}], v[{fr+4+4*a}:{fr+7+4*a}], v[{fr}:{fr+3}], v[{ac}:{ac+15}]")
    for c in range(min(NS-1, nchunks)):
        dma(c)
    for c in range(nchunks):
        inflight = min(NS-2, nchunks-1-c)
        e(f"s_waitcnt vmcnt({inflight*npw})")
        e("s_barrier")
        if nA == 2 and c == 0: stamp(2)
        if nA == 2 and c == 1: stamp(3)
        slot = c % NS
        if "rd" not in SKIP:
            for q in range(KS):
                reads(slot, q)
        if c + NS - 1 < nchunks and "dma" not in SKIP:
            dma(c + NS - 1)
        for q in range(KS):
            e(f"s_waitcnt lgkmcnt({(KS-1-q)*per})")
            if "mf" not in SKIP: mfmas(q)


UB2 = CB(7) + CS
HS = 2432
def gen_conv2():
    if "cv" in SKIP: e("s_endpgm")
    if PRIO & 8: e("s_setprio 3")
    srd(8, 60, D*2)
    e("s_sub_u32 s4, s2, %d" % G1_WGS)
    e("s_and_b32 s5, s4, 7")
    e("s_lshl_b32 s5, s5, 2")
    e("s_bfe_u32 s6, s4, 0x20003")
    e("s_or_b32 s5, s5, s6")
    e("s_andn2_b32 s4, s4, 31")
    e("s_or_b32 s4, s4, s5")
    e("s_lshl_b32 s5, s4, 1")
    e("v_mov_b32 v3, s5")
    if DLYC: e(f"s_sleep {DLYC}")
    e("buffer_load_ushort v1, v3, s[8:11], 0 offen")
    e("s_lshl_b32 s5, s4, 5")
    e("s_add_u32 s5, s5, %d" % WS_XNT)
    e("v_lshrrev_b32 v4, 1, v0")
    e("v_mul_u32_u24 v4, 20480, v4")
    e("v_and_b32 v5, 1, v0")
    e("v_lshl_add_u32 v4, v5, 4, v4")
    e("buffer_load_dwordx4 v[8:11], v4, s[28:31], s5 offen")
    e("v_lshlrev_b32 v4, 4, v0")
    e("s_mul_i32 s6, s4, %d" % KR_STRIDE)
    e("s_add_u32 s6, s6, %d" % WS_KR)
    e("buffer_load_dwordx4 v[12:15], v4, s[28:31], s6 offen")
    e("buffer_load_dwordx4 v[16:19], v4, s[28:31], s6 offen offset:16")
    if not CV3:
        e("v_min_u32 v5, 3, v0")
        e("v_lshlrev_b32 v5, 4, v5")
        e("v_add_u32 v5, 4096, v5")
        e("buffer_load_dwordx4 v[20:23], v5, s[28:31], s6 offen")
        e("buffer_load_dwordx4 v[24:27], v5, s[28:31], s6 offen offset:16")
    for k in range(4):
        e(f"v_mov_b32 v{28+k}, 0")
    e("v_min_u32 v6, 31, v0")
    e("v_lshrrev_b32 v7, 4, v6")
    e("v_and_b32 v6, 15, v6")
    e("v_lshlrev_b32 v6, 4, v6")
    e(f"v_mad_u32_u24 v6, v7, {HS}, v6") if False else (e(f"v_mul_u32_u24 v7, {HS}, v7"), e("v_add_u32 v6, v6, v7"))
    if CV3:
        e("s_cmp_lg_u32 s3, 0")
        e("s_cbranch_scc1 cv_nz")
        e(f"v_add_u32 v6, {UB2}, v6")
        e("v_subrev_u32 v7, 32, v0")
        e("v_min_u32 v7, 7, v7")
        e("v_lshrrev_b32 v5, 2, v7")
        e(f"v_mul_u32_u24 v7, {CS}, v7")
        e("v_lshl_add_u32 v7, v5, 5, v7")
        e("v_add_u32 v7, 4096, v7")
        e("v_cmp_gt_u32 vcc, 32, v0")
        e("s_nop 1")
        e("v_cndmask_b32 v6, v7, v6, vcc")
        e("s_mov_b32 exec_hi, 0xff")
        e("ds_write_b128 v6, v[28:31]")
        e("s_mov_b32 exec_hi, -1")
        lab("cv_nz")
    else:
        e(f"ds_write_b128 v6, v[28:31] offset:{UB2}")
    e("v_lshrrev_b32 v6, 1, v0")
    e("v_lshlrev_b32 v6, 4, v6")
    e("v_and_b32 v7, 1, v0")
    e(f"v_mul_u32_u24 v7, {HS}, v7")
    e("v_add_u32 v6, v6, v7")
    e("s_waitcnt vmcnt(%d)" % (2 if CV3 else 4))
    e(f"ds_write_b128 v6, v[8:11] offset:{UB2 + 256}")
    def copies(w, vaddr):
        for c in range(8):
            if c % 2 == 0:
                e(f"ds_write_b128 v{vaddr}, v[{w+c//2}:{w+c//2+3}] offset:{CB(c)}") if (w + c//2) % 2 == 0 else None
                if (w + c//2) % 2:
                    for j in range(4):
                        e(f"v_mov_b32 v{32+j}, v{w+c//2+j}")
                    e(f"ds_write_b128 v{vaddr}, v[32:35] offset:{CB(c)}")
            else:
                for j in range(4):
                    e(f"v_alignbit_b32 v{36+j}, v{w+(c+1)//2+j}, v{w+(c-1)//2+j}, 16")
                e(f"ds_write_b128 v{vaddr}, v[36:39] offset:{CB(c)}")
    e("s_waitcnt vmcnt(%d)" % (0 if CV3 else 2))
    tl(1)
    copies(12, 4)
    if not CV3:
        e("s_waitcnt vmcnt(0)")
        copies(20, 5)
    e("v_and_b32 v3, 15, v2")
    e("v_lshrrev_b32 v4, 4, v2")
    e("v_sub_u32 v5, 7, v3")
    e("v_and_b32 v5, 7, v5")
    e("v_sub_u32 v6, 2031, v3")
    e("v_lshl_add_u32 v6, v4, 3, v6")
    e("v_sub_u32 v6, v6, v5")
    e("v_mul_u32_u24 v7, %d, v5" % CS)
    e("v_lshrrev_b32 v8, 2, v5")
    e("v_lshl_add_u32 v7, v8, 5, v7")
    e("v_lshl_add_u32 v6, v6, 1, v7")
    e("s_lshl_b32 s5, s3, 7")
    e(f"s_add_u32 s5, s5, {64 + 3584}")
    e("v_subrev_u32 v8, s5, v6")
    e("v_and_b32 v5, 1, v4")
    e("v_lshrrev_b32 v6, 1, v4")
    e(f"v_mul_u32_u24 v7, {HS}, v5")
    e("v_add_u32 v9, v3, v6")
    e("v_lshl_add_u32 v9, v9, 4, v7")
    e("s_lshl_b32 s5, s3, 6")
    e(f"s_sub_u32 s5, {UB2 + 16*15 - 32}, s5")
    e("v_add_u32 v9, s5, v9")
    e(f"v_mul_u32_u24 v11, {HS}, v6")
    e("v_lshl_add_u32 v11, v3, 4, v11")
    e("v_lshl_add_u32 v11, v5, 3, v11")
    e("s_lshl_b32 s5, s3, 9")
    e("v_add_u32 v11, s5, v11")
    e("v_lshlrev_b32 v12, 5, v3")
    e("v_lshl_add_u32 v12, v4, 3, v12")
    e("v_lshlrev_b32 v10, 4, v2")
    e("s_lshl_b32 s5, s3, 13")
    e("v_add_u32 v13, s5, v10")
    e("s_lshl_b32 s5, s3, 10")
    e("v_add_u32 v10, s5, v10")
    for r in range(16, 48):
        e(f"v_mov_b32 v{r}, 0")
    e("s_waitcnt lgkmcnt(0)")
    tl(2)
    e("s_barrier")
    tl(3)
    free = list(range(48, 128, 4))
    loc = {}
    pend = []
    order = [("A",0),("B",7),("B",0),("A",7),("A",1),("B",6),("B",1),("A",6),("A",2),("B",5),("B",2),("A",5),("A",3),("B",4),("B",3),("A",4)]
    todo = [(st,) + o for st in range(2) for o in order]
    def rd(n):
        for _ in range(n):
            if not todo or not free or len(pend) >= 15: return
            key = todo.pop(0); r = free.pop(0); loc[key] = r
            st, ab, i = key
            if ab == "A": e(f"ds_read_b128 v[{r}:{r+3}], v8 offset:{512*(7-i) + 64*(1-st)}")
            else: e(f"ds_read_b128 v[{r}:{r+3}], v9 offset:{256*i + 32*(1-st)}")
            pend.append(key)
    def need(keys):
        idx = [pend.index(k) for k in keys if k in pend]
        if idx:
            last = max(idx)
            e(f"s_waitcnt lgkmcnt({len(pend) - 1 - last})")
            del pend[:last+1]
    groups = []
    for s_ in (7, 6, 5, 4, 3, 2, 1, 0):
        n = min(s_, 7 - s_)
        g = [(s_, m) for m in range(n + 1)] + [(j, s_) for j in range(min(s_ - 1, 7 - s_) + 1)]
        groups.append((s_, g))
    assert sum(len(g) for _, g in groups) == 36
    rd(20)
    for st in range(2):
        for s_, g in groups:
            need([(st, "B", j) for j, m in g] + [(st, "A", m) for j, m in g])
            for j, m in g:
                ac = 16 + 4*(j + m); a = loc[(st, "A", m)]; b = loc[(st, "B", j)]
                e(f"v_mfma_f32_16x16x32_bf16 v[{ac}:{ac+3}], v[{a}:{a+3}], v[{b}:{b+3}], v[{ac}:{ac+3}]")
            free.append(loc[(st, "A", s_)]); free.append(loc[(st, "B", s_)])
            rd(8)
    assert not todo and not pend
    tl(4)
    e("s_nop 15")
    e("s_barrier")
    for t in range(8):
        if CV3 & 2 and t % 2 == 0:
            e(f"s_cmp_eq_u32 s3, {t//2}")
            e(f"s_cbranch_scc1 cv_sk{t//2}")
        e(f"ds_write_b128 v10, v[{16+4*t}:{19+4*t}] offset:{4096*t}")
        if CV3 & 2 and t % 2 == 1:
            e(f"s_branch cv_nx{t//2}")
            lab(f"cv_sk{t//2}")
            for tt in range(2):
                for r in range(4):
                    e(f"v_mov_b32 v{48+16*tt+r}, v{16+4*(t-1+tt)+r}")
            lab(f"cv_nx{t//2}")
    if CV3 & 2:
        for i in range(1, 4):
            e(f"s_add_u32 s5, s3, {i}")
            e("s_and_b32 s5, s5, 3")
            e("s_lshl_b32 s5, s5, 10")
            e(f"v_add_u32 v{4+i}, s5, v13")
    for tt in range(2):
        e(f"ds_read_b64 v[{80+2*tt}:{81+2*tt}], v11 offset:{UB2 + 256 + 256*tt}")
    e("s_lshl_b32 s5, s4, 12")
    e("s_lshl_b32 s6, s3, 10")
    e("s_add_u32 s5, s5, s6")
    e("s_add_u32 s5, s5, %d" % WS_AT)
    e("v_lshlrev_b32 v1, 16, v1")
    e("s_waitcnt lgkmcnt(0)")
    e("s_barrier")
    for i in range(8):
        if CV3 & 2:
            if i % 4: e(f"ds_read_b128 v[{48+4*i}:{51+4*i}], v{4+i%4} offset:{4096*(i//4)}")
        else:
            e(f"ds_read_b128 v[{48+4*i}:{51+4*i}], v13 offset:{1024*i}")
    for tt in range(2):
        for p_ in range(2):
            u = 80 + 2*tt + p_
            e(f"v_lshlrev_b32 v84, 16, v{u}")
            e(f"v_and_b32 v85, 0xffff0000, v{u}")
            e(f"v_mul_f32 v84, v84, v1")
            e(f"v_mul_f32 v85, v85, v1")
            e(f"v_cvt_pk_bf16_f32 v84, v84, v85")
            e(f"v_lshlrev_b32 v{88+4*tt+2*p_}, 16, v84")
            e(f"v_and_b32 v{89+4*tt+2*p_}, 0xffff0000, v84")
    for tt in range(2):
        e(f"s_waitcnt lgkmcnt({(3 - 3*tt) if CV3 & 2 else (4 - 4*tt)})")
        b0 = 48 + 16*tt
        for r in range(4):
            e(f"v_add_f32 v{b0+r}, v{b0+r}, v{b0+4+r}")
            e(f"v_add_f32 v{b0+8+r}, v{b0+8+r}, v{b0+12+r}")
        for r in range(4):
            e(f"v_add_f32 v{b0+r}, v{b0+r}, v{b0+8+r}")
        for p_ in range(2):
            e(f"v_cvt_pk_bf16_f32 v84, v{b0+2*p_}, v{b0+2*p_+1}")
            e(f"v_lshlrev_b32 v85, 16, v84")
            e(f"v_and_b32 v86, 0xffff0000, v84")
            e(f"v_add_f32 v85, v85, v{88+4*tt+2*p_}")
            e(f"v_add_f32 v86, v86, v{89+4*tt+2*p_}")
            e(f"v_cvt_pk_bf16_f32 v{96+2*tt+p_}, v85, v86")
        e(f"buffer_store_dwordx2 v[{96+2*tt}:{97+2*tt}], v12, s[28:31], s5 offen offset:{512*tt}")
    tl(5)
    if TL: e("s_waitcnt vmcnt(0)")
    tl_end(1)

def gen_mid():
    kernel_begin("mid_kernel")
    e("s_cmp_ge_u32 s2, %d" % MID_WGS)
    e("s_cbranch_scc1 mid_end")
    tl_begin()
    e("s_load_dwordx2 s[56:57], s[0:1], 104")
    e("s_load_dwordx2 s[58:59], s[0:1], 72")
    e("s_load_dwordx2 s[60:61], s[0:1], 48")
    e("v_lshrrev_b32 v1, 6, v0")
    e("v_and_b32 v2, 63, v0")
    e("s_nop 0")
    e("v_readfirstlane_b32 s3, v1")
    e("s_waitcnt lgkmcnt(0)")
    srd(28, 56, WS_SIZE)
    if W2MID:
        e("s_cmp_ge_u32 s2, %d" % (G1_WGS + CV_WGS))
        e("s_cbranch_scc1 mid_wt")
    e("s_cmp_ge_u32 s2, %d" % G1_WGS)
    e("s_cbranch_scc1 mid_conv")
    if "g1" in SKIP: e("s_endpgm")
    if PRIO & 4: e("s_setprio 3")
    srd(8, 58, F*2)
    tl(1)
    claim_tile(0, 32, 7168*G1_NS, "mcl")
    tl(2)
    if G1MAP == 0:
        e("s_lshr_b32 s5, s2, 4")
        e("s_and_b32 s4, s2, 15")
    else:
        e("s_lshr_b32 s5, s2, 6")
        e("s_lshl_b32 s5, s5, 2")
        e("s_bfe_u32 s6, s2, 0x20003")
        e("s_add_u32 s5, s5, s6")
        e("s_bfe_u32 s4, s2, 0x10005")
        e("s_lshl_b32 s4, s4, 3")
        e("s_and_b32 s6, s2, 7")
        e("s_add_u32 s4, s4, s6")
    e("s_mul_i32 s6, s4, 7")
    e("s_sub_u32 s7, s4, 12")
    e("s_cmp_lt_u32 s4, 12")
    e("s_cselect_b32 s7, 0, s7")
    e("s_cselect_b32 s26, 7, 6")
    e("s_sub_u32 s4, s6, s7")
    e("v_and_b32 v3, 15, v2")
    e("v_lshrrev_b32 v4, 4, v2")
    e("v_lshrrev_b32 v5, 1, v4")
    e("v_and_b32 v6, 1, v4")
    e("v_lshlrev_b32 v7, 4, v3")
    e("v_lshl_add_u32 v7, v5, 10, v7")
    e("v_lshl_add_u32 v7, v6, 9, v7")
    e("v_mov_b32 v8, v7")
    for k in range(2):
        e(f"s_add_u32 s6, s3, {4*k}")
        e("s_min_u32 s6, s6, 6")
        e(f"s_lshl_b32 s{42+k}, s6, 10")
        e("s_add_u32 s6, s6, s4")
        e("s_min_u32 s6, s6, 107")
        e(f"s_lshr_b32 s{40+k}, s6, 1")
        e(f"s_mul_i32 s{40+k}, s{40+k}, {40*1024}")
        e("s_and_b32 s6, s6, 1")
        e("s_lshl_b32 s6, s6, 8")
        e(f"s_add_u32 s{40+k}, s{40+k}, s6")
        e(f"s_add_u32 s{40+k}, s{40+k}, {WS_W1F}")
    e("s_lshl_b32 s6, s5, 2")
    e("s_add_u32 s27, s6, s3")
    e("s_mul_i32 s44, s27, %d" % (40*1024))
    e("s_add_u32 s44, s44, %d" % WS_XNF)
    if "g1y" in SKIP:
        e("s_xor_b32 s45, s27, 1")
        e("s_mul_i32 s45, s45, %d" % (40*1024))
    e("v_lshlrev_b32 v9, 4, v2")
    NS, BD, NSTEP = G1_NS, G1_BD, 20
    AF, BF, ACC, BI = 16, 44, 44 + 8*G1_BD, 44
    pend = []
    def dma(st):
        for k in range(2):
            e(f"s_add_u32 m0, s{42+k}, {(st % NS)*7168}")
            e("s_nop 0")
            e(f"buffer_load_dwordx4 v7, s[28:31], s{40+k} offen lds")
            pend.append(("a", st))
        e("v_add_u32 v7, 2048, v7")
    def bld(st):
        r = BF + 8*(st % BD)
        e(f"buffer_load_dwordx4 v[{r}:{r+3}], v8, s[28:31], s44 offen")
        e(f"buffer_load_dwordx4 v[{r+4}:{r+7}], v8, s[28:31], s44 offen offset:256")
        pend.append(("b", st)); pend.append(("b", st))
        if "g1y" in SKIP:
            e(f"buffer_load_dwordx4 v[{r}:{r+3}], v8, s[28:31], s45 offen")
            e(f"buffer_load_dwordx4 v[{r+4}:{r+7}], v8, s[28:31], s45 offen offset:256")
            pend.append(("b", st)); pend.append(("b", st))
        e("v_add_u32 v8, 2048, v8")
    def wait_for(*tags):
        idx = [i for i, p in enumerate(pend) if p in tags]
        if not idx: return
        last = max(idx)
        e(f"s_waitcnt vmcnt({len(pend) - 1 - last})")
        del pend[:last+1]
    def rdA(st, t):
        if "g1x" in SKIP and t >= 4: return
        e(f"ds_read_b128 v[{AF+4*t}:{AF+4*t+3}], v9 offset:{(st % NS)*7168 + 1024*t}")
    for st in range(max(NS-1, BD)):
        if st < NS-1: dma(st)
        if st < BD: bld(st)
    e("s_lshl_b32 s6, s4, 5")
    e("v_lshl_add_u32 v10, v4, 3, s6")
    for r in range(ACC, ACC+56):
        e(f"v_mov_b32 v{r}, 0")
    wait_for(("a", 0))
    e("s_barrier")
    tl(3)
    for t in range(7): rdA(0, t)
    for st in range(NSTEP):
        if st + 1 < NSTEP:
            wait_for(("a", st+1), ("b", st))
            e("s_barrier")
            if st - 1 + NS < NSTEP: dma(st - 1 + NS)
        else:
            wait_for(("b", st))
        rb = BF + 8*(st % BD)
        for t in range(7):
            if "g1x" in SKIP: e(f"s_waitcnt lgkmcnt({3 if st + 1 < NSTEP else max(3 - t, 0)})")
            else: e(f"s_waitcnt lgkmcnt({6 if st + 1 < NSTEP else 6 - t})")
            for b_ in range(2):
                ac = ACC + 4*(2*t + b_)
                e(f"v_mfma_f32_16x16x32_bf16 v[{ac}:{ac+3}], v[{AF+4*t}:{AF+4*t+3}], v[{rb+4*b_}:{rb+4*b_+3}], v[{ac}:{ac+3}]")
            if st + 1 < NSTEP: rdA(st+1, t)
        if st + BD < NSTEP: bld(st + BD)
        if st == NSTEP - 2:
            assert BD == 3
            free = [BF + 8*((NSTEP-3) % BD), BF + 8*((NSTEP-2) % BD)]
            BIr = [free[0] + 2*k for k in range(4)] + [free[1] + 2*k for k in range(3)]
            for t in range(7):
                e(f"buffer_load_dwordx2 v[{BIr[t]}:{BIr[t]+1}], v10, s[8:11], 0 offen offset:{32*t}")
                pend.append(("c", 0))
    e("s_nop 7")
    e("s_waitcnt vmcnt(0)")
    tl(4)
    e("s_mul_i32 s6, s27, 108")
    e("s_add_u32 s6, s6, s4")
    e("s_lshl_b32 s6, s6, 10")
    e("s_add_u32 s6, s6, %d" % WS_ACT)
    e("v_lshlrev_b32 v9, 4, v3")
    e("v_lshl_add_u32 v9, v5, 9, v9")
    e("v_lshl_add_u32 v9, v6, 3, v9")
    T = 16
    if MISH2 == 2:
        e(f"s_mov_b32 s46, {LOG2E:#x}")
        e(f"s_mov_b32 s47, {LOG2E:#x}")
        e("v_mov_b32 v40, 1.0"); e("v_mov_b32 v41, 1.0")
        e("v_mov_b32 v42, -2.0"); e("v_mov_b32 v43, -2.0")
    for t in range(7):
        if t == 6:
            e("s_cmp_lt_u32 s26, 7")
            e("s_cbranch_scc1 g1_end")
        r = BIr[t]
        e(f"v_lshlrev_b32 v{T}, 16, v{r}")
        e(f"v_and_b32 v{T+1}, 0xffff0000, v{r}")
        e(f"v_lshlrev_b32 v{T+2}, 16, v{r+1}")
        e(f"v_and_b32 v{T+3}, 0xffff0000, v{r+1}")
        for b_ in range(2):
            ac = ACC + 4*(2*t + b_)
            d0 = T + 16 + 2*((2*t + b_) % 4)
            if MISH2 == 2:
                mish_quad(ac, T, d0)
            else:
                mish_pairs(ac, ac+1, T, T+1, d0, T+4)
                mish_pairs(ac+2, ac+3, T+2, T+3, d0+1, T+10)
            off = (t % 4)*1024 + 256*b_
            e(f"buffer_store_dwordx2 v[{d0}:{d0+1}], v9, s[28:31], s6 offen offset:{off}")
        if t == 3: e("s_add_u32 s6, s6, 4096")
    lab("g1_end")
    tl(5)
    if TL: e("s_waitcnt vmcnt(0)")
    tl_end(1)
    e("s_endpgm")
    lab("mid_conv")
    if CONV2:
        gen_conv2()
    else:
        if "cv" in SKIP: e("s_endpgm")
        if PRIO & 8: e("s_setprio 3")
        srd(8, 60, D*2)
        e("s_sub_u32 s4, s2, %d" % G1_WGS)
        e("s_and_b32 s5, s4, 7")
        e("s_lshl_b32 s5, s5, 2")
        e("s_bfe_u32 s6, s4, 0x20003")
        e("s_or_b32 s5, s5, s6")
        e("s_andn2_b32 s4, s4, 31")
        e("s_or_b32 s4, s4, s5")
        e("s_lshl_b32 s5, s4, 1")
        e("v_mov_b32 v3, s5")
        if DLYC: e(f"s_sleep {DLYC}")
        e("buffer_load_ushort v1, v3, s[8:11], 0 offen")
        e("s_lshl_b32 s5, s4, 5")
        e("s_add_u32 s5, s5, %d" % WS_XNT)
        e("v_lshrrev_b32 v4, 1, v0")
        e("v_mul_u32_u24 v4, 20480, v4")
        e("v_and_b32 v5, 1, v0")
        e("v_lshl_add_u32 v4, v5, 4, v4")
        e("buffer_load_dwordx4 v[8:11], v4, s[28:31], s5 offen")
        e("v_lshlrev_b32 v4, 4, v0")
        e("s_mul_i32 s6, s4, %d" % KR_STRIDE)
        e("s_add_u32 s6, s6, %d" % WS_KR)
        e("buffer_load_dwordx4 v[12:15], v4, s[28:31], s6 offen")
        e("buffer_load_dwordx4 v[16:19], v4, s[28:31], s6 offen offset:16")
        e("v_min_u32 v5, 3, v0")
        e("v_lshlrev_b32 v5, 4, v5")
        e("v_add_u32 v5, 4096, v5")
        e("buffer_load_dwordx4 v[20:23], v5, s[28:31], s6 offen")
        e("buffer_load_dwordx4 v[24:27], v5, s[28:31], s6 offen offset:16")
        for k in range(4):
            e(f"v_mov_b32 v{28+k}, 0")
        e("v_min_u32 v6, 154, v0")
        e("v_lshlrev_b32 v6, 4, v6")
        e(f"ds_write_b128 v6, v[28:31] offset:{UB + 80}")
        e("v_lshrrev_b32 v6, 2, v0")
        e("v_mul_u32_u24 v6, 80, v6")
        e("v_and_b32 v7, 3, v0")
        e("v_lshl_add_u32 v6, v7, 4, v6")
        e("s_waitcnt vmcnt(4)")
        e(f"ds_write_b128 v6, v[8:11] offset:{UB + 32*80}")
        def copies(w, vaddr):
            for c in range(8):
                if c % 2 == 0:
                    e(f"ds_write_b128 v{vaddr}, v[{w+c//2}:{w+c//2+3}] offset:{CB(c)}") if (w + c//2) % 2 == 0 else None
                    if (w + c//2) % 2:
                        for j in range(4):
                            e(f"v_mov_b32 v{32+j}, v{w+c//2+j}")
                        e(f"ds_write_b128 v{vaddr}, v[32:35] offset:{CB(c)}")
                else:
                    for j in range(4):
                        e(f"v_alignbit_b32 v{36+j}, v{w+(c+1)//2+j}, v{w+(c-1)//2+j}, 16")
                    e(f"ds_write_b128 v{vaddr}, v[36:39] offset:{CB(c)}")
        e("s_waitcnt vmcnt(2)")
        tl(1)
        copies(12, 4)
        e("s_waitcnt vmcnt(0)")
        copies(20, 5)
        e("s_waitcnt lgkmcnt(0)")
        tl(2)
        e("s_barrier")
        tl(3)
        e("v_and_b32 v3, 31, v2")
        e("v_lshrrev_b32 v4, 5, v2")
        e("v_sub_u32 v5, 7, v3")
        e("v_and_b32 v5, 7, v5")
        e("v_sub_u32 v6, 2047, v3")
        e("v_lshl_add_u32 v6, v4, 3, v6")
        e("v_sub_u32 v6, v6, v5")
        e("v_mul_u32_u24 v7, %d, v5" % CS)
        e("v_lshrrev_b32 v8, 2, v5")
        e("v_lshl_add_u32 v7, v8, 5, v7")
        e("v_lshl_add_u32 v6, v6, 1, v7")
        e("v_mul_u32_u24 v7, 80, v3")
        e("v_lshl_add_u32 v7, v4, 4, v7")
        e(f"v_add_u32 v7, {UB + 32*80}, v7")
        for r in range(16, 48):
            e(f"v_mov_b32 v{r}, 0")
        e("s_lshl_b32 s5, s3, 9")
        e(f"s_add_u32 s5, s5, {64*7 + 64*32}")
        e("v_subrev_u32 v8, s5, v6")
        e("s_mul_i32 s5, s3, 640")
        e(f"s_add_u32 s5, s5, {80*7}")
        e("v_subrev_u32 v9, s5, v7")
        def rd(q):
            base = 48 + (q & 1)*32
            for t in range(2):
                fa = base + 16*t
                e(f"ds_read_b128 v[{fa}:{fa+3}], v8 offset:{64*(7-q) + 2048 + 32*t}")
                e(f"ds_read_b128 v[{fa+4}:{fa+7}], v9 offset:{80*(7-q) + 32*t}")
                e(f"ds_read_b128 v[{fa+8}:{fa+11}], v9 offset:{80*(7-q) + 2560 + 32*t}")
                e(f"ds_read_b128 v[{fa+12}:{fa+15}], v8 offset:{64*(7-q) + 32*t}")
        def mm(q):
            base = 48 + (q & 1)*32
            for t in range(2):
                fa = base + 16*t
                e(f"v_mfma_f32_32x32x16_bf16 v[16:31], v[{fa}:{fa+3}], v[{fa+4}:{fa+7}], v[16:31]")
                e(f"v_mfma_f32_32x32x16_bf16 v[32:47], v[{fa}:{fa+3}], v[{fa+8}:{fa+11}], v[32:47]")
                e(f"v_mfma_f32_32x32x16_bf16 v[32:47], v[{fa+12}:{fa+15}], v[{fa+4}:{fa+7}], v[32:47]")
        rd(0)
        for q in range(8):
            if q < 7:
                rd(q + 1)
                e("s_waitcnt lgkmcnt(8)")
            else:
                e("s_waitcnt lgkmcnt(0)")
            mm(q)
        tl(4)
        e("s_nop 15")
        e("s_barrier")
        e("v_lshlrev_b32 v10, 4, v2")
        e("s_cmp_eq_u32 s3, 0")
        e("s_cbranch_scc1 cv_w0")
        e("s_sub_u32 s5, s3, 1")
        e("s_lshl_b32 s5, s5, 12")
        e("v_add_u32 v11, s5, v10")
        for r in range(4):
            e(f"ds_write_b128 v11, v[{16+4*r}:{19+4*r}] offset:{1024*r}")
        lab("cv_w0")
        e("s_cmp_eq_u32 s3, 1")
        e("s_cbranch_scc1 cv_w1")
        e("s_sub_u32 s5, s3, 1")
        e("s_max_i32 s5, s5, 0")
        e("s_lshl_b32 s5, s5, 12")
        e("v_add_u32 v11, s5, v10")
        for r in range(4):
            e(f"ds_write_b128 v11, v[{32+4*r}:{35+4*r}] offset:{12288 + 1024*r}")
        e("s_branch cv_w2")
        lab("cv_w1")
        for r in range(16):
            e(f"v_mov_b32 v{16+r}, v{32+r}")
        e("v_add_u32 v10, 12288, v10")
        lab("cv_w2")
        e("s_waitcnt lgkmcnt(0)")
        e("s_barrier")
        e("s_cmp_ge_u32 s3, 2")
        e("s_cbranch_scc1 mid_end")
        for sl in range(3):
            for r in range(4):
                e(f"ds_read_b128 v[{48+16*sl+4*r}:{51+16*sl+4*r}], v10 offset:{4096*sl + 1024*r}")
        for sl in range(3):
            e(f"s_waitcnt lgkmcnt({8-4*sl})")
            for r in range(16):
                e(f"v_add_f32 v{16+r}, v{16+r}, v{48+16*sl+r}")
        lab("cv_epi")
        e("s_mul_i32 s5, s3, %d" % (32*80))
        e("v_mul_u32_u24 v11, 80, v3")
        e("v_lshl_add_u32 v11, v4, 3, v11")
        e("v_add_u32 v11, s5, v11")
        for g in range(4):
            e(f"ds_read_b64 v[{32+2*g}:{33+2*g}], v11 offset:{UB + 32*80 + 16*g}")
        e("s_lshl_b32 s5, s4, 12")
        e("s_lshl_b32 s6, s3, 11")
        e("s_add_u32 s5, s5, s6")
        e("s_add_u32 s5, s5, %d" % WS_AT)
        e("v_lshlrev_b32 v12, 6, v3")
        e("v_lshl_add_u32 v12, v4, 3, v12")
        e("s_waitcnt vmcnt(0) lgkmcnt(0)")
        e("v_lshlrev_b32 v1, 16, v1")
        for g in range(4):
            for p in range(2):
                u = 32 + 2*g + p
                y0 = 16 + 4*g + 2*p
                e(f"v_lshlrev_b32 v44, 16, v{u}")
                e(f"v_and_b32 v45, 0xffff0000, v{u}")
                e(f"v_mul_f32 v44, v44, v1")
                e(f"v_mul_f32 v45, v45, v1")
                e(f"v_cvt_pk_bf16_f32 v44, v44, v45")
                e(f"v_cvt_pk_bf16_f32 v46, v{y0}, v{y0+1}")
                e(f"v_lshlrev_b32 v47, 16, v44")
                e(f"v_and_b32 v48, 0xffff0000, v44")
                e(f"v_lshlrev_b32 v49, 16, v46")
                e(f"v_and_b32 v50, 0xffff0000, v46")
                e(f"v_add_f32 v47, v47, v49")
                e(f"v_add_f32 v48, v48, v50")
                e(f"v_cvt_pk_bf16_f32 v{52+2*g+p}, v47, v48")
            e(f"buffer_store_dwordx2 v[{52+2*g}:{53+2*g}], v12, s[28:31], s5 offen offset:{16*g}")
        tl(5)
        if TL: e("s_waitcnt vmcnt(0)")
        tl_end(1)
    if W2MID:
        e("s_endpgm")
        lab("mid_wt")
        gen_wt(G1_WGS + CV_WGS, 270, 540, "mid_end", 1, int(os.environ.get("DLYW2", 0)))
    lab("mid_end")
    e("s_endpgm")
    kernel_desc("mid_kernel", 128)

G2_WGS = 256
FIN_LDS = 61440 + 64
FDEPTH = int(os.environ.get('FDEPTH', 4))
def gen_fin():
    kernel_begin("fin_kernel")
    e("s_cmp_ge_u32 s2, %d" % G2_WGS)
    e("s_cbranch_scc1 fin_end")
    e("s_load_dwordx2 s[56:57], s[0:1], 104")
    e("s_load_dwordx2 s[58:59], s[0:1], 0")
    e("s_load_dwordx2 s[60:61], s[0:1], 88")
    e("v_lshrrev_b32 v1, 6, v0")
    e("v_and_b32 v2, 63, v0")
    e("s_nop 0")
    e("v_readfirstlane_b32 s3, v1")
    if "xcc" in SKIP:
        e("s_and_b32 s5, s2, 31")
        e("s_lshr_b32 s4, s2, 5")
    else:
        e("s_waitcnt lgkmcnt(0)")
        srd(28, 56, WS_SIZE)
        claim_tile(512, 32, 61440, "fcl")
        if FMAP == 0:
            e("s_lshr_b32 s5, s2, 5")
            e("s_lshl_b32 s5, s5, 2")
            e("s_and_b32 s6, s2, 3")
            e("s_add_u32 s5, s5, s6")
            e("s_bfe_u32 s4, s2, 0x30002")
        else:
            e("s_lshr_b32 s5, s2, 6")
            e("s_lshl_b32 s5, s5, 3")
            e("s_and_b32 s6, s2, 7")
            e("s_add_u32 s5, s5, s6")
            e("s_bfe_u32 s4, s2, 0x10005")
            e("s_lshl_b32 s4, s4, 2")
            e("s_bfe_u32 s6, s2, 0x20003")
            e("s_add_u32 s4, s4, s6")
    e("v_and_b32 v3, 15, v2")
    e("v_lshrrev_b32 v4, 4, v2")
    e("v_lshrrev_b32 v5, 1, v4")
    e("v_and_b32 v6, 1, v4")
    e("v_lshlrev_b32 v7, 4, v3")
    e("v_lshl_add_u32 v7, v5, 10, v7")
    e("v_lshl_add_u32 v7, v6, 9, v7")
    e("s_lshl_b32 s6, s3, 11")
    e("v_add_u32 v7, s6, v7")
    e("s_mul_i32 s6, s4, 5")
    for a_ in range(5):
        e(f"s_add_u32 s7, s6, {a_}")
        e(f"s_lshr_b32 s{40+a_}, s7, 1")
        e(f"s_mul_i32 s{40+a_}, s{40+a_}, {108*1024}")
        e(f"s_and_b32 s7, s7, 1")
        e(f"s_lshl_b32 s7, s7, 8")
        e(f"s_add_u32 s{40+a_}, s{40+a_}, s7")
        e(f"s_add_u32 s{40+a_}, s{40+a_}, {WS_W2F}")
    e("s_mul_i32 s6, s5, %d" % (2*108*1024))
    e("s_add_u32 s45, s6, %d" % WS_ACT)
    e("s_add_u32 s46, s45, 256")
    e("s_add_u32 s47, s45, %d" % (108*1024))
    e("s_add_u32 s48, s47, 256")
    e("s_waitcnt lgkmcnt(0)")
    srd(28, 56, WS_SIZE); srd(8, 58, L*D*2); srd(12, 60, L*D*2)
    FR = 16
    ACC = 0
    EP = FR + 36*FDEPTH
    pend = []
    def issue(m):
        base = FR + 36*(m % FDEPTH)
        for t in range(9):
            e(f"buffer_load_dwordx4 v[{base+4*t}:{base+4*t+3}], v7, s[28:31], s{40+t} offen")
            pend.append(("f", m))
        e("v_add_u32 v7, 8192, v7")
    def wait_for(tag):
        last = max(i for i, p in enumerate(pend) if p == tag)
        n = len(pend) - 1 - last
        e(f"s_waitcnt vmcnt({n})")
        del pend[:last+1]
    NST = 14
    for m in range(FDEPTH):
        issue(m)
    e("s_lshl_b32 s6, s5, 6")
    e("s_lshl_b32 s7, s3, 4")
    e("s_add_u32 s6, s6, s7")
    e("v_add_u32 v8, s6, v3")
    e("v_mul_u32_u24 v9, 1280, v8")
    e("v_lshl_add_u32 v9, v4, 3, v9")
    e("s_mul_i32 s6, s4, 160")
    e("v_add_u32 v9, s6, v9")
    for a_ in range(5):
        e(f"buffer_load_dwordx2 v[{EP+2*a_}:{EP+2*a_+1}], v9, s[8:11], 0 offen offset:{32*a_}")
        pend.append(("e", 0))
    e("v_lshlrev_b32 v10, 14, v4")
    e("v_lshl_add_u32 v10, v8, 1, v10")
    e("s_mul_i32 s6, s4, %d" % (80*4096))
    e("s_add_u32 s6, s6, %d" % WS_AT)
    for a_ in range(5):
        for j in range(4):
            e(f"buffer_load_ushort v{EP+10+4*a_+j}, v10, s[28:31], s6 offen")
            pend.append(("e", 0))
            e("s_add_u32 s6, s6, %d" % (4096 if j < 3 else 4096*13))
    for r in range(ACC, ACC+80):
        e(f"v_accvgpr_write_b32 a{r}, 0")
    for m in range(NST):
        if m == NST - 1:
            e("s_cmp_ge_u32 s3, 2")
            e("s_cbranch_scc1 fin_red")
        wait_for(("f", m))
        base = FR + 36*(m % FDEPTH)
        fill = []
        if FEP and FDEPTH + 1 <= m < FDEPTH + 4:
            for a_ in [(0, 1), (2, 3), (4,)][m - FDEPTH - 1]:
                rx = EP + 2*a_; ra = EP + 10 + 4*a_
                for k_ in range(9):
                    for p_ in range(2):
                        t0, t1 = 12 + 2*p_, 13 + 2*p_
                        r0, r1 = ra + 2*p_, ra + 2*p_ + 1
                        fill.append([f"v_lshlrev_b32 v{t0}, 16, v{rx+p_}", f"v_and_b32 v{t1}, 0xffff0000, v{rx+p_}",
                                     f"v_lshlrev_b32 v{r0}, 16, v{r0}", f"v_lshlrev_b32 v{r1}, 16, v{r1}",
                                     f"v_add_f32 v{t0}, v{t0}, v{r0}", f"v_add_f32 v{t1}, v{t1}, v{r1}",
                                     f"v_cvt_pk_bf16_f32 v{t0}, v{t0}, v{t1}",
                                     f"v_lshlrev_b32 v{r0}, 16, v{t0}", f"v_and_b32 v{r1}, 0xffff0000, v{t0}"][k_])
        for b_ in range(4):
            for a_ in range(5):
                ac = ACC + 4*(5*b_ + a_)
                e(f"v_mfma_f32_16x16x32_bf16 a[{ac}:{ac+3}], v[{base+4*a_}:{base+4*a_+3}], v[{base+20+4*b_}:{base+23+4*b_}], a[{ac}:{ac+3}]")
                for _ in range(2):
                    if fill: e(fill.pop(0))
        assert not fill
        if m + FDEPTH < NST:
            if m + FDEPTH == NST - 1:
                e("s_cmp_ge_u32 s3, 2")
                e("s_cselect_b32 s6, 8192, 0")
                e("v_subrev_u32 v7, s6, v7")
            issue(m + FDEPTH)
    lab("fin_red")
    e("s_nop 15")
    e("s_waitcnt vmcnt(0)")
    e("v_lshlrev_b32 v11, 4, v2")
    for w in range(4):
        if w < 3:
            e(f"s_cmp_lg_u32 s3, {w}")
            e(f"s_cbranch_scc1 fin_w{w+1}")
        for b_ in range(4):
            if b_ == w: continue
            slot = w if w < b_ else w - 1
            for a_ in range(5):
                ac = ACC + 4*(5*b_ + a_)
                e(f"ds_write_b128 v11, a[{ac}:{ac+3}] offset:{(b_*3 + slot)*5120 + a_*1024}")
        for r in range(20):
            e(f"v_accvgpr_read_b32 v{16+r}, a{ACC+20*w+r}")
        if w < 3:
            e("s_branch fin_rd")
            lab(f"fin_w{w+1}")
    lab("fin_rd")
    e("s_mul_i32 s6, s3, %d" % (3*5120))
    e("v_add_u32 v11, s6, v11")
    e("s_waitcnt lgkmcnt(0)")
    e("s_barrier")
    for sl in range(3):
        for a_ in range(5):
            r = 36 + 20*sl + 4*a_
            e(f"ds_read_b128 v[{r}:{r+3}], v11 offset:{sl*5120 + a_*1024}")
    for sl in range(3):
        e(f"s_waitcnt lgkmcnt({10-5*sl})")
        if FEP:
            for r in range(0, 20, 2):
                e(f"v_pk_add_f32 v[{16+r}:{17+r}], v[{16+r}:{17+r}], v[{36+20*sl+r}:{37+20*sl+r}]")
            continue
        for r in range(20):
            e(f"v_add_f32 v{16+r}, v{16+r}, v{36+20*sl+r}")
    e("s_waitcnt vmcnt(0)")
    for a_ in range(5):
        rx = EP + 2*a_
        ra = EP + 10 + 4*a_
        if FEP:
            ac = 16 + 4*a_
            for p in range(2): e(f"v_cvt_pk_bf16_f32 v{96+p}, v{ac+2*p}, v{ac+2*p+1}")
            for p in range(2):
                e(f"v_lshlrev_b32 v{98+2*p}, 16, v{96+p}")
                e(f"v_and_b32 v{99+2*p}, 0xffff0000, v{96+p}")
            for p in range(2): e(f"v_pk_add_f32 v[{98+2*p}:{99+2*p}], v[{98+2*p}:{99+2*p}], v[{ra+2*p}:{ra+2*p+1}]")
            for p in range(2): e(f"v_cvt_pk_bf16_f32 v{rx+p}, v{98+2*p}, v{99+2*p}")
        for p in range(2 if not FEP else 0):
            ac = 16 + 4*a_ + 2*p
            e(f"v_lshlrev_b32 v96, 16, v{rx+p}")
            e(f"v_and_b32 v97, 0xffff0000, v{rx+p}")
            e(f"v_lshlrev_b32 v98, 16, v{ra+2*p}")
            e(f"v_lshlrev_b32 v99, 16, v{ra+2*p+1}")
            e(f"v_add_f32 v96, v96, v98")
            e(f"v_add_f32 v97, v97, v99")
            e(f"v_cvt_pk_bf16_f32 v96, v96, v97")
            e(f"v_cvt_pk_bf16_f32 v98, v{ac}, v{ac+1}")
            e(f"v_lshlrev_b32 v100, 16, v96")
            e(f"v_and_b32 v101, 0xffff0000, v96")
            e(f"v_lshlrev_b32 v102, 16, v98")
            e(f"v_and_b32 v103, 0xffff0000, v98")
            e(f"v_add_f32 v100, v100, v102")
            e(f"v_add_f32 v101, v101, v103")
            e(f"v_cvt_pk_bf16_f32 v{rx+p}, v100, v101")
        e(f"buffer_store_dwordx2 v[{rx}:{rx+1}], v9, s[12:15], 0 offen offset:{32*a_}")
    lab("fin_end")
    e("s_endpgm")
    kernel_desc("fin_kernel", ((EP + 30) + 7)//8*8, agpr=80)

hdr = open("cdna_kernels/%s.s.ref" % NAME).read().split("; Override launch")[0]
text = hdr
text += f"; @launch kernel=prep_kernel grid=({PREP_WGS + (128 if PORD else 0)},1,1) block=(256,1,1) lds={PREP_LDS}\n"
text += f"; @launch kernel=mid_kernel grid=({MID_WGS},1,1) block=(256,1,1) lds={MID_LDS}\n"
text += f"; @launch kernel=fin_kernel grid=({G2_WGS},1,1) block=(256,1,1) lds={FIN_LDS}\n"
text += '.amdgcn_target "amdgcn-amd-amdhsa--gfx950"\n'
gen_prep(); gen_mid(); gen_fin()
_o = []; _in = False
for _l in out:
    if _l.startswith("fin_kernel:"): _in = True
    if _l.strip().startswith("buffer_store") and not _in and "nosc" not in SKIP: _l += " sc1"
    _o.append(_l)
out = _o
text += "\n".join(out) + "\n"
dst = sys.argv[1] if len(sys.argv) > 1 else "cdna_kernels/%s.s" % NAME
open(dst, "w").write(text)
print("wrote", dst, len(text))
```

```python
import sys, os
SKIP = os.environ.get("SKIP", "").split(",")
ORDER = int(os.environ.get("ORDER", 0))
PRIO = int(os.environ.get("PRIO", 3))
W2MID = int(os.environ.get("W2MID", 0))
CONV2 = int(os.environ.get("CONV2", 1))
CV3 = int(os.environ.get("CV3", 1))
FEP = int(os.environ.get("FEP", 1))
PORD = int(os.environ.get("PORD", 0))
MISH2 = int(os.environ.get("MISH2", 2))
DLYC = int(os.environ.get("DLYC", 24))
G1MAP = int(os.environ.get("G1MAP", 1))
FMAP = int(os.environ.get("FMAP", 1))
DLYL = int(os.environ.get("DLYL", 16))
DLYW = int(os.environ.get("DLYW", 24))
NAME = "parallel_sum__ssm_conv_s4d__dense_activation_mish__prompt"
L, D, N, F = 2048, 640, 128, 1728
WS_XNF = 0x0000000
WS_XNT = 0x0280000
WS_W1F = 0x0500000
WS_W2F = WS_W1F + 2160 * 1024
WS_KR = 0x0A00000
KR_STRIDE = 4224
WS_ACT = 0x0D00000
WS_AT = 0x1400000
WS_CNT = 0x1700000
WS_SIZE = 268435456
LOG2E = 0x3fb8aa3b
INV2PI = 0x3e22f983

out = []
def e(s):
    out.append("    " + s)
def lab(s):
    out.append(s + ":")
def cm(s):
    out.append("    ; " + s)

STAMP = os.environ.get("STAMP")
def stamp_init():
    if not STAMP: return
    e("s_load_dwordx2 s[84:85], s[0:1], 96")
    e("s_waitcnt lgkmcnt(0)")
    e("s_mov_b32 s80, s84"); e("s_and_b32 s81, s85, 0xffff"); e("s_mov_b32 s82, 256"); e("s_mov_b32 s83, 0x00020000")
def stamp(i):
    if not STAMP: return
    e("s_memtime s[86:87]")
    e("s_waitcnt lgkmcnt(0)")
    e(f"s_cmp_lg_u32 s2, {int(STAMP)}")
    e(f"s_cbranch_scc1 st_{stamp.n}")
    e(f"v_mov_b32 v255, s86")
    e(f"v_lshrrev_b32 v254, 6, v0")
    e(f"v_lshlrev_b32 v254, 6, v254")
    e(f"v_add_u32 v254, {4*i}, v254")
    e(f"buffer_store_dword v255, v254, s[80:83], 0 offen")
    lab(f"st_{stamp.n}")
    stamp.n += 1
stamp.n = 0


TL = os.environ.get("TL")
WS_TL = 0x1800000
def tl(i):
    if not TL: return
    e("s_memrealtime s[80:81]")
    e("s_waitcnt lgkmcnt(0)")
    e(f"s_mov_b32 s{84+i}, s80")
def tl_begin():
    if not TL: return
    e("s_mov_b32 s83, s2")
    for i in range(8): e(f"s_mov_b32 s{84+i}, 0")
    tl(0)
def tl_end(kern):
    if not TL: return
    tl(7)
    e("s_getreg_b32 s90, hwreg(HW_REG_HW_ID)")
    e("s_getreg_b32 s80, hwreg(HW_REG_XCC_ID)")
    e("s_and_b32 s90, s90, 0xffff")
    e("s_lshl_b32 s80, s80, 16")
    e("s_or_b32 s90, s90, s80")
    e("s_or_b32 s90, s90, 0x40000000")
    e("s_cmp_lg_u32 s3, 0")
    e(f"s_cbranch_scc1 tle_{tl_end.n}")
    e("s_lshl_b32 s83, s83, 5")
    e(f"s_add_u32 s83, s83, {WS_TL + kern*65536}")
    e("v_mov_b32 v1, 0")
    for i in range(8):
        e(f"v_mov_b32 v0, s{84+i}")
        e(f"buffer_store_dword v0, v1, s[28:31], s83 offen offset:{4*i}")
    lab(f"tle_{tl_end.n}")
    tl_end.n += 1
tl_end.n = 0

def srd(dst, ptr, size):
    e(f"s_mov_b32 s{dst}, s{ptr}")
    e(f"s_and_b32 s{dst+1}, s{ptr+1}, 0xffff")
    e(f"s_mov_b32 s{dst+2}, {size}")
    e(f"s_mov_b32 s{dst+3}, 0x00020000")

def kernel_begin(name):
    out.append(".text")
    out.append(f".globl {name}")
    out.append(".p2align 8")
    out.append(f".type {name},@function")
    lab(name)

def kernel_desc(name, vgpr, sgpr=96, agpr=0):
    if STAMP: vgpr = 256
    out.append('.section .rodata,"a"')
    out.append(".p2align 6")
    out.append(f".amdhsa_kernel {name}")
    out.append(f"  .amdhsa_next_free_vgpr {vgpr + agpr}")
    out.append(f"  .amdhsa_next_free_sgpr {sgpr}")
    out.append(f"  .amdhsa_accum_offset {(vgpr+3)//4*4}")
    out.append("  .amdhsa_group_segment_fixed_size 0")
    out.append("  .amdhsa_kernarg_size 112")
    out.append("  .amdhsa_user_sgpr_count 2")
    out.append("  .amdhsa_user_sgpr_kernarg_segment_ptr 1")
    out.append("  .amdhsa_system_sgpr_workgroup_id_x 1")
    out.append(".end_amdhsa_kernel")


def claim_tile(cnt_off, per, lds_off, lbl):
    e("s_cmp_lg_u32 s3, 0")
    e(f"s_cbranch_scc1 {lbl}_w")
    e("s_getreg_b32 s20, hwreg(HW_REG_XCC_ID)")
    e("s_and_b32 s20, s20, 7")
    e("s_mov_b32 s21, 0")
    e("s_mov_b64 s[22:23], exec")
    e("s_mov_b64 exec, 1")
    e("v_mov_b32 v12, 1")
    lab(f"{lbl}_l")
    e("s_lshl_b32 s24, s20, 6")
    e(f"s_add_u32 s24, s24, {WS_CNT + cnt_off}")
    e("v_mov_b32 v13, 0")
    e("v_mov_b32 v14, v12")
    e("buffer_atomic_add v14, v13, s[28:31], s24 offen sc0" + ("" if "asc" in SKIP else " sc1"))
    e("s_waitcnt vmcnt(0)")
    e("v_readfirstlane_b32 s25, v14")
    e(f"s_cmp_lt_u32 s25, {per}")
    e(f"s_cbranch_scc1 {lbl}_f")
    e("s_add_u32 s20, s20, 1")
    e("s_and_b32 s20, s20, 7")
    e("s_add_u32 s21, s21, 1")
    e("s_cmp_lt_u32 s21, 8")
    e(f"s_cbranch_scc1 {lbl}_l")
    e("s_mov_b32 s25, 0")
    lab(f"{lbl}_f")
    e(f"s_mul_i32 s20, s20, {per}")
    e("s_add_u32 s20, s20, s25")
    e("v_mov_b32 v14, s20")
    e(f"v_mov_b32 v13, {lds_off}")
    e("ds_write_b32 v13, v14")
    e("s_mov_b64 exec, s[22:23]")
    e("s_waitcnt lgkmcnt(0)")
    lab(f"{lbl}_w")
    e("s_barrier")
    e(f"v_mov_b32 v13, {lds_off}")
    e("ds_read_b32 v14, v13")
    e("s_waitcnt lgkmcnt(0)")
    e("v_readfirstlane_b32 s2, v14")

LN_WGS, WT_WGS, KG_WGS = 128, (68 if W2MID else 135), 640
PREP_WGS = KG_WGS + LN_WGS + WT_WGS
KG_LDS_WAVE = 512
KG_TAB0 = 2048
KG_TAB = 2688
KG_FIN = KG_TAB0 + 4*KG_TAB
PREP_LDS = 36864
LNS = 36

def gen_wt(wg0, wv0, wvend, endlab, kern, dly):
    if "wt" in SKIP: e("s_endpgm")
    if PRIO & 2: e("s_setprio 3")
    e("s_load_dwordx2 s[40:41], s[0:1], 64")
    e("s_load_dwordx2 s[42:43], s[0:1], 80")
    e("s_sub_u32 s4, s2, %d" % wg0)
    e("s_lshl_b32 s4, s4, 2")
    e("s_add_u32 s4, s4, s3")
    if wv0: e("s_add_u32 s4, s4, %d" % wv0)
    if wvend:
        e("s_cmp_ge_u32 s4, %d" % wvend)
        e("s_cbranch_scc1 %s" % endlab)
    e("s_waitcnt lgkmcnt(0)")
    e("s_cmp_ge_u32 s4, 270")
    e("s_cselect_b32 s40, s42, s40")
    e("s_cselect_b32 s41, s43, s41")
    e("s_mov_b32 s5, 3456")
    e("s_mov_b32 s7, 159072863")
    e("s_mov_b32 s34, %d" % WS_W1F)
    e("s_cselect_b32 s5, 1280, s5")
    e("s_cselect_b32 s6, 10, 27")
    e("s_cselect_b32 s7, 429496730, s7")
    e("s_cselect_b32 s32, 270, 0")
    e("s_cselect_b32 s33, 108, 40")
    e("s_cselect_b32 s34, %d, s34" % WS_W2F)
    srd(8, 40, D*F*2); srd(28, 56, WS_SIZE)
    e("s_sub_u32 s32, s4, s32")
    e("s_lshl_b32 s32, s32, 2")
    e("v_lshrrev_b32 v3, 3, v2")
    e("v_and_b32 v4, 7, v2")
    e("v_mul_lo_u32 v5, v3, s5")
    e("v_lshl_add_u32 v5, v4, 4, v5")
    e("s_lshl_b32 s35, s5, 3")
    e("s_mul_i32 s36, s3, %d" % (4*16*144))
    e("v_mul_u32_u24 v6, 144, v3")
    e("v_lshl_add_u32 v6, v4, 4, v6")
    e("v_add_u32 v6, s36, v6")
    e("v_and_b32 v7, 31, v2")
    e("v_lshrrev_b32 v8, 5, v2")
    e("v_mul_u32_u24 v8, %d, v8" % (8*144))
    e("v_lshl_add_u32 v8, v7, 1, v8")
    e("v_add_u32 v8, s36, v8")
    e("v_lshlrev_b32 v9, 4, v2")
    if dly: e(f"s_sleep {dly}")
    for q in range(4):
        e(f"s_add_u32 s37, s32, {q}")
        e("s_mul_hi_u32 s38, s37, s7")
        e("s_mul_i32 s39, s38, s6")
        e("s_sub_u32 s39, s37, s39")
        e(f"s_lshl_b32 s44, s38, 4")
        e(f"s_mul_i32 s44, s44, s5")
        e(f"s_lshl_b32 s45, s39, 7")
        e(f"s_add_u32 s44, s44, s45")
        e(f"buffer_load_dwordx4 v[{16+8*q}:{19+8*q}], v5, s[8:11], s44 offen")
        e(f"s_add_u32 s44, s44, s35")
        e(f"buffer_load_dwordx4 v[{20+8*q}:{23+8*q}], v5, s[8:11], s44 offen")
        e(f"s_lshl_b32 s45, s39, 1")
        e(f"s_mul_i32 s45, s45, s33")
        e(f"s_add_u32 s45, s45, s38")
        e(f"s_lshl_b32 s45, s45, 10")
        e(f"s_add_u32 s{48+q}, s45, s34")
    e("s_lshl_b32 s33, s33, 10")
    for q in range(4):
        e(f"s_waitcnt vmcnt({6-2*q})")
        e(f"ds_write_b128 v6, v[{16+8*q}:{19+8*q}] offset:{q*16*144}")
        e(f"ds_write_b128 v6, v[{20+8*q}:{23+8*q}] offset:{q*16*144 + 8*144}")
    tl(1)
    for q in range(4):
        e("s_waitcnt lgkmcnt(0)") if q == 0 else None
        for f in range(2):
            for el in range(8):
                e(f"ds_read_u16 v{48+16*(q&1)*2+16*f+el}, v8 offset:{q*16*144 + el*144 + 64*f}")
        if q > 0:
            pass
        e("s_waitcnt lgkmcnt(0)")
        for f in range(2):
            for j in range(4):
                r = 48 + 16*(q&1)*2 + 16*f
                e(f"v_lshl_or_b32 v{112+4*f+j}, v{r+2*j+1}, 16, v{r+2*j}")
            if f == 0:
                e(f"buffer_store_dwordx4 v[112:115], v9, s[28:31], s{48+q} offen")
            else:
                e(f"s_add_u32 s{48+q}, s{48+q}, s33")
                e(f"buffer_store_dwordx4 v[116:119], v9, s[28:31], s{48+q} offen")
        if q < 3:
            e("s_nop 1")
    tl(5)
    if TL: e("s_waitcnt vmcnt(0)")
    tl_end(kern)

def gen_prep():
    kernel_begin("prep_kernel")
    if PORD:
        e("s_lshr_b32 s4, s2, 7")
        e("s_cmp_eq_u32 s4, 6")
        e("s_cbranch_scc1 prep_end")
        e("s_cmp_gt_u32 s4, 6")
        e("s_cselect_b32 s4, 128, 0")
        e("s_sub_u32 s2, s2, s4")
    e("s_cmp_ge_u32 s2, %d" % PREP_WGS)
    e("s_cbranch_scc1 prep_end")
    e("s_load_dwordx2 s[56:57], s[0:1], 104")
    e("v_lshrrev_b32 v1, 6, v0")
    e("v_and_b32 v2, 63, v0")
    e("s_nop 0")
    e("v_readfirstlane_b32 s3, v1")
    if ORDER:
        e("s_add_u32 s2, s2, %d" % KG_WGS)
        e("s_cmp_ge_u32 s2, %d" % PREP_WGS)
        e("s_cselect_b32 s4, %d, 0" % PREP_WGS)
        e("s_sub_u32 s2, s2, s4")
    tl_begin()
    e("s_cmp_ge_u32 s2, %d" % (KG_WGS + LN_WGS))
    e("s_cbranch_scc1 prep_wt")
    e("s_cmp_ge_u32 s2, %d" % KG_WGS)
    e("s_cbranch_scc1 prep_ln")
    if "kg" in SKIP: e("s_endpgm")
    e("s_load_dwordx4 s[40:43], s[0:1], 8")
    e("s_load_dwordx4 s[44:47], s[0:1], 24")
    e("s_load_dwordx2 s[48:49], s[0:1], 40")
    e("s_mov_b32 s4, s2")
    e("s_mul_i32 s5, s3, %d" % KG_LDS_WAVE)
    e("s_lshl_b32 s6, s4, 8")
    e("s_lshl_b32 s7, s3, 6")
    e("s_add_u32 s6, s6, s7")
    e("v_and_b32 v3, 31, v2")
    e("v_lshl_add_u32 v3, v3, 1, s6")
    e("s_lshl_b32 s7, s4, 1")
    e("v_mov_b32 v4, s7")
    e("s_waitcnt lgkmcnt(0)")
    srd(8, 40, D*N*2); srd(12, 42, D*N*2); srd(16, 44, D*N*2); srd(20, 46, D*N*2)
    srd(24, 48, D*2); srd(28, 56, WS_SIZE)
    for k, sr in enumerate((8, 12, 16, 20)):
        e(f"buffer_load_ushort v{10+k}, v3, s[{sr}:{sr+3}], 0 offen")
    e("buffer_load_ushort v18, v4, s[24:27], 0 offen")
    e("v_and_b32 v8, 15, v2")
    e("v_lshrrev_b32 v9, 4, v2")
    e("v_and_b32 v24, 7, v8")
    e("v_lshrrev_b32 v25, 3, v8")
    e("v_lshl_add_u32 v28, v25, 7, v24")
    e("v_and_b32 v24, 3, v8")
    e("v_lshlrev_b32 v24, 1, v24")
    e("v_bfe_u32 v25, v8, 2, 1")
    e("v_lshl_add_u32 v24, v25, 7, v24")
    e("v_add_u32 v24, 256, v24")
    e("v_and_b32 v25, 1, v8")
    e("v_lshlrev_b32 v25, 2, v25")
    e("v_bfe_u32 v26, v8, 1, 2")
    e("v_lshl_add_u32 v25, v26, 7, v25")
    e("v_add_u32 v25, 512, v25")
    e("v_cmp_gt_u32 vcc, 8, v8")
    e("s_nop 1")
    e("v_cndmask_b32 v29, v25, v24, vcc")
    e("v_lshlrev_b32 v30, 7, v8")
    e("v_add_u32 v30, 0x400, v30")
    e("v_lshlrev_b32 v31, 3, v8")
    for t in range(4):
        e(f"v_cvt_f32_u32 v{28+t}, v{28+t}")
    e("s_mul_i32 s6, s3, %d" % KG_TAB)
    e("s_add_u32 s6, s6, %d" % KG_TAB0)
    e("v_and_b32 v24, 1, v9")
    e("v_lshrrev_b32 v25, 1, v9")
    e("v_lshl_add_u32 v33, v8, 5, s6")
    e("v_lshl_add_u32 v33, v24, 4, v33")
    e("v_lshl_add_u32 v33, v25, 9, v33")
    e("v_lshlrev_b32 v24, 4, v8")
    e("v_lshlrev_b32 v25, 3, v8")
    e("v_cmp_gt_u32 vcc, 2, v9")
    e("s_nop 1")
    e("v_cndmask_b32 v24, v25, v24, vcc")
    e("v_lshl_add_u32 v24, v9, 8, v24")
    e("v_add_u32 v24, s6, v24")
    e("v_add_u32 v34, 1024, v24")
    e("v_mov_b32 v25, 128")
    e("v_cndmask_b32_e64 v24, v25, 8, vcc")
    e("v_add_u32 v36, v34, v24")
    e("v_lshl_add_u32 v38, v8, 2, s6")
    e("v_lshl_add_u32 v38, v9, 8, v38")
    e("v_add_u32 v38, 2048, v38")
    e("v_lshl_add_u32 v39, v9, 4, s5")
    for r in range(40, 52):
        e(f"v_mov_b32 v{r}, 0")
    e("s_waitcnt vmcnt(0)")
    tl(1)
    for r in (10, 11, 12, 13, 18):
        e(f"v_lshlrev_b32 v{r}, 16, v{r}")
    e(f"v_mul_f32 v18, {LOG2E:#x}, v18")
    e(f"v_mul_f32 v10, {LOG2E:#x}, v10")
    e("v_exp_f32 v18, v18")
    e("v_exp_f32 v10, v10")
    e("s_nop 0")
    e("v_cvt_pk_bf16_f32 v18, v18, v18")
    e("v_cvt_pk_bf16_f32 v10, v10, v10")
    e("v_lshlrev_b32 v18, 16, v18")
    e("v_lshlrev_b32 v10, 16, v10")
    e("v_add_f32 v19, v18, v18")
    e("v_and_b32 v5, 31, v2")
    e("v_lshl_add_u32 v5, v5, 4, s5")
    e("v_mul_f32 v20, v10, v18")
    e(f"v_mul_f32 v20, {LOG2E|0x80000000:#x}, v20")
    e("v_mul_f32 v21, v11, v18")
    e(f"v_mul_f32 v21, {INV2PI:#x}, v21")
    e("v_mul_f32 v22, v12, v19")
    e("v_mul_f32 v23, v13, v19")
    e("ds_write_b128 v5, v[20:23]")
    e("s_waitcnt lgkmcnt(0)")
    for st in range(8):
        e(f"ds_read_b128 v[{96+4*st}:{99+4*st}], v39 offset:{64*st}")
    e("s_waitcnt lgkmcnt(0)")
    def kg_valu(st):
        P = 96 + 4*st
        O = 72 + 10*(st & 1)
        v = []
        for t in range(4):
            v.append(f"v_mul_f32 v{52+t}, v{P}, v{28+t}")
            v.append(f"v_mul_f32 v{56+t}, v{P+1}, v{28+t}")
        for t in range(4):
            v.append(f"v_exp_f32 v{52+t}, v{52+t}")
            v.append(f"v_fract_f32 v{56+t}, v{56+t}")
        for t in range(4):
            v.append(f"v_cos_f32 v{60+t}, v{56+t}")
            v.append(f"v_sin_f32 v{64+t}, v{56+t}")
        for t in range(4):
            v.append(f"v_mul_f32 v{60+t}, v{52+t}, v{60+t}")
            v.append(f"v_mul_f32 v{64+t}, v{52+t}, v{64+t}")
        v.append(f"v_mul_f32 v55, v63, v{P+2}")
        v.append(f"v_mul_f32_e64 v59, -v63, v{P+3}")
        v.append(f"v_fma_f32 v55, -v67, v{P+3}, v55")
        v.append(f"v_fma_f32 v59, -v67, v{P+2}, v59")
        def split(xr, xi, H, Lo, t0, t1):
            v.append(f"v_cvt_pk_bf16_f32 v{H}, v{xr}, v{xi}")
            v.append(f"v_lshlrev_b32 v{t0}, 16, v{H}")
            v.append(f"v_and_b32 v{t1}, 0xffff0000, v{H}")
            v.append(f"v_sub_f32 v{t0}, v{xr}, v{t0}")
            v.append(f"v_sub_f32 v{t1}, v{xi}, v{t1}")
            v.append(f"v_cvt_pk_bf16_f32 v{Lo}, v{t0}, v{t1}")
        split(55, 59, O, O+2, 68, 69)
        v.append(f"v_mov_b32 v{O+1}, v{O}")
        v.append(f"v_mov_b32 v{O+3}, v{O+2}")
        for t in range(3):
            split(60+t, 64+t, O+4+2*t, O+5+2*t, 52+t, 56+t)
        return v
    def kg_mfma(st):
        O = 72 + 10*(st & 1)
        m = []
        for h in range(2):
            for t in range(3):
                a = 40 + 4*t
                m.append(f"v_mfma_f32_16x16x16_bf16 v[{a}:{a+3}], v[{O+4+2*t}:{O+5+2*t}], v[{O+2*h}:{O+2*h+1}], v[{a}:{a+3}]")
        return m
    for st in range(9):
        v = kg_valu(st) if st < 8 else []
        m = kg_mfma(st-1) if st > 0 else []
        if "kgm" in SKIP: m = []
        if "kgv" in SKIP: v = []
        if not v:
            e("s_nop 1")
        vi = 0
        for mi, mm_ in enumerate(m):
            tgt = 2 + 7*mi
            while vi < min(tgt, len(v)):
                e(v[vi]); vi += 1
            e(mm_)
        while vi < len(v):
            e(v[vi]); vi += 1
    e("s_nop 15")
    tl(2)
    for r in range(4):
        e(f"ds_write_b32 v33, v{40+r} offset:{4*r}")
    e("ds_write_b32 v34, v44")
    e("ds_write_b32 v34, v45 offset:4")
    e("ds_write_b32 v36, v46")
    e("ds_write_b32 v36, v47 offset:4")
    e("s_mov_b32 exec_hi, 0xffff")
    e("ds_write_b32 v38, v48")
    e("s_mov_b32 exec_hi, 0")
    for r in range(1, 4):
        e(f"ds_write_b32 v38, v{48+r} offset:{64*r}")
    e("s_mov_b32 exec_hi, -1")
    e("s_mul_i32 s4, s4, %d" % KR_STRIDE)
    e("s_add_u32 s4, s4, %d" % WS_KR)
    e("v_lshlrev_b32 v39, 4, v0")
    e("v_lshlrev_b32 v64, 3, v0")
    e("v_sub_u32 v64, 2047, v64")
    e("v_lshlrev_b32 v65, 2, v0")
    e("v_lshlrev_b32 v66, 1, v0")
    for k in range(8):
        e(f"v_subrev_u32 v{52+k}, {k}, v64")
        e(f"v_cvt_f32_u32 v{72+k}, v{52+k}")
    for k in range(4):
        e(f"v_cvt_pk_bf16_f32 v{80+k}, v{72+2*k}, v{73+2*k}")
        e(f"v_and_b32 v{72+2*k}, 0xffff, v{80+k}")
        e(f"v_lshrrev_b32 v{73+2*k}, 16, v{80+k}")
    for k in range(8):
        e(f"v_subrev_u32 v{72+k}, 17024, v{72+k}")
        e(f"v_cmp_gt_u32 vcc, 256, v{52+k}")
        e("s_nop 1")
        e(f"v_cndmask_b32 v{52+k}, v{72+k}, v{52+k}, vcc")
        e(f"v_lshlrev_b32 v{52+k}, 1, v{52+k}")
    e("s_waitcnt lgkmcnt(0)")
    e("s_barrier")
    tl(3)
    for m in range(3):
        for ww in range(4):
            e(f"ds_read_b32 v{72+4*m+ww}, v65 offset:{KG_TAB0 + ww*KG_TAB + 1024*m}")
    for m in range(3):
        e(f"s_waitcnt lgkmcnt({8-4*m})")
        e(f"v_add_f32 v{72+4*m}, v{72+4*m}, v{73+4*m}")
        e(f"v_add_f32 v{74+4*m}, v{74+4*m}, v{75+4*m}")
        e(f"v_add_f32 v{72+4*m}, v{72+4*m}, v{74+4*m}")
        e(f"v_cvt_pk_bf16_f32 v{72+4*m}, v{72+4*m}, v{72+4*m}")
        e(f"ds_write_b16 v66, v{72+4*m} offset:{KG_FIN + 512*m}")
    e("s_waitcnt lgkmcnt(0)")
    e("s_barrier")
    tl(4)
    for k in range(8):
        e(f"ds_read_u16 v{96+k}, v{52+k} offset:{KG_FIN}")
    e("s_waitcnt lgkmcnt(0)")
    for k in range(4):
        e(f"v_lshl_or_b32 v{112+k}, v{97+2*k}, 16, v{96+2*k}")
    e(f"buffer_store_dwordx4 v[112:115], v39, s[28:31], s4 offen")
    for k in range(4):
        e(f"v_mov_b32 v{116+k}, 0")
    e("v_cmp_gt_u32 vcc, 8, v0")
    e("s_and_saveexec_b64 s[32:33], vcc")
    e("s_cbranch_execz prep_end")
    e("s_add_u32 s4, s4, 4096")
    e("buffer_store_dwordx4 v[116:119], v39, s[28:31], s4 offen")
    e("v_lshlrev_b32 v39, 6, v0")
    tl(5)
    if TL: e("s_waitcnt vmcnt(0)")
    tl_end(0)
    e("s_cmp_lg_u32 s2, 0")
    e("s_cbranch_scc1 prep_end")
    e("s_mov_b32 s4, %d" % WS_CNT)
    e("buffer_store_dword v116, v39, s[28:31], s4 offen")
    e("buffer_store_dword v116, v39, s[28:31], s4 offen offset:512")
    e("s_endpgm")
    lab("prep_ln")
    if "ln" in SKIP: e("s_endpgm")
    if PRIO & 1: e("s_setprio 3")
    e("s_load_dwordx2 s[40:41], s[0:1], 0")
    e("s_sub_u32 s2, s2, %d" % KG_WGS)
    e("v_and_b32 v3, 15, v0")
    e("v_lshrrev_b32 v4, 4, v0")
    e("s_lshl_b32 s5, s2, 4")
    e("v_add_u32 v5, s5, v4")
    e("v_mul_u32_u24 v6, 1280, v5")
    e("v_lshl_add_u32 v6, v3, 4, v6")
    e("s_waitcnt lgkmcnt(0)")
    srd(8, 40, L*D*2); srd(28, 56, WS_SIZE)
    if DLYL: e(f"s_sleep {DLYL}")
    for j in range(5):
        e(f"buffer_load_dwordx4 v[{16+4*j}:{19+4*j}], v6, s[8:11], 0 offen offset:{256*j}")
    e("s_lshr_b32 s6, s2, 1")
    e("s_mul_i32 s6, s6, %d" % (40*1024))
    e("s_add_u32 s6, s6, %d" % WS_XNF)
    e("v_lshrrev_b32 v7, 1, v3")
    e("v_lshlrev_b32 v7, 10, v7")
    e("v_and_b32 v8, 1, v3")
    e("v_lshl_add_u32 v7, v8, 9, v7")
    e("v_and_b32 v8, 31, v5")
    e("v_lshl_add_u32 v7, v8, 4, v7")
    e(f"v_mul_u32_u24 v9, {8*LNS}, v3")
    e("v_lshl_add_u32 v9, v4, 1, v9")
    e("s_waitcnt vmcnt(0)")
    tl(1)
    for k in range(20):
        e(f"v_lshlrev_b32 v{40+2*k}, 16, v{16+k}")
        e(f"v_and_b32 v{41+2*k}, 0xffff0000, v{16+k}")
    def lane_sum(srcs, acc):
        for a in range(4):
            e(f"v_add_f32 v{acc+a}, v{srcs[a]}, v{srcs[a+4]}")
        for k in range(8, len(srcs)):
            e(f"v_add_f32 v{acc+(k%4)}, v{acc+(k%4)}, v{srcs[k]}")
        e(f"v_add_f32 v{acc}, v{acc}, v{acc+1}")
        e(f"v_add_f32 v{acc+2}, v{acc+2}, v{acc+3}")
        e(f"v_add_f32 v{acc}, v{acc}, v{acc+2}")
        for sh in (8, 4, 2, 1):
            e("s_nop 1")
            e(f"v_add_f32_dpp v{acc}, v{acc}, v{acc} row_ror:{sh} row_mask:0xf bank_mask:0xf")
    lane_sum(list(range(40, 80)), 10)
    e("v_mul_f32 v14, 0x3acccccd, v10")
    for k in range(40):
        e(f"v_sub_f32 v{80+k}, v{40+k}, v14")
        e(f"v_mul_f32 v{80+k}, v{80+k}, v{80+k}")
    lane_sum(list(range(80, 120)), 10)
    e("v_mul_f32 v10, 0x3acccccd, v10")
    e("v_cvt_pk_bf16_f32 v10, v10, v14")
    e("v_and_b32 v14, 0xffff0000, v10")
    e("v_lshlrev_b32 v10, 16, v10")
    e("v_add_f32 v10, 0x3727c5ac, v10")
    e("v_cvt_pk_bf16_f32 v10, v10, v10")
    e("v_lshlrev_b32 v10, 16, v10")
    e("v_sqrt_f32 v10, v10")
    e("s_nop 0")
    e("v_cvt_pk_bf16_f32 v10, v10, v10")
    e("v_lshlrev_b32 v10, 16, v10")
    e("v_rcp_f32 v11, v10")
    e("s_nop 0")
    e("v_fma_f32 v12, -v10, v11, 2.0")
    e("v_mul_f32 v11, v11, v12")
    for k in range(20):
        e(f"v_sub_f32 v{40+2*k}, v{40+2*k}, v14")
        e(f"v_sub_f32 v{41+2*k}, v{41+2*k}, v14")
        e(f"v_cvt_pk_bf16_f32 v{16+k}, v{40+2*k}, v{41+2*k}")
        e(f"v_lshlrev_b32 v{40+2*k}, 16, v{16+k}")
        e(f"v_and_b32 v{41+2*k}, 0xffff0000, v{16+k}")
        e(f"v_mul_f32 v{40+2*k}, v{40+2*k}, v11")
        e(f"v_mul_f32 v{41+2*k}, v{41+2*k}, v11")
        e(f"v_cvt_pk_bf16_f32 v{16+k}, v{40+2*k}, v{41+2*k}")
    tl(2)
    for j in range(5):
        if "xnf" not in SKIP: e(f"buffer_store_dwordx4 v[{16+4*j}:{19+4*j}], v7, s[28:31], s6 offen")
        if j < 4: e("s_add_u32 s6, s6, 8192")
    for j in range(5):
        for el in range(8):
            r = 16 + 4*j + el//2
            op = "ds_write_b16_d16_hi" if el & 1 else "ds_write_b16"
            e(f"{op} v9, v{r} offset:{(128*j + el)*LNS}")
    e("v_lshrrev_b32 v10, 1, v0")
    e("v_and_b32 v11, 1, v0")
    e(f"v_mul_u32_u24 v12, {LNS}, v10")
    e("v_lshl_add_u32 v12, v11, 4, v12")
    e("v_lshlrev_b32 v13, 4, v0")
    e("s_mul_i32 s6, s2, 20480")
    e("s_add_u32 s6, s6, %d" % WS_XNT)
    e("s_waitcnt lgkmcnt(0)")
    e("s_barrier")
    tl(3)
    for j in range(5):
        e(f"ds_read2_b32 v[{40+4*j}:{41+4*j}], v12 offset0:{(128*j*LNS)//4 % 256} offset1:{(128*j*LNS)//4 % 256 + 1}")
        e(f"ds_read2_b32 v[{42+4*j}:{43+4*j}], v12 offset0:{(128*j*LNS)//4 % 256 + 2} offset1:{(128*j*LNS)//4 % 256 + 3}")
        if j < 4:
            nxt = (128*(j+1)*LNS)//4 // 256 - (128*j*LNS)//4 // 256
            e(f"v_add_u32 v12, {nxt*1024}, v12")
    for j in range(5):
        e(f"s_waitcnt lgkmcnt({2*(4-j)})")
        if "xnt" not in SKIP: e(f"buffer_store_dwordx4 v[{40+4*j}:{43+4*j}], v13, s[28:31], s6 offen")
        if j < 4: e("s_add_u32 s6, s6, %d" % (128*32))
    tl(5)
    if TL: e("s_waitcnt vmcnt(0)")
    tl_end(0)
    e("s_endpgm")
    lab("prep_wt")
    gen_wt(KG_WGS + LN_WGS, 0, 270 if W2MID else 0, "prep_end", 0, DLYW)
    lab("prep_end")
    e("s_endpgm")
    kernel_desc("prep_kernel", 128)

G1_WGS = 256
CV_WGS = 640
W2_WGS = 68 if W2MID else 0
MID_WGS = G1_WGS + CV_WGS + W2_WGS
CS = 4160
def CB(c): return c*CS + (32 if c >= 4 else 0)
UB = CB(7) + CS - 80
G1_NS, G1_BD = int(os.environ.get('G1NS', 5)), int(os.environ.get('G1BD', 3))
MID_LDS = 40960

def mish_pairs(acc0, acc1, b0, b1r, dst, t):
    e(f"v_cvt_pk_bf16_f32 v{t}, v{acc0}, v{acc1}")
    e(f"v_lshlrev_b32 v{t+1}, 16, v{t}")
    e(f"v_and_b32 v{t+2}, 0xffff0000, v{t}")
    e(f"v_add_f32 v{t+1}, v{t+1}, v{b0}")
    e(f"v_add_f32 v{t+2}, v{t+2}, v{b1r}")
    e(f"v_cvt_pk_bf16_f32 v{t}, v{t+1}, v{t+2}")
    e(f"v_lshlrev_b32 v{t+1}, 16, v{t}")
    e(f"v_and_b32 v{t+2}, 0xffff0000, v{t}")
    if MISH2:
        e(f"v_mul_f32 v{t+3}, {LOG2E:#x}, v{t+1}")
        e(f"v_mul_f32 v{t+4}, {LOG2E:#x}, v{t+2}")
        e(f"v_exp_f32 v{t+3}, v{t+3}")
        e(f"v_exp_f32 v{t+4}, v{t+4}")
        e(f"s_nop 0")
        e(f"v_add_f32 v{t+3}, 1.0, v{t+3}")
        e(f"v_add_f32 v{t+4}, 1.0, v{t+4}")
        e(f"v_fmaak_f32 v{t+3}, v{t+3}, v{t+3}, 0x3f800000")
        e(f"v_fmaak_f32 v{t+4}, v{t+4}, v{t+4}, 0x3f800000")
        e(f"v_rcp_f32 v{t+3}, v{t+3}")
        e(f"v_rcp_f32 v{t+4}, v{t+4}")
        e(f"s_nop 0")
        e(f"v_fmaak_f32 v{t+3}, -2.0, v{t+3}, 0x3f800000")
        e(f"v_fmaak_f32 v{t+4}, -2.0, v{t+4}, 0x3f800000")
        e(f"v_mul_f32 v{t+1}, v{t+1}, v{t+3}")
        e(f"v_mul_f32 v{t+2}, v{t+2}, v{t+4}")
    else:
        e(f"v_min_f32 v{t+3}, 0x41a00000, v{t+1}")
        e(f"v_min_f32 v{t+4}, 0x41a00000, v{t+2}")
        e(f"v_mul_f32 v{t+3}, {LOG2E:#x}, v{t+3}")
        e(f"v_mul_f32 v{t+4}, {LOG2E:#x}, v{t+4}")
        e(f"v_exp_f32 v{t+3}, v{t+3}")
        e(f"v_exp_f32 v{t+4}, v{t+4}")
        e(f"s_nop 0")
        e(f"v_add_f32 v{t}, 2.0, v{t+3}")
        e(f"v_add_f32 v{t+5}, 2.0, v{t+4}")
        e(f"v_mul_f32 v{t+3}, v{t+3}, v{t}")
        e(f"v_mul_f32 v{t+4}, v{t+4}, v{t+5}")
        e(f"v_add_f32 v{t}, 2.0, v{t+3}")
        e(f"v_add_f32 v{t+5}, 2.0, v{t+4}")
        e(f"v_rcp_f32 v{t}, v{t}")
        e(f"v_rcp_f32 v{t+5}, v{t+5}")
        e(f"v_mul_f32 v{t+1}, v{t+1}, v{t+3}")
        e(f"v_mul_f32 v{t+2}, v{t+2}, v{t+4}")
        e(f"v_mul_f32 v{t+1}, v{t+1}, v{t}")
        e(f"v_mul_f32 v{t+2}, v{t+2}, v{t+5}")
    e(f"v_cvt_pk_bf16_f32 v{dst}, v{t+1}, v{t+2}")

def mish_quad(ac, T, dst):
    H = [T+4, T+8]; E = [T+6, T+10]; P = [T+12, T+13]
    pr = lambda r: f"v[{r}:{r+1}]"
    for q in range(2): e(f"v_cvt_pk_bf16_f32 v{P[q]}, v{ac+2*q}, v{ac+2*q+1}")
    for q in range(2):
        e(f"v_lshlrev_b32 v{H[q]}, 16, v{P[q]}")
        e(f"v_and_b32 v{H[q]+1}, 0xffff0000, v{P[q]}")
    for q in range(2): e(f"v_pk_add_f32 {pr(H[q])}, {pr(H[q])}, {pr(T+2*q)}")
    for q in range(2): e(f"v_cvt_pk_bf16_f32 v{P[q]}, v{H[q]}, v{H[q]+1}")
    for q in range(2):
        e(f"v_lshlrev_b32 v{H[q]}, 16, v{P[q]}")
        e(f"v_and_b32 v{H[q]+1}, 0xffff0000, v{P[q]}")
    for q in range(2): e(f"v_pk_mul_f32 {pr(E[q])}, {pr(H[q])}, s[46:47]")
    for q in range(2):
        e(f"v_exp_f32 v{E[q]}, v{E[q]}")
        e(f"v_exp_f32 v{E[q]+1}, v{E[q]+1}")
    for q in range(2): e(f"v_pk_add_f32 {pr(E[q])}, {pr(E[q])}, v[40:41]")
    for q in range(2): e(f"v_pk_fma_f32 {pr(E[q])}, {pr(E[q])}, {pr(E[q])}, v[40:41]")
    for q in range(2):
        e(f"v_rcp_f32 v{E[q]}, v{E[q]}")
        e(f"v_rcp_f32 v{E[q]+1}, v{E[q]+1}")
    for q in range(2): e(f"v_pk_fma_f32 {pr(E[q])}, {pr(E[q])}, v[42:43], v[40:41]")
    for q in range(2): e(f"v_pk_mul_f32 {pr(H[q])}, {pr(H[q])}, {pr(E[q])}")
    for q in range(2): e(f"v_cvt_pk_bf16_f32 v{dst+q}, v{H[q]}, v{H[q]+1}")

def gemm_loop(nA, nsteps, KS, NS, frag_reg, acc_reg, voff, srdws, sA0, sB0, stride, spiece, vlds_r_b, vlds_r_lane):
    nR = nA + 4
    npieces = nR * KS
    npw = (npieces + 3) // 4
    SZ = npieces * 1024
    nchunks = nsteps // KS
    assert nsteps % KS == 0
    e(f"s_sub_u32 s{sB0}, s{sB0}, {nA*stride}")
    for i in range(npw):
        g, l = spiece + 2*i, spiece + 2*i + 1
        e(f"s_add_u32 s{l}, s3, {4*i}")
        e(f"s_min_u32 s{l}, s{l}, {npieces-1}")
        sh = {1: 0, 2: 1, 4: 2}[KS]
        e(f"s_lshr_b32 s{g}, s{l}, {sh}")
        e(f"s_cmp_lt_u32 s{g}, {nA}")
        e(f"s_cselect_b32 s6, s{sA0}, s{sB0}")
        e(f"s_mul_i32 s{g}, s{g}, {stride}")
        e(f"s_add_u32 s{g}, s{g}, s6")
        e(f"s_and_b32 s6, s{l}, {KS-1}")
        e(f"s_lshl_b32 s6, s6, 10")
        e(f"s_add_u32 s{g}, s{g}, s6")
        e(f"s_lshl_b32 s{l}, s{l}, 10")
    def dma(c):
        slot = c % NS
        for i in range(npw):
            e(f"s_add_u32 m0, s{spiece+2*i+1}, {slot*SZ}")
            e("s_nop 0")
            e(f"buffer_load_dwordx4 v{voff}, s[{srdws}:{srdws+3}], s{spiece+2*i} offen lds")
        e(f"v_add_u32 v{voff}, {KS*1024}, v{voff}")
    per = nA + 1
    HALF = 2*SZ
    e(f"v_add_u32 v12, {HALF}, v{vlds_r_b}")
    e(f"v_add_u32 v13, {HALF}, v{vlds_r_lane}")
    e(f"v_add_u32 v14, {2*HALF}, v{vlds_r_b}")
    e(f"v_add_u32 v15, {2*HALF}, v{vlds_r_lane}")
    def reads(slot, q):
        fr = frag_reg + 4*per*q
        vb, vl, so = [(vlds_r_b, vlds_r_lane, slot*SZ), (12, 13, slot*SZ - HALF), (14, 15, slot*SZ - 2*HALF)][slot//2]
        e(f"ds_read_b128 v[{fr}:{fr+3}], v{vb} offset:{so + q*1024}")
        for a in range(nA):
            e(f"ds_read_b128 v[{fr+4+4*a}:{fr+7+4*a}], v{vl} offset:{so + a*KS*1024 + q*1024}")
    def mfmas(q):
        fr = frag_reg + 4*per*q
        for a in range(nA):
            ac = acc_reg + 16*a
            e(f"v_mfma_f32_32x32x16_bf16 v[{ac}:{ac+15}], v[{fr+4+4*a}:{fr+7+4*a}], v[{fr}:{fr+3}], v[{ac}:{ac+15}]")
    for c in range(min(NS-1, nchunks)):
        dma(c)
    for c in range(nchunks):
        inflight = min(NS-2, nchunks-1-c)
        e(f"s_waitcnt vmcnt({inflight*npw})")
        e("s_barrier")
        if nA == 2 and c == 0: stamp(2)
        if nA == 2 and c == 1: stamp(3)
        slot = c % NS
        if "rd" not in SKIP:
            for q in range(KS):
                reads(slot, q)
        if c + NS - 1 < nchunks and "dma" not in SKIP:
            dma(c + NS - 1)
        for q in range(KS):
            e(f"s_waitcnt lgkmcnt({(KS-1-q)*per})")
            if "mf" not in SKIP: mfmas(q)


UB2 = CB(7) + CS
HS = 2432
def gen_conv2():
    if "cv" in SKIP: e("s_endpgm")
    if PRIO & 8: e("s_setprio 3")
    srd(8, 60, D*2)
    e("s_sub_u32 s4, s2, %d" % G1_WGS)
    e("s_and_b32 s5, s4, 7")
    e("s_lshl_b32 s5, s5, 2")
    e("s_bfe_u32 s6, s4, 0x20003")
    e("s_or_b32 s5, s5, s6")
    e("s_andn2_b32 s4, s4, 31")
    e("s_or_b32 s4, s4, s5")
    e("s_lshl_b32 s5, s4, 1")
    e("v_mov_b32 v3, s5")
    if DLYC: e(f"s_sleep {DLYC}")
    e("buffer_load_ushort v1, v3, s[8:11], 0 offen")
    e("s_lshl_b32 s5, s4, 5")
    e("s_add_u32 s5, s5, %d" % WS_XNT)
    e("v_lshrrev_b32 v4, 1, v0")
    e("v_mul_u32_u24 v4, 20480, v4")
    e("v_and_b32 v5, 1, v0")
    e("v_lshl_add_u32 v4, v5, 4, v4")
    e("buffer_load_dwordx4 v[8:11], v4, s[28:31], s5 offen")
    e("v_lshlrev_b32 v4, 4, v0")
    e("s_mul_i32 s6, s4, %d" % KR_STRIDE)
    e("s_add_u32 s6, s6, %d" % WS_KR)
    e("buffer_load_dwordx4 v[12:15], v4, s[28:31], s6 offen")
    e("buffer_load_dwordx4 v[16:19], v4, s[28:31], s6 offen offset:16")
    if not CV3:
        e("v_min_u32 v5, 3, v0")
        e("v_lshlrev_b32 v5, 4, v5")
        e("v_add_u32 v5, 4096, v5")
        e("buffer_load_dwordx4 v[20:23], v5, s[28:31], s6 offen")
        e("buffer_load_dwordx4 v[24:27], v5, s[28:31], s6 offen offset:16")
    for k in range(4):
        e(f"v_mov_b32 v{28+k}, 0")
    e("v_min_u32 v6, 31, v0")
    e("v_lshrrev_b32 v7, 4, v6")
    e("v_and_b32 v6, 15, v6")
    e("v_lshlrev_b32 v6, 4, v6")
    e(f"v_mad_u32_u24 v6, v7, {HS}, v6") if False else (e(f"v_mul_u32_u24 v7, {HS}, v7"), e("v_add_u32 v6, v6, v7"))
    if CV3:
        e("s_cmp_lg_u32 s3, 0")
        e("s_cbranch_scc1 cv_nz")
        e(f"v_add_u32 v6, {UB2}, v6")
        e("v_subrev_u32 v7, 32, v0")
        e("v_min_u32 v7, 7, v7")
        e("v_lshrrev_b32 v5, 2, v7")
        e(f"v_mul_u32_u24 v7, {CS}, v7")
        e("v_lshl_add_u32 v7, v5, 5, v7")
        e("v_add_u32 v7, 4096, v7")
        e("v_cmp_gt_u32 vcc, 32, v0")
        e("s_nop 1")
        e("v_cndmask_b32 v6, v7, v6, vcc")
        e("s_mov_b32 exec_hi, 0xff")
        e("ds_write_b128 v6, v[28:31]")
        e("s_mov_b32 exec_hi, -1")
        lab("cv_nz")
    else:
        e(f"ds_write_b128 v6, v[28:31] offset:{UB2}")
    e("v_lshrrev_b32 v6, 1, v0")
    e("v_lshlrev_b32 v6, 4, v6")
    e("v_and_b32 v7, 1, v0")
    e(f"v_mul_u32_u24 v7, {HS}, v7")
    e("v_add_u32 v6, v6, v7")
    e("s_waitcnt vmcnt(%d)" % (2 if CV3 else 4))
    e(f"ds_write_b128 v6, v[8:11] offset:{UB2 + 256}")
    def copies(w, vaddr):
        for c in range(8):
            if c % 2 == 0:
                e(f"ds_write_b128 v{vaddr}, v[{w+c//2}:{w+c//2+3}] offset:{CB(c)}") if (w + c//2) % 2 == 0 else None
                if (w + c//2) % 2:
                    for j in range(4):
                        e(f"v_mov_b32 v{32+j}, v{w+c//2+j}")
                    e(f"ds_write_b128 v{vaddr}, v[32:35] offset:{CB(c)}")
            else:
                for j in range(4):
                    e(f"v_alignbit_b32 v{36+j}, v{w+(c+1)//2+j}, v{w+(c-1)//2+j}, 16")
                e(f"ds_write_b128 v{vaddr}, v[36:39] offset:{CB(c)}")
    e("s_waitcnt vmcnt(%d)" % (0 if CV3 else 2))
    tl(1)
    copies(12, 4)
    if not CV3:
        e("s_waitcnt vmcnt(0)")
        copies(20, 5)
    e("v_and_b32 v3, 15, v2")
    e("v_lshrrev_b32 v4, 4, v2")
    e("v_sub_u32 v5, 7, v3")
    e("v_and_b32 v5, 7, v5")
    e("v_sub_u32 v6, 2031, v3")
    e("v_lshl_add_u32 v6, v4, 3, v6")
    e("v_sub_u32 v6, v6, v5")
    e("v_mul_u32_u24 v7, %d, v5" % CS)
    e("v_lshrrev_b32 v8, 2, v5")
    e("v_lshl_add_u32 v7, v8, 5, v7")
    e("v_lshl_add_u32 v6, v6, 1, v7")
    e("s_lshl_b32 s5, s3, 7")
    e(f"s_add_u32 s5, s5, {64 + 3584}")
    e("v_subrev_u32 v8, s5, v6")
    e("v_and_b32 v5, 1, v4")
    e("v_lshrrev_b32 v6, 1, v4")
    e(f"v_mul_u32_u24 v7, {HS}, v5")
    e("v_add_u32 v9, v3, v6")
    e("v_lshl_add_u32 v9, v9, 4, v7")
    e("s_lshl_b32 s5, s3, 6")
    e(f"s_sub_u32 s5, {UB2 + 16*15 - 32}, s5")
    e("v_add_u32 v9, s5, v9")
    e(f"v_mul_u32_u24 v11, {HS}, v6")
    e("v_lshl_add_u32 v11, v3, 4, v11")
    e("v_lshl_add_u32 v11, v5, 3, v11")
    e("s_lshl_b32 s5, s3, 9")
    e("v_add_u32 v11, s5, v11")
    e("v_lshlrev_b32 v12, 5, v3")
    e("v_lshl_add_u32 v12, v4, 3, v12")
    e("v_lshlrev_b32 v10, 4, v2")
    e("s_lshl_b32 s5, s3, 13")
    e("v_add_u32 v13, s5, v10")
    e("s_lshl_b32 s5, s3, 10")
    e("v_add_u32 v10, s5, v10")
    for r in range(16, 48):
        e(f"v_mov_b32 v{r}, 0")
    e("s_waitcnt lgkmcnt(0)")
    tl(2)
    e("s_barrier")
    tl(3)
    free = list(range(48, 128, 4))
    loc = {}
    pend = []
    order = [("A",0),("B",7),("B",0),("A",7),("A",1),("B",6),("B",1),("A",6),("A",2),("B",5),("B",2),("A",5),("A",3),("B",4),("B",3),("A",4)]
    todo = [(st,) + o for st in range(2) for o in order]
    def rd(n):
        for _ in range(n):
            if not todo or not free or len(pend) >= 15: return
            key = todo.pop(0); r = free.pop(0); loc[key] = r
            st, ab, i = key
            if ab == "A": e(f"ds_read_b128 v[{r}:{r+3}], v8 offset:{512*(7-i) + 64*(1-st)}")
            else: e(f"ds_read_b128 v[{r}:{r+3}], v9 offset:{256*i + 32*(1-st)}")
            pend.append(key)
    def need(keys):
        idx = [pend.index(k) for k in keys if k in pend]
        if idx:
            last = max(idx)
            e(f"s_waitcnt lgkmcnt({len(pend) - 1 - last})")
            del pend[:last+1]
    groups = []
    for s_ in (7, 6, 5, 4, 3, 2, 1, 0):
        n = min(s_, 7 - s_)
        g = [(s_, m) for m in range(n + 1)] + [(j, s_) for j in range(min(s_ - 1, 7 - s_) + 1)]
        groups.append((s_, g))
    assert sum(len(g) for _, g in groups) == 36
    rd(20)
    for st in range(2):
        for s_, g in groups:
            need([(st, "B", j) for j, m in g] + [(st, "A", m) for j, m in g])
            for j, m in g:
                ac = 16 + 4*(j + m); a = loc[(st, "A", m)]; b = loc[(st, "B", j)]
                e(f"v_mfma_f32_16x16x32_bf16 v[{ac}:{ac+3}], v[{a}:{a+3}], v[{b}:{b+3}], v[{ac}:{ac+3}]")
            free.append(loc[(st, "A", s_)]); free.append(loc[(st, "B", s_)])
            rd(8)
    assert not todo and not pend
    tl(4)
    e("s_nop 15")
    e("s_barrier")
    for t in range(8):
        if CV3 & 2 and t % 2 == 0:
            e(f"s_cmp_eq_u32 s3, {t//2}")
            e(f"s_cbranch_scc1 cv_sk{t//2}")
        e(f"ds_write_b128 v10, v[{16+4*t}:{19+4*t}] offset:{4096*t}")
        if CV3 & 2 and t % 2 == 1:
            e(f"s_branch cv_nx{t//2}")
            lab(f"cv_sk{t//2}")
            for tt in range(2):
                for r in range(4):
                    e(f"v_mov_b32 v{48+16*tt+r}, v{16+4*(t-1+tt)+r}")
            lab(f"cv_nx{t//2}")
    if CV3 & 2:
        for i in range(1, 4):
            e(f"s_add_u32 s5, s3, {i}")
            e("s_and_b32 s5, s5, 3")
            e("s_lshl_b32 s5, s5, 10")
            e(f"v_add_u32 v{4+i}, s5, v13")
    for tt in range(2):
        e(f"ds_read_b64 v[{80+2*tt}:{81+2*tt}], v11 offset:{UB2 + 256 + 256*tt}")
    e("s_lshl_b32 s5, s4, 12")
    e("s_lshl_b32 s6, s3, 10")
    e("s_add_u32 s5, s5, s6")
    e("s_add_u32 s5, s5, %d" % WS_AT)
    e("v_lshlrev_b32 v1, 16, v1")
    e("s_waitcnt lgkmcnt(0)")
    e("s_barrier")
    for i in range(8):
        if CV3 & 2:
            if i % 4: e(f"ds_read_b128 v[{48+4*i}:{51+4*i}], v{4+i%4} offset:{4096*(i//4)}")
        else:
            e(f"ds_read_b128 v[{48+4*i}:{51+4*i}], v13 offset:{1024*i}")
    for tt in range(2):
        for p_ in range(2):
            u = 80 + 2*tt + p_
            e(f"v_lshlrev_b32 v84, 16, v{u}")
            e(f"v_and_b32 v85, 0xffff0000, v{u}")
            e(f"v_mul_f32 v84, v84, v1")
            e(f"v_mul_f32 v85, v85, v1")
            e(f"v_cvt_pk_bf16_f32 v84, v84, v85")
            e(f"v_lshlrev_b32 v{88+4*tt+2*p_}, 16, v84")
            e(f"v_and_b32 v{89+4*tt+2*p_}, 0xffff0000, v84")
    for tt in range(2):
        e(f"s_waitcnt lgkmcnt({(3 - 3*tt) if CV3 & 2 else (4 - 4*tt)})")
        b0 = 48 + 16*tt
        for r in range(4):
            e(f"v_add_f32 v{b0+r}, v{b0+r}, v{b0+4+r}")
            e(f"v_add_f32 v{b0+8+r}, v{b0+8+r}, v{b0+12+r}")
        for r in range(4):
            e(f"v_add_f32 v{b0+r}, v{b0+r}, v{b0+8+r}")
        for p_ in range(2):
            e(f"v_cvt_pk_bf16_f32 v84, v{b0+2*p_}, v{b0+2*p_+1}")
            e(f"v_lshlrev_b32 v85, 16, v84")
            e(f"v_and_b32 v86, 0xffff0000, v84")
            e(f"v_add_f32 v85, v85, v{88+4*tt+2*p_}")
            e(f"v_add_f32 v86, v86, v{89+4*tt+2*p_}")
            e(f"v_cvt_pk_bf16_f32 v{96+2*tt+p_}, v85, v86")
        e(f"buffer_store_dwordx2 v[{96+2*tt}:{97+2*tt}], v12, s[28:31], s5 offen offset:{512*tt}")
    tl(5)
    if TL: e("s_waitcnt vmcnt(0)")
    tl_end(1)

def gen_mid():
    kernel_begin("mid_kernel")
    e("s_cmp_ge_u32 s2, %d" % MID_WGS)
    e("s_cbranch_scc1 mid_end")
    tl_begin()
    e("s_load_dwordx2 s[56:57], s[0:1], 104")
    e("s_load_dwordx2 s[58:59], s[0:1], 72")
    e("s_load_dwordx2 s[60:61], s[0:1], 48")
    e("v_lshrrev_b32 v1, 6, v0")
    e("v_and_b32 v2, 63, v0")
    e("s_nop 0")
    e("v_readfirstlane_b32 s3, v1")
    e("s_waitcnt lgkmcnt(0)")
    srd(28, 56, WS_SIZE)
    if W2MID:
        e("s_cmp_ge_u32 s2, %d" % (G1_WGS + CV_WGS))
        e("s_cbranch_scc1 mid_wt")
    e("s_cmp_ge_u32 s2, %d" % G1_WGS)
    e("s_cbranch_scc1 mid_conv")
    if "g1" in SKIP: e("s_endpgm")
    if PRIO & 4: e("s_setprio 3")
    srd(8, 58, F*2)
    tl(1)
    claim_tile(0, 32, 7168*G1_NS, "mcl")
    tl(2)
    if G1MAP == 0:
        e("s_lshr_b32 s5, s2, 4")
        e("s_and_b32 s4, s2, 15")
    else:
        e("s_lshr_b32 s5, s2, 6")
        e("s_lshl_b32 s5, s5, 2")
        e("s_bfe_u32 s6, s2, 0x20003")
        e("s_add_u32 s5, s5, s6")
        e("s_bfe_u32 s4, s2, 0x10005")
        e("s_lshl_b32 s4, s4, 3")
        e("s_and_b32 s6, s2, 7")
        e("s_add_u32 s4, s4, s6")
    e("s_mul_i32 s6, s4, 7")
    e("s_sub_u32 s7, s4, 12")
    e("s_cmp_lt_u32 s4, 12")
    e("s_cselect_b32 s7, 0, s7")
    e("s_cselect_b32 s26, 7, 6")
    e("s_sub_u32 s4, s6, s7")
    e("v_and_b32 v3, 15, v2")
    e("v_lshrrev_b32 v4, 4, v2")
    e("v_lshrrev_b32 v5, 1, v4")
    e("v_and_b32 v6, 1, v4")
    e("v_lshlrev_b32 v7, 4, v3")
    e("v_lshl_add_u32 v7, v5, 10, v7")
    e("v_lshl_add_u32 v7, v6, 9, v7")
    e("v_mov_b32 v8, v7")
    for k in range(2):
        e(f"s_add_u32 s6, s3, {4*k}")
        e("s_min_u32 s6, s6, 6")
        e(f"s_lshl_b32 s{42+k}, s6, 10")
        e("s_add_u32 s6, s6, s4")
        e("s_min_u32 s6, s6, 107")
        e(f"s_lshr_b32 s{40+k}, s6, 1")
        e(f"s_mul_i32 s{40+k}, s{40+k}, {40*1024}")
        e("s_and_b32 s6, s6, 1")
        e("s_lshl_b32 s6, s6, 8")
        e(f"s_add_u32 s{40+k}, s{40+k}, s6")
        e(f"s_add_u32 s{40+k}, s{40+k}, {WS_W1F}")
    e("s_lshl_b32 s6, s5, 2")
    e("s_add_u32 s27, s6, s3")
    e("s_mul_i32 s44, s27, %d" % (40*1024))
    e("s_add_u32 s44, s44, %d" % WS_XNF)
    if "g1y" in SKIP:
        e("s_xor_b32 s45, s27, 1")
        e("s_mul_i32 s45, s45, %d" % (40*1024))
    e("v_lshlrev_b32 v9, 4, v2")
    NS, BD, NSTEP = G1_NS, G1_BD, 20
    NB = int(os.environ.get("G1NB", 7))
    AF, BF, ACC, BI = 16, 16 + 4*NB, 16 + 4*NB + 8*G1_BD, 44
    assert ACC + 56 <= 128
    pend = []
    def dma(st):
        for k in range(2):
            e(f"s_add_u32 m0, s{42+k}, {(st % NS)*7168}")
            e("s_nop 0")
            e(f"buffer_load_dwordx4 v7, s[28:31], s{40+k} offen lds")
            pend.append(("a", st))
        e("v_add_u32 v7, 2048, v7")
    def bld(st):
        r = BF + 8*(st % BD)
        e(f"buffer_load_dwordx4 v[{r}:{r+3}], v8, s[28:31], s44 offen")
        e(f"buffer_load_dwordx4 v[{r+4}:{r+7}], v8, s[28:31], s44 offen offset:256")
        pend.append(("b", st)); pend.append(("b", st))
        if "g1y" in SKIP:
            e(f"buffer_load_dwordx4 v[{r}:{r+3}], v8, s[28:31], s45 offen")
            e(f"buffer_load_dwordx4 v[{r+4}:{r+7}], v8, s[28:31], s45 offen offset:256")
            pend.append(("b", st)); pend.append(("b", st))
        e("v_add_u32 v8, 2048, v8")
    def wait_for(*tags):
        idx = [i for i, p in enumerate(pend) if p in tags]
        if not idx: return
        last = max(idx)
        e(f"s_waitcnt vmcnt({len(pend) - 1 - last})")
        del pend[:last+1]
    def rdA(g):
        st, t = divmod(g, 7)
        if st >= NSTEP: return
        r = AF + 4*(g % NB)
        e(f"ds_read_b128 v[{r}:{r+3}], v9 offset:{(st % NS)*7168 + 1024*t}")
    for st in range(max(NS-1, BD)):
        if st < NS-1: dma(st)
        if st < BD: bld(st)
    e("s_lshl_b32 s6, s4, 5")
    e("v_lshl_add_u32 v10, v4, 3, s6")
    for r in range(ACC, ACC+56):
        e(f"v_mov_b32 v{r}, 0")
    wait_for(("a", 0))
    e("s_barrier")
    tl(3)
    for t in range(NB): rdA(t)
    for st in range(NSTEP):
        if st + 1 < NSTEP:
            wait_for(("a", st+1), ("b", st))
            e("s_barrier")
            if st - 1 + NS < NSTEP: dma(st - 1 + NS)
        else:
            wait_for(("b", st))
        rb = BF + 8*(st % BD)
        for t in range(7):
            g = 7*st + t
            e(f"s_waitcnt lgkmcnt({min(NB - 1, 7*NSTEP - 1 - g)})")
            ra_ = AF + 4*(g % NB)
            for b_ in range(2):
                ac = ACC + 4*(2*t + b_)
                e(f"v_mfma_f32_16x16x32_bf16 v[{ac}:{ac+3}], v[{ra_}:{ra_+3}], v[{rb+4*b_}:{rb+4*b_+3}], v[{ac}:{ac+3}]")
            rdA(g + NB)
        if st + BD < NSTEP: bld(st + BD)
        if st == NSTEP - 2:
            assert BD >= 3
            free = [BF + 8*((NSTEP-3) % BD), BF + 8*((NSTEP-2) % BD)]
            BIr = [free[0] + 2*k for k in range(4)] + [free[1] + 2*k for k in range(3)]
            for t in range(7):
                e(f"buffer_load_dwordx2 v[{BIr[t]}:{BIr[t]+1}], v10, s[8:11], 0 offen offset:{32*t}")
                pend.append(("c", 0))
    e("s_nop 7")
    e("s_waitcnt vmcnt(0)")
    tl(4)
    e("s_mul_i32 s6, s27, 108")
    e("s_add_u32 s6, s6, s4")
    e("s_lshl_b32 s6, s6, 10")
    e("s_add_u32 s6, s6, %d" % WS_ACT)
    e("v_lshlrev_b32 v9, 4, v3")
    e("v_lshl_add_u32 v9, v5, 9, v9")
    e("v_lshl_add_u32 v9, v6, 3, v9")
    T = 16
    if MISH2 == 2:
        e(f"s_mov_b32 s46, {LOG2E:#x}")
        e(f"s_mov_b32 s47, {LOG2E:#x}")
        e("v_mov_b32 v40, 1.0"); e("v_mov_b32 v41, 1.0")
        e("v_mov_b32 v42, -2.0"); e("v_mov_b32 v43, -2.0")
    for t in range(7):
        if t == 6:
            e("s_cmp_lt_u32 s26, 7")
            e("s_cbranch_scc1 g1_end")
        r = BIr[t]
        e(f"v_lshlrev_b32 v{T}, 16, v{r}")
        e(f"v_and_b32 v{T+1}, 0xffff0000, v{r}")
        e(f"v_lshlrev_b32 v{T+2}, 16, v{r+1}")
        e(f"v_and_b32 v{T+3}, 0xffff0000, v{r+1}")
        for b_ in range(2):
            ac = ACC + 4*(2*t + b_)
            d0 = T + 16 + 2*((2*t + b_) % 4)
            if MISH2 == 2:
                mish_quad(ac, T, d0)
            else:
                mish_pairs(ac, ac+1, T, T+1, d0, T+4)
                mish_pairs(ac+2, ac+3, T+2, T+3, d0+1, T+10)
            off = (t % 4)*1024 + 256*b_
            e(f"buffer_store_dwordx2 v[{d0}:{d0+1}], v9, s[28:31], s6 offen offset:{off}")
        if t == 3: e("s_add_u32 s6, s6, 4096")
    lab("g1_end")
    tl(5)
    if TL: e("s_waitcnt vmcnt(0)")
    tl_end(1)
    e("s_endpgm")
    lab("mid_conv")
    if CONV2:
        gen_conv2()
    else:
        if "cv" in SKIP: e("s_endpgm")
        if PRIO & 8: e("s_setprio 3")
        srd(8, 60, D*2)
        e("s_sub_u32 s4, s2, %d" % G1_WGS)
        e("s_and_b32 s5, s4, 7")
        e("s_lshl_b32 s5, s5, 2")
        e("s_bfe_u32 s6, s4, 0x20003")
        e("s_or_b32 s5, s5, s6")
        e("s_andn2_b32 s4, s4, 31")
        e("s_or_b32 s4, s4, s5")
        e("s_lshl_b32 s5, s4, 1")
        e("v_mov_b32 v3, s5")
        if DLYC: e(f"s_sleep {DLYC}")
        e("buffer_load_ushort v1, v3, s[8:11], 0 offen")
        e("s_lshl_b32 s5, s4, 5")
        e("s_add_u32 s5, s5, %d" % WS_XNT)
        e("v_lshrrev_b32 v4, 1, v0")
        e("v_mul_u32_u24 v4, 20480, v4")
        e("v_and_b32 v5, 1, v0")
        e("v_lshl_add_u32 v4, v5, 4, v4")
        e("buffer_load_dwordx4 v[8:11], v4, s[28:31], s5 offen")
        e("v_lshlrev_b32 v4, 4, v0")
        e("s_mul_i32 s6, s4, %d" % KR_STRIDE)
        e("s_add_u32 s6, s6, %d" % WS_KR)
        e("buffer_load_dwordx4 v[12:15], v4, s[28:31], s6 offen")
        e("buffer_load_dwordx4 v[16:19], v4, s[28:31], s6 offen offset:16")
        e("v_min_u32 v5, 3, v0")
        e("v_lshlrev_b32 v5, 4, v5")
        e("v_add_u32 v5, 4096, v5")
        e("buffer_load_dwordx4 v[20:23], v5, s[28:31], s6 offen")
        e("buffer_load_dwordx4 v[24:27], v5, s[28:31], s6 offen offset:16")
        for k in range(4):
            e(f"v_mov_b32 v{28+k}, 0")
        e("v_min_u32 v6, 154, v0")
        e("v_lshlrev_b32 v6, 4, v6")
        e(f"ds_write_b128 v6, v[28:31] offset:{UB + 80}")
        e("v_lshrrev_b32 v6, 2, v0")
        e("v_mul_u32_u24 v6, 80, v6")
        e("v_and_b32 v7, 3, v0")
        e("v_lshl_add_u32 v6, v7, 4, v6")
        e("s_waitcnt vmcnt(4)")
        e(f"ds_write_b128 v6, v[8:11] offset:{UB + 32*80}")
        def copies(w, vaddr):
            for c in range(8):
                if c % 2 == 0:
                    e(f"ds_write_b128 v{vaddr}, v[{w+c//2}:{w+c//2+3}] offset:{CB(c)}") if (w + c//2) % 2 == 0 else None
                    if (w + c//2) % 2:
                        for j in range(4):
                            e(f"v_mov_b32 v{32+j}, v{w+c//2+j}")
                        e(f"ds_write_b128 v{vaddr}, v[32:35] offset:{CB(c)}")
                else:
                    for j in range(4):
                        e(f"v_alignbit_b32 v{36+j}, v{w+(c+1)//2+j}, v{w+(c-1)//2+j}, 16")
                    e(f"ds_write_b128 v{vaddr}, v[36:39] offset:{CB(c)}")
        e("s_waitcnt vmcnt(2)")
        tl(1)
        copies(12, 4)
        e("s_waitcnt vmcnt(0)")
        copies(20, 5)
        e("s_waitcnt lgkmcnt(0)")
        tl(2)
        e("s_barrier")
        tl(3)
        e("v_and_b32 v3, 31, v2")
        e("v_lshrrev_b32 v4, 5, v2")
        e("v_sub_u32 v5, 7, v3")
        e("v_and_b32 v5, 7, v5")
        e("v_sub_u32 v6, 2047, v3")
        e("v_lshl_add_u32 v6, v4, 3, v6")
        e("v_sub_u32 v6, v6, v5")
        e("v_mul_u32_u24 v7, %d, v5" % CS)
        e("v_lshrrev_b32 v8, 2, v5")
        e("v_lshl_add_u32 v7, v8, 5, v7")
        e("v_lshl_add_u32 v6, v6, 1, v7")
        e("v_mul_u32_u24 v7, 80, v3")
        e("v_lshl_add_u32 v7, v4, 4, v7")
        e(f"v_add_u32 v7, {UB + 32*80}, v7")
        for r in range(16, 48):
            e(f"v_mov_b32 v{r}, 0")
        e("s_lshl_b32 s5, s3, 9")
        e(f"s_add_u32 s5, s5, {64*7 + 64*32}")
        e("v_subrev_u32 v8, s5, v6")
        e("s_mul_i32 s5, s3, 640")
        e(f"s_add_u32 s5, s5, {80*7}")
        e("v_subrev_u32 v9, s5, v7")
        def rd(q):
            base = 48 + (q & 1)*32
            for t in range(2):
                fa = base + 16*t
                e(f"ds_read_b128 v[{fa}:{fa+3}], v8 offset:{64*(7-q) + 2048 + 32*t}")
                e(f"ds_read_b128 v[{fa+4}:{fa+7}], v9 offset:{80*(7-q) + 32*t}")
                e(f"ds_read_b128 v[{fa+8}:{fa+11}], v9 offset:{80*(7-q) + 2560 + 32*t}")
                e(f"ds_read_b128 v[{fa+12}:{fa+15}], v8 offset:{64*(7-q) + 32*t}")
        def mm(q):
            base = 48 + (q & 1)*32
            for t in range(2):
                fa = base + 16*t
                e(f"v_mfma_f32_32x32x16_bf16 v[16:31], v[{fa}:{fa+3}], v[{fa+4}:{fa+7}], v[16:31]")
                e(f"v_mfma_f32_32x32x16_bf16 v[32:47], v[{fa}:{fa+3}], v[{fa+8}:{fa+11}], v[32:47]")
                e(f"v_mfma_f32_32x32x16_bf16 v[32:47], v[{fa+12}:{fa+15}], v[{fa+4}:{fa+7}], v[32:47]")
        rd(0)
        for q in range(8):
            if q < 7:
                rd(q + 1)
                e("s_waitcnt lgkmcnt(8)")
            else:
                e("s_waitcnt lgkmcnt(0)")
            mm(q)
        tl(4)
        e("s_nop 15")
        e("s_barrier")
        e("v_lshlrev_b32 v10, 4, v2")
        e("s_cmp_eq_u32 s3, 0")
        e("s_cbranch_scc1 cv_w0")
        e("s_sub_u32 s5, s3, 1")
        e("s_lshl_b32 s5, s5, 12")
        e("v_add_u32 v11, s5, v10")
        for r in range(4):
            e(f"ds_write_b128 v11, v[{16+4*r}:{19+4*r}] offset:{1024*r}")
        lab("cv_w0")
        e("s_cmp_eq_u32 s3, 1")
        e("s_cbranch_scc1 cv_w1")
        e("s_sub_u32 s5, s3, 1")
        e("s_max_i32 s5, s5, 0")
        e("s_lshl_b32 s5, s5, 12")
        e("v_add_u32 v11, s5, v10")
        for r in range(4):
            e(f"ds_write_b128 v11, v[{32+4*r}:{35+4*r}] offset:{12288 + 1024*r}")
        e("s_branch cv_w2")
        lab("cv_w1")
        for r in range(16):
            e(f"v_mov_b32 v{16+r}, v{32+r}")
        e("v_add_u32 v10, 12288, v10")
        lab("cv_w2")
        e("s_waitcnt lgkmcnt(0)")
        e("s_barrier")
        e("s_cmp_ge_u32 s3, 2")
        e("s_cbranch_scc1 mid_end")
        for sl in range(3):
            for r in range(4):
                e(f"ds_read_b128 v[{48+16*sl+4*r}:{51+16*sl+4*r}], v10 offset:{4096*sl + 1024*r}")
        for sl in range(3):
            e(f"s_waitcnt lgkmcnt({8-4*sl})")
            for r in range(16):
                e(f"v_add_f32 v{16+r}, v{16+r}, v{48+16*sl+r}")
        lab("cv_epi")
        e("s_mul_i32 s5, s3, %d" % (32*80))
        e("v_mul_u32_u24 v11, 80, v3")
        e("v_lshl_add_u32 v11, v4, 3, v11")
        e("v_add_u32 v11, s5, v11")
        for g in range(4):
            e(f"ds_read_b64 v[{32+2*g}:{33+2*g}], v11 offset:{UB + 32*80 + 16*g}")
        e("s_lshl_b32 s5, s4, 12")
        e("s_lshl_b32 s6, s3, 11")
        e("s_add_u32 s5, s5, s6")
        e("s_add_u32 s5, s5, %d" % WS_AT)
        e("v_lshlrev_b32 v12, 6, v3")
        e("v_lshl_add_u32 v12, v4, 3, v12")
        e("s_waitcnt vmcnt(0) lgkmcnt(0)")
        e("v_lshlrev_b32 v1, 16, v1")
        for g in range(4):
            for p in range(2):
                u = 32 + 2*g + p
                y0 = 16 + 4*g + 2*p
                e(f"v_lshlrev_b32 v44, 16, v{u}")
                e(f"v_and_b32 v45, 0xffff0000, v{u}")
                e(f"v_mul_f32 v44, v44, v1")
                e(f"v_mul_f32 v45, v45, v1")
                e(f"v_cvt_pk_bf16_f32 v44, v44, v45")
                e(f"v_cvt_pk_bf16_f32 v46, v{y0}, v{y0+1}")
                e(f"v_lshlrev_b32 v47, 16, v44")
                e(f"v_and_b32 v48, 0xffff0000, v44")
                e(f"v_lshlrev_b32 v49, 16, v46")
                e(f"v_and_b32 v50, 0xffff0000, v46")
                e(f"v_add_f32 v47, v47, v49")
                e(f"v_add_f32 v48, v48, v50")
                e(f"v_cvt_pk_bf16_f32 v{52+2*g+p}, v47, v48")
            e(f"buffer_store_dwordx2 v[{52+2*g}:{53+2*g}], v12, s[28:31], s5 offen offset:{16*g}")
        tl(5)
        if TL: e("s_waitcnt vmcnt(0)")
        tl_end(1)
    if W2MID:
        e("s_endpgm")
        lab("mid_wt")
        gen_wt(G1_WGS + CV_WGS, 270, 540, "mid_end", 1, int(os.environ.get("DLYW2", 0)))
    lab("mid_end")
    e("s_endpgm")
    kernel_desc("mid_kernel", 128)

G2_WGS = 256
FIN_LDS = 61440 + 64
FDEPTH = int(os.environ.get('FDEPTH', 4))
def gen_fin():
    kernel_begin("fin_kernel")
    e("s_cmp_ge_u32 s2, %d" % G2_WGS)
    e("s_cbranch_scc1 fin_end")
    e("s_load_dwordx2 s[56:57], s[0:1], 104")
    e("s_load_dwordx2 s[58:59], s[0:1], 0")
    e("s_load_dwordx2 s[60:61], s[0:1], 88")
    e("v_lshrrev_b32 v1, 6, v0")
    e("v_and_b32 v2, 63, v0")
    e("s_nop 0")
    e("v_readfirstlane_b32 s3, v1")
    if "xcc" in SKIP:
        e("s_and_b32 s5, s2, 31")
        e("s_lshr_b32 s4, s2, 5")
    else:
        e("s_waitcnt lgkmcnt(0)")
        srd(28, 56, WS_SIZE)
        claim_tile(512, 32, 61440, "fcl")
        if FMAP == 0:
            e("s_lshr_b32 s5, s2, 5")
            e("s_lshl_b32 s5, s5, 2")
            e("s_and_b32 s6, s2, 3")
            e("s_add_u32 s5, s5, s6")
            e("s_bfe_u32 s4, s2, 0x30002")
        else:
            e("s_lshr_b32 s5, s2, 6")
            e("s_lshl_b32 s5, s5, 3")
            e("s_and_b32 s6, s2, 7")
            e("s_add_u32 s5, s5, s6")
            e("s_bfe_u32 s4, s2, 0x10005")
            e("s_lshl_b32 s4, s4, 2")
            e("s_bfe_u32 s6, s2, 0x20003")
            e("s_add_u32 s4, s4, s6")
    e("v_and_b32 v3, 15, v2")
    e("v_lshrrev_b32 v4, 4, v2")
    e("v_lshrrev_b32 v5, 1, v4")
    e("v_and_b32 v6, 1, v4")
    e("v_lshlrev_b32 v7, 4, v3")
    e("v_lshl_add_u32 v7, v5, 10, v7")
    e("v_lshl_add_u32 v7, v6, 9, v7")
    e("s_lshl_b32 s6, s3, 11")
    e("v_add_u32 v7, s6, v7")
    e("s_mul_i32 s6, s4, 5")
    for a_ in range(5):
        e(f"s_add_u32 s7, s6, {a_}")
        e(f"s_lshr_b32 s{40+a_}, s7, 1")
        e(f"s_mul_i32 s{40+a_}, s{40+a_}, {108*1024}")
        e(f"s_and_b32 s7, s7, 1")
        e(f"s_lshl_b32 s7, s7, 8")
        e(f"s_add_u32 s{40+a_}, s{40+a_}, s7")
        e(f"s_add_u32 s{40+a_}, s{40+a_}, {WS_W2F}")
    e("s_mul_i32 s6, s5, %d" % (2*108*1024))
    e("s_add_u32 s45, s6, %d" % WS_ACT)
    e("s_add_u32 s46, s45, 256")
    e("s_add_u32 s47, s45, %d" % (108*1024))
    e("s_add_u32 s48, s47, 256")
    e("s_waitcnt lgkmcnt(0)")
    srd(28, 56, WS_SIZE); srd(8, 58, L*D*2); srd(12, 60, L*D*2)
    FR = 16
    ACC = 0
    EP = FR + 36*FDEPTH
    pend = []
    def issue(m):
        base = FR + 36*(m % FDEPTH)
        for t in range(9):
            e(f"buffer_load_dwordx4 v[{base+4*t}:{base+4*t+3}], v7, s[28:31], s{40+t} offen")
            pend.append(("f", m))
        e("v_add_u32 v7, 8192, v7")
    def wait_for(tag):
        last = max(i for i, p in enumerate(pend) if p == tag)
        n = len(pend) - 1 - last
        e(f"s_waitcnt vmcnt({n})")
        del pend[:last+1]
    NST = 14
    for m in range(FDEPTH):
        issue(m)
    e("s_lshl_b32 s6, s5, 6")
    e("s_lshl_b32 s7, s3, 4")
    e("s_add_u32 s6, s6, s7")
    e("v_add_u32 v8, s6, v3")
    e("v_mul_u32_u24 v9, 1280, v8")
    e("v_lshl_add_u32 v9, v4, 3, v9")
    e("s_mul_i32 s6, s4, 160")
    e("v_add_u32 v9, s6, v9")
    for a_ in range(5):
        e(f"buffer_load_dwordx2 v[{EP+2*a_}:{EP+2*a_+1}], v9, s[8:11], 0 offen offset:{32*a_}")
        pend.append(("e", 0))
    e("v_lshlrev_b32 v10, 14, v4")
    e("v_lshl_add_u32 v10, v8, 1, v10")
    e("s_mul_i32 s6, s4, %d" % (80*4096))
    e("s_add_u32 s6, s6, %d" % WS_AT)
    for a_ in range(5):
        for j in range(4):
            e(f"buffer_load_ushort v{EP+10+4*a_+j}, v10, s[28:31], s6 offen")
            pend.append(("e", 0))
            e("s_add_u32 s6, s6, %d" % (4096 if j < 3 else 4096*13))
    for r in range(ACC, ACC+80):
        e(f"v_accvgpr_write_b32 a{r}, 0")
    for m in range(NST):
        if m == NST - 1:
            e("s_cmp_ge_u32 s3, 2")
            e("s_cbranch_scc1 fin_red")
        wait_for(("f", m))
        base = FR + 36*(m % FDEPTH)
        fill = []
        if FEP and FDEPTH + 1 <= m < FDEPTH + 4:
            for a_ in [(0, 1), (2, 3), (4,)][m - FDEPTH - 1]:
                rx = EP + 2*a_; ra = EP + 10 + 4*a_
                for k_ in range(9):
                    for p_ in range(2):
                        t0, t1 = 12 + 2*p_, 13 + 2*p_
                        r0, r1 = ra + 2*p_, ra + 2*p_ + 1
                        fill.append([f"v_lshlrev_b32 v{t0}, 16, v{rx+p_}", f"v_and_b32 v{t1}, 0xffff0000, v{rx+p_}",
                                     f"v_lshlrev_b32 v{r0}, 16, v{r0}", f"v_lshlrev_b32 v{r1}, 16, v{r1}",
                                     f"v_add_f32 v{t0}, v{t0}, v{r0}", f"v_add_f32 v{t1}, v{t1}, v{r1}",
                                     f"v_cvt_pk_bf16_f32 v{t0}, v{t0}, v{t1}",
                                     f"v_lshlrev_b32 v{r0}, 16, v{t0}", f"v_and_b32 v{r1}, 0xffff0000, v{t0}"][k_])
        for b_ in range(4):
            for a_ in range(5):
                ac = ACC + 4*(5*b_ + a_)
                e(f"v_mfma_f32_16x16x32_bf16 a[{ac}:{ac+3}], v[{base+4*a_}:{base+4*a_+3}], v[{base+20+4*b_}:{base+23+4*b_}], a[{ac}:{ac+3}]")
                for _ in range(2):
                    if fill: e(fill.pop(0))
        assert not fill
        if m + FDEPTH < NST:
            if m + FDEPTH == NST - 1:
                e("s_cmp_ge_u32 s3, 2")
                e("s_cselect_b32 s6, 8192, 0")
                e("v_subrev_u32 v7, s6, v7")
            issue(m + FDEPTH)
    lab("fin_red")
    e("s_nop 15")
    e("s_waitcnt vmcnt(0)")
    e("v_lshlrev_b32 v11, 4, v2")
    for w in range(4):
        if w < 3:
            e(f"s_cmp_lg_u32 s3, {w}")
            e(f"s_cbranch_scc1 fin_w{w+1}")
        for b_ in range(4):
            if b_ == w: continue
            slot = w if w < b_ else w - 1
            for a_ in range(5):
                ac = ACC + 4*(5*b_ + a_)
                e(f"ds_write_b128 v11, a[{ac}:{ac+3}] offset:{(b_*3 + slot)*5120 + a_*1024}")
        for r in range(20):
            e(f"v_accvgpr_read_b32 v{16+r}, a{ACC+20*w+r}")
        if w < 3:
            e("s_branch fin_rd")
            lab(f"fin_w{w+1}")
    lab("fin_rd")
    e("s_mul_i32 s6, s3, %d" % (3*5120))
    e("v_add_u32 v11, s6, v11")
    e("s_waitcnt lgkmcnt(0)")
    e("s_barrier")
    for sl in range(3):
        for a_ in range(5):
            r = 36 + 20*sl + 4*a_
            e(f"ds_read_b128 v[{r}:{r+3}], v11 offset:{sl*5120 + a_*1024}")
    for sl in range(3):
        e(f"s_waitcnt lgkmcnt({10-5*sl})")
        if FEP:
            for r in range(0, 20, 2):
                e(f"v_pk_add_f32 v[{16+r}:{17+r}], v[{16+r}:{17+r}], v[{36+20*sl+r}:{37+20*sl+r}]")
            continue
        for r in range(20):
            e(f"v_add_f32 v{16+r}, v{16+r}, v{36+20*sl+r}")
    e("s_waitcnt vmcnt(0)")
    for a_ in range(5):
        rx = EP + 2*a_
        ra = EP + 10 + 4*a_
        if FEP:
            ac = 16 + 4*a_
            for p in range(2): e(f"v_cvt_pk_bf16_f32 v{96+p}, v{ac+2*p}, v{ac+2*p+1}")
            for p in range(2):
                e(f"v_lshlrev_b32 v{98+2*p}, 16, v{96+p}")
                e(f"v_and_b32 v{99+2*p}, 0xffff0000, v{96+p}")
            for p in range(2): e(f"v_pk_add_f32 v[{98+2*p}:{99+2*p}], v[{98+2*p}:{99+2*p}], v[{ra+2*p}:{ra+2*p+1}]")
            for p in range(2): e(f"v_cvt_pk_bf16_f32 v{rx+p}, v{98+2*p}, v{99+2*p}")
        for p in range(2 if not FEP else 0):
            ac = 16 + 4*a_ + 2*p
            e(f"v_lshlrev_b32 v96, 16, v{rx+p}")
            e(f"v_and_b32 v97, 0xffff0000, v{rx+p}")
            e(f"v_lshlrev_b32 v98, 16, v{ra+2*p}")
            e(f"v_lshlrev_b32 v99, 16, v{ra+2*p+1}")
            e(f"v_add_f32 v96, v96, v98")
            e(f"v_add_f32 v97, v97, v99")
            e(f"v_cvt_pk_bf16_f32 v96, v96, v97")
            e(f"v_cvt_pk_bf16_f32 v98, v{ac}, v{ac+1}")
            e(f"v_lshlrev_b32 v100, 16, v96")
            e(f"v_and_b32 v101, 0xffff0000, v96")
            e(f"v_lshlrev_b32 v102, 16, v98")
            e(f"v_and_b32 v103, 0xffff0000, v98")
            e(f"v_add_f32 v100, v100, v102")
            e(f"v_add_f32 v101, v101, v103")
            e(f"v_cvt_pk_bf16_f32 v{rx+p}, v100, v101")
        e(f"buffer_store_dwordx2 v[{rx}:{rx+1}], v9, s[12:15], 0 offen offset:{32*a_}")
    lab("fin_end")
    e("s_endpgm")
    kernel_desc("fin_kernel", ((EP + 30) + 7)//8*8, agpr=80)

hdr = open("cdna_kernels/%s.s.ref" % NAME).read().split("; Override launch")[0]
text = hdr
text += f"; @launch kernel=prep_kernel grid=({PREP_WGS + (128 if PORD else 0)},1,1) block=(256,1,1) lds={PREP_LDS}\n"
text += f"; @launch kernel=mid_kernel grid=({MID_WGS},1,1) block=(256,1,1) lds={MID_LDS}\n"
text += f"; @launch kernel=fin_kernel grid=({G2_WGS},1,1) block=(256,1,1) lds={FIN_LDS}\n"
text += '.amdgcn_target "amdgcn-amd-amdhsa--gfx950"\n'
gen_prep(); gen_mid(); gen_fin()
_o = []; _in = False
for _l in out:
    if _l.startswith("fin_kernel:"): _in = True
    if _l.strip().startswith("buffer_store") and not _in and "nosc" not in SKIP: _l += " sc1"
    _o.append(_l)
out = _o
text += "\n".join(out) + "\n"
dst = sys.argv[1] if len(sys.argv) > 1 else "cdna_kernels/%s.s" % NAME
open(dst, "w").write(text)
print("wrote", dst, len(text))
```

```python
import sys, os
SKIP = os.environ.get("SKIP", "").split(",")
ORDER = int(os.environ.get("ORDER", 0))
PRIO = int(os.environ.get("PRIO", 3))
W2MID = int(os.environ.get("W2MID", 0))
CONV2 = int(os.environ.get("CONV2", 1))
CV3 = int(os.environ.get("CV3", 1))
FEP = int(os.environ.get("FEP", 1))
PORD = int(os.environ.get("PORD", 0))
MISH2 = int(os.environ.get("MISH2", 2))
DLYC = int(os.environ.get("DLYC", 24))
G1MAP = int(os.environ.get("G1MAP", 1))
FMAP = int(os.environ.get("FMAP", 1))
DLYL = int(os.environ.get("DLYL", 16))
DLYW = int(os.environ.get("DLYW", 24))
EMU = int(os.environ.get("EMU", 0))
NAME = "parallel_sum__ssm_conv_s4d__dense_activation_mish__prompt"
L, D, N, F = 2048, 640, 128, 1728
WS_XNF = 0x0000000
WS_XNT = 0x0280000
WS_W1F = 0x0500000
WS_W2F = WS_W1F + 2160 * 1024
WS_KR = 0x0A00000
KR_STRIDE = 4224
WS_ACT = 0x0D00000
WS_AT = 0x1400000
WS_CNT = 0x1700000
WS_SIZE = 268435456
LOG2E = 0x3fb8aa3b
INV2PI = 0x3e22f983

out = []
def e(s):
    out.append("    " + s)
def lab(s):
    out.append(s + ":")
def cm(s):
    out.append("    ; " + s)

STAMP = os.environ.get("STAMP")
def stamp_init():
    if not STAMP: return
    e("s_load_dwordx2 s[84:85], s[0:1], 96")
    e("s_waitcnt lgkmcnt(0)")
    e("s_mov_b32 s80, s84"); e("s_and_b32 s81, s85, 0xffff"); e("s_mov_b32 s82, 256"); e("s_mov_b32 s83, 0x00020000")
def stamp(i):
    if not STAMP: return
    e("s_memtime s[86:87]")
    e("s_waitcnt lgkmcnt(0)")
    e(f"s_cmp_lg_u32 s2, {int(STAMP)}")
    e(f"s_cbranch_scc1 st_{stamp.n}")
    e(f"v_mov_b32 v255, s86")
    e(f"v_lshrrev_b32 v254, 6, v0")
    e(f"v_lshlrev_b32 v254, 6, v254")
    e(f"v_add_u32 v254, {4*i}, v254")
    e(f"buffer_store_dword v255, v254, s[80:83], 0 offen")
    lab(f"st_{stamp.n}")
    stamp.n += 1
stamp.n = 0


TL = os.environ.get("TL")
WS_TL = 0x1800000
def tl(i):
    if not TL: return
    e("s_memrealtime s[80:81]")
    e("s_waitcnt lgkmcnt(0)")
    e(f"s_mov_b32 s{84+i}, s80")
def tl_begin():
    if not TL: return
    e("s_mov_b32 s83, s2")
    for i in range(8): e(f"s_mov_b32 s{84+i}, 0")
    tl(0)
def tl_end(kern):
    if not TL: return
    tl(7)
    e("s_getreg_b32 s90, hwreg(HW_REG_HW_ID)")
    e("s_getreg_b32 s80, hwreg(HW_REG_XCC_ID)")
    e("s_and_b32 s90, s90, 0xffff")
    e("s_lshl_b32 s80, s80, 16")
    e("s_or_b32 s90, s90, s80")
    e("s_or_b32 s90, s90, 0x40000000")
    e("s_cmp_lg_u32 s3, 0")
    e(f"s_cbranch_scc1 tle_{tl_end.n}")
    e("s_lshl_b32 s83, s83, 5")
    e(f"s_add_u32 s83, s83, {WS_TL + kern*65536}")
    e("v_mov_b32 v1, 0")
    for i in range(8):
        e(f"v_mov_b32 v0, s{84+i}")
        e(f"buffer_store_dword v0, v1, s[28:31], s83 offen offset:{4*i}")
    lab(f"tle_{tl_end.n}")
    tl_end.n += 1
tl_end.n = 0

def srd(dst, ptr, size):
    e(f"s_mov_b32 s{dst}, s{ptr}")
    e(f"s_and_b32 s{dst+1}, s{ptr+1}, 0xffff")
    e(f"s_mov_b32 s{dst+2}, {size}")
    e(f"s_mov_b32 s{dst+3}, 0x00020000")

def kernel_begin(name):
    out.append(".text")
    out.append(f".globl {name}")
    out.append(".p2align 8")
    out.append(f".type {name},@function")
    lab(name)

def kernel_desc(name, vgpr, sgpr=96, agpr=0):
    if STAMP: vgpr = 256
    out.append('.section .rodata,"a"')
    out.append(".p2align 6")
    out.append(f".amdhsa_kernel {name}")
    out.append(f"  .amdhsa_next_free_vgpr {vgpr + agpr}")
    out.append(f"  .amdhsa_next_free_sgpr {sgpr}")
    out.append(f"  .amdhsa_accum_offset {(vgpr+3)//4*4}")
    out.append("  .amdhsa_group_segment_fixed_size 0")
    out.append("  .amdhsa_kernarg_size 112")
    out.append("  .amdhsa_user_sgpr_count 2")
    out.append("  .amdhsa_user_sgpr_kernarg_segment_ptr 1")
    out.append("  .amdhsa_system_sgpr_workgroup_id_x 1")
    out.append(".end_amdhsa_kernel")


def claim_tile(cnt_off, per, lds_off, lbl):
    e("s_cmp_lg_u32 s3, 0")
    e(f"s_cbranch_scc1 {lbl}_w")
    e("s_getreg_b32 s20, hwreg(HW_REG_XCC_ID)")
    e("s_and_b32 s20, s20, 7")
    e("s_mov_b32 s21, 0")
    e("s_mov_b64 s[22:23], exec")
    e("s_mov_b64 exec, 1")
    e("v_mov_b32 v12, 1")
    lab(f"{lbl}_l")
    e("s_lshl_b32 s24, s20, 6")
    e(f"s_add_u32 s24, s24, {WS_CNT + cnt_off}")
    e("v_mov_b32 v13, 0")
    e("v_mov_b32 v14, v12")
    e("buffer_atomic_add v14, v13, s[28:31], s24 offen sc0" + ("" if "asc" in SKIP else " sc1"))
    e("s_waitcnt vmcnt(0)")
    e("v_readfirstlane_b32 s25, v14")
    e(f"s_cmp_lt_u32 s25, {per}")
    e(f"s_cbranch_scc1 {lbl}_f")
    e("s_add_u32 s20, s20, 1")
    e("s_and_b32 s20, s20, 7")
    e("s_add_u32 s21, s21, 1")
    e("s_cmp_lt_u32 s21, 8")
    e(f"s_cbranch_scc1 {lbl}_l")
    e("s_mov_b32 s25, 0")
    lab(f"{lbl}_f")
    e(f"s_mul_i32 s20, s20, {per}")
    e("s_add_u32 s20, s20, s25")
    e("v_mov_b32 v14, s20")
    e(f"v_mov_b32 v13, {lds_off}")
    e("ds_write_b32 v13, v14")
    e("s_mov_b64 exec, s[22:23]")
    e("s_waitcnt lgkmcnt(0)")
    lab(f"{lbl}_w")
    e("s_barrier")
    e(f"v_mov_b32 v13, {lds_off}")
    e("ds_read_b32 v14, v13")
    e("s_waitcnt lgkmcnt(0)")
    e("v_readfirstlane_b32 s2, v14")

LN_WGS, WT_WGS, KG_WGS = 128, (68 if W2MID else 135), 640
PREP_WGS = KG_WGS + LN_WGS + WT_WGS
KG_LDS_WAVE = 512
KG_TAB0 = 2048
KG_TAB = 2688
KG_FIN = KG_TAB0 + 4*KG_TAB
PREP_LDS = 36864
LNS = 36

def gen_wt(wg0, wv0, wvend, endlab, kern, dly):
    if "wt" in SKIP: e("s_endpgm")
    if PRIO & 2: e("s_setprio 3")
    e("s_load_dwordx2 s[40:41], s[0:1], 64")
    e("s_load_dwordx2 s[42:43], s[0:1], 80")
    e("s_sub_u32 s4, s2, %d" % wg0)
    e("s_lshl_b32 s4, s4, 2")
    e("s_add_u32 s4, s4, s3")
    if wv0: e("s_add_u32 s4, s4, %d" % wv0)
    if wvend:
        e("s_cmp_ge_u32 s4, %d" % wvend)
        e("s_cbranch_scc1 %s" % endlab)
    e("s_waitcnt lgkmcnt(0)")
    e("s_cmp_ge_u32 s4, 270")
    e("s_cselect_b32 s40, s42, s40")
    e("s_cselect_b32 s41, s43, s41")
    e("s_mov_b32 s5, 3456")
    e("s_mov_b32 s7, 159072863")
    e("s_mov_b32 s34, %d" % WS_W1F)
    e("s_cselect_b32 s5, 1280, s5")
    e("s_cselect_b32 s6, 10, 27")
    e("s_cselect_b32 s7, 429496730, s7")
    e("s_cselect_b32 s32, 270, 0")
    e("s_cselect_b32 s33, 108, 40")
    e("s_cselect_b32 s34, %d, s34" % WS_W2F)
    srd(8, 40, D*F*2); srd(28, 56, WS_SIZE)
    e("s_sub_u32 s32, s4, s32")
    e("s_lshl_b32 s32, s32, 2")
    e("v_lshrrev_b32 v3, 3, v2")
    e("v_and_b32 v4, 7, v2")
    e("v_mul_lo_u32 v5, v3, s5")
    e("v_lshl_add_u32 v5, v4, 4, v5")
    e("s_lshl_b32 s35, s5, 3")
    e("s_mul_i32 s36, s3, %d" % (4*16*144))
    e("v_mul_u32_u24 v6, 144, v3")
    e("v_lshl_add_u32 v6, v4, 4, v6")
    e("v_add_u32 v6, s36, v6")
    e("v_and_b32 v7, 31, v2")
    e("v_lshrrev_b32 v8, 5, v2")
    e("v_mul_u32_u24 v8, %d, v8" % (8*144))
    e("v_lshl_add_u32 v8, v7, 1, v8")
    e("v_add_u32 v8, s36, v8")
    e("v_lshlrev_b32 v9, 4, v2")
    if dly: e(f"s_sleep {dly}")
    for q in range(4):
        e(f"s_add_u32 s37, s32, {q}")
        e("s_mul_hi_u32 s38, s37, s7")
        e("s_mul_i32 s39, s38, s6")
        e("s_sub_u32 s39, s37, s39")
        e(f"s_lshl_b32 s44, s38, 4")
        e(f"s_mul_i32 s44, s44, s5")
        e(f"s_lshl_b32 s45, s39, 7")
        e(f"s_add_u32 s44, s44, s45")
        e(f"buffer_load_dwordx4 v[{16+8*q}:{19+8*q}], v5, s[8:11], s44 offen")
        e(f"s_add_u32 s44, s44, s35")
        e(f"buffer_load_dwordx4 v[{20+8*q}:{23+8*q}], v5, s[8:11], s44 offen")
        e(f"s_lshl_b32 s45, s39, 1")
        e(f"s_mul_i32 s45, s45, s33")
        e(f"s_add_u32 s45, s45, s38")
        e(f"s_lshl_b32 s45, s45, 10")
        e(f"s_add_u32 s{48+q}, s45, s34")
    e("s_lshl_b32 s33, s33, 10")
    for q in range(4):
        e(f"s_waitcnt vmcnt({6-2*q})")
        e(f"ds_write_b128 v6, v[{16+8*q}:{19+8*q}] offset:{q*16*144}")
        e(f"ds_write_b128 v6, v[{20+8*q}:{23+8*q}] offset:{q*16*144 + 8*144}")
    tl(1)
    for q in range(4):
        e("s_waitcnt lgkmcnt(0)") if q == 0 else None
        for f in range(2):
            for el in range(8):
                e(f"ds_read_u16 v{48+16*(q&1)*2+16*f+el}, v8 offset:{q*16*144 + el*144 + 64*f}")
        if q > 0:
            pass
        e("s_waitcnt lgkmcnt(0)")
        for f in range(2):
            for j in range(4):
                r = 48 + 16*(q&1)*2 + 16*f
                e(f"v_lshl_or_b32 v{112+4*f+j}, v{r+2*j+1}, 16, v{r+2*j}")
            if f == 0:
                e(f"buffer_store_dwordx4 v[112:115], v9, s[28:31], s{48+q} offen")
            else:
                e(f"s_add_u32 s{48+q}, s{48+q}, s33")
                e(f"buffer_store_dwordx4 v[116:119], v9, s[28:31], s{48+q} offen")
        if q < 3:
            e("s_nop 1")
    tl(5)
    if TL: e("s_waitcnt vmcnt(0)")
    tl_end(kern)

def gen_prep():
    kernel_begin("prep_kernel")
    if EMU & 2:
        e("s_cmp_lt_u32 s2, 256")
        e("s_cbranch_scc1 mid_body")
        e("s_sub_u32 s2, s2, 256")
    if PORD:
        e("s_lshr_b32 s4, s2, 7")
        e("s_cmp_eq_u32 s4, 6")
        e("s_cbranch_scc1 prep_end")
        e("s_cmp_gt_u32 s4, 6")
        e("s_cselect_b32 s4, 128, 0")
        e("s_sub_u32 s2, s2, s4")
    e("s_cmp_ge_u32 s2, %d" % PREP_WGS)
    e("s_cbranch_scc1 prep_end")
    e("s_load_dwordx2 s[56:57], s[0:1], 104")
    e("v_lshrrev_b32 v1, 6, v0")
    e("v_and_b32 v2, 63, v0")
    e("s_nop 0")
    e("v_readfirstlane_b32 s3, v1")
    if ORDER:
        e("s_add_u32 s2, s2, %d" % KG_WGS)
        e("s_cmp_ge_u32 s2, %d" % PREP_WGS)
        e("s_cselect_b32 s4, %d, 0" % PREP_WGS)
        e("s_sub_u32 s2, s2, s4")
    tl_begin()
    e("s_cmp_ge_u32 s2, %d" % (KG_WGS + LN_WGS))
    e("s_cbranch_scc1 prep_wt")
    e("s_cmp_ge_u32 s2, %d" % KG_WGS)
    e("s_cbranch_scc1 prep_ln")
    if "kg" in SKIP: e("s_endpgm")
    e("s_load_dwordx4 s[40:43], s[0:1], 8")
    e("s_load_dwordx4 s[44:47], s[0:1], 24")
    e("s_load_dwordx2 s[48:49], s[0:1], 40")
    e("s_mov_b32 s4, s2")
    e("s_mul_i32 s5, s3, %d" % KG_LDS_WAVE)
    e("s_lshl_b32 s6, s4, 8")
    e("s_lshl_b32 s7, s3, 6")
    e("s_add_u32 s6, s6, s7")
    e("v_and_b32 v3, 31, v2")
    e("v_lshl_add_u32 v3, v3, 1, s6")
    e("s_lshl_b32 s7, s4, 1")
    e("v_mov_b32 v4, s7")
    e("s_waitcnt lgkmcnt(0)")
    srd(8, 40, D*N*2); srd(12, 42, D*N*2); srd(16, 44, D*N*2); srd(20, 46, D*N*2)
    srd(24, 48, D*2); srd(28, 56, WS_SIZE)
    for k, sr in enumerate((8, 12, 16, 20)):
        e(f"buffer_load_ushort v{10+k}, v3, s[{sr}:{sr+3}], 0 offen")
    e("buffer_load_ushort v18, v4, s[24:27], 0 offen")
    e("v_and_b32 v8, 15, v2")
    e("v_lshrrev_b32 v9, 4, v2")
    e("v_and_b32 v24, 7, v8")
    e("v_lshrrev_b32 v25, 3, v8")
    e("v_lshl_add_u32 v28, v25, 7, v24")
    e("v_and_b32 v24, 3, v8")
    e("v_lshlrev_b32 v24, 1, v24")
    e("v_bfe_u32 v25, v8, 2, 1")
    e("v_lshl_add_u32 v24, v25, 7, v24")
    e("v_add_u32 v24, 256, v24")
    e("v_and_b32 v25, 1, v8")
    e("v_lshlrev_b32 v25, 2, v25")
    e("v_bfe_u32 v26, v8, 1, 2")
    e("v_lshl_add_u32 v25, v26, 7, v25")
    e("v_add_u32 v25, 512, v25")
    e("v_cmp_gt_u32 vcc, 8, v8")
    e("s_nop 1")
    e("v_cndmask_b32 v29, v25, v24, vcc")
    e("v_lshlrev_b32 v30, 7, v8")
    e("v_add_u32 v30, 0x400, v30")
    e("v_lshlrev_b32 v31, 3, v8")
    for t in range(4):
        e(f"v_cvt_f32_u32 v{28+t}, v{28+t}")
    e("s_mul_i32 s6, s3, %d" % KG_TAB)
    e("s_add_u32 s6, s6, %d" % KG_TAB0)
    e("v_and_b32 v24, 1, v9")
    e("v_lshrrev_b32 v25, 1, v9")
    e("v_lshl_add_u32 v33, v8, 5, s6")
    e("v_lshl_add_u32 v33, v24, 4, v33")
    e("v_lshl_add_u32 v33, v25, 9, v33")
    e("v_lshlrev_b32 v24, 4, v8")
    e("v_lshlrev_b32 v25, 3, v8")
    e("v_cmp_gt_u32 vcc, 2, v9")
    e("s_nop 1")
    e("v_cndmask_b32 v24, v25, v24, vcc")
    e("v_lshl_add_u32 v24, v9, 8, v24")
    e("v_add_u32 v24, s6, v24")
    e("v_add_u32 v34, 1024, v24")
    e("v_mov_b32 v25, 128")
    e("v_cndmask_b32_e64 v24, v25, 8, vcc")
    e("v_add_u32 v36, v34, v24")
    e("v_lshl_add_u32 v38, v8, 2, s6")
    e("v_lshl_add_u32 v38, v9, 8, v38")
    e("v_add_u32 v38, 2048, v38")
    e("v_lshl_add_u32 v39, v9, 4, s5")
    for r in range(40, 52):
        e(f"v_mov_b32 v{r}, 0")
    e("s_waitcnt vmcnt(0)")
    tl(1)
    for r in (10, 11, 12, 13, 18):
        e(f"v_lshlrev_b32 v{r}, 16, v{r}")
    e(f"v_mul_f32 v18, {LOG2E:#x}, v18")
    e(f"v_mul_f32 v10, {LOG2E:#x}, v10")
    e("v_exp_f32 v18, v18")
    e("v_exp_f32 v10, v10")
    e("s_nop 0")
    e("v_cvt_pk_bf16_f32 v18, v18, v18")
    e("v_cvt_pk_bf16_f32 v10, v10, v10")
    e("v_lshlrev_b32 v18, 16, v18")
    e("v_lshlrev_b32 v10, 16, v10")
    e("v_add_f32 v19, v18, v18")
    e("v_and_b32 v5, 31, v2")
    e("v_lshl_add_u32 v5, v5, 4, s5")
    e("v_mul_f32 v20, v10, v18")
    e(f"v_mul_f32 v20, {LOG2E|0x80000000:#x}, v20")
    e("v_mul_f32 v21, v11, v18")
    e(f"v_mul_f32 v21, {INV2PI:#x}, v21")
    e("v_mul_f32 v22, v12, v19")
    e("v_mul_f32 v23, v13, v19")
    e("ds_write_b128 v5, v[20:23]")
    e("s_waitcnt lgkmcnt(0)")
    for st in range(8):
        e(f"ds_read_b128 v[{96+4*st}:{99+4*st}], v39 offset:{64*st}")
    e("s_waitcnt lgkmcnt(0)")
    def kg_valu(st):
        P = 96 + 4*st
        O = 72 + 10*(st & 1)
        v = []
        for t in range(4):
            v.append(f"v_mul_f32 v{52+t}, v{P}, v{28+t}")
            v.append(f"v_mul_f32 v{56+t}, v{P+1}, v{28+t}")
        for t in range(4):
            v.append(f"v_exp_f32 v{52+t}, v{52+t}")
            v.append(f"v_fract_f32 v{56+t}, v{56+t}")
        for t in range(4):
            v.append(f"v_cos_f32 v{60+t}, v{56+t}")
            v.append(f"v_sin_f32 v{64+t}, v{56+t}")
        for t in range(4):
            v.append(f"v_mul_f32 v{60+t}, v{52+t}, v{60+t}")
            v.append(f"v_mul_f32 v{64+t}, v{52+t}, v{64+t}")
        v.append(f"v_mul_f32 v55, v63, v{P+2}")
        v.append(f"v_mul_f32_e64 v59, -v63, v{P+3}")
        v.append(f"v_fma_f32 v55, -v67, v{P+3}, v55")
        v.append(f"v_fma_f32 v59, -v67, v{P+2}, v59")
        def split(xr, xi, H, Lo, t0, t1):
            v.append(f"v_cvt_pk_bf16_f32 v{H}, v{xr}, v{xi}")
            v.append(f"v_lshlrev_b32 v{t0}, 16, v{H}")
            v.append(f"v_and_b32 v{t1}, 0xffff0000, v{H}")
            v.append(f"v_sub_f32 v{t0}, v{xr}, v{t0}")
            v.append(f"v_sub_f32 v{t1}, v{xi}, v{t1}")
            v.append(f"v_cvt_pk_bf16_f32 v{Lo}, v{t0}, v{t1}")
        split(55, 59, O, O+2, 68, 69)
        v.append(f"v_mov_b32 v{O+1}, v{O}")
        v.append(f"v_mov_b32 v{O+3}, v{O+2}")
        for t in range(3):
            split(60+t, 64+t, O+4+2*t, O+5+2*t, 52+t, 56+t)
        return v
    def kg_mfma(st):
        O = 72 + 10*(st & 1)
        m = []
        for h in range(2):
            for t in range(3):
                a = 40 + 4*t
                m.append(f"v_mfma_f32_16x16x16_bf16 v[{a}:{a+3}], v[{O+4+2*t}:{O+5+2*t}], v[{O+2*h}:{O+2*h+1}], v[{a}:{a+3}]")
        return m
    for st in range(9):
        v = kg_valu(st) if st < 8 else []
        m = kg_mfma(st-1) if st > 0 else []
        if "kgm" in SKIP: m = []
        if "kgv" in SKIP: v = []
        if not v:
            e("s_nop 1")
        vi = 0
        for mi, mm_ in enumerate(m):
            tgt = 2 + 7*mi
            while vi < min(tgt, len(v)):
                e(v[vi]); vi += 1
            e(mm_)
        while vi < len(v):
            e(v[vi]); vi += 1
    e("s_nop 15")
    tl(2)
    for r in range(4):
        e(f"ds_write_b32 v33, v{40+r} offset:{4*r}")
    e("ds_write_b32 v34, v44")
    e("ds_write_b32 v34, v45 offset:4")
    e("ds_write_b32 v36, v46")
    e("ds_write_b32 v36, v47 offset:4")
    e("s_mov_b32 exec_hi, 0xffff")
    e("ds_write_b32 v38, v48")
    e("s_mov_b32 exec_hi, 0")
    for r in range(1, 4):
        e(f"ds_write_b32 v38, v{48+r} offset:{64*r}")
    e("s_mov_b32 exec_hi, -1")
    e("s_mul_i32 s4, s4, %d" % KR_STRIDE)
    e("s_add_u32 s4, s4, %d" % WS_KR)
    e("v_lshlrev_b32 v39, 4, v0")
    e("v_lshlrev_b32 v64, 3, v0")
    e("v_sub_u32 v64, 2047, v64")
    e("v_lshlrev_b32 v65, 2, v0")
    e("v_lshlrev_b32 v66, 1, v0")
    for k in range(8):
        e(f"v_subrev_u32 v{52+k}, {k}, v64")
        e(f"v_cvt_f32_u32 v{72+k}, v{52+k}")
    for k in range(4):
        e(f"v_cvt_pk_bf16_f32 v{80+k}, v{72+2*k}, v{73+2*k}")
        e(f"v_and_b32 v{72+2*k}, 0xffff, v{80+k}")
        e(f"v_lshrrev_b32 v{73+2*k}, 16, v{80+k}")
    for k in range(8):
        e(f"v_subrev_u32 v{72+k}, 17024, v{72+k}")
        e(f"v_cmp_gt_u32 vcc, 256, v{52+k}")
        e("s_nop 1")
        e(f"v_cndmask_b32 v{52+k}, v{72+k}, v{52+k}, vcc")
        e(f"v_lshlrev_b32 v{52+k}, 1, v{52+k}")
    e("s_waitcnt lgkmcnt(0)")
    e("s_barrier")
    tl(3)
    for m in range(3):
        for ww in range(4):
            e(f"ds_read_b32 v{72+4*m+ww}, v65 offset:{KG_TAB0 + ww*KG_TAB + 1024*m}")
    for m in range(3):
        e(f"s_waitcnt lgkmcnt({8-4*m})")
        e(f"v_add_f32 v{72+4*m}, v{72+4*m}, v{73+4*m}")
        e(f"v_add_f32 v{74+4*m}, v{74+4*m}, v{75+4*m}")
        e(f"v_add_f32 v{72+4*m}, v{72+4*m}, v{74+4*m}")
        e(f"v_cvt_pk_bf16_f32 v{72+4*m}, v{72+4*m}, v{72+4*m}")
        e(f"ds_write_b16 v66, v{72+4*m} offset:{KG_FIN + 512*m}")
    e("s_waitcnt lgkmcnt(0)")
    e("s_barrier")
    tl(4)
    for k in range(8):
        e(f"ds_read_u16 v{96+k}, v{52+k} offset:{KG_FIN}")
    e("s_waitcnt lgkmcnt(0)")
    for k in range(4):
        e(f"v_lshl_or_b32 v{112+k}, v{97+2*k}, 16, v{96+2*k}")
    e(f"buffer_store_dwordx4 v[112:115], v39, s[28:31], s4 offen")
    for k in range(4):
        e(f"v_mov_b32 v{116+k}, 0")
    e("v_cmp_gt_u32 vcc, 8, v0")
    e("s_and_saveexec_b64 s[32:33], vcc")
    e("s_cbranch_execz prep_end")
    e("s_add_u32 s4, s4, 4096")
    e("buffer_store_dwordx4 v[116:119], v39, s[28:31], s4 offen")
    e("v_lshlrev_b32 v39, 6, v0")
    tl(5)
    if TL: e("s_waitcnt vmcnt(0)")
    tl_end(0)
    e("s_cmp_lg_u32 s2, 0")
    e("s_cbranch_scc1 prep_end")
    e("s_mov_b32 s4, %d" % WS_CNT)
    e("buffer_store_dword v116, v39, s[28:31], s4 offen")
    e("buffer_store_dword v116, v39, s[28:31], s4 offen offset:512")
    e("s_endpgm")
    lab("prep_ln")
    if "ln" in SKIP: e("s_endpgm")
    if PRIO & 1: e("s_setprio 3")
    e("s_load_dwordx2 s[40:41], s[0:1], 0")
    e("s_sub_u32 s2, s2, %d" % KG_WGS)
    e("v_and_b32 v3, 15, v0")
    e("v_lshrrev_b32 v4, 4, v0")
    e("s_lshl_b32 s5, s2, 4")
    e("v_add_u32 v5, s5, v4")
    e("v_mul_u32_u24 v6, 1280, v5")
    e("v_lshl_add_u32 v6, v3, 4, v6")
    e("s_waitcnt lgkmcnt(0)")
    srd(8, 40, L*D*2); srd(28, 56, WS_SIZE)
    if DLYL: e(f"s_sleep {DLYL}")
    for j in range(5):
        e(f"buffer_load_dwordx4 v[{16+4*j}:{19+4*j}], v6, s[8:11], 0 offen offset:{256*j}")
    e("s_lshr_b32 s6, s2, 1")
    e("s_mul_i32 s6, s6, %d" % (40*1024))
    e("s_add_u32 s6, s6, %d" % WS_XNF)
    e("v_lshrrev_b32 v7, 1, v3")
    e("v_lshlrev_b32 v7, 10, v7")
    e("v_and_b32 v8, 1, v3")
    e("v_lshl_add_u32 v7, v8, 9, v7")
    e("v_and_b32 v8, 31, v5")
    e("v_lshl_add_u32 v7, v8, 4, v7")
    e(f"v_mul_u32_u24 v9, {8*LNS}, v3")
    e("v_lshl_add_u32 v9, v4, 1, v9")
    e("s_waitcnt vmcnt(0)")
    tl(1)
    for k in range(20):
        e(f"v_lshlrev_b32 v{40+2*k}, 16, v{16+k}")
        e(f"v_and_b32 v{41+2*k}, 0xffff0000, v{16+k}")
    def lane_sum(srcs, acc):
        for a in range(4):
            e(f"v_add_f32 v{acc+a}, v{srcs[a]}, v{srcs[a+4]}")
        for k in range(8, len(srcs)):
            e(f"v_add_f32 v{acc+(k%4)}, v{acc+(k%4)}, v{srcs[k]}")
        e(f"v_add_f32 v{acc}, v{acc}, v{acc+1}")
        e(f"v_add_f32 v{acc+2}, v{acc+2}, v{acc+3}")
        e(f"v_add_f32 v{acc}, v{acc}, v{acc+2}")
        for sh in (8, 4, 2, 1):
            e("s_nop 1")
            e(f"v_add_f32_dpp v{acc}, v{acc}, v{acc} row_ror:{sh} row_mask:0xf bank_mask:0xf")
    lane_sum(list(range(40, 80)), 10)
    e("v_mul_f32 v14, 0x3acccccd, v10")
    for k in range(40):
        e(f"v_sub_f32 v{80+k}, v{40+k}, v14")
        e(f"v_mul_f32 v{80+k}, v{80+k}, v{80+k}")
    lane_sum(list(range(80, 120)), 10)
    e("v_mul_f32 v10, 0x3acccccd, v10")
    e("v_cvt_pk_bf16_f32 v10, v10, v14")
    e("v_and_b32 v14, 0xffff0000, v10")
    e("v_lshlrev_b32 v10, 16, v10")
    e("v_add_f32 v10, 0x3727c5ac, v10")
    e("v_cvt_pk_bf16_f32 v10, v10, v10")
    e("v_lshlrev_b32 v10, 16, v10")
    e("v_sqrt_f32 v10, v10")
    e("s_nop 0")
    e("v_cvt_pk_bf16_f32 v10, v10, v10")
    e("v_lshlrev_b32 v10, 16, v10")
    e("v_rcp_f32 v11, v10")
    e("s_nop 0")
    e("v_fma_f32 v12, -v10, v11, 2.0")
    e("v_mul_f32 v11, v11, v12")
    for k in range(20):
        e(f"v_sub_f32 v{40+2*k}, v{40+2*k}, v14")
        e(f"v_sub_f32 v{41+2*k}, v{41+2*k}, v14")
        e(f"v_cvt_pk_bf16_f32 v{16+k}, v{40+2*k}, v{41+2*k}")
        e(f"v_lshlrev_b32 v{40+2*k}, 16, v{16+k}")
        e(f"v_and_b32 v{41+2*k}, 0xffff0000, v{16+k}")
        e(f"v_mul_f32 v{40+2*k}, v{40+2*k}, v11")
        e(f"v_mul_f32 v{41+2*k}, v{41+2*k}, v11")
        e(f"v_cvt_pk_bf16_f32 v{16+k}, v{40+2*k}, v{41+2*k}")
    tl(2)
    for j in range(5):
        if "xnf" not in SKIP: e(f"buffer_store_dwordx4 v[{16+4*j}:{19+4*j}], v7, s[28:31], s6 offen")
        if j < 4: e("s_add_u32 s6, s6, 8192")
    for j in range(5):
        for el in range(8):
            r = 16 + 4*j + el//2
            op = "ds_write_b16_d16_hi" if el & 1 else "ds_write_b16"
            e(f"{op} v9, v{r} offset:{(128*j + el)*LNS}")
    e("v_lshrrev_b32 v10, 1, v0")
    e("v_and_b32 v11, 1, v0")
    e(f"v_mul_u32_u24 v12, {LNS}, v10")
    e("v_lshl_add_u32 v12, v11, 4, v12")
    e("v_lshlrev_b32 v13, 4, v0")
    e("s_mul_i32 s6, s2, 20480")
    e("s_add_u32 s6, s6, %d" % WS_XNT)
    e("s_waitcnt lgkmcnt(0)")
    e("s_barrier")
    tl(3)
    for j in range(5):
        e(f"ds_read2_b32 v[{40+4*j}:{41+4*j}], v12 offset0:{(128*j*LNS)//4 % 256} offset1:{(128*j*LNS)//4 % 256 + 1}")
        e(f"ds_read2_b32 v[{42+4*j}:{43+4*j}], v12 offset0:{(128*j*LNS)//4 % 256 + 2} offset1:{(128*j*LNS)//4 % 256 + 3}")
        if j < 4:
            nxt = (128*(j+1)*LNS)//4 // 256 - (128*j*LNS)//4 // 256
            e(f"v_add_u32 v12, {nxt*1024}, v12")
    for j in range(5):
        e(f"s_waitcnt lgkmcnt({2*(4-j)})")
        if "xnt" not in SKIP: e(f"buffer_store_dwordx4 v[{40+4*j}:{43+4*j}], v13, s[28:31], s6 offen")
        if j < 4: e("s_add_u32 s6, s6, %d" % (128*32))
    tl(5)
    if TL: e("s_waitcnt vmcnt(0)")
    tl_end(0)
    e("s_endpgm")
    lab("prep_wt")
    gen_wt(KG_WGS + LN_WGS, 0, 270 if W2MID else 0, "prep_end", 0, DLYW)
    lab("prep_end")
    e("s_endpgm")
    kernel_desc("prep_kernel", 160 if EMU & 4 else 128)

G1_WGS = 256
CV_WGS = 640
W2_WGS = 68 if W2MID else 0
MID_WGS = G1_WGS + CV_WGS + W2_WGS
CS = 4160
def CB(c): return c*CS + (32 if c >= 4 else 0)
UB = CB(7) + CS - 80
G1_NS, G1_BD = int(os.environ.get('G1NS', 5)), int(os.environ.get('G1BD', 4))
MID_LDS = 40960

def mish_pairs(acc0, acc1, b0, b1r, dst, t):
    e(f"v_cvt_pk_bf16_f32 v{t}, v{acc0}, v{acc1}")
    e(f"v_lshlrev_b32 v{t+1}, 16, v{t}")
    e(f"v_and_b32 v{t+2}, 0xffff0000, v{t}")
    e(f"v_add_f32 v{t+1}, v{t+1}, v{b0}")
    e(f"v_add_f32 v{t+2}, v{t+2}, v{b1r}")
    e(f"v_cvt_pk_bf16_f32 v{t}, v{t+1}, v{t+2}")
    e(f"v_lshlrev_b32 v{t+1}, 16, v{t}")
    e(f"v_and_b32 v{t+2}, 0xffff0000, v{t}")
    if MISH2:
        e(f"v_mul_f32 v{t+3}, {LOG2E:#x}, v{t+1}")
        e(f"v_mul_f32 v{t+4}, {LOG2E:#x}, v{t+2}")
        e(f"v_exp_f32 v{t+3}, v{t+3}")
        e(f"v_exp_f32 v{t+4}, v{t+4}")
        e(f"s_nop 0")
        e(f"v_add_f32 v{t+3}, 1.0, v{t+3}")
        e(f"v_add_f32 v{t+4}, 1.0, v{t+4}")
        e(f"v_fmaak_f32 v{t+3}, v{t+3}, v{t+3}, 0x3f800000")
        e(f"v_fmaak_f32 v{t+4}, v{t+4}, v{t+4}, 0x3f800000")
        e(f"v_rcp_f32 v{t+3}, v{t+3}")
        e(f"v_rcp_f32 v{t+4}, v{t+4}")
        e(f"s_nop 0")
        e(f"v_fmaak_f32 v{t+3}, -2.0, v{t+3}, 0x3f800000")
        e(f"v_fmaak_f32 v{t+4}, -2.0, v{t+4}, 0x3f800000")
        e(f"v_mul_f32 v{t+1}, v{t+1}, v{t+3}")
        e(f"v_mul_f32 v{t+2}, v{t+2}, v{t+4}")
    else:
        e(f"v_min_f32 v{t+3}, 0x41a00000, v{t+1}")
        e(f"v_min_f32 v{t+4}, 0x41a00000, v{t+2}")
        e(f"v_mul_f32 v{t+3}, {LOG2E:#x}, v{t+3}")
        e(f"v_mul_f32 v{t+4}, {LOG2E:#x}, v{t+4}")
        e(f"v_exp_f32 v{t+3}, v{t+3}")
        e(f"v_exp_f32 v{t+4}, v{t+4}")
        e(f"s_nop 0")
        e(f"v_add_f32 v{t}, 2.0, v{t+3}")
        e(f"v_add_f32 v{t+5}, 2.0, v{t+4}")
        e(f"v_mul_f32 v{t+3}, v{t+3}, v{t}")
        e(f"v_mul_f32 v{t+4}, v{t+4}, v{t+5}")
        e(f"v_add_f32 v{t}, 2.0, v{t+3}")
        e(f"v_add_f32 v{t+5}, 2.0, v{t+4}")
        e(f"v_rcp_f32 v{t}, v{t}")
        e(f"v_rcp_f32 v{t+5}, v{t+5}")
        e(f"v_mul_f32 v{t+1}, v{t+1}, v{t+3}")
        e(f"v_mul_f32 v{t+2}, v{t+2}, v{t+4}")
        e(f"v_mul_f32 v{t+1}, v{t+1}, v{t}")
        e(f"v_mul_f32 v{t+2}, v{t+2}, v{t+5}")
    e(f"v_cvt_pk_bf16_f32 v{dst}, v{t+1}, v{t+2}")

def mish_quad(ac, T, dst):
    H = [T+4, T+8]; E = [T+6, T+10]; P = [T+12, T+13]
    pr = lambda r: f"v[{r}:{r+1}]"
    for q in range(2): e(f"v_cvt_pk_bf16_f32 v{P[q]}, v{ac+2*q}, v{ac+2*q+1}")
    for q in range(2):
        e(f"v_lshlrev_b32 v{H[q]}, 16, v{P[q]}")
        e(f"v_and_b32 v{H[q]+1}, 0xffff0000, v{P[q]}")
    for q in range(2): e(f"v_pk_add_f32 {pr(H[q])}, {pr(H[q])}, {pr(T+2*q)}")
    for q in range(2): e(f"v_cvt_pk_bf16_f32 v{P[q]}, v{H[q]}, v{H[q]+1}")
    for q in range(2):
        e(f"v_lshlrev_b32 v{H[q]}, 16, v{P[q]}")
        e(f"v_and_b32 v{H[q]+1}, 0xffff0000, v{P[q]}")
    for q in range(2): e(f"v_pk_mul_f32 {pr(E[q])}, {pr(H[q])}, s[46:47]")
    for q in range(2):
        e(f"v_exp_f32 v{E[q]}, v{E[q]}")
        e(f"v_exp_f32 v{E[q]+1}, v{E[q]+1}")
    for q in range(2): e(f"v_pk_add_f32 {pr(E[q])}, {pr(E[q])}, v[40:41]")
    for q in range(2): e(f"v_pk_fma_f32 {pr(E[q])}, {pr(E[q])}, {pr(E[q])}, v[40:41]")
    for q in range(2):
        e(f"v_rcp_f32 v{E[q]}, v{E[q]}")
        e(f"v_rcp_f32 v{E[q]+1}, v{E[q]+1}")
    for q in range(2): e(f"v_pk_fma_f32 {pr(E[q])}, {pr(E[q])}, v[42:43], v[40:41]")
    for q in range(2): e(f"v_pk_mul_f32 {pr(H[q])}, {pr(H[q])}, {pr(E[q])}")
    for q in range(2): e(f"v_cvt_pk_bf16_f32 v{dst+q}, v{H[q]}, v{H[q]+1}")

def gemm_loop(nA, nsteps, KS, NS, frag_reg, acc_reg, voff, srdws, sA0, sB0, stride, spiece, vlds_r_b, vlds_r_lane):
    nR = nA + 4
    npieces = nR * KS
    npw = (npieces + 3) // 4
    SZ = npieces * 1024
    nchunks = nsteps // KS
    assert nsteps % KS == 0
    e(f"s_sub_u32 s{sB0}, s{sB0}, {nA*stride}")
    for i in range(npw):
        g, l = spiece + 2*i, spiece + 2*i + 1
        e(f"s_add_u32 s{l}, s3, {4*i}")
        e(f"s_min_u32 s{l}, s{l}, {npieces-1}")
        sh = {1: 0, 2: 1, 4: 2}[KS]
        e(f"s_lshr_b32 s{g}, s{l}, {sh}")
        e(f"s_cmp_lt_u32 s{g}, {nA}")
        e(f"s_cselect_b32 s6, s{sA0}, s{sB0}")
        e(f"s_mul_i32 s{g}, s{g}, {stride}")
        e(f"s_add_u32 s{g}, s{g}, s6")
        e(f"s_and_b32 s6, s{l}, {KS-1}")
        e(f"s_lshl_b32 s6, s6, 10")
        e(f"s_add_u32 s{g}, s{g}, s6")
        e(f"s_lshl_b32 s{l}, s{l}, 10")
    def dma(c):
        slot = c % NS
        for i in range(npw):
            e(f"s_add_u32 m0, s{spiece+2*i+1}, {slot*SZ}")
            e("s_nop 0")
            e(f"buffer_load_dwordx4 v{voff}, s[{srdws}:{srdws+3}], s{spiece+2*i} offen lds")
        e(f"v_add_u32 v{voff}, {KS*1024}, v{voff}")
    per = nA + 1
    HALF = 2*SZ
    e(f"v_add_u32 v12, {HALF}, v{vlds_r_b}")
    e(f"v_add_u32 v13, {HALF}, v{vlds_r_lane}")
    e(f"v_add_u32 v14, {2*HALF}, v{vlds_r_b}")
    e(f"v_add_u32 v15, {2*HALF}, v{vlds_r_lane}")
    def reads(slot, q):
        fr = frag_reg + 4*per*q
        vb, vl, so = [(vlds_r_b, vlds_r_lane, slot*SZ), (12, 13, slot*SZ - HALF), (14, 15, slot*SZ - 2*HALF)][slot//2]
        e(f"ds_read_b128 v[{fr}:{fr+3}], v{vb} offset:{so + q*1024}")
        for a in range(nA):
            e(f"ds_read_b128 v[{fr+4+4*a}:{fr+7+4*a}], v{vl} offset:{so + a*KS*1024 + q*1024}")
    def mfmas(q):
        fr = frag_reg + 4*per*q
        for a in range(nA):
            ac = acc_reg + 16*a
            e(f"v_mfma_f32_32x32x16_bf16 v[{ac}:{ac+15}], v[{fr+4+4*a}:{fr+7+4*a}], v[{fr}:{fr+3}], v[{ac}:{ac+15}]")
    for c in range(min(NS-1, nchunks)):
        dma(c)
    for c in range(nchunks):
        inflight = min(NS-2, nchunks-1-c)
        e(f"s_waitcnt vmcnt({inflight*npw})")
        e("s_barrier")
        if nA == 2 and c == 0: stamp(2)
        if nA == 2 and c == 1: stamp(3)
        slot = c % NS
        if "rd" not in SKIP:
            for q in range(KS):
                reads(slot, q)
        if c + NS - 1 < nchunks and "dma" not in SKIP:
            dma(c + NS - 1)
        for q in range(KS):
            e(f"s_waitcnt lgkmcnt({(KS-1-q)*per})")
            if "mf" not in SKIP: mfmas(q)


UB2 = CB(7) + CS
HS = 2432
def gen_conv2():
    if "cv" in SKIP: e("s_endpgm")
    if PRIO & 8: e("s_setprio 3")
    srd(8, 60, D*2)
    e("s_sub_u32 s4, s2, %d" % G1_WGS)
    e("s_and_b32 s5, s4, 7")
    e("s_lshl_b32 s5, s5, 2")
    e("s_bfe_u32 s6, s4, 0x20003")
    e("s_or_b32 s5, s5, s6")
    e("s_andn2_b32 s4, s4, 31")
    e("s_or_b32 s4, s4, s5")
    e("s_lshl_b32 s5, s4, 1")
    e("v_mov_b32 v3, s5")
    if DLYC: e(f"s_sleep {DLYC}")
    e("buffer_load_ushort v1, v3, s[8:11], 0 offen")
    e("s_lshl_b32 s5, s4, 5")
    e("s_add_u32 s5, s5, %d" % WS_XNT)
    e("v_lshrrev_b32 v4, 1, v0")
    e("v_mul_u32_u24 v4, 20480, v4")
    e("v_and_b32 v5, 1, v0")
    e("v_lshl_add_u32 v4, v5, 4, v4")
    e("buffer_load_dwordx4 v[8:11], v4, s[28:31], s5 offen")
    e("v_lshlrev_b32 v4, 4, v0")
    e("s_mul_i32 s6, s4, %d" % KR_STRIDE)
    e("s_add_u32 s6, s6, %d" % WS_KR)
    e("buffer_load_dwordx4 v[12:15], v4, s[28:31], s6 offen")
    e("buffer_load_dwordx4 v[16:19], v4, s[28:31], s6 offen offset:16")
    if not CV3:
        e("v_min_u32 v5, 3, v0")
        e("v_lshlrev_b32 v5, 4, v5")
        e("v_add_u32 v5, 4096, v5")
        e("buffer_load_dwordx4 v[20:23], v5, s[28:31], s6 offen")
        e("buffer_load_dwordx4 v[24:27], v5, s[28:31], s6 offen offset:16")
    for k in range(4):
        e(f"v_mov_b32 v{28+k}, 0")
    e("v_min_u32 v6, 31, v0")
    e("v_lshrrev_b32 v7, 4, v6")
    e("v_and_b32 v6, 15, v6")
    e("v_lshlrev_b32 v6, 4, v6")
    e(f"v_mad_u32_u24 v6, v7, {HS}, v6") if False else (e(f"v_mul_u32_u24 v7, {HS}, v7"), e("v_add_u32 v6, v6, v7"))
    if CV3:
        e("s_cmp_lg_u32 s3, 0")
        e("s_cbranch_scc1 cv_nz")
        e(f"v_add_u32 v6, {UB2}, v6")
        e("v_subrev_u32 v7, 32, v0")
        e("v_min_u32 v7, 7, v7")
        e("v_lshrrev_b32 v5, 2, v7")
        e(f"v_mul_u32_u24 v7, {CS}, v7")
        e("v_lshl_add_u32 v7, v5, 5, v7")
        e("v_add_u32 v7, 4096, v7")
        e("v_cmp_gt_u32 vcc, 32, v0")
        e("s_nop 1")
        e("v_cndmask_b32 v6, v7, v6, vcc")
        e("s_mov_b32 exec_hi, 0xff")
        e("ds_write_b128 v6, v[28:31]")
        e("s_mov_b32 exec_hi, -1")
        lab("cv_nz")
    else:
        e(f"ds_write_b128 v6, v[28:31] offset:{UB2}")
    e("v_lshrrev_b32 v6, 1, v0")
    e("v_lshlrev_b32 v6, 4, v6")
    e("v_and_b32 v7, 1, v0")
    e(f"v_mul_u32_u24 v7, {HS}, v7")
    e("v_add_u32 v6, v6, v7")
    e("s_waitcnt vmcnt(%d)" % (2 if CV3 else 4))
    e(f"ds_write_b128 v6, v[8:11] offset:{UB2 + 256}")
    def copies(w, vaddr):
        for c in range(8):
            if c % 2 == 0:
                e(f"ds_write_b128 v{vaddr}, v[{w+c//2}:{w+c//2+3}] offset:{CB(c)}") if (w + c//2) % 2 == 0 else None
                if (w + c//2) % 2:
                    for j in range(4):
                        e(f"v_mov_b32 v{32+j}, v{w+c//2+j}")
                    e(f"ds_write_b128 v{vaddr}, v[32:35] offset:{CB(c)}")
            else:
                for j in range(4):
                    e(f"v_alignbit_b32 v{36+j}, v{w+(c+1)//2+j}, v{w+(c-1)//2+j}, 16")
                e(f"ds_write_b128 v{vaddr}, v[36:39] offset:{CB(c)}")
    e("s_waitcnt vmcnt(%d)" % (0 if CV3 else 2))
    tl(1)
    copies(12, 4)
    if not CV3:
        e("s_waitcnt vmcnt(0)")
        copies(20, 5)
    e("v_and_b32 v3, 15, v2")
    e("v_lshrrev_b32 v4, 4, v2")
    e("v_sub_u32 v5, 7, v3")
    e("v_and_b32 v5, 7, v5")
    e("v_sub_u32 v6, 2031, v3")
    e("v_lshl_add_u32 v6, v4, 3, v6")
    e("v_sub_u32 v6, v6, v5")
    e("v_mul_u32_u24 v7, %d, v5" % CS)
    e("v_lshrrev_b32 v8, 2, v5")
    e("v_lshl_add_u32 v7, v8, 5, v7")
    e("v_lshl_add_u32 v6, v6, 1, v7")
    e("s_lshl_b32 s5, s3, 7")
    e(f"s_add_u32 s5, s5, {64 + 3584}")
    e("v_subrev_u32 v8, s5, v6")
    e("v_and_b32 v5, 1, v4")
    e("v_lshrrev_b32 v6, 1, v4")
    e(f"v_mul_u32_u24 v7, {HS}, v5")
    e("v_add_u32 v9, v3, v6")
    e("v_lshl_add_u32 v9, v9, 4, v7")
    e("s_lshl_b32 s5, s3, 6")
    e(f"s_sub_u32 s5, {UB2 + 16*15 - 32}, s5")
    e("v_add_u32 v9, s5, v9")
    e(f"v_mul_u32_u24 v11, {HS}, v6")
    e("v_lshl_add_u32 v11, v3, 4, v11")
    e("v_lshl_add_u32 v11, v5, 3, v11")
    e("s_lshl_b32 s5, s3, 9")
    e("v_add_u32 v11, s5, v11")
    e("v_lshlrev_b32 v12, 5, v3")
    e("v_lshl_add_u32 v12, v4, 3, v12")
    e("v_lshlrev_b32 v10, 4, v2")
    e("s_lshl_b32 s5, s3, 13")
    e("v_add_u32 v13, s5, v10")
    e("s_lshl_b32 s5, s3, 10")
    e("v_add_u32 v10, s5, v10")
    for r in range(16, 48):
        e(f"v_mov_b32 v{r}, 0")
    e("s_waitcnt lgkmcnt(0)")
    tl(2)
    e("s_barrier")
    tl(3)
    free = list(range(48, 128, 4))
    loc = {}
    pend = []
    order = [("A",0),("B",7),("B",0),("A",7),("A",1),("B",6),("B",1),("A",6),("A",2),("B",5),("B",2),("A",5),("A",3),("B",4),("B",3),("A",4)]
    todo = [(st,) + o for st in range(2) for o in order]
    def rd(n):
        for _ in range(n):
            if not todo or not free or len(pend) >= 15: return
            key = todo.pop(0); r = free.pop(0); loc[key] = r
            st, ab, i = key
            if ab == "A": e(f"ds_read_b128 v[{r}:{r+3}], v8 offset:{512*(7-i) + 64*(1-st)}")
            else: e(f"ds_read_b128 v[{r}:{r+3}], v9 offset:{256*i + 32*(1-st)}")
            pend.append(key)
    def need(keys):
        idx = [pend.index(k) for k in keys if k in pend]
        if idx:
            last = max(idx)
            e(f"s_waitcnt lgkmcnt({len(pend) - 1 - last})")
            del pend[:last+1]
    groups = []
    for s_ in (7, 6, 5, 4, 3, 2, 1, 0):
        n = min(s_, 7 - s_)
        g = [(s_, m) for m in range(n + 1)] + [(j, s_) for j in range(min(s_ - 1, 7 - s_) + 1)]
        groups.append((s_, g))
    assert sum(len(g) for _, g in groups) == 36
    rd(20)
    for st in range(2):
        for s_, g in groups:
            need([(st, "B", j) for j, m in g] + [(st, "A", m) for j, m in g])
            for j, m in g:
                ac = 16 + 4*(j + m); a = loc[(st, "A", m)]; b = loc[(st, "B", j)]
                e(f"v_mfma_f32_16x16x32_bf16 v[{ac}:{ac+3}], v[{a}:{a+3}], v[{b}:{b+3}], v[{ac}:{ac+3}]")
            free.append(loc[(st, "A", s_)]); free.append(loc[(st, "B", s_)])
            rd(8)
    assert not todo and not pend
    tl(4)
    e("s_nop 15")
    e("s_barrier")
    for t in range(8):
        if CV3 & 2 and t % 2 == 0:
            e(f"s_cmp_eq_u32 s3, {t//2}")
            e(f"s_cbranch_scc1 cv_sk{t//2}")
        e(f"ds_write_b128 v10, v[{16+4*t}:{19+4*t}] offset:{4096*t}")
        if CV3 & 2 and t % 2 == 1:
            e(f"s_branch cv_nx{t//2}")
            lab(f"cv_sk{t//2}")
            for tt in range(2):
                for r in range(4):
                    e(f"v_mov_b32 v{48+16*tt+r}, v{16+4*(t-1+tt)+r}")
            lab(f"cv_nx{t//2}")
    if CV3 & 2:
        for i in range(1, 4):
            e(f"s_add_u32 s5, s3, {i}")
            e("s_and_b32 s5, s5, 3")
            e("s_lshl_b32 s5, s5, 10")
            e(f"v_add_u32 v{4+i}, s5, v13")
    for tt in range(2):
        e(f"ds_read_b64 v[{80+2*tt}:{81+2*tt}], v11 offset:{UB2 + 256 + 256*tt}")
    e("s_lshl_b32 s5, s4, 12")
    e("s_lshl_b32 s6, s3, 10")
    e("s_add_u32 s5, s5, s6")
    e("s_add_u32 s5, s5, %d" % WS_AT)
    e("v_lshlrev_b32 v1, 16, v1")
    e("s_waitcnt lgkmcnt(0)")
    e("s_barrier")
    for i in range(8):
        if CV3 & 2:
            if i % 4: e(f"ds_read_b128 v[{48+4*i}:{51+4*i}], v{4+i%4} offset:{4096*(i//4)}")
        else:
            e(f"ds_read_b128 v[{48+4*i}:{51+4*i}], v13 offset:{1024*i}")
    for tt in range(2):
        for p_ in range(2):
            u = 80 + 2*tt + p_
            e(f"v_lshlrev_b32 v84, 16, v{u}")
            e(f"v_and_b32 v85, 0xffff0000, v{u}")
            e(f"v_mul_f32 v84, v84, v1")
            e(f"v_mul_f32 v85, v85, v1")
            e(f"v_cvt_pk_bf16_f32 v84, v84, v85")
            e(f"v_lshlrev_b32 v{88+4*tt+2*p_}, 16, v84")
            e(f"v_and_b32 v{89+4*tt+2*p_}, 0xffff0000, v84")
    for tt in range(2):
        e(f"s_waitcnt lgkmcnt({(3 - 3*tt) if CV3 & 2 else (4 - 4*tt)})")
        b0 = 48 + 16*tt
        for r in range(4):
            e(f"v_add_f32 v{b0+r}, v{b0+r}, v{b0+4+r}")
            e(f"v_add_f32 v{b0+8+r}, v{b0+8+r}, v{b0+12+r}")
        for r in range(4):
            e(f"v_add_f32 v{b0+r}, v{b0+r}, v{b0+8+r}")
        for p_ in range(2):
            e(f"v_cvt_pk_bf16_f32 v84, v{b0+2*p_}, v{b0+2*p_+1}")
            e(f"v_lshlrev_b32 v85, 16, v84")
            e(f"v_and_b32 v86, 0xffff0000, v84")
            e(f"v_add_f32 v85, v85, v{88+4*tt+2*p_}")
            e(f"v_add_f32 v86, v86, v{89+4*tt+2*p_}")
            e(f"v_cvt_pk_bf16_f32 v{96+2*tt+p_}, v85, v86")
        e(f"buffer_store_dwordx2 v[{96+2*tt}:{97+2*tt}], v12, s[28:31], s5 offen offset:{512*tt}")
    tl(5)
    if TL: e("s_waitcnt vmcnt(0)")
    tl_end(1)

def gen_mid():
    kernel_begin("mid_kernel")
    e("s_cmp_ge_u32 s2, %d" % MID_WGS)
    e("s_cbranch_scc1 mid_end")
    if EMU & 2:
        e("s_cmp_lt_u32 s2, 256")
        e("s_cbranch_scc1 mid_end")
    lab("mid_body")
    tl_begin()
    e("s_load_dwordx2 s[56:57], s[0:1], 104")
    e("s_load_dwordx2 s[58:59], s[0:1], 72")
    e("s_load_dwordx2 s[60:61], s[0:1], 48")
    e("v_lshrrev_b32 v1, 6, v0")
    e("v_and_b32 v2, 63, v0")
    e("s_nop 0")
    e("v_readfirstlane_b32 s3, v1")
    e("s_waitcnt lgkmcnt(0)")
    srd(28, 56, WS_SIZE)
    if W2MID:
        e("s_cmp_ge_u32 s2, %d" % (G1_WGS + CV_WGS))
        e("s_cbranch_scc1 mid_wt")
    e("s_cmp_ge_u32 s2, %d" % G1_WGS)
    e("s_cbranch_scc1 mid_conv")
    if "g1" in SKIP: e("s_endpgm")
    if PRIO & 4: e("s_setprio 3")
    srd(8, 58, F*2)
    tl(1)
    if not EMU & 1: claim_tile(0, 32, 7168*G1_NS, "mcl")
    tl(2)
    if G1MAP == 0:
        e("s_lshr_b32 s5, s2, 4")
        e("s_and_b32 s4, s2, 15")
    else:
        e("s_lshr_b32 s5, s2, 6")
        e("s_lshl_b32 s5, s5, 2")
        e("s_bfe_u32 s6, s2, 0x20003")
        e("s_add_u32 s5, s5, s6")
        e("s_bfe_u32 s4, s2, 0x10005")
        e("s_lshl_b32 s4, s4, 3")
        e("s_and_b32 s6, s2, 7")
        e("s_add_u32 s4, s4, s6")
    e("s_mul_i32 s6, s4, 7")
    e("s_sub_u32 s7, s4, 12")
    e("s_cmp_lt_u32 s4, 12")
    e("s_cselect_b32 s7, 0, s7")
    e("s_cselect_b32 s26, 7, 6")
    e("s_sub_u32 s4, s6, s7")
    e("v_and_b32 v3, 15, v2")
    e("v_lshrrev_b32 v4, 4, v2")
    e("v_lshrrev_b32 v5, 1, v4")
    e("v_and_b32 v6, 1, v4")
    e("v_lshlrev_b32 v7, 4, v3")
    e("v_lshl_add_u32 v7, v5, 10, v7")
    e("v_lshl_add_u32 v7, v6, 9, v7")
    e("v_mov_b32 v8, v7")
    for k in range(2):
        e(f"s_add_u32 s6, s3, {4*k}")
        e("s_min_u32 s6, s6, 6")
        e(f"s_lshl_b32 s{42+k}, s6, 10")
        e("s_add_u32 s6, s6, s4")
        e("s_min_u32 s6, s6, 107")
        e(f"s_lshr_b32 s{40+k}, s6, 1")
        e(f"s_mul_i32 s{40+k}, s{40+k}, {40*1024}")
        e("s_and_b32 s6, s6, 1")
        e("s_lshl_b32 s6, s6, 8")
        e(f"s_add_u32 s{40+k}, s{40+k}, s6")
        e(f"s_add_u32 s{40+k}, s{40+k}, {WS_W1F}")
    e("s_lshl_b32 s6, s5, 2")
    e("s_add_u32 s27, s6, s3")
    e("s_mul_i32 s44, s27, %d" % (40*1024))
    e("s_add_u32 s44, s44, %d" % WS_XNF)
    if "g1y" in SKIP:
        e("s_xor_b32 s45, s27, 1")
        e("s_mul_i32 s45, s45, %d" % (40*1024))
    e("v_lshlrev_b32 v9, 4, v2")
    NS, BD, NSTEP = G1_NS, G1_BD, 20
    NB = int(os.environ.get("G1NB", 6))
    AF, BF, ACC, BI = 16, 16 + 4*NB, 16 + 4*NB + 8*G1_BD, 44
    assert ACC + 56 <= 128
    pend = []
    def dma(st):
        for k in range(2):
            e(f"s_add_u32 m0, s{42+k}, {(st % NS)*7168}")
            e("s_nop 0")
            e(f"buffer_load_dwordx4 v7, s[28:31], s{40+k} offen lds")
            pend.append(("a", st))
        e("v_add_u32 v7, 2048, v7")
    def bld(st):
        r = BF + 8*(st % BD)
        e(f"buffer_load_dwordx4 v[{r}:{r+3}], v8, s[28:31], s44 offen")
        e(f"buffer_load_dwordx4 v[{r+4}:{r+7}], v8, s[28:31], s44 offen offset:256")
        pend.append(("b", st)); pend.append(("b", st))
        if "g1y" in SKIP:
            e(f"buffer_load_dwordx4 v[{r}:{r+3}], v8, s[28:31], s45 offen")
            e(f"buffer_load_dwordx4 v[{r+4}:{r+7}], v8, s[28:31], s45 offen offset:256")
            pend.append(("b", st)); pend.append(("b", st))
        e("v_add_u32 v8, 2048, v8")
    def wait_for(*tags):
        idx = [i for i, p in enumerate(pend) if p in tags]
        if not idx: return
        last = max(idx)
        e(f"s_waitcnt vmcnt({len(pend) - 1 - last})")
        del pend[:last+1]
    def rdA(g):
        st, t = divmod(g, 7)
        if st >= NSTEP: return
        r = AF + 4*(g % NB)
        e(f"ds_read_b128 v[{r}:{r+3}], v9 offset:{(st % NS)*7168 + 1024*t}")
    for st in range(max(NS-1, BD)):
        if st < NS-1: dma(st)
        if st < BD: bld(st)
    e("s_lshl_b32 s6, s4, 5")
    e("v_lshl_add_u32 v10, v4, 3, s6")
    for r in range(ACC, ACC+56):
        e(f"v_mov_b32 v{r}, 0")
    wait_for(("a", 0))
    e("s_barrier")
    tl(3)
    for t in range(NB): rdA(t)
    for st in range(NSTEP):
        if st + 1 < NSTEP:
            wait_for(("a", st+1), ("b", st))
            e("s_barrier")
            if st - 1 + NS < NSTEP: dma(st - 1 + NS)
        else:
            wait_for(("b", st))
        rb = BF + 8*(st % BD)
        for t in range(7):
            g = 7*st + t
            e(f"s_waitcnt lgkmcnt({min(NB - 1, 7*NSTEP - 1 - g)})")
            ra_ = AF + 4*(g % NB)
            for b_ in range(2):
                ac = ACC + 4*(2*t + b_)
                e(f"v_mfma_f32_16x16x32_bf16 v[{ac}:{ac+3}], v[{ra_}:{ra_+3}], v[{rb+4*b_}:{rb+4*b_+3}], v[{ac}:{ac+3}]")
            rdA(g + NB)
        if st + BD < NSTEP: bld(st + BD)
        if st == NSTEP - 2:
            assert BD >= 3
            free = [BF + 8*((NSTEP-3) % BD), BF + 8*((NSTEP-2) % BD)]
            BIr = [free[0] + 2*k for k in range(4)] + [free[1] + 2*k for k in range(3)]
            for t in range(7):
                e(f"buffer_load_dwordx2 v[{BIr[t]}:{BIr[t]+1}], v10, s[8:11], 0 offen offset:{32*t}")
                pend.append(("c", 0))
    e("s_nop 7")
    e("s_waitcnt vmcnt(0)")
    tl(4)
    e("s_mul_i32 s6, s27, 108")
    e("s_add_u32 s6, s6, s4")
    e("s_lshl_b32 s6, s6, 10")
    e("s_add_u32 s6, s6, %d" % WS_ACT)
    e("v_lshlrev_b32 v9, 4, v3")
    e("v_lshl_add_u32 v9, v5, 9, v9")
    e("v_lshl_add_u32 v9, v6, 3, v9")
    T = 16
    if MISH2 == 2:
        e(f"s_mov_b32 s46, {LOG2E:#x}")
        e(f"s_mov_b32 s47, {LOG2E:#x}")
        e("v_mov_b32 v40, 1.0"); e("v_mov_b32 v41, 1.0")
        e("v_mov_b32 v42, -2.0"); e("v_mov_b32 v43, -2.0")
    for t in range(7):
        if t == 6:
            e("s_cmp_lt_u32 s26, 7")
            e("s_cbranch_scc1 g1_end")
        r = BIr[t]
        e(f"v_lshlrev_b32 v{T}, 16, v{r}")
        e(f"v_and_b32 v{T+1}, 0xffff0000, v{r}")
        e(f"v_lshlrev_b32 v{T+2}, 16, v{r+1}")
        e(f"v_and_b32 v{T+3}, 0xffff0000, v{r+1}")
        for b_ in range(2):
            ac = ACC + 4*(2*t + b_)
            d0 = T + 16 + 2*((2*t + b_) % 4)
            if MISH2 == 2:
                mish_quad(ac, T, d0)
            else:
                mish_pairs(ac, ac+1, T, T+1, d0, T+4)
                mish_pairs(ac+2, ac+3, T+2, T+3, d0+1, T+10)
            off = (t % 4)*1024 + 256*b_
            e(f"buffer_store_dwordx2 v[{d0}:{d0+1}], v9, s[28:31], s6 offen offset:{off}")
        if t == 3: e("s_add_u32 s6, s6, 4096")
    lab("g1_end")
    tl(5)
    if TL: e("s_waitcnt vmcnt(0)")
    tl_end(1)
    e("s_endpgm")
    lab("mid_conv")
    if CONV2:
        gen_conv2()
    else:
        if "cv" in SKIP: e("s_endpgm")
        if PRIO & 8: e("s_setprio 3")
        srd(8, 60, D*2)
        e("s_sub_u32 s4, s2, %d" % G1_WGS)
        e("s_and_b32 s5, s4, 7")
        e("s_lshl_b32 s5, s5, 2")
        e("s_bfe_u32 s6, s4, 0x20003")
        e("s_or_b32 s5, s5, s6")
        e("s_andn2_b32 s4, s4, 31")
        e("s_or_b32 s4, s4, s5")
        e("s_lshl_b32 s5, s4, 1")
        e("v_mov_b32 v3, s5")
        if DLYC: e(f"s_sleep {DLYC}")
        e("buffer_load_ushort v1, v3, s[8:11], 0 offen")
        e("s_lshl_b32 s5, s4, 5")
        e("s_add_u32 s5, s5, %d" % WS_XNT)
        e("v_lshrrev_b32 v4, 1, v0")
        e("v_mul_u32_u24 v4, 20480, v4")
        e("v_and_b32 v5, 1, v0")
        e("v_lshl_add_u32 v4, v5, 4, v4")
        e("buffer_load_dwordx4 v[8:11], v4, s[28:31], s5 offen")
        e("v_lshlrev_b32 v4, 4, v0")
        e("s_mul_i32 s6, s4, %d" % KR_STRIDE)
        e("s_add_u32 s6, s6, %d" % WS_KR)
        e("buffer_load_dwordx4 v[12:15], v4, s[28:31], s6 offen")
        e("buffer_load_dwordx4 v[16:19], v4, s[28:31], s6 offen offset:16")
        e("v_min_u32 v5, 3, v0")
        e("v_lshlrev_b32 v5, 4, v5")
        e("v_add_u32 v5, 4096, v5")
        e("buffer_load_dwordx4 v[20:23], v5, s[28:31], s6 offen")
        e("buffer_load_dwordx4 v[24:27], v5, s[28:31], s6 offen offset:16")
        for k in range(4):
            e(f"v_mov_b32 v{28+k}, 0")
        e("v_min_u32 v6, 154, v0")
        e("v_lshlrev_b32 v6, 4, v6")
        e(f"ds_write_b128 v6, v[28:31] offset:{UB + 80}")
        e("v_lshrrev_b32 v6, 2, v0")
        e("v_mul_u32_u24 v6, 80, v6")
        e("v_and_b32 v7, 3, v0")
        e("v_lshl_add_u32 v6, v7, 4, v6")
        e("s_waitcnt vmcnt(4)")
        e(f"ds_write_b128 v6, v[8:11] offset:{UB + 32*80}")
        def copies(w, vaddr):
            for c in range(8):
                if c % 2 == 0:
                    e(f"ds_write_b128 v{vaddr}, v[{w+c//2}:{w+c//2+3}] offset:{CB(c)}") if (w + c//2) % 2 == 0 else None
                    if (w + c//2) % 2:
                        for j in range(4):
                            e(f"v_mov_b32 v{32+j}, v{w+c//2+j}")
                        e(f"ds_write_b128 v{vaddr}, v[32:35] offset:{CB(c)}")
                else:
                    for j in range(4):
                        e(f"v_alignbit_b32 v{36+j}, v{w+(c+1)//2+j}, v{w+(c-1)//2+j}, 16")
                    e(f"ds_write_b128 v{vaddr}, v[36:39] offset:{CB(c)}")
        e("s_waitcnt vmcnt(2)")
        tl(1)
        copies(12, 4)
        e("s_waitcnt vmcnt(0)")
        copies(20, 5)
        e("s_waitcnt lgkmcnt(0)")
        tl(2)
        e("s_barrier")
        tl(3)
        e("v_and_b32 v3, 31, v2")
        e("v_lshrrev_b32 v4, 5, v2")
        e("v_sub_u32 v5, 7, v3")
        e("v_and_b32 v5, 7, v5")
        e("v_sub_u32 v6, 2047, v3")
        e("v_lshl_add_u32 v6, v4, 3, v6")
        e("v_sub_u32 v6, v6, v5")
        e("v_mul_u32_u24 v7, %d, v5" % CS)
        e("v_lshrrev_b32 v8, 2, v5")
        e("v_lshl_add_u32 v7, v8, 5, v7")
        e("v_lshl_add_u32 v6, v6, 1, v7")
        e("v_mul_u32_u24 v7, 80, v3")
        e("v_lshl_add_u32 v7, v4, 4, v7")
        e(f"v_add_u32 v7, {UB + 32*80}, v7")
        for r in range(16, 48):
            e(f"v_mov_b32 v{r}, 0")
        e("s_lshl_b32 s5, s3, 9")
        e(f"s_add_u32 s5, s5, {64*7 + 64*32}")
        e("v_subrev_u32 v8, s5, v6")
        e("s_mul_i32 s5, s3, 640")
        e(f"s_add_u32 s5, s5, {80*7}")
        e("v_subrev_u32 v9, s5, v7")
        def rd(q):
            base = 48 + (q & 1)*32
            for t in range(2):
                fa = base + 16*t
                e(f"ds_read_b128 v[{fa}:{fa+3}], v8 offset:{64*(7-q) + 2048 + 32*t}")
                e(f"ds_read_b128 v[{fa+4}:{fa+7}], v9 offset:{80*(7-q) + 32*t}")
                e(f"ds_read_b128 v[{fa+8}:{fa+11}], v9 offset:{80*(7-q) + 2560 + 32*t}")
                e(f"ds_read_b128 v[{fa+12}:{fa+15}], v8 offset:{64*(7-q) + 32*t}")
        def mm(q):
            base = 48 + (q & 1)*32
            for t in range(2):
                fa = base + 16*t
                e(f"v_mfma_f32_32x32x16_bf16 v[16:31], v[{fa}:{fa+3}], v[{fa+4}:{fa+7}], v[16:31]")
                e(f"v_mfma_f32_32x32x16_bf16 v[32:47], v[{fa}:{fa+3}], v[{fa+8}:{fa+11}], v[32:47]")
                e(f"v_mfma_f32_32x32x16_bf16 v[32:47], v[{fa+12}:{fa+15}], v[{fa+4}:{fa+7}], v[32:47]")
        rd(0)
        for q in range(8):
            if q < 7:
                rd(q + 1)
                e("s_waitcnt lgkmcnt(8)")
            else:
                e("s_waitcnt lgkmcnt(0)")
            mm(q)
        tl(4)
        e("s_nop 15")
        e("s_barrier")
        e("v_lshlrev_b32 v10, 4, v2")
        e("s_cmp_eq_u32 s3, 0")
        e("s_cbranch_scc1 cv_w0")
        e("s_sub_u32 s5, s3, 1")
        e("s_lshl_b32 s5, s5, 12")
        e("v_add_u32 v11, s5, v10")
        for r in range(4):
            e(f"ds_write_b128 v11, v[{16+4*r}:{19+4*r}] offset:{1024*r}")
        lab("cv_w0")
        e("s_cmp_eq_u32 s3, 1")
        e("s_cbranch_scc1 cv_w1")
        e("s_sub_u32 s5, s3, 1")
        e("s_max_i32 s5, s5, 0")
        e("s_lshl_b32 s5, s5, 12")
        e("v_add_u32 v11, s5, v10")
        for r in range(4):
            e(f"ds_write_b128 v11, v[{32+4*r}:{35+4*r}] offset:{12288 + 1024*r}")
        e("s_branch cv_w2")
        lab("cv_w1")
        for r in range(16):
            e(f"v_mov_b32 v{16+r}, v{32+r}")
        e("v_add_u32 v10, 12288, v10")
        lab("cv_w2")
        e("s_waitcnt lgkmcnt(0)")
        e("s_barrier")
        e("s_cmp_ge_u32 s3, 2")
        e("s_cbranch_scc1 mid_end")
        for sl in range(3):
            for r in range(4):
                e(f"ds_read_b128 v[{48+16*sl+4*r}:{51+16*sl+4*r}], v10 offset:{4096*sl + 1024*r}")
        for sl in range(3):
            e(f"s_waitcnt lgkmcnt({8-4*sl})")
            for r in range(16):
                e(f"v_add_f32 v{16+r}, v{16+r}, v{48+16*sl+r}")
        lab("cv_epi")
        e("s_mul_i32 s5, s3, %d" % (32*80))
        e("v_mul_u32_u24 v11, 80, v3")
        e("v_lshl_add_u32 v11, v4, 3, v11")
        e("v_add_u32 v11, s5, v11")
        for g in range(4):
            e(f"ds_read_b64 v[{32+2*g}:{33+2*g}], v11 offset:{UB + 32*80 + 16*g}")
        e("s_lshl_b32 s5, s4, 12")
        e("s_lshl_b32 s6, s3, 11")
        e("s_add_u32 s5, s5, s6")
        e("s_add_u32 s5, s5, %d" % WS_AT)
        e("v_lshlrev_b32 v12, 6, v3")
        e("v_lshl_add_u32 v12, v4, 3, v12")
        e("s_waitcnt vmcnt(0) lgkmcnt(0)")
        e("v_lshlrev_b32 v1, 16, v1")
        for g in range(4):
            for p in range(2):
                u = 32 + 2*g + p
                y0 = 16 + 4*g + 2*p
                e(f"v_lshlrev_b32 v44, 16, v{u}")
                e(f"v_and_b32 v45, 0xffff0000, v{u}")
                e(f"v_mul_f32 v44, v44, v1")
                e(f"v_mul_f32 v45, v45, v1")
                e(f"v_cvt_pk_bf16_f32 v44, v44, v45")
                e(f"v_cvt_pk_bf16_f32 v46, v{y0}, v{y0+1}")
                e(f"v_lshlrev_b32 v47, 16, v44")
                e(f"v_and_b32 v48, 0xffff0000, v44")
                e(f"v_lshlrev_b32 v49, 16, v46")
                e(f"v_and_b32 v50, 0xffff0000, v46")
                e(f"v_add_f32 v47, v47, v49")
                e(f"v_add_f32 v48, v48, v50")
                e(f"v_cvt_pk_bf16_f32 v{52+2*g+p}, v47, v48")
            e(f"buffer_store_dwordx2 v[{52+2*g}:{53+2*g}], v12, s[28:31], s5 offen offset:{16*g}")
        tl(5)
        if TL: e("s_waitcnt vmcnt(0)")
        tl_end(1)
    if W2MID:
        e("s_endpgm")
        lab("mid_wt")
        gen_wt(G1_WGS + CV_WGS, 270, 540, "mid_end", 1, int(os.environ.get("DLYW2", 0)))
    lab("mid_end")
    e("s_endpgm")
    kernel_desc("mid_kernel", 128)

G2_WGS = 256
FIN_LDS = 61440 + 64
FDEPTH = int(os.environ.get('FDEPTH', 4))
def gen_fin():
    kernel_begin("fin_kernel")
    e("s_cmp_ge_u32 s2, %d" % G2_WGS)
    e("s_cbranch_scc1 fin_end")
    e("s_load_dwordx2 s[56:57], s[0:1], 104")
    e("s_load_dwordx2 s[58:59], s[0:1], 0")
    e("s_load_dwordx2 s[60:61], s[0:1], 88")
    e("v_lshrrev_b32 v1, 6, v0")
    e("v_and_b32 v2, 63, v0")
    e("s_nop 0")
    e("v_readfirstlane_b32 s3, v1")
    if "xcc" in SKIP:
        e("s_and_b32 s5, s2, 31")
        e("s_lshr_b32 s4, s2, 5")
    else:
        e("s_waitcnt lgkmcnt(0)")
        srd(28, 56, WS_SIZE)
        claim_tile(512, 32, 61440, "fcl")
        if FMAP == 0:
            e("s_lshr_b32 s5, s2, 5")
            e("s_lshl_b32 s5, s5, 2")
            e("s_and_b32 s6, s2, 3")
            e("s_add_u32 s5, s5, s6")
            e("s_bfe_u32 s4, s2, 0x30002")
        else:
            e("s_lshr_b32 s5, s2, 6")
            e("s_lshl_b32 s5, s5, 3")
            e("s_and_b32 s6, s2, 7")
            e("s_add_u32 s5, s5, s6")
            e("s_bfe_u32 s4, s2, 0x10005")
            e("s_lshl_b32 s4, s4, 2")
            e("s_bfe_u32 s6, s2, 0x20003")
            e("s_add_u32 s4, s4, s6")
    e("v_and_b32 v3, 15, v2")
    e("v_lshrrev_b32 v4, 4, v2")
    e("v_lshrrev_b32 v5, 1, v4")
    e("v_and_b32 v6, 1, v4")
    e("v_lshlrev_b32 v7, 4, v3")
    e("v_lshl_add_u32 v7, v5, 10, v7")
    e("v_lshl_add_u32 v7, v6, 9, v7")
    e("s_lshl_b32 s6, s3, 11")
    e("v_add_u32 v7, s6, v7")
    e("s_mul_i32 s6, s4, 5")
    for a_ in range(5):
        e(f"s_add_u32 s7, s6, {a_}")
        e(f"s_lshr_b32 s{40+a_}, s7, 1")
        e(f"s_mul_i32 s{40+a_}, s{40+a_}, {108*1024}")
        e(f"s_and_b32 s7, s7, 1")
        e(f"s_lshl_b32 s7, s7, 8")
        e(f"s_add_u32 s{40+a_}, s{40+a_}, s7")
        e(f"s_add_u32 s{40+a_}, s{40+a_}, {WS_W2F}")
    e("s_mul_i32 s6, s5, %d" % (2*108*1024))
    e("s_add_u32 s45, s6, %d" % WS_ACT)
    e("s_add_u32 s46, s45, 256")
    e("s_add_u32 s47, s45, %d" % (108*1024))
    e("s_add_u32 s48, s47, 256")
    e("s_waitcnt lgkmcnt(0)")
    srd(28, 56, WS_SIZE); srd(8, 58, L*D*2); srd(12, 60, L*D*2)
    FR = 16
    ACC = 0
    EP = FR + 36*FDEPTH
    pend = []
    def issue(m):
        base = FR + 36*(m % FDEPTH)
        for t in range(9):
            e(f"buffer_load_dwordx4 v[{base+4*t}:{base+4*t+3}], v7, s[28:31], s{40+t} offen")
            pend.append(("f", m))
        e("v_add_u32 v7, 8192, v7")
    def wait_for(tag):
        last = max(i for i, p in enumerate(pend) if p == tag)
        n = len(pend) - 1 - last
        e(f"s_waitcnt vmcnt({n})")
        del pend[:last+1]
    NST = 14
    for m in range(FDEPTH):
        issue(m)
    e("s_lshl_b32 s6, s5, 6")
    e("s_lshl_b32 s7, s3, 4")
    e("s_add_u32 s6, s6, s7")
    e("v_add_u32 v8, s6, v3")
    e("v_mul_u32_u24 v9, 1280, v8")
    e("v_lshl_add_u32 v9, v4, 3, v9")
    e("s_mul_i32 s6, s4, 160")
    e("v_add_u32 v9, s6, v9")
    for a_ in range(5):
        e(f"buffer_load_dwordx2 v[{EP+2*a_}:{EP+2*a_+1}], v9, s[8:11], 0 offen offset:{32*a_}")
        pend.append(("e", 0))
    e("v_lshlrev_b32 v10, 14, v4")
    e("v_lshl_add_u32 v10, v8, 1, v10")
    e("s_mul_i32 s6, s4, %d" % (80*4096))
    e("s_add_u32 s6, s6, %d" % WS_AT)
    for a_ in range(5):
        for j in range(4):
            e(f"buffer_load_ushort v{EP+10+4*a_+j}, v10, s[28:31], s6 offen")
            pend.append(("e", 0))
            e("s_add_u32 s6, s6, %d" % (4096 if j < 3 else 4096*13))
    for r in range(ACC, ACC+80):
        e(f"v_accvgpr_write_b32 a{r}, 0")
    for m in range(NST):
        if m == NST - 1:
            e("s_cmp_ge_u32 s3, 2")
            e("s_cbranch_scc1 fin_red")
        wait_for(("f", m))
        base = FR + 36*(m % FDEPTH)
        fill = []
        if FEP and FDEPTH + 1 <= m < FDEPTH + 4:
            for a_ in [(0, 1), (2, 3), (4,)][m - FDEPTH - 1]:
                rx = EP + 2*a_; ra = EP + 10 + 4*a_
                for k_ in range(9):
                    for p_ in range(2):
                        t0, t1 = 12 + 2*p_, 13 + 2*p_
                        r0, r1 = ra + 2*p_, ra + 2*p_ + 1
                        fill.append([f"v_lshlrev_b32 v{t0}, 16, v{rx+p_}", f"v_and_b32 v{t1}, 0xffff0000, v{rx+p_}",
                                     f"v_lshlrev_b32 v{r0}, 16, v{r0}", f"v_lshlrev_b32 v{r1}, 16, v{r1}",
                                     f"v_add_f32 v{t0}, v{t0}, v{r0}", f"v_add_f32 v{t1}, v{t1}, v{r1}",
                                     f"v_cvt_pk_bf16_f32 v{t0}, v{t0}, v{t1}",
                                     f"v_lshlrev_b32 v{r0}, 16, v{t0}", f"v_and_b32 v{r1}, 0xffff0000, v{t0}"][k_])
        for b_ in range(4):
            for a_ in range(5):
                ac = ACC + 4*(5*b_ + a_)
                e(f"v_mfma_f32_16x16x32_bf16 a[{ac}:{ac+3}], v[{base+4*a_}:{base+4*a_+3}], v[{base+20+4*b_}:{base+23+4*b_}], a[{ac}:{ac+3}]")
                for _ in range(2):
                    if fill: e(fill.pop(0))
        assert not fill
        if m + FDEPTH < NST:
            if m + FDEPTH == NST - 1:
                e("s_cmp_ge_u32 s3, 2")
                e("s_cselect_b32 s6, 8192, 0")
                e("v_subrev_u32 v7, s6, v7")
            issue(m + FDEPTH)
    lab("fin_red")
    e("s_nop 15")
    e("s_waitcnt vmcnt(0)")
    e("v_lshlrev_b32 v11, 4, v2")
    for w in range(4):
        if w < 3:
            e(f"s_cmp_lg_u32 s3, {w}")
            e(f"s_cbranch_scc1 fin_w{w+1}")
        for b_ in range(4):
            if b_ == w: continue
            slot = w if w < b_ else w - 1
            for a_ in range(5):
                ac = ACC + 4*(5*b_ + a_)
                e(f"ds_write_b128 v11, a[{ac}:{ac+3}] offset:{(b_*3 + slot)*5120 + a_*1024}")
        for r in range(20):
            e(f"v_accvgpr_read_b32 v{16+r}, a{ACC+20*w+r}")
        if w < 3:
            e("s_branch fin_rd")
            lab(f"fin_w{w+1}")
    lab("fin_rd")
    e("s_mul_i32 s6, s3, %d" % (3*5120))
    e("v_add_u32 v11, s6, v11")
    e("s_waitcnt lgkmcnt(0)")
    e("s_barrier")
    for sl in range(3):
        for a_ in range(5):
            r = 36 + 20*sl + 4*a_
            e(f"ds_read_b128 v[{r}:{r+3}], v11 offset:{sl*5120 + a_*1024}")
    for sl in range(3):
        e(f"s_waitcnt lgkmcnt({10-5*sl})")
        if FEP:
            for r in range(0, 20, 2):
                e(f"v_pk_add_f32 v[{16+r}:{17+r}], v[{16+r}:{17+r}], v[{36+20*sl+r}:{37+20*sl+r}]")
            continue
        for r in range(20):
            e(f"v_add_f32 v{16+r}, v{16+r}, v{36+20*sl+r}")
    e("s_waitcnt vmcnt(0)")
    for a_ in range(5):
        rx = EP + 2*a_
        ra = EP + 10 + 4*a_
        if FEP:
            ac = 16 + 4*a_
            for p in range(2): e(f"v_cvt_pk_bf16_f32 v{96+p}, v{ac+2*p}, v{ac+2*p+1}")
            for p in range(2):
                e(f"v_lshlrev_b32 v{98+2*p}, 16, v{96+p}")
                e(f"v_and_b32 v{99+2*p}, 0xffff0000, v{96+p}")
            for p in range(2): e(f"v_pk_add_f32 v[{98+2*p}:{99+2*p}], v[{98+2*p}:{99+2*p}], v[{ra+2*p}:{ra+2*p+1}]")
            for p in range(2): e(f"v_cvt_pk_bf16_f32 v{rx+p}, v{98+2*p}, v{99+2*p}")
        for p in range(2 if not FEP else 0):
            ac = 16 + 4*a_ + 2*p
            e(f"v_lshlrev_b32 v96, 16, v{rx+p}")
            e(f"v_and_b32 v97, 0xffff0000, v{rx+p}")
            e(f"v_lshlrev_b32 v98, 16, v{ra+2*p}")
            e(f"v_lshlrev_b32 v99, 16, v{ra+2*p+1}")
            e(f"v_add_f32 v96, v96, v98")
            e(f"v_add_f32 v97, v97, v99")
            e(f"v_cvt_pk_bf16_f32 v96, v96, v97")
            e(f"v_cvt_pk_bf16_f32 v98, v{ac}, v{ac+1}")
            e(f"v_lshlrev_b32 v100, 16, v96")
            e(f"v_and_b32 v101, 0xffff0000, v96")
            e(f"v_lshlrev_b32 v102, 16, v98")
            e(f"v_and_b32 v103, 0xffff0000, v98")
            e(f"v_add_f32 v100, v100, v102")
            e(f"v_add_f32 v101, v101, v103")
            e(f"v_cvt_pk_bf16_f32 v{rx+p}, v100, v101")
        e(f"buffer_store_dwordx2 v[{rx}:{rx+1}], v9, s[12:15], 0 offen offset:{32*a_}")
    lab("fin_end")
    e("s_endpgm")
    kernel_desc("fin_kernel", ((EP + 30) + 7)//8*8, agpr=80)

hdr = open("cdna_kernels/%s.s.ref" % NAME).read().split("; Override launch")[0]
text = hdr
text += f"; @launch kernel=prep_kernel grid=({PREP_WGS + (128 if PORD else 0) + (256 if EMU & 2 else 0)},1,1) block=(256,1,1) lds={MID_LDS if EMU & 2 else PREP_LDS}\n"
text += f"; @launch kernel=mid_kernel grid=({MID_WGS},1,1) block=(256,1,1) lds={MID_LDS}\n"
text += f"; @launch kernel=fin_kernel grid=({G2_WGS},1,1) block=(256,1,1) lds={FIN_LDS}\n"
text += '.amdgcn_target "amdgcn-amd-amdhsa--gfx950"\n'
gen_prep(); gen_mid(); gen_fin()
_o = []; _in = False
for _l in out:
    if _l.startswith("fin_kernel:"): _in = True
    if _l.strip().startswith("buffer_store") and not _in and "nosc" not in SKIP: _l += " sc1"
    _o.append(_l)
out = _o
text += "\n".join(out) + "\n"
dst = sys.argv[1] if len(sys.argv) > 1 else "cdna_kernels/%s.s" % NAME
open(dst, "w").write(text)
print("wrote", dst, len(text))
```

```python
import sys, os
SKIP = os.environ.get("SKIP", "").split(",")
ORDER = int(os.environ.get("ORDER", 0))
PRIO = int(os.environ.get("PRIO", 3))
W2MID = int(os.environ.get("W2MID", 0))
CONV2 = int(os.environ.get("CONV2", 1))
CV3 = int(os.environ.get("CV3", 1))
FEP = int(os.environ.get("FEP", 1))
PORD = int(os.environ.get("PORD", 0))
MISH2 = int(os.environ.get("MISH2", 2))
DLYC = int(os.environ.get("DLYC", 24))
G1MAP = int(os.environ.get("G1MAP", 1))
FMAP = int(os.environ.get("FMAP", 3))
DLYL = int(os.environ.get("DLYL", 16))
DLYW = int(os.environ.get("DLYW", 24))
EMU = int(os.environ.get("EMU", 1))
NAME = "parallel_sum__ssm_conv_s4d__dense_activation_mish__prompt"
L, D, N, F = 2048, 640, 128, 1728
WS_XNF = 0x0000000
WS_XNT = 0x0280000
WS_W1F = 0x0500000
WS_W2F = WS_W1F + 2160 * 1024
WS_KR = 0x0A00000
KR_STRIDE = 4224
WS_ACT = 0x0D00000
WS_AT = 0x1400000
WS_CNT = 0x1700000
WS_SIZE = 268435456
LOG2E = 0x3fb8aa3b
INV2PI = 0x3e22f983

out = []
def e(s):
    out.append("    " + s)
def lab(s):
    out.append(s + ":")
def cm(s):
    out.append("    ; " + s)

STAMP = os.environ.get("STAMP")
def stamp_init():
    if not STAMP: return
    e("s_load_dwordx2 s[84:85], s[0:1], 96")
    e("s_waitcnt lgkmcnt(0)")
    e("s_mov_b32 s80, s84"); e("s_and_b32 s81, s85, 0xffff"); e("s_mov_b32 s82, 256"); e("s_mov_b32 s83, 0x00020000")
def stamp(i):
    if not STAMP: return
    e("s_memtime s[86:87]")
    e("s_waitcnt lgkmcnt(0)")
    e(f"s_cmp_lg_u32 s2, {int(STAMP)}")
    e(f"s_cbranch_scc1 st_{stamp.n}")
    e(f"v_mov_b32 v255, s86")
    e(f"v_lshrrev_b32 v254, 6, v0")
    e(f"v_lshlrev_b32 v254, 6, v254")
    e(f"v_add_u32 v254, {4*i}, v254")
    e(f"buffer_store_dword v255, v254, s[80:83], 0 offen")
    lab(f"st_{stamp.n}")
    stamp.n += 1
stamp.n = 0


TL = os.environ.get("TL")
WS_TL = 0x1800000
def tl(i):
    if not TL: return
    e("s_memrealtime s[80:81]")
    e("s_waitcnt lgkmcnt(0)")
    e(f"s_mov_b32 s{84+i}, s80")
def tl_begin():
    if not TL: return
    e("s_mov_b32 s83, s2")
    for i in range(8): e(f"s_mov_b32 s{84+i}, 0")
    tl(0)
def tl_end(kern):
    if not TL: return
    tl(7)
    e("s_getreg_b32 s90, hwreg(HW_REG_HW_ID)")
    e("s_getreg_b32 s80, hwreg(HW_REG_XCC_ID)")
    e("s_and_b32 s90, s90, 0xffff")
    e("s_lshl_b32 s80, s80, 16")
    e("s_or_b32 s90, s90, s80")
    e("s_or_b32 s90, s90, 0x40000000")
    e("s_cmp_lg_u32 s3, 0")
    e(f"s_cbranch_scc1 tle_{tl_end.n}")
    e("s_lshl_b32 s83, s83, 5")
    e(f"s_add_u32 s83, s83, {WS_TL + kern*65536}")
    e("v_mov_b32 v1, 0")
    for i in range(8):
        e(f"v_mov_b32 v0, s{84+i}")
        e(f"buffer_store_dword v0, v1, s[28:31], s83 offen offset:{4*i}")
    lab(f"tle_{tl_end.n}")
    tl_end.n += 1
tl_end.n = 0

def srd(dst, ptr, size):
    e(f"s_mov_b32 s{dst}, s{ptr}")
    e(f"s_and_b32 s{dst+1}, s{ptr+1}, 0xffff")
    e(f"s_mov_b32 s{dst+2}, {size}")
    e(f"s_mov_b32 s{dst+3}, 0x00020000")

def kernel_begin(name):
    out.append(".text")
    out.append(f".globl {name}")
    out.append(".p2align 8")
    out.append(f".type {name},@function")
    lab(name)

def kernel_desc(name, vgpr, sgpr=96, agpr=0):
    if STAMP: vgpr = 256
    out.append('.section .rodata,"a"')
    out.append(".p2align 6")
    out.append(f".amdhsa_kernel {name}")
    out.append(f"  .amdhsa_next_free_vgpr {vgpr + agpr}")
    out.append(f"  .amdhsa_next_free_sgpr {sgpr}")
    out.append(f"  .amdhsa_accum_offset {(vgpr+3)//4*4}")
    out.append("  .amdhsa_group_segment_fixed_size 0")
    out.append("  .amdhsa_kernarg_size 112")
    out.append("  .amdhsa_user_sgpr_count 2")
    out.append("  .amdhsa_user_sgpr_kernarg_segment_ptr 1")
    out.append("  .amdhsa_system_sgpr_workgroup_id_x 1")
    out.append(".end_amdhsa_kernel")


def claim_tile(cnt_off, per, lds_off, lbl):
    e("s_cmp_lg_u32 s3, 0")
    e(f"s_cbranch_scc1 {lbl}_w")
    e("s_getreg_b32 s20, hwreg(HW_REG_XCC_ID)")
    e("s_and_b32 s20, s20, 7")
    e("s_mov_b32 s21, 0")
    e("s_mov_b64 s[22:23], exec")
    e("s_mov_b64 exec, 1")
    e("v_mov_b32 v12, 1")
    lab(f"{lbl}_l")
    e("s_lshl_b32 s24, s20, 6")
    e(f"s_add_u32 s24, s24, {WS_CNT + cnt_off}")
    e("v_mov_b32 v13, 0")
    e("v_mov_b32 v14, v12")
    e("buffer_atomic_add v14, v13, s[28:31], s24 offen sc0" + ("" if "asc" in SKIP else " sc1"))
    e("s_waitcnt vmcnt(0)")
    e("v_readfirstlane_b32 s25, v14")
    e(f"s_cmp_lt_u32 s25, {per}")
    e(f"s_cbranch_scc1 {lbl}_f")
    e("s_add_u32 s20, s20, 1")
    e("s_and_b32 s20, s20, 7")
    e("s_add_u32 s21, s21, 1")
    e("s_cmp_lt_u32 s21, 8")
    e(f"s_cbranch_scc1 {lbl}_l")
    e("s_mov_b32 s25, 0")
    lab(f"{lbl}_f")
    e(f"s_mul_i32 s20, s20, {per}")
    e("s_add_u32 s20, s20, s25")
    e("v_mov_b32 v14, s20")
    e(f"v_mov_b32 v13, {lds_off}")
    e("ds_write_b32 v13, v14")
    e("s_mov_b64 exec, s[22:23]")
    e("s_waitcnt lgkmcnt(0)")
    lab(f"{lbl}_w")
    e("s_barrier")
    e(f"v_mov_b32 v13, {lds_off}")
    e("ds_read_b32 v14, v13")
    e("s_waitcnt lgkmcnt(0)")
    e("v_readfirstlane_b32 s2, v14")

LN_WGS, WT_WGS, KG_WGS = 128, (68 if W2MID else 135), 640
PREP_WGS = KG_WGS + LN_WGS + WT_WGS
KG_LDS_WAVE = 512
KG_TAB0 = 2048
KG_TAB = 2688
KG_FIN = KG_TAB0 + 4*KG_TAB
PREP_LDS = 36864
LNS = 36

def gen_wt(wg0, wv0, wvend, endlab, kern, dly):
    if "wt" in SKIP: e("s_endpgm")
    if PRIO & 2: e("s_setprio 3")
    e("s_load_dwordx2 s[40:41], s[0:1], 64")
    e("s_load_dwordx2 s[42:43], s[0:1], 80")
    e("s_sub_u32 s4, s2, %d" % wg0)
    e("s_lshl_b32 s4, s4, 2")
    e("s_add_u32 s4, s4, s3")
    if wv0: e("s_add_u32 s4, s4, %d" % wv0)
    if wvend:
        e("s_cmp_ge_u32 s4, %d" % wvend)
        e("s_cbranch_scc1 %s" % endlab)
    e("s_waitcnt lgkmcnt(0)")
    e("s_cmp_ge_u32 s4, 270")
    e("s_cselect_b32 s40, s42, s40")
    e("s_cselect_b32 s41, s43, s41")
    e("s_mov_b32 s5, 3456")
    e("s_mov_b32 s7, 159072863")
    e("s_mov_b32 s34, %d" % WS_W1F)
    e("s_cselect_b32 s5, 1280, s5")
    e("s_cselect_b32 s6, 10, 27")
    e("s_cselect_b32 s7, 429496730, s7")
    e("s_cselect_b32 s32, 270, 0")
    e("s_cselect_b32 s33, 108, 40")
    e("s_cselect_b32 s34, %d, s34" % WS_W2F)
    srd(8, 40, D*F*2); srd(28, 56, WS_SIZE)
    e("s_sub_u32 s32, s4, s32")
    e("s_lshl_b32 s32, s32, 2")
    e("v_lshrrev_b32 v3, 3, v2")
    e("v_and_b32 v4, 7, v2")
    e("v_mul_lo_u32 v5, v3, s5")
    e("v_lshl_add_u32 v5, v4, 4, v5")
    e("s_lshl_b32 s35, s5, 3")
    e("s_mul_i32 s36, s3, %d" % (4*16*144))
    e("v_mul_u32_u24 v6, 144, v3")
    e("v_lshl_add_u32 v6, v4, 4, v6")
    e("v_add_u32 v6, s36, v6")
    e("v_and_b32 v7, 31, v2")
    e("v_lshrrev_b32 v8, 5, v2")
    e("v_mul_u32_u24 v8, %d, v8" % (8*144))
    e("v_lshl_add_u32 v8, v7, 1, v8")
    e("v_add_u32 v8, s36, v8")
    e("v_lshlrev_b32 v9, 4, v2")
    if dly: e(f"s_sleep {dly}")
    for q in range(4):
        e(f"s_add_u32 s37, s32, {q}")
        e("s_mul_hi_u32 s38, s37, s7")
        e("s_mul_i32 s39, s38, s6")
        e("s_sub_u32 s39, s37, s39")
        e(f"s_lshl_b32 s44, s38, 4")
        e(f"s_mul_i32 s44, s44, s5")
        e(f"s_lshl_b32 s45, s39, 7")
        e(f"s_add_u32 s44, s44, s45")
        e(f"buffer_load_dwordx4 v[{16+8*q}:{19+8*q}], v5, s[8:11], s44 offen")
        e(f"s_add_u32 s44, s44, s35")
        e(f"buffer_load_dwordx4 v[{20+8*q}:{23+8*q}], v5, s[8:11], s44 offen")
        e(f"s_lshl_b32 s45, s39, 1")
        e(f"s_mul_i32 s45, s45, s33")
        e(f"s_add_u32 s45, s45, s38")
        e(f"s_lshl_b32 s45, s45, 10")
        e(f"s_add_u32 s{48+q}, s45, s34")
    e("s_lshl_b32 s33, s33, 10")
    for q in range(4):
        e(f"s_waitcnt vmcnt({6-2*q})")
        e(f"ds_write_b128 v6, v[{16+8*q}:{19+8*q}] offset:{q*16*144}")
        e(f"ds_write_b128 v6, v[{20+8*q}:{23+8*q}] offset:{q*16*144 + 8*144}")
    tl(1)
    for q in range(4):
        e("s_waitcnt lgkmcnt(0)") if q == 0 else None
        for f in range(2):
            for el in range(8):
                e(f"ds_read_u16 v{48+16*(q&1)*2+16*f+el}, v8 offset:{q*16*144 + el*144 + 64*f}")
        if q > 0:
            pass
        e("s_waitcnt lgkmcnt(0)")
        for f in range(2):
            for j in range(4):
                r = 48 + 16*(q&1)*2 + 16*f
                e(f"v_lshl_or_b32 v{112+4*f+j}, v{r+2*j+1}, 16, v{r+2*j}")
            if f == 0:
                e(f"buffer_store_dwordx4 v[112:115], v9, s[28:31], s{48+q} offen")
            else:
                e(f"s_add_u32 s{48+q}, s{48+q}, s33")
                e(f"buffer_store_dwordx4 v[116:119], v9, s[28:31], s{48+q} offen")
        if q < 3:
            e("s_nop 1")
    tl(5)
    if TL: e("s_waitcnt vmcnt(0)")
    tl_end(kern)

def gen_prep():
    kernel_begin("prep_kernel")
    if EMU & 2:
        e("s_cmp_lt_u32 s2, 256")
        e("s_cbranch_scc1 mid_body")
        e("s_sub_u32 s2, s2, 256")
    if PORD:
        e("s_lshr_b32 s4, s2, 7")
        e("s_cmp_eq_u32 s4, 6")
        e("s_cbranch_scc1 prep_end")
        e("s_cmp_gt_u32 s4, 6")
        e("s_cselect_b32 s4, 128, 0")
        e("s_sub_u32 s2, s2, s4")
    e("s_cmp_ge_u32 s2, %d" % PREP_WGS)
    e("s_cbranch_scc1 prep_end")
    e("s_load_dwordx2 s[56:57], s[0:1], 104")
    e("v_lshrrev_b32 v1, 6, v0")
    e("v_and_b32 v2, 63, v0")
    e("s_nop 0")
    e("v_readfirstlane_b32 s3, v1")
    if ORDER:
        e("s_add_u32 s2, s2, %d" % KG_WGS)
        e("s_cmp_ge_u32 s2, %d" % PREP_WGS)
        e("s_cselect_b32 s4, %d, 0" % PREP_WGS)
        e("s_sub_u32 s2, s2, s4")
    tl_begin()
    e("s_cmp_ge_u32 s2, %d" % (KG_WGS + LN_WGS))
    e("s_cbranch_scc1 prep_wt")
    e("s_cmp_ge_u32 s2, %d" % KG_WGS)
    e("s_cbranch_scc1 prep_ln")
    if "kg" in SKIP: e("s_endpgm")
    e("s_load_dwordx4 s[40:43], s[0:1], 8")
    e("s_load_dwordx4 s[44:47], s[0:1], 24")
    e("s_load_dwordx2 s[48:49], s[0:1], 40")
    e("s_mov_b32 s4, s2")
    e("s_mul_i32 s5, s3, %d" % KG_LDS_WAVE)
    e("s_lshl_b32 s6, s4, 8")
    e("s_lshl_b32 s7, s3, 6")
    e("s_add_u32 s6, s6, s7")
    e("v_and_b32 v3, 31, v2")
    e("v_lshl_add_u32 v3, v3, 1, s6")
    e("s_lshl_b32 s7, s4, 1")
    e("v_mov_b32 v4, s7")
    e("s_waitcnt lgkmcnt(0)")
    srd(8, 40, D*N*2); srd(12, 42, D*N*2); srd(16, 44, D*N*2); srd(20, 46, D*N*2)
    srd(24, 48, D*2); srd(28, 56, WS_SIZE)
    for k, sr in enumerate((8, 12, 16, 20)):
        e(f"buffer_load_ushort v{10+k}, v3, s[{sr}:{sr+3}], 0 offen")
    e("buffer_load_ushort v18, v4, s[24:27], 0 offen")
    e("v_and_b32 v8, 15, v2")
    e("v_lshrrev_b32 v9, 4, v2")
    e("v_and_b32 v24, 7, v8")
    e("v_lshrrev_b32 v25, 3, v8")
    e("v_lshl_add_u32 v28, v25, 7, v24")
    e("v_and_b32 v24, 3, v8")
    e("v_lshlrev_b32 v24, 1, v24")
    e("v_bfe_u32 v25, v8, 2, 1")
    e("v_lshl_add_u32 v24, v25, 7, v24")
    e("v_add_u32 v24, 256, v24")
    e("v_and_b32 v25, 1, v8")
    e("v_lshlrev_b32 v25, 2, v25")
    e("v_bfe_u32 v26, v8, 1, 2")
    e("v_lshl_add_u32 v25, v26, 7, v25")
    e("v_add_u32 v25, 512, v25")
    e("v_cmp_gt_u32 vcc, 8, v8")
    e("s_nop 1")
    e("v_cndmask_b32 v29, v25, v24, vcc")
    e("v_lshlrev_b32 v30, 7, v8")
    e("v_add_u32 v30, 0x400, v30")
    e("v_lshlrev_b32 v31, 3, v8")
    for t in range(4):
        e(f"v_cvt_f32_u32 v{28+t}, v{28+t}")
    e("s_mul_i32 s6, s3, %d" % KG_TAB)
    e("s_add_u32 s6, s6, %d" % KG_TAB0)
    e("v_and_b32 v24, 1, v9")
    e("v_lshrrev_b32 v25, 1, v9")
    e("v_lshl_add_u32 v33, v8, 5, s6")
    e("v_lshl_add_u32 v33, v24, 4, v33")
    e("v_lshl_add_u32 v33, v25, 9, v33")
    e("v_lshlrev_b32 v24, 4, v8")
    e("v_lshlrev_b32 v25, 3, v8")
    e("v_cmp_gt_u32 vcc, 2, v9")
    e("s_nop 1")
    e("v_cndmask_b32 v24, v25, v24, vcc")
    e("v_lshl_add_u32 v24, v9, 8, v24")
    e("v_add_u32 v24, s6, v24")
    e("v_add_u32 v34, 1024, v24")
    e("v_mov_b32 v25, 128")
    e("v_cndmask_b32_e64 v24, v25, 8, vcc")
    e("v_add_u32 v36, v34, v24")
    e("v_lshl_add_u32 v38, v8, 2, s6")
    e("v_lshl_add_u32 v38, v9, 8, v38")
    e("v_add_u32 v38, 2048, v38")
    e("v_lshl_add_u32 v39, v9, 4, s5")
    for r in range(40, 52):
        e(f"v_mov_b32 v{r}, 0")
    e("s_waitcnt vmcnt(0)")
    tl(1)
    for r in (10, 11, 12, 13, 18):
        e(f"v_lshlrev_b32 v{r}, 16, v{r}")
    e(f"v_mul_f32 v18, {LOG2E:#x}, v18")
    e(f"v_mul_f32 v10, {LOG2E:#x}, v10")
    e("v_exp_f32 v18, v18")
    e("v_exp_f32 v10, v10")
    e("s_nop 0")
    e("v_cvt_pk_bf16_f32 v18, v18, v18")
    e("v_cvt_pk_bf16_f32 v10, v10, v10")
    e("v_lshlrev_b32 v18, 16, v18")
    e("v_lshlrev_b32 v10, 16, v10")
    e("v_add_f32 v19, v18, v18")
    e("v_and_b32 v5, 31, v2")
    e("v_lshl_add_u32 v5, v5, 4, s5")
    e("v_mul_f32 v20, v10, v18")
    e(f"v_mul_f32 v20, {LOG2E|0x80000000:#x}, v20")
    e("v_mul_f32 v21, v11, v18")
    e(f"v_mul_f32 v21, {INV2PI:#x}, v21")
    e("v_mul_f32 v22, v12, v19")
    e("v_mul_f32 v23, v13, v19")
    e("ds_write_b128 v5, v[20:23]")
    e("s_waitcnt lgkmcnt(0)")
    for st in range(8):
        e(f"ds_read_b128 v[{96+4*st}:{99+4*st}], v39 offset:{64*st}")
    e("s_waitcnt lgkmcnt(0)")
    def kg_valu(st):
        P = 96 + 4*st
        O = 72 + 10*(st & 1)
        v = []
        for t in range(4):
            v.append(f"v_mul_f32 v{52+t}, v{P}, v{28+t}")
            v.append(f"v_mul_f32 v{56+t}, v{P+1}, v{28+t}")
        for t in range(4):
            v.append(f"v_exp_f32 v{52+t}, v{52+t}")
            v.append(f"v_fract_f32 v{56+t}, v{56+t}")
        for t in range(4):
            v.append(f"v_cos_f32 v{60+t}, v{56+t}")
            v.append(f"v_sin_f32 v{64+t}, v{56+t}")
        for t in range(4):
            v.append(f"v_mul_f32 v{60+t}, v{52+t}, v{60+t}")
            v.append(f"v_mul_f32 v{64+t}, v{52+t}, v{64+t}")
        v.append(f"v_mul_f32 v55, v63, v{P+2}")
        v.append(f"v_mul_f32_e64 v59, -v63, v{P+3}")
        v.append(f"v_fma_f32 v55, -v67, v{P+3}, v55")
        v.append(f"v_fma_f32 v59, -v67, v{P+2}, v59")
        def split(xr, xi, H, Lo, t0, t1):
            v.append(f"v_cvt_pk_bf16_f32 v{H}, v{xr}, v{xi}")
            v.append(f"v_lshlrev_b32 v{t0}, 16, v{H}")
            v.append(f"v_and_b32 v{t1}, 0xffff0000, v{H}")
            v.append(f"v_sub_f32 v{t0}, v{xr}, v{t0}")
            v.append(f"v_sub_f32 v{t1}, v{xi}, v{t1}")
            v.append(f"v_cvt_pk_bf16_f32 v{Lo}, v{t0}, v{t1}")
        split(55, 59, O, O+2, 68, 69)
        v.append(f"v_mov_b32 v{O+1}, v{O}")
        v.append(f"v_mov_b32 v{O+3}, v{O+2}")
        for t in range(3):
            split(60+t, 64+t, O+4+2*t, O+5+2*t, 52+t, 56+t)
        return v
    def kg_mfma(st):
        O = 72 + 10*(st & 1)
        m = []
        for h in range(2):
            for t in range(3):
                a = 40 + 4*t
                m.append(f"v_mfma_f32_16x16x16_bf16 v[{a}:{a+3}], v[{O+4+2*t}:{O+5+2*t}], v[{O+2*h}:{O+2*h+1}], v[{a}:{a+3}]")
        return m
    for st in range(9):
        v = kg_valu(st) if st < 8 else []
        m = kg_mfma(st-1) if st > 0 else []
        if "kgm" in SKIP: m = []
        if "kgv" in SKIP: v = []
        if not v:
            e("s_nop 1")
        vi = 0
        for mi, mm_ in enumerate(m):
            tgt = 2 + 7*mi
            while vi < min(tgt, len(v)):
                e(v[vi]); vi += 1
            e(mm_)
        while vi < len(v):
            e(v[vi]); vi += 1
    e("s_nop 15")
    tl(2)
    for r in range(4):
        e(f"ds_write_b32 v33, v{40+r} offset:{4*r}")
    e("ds_write_b32 v34, v44")
    e("ds_write_b32 v34, v45 offset:4")
    e("ds_write_b32 v36, v46")
    e("ds_write_b32 v36, v47 offset:4")
    e("s_mov_b32 exec_hi, 0xffff")
    e("ds_write_b32 v38, v48")
    e("s_mov_b32 exec_hi, 0")
    for r in range(1, 4):
        e(f"ds_write_b32 v38, v{48+r} offset:{64*r}")
    e("s_mov_b32 exec_hi, -1")
    e("s_mul_i32 s4, s4, %d" % KR_STRIDE)
    e("s_add_u32 s4, s4, %d" % WS_KR)
    e("v_lshlrev_b32 v39, 4, v0")
    e("v_lshlrev_b32 v64, 3, v0")
    e("v_sub_u32 v64, 2047, v64")
    e("v_lshlrev_b32 v65, 2, v0")
    e("v_lshlrev_b32 v66, 1, v0")
    for k in range(8):
        e(f"v_subrev_u32 v{52+k}, {k}, v64")
        e(f"v_cvt_f32_u32 v{72+k}, v{52+k}")
    for k in range(4):
        e(f"v_cvt_pk_bf16_f32 v{80+k}, v{72+2*k}, v{73+2*k}")
        e(f"v_and_b32 v{72+2*k}, 0xffff, v{80+k}")
        e(f"v_lshrrev_b32 v{73+2*k}, 16, v{80+k}")
    for k in range(8):
        e(f"v_subrev_u32 v{72+k}, 17024, v{72+k}")
        e(f"v_cmp_gt_u32 vcc, 256, v{52+k}")
        e("s_nop 1")
        e(f"v_cndmask_b32 v{52+k}, v{72+k}, v{52+k}, vcc")
        e(f"v_lshlrev_b32 v{52+k}, 1, v{52+k}")
    e("s_waitcnt lgkmcnt(0)")
    e("s_barrier")
    tl(3)
    for m in range(3):
        for ww in range(4):
            e(f"ds_read_b32 v{72+4*m+ww}, v65 offset:{KG_TAB0 + ww*KG_TAB + 1024*m}")
    for m in range(3):
        e(f"s_waitcnt lgkmcnt({8-4*m})")
        e(f"v_add_f32 v{72+4*m}, v{72+4*m}, v{73+4*m}")
        e(f"v_add_f32 v{74+4*m}, v{74+4*m}, v{75+4*m}")
        e(f"v_add_f32 v{72+4*m}, v{72+4*m}, v{74+4*m}")
        e(f"v_cvt_pk_bf16_f32 v{72+4*m}, v{72+4*m}, v{72+4*m}")
        e(f"ds_write_b16 v66, v{72+4*m} offset:{KG_FIN + 512*m}")
    e("s_waitcnt lgkmcnt(0)")
    e("s_barrier")
    tl(4)
    for k in range(8):
        e(f"ds_read_u16 v{96+k}, v{52+k} offset:{KG_FIN}")
    e("s_waitcnt lgkmcnt(0)")
    for k in range(4):
        e(f"v_lshl_or_b32 v{112+k}, v{97+2*k}, 16, v{96+2*k}")
    e(f"buffer_store_dwordx4 v[112:115], v39, s[28:31], s4 offen")
    for k in range(4):
        e(f"v_mov_b32 v{116+k}, 0")
    e("v_cmp_gt_u32 vcc, 8, v0")
    e("s_and_saveexec_b64 s[32:33], vcc")
    e("s_cbranch_execz prep_end")
    e("s_add_u32 s4, s4, 4096")
    e("buffer_store_dwordx4 v[116:119], v39, s[28:31], s4 offen")
    e("v_lshlrev_b32 v39, 6, v0")
    tl(5)
    if TL: e("s_waitcnt vmcnt(0)")
    tl_end(0)
    e("s_cmp_lg_u32 s2, 0")
    e("s_cbranch_scc1 prep_end")
    e("s_mov_b32 s4, %d" % WS_CNT)
    e("buffer_store_dword v116, v39, s[28:31], s4 offen")
    e("buffer_store_dword v116, v39, s[28:31], s4 offen offset:512")
    e("s_endpgm")
    lab("prep_ln")
    if "ln" in SKIP: e("s_endpgm")
    if PRIO & 1: e("s_setprio 3")
    e("s_load_dwordx2 s[40:41], s[0:1], 0")
    e("s_sub_u32 s2, s2, %d" % KG_WGS)
    e("v_and_b32 v3, 15, v0")
    e("v_lshrrev_b32 v4, 4, v0")
    e("s_lshl_b32 s5, s2, 4")
    e("v_add_u32 v5, s5, v4")
    e("v_mul_u32_u24 v6, 1280, v5")
    e("v_lshl_add_u32 v6, v3, 4, v6")
    e("s_waitcnt lgkmcnt(0)")
    srd(8, 40, L*D*2); srd(28, 56, WS_SIZE)
    if DLYL: e(f"s_sleep {DLYL}")
    for j in range(5):
        e(f"buffer_load_dwordx4 v[{16+4*j}:{19+4*j}], v6, s[8:11], 0 offen offset:{256*j}")
    e("s_lshr_b32 s6, s2, 1")
    e("s_mul_i32 s6, s6, %d" % (40*1024))
    e("s_add_u32 s6, s6, %d" % WS_XNF)
    e("v_lshrrev_b32 v7, 1, v3")
    e("v_lshlrev_b32 v7, 10, v7")
    e("v_and_b32 v8, 1, v3")
    e("v_lshl_add_u32 v7, v8, 9, v7")
    e("v_and_b32 v8, 31, v5")
    e("v_lshl_add_u32 v7, v8, 4, v7")
    e(f"v_mul_u32_u24 v9, {8*LNS}, v3")
    e("v_lshl_add_u32 v9, v4, 1, v9")
    e("s_waitcnt vmcnt(0)")
    tl(1)
    for k in range(20):
        e(f"v_lshlrev_b32 v{40+2*k}, 16, v{16+k}")
        e(f"v_and_b32 v{41+2*k}, 0xffff0000, v{16+k}")
    def lane_sum(srcs, acc):
        for a in range(4):
            e(f"v_add_f32 v{acc+a}, v{srcs[a]}, v{srcs[a+4]}")
        for k in range(8, len(srcs)):
            e(f"v_add_f32 v{acc+(k%4)}, v{acc+(k%4)}, v{srcs[k]}")
        e(f"v_add_f32 v{acc}, v{acc}, v{acc+1}")
        e(f"v_add_f32 v{acc+2}, v{acc+2}, v{acc+3}")
        e(f"v_add_f32 v{acc}, v{acc}, v{acc+2}")
        for sh in (8, 4, 2, 1):
            e("s_nop 1")
            e(f"v_add_f32_dpp v{acc}, v{acc}, v{acc} row_ror:{sh} row_mask:0xf bank_mask:0xf")
    lane_sum(list(range(40, 80)), 10)
    e("v_mul_f32 v14, 0x3acccccd, v10")
    for k in range(40):
        e(f"v_sub_f32 v{80+k}, v{40+k}, v14")
        e(f"v_mul_f32 v{80+k}, v{80+k}, v{80+k}")
    lane_sum(list(range(80, 120)), 10)
    e("v_mul_f32 v10, 0x3acccccd, v10")
    e("v_cvt_pk_bf16_f32 v10, v10, v14")
    e("v_and_b32 v14, 0xffff0000, v10")
    e("v_lshlrev_b32 v10, 16, v10")
    e("v_add_f32 v10, 0x3727c5ac, v10")
    e("v_cvt_pk_bf16_f32 v10, v10, v10")
    e("v_lshlrev_b32 v10, 16, v10")
    e("v_sqrt_f32 v10, v10")
    e("s_nop 0")
    e("v_cvt_pk_bf16_f32 v10, v10, v10")
    e("v_lshlrev_b32 v10, 16, v10")
    e("v_rcp_f32 v11, v10")
    e("s_nop 0")
    e("v_fma_f32 v12, -v10, v11, 2.0")
    e("v_mul_f32 v11, v11, v12")
    for k in range(20):
        e(f"v_sub_f32 v{40+2*k}, v{40+2*k}, v14")
        e(f"v_sub_f32 v{41+2*k}, v{41+2*k}, v14")
        e(f"v_cvt_pk_bf16_f32 v{16+k}, v{40+2*k}, v{41+2*k}")
        e(f"v_lshlrev_b32 v{40+2*k}, 16, v{16+k}")
        e(f"v_and_b32 v{41+2*k}, 0xffff0000, v{16+k}")
        e(f"v_mul_f32 v{40+2*k}, v{40+2*k}, v11")
        e(f"v_mul_f32 v{41+2*k}, v{41+2*k}, v11")
        e(f"v_cvt_pk_bf16_f32 v{16+k}, v{40+2*k}, v{41+2*k}")
    tl(2)
    for j in range(5):
        if "xnf" not in SKIP: e(f"buffer_store_dwordx4 v[{16+4*j}:{19+4*j}], v7, s[28:31], s6 offen")
        if j < 4: e("s_add_u32 s6, s6, 8192")
    for j in range(5):
        for el in range(8):
            r = 16 + 4*j + el//2
            op = "ds_write_b16_d16_hi" if el & 1 else "ds_write_b16"
            e(f"{op} v9, v{r} offset:{(128*j + el)*LNS}")
    e("v_lshrrev_b32 v10, 1, v0")
    e("v_and_b32 v11, 1, v0")
    e(f"v_mul_u32_u24 v12, {LNS}, v10")
    e("v_lshl_add_u32 v12, v11, 4, v12")
    e("v_lshlrev_b32 v13, 4, v0")
    e("s_mul_i32 s6, s2, 20480")
    e("s_add_u32 s6, s6, %d" % WS_XNT)
    e("s_waitcnt lgkmcnt(0)")
    e("s_barrier")
    tl(3)
    for j in range(5):
        e(f"ds_read2_b32 v[{40+4*j}:{41+4*j}], v12 offset0:{(128*j*LNS)//4 % 256} offset1:{(128*j*LNS)//4 % 256 + 1}")
        e(f"ds_read2_b32 v[{42+4*j}:{43+4*j}], v12 offset0:{(128*j*LNS)//4 % 256 + 2} offset1:{(128*j*LNS)//4 % 256 + 3}")
        if j < 4:
            nxt = (128*(j+1)*LNS)//4 // 256 - (128*j*LNS)//4 // 256
            e(f"v_add_u32 v12, {nxt*1024}, v12")
    for j in range(5):
        e(f"s_waitcnt lgkmcnt({2*(4-j)})")
        if "xnt" not in SKIP: e(f"buffer_store_dwordx4 v[{40+4*j}:{43+4*j}], v13, s[28:31], s6 offen")
        if j < 4: e("s_add_u32 s6, s6, %d" % (128*32))
    tl(5)
    if TL: e("s_waitcnt vmcnt(0)")
    tl_end(0)
    e("s_endpgm")
    lab("prep_wt")
    gen_wt(KG_WGS + LN_WGS, 0, 270 if W2MID else 0, "prep_end", 0, DLYW)
    lab("prep_end")
    e("s_endpgm")
    kernel_desc("prep_kernel", 160 if EMU & 4 else 128)

G1_WGS = 256
CV_WGS = 640
W2_WGS = 68 if W2MID else 0
MID_WGS = G1_WGS + CV_WGS + W2_WGS
CS = 4160
def CB(c): return c*CS + (32 if c >= 4 else 0)
UB = CB(7) + CS - 80
G1_NS, G1_BD = int(os.environ.get('G1NS', 5)), int(os.environ.get('G1BD', 4))
MID_LDS = 40960

def mish_pairs(acc0, acc1, b0, b1r, dst, t):
    e(f"v_cvt_pk_bf16_f32 v{t}, v{acc0}, v{acc1}")
    e(f"v_lshlrev_b32 v{t+1}, 16, v{t}")
    e(f"v_and_b32 v{t+2}, 0xffff0000, v{t}")
    e(f"v_add_f32 v{t+1}, v{t+1}, v{b0}")
    e(f"v_add_f32 v{t+2}, v{t+2}, v{b1r}")
    e(f"v_cvt_pk_bf16_f32 v{t}, v{t+1}, v{t+2}")
    e(f"v_lshlrev_b32 v{t+1}, 16, v{t}")
    e(f"v_and_b32 v{t+2}, 0xffff0000, v{t}")
    if MISH2:
        e(f"v_mul_f32 v{t+3}, {LOG2E:#x}, v{t+1}")
        e(f"v_mul_f32 v{t+4}, {LOG2E:#x}, v{t+2}")
        e(f"v_exp_f32 v{t+3}, v{t+3}")
        e(f"v_exp_f32 v{t+4}, v{t+4}")
        e(f"s_nop 0")
        e(f"v_add_f32 v{t+3}, 1.0, v{t+3}")
        e(f"v_add_f32 v{t+4}, 1.0, v{t+4}")
        e(f"v_fmaak_f32 v{t+3}, v{t+3}, v{t+3}, 0x3f800000")
        e(f"v_fmaak_f32 v{t+4}, v{t+4}, v{t+4}, 0x3f800000")
        e(f"v_rcp_f32 v{t+3}, v{t+3}")
        e(f"v_rcp_f32 v{t+4}, v{t+4}")
        e(f"s_nop 0")
        e(f"v_fmaak_f32 v{t+3}, -2.0, v{t+3}, 0x3f800000")
        e(f"v_fmaak_f32 v{t+4}, -2.0, v{t+4}, 0x3f800000")
        e(f"v_mul_f32 v{t+1}, v{t+1}, v{t+3}")
        e(f"v_mul_f32 v{t+2}, v{t+2}, v{t+4}")
    else:
        e(f"v_min_f32 v{t+3}, 0x41a00000, v{t+1}")
        e(f"v_min_f32 v{t+4}, 0x41a00000, v{t+2}")
        e(f"v_mul_f32 v{t+3}, {LOG2E:#x}, v{t+3}")
        e(f"v_mul_f32 v{t+4}, {LOG2E:#x}, v{t+4}")
        e(f"v_exp_f32 v{t+3}, v{t+3}")
        e(f"v_exp_f32 v{t+4}, v{t+4}")
        e(f"s_nop 0")
        e(f"v_add_f32 v{t}, 2.0, v{t+3}")
        e(f"v_add_f32 v{t+5}, 2.0, v{t+4}")
        e(f"v_mul_f32 v{t+3}, v{t+3}, v{t}")
        e(f"v_mul_f32 v{t+4}, v{t+4}, v{t+5}")
        e(f"v_add_f32 v{t}, 2.0, v{t+3}")
        e(f"v_add_f32 v{t+5}, 2.0, v{t+4}")
        e(f"v_rcp_f32 v{t}, v{t}")
        e(f"v_rcp_f32 v{t+5}, v{t+5}")
        e(f"v_mul_f32 v{t+1}, v{t+1}, v{t+3}")
        e(f"v_mul_f32 v{t+2}, v{t+2}, v{t+4}")
        e(f"v_mul_f32 v{t+1}, v{t+1}, v{t}")
        e(f"v_mul_f32 v{t+2}, v{t+2}, v{t+5}")
    e(f"v_cvt_pk_bf16_f32 v{dst}, v{t+1}, v{t+2}")

def mish_quad(ac, T, dst):
    H = [T+4, T+8]; E = [T+6, T+10]; P = [T+12, T+13]
    pr = lambda r: f"v[{r}:{r+1}]"
    for q in range(2): e(f"v_cvt_pk_bf16_f32 v{P[q]}, v{ac+2*q}, v{ac+2*q+1}")
    for q in range(2):
        e(f"v_lshlrev_b32 v{H[q]}, 16, v{P[q]}")
        e(f"v_and_b32 v{H[q]+1}, 0xffff0000, v{P[q]}")
    for q in range(2): e(f"v_pk_add_f32 {pr(H[q])}, {pr(H[q])}, {pr(T+2*q)}")
    for q in range(2): e(f"v_cvt_pk_bf16_f32 v{P[q]}, v{H[q]}, v{H[q]+1}")
    for q in range(2):
        e(f"v_lshlrev_b32 v{H[q]}, 16, v{P[q]}")
        e(f"v_and_b32 v{H[q]+1}, 0xffff0000, v{P[q]}")
    for q in range(2): e(f"v_pk_mul_f32 {pr(E[q])}, {pr(H[q])}, s[46:47]")
    for q in range(2):
        e(f"v_exp_f32 v{E[q]}, v{E[q]}")
        e(f"v_exp_f32 v{E[q]+1}, v{E[q]+1}")
    for q in range(2): e(f"v_pk_add_f32 {pr(E[q])}, {pr(E[q])}, v[40:41]")
    for q in range(2): e(f"v_pk_fma_f32 {pr(E[q])}, {pr(E[q])}, {pr(E[q])}, v[40:41]")
    for q in range(2):
        e(f"v_rcp_f32 v{E[q]}, v{E[q]}")
        e(f"v_rcp_f32 v{E[q]+1}, v{E[q]+1}")
    for q in range(2): e(f"v_pk_fma_f32 {pr(E[q])}, {pr(E[q])}, v[42:43], v[40:41]")
    for q in range(2): e(f"v_pk_mul_f32 {pr(H[q])}, {pr(H[q])}, {pr(E[q])}")
    for q in range(2): e(f"v_cvt_pk_bf16_f32 v{dst+q}, v{H[q]}, v{H[q]+1}")

def gemm_loop(nA, nsteps, KS, NS, frag_reg, acc_reg, voff, srdws, sA0, sB0, stride, spiece, vlds_r_b, vlds_r_lane):
    nR = nA + 4
    npieces = nR * KS
    npw = (npieces + 3) // 4
    SZ = npieces * 1024
    nchunks = nsteps // KS
    assert nsteps % KS == 0
    e(f"s_sub_u32 s{sB0}, s{sB0}, {nA*stride}")
    for i in range(npw):
        g, l = spiece + 2*i, spiece + 2*i + 1
        e(f"s_add_u32 s{l}, s3, {4*i}")
        e(f"s_min_u32 s{l}, s{l}, {npieces-1}")
        sh = {1: 0, 2: 1, 4: 2}[KS]
        e(f"s_lshr_b32 s{g}, s{l}, {sh}")
        e(f"s_cmp_lt_u32 s{g}, {nA}")
        e(f"s_cselect_b32 s6, s{sA0}, s{sB0}")
        e(f"s_mul_i32 s{g}, s{g}, {stride}")
        e(f"s_add_u32 s{g}, s{g}, s6")
        e(f"s_and_b32 s6, s{l}, {KS-1}")
        e(f"s_lshl_b32 s6, s6, 10")
        e(f"s_add_u32 s{g}, s{g}, s6")
        e(f"s_lshl_b32 s{l}, s{l}, 10")
    def dma(c):
        slot = c % NS
        for i in range(npw):
            e(f"s_add_u32 m0, s{spiece+2*i+1}, {slot*SZ}")
            e("s_nop 0")
            e(f"buffer_load_dwordx4 v{voff}, s[{srdws}:{srdws+3}], s{spiece+2*i} offen lds")
        e(f"v_add_u32 v{voff}, {KS*1024}, v{voff}")
    per = nA + 1
    HALF = 2*SZ
    e(f"v_add_u32 v12, {HALF}, v{vlds_r_b}")
    e(f"v_add_u32 v13, {HALF}, v{vlds_r_lane}")
    e(f"v_add_u32 v14, {2*HALF}, v{vlds_r_b}")
    e(f"v_add_u32 v15, {2*HALF}, v{vlds_r_lane}")
    def reads(slot, q):
        fr = frag_reg + 4*per*q
        vb, vl, so = [(vlds_r_b, vlds_r_lane, slot*SZ), (12, 13, slot*SZ - HALF), (14, 15, slot*SZ - 2*HALF)][slot//2]
        e(f"ds_read_b128 v[{fr}:{fr+3}], v{vb} offset:{so + q*1024}")
        for a in range(nA):
            e(f"ds_read_b128 v[{fr+4+4*a}:{fr+7+4*a}], v{vl} offset:{so + a*KS*1024 + q*1024}")
    def mfmas(q):
        fr = frag_reg + 4*per*q
        for a in range(nA):
            ac = acc_reg + 16*a
            e(f"v_mfma_f32_32x32x16_bf16 v[{ac}:{ac+15}], v[{fr+4+4*a}:{fr+7+4*a}], v[{fr}:{fr+3}], v[{ac}:{ac+15}]")
    for c in range(min(NS-1, nchunks)):
        dma(c)
    for c in range(nchunks):
        inflight = min(NS-2, nchunks-1-c)
        e(f"s_waitcnt vmcnt({inflight*npw})")
        e("s_barrier")
        if nA == 2 and c == 0: stamp(2)
        if nA == 2 and c == 1: stamp(3)
        slot = c % NS
        if "rd" not in SKIP:
            for q in range(KS):
                reads(slot, q)
        if c + NS - 1 < nchunks and "dma" not in SKIP:
            dma(c + NS - 1)
        for q in range(KS):
            e(f"s_waitcnt lgkmcnt({(KS-1-q)*per})")
            if "mf" not in SKIP: mfmas(q)


UB2 = CB(7) + CS
HS = 2432
def gen_conv2():
    if "cv" in SKIP: e("s_endpgm")
    if PRIO & 8: e("s_setprio 3")
    srd(8, 60, D*2)
    e("s_sub_u32 s4, s2, %d" % G1_WGS)
    e("s_and_b32 s5, s4, 7")
    e("s_lshl_b32 s5, s5, 2")
    e("s_bfe_u32 s6, s4, 0x20003")
    e("s_or_b32 s5, s5, s6")
    e("s_andn2_b32 s4, s4, 31")
    e("s_or_b32 s4, s4, s5")
    e("s_lshl_b32 s5, s4, 1")
    e("v_mov_b32 v3, s5")
    if DLYC: e(f"s_sleep {DLYC}")
    e("buffer_load_ushort v1, v3, s[8:11], 0 offen")
    e("s_lshl_b32 s5, s4, 5")
    e("s_add_u32 s5, s5, %d" % WS_XNT)
    e("v_lshrrev_b32 v4, 1, v0")
    e("v_mul_u32_u24 v4, 20480, v4")
    e("v_and_b32 v5, 1, v0")
    e("v_lshl_add_u32 v4, v5, 4, v4")
    e("buffer_load_dwordx4 v[8:11], v4, s[28:31], s5 offen")
    e("v_lshlrev_b32 v4, 4, v0")
    e("s_mul_i32 s6, s4, %d" % KR_STRIDE)
    e("s_add_u32 s6, s6, %d" % WS_KR)
    e("buffer_load_dwordx4 v[12:15], v4, s[28:31], s6 offen")
    e("buffer_load_dwordx4 v[16:19], v4, s[28:31], s6 offen offset:16")
    if not CV3:
        e("v_min_u32 v5, 3, v0")
        e("v_lshlrev_b32 v5, 4, v5")
        e("v_add_u32 v5, 4096, v5")
        e("buffer_load_dwordx4 v[20:23], v5, s[28:31], s6 offen")
        e("buffer_load_dwordx4 v[24:27], v5, s[28:31], s6 offen offset:16")
    for k in range(4):
        e(f"v_mov_b32 v{28+k}, 0")
    e("v_min_u32 v6, 31, v0")
    e("v_lshrrev_b32 v7, 4, v6")
    e("v_and_b32 v6, 15, v6")
    e("v_lshlrev_b32 v6, 4, v6")
    e(f"v_mad_u32_u24 v6, v7, {HS}, v6") if False else (e(f"v_mul_u32_u24 v7, {HS}, v7"), e("v_add_u32 v6, v6, v7"))
    if CV3:
        e("s_cmp_lg_u32 s3, 0")
        e("s_cbranch_scc1 cv_nz")
        e(f"v_add_u32 v6, {UB2}, v6")
        e("v_subrev_u32 v7, 32, v0")
        e("v_min_u32 v7, 7, v7")
        e("v_lshrrev_b32 v5, 2, v7")
        e(f"v_mul_u32_u24 v7, {CS}, v7")
        e("v_lshl_add_u32 v7, v5, 5, v7")
        e("v_add_u32 v7, 4096, v7")
        e("v_cmp_gt_u32 vcc, 32, v0")
        e("s_nop 1")
        e("v_cndmask_b32 v6, v7, v6, vcc")
        e("s_mov_b32 exec_hi, 0xff")
        e("ds_write_b128 v6, v[28:31]")
        e("s_mov_b32 exec_hi, -1")
        lab("cv_nz")
    else:
        e(f"ds_write_b128 v6, v[28:31] offset:{UB2}")
    e("v_lshrrev_b32 v6, 1, v0")
    e("v_lshlrev_b32 v6, 4, v6")
    e("v_and_b32 v7, 1, v0")
    e(f"v_mul_u32_u24 v7, {HS}, v7")
    e("v_add_u32 v6, v6, v7")
    e("s_waitcnt vmcnt(%d)" % (2 if CV3 else 4))
    e(f"ds_write_b128 v6, v[8:11] offset:{UB2 + 256}")
    def copies(w, vaddr):
        for c in range(8):
            if c % 2 == 0:
                e(f"ds_write_b128 v{vaddr}, v[{w+c//2}:{w+c//2+3}] offset:{CB(c)}") if (w + c//2) % 2 == 0 else None
                if (w + c//2) % 2:
                    for j in range(4):
                        e(f"v_mov_b32 v{32+j}, v{w+c//2+j}")
                    e(f"ds_write_b128 v{vaddr}, v[32:35] offset:{CB(c)}")
            else:
                for j in range(4):
                    e(f"v_alignbit_b32 v{36+j}, v{w+(c+1)//2+j}, v{w+(c-1)//2+j}, 16")
                e(f"ds_write_b128 v{vaddr}, v[36:39] offset:{CB(c)}")
    e("s_waitcnt vmcnt(%d)" % (0 if CV3 else 2))
    tl(1)
    copies(12, 4)
    if not CV3:
        e("s_waitcnt vmcnt(0)")
        copies(20, 5)
    e("v_and_b32 v3, 15, v2")
    e("v_lshrrev_b32 v4, 4, v2")
    e("v_sub_u32 v5, 7, v3")
    e("v_and_b32 v5, 7, v5")
    e("v_sub_u32 v6, 2031, v3")
    e("v_lshl_add_u32 v6, v4, 3, v6")
    e("v_sub_u32 v6, v6, v5")
    e("v_mul_u32_u24 v7, %d, v5" % CS)
    e("v_lshrrev_b32 v8, 2, v5")
    e("v_lshl_add_u32 v7, v8, 5, v7")
    e("v_lshl_add_u32 v6, v6, 1, v7")
    e("s_lshl_b32 s5, s3, 7")
    e(f"s_add_u32 s5, s5, {64 + 3584}")
    e("v_subrev_u32 v8, s5, v6")
    e("v_and_b32 v5, 1, v4")
    e("v_lshrrev_b32 v6, 1, v4")
    e(f"v_mul_u32_u24 v7, {HS}, v5")
    e("v_add_u32 v9, v3, v6")
    e("v_lshl_add_u32 v9, v9, 4, v7")
    e("s_lshl_b32 s5, s3, 6")
    e(f"s_sub_u32 s5, {UB2 + 16*15 - 32}, s5")
    e("v_add_u32 v9, s5, v9")
    e(f"v_mul_u32_u24 v11, {HS}, v6")
    e("v_lshl_add_u32 v11, v3, 4, v11")
    e("v_lshl_add_u32 v11, v5, 3, v11")
    e("s_lshl_b32 s5, s3, 9")
    e("v_add_u32 v11, s5, v11")
    e("v_lshlrev_b32 v12, 5, v3")
    e("v_lshl_add_u32 v12, v4, 3, v12")
    e("v_lshlrev_b32 v10, 4, v2")
    e("s_lshl_b32 s5, s3, 13")
    e("v_add_u32 v13, s5, v10")
    e("s_lshl_b32 s5, s3, 10")
    e("v_add_u32 v10, s5, v10")
    for r in range(16, 48):
        e(f"v_mov_b32 v{r}, 0")
    e("s_waitcnt lgkmcnt(0)")
    tl(2)
    e("s_barrier")
    tl(3)
    free = list(range(48, 128, 4))
    loc = {}
    pend = []
    order = [("A",0),("B",7),("B",0),("A",7),("A",1),("B",6),("B",1),("A",6),("A",2),("B",5),("B",2),("A",5),("A",3),("B",4),("B",3),("A",4)]
    todo = [(st,) + o for st in range(2) for o in order]
    def rd(n):
        for _ in range(n):
            if not todo or not free or len(pend) >= 15: return
            key = todo.pop(0); r = free.pop(0); loc[key] = r
            st, ab, i = key
            if ab == "A": e(f"ds_read_b128 v[{r}:{r+3}], v8 offset:{512*(7-i) + 64*(1-st)}")
            else: e(f"ds_read_b128 v[{r}:{r+3}], v9 offset:{256*i + 32*(1-st)}")
            pend.append(key)
    def need(keys):
        idx = [pend.index(k) for k in keys if k in pend]
        if idx:
            last = max(idx)
            e(f"s_waitcnt lgkmcnt({len(pend) - 1 - last})")
            del pend[:last+1]
    groups = []
    for s_ in (7, 6, 5, 4, 3, 2, 1, 0):
        n = min(s_, 7 - s_)
        g = [(s_, m) for m in range(n + 1)] + [(j, s_) for j in range(min(s_ - 1, 7 - s_) + 1)]
        groups.append((s_, g))
    assert sum(len(g) for _, g in groups) == 36
    rd(20)
    for st in range(2):
        for s_, g in groups:
            need([(st, "B", j) for j, m in g] + [(st, "A", m) for j, m in g])
            for j, m in g:
                ac = 16 + 4*(j + m); a = loc[(st, "A", m)]; b = loc[(st, "B", j)]
                e(f"v_mfma_f32_16x16x32_bf16 v[{ac}:{ac+3}], v[{a}:{a+3}], v[{b}:{b+3}], v[{ac}:{ac+3}]")
            free.append(loc[(st, "A", s_)]); free.append(loc[(st, "B", s_)])
            rd(8)
    assert not todo and not pend
    tl(4)
    e("s_nop 15")
    e("s_barrier")
    for t in range(8):
        if CV3 & 2 and t % 2 == 0:
            e(f"s_cmp_eq_u32 s3, {t//2}")
            e(f"s_cbranch_scc1 cv_sk{t//2}")
        e(f"ds_write_b128 v10, v[{16+4*t}:{19+4*t}] offset:{4096*t}")
        if CV3 & 2 and t % 2 == 1:
            e(f"s_branch cv_nx{t//2}")
            lab(f"cv_sk{t//2}")
            for tt in range(2):
                for r in range(4):
                    e(f"v_mov_b32 v{48+16*tt+r}, v{16+4*(t-1+tt)+r}")
            lab(f"cv_nx{t//2}")
    if CV3 & 2:
        for i in range(1, 4):
            e(f"s_add_u32 s5, s3, {i}")
            e("s_and_b32 s5, s5, 3")
            e("s_lshl_b32 s5, s5, 10")
            e(f"v_add_u32 v{4+i}, s5, v13")
    for tt in range(2):
        e(f"ds_read_b64 v[{80+2*tt}:{81+2*tt}], v11 offset:{UB2 + 256 + 256*tt}")
    e("s_lshl_b32 s5, s4, 12")
    e("s_lshl_b32 s6, s3, 10")
    e("s_add_u32 s5, s5, s6")
    e("s_add_u32 s5, s5, %d" % WS_AT)
    e("v_lshlrev_b32 v1, 16, v1")
    e("s_waitcnt lgkmcnt(0)")
    e("s_barrier")
    for i in range(8):
        if CV3 & 2:
            if i % 4: e(f"ds_read_b128 v[{48+4*i}:{51+4*i}], v{4+i%4} offset:{4096*(i//4)}")
        else:
            e(f"ds_read_b128 v[{48+4*i}:{51+4*i}], v13 offset:{1024*i}")
    for tt in range(2):
        for p_ in range(2):
            u = 80 + 2*tt + p_
            e(f"v_lshlrev_b32 v84, 16, v{u}")
            e(f"v_and_b32 v85, 0xffff0000, v{u}")
            e(f"v_mul_f32 v84, v84, v1")
            e(f"v_mul_f32 v85, v85, v1")
            e(f"v_cvt_pk_bf16_f32 v84, v84, v85")
            e(f"v_lshlrev_b32 v{88+4*tt+2*p_}, 16, v84")
            e(f"v_and_b32 v{89+4*tt+2*p_}, 0xffff0000, v84")
    for tt in range(2):
        e(f"s_waitcnt lgkmcnt({(3 - 3*tt) if CV3 & 2 else (4 - 4*tt)})")
        b0 = 48 + 16*tt
        for r in range(4):
            e(f"v_add_f32 v{b0+r}, v{b0+r}, v{b0+4+r}")
            e(f"v_add_f32 v{b0+8+r}, v{b0+8+r}, v{b0+12+r}")
        for r in range(4):
            e(f"v_add_f32 v{b0+r}, v{b0+r}, v{b0+8+r}")
        for p_ in range(2):
            e(f"v_cvt_pk_bf16_f32 v84, v{b0+2*p_}, v{b0+2*p_+1}")
            e(f"v_lshlrev_b32 v85, 16, v84")
            e(f"v_and_b32 v86, 0xffff0000, v84")
            e(f"v_add_f32 v85, v85, v{88+4*tt+2*p_}")
            e(f"v_add_f32 v86, v86, v{89+4*tt+2*p_}")
            e(f"v_cvt_pk_bf16_f32 v{96+2*tt+p_}, v85, v86")
        e(f"buffer_store_dwordx2 v[{96+2*tt}:{97+2*tt}], v12, s[28:31], s5 offen offset:{512*tt}")
    tl(5)
    if TL: e("s_waitcnt vmcnt(0)")
    tl_end(1)

def gen_mid():
    kernel_begin("mid_kernel")
    e("s_cmp_ge_u32 s2, %d" % MID_WGS)
    e("s_cbranch_scc1 mid_end")
    if EMU & 2:
        e("s_cmp_lt_u32 s2, 256")
        e("s_cbranch_scc1 mid_end")
    lab("mid_body")
    tl_begin()
    e("s_load_dwordx2 s[56:57], s[0:1], 104")
    e("s_load_dwordx2 s[58:59], s[0:1], 72")
    e("s_load_dwordx2 s[60:61], s[0:1], 48")
    e("v_lshrrev_b32 v1, 6, v0")
    e("v_and_b32 v2, 63, v0")
    e("s_nop 0")
    e("v_readfirstlane_b32 s3, v1")
    e("s_waitcnt lgkmcnt(0)")
    srd(28, 56, WS_SIZE)
    if W2MID:
        e("s_cmp_ge_u32 s2, %d" % (G1_WGS + CV_WGS))
        e("s_cbranch_scc1 mid_wt")
    e("s_cmp_ge_u32 s2, %d" % G1_WGS)
    e("s_cbranch_scc1 mid_conv")
    if "g1" in SKIP: e("s_endpgm")
    if PRIO & 4: e("s_setprio 3")
    srd(8, 58, F*2)
    tl(1)
    if not EMU & 1: claim_tile(0, 32, 7168*G1_NS, "mcl")
    tl(2)
    if G1MAP == 0:
        e("s_lshr_b32 s5, s2, 4")
        e("s_and_b32 s4, s2, 15")
    else:
        e("s_lshr_b32 s5, s2, 6")
        e("s_lshl_b32 s5, s5, 2")
        e("s_bfe_u32 s6, s2, 0x20003")
        e("s_add_u32 s5, s5, s6")
        e("s_bfe_u32 s4, s2, 0x10005")
        e("s_lshl_b32 s4, s4, 3")
        e("s_and_b32 s6, s2, 7")
        e("s_add_u32 s4, s4, s6")
    e("s_mul_i32 s6, s4, 7")
    e("s_sub_u32 s7, s4, 12")
    e("s_cmp_lt_u32 s4, 12")
    e("s_cselect_b32 s7, 0, s7")
    e("s_cselect_b32 s26, 7, 6")
    e("s_sub_u32 s4, s6, s7")
    e("v_and_b32 v3, 15, v2")
    e("v_lshrrev_b32 v4, 4, v2")
    e("v_lshrrev_b32 v5, 1, v4")
    e("v_and_b32 v6, 1, v4")
    e("v_lshlrev_b32 v7, 4, v3")
    e("v_lshl_add_u32 v7, v5, 10, v7")
    e("v_lshl_add_u32 v7, v6, 9, v7")
    e("v_mov_b32 v8, v7")
    for k in range(2):
        e(f"s_add_u32 s6, s3, {4*k}")
        e("s_min_u32 s6, s6, 6")
        e(f"s_lshl_b32 s{42+k}, s6, 10")
        e("s_add_u32 s6, s6, s4")
        e("s_min_u32 s6, s6, 107")
        e(f"s_lshr_b32 s{40+k}, s6, 1")
        e(f"s_mul_i32 s{40+k}, s{40+k}, {40*1024}")
        e("s_and_b32 s6, s6, 1")
        e("s_lshl_b32 s6, s6, 8")
        e(f"s_add_u32 s{40+k}, s{40+k}, s6")
        e(f"s_add_u32 s{40+k}, s{40+k}, {WS_W1F}")
    e("s_lshl_b32 s6, s5, 2")
    e("s_add_u32 s27, s6, s3")
    e("s_mul_i32 s44, s27, %d" % (40*1024))
    e("s_add_u32 s44, s44, %d" % WS_XNF)
    if "g1y" in SKIP:
        e("s_xor_b32 s45, s27, 1")
        e("s_mul_i32 s45, s45, %d" % (40*1024))
    e("v_lshlrev_b32 v9, 4, v2")
    NS, BD, NSTEP = G1_NS, G1_BD, 20
    NB = int(os.environ.get("G1NB", 6))
    AF, BF, ACC, BI = 16, 16 + 4*NB, 16 + 4*NB + 8*G1_BD, 44
    assert ACC + 56 <= 128
    pend = []
    def dma(st):
        for k in range(2):
            e(f"s_add_u32 m0, s{42+k}, {(st % NS)*7168}")
            e("s_nop 0")
            e(f"buffer_load_dwordx4 v7, s[28:31], s{40+k} offen lds")
            pend.append(("a", st))
        e("v_add_u32 v7, 2048, v7")
    def bld(st):
        r = BF + 8*(st % BD)
        e(f"buffer_load_dwordx4 v[{r}:{r+3}], v8, s[28:31], s44 offen")
        e(f"buffer_load_dwordx4 v[{r+4}:{r+7}], v8, s[28:31], s44 offen offset:256")
        pend.append(("b", st)); pend.append(("b", st))
        if "g1y" in SKIP:
            e(f"buffer_load_dwordx4 v[{r}:{r+3}], v8, s[28:31], s45 offen")
            e(f"buffer_load_dwordx4 v[{r+4}:{r+7}], v8, s[28:31], s45 offen offset:256")
            pend.append(("b", st)); pend.append(("b", st))
        e("v_add_u32 v8, 2048, v8")
    def wait_for(*tags):
        idx = [i for i, p in enumerate(pend) if p in tags]
        if not idx: return
        last = max(idx)
        e(f"s_waitcnt vmcnt({len(pend) - 1 - last})")
        del pend[:last+1]
    def rdA(g):
        st, t = divmod(g, 7)
        if st >= NSTEP: return
        r = AF + 4*(g % NB)
        e(f"ds_read_b128 v[{r}:{r+3}], v9 offset:{(st % NS)*7168 + 1024*t}")
    for st in range(max(NS-1, BD)):
        if st < NS-1: dma(st)
        if st < BD: bld(st)
    e("s_lshl_b32 s6, s4, 5")
    e("v_lshl_add_u32 v10, v4, 3, s6")
    for r in range(ACC, ACC+56):
        e(f"v_mov_b32 v{r}, 0")
    wait_for(("a", 0))
    e("s_barrier")
    tl(3)
    for t in range(NB): rdA(t)
    for st in range(NSTEP):
        if st + 1 < NSTEP:
            wait_for(("a", st+1), ("b", st))
            e("s_barrier")
            if st - 1 + NS < NSTEP: dma(st - 1 + NS)
        else:
            wait_for(("b", st))
        rb = BF + 8*(st % BD)
        for t in range(7):
            g = 7*st + t
            e(f"s_waitcnt lgkmcnt({min(NB - 1, 7*NSTEP - 1 - g)})")
            ra_ = AF + 4*(g % NB)
            for b_ in range(2):
                ac = ACC + 4*(2*t + b_)
                e(f"v_mfma_f32_16x16x32_bf16 v[{ac}:{ac+3}], v[{ra_}:{ra_+3}], v[{rb+4*b_}:{rb+4*b_+3}], v[{ac}:{ac+3}]")
            rdA(g + NB)
        if st + BD < NSTEP: bld(st + BD)
        if st == NSTEP - 2:
            assert BD >= 3
            free = [BF + 8*((NSTEP-3) % BD), BF + 8*((NSTEP-2) % BD)]
            BIr = [free[0] + 2*k for k in range(4)] + [free[1] + 2*k for k in range(3)]
            for t in range(7):
                e(f"buffer_load_dwordx2 v[{BIr[t]}:{BIr[t]+1}], v10, s[8:11], 0 offen offset:{32*t}")
                pend.append(("c", 0))
    e("s_nop 7")
    e("s_waitcnt vmcnt(0)")
    tl(4)
    e("s_mul_i32 s6, s27, 108")
    e("s_add_u32 s6, s6, s4")
    e("s_lshl_b32 s6, s6, 10")
    e("s_add_u32 s6, s6, %d" % WS_ACT)
    e("v_lshlrev_b32 v9, 4, v3")
    e("v_lshl_add_u32 v9, v5, 9, v9")
    e("v_lshl_add_u32 v9, v6, 3, v9")
    T = 16
    if MISH2 == 2:
        e(f"s_mov_b32 s46, {LOG2E:#x}")
        e(f"s_mov_b32 s47, {LOG2E:#x}")
        e("v_mov_b32 v40, 1.0"); e("v_mov_b32 v41, 1.0")
        e("v_mov_b32 v42, -2.0"); e("v_mov_b32 v43, -2.0")
    for t in range(7):
        if t == 6:
            e("s_cmp_lt_u32 s26, 7")
            e("s_cbranch_scc1 g1_end")
        r = BIr[t]
        e(f"v_lshlrev_b32 v{T}, 16, v{r}")
        e(f"v_and_b32 v{T+1}, 0xffff0000, v{r}")
        e(f"v_lshlrev_b32 v{T+2}, 16, v{r+1}")
        e(f"v_and_b32 v{T+3}, 0xffff0000, v{r+1}")
        for b_ in range(2):
            ac = ACC + 4*(2*t + b_)
            d0 = T + 16 + 2*((2*t + b_) % 4)
            if MISH2 == 2:
                mish_quad(ac, T, d0)
            else:
                mish_pairs(ac, ac+1, T, T+1, d0, T+4)
                mish_pairs(ac+2, ac+3, T+2, T+3, d0+1, T+10)
            off = (t % 4)*1024 + 256*b_
            e(f"buffer_store_dwordx2 v[{d0}:{d0+1}], v9, s[28:31], s6 offen offset:{off}")
        if t == 3: e("s_add_u32 s6, s6, 4096")
    lab("g1_end")
    tl(5)
    if TL: e("s_waitcnt vmcnt(0)")
    tl_end(1)
    e("s_endpgm")
    lab("mid_conv")
    if CONV2:
        gen_conv2()
    else:
        if "cv" in SKIP: e("s_endpgm")
        if PRIO & 8: e("s_setprio 3")
        srd(8, 60, D*2)
        e("s_sub_u32 s4, s2, %d" % G1_WGS)
        e("s_and_b32 s5, s4, 7")
        e("s_lshl_b32 s5, s5, 2")
        e("s_bfe_u32 s6, s4, 0x20003")
        e("s_or_b32 s5, s5, s6")
        e("s_andn2_b32 s4, s4, 31")
        e("s_or_b32 s4, s4, s5")
        e("s_lshl_b32 s5, s4, 1")
        e("v_mov_b32 v3, s5")
        if DLYC: e(f"s_sleep {DLYC}")
        e("buffer_load_ushort v1, v3, s[8:11], 0 offen")
        e("s_lshl_b32 s5, s4, 5")
        e("s_add_u32 s5, s5, %d" % WS_XNT)
        e("v_lshrrev_b32 v4, 1, v0")
        e("v_mul_u32_u24 v4, 20480, v4")
        e("v_and_b32 v5, 1, v0")
        e("v_lshl_add_u32 v4, v5, 4, v4")
        e("buffer_load_dwordx4 v[8:11], v4, s[28:31], s5 offen")
        e("v_lshlrev_b32 v4, 4, v0")
        e("s_mul_i32 s6, s4, %d" % KR_STRIDE)
        e("s_add_u32 s6, s6, %d" % WS_KR)
        e("buffer_load_dwordx4 v[12:15], v4, s[28:31], s6 offen")
        e("buffer_load_dwordx4 v[16:19], v4, s[28:31], s6 offen offset:16")
        e("v_min_u32 v5, 3, v0")
        e("v_lshlrev_b32 v5, 4, v5")
        e("v_add_u32 v5, 4096, v5")
        e("buffer_load_dwordx4 v[20:23], v5, s[28:31], s6 offen")
        e("buffer_load_dwordx4 v[24:27], v5, s[28:31], s6 offen offset:16")
        for k in range(4):
            e(f"v_mov_b32 v{28+k}, 0")
        e("v_min_u32 v6, 154, v0")
        e("v_lshlrev_b32 v6, 4, v6")
        e(f"ds_write_b128 v6, v[28:31] offset:{UB + 80}")
        e("v_lshrrev_b32 v6, 2, v0")
        e("v_mul_u32_u24 v6, 80, v6")
        e("v_and_b32 v7, 3, v0")
        e("v_lshl_add_u32 v6, v7, 4, v6")
        e("s_waitcnt vmcnt(4)")
        e(f"ds_write_b128 v6, v[8:11] offset:{UB + 32*80}")
        def copies(w, vaddr):
            for c in range(8):
                if c % 2 == 0:
                    e(f"ds_write_b128 v{vaddr}, v[{w+c//2}:{w+c//2+3}] offset:{CB(c)}") if (w + c//2) % 2 == 0 else None
                    if (w + c//2) % 2:
                        for j in range(4):
                            e(f"v_mov_b32 v{32+j}, v{w+c//2+j}")
                        e(f"ds_write_b128 v{vaddr}, v[32:35] offset:{CB(c)}")
                else:
                    for j in range(4):
                        e(f"v_alignbit_b32 v{36+j}, v{w+(c+1)//2+j}, v{w+(c-1)//2+j}, 16")
                    e(f"ds_write_b128 v{vaddr}, v[36:39] offset:{CB(c)}")
        e("s_waitcnt vmcnt(2)")
        tl(1)
        copies(12, 4)
        e("s_waitcnt vmcnt(0)")
        copies(20, 5)
        e("s_waitcnt lgkmcnt(0)")
        tl(2)
        e("s_barrier")
        tl(3)
        e("v_and_b32 v3, 31, v2")
        e("v_lshrrev_b32 v4, 5, v2")
        e("v_sub_u32 v5, 7, v3")
        e("v_and_b32 v5, 7, v5")
        e("v_sub_u32 v6, 2047, v3")
        e("v_lshl_add_u32 v6, v4, 3, v6")
        e("v_sub_u32 v6, v6, v5")
        e("v_mul_u32_u24 v7, %d, v5" % CS)
        e("v_lshrrev_b32 v8, 2, v5")
        e("v_lshl_add_u32 v7, v8, 5, v7")
        e("v_lshl_add_u32 v6, v6, 1, v7")
        e("v_mul_u32_u24 v7, 80, v3")
        e("v_lshl_add_u32 v7, v4, 4, v7")
        e(f"v_add_u32 v7, {UB + 32*80}, v7")
        for r in range(16, 48):
            e(f"v_mov_b32 v{r}, 0")
        e("s_lshl_b32 s5, s3, 9")
        e(f"s_add_u32 s5, s5, {64*7 + 64*32}")
        e("v_subrev_u32 v8, s5, v6")
        e("s_mul_i32 s5, s3, 640")
        e(f"s_add_u32 s5, s5, {80*7}")
        e("v_subrev_u32 v9, s5, v7")
        def rd(q):
            base = 48 + (q & 1)*32
            for t in range(2):
                fa = base + 16*t
                e(f"ds_read_b128 v[{fa}:{fa+3}], v8 offset:{64*(7-q) + 2048 + 32*t}")
                e(f"ds_read_b128 v[{fa+4}:{fa+7}], v9 offset:{80*(7-q) + 32*t}")
                e(f"ds_read_b128 v[{fa+8}:{fa+11}], v9 offset:{80*(7-q) + 2560 + 32*t}")
                e(f"ds_read_b128 v[{fa+12}:{fa+15}], v8 offset:{64*(7-q) + 32*t}")
        def mm(q):
            base = 48 + (q & 1)*32
            for t in range(2):
                fa = base + 16*t
                e(f"v_mfma_f32_32x32x16_bf16 v[16:31], v[{fa}:{fa+3}], v[{fa+4}:{fa+7}], v[16:31]")
                e(f"v_mfma_f32_32x32x16_bf16 v[32:47], v[{fa}:{fa+3}], v[{fa+8}:{fa+11}], v[32:47]")
                e(f"v_mfma_f32_32x32x16_bf16 v[32:47], v[{fa+12}:{fa+15}], v[{fa+4}:{fa+7}], v[32:47]")
        rd(0)
        for q in range(8):
            if q < 7:
                rd(q + 1)
                e("s_waitcnt lgkmcnt(8)")
            else:
                e("s_waitcnt lgkmcnt(0)")
            mm(q)
        tl(4)
        e("s_nop 15")
        e("s_barrier")
        e("v_lshlrev_b32 v10, 4, v2")
        e("s_cmp_eq_u32 s3, 0")
        e("s_cbranch_scc1 cv_w0")
        e("s_sub_u32 s5, s3, 1")
        e("s_lshl_b32 s5, s5, 12")
        e("v_add_u32 v11, s5, v10")
        for r in range(4):
            e(f"ds_write_b128 v11, v[{16+4*r}:{19+4*r}] offset:{1024*r}")
        lab("cv_w0")
        e("s_cmp_eq_u32 s3, 1")
        e("s_cbranch_scc1 cv_w1")
        e("s_sub_u32 s5, s3, 1")
        e("s_max_i32 s5, s5, 0")
        e("s_lshl_b32 s5, s5, 12")
        e("v_add_u32 v11, s5, v10")
        for r in range(4):
            e(f"ds_write_b128 v11, v[{32+4*r}:{35+4*r}] offset:{12288 + 1024*r}")
        e("s_branch cv_w2")
        lab("cv_w1")
        for r in range(16):
            e(f"v_mov_b32 v{16+r}, v{32+r}")
        e("v_add_u32 v10, 12288, v10")
        lab("cv_w2")
        e("s_waitcnt lgkmcnt(0)")
        e("s_barrier")
        e("s_cmp_ge_u32 s3, 2")
        e("s_cbranch_scc1 mid_end")
        for sl in range(3):
            for r in range(4):
                e(f"ds_read_b128 v[{48+16*sl+4*r}:{51+16*sl+4*r}], v10 offset:{4096*sl + 1024*r}")
        for sl in range(3):
            e(f"s_waitcnt lgkmcnt({8-4*sl})")
            for r in range(16):
                e(f"v_add_f32 v{16+r}, v{16+r}, v{48+16*sl+r}")
        lab("cv_epi")
        e("s_mul_i32 s5, s3, %d" % (32*80))
        e("v_mul_u32_u24 v11, 80, v3")
        e("v_lshl_add_u32 v11, v4, 3, v11")
        e("v_add_u32 v11, s5, v11")
        for g in range(4):
            e(f"ds_read_b64 v[{32+2*g}:{33+2*g}], v11 offset:{UB + 32*80 + 16*g}")
        e("s_lshl_b32 s5, s4, 12")
        e("s_lshl_b32 s6, s3, 11")
        e("s_add_u32 s5, s5, s6")
        e("s_add_u32 s5, s5, %d" % WS_AT)
        e("v_lshlrev_b32 v12, 6, v3")
        e("v_lshl_add_u32 v12, v4, 3, v12")
        e("s_waitcnt vmcnt(0) lgkmcnt(0)")
        e("v_lshlrev_b32 v1, 16, v1")
        for g in range(4):
            for p in range(2):
                u = 32 + 2*g + p
                y0 = 16 + 4*g + 2*p
                e(f"v_lshlrev_b32 v44, 16, v{u}")
                e(f"v_and_b32 v45, 0xffff0000, v{u}")
                e(f"v_mul_f32 v44, v44, v1")
                e(f"v_mul_f32 v45, v45, v1")
                e(f"v_cvt_pk_bf16_f32 v44, v44, v45")
                e(f"v_cvt_pk_bf16_f32 v46, v{y0}, v{y0+1}")
                e(f"v_lshlrev_b32 v47, 16, v44")
                e(f"v_and_b32 v48, 0xffff0000, v44")
                e(f"v_lshlrev_b32 v49, 16, v46")
                e(f"v_and_b32 v50, 0xffff0000, v46")
                e(f"v_add_f32 v47, v47, v49")
                e(f"v_add_f32 v48, v48, v50")
                e(f"v_cvt_pk_bf16_f32 v{52+2*g+p}, v47, v48")
            e(f"buffer_store_dwordx2 v[{52+2*g}:{53+2*g}], v12, s[28:31], s5 offen offset:{16*g}")
        tl(5)
        if TL: e("s_waitcnt vmcnt(0)")
        tl_end(1)
    if W2MID:
        e("s_endpgm")
        lab("mid_wt")
        gen_wt(G1_WGS + CV_WGS, 270, 540, "mid_end", 1, int(os.environ.get("DLYW2", 0)))
    lab("mid_end")
    e("s_endpgm")
    kernel_desc("mid_kernel", 128)

G2_WGS = 256
FIN_LDS = 61440 + 64
FDEPTH = int(os.environ.get('FDEPTH', 4))
def gen_fin():
    kernel_begin("fin_kernel")
    e("s_cmp_ge_u32 s2, %d" % G2_WGS)
    e("s_cbranch_scc1 fin_end")
    e("s_load_dwordx2 s[56:57], s[0:1], 104")
    e("s_load_dwordx2 s[58:59], s[0:1], 0")
    e("s_load_dwordx2 s[60:61], s[0:1], 88")
    e("v_lshrrev_b32 v1, 6, v0")
    e("v_and_b32 v2, 63, v0")
    e("s_nop 0")
    e("v_readfirstlane_b32 s3, v1")
    if FMAP == 2:
        e("s_and_b32 s5, s2, 31")
        e("s_lshr_b32 s4, s2, 5")
    elif FMAP == 3:
        e("s_lshr_b32 s5, s2, 3")
        e("s_and_b32 s4, s2, 7")
    else:
        e("s_waitcnt lgkmcnt(0)")
        srd(28, 56, WS_SIZE)
        claim_tile(512, 32, 61440, "fcl")
        if FMAP == 0:
            e("s_lshr_b32 s5, s2, 5")
            e("s_lshl_b32 s5, s5, 2")
            e("s_and_b32 s6, s2, 3")
            e("s_add_u32 s5, s5, s6")
            e("s_bfe_u32 s4, s2, 0x30002")
        else:
            e("s_lshr_b32 s5, s2, 6")
            e("s_lshl_b32 s5, s5, 3")
            e("s_and_b32 s6, s2, 7")
            e("s_add_u32 s5, s5, s6")
            e("s_bfe_u32 s4, s2, 0x10005")
            e("s_lshl_b32 s4, s4, 2")
            e("s_bfe_u32 s6, s2, 0x20003")
            e("s_add_u32 s4, s4, s6")
    e("v_and_b32 v3, 15, v2")
    e("v_lshrrev_b32 v4, 4, v2")
    e("v_lshrrev_b32 v5, 1, v4")
    e("v_and_b32 v6, 1, v4")
    e("v_lshlrev_b32 v7, 4, v3")
    e("v_lshl_add_u32 v7, v5, 10, v7")
    e("v_lshl_add_u32 v7, v6, 9, v7")
    e("s_lshl_b32 s6, s3, 11")
    e("v_add_u32 v7, s6, v7")
    e("s_mul_i32 s6, s4, 5")
    for a_ in range(5):
        e(f"s_add_u32 s7, s6, {a_}")
        e(f"s_lshr_b32 s{40+a_}, s7, 1")
        e(f"s_mul_i32 s{40+a_}, s{40+a_}, {108*1024}")
        e(f"s_and_b32 s7, s7, 1")
        e(f"s_lshl_b32 s7, s7, 8")
        e(f"s_add_u32 s{40+a_}, s{40+a_}, s7")
        e(f"s_add_u32 s{40+a_}, s{40+a_}, {WS_W2F}")
    e("s_mul_i32 s6, s5, %d" % (2*108*1024))
    e("s_add_u32 s45, s6, %d" % WS_ACT)
    e("s_add_u32 s46, s45, 256")
    e("s_add_u32 s47, s45, %d" % (108*1024))
    e("s_add_u32 s48, s47, 256")
    e("s_waitcnt lgkmcnt(0)")
    srd(28, 56, WS_SIZE); srd(8, 58, L*D*2); srd(12, 60, L*D*2)
    FR = 16
    ACC = 0
    EP = FR + 36*FDEPTH
    pend = []
    def issue(m):
        base = FR + 36*(m % FDEPTH)
        for t in range(9):
            e(f"buffer_load_dwordx4 v[{base+4*t}:{base+4*t+3}], v7, s[28:31], s{40+t} offen")
            pend.append(("f", m))
        e("v_add_u32 v7, 8192, v7")
    def wait_for(tag):
        last = max(i for i, p in enumerate(pend) if p == tag)
        n = len(pend) - 1 - last
        e(f"s_waitcnt vmcnt({n})")
        del pend[:last+1]
    NST = 14
    for m in range(FDEPTH):
        issue(m)
    e("s_lshl_b32 s6, s5, 6")
    e("s_lshl_b32 s7, s3, 4")
    e("s_add_u32 s6, s6, s7")
    e("v_add_u32 v8, s6, v3")
    e("v_mul_u32_u24 v9, 1280, v8")
    e("v_lshl_add_u32 v9, v4, 3, v9")
    e("s_mul_i32 s6, s4, 160")
    e("v_add_u32 v9, s6, v9")
    for a_ in range(5):
        e(f"buffer_load_dwordx2 v[{EP+2*a_}:{EP+2*a_+1}], v9, s[8:11], 0 offen offset:{32*a_}")
        pend.append(("e", 0))
    e("v_lshlrev_b32 v10, 14, v4")
    e("v_lshl_add_u32 v10, v8, 1, v10")
    e("s_mul_i32 s6, s4, %d" % (80*4096))
    e("s_add_u32 s6, s6, %d" % WS_AT)
    for a_ in range(5):
        for j in range(4):
            e(f"buffer_load_ushort v{EP+10+4*a_+j}, v10, s[28:31], s6 offen")
            pend.append(("e", 0))
            e("s_add_u32 s6, s6, %d" % (4096 if j < 3 else 4096*13))
    for r in range(ACC, ACC+80):
        e(f"v_accvgpr_write_b32 a{r}, 0")
    for m in range(NST):
        if m == NST - 1:
            e("s_cmp_ge_u32 s3, 2")
            e("s_cbranch_scc1 fin_red")
        wait_for(("f", m))
        base = FR + 36*(m % FDEPTH)
        fill = []
        if FEP and FDEPTH + 1 <= m < FDEPTH + 4:
            for a_ in [(0, 1), (2, 3), (4,)][m - FDEPTH - 1]:
                rx = EP + 2*a_; ra = EP + 10 + 4*a_
                for k_ in range(9):
                    for p_ in range(2):
                        t0, t1 = 12 + 2*p_, 13 + 2*p_
                        r0, r1 = ra + 2*p_, ra + 2*p_ + 1
                        fill.append([f"v_lshlrev_b32 v{t0}, 16, v{rx+p_}", f"v_and_b32 v{t1}, 0xffff0000, v{rx+p_}",
                                     f"v_lshlrev_b32 v{r0}, 16, v{r0}", f"v_lshlrev_b32 v{r1}, 16, v{r1}",
                                     f"v_add_f32 v{t0}, v{t0}, v{r0}", f"v_add_f32 v{t1}, v{t1}, v{r1}",
                                     f"v_cvt_pk_bf16_f32 v{t0}, v{t0}, v{t1}",
                                     f"v_lshlrev_b32 v{r0}, 16, v{t0}", f"v_and_b32 v{r1}, 0xffff0000, v{t0}"][k_])
        for b_ in range(4):
            for a_ in range(5):
                ac = ACC + 4*(5*b_ + a_)
                e(f"v_mfma_f32_16x16x32_bf16 a[{ac}:{ac+3}], v[{base+4*a_}:{base+4*a_+3}], v[{base+20+4*b_}:{base+23+4*b_}], a[{ac}:{ac+3}]")
                for _ in range(2):
                    if fill: e(fill.pop(0))
        assert not fill
        if m + FDEPTH < NST:
            if m + FDEPTH == NST - 1:
                e("s_cmp_ge_u32 s3, 2")
                e("s_cselect_b32 s6, 8192, 0")
                e("v_subrev_u32 v7, s6, v7")
            issue(m + FDEPTH)
    lab("fin_red")
    e("s_nop 15")
    e("s_waitcnt vmcnt(0)")
    e("v_lshlrev_b32 v11, 4, v2")
    for w in range(4):
        if w < 3:
            e(f"s_cmp_lg_u32 s3, {w}")
            e(f"s_cbranch_scc1 fin_w{w+1}")
        for b_ in range(4):
            if b_ == w: continue
            slot = w if w < b_ else w - 1
            for a_ in range(5):
                ac = ACC + 4*(5*b_ + a_)
                e(f"ds_write_b128 v11, a[{ac}:{ac+3}] offset:{(b_*3 + slot)*5120 + a_*1024}")
        for r in range(20):
            e(f"v_accvgpr_read_b32 v{16+r}, a{ACC+20*w+r}")
        if w < 3:
            e("s_branch fin_rd")
            lab(f"fin_w{w+1}")
    lab("fin_rd")
    e("s_mul_i32 s6, s3, %d" % (3*5120))
    e("v_add_u32 v11, s6, v11")
    e("s_waitcnt lgkmcnt(0)")
    e("s_barrier")
    for sl in range(3):
        for a_ in range(5):
            r = 36 + 20*sl + 4*a_
            e(f"ds_read_b128 v[{r}:{r+3}], v11 offset:{sl*5120 + a_*1024}")
    for sl in range(3):
        e(f"s_waitcnt lgkmcnt({10-5*sl})")
        if FEP:
            for r in range(0, 20, 2):
                e(f"v_pk_add_f32 v[{16+r}:{17+r}], v[{16+r}:{17+r}], v[{36+20*sl+r}:{37+20*sl+r}]")
            continue
        for r in range(20):
            e(f"v_add_f32 v{16+r}, v{16+r}, v{36+20*sl+r}")
    e("s_waitcnt vmcnt(0)")
    for a_ in range(5):
        rx = EP + 2*a_
        ra = EP + 10 + 4*a_
        if FEP:
            ac = 16 + 4*a_
            for p in range(2): e(f"v_cvt_pk_bf16_f32 v{96+p}, v{ac+2*p}, v{ac+2*p+1}")
            for p in range(2):
                e(f"v_lshlrev_b32 v{98+2*p}, 16, v{96+p}")
                e(f"v_and_b32 v{99+2*p}, 0xffff0000, v{96+p}")
            for p in range(2): e(f"v_pk_add_f32 v[{98+2*p}:{99+2*p}], v[{98+2*p}:{99+2*p}], v[{ra+2*p}:{ra+2*p+1}]")
            for p in range(2): e(f"v_cvt_pk_bf16_f32 v{rx+p}, v{98+2*p}, v{99+2*p}")
        for p in range(2 if not FEP else 0):
            ac = 16 + 4*a_ + 2*p
            e(f"v_lshlrev_b32 v96, 16, v{rx+p}")
            e(f"v_and_b32 v97, 0xffff0000, v{rx+p}")
            e(f"v_lshlrev_b32 v98, 16, v{ra+2*p}")
            e(f"v_lshlrev_b32 v99, 16, v{ra+2*p+1}")
            e(f"v_add_f32 v96, v96, v98")
            e(f"v_add_f32 v97, v97, v99")
            e(f"v_cvt_pk_bf16_f32 v96, v96, v97")
            e(f"v_cvt_pk_bf16_f32 v98, v{ac}, v{ac+1}")
            e(f"v_lshlrev_b32 v100, 16, v96")
            e(f"v_and_b32 v101, 0xffff0000, v96")
            e(f"v_lshlrev_b32 v102, 16, v98")
            e(f"v_and_b32 v103, 0xffff0000, v98")
            e(f"v_add_f32 v100, v100, v102")
            e(f"v_add_f32 v101, v101, v103")
            e(f"v_cvt_pk_bf16_f32 v{rx+p}, v100, v101")
        e(f"buffer_store_dwordx2 v[{rx}:{rx+1}], v9, s[12:15], 0 offen offset:{32*a_}")
    lab("fin_end")
    e("s_endpgm")
    kernel_desc("fin_kernel", ((EP + 30) + 7)//8*8, agpr=80)

hdr = open("cdna_kernels/%s.s.ref" % NAME).read().split("; Override launch")[0]
text = hdr
text += f"; @launch kernel=prep_kernel grid=({PREP_WGS + (128 if PORD else 0) + (256 if EMU & 2 else 0)},1,1) block=(256,1,1) lds={MID_LDS if EMU & 2 else PREP_LDS}\n"
text += f"; @launch kernel=mid_kernel grid=({MID_WGS},1,1) block=(256,1,1) lds={MID_LDS}\n"
text += f"; @launch kernel=fin_kernel grid=({G2_WGS},1,1) block=(256,1,1) lds={FIN_LDS}\n"
text += '.amdgcn_target "amdgcn-amd-amdhsa--gfx950"\n'
gen_prep(); gen_mid(); gen_fin()
_o = []; _in = False
for _l in out:
    if _l.startswith("fin_kernel:"): _in = True
    if _l.strip().startswith("buffer_store") and not _in and "nosc" not in SKIP: _l += " sc1"
    _o.append(_l)
out = _o
text += "\n".join(out) + "\n"
dst = sys.argv[1] if len(sys.argv) > 1 else "cdna_kernels/%s.s" % NAME
open(dst, "w").write(text)
print("wrote", dst, len(text))
```

```python
import sys, os
SKIP = os.environ.get("SKIP", "").split(",")
ORDER = int(os.environ.get("ORDER", 0))
PRIO = int(os.environ.get("PRIO", 3))
W2MID = int(os.environ.get("W2MID", 0))
CONV2 = int(os.environ.get("CONV2", 1))
CV3 = int(os.environ.get("CV3", 1))
FEP = int(os.environ.get("FEP", 1))
PORD = int(os.environ.get("PORD", 0))
MISH2 = int(os.environ.get("MISH2", 2))
DLYC = int(os.environ.get("DLYC", 24))
G1MAP = int(os.environ.get("G1MAP", 1))
FMAP = int(os.environ.get("FMAP", 1))
DLYL = int(os.environ.get("DLYL", 16))
DLYW = int(os.environ.get("DLYW", 24))
EMU = int(os.environ.get("EMU", 1))
NAME = "parallel_sum__ssm_conv_s4d__dense_activation_mish__prompt"
L, D, N, F = 2048, 640, 128, 1728
WS_XNF = 0x0000000
WS_XNT = 0x0280000
WS_W1F = 0x0500000
WS_W2F = WS_W1F + 2160 * 1024
WS_KR = 0x0A00000
KR_STRIDE = 4224
WS_ACT = 0x0D00000
WS_AT = 0x1400000
WS_CNT = 0x1700000
WS_SIZE = 268435456
LOG2E = 0x3fb8aa3b
INV2PI = 0x3e22f983

out = []
def e(s):
    out.append("    " + s)
def lab(s):
    out.append(s + ":")
def cm(s):
    out.append("    ; " + s)

STAMP = os.environ.get("STAMP")
def stamp_init():
    if not STAMP: return
    e("s_load_dwordx2 s[84:85], s[0:1], 96")
    e("s_waitcnt lgkmcnt(0)")
    e("s_mov_b32 s80, s84"); e("s_and_b32 s81, s85, 0xffff"); e("s_mov_b32 s82, 256"); e("s_mov_b32 s83, 0x00020000")
def stamp(i):
    if not STAMP: return
    e("s_memtime s[86:87]")
    e("s_waitcnt lgkmcnt(0)")
    e(f"s_cmp_lg_u32 s2, {int(STAMP)}")
    e(f"s_cbranch_scc1 st_{stamp.n}")
    e(f"v_mov_b32 v255, s86")
    e(f"v_lshrrev_b32 v254, 6, v0")
    e(f"v_lshlrev_b32 v254, 6, v254")
    e(f"v_add_u32 v254, {4*i}, v254")
    e(f"buffer_store_dword v255, v254, s[80:83], 0 offen")
    lab(f"st_{stamp.n}")
    stamp.n += 1
stamp.n = 0


TL = os.environ.get("TL")
WS_TL = 0x1800000
def tl(i):
    if not TL: return
    e("s_memrealtime s[80:81]")
    e("s_waitcnt lgkmcnt(0)")
    e(f"s_mov_b32 s{84+i}, s80")
def tl_begin():
    if not TL: return
    e("s_mov_b32 s83, s2")
    for i in range(8): e(f"s_mov_b32 s{84+i}, 0")
    tl(0)
def tl_end(kern):
    if not TL: return
    tl(7)
    e("s_getreg_b32 s90, hwreg(HW_REG_HW_ID)")
    e("s_getreg_b32 s80, hwreg(HW_REG_XCC_ID)")
    e("s_and_b32 s90, s90, 0xffff")
    e("s_lshl_b32 s80, s80, 16")
    e("s_or_b32 s90, s90, s80")
    e("s_or_b32 s90, s90, 0x40000000")
    e("s_cmp_lg_u32 s3, 0")
    e(f"s_cbranch_scc1 tle_{tl_end.n}")
    e("s_lshl_b32 s83, s83, 5")
    e(f"s_add_u32 s83, s83, {WS_TL + kern*65536}")
    e("v_mov_b32 v1, 0")
    for i in range(8):
        e(f"v_mov_b32 v0, s{84+i}")
        e(f"buffer_store_dword v0, v1, s[28:31], s83 offen offset:{4*i}")
    lab(f"tle_{tl_end.n}")
    tl_end.n += 1
tl_end.n = 0

def srd(dst, ptr, size):
    e(f"s_mov_b32 s{dst}, s{ptr}")
    e(f"s_and_b32 s{dst+1}, s{ptr+1}, 0xffff")
    e(f"s_mov_b32 s{dst+2}, {size}")
    e(f"s_mov_b32 s{dst+3}, 0x00020000")

def kernel_begin(name):
    out.append(".text")
    out.append(f".globl {name}")
    out.append(".p2align 8")
    out.append(f".type {name},@function")
    lab(name)

def kernel_desc(name, vgpr, sgpr=96, agpr=0):
    if STAMP: vgpr = 256
    out.append('.section .rodata,"a"')
    out.append(".p2align 6")
    out.append(f".amdhsa_kernel {name}")
    out.append(f"  .amdhsa_next_free_vgpr {vgpr + agpr}")
    out.append(f"  .amdhsa_next_free_sgpr {sgpr}")
    out.append(f"  .amdhsa_accum_offset {(vgpr+3)//4*4}")
    out.append("  .amdhsa_group_segment_fixed_size 0")
    out.append("  .amdhsa_kernarg_size 112")
    out.append("  .amdhsa_user_sgpr_count 2")
    out.append("  .amdhsa_user_sgpr_kernarg_segment_ptr 1")
    out.append("  .amdhsa_system_sgpr_workgroup_id_x 1")
    out.append(".end_amdhsa_kernel")


SCL = int(os.environ.get("SCL", 3))
def static_claim():
    e("s_and_b32 s4, s2, 7")
    e("s_lshl_b32 s4, s4, 5")
    e("s_lshr_b32 s2, s2, 3")
    e("s_or_b32 s2, s2, s4")

def claim_tile(cnt_off, per, lds_off, lbl):
    e("s_cmp_lg_u32 s3, 0")
    e(f"s_cbranch_scc1 {lbl}_w")
    e("s_getreg_b32 s20, hwreg(HW_REG_XCC_ID)")
    e("s_and_b32 s20, s20, 7")
    e("s_mov_b32 s21, 0")
    e("s_mov_b64 s[22:23], exec")
    e("s_mov_b64 exec, 1")
    e("v_mov_b32 v12, 1")
    lab(f"{lbl}_l")
    e("s_lshl_b32 s24, s20, 6")
    e(f"s_add_u32 s24, s24, {WS_CNT + cnt_off}")
    e("v_mov_b32 v13, 0")
    e("v_mov_b32 v14, v12")
    e("buffer_atomic_add v14, v13, s[28:31], s24 offen sc0" + ("" if "asc" in SKIP else " sc1"))
    e("s_waitcnt vmcnt(0)")
    e("v_readfirstlane_b32 s25, v14")
    e(f"s_cmp_lt_u32 s25, {per}")
    e(f"s_cbranch_scc1 {lbl}_f")
    e("s_add_u32 s20, s20, 1")
    e("s_and_b32 s20, s20, 7")
    e("s_add_u32 s21, s21, 1")
    e("s_cmp_lt_u32 s21, 8")
    e(f"s_cbranch_scc1 {lbl}_l")
    e("s_mov_b32 s25, 0")
    lab(f"{lbl}_f")
    e(f"s_mul_i32 s20, s20, {per}")
    e("s_add_u32 s20, s20, s25")
    e("v_mov_b32 v14, s20")
    e(f"v_mov_b32 v13, {lds_off}")
    e("ds_write_b32 v13, v14")
    e("s_mov_b64 exec, s[22:23]")
    e("s_waitcnt lgkmcnt(0)")
    lab(f"{lbl}_w")
    e("s_barrier")
    e(f"v_mov_b32 v13, {lds_off}")
    e("ds_read_b32 v14, v13")
    e("s_waitcnt lgkmcnt(0)")
    e("v_readfirstlane_b32 s2, v14")

LN_WGS, WT_WGS, KG_WGS = 128, (68 if W2MID else 135), 640
PREP_WGS = KG_WGS + LN_WGS + WT_WGS
KG_LDS_WAVE = 512
KG_TAB0 = 2048
KG_TAB = 2688
KG_FIN = KG_TAB0 + 4*KG_TAB
PREP_LDS = 36864
LNS = 36

def gen_wt(wg0, wv0, wvend, endlab, kern, dly):
    if "wt" in SKIP: e("s_endpgm")
    if PRIO & 2: e("s_setprio 3")
    e("s_load_dwordx2 s[40:41], s[0:1], 64")
    e("s_load_dwordx2 s[42:43], s[0:1], 80")
    e("s_sub_u32 s4, s2, %d" % wg0)
    e("s_lshl_b32 s4, s4, 2")
    e("s_add_u32 s4, s4, s3")
    if wv0: e("s_add_u32 s4, s4, %d" % wv0)
    if wvend:
        e("s_cmp_ge_u32 s4, %d" % wvend)
        e("s_cbranch_scc1 %s" % endlab)
    e("s_waitcnt lgkmcnt(0)")
    e("s_cmp_ge_u32 s4, 270")
    e("s_cselect_b32 s40, s42, s40")
    e("s_cselect_b32 s41, s43, s41")
    e("s_mov_b32 s5, 3456")
    e("s_mov_b32 s7, 159072863")
    e("s_mov_b32 s34, %d" % WS_W1F)
    e("s_cselect_b32 s5, 1280, s5")
    e("s_cselect_b32 s6, 10, 27")
    e("s_cselect_b32 s7, 429496730, s7")
    e("s_cselect_b32 s32, 270, 0")
    e("s_cselect_b32 s33, 108, 40")
    e("s_cselect_b32 s34, %d, s34" % WS_W2F)
    srd(8, 40, D*F*2); srd(28, 56, WS_SIZE)
    e("s_sub_u32 s32, s4, s32")
    e("s_lshl_b32 s32, s32, 2")
    e("v_lshrrev_b32 v3, 3, v2")
    e("v_and_b32 v4, 7, v2")
    e("v_mul_lo_u32 v5, v3, s5")
    e("v_lshl_add_u32 v5, v4, 4, v5")
    e("s_lshl_b32 s35, s5, 3")
    e("s_mul_i32 s36, s3, %d" % (4*16*144))
    e("v_mul_u32_u24 v6, 144, v3")
    e("v_lshl_add_u32 v6, v4, 4, v6")
    e("v_add_u32 v6, s36, v6")
    e("v_and_b32 v7, 31, v2")
    e("v_lshrrev_b32 v8, 5, v2")
    e("v_mul_u32_u24 v8, %d, v8" % (8*144))
    e("v_lshl_add_u32 v8, v7, 1, v8")
    e("v_add_u32 v8, s36, v8")
    e("v_lshlrev_b32 v9, 4, v2")
    if dly: e(f"s_sleep {dly}")
    for q in range(4):
        e(f"s_add_u32 s37, s32, {q}")
        e("s_mul_hi_u32 s38, s37, s7")
        e("s_mul_i32 s39, s38, s6")
        e("s_sub_u32 s39, s37, s39")
        e(f"s_lshl_b32 s44, s38, 4")
        e(f"s_mul_i32 s44, s44, s5")
        e(f"s_lshl_b32 s45, s39, 7")
        e(f"s_add_u32 s44, s44, s45")
        e(f"buffer_load_dwordx4 v[{16+8*q}:{19+8*q}], v5, s[8:11], s44 offen")
        e(f"s_add_u32 s44, s44, s35")
        e(f"buffer_load_dwordx4 v[{20+8*q}:{23+8*q}], v5, s[8:11], s44 offen")
        e(f"s_lshl_b32 s45, s39, 1")
        e(f"s_mul_i32 s45, s45, s33")
        e(f"s_add_u32 s45, s45, s38")
        e(f"s_lshl_b32 s45, s45, 10")
        e(f"s_add_u32 s{48+q}, s45, s34")
    e("s_lshl_b32 s33, s33, 10")
    for q in range(4):
        e(f"s_waitcnt vmcnt({6-2*q})")
        e(f"ds_write_b128 v6, v[{16+8*q}:{19+8*q}] offset:{q*16*144}")
        e(f"ds_write_b128 v6, v[{20+8*q}:{23+8*q}] offset:{q*16*144 + 8*144}")
    tl(1)
    for q in range(4):
        e("s_waitcnt lgkmcnt(0)") if q == 0 else None
        for f in range(2):
            for el in range(8):
                e(f"ds_read_u16 v{48+16*(q&1)*2+16*f+el}, v8 offset:{q*16*144 + el*144 + 64*f}")
        if q > 0:
            pass
        e("s_waitcnt lgkmcnt(0)")
        for f in range(2):
            for j in range(4):
                r = 48 + 16*(q&1)*2 + 16*f
                e(f"v_lshl_or_b32 v{112+4*f+j}, v{r+2*j+1}, 16, v{r+2*j}")
            if f == 0:
                e(f"buffer_store_dwordx4 v[112:115], v9, s[28:31], s{48+q} offen")
            else:
                e(f"s_add_u32 s{48+q}, s{48+q}, s33")
                e(f"buffer_store_dwordx4 v[116:119], v9, s[28:31], s{48+q} offen")
        if q < 3:
            e("s_nop 1")
    tl(5)
    if TL: e("s_waitcnt vmcnt(0)")
    tl_end(kern)

def gen_prep():
    kernel_begin("prep_kernel")
    if EMU & 2:
        e("s_cmp_lt_u32 s2, 256")
        e("s_cbranch_scc1 mid_body")
        e("s_sub_u32 s2, s2, 256")
    if PORD:
        e("s_lshr_b32 s4, s2, 7")
        e("s_cmp_eq_u32 s4, 6")
        e("s_cbranch_scc1 prep_end")
        e("s_cmp_gt_u32 s4, 6")
        e("s_cselect_b32 s4, 128, 0")
        e("s_sub_u32 s2, s2, s4")
    e("s_cmp_ge_u32 s2, %d" % PREP_WGS)
    e("s_cbranch_scc1 prep_end")
    e("s_load_dwordx2 s[56:57], s[0:1], 104")
    e("v_lshrrev_b32 v1, 6, v0")
    e("v_and_b32 v2, 63, v0")
    e("s_nop 0")
    e("v_readfirstlane_b32 s3, v1")
    if ORDER:
        e("s_add_u32 s2, s2, %d" % KG_WGS)
        e("s_cmp_ge_u32 s2, %d" % PREP_WGS)
        e("s_cselect_b32 s4, %d, 0" % PREP_WGS)
        e("s_sub_u32 s2, s2, s4")
    tl_begin()
    e("s_cmp_ge_u32 s2, %d" % (KG_WGS + LN_WGS))
    e("s_cbranch_scc1 prep_wt")
    e("s_cmp_ge_u32 s2, %d" % KG_WGS)
    e("s_cbranch_scc1 prep_ln")
    if "kg" in SKIP: e("s_endpgm")
    e("s_load_dwordx4 s[40:43], s[0:1], 8")
    e("s_load_dwordx4 s[44:47], s[0:1], 24")
    e("s_load_dwordx2 s[48:49], s[0:1], 40")
    e("s_mov_b32 s4, s2")
    e("s_mul_i32 s5, s3, %d" % KG_LDS_WAVE)
    e("s_lshl_b32 s6, s4, 8")
    e("s_lshl_b32 s7, s3, 6")
    e("s_add_u32 s6, s6, s7")
    e("v_and_b32 v3, 31, v2")
    e("v_lshl_add_u32 v3, v3, 1, s6")
    e("s_lshl_b32 s7, s4, 1")
    e("v_mov_b32 v4, s7")
    e("s_waitcnt lgkmcnt(0)")
    srd(8, 40, D*N*2); srd(12, 42, D*N*2); srd(16, 44, D*N*2); srd(20, 46, D*N*2)
    srd(24, 48, D*2); srd(28, 56, WS_SIZE)
    for k, sr in enumerate((8, 12, 16, 20)):
        e(f"buffer_load_ushort v{10+k}, v3, s[{sr}:{sr+3}], 0 offen")
    e("buffer_load_ushort v18, v4, s[24:27], 0 offen")
    e("v_and_b32 v8, 15, v2")
    e("v_lshrrev_b32 v9, 4, v2")
    e("v_and_b32 v24, 7, v8")
    e("v_lshrrev_b32 v25, 3, v8")
    e("v_lshl_add_u32 v28, v25, 7, v24")
    e("v_and_b32 v24, 3, v8")
    e("v_lshlrev_b32 v24, 1, v24")
    e("v_bfe_u32 v25, v8, 2, 1")
    e("v_lshl_add_u32 v24, v25, 7, v24")
    e("v_add_u32 v24, 256, v24")
    e("v_and_b32 v25, 1, v8")
    e("v_lshlrev_b32 v25, 2, v25")
    e("v_bfe_u32 v26, v8, 1, 2")
    e("v_lshl_add_u32 v25, v26, 7, v25")
    e("v_add_u32 v25, 512, v25")
    e("v_cmp_gt_u32 vcc, 8, v8")
    e("s_nop 1")
    e("v_cndmask_b32 v29, v25, v24, vcc")
    e("v_lshlrev_b32 v30, 7, v8")
    e("v_add_u32 v30, 0x400, v30")
    e("v_lshlrev_b32 v31, 3, v8")
    for t in range(4):
        e(f"v_cvt_f32_u32 v{28+t}, v{28+t}")
    e("s_mul_i32 s6, s3, %d" % KG_TAB)
    e("s_add_u32 s6, s6, %d" % KG_TAB0)
    e("v_and_b32 v24, 1, v9")
    e("v_lshrrev_b32 v25, 1, v9")
    e("v_lshl_add_u32 v33, v8, 5, s6")
    e("v_lshl_add_u32 v33, v24, 4, v33")
    e("v_lshl_add_u32 v33, v25, 9, v33")
    e("v_lshlrev_b32 v24, 4, v8")
    e("v_lshlrev_b32 v25, 3, v8")
    e("v_cmp_gt_u32 vcc, 2, v9")
    e("s_nop 1")
    e("v_cndmask_b32 v24, v25, v24, vcc")
    e("v_lshl_add_u32 v24, v9, 8, v24")
    e("v_add_u32 v24, s6, v24")
    e("v_add_u32 v34, 1024, v24")
    e("v_mov_b32 v25, 128")
    e("v_cndmask_b32_e64 v24, v25, 8, vcc")
    e("v_add_u32 v36, v34, v24")
    e("v_lshl_add_u32 v38, v8, 2, s6")
    e("v_lshl_add_u32 v38, v9, 8, v38")
    e("v_add_u32 v38, 2048, v38")
    e("v_lshl_add_u32 v39, v9, 4, s5")
    for r in range(40, 52):
        e(f"v_mov_b32 v{r}, 0")
    e("s_waitcnt vmcnt(0)")
    tl(1)
    for r in (10, 11, 12, 13, 18):
        e(f"v_lshlrev_b32 v{r}, 16, v{r}")
    e(f"v_mul_f32 v18, {LOG2E:#x}, v18")
    e(f"v_mul_f32 v10, {LOG2E:#x}, v10")
    e("v_exp_f32 v18, v18")
    e("v_exp_f32 v10, v10")
    e("s_nop 0")
    e("v_cvt_pk_bf16_f32 v18, v18, v18")
    e("v_cvt_pk_bf16_f32 v10, v10, v10")
    e("v_lshlrev_b32 v18, 16, v18")
    e("v_lshlrev_b32 v10, 16, v10")
    e("v_add_f32 v19, v18, v18")
    e("v_and_b32 v5, 31, v2")
    e("v_lshl_add_u32 v5, v5, 4, s5")
    e("v_mul_f32 v20, v10, v18")
    e(f"v_mul_f32 v20, {LOG2E|0x80000000:#x}, v20")
    e("v_mul_f32 v21, v11, v18")
    e(f"v_mul_f32 v21, {INV2PI:#x}, v21")
    e("v_mul_f32 v22, v12, v19")
    e("v_mul_f32 v23, v13, v19")
    e("ds_write_b128 v5, v[20:23]")
    e("s_waitcnt lgkmcnt(0)")
    for st in range(8):
        e(f"ds_read_b128 v[{96+4*st}:{99+4*st}], v39 offset:{64*st}")
    e("s_waitcnt lgkmcnt(0)")
    def kg_valu(st):
        P = 96 + 4*st
        O = 72 + 10*(st & 1)
        v = []
        for t in range(4):
            v.append(f"v_mul_f32 v{52+t}, v{P}, v{28+t}")
            v.append(f"v_mul_f32 v{56+t}, v{P+1}, v{28+t}")
        for t in range(4):
            v.append(f"v_exp_f32 v{52+t}, v{52+t}")
            v.append(f"v_fract_f32 v{56+t}, v{56+t}")
        for t in range(4):
            v.append(f"v_cos_f32 v{60+t}, v{56+t}")
            v.append(f"v_sin_f32 v{64+t}, v{56+t}")
        for t in range(4):
            v.append(f"v_mul_f32 v{60+t}, v{52+t}, v{60+t}")
            v.append(f"v_mul_f32 v{64+t}, v{52+t}, v{64+t}")
        v.append(f"v_mul_f32 v55, v63, v{P+2}")
        v.append(f"v_mul_f32_e64 v59, -v63, v{P+3}")
        v.append(f"v_fma_f32 v55, -v67, v{P+3}, v55")
        v.append(f"v_fma_f32 v59, -v67, v{P+2}, v59")
        def split(xr, xi, H, Lo, t0, t1):
            v.append(f"v_cvt_pk_bf16_f32 v{H}, v{xr}, v{xi}")
            v.append(f"v_lshlrev_b32 v{t0}, 16, v{H}")
            v.append(f"v_and_b32 v{t1}, 0xffff0000, v{H}")
            v.append(f"v_sub_f32 v{t0}, v{xr}, v{t0}")
            v.append(f"v_sub_f32 v{t1}, v{xi}, v{t1}")
            v.append(f"v_cvt_pk_bf16_f32 v{Lo}, v{t0}, v{t1}")
        split(55, 59, O, O+2, 68, 69)
        v.append(f"v_mov_b32 v{O+1}, v{O}")
        v.append(f"v_mov_b32 v{O+3}, v{O+2}")
        for t in range(3):
            split(60+t, 64+t, O+4+2*t, O+5+2*t, 52+t, 56+t)
        return v
    def kg_mfma(st):
        O = 72 + 10*(st & 1)
        m = []
        for h in range(2):
            for t in range(3):
                a = 40 + 4*t
                m.append(f"v_mfma_f32_16x16x16_bf16 v[{a}:{a+3}], v[{O+4+2*t}:{O+5+2*t}], v[{O+2*h}:{O+2*h+1}], v[{a}:{a+3}]")
        return m
    for st in range(9):
        v = kg_valu(st) if st < 8 else []
        m = kg_mfma(st-1) if st > 0 else []
        if "kgm" in SKIP: m = []
        if "kgv" in SKIP: v = []
        if not v:
            e("s_nop 1")
        vi = 0
        for mi, mm_ in enumerate(m):
            tgt = 2 + 7*mi
            while vi < min(tgt, len(v)):
                e(v[vi]); vi += 1
            e(mm_)
        while vi < len(v):
            e(v[vi]); vi += 1
    e("s_nop 15")
    tl(2)
    for r in range(4):
        e(f"ds_write_b32 v33, v{40+r} offset:{4*r}")
    e("ds_write_b32 v34, v44")
    e("ds_write_b32 v34, v45 offset:4")
    e("ds_write_b32 v36, v46")
    e("ds_write_b32 v36, v47 offset:4")
    e("s_mov_b32 exec_hi, 0xffff")
    e("ds_write_b32 v38, v48")
    e("s_mov_b32 exec_hi, 0")
    for r in range(1, 4):
        e(f"ds_write_b32 v38, v{48+r} offset:{64*r}")
    e("s_mov_b32 exec_hi, -1")
    e("s_mul_i32 s4, s4, %d" % KR_STRIDE)
    e("s_add_u32 s4, s4, %d" % WS_KR)
    e("v_lshlrev_b32 v39, 4, v0")
    e("v_lshlrev_b32 v64, 3, v0")
    e("v_sub_u32 v64, 2047, v64")
    e("v_lshlrev_b32 v65, 2, v0")
    e("v_lshlrev_b32 v66, 1, v0")
    for k in range(8):
        e(f"v_subrev_u32 v{52+k}, {k}, v64")
        e(f"v_cvt_f32_u32 v{72+k}, v{52+k}")
    for k in range(4):
        e(f"v_cvt_pk_bf16_f32 v{80+k}, v{72+2*k}, v{73+2*k}")
        e(f"v_and_b32 v{72+2*k}, 0xffff, v{80+k}")
        e(f"v_lshrrev_b32 v{73+2*k}, 16, v{80+k}")
    for k in range(8):
        e(f"v_subrev_u32 v{72+k}, 17024, v{72+k}")
        e(f"v_cmp_gt_u32 vcc, 256, v{52+k}")
        e("s_nop 1")
        e(f"v_cndmask_b32 v{52+k}, v{72+k}, v{52+k}, vcc")
        e(f"v_lshlrev_b32 v{52+k}, 1, v{52+k}")
    e("s_waitcnt lgkmcnt(0)")
    e("s_barrier")
    tl(3)
    for m in range(3):
        for ww in range(4):
            e(f"ds_read_b32 v{72+4*m+ww}, v65 offset:{KG_TAB0 + ww*KG_TAB + 1024*m}")
    for m in range(3):
        e(f"s_waitcnt lgkmcnt({8-4*m})")
        e(f"v_add_f32 v{72+4*m}, v{72+4*m}, v{73+4*m}")
        e(f"v_add_f32 v{74+4*m}, v{74+4*m}, v{75+4*m}")
        e(f"v_add_f32 v{72+4*m}, v{72+4*m}, v{74+4*m}")
        e(f"v_cvt_pk_bf16_f32 v{72+4*m}, v{72+4*m}, v{72+4*m}")
        e(f"ds_write_b16 v66, v{72+4*m} offset:{KG_FIN + 512*m}")
    e("s_waitcnt lgkmcnt(0)")
    e("s_barrier")
    tl(4)
    for k in range(8):
        e(f"ds_read_u16 v{96+k}, v{52+k} offset:{KG_FIN}")
    e("s_waitcnt lgkmcnt(0)")
    for k in range(4):
        e(f"v_lshl_or_b32 v{112+k}, v{97+2*k}, 16, v{96+2*k}")
    e(f"buffer_store_dwordx4 v[112:115], v39, s[28:31], s4 offen")
    for k in range(4):
        e(f"v_mov_b32 v{116+k}, 0")
    e("v_cmp_gt_u32 vcc, 8, v0")
    e("s_and_saveexec_b64 s[32:33], vcc")
    e("s_cbranch_execz prep_end")
    e("s_add_u32 s4, s4, 4096")
    e("buffer_store_dwordx4 v[116:119], v39, s[28:31], s4 offen")
    e("v_lshlrev_b32 v39, 6, v0")
    tl(5)
    if TL: e("s_waitcnt vmcnt(0)")
    tl_end(0)
    e("s_cmp_lg_u32 s2, 0")
    e("s_cbranch_scc1 prep_end")
    e("s_mov_b32 s4, %d" % WS_CNT)
    e("buffer_store_dword v116, v39, s[28:31], s4 offen")
    e("buffer_store_dword v116, v39, s[28:31], s4 offen offset:512")
    e("s_endpgm")
    lab("prep_ln")
    if "ln" in SKIP: e("s_endpgm")
    if PRIO & 1: e("s_setprio 3")
    e("s_load_dwordx2 s[40:41], s[0:1], 0")
    e("s_sub_u32 s2, s2, %d" % KG_WGS)
    e("v_and_b32 v3, 15, v0")
    e("v_lshrrev_b32 v4, 4, v0")
    e("s_lshl_b32 s5, s2, 4")
    e("v_add_u32 v5, s5, v4")
    e("v_mul_u32_u24 v6, 1280, v5")
    e("v_lshl_add_u32 v6, v3, 4, v6")
    e("s_waitcnt lgkmcnt(0)")
    srd(8, 40, L*D*2); srd(28, 56, WS_SIZE)
    if DLYL: e(f"s_sleep {DLYL}")
    for j in range(5):
        e(f"buffer_load_dwordx4 v[{16+4*j}:{19+4*j}], v6, s[8:11], 0 offen offset:{256*j}")
    e("s_lshr_b32 s6, s2, 1")
    e("s_mul_i32 s6, s6, %d" % (40*1024))
    e("s_add_u32 s6, s6, %d" % WS_XNF)
    e("v_lshrrev_b32 v7, 1, v3")
    e("v_lshlrev_b32 v7, 10, v7")
    e("v_and_b32 v8, 1, v3")
    e("v_lshl_add_u32 v7, v8, 9, v7")
    e("v_and_b32 v8, 31, v5")
    e("v_lshl_add_u32 v7, v8, 4, v7")
    e(f"v_mul_u32_u24 v9, {8*LNS}, v3")
    e("v_lshl_add_u32 v9, v4, 1, v9")
    e("s_waitcnt vmcnt(0)")
    tl(1)
    for k in range(20):
        e(f"v_lshlrev_b32 v{40+2*k}, 16, v{16+k}")
        e(f"v_and_b32 v{41+2*k}, 0xffff0000, v{16+k}")
    def lane_sum(srcs, acc):
        for a in range(4):
            e(f"v_add_f32 v{acc+a}, v{srcs[a]}, v{srcs[a+4]}")
        for k in range(8, len(srcs)):
            e(f"v_add_f32 v{acc+(k%4)}, v{acc+(k%4)}, v{srcs[k]}")
        e(f"v_add_f32 v{acc}, v{acc}, v{acc+1}")
        e(f"v_add_f32 v{acc+2}, v{acc+2}, v{acc+3}")
        e(f"v_add_f32 v{acc}, v{acc}, v{acc+2}")
        for sh in (8, 4, 2, 1):
            e("s_nop 1")
            e(f"v_add_f32_dpp v{acc}, v{acc}, v{acc} row_ror:{sh} row_mask:0xf bank_mask:0xf")
    lane_sum(list(range(40, 80)), 10)
    e("v_mul_f32 v14, 0x3acccccd, v10")
    for k in range(40):
        e(f"v_sub_f32 v{80+k}, v{40+k}, v14")
        e(f"v_mul_f32 v{80+k}, v{80+k}, v{80+k}")
    lane_sum(list(range(80, 120)), 10)
    e("v_mul_f32 v10, 0x3acccccd, v10")
    e("v_cvt_pk_bf16_f32 v10, v10, v14")
    e("v_and_b32 v14, 0xffff0000, v10")
    e("v_lshlrev_b32 v10, 16, v10")
    e("v_add_f32 v10, 0x3727c5ac, v10")
    e("v_cvt_pk_bf16_f32 v10, v10, v10")
    e("v_lshlrev_b32 v10, 16, v10")
    e("v_sqrt_f32 v10, v10")
    e("s_nop 0")
    e("v_cvt_pk_bf16_f32 v10, v10, v10")
    e("v_lshlrev_b32 v10, 16, v10")
    e("v_rcp_f32 v11, v10")
    e("s_nop 0")
    e("v_fma_f32 v12, -v10, v11, 2.0")
    e("v_mul_f32 v11, v11, v12")
    for k in range(20):
        e(f"v_sub_f32 v{40+2*k}, v{40+2*k}, v14")
        e(f"v_sub_f32 v{41+2*k}, v{41+2*k}, v14")
        e(f"v_cvt_pk_bf16_f32 v{16+k}, v{40+2*k}, v{41+2*k}")
        e(f"v_lshlrev_b32 v{40+2*k}, 16, v{16+k}")
        e(f"v_and_b32 v{41+2*k}, 0xffff0000, v{16+k}")
        e(f"v_mul_f32 v{40+2*k}, v{40+2*k}, v11")
        e(f"v_mul_f32 v{41+2*k}, v{41+2*k}, v11")
        e(f"v_cvt_pk_bf16_f32 v{16+k}, v{40+2*k}, v{41+2*k}")
    tl(2)
    for j in range(5):
        if "xnf" not in SKIP: e(f"buffer_store_dwordx4 v[{16+4*j}:{19+4*j}], v7, s[28:31], s6 offen")
        if j < 4: e("s_add_u32 s6, s6, 8192")
    for j in range(5):
        for el in range(8):
            r = 16 + 4*j + el//2
            op = "ds_write_b16_d16_hi" if el & 1 else "ds_write_b16"
            e(f"{op} v9, v{r} offset:{(128*j + el)*LNS}")
    e("v_lshrrev_b32 v10, 1, v0")
    e("v_and_b32 v11, 1, v0")
    e(f"v_mul_u32_u24 v12, {LNS}, v10")
    e("v_lshl_add_u32 v12, v11, 4, v12")
    e("v_lshlrev_b32 v13, 4, v0")
    e("s_mul_i32 s6, s2, 20480")
    e("s_add_u32 s6, s6, %d" % WS_XNT)
    e("s_waitcnt lgkmcnt(0)")
    e("s_barrier")
    tl(3)
    for j in range(5):
        e(f"ds_read2_b32 v[{40+4*j}:{41+4*j}], v12 offset0:{(128*j*LNS)//4 % 256} offset1:{(128*j*LNS)//4 % 256 + 1}")
        e(f"ds_read2_b32 v[{42+4*j}:{43+4*j}], v12 offset0:{(128*j*LNS)//4 % 256 + 2} offset1:{(128*j*LNS)//4 % 256 + 3}")
        if j < 4:
            nxt = (128*(j+1)*LNS)//4 // 256 - (128*j*LNS)//4 // 256
            e(f"v_add_u32 v12, {nxt*1024}, v12")
    for j in range(5):
        e(f"s_waitcnt lgkmcnt({2*(4-j)})")
        if "xnt" not in SKIP: e(f"buffer_store_dwordx4 v[{40+4*j}:{43+4*j}], v13, s[28:31], s6 offen")
        if j < 4: e("s_add_u32 s6, s6, %d" % (128*32))
    tl(5)
    if TL: e("s_waitcnt vmcnt(0)")
    tl_end(0)
    e("s_endpgm")
    lab("prep_wt")
    gen_wt(KG_WGS + LN_WGS, 0, 270 if W2MID else 0, "prep_end", 0, DLYW)
    lab("prep_end")
    e("s_endpgm")
    kernel_desc("prep_kernel", 160 if EMU & 4 else 128)

G1_WGS = 256
CV_WGS = 640
W2_WGS = 68 if W2MID else 0
MID_WGS = G1_WGS + CV_WGS + W2_WGS
CS = 4160
def CB(c): return c*CS + (32 if c >= 4 else 0)
UB = CB(7) + CS - 80
G1_NS, G1_BD = int(os.environ.get('G1NS', 5)), int(os.environ.get('G1BD', 4))
MID_LDS = 40960

def mish_pairs(acc0, acc1, b0, b1r, dst, t):
    e(f"v_cvt_pk_bf16_f32 v{t}, v{acc0}, v{acc1}")
    e(f"v_lshlrev_b32 v{t+1}, 16, v{t}")
    e(f"v_and_b32 v{t+2}, 0xffff0000, v{t}")
    e(f"v_add_f32 v{t+1}, v{t+1}, v{b0}")
    e(f"v_add_f32 v{t+2}, v{t+2}, v{b1r}")
    e(f"v_cvt_pk_bf16_f32 v{t}, v{t+1}, v{t+2}")
    e(f"v_lshlrev_b32 v{t+1}, 16, v{t}")
    e(f"v_and_b32 v{t+2}, 0xffff0000, v{t}")
    if MISH2:
        e(f"v_mul_f32 v{t+3}, {LOG2E:#x}, v{t+1}")
        e(f"v_mul_f32 v{t+4}, {LOG2E:#x}, v{t+2}")
        e(f"v_exp_f32 v{t+3}, v{t+3}")
        e(f"v_exp_f32 v{t+4}, v{t+4}")
        e(f"s_nop 0")
        e(f"v_add_f32 v{t+3}, 1.0, v{t+3}")
        e(f"v_add_f32 v{t+4}, 1.0, v{t+4}")
        e(f"v_fmaak_f32 v{t+3}, v{t+3}, v{t+3}, 0x3f800000")
        e(f"v_fmaak_f32 v{t+4}, v{t+4}, v{t+4}, 0x3f800000")
        e(f"v_rcp_f32 v{t+3}, v{t+3}")
        e(f"v_rcp_f32 v{t+4}, v{t+4}")
        e(f"s_nop 0")
        e(f"v_fmaak_f32 v{t+3}, -2.0, v{t+3}, 0x3f800000")
        e(f"v_fmaak_f32 v{t+4}, -2.0, v{t+4}, 0x3f800000")
        e(f"v_mul_f32 v{t+1}, v{t+1}, v{t+3}")
        e(f"v_mul_f32 v{t+2}, v{t+2}, v{t+4}")
    else:
        e(f"v_min_f32 v{t+3}, 0x41a00000, v{t+1}")
        e(f"v_min_f32 v{t+4}, 0x41a00000, v{t+2}")
        e(f"v_mul_f32 v{t+3}, {LOG2E:#x}, v{t+3}")
        e(f"v_mul_f32 v{t+4}, {LOG2E:#x}, v{t+4}")
        e(f"v_exp_f32 v{t+3}, v{t+3}")
        e(f"v_exp_f32 v{t+4}, v{t+4}")
        e(f"s_nop 0")
        e(f"v_add_f32 v{t}, 2.0, v{t+3}")
        e(f"v_add_f32 v{t+5}, 2.0, v{t+4}")
        e(f"v_mul_f32 v{t+3}, v{t+3}, v{t}")
        e(f"v_mul_f32 v{t+4}, v{t+4}, v{t+5}")
        e(f"v_add_f32 v{t}, 2.0, v{t+3}")
        e(f"v_add_f32 v{t+5}, 2.0, v{t+4}")
        e(f"v_rcp_f32 v{t}, v{t}")
        e(f"v_rcp_f32 v{t+5}, v{t+5}")
        e(f"v_mul_f32 v{t+1}, v{t+1}, v{t+3}")
        e(f"v_mul_f32 v{t+2}, v{t+2}, v{t+4}")
        e(f"v_mul_f32 v{t+1}, v{t+1}, v{t}")
        e(f"v_mul_f32 v{t+2}, v{t+2}, v{t+5}")
    e(f"v_cvt_pk_bf16_f32 v{dst}, v{t+1}, v{t+2}")

def mish_quad(ac, T, dst):
    H = [T+4, T+8]; E = [T+6, T+10]; P = [T+12, T+13]
    pr = lambda r: f"v[{r}:{r+1}]"
    for q in range(2): e(f"v_cvt_pk_bf16_f32 v{P[q]}, v{ac+2*q}, v{ac+2*q+1}")
    for q in range(2):
        e(f"v_lshlrev_b32 v{H[q]}, 16, v{P[q]}")
        e(f"v_and_b32 v{H[q]+1}, 0xffff0000, v{P[q]}")
    for q in range(2): e(f"v_pk_add_f32 {pr(H[q])}, {pr(H[q])}, {pr(T+2*q)}")
    for q in range(2): e(f"v_cvt_pk_bf16_f32 v{P[q]}, v{H[q]}, v{H[q]+1}")
    for q in range(2):
        e(f"v_lshlrev_b32 v{H[q]}, 16, v{P[q]}")
        e(f"v_and_b32 v{H[q]+1}, 0xffff0000, v{P[q]}")
    for q in range(2): e(f"v_pk_mul_f32 {pr(E[q])}, {pr(H[q])}, s[46:47]")
    for q in range(2):
        e(f"v_exp_f32 v{E[q]}, v{E[q]}")
        e(f"v_exp_f32 v{E[q]+1}, v{E[q]+1}")
    for q in range(2): e(f"v_pk_add_f32 {pr(E[q])}, {pr(E[q])}, v[40:41]")
    for q in range(2): e(f"v_pk_fma_f32 {pr(E[q])}, {pr(E[q])}, {pr(E[q])}, v[40:41]")
    for q in range(2):
        e(f"v_rcp_f32 v{E[q]}, v{E[q]}")
        e(f"v_rcp_f32 v{E[q]+1}, v{E[q]+1}")
    for q in range(2): e(f"v_pk_fma_f32 {pr(E[q])}, {pr(E[q])}, v[42:43], v[40:41]")
    for q in range(2): e(f"v_pk_mul_f32 {pr(H[q])}, {pr(H[q])}, {pr(E[q])}")
    for q in range(2): e(f"v_cvt_pk_bf16_f32 v{dst+q}, v{H[q]}, v{H[q]+1}")

def gemm_loop(nA, nsteps, KS, NS, frag_reg, acc_reg, voff, srdws, sA0, sB0, stride, spiece, vlds_r_b, vlds_r_lane):
    nR = nA + 4
    npieces = nR * KS
    npw = (npieces + 3) // 4
    SZ = npieces * 1024
    nchunks = nsteps // KS
    assert nsteps % KS == 0
    e(f"s_sub_u32 s{sB0}, s{sB0}, {nA*stride}")
    for i in range(npw):
        g, l = spiece + 2*i, spiece + 2*i + 1
        e(f"s_add_u32 s{l}, s3, {4*i}")
        e(f"s_min_u32 s{l}, s{l}, {npieces-1}")
        sh = {1: 0, 2: 1, 4: 2}[KS]
        e(f"s_lshr_b32 s{g}, s{l}, {sh}")
        e(f"s_cmp_lt_u32 s{g}, {nA}")
        e(f"s_cselect_b32 s6, s{sA0}, s{sB0}")
        e(f"s_mul_i32 s{g}, s{g}, {stride}")
        e(f"s_add_u32 s{g}, s{g}, s6")
        e(f"s_and_b32 s6, s{l}, {KS-1}")
        e(f"s_lshl_b32 s6, s6, 10")
        e(f"s_add_u32 s{g}, s{g}, s6")
        e(f"s_lshl_b32 s{l}, s{l}, 10")
    def dma(c):
        slot = c % NS
        for i in range(npw):
            e(f"s_add_u32 m0, s{spiece+2*i+1}, {slot*SZ}")
            e("s_nop 0")
            e(f"buffer_load_dwordx4 v{voff}, s[{srdws}:{srdws+3}], s{spiece+2*i} offen lds")
        e(f"v_add_u32 v{voff}, {KS*1024}, v{voff}")
    per = nA + 1
    HALF = 2*SZ
    e(f"v_add_u32 v12, {HALF}, v{vlds_r_b}")
    e(f"v_add_u32 v13, {HALF}, v{vlds_r_lane}")
    e(f"v_add_u32 v14, {2*HALF}, v{vlds_r_b}")
    e(f"v_add_u32 v15, {2*HALF}, v{vlds_r_lane}")
    def reads(slot, q):
        fr = frag_reg + 4*per*q
        vb, vl, so = [(vlds_r_b, vlds_r_lane, slot*SZ), (12, 13, slot*SZ - HALF), (14, 15, slot*SZ - 2*HALF)][slot//2]
        e(f"ds_read_b128 v[{fr}:{fr+3}], v{vb} offset:{so + q*1024}")
        for a in range(nA):
            e(f"ds_read_b128 v[{fr+4+4*a}:{fr+7+4*a}], v{vl} offset:{so + a*KS*1024 + q*1024}")
    def mfmas(q):
        fr = frag_reg + 4*per*q
        for a in range(nA):
            ac = acc_reg + 16*a
            e(f"v_mfma_f32_32x32x16_bf16 v[{ac}:{ac+15}], v[{fr+4+4*a}:{fr+7+4*a}], v[{fr}:{fr+3}], v[{ac}:{ac+15}]")
    for c in range(min(NS-1, nchunks)):
        dma(c)
    for c in range(nchunks):
        inflight = min(NS-2, nchunks-1-c)
        e(f"s_waitcnt vmcnt({inflight*npw})")
        e("s_barrier")
        if nA == 2 and c == 0: stamp(2)
        if nA == 2 and c == 1: stamp(3)
        slot = c % NS
        if "rd" not in SKIP:
            for q in range(KS):
                reads(slot, q)
        if c + NS - 1 < nchunks and "dma" not in SKIP:
            dma(c + NS - 1)
        for q in range(KS):
            e(f"s_waitcnt lgkmcnt({(KS-1-q)*per})")
            if "mf" not in SKIP: mfmas(q)


UB2 = CB(7) + CS
HS = 2432
def gen_conv2():
    if "cv" in SKIP: e("s_endpgm")
    if PRIO & 8: e("s_setprio 3")
    srd(8, 60, D*2)
    e("s_sub_u32 s4, s2, %d" % G1_WGS)
    e("s_and_b32 s5, s4, 7")
    e("s_lshl_b32 s5, s5, 2")
    e("s_bfe_u32 s6, s4, 0x20003")
    e("s_or_b32 s5, s5, s6")
    e("s_andn2_b32 s4, s4, 31")
    e("s_or_b32 s4, s4, s5")
    e("s_lshl_b32 s5, s4, 1")
    e("v_mov_b32 v3, s5")
    if DLYC: e(f"s_sleep {DLYC}")
    e("buffer_load_ushort v1, v3, s[8:11], 0 offen")
    e("s_lshl_b32 s5, s4, 5")
    e("s_add_u32 s5, s5, %d" % WS_XNT)
    e("v_lshrrev_b32 v4, 1, v0")
    e("v_mul_u32_u24 v4, 20480, v4")
    e("v_and_b32 v5, 1, v0")
    e("v_lshl_add_u32 v4, v5, 4, v4")
    e("buffer_load_dwordx4 v[8:11], v4, s[28:31], s5 offen")
    e("v_lshlrev_b32 v4, 4, v0")
    e("s_mul_i32 s6, s4, %d" % KR_STRIDE)
    e("s_add_u32 s6, s6, %d" % WS_KR)
    e("buffer_load_dwordx4 v[12:15], v4, s[28:31], s6 offen")
    e("buffer_load_dwordx4 v[16:19], v4, s[28:31], s6 offen offset:16")
    if not CV3:
        e("v_min_u32 v5, 3, v0")
        e("v_lshlrev_b32 v5, 4, v5")
        e("v_add_u32 v5, 4096, v5")
        e("buffer_load_dwordx4 v[20:23], v5, s[28:31], s6 offen")
        e("buffer_load_dwordx4 v[24:27], v5, s[28:31], s6 offen offset:16")
    for k in range(4):
        e(f"v_mov_b32 v{28+k}, 0")
    e("v_min_u32 v6, 31, v0")
    e("v_lshrrev_b32 v7, 4, v6")
    e("v_and_b32 v6, 15, v6")
    e("v_lshlrev_b32 v6, 4, v6")
    e(f"v_mad_u32_u24 v6, v7, {HS}, v6") if False else (e(f"v_mul_u32_u24 v7, {HS}, v7"), e("v_add_u32 v6, v6, v7"))
    if CV3:
        e("s_cmp_lg_u32 s3, 0")
        e("s_cbranch_scc1 cv_nz")
        e(f"v_add_u32 v6, {UB2}, v6")
        e("v_subrev_u32 v7, 32, v0")
        e("v_min_u32 v7, 7, v7")
        e("v_lshrrev_b32 v5, 2, v7")
        e(f"v_mul_u32_u24 v7, {CS}, v7")
        e("v_lshl_add_u32 v7, v5, 5, v7")
        e("v_add_u32 v7, 4096, v7")
        e("v_cmp_gt_u32 vcc, 32, v0")
        e("s_nop 1")
        e("v_cndmask_b32 v6, v7, v6, vcc")
        e("s_mov_b32 exec_hi, 0xff")
        e("ds_write_b128 v6, v[28:31]")
        e("s_mov_b32 exec_hi, -1")
        lab("cv_nz")
    else:
        e(f"ds_write_b128 v6, v[28:31] offset:{UB2}")
    e("v_lshrrev_b32 v6, 1, v0")
    e("v_lshlrev_b32 v6, 4, v6")
    e("v_and_b32 v7, 1, v0")
    e(f"v_mul_u32_u24 v7, {HS}, v7")
    e("v_add_u32 v6, v6, v7")
    e("s_waitcnt vmcnt(%d)" % (2 if CV3 else 4))
    e(f"ds_write_b128 v6, v[8:11] offset:{UB2 + 256}")
    def copies(w, vaddr):
        for c in range(8):
            if c % 2 == 0:
                e(f"ds_write_b128 v{vaddr}, v[{w+c//2}:{w+c//2+3}] offset:{CB(c)}") if (w + c//2) % 2 == 0 else None
                if (w + c//2) % 2:
                    for j in range(4):
                        e(f"v_mov_b32 v{32+j}, v{w+c//2+j}")
                    e(f"ds_write_b128 v{vaddr}, v[32:35] offset:{CB(c)}")
            else:
                for j in range(4):
                    e(f"v_alignbit_b32 v{36+j}, v{w+(c+1)//2+j}, v{w+(c-1)//2+j}, 16")
                e(f"ds_write_b128 v{vaddr}, v[36:39] offset:{CB(c)}")
    e("s_waitcnt vmcnt(%d)" % (0 if CV3 else 2))
    tl(1)
    copies(12, 4)
    if not CV3:
        e("s_waitcnt vmcnt(0)")
        copies(20, 5)
    e("v_and_b32 v3, 15, v2")
    e("v_lshrrev_b32 v4, 4, v2")
    e("v_sub_u32 v5, 7, v3")
    e("v_and_b32 v5, 7, v5")
    e("v_sub_u32 v6, 2031, v3")
    e("v_lshl_add_u32 v6, v4, 3, v6")
    e("v_sub_u32 v6, v6, v5")
    e("v_mul_u32_u24 v7, %d, v5" % CS)
    e("v_lshrrev_b32 v8, 2, v5")
    e("v_lshl_add_u32 v7, v8, 5, v7")
    e("v_lshl_add_u32 v6, v6, 1, v7")
    e("s_lshl_b32 s5, s3, 7")
    e(f"s_add_u32 s5, s5, {64 + 3584}")
    e("v_subrev_u32 v8, s5, v6")
    e("v_and_b32 v5, 1, v4")
    e("v_lshrrev_b32 v6, 1, v4")
    e(f"v_mul_u32_u24 v7, {HS}, v5")
    e("v_add_u32 v9, v3, v6")
    e("v_lshl_add_u32 v9, v9, 4, v7")
    e("s_lshl_b32 s5, s3, 6")
    e(f"s_sub_u32 s5, {UB2 + 16*15 - 32}, s5")
    e("v_add_u32 v9, s5, v9")
    e(f"v_mul_u32_u24 v11, {HS}, v6")
    e("v_lshl_add_u32 v11, v3, 4, v11")
    e("v_lshl_add_u32 v11, v5, 3, v11")
    e("s_lshl_b32 s5, s3, 9")
    e("v_add_u32 v11, s5, v11")
    e("v_lshlrev_b32 v12, 5, v3")
    e("v_lshl_add_u32 v12, v4, 3, v12")
    e("v_lshlrev_b32 v10, 4, v2")
    e("s_lshl_b32 s5, s3, 13")
    e("v_add_u32 v13, s5, v10")
    e("s_lshl_b32 s5, s3, 10")
    e("v_add_u32 v10, s5, v10")
    for r in range(16, 48):
        e(f"v_mov_b32 v{r}, 0")
    e("s_waitcnt lgkmcnt(0)")
    tl(2)
    e("s_barrier")
    tl(3)
    free = list(range(48, 128, 4))
    loc = {}
    pend = []
    order = [("A",0),("B",7),("B",0),("A",7),("A",1),("B",6),("B",1),("A",6),("A",2),("B",5),("B",2),("A",5),("A",3),("B",4),("B",3),("A",4)]
    todo = [(st,) + o for st in range(2) for o in order]
    def rd(n):
        for _ in range(n):
            if not todo or not free or len(pend) >= 15: return
            key = todo.pop(0); r = free.pop(0); loc[key] = r
            st, ab, i = key
            if ab == "A": e(f"ds_read_b128 v[{r}:{r+3}], v8 offset:{512*(7-i) + 64*(1-st)}")
            else: e(f"ds_read_b128 v[{r}:{r+3}], v9 offset:{256*i + 32*(1-st)}")
            pend.append(key)
    def need(keys):
        idx = [pend.index(k) for k in keys if k in pend]
        if idx:
            last = max(idx)
            e(f"s_waitcnt lgkmcnt({len(pend) - 1 - last})")
            del pend[:last+1]
    groups = []
    for s_ in (7, 6, 5, 4, 3, 2, 1, 0):
        n = min(s_, 7 - s_)
        g = [(s_, m) for m in range(n + 1)] + [(j, s_) for j in range(min(s_ - 1, 7 - s_) + 1)]
        groups.append((s_, g))
    assert sum(len(g) for _, g in groups) == 36
    rd(20)
    for st in range(2):
        for s_, g in groups:
            need([(st, "B", j) for j, m in g] + [(st, "A", m) for j, m in g])
            for j, m in g:
                ac = 16 + 4*(j + m); a = loc[(st, "A", m)]; b = loc[(st, "B", j)]
                e(f"v_mfma_f32_16x16x32_bf16 v[{ac}:{ac+3}], v[{a}:{a+3}], v[{b}:{b+3}], v[{ac}:{ac+3}]")
            free.append(loc[(st, "A", s_)]); free.append(loc[(st, "B", s_)])
            rd(8)
    assert not todo and not pend
    tl(4)
    e("s_nop 15")
    e("s_barrier")
    for t in range(8):
        if CV3 & 2 and t % 2 == 0:
            e(f"s_cmp_eq_u32 s3, {t//2}")
            e(f"s_cbranch_scc1 cv_sk{t//2}")
        e(f"ds_write_b128 v10, v[{16+4*t}:{19+4*t}] offset:{4096*t}")
        if CV3 & 2 and t % 2 == 1:
            e(f"s_branch cv_nx{t//2}")
            lab(f"cv_sk{t//2}")
            for tt in range(2):
                for r in range(4):
                    e(f"v_mov_b32 v{48+16*tt+r}, v{16+4*(t-1+tt)+r}")
            lab(f"cv_nx{t//2}")
    if CV3 & 2:
        for i in range(1, 4):
            e(f"s_add_u32 s5, s3, {i}")
            e("s_and_b32 s5, s5, 3")
            e("s_lshl_b32 s5, s5, 10")
            e(f"v_add_u32 v{4+i}, s5, v13")
    for tt in range(2):
        e(f"ds_read_b64 v[{80+2*tt}:{81+2*tt}], v11 offset:{UB2 + 256 + 256*tt}")
    e("s_lshl_b32 s5, s4, 12")
    e("s_lshl_b32 s6, s3, 10")
    e("s_add_u32 s5, s5, s6")
    e("s_add_u32 s5, s5, %d" % WS_AT)
    e("v_lshlrev_b32 v1, 16, v1")
    e("s_waitcnt lgkmcnt(0)")
    e("s_barrier")
    for i in range(8):
        if CV3 & 2:
            if i % 4: e(f"ds_read_b128 v[{48+4*i}:{51+4*i}], v{4+i%4} offset:{4096*(i//4)}")
        else:
            e(f"ds_read_b128 v[{48+4*i}:{51+4*i}], v13 offset:{1024*i}")
    for tt in range(2):
        for p_ in range(2):
            u = 80 + 2*tt + p_
            e(f"v_lshlrev_b32 v84, 16, v{u}")
            e(f"v_and_b32 v85, 0xffff0000, v{u}")
            e(f"v_mul_f32 v84, v84, v1")
            e(f"v_mul_f32 v85, v85, v1")
            e(f"v_cvt_pk_bf16_f32 v84, v84, v85")
            e(f"v_lshlrev_b32 v{88+4*tt+2*p_}, 16, v84")
            e(f"v_and_b32 v{89+4*tt+2*p_}, 0xffff0000, v84")
    for tt in range(2):
        e(f"s_waitcnt lgkmcnt({(3 - 3*tt) if CV3 & 2 else (4 - 4*tt)})")
        b0 = 48 + 16*tt
        for r in range(4):
            e(f"v_add_f32 v{b0+r}, v{b0+r}, v{b0+4+r}")
            e(f"v_add_f32 v{b0+8+r}, v{b0+8+r}, v{b0+12+r}")
        for r in range(4):
            e(f"v_add_f32 v{b0+r}, v{b0+r}, v{b0+8+r}")
        for p_ in range(2):
            e(f"v_cvt_pk_bf16_f32 v84, v{b0+2*p_}, v{b0+2*p_+1}")
            e(f"v_lshlrev_b32 v85, 16, v84")
            e(f"v_and_b32 v86, 0xffff0000, v84")
            e(f"v_add_f32 v85, v85, v{88+4*tt+2*p_}")
            e(f"v_add_f32 v86, v86, v{89+4*tt+2*p_}")
            e(f"v_cvt_pk_bf16_f32 v{96+2*tt+p_}, v85, v86")
        e(f"buffer_store_dwordx2 v[{96+2*tt}:{97+2*tt}], v12, s[28:31], s5 offen offset:{512*tt}")
    tl(5)
    if TL: e("s_waitcnt vmcnt(0)")
    tl_end(1)

def gen_mid():
    kernel_begin("mid_kernel")
    e("s_cmp_ge_u32 s2, %d" % MID_WGS)
    e("s_cbranch_scc1 mid_end")
    if EMU & 2:
        e("s_cmp_lt_u32 s2, 256")
        e("s_cbranch_scc1 mid_end")
    lab("mid_body")
    tl_begin()
    e("s_load_dwordx2 s[56:57], s[0:1], 104")
    e("s_load_dwordx2 s[58:59], s[0:1], 72")
    e("s_load_dwordx2 s[60:61], s[0:1], 48")
    e("v_lshrrev_b32 v1, 6, v0")
    e("v_and_b32 v2, 63, v0")
    e("s_nop 0")
    e("v_readfirstlane_b32 s3, v1")
    e("s_waitcnt lgkmcnt(0)")
    srd(28, 56, WS_SIZE)
    if W2MID:
        e("s_cmp_ge_u32 s2, %d" % (G1_WGS + CV_WGS))
        e("s_cbranch_scc1 mid_wt")
    e("s_cmp_ge_u32 s2, %d" % G1_WGS)
    e("s_cbranch_scc1 mid_conv")
    if "g1" in SKIP: e("s_endpgm")
    if PRIO & 4: e("s_setprio 3")
    srd(8, 58, F*2)
    tl(1)
    if not EMU & 1: claim_tile(0, 32, 7168*G1_NS, "mcl")
    elif SCL & 1: static_claim()
    tl(2)
    if G1MAP == 0:
        e("s_lshr_b32 s5, s2, 4")
        e("s_and_b32 s4, s2, 15")
    else:
        e("s_lshr_b32 s5, s2, 6")
        e("s_lshl_b32 s5, s5, 2")
        e("s_bfe_u32 s6, s2, 0x20003")
        e("s_add_u32 s5, s5, s6")
        e("s_bfe_u32 s4, s2, 0x10005")
        e("s_lshl_b32 s4, s4, 3")
        e("s_and_b32 s6, s2, 7")
        e("s_add_u32 s4, s4, s6")
    e("s_mul_i32 s6, s4, 7")
    e("s_sub_u32 s7, s4, 12")
    e("s_cmp_lt_u32 s4, 12")
    e("s_cselect_b32 s7, 0, s7")
    e("s_cselect_b32 s26, 7, 6")
    e("s_sub_u32 s4, s6, s7")
    e("v_and_b32 v3, 15, v2")
    e("v_lshrrev_b32 v4, 4, v2")
    e("v_lshrrev_b32 v5, 1, v4")
    e("v_and_b32 v6, 1, v4")
    e("v_lshlrev_b32 v7, 4, v3")
    e("v_lshl_add_u32 v7, v5, 10, v7")
    e("v_lshl_add_u32 v7, v6, 9, v7")
    e("v_mov_b32 v8, v7")
    for k in range(2):
        e(f"s_add_u32 s6, s3, {4*k}")
        e("s_min_u32 s6, s6, 6")
        e(f"s_lshl_b32 s{42+k}, s6, 10")
        e("s_add_u32 s6, s6, s4")
        e("s_min_u32 s6, s6, 107")
        e(f"s_lshr_b32 s{40+k}, s6, 1")
        e(f"s_mul_i32 s{40+k}, s{40+k}, {40*1024}")
        e("s_and_b32 s6, s6, 1")
        e("s_lshl_b32 s6, s6, 8")
        e(f"s_add_u32 s{40+k}, s{40+k}, s6")
        e(f"s_add_u32 s{40+k}, s{40+k}, {WS_W1F}")
    e("s_lshl_b32 s6, s5, 2")
    e("s_add_u32 s27, s6, s3")
    e("s_mul_i32 s44, s27, %d" % (40*1024))
    e("s_add_u32 s44, s44, %d" % WS_XNF)
    if "g1y" in SKIP:
        e("s_xor_b32 s45, s27, 1")
        e("s_mul_i32 s45, s45, %d" % (40*1024))
    e("v_lshlrev_b32 v9, 4, v2")
    NS, BD, NSTEP = G1_NS, G1_BD, 20
    NB = int(os.environ.get("G1NB", 6))
    AF, BF, ACC, BI = 16, 16 + 4*NB, 16 + 4*NB + 8*G1_BD, 44
    assert ACC + 56 <= 128
    pend = []
    def dma(st):
        for k in range(2):
            e(f"s_add_u32 m0, s{42+k}, {(st % NS)*7168}")
            e("s_nop 0")
            e(f"buffer_load_dwordx4 v7, s[28:31], s{40+k} offen lds")
            pend.append(("a", st))
        e("v_add_u32 v7, 2048, v7")
    def bld(st):
        r = BF + 8*(st % BD)
        e(f"buffer_load_dwordx4 v[{r}:{r+3}], v8, s[28:31], s44 offen")
        e(f"buffer_load_dwordx4 v[{r+4}:{r+7}], v8, s[28:31], s44 offen offset:256")
        pend.append(("b", st)); pend.append(("b", st))
        if "g1y" in SKIP:
            e(f"buffer_load_dwordx4 v[{r}:{r+3}], v8, s[28:31], s45 offen")
            e(f"buffer_load_dwordx4 v[{r+4}:{r+7}], v8, s[28:31], s45 offen offset:256")
            pend.append(("b", st)); pend.append(("b", st))
        e("v_add_u32 v8, 2048, v8")
    def wait_for(*tags):
        idx = [i for i, p in enumerate(pend) if p in tags]
        if not idx: return
        last = max(idx)
        e(f"s_waitcnt vmcnt({len(pend) - 1 - last})")
        del pend[:last+1]
    def rdA(g):
        st, t = divmod(g, 7)
        if st >= NSTEP: return
        r = AF + 4*(g % NB)
        e(f"ds_read_b128 v[{r}:{r+3}], v9 offset:{(st % NS)*7168 + 1024*t}")
    for st in range(max(NS-1, BD)):
        if st < NS-1: dma(st)
        if st < BD: bld(st)
    e("s_lshl_b32 s6, s4, 5")
    e("v_lshl_add_u32 v10, v4, 3, s6")
    for r in range(ACC, ACC+56):
        e(f"v_mov_b32 v{r}, 0")
    wait_for(("a", 0))
    e("s_barrier")
    tl(3)
    for t in range(NB): rdA(t)
    for st in range(NSTEP):
        if st + 1 < NSTEP:
            wait_for(("a", st+1), ("b", st))
            e("s_barrier")
            if st - 1 + NS < NSTEP: dma(st - 1 + NS)
        else:
            wait_for(("b", st))
        rb = BF + 8*(st % BD)
        for t in range(7):
            g = 7*st + t
            e(f"s_waitcnt lgkmcnt({min(NB - 1, 7*NSTEP - 1 - g)})")
            ra_ = AF + 4*(g % NB)
            for b_ in range(2):
                ac = ACC + 4*(2*t + b_)
                e(f"v_mfma_f32_16x16x32_bf16 v[{ac}:{ac+3}], v[{ra_}:{ra_+3}], v[{rb+4*b_}:{rb+4*b_+3}], v[{ac}:{ac+3}]")
            rdA(g + NB)
        if st + BD < NSTEP: bld(st + BD)
        if st == NSTEP - 2:
            assert BD >= 3
            free = [BF + 8*((NSTEP-3) % BD), BF + 8*((NSTEP-2) % BD)]
            BIr = [free[0] + 2*k for k in range(4)] + [free[1] + 2*k for k in range(3)]
            for t in range(7):
                e(f"buffer_load_dwordx2 v[{BIr[t]}:{BIr[t]+1}], v10, s[8:11], 0 offen offset:{32*t}")
                pend.append(("c", 0))
    e("s_nop 7")
    e("s_waitcnt vmcnt(0)")
    tl(4)
    e("s_mul_i32 s6, s27, 108")
    e("s_add_u32 s6, s6, s4")
    e("s_lshl_b32 s6, s6, 10")
    e("s_add_u32 s6, s6, %d" % WS_ACT)
    e("v_lshlrev_b32 v9, 4, v3")
    e("v_lshl_add_u32 v9, v5, 9, v9")
    e("v_lshl_add_u32 v9, v6, 3, v9")
    T = 16
    if MISH2 == 2:
        e(f"s_mov_b32 s46, {LOG2E:#x}")
        e(f"s_mov_b32 s47, {LOG2E:#x}")
        e("v_mov_b32 v40, 1.0"); e("v_mov_b32 v41, 1.0")
        e("v_mov_b32 v42, -2.0"); e("v_mov_b32 v43, -2.0")
    for t in range(7):
        if t == 6:
            e("s_cmp_lt_u32 s26, 7")
            e("s_cbranch_scc1 g1_end")
        r = BIr[t]
        e(f"v_lshlrev_b32 v{T}, 16, v{r}")
        e(f"v_and_b32 v{T+1}, 0xffff0000, v{r}")
        e(f"v_lshlrev_b32 v{T+2}, 16, v{r+1}")
        e(f"v_and_b32 v{T+3}, 0xffff0000, v{r+1}")
        for b_ in range(2):
            ac = ACC + 4*(2*t + b_)
            d0 = T + 16 + 2*((2*t + b_) % 4)
            if MISH2 == 2:
                mish_quad(ac, T, d0)
            else:
                mish_pairs(ac, ac+1, T, T+1, d0, T+4)
                mish_pairs(ac+2, ac+3, T+2, T+3, d0+1, T+10)
            off = (t % 4)*1024 + 256*b_
            e(f"buffer_store_dwordx2 v[{d0}:{d0+1}], v9, s[28:31], s6 offen offset:{off}")
        if t == 3: e("s_add_u32 s6, s6, 4096")
    lab("g1_end")
    tl(5)
    if TL: e("s_waitcnt vmcnt(0)")
    tl_end(1)
    e("s_endpgm")
    lab("mid_conv")
    if CONV2:
        gen_conv2()
    else:
        if "cv" in SKIP: e("s_endpgm")
        if PRIO & 8: e("s_setprio 3")
        srd(8, 60, D*2)
        e("s_sub_u32 s4, s2, %d" % G1_WGS)
        e("s_and_b32 s5, s4, 7")
        e("s_lshl_b32 s5, s5, 2")
        e("s_bfe_u32 s6, s4, 0x20003")
        e("s_or_b32 s5, s5, s6")
        e("s_andn2_b32 s4, s4, 31")
        e("s_or_b32 s4, s4, s5")
        e("s_lshl_b32 s5, s4, 1")
        e("v_mov_b32 v3, s5")
        if DLYC: e(f"s_sleep {DLYC}")
        e("buffer_load_ushort v1, v3, s[8:11], 0 offen")
        e("s_lshl_b32 s5, s4, 5")
        e("s_add_u32 s5, s5, %d" % WS_XNT)
        e("v_lshrrev_b32 v4, 1, v0")
        e("v_mul_u32_u24 v4, 20480, v4")
        e("v_and_b32 v5, 1, v0")
        e("v_lshl_add_u32 v4, v5, 4, v4")
        e("buffer_load_dwordx4 v[8:11], v4, s[28:31], s5 offen")
        e("v_lshlrev_b32 v4, 4, v0")
        e("s_mul_i32 s6, s4, %d" % KR_STRIDE)
        e("s_add_u32 s6, s6, %d" % WS_KR)
        e("buffer_load_dwordx4 v[12:15], v4, s[28:31], s6 offen")
        e("buffer_load_dwordx4 v[16:19], v4, s[28:31], s6 offen offset:16")
        e("v_min_u32 v5, 3, v0")
        e("v_lshlrev_b32 v5, 4, v5")
        e("v_add_u32 v5, 4096, v5")
        e("buffer_load_dwordx4 v[20:23], v5, s[28:31], s6 offen")
        e("buffer_load_dwordx4 v[24:27], v5, s[28:31], s6 offen offset:16")
        for k in range(4):
            e(f"v_mov_b32 v{28+k}, 0")
        e("v_min_u32 v6, 154, v0")
        e("v_lshlrev_b32 v6, 4, v6")
        e(f"ds_write_b128 v6, v[28:31] offset:{UB + 80}")
        e("v_lshrrev_b32 v6, 2, v0")
        e("v_mul_u32_u24 v6, 80, v6")
        e("v_and_b32 v7, 3, v0")
        e("v_lshl_add_u32 v6, v7, 4, v6")
        e("s_waitcnt vmcnt(4)")
        e(f"ds_write_b128 v6, v[8:11] offset:{UB + 32*80}")
        def copies(w, vaddr):
            for c in range(8):
                if c % 2 == 0:
                    e(f"ds_write_b128 v{vaddr}, v[{w+c//2}:{w+c//2+3}] offset:{CB(c)}") if (w + c//2) % 2 == 0 else None
                    if (w + c//2) % 2:
                        for j in range(4):
                            e(f"v_mov_b32 v{32+j}, v{w+c//2+j}")
                        e(f"ds_write_b128 v{vaddr}, v[32:35] offset:{CB(c)}")
                else:
                    for j in range(4):
                        e(f"v_alignbit_b32 v{36+j}, v{w+(c+1)//2+j}, v{w+(c-1)//2+j}, 16")
                    e(f"ds_write_b128 v{vaddr}, v[36:39] offset:{CB(c)}")
        e("s_waitcnt vmcnt(2)")
        tl(1)
        copies(12, 4)
        e("s_waitcnt vmcnt(0)")
        copies(20, 5)
        e("s_waitcnt lgkmcnt(0)")
        tl(2)
        e("s_barrier")
        tl(3)
        e("v_and_b32 v3, 31, v2")
        e("v_lshrrev_b32 v4, 5, v2")
        e("v_sub_u32 v5, 7, v3")
        e("v_and_b32 v5, 7, v5")
        e("v_sub_u32 v6, 2047, v3")
        e("v_lshl_add_u32 v6, v4, 3, v6")
        e("v_sub_u32 v6, v6, v5")
        e("v_mul_u32_u24 v7, %d, v5" % CS)
        e("v_lshrrev_b32 v8, 2, v5")
        e("v_lshl_add_u32 v7, v8, 5, v7")
        e("v_lshl_add_u32 v6, v6, 1, v7")
        e("v_mul_u32_u24 v7, 80, v3")
        e("v_lshl_add_u32 v7, v4, 4, v7")
        e(f"v_add_u32 v7, {UB + 32*80}, v7")
        for r in range(16, 48):
            e(f"v_mov_b32 v{r}, 0")
        e("s_lshl_b32 s5, s3, 9")
        e(f"s_add_u32 s5, s5, {64*7 + 64*32}")
        e("v_subrev_u32 v8, s5, v6")
        e("s_mul_i32 s5, s3, 640")
        e(f"s_add_u32 s5, s5, {80*7}")
        e("v_subrev_u32 v9, s5, v7")
        def rd(q):
            base = 48 + (q & 1)*32
            for t in range(2):
                fa = base + 16*t
                e(f"ds_read_b128 v[{fa}:{fa+3}], v8 offset:{64*(7-q) + 2048 + 32*t}")
                e(f"ds_read_b128 v[{fa+4}:{fa+7}], v9 offset:{80*(7-q) + 32*t}")
                e(f"ds_read_b128 v[{fa+8}:{fa+11}], v9 offset:{80*(7-q) + 2560 + 32*t}")
                e(f"ds_read_b128 v[{fa+12}:{fa+15}], v8 offset:{64*(7-q) + 32*t}")
        def mm(q):
            base = 48 + (q & 1)*32
            for t in range(2):
                fa = base + 16*t
                e(f"v_mfma_f32_32x32x16_bf16 v[16:31], v[{fa}:{fa+3}], v[{fa+4}:{fa+7}], v[16:31]")
                e(f"v_mfma_f32_32x32x16_bf16 v[32:47], v[{fa}:{fa+3}], v[{fa+8}:{fa+11}], v[32:47]")
                e(f"v_mfma_f32_32x32x16_bf16 v[32:47], v[{fa+12}:{fa+15}], v[{fa+4}:{fa+7}], v[32:47]")
        rd(0)
        for q in range(8):
            if q < 7:
                rd(q + 1)
                e("s_waitcnt lgkmcnt(8)")
            else:
                e("s_waitcnt lgkmcnt(0)")
            mm(q)
        tl(4)
        e("s_nop 15")
        e("s_barrier")
        e("v_lshlrev_b32 v10, 4, v2")
        e("s_cmp_eq_u32 s3, 0")
        e("s_cbranch_scc1 cv_w0")
        e("s_sub_u32 s5, s3, 1")
        e("s_lshl_b32 s5, s5, 12")
        e("v_add_u32 v11, s5, v10")
        for r in range(4):
            e(f"ds_write_b128 v11, v[{16+4*r}:{19+4*r}] offset:{1024*r}")
        lab("cv_w0")
        e("s_cmp_eq_u32 s3, 1")
        e("s_cbranch_scc1 cv_w1")
        e("s_sub_u32 s5, s3, 1")
        e("s_max_i32 s5, s5, 0")
        e("s_lshl_b32 s5, s5, 12")
        e("v_add_u32 v11, s5, v10")
        for r in range(4):
            e(f"ds_write_b128 v11, v[{32+4*r}:{35+4*r}] offset:{12288 + 1024*r}")
        e("s_branch cv_w2")
        lab("cv_w1")
        for r in range(16):
            e(f"v_mov_b32 v{16+r}, v{32+r}")
        e("v_add_u32 v10, 12288, v10")
        lab("cv_w2")
        e("s_waitcnt lgkmcnt(0)")
        e("s_barrier")
        e("s_cmp_ge_u32 s3, 2")
        e("s_cbranch_scc1 mid_end")
        for sl in range(3):
            for r in range(4):
                e(f"ds_read_b128 v[{48+16*sl+4*r}:{51+16*sl+4*r}], v10 offset:{4096*sl + 1024*r}")
        for sl in range(3):
            e(f"s_waitcnt lgkmcnt({8-4*sl})")
            for r in range(16):
                e(f"v_add_f32 v{16+r}, v{16+r}, v{48+16*sl+r}")
        lab("cv_epi")
        e("s_mul_i32 s5, s3, %d" % (32*80))
        e("v_mul_u32_u24 v11, 80, v3")
        e("v_lshl_add_u32 v11, v4, 3, v11")
        e("v_add_u32 v11, s5, v11")
        for g in range(4):
            e(f"ds_read_b64 v[{32+2*g}:{33+2*g}], v11 offset:{UB + 32*80 + 16*g}")
        e("s_lshl_b32 s5, s4, 12")
        e("s_lshl_b32 s6, s3, 11")
        e("s_add_u32 s5, s5, s6")
        e("s_add_u32 s5, s5, %d" % WS_AT)
        e("v_lshlrev_b32 v12, 6, v3")
        e("v_lshl_add_u32 v12, v4, 3, v12")
        e("s_waitcnt vmcnt(0) lgkmcnt(0)")
        e("v_lshlrev_b32 v1, 16, v1")
        for g in range(4):
            for p in range(2):
                u = 32 + 2*g + p
                y0 = 16 + 4*g + 2*p
                e(f"v_lshlrev_b32 v44, 16, v{u}")
                e(f"v_and_b32 v45, 0xffff0000, v{u}")
                e(f"v_mul_f32 v44, v44, v1")
                e(f"v_mul_f32 v45, v45, v1")
                e(f"v_cvt_pk_bf16_f32 v44, v44, v45")
                e(f"v_cvt_pk_bf16_f32 v46, v{y0}, v{y0+1}")
                e(f"v_lshlrev_b32 v47, 16, v44")
                e(f"v_and_b32 v48, 0xffff0000, v44")
                e(f"v_lshlrev_b32 v49, 16, v46")
                e(f"v_and_b32 v50, 0xffff0000, v46")
                e(f"v_add_f32 v47, v47, v49")
                e(f"v_add_f32 v48, v48, v50")
                e(f"v_cvt_pk_bf16_f32 v{52+2*g+p}, v47, v48")
            e(f"buffer_store_dwordx2 v[{52+2*g}:{53+2*g}], v12, s[28:31], s5 offen offset:{16*g}")
        tl(5)
        if TL: e("s_waitcnt vmcnt(0)")
        tl_end(1)
    if W2MID:
        e("s_endpgm")
        lab("mid_wt")
        gen_wt(G1_WGS + CV_WGS, 270, 540, "mid_end", 1, int(os.environ.get("DLYW2", 0)))
    lab("mid_end")
    e("s_endpgm")
    kernel_desc("mid_kernel", 128)

G2_WGS = 256
FIN_LDS = 61440 + 64
FDEPTH = int(os.environ.get('FDEPTH', 4))
def gen_fin():
    kernel_begin("fin_kernel")
    e("s_cmp_ge_u32 s2, %d" % G2_WGS)
    e("s_cbranch_scc1 fin_end")
    e("s_load_dwordx2 s[56:57], s[0:1], 104")
    e("s_load_dwordx2 s[58:59], s[0:1], 0")
    e("s_load_dwordx2 s[60:61], s[0:1], 88")
    e("v_lshrrev_b32 v1, 6, v0")
    e("v_and_b32 v2, 63, v0")
    e("s_nop 0")
    e("v_readfirstlane_b32 s3, v1")
    if FMAP == 2:
        e("s_and_b32 s5, s2, 31")
        e("s_lshr_b32 s4, s2, 5")
    elif FMAP == 3:
        e("s_lshr_b32 s5, s2, 3")
        e("s_and_b32 s4, s2, 7")
    else:
        if SCL & 2: static_claim()
        else:
            e("s_waitcnt lgkmcnt(0)")
            srd(28, 56, WS_SIZE)
            claim_tile(512, 32, 61440, "fcl")
        if FMAP == 0:
            e("s_lshr_b32 s5, s2, 5")
            e("s_lshl_b32 s5, s5, 2")
            e("s_and_b32 s6, s2, 3")
            e("s_add_u32 s5, s5, s6")
            e("s_bfe_u32 s4, s2, 0x30002")
        else:
            e("s_lshr_b32 s5, s2, 6")
            e("s_lshl_b32 s5, s5, 3")
            e("s_and_b32 s6, s2, 7")
            e("s_add_u32 s5, s5, s6")
            e("s_bfe_u32 s4, s2, 0x10005")
            e("s_lshl_b32 s4, s4, 2")
            e("s_bfe_u32 s6, s2, 0x20003")
            e("s_add_u32 s4, s4, s6")
    e("v_and_b32 v3, 15, v2")
    e("v_lshrrev_b32 v4, 4, v2")
    e("v_lshrrev_b32 v5, 1, v4")
    e("v_and_b32 v6, 1, v4")
    e("v_lshlrev_b32 v7, 4, v3")
    e("v_lshl_add_u32 v7, v5, 10, v7")
    e("v_lshl_add_u32 v7, v6, 9, v7")
    e("s_lshl_b32 s6, s3, 11")
    e("v_add_u32 v7, s6, v7")
    e("s_mul_i32 s6, s4, 5")
    for a_ in range(5):
        e(f"s_add_u32 s7, s6, {a_}")
        e(f"s_lshr_b32 s{40+a_}, s7, 1")
        e(f"s_mul_i32 s{40+a_}, s{40+a_}, {108*1024}")
        e(f"s_and_b32 s7, s7, 1")
        e(f"s_lshl_b32 s7, s7, 8")
        e(f"s_add_u32 s{40+a_}, s{40+a_}, s7")
        e(f"s_add_u32 s{40+a_}, s{40+a_}, {WS_W2F}")
    e("s_mul_i32 s6, s5, %d" % (2*108*1024))
    e("s_add_u32 s45, s6, %d" % WS_ACT)
    e("s_add_u32 s46, s45, 256")
    e("s_add_u32 s47, s45, %d" % (108*1024))
    e("s_add_u32 s48, s47, 256")
    e("s_waitcnt lgkmcnt(0)")
    srd(28, 56, WS_SIZE); srd(8, 58, L*D*2); srd(12, 60, L*D*2)
    FR = 16
    ACC = 0
    EP = FR + 36*FDEPTH
    pend = []
    def issue(m):
        base = FR + 36*(m % FDEPTH)
        for t in range(9):
            e(f"buffer_load_dwordx4 v[{base+4*t}:{base+4*t+3}], v7, s[28:31], s{40+t} offen")
            pend.append(("f", m))
        e("v_add_u32 v7, 8192, v7")
    def wait_for(tag):
        last = max(i for i, p in enumerate(pend) if p == tag)
        n = len(pend) - 1 - last
        e(f"s_waitcnt vmcnt({n})")
        del pend[:last+1]
    NST = 14
    for m in range(FDEPTH):
        issue(m)
    e("s_lshl_b32 s6, s5, 6")
    e("s_lshl_b32 s7, s3, 4")
    e("s_add_u32 s6, s6, s7")
    e("v_add_u32 v8, s6, v3")
    e("v_mul_u32_u24 v9, 1280, v8")
    e("v_lshl_add_u32 v9, v4, 3, v9")
    e("s_mul_i32 s6, s4, 160")
    e("v_add_u32 v9, s6, v9")
    for a_ in range(5):
        e(f"buffer_load_dwordx2 v[{EP+2*a_}:{EP+2*a_+1}], v9, s[8:11], 0 offen offset:{32*a_}")
        pend.append(("e", 0))
    e("v_lshlrev_b32 v10, 14, v4")
    e("v_lshl_add_u32 v10, v8, 1, v10")
    e("s_mul_i32 s6, s4, %d" % (80*4096))
    e("s_add_u32 s6, s6, %d" % WS_AT)
    for a_ in range(5):
        for j in range(4):
            e(f"buffer_load_ushort v{EP+10+4*a_+j}, v10, s[28:31], s6 offen")
            pend.append(("e", 0))
            e("s_add_u32 s6, s6, %d" % (4096 if j < 3 else 4096*13))
    for r in range(ACC, ACC+80):
        e(f"v_accvgpr_write_b32 a{r}, 0")
    for m in range(NST):
        if m == NST - 1:
            e("s_cmp_ge_u32 s3, 2")
            e("s_cbranch_scc1 fin_red")
        wait_for(("f", m))
        base = FR + 36*(m % FDEPTH)
        fill = []
        if FEP and FDEPTH + 1 <= m < FDEPTH + 4:
            for a_ in [(0, 1), (2, 3), (4,)][m - FDEPTH - 1]:
                rx = EP + 2*a_; ra = EP + 10 + 4*a_
                for k_ in range(9):
                    for p_ in range(2):
                        t0, t1 = 12 + 2*p_, 13 + 2*p_
                        r0, r1 = ra + 2*p_, ra + 2*p_ + 1
                        fill.append([f"v_lshlrev_b32 v{t0}, 16, v{rx+p_}", f"v_and_b32 v{t1}, 0xffff0000, v{rx+p_}",
                                     f"v_lshlrev_b32 v{r0}, 16, v{r0}", f"v_lshlrev_b32 v{r1}, 16, v{r1}",
                                     f"v_add_f32 v{t0}, v{t0}, v{r0}", f"v_add_f32 v{t1}, v{t1}, v{r1}",
                                     f"v_cvt_pk_bf16_f32 v{t0}, v{t0}, v{t1}",
                                     f"v_lshlrev_b32 v{r0}, 16, v{t0}", f"v_and_b32 v{r1}, 0xffff0000, v{t0}"][k_])
        for b_ in range(4):
            for a_ in range(5):
                ac = ACC + 4*(5*b_ + a_)
                e(f"v_mfma_f32_16x16x32_bf16 a[{ac}:{ac+3}], v[{base+4*a_}:{base+4*a_+3}], v[{base+20+4*b_}:{base+23+4*b_}], a[{ac}:{ac+3}]")
                for _ in range(2):
                    if fill: e(fill.pop(0))
        assert not fill
        if m + FDEPTH < NST:
            if m + FDEPTH == NST - 1:
                e("s_cmp_ge_u32 s3, 2")
                e("s_cselect_b32 s6, 8192, 0")
                e("v_subrev_u32 v7, s6, v7")
            issue(m + FDEPTH)
    lab("fin_red")
    e("s_nop 15")
    e("s_waitcnt vmcnt(0)")
    e("v_lshlrev_b32 v11, 4, v2")
    for w in range(4):
        if w < 3:
            e(f"s_cmp_lg_u32 s3, {w}")
            e(f"s_cbranch_scc1 fin_w{w+1}")
        for b_ in range(4):
            if b_ == w: continue
            slot = w if w < b_ else w - 1
            for a_ in range(5):
                ac = ACC + 4*(5*b_ + a_)
                e(f"ds_write_b128 v11, a[{ac}:{ac+3}] offset:{(b_*3 + slot)*5120 + a_*1024}")
        for r in range(20):
            e(f"v_accvgpr_read_b32 v{16+r}, a{ACC+20*w+r}")
        if w < 3:
            e("s_branch fin_rd")
            lab(f"fin_w{w+1}")
    lab("fin_rd")
    e("s_mul_i32 s6, s3, %d" % (3*5120))
    e("v_add_u32 v11, s6, v11")
    e("s_waitcnt lgkmcnt(0)")
    e("s_barrier")
    for sl in range(3):
        for a_ in range(5):
            r = 36 + 20*sl + 4*a_
            e(f"ds_read_b128 v[{r}:{r+3}], v11 offset:{sl*5120 + a_*1024}")
    for sl in range(3):
        e(f"s_waitcnt lgkmcnt({10-5*sl})")
        if FEP:
            for r in range(0, 20, 2):
                e(f"v_pk_add_f32 v[{16+r}:{17+r}], v[{16+r}:{17+r}], v[{36+20*sl+r}:{37+20*sl+r}]")
            continue
        for r in range(20):
            e(f"v_add_f32 v{16+r}, v{16+r}, v{36+20*sl+r}")
    e("s_waitcnt vmcnt(0)")
    for a_ in range(5):
        rx = EP + 2*a_
        ra = EP + 10 + 4*a_
        if FEP:
            ac = 16 + 4*a_
            for p in range(2): e(f"v_cvt_pk_bf16_f32 v{96+p}, v{ac+2*p}, v{ac+2*p+1}")
            for p in range(2):
                e(f"v_lshlrev_b32 v{98+2*p}, 16, v{96+p}")
                e(f"v_and_b32 v{99+2*p}, 0xffff0000, v{96+p}")
            for p in range(2): e(f"v_pk_add_f32 v[{98+2*p}:{99+2*p}], v[{98+2*p}:{99+2*p}], v[{ra+2*p}:{ra+2*p+1}]")
            for p in range(2): e(f"v_cvt_pk_bf16_f32 v{rx+p}, v{98+2*p}, v{99+2*p}")
        for p in range(2 if not FEP else 0):
            ac = 16 + 4*a_ + 2*p
            e(f"v_lshlrev_b32 v96, 16, v{rx+p}")
            e(f"v_and_b32 v97, 0xffff0000, v{rx+p}")
            e(f"v_lshlrev_b32 v98, 16, v{ra+2*p}")
            e(f"v_lshlrev_b32 v99, 16, v{ra+2*p+1}")
            e(f"v_add_f32 v96, v96, v98")
            e(f"v_add_f32 v97, v97, v99")
            e(f"v_cvt_pk_bf16_f32 v96, v96, v97")
            e(f"v_cvt_pk_bf16_f32 v98, v{ac}, v{ac+1}")
            e(f"v_lshlrev_b32 v100, 16, v96")
            e(f"v_and_b32 v101, 0xffff0000, v96")
            e(f"v_lshlrev_b32 v102, 16, v98")
            e(f"v_and_b32 v103, 0xffff0000, v98")
            e(f"v_add_f32 v100, v100, v102")
            e(f"v_add_f32 v101, v101, v103")
            e(f"v_cvt_pk_bf16_f32 v{rx+p}, v100, v101")
        e(f"buffer_store_dwordx2 v[{rx}:{rx+1}], v9, s[12:15], 0 offen offset:{32*a_}")
    lab("fin_end")
    e("s_endpgm")
    kernel_desc("fin_kernel", ((EP + 30) + 7)//8*8, agpr=80)

hdr = open("cdna_kernels/%s.s.ref" % NAME).read().split("; Override launch")[0]
text = hdr
text += f"; @launch kernel=prep_kernel grid=({PREP_WGS + (128 if PORD else 0) + (256 if EMU & 2 else 0)},1,1) block=(256,1,1) lds={MID_LDS if EMU & 2 else PREP_LDS}\n"
text += f"; @launch kernel=mid_kernel grid=({MID_WGS},1,1) block=(256,1,1) lds={MID_LDS}\n"
text += f"; @launch kernel=fin_kernel grid=({G2_WGS},1,1) block=(256,1,1) lds={FIN_LDS}\n"
text += '.amdgcn_target "amdgcn-amd-amdhsa--gfx950"\n'
gen_prep(); gen_mid(); gen_fin()
_o = []; _in = False
for _l in out:
    if _l.startswith("fin_kernel:"): _in = True
    if _l.strip().startswith("buffer_store") and not _in and "nosc" not in SKIP: _l += " sc1"
    _o.append(_l)
out = _o
text += "\n".join(out) + "\n"
dst = sys.argv[1] if len(sys.argv) > 1 else "cdna_kernels/%s.s" % NAME
open(dst, "w").write(text)
print("wrote", dst, len(text))
```

```python
import sys, os
SKIP = os.environ.get("SKIP", "").split(",")
ORDER = int(os.environ.get("ORDER", 0))
PRIO = int(os.environ.get("PRIO", 3))
W2MID = int(os.environ.get("W2MID", 0))
CONV2 = int(os.environ.get("CONV2", 1))
CV3 = int(os.environ.get("CV3", 1))
FEP = int(os.environ.get("FEP", 1))
PORD = int(os.environ.get("PORD", 0))
MISH2 = int(os.environ.get("MISH2", 2))
DLYC = int(os.environ.get("DLYC", 24))
G1MAP = int(os.environ.get("G1MAP", 1))
FMAP = int(os.environ.get("FMAP", 1))
DLYL = int(os.environ.get("DLYL", 16))
DLYW = int(os.environ.get("DLYW", 24))
EMU = int(os.environ.get("EMU", 1))
NAME = "parallel_sum__ssm_conv_s4d__dense_activation_mish__prompt"
L, D, N, F = 2048, 640, 128, 1728
WS_XNF = 0x0000000
WS_XNT = 0x0280000
WS_W1F = 0x0500000
WS_W2F = WS_W1F + 2160 * 1024
WS_KR = 0x0A00000
KR_STRIDE = 4224
WS_ACT = 0x0D00000
WS_AT = 0x1400000
WS_CNT = 0x1700000
WS_SIZE = 268435456
LOG2E = 0x3fb8aa3b
INV2PI = 0x3e22f983

out = []
def e(s):
    out.append("    " + s)
def lab(s):
    out.append(s + ":")
def cm(s):
    out.append("    ; " + s)

STAMP = os.environ.get("STAMP")
def stamp_init():
    if not STAMP: return
    e("s_load_dwordx2 s[84:85], s[0:1], 96")
    e("s_waitcnt lgkmcnt(0)")
    e("s_mov_b32 s80, s84"); e("s_and_b32 s81, s85, 0xffff"); e("s_mov_b32 s82, 256"); e("s_mov_b32 s83, 0x00020000")
def stamp(i):
    if not STAMP: return
    e("s_memtime s[86:87]")
    e("s_waitcnt lgkmcnt(0)")
    e(f"s_cmp_lg_u32 s2, {int(STAMP)}")
    e(f"s_cbranch_scc1 st_{stamp.n}")
    e(f"v_mov_b32 v255, s86")
    e(f"v_lshrrev_b32 v254, 6, v0")
    e(f"v_lshlrev_b32 v254, 6, v254")
    e(f"v_add_u32 v254, {4*i}, v254")
    e(f"buffer_store_dword v255, v254, s[80:83], 0 offen")
    lab(f"st_{stamp.n}")
    stamp.n += 1
stamp.n = 0


TL = os.environ.get("TL")
WS_TL = 0x1800000
def tl(i):
    if not TL: return
    e("s_memrealtime s[80:81]")
    e("s_waitcnt lgkmcnt(0)")
    e(f"s_mov_b32 s{84+i}, s80")
def tl_begin():
    if not TL: return
    e("s_mov_b32 s83, s2")
    for i in range(8): e(f"s_mov_b32 s{84+i}, 0")
    tl(0)
def tl_end(kern):
    if not TL: return
    tl(7)
    e("s_getreg_b32 s90, hwreg(HW_REG_HW_ID)")
    e("s_getreg_b32 s80, hwreg(HW_REG_XCC_ID)")
    e("s_and_b32 s90, s90, 0xffff")
    e("s_lshl_b32 s80, s80, 16")
    e("s_or_b32 s90, s90, s80")
    e("s_or_b32 s90, s90, 0x40000000")
    e("s_cmp_lg_u32 s3, 0")
    e(f"s_cbranch_scc1 tle_{tl_end.n}")
    e("s_lshl_b32 s83, s83, 5")
    e(f"s_add_u32 s83, s83, {WS_TL + kern*65536}")
    e("v_mov_b32 v1, 0")
    for i in range(8):
        e(f"v_mov_b32 v0, s{84+i}")
        e(f"buffer_store_dword v0, v1, s[28:31], s83 offen offset:{4*i}")
    lab(f"tle_{tl_end.n}")
    tl_end.n += 1
tl_end.n = 0

def srd(dst, ptr, size):
    e(f"s_mov_b32 s{dst}, s{ptr}")
    e(f"s_and_b32 s{dst+1}, s{ptr+1}, 0xffff")
    e(f"s_mov_b32 s{dst+2}, {size}")
    e(f"s_mov_b32 s{dst+3}, 0x00020000")

def kernel_begin(name):
    out.append(".text")
    out.append(f".globl {name}")
    out.append(".p2align 8")
    out.append(f".type {name},@function")
    lab(name)

def kernel_desc(name, vgpr, sgpr=96, agpr=0):
    if STAMP: vgpr = 256
    out.append('.section .rodata,"a"')
    out.append(".p2align 6")
    out.append(f".amdhsa_kernel {name}")
    out.append(f"  .amdhsa_next_free_vgpr {vgpr + agpr}")
    out.append(f"  .amdhsa_next_free_sgpr {sgpr}")
    out.append(f"  .amdhsa_accum_offset {(vgpr+3)//4*4}")
    out.append("  .amdhsa_group_segment_fixed_size 0")
    out.append("  .amdhsa_kernarg_size 112")
    out.append("  .amdhsa_user_sgpr_count 2")
    out.append("  .amdhsa_user_sgpr_kernarg_segment_ptr 1")
    out.append("  .amdhsa_system_sgpr_workgroup_id_x 1")
    out.append(".end_amdhsa_kernel")


SCL = int(os.environ.get("SCL", 3))
def static_claim():
    e("s_and_b32 s4, s2, 7")
    e("s_lshl_b32 s4, s4, 5")
    e("s_lshr_b32 s2, s2, 3")
    e("s_or_b32 s2, s2, s4")

def claim_tile(cnt_off, per, lds_off, lbl):
    e("s_cmp_lg_u32 s3, 0")
    e(f"s_cbranch_scc1 {lbl}_w")
    e("s_getreg_b32 s20, hwreg(HW_REG_XCC_ID)")
    e("s_and_b32 s20, s20, 7")
    e("s_mov_b32 s21, 0")
    e("s_mov_b64 s[22:23], exec")
    e("s_mov_b64 exec, 1")
    e("v_mov_b32 v12, 1")
    lab(f"{lbl}_l")
    e("s_lshl_b32 s24, s20, 6")
    e(f"s_add_u32 s24, s24, {WS_CNT + cnt_off}")
    e("v_mov_b32 v13, 0")
    e("v_mov_b32 v14, v12")
    e("buffer_atomic_add v14, v13, s[28:31], s24 offen sc0" + ("" if "asc" in SKIP else " sc1"))
    e("s_waitcnt vmcnt(0)")
    e("v_readfirstlane_b32 s25, v14")
    e(f"s_cmp_lt_u32 s25, {per}")
    e(f"s_cbranch_scc1 {lbl}_f")
    e("s_add_u32 s20, s20, 1")
    e("s_and_b32 s20, s20, 7")
    e("s_add_u32 s21, s21, 1")
    e("s_cmp_lt_u32 s21, 8")
    e(f"s_cbranch_scc1 {lbl}_l")
    e("s_mov_b32 s25, 0")
    lab(f"{lbl}_f")
    e(f"s_mul_i32 s20, s20, {per}")
    e("s_add_u32 s20, s20, s25")
    e("v_mov_b32 v14, s20")
    e(f"v_mov_b32 v13, {lds_off}")
    e("ds_write_b32 v13, v14")
    e("s_mov_b64 exec, s[22:23]")
    e("s_waitcnt lgkmcnt(0)")
    lab(f"{lbl}_w")
    e("s_barrier")
    e(f"v_mov_b32 v13, {lds_off}")
    e("ds_read_b32 v14, v13")
    e("s_waitcnt lgkmcnt(0)")
    e("v_readfirstlane_b32 s2, v14")

LN_WGS, WT_WGS, KG_WGS = 128, (68 if W2MID else 135), 640
PREP_WGS = KG_WGS + LN_WGS + WT_WGS
KG_LDS_WAVE = 512
KG_TAB0 = 2048
KG_TAB = 2688
KG_FIN = KG_TAB0 + 4*KG_TAB
PREP_LDS = 36864
LNS = 36

def gen_wt(wg0, wv0, wvend, endlab, kern, dly):
    if "wt" in SKIP: e("s_endpgm")
    if PRIO & 2: e("s_setprio 3")
    e("s_load_dwordx2 s[40:41], s[0:1], 64")
    e("s_load_dwordx2 s[42:43], s[0:1], 80")
    e("s_sub_u32 s4, s2, %d" % wg0)
    e("s_lshl_b32 s4, s4, 2")
    e("s_add_u32 s4, s4, s3")
    if wv0: e("s_add_u32 s4, s4, %d" % wv0)
    if wvend:
        e("s_cmp_ge_u32 s4, %d" % wvend)
        e("s_cbranch_scc1 %s" % endlab)
    e("s_waitcnt lgkmcnt(0)")
    e("s_cmp_ge_u32 s4, 270")
    e("s_cselect_b32 s40, s42, s40")
    e("s_cselect_b32 s41, s43, s41")
    e("s_mov_b32 s5, 3456")
    e("s_mov_b32 s7, 159072863")
    e("s_mov_b32 s34, %d" % WS_W1F)
    e("s_cselect_b32 s5, 1280, s5")
    e("s_cselect_b32 s6, 10, 27")
    e("s_cselect_b32 s7, 429496730, s7")
    e("s_cselect_b32 s32, 270, 0")
    e("s_cselect_b32 s33, 108, 40")
    e("s_cselect_b32 s34, %d, s34" % WS_W2F)
    srd(8, 40, D*F*2); srd(28, 56, WS_SIZE)
    e("s_sub_u32 s32, s4, s32")
    e("s_lshl_b32 s32, s32, 2")
    e("v_lshrrev_b32 v3, 3, v2")
    e("v_and_b32 v4, 7, v2")
    e("v_mul_lo_u32 v5, v3, s5")
    e("v_lshl_add_u32 v5, v4, 4, v5")
    e("s_lshl_b32 s35, s5, 3")
    e("s_mul_i32 s36, s3, %d" % (4*16*144))
    e("v_mul_u32_u24 v6, 144, v3")
    e("v_lshl_add_u32 v6, v4, 4, v6")
    e("v_add_u32 v6, s36, v6")
    e("v_and_b32 v7, 31, v2")
    e("v_lshrrev_b32 v8, 5, v2")
    e("v_mul_u32_u24 v8, %d, v8" % (8*144))
    e("v_lshl_add_u32 v8, v7, 1, v8")
    e("v_add_u32 v8, s36, v8")
    e("v_lshlrev_b32 v9, 4, v2")
    if dly: e(f"s_sleep {dly}")
    for q in range(4):
        e(f"s_add_u32 s37, s32, {q}")
        e("s_mul_hi_u32 s38, s37, s7")
        e("s_mul_i32 s39, s38, s6")
        e("s_sub_u32 s39, s37, s39")
        e(f"s_lshl_b32 s44, s38, 4")
        e(f"s_mul_i32 s44, s44, s5")
        e(f"s_lshl_b32 s45, s39, 7")
        e(f"s_add_u32 s44, s44, s45")
        e(f"buffer_load_dwordx4 v[{16+8*q}:{19+8*q}], v5, s[8:11], s44 offen")
        e(f"s_add_u32 s44, s44, s35")
        e(f"buffer_load_dwordx4 v[{20+8*q}:{23+8*q}], v5, s[8:11], s44 offen")
        e(f"s_lshl_b32 s45, s39, 1")
        e(f"s_mul_i32 s45, s45, s33")
        e(f"s_add_u32 s45, s45, s38")
        e(f"s_lshl_b32 s45, s45, 10")
        e(f"s_add_u32 s{48+q}, s45, s34")
    e("s_lshl_b32 s33, s33, 10")
    for q in range(4):
        e(f"s_waitcnt vmcnt({6-2*q})")
        e(f"ds_write_b128 v6, v[{16+8*q}:{19+8*q}] offset:{q*16*144}")
        e(f"ds_write_b128 v6, v[{20+8*q}:{23+8*q}] offset:{q*16*144 + 8*144}")
    tl(1)
    for q in range(4):
        e("s_waitcnt lgkmcnt(0)") if q == 0 else None
        for f in range(2):
            for el in range(8):
                e(f"ds_read_u16 v{48+16*(q&1)*2+16*f+el}, v8 offset:{q*16*144 + el*144 + 64*f}")
        if q > 0:
            pass
        e("s_waitcnt lgkmcnt(0)")
        for f in range(2):
            for j in range(4):
                r = 48 + 16*(q&1)*2 + 16*f
                e(f"v_lshl_or_b32 v{112+4*f+j}, v{r+2*j+1}, 16, v{r+2*j}")
            if f == 0:
                e(f"buffer_store_dwordx4 v[112:115], v9, s[28:31], s{48+q} offen")
            else:
                e(f"s_add_u32 s{48+q}, s{48+q}, s33")
                e(f"buffer_store_dwordx4 v[116:119], v9, s[28:31], s{48+q} offen")
        if q < 3:
            e("s_nop 1")
    tl(5)
    if TL: e("s_waitcnt vmcnt(0)")
    tl_end(kern)

def gen_prep():
    kernel_begin("prep_kernel")
    if EMU & 2:
        e("s_cmp_lt_u32 s2, 256")
        e("s_cbranch_scc1 mid_body")
        e("s_sub_u32 s2, s2, 256")
    if PORD:
        e("s_lshr_b32 s4, s2, 7")
        e("s_cmp_eq_u32 s4, 6")
        e("s_cbranch_scc1 prep_end")
        e("s_cmp_gt_u32 s4, 6")
        e("s_cselect_b32 s4, 128, 0")
        e("s_sub_u32 s2, s2, s4")
    e("s_cmp_ge_u32 s2, %d" % PREP_WGS)
    e("s_cbranch_scc1 prep_end")
    e("s_load_dwordx2 s[56:57], s[0:1], 104")
    e("v_lshrrev_b32 v1, 6, v0")
    e("v_and_b32 v2, 63, v0")
    e("s_nop 0")
    e("v_readfirstlane_b32 s3, v1")
    if ORDER:
        e("s_add_u32 s2, s2, %d" % KG_WGS)
        e("s_cmp_ge_u32 s2, %d" % PREP_WGS)
        e("s_cselect_b32 s4, %d, 0" % PREP_WGS)
        e("s_sub_u32 s2, s2, s4")
    tl_begin()
    e("s_cmp_ge_u32 s2, %d" % (KG_WGS + LN_WGS))
    e("s_cbranch_scc1 prep_wt")
    e("s_cmp_ge_u32 s2, %d" % KG_WGS)
    e("s_cbranch_scc1 prep_ln")
    if "kg" in SKIP: e("s_endpgm")
    e("s_load_dwordx4 s[40:43], s[0:1], 8")
    e("s_load_dwordx4 s[44:47], s[0:1], 24")
    e("s_load_dwordx2 s[48:49], s[0:1], 40")
    e("s_mov_b32 s4, s2")
    e("s_mul_i32 s5, s3, %d" % KG_LDS_WAVE)
    e("s_lshl_b32 s6, s4, 8")
    e("s_lshl_b32 s7, s3, 6")
    e("s_add_u32 s6, s6, s7")
    e("v_and_b32 v3, 31, v2")
    e("v_lshl_add_u32 v3, v3, 1, s6")
    e("s_lshl_b32 s7, s4, 1")
    e("v_mov_b32 v4, s7")
    e("s_waitcnt lgkmcnt(0)")
    srd(8, 40, D*N*2); srd(12, 42, D*N*2); srd(16, 44, D*N*2); srd(20, 46, D*N*2)
    srd(24, 48, D*2); srd(28, 56, WS_SIZE)
    for k, sr in enumerate((8, 12, 16, 20)):
        e(f"buffer_load_ushort v{10+k}, v3, s[{sr}:{sr+3}], 0 offen")
    e("buffer_load_ushort v18, v4, s[24:27], 0 offen")
    e("v_and_b32 v8, 15, v2")
    e("v_lshrrev_b32 v9, 4, v2")
    e("v_and_b32 v24, 7, v8")
    e("v_lshrrev_b32 v25, 3, v8")
    e("v_lshl_add_u32 v28, v25, 7, v24")
    e("v_and_b32 v24, 3, v8")
    e("v_lshlrev_b32 v24, 1, v24")
    e("v_bfe_u32 v25, v8, 2, 1")
    e("v_lshl_add_u32 v24, v25, 7, v24")
    e("v_add_u32 v24, 256, v24")
    e("v_and_b32 v25, 1, v8")
    e("v_lshlrev_b32 v25, 2, v25")
    e("v_bfe_u32 v26, v8, 1, 2")
    e("v_lshl_add_u32 v25, v26, 7, v25")
    e("v_add_u32 v25, 512, v25")
    e("v_cmp_gt_u32 vcc, 8, v8")
    e("s_nop 1")
    e("v_cndmask_b32 v29, v25, v24, vcc")
    e("v_lshlrev_b32 v30, 7, v8")
    e("v_add_u32 v30, 0x400, v30")
    e("v_lshlrev_b32 v31, 3, v8")
    for t in range(4):
        e(f"v_cvt_f32_u32 v{28+t}, v{28+t}")
    e("s_mul_i32 s6, s3, %d" % KG_TAB)
    e("s_add_u32 s6, s6, %d" % KG_TAB0)
    e("v_and_b32 v24, 1, v9")
    e("v_lshrrev_b32 v25, 1, v9")
    e("v_lshl_add_u32 v33, v8, 5, s6")
    e("v_lshl_add_u32 v33, v24, 4, v33")
    e("v_lshl_add_u32 v33, v25, 9, v33")
    e("v_lshlrev_b32 v24, 4, v8")
    e("v_lshlrev_b32 v25, 3, v8")
    e("v_cmp_gt_u32 vcc, 2, v9")
    e("s_nop 1")
    e("v_cndmask_b32 v24, v25, v24, vcc")
    e("v_lshl_add_u32 v24, v9, 8, v24")
    e("v_add_u32 v24, s6, v24")
    e("v_add_u32 v34, 1024, v24")
    e("v_mov_b32 v25, 128")
    e("v_cndmask_b32_e64 v24, v25, 8, vcc")
    e("v_add_u32 v36, v34, v24")
    e("v_lshl_add_u32 v38, v8, 2, s6")
    e("v_lshl_add_u32 v38, v9, 8, v38")
    e("v_add_u32 v38, 2048, v38")
    e("v_lshl_add_u32 v39, v9, 4, s5")
    for r in range(40, 52):
        e(f"v_mov_b32 v{r}, 0")
    e("s_waitcnt vmcnt(0)")
    tl(1)
    for r in (10, 11, 12, 13, 18):
        e(f"v_lshlrev_b32 v{r}, 16, v{r}")
    e(f"v_mul_f32 v18, {LOG2E:#x}, v18")
    e(f"v_mul_f32 v10, {LOG2E:#x}, v10")
    e("v_exp_f32 v18, v18")
    e("v_exp_f32 v10, v10")
    e("s_nop 0")
    e("v_cvt_pk_bf16_f32 v18, v18, v18")
    e("v_cvt_pk_bf16_f32 v10, v10, v10")
    e("v_lshlrev_b32 v18, 16, v18")
    e("v_lshlrev_b32 v10, 16, v10")
    e("v_add_f32 v19, v18, v18")
    e("v_and_b32 v5, 31, v2")
    e("v_lshl_add_u32 v5, v5, 4, s5")
    e("v_mul_f32 v20, v10, v18")
    e(f"v_mul_f32 v20, {LOG2E|0x80000000:#x}, v20")
    e("v_mul_f32 v21, v11, v18")
    e(f"v_mul_f32 v21, {INV2PI:#x}, v21")
    e("v_mul_f32 v22, v12, v19")
    e("v_mul_f32 v23, v13, v19")
    e("ds_write_b128 v5, v[20:23]")
    e("s_waitcnt lgkmcnt(0)")
    for st in range(8):
        e(f"ds_read_b128 v[{96+4*st}:{99+4*st}], v39 offset:{64*st}")
    e("s_waitcnt lgkmcnt(0)")
    def kg_valu(st):
        P = 96 + 4*st
        O = 72 + 10*(st & 1)
        v = []
        for t in range(4):
            v.append(f"v_mul_f32 v{52+t}, v{P}, v{28+t}")
            v.append(f"v_mul_f32 v{56+t}, v{P+1}, v{28+t}")
        for t in range(4):
            v.append(f"v_exp_f32 v{52+t}, v{52+t}")
            v.append(f"v_fract_f32 v{56+t}, v{56+t}")
        for t in range(4):
            v.append(f"v_cos_f32 v{60+t}, v{56+t}")
            v.append(f"v_sin_f32 v{64+t}, v{56+t}")
        for t in range(4):
            v.append(f"v_mul_f32 v{60+t}, v{52+t}, v{60+t}")
            v.append(f"v_mul_f32 v{64+t}, v{52+t}, v{64+t}")
        v.append(f"v_mul_f32 v55, v63, v{P+2}")
        v.append(f"v_mul_f32_e64 v59, -v63, v{P+3}")
        v.append(f"v_fma_f32 v55, -v67, v{P+3}, v55")
        v.append(f"v_fma_f32 v59, -v67, v{P+2}, v59")
        def split(xr, xi, H, Lo, t0, t1):
            v.append(f"v_cvt_pk_bf16_f32 v{H}, v{xr}, v{xi}")
            v.append(f"v_lshlrev_b32 v{t0}, 16, v{H}")
            v.append(f"v_and_b32 v{t1}, 0xffff0000, v{H}")
            v.append(f"v_sub_f32 v{t0}, v{xr}, v{t0}")
            v.append(f"v_sub_f32 v{t1}, v{xi}, v{t1}")
            v.append(f"v_cvt_pk_bf16_f32 v{Lo}, v{t0}, v{t1}")
        split(55, 59, O, O+2, 68, 69)
        v.append(f"v_mov_b32 v{O+1}, v{O}")
        v.append(f"v_mov_b32 v{O+3}, v{O+2}")
        for t in range(3):
            split(60+t, 64+t, O+4+2*t, O+5+2*t, 52+t, 56+t)
        return v
    def kg_mfma(st):
        O = 72 + 10*(st & 1)
        m = []
        for h in range(2):
            for t in range(3):
                a = 40 + 4*t
                m.append(f"v_mfma_f32_16x16x16_bf16 v[{a}:{a+3}], v[{O+4+2*t}:{O+5+2*t}], v[{O+2*h}:{O+2*h+1}], v[{a}:{a+3}]")
        return m
    for st in range(9):
        v = kg_valu(st) if st < 8 else []
        m = kg_mfma(st-1) if st > 0 else []
        if "kgm" in SKIP: m = []
        if "kgv" in SKIP: v = []
        if not v:
            e("s_nop 1")
        vi = 0
        for mi, mm_ in enumerate(m):
            tgt = 2 + 7*mi
            while vi < min(tgt, len(v)):
                e(v[vi]); vi += 1
            e(mm_)
        while vi < len(v):
            e(v[vi]); vi += 1
    e("s_nop 15")
    tl(2)
    for r in range(4):
        e(f"ds_write_b32 v33, v{40+r} offset:{4*r}")
    e("ds_write_b32 v34, v44")
    e("ds_write_b32 v34, v45 offset:4")
    e("ds_write_b32 v36, v46")
    e("ds_write_b32 v36, v47 offset:4")
    e("s_mov_b32 exec_hi, 0xffff")
    e("ds_write_b32 v38, v48")
    e("s_mov_b32 exec_hi, 0")
    for r in range(1, 4):
        e(f"ds_write_b32 v38, v{48+r} offset:{64*r}")
    e("s_mov_b32 exec_hi, -1")
    e("s_mul_i32 s4, s4, %d" % KR_STRIDE)
    e("s_add_u32 s4, s4, %d" % WS_KR)
    e("v_lshlrev_b32 v39, 4, v0")
    e("v_lshlrev_b32 v64, 3, v0")
    e("v_sub_u32 v64, 2047, v64")
    e("v_lshlrev_b32 v65, 2, v0")
    e("v_lshlrev_b32 v66, 1, v0")
    for k in range(8):
        e(f"v_subrev_u32 v{52+k}, {k}, v64")
        e(f"v_cvt_f32_u32 v{72+k}, v{52+k}")
    for k in range(4):
        e(f"v_cvt_pk_bf16_f32 v{80+k}, v{72+2*k}, v{73+2*k}")
        e(f"v_and_b32 v{72+2*k}, 0xffff, v{80+k}")
        e(f"v_lshrrev_b32 v{73+2*k}, 16, v{80+k}")
    for k in range(8):
        e(f"v_subrev_u32 v{72+k}, 17024, v{72+k}")
        e(f"v_cmp_gt_u32 vcc, 256, v{52+k}")
        e("s_nop 1")
        e(f"v_cndmask_b32 v{52+k}, v{72+k}, v{52+k}, vcc")
        e(f"v_lshlrev_b32 v{52+k}, 1, v{52+k}")
    e("s_waitcnt lgkmcnt(0)")
    e("s_barrier")
    tl(3)
    for m in range(3):
        for ww in range(4):
            e(f"ds_read_b32 v{72+4*m+ww}, v65 offset:{KG_TAB0 + ww*KG_TAB + 1024*m}")
    for m in range(3):
        e(f"s_waitcnt lgkmcnt({8-4*m})")
        e(f"v_add_f32 v{72+4*m}, v{72+4*m}, v{73+4*m}")
        e(f"v_add_f32 v{74+4*m}, v{74+4*m}, v{75+4*m}")
        e(f"v_add_f32 v{72+4*m}, v{72+4*m}, v{74+4*m}")
        e(f"v_cvt_pk_bf16_f32 v{72+4*m}, v{72+4*m}, v{72+4*m}")
        e(f"ds_write_b16 v66, v{72+4*m} offset:{KG_FIN + 512*m}")
    e("s_waitcnt lgkmcnt(0)")
    e("s_barrier")
    tl(4)
    for k in range(8):
        e(f"ds_read_u16 v{96+k}, v{52+k} offset:{KG_FIN}")
    e("s_waitcnt lgkmcnt(0)")
    for k in range(4):
        e(f"v_lshl_or_b32 v{112+k}, v{97+2*k}, 16, v{96+2*k}")
    e(f"buffer_store_dwordx4 v[112:115], v39, s[28:31], s4 offen")
    for k in range(4):
        e(f"v_mov_b32 v{116+k}, 0")
    e("v_cmp_gt_u32 vcc, 8, v0")
    e("s_and_saveexec_b64 s[32:33], vcc")
    e("s_cbranch_execz prep_end")
    e("s_add_u32 s4, s4, 4096")
    e("buffer_store_dwordx4 v[116:119], v39, s[28:31], s4 offen")
    e("v_lshlrev_b32 v39, 6, v0")
    tl(5)
    if TL: e("s_waitcnt vmcnt(0)")
    tl_end(0)
    if not (EMU & 1 and (SCL & 2 or FMAP >= 2)):
        e("s_cmp_lg_u32 s2, 0")
        e("s_cbranch_scc1 prep_end")
        e("s_mov_b32 s4, %d" % WS_CNT)
        e("buffer_store_dword v116, v39, s[28:31], s4 offen")
        e("buffer_store_dword v116, v39, s[28:31], s4 offen offset:512")
    e("s_endpgm")
    lab("prep_ln")
    if "ln" in SKIP: e("s_endpgm")
    if PRIO & 1: e("s_setprio 3")
    e("s_load_dwordx2 s[40:41], s[0:1], 0")
    e("s_sub_u32 s2, s2, %d" % KG_WGS)
    e("v_and_b32 v3, 15, v0")
    e("v_lshrrev_b32 v4, 4, v0")
    e("s_lshl_b32 s5, s2, 4")
    e("v_add_u32 v5, s5, v4")
    e("v_mul_u32_u24 v6, 1280, v5")
    e("v_lshl_add_u32 v6, v3, 4, v6")
    e("s_waitcnt lgkmcnt(0)")
    srd(8, 40, L*D*2); srd(28, 56, WS_SIZE)
    if DLYL: e(f"s_sleep {DLYL}")
    for j in range(5):
        e(f"buffer_load_dwordx4 v[{16+4*j}:{19+4*j}], v6, s[8:11], 0 offen offset:{256*j}")
    e("s_lshr_b32 s6, s2, 1")
    e("s_mul_i32 s6, s6, %d" % (40*1024))
    e("s_add_u32 s6, s6, %d" % WS_XNF)
    e("v_lshrrev_b32 v7, 1, v3")
    e("v_lshlrev_b32 v7, 10, v7")
    e("v_and_b32 v8, 1, v3")
    e("v_lshl_add_u32 v7, v8, 9, v7")
    e("v_and_b32 v8, 31, v5")
    e("v_lshl_add_u32 v7, v8, 4, v7")
    e(f"v_mul_u32_u24 v9, {8*LNS}, v3")
    e("v_lshl_add_u32 v9, v4, 1, v9")
    e("s_waitcnt vmcnt(0)")
    tl(1)
    for k in range(20):
        e(f"v_lshlrev_b32 v{40+2*k}, 16, v{16+k}")
        e(f"v_and_b32 v{41+2*k}, 0xffff0000, v{16+k}")
    def lane_sum(srcs, acc):
        for a in range(4):
            e(f"v_add_f32 v{acc+a}, v{srcs[a]}, v{srcs[a+4]}")
        for k in range(8, len(srcs)):
            e(f"v_add_f32 v{acc+(k%4)}, v{acc+(k%4)}, v{srcs[k]}")
        e(f"v_add_f32 v{acc}, v{acc}, v{acc+1}")
        e(f"v_add_f32 v{acc+2}, v{acc+2}, v{acc+3}")
        e(f"v_add_f32 v{acc}, v{acc}, v{acc+2}")
        for sh in (8, 4, 2, 1):
            e("s_nop 1")
            e(f"v_add_f32_dpp v{acc}, v{acc}, v{acc} row_ror:{sh} row_mask:0xf bank_mask:0xf")
    lane_sum(list(range(40, 80)), 10)
    e("v_mul_f32 v14, 0x3acccccd, v10")
    for k in range(40):
        e(f"v_sub_f32 v{80+k}, v{40+k}, v14")
        e(f"v_mul_f32 v{80+k}, v{80+k}, v{80+k}")
    lane_sum(list(range(80, 120)), 10)
    e("v_mul_f32 v10, 0x3acccccd, v10")
    e("v_cvt_pk_bf16_f32 v10, v10, v14")
    e("v_and_b32 v14, 0xffff0000, v10")
    e("v_lshlrev_b32 v10, 16, v10")
    e("v_add_f32 v10, 0x3727c5ac, v10")
    e("v_cvt_pk_bf16_f32 v10, v10, v10")
    e("v_lshlrev_b32 v10, 16, v10")
    e("v_sqrt_f32 v10, v10")
    e("s_nop 0")
    e("v_cvt_pk_bf16_f32 v10, v10, v10")
    e("v_lshlrev_b32 v10, 16, v10")
    e("v_rcp_f32 v11, v10")
    e("s_nop 0")
    e("v_fma_f32 v12, -v10, v11, 2.0")
    e("v_mul_f32 v11, v11, v12")
    for k in range(20):
        e(f"v_sub_f32 v{40+2*k}, v{40+2*k}, v14")
        e(f"v_sub_f32 v{41+2*k}, v{41+2*k}, v14")
        e(f"v_cvt_pk_bf16_f32 v{16+k}, v{40+2*k}, v{41+2*k}")
        e(f"v_lshlrev_b32 v{40+2*k}, 16, v{16+k}")
        e(f"v_and_b32 v{41+2*k}, 0xffff0000, v{16+k}")
        e(f"v_mul_f32 v{40+2*k}, v{40+2*k}, v11")
        e(f"v_mul_f32 v{41+2*k}, v{41+2*k}, v11")
        e(f"v_cvt_pk_bf16_f32 v{16+k}, v{40+2*k}, v{41+2*k}")
    tl(2)
    for j in range(5):
        if "xnf" not in SKIP: e(f"buffer_store_dwordx4 v[{16+4*j}:{19+4*j}], v7, s[28:31], s6 offen")
        if j < 4: e("s_add_u32 s6, s6, 8192")
    for j in range(5):
        for el in range(8):
            r = 16 + 4*j + el//2
            op = "ds_write_b16_d16_hi" if el & 1 else "ds_write_b16"
            e(f"{op} v9, v{r} offset:{(128*j + el)*LNS}")
    e("v_lshrrev_b32 v10, 1, v0")
    e("v_and_b32 v11, 1, v0")
    e(f"v_mul_u32_u24 v12, {LNS}, v10")
    e("v_lshl_add_u32 v12, v11, 4, v12")
    e("v_lshlrev_b32 v13, 4, v0")
    e("s_mul_i32 s6, s2, 20480")
    e("s_add_u32 s6, s6, %d" % WS_XNT)
    e("s_waitcnt lgkmcnt(0)")
    e("s_barrier")
    tl(3)
    for j in range(5):
        e(f"ds_read2_b32 v[{40+4*j}:{41+4*j}], v12 offset0:{(128*j*LNS)//4 % 256} offset1:{(128*j*LNS)//4 % 256 + 1}")
        e(f"ds_read2_b32 v[{42+4*j}:{43+4*j}], v12 offset0:{(128*j*LNS)//4 % 256 + 2} offset1:{(128*j*LNS)//4 % 256 + 3}")
        if j < 4:
            nxt = (128*(j+1)*LNS)//4 // 256 - (128*j*LNS)//4 // 256
            e(f"v_add_u32 v12, {nxt*1024}, v12")
    for j in range(5):
        e(f"s_waitcnt lgkmcnt({2*(4-j)})")
        if "xnt" not in SKIP: e(f"buffer_store_dwordx4 v[{40+4*j}:{43+4*j}], v13, s[28:31], s6 offen")
        if j < 4: e("s_add_u32 s6, s6, %d" % (128*32))
    tl(5)
    if TL: e("s_waitcnt vmcnt(0)")
    tl_end(0)
    e("s_endpgm")
    lab("prep_wt")
    gen_wt(KG_WGS + LN_WGS, 0, 270 if W2MID else 0, "prep_end", 0, DLYW)
    lab("prep_end")
    e("s_endpgm")
    kernel_desc("prep_kernel", 160 if EMU & 4 else 128)

G1_WGS = 256
CV_WGS = 640
W2_WGS = 68 if W2MID else 0
MID_WGS = G1_WGS + CV_WGS + W2_WGS
CS = 4160
def CB(c): return c*CS + (32 if c >= 4 else 0)
UB = CB(7) + CS - 80
G1_NS, G1_BD = int(os.environ.get('G1NS', 5)), int(os.environ.get('G1BD', 4))
MID_LDS = 40960

def mish_pairs(acc0, acc1, b0, b1r, dst, t):
    e(f"v_cvt_pk_bf16_f32 v{t}, v{acc0}, v{acc1}")
    e(f"v_lshlrev_b32 v{t+1}, 16, v{t}")
    e(f"v_and_b32 v{t+2}, 0xffff0000, v{t}")
    e(f"v_add_f32 v{t+1}, v{t+1}, v{b0}")
    e(f"v_add_f32 v{t+2}, v{t+2}, v{b1r}")
    e(f"v_cvt_pk_bf16_f32 v{t}, v{t+1}, v{t+2}")
    e(f"v_lshlrev_b32 v{t+1}, 16, v{t}")
    e(f"v_and_b32 v{t+2}, 0xffff0000, v{t}")
    if MISH2:
        e(f"v_mul_f32 v{t+3}, {LOG2E:#x}, v{t+1}")
        e(f"v_mul_f32 v{t+4}, {LOG2E:#x}, v{t+2}")
        e(f"v_exp_f32 v{t+3}, v{t+3}")
        e(f"v_exp_f32 v{t+4}, v{t+4}")
        e(f"s_nop 0")
        e(f"v_add_f32 v{t+3}, 1.0, v{t+3}")
        e(f"v_add_f32 v{t+4}, 1.0, v{t+4}")
        e(f"v_fmaak_f32 v{t+3}, v{t+3}, v{t+3}, 0x3f800000")
        e(f"v_fmaak_f32 v{t+4}, v{t+4}, v{t+4}, 0x3f800000")
        e(f"v_rcp_f32 v{t+3}, v{t+3}")
        e(f"v_rcp_f32 v{t+4}, v{t+4}")
        e(f"s_nop 0")
        e(f"v_fmaak_f32 v{t+3}, -2.0, v{t+3}, 0x3f800000")
        e(f"v_fmaak_f32 v{t+4}, -2.0, v{t+4}, 0x3f800000")
        e(f"v_mul_f32 v{t+1}, v{t+1}, v{t+3}")
        e(f"v_mul_f32 v{t+2}, v{t+2}, v{t+4}")
    else:
        e(f"v_min_f32 v{t+3}, 0x41a00000, v{t+1}")
        e(f"v_min_f32 v{t+4}, 0x41a00000, v{t+2}")
        e(f"v_mul_f32 v{t+3}, {LOG2E:#x}, v{t+3}")
        e(f"v_mul_f32 v{t+4}, {LOG2E:#x}, v{t+4}")
        e(f"v_exp_f32 v{t+3}, v{t+3}")
        e(f"v_exp_f32 v{t+4}, v{t+4}")
        e(f"s_nop 0")
        e(f"v_add_f32 v{t}, 2.0, v{t+3}")
        e(f"v_add_f32 v{t+5}, 2.0, v{t+4}")
        e(f"v_mul_f32 v{t+3}, v{t+3}, v{t}")
        e(f"v_mul_f32 v{t+4}, v{t+4}, v{t+5}")
        e(f"v_add_f32 v{t}, 2.0, v{t+3}")
        e(f"v_add_f32 v{t+5}, 2.0, v{t+4}")
        e(f"v_rcp_f32 v{t}, v{t}")
        e(f"v_rcp_f32 v{t+5}, v{t+5}")
        e(f"v_mul_f32 v{t+1}, v{t+1}, v{t+3}")
        e(f"v_mul_f32 v{t+2}, v{t+2}, v{t+4}")
        e(f"v_mul_f32 v{t+1}, v{t+1}, v{t}")
        e(f"v_mul_f32 v{t+2}, v{t+2}, v{t+5}")
    e(f"v_cvt_pk_bf16_f32 v{dst}, v{t+1}, v{t+2}")

def mish_quad(ac, T, dst):
    H = [T+4, T+8]; E = [T+6, T+10]; P = [T+12, T+13]
    pr = lambda r: f"v[{r}:{r+1}]"
    for q in range(2): e(f"v_cvt_pk_bf16_f32 v{P[q]}, v{ac+2*q}, v{ac+2*q+1}")
    for q in range(2):
        e(f"v_lshlrev_b32 v{H[q]}, 16, v{P[q]}")
        e(f"v_and_b32 v{H[q]+1}, 0xffff0000, v{P[q]}")
    for q in range(2): e(f"v_pk_add_f32 {pr(H[q])}, {pr(H[q])}, {pr(T+2*q)}")
    for q in range(2): e(f"v_cvt_pk_bf16_f32 v{P[q]}, v{H[q]}, v{H[q]+1}")
    for q in range(2):
        e(f"v_lshlrev_b32 v{H[q]}, 16, v{P[q]}")
        e(f"v_and_b32 v{H[q]+1}, 0xffff0000, v{P[q]}")
    for q in range(2): e(f"v_pk_mul_f32 {pr(E[q])}, {pr(H[q])}, s[46:47]")
    for q in range(2):
        e(f"v_exp_f32 v{E[q]}, v{E[q]}")
        e(f"v_exp_f32 v{E[q]+1}, v{E[q]+1}")
    for q in range(2): e(f"v_pk_add_f32 {pr(E[q])}, {pr(E[q])}, v[40:41]")
    for q in range(2): e(f"v_pk_fma_f32 {pr(E[q])}, {pr(E[q])}, {pr(E[q])}, v[40:41]")
    for q in range(2):
        e(f"v_rcp_f32 v{E[q]}, v{E[q]}")
        e(f"v_rcp_f32 v{E[q]+1}, v{E[q]+1}")
    for q in range(2): e(f"v_pk_fma_f32 {pr(E[q])}, {pr(E[q])}, v[42:43], v[40:41]")
    for q in range(2): e(f"v_pk_mul_f32 {pr(H[q])}, {pr(H[q])}, {pr(E[q])}")
    for q in range(2): e(f"v_cvt_pk_bf16_f32 v{dst+q}, v{H[q]}, v{H[q]+1}")

def gemm_loop(nA, nsteps, KS, NS, frag_reg, acc_reg, voff, srdws, sA0, sB0, stride, spiece, vlds_r_b, vlds_r_lane):
    nR = nA + 4
    npieces = nR * KS
    npw = (npieces + 3) // 4
    SZ = npieces * 1024
    nchunks = nsteps // KS
    assert nsteps % KS == 0
    e(f"s_sub_u32 s{sB0}, s{sB0}, {nA*stride}")
    for i in range(npw):
        g, l = spiece + 2*i, spiece + 2*i + 1
        e(f"s_add_u32 s{l}, s3, {4*i}")
        e(f"s_min_u32 s{l}, s{l}, {npieces-1}")
        sh = {1: 0, 2: 1, 4: 2}[KS]
        e(f"s_lshr_b32 s{g}, s{l}, {sh}")
        e(f"s_cmp_lt_u32 s{g}, {nA}")
        e(f"s_cselect_b32 s6, s{sA0}, s{sB0}")
        e(f"s_mul_i32 s{g}, s{g}, {stride}")
        e(f"s_add_u32 s{g}, s{g}, s6")
        e(f"s_and_b32 s6, s{l}, {KS-1}")
        e(f"s_lshl_b32 s6, s6, 10")
        e(f"s_add_u32 s{g}, s{g}, s6")
        e(f"s_lshl_b32 s{l}, s{l}, 10")
    def dma(c):
        slot = c % NS
        for i in range(npw):
            e(f"s_add_u32 m0, s{spiece+2*i+1}, {slot*SZ}")
            e("s_nop 0")
            e(f"buffer_load_dwordx4 v{voff}, s[{srdws}:{srdws+3}], s{spiece+2*i} offen lds")
        e(f"v_add_u32 v{voff}, {KS*1024}, v{voff}")
    per = nA + 1
    HALF = 2*SZ
    e(f"v_add_u32 v12, {HALF}, v{vlds_r_b}")
    e(f"v_add_u32 v13, {HALF}, v{vlds_r_lane}")
    e(f"v_add_u32 v14, {2*HALF}, v{vlds_r_b}")
    e(f"v_add_u32 v15, {2*HALF}, v{vlds_r_lane}")
    def reads(slot, q):
        fr = frag_reg + 4*per*q
        vb, vl, so = [(vlds_r_b, vlds_r_lane, slot*SZ), (12, 13, slot*SZ - HALF), (14, 15, slot*SZ - 2*HALF)][slot//2]
        e(f"ds_read_b128 v[{fr}:{fr+3}], v{vb} offset:{so + q*1024}")
        for a in range(nA):
            e(f"ds_read_b128 v[{fr+4+4*a}:{fr+7+4*a}], v{vl} offset:{so + a*KS*1024 + q*1024}")
    def mfmas(q):
        fr = frag_reg + 4*per*q
        for a in range(nA):
            ac = acc_reg + 16*a
            e(f"v_mfma_f32_32x32x16_bf16 v[{ac}:{ac+15}], v[{fr+4+4*a}:{fr+7+4*a}], v[{fr}:{fr+3}], v[{ac}:{ac+15}]")
    for c in range(min(NS-1, nchunks)):
        dma(c)
    for c in range(nchunks):
        inflight = min(NS-2, nchunks-1-c)
        e(f"s_waitcnt vmcnt({inflight*npw})")
        e("s_barrier")
        if nA == 2 and c == 0: stamp(2)
        if nA == 2 and c == 1: stamp(3)
        slot = c % NS
        if "rd" not in SKIP:
            for q in range(KS):
                reads(slot, q)
        if c + NS - 1 < nchunks and "dma" not in SKIP:
            dma(c + NS - 1)
        for q in range(KS):
            e(f"s_waitcnt lgkmcnt({(KS-1-q)*per})")
            if "mf" not in SKIP: mfmas(q)


UB2 = CB(7) + CS
HS = 2432
def gen_conv2():
    if "cv" in SKIP: e("s_endpgm")
    if PRIO & 8: e("s_setprio 3")
    srd(8, 60, D*2)
    e("s_sub_u32 s4, s2, %d" % G1_WGS)
    e("s_and_b32 s5, s4, 7")
    e("s_lshl_b32 s5, s5, 2")
    e("s_bfe_u32 s6, s4, 0x20003")
    e("s_or_b32 s5, s5, s6")
    e("s_andn2_b32 s4, s4, 31")
    e("s_or_b32 s4, s4, s5")
    e("s_lshl_b32 s5, s4, 1")
    e("v_mov_b32 v3, s5")
    if DLYC: e(f"s_sleep {DLYC}")
    e("buffer_load_ushort v1, v3, s[8:11], 0 offen")
    e("s_lshl_b32 s5, s4, 5")
    e("s_add_u32 s5, s5, %d" % WS_XNT)
    e("v_lshrrev_b32 v4, 1, v0")
    e("v_mul_u32_u24 v4, 20480, v4")
    e("v_and_b32 v5, 1, v0")
    e("v_lshl_add_u32 v4, v5, 4, v4")
    e("buffer_load_dwordx4 v[8:11], v4, s[28:31], s5 offen")
    e("v_lshlrev_b32 v4, 4, v0")
    e("s_mul_i32 s6, s4, %d" % KR_STRIDE)
    e("s_add_u32 s6, s6, %d" % WS_KR)
    e("buffer_load_dwordx4 v[12:15], v4, s[28:31], s6 offen")
    e("buffer_load_dwordx4 v[16:19], v4, s[28:31], s6 offen offset:16")
    if not CV3:
        e("v_min_u32 v5, 3, v0")
        e("v_lshlrev_b32 v5, 4, v5")
        e("v_add_u32 v5, 4096, v5")
        e("buffer_load_dwordx4 v[20:23], v5, s[28:31], s6 offen")
        e("buffer_load_dwordx4 v[24:27], v5, s[28:31], s6 offen offset:16")
    for k in range(4):
        e(f"v_mov_b32 v{28+k}, 0")
    e("v_min_u32 v6, 31, v0")
    e("v_lshrrev_b32 v7, 4, v6")
    e("v_and_b32 v6, 15, v6")
    e("v_lshlrev_b32 v6, 4, v6")
    e(f"v_mad_u32_u24 v6, v7, {HS}, v6") if False else (e(f"v_mul_u32_u24 v7, {HS}, v7"), e("v_add_u32 v6, v6, v7"))
    if CV3:
        e("s_cmp_lg_u32 s3, 0")
        e("s_cbranch_scc1 cv_nz")
        e(f"v_add_u32 v6, {UB2}, v6")
        e("v_subrev_u32 v7, 32, v0")
        e("v_min_u32 v7, 7, v7")
        e("v_lshrrev_b32 v5, 2, v7")
        e(f"v_mul_u32_u24 v7, {CS}, v7")
        e("v_lshl_add_u32 v7, v5, 5, v7")
        e("v_add_u32 v7, 4096, v7")
        e("v_cmp_gt_u32 vcc, 32, v0")
        e("s_nop 1")
        e("v_cndmask_b32 v6, v7, v6, vcc")
        e("s_mov_b32 exec_hi, 0xff")
        e("ds_write_b128 v6, v[28:31]")
        e("s_mov_b32 exec_hi, -1")
        lab("cv_nz")
    else:
        e(f"ds_write_b128 v6, v[28:31] offset:{UB2}")
    e("v_lshrrev_b32 v6, 1, v0")
    e("v_lshlrev_b32 v6, 4, v6")
    e("v_and_b32 v7, 1, v0")
    e(f"v_mul_u32_u24 v7, {HS}, v7")
    e("v_add_u32 v6, v6, v7")
    e("s_waitcnt vmcnt(%d)" % (2 if CV3 else 4))
    e(f"ds_write_b128 v6, v[8:11] offset:{UB2 + 256}")
    def copies(w, vaddr):
        for c in range(8):
            if c % 2 == 0:
                e(f"ds_write_b128 v{vaddr}, v[{w+c//2}:{w+c//2+3}] offset:{CB(c)}") if (w + c//2) % 2 == 0 else None
                if (w + c//2) % 2:
                    for j in range(4):
                        e(f"v_mov_b32 v{32+j}, v{w+c//2+j}")
                    e(f"ds_write_b128 v{vaddr}, v[32:35] offset:{CB(c)}")
            else:
                for j in range(4):
                    e(f"v_alignbit_b32 v{36+j}, v{w+(c+1)//2+j}, v{w+(c-1)//2+j}, 16")
                e(f"ds_write_b128 v{vaddr}, v[36:39] offset:{CB(c)}")
    e("s_waitcnt vmcnt(%d)" % (0 if CV3 else 2))
    tl(1)
    copies(12, 4)
    if not CV3:
        e("s_waitcnt vmcnt(0)")
        copies(20, 5)
    e("v_and_b32 v3, 15, v2")
    e("v_lshrrev_b32 v4, 4, v2")
    e("v_sub_u32 v5, 7, v3")
    e("v_and_b32 v5, 7, v5")
    e("v_sub_u32 v6, 2031, v3")
    e("v_lshl_add_u32 v6, v4, 3, v6")
    e("v_sub_u32 v6, v6, v5")
    e("v_mul_u32_u24 v7, %d, v5" % CS)
    e("v_lshrrev_b32 v8, 2, v5")
    e("v_lshl_add_u32 v7, v8, 5, v7")
    e("v_lshl_add_u32 v6, v6, 1, v7")
    e("s_lshl_b32 s5, s3, 7")
    e(f"s_add_u32 s5, s5, {64 + 3584}")
    e("v_subrev_u32 v8, s5, v6")
    e("v_and_b32 v5, 1, v4")
    e("v_lshrrev_b32 v6, 1, v4")
    e(f"v_mul_u32_u24 v7, {HS}, v5")
    e("v_add_u32 v9, v3, v6")
    e("v_lshl_add_u32 v9, v9, 4, v7")
    e("s_lshl_b32 s5, s3, 6")
    e(f"s_sub_u32 s5, {UB2 + 16*15 - 32}, s5")
    e("v_add_u32 v9, s5, v9")
    e(f"v_mul_u32_u24 v11, {HS}, v6")
    e("v_lshl_add_u32 v11, v3, 4, v11")
    e("v_lshl_add_u32 v11, v5, 3, v11")
    e("s_lshl_b32 s5, s3, 9")
    e("v_add_u32 v11, s5, v11")
    e("v_lshlrev_b32 v12, 5, v3")
    e("v_lshl_add_u32 v12, v4, 3, v12")
    e("v_lshlrev_b32 v10, 4, v2")
    e("s_lshl_b32 s5, s3, 13")
    e("v_add_u32 v13, s5, v10")
    e("s_lshl_b32 s5, s3, 10")
    e("v_add_u32 v10, s5, v10")
    for r in range(16, 48):
        e(f"v_mov_b32 v{r}, 0")
    e("s_waitcnt lgkmcnt(0)")
    tl(2)
    e("s_barrier")
    tl(3)
    free = list(range(48, 128, 4))
    loc = {}
    pend = []
    order = [("A",0),("B",7),("B",0),("A",7),("A",1),("B",6),("B",1),("A",6),("A",2),("B",5),("B",2),("A",5),("A",3),("B",4),("B",3),("A",4)]
    todo = [(st,) + o for st in range(2) for o in order]
    def rd(n):
        for _ in range(n):
            if not todo or not free or len(pend) >= 15: return
            key = todo.pop(0); r = free.pop(0); loc[key] = r
            st, ab, i = key
            if ab == "A": e(f"ds_read_b128 v[{r}:{r+3}], v8 offset:{512*(7-i) + 64*(1-st)}")
            else: e(f"ds_read_b128 v[{r}:{r+3}], v9 offset:{256*i + 32*(1-st)}")
            pend.append(key)
    def need(keys):
        idx = [pend.index(k) for k in keys if k in pend]
        if idx:
            last = max(idx)
            e(f"s_waitcnt lgkmcnt({len(pend) - 1 - last})")
            del pend[:last+1]
    groups = []
    for s_ in (7, 6, 5, 4, 3, 2, 1, 0):
        n = min(s_, 7 - s_)
        g = [(s_, m) for m in range(n + 1)] + [(j, s_) for j in range(min(s_ - 1, 7 - s_) + 1)]
        groups.append((s_, g))
    assert sum(len(g) for _, g in groups) == 36
    rd(20)
    for st in range(2):
        for s_, g in groups:
            need([(st, "B", j) for j, m in g] + [(st, "A", m) for j, m in g])
            for j, m in g:
                ac = 16 + 4*(j + m); a = loc[(st, "A", m)]; b = loc[(st, "B", j)]
                e(f"v_mfma_f32_16x16x32_bf16 v[{ac}:{ac+3}], v[{a}:{a+3}], v[{b}:{b+3}], v[{ac}:{ac+3}]")
            free.append(loc[(st, "A", s_)]); free.append(loc[(st, "B", s_)])
            rd(8)
    assert not todo and not pend
    tl(4)
    e("s_nop 15")
    e("s_barrier")
    for t in range(8):
        if CV3 & 2 and t % 2 == 0:
            e(f"s_cmp_eq_u32 s3, {t//2}")
            e(f"s_cbranch_scc1 cv_sk{t//2}")
        e(f"ds_write_b128 v10, v[{16+4*t}:{19+4*t}] offset:{4096*t}")
        if CV3 & 2 and t % 2 == 1:
            e(f"s_branch cv_nx{t//2}")
            lab(f"cv_sk{t//2}")
            for tt in range(2):
                for r in range(4):
                    e(f"v_mov_b32 v{48+16*tt+r}, v{16+4*(t-1+tt)+r}")
            lab(f"cv_nx{t//2}")
    if CV3 & 2:
        for i in range(1, 4):
            e(f"s_add_u32 s5, s3, {i}")
            e("s_and_b32 s5, s5, 3")
            e("s_lshl_b32 s5, s5, 10")
            e(f"v_add_u32 v{4+i}, s5, v13")
    for tt in range(2):
        e(f"ds_read_b64 v[{80+2*tt}:{81+2*tt}], v11 offset:{UB2 + 256 + 256*tt}")
    e("s_lshl_b32 s5, s4, 12")
    e("s_lshl_b32 s6, s3, 10")
    e("s_add_u32 s5, s5, s6")
    e("s_add_u32 s5, s5, %d" % WS_AT)
    e("v_lshlrev_b32 v1, 16, v1")
    e("s_waitcnt lgkmcnt(0)")
    e("s_barrier")
    for i in range(8):
        if CV3 & 2:
            if i % 4: e(f"ds_read_b128 v[{48+4*i}:{51+4*i}], v{4+i%4} offset:{4096*(i//4)}")
        else:
            e(f"ds_read_b128 v[{48+4*i}:{51+4*i}], v13 offset:{1024*i}")
    for tt in range(2):
        for p_ in range(2):
            u = 80 + 2*tt + p_
            e(f"v_lshlrev_b32 v84, 16, v{u}")
            e(f"v_and_b32 v85, 0xffff0000, v{u}")
            e(f"v_mul_f32 v84, v84, v1")
            e(f"v_mul_f32 v85, v85, v1")
            e(f"v_cvt_pk_bf16_f32 v84, v84, v85")
            e(f"v_lshlrev_b32 v{88+4*tt+2*p_}, 16, v84")
            e(f"v_and_b32 v{89+4*tt+2*p_}, 0xffff0000, v84")
    for tt in range(2):
        e(f"s_waitcnt lgkmcnt({(3 - 3*tt) if CV3 & 2 else (4 - 4*tt)})")
        b0 = 48 + 16*tt
        for r in range(4):
            e(f"v_add_f32 v{b0+r}, v{b0+r}, v{b0+4+r}")
            e(f"v_add_f32 v{b0+8+r}, v{b0+8+r}, v{b0+12+r}")
        for r in range(4):
            e(f"v_add_f32 v{b0+r}, v{b0+r}, v{b0+8+r}")
        for p_ in range(2):
            e(f"v_cvt_pk_bf16_f32 v84, v{b0+2*p_}, v{b0+2*p_+1}")
            e(f"v_lshlrev_b32 v85, 16, v84")
            e(f"v_and_b32 v86, 0xffff0000, v84")
            e(f"v_add_f32 v85, v85, v{88+4*tt+2*p_}")
            e(f"v_add_f32 v86, v86, v{89+4*tt+2*p_}")
            e(f"v_cvt_pk_bf16_f32 v{96+2*tt+p_}, v85, v86")
        e(f"buffer_store_dwordx2 v[{96+2*tt}:{97+2*tt}], v12, s[28:31], s5 offen offset:{512*tt}")
    tl(5)
    if TL: e("s_waitcnt vmcnt(0)")
    tl_end(1)

def gen_mid():
    kernel_begin("mid_kernel")
    e("s_cmp_ge_u32 s2, %d" % MID_WGS)
    e("s_cbranch_scc1 mid_end")
    if EMU & 2:
        e("s_cmp_lt_u32 s2, 256")
        e("s_cbranch_scc1 mid_end")
    lab("mid_body")
    tl_begin()
    e("s_load_dwordx2 s[56:57], s[0:1], 104")
    e("s_load_dwordx2 s[58:59], s[0:1], 72")
    e("s_load_dwordx2 s[60:61], s[0:1], 48")
    e("v_lshrrev_b32 v1, 6, v0")
    e("v_and_b32 v2, 63, v0")
    e("s_nop 0")
    e("v_readfirstlane_b32 s3, v1")
    e("s_waitcnt lgkmcnt(0)")
    srd(28, 56, WS_SIZE)
    if W2MID:
        e("s_cmp_ge_u32 s2, %d" % (G1_WGS + CV_WGS))
        e("s_cbranch_scc1 mid_wt")
    e("s_cmp_ge_u32 s2, %d" % G1_WGS)
    e("s_cbranch_scc1 mid_conv")
    if "g1" in SKIP: e("s_endpgm")
    if PRIO & 4: e("s_setprio 3")
    srd(8, 58, F*2)
    tl(1)
    if not EMU & 1: claim_tile(0, 32, 7168*G1_NS, "mcl")
    elif SCL & 1: static_claim()
    tl(2)
    if G1MAP == 0:
        e("s_lshr_b32 s5, s2, 4")
        e("s_and_b32 s4, s2, 15")
    else:
        e("s_lshr_b32 s5, s2, 6")
        e("s_lshl_b32 s5, s5, 2")
        e("s_bfe_u32 s6, s2, 0x20003")
        e("s_add_u32 s5, s5, s6")
        e("s_bfe_u32 s4, s2, 0x10005")
        e("s_lshl_b32 s4, s4, 3")
        e("s_and_b32 s6, s2, 7")
        e("s_add_u32 s4, s4, s6")
    e("s_mul_i32 s6, s4, 7")
    e("s_sub_u32 s7, s4, 12")
    e("s_cmp_lt_u32 s4, 12")
    e("s_cselect_b32 s7, 0, s7")
    e("s_cselect_b32 s26, 7, 6")
    e("s_sub_u32 s4, s6, s7")
    e("v_and_b32 v3, 15, v2")
    e("v_lshrrev_b32 v4, 4, v2")
    e("v_lshrrev_b32 v5, 1, v4")
    e("v_and_b32 v6, 1, v4")
    e("v_lshlrev_b32 v7, 4, v3")
    e("v_lshl_add_u32 v7, v5, 10, v7")
    e("v_lshl_add_u32 v7, v6, 9, v7")
    e("v_mov_b32 v8, v7")
    for k in range(2):
        e(f"s_add_u32 s6, s3, {4*k}")
        e("s_min_u32 s6, s6, 6")
        e(f"s_lshl_b32 s{42+k}, s6, 10")
        e("s_add_u32 s6, s6, s4")
        e("s_min_u32 s6, s6, 107")
        e(f"s_lshr_b32 s{40+k}, s6, 1")
        e(f"s_mul_i32 s{40+k}, s{40+k}, {40*1024}")
        e("s_and_b32 s6, s6, 1")
        e("s_lshl_b32 s6, s6, 8")
        e(f"s_add_u32 s{40+k}, s{40+k}, s6")
        e(f"s_add_u32 s{40+k}, s{40+k}, {WS_W1F}")
    e("s_lshl_b32 s6, s5, 2")
    e("s_add_u32 s27, s6, s3")
    e("s_mul_i32 s44, s27, %d" % (40*1024))
    e("s_add_u32 s44, s44, %d" % WS_XNF)
    if "g1y" in SKIP:
        e("s_xor_b32 s45, s27, 1")
        e("s_mul_i32 s45, s45, %d" % (40*1024))
    e("v_lshlrev_b32 v9, 4, v2")
    NS, BD, NSTEP = G1_NS, G1_BD, 20
    NB = int(os.environ.get("G1NB", 6))
    AF, BF, ACC, BI = 16, 16 + 4*NB, 16 + 4*NB + 8*G1_BD, 44
    assert ACC + 56 <= 128
    pend = []
    def dma(st):
        for k in range(2):
            e(f"s_add_u32 m0, s{42+k}, {(st % NS)*7168}")
            e("s_nop 0")
            e(f"buffer_load_dwordx4 v7, s[28:31], s{40+k} offen lds")
            pend.append(("a", st))
        e("v_add_u32 v7, 2048, v7")
    def bld(st):
        r = BF + 8*(st % BD)
        e(f"buffer_load_dwordx4 v[{r}:{r+3}], v8, s[28:31], s44 offen")
        e(f"buffer_load_dwordx4 v[{r+4}:{r+7}], v8, s[28:31], s44 offen offset:256")
        pend.append(("b", st)); pend.append(("b", st))
        if "g1y" in SKIP:
            e(f"buffer_load_dwordx4 v[{r}:{r+3}], v8, s[28:31], s45 offen")
            e(f"buffer_load_dwordx4 v[{r+4}:{r+7}], v8, s[28:31], s45 offen offset:256")
            pend.append(("b", st)); pend.append(("b", st))
        e("v_add_u32 v8, 2048, v8")
    def wait_for(*tags):
        idx = [i for i, p in enumerate(pend) if p in tags]
        if not idx: return
        last = max(idx)
        e(f"s_waitcnt vmcnt({len(pend) - 1 - last})")
        del pend[:last+1]
    def rdA(g):
        st, t = divmod(g, 7)
        if st >= NSTEP: return
        r = AF + 4*(g % NB)
        e(f"ds_read_b128 v[{r}:{r+3}], v9 offset:{(st % NS)*7168 + 1024*t}")
    for st in range(max(NS-1, BD)):
        if st < NS-1: dma(st)
        if st < BD: bld(st)
    e("s_lshl_b32 s6, s4, 5")
    e("v_lshl_add_u32 v10, v4, 3, s6")
    for r in range(ACC, ACC+56):
        e(f"v_mov_b32 v{r}, 0")
    wait_for(("a", 0))
    e("s_barrier")
    tl(3)
    for t in range(NB): rdA(t)
    for st in range(NSTEP):
        if st + 1 < NSTEP:
            wait_for(("a", st+1), ("b", st))
            e("s_barrier")
            if st - 1 + NS < NSTEP: dma(st - 1 + NS)
        else:
            wait_for(("b", st))
        rb = BF + 8*(st % BD)
        for t in range(7):
            g = 7*st + t
            e(f"s_waitcnt lgkmcnt({min(NB - 1, 7*NSTEP - 1 - g)})")
            ra_ = AF + 4*(g % NB)
            for b_ in range(2):
                ac = ACC + 4*(2*t + b_)
                e(f"v_mfma_f32_16x16x32_bf16 v[{ac}:{ac+3}], v[{ra_}:{ra_+3}], v[{rb+4*b_}:{rb+4*b_+3}], v[{ac}:{ac+3}]")
            rdA(g + NB)
        if st + BD < NSTEP: bld(st + BD)
        if st == NSTEP - 2:
            assert BD >= 3
            free = [BF + 8*((NSTEP-3) % BD), BF + 8*((NSTEP-2) % BD)]
            BIr = [free[0] + 2*k for k in range(4)] + [free[1] + 2*k for k in range(3)]
            for t in range(7):
                e(f"buffer_load_dwordx2 v[{BIr[t]}:{BIr[t]+1}], v10, s[8:11], 0 offen offset:{32*t}")
                pend.append(("c", 0))
    e("s_nop 7")
    e("s_waitcnt vmcnt(0)")
    tl(4)
    e("s_mul_i32 s6, s27, 108")
    e("s_add_u32 s6, s6, s4")
    e("s_lshl_b32 s6, s6, 10")
    e("s_add_u32 s6, s6, %d" % WS_ACT)
    e("v_lshlrev_b32 v9, 4, v3")
    e("v_lshl_add_u32 v9, v5, 9, v9")
    e("v_lshl_add_u32 v9, v6, 3, v9")
    T = 16
    if MISH2 == 2:
        e(f"s_mov_b32 s46, {LOG2E:#x}")
        e(f"s_mov_b32 s47, {LOG2E:#x}")
        e("v_mov_b32 v40, 1.0"); e("v_mov_b32 v41, 1.0")
        e("v_mov_b32 v42, -2.0"); e("v_mov_b32 v43, -2.0")
    for t in range(7):
        if t == 6:
            e("s_cmp_lt_u32 s26, 7")
            e("s_cbranch_scc1 g1_end")
        r = BIr[t]
        e(f"v_lshlrev_b32 v{T}, 16, v{r}")
        e(f"v_and_b32 v{T+1}, 0xffff0000, v{r}")
        e(f"v_lshlrev_b32 v{T+2}, 16, v{r+1}")
        e(f"v_and_b32 v{T+3}, 0xffff0000, v{r+1}")
        for b_ in range(2):
            ac = ACC + 4*(2*t + b_)
            d0 = T + 16 + 2*((2*t + b_) % 4)
            if MISH2 == 2:
                mish_quad(ac, T, d0)
            else:
                mish_pairs(ac, ac+1, T, T+1, d0, T+4)
                mish_pairs(ac+2, ac+3, T+2, T+3, d0+1, T+10)
            off = (t % 4)*1024 + 256*b_
            e(f"buffer_store_dwordx2 v[{d0}:{d0+1}], v9, s[28:31], s6 offen offset:{off}")
        if t == 3: e("s_add_u32 s6, s6, 4096")
    lab("g1_end")
    tl(5)
    if TL: e("s_waitcnt vmcnt(0)")
    tl_end(1)
    e("s_endpgm")
    lab("mid_conv")
    if CONV2:
        gen_conv2()
    else:
        if "cv" in SKIP: e("s_endpgm")
        if PRIO & 8: e("s_setprio 3")
        srd(8, 60, D*2)
        e("s_sub_u32 s4, s2, %d" % G1_WGS)
        e("s_and_b32 s5, s4, 7")
        e("s_lshl_b32 s5, s5, 2")
        e("s_bfe_u32 s6, s4, 0x20003")
        e("s_or_b32 s5, s5, s6")
        e("s_andn2_b32 s4, s4, 31")
        e("s_or_b32 s4, s4, s5")
        e("s_lshl_b32 s5, s4, 1")
        e("v_mov_b32 v3, s5")
        if DLYC: e(f"s_sleep {DLYC}")
        e("buffer_load_ushort v1, v3, s[8:11], 0 offen")
        e("s_lshl_b32 s5, s4, 5")
        e("s_add_u32 s5, s5, %d" % WS_XNT)
        e("v_lshrrev_b32 v4, 1, v0")
        e("v_mul_u32_u24 v4, 20480, v4")
        e("v_and_b32 v5, 1, v0")
        e("v_lshl_add_u32 v4, v5, 4, v4")
        e("buffer_load_dwordx4 v[8:11], v4, s[28:31], s5 offen")
        e("v_lshlrev_b32 v4, 4, v0")
        e("s_mul_i32 s6, s4, %d" % KR_STRIDE)
        e("s_add_u32 s6, s6, %d" % WS_KR)
        e("buffer_load_dwordx4 v[12:15], v4, s[28:31], s6 offen")
        e("buffer_load_dwordx4 v[16:19], v4, s[28:31], s6 offen offset:16")
        e("v_min_u32 v5, 3, v0")
        e("v_lshlrev_b32 v5, 4, v5")
        e("v_add_u32 v5, 4096, v5")
        e("buffer_load_dwordx4 v[20:23], v5, s[28:31], s6 offen")
        e("buffer_load_dwordx4 v[24:27], v5, s[28:31], s6 offen offset:16")
        for k in range(4):
            e(f"v_mov_b32 v{28+k}, 0")
        e("v_min_u32 v6, 154, v0")
        e("v_lshlrev_b32 v6, 4, v6")
        e(f"ds_write_b128 v6, v[28:31] offset:{UB + 80}")
        e("v_lshrrev_b32 v6, 2, v0")
        e("v_mul_u32_u24 v6, 80, v6")
        e("v_and_b32 v7, 3, v0")
        e("v_lshl_add_u32 v6, v7, 4, v6")
        e("s_waitcnt vmcnt(4)")
        e(f"ds_write_b128 v6, v[8:11] offset:{UB + 32*80}")
        def copies(w, vaddr):
            for c in range(8):
                if c % 2 == 0:
                    e(f"ds_write_b128 v{vaddr}, v[{w+c//2}:{w+c//2+3}] offset:{CB(c)}") if (w + c//2) % 2 == 0 else None
                    if (w + c//2) % 2:
                        for j in range(4):
                            e(f"v_mov_b32 v{32+j}, v{w+c//2+j}")
                        e(f"ds_write_b128 v{vaddr}, v[32:35] offset:{CB(c)}")
                else:
                    for j in range(4):
                        e(f"v_alignbit_b32 v{36+j}, v{w+(c+1)//2+j}, v{w+(c-1)//2+j}, 16")
                    e(f"ds_write_b128 v{vaddr}, v[36:39] offset:{CB(c)}")
        e("s_waitcnt vmcnt(2)")
        tl(1)
        copies(12, 4)
        e("s_waitcnt vmcnt(0)")
        copies(20, 5)
        e("s_waitcnt lgkmcnt(0)")
        tl(2)
        e("s_barrier")
        tl(3)
        e("v_and_b32 v3, 31, v2")
        e("v_lshrrev_b32 v4, 5, v2")
        e("v_sub_u32 v5, 7, v3")
        e("v_and_b32 v5, 7, v5")
        e("v_sub_u32 v6, 2047, v3")
        e("v_lshl_add_u32 v6, v4, 3, v6")
        e("v_sub_u32 v6, v6, v5")
        e("v_mul_u32_u24 v7, %d, v5" % CS)
        e("v_lshrrev_b32 v8, 2, v5")
        e("v_lshl_add_u32 v7, v8, 5, v7")
        e("v_lshl_add_u32 v6, v6, 1, v7")
        e("v_mul_u32_u24 v7, 80, v3")
        e("v_lshl_add_u32 v7, v4, 4, v7")
        e(f"v_add_u32 v7, {UB + 32*80}, v7")
        for r in range(16, 48):
            e(f"v_mov_b32 v{r}, 0")
        e("s_lshl_b32 s5, s3, 9")
        e(f"s_add_u32 s5, s5, {64*7 + 64*32}")
        e("v_subrev_u32 v8, s5, v6")
        e("s_mul_i32 s5, s3, 640")
        e(f"s_add_u32 s5, s5, {80*7}")
        e("v_subrev_u32 v9, s5, v7")
        def rd(q):
            base = 48 + (q & 1)*32
            for t in range(2):
                fa = base + 16*t
                e(f"ds_read_b128 v[{fa}:{fa+3}], v8 offset:{64*(7-q) + 2048 + 32*t}")
                e(f"ds_read_b128 v[{fa+4}:{fa+7}], v9 offset:{80*(7-q) + 32*t}")
                e(f"ds_read_b128 v[{fa+8}:{fa+11}], v9 offset:{80*(7-q) + 2560 + 32*t}")
                e(f"ds_read_b128 v[{fa+12}:{fa+15}], v8 offset:{64*(7-q) + 32*t}")
        def mm(q):
            base = 48 + (q & 1)*32
            for t in range(2):
                fa = base + 16*t
                e(f"v_mfma_f32_32x32x16_bf16 v[16:31], v[{fa}:{fa+3}], v[{fa+4}:{fa+7}], v[16:31]")
                e(f"v_mfma_f32_32x32x16_bf16 v[32:47], v[{fa}:{fa+3}], v[{fa+8}:{fa+11}], v[32:47]")
                e(f"v_mfma_f32_32x32x16_bf16 v[32:47], v[{fa+12}:{fa+15}], v[{fa+4}:{fa+7}], v[32:47]")
        rd(0)
        for q in range(8):
            if q < 7:
                rd(q + 1)
                e("s_waitcnt lgkmcnt(8)")
            else:
                e("s_waitcnt lgkmcnt(0)")
            mm(q)
        tl(4)
        e("s_nop 15")
        e("s_barrier")
        e("v_lshlrev_b32 v10, 4, v2")
        e("s_cmp_eq_u32 s3, 0")
        e("s_cbranch_scc1 cv_w0")
        e("s_sub_u32 s5, s3, 1")
        e("s_lshl_b32 s5, s5, 12")
        e("v_add_u32 v11, s5, v10")
        for r in range(4):
            e(f"ds_write_b128 v11, v[{16+4*r}:{19+4*r}] offset:{1024*r}")
        lab("cv_w0")
        e("s_cmp_eq_u32 s3, 1")
        e("s_cbranch_scc1 cv_w1")
        e("s_sub_u32 s5, s3, 1")
        e("s_max_i32 s5, s5, 0")
        e("s_lshl_b32 s5, s5, 12")
        e("v_add_u32 v11, s5, v10")
        for r in range(4):
            e(f"ds_write_b128 v11, v[{32+4*r}:{35+4*r}] offset:{12288 + 1024*r}")
        e("s_branch cv_w2")
        lab("cv_w1")
        for r in range(16):
            e(f"v_mov_b32 v{16+r}, v{32+r}")
        e("v_add_u32 v10, 12288, v10")
        lab("cv_w2")
        e("s_waitcnt lgkmcnt(0)")
        e("s_barrier")
        e("s_cmp_ge_u32 s3, 2")
        e("s_cbranch_scc1 mid_end")
        for sl in range(3):
            for r in range(4):
                e(f"ds_read_b128 v[{48+16*sl+4*r}:{51+16*sl+4*r}], v10 offset:{4096*sl + 1024*r}")
        for sl in range(3):
            e(f"s_waitcnt lgkmcnt({8-4*sl})")
            for r in range(16):
                e(f"v_add_f32 v{16+r}, v{16+r}, v{48+16*sl+r}")
        lab("cv_epi")
        e("s_mul_i32 s5, s3, %d" % (32*80))
        e("v_mul_u32_u24 v11, 80, v3")
        e("v_lshl_add_u32 v11, v4, 3, v11")
        e("v_add_u32 v11, s5, v11")
        for g in range(4):
            e(f"ds_read_b64 v[{32+2*g}:{33+2*g}], v11 offset:{UB + 32*80 + 16*g}")
        e("s_lshl_b32 s5, s4, 12")
        e("s_lshl_b32 s6, s3, 11")
        e("s_add_u32 s5, s5, s6")
        e("s_add_u32 s5, s5, %d" % WS_AT)
        e("v_lshlrev_b32 v12, 6, v3")
        e("v_lshl_add_u32 v12, v4, 3, v12")
        e("s_waitcnt vmcnt(0) lgkmcnt(0)")
        e("v_lshlrev_b32 v1, 16, v1")
        for g in range(4):
            for p in range(2):
                u = 32 + 2*g + p
                y0 = 16 + 4*g + 2*p
                e(f"v_lshlrev_b32 v44, 16, v{u}")
                e(f"v_and_b32 v45, 0xffff0000, v{u}")
                e(f"v_mul_f32 v44, v44, v1")
                e(f"v_mul_f32 v45, v45, v1")
                e(f"v_cvt_pk_bf16_f32 v44, v44, v45")
                e(f"v_cvt_pk_bf16_f32 v46, v{y0}, v{y0+1}")
                e(f"v_lshlrev_b32 v47, 16, v44")
                e(f"v_and_b32 v48, 0xffff0000, v44")
                e(f"v_lshlrev_b32 v49, 16, v46")
                e(f"v_and_b32 v50, 0xffff0000, v46")
                e(f"v_add_f32 v47, v47, v49")
                e(f"v_add_f32 v48, v48, v50")
                e(f"v_cvt_pk_bf16_f32 v{52+2*g+p}, v47, v48")
            e(f"buffer_store_dwordx2 v[{52+2*g}:{53+2*g}], v12, s[28:31], s5 offen offset:{16*g}")
        tl(5)
        if TL: e("s_waitcnt vmcnt(0)")
        tl_end(1)
    if W2MID:
        e("s_endpgm")
        lab("mid_wt")
        gen_wt(G1_WGS + CV_WGS, 270, 540, "mid_end", 1, int(os.environ.get("DLYW2", 0)))
    lab("mid_end")
    e("s_endpgm")
    kernel_desc("mid_kernel", 128)

G2_WGS = 256
FIN_LDS = 61440 + 64
FDEPTH = int(os.environ.get('FDEPTH', 4))
def gen_fin():
    kernel_begin("fin_kernel")
    e("s_cmp_ge_u32 s2, %d" % G2_WGS)
    e("s_cbranch_scc1 fin_end")
    e("s_load_dwordx2 s[56:57], s[0:1], 104")
    e("s_load_dwordx2 s[58:59], s[0:1], 0")
    e("s_load_dwordx2 s[60:61], s[0:1], 88")
    e("v_lshrrev_b32 v1, 6, v0")
    e("v_and_b32 v2, 63, v0")
    e("s_nop 0")
    e("v_readfirstlane_b32 s3, v1")
    if FMAP == 2:
        e("s_and_b32 s5, s2, 31")
        e("s_lshr_b32 s4, s2, 5")
    elif FMAP == 3:
        e("s_lshr_b32 s5, s2, 3")
        e("s_and_b32 s4, s2, 7")
    else:
        if SCL & 2: static_claim()
        else:
            e("s_waitcnt lgkmcnt(0)")
            srd(28, 56, WS_SIZE)
            claim_tile(512, 32, 61440, "fcl")
        if FMAP == 0:
            e("s_lshr_b32 s5, s2, 5")
            e("s_lshl_b32 s5, s5, 2")
            e("s_and_b32 s6, s2, 3")
            e("s_add_u32 s5, s5, s6")
            e("s_bfe_u32 s4, s2, 0x30002")
        else:
            e("s_lshr_b32 s5, s2, 6")
            e("s_lshl_b32 s5, s5, 3")
            e("s_and_b32 s6, s2, 7")
            e("s_add_u32 s5, s5, s6")
            e("s_bfe_u32 s4, s2, 0x10005")
            e("s_lshl_b32 s4, s4, 2")
            e("s_bfe_u32 s6, s2, 0x20003")
            e("s_add_u32 s4, s4, s6")
    e("v_and_b32 v3, 15, v2")
    e("v_lshrrev_b32 v4, 4, v2")
    e("v_lshrrev_b32 v5, 1, v4")
    e("v_and_b32 v6, 1, v4")
    e("v_lshlrev_b32 v7, 4, v3")
    e("v_lshl_add_u32 v7, v5, 10, v7")
    e("v_lshl_add_u32 v7, v6, 9, v7")
    e("s_lshl_b32 s6, s3, 11")
    e("v_add_u32 v7, s6, v7")
    e("s_mul_i32 s6, s4, 5")
    for a_ in range(5):
        e(f"s_add_u32 s7, s6, {a_}")
        e(f"s_lshr_b32 s{40+a_}, s7, 1")
        e(f"s_mul_i32 s{40+a_}, s{40+a_}, {108*1024}")
        e(f"s_and_b32 s7, s7, 1")
        e(f"s_lshl_b32 s7, s7, 8")
        e(f"s_add_u32 s{40+a_}, s{40+a_}, s7")
        e(f"s_add_u32 s{40+a_}, s{40+a_}, {WS_W2F}")
    e("s_mul_i32 s6, s5, %d" % (2*108*1024))
    e("s_add_u32 s45, s6, %d" % WS_ACT)
    e("s_add_u32 s46, s45, 256")
    e("s_add_u32 s47, s45, %d" % (108*1024))
    e("s_add_u32 s48, s47, 256")
    e("s_waitcnt lgkmcnt(0)")
    srd(28, 56, WS_SIZE); srd(8, 58, L*D*2); srd(12, 60, L*D*2)
    FR = 16
    ACC = 0
    EP = FR + 36*FDEPTH
    pend = []
    def issue(m):
        base = FR + 36*(m % FDEPTH)
        for t in range(9):
            e(f"buffer_load_dwordx4 v[{base+4*t}:{base+4*t+3}], v7, s[28:31], s{40+t} offen")
            pend.append(("f", m))
        e("v_add_u32 v7, 8192, v7")
    def wait_for(tag):
        last = max(i for i, p in enumerate(pend) if p == tag)
        n = len(pend) - 1 - last
        e(f"s_waitcnt vmcnt({n})")
        del pend[:last+1]
    NST = 14
    for m in range(FDEPTH):
        issue(m)
    e("s_lshl_b32 s6, s5, 6")
    e("s_lshl_b32 s7, s3, 4")
    e("s_add_u32 s6, s6, s7")
    e("v_add_u32 v8, s6, v3")
    e("v_mul_u32_u24 v9, 1280, v8")
    e("v_lshl_add_u32 v9, v4, 3, v9")
    e("s_mul_i32 s6, s4, 160")
    e("v_add_u32 v9, s6, v9")
    for a_ in range(5):
        e(f"buffer_load_dwordx2 v[{EP+2*a_}:{EP+2*a_+1}], v9, s[8:11], 0 offen offset:{32*a_}")
        pend.append(("e", 0))
    e("v_lshlrev_b32 v10, 14, v4")
    e("v_lshl_add_u32 v10, v8, 1, v10")
    e("s_mul_i32 s6, s4, %d" % (80*4096))
    e("s_add_u32 s6, s6, %d" % WS_AT)
    for a_ in range(5):
        for j in range(4):
            e(f"buffer_load_ushort v{EP+10+4*a_+j}, v10, s[28:31], s6 offen")
            pend.append(("e", 0))
            e("s_add_u32 s6, s6, %d" % (4096 if j < 3 else 4096*13))
    for r in range(ACC, ACC+80):
        e(f"v_accvgpr_write_b32 a{r}, 0")
    for m in range(NST):
        if m == NST - 1:
            e("s_cmp_ge_u32 s3, 2")
            e("s_cbranch_scc1 fin_red")
        wait_for(("f", m))
        base = FR + 36*(m % FDEPTH)
        fill = []
        if FEP and FDEPTH + 1 <= m < FDEPTH + 4:
            for a_ in [(0, 1), (2, 3), (4,)][m - FDEPTH - 1]:
                rx = EP + 2*a_; ra = EP + 10 + 4*a_
                for k_ in range(9):
                    for p_ in range(2):
                        t0, t1 = 12 + 2*p_, 13 + 2*p_
                        r0, r1 = ra + 2*p_, ra + 2*p_ + 1
                        fill.append([f"v_lshlrev_b32 v{t0}, 16, v{rx+p_}", f"v_and_b32 v{t1}, 0xffff0000, v{rx+p_}",
                                     f"v_lshlrev_b32 v{r0}, 16, v{r0}", f"v_lshlrev_b32 v{r1}, 16, v{r1}",
                                     f"v_add_f32 v{t0}, v{t0}, v{r0}", f"v_add_f32 v{t1}, v{t1}, v{r1}",
                                     f"v_cvt_pk_bf16_f32 v{t0}, v{t0}, v{t1}",
                                     f"v_lshlrev_b32 v{r0}, 16, v{t0}", f"v_and_b32 v{r1}, 0xffff0000, v{t0}"][k_])
        for b_ in range(4):
            for a_ in range(5):
                ac = ACC + 4*(5*b_ + a_)
                e(f"v_mfma_f32_16x16x32_bf16 a[{ac}:{ac+3}], v[{base+4*a_}:{base+4*a_+3}], v[{base+20+4*b_}:{base+23+4*b_}], a[{ac}:{ac+3}]")
                for _ in range(2):
                    if fill: e(fill.pop(0))
        assert not fill
        if m + FDEPTH < NST:
            if m + FDEPTH == NST - 1:
                e("s_cmp_ge_u32 s3, 2")
                e("s_cselect_b32 s6, 8192, 0")
                e("v_subrev_u32 v7, s6, v7")
            issue(m + FDEPTH)
    lab("fin_red")
    e("s_nop 15")
    e("s_waitcnt vmcnt(0)")
    e("v_lshlrev_b32 v11, 4, v2")
    for w in range(4):
        if w < 3:
            e(f"s_cmp_lg_u32 s3, {w}")
            e(f"s_cbranch_scc1 fin_w{w+1}")
        for b_ in range(4):
            if b_ == w: continue
            slot = w if w < b_ else w - 1
            for a_ in range(5):
                ac = ACC + 4*(5*b_ + a_)
                e(f"ds_write_b128 v11, a[{ac}:{ac+3}] offset:{(b_*3 + slot)*5120 + a_*1024}")
        for r in range(20):
            e(f"v_accvgpr_read_b32 v{16+r}, a{ACC+20*w+r}")
        if w < 3:
            e("s_branch fin_rd")
            lab(f"fin_w{w+1}")
    lab("fin_rd")
    e("s_mul_i32 s6, s3, %d" % (3*5120))
    e("v_add_u32 v11, s6, v11")
    e("s_waitcnt lgkmcnt(0)")
    e("s_barrier")
    for sl in range(3):
        for a_ in range(5):
            r = 36 + 20*sl + 4*a_
            e(f"ds_read_b128 v[{r}:{r+3}], v11 offset:{sl*5120 + a_*1024}")
    for sl in range(3):
        e(f"s_waitcnt lgkmcnt({10-5*sl})")
        if FEP:
            for r in range(0, 20, 2):
                e(f"v_pk_add_f32 v[{16+r}:{17+r}], v[{16+r}:{17+r}], v[{36+20*sl+r}:{37+20*sl+r}]")
            continue
        for r in range(20):
            e(f"v_add_f32 v{16+r}, v{16+r}, v{36+20*sl+r}")
    e("s_waitcnt vmcnt(0)")
    for a_ in range(5):
        rx = EP + 2*a_
        ra = EP + 10 + 4*a_
        if FEP:
            ac = 16 + 4*a_
            for p in range(2): e(f"v_cvt_pk_bf16_f32 v{96+p}, v{ac+2*p}, v{ac+2*p+1}")
            for p in range(2):
                e(f"v_lshlrev_b32 v{98+2*p}, 16, v{96+p}")
                e(f"v_and_b32 v{99+2*p}, 0xffff0000, v{96+p}")
            for p in range(2): e(f"v_pk_add_f32 v[{98+2*p}:{99+2*p}], v[{98+2*p}:{99+2*p}], v[{ra+2*p}:{ra+2*p+1}]")
            for p in range(2): e(f"v_cvt_pk_bf16_f32 v{rx+p}, v{98+2*p}, v{99+2*p}")
        for p in range(2 if not FEP else 0):
            ac = 16 + 4*a_ + 2*p
            e(f"v_lshlrev_b32 v96, 16, v{rx+p}")
            e(f"v_and_b32 v97, 0xffff0000, v{rx+p}")
            e(f"v_lshlrev_b32 v98, 16, v{ra+2*p}")
            e(f"v_lshlrev_b32 v99, 16, v{ra+2*p+1}")
            e(f"v_add_f32 v96, v96, v98")
            e(f"v_add_f32 v97, v97, v99")
            e(f"v_cvt_pk_bf16_f32 v96, v96, v97")
            e(f"v_cvt_pk_bf16_f32 v98, v{ac}, v{ac+1}")
            e(f"v_lshlrev_b32 v100, 16, v96")
            e(f"v_and_b32 v101, 0xffff0000, v96")
            e(f"v_lshlrev_b32 v102, 16, v98")
            e(f"v_and_b32 v103, 0xffff0000, v98")
            e(f"v_add_f32 v100, v100, v102")
            e(f"v_add_f32 v101, v101, v103")
            e(f"v_cvt_pk_bf16_f32 v{rx+p}, v100, v101")
        e(f"buffer_store_dwordx2 v[{rx}:{rx+1}], v9, s[12:15], 0 offen offset:{32*a_}")
    lab("fin_end")
    e("s_endpgm")
    kernel_desc("fin_kernel", ((EP + 30) + 7)//8*8, agpr=80)

hdr = open("cdna_kernels/%s.s.ref" % NAME).read().split("; Override launch")[0]
text = hdr
text += f"; @launch kernel=prep_kernel grid=({PREP_WGS + (128 if PORD else 0) + (256 if EMU & 2 else 0)},1,1) block=(256,1,1) lds={MID_LDS if EMU & 2 else PREP_LDS}\n"
text += f"; @launch kernel=mid_kernel grid=({MID_WGS},1,1) block=(256,1,1) lds={MID_LDS}\n"
text += f"; @launch kernel=fin_kernel grid=({G2_WGS},1,1) block=(256,1,1) lds={FIN_LDS}\n"
text += '.amdgcn_target "amdgcn-amd-amdhsa--gfx950"\n'
gen_prep(); gen_mid(); gen_fin()
_o = []; _in = False
for _l in out:
    if _l.startswith("fin_kernel:"): _in = True
    if _l.strip().startswith("buffer_store") and not _in and "nosc" not in SKIP: _l += " sc1"
    _o.append(_l)
out = _o
text += "\n".join(out) + "\n"
dst = sys.argv[1] if len(sys.argv) > 1 else "cdna_kernels/%s.s" % NAME
open(dst, "w").write(text)
print("wrote", dst, len(text))
```

```python
import sys, os
SKIP = os.environ.get("SKIP", "").split(",")
ORDER = int(os.environ.get("ORDER", 0))
PRIO = int(os.environ.get("PRIO", 3))
W2MID = int(os.environ.get("W2MID", 0))
CONV2 = int(os.environ.get("CONV2", 1))
CV3 = int(os.environ.get("CV3", 1))
FEP = int(os.environ.get("FEP", 1))
PORD = int(os.environ.get("PORD", 0))
MISH2 = int(os.environ.get("MISH2", 2))
DLYC = int(os.environ.get("DLYC", 24))
G1MAP = int(os.environ.get("G1MAP", 1))
FMAP = int(os.environ.get("FMAP", 1))
DLYL = int(os.environ.get("DLYL", 16))
DLYW = int(os.environ.get("DLYW", 24))
EMU = int(os.environ.get("EMU", 1))
KGR = int(os.environ.get("KGR", 0))
W1D = int(os.environ.get("W1D", 0))
FUSE = int(os.environ.get("FUSE", 0))
if FUSE: FEP = 0
NAME = "parallel_sum__ssm_conv_s4d__dense_activation_mish__prompt"
L, D, N, F = 2048, 640, 128, 1728
WS_XNF = 0x0000000
WS_XNT = 0x0280000
WS_W1F = 0x0500000
WS_W2F = WS_W1F + 2160 * 1024
WS_KR = 0x0A00000
KR_STRIDE = 4224
WS_ACT = 0x0D00000
WS_AT = 0x1400000
WS_CNT = 0x1700000
WS_SIZE = 268435456
LOG2E = 0x3fb8aa3b
INV2PI = 0x3e22f983

out = []
def e(s):
    out.append("    " + s)
def lab(s):
    out.append(s + ":")
def cm(s):
    out.append("    ; " + s)

STAMP = os.environ.get("STAMP")
def stamp_init():
    if not STAMP: return
    e("s_load_dwordx2 s[84:85], s[0:1], 96")
    e("s_waitcnt lgkmcnt(0)")
    e("s_mov_b32 s80, s84"); e("s_and_b32 s81, s85, 0xffff"); e("s_mov_b32 s82, 256"); e("s_mov_b32 s83, 0x00020000")
def stamp(i):
    if not STAMP: return
    e("s_memtime s[86:87]")
    e("s_waitcnt lgkmcnt(0)")
    e(f"s_cmp_lg_u32 s2, {int(STAMP)}")
    e(f"s_cbranch_scc1 st_{stamp.n}")
    e(f"v_mov_b32 v255, s86")
    e(f"v_lshrrev_b32 v254, 6, v0")
    e(f"v_lshlrev_b32 v254, 6, v254")
    e(f"v_add_u32 v254, {4*i}, v254")
    e(f"buffer_store_dword v255, v254, s[80:83], 0 offen")
    lab(f"st_{stamp.n}")
    stamp.n += 1
stamp.n = 0


TL = os.environ.get("TL")
WS_TL = 0x1800000
def tl(i):
    if not TL: return
    e("s_memrealtime s[80:81]")
    e("s_waitcnt lgkmcnt(0)")
    e(f"s_mov_b32 s{84+i}, s80")
def tl_begin():
    if not TL: return
    e("s_mov_b32 s83, s2")
    for i in range(8): e(f"s_mov_b32 s{84+i}, 0")
    tl(0)
def tl_end(kern):
    if not TL: return
    tl(7)
    e("s_getreg_b32 s90, hwreg(HW_REG_HW_ID)")
    e("s_getreg_b32 s80, hwreg(HW_REG_XCC_ID)")
    e("s_and_b32 s90, s90, 0xffff")
    e("s_lshl_b32 s80, s80, 16")
    e("s_or_b32 s90, s90, s80")
    e("s_or_b32 s90, s90, 0x40000000")
    e("s_cmp_lg_u32 s3, 0")
    e(f"s_cbranch_scc1 tle_{tl_end.n}")
    e("s_lshl_b32 s83, s83, 5")
    e(f"s_add_u32 s83, s83, {WS_TL + kern*65536}")
    e("v_mov_b32 v1, 0")
    for i in range(8):
        e(f"v_mov_b32 v0, s{84+i}")
        e(f"buffer_store_dword v0, v1, s[28:31], s83 offen offset:{4*i}")
    lab(f"tle_{tl_end.n}")
    tl_end.n += 1
tl_end.n = 0

def srd(dst, ptr, size):
    e(f"s_mov_b32 s{dst}, s{ptr}")
    e(f"s_and_b32 s{dst+1}, s{ptr+1}, 0xffff")
    e(f"s_mov_b32 s{dst+2}, {size}")
    e(f"s_mov_b32 s{dst+3}, 0x00020000")

def kernel_begin(name):
    out.append(".text")
    out.append(f".globl {name}")
    out.append(".p2align 8")
    out.append(f".type {name},@function")
    lab(name)

def kernel_desc(name, vgpr, sgpr=96, agpr=0):
    if STAMP: vgpr = 256
    out.append('.section .rodata,"a"')
    out.append(".p2align 6")
    out.append(f".amdhsa_kernel {name}")
    out.append(f"  .amdhsa_next_free_vgpr {vgpr + agpr}")
    out.append(f"  .amdhsa_next_free_sgpr {sgpr}")
    out.append(f"  .amdhsa_accum_offset {(vgpr+3)//4*4}")
    out.append("  .amdhsa_group_segment_fixed_size 0")
    out.append("  .amdhsa_kernarg_size 112")
    out.append("  .amdhsa_user_sgpr_count 2")
    out.append("  .amdhsa_user_sgpr_kernarg_segment_ptr 1")
    out.append("  .amdhsa_system_sgpr_workgroup_id_x 1")
    out.append(".end_amdhsa_kernel")


SCL = int(os.environ.get("SCL", 3))
def static_claim():
    e("s_and_b32 s4, s2, 7")
    e("s_lshl_b32 s4, s4, 5")
    e("s_lshr_b32 s2, s2, 3")
    e("s_or_b32 s2, s2, s4")

def signal(sidx, lbl):
    e("s_waitcnt vmcnt(0)")
    e("s_barrier")
    e("s_cmp_lg_u32 s3, 0")
    e(f"s_cbranch_scc1 {lbl}")
    e(f"s_lshl_b32 s6, s{sidx}, 6")
    e("s_add_u32 s6, s6, %d" % WS_CNT)
    e("s_mov_b64 exec, 1")
    e("v_mov_b32 v12, 1")
    e("v_mov_b32 v13, 0")
    e("buffer_atomic_add v12, v13, s[28:31], s6 offen sc1")
    e("s_mov_b64 exec, -1")
    lab(lbl)
def poll(soff, target, lbl, first=True):
    e("s_mov_b32 s91, 0")
    if not first: e(f"s_branch {lbl}_c")
    lab(f"{lbl}_p")
    e(f"buffer_load_dword v13, v14, s[28:31], s{soff} offen sc0 sc1")
    e("s_waitcnt vmcnt(0)")
    lab(f"{lbl}_c")
    e("v_readfirstlane_b32 s92, v13")
    e(f"s_cmp_ge_u32 s92, {target}")
    e(f"s_cbranch_scc1 {lbl}_d")
    e("s_add_u32 s91, s91, 1")
    e("s_cmp_ge_u32 s91, 0x20000")
    e(f"s_cbranch_scc1 {lbl}_d")
    e("s_sleep %d" % (int(os.environ.get("PSL", 2)) if first else int(os.environ.get("PSL2", 32))))
    e(f"s_branch {lbl}_p")
    lab(f"{lbl}_d")

def claim_tile(cnt_off, per, lds_off, lbl):
    e("s_cmp_lg_u32 s3, 0")
    e(f"s_cbranch_scc1 {lbl}_w")
    e("s_getreg_b32 s20, hwreg(HW_REG_XCC_ID)")
    e("s_and_b32 s20, s20, 7")
    e("s_mov_b32 s21, 0")
    e("s_mov_b64 s[22:23], exec")
    e("s_mov_b64 exec, 1")
    e("v_mov_b32 v12, 1")
    lab(f"{lbl}_l")
    e("s_lshl_b32 s24, s20, 6")
    e(f"s_add_u32 s24, s24, {WS_CNT + cnt_off}")
    e("v_mov_b32 v13, 0")
    e("v_mov_b32 v14, v12")
    e("buffer_atomic_add v14, v13, s[28:31], s24 offen sc0" + ("" if "asc" in SKIP else " sc1"))
    e("s_waitcnt vmcnt(0)")
    e("v_readfirstlane_b32 s25, v14")
    e(f"s_cmp_lt_u32 s25, {per}")
    e(f"s_cbranch_scc1 {lbl}_f")
    e("s_add_u32 s20, s20, 1")
    e("s_and_b32 s20, s20, 7")
    e("s_add_u32 s21, s21, 1")
    e("s_cmp_lt_u32 s21, 8")
    e(f"s_cbranch_scc1 {lbl}_l")
    e("s_mov_b32 s25, 0")
    lab(f"{lbl}_f")
    e(f"s_mul_i32 s20, s20, {per}")
    e("s_add_u32 s20, s20, s25")
    e("v_mov_b32 v14, s20")
    e(f"v_mov_b32 v13, {lds_off}")
    e("ds_write_b32 v13, v14")
    e("s_mov_b64 exec, s[22:23]")
    e("s_waitcnt lgkmcnt(0)")
    lab(f"{lbl}_w")
    e("s_barrier")
    e(f"v_mov_b32 v13, {lds_off}")
    e("ds_read_b32 v14, v13")
    e("s_waitcnt lgkmcnt(0)")
    e("v_readfirstlane_b32 s2, v14")

LN_WGS, WT_WGS, KG_WGS = 128, (68 if (W2MID or W1D) else 135), 640
PREP_WGS = KG_WGS + LN_WGS + WT_WGS
KG_LDS_WAVE = 512
KG_TAB0 = 2048
KG_TAB = 2688
KG_FIN = KG_TAB0 + 4*KG_TAB
PREP_LDS = 36864
LNS = 36

def gen_wt(wg0, wv0, wvend, endlab, kern, dly):
    if "wt" in SKIP: e("s_endpgm")
    if PRIO & 2: e("s_setprio 3")
    e("s_load_dwordx2 s[40:41], s[0:1], 64")
    e("s_load_dwordx2 s[42:43], s[0:1], 80")
    e("s_sub_u32 s4, s2, %d" % wg0)
    e("s_lshl_b32 s4, s4, 2")
    e("s_add_u32 s4, s4, s3")
    if wv0: e("s_add_u32 s4, s4, %d" % wv0)
    if wvend:
        e("s_cmp_ge_u32 s4, %d" % wvend)
        e("s_cbranch_scc1 %s" % endlab)
    e("s_waitcnt lgkmcnt(0)")
    e("s_cmp_ge_u32 s4, 270")
    e("s_cselect_b32 s40, s42, s40")
    e("s_cselect_b32 s41, s43, s41")
    e("s_mov_b32 s5, 3456")
    e("s_mov_b32 s7, 159072863")
    e("s_mov_b32 s34, %d" % WS_W1F)
    e("s_cselect_b32 s5, 1280, s5")
    e("s_cselect_b32 s6, 10, 27")
    e("s_cselect_b32 s7, 429496730, s7")
    e("s_cselect_b32 s32, 270, 0")
    e("s_cselect_b32 s33, 108, 40")
    e("s_cselect_b32 s34, %d, s34" % WS_W2F)
    srd(8, 40, D*F*2); srd(28, 56, WS_SIZE)
    e("s_sub_u32 s32, s4, s32")
    e("s_lshl_b32 s32, s32, 2")
    e("v_lshrrev_b32 v3, 3, v2")
    e("v_and_b32 v4, 7, v2")
    e("v_mul_lo_u32 v5, v3, s5")
    e("v_lshl_add_u32 v5, v4, 4, v5")
    e("s_lshl_b32 s35, s5, 3")
    e("s_mul_i32 s36, s3, %d" % (4*16*144))
    e("v_mul_u32_u24 v6, 144, v3")
    e("v_lshl_add_u32 v6, v4, 4, v6")
    e("v_add_u32 v6, s36, v6")
    e("v_and_b32 v7, 31, v2")
    e("v_lshrrev_b32 v8, 5, v2")
    e("v_mul_u32_u24 v8, %d, v8" % (8*144))
    e("v_lshl_add_u32 v8, v7, 1, v8")
    e("v_add_u32 v8, s36, v8")
    e("v_lshlrev_b32 v9, 4, v2")
    if dly: e(f"s_sleep {dly}")
    for q in range(4):
        e(f"s_add_u32 s37, s32, {q}")
        e("s_mul_hi_u32 s38, s37, s7")
        e("s_mul_i32 s39, s38, s6")
        e("s_sub_u32 s39, s37, s39")
        e(f"s_lshl_b32 s44, s38, 4")
        e(f"s_mul_i32 s44, s44, s5")
        e(f"s_lshl_b32 s45, s39, 7")
        e(f"s_add_u32 s44, s44, s45")
        e(f"buffer_load_dwordx4 v[{16+8*q}:{19+8*q}], v5, s[8:11], s44 offen")
        e(f"s_add_u32 s44, s44, s35")
        e(f"buffer_load_dwordx4 v[{20+8*q}:{23+8*q}], v5, s[8:11], s44 offen")
        e(f"s_lshl_b32 s45, s39, 1")
        e(f"s_mul_i32 s45, s45, s33")
        e(f"s_add_u32 s45, s45, s38")
        e(f"s_lshl_b32 s45, s45, 10")
        e(f"s_add_u32 s{48+q}, s45, s34")
    e("s_lshl_b32 s33, s33, 10")
    for q in range(4):
        e(f"s_waitcnt vmcnt({6-2*q})")
        e(f"ds_write_b128 v6, v[{16+8*q}:{19+8*q}] offset:{q*16*144}")
        e(f"ds_write_b128 v6, v[{20+8*q}:{23+8*q}] offset:{q*16*144 + 8*144}")
    tl(1)
    for q in range(4):
        e("s_waitcnt lgkmcnt(0)") if q == 0 else None
        for f in range(2):
            for el in range(8):
                e(f"ds_read_u16 v{48+16*(q&1)*2+16*f+el}, v8 offset:{q*16*144 + el*144 + 64*f}")
        if q > 0:
            pass
        e("s_waitcnt lgkmcnt(0)")
        for f in range(2):
            for j in range(4):
                r = 48 + 16*(q&1)*2 + 16*f
                e(f"v_lshl_or_b32 v{112+4*f+j}, v{r+2*j+1}, 16, v{r+2*j}")
            if f == 0:
                e(f"buffer_store_dwordx4 v[112:115], v9, s[28:31], s{48+q} offen")
            else:
                e(f"s_add_u32 s{48+q}, s{48+q}, s33")
                e(f"buffer_store_dwordx4 v[116:119], v9, s[28:31], s{48+q} offen")
        if q < 3:
            e("s_nop 1")
    tl(5)
    if TL: e("s_waitcnt vmcnt(0)")
    tl_end(kern)

def gen_prep():
    kernel_begin("prep_kernel")
    if EMU & 2:
        e("s_cmp_lt_u32 s2, 256")
        e("s_cbranch_scc1 mid_body")
        e("s_sub_u32 s2, s2, 256")
    if PORD:
        e("s_lshr_b32 s4, s2, 7")
        e("s_cmp_eq_u32 s4, 6")
        e("s_cbranch_scc1 prep_end")
        e("s_cmp_gt_u32 s4, 6")
        e("s_cselect_b32 s4, 128, 0")
        e("s_sub_u32 s2, s2, s4")
    e("s_cmp_ge_u32 s2, %d" % PREP_WGS)
    e("s_cbranch_scc1 prep_end")
    e("s_load_dwordx2 s[56:57], s[0:1], 104")
    e("v_lshrrev_b32 v1, 6, v0")
    e("v_and_b32 v2, 63, v0")
    e("s_nop 0")
    e("v_readfirstlane_b32 s3, v1")
    if ORDER:
        e("s_add_u32 s2, s2, %d" % KG_WGS)
        e("s_cmp_ge_u32 s2, %d" % PREP_WGS)
        e("s_cselect_b32 s4, %d, 0" % PREP_WGS)
        e("s_sub_u32 s2, s2, s4")
    tl_begin()
    e("s_cmp_ge_u32 s2, %d" % (KG_WGS + LN_WGS))
    e("s_cbranch_scc1 prep_wt")
    e("s_cmp_ge_u32 s2, %d" % KG_WGS)
    e("s_cbranch_scc1 prep_ln")
    if "kg" in SKIP: e("s_endpgm")
    e("s_load_dwordx4 s[40:43], s[0:1], 8")
    e("s_load_dwordx4 s[44:47], s[0:1], 24")
    e("s_load_dwordx2 s[48:49], s[0:1], 40")
    e("s_mov_b32 s4, s2")
    e("s_mul_i32 s5, s3, %d" % KG_LDS_WAVE)
    e("s_lshl_b32 s6, s4, 8")
    e("s_lshl_b32 s7, s3, 6")
    e("s_add_u32 s6, s6, s7")
    e("v_and_b32 v3, 31, v2")
    e("v_lshl_add_u32 v3, v3, 1, s6")
    e("s_lshl_b32 s7, s4, 1")
    e("v_mov_b32 v4, s7")
    e("s_waitcnt lgkmcnt(0)")
    srd(8, 40, D*N*2); srd(12, 42, D*N*2); srd(16, 44, D*N*2); srd(20, 46, D*N*2)
    srd(24, 48, D*2); srd(28, 56, WS_SIZE)
    for k, sr in enumerate((8, 12, 16, 20)):
        e(f"buffer_load_ushort v{10+k}, v3, s[{sr}:{sr+3}], 0 offen")
    e("buffer_load_ushort v18, v4, s[24:27], 0 offen")
    e("v_and_b32 v8, 15, v2")
    e("v_lshrrev_b32 v9, 4, v2")
    e("v_and_b32 v24, 7, v8")
    e("v_lshrrev_b32 v25, 3, v8")
    e("v_lshl_add_u32 v28, v25, 7, v24")
    e("v_and_b32 v24, 3, v8")
    e("v_lshlrev_b32 v24, 1, v24")
    e("v_bfe_u32 v25, v8, 2, 1")
    e("v_lshl_add_u32 v24, v25, 7, v24")
    e("v_add_u32 v24, 256, v24")
    e("v_and_b32 v25, 1, v8")
    e("v_lshlrev_b32 v25, 2, v25")
    e("v_bfe_u32 v26, v8, 1, 2")
    e("v_lshl_add_u32 v25, v26, 7, v25")
    e("v_add_u32 v25, 512, v25")
    e("v_cmp_gt_u32 vcc, 8, v8")
    e("s_nop 1")
    e("v_cndmask_b32 v29, v25, v24, vcc")
    e("v_lshlrev_b32 v30, 7, v8")
    e("v_add_u32 v30, 0x400, v30")
    e("v_lshlrev_b32 v31, 3, v8")
    for t in range(4):
        e(f"v_cvt_f32_u32 v{28+t}, v{28+t}")
    e("s_mul_i32 s6, s3, %d" % KG_TAB)
    e("s_add_u32 s6, s6, %d" % KG_TAB0)
    e("v_and_b32 v24, 1, v9")
    e("v_lshrrev_b32 v25, 1, v9")
    e("v_lshl_add_u32 v33, v8, 5, s6")
    e("v_lshl_add_u32 v33, v24, 4, v33")
    e("v_lshl_add_u32 v33, v25, 9, v33")
    e("v_lshlrev_b32 v24, 4, v8")
    e("v_lshlrev_b32 v25, 3, v8")
    e("v_cmp_gt_u32 vcc, 2, v9")
    e("s_nop 1")
    e("v_cndmask_b32 v24, v25, v24, vcc")
    e("v_lshl_add_u32 v24, v9, 8, v24")
    e("v_add_u32 v24, s6, v24")
    e("v_add_u32 v34, 1024, v24")
    e("v_mov_b32 v25, 128")
    e("v_cndmask_b32_e64 v24, v25, 8, vcc")
    e("v_add_u32 v36, v34, v24")
    e("v_lshl_add_u32 v38, v8, 2, s6")
    e("v_lshl_add_u32 v38, v9, 8, v38")
    e("v_add_u32 v38, 2048, v38")
    e("v_lshl_add_u32 v39, v9, 4, s5")
    for r in range(40, 52):
        e(f"v_mov_b32 v{r}, 0")
    e("s_waitcnt vmcnt(0)")
    tl(1)
    for r in (10, 11, 12, 13, 18):
        e(f"v_lshlrev_b32 v{r}, 16, v{r}")
    e(f"v_mul_f32 v18, {LOG2E:#x}, v18")
    e(f"v_mul_f32 v10, {LOG2E:#x}, v10")
    e("v_exp_f32 v18, v18")
    e("v_exp_f32 v10, v10")
    e("s_nop 0")
    e("v_cvt_pk_bf16_f32 v18, v18, v18")
    e("v_cvt_pk_bf16_f32 v10, v10, v10")
    e("v_lshlrev_b32 v18, 16, v18")
    e("v_lshlrev_b32 v10, 16, v10")
    e("v_add_f32 v19, v18, v18")
    e("v_and_b32 v5, 31, v2")
    e("v_lshl_add_u32 v5, v5, 4, s5")
    e("v_mul_f32 v20, v10, v18")
    e(f"v_mul_f32 v20, {LOG2E|0x80000000:#x}, v20")
    e("v_mul_f32 v21, v11, v18")
    e(f"v_mul_f32 v21, {INV2PI:#x}, v21")
    e("v_mul_f32 v22, v12, v19")
    e("v_mul_f32 v23, v13, v19")
    e("ds_write_b128 v5, v[20:23]")
    e("s_waitcnt lgkmcnt(0)")
    for st in range(2 if KGR else 8):
        e(f"ds_read_b128 v[{96+4*st}:{99+4*st}], v39 offset:{64*st}")
    if not KGR: e("s_waitcnt lgkmcnt(0)")
    def kg_valu(st):
        P = 96 + 4*st
        O = 72 + 10*(st & 1)
        v = []
        for t in range(4):
            v.append(f"v_mul_f32 v{52+t}, v{P}, v{28+t}")
            v.append(f"v_mul_f32 v{56+t}, v{P+1}, v{28+t}")
        for t in range(4):
            v.append(f"v_exp_f32 v{52+t}, v{52+t}")
            v.append(f"v_fract_f32 v{56+t}, v{56+t}")
        for t in range(4):
            v.append(f"v_cos_f32 v{60+t}, v{56+t}")
            v.append(f"v_sin_f32 v{64+t}, v{56+t}")
        for t in range(4):
            v.append(f"v_mul_f32 v{60+t}, v{52+t}, v{60+t}")
            v.append(f"v_mul_f32 v{64+t}, v{52+t}, v{64+t}")
        v.append(f"v_mul_f32 v55, v63, v{P+2}")
        v.append(f"v_mul_f32_e64 v59, -v63, v{P+3}")
        v.append(f"v_fma_f32 v55, -v67, v{P+3}, v55")
        v.append(f"v_fma_f32 v59, -v67, v{P+2}, v59")
        if KGR: v.append(f"ds_read_b128 v[{P}:{P+3}], v39 offset:{128 + 64*st}")
        def split(xr, xi, H, Lo, t0, t1):
            v.append(f"v_cvt_pk_bf16_f32 v{H}, v{xr}, v{xi}")
            v.append(f"v_lshlrev_b32 v{t0}, 16, v{H}")
            v.append(f"v_and_b32 v{t1}, 0xffff0000, v{H}")
            v.append(f"v_sub_f32 v{t0}, v{xr}, v{t0}")
            v.append(f"v_sub_f32 v{t1}, v{xi}, v{t1}")
            v.append(f"v_cvt_pk_bf16_f32 v{Lo}, v{t0}, v{t1}")
        split(55, 59, O, O+2, 68, 69)
        v.append(f"v_mov_b32 v{O+1}, v{O}")
        v.append(f"v_mov_b32 v{O+3}, v{O+2}")
        for t in range(3):
            split(60+t, 64+t, O+4+2*t, O+5+2*t, 52+t, 56+t)
        return v
    def kg_mfma(st):
        O = 72 + 10*(st & 1)
        m = []
        for h in range(2):
            for t in range(3):
                a = 40 + 4*t
                m.append(f"v_mfma_f32_16x16x16_bf16 v[{a}:{a+3}], v[{O+4+2*t}:{O+5+2*t}], v[{O+2*h}:{O+2*h+1}], v[{a}:{a+3}]")
        return m
    if KGR:
        for r in range(82, 92): e(f"v_mov_b32 v{r}, 0")
        e("s_mov_b32 s7, 4")
        lab("kg_loop")
    for st in ((0, 1, 2) if KGR else range(9)):
        v = kg_valu(st) if st < (2 if KGR else 8) else []
        m = kg_mfma(st-1) if (st > 0 or KGR) else []
        if KGR and st < 2: e("s_waitcnt lgkmcnt(1)")
        if KGR and st == 2:
            e("v_add_u32 v39, 128, v39")
            e("s_sub_u32 s7, s7, 1")
            e("s_cmp_lg_u32 s7, 0")
            e("s_cbranch_scc1 kg_loop")
        if "kgm" in SKIP: m = []
        if "kgv" in SKIP: v = []
        if not v:
            e("s_nop 1")
        vi = 0
        for mi, mm_ in enumerate(m):
            tgt = 2 + 7*mi
            while vi < min(tgt, len(v)):
                e(v[vi]); vi += 1
            e(mm_)
        while vi < len(v):
            e(v[vi]); vi += 1
    e("s_nop 15")
    tl(2)
    for r in range(4):
        e(f"ds_write_b32 v33, v{40+r} offset:{4*r}")
    e("ds_write_b32 v34, v44")
    e("ds_write_b32 v34, v45 offset:4")
    e("ds_write_b32 v36, v46")
    e("ds_write_b32 v36, v47 offset:4")
    e("s_mov_b32 exec_hi, 0xffff")
    e("ds_write_b32 v38, v48")
    e("s_mov_b32 exec_hi, 0")
    for r in range(1, 4):
        e(f"ds_write_b32 v38, v{48+r} offset:{64*r}")
    e("s_mov_b32 exec_hi, -1")
    e("s_mul_i32 s4, s4, %d" % KR_STRIDE)
    e("s_add_u32 s4, s4, %d" % WS_KR)
    e("v_lshlrev_b32 v39, 4, v0")
    e("v_lshlrev_b32 v64, 3, v0")
    e("v_sub_u32 v64, 2047, v64")
    e("v_lshlrev_b32 v65, 2, v0")
    e("v_lshlrev_b32 v66, 1, v0")
    for k in range(8):
        e(f"v_subrev_u32 v{52+k}, {k}, v64")
        e(f"v_cvt_f32_u32 v{72+k}, v{52+k}")
    for k in range(4):
        e(f"v_cvt_pk_bf16_f32 v{80+k}, v{72+2*k}, v{73+2*k}")
        e(f"v_and_b32 v{72+2*k}, 0xffff, v{80+k}")
        e(f"v_lshrrev_b32 v{73+2*k}, 16, v{80+k}")
    for k in range(8):
        e(f"v_subrev_u32 v{72+k}, 17024, v{72+k}")
        e(f"v_cmp_gt_u32 vcc, 256, v{52+k}")
        e("s_nop 1")
        e(f"v_cndmask_b32 v{52+k}, v{72+k}, v{52+k}, vcc")
        e(f"v_lshlrev_b32 v{52+k}, 1, v{52+k}")
    e("s_waitcnt lgkmcnt(0)")
    e("s_barrier")
    tl(3)
    for m in range(3):
        for ww in range(4):
            e(f"ds_read_b32 v{72+4*m+ww}, v65 offset:{KG_TAB0 + ww*KG_TAB + 1024*m}")
    for m in range(3):
        e(f"s_waitcnt lgkmcnt({8-4*m})")
        e(f"v_add_f32 v{72+4*m}, v{72+4*m}, v{73+4*m}")
        e(f"v_add_f32 v{74+4*m}, v{74+4*m}, v{75+4*m}")
        e(f"v_add_f32 v{72+4*m}, v{72+4*m}, v{74+4*m}")
        e(f"v_cvt_pk_bf16_f32 v{72+4*m}, v{72+4*m}, v{72+4*m}")
        e(f"ds_write_b16 v66, v{72+4*m} offset:{KG_FIN + 512*m}")
    e("s_waitcnt lgkmcnt(0)")
    e("s_barrier")
    tl(4)
    for k in range(8):
        e(f"ds_read_u16 v{96+k}, v{52+k} offset:{KG_FIN}")
    e("s_waitcnt lgkmcnt(0)")
    for k in range(4):
        e(f"v_lshl_or_b32 v{112+k}, v{97+2*k}, 16, v{96+2*k}")
    e(f"buffer_store_dwordx4 v[112:115], v39, s[28:31], s4 offen")
    for k in range(4):
        e(f"v_mov_b32 v{116+k}, 0")
    e("v_cmp_gt_u32 vcc, 8, v0")
    e("s_and_saveexec_b64 s[32:33], vcc")
    e("s_cbranch_execz prep_end")
    e("s_add_u32 s4, s4, 4096")
    e("buffer_store_dwordx4 v[116:119], v39, s[28:31], s4 offen")
    e("v_lshlrev_b32 v39, 6, v0")
    tl(5)
    if TL: e("s_waitcnt vmcnt(0)")
    tl_end(0)
    if FUSE or not (EMU & 1 and (SCL & 2 or FMAP >= 2)):
        e("s_cmp_lg_u32 s2, 0")
        e("s_cbranch_scc1 prep_end")
        e("s_mov_b32 s4, %d" % WS_CNT)
        e("buffer_store_dword v116, v39, s[28:31], s4 offen")
        e("buffer_store_dword v116, v39, s[28:31], s4 offen offset:512")
        if FUSE: e("buffer_store_dword v116, v39, s[28:31], s4 offen offset:1024")
    e("s_endpgm")
    lab("prep_ln")
    if "ln" in SKIP: e("s_endpgm")
    if PRIO & 1: e("s_setprio 3")
    e("s_load_dwordx2 s[40:41], s[0:1], 0")
    e("s_sub_u32 s2, s2, %d" % KG_WGS)
    e("v_and_b32 v3, 15, v0")
    e("v_lshrrev_b32 v4, 4, v0")
    e("s_lshl_b32 s5, s2, 4")
    e("v_add_u32 v5, s5, v4")
    e("v_mul_u32_u24 v6, 1280, v5")
    e("v_lshl_add_u32 v6, v3, 4, v6")
    e("s_waitcnt lgkmcnt(0)")
    srd(8, 40, L*D*2); srd(28, 56, WS_SIZE)
    if DLYL: e(f"s_sleep {DLYL}")
    for j in range(5):
        e(f"buffer_load_dwordx4 v[{16+4*j}:{19+4*j}], v6, s[8:11], 0 offen offset:{256*j}")
    e("s_lshr_b32 s6, s2, 1")
    e("s_mul_i32 s6, s6, %d" % (40*1024))
    e("s_add_u32 s6, s6, %d" % WS_XNF)
    e("v_lshrrev_b32 v7, 1, v3")
    e("v_lshlrev_b32 v7, 10, v7")
    e("v_and_b32 v8, 1, v3")
    e("v_lshl_add_u32 v7, v8, 9, v7")
    e("v_and_b32 v8, 31, v5")
    e("v_lshl_add_u32 v7, v8, 4, v7")
    e(f"v_mul_u32_u24 v9, {8*LNS}, v3")
    e("v_lshl_add_u32 v9, v4, 1, v9")
    e("s_waitcnt vmcnt(0)")
    tl(1)
    for k in range(20):
        e(f"v_lshlrev_b32 v{40+2*k}, 16, v{16+k}")
        e(f"v_and_b32 v{41+2*k}, 0xffff0000, v{16+k}")
    def lane_sum(srcs, acc):
        for a in range(4):
            e(f"v_add_f32 v{acc+a}, v{srcs[a]}, v{srcs[a+4]}")
        for k in range(8, len(srcs)):
            e(f"v_add_f32 v{acc+(k%4)}, v{acc+(k%4)}, v{srcs[k]}")
        e(f"v_add_f32 v{acc}, v{acc}, v{acc+1}")
        e(f"v_add_f32 v{acc+2}, v{acc+2}, v{acc+3}")
        e(f"v_add_f32 v{acc}, v{acc}, v{acc+2}")
        for sh in (8, 4, 2, 1):
            e("s_nop 1")
            e(f"v_add_f32_dpp v{acc}, v{acc}, v{acc} row_ror:{sh} row_mask:0xf bank_mask:0xf")
    lane_sum(list(range(40, 80)), 10)
    e("v_mul_f32 v14, 0x3acccccd, v10")
    for k in range(40):
        e(f"v_sub_f32 v{80+k}, v{40+k}, v14")
        e(f"v_mul_f32 v{80+k}, v{80+k}, v{80+k}")
    lane_sum(list(range(80, 120)), 10)
    e("v_mul_f32 v10, 0x3acccccd, v10")
    e("v_cvt_pk_bf16_f32 v10, v10, v14")
    e("v_and_b32 v14, 0xffff0000, v10")
    e("v_lshlrev_b32 v10, 16, v10")
    e("v_add_f32 v10, 0x3727c5ac, v10")
    e("v_cvt_pk_bf16_f32 v10, v10, v10")
    e("v_lshlrev_b32 v10, 16, v10")
    e("v_sqrt_f32 v10, v10")
    e("s_nop 0")
    e("v_cvt_pk_bf16_f32 v10, v10, v10")
    e("v_lshlrev_b32 v10, 16, v10")
    e("v_rcp_f32 v11, v10")
    e("s_nop 0")
    e("v_fma_f32 v12, -v10, v11, 2.0")
    e("v_mul_f32 v11, v11, v12")
    for k in range(20):
        e(f"v_sub_f32 v{40+2*k}, v{40+2*k}, v14")
        e(f"v_sub_f32 v{41+2*k}, v{41+2*k}, v14")
        e(f"v_cvt_pk_bf16_f32 v{16+k}, v{40+2*k}, v{41+2*k}")
        e(f"v_lshlrev_b32 v{40+2*k}, 16, v{16+k}")
        e(f"v_and_b32 v{41+2*k}, 0xffff0000, v{16+k}")
        e(f"v_mul_f32 v{40+2*k}, v{40+2*k}, v11")
        e(f"v_mul_f32 v{41+2*k}, v{41+2*k}, v11")
        e(f"v_cvt_pk_bf16_f32 v{16+k}, v{40+2*k}, v{41+2*k}")
    tl(2)
    for j in range(5):
        if "xnf" not in SKIP: e(f"buffer_store_dwordx4 v[{16+4*j}:{19+4*j}], v7, s[28:31], s6 offen")
        if j < 4: e("s_add_u32 s6, s6, 8192")
    for j in range(5):
        for el in range(8):
            r = 16 + 4*j + el//2
            op = "ds_write_b16_d16_hi" if el & 1 else "ds_write_b16"
            e(f"{op} v9, v{r} offset:{(128*j + el)*LNS}")
    e("v_lshrrev_b32 v10, 1, v0")
    e("v_and_b32 v11, 1, v0")
    e(f"v_mul_u32_u24 v12, {LNS}, v10")
    e("v_lshl_add_u32 v12, v11, 4, v12")
    e("v_lshlrev_b32 v13, 4, v0")
    e("s_mul_i32 s6, s2, 20480")
    e("s_add_u32 s6, s6, %d" % WS_XNT)
    e("s_waitcnt lgkmcnt(0)")
    e("s_barrier")
    tl(3)
    for j in range(5):
        e(f"ds_read2_b32 v[{40+4*j}:{41+4*j}], v12 offset0:{(128*j*LNS)//4 % 256} offset1:{(128*j*LNS)//4 % 256 + 1}")
        e(f"ds_read2_b32 v[{42+4*j}:{43+4*j}], v12 offset0:{(128*j*LNS)//4 % 256 + 2} offset1:{(128*j*LNS)//4 % 256 + 3}")
        if j < 4:
            nxt = (128*(j+1)*LNS)//4 // 256 - (128*j*LNS)//4 // 256
            e(f"v_add_u32 v12, {nxt*1024}, v12")
    for j in range(5):
        e(f"s_waitcnt lgkmcnt({2*(4-j)})")
        if "xnt" not in SKIP: e(f"buffer_store_dwordx4 v[{40+4*j}:{43+4*j}], v13, s[28:31], s6 offen")
        if j < 4: e("s_add_u32 s6, s6, %d" % (128*32))
    tl(5)
    if TL: e("s_waitcnt vmcnt(0)")
    tl_end(0)
    e("s_endpgm")
    lab("prep_wt")
    if W1D: gen_wt(KG_WGS + LN_WGS, 270, 540, "prep_end", 0, DLYW)
    else: gen_wt(KG_WGS + LN_WGS, 0, 270 if W2MID else 0, "prep_end", 0, DLYW)
    lab("prep_end")
    e("s_endpgm")
    kernel_desc("prep_kernel", 160 if EMU & 4 else 128)

G1_WGS = 256
CV_WGS = int(os.environ.get("NCV", 256)) if FUSE else 640
W2_WGS = 68 if W2MID else 0
MID_WGS = G1_WGS + CV_WGS + W2_WGS
CS = 4160
def CB(c): return c*CS + (32 if c >= 4 else 0)
UB = CB(7) + CS - 80
G1_NS, G1_BD = int(os.environ.get('G1NS', 5)), int(os.environ.get('G1BD', 4))
MID_LDS = 40960

def mish_pairs(acc0, acc1, b0, b1r, dst, t):
    e(f"v_cvt_pk_bf16_f32 v{t}, v{acc0}, v{acc1}")
    e(f"v_lshlrev_b32 v{t+1}, 16, v{t}")
    e(f"v_and_b32 v{t+2}, 0xffff0000, v{t}")
    e(f"v_add_f32 v{t+1}, v{t+1}, v{b0}")
    e(f"v_add_f32 v{t+2}, v{t+2}, v{b1r}")
    e(f"v_cvt_pk_bf16_f32 v{t}, v{t+1}, v{t+2}")
    e(f"v_lshlrev_b32 v{t+1}, 16, v{t}")
    e(f"v_and_b32 v{t+2}, 0xffff0000, v{t}")
    if MISH2:
        e(f"v_mul_f32 v{t+3}, {LOG2E:#x}, v{t+1}")
        e(f"v_mul_f32 v{t+4}, {LOG2E:#x}, v{t+2}")
        e(f"v_exp_f32 v{t+3}, v{t+3}")
        e(f"v_exp_f32 v{t+4}, v{t+4}")
        e(f"s_nop 0")
        e(f"v_add_f32 v{t+3}, 1.0, v{t+3}")
        e(f"v_add_f32 v{t+4}, 1.0, v{t+4}")
        e(f"v_fmaak_f32 v{t+3}, v{t+3}, v{t+3}, 0x3f800000")
        e(f"v_fmaak_f32 v{t+4}, v{t+4}, v{t+4}, 0x3f800000")
        e(f"v_rcp_f32 v{t+3}, v{t+3}")
        e(f"v_rcp_f32 v{t+4}, v{t+4}")
        e(f"s_nop 0")
        e(f"v_fmaak_f32 v{t+3}, -2.0, v{t+3}, 0x3f800000")
        e(f"v_fmaak_f32 v{t+4}, -2.0, v{t+4}, 0x3f800000")
        e(f"v_mul_f32 v{t+1}, v{t+1}, v{t+3}")
        e(f"v_mul_f32 v{t+2}, v{t+2}, v{t+4}")
    else:
        e(f"v_min_f32 v{t+3}, 0x41a00000, v{t+1}")
        e(f"v_min_f32 v{t+4}, 0x41a00000, v{t+2}")
        e(f"v_mul_f32 v{t+3}, {LOG2E:#x}, v{t+3}")
        e(f"v_mul_f32 v{t+4}, {LOG2E:#x}, v{t+4}")
        e(f"v_exp_f32 v{t+3}, v{t+3}")
        e(f"v_exp_f32 v{t+4}, v{t+4}")
        e(f"s_nop 0")
        e(f"v_add_f32 v{t}, 2.0, v{t+3}")
        e(f"v_add_f32 v{t+5}, 2.0, v{t+4}")
        e(f"v_mul_f32 v{t+3}, v{t+3}, v{t}")
        e(f"v_mul_f32 v{t+4}, v{t+4}, v{t+5}")
        e(f"v_add_f32 v{t}, 2.0, v{t+3}")
        e(f"v_add_f32 v{t+5}, 2.0, v{t+4}")
        e(f"v_rcp_f32 v{t}, v{t}")
        e(f"v_rcp_f32 v{t+5}, v{t+5}")
        e(f"v_mul_f32 v{t+1}, v{t+1}, v{t+3}")
        e(f"v_mul_f32 v{t+2}, v{t+2}, v{t+4}")
        e(f"v_mul_f32 v{t+1}, v{t+1}, v{t}")
        e(f"v_mul_f32 v{t+2}, v{t+2}, v{t+5}")
    e(f"v_cvt_pk_bf16_f32 v{dst}, v{t+1}, v{t+2}")

def mish_quad(ac, T, dst):
    H = [T+4, T+8]; E = [T+6, T+10]; P = [T+12, T+13]
    pr = lambda r: f"v[{r}:{r+1}]"
    for q in range(2): e(f"v_cvt_pk_bf16_f32 v{P[q]}, v{ac+2*q}, v{ac+2*q+1}")
    for q in range(2):
        e(f"v_lshlrev_b32 v{H[q]}, 16, v{P[q]}")
        e(f"v_and_b32 v{H[q]+1}, 0xffff0000, v{P[q]}")
    for q in range(2): e(f"v_pk_add_f32 {pr(H[q])}, {pr(H[q])}, {pr(T+2*q)}")
    for q in range(2): e(f"v_cvt_pk_bf16_f32 v{P[q]}, v{H[q]}, v{H[q]+1}")
    for q in range(2):
        e(f"v_lshlrev_b32 v{H[q]}, 16, v{P[q]}")
        e(f"v_and_b32 v{H[q]+1}, 0xffff0000, v{P[q]}")
    for q in range(2): e(f"v_pk_mul_f32 {pr(E[q])}, {pr(H[q])}, s[46:47]")
    for q in range(2):
        e(f"v_exp_f32 v{E[q]}, v{E[q]}")
        e(f"v_exp_f32 v{E[q]+1}, v{E[q]+1}")
    for q in range(2): e(f"v_pk_add_f32 {pr(E[q])}, {pr(E[q])}, v[40:41]")
    for q in range(2): e(f"v_pk_fma_f32 {pr(E[q])}, {pr(E[q])}, {pr(E[q])}, v[40:41]")
    for q in range(2):
        e(f"v_rcp_f32 v{E[q]}, v{E[q]}")
        e(f"v_rcp_f32 v{E[q]+1}, v{E[q]+1}")
    for q in range(2): e(f"v_pk_fma_f32 {pr(E[q])}, {pr(E[q])}, v[42:43], v[40:41]")
    for q in range(2): e(f"v_pk_mul_f32 {pr(H[q])}, {pr(H[q])}, {pr(E[q])}")
    for q in range(2): e(f"v_cvt_pk_bf16_f32 v{dst+q}, v{H[q]}, v{H[q]+1}")

def gemm_loop(nA, nsteps, KS, NS, frag_reg, acc_reg, voff, srdws, sA0, sB0, stride, spiece, vlds_r_b, vlds_r_lane):
    nR = nA + 4
    npieces = nR * KS
    npw = (npieces + 3) // 4
    SZ = npieces * 1024
    nchunks = nsteps // KS
    assert nsteps % KS == 0
    e(f"s_sub_u32 s{sB0}, s{sB0}, {nA*stride}")
    for i in range(npw):
        g, l = spiece + 2*i, spiece + 2*i + 1
        e(f"s_add_u32 s{l}, s3, {4*i}")
        e(f"s_min_u32 s{l}, s{l}, {npieces-1}")
        sh = {1: 0, 2: 1, 4: 2}[KS]
        e(f"s_lshr_b32 s{g}, s{l}, {sh}")
        e(f"s_cmp_lt_u32 s{g}, {nA}")
        e(f"s_cselect_b32 s6, s{sA0}, s{sB0}")
        e(f"s_mul_i32 s{g}, s{g}, {stride}")
        e(f"s_add_u32 s{g}, s{g}, s6")
        e(f"s_and_b32 s6, s{l}, {KS-1}")
        e(f"s_lshl_b32 s6, s6, 10")
        e(f"s_add_u32 s{g}, s{g}, s6")
        e(f"s_lshl_b32 s{l}, s{l}, 10")
    def dma(c):
        slot = c % NS
        for i in range(npw):
            e(f"s_add_u32 m0, s{spiece+2*i+1}, {slot*SZ}")
            e("s_nop 0")
            e(f"buffer_load_dwordx4 v{voff}, s[{srdws}:{srdws+3}], s{spiece+2*i} offen lds")
        e(f"v_add_u32 v{voff}, {KS*1024}, v{voff}")
    per = nA + 1
    HALF = 2*SZ
    e(f"v_add_u32 v12, {HALF}, v{vlds_r_b}")
    e(f"v_add_u32 v13, {HALF}, v{vlds_r_lane}")
    e(f"v_add_u32 v14, {2*HALF}, v{vlds_r_b}")
    e(f"v_add_u32 v15, {2*HALF}, v{vlds_r_lane}")
    def reads(slot, q):
        fr = frag_reg + 4*per*q
        vb, vl, so = [(vlds_r_b, vlds_r_lane, slot*SZ), (12, 13, slot*SZ - HALF), (14, 15, slot*SZ - 2*HALF)][slot//2]
        e(f"ds_read_b128 v[{fr}:{fr+3}], v{vb} offset:{so + q*1024}")
        for a in range(nA):
            e(f"ds_read_b128 v[{fr+4+4*a}:{fr+7+4*a}], v{vl} offset:{so + a*KS*1024 + q*1024}")
    def mfmas(q):
        fr = frag_reg + 4*per*q
        for a in range(nA):
            ac = acc_reg + 16*a
            e(f"v_mfma_f32_32x32x16_bf16 v[{ac}:{ac+15}], v[{fr+4+4*a}:{fr+7+4*a}], v[{fr}:{fr+3}], v[{ac}:{ac+15}]")
    for c in range(min(NS-1, nchunks)):
        dma(c)
    for c in range(nchunks):
        inflight = min(NS-2, nchunks-1-c)
        e(f"s_waitcnt vmcnt({inflight*npw})")
        e("s_barrier")
        if nA == 2 and c == 0: stamp(2)
        if nA == 2 and c == 1: stamp(3)
        slot = c % NS
        if "rd" not in SKIP:
            for q in range(KS):
                reads(slot, q)
        if c + NS - 1 < nchunks and "dma" not in SKIP:
            dma(c + NS - 1)
        for q in range(KS):
            e(f"s_waitcnt lgkmcnt({(KS-1-q)*per})")
            if "mf" not in SKIP: mfmas(q)


UB2 = CB(7) + CS
HS = 2432
def gen_conv2():
    if "cv" in SKIP: e("s_endpgm")
    if PRIO & 8: e("s_setprio 3")
    srd(8, 60, D*2)
    def dmap(si):
        e(f"s_and_b32 s5, s{si}, 7")
        e("s_lshl_b32 s5, s5, 2")
        e(f"s_bfe_u32 s6, s{si}, 0x20003")
        e("s_or_b32 s5, s5, s6")
        e(f"s_andn2_b32 s4, s{si}, 31")
        e("s_or_b32 s4, s4, s5")
    def cvload():
        dmap(95)
        e("s_lshl_b32 s5, s4, 1")
        e("v_mov_b32 v144, s5")
        e("buffer_load_ushort v128, v144, s[8:11], 0 offen")
        e("s_lshl_b32 s5, s4, 5")
        e("s_add_u32 s5, s5, %d" % WS_XNT)
        e("buffer_load_dwordx4 v[132:135], v145, s[28:31], s5 offen")
        e("s_mul_i32 s6, s4, %d" % KR_STRIDE)
        e("s_add_u32 s6, s6, %d" % WS_KR)
        e("buffer_load_dwordx4 v[136:139], v146, s[28:31], s6 offen")
        e("buffer_load_dwordx4 v[140:143], v146, s[28:31], s6 offen offset:16")
    if FUSE:
        e("s_sub_u32 s95, s2, %d" % G1_WGS)
        e("s_mov_b32 s89, -1")
        e("v_lshrrev_b32 v145, 1, v0")
        e("v_mul_u32_u24 v145, 20480, v145")
        e("v_and_b32 v146, 1, v0")
        e("v_lshl_add_u32 v145, v146, 4, v145")
        e("v_lshlrev_b32 v146, 4, v0")
        if DLYC: e(f"s_sleep {DLYC}")
        cvload()
        e("s_waitcnt vmcnt(0)")
        lab("cv_loop")
        e("s_waitcnt vmcnt(2)")
        e("v_mov_b32 v1, v128")
        for r in range(12): e(f"v_mov_b32 v{8+r}, v{132+r}")
        e("s_mov_b32 s93, s95")
        e("s_add_u32 s95, s95, %d" % CV_WGS)
        e("s_cmp_ge_u32 s95, 640")
        e("s_cbranch_scc1 cv_nl")
        cvload()
        lab("cv_nl")
        dmap(93)
        e("s_mov_b32 s93, s4")
        e("v_lshlrev_b32 v4, 4, v0")
    else:
        e("s_sub_u32 s4, s2, %d" % G1_WGS)
        e("s_and_b32 s5, s4, 7")
        e("s_lshl_b32 s5, s5, 2")
        e("s_bfe_u32 s6, s4, 0x20003")
        e("s_or_b32 s5, s5, s6")
        e("s_andn2_b32 s4, s4, 31")
        e("s_or_b32 s4, s4, s5")
        if FUSE: e("s_mov_b32 s93, s4")
        e("s_lshl_b32 s5, s4, 1")
        e("v_mov_b32 v3, s5")
        if DLYC: e(f"s_sleep {DLYC}")
        e("buffer_load_ushort v1, v3, s[8:11], 0 offen")
        e("s_lshl_b32 s5, s4, 5")
        e("s_add_u32 s5, s5, %d" % WS_XNT)
        e("v_lshrrev_b32 v4, 1, v0")
        e("v_mul_u32_u24 v4, 20480, v4")
        e("v_and_b32 v5, 1, v0")
        e("v_lshl_add_u32 v4, v5, 4, v4")
        e("buffer_load_dwordx4 v[8:11], v4, s[28:31], s5 offen")
        e("v_lshlrev_b32 v4, 4, v0")
        e("s_mul_i32 s6, s4, %d" % KR_STRIDE)
        e("s_add_u32 s6, s6, %d" % WS_KR)
        e("buffer_load_dwordx4 v[12:15], v4, s[28:31], s6 offen")
        e("buffer_load_dwordx4 v[16:19], v4, s[28:31], s6 offen offset:16")
    if not CV3:
        e("v_min_u32 v5, 3, v0")
        e("v_lshlrev_b32 v5, 4, v5")
        e("v_add_u32 v5, 4096, v5")
        e("buffer_load_dwordx4 v[20:23], v5, s[28:31], s6 offen")
        e("buffer_load_dwordx4 v[24:27], v5, s[28:31], s6 offen offset:16")
    for k in range(4):
        e(f"v_mov_b32 v{28+k}, 0")
    e("v_min_u32 v6, 31, v0")
    e("v_lshrrev_b32 v7, 4, v6")
    e("v_and_b32 v6, 15, v6")
    e("v_lshlrev_b32 v6, 4, v6")
    e(f"v_mad_u32_u24 v6, v7, {HS}, v6") if False else (e(f"v_mul_u32_u24 v7, {HS}, v7"), e("v_add_u32 v6, v6, v7"))
    if CV3:
        e("s_cmp_lg_u32 s3, 0")
        e("s_cbranch_scc1 cv_nz")
        e(f"v_add_u32 v6, {UB2}, v6")
        e("v_subrev_u32 v7, 32, v0")
        e("v_min_u32 v7, 7, v7")
        e("v_lshrrev_b32 v5, 2, v7")
        e(f"v_mul_u32_u24 v7, {CS}, v7")
        e("v_lshl_add_u32 v7, v5, 5, v7")
        e("v_add_u32 v7, 4096, v7")
        e("v_cmp_gt_u32 vcc, 32, v0")
        e("s_nop 1")
        e("v_cndmask_b32 v6, v7, v6, vcc")
        e("s_mov_b32 exec_hi, 0xff")
        e("ds_write_b128 v6, v[28:31]")
        e("s_mov_b32 exec_hi, -1")
        lab("cv_nz")
    else:
        e(f"ds_write_b128 v6, v[28:31] offset:{UB2}")
    e("v_lshrrev_b32 v6, 1, v0")
    e("v_lshlrev_b32 v6, 4, v6")
    e("v_and_b32 v7, 1, v0")
    e(f"v_mul_u32_u24 v7, {HS}, v7")
    e("v_add_u32 v6, v6, v7")
    if not FUSE: e("s_waitcnt vmcnt(%d)" % (2 if CV3 else 4))
    e(f"ds_write_b128 v6, v[8:11] offset:{UB2 + 256}")
    def copies(w, vaddr):
        for c in range(8):
            if c % 2 == 0:
                e(f"ds_write_b128 v{vaddr}, v[{w+c//2}:{w+c//2+3}] offset:{CB(c)}") if (w + c//2) % 2 == 0 else None
                if (w + c//2) % 2:
                    for j in range(4):
                        e(f"v_mov_b32 v{32+j}, v{w+c//2+j}")
                    e(f"ds_write_b128 v{vaddr}, v[32:35] offset:{CB(c)}")
            else:
                for j in range(4):
                    e(f"v_alignbit_b32 v{36+j}, v{w+(c+1)//2+j}, v{w+(c-1)//2+j}, 16")
                e(f"ds_write_b128 v{vaddr}, v[36:39] offset:{CB(c)}")
    if not FUSE: e("s_waitcnt vmcnt(%d)" % (0 if CV3 else 2))
    tl(1)
    copies(12, 4)
    if not CV3:
        e("s_waitcnt vmcnt(0)")
        copies(20, 5)
    e("v_and_b32 v3, 15, v2")
    e("v_lshrrev_b32 v4, 4, v2")
    e("v_sub_u32 v5, 7, v3")
    e("v_and_b32 v5, 7, v5")
    e("v_sub_u32 v6, 2031, v3")
    e("v_lshl_add_u32 v6, v4, 3, v6")
    e("v_sub_u32 v6, v6, v5")
    e("v_mul_u32_u24 v7, %d, v5" % CS)
    e("v_lshrrev_b32 v8, 2, v5")
    e("v_lshl_add_u32 v7, v8, 5, v7")
    e("v_lshl_add_u32 v6, v6, 1, v7")
    e("s_lshl_b32 s5, s3, 7")
    e(f"s_add_u32 s5, s5, {64 + 3584}")
    e("v_subrev_u32 v8, s5, v6")
    e("v_and_b32 v5, 1, v4")
    e("v_lshrrev_b32 v6, 1, v4")
    e(f"v_mul_u32_u24 v7, {HS}, v5")
    e("v_add_u32 v9, v3, v6")
    e("v_lshl_add_u32 v9, v9, 4, v7")
    e("s_lshl_b32 s5, s3, 6")
    e(f"s_sub_u32 s5, {UB2 + 16*15 - 32}, s5")
    e("v_add_u32 v9, s5, v9")
    e(f"v_mul_u32_u24 v11, {HS}, v6")
    e("v_lshl_add_u32 v11, v3, 4, v11")
    e("v_lshl_add_u32 v11, v5, 3, v11")
    e("s_lshl_b32 s5, s3, 9")
    e("v_add_u32 v11, s5, v11")
    e("v_lshlrev_b32 v12, 5, v3")
    e("v_lshl_add_u32 v12, v4, 3, v12")
    e("v_lshlrev_b32 v10, 4, v2")
    e("s_lshl_b32 s5, s3, 13")
    e("v_add_u32 v13, s5, v10")
    e("s_lshl_b32 s5, s3, 10")
    e("v_add_u32 v10, s5, v10")
    for r in range(16, 48):
        e(f"v_mov_b32 v{r}, 0")
    e("s_waitcnt lgkmcnt(0)")
    tl(2)
    if FUSE:
        e("s_waitcnt vmcnt(4)")
        e("s_cmp_lt_u32 s95, 640")
        e("s_cbranch_scc1 cv_b1")
        e("s_waitcnt vmcnt(0)")
        lab("cv_b1")
    e("s_barrier")
    if FUSE:
        e("s_cmp_lg_u32 s3, 0")
        e("s_cbranch_scc1 cv_s1")
        e("s_cmp_eq_u32 s89, -1")
        e("s_cbranch_scc1 cv_s1")
        e("s_mov_b64 exec, 1")
        e("v_mov_b32 v147, 1")
        e("v_mov_b32 v148, 0")
        e("buffer_atomic_add v147, v148, s[28:31], s89 offen sc1")
        e("s_mov_b64 exec, -1")
        lab("cv_s1")
    tl(3)
    free = list(range(48, 128, 4))
    loc = {}
    pend = []
    order = [("A",0),("B",7),("B",0),("A",7),("A",1),("B",6),("B",1),("A",6),("A",2),("B",5),("B",2),("A",5),("A",3),("B",4),("B",3),("A",4)]
    todo = [(st,) + o for st in range(2) for o in order]
    def rd(n):
        for _ in range(n):
            if not todo or not free or len(pend) >= 15: return
            key = todo.pop(0); r = free.pop(0); loc[key] = r
            st, ab, i = key
            if ab == "A": e(f"ds_read_b128 v[{r}:{r+3}], v8 offset:{512*(7-i) + 64*(1-st)}")
            else: e(f"ds_read_b128 v[{r}:{r+3}], v9 offset:{256*i + 32*(1-st)}")
            pend.append(key)
    def need(keys):
        idx = [pend.index(k) for k in keys if k in pend]
        if idx:
            last = max(idx)
            e(f"s_waitcnt lgkmcnt({len(pend) - 1 - last})")
            del pend[:last+1]
    groups = []
    for s_ in (7, 6, 5, 4, 3, 2, 1, 0):
        n = min(s_, 7 - s_)
        g = [(s_, m) for m in range(n + 1)] + [(j, s_) for j in range(min(s_ - 1, 7 - s_) + 1)]
        groups.append((s_, g))
    assert sum(len(g) for _, g in groups) == 36
    rd(20)
    for st in range(2):
        for s_, g in groups:
            need([(st, "B", j) for j, m in g] + [(st, "A", m) for j, m in g])
            for j, m in g:
                ac = 16 + 4*(j + m); a = loc[(st, "A", m)]; b = loc[(st, "B", j)]
                e(f"v_mfma_f32_16x16x32_bf16 v[{ac}:{ac+3}], v[{a}:{a+3}], v[{b}:{b+3}], v[{ac}:{ac+3}]")
            free.append(loc[(st, "A", s_)]); free.append(loc[(st, "B", s_)])
            rd(8)
    assert not todo and not pend
    tl(4)
    e("s_nop 15")
    e("s_barrier")
    for t in range(8):
        if CV3 & 2 and t % 2 == 0:
            e(f"s_cmp_eq_u32 s3, {t//2}")
            e(f"s_cbranch_scc1 cv_sk{t//2}")
        e(f"ds_write_b128 v10, v[{16+4*t}:{19+4*t}] offset:{4096*t}")
        if CV3 & 2 and t % 2 == 1:
            e(f"s_branch cv_nx{t//2}")
            lab(f"cv_sk{t//2}")
            for tt in range(2):
                for r in range(4):
                    e(f"v_mov_b32 v{48+16*tt+r}, v{16+4*(t-1+tt)+r}")
            lab(f"cv_nx{t//2}")
    if CV3 & 2:
        for i in range(1, 4):
            e(f"s_add_u32 s5, s3, {i}")
            e("s_and_b32 s5, s5, 3")
            e("s_lshl_b32 s5, s5, 10")
            e(f"v_add_u32 v{4+i}, s5, v13")
    for tt in range(2):
        e(f"ds_read_b64 v[{80+2*tt}:{81+2*tt}], v11 offset:{UB2 + 256 + 256*tt}")
    e("s_lshl_b32 s5, s4, 12")
    e("s_lshl_b32 s6, s3, 10")
    e("s_add_u32 s5, s5, s6")
    e("s_add_u32 s5, s5, %d" % WS_AT)
    e("v_lshlrev_b32 v1, 16, v1")
    e("s_waitcnt lgkmcnt(0)")
    e("s_barrier")
    for i in range(8):
        if CV3 & 2:
            if i % 4: e(f"ds_read_b128 v[{48+4*i}:{51+4*i}], v{4+i%4} offset:{4096*(i//4)}")
        else:
            e(f"ds_read_b128 v[{48+4*i}:{51+4*i}], v13 offset:{1024*i}")
    for tt in range(2):
        for p_ in range(2):
            u = 80 + 2*tt + p_
            e(f"v_lshlrev_b32 v84, 16, v{u}")
            e(f"v_and_b32 v85, 0xffff0000, v{u}")
            e(f"v_mul_f32 v84, v84, v1")
            e(f"v_mul_f32 v85, v85, v1")
            e(f"v_cvt_pk_bf16_f32 v84, v84, v85")
            e(f"v_lshlrev_b32 v{88+4*tt+2*p_}, 16, v84")
            e(f"v_and_b32 v{89+4*tt+2*p_}, 0xffff0000, v84")
    for tt in range(2):
        e(f"s_waitcnt lgkmcnt({(3 - 3*tt) if CV3 & 2 else (4 - 4*tt)})")
        b0 = 48 + 16*tt
        for r in range(4):
            e(f"v_add_f32 v{b0+r}, v{b0+r}, v{b0+4+r}")
            e(f"v_add_f32 v{b0+8+r}, v{b0+8+r}, v{b0+12+r}")
        for r in range(4):
            e(f"v_add_f32 v{b0+r}, v{b0+r}, v{b0+8+r}")
        for p_ in range(2):
            e(f"v_cvt_pk_bf16_f32 v84, v{b0+2*p_}, v{b0+2*p_+1}")
            e(f"v_lshlrev_b32 v85, 16, v84")
            e(f"v_and_b32 v86, 0xffff0000, v84")
            e(f"v_add_f32 v85, v85, v{88+4*tt+2*p_}")
            e(f"v_add_f32 v86, v86, v{89+4*tt+2*p_}")
            e(f"v_cvt_pk_bf16_f32 v{96+2*tt+p_}, v85, v86")
        e(f"buffer_store_dwordx2 v[{96+2*tt}:{97+2*tt}], v12, s[28:31], s5 offen offset:{512*tt}")
    if FUSE:
        e("s_mul_i32 s7, s93, 205")
        e("s_lshr_b32 s7, s7, 14")
        e("s_add_u32 s7, s7, 16")
        e("s_lshl_b32 s89, s7, 6")
        e("s_add_u32 s89, s89, %d" % WS_CNT)
        e("s_cmp_ge_u32 s95, 640")
        e("s_cbranch_scc1 cv_last")
        e("s_barrier")
        e("s_branch cv_loop")
        lab("cv_last")
        signal(7, "cv_sig")
    tl(5)
    if TL: e("s_waitcnt vmcnt(0)")
    tl_end(1)

def gen_mid():
    kernel_begin("mid_kernel")
    e("s_cmp_ge_u32 s2, %d" % MID_WGS)
    e("s_cbranch_scc1 mid_end")
    if EMU & 2:
        e("s_cmp_lt_u32 s2, 256")
        e("s_cbranch_scc1 mid_end")
    lab("mid_body")
    if FUSE: e("s_mov_b32 s90, s2")
    tl_begin()
    e("s_load_dwordx2 s[56:57], s[0:1], 104")
    e("s_load_dwordx2 s[58:59], s[0:1], 72")
    e("s_load_dwordx2 s[60:61], s[0:1], 48")
    if W1D: e("s_load_dwordx2 s[62:63], s[0:1], 64")
    e("v_lshrrev_b32 v1, 6, v0")
    e("v_and_b32 v2, 63, v0")
    e("s_nop 0")
    e("v_readfirstlane_b32 s3, v1")
    e("s_waitcnt lgkmcnt(0)")
    srd(28, 56, WS_SIZE)
    if W2MID:
        e("s_cmp_ge_u32 s2, %d" % (G1_WGS + CV_WGS))
        e("s_cbranch_scc1 mid_wt")
    e("s_cmp_ge_u32 s2, %d" % G1_WGS)
    e("s_cbranch_scc1 mid_conv")
    if "g1" in SKIP: e("s_endpgm")
    if PRIO & 4: e("s_setprio 3")
    srd(8, 58, F*2)
    if W1D: srd(12, 62, D*F*2)
    tl(1)
    if not EMU & 1: claim_tile(0, 32, 7168*G1_NS, "mcl")
    elif SCL & 1: static_claim()
    tl(2)
    if G1MAP == 0:
        e("s_lshr_b32 s5, s2, 4")
        e("s_and_b32 s4, s2, 15")
    else:
        e("s_lshr_b32 s5, s2, 6")
        e("s_lshl_b32 s5, s5, 2")
        e("s_bfe_u32 s6, s2, 0x20003")
        e("s_add_u32 s5, s5, s6")
        e("s_bfe_u32 s4, s2, 0x10005")
        e("s_lshl_b32 s4, s4, 3")
        e("s_and_b32 s6, s2, 7")
        e("s_add_u32 s4, s4, s6")
    e("s_mul_i32 s6, s4, 7")
    e("s_sub_u32 s7, s4, 12")
    e("s_cmp_lt_u32 s4, 12")
    e("s_cselect_b32 s7, 0, s7")
    e("s_cselect_b32 s26, 7, 6")
    e("s_sub_u32 s4, s6, s7")
    e("v_and_b32 v3, 15, v2")
    e("v_lshrrev_b32 v4, 4, v2")
    e("v_lshrrev_b32 v5, 1, v4")
    e("v_and_b32 v6, 1, v4")
    e("v_lshlrev_b32 v7, 4, v3")
    e("v_lshl_add_u32 v7, v5, 10, v7")
    e("v_lshl_add_u32 v7, v6, 9, v7")
    e("v_mov_b32 v8, v7")
    for k in range(2):
        e(f"s_add_u32 s6, s3, {4*k}")
        e("s_min_u32 s6, s6, 6")
        e(f"s_lshl_b32 s{42+k}, s6, 10")
        if W1D:
            vd = 7 if k == 0 else 11
            e("s_lshl_b32 s6, s6, 6")
            e("v_add_u32 v12, s6, v2")
            e("v_mul_u32_u24 v13, 4682, v12")
            e("v_lshrrev_b32 v13, 16, v13")
            e("v_mul_u32_u24 v14, 14, v13")
            e("v_sub_u32 v12, v12, v14")
            e("v_and_b32 v14, 0x13, v13")
            e("v_bfe_u32 v15, v13, 2, 1")
            e("v_lshl_or_b32 v14, v15, 3, v14")
            e("v_bfe_u32 v15, v13, 3, 1")
            e("v_lshl_or_b32 v14, v15, 2, v14")
            e("v_mul_u32_u24 v14, 3456, v14")
            e(f"v_lshl_add_u32 v{vd}, v12, 4, v14")
            if k == 1: e("s_lshl_b32 s40, s4, 5")
            continue
        e("s_add_u32 s6, s6, s4")
        e("s_min_u32 s6, s6, 107")
        e(f"s_lshr_b32 s{40+k}, s6, 1")
        e(f"s_mul_i32 s{40+k}, s{40+k}, {40*1024}")
        e("s_and_b32 s6, s6, 1")
        e("s_lshl_b32 s6, s6, 8")
        e(f"s_add_u32 s{40+k}, s{40+k}, s6")
        e(f"s_add_u32 s{40+k}, s{40+k}, {WS_W1F}")
    e("s_lshl_b32 s6, s5, 2")
    e("s_add_u32 s27, s6, s3")
    e("s_mul_i32 s44, s27, %d" % (40*1024))
    e("s_add_u32 s44, s44, %d" % WS_XNF)
    if "g1y" in SKIP:
        e("s_xor_b32 s45, s27, 1")
        e("s_mul_i32 s45, s45, %d" % (40*1024))
    e("v_lshlrev_b32 v9, 4, v2")
    if W1D:
        e("v_bfe_u32 v12, v2, 2, 3")
        e("v_lshl_add_u32 v12, v5, 4, v12")
        e("v_mul_u32_u24 v12, 224, v12")
        e("v_and_b32 v9, 3, v2")
        e("v_lshl_add_u32 v9, v9, 3, v12")
    NS, BD, NSTEP = G1_NS, G1_BD, 20
    NB = int(os.environ.get("G1NB", 6))
    AF, BF, ACC, BI = 16, 16 + 4*NB, 16 + 4*NB + 8*G1_BD, 44
    assert ACC + 56 <= 128
    pend = []
    def dma(st):
        for k in range(2):
            e(f"s_add_u32 m0, s{42+k}, {(st % NS)*7168}")
            e("s_nop 0")
            if W1D: e(f"buffer_load_dwordx4 v{7 if k == 0 else 11}, s[12:15], s40 offen lds")
            else: e(f"buffer_load_dwordx4 v7, s[28:31], s{40+k} offen lds")
            pend.append(("a", st))
        if W1D: e("s_add_u32 s40, s40, %d" % (32*3456))
        else: e("v_add_u32 v7, 2048, v7")
    def bld(st):
        r = BF + 8*(st % BD)
        e(f"buffer_load_dwordx4 v[{r}:{r+3}], v8, s[28:31], s44 offen")
        e(f"buffer_load_dwordx4 v[{r+4}:{r+7}], v8, s[28:31], s44 offen offset:256")
        pend.append(("b", st)); pend.append(("b", st))
        if "g1y" in SKIP:
            e(f"buffer_load_dwordx4 v[{r}:{r+3}], v8, s[28:31], s45 offen")
            e(f"buffer_load_dwordx4 v[{r+4}:{r+7}], v8, s[28:31], s45 offen offset:256")
            pend.append(("b", st)); pend.append(("b", st))
        e("v_add_u32 v8, 2048, v8")
    def wait_for(*tags):
        idx = [i for i, p in enumerate(pend) if p in tags]
        if not idx: return
        last = max(idx)
        e(f"s_waitcnt vmcnt({len(pend) - 1 - last})")
        del pend[:last+1]
    def rdA(g):
        st, t = divmod(g, 7)
        if st >= NSTEP: return
        r = AF + 4*(g % NB)
        if W1D:
            e(f"ds_read_b64_tr_b16 v[{r}:{r+1}], v9 offset:{(st % NS)*7168 + 32*t}")
            e(f"ds_read_b64_tr_b16 v[{r+2}:{r+3}], v9 offset:{(st % NS)*7168 + 32*t + 1792}")
        else: e(f"ds_read_b128 v[{r}:{r+3}], v9 offset:{(st % NS)*7168 + 1024*t}")
    for st in range(max(NS-1, BD)):
        if st < NS-1: dma(st)
        if st < BD: bld(st)
    e("s_lshl_b32 s6, s4, 5")
    e("v_lshl_add_u32 v10, v4, 3, s6")
    for r in range(ACC, ACC+56):
        e(f"v_mov_b32 v{r}, 0")
    wait_for(("a", 0))
    e("s_barrier")
    tl(3)
    for t in range(NB): rdA(t)
    for st in range(NSTEP):
        if st + 1 < NSTEP:
            wait_for(("a", st+1), ("b", st))
            e("s_barrier")
            if st - 1 + NS < NSTEP: dma(st - 1 + NS)
        else:
            wait_for(("b", st))
        rb = BF + 8*(st % BD)
        for t in range(7):
            g = 7*st + t
            e(f"s_waitcnt lgkmcnt({(2 if W1D else 1)*min(NB - 1, 7*NSTEP - 1 - g)})")
            ra_ = AF + 4*(g % NB)
            for b_ in range(2):
                ac = ACC + 4*(2*t + b_)
                e(f"v_mfma_f32_16x16x32_bf16 v[{ac}:{ac+3}], v[{ra_}:{ra_+3}], v[{rb+4*b_}:{rb+4*b_+3}], v[{ac}:{ac+3}]")
            rdA(g + NB)
        if st + BD < NSTEP: bld(st + BD)
        if st == NSTEP - 2:
            assert BD >= 3
            free = [BF + 8*((NSTEP-3) % BD), BF + 8*((NSTEP-2) % BD)]
            BIr = [free[0] + 2*k for k in range(4)] + [free[1] + 2*k for k in range(3)]
            for t in range(7):
                e(f"buffer_load_dwordx2 v[{BIr[t]}:{BIr[t]+1}], v10, s[8:11], 0 offen offset:{32*t}")
                pend.append(("c", 0))
    e("s_nop 7")
    e("s_waitcnt vmcnt(0)")
    tl(4)
    e("s_mul_i32 s6, s27, 108")
    e("s_add_u32 s6, s6, s4")
    e("s_lshl_b32 s6, s6, 10")
    e("s_add_u32 s6, s6, %d" % WS_ACT)
    e("v_lshlrev_b32 v9, 4, v3")
    e("v_lshl_add_u32 v9, v5, 9, v9")
    e("v_lshl_add_u32 v9, v6, 3, v9")
    T = 16
    if MISH2 == 2:
        e(f"s_mov_b32 s46, {LOG2E:#x}")
        e(f"s_mov_b32 s47, {LOG2E:#x}")
        e("v_mov_b32 v40, 1.0"); e("v_mov_b32 v41, 1.0")
        e("v_mov_b32 v42, -2.0"); e("v_mov_b32 v43, -2.0")
    for t in range(7):
        if t == 6:
            e("s_cmp_lt_u32 s26, 7")
            e("s_cbranch_scc1 g1_end")
        r = BIr[t]
        e(f"v_lshlrev_b32 v{T}, 16, v{r}")
        e(f"v_and_b32 v{T+1}, 0xffff0000, v{r}")
        e(f"v_lshlrev_b32 v{T+2}, 16, v{r+1}")
        e(f"v_and_b32 v{T+3}, 0xffff0000, v{r+1}")
        for b_ in range(2):
            ac = ACC + 4*(2*t + b_)
            d0 = T + 16 + 2*((2*t + b_) % 4)
            if MISH2 == 2:
                mish_quad(ac, T, d0)
            else:
                mish_pairs(ac, ac+1, T, T+1, d0, T+4)
                mish_pairs(ac+2, ac+3, T+2, T+3, d0+1, T+10)
            off = (t % 4)*1024 + 256*b_
            e(f"buffer_store_dwordx2 v[{d0}:{d0+1}], v9, s[28:31], s6 offen offset:{off}")
        if t == 3: e("s_add_u32 s6, s6, 4096")
    lab("g1_end")
    tl(5)
    if TL: e("s_waitcnt vmcnt(0)")
    tl_end(1)
    if FUSE:
        signal(5, "g1_sig")
        e("s_mov_b32 s2, s90")
        e("s_branch fin_body")
    e("s_endpgm")
    lab("mid_conv")
    if CONV2:
        gen_conv2()
    else:
        if "cv" in SKIP: e("s_endpgm")
        if PRIO & 8: e("s_setprio 3")
        srd(8, 60, D*2)
        e("s_sub_u32 s4, s2, %d" % G1_WGS)
        e("s_and_b32 s5, s4, 7")
        e("s_lshl_b32 s5, s5, 2")
        e("s_bfe_u32 s6, s4, 0x20003")
        e("s_or_b32 s5, s5, s6")
        e("s_andn2_b32 s4, s4, 31")
        e("s_or_b32 s4, s4, s5")
        e("s_lshl_b32 s5, s4, 1")
        e("v_mov_b32 v3, s5")
        if DLYC: e(f"s_sleep {DLYC}")
        e("buffer_load_ushort v1, v3, s[8:11], 0 offen")
        e("s_lshl_b32 s5, s4, 5")
        e("s_add_u32 s5, s5, %d" % WS_XNT)
        e("v_lshrrev_b32 v4, 1, v0")
        e("v_mul_u32_u24 v4, 20480, v4")
        e("v_and_b32 v5, 1, v0")
        e("v_lshl_add_u32 v4, v5, 4, v4")
        e("buffer_load_dwordx4 v[8:11], v4, s[28:31], s5 offen")
        e("v_lshlrev_b32 v4, 4, v0")
        e("s_mul_i32 s6, s4, %d" % KR_STRIDE)
        e("s_add_u32 s6, s6, %d" % WS_KR)
        e("buffer_load_dwordx4 v[12:15], v4, s[28:31], s6 offen")
        e("buffer_load_dwordx4 v[16:19], v4, s[28:31], s6 offen offset:16")
        e("v_min_u32 v5, 3, v0")
        e("v_lshlrev_b32 v5, 4, v5")
        e("v_add_u32 v5, 4096, v5")
        e("buffer_load_dwordx4 v[20:23], v5, s[28:31], s6 offen")
        e("buffer_load_dwordx4 v[24:27], v5, s[28:31], s6 offen offset:16")
        for k in range(4):
            e(f"v_mov_b32 v{28+k}, 0")
        e("v_min_u32 v6, 154, v0")
        e("v_lshlrev_b32 v6, 4, v6")
        e(f"ds_write_b128 v6, v[28:31] offset:{UB + 80}")
        e("v_lshrrev_b32 v6, 2, v0")
        e("v_mul_u32_u24 v6, 80, v6")
        e("v_and_b32 v7, 3, v0")
        e("v_lshl_add_u32 v6, v7, 4, v6")
        e("s_waitcnt vmcnt(4)")
        e(f"ds_write_b128 v6, v[8:11] offset:{UB + 32*80}")
        def copies(w, vaddr):
            for c in range(8):
                if c % 2 == 0:
                    e(f"ds_write_b128 v{vaddr}, v[{w+c//2}:{w+c//2+3}] offset:{CB(c)}") if (w + c//2) % 2 == 0 else None
                    if (w + c//2) % 2:
                        for j in range(4):
                            e(f"v_mov_b32 v{32+j}, v{w+c//2+j}")
                        e(f"ds_write_b128 v{vaddr}, v[32:35] offset:{CB(c)}")
                else:
                    for j in range(4):
                        e(f"v_alignbit_b32 v{36+j}, v{w+(c+1)//2+j}, v{w+(c-1)//2+j}, 16")
                    e(f"ds_write_b128 v{vaddr}, v[36:39] offset:{CB(c)}")
        e("s_waitcnt vmcnt(2)")
        tl(1)
        copies(12, 4)
        e("s_waitcnt vmcnt(0)")
        copies(20, 5)
        e("s_waitcnt lgkmcnt(0)")
        tl(2)
        e("s_barrier")
        tl(3)
        e("v_and_b32 v3, 31, v2")
        e("v_lshrrev_b32 v4, 5, v2")
        e("v_sub_u32 v5, 7, v3")
        e("v_and_b32 v5, 7, v5")
        e("v_sub_u32 v6, 2047, v3")
        e("v_lshl_add_u32 v6, v4, 3, v6")
        e("v_sub_u32 v6, v6, v5")
        e("v_mul_u32_u24 v7, %d, v5" % CS)
        e("v_lshrrev_b32 v8, 2, v5")
        e("v_lshl_add_u32 v7, v8, 5, v7")
        e("v_lshl_add_u32 v6, v6, 1, v7")
        e("v_mul_u32_u24 v7, 80, v3")
        e("v_lshl_add_u32 v7, v4, 4, v7")
        e(f"v_add_u32 v7, {UB + 32*80}, v7")
        for r in range(16, 48):
            e(f"v_mov_b32 v{r}, 0")
        e("s_lshl_b32 s5, s3, 9")
        e(f"s_add_u32 s5, s5, {64*7 + 64*32}")
        e("v_subrev_u32 v8, s5, v6")
        e("s_mul_i32 s5, s3, 640")
        e(f"s_add_u32 s5, s5, {80*7}")
        e("v_subrev_u32 v9, s5, v7")
        def rd(q):
            base = 48 + (q & 1)*32
            for t in range(2):
                fa = base + 16*t
                e(f"ds_read_b128 v[{fa}:{fa+3}], v8 offset:{64*(7-q) + 2048 + 32*t}")
                e(f"ds_read_b128 v[{fa+4}:{fa+7}], v9 offset:{80*(7-q) + 32*t}")
                e(f"ds_read_b128 v[{fa+8}:{fa+11}], v9 offset:{80*(7-q) + 2560 + 32*t}")
                e(f"ds_read_b128 v[{fa+12}:{fa+15}], v8 offset:{64*(7-q) + 32*t}")
        def mm(q):
            base = 48 + (q & 1)*32
            for t in range(2):
                fa = base + 16*t
                e(f"v_mfma_f32_32x32x16_bf16 v[16:31], v[{fa}:{fa+3}], v[{fa+4}:{fa+7}], v[16:31]")
                e(f"v_mfma_f32_32x32x16_bf16 v[32:47], v[{fa}:{fa+3}], v[{fa+8}:{fa+11}], v[32:47]")
                e(f"v_mfma_f32_32x32x16_bf16 v[32:47], v[{fa+12}:{fa+15}], v[{fa+4}:{fa+7}], v[32:47]")
        rd(0)
        for q in range(8):
            if q < 7:
                rd(q + 1)
                e("s_waitcnt lgkmcnt(8)")
            else:
                e("s_waitcnt lgkmcnt(0)")
            mm(q)
        tl(4)
        e("s_nop 15")
        e("s_barrier")
        e("v_lshlrev_b32 v10, 4, v2")
        e("s_cmp_eq_u32 s3, 0")
        e("s_cbranch_scc1 cv_w0")
        e("s_sub_u32 s5, s3, 1")
        e("s_lshl_b32 s5, s5, 12")
        e("v_add_u32 v11, s5, v10")
        for r in range(4):
            e(f"ds_write_b128 v11, v[{16+4*r}:{19+4*r}] offset:{1024*r}")
        lab("cv_w0")
        e("s_cmp_eq_u32 s3, 1")
        e("s_cbranch_scc1 cv_w1")
        e("s_sub_u32 s5, s3, 1")
        e("s_max_i32 s5, s5, 0")
        e("s_lshl_b32 s5, s5, 12")
        e("v_add_u32 v11, s5, v10")
        for r in range(4):
            e(f"ds_write_b128 v11, v[{32+4*r}:{35+4*r}] offset:{12288 + 1024*r}")
        e("s_branch cv_w2")
        lab("cv_w1")
        for r in range(16):
            e(f"v_mov_b32 v{16+r}, v{32+r}")
        e("v_add_u32 v10, 12288, v10")
        lab("cv_w2")
        e("s_waitcnt lgkmcnt(0)")
        e("s_barrier")
        e("s_cmp_ge_u32 s3, 2")
        e("s_cbranch_scc1 mid_end")
        for sl in range(3):
            for r in range(4):
                e(f"ds_read_b128 v[{48+16*sl+4*r}:{51+16*sl+4*r}], v10 offset:{4096*sl + 1024*r}")
        for sl in range(3):
            e(f"s_waitcnt lgkmcnt({8-4*sl})")
            for r in range(16):
                e(f"v_add_f32 v{16+r}, v{16+r}, v{48+16*sl+r}")
        lab("cv_epi")
        e("s_mul_i32 s5, s3, %d" % (32*80))
        e("v_mul_u32_u24 v11, 80, v3")
        e("v_lshl_add_u32 v11, v4, 3, v11")
        e("v_add_u32 v11, s5, v11")
        for g in range(4):
            e(f"ds_read_b64 v[{32+2*g}:{33+2*g}], v11 offset:{UB + 32*80 + 16*g}")
        e("s_lshl_b32 s5, s4, 12")
        e("s_lshl_b32 s6, s3, 11")
        e("s_add_u32 s5, s5, s6")
        e("s_add_u32 s5, s5, %d" % WS_AT)
        e("v_lshlrev_b32 v12, 6, v3")
        e("v_lshl_add_u32 v12, v4, 3, v12")
        e("s_waitcnt vmcnt(0) lgkmcnt(0)")
        e("v_lshlrev_b32 v1, 16, v1")
        for g in range(4):
            for p in range(2):
                u = 32 + 2*g + p
                y0 = 16 + 4*g + 2*p
                e(f"v_lshlrev_b32 v44, 16, v{u}")
                e(f"v_and_b32 v45, 0xffff0000, v{u}")
                e(f"v_mul_f32 v44, v44, v1")
                e(f"v_mul_f32 v45, v45, v1")
                e(f"v_cvt_pk_bf16_f32 v44, v44, v45")
                e(f"v_cvt_pk_bf16_f32 v46, v{y0}, v{y0+1}")
                e(f"v_lshlrev_b32 v47, 16, v44")
                e(f"v_and_b32 v48, 0xffff0000, v44")
                e(f"v_lshlrev_b32 v49, 16, v46")
                e(f"v_and_b32 v50, 0xffff0000, v46")
                e(f"v_add_f32 v47, v47, v49")
                e(f"v_add_f32 v48, v48, v50")
                e(f"v_cvt_pk_bf16_f32 v{52+2*g+p}, v47, v48")
            e(f"buffer_store_dwordx2 v[{52+2*g}:{53+2*g}], v12, s[28:31], s5 offen offset:{16*g}")
        tl(5)
        if TL: e("s_waitcnt vmcnt(0)")
        tl_end(1)
    if W2MID:
        e("s_endpgm")
        lab("mid_wt")
        gen_wt(G1_WGS + CV_WGS, 270, 540, "mid_end", 1, int(os.environ.get("DLYW2", 0)))
    lab("mid_end")
    e("s_endpgm")
    if FUSE: kernel_desc("mid_kernel", 160, agpr=80)
    else: kernel_desc("mid_kernel", 128)

G2_WGS = 256
FIN_LDS = 61440 + 64
FDEPTH = int(os.environ.get('FDEPTH', 4))
def gen_fin():
    if FUSE:
        out.append(".text"); lab("fin_kernel"); lab("fin_body")
    else:
        kernel_begin("fin_kernel")
        e("s_cmp_ge_u32 s2, %d" % G2_WGS)
        e("s_cbranch_scc1 fin_end")
    e("s_load_dwordx2 s[56:57], s[0:1], 104")
    e("s_load_dwordx2 s[58:59], s[0:1], 0")
    e("s_load_dwordx2 s[60:61], s[0:1], 88")
    e("v_lshrrev_b32 v1, 6, v0")
    e("v_and_b32 v2, 63, v0")
    e("s_nop 0")
    e("v_readfirstlane_b32 s3, v1")
    if FMAP == 2:
        e("s_and_b32 s5, s2, 31")
        e("s_lshr_b32 s4, s2, 5")
    elif FMAP == 3:
        e("s_lshr_b32 s5, s2, 3")
        e("s_and_b32 s4, s2, 7")
    else:
        if SCL & 2: static_claim()
        else:
            e("s_waitcnt lgkmcnt(0)")
            srd(28, 56, WS_SIZE)
            claim_tile(512, 32, 61440, "fcl")
        if FMAP == 0:
            e("s_lshr_b32 s5, s2, 5")
            e("s_lshl_b32 s5, s5, 2")
            e("s_and_b32 s6, s2, 3")
            e("s_add_u32 s5, s5, s6")
            e("s_bfe_u32 s4, s2, 0x30002")
        else:
            e("s_lshr_b32 s5, s2, 6")
            e("s_lshl_b32 s5, s5, 3")
            e("s_and_b32 s6, s2, 7")
            e("s_add_u32 s5, s5, s6")
            e("s_bfe_u32 s4, s2, 0x10005")
            e("s_lshl_b32 s4, s4, 2")
            e("s_bfe_u32 s6, s2, 0x20003")
            e("s_add_u32 s4, s4, s6")
    e("v_and_b32 v3, 15, v2")
    e("v_lshrrev_b32 v4, 4, v2")
    e("v_lshrrev_b32 v5, 1, v4")
    e("v_and_b32 v6, 1, v4")
    e("v_lshlrev_b32 v7, 4, v3")
    e("v_lshl_add_u32 v7, v5, 10, v7")
    e("v_lshl_add_u32 v7, v6, 9, v7")
    e("s_lshl_b32 s6, s3, 11")
    e("v_add_u32 v7, s6, v7")
    e("s_mul_i32 s6, s4, 5")
    for a_ in range(5):
        e(f"s_add_u32 s7, s6, {a_}")
        e(f"s_lshr_b32 s{40+a_}, s7, 1")
        e(f"s_mul_i32 s{40+a_}, s{40+a_}, {108*1024}")
        e(f"s_and_b32 s7, s7, 1")
        e(f"s_lshl_b32 s7, s7, 8")
        e(f"s_add_u32 s{40+a_}, s{40+a_}, s7")
        e(f"s_add_u32 s{40+a_}, s{40+a_}, {WS_W2F}")
    e("s_mul_i32 s6, s5, %d" % (2*108*1024))
    e("s_add_u32 s45, s6, %d" % WS_ACT)
    e("s_add_u32 s46, s45, 256")
    e("s_add_u32 s47, s45, %d" % (108*1024))
    e("s_add_u32 s48, s47, 256")
    e("s_waitcnt lgkmcnt(0)")
    srd(28, 56, WS_SIZE); srd(8, 58, L*D*2); srd(12, 60, L*D*2)
    FR = 16
    ACC = 0
    EP = FR + 36*(FDEPTH - (1 if FUSE else 0))
    pend = []
    def issue(m):
        base = FR + 36*(m % FDEPTH)
        for t in range(9):
            e(f"buffer_load_dwordx4 v[{base+4*t}:{base+4*t+3}], v7, s[28:31], s{40+t} offen")
            pend.append(("f", m))
        e("v_add_u32 v7, 8192, v7")
    def wait_for(tag):
        if tag not in pend: return
        last = max(i for i, p in enumerate(pend) if p == tag)
        n = len(pend) - 1 - last
        e(f"s_waitcnt vmcnt({n})")
        del pend[:last+1]
    NST = 14
    if FUSE:
        e("v_mov_b32 v12, v7")
        e("v_mov_b32 v14, 0")
        for m in range(FDEPTH):
            for t in range(5):
                e(f"buffer_load_dwordx4 v[{FR+36*m+4*t}:{FR+36*m+4*t+3}], v12, s[28:31], s{40+t} offen")
                pend.append(("f", m))
            e("v_add_u32 v12, 8192, v12")
        for r in range(ACC, ACC+80):
            e(f"v_accvgpr_write_b32 a{r}, 0")
        e("s_lshr_b32 s6, s5, 1")
        e("s_lshl_b32 s6, s6, 6")
        e("s_add_u32 s6, s6, %d" % WS_CNT)
        e("s_lshl_b32 s94, s4, 6")
        e("s_add_u32 s94, s94, %d" % (WS_CNT + 1024))
        e("s_cmp_lg_u32 s3, 0")
        e("s_cbranch_scc1 fp0_d")
        poll(6, int(os.environ.get("FT0", 16)), "fp0")
        e("s_barrier")
        for m in range(FDEPTH):
            for t in range(5, 9):
                e(f"buffer_load_dwordx4 v[{FR+36*m+4*t}:{FR+36*m+4*t+3}], v7, s[28:31], s{40+t} offen")
                pend.append(("f", m))
            e("v_add_u32 v7, 8192, v7")
    else:
        for m in range(FDEPTH):
            issue(m)
    e("s_lshl_b32 s6, s5, 6")
    e("s_lshl_b32 s7, s3, 4")
    e("s_add_u32 s6, s6, s7")
    e("v_add_u32 v8, s6, v3")
    e("v_mul_u32_u24 v9, 1280, v8")
    e("v_lshl_add_u32 v9, v4, 3, v9")
    e("s_mul_i32 s6, s4, 160")
    e("v_add_u32 v9, s6, v9")
    def eploads():
        for a_ in range(5):
            e(f"buffer_load_dwordx2 v[{EP+2*a_}:{EP+2*a_+1}], v9, s[8:11], 0 offen offset:{32*a_}")
            pend.append(("e", 0))
        e("v_lshlrev_b32 v10, 14, v4")
        e("v_lshl_add_u32 v10, v8, 1, v10")
        e("s_mul_i32 s6, s4, %d" % (80*4096))
        e("s_add_u32 s6, s6, %d" % WS_AT)
        for a_ in range(5):
            for j in range(4):
                e(f"buffer_load_ushort v{EP+10+4*a_+j}, v10, s[28:31], s6 offen")
                pend.append(("e", 0))
                e("s_add_u32 s6, s6, %d" % (4096 if j < 3 else 4096*13))
    if not FUSE:
        eploads()
        for r in range(ACC, ACC+80):
            e(f"v_accvgpr_write_b32 a{r}, 0")
    for m in range(NST):
        if m == NST - 1:
            e("s_cmp_ge_u32 s3, 2")
            e("s_cbranch_scc1 fin_red")
        wait_for(("f", m))
        base = FR + 36*(m % FDEPTH)
        fill = []
        if FEP and FDEPTH + 1 <= m < FDEPTH + 4:
            for a_ in [(0, 1), (2, 3), (4,)][m - FDEPTH - 1]:
                rx = EP + 2*a_; ra = EP + 10 + 4*a_
                for k_ in range(9):
                    for p_ in range(2):
                        t0, t1 = 12 + 2*p_, 13 + 2*p_
                        r0, r1 = ra + 2*p_, ra + 2*p_ + 1
                        fill.append([f"v_lshlrev_b32 v{t0}, 16, v{rx+p_}", f"v_and_b32 v{t1}, 0xffff0000, v{rx+p_}",
                                     f"v_lshlrev_b32 v{r0}, 16, v{r0}", f"v_lshlrev_b32 v{r1}, 16, v{r1}",
                                     f"v_add_f32 v{t0}, v{t0}, v{r0}", f"v_add_f32 v{t1}, v{t1}, v{r1}",
                                     f"v_cvt_pk_bf16_f32 v{t0}, v{t0}, v{t1}",
                                     f"v_lshlrev_b32 v{r0}, 16, v{t0}", f"v_and_b32 v{r1}, 0xffff0000, v{t0}"][k_])
        for b_ in range(4):
            for a_ in range(5):
                ac = ACC + 4*(5*b_ + a_)
                e(f"v_mfma_f32_16x16x32_bf16 a[{ac}:{ac+3}], v[{base+4*a_}:{base+4*a_+3}], v[{base+20+4*b_}:{base+23+4*b_}], a[{ac}:{ac+3}]")
                for _ in range(2):
                    if fill: e(fill.pop(0))
        assert not fill
        if FUSE and m == int(os.environ.get("GS", 8)):
            e("buffer_load_dword v13, v14, s[28:31], s94 offen sc0 sc1")
            pend.append(("g", 0))
        if FUSE and m == int(os.environ.get("GD", 11)):
            if ("g", 0) in pend: wait_for(("g", 0))
            poll(94, int(os.environ.get("FT1", 80)), "fp1", first=False)
            eploads()
        if m + FDEPTH < NST:
            if m + FDEPTH == NST - 1:
                e("s_cmp_ge_u32 s3, 2")
                e("s_cselect_b32 s6, 8192, 0")
                e("v_subrev_u32 v7, s6, v7")
            issue(m + FDEPTH)
    lab("fin_red")
    e("s_nop 15")
    e("s_waitcnt vmcnt(%d)" % (25 if FUSE else 0))
    e("v_lshlrev_b32 v11, 4, v2")
    for w in range(4):
        if w < 3:
            e(f"s_cmp_lg_u32 s3, {w}")
            e(f"s_cbranch_scc1 fin_w{w+1}")
        for b_ in range(4):
            if b_ == w: continue
            slot = w if w < b_ else w - 1
            for a_ in range(5):
                ac = ACC + 4*(5*b_ + a_)
                e(f"ds_write_b128 v11, a[{ac}:{ac+3}] offset:{(b_*3 + slot)*5120 + a_*1024}")
        for r in range(20):
            e(f"v_accvgpr_read_b32 v{16+r}, a{ACC+20*w+r}")
        if w < 3:
            e("s_branch fin_rd")
            lab(f"fin_w{w+1}")
    lab("fin_rd")
    e("s_mul_i32 s6, s3, %d" % (3*5120))
    e("v_add_u32 v11, s6, v11")
    e("s_waitcnt lgkmcnt(0)")
    e("s_barrier")
    for sl in range(3):
        for a_ in range(5):
            r = 36 + 20*sl + 4*a_
            e(f"ds_read_b128 v[{r}:{r+3}], v11 offset:{sl*5120 + a_*1024}")
    for sl in range(3):
        e(f"s_waitcnt lgkmcnt({10-5*sl})")
        if FEP:
            for r in range(0, 20, 2):
                e(f"v_pk_add_f32 v[{16+r}:{17+r}], v[{16+r}:{17+r}], v[{36+20*sl+r}:{37+20*sl+r}]")
            continue
        for r in range(20):
            e(f"v_add_f32 v{16+r}, v{16+r}, v{36+20*sl+r}")
    e("s_waitcnt vmcnt(0)")
    for a_ in range(5):
        rx = EP + 2*a_
        ra = EP + 10 + 4*a_
        if FEP:
            ac = 16 + 4*a_
            for p in range(2): e(f"v_cvt_pk_bf16_f32 v{96+p}, v{ac+2*p}, v{ac+2*p+1}")
            for p in range(2):
                e(f"v_lshlrev_b32 v{98+2*p}, 16, v{96+p}")
                e(f"v_and_b32 v{99+2*p}, 0xffff0000, v{96+p}")
            for p in range(2): e(f"v_pk_add_f32 v[{98+2*p}:{99+2*p}], v[{98+2*p}:{99+2*p}], v[{ra+2*p}:{ra+2*p+1}]")
            for p in range(2): e(f"v_cvt_pk_bf16_f32 v{rx+p}, v{98+2*p}, v{99+2*p}")
        for p in range(2 if not FEP else 0):
            ac = 16 + 4*a_ + 2*p
            e(f"v_lshlrev_b32 v96, 16, v{rx+p}")
            e(f"v_and_b32 v97, 0xffff0000, v{rx+p}")
            e(f"v_lshlrev_b32 v98, 16, v{ra+2*p}")
            e(f"v_lshlrev_b32 v99, 16, v{ra+2*p+1}")
            e(f"v_add_f32 v96, v96, v98")
            e(f"v_add_f32 v97, v97, v99")
            e(f"v_cvt_pk_bf16_f32 v96, v96, v97")
            e(f"v_cvt_pk_bf16_f32 v98, v{ac}, v{ac+1}")
            e(f"v_lshlrev_b32 v100, 16, v96")
            e(f"v_and_b32 v101, 0xffff0000, v96")
            e(f"v_lshlrev_b32 v102, 16, v98")
            e(f"v_and_b32 v103, 0xffff0000, v98")
            e(f"v_add_f32 v100, v100, v102")
            e(f"v_add_f32 v101, v101, v103")
            e(f"v_cvt_pk_bf16_f32 v{rx+p}, v100, v101")
        e(f"buffer_store_dwordx2 v[{rx}:{rx+1}], v9, s[12:15], 0 offen offset:{32*a_}")
    lab("fin_end")
    e("s_endpgm")
    if not FUSE: kernel_desc("fin_kernel", ((EP + 30) + 7)//8*8, agpr=80)

hdr = open("cdna_kernels/%s.s.ref" % NAME).read().split("; Override launch")[0]
text = hdr
text += f"; @launch kernel=prep_kernel grid=({PREP_WGS + (128 if PORD else 0) + (256 if EMU & 2 else 0)},1,1) block=(256,1,1) lds={MID_LDS if EMU & 2 else PREP_LDS}\n"
text += f"; @launch kernel=mid_kernel grid=({MID_WGS},1,1) block=(256,1,1) lds={FIN_LDS if FUSE else MID_LDS}\n"
if not FUSE: text += f"; @launch kernel=fin_kernel grid=({G2_WGS},1,1) block=(256,1,1) lds={FIN_LDS}\n"
text += '.amdgcn_target "amdgcn-amd-amdhsa--gfx950"\n'
gen_prep(); gen_mid(); gen_fin()
_o = []; _in = False
for _l in out:
    if _l.startswith("fin_kernel:"): _in = True
    if _l.strip().startswith("buffer_store") and not _in and "nosc" not in SKIP: _l += " sc1"
    _o.append(_l)
out = _o
text += "\n".join(out) + "\n"
dst = sys.argv[1] if len(sys.argv) > 1 else "cdna_kernels/%s.s" % NAME
open(dst, "w").write(text)
print("wrote", dst, len(text))
```

```python
import sys, os
SKIP = os.environ.get("SKIP", "").split(",")
ORDER = int(os.environ.get("ORDER", 0))
PRIO = int(os.environ.get("PRIO", 3))
W2MID = int(os.environ.get("W2MID", 0))
CONV2 = int(os.environ.get("CONV2", 1))
CV3 = int(os.environ.get("CV3", 1))
FEP = int(os.environ.get("FEP", 1))
PORD = int(os.environ.get("PORD", 0))
MISH2 = int(os.environ.get("MISH2", 2))
DLYC = int(os.environ.get("DLYC", 24))
G1MAP = int(os.environ.get("G1MAP", 1))
FMAP = int(os.environ.get("FMAP", 1))
DLYL = int(os.environ.get("DLYL", 16))
DLYW = int(os.environ.get("DLYW", 24))
EMU = int(os.environ.get("EMU", 1))
KGR = int(os.environ.get("KGR", 0))
W1D = int(os.environ.get("W1D", 0))
FUSE = int(os.environ.get("FUSE", 0))
if FUSE: FEP = 0
SPL = int(os.environ.get("SPL", 0))
if SPL: FUSE = 2; FEP = 0
CSH = int(os.environ.get("CSH", 6))
CVL = 1 if FUSE == 1 else 0
NAME = "parallel_sum__ssm_conv_s4d__dense_activation_mish__prompt"
L, D, N, F = 2048, 640, 128, 1728
WS_XNF = 0x0000000
WS_XNT = 0x0280000
WS_W1F = 0x0500000
WS_W2F = WS_W1F + 2160 * 1024
WS_KR = 0x0A00000
KR_STRIDE = 4224
WS_ACT = 0x0D00000
WS_AT = 0x1400000
WS_CNT = 0x1700000
WS_SIZE = 268435456
LOG2E = 0x3fb8aa3b
INV2PI = 0x3e22f983

out = []
def e(s):
    out.append("    " + s)
def lab(s):
    out.append(s + ":")
def cm(s):
    out.append("    ; " + s)

STAMP = os.environ.get("STAMP")
def stamp_init():
    if not STAMP: return
    e("s_load_dwordx2 s[84:85], s[0:1], 96")
    e("s_waitcnt lgkmcnt(0)")
    e("s_mov_b32 s80, s84"); e("s_and_b32 s81, s85, 0xffff"); e("s_mov_b32 s82, 256"); e("s_mov_b32 s83, 0x00020000")
def stamp(i):
    if not STAMP: return
    e("s_memtime s[86:87]")
    e("s_waitcnt lgkmcnt(0)")
    e(f"s_cmp_lg_u32 s2, {int(STAMP)}")
    e(f"s_cbranch_scc1 st_{stamp.n}")
    e(f"v_mov_b32 v255, s86")
    e(f"v_lshrrev_b32 v254, 6, v0")
    e(f"v_lshlrev_b32 v254, 6, v254")
    e(f"v_add_u32 v254, {4*i}, v254")
    e(f"buffer_store_dword v255, v254, s[80:83], 0 offen")
    lab(f"st_{stamp.n}")
    stamp.n += 1
stamp.n = 0


TL = os.environ.get("TL")
WS_TL = 0x1800000
def tl(i):
    if not TL: return
    e("s_memrealtime s[80:81]")
    e("s_waitcnt lgkmcnt(0)")
    e(f"s_mov_b32 s{84+i}, s80")
def tl_begin():
    if not TL: return
    e("s_mov_b32 s83, s2")
    for i in range(8): e(f"s_mov_b32 s{84+i}, 0")
    tl(0)
def tl_end(kern):
    if not TL: return
    tl(7)
    e("s_getreg_b32 s90, hwreg(HW_REG_HW_ID)")
    e("s_getreg_b32 s80, hwreg(HW_REG_XCC_ID)")
    e("s_and_b32 s90, s90, 0xffff")
    e("s_lshl_b32 s80, s80, 16")
    e("s_or_b32 s90, s90, s80")
    e("s_or_b32 s90, s90, 0x40000000")
    e("s_cmp_lg_u32 s3, 0")
    e(f"s_cbranch_scc1 tle_{tl_end.n}")
    e("s_lshl_b32 s83, s83, 5")
    e(f"s_add_u32 s83, s83, {WS_TL + kern*65536}")
    e("v_mov_b32 v1, 0")
    for i in range(8):
        e(f"v_mov_b32 v0, s{84+i}")
        e(f"buffer_store_dword v0, v1, s[28:31], s83 offen offset:{4*i}")
    lab(f"tle_{tl_end.n}")
    tl_end.n += 1
tl_end.n = 0

def srd(dst, ptr, size):
    e(f"s_mov_b32 s{dst}, s{ptr}")
    e(f"s_and_b32 s{dst+1}, s{ptr+1}, 0xffff")
    e(f"s_mov_b32 s{dst+2}, {size}")
    e(f"s_mov_b32 s{dst+3}, 0x00020000")

def kernel_begin(name):
    out.append(".text")
    out.append(f".globl {name}")
    out.append(".p2align 8")
    out.append(f".type {name},@function")
    lab(name)

def kernel_desc(name, vgpr, sgpr=96, agpr=0):
    if STAMP: vgpr = 256
    out.append('.section .rodata,"a"')
    out.append(".p2align 6")
    out.append(f".amdhsa_kernel {name}")
    out.append(f"  .amdhsa_next_free_vgpr {vgpr + agpr}")
    out.append(f"  .amdhsa_next_free_sgpr {sgpr}")
    out.append(f"  .amdhsa_accum_offset {(vgpr+3)//4*4}")
    out.append("  .amdhsa_group_segment_fixed_size 0")
    out.append("  .amdhsa_kernarg_size 112")
    out.append("  .amdhsa_user_sgpr_count 2")
    out.append("  .amdhsa_user_sgpr_kernarg_segment_ptr 1")
    out.append("  .amdhsa_system_sgpr_workgroup_id_x 1")
    out.append(".end_amdhsa_kernel")


SCL = int(os.environ.get("SCL", 3))
def static_claim():
    e("s_and_b32 s4, s2, 7")
    e("s_lshl_b32 s4, s4, 5")
    e("s_lshr_b32 s2, s2, 3")
    e("s_or_b32 s2, s2, s4")

def signal(sidx, lbl):
    e("s_waitcnt vmcnt(0)")
    e("s_barrier")
    e("s_cmp_lg_u32 s3, 0")
    e(f"s_cbranch_scc1 {lbl}")
    e(f"s_lshl_b32 s6, s{sidx}, {CSH}")
    e("s_add_u32 s6, s6, %d" % WS_CNT)
    e("s_mov_b64 exec, 1")
    e("v_mov_b32 v12, 1")
    e("v_mov_b32 v13, 0")
    e("buffer_atomic_add v12, v13, s[28:31], s6 offen sc1")
    e("s_mov_b64 exec, -1")
    lab(lbl)
def poll(soff, target, lbl, first=True):
    e("s_mov_b32 s91, 0")
    if not first: e(f"s_branch {lbl}_c")
    lab(f"{lbl}_p")
    e(f"buffer_load_dword v13, v14, s[28:31], s{soff} offen sc0 sc1")
    e("s_waitcnt vmcnt(0)")
    lab(f"{lbl}_c")
    e("v_readfirstlane_b32 s92, v13")
    e(f"s_cmp_ge_u32 s92, {target}")
    e(f"s_cbranch_scc1 {lbl}_d")
    e("s_add_u32 s91, s91, 1")
    e("s_cmp_ge_u32 s91, 0x20000")
    e(f"s_cbranch_scc1 {lbl}_d")
    e("s_sleep %d" % (int(os.environ.get("PSL", 2)) if first else int(os.environ.get("PSL2", 32))))
    e(f"s_branch {lbl}_p")
    lab(f"{lbl}_d")

def claim_tile(cnt_off, per, lds_off, lbl):
    e("s_cmp_lg_u32 s3, 0")
    e(f"s_cbranch_scc1 {lbl}_w")
    e("s_getreg_b32 s20, hwreg(HW_REG_XCC_ID)")
    e("s_and_b32 s20, s20, 7")
    e("s_mov_b32 s21, 0")
    e("s_mov_b64 s[22:23], exec")
    e("s_mov_b64 exec, 1")
    e("v_mov_b32 v12, 1")
    lab(f"{lbl}_l")
    e("s_lshl_b32 s24, s20, 6")
    e(f"s_add_u32 s24, s24, {WS_CNT + cnt_off}")
    e("v_mov_b32 v13, 0")
    e("v_mov_b32 v14, v12")
    e("buffer_atomic_add v14, v13, s[28:31], s24 offen sc0" + ("" if "asc" in SKIP else " sc1"))
    e("s_waitcnt vmcnt(0)")
    e("v_readfirstlane_b32 s25, v14")
    e(f"s_cmp_lt_u32 s25, {per}")
    e(f"s_cbranch_scc1 {lbl}_f")
    e("s_add_u32 s20, s20, 1")
    e("s_and_b32 s20, s20, 7")
    e("s_add_u32 s21, s21, 1")
    e("s_cmp_lt_u32 s21, 8")
    e(f"s_cbranch_scc1 {lbl}_l")
    e("s_mov_b32 s25, 0")
    lab(f"{lbl}_f")
    e(f"s_mul_i32 s20, s20, {per}")
    e("s_add_u32 s20, s20, s25")
    e("v_mov_b32 v14, s20")
    e(f"v_mov_b32 v13, {lds_off}")
    e("ds_write_b32 v13, v14")
    e("s_mov_b64 exec, s[22:23]")
    e("s_waitcnt lgkmcnt(0)")
    lab(f"{lbl}_w")
    e("s_barrier")
    e(f"v_mov_b32 v13, {lds_off}")
    e("ds_read_b32 v14, v13")
    e("s_waitcnt lgkmcnt(0)")
    e("v_readfirstlane_b32 s2, v14")

LN_WGS, WT_WGS, KG_WGS = 128, (68 if (W2MID or W1D) else 135), 640
PREP_WGS = KG_WGS + LN_WGS + WT_WGS
KG_LDS_WAVE = 512
KG_TAB0 = 2048
KG_TAB = 2688
KG_FIN = KG_TAB0 + 4*KG_TAB
PREP_LDS = 36864
LNS = 36

def gen_wt(wg0, wv0, wvend, endlab, kern, dly):
    if "wt" in SKIP: e("s_endpgm")
    if PRIO & 2: e("s_setprio 3")
    e("s_load_dwordx2 s[40:41], s[0:1], 64")
    e("s_load_dwordx2 s[42:43], s[0:1], 80")
    e("s_sub_u32 s4, s2, %d" % wg0)
    e("s_lshl_b32 s4, s4, 2")
    e("s_add_u32 s4, s4, s3")
    if wv0: e("s_add_u32 s4, s4, %d" % wv0)
    if wvend:
        e("s_cmp_ge_u32 s4, %d" % wvend)
        e("s_cbranch_scc1 %s" % endlab)
    e("s_waitcnt lgkmcnt(0)")
    e("s_cmp_ge_u32 s4, 270")
    e("s_cselect_b32 s40, s42, s40")
    e("s_cselect_b32 s41, s43, s41")
    e("s_mov_b32 s5, 3456")
    e("s_mov_b32 s7, 159072863")
    e("s_mov_b32 s34, %d" % WS_W1F)
    e("s_cselect_b32 s5, 1280, s5")
    e("s_cselect_b32 s6, 10, 27")
    e("s_cselect_b32 s7, 429496730, s7")
    e("s_cselect_b32 s32, 270, 0")
    e("s_cselect_b32 s33, 108, 40")
    e("s_cselect_b32 s34, %d, s34" % WS_W2F)
    srd(8, 40, D*F*2); srd(28, 56, WS_SIZE)
    e("s_sub_u32 s32, s4, s32")
    e("s_lshl_b32 s32, s32, 2")
    e("v_lshrrev_b32 v3, 3, v2")
    e("v_and_b32 v4, 7, v2")
    e("v_mul_lo_u32 v5, v3, s5")
    e("v_lshl_add_u32 v5, v4, 4, v5")
    e("s_lshl_b32 s35, s5, 3")
    e("s_mul_i32 s36, s3, %d" % (4*16*144))
    e("v_mul_u32_u24 v6, 144, v3")
    e("v_lshl_add_u32 v6, v4, 4, v6")
    e("v_add_u32 v6, s36, v6")
    e("v_and_b32 v7, 31, v2")
    e("v_lshrrev_b32 v8, 5, v2")
    e("v_mul_u32_u24 v8, %d, v8" % (8*144))
    e("v_lshl_add_u32 v8, v7, 1, v8")
    e("v_add_u32 v8, s36, v8")
    e("v_lshlrev_b32 v9, 4, v2")
    if dly: e(f"s_sleep {dly}")
    for q in range(4):
        e(f"s_add_u32 s37, s32, {q}")
        e("s_mul_hi_u32 s38, s37, s7")
        e("s_mul_i32 s39, s38, s6")
        e("s_sub_u32 s39, s37, s39")
        e(f"s_lshl_b32 s44, s38, 4")
        e(f"s_mul_i32 s44, s44, s5")
        e(f"s_lshl_b32 s45, s39, 7")
        e(f"s_add_u32 s44, s44, s45")
        e(f"buffer_load_dwordx4 v[{16+8*q}:{19+8*q}], v5, s[8:11], s44 offen")
        e(f"s_add_u32 s44, s44, s35")
        e(f"buffer_load_dwordx4 v[{20+8*q}:{23+8*q}], v5, s[8:11], s44 offen")
        e(f"s_lshl_b32 s45, s39, 1")
        e(f"s_mul_i32 s45, s45, s33")
        e(f"s_add_u32 s45, s45, s38")
        e(f"s_lshl_b32 s45, s45, 10")
        e(f"s_add_u32 s{48+q}, s45, s34")
    e("s_lshl_b32 s33, s33, 10")
    for q in range(4):
        e(f"s_waitcnt vmcnt({6-2*q})")
        e(f"ds_write_b128 v6, v[{16+8*q}:{19+8*q}] offset:{q*16*144}")
        e(f"ds_write_b128 v6, v[{20+8*q}:{23+8*q}] offset:{q*16*144 + 8*144}")
    tl(1)
    for q in range(4):
        e("s_waitcnt lgkmcnt(0)") if q == 0 else None
        for f in range(2):
            for el in range(8):
                e(f"ds_read_u16 v{48+16*(q&1)*2+16*f+el}, v8 offset:{q*16*144 + el*144 + 64*f}")
        if q > 0:
            pass
        e("s_waitcnt lgkmcnt(0)")
        for f in range(2):
            for j in range(4):
                r = 48 + 16*(q&1)*2 + 16*f
                e(f"v_lshl_or_b32 v{112+4*f+j}, v{r+2*j+1}, 16, v{r+2*j}")
            if f == 0:
                e(f"buffer_store_dwordx4 v[112:115], v9, s[28:31], s{48+q} offen")
            else:
                e(f"s_add_u32 s{48+q}, s{48+q}, s33")
                e(f"buffer_store_dwordx4 v[116:119], v9, s[28:31], s{48+q} offen")
        if q < 3:
            e("s_nop 1")
    tl(5)
    if TL: e("s_waitcnt vmcnt(0)")
    tl_end(kern)

def gen_prep():
    kernel_begin("prep_kernel")
    if EMU & 2:
        e("s_cmp_lt_u32 s2, 256")
        e("s_cbranch_scc1 mid_body")
        e("s_sub_u32 s2, s2, 256")
    if PORD:
        e("s_lshr_b32 s4, s2, 7")
        e("s_cmp_eq_u32 s4, 6")
        e("s_cbranch_scc1 prep_end")
        e("s_cmp_gt_u32 s4, 6")
        e("s_cselect_b32 s4, 128, 0")
        e("s_sub_u32 s2, s2, s4")
    e("s_cmp_ge_u32 s2, %d" % PREP_WGS)
    e("s_cbranch_scc1 prep_end")
    e("s_load_dwordx2 s[56:57], s[0:1], 104")
    e("v_lshrrev_b32 v1, 6, v0")
    e("v_and_b32 v2, 63, v0")
    e("s_nop 0")
    e("v_readfirstlane_b32 s3, v1")
    if ORDER:
        e("s_add_u32 s2, s2, %d" % KG_WGS)
        e("s_cmp_ge_u32 s2, %d" % PREP_WGS)
        e("s_cselect_b32 s4, %d, 0" % PREP_WGS)
        e("s_sub_u32 s2, s2, s4")
    tl_begin()
    e("s_cmp_ge_u32 s2, %d" % (KG_WGS + LN_WGS))
    e("s_cbranch_scc1 prep_wt")
    e("s_cmp_ge_u32 s2, %d" % KG_WGS)
    e("s_cbranch_scc1 prep_ln")
    if "kg" in SKIP: e("s_endpgm")
    e("s_load_dwordx4 s[40:43], s[0:1], 8")
    e("s_load_dwordx4 s[44:47], s[0:1], 24")
    e("s_load_dwordx2 s[48:49], s[0:1], 40")
    e("s_mov_b32 s4, s2")
    e("s_mul_i32 s5, s3, %d" % KG_LDS_WAVE)
    e("s_lshl_b32 s6, s4, 8")
    e("s_lshl_b32 s7, s3, 6")
    e("s_add_u32 s6, s6, s7")
    e("v_and_b32 v3, 31, v2")
    e("v_lshl_add_u32 v3, v3, 1, s6")
    e("s_lshl_b32 s7, s4, 1")
    e("v_mov_b32 v4, s7")
    e("s_waitcnt lgkmcnt(0)")
    srd(8, 40, D*N*2); srd(12, 42, D*N*2); srd(16, 44, D*N*2); srd(20, 46, D*N*2)
    srd(24, 48, D*2); srd(28, 56, WS_SIZE)
    for k, sr in enumerate((8, 12, 16, 20)):
        e(f"buffer_load_ushort v{10+k}, v3, s[{sr}:{sr+3}], 0 offen")
    e("buffer_load_ushort v18, v4, s[24:27], 0 offen")
    e("v_and_b32 v8, 15, v2")
    e("v_lshrrev_b32 v9, 4, v2")
    e("v_and_b32 v24, 7, v8")
    e("v_lshrrev_b32 v25, 3, v8")
    e("v_lshl_add_u32 v28, v25, 7, v24")
    e("v_and_b32 v24, 3, v8")
    e("v_lshlrev_b32 v24, 1, v24")
    e("v_bfe_u32 v25, v8, 2, 1")
    e("v_lshl_add_u32 v24, v25, 7, v24")
    e("v_add_u32 v24, 256, v24")
    e("v_and_b32 v25, 1, v8")
    e("v_lshlrev_b32 v25, 2, v25")
    e("v_bfe_u32 v26, v8, 1, 2")
    e("v_lshl_add_u32 v25, v26, 7, v25")
    e("v_add_u32 v25, 512, v25")
    e("v_cmp_gt_u32 vcc, 8, v8")
    e("s_nop 1")
    e("v_cndmask_b32 v29, v25, v24, vcc")
    e("v_lshlrev_b32 v30, 7, v8")
    e("v_add_u32 v30, 0x400, v30")
    e("v_lshlrev_b32 v31, 3, v8")
    for t in range(4):
        e(f"v_cvt_f32_u32 v{28+t}, v{28+t}")
    e("s_mul_i32 s6, s3, %d" % KG_TAB)
    e("s_add_u32 s6, s6, %d" % KG_TAB0)
    e("v_and_b32 v24, 1, v9")
    e("v_lshrrev_b32 v25, 1, v9")
    e("v_lshl_add_u32 v33, v8, 5, s6")
    e("v_lshl_add_u32 v33, v24, 4, v33")
    e("v_lshl_add_u32 v33, v25, 9, v33")
    e("v_lshlrev_b32 v24, 4, v8")
    e("v_lshlrev_b32 v25, 3, v8")
    e("v_cmp_gt_u32 vcc, 2, v9")
    e("s_nop 1")
    e("v_cndmask_b32 v24, v25, v24, vcc")
    e("v_lshl_add_u32 v24, v9, 8, v24")
    e("v_add_u32 v24, s6, v24")
    e("v_add_u32 v34, 1024, v24")
    e("v_mov_b32 v25, 128")
    e("v_cndmask_b32_e64 v24, v25, 8, vcc")
    e("v_add_u32 v36, v34, v24")
    e("v_lshl_add_u32 v38, v8, 2, s6")
    e("v_lshl_add_u32 v38, v9, 8, v38")
    e("v_add_u32 v38, 2048, v38")
    e("v_lshl_add_u32 v39, v9, 4, s5")
    for r in range(40, 52):
        e(f"v_mov_b32 v{r}, 0")
    e("s_waitcnt vmcnt(0)")
    tl(1)
    for r in (10, 11, 12, 13, 18):
        e(f"v_lshlrev_b32 v{r}, 16, v{r}")
    e(f"v_mul_f32 v18, {LOG2E:#x}, v18")
    e(f"v_mul_f32 v10, {LOG2E:#x}, v10")
    e("v_exp_f32 v18, v18")
    e("v_exp_f32 v10, v10")
    e("s_nop 0")
    e("v_cvt_pk_bf16_f32 v18, v18, v18")
    e("v_cvt_pk_bf16_f32 v10, v10, v10")
    e("v_lshlrev_b32 v18, 16, v18")
    e("v_lshlrev_b32 v10, 16, v10")
    e("v_add_f32 v19, v18, v18")
    e("v_and_b32 v5, 31, v2")
    e("v_lshl_add_u32 v5, v5, 4, s5")
    e("v_mul_f32 v20, v10, v18")
    e(f"v_mul_f32 v20, {LOG2E|0x80000000:#x}, v20")
    e("v_mul_f32 v21, v11, v18")
    e(f"v_mul_f32 v21, {INV2PI:#x}, v21")
    e("v_mul_f32 v22, v12, v19")
    e("v_mul_f32 v23, v13, v19")
    e("ds_write_b128 v5, v[20:23]")
    e("s_waitcnt lgkmcnt(0)")
    for st in range(2 if KGR else 8):
        e(f"ds_read_b128 v[{96+4*st}:{99+4*st}], v39 offset:{64*st}")
    if not KGR: e("s_waitcnt lgkmcnt(0)")
    def kg_valu(st):
        P = 96 + 4*st
        O = 72 + 10*(st & 1)
        v = []
        for t in range(4):
            v.append(f"v_mul_f32 v{52+t}, v{P}, v{28+t}")
            v.append(f"v_mul_f32 v{56+t}, v{P+1}, v{28+t}")
        for t in range(4):
            v.append(f"v_exp_f32 v{52+t}, v{52+t}")
            v.append(f"v_fract_f32 v{56+t}, v{56+t}")
        for t in range(4):
            v.append(f"v_cos_f32 v{60+t}, v{56+t}")
            v.append(f"v_sin_f32 v{64+t}, v{56+t}")
        for t in range(4):
            v.append(f"v_mul_f32 v{60+t}, v{52+t}, v{60+t}")
            v.append(f"v_mul_f32 v{64+t}, v{52+t}, v{64+t}")
        v.append(f"v_mul_f32 v55, v63, v{P+2}")
        v.append(f"v_mul_f32_e64 v59, -v63, v{P+3}")
        v.append(f"v_fma_f32 v55, -v67, v{P+3}, v55")
        v.append(f"v_fma_f32 v59, -v67, v{P+2}, v59")
        if KGR: v.append(f"ds_read_b128 v[{P}:{P+3}], v39 offset:{128 + 64*st}")
        def split(xr, xi, H, Lo, t0, t1):
            v.append(f"v_cvt_pk_bf16_f32 v{H}, v{xr}, v{xi}")
            v.append(f"v_lshlrev_b32 v{t0}, 16, v{H}")
            v.append(f"v_and_b32 v{t1}, 0xffff0000, v{H}")
            v.append(f"v_sub_f32 v{t0}, v{xr}, v{t0}")
            v.append(f"v_sub_f32 v{t1}, v{xi}, v{t1}")
            v.append(f"v_cvt_pk_bf16_f32 v{Lo}, v{t0}, v{t1}")
        split(55, 59, O, O+2, 68, 69)
        v.append(f"v_mov_b32 v{O+1}, v{O}")
        v.append(f"v_mov_b32 v{O+3}, v{O+2}")
        for t in range(3):
            split(60+t, 64+t, O+4+2*t, O+5+2*t, 52+t, 56+t)
        return v
    def kg_mfma(st):
        O = 72 + 10*(st & 1)
        m = []
        for h in range(2):
            for t in range(3):
                a = 40 + 4*t
                m.append(f"v_mfma_f32_16x16x16_bf16 v[{a}:{a+3}], v[{O+4+2*t}:{O+5+2*t}], v[{O+2*h}:{O+2*h+1}], v[{a}:{a+3}]")
        return m
    if KGR:
        for r in range(82, 92): e(f"v_mov_b32 v{r}, 0")
        e("s_mov_b32 s7, 4")
        lab("kg_loop")
    for st in ((0, 1, 2) if KGR else range(9)):
        v = kg_valu(st) if st < (2 if KGR else 8) else []
        m = kg_mfma(st-1) if (st > 0 or KGR) else []
        if KGR and st < 2: e("s_waitcnt lgkmcnt(1)")
        if KGR and st == 2:
            e("v_add_u32 v39, 128, v39")
            e("s_sub_u32 s7, s7, 1")
            e("s_cmp_lg_u32 s7, 0")
            e("s_cbranch_scc1 kg_loop")
        if "kgm" in SKIP: m = []
        if "kgv" in SKIP: v = []
        if not v:
            e("s_nop 1")
        vi = 0
        for mi, mm_ in enumerate(m):
            tgt = 2 + 7*mi
            while vi < min(tgt, len(v)):
                e(v[vi]); vi += 1
            e(mm_)
        while vi < len(v):
            e(v[vi]); vi += 1
    e("s_nop 15")
    tl(2)
    for r in range(4):
        e(f"ds_write_b32 v33, v{40+r} offset:{4*r}")
    e("ds_write_b32 v34, v44")
    e("ds_write_b32 v34, v45 offset:4")
    e("ds_write_b32 v36, v46")
    e("ds_write_b32 v36, v47 offset:4")
    e("s_mov_b32 exec_hi, 0xffff")
    e("ds_write_b32 v38, v48")
    e("s_mov_b32 exec_hi, 0")
    for r in range(1, 4):
        e(f"ds_write_b32 v38, v{48+r} offset:{64*r}")
    e("s_mov_b32 exec_hi, -1")
    e("s_mul_i32 s4, s4, %d" % KR_STRIDE)
    e("s_add_u32 s4, s4, %d" % WS_KR)
    e("v_lshlrev_b32 v39, 4, v0")
    e("v_lshlrev_b32 v64, 3, v0")
    e("v_sub_u32 v64, 2047, v64")
    e("v_lshlrev_b32 v65, 2, v0")
    e("v_lshlrev_b32 v66, 1, v0")
    for k in range(8):
        e(f"v_subrev_u32 v{52+k}, {k}, v64")
        e(f"v_cvt_f32_u32 v{72+k}, v{52+k}")
    for k in range(4):
        e(f"v_cvt_pk_bf16_f32 v{80+k}, v{72+2*k}, v{73+2*k}")
        e(f"v_and_b32 v{72+2*k}, 0xffff, v{80+k}")
        e(f"v_lshrrev_b32 v{73+2*k}, 16, v{80+k}")
    for k in range(8):
        e(f"v_subrev_u32 v{72+k}, 17024, v{72+k}")
        e(f"v_cmp_gt_u32 vcc, 256, v{52+k}")
        e("s_nop 1")
        e(f"v_cndmask_b32 v{52+k}, v{72+k}, v{52+k}, vcc")
        e(f"v_lshlrev_b32 v{52+k}, 1, v{52+k}")
    e("s_waitcnt lgkmcnt(0)")
    e("s_barrier")
    tl(3)
    for m in range(3):
        for ww in range(4):
            e(f"ds_read_b32 v{72+4*m+ww}, v65 offset:{KG_TAB0 + ww*KG_TAB + 1024*m}")
    for m in range(3):
        e(f"s_waitcnt lgkmcnt({8-4*m})")
        e(f"v_add_f32 v{72+4*m}, v{72+4*m}, v{73+4*m}")
        e(f"v_add_f32 v{74+4*m}, v{74+4*m}, v{75+4*m}")
        e(f"v_add_f32 v{72+4*m}, v{72+4*m}, v{74+4*m}")
        e(f"v_cvt_pk_bf16_f32 v{72+4*m}, v{72+4*m}, v{72+4*m}")
        e(f"ds_write_b16 v66, v{72+4*m} offset:{KG_FIN + 512*m}")
    e("s_waitcnt lgkmcnt(0)")
    e("s_barrier")
    tl(4)
    for k in range(8):
        e(f"ds_read_u16 v{96+k}, v{52+k} offset:{KG_FIN}")
    e("s_waitcnt lgkmcnt(0)")
    for k in range(4):
        e(f"v_lshl_or_b32 v{112+k}, v{97+2*k}, 16, v{96+2*k}")
    e(f"buffer_store_dwordx4 v[112:115], v39, s[28:31], s4 offen")
    for k in range(4):
        e(f"v_mov_b32 v{116+k}, 0")
    e("v_cmp_gt_u32 vcc, 8, v0")
    e("s_and_saveexec_b64 s[32:33], vcc")
    e("s_cbranch_execz prep_end")
    e("s_add_u32 s4, s4, 4096")
    e("buffer_store_dwordx4 v[116:119], v39, s[28:31], s4 offen")
    e("v_lshlrev_b32 v39, %d, v0" % CSH)
    tl(5)
    if TL: e("s_waitcnt vmcnt(0)")
    tl_end(0)
    if FUSE or not (EMU & 1 and (SCL & 2 or FMAP >= 2)):
        e("s_cmp_lg_u32 s2, 0")
        e("s_cbranch_scc1 prep_end")
        e("s_mov_b32 s4, %d" % WS_CNT)
        e("buffer_store_dword v116, v39, s[28:31], s4 offen")
        e("s_add_u32 s4, s4, %d" % (8 << CSH))
        e("buffer_store_dword v116, v39, s[28:31], s4 offen")
        e("s_add_u32 s4, s4, %d" % (8 << CSH))
        e("buffer_store_dword v116, v39, s[28:31], s4 offen")
    e("s_endpgm")
    lab("prep_ln")
    if "ln" in SKIP: e("s_endpgm")
    if PRIO & 1: e("s_setprio 3")
    e("s_load_dwordx2 s[40:41], s[0:1], 0")
    e("s_sub_u32 s2, s2, %d" % KG_WGS)
    e("v_and_b32 v3, 15, v0")
    e("v_lshrrev_b32 v4, 4, v0")
    e("s_lshl_b32 s5, s2, 4")
    e("v_add_u32 v5, s5, v4")
    e("v_mul_u32_u24 v6, 1280, v5")
    e("v_lshl_add_u32 v6, v3, 4, v6")
    e("s_waitcnt lgkmcnt(0)")
    srd(8, 40, L*D*2); srd(28, 56, WS_SIZE)
    if DLYL: e(f"s_sleep {DLYL}")
    for j in range(5):
        e(f"buffer_load_dwordx4 v[{16+4*j}:{19+4*j}], v6, s[8:11], 0 offen offset:{256*j}")
    e("s_lshr_b32 s6, s2, 1")
    e("s_mul_i32 s6, s6, %d" % (40*1024))
    e("s_add_u32 s6, s6, %d" % WS_XNF)
    e("v_lshrrev_b32 v7, 1, v3")
    e("v_lshlrev_b32 v7, 10, v7")
    e("v_and_b32 v8, 1, v3")
    e("v_lshl_add_u32 v7, v8, 9, v7")
    e("v_and_b32 v8, 31, v5")
    e("v_lshl_add_u32 v7, v8, 4, v7")
    e(f"v_mul_u32_u24 v9, {8*LNS}, v3")
    e("v_lshl_add_u32 v9, v4, 1, v9")
    e("s_waitcnt vmcnt(0)")
    tl(1)
    for k in range(20):
        e(f"v_lshlrev_b32 v{40+2*k}, 16, v{16+k}")
        e(f"v_and_b32 v{41+2*k}, 0xffff0000, v{16+k}")
    def lane_sum(srcs, acc):
        for a in range(4):
            e(f"v_add_f32 v{acc+a}, v{srcs[a]}, v{srcs[a+4]}")
        for k in range(8, len(srcs)):
            e(f"v_add_f32 v{acc+(k%4)}, v{acc+(k%4)}, v{srcs[k]}")
        e(f"v_add_f32 v{acc}, v{acc}, v{acc+1}")
        e(f"v_add_f32 v{acc+2}, v{acc+2}, v{acc+3}")
        e(f"v_add_f32 v{acc}, v{acc}, v{acc+2}")
        for sh in (8, 4, 2, 1):
            e("s_nop 1")
            e(f"v_add_f32_dpp v{acc}, v{acc}, v{acc} row_ror:{sh} row_mask:0xf bank_mask:0xf")
    lane_sum(list(range(40, 80)), 10)
    e("v_mul_f32 v14, 0x3acccccd, v10")
    for k in range(40):
        e(f"v_sub_f32 v{80+k}, v{40+k}, v14")
        e(f"v_mul_f32 v{80+k}, v{80+k}, v{80+k}")
    lane_sum(list(range(80, 120)), 10)
    e("v_mul_f32 v10, 0x3acccccd, v10")
    e("v_cvt_pk_bf16_f32 v10, v10, v14")
    e("v_and_b32 v14, 0xffff0000, v10")
    e("v_lshlrev_b32 v10, 16, v10")
    e("v_add_f32 v10, 0x3727c5ac, v10")
    e("v_cvt_pk_bf16_f32 v10, v10, v10")
    e("v_lshlrev_b32 v10, 16, v10")
    e("v_sqrt_f32 v10, v10")
    e("s_nop 0")
    e("v_cvt_pk_bf16_f32 v10, v10, v10")
    e("v_lshlrev_b32 v10, 16, v10")
    e("v_rcp_f32 v11, v10")
    e("s_nop 0")
    e("v_fma_f32 v12, -v10, v11, 2.0")
    e("v_mul_f32 v11, v11, v12")
    for k in range(20):
        e(f"v_sub_f32 v{40+2*k}, v{40+2*k}, v14")
        e(f"v_sub_f32 v{41+2*k}, v{41+2*k}, v14")
        e(f"v_cvt_pk_bf16_f32 v{16+k}, v{40+2*k}, v{41+2*k}")
        e(f"v_lshlrev_b32 v{40+2*k}, 16, v{16+k}")
        e(f"v_and_b32 v{41+2*k}, 0xffff0000, v{16+k}")
        e(f"v_mul_f32 v{40+2*k}, v{40+2*k}, v11")
        e(f"v_mul_f32 v{41+2*k}, v{41+2*k}, v11")
        e(f"v_cvt_pk_bf16_f32 v{16+k}, v{40+2*k}, v{41+2*k}")
    tl(2)
    for j in range(5):
        if "xnf" not in SKIP: e(f"buffer_store_dwordx4 v[{16+4*j}:{19+4*j}], v7, s[28:31], s6 offen")
        if j < 4: e("s_add_u32 s6, s6, 8192")
    for j in range(5):
        for el in range(8):
            r = 16 + 4*j + el//2
            op = "ds_write_b16_d16_hi" if el & 1 else "ds_write_b16"
            e(f"{op} v9, v{r} offset:{(128*j + el)*LNS}")
    e("v_lshrrev_b32 v10, 1, v0")
    e("v_and_b32 v11, 1, v0")
    e(f"v_mul_u32_u24 v12, {LNS}, v10")
    e("v_lshl_add_u32 v12, v11, 4, v12")
    e("v_lshlrev_b32 v13, 4, v0")
    e("s_mul_i32 s6, s2, 20480")
    e("s_add_u32 s6, s6, %d" % WS_XNT)
    e("s_waitcnt lgkmcnt(0)")
    e("s_barrier")
    tl(3)
    for j in range(5):
        e(f"ds_read2_b32 v[{40+4*j}:{41+4*j}], v12 offset0:{(128*j*LNS)//4 % 256} offset1:{(128*j*LNS)//4 % 256 + 1}")
        e(f"ds_read2_b32 v[{42+4*j}:{43+4*j}], v12 offset0:{(128*j*LNS)//4 % 256 + 2} offset1:{(128*j*LNS)//4 % 256 + 3}")
        if j < 4:
            nxt = (128*(j+1)*LNS)//4 // 256 - (128*j*LNS)//4 // 256
            e(f"v_add_u32 v12, {nxt*1024}, v12")
    for j in range(5):
        e(f"s_waitcnt lgkmcnt({2*(4-j)})")
        if "xnt" not in SKIP: e(f"buffer_store_dwordx4 v[{40+4*j}:{43+4*j}], v13, s[28:31], s6 offen")
        if j < 4: e("s_add_u32 s6, s6, %d" % (128*32))
    tl(5)
    if TL: e("s_waitcnt vmcnt(0)")
    tl_end(0)
    e("s_endpgm")
    lab("prep_wt")
    if W1D: gen_wt(KG_WGS + LN_WGS, 270, 540, "prep_end", 0, DLYW)
    else: gen_wt(KG_WGS + LN_WGS, 0, 270 if W2MID else 0, "prep_end", 0, DLYW)
    lab("prep_end")
    e("s_endpgm")
    kernel_desc("prep_kernel", 160 if EMU & 4 else 128)

G1_WGS = 256
CV_WGS = int(os.environ.get("NCV", 256)) if CVL else 640
W2_WGS = 68 if W2MID else 0
MID_WGS = G1_WGS + CV_WGS + W2_WGS
CS = 4160
def CB(c): return c*CS + (32 if c >= 4 else 0)
UB = CB(7) + CS - 80
G1_NS, G1_BD = int(os.environ.get('G1NS', 5)), int(os.environ.get('G1BD', 4))
MID_LDS = max(40960, 7168*G1_NS)

def mish_pairs(acc0, acc1, b0, b1r, dst, t):
    e(f"v_cvt_pk_bf16_f32 v{t}, v{acc0}, v{acc1}")
    e(f"v_lshlrev_b32 v{t+1}, 16, v{t}")
    e(f"v_and_b32 v{t+2}, 0xffff0000, v{t}")
    e(f"v_add_f32 v{t+1}, v{t+1}, v{b0}")
    e(f"v_add_f32 v{t+2}, v{t+2}, v{b1r}")
    e(f"v_cvt_pk_bf16_f32 v{t}, v{t+1}, v{t+2}")
    e(f"v_lshlrev_b32 v{t+1}, 16, v{t}")
    e(f"v_and_b32 v{t+2}, 0xffff0000, v{t}")
    if MISH2:
        e(f"v_mul_f32 v{t+3}, {LOG2E:#x}, v{t+1}")
        e(f"v_mul_f32 v{t+4}, {LOG2E:#x}, v{t+2}")
        e(f"v_exp_f32 v{t+3}, v{t+3}")
        e(f"v_exp_f32 v{t+4}, v{t+4}")
        e(f"s_nop 0")
        e(f"v_add_f32 v{t+3}, 1.0, v{t+3}")
        e(f"v_add_f32 v{t+4}, 1.0, v{t+4}")
        e(f"v_fmaak_f32 v{t+3}, v{t+3}, v{t+3}, 0x3f800000")
        e(f"v_fmaak_f32 v{t+4}, v{t+4}, v{t+4}, 0x3f800000")
        e(f"v_rcp_f32 v{t+3}, v{t+3}")
        e(f"v_rcp_f32 v{t+4}, v{t+4}")
        e(f"s_nop 0")
        e(f"v_fmaak_f32 v{t+3}, -2.0, v{t+3}, 0x3f800000")
        e(f"v_fmaak_f32 v{t+4}, -2.0, v{t+4}, 0x3f800000")
        e(f"v_mul_f32 v{t+1}, v{t+1}, v{t+3}")
        e(f"v_mul_f32 v{t+2}, v{t+2}, v{t+4}")
    else:
        e(f"v_min_f32 v{t+3}, 0x41a00000, v{t+1}")
        e(f"v_min_f32 v{t+4}, 0x41a00000, v{t+2}")
        e(f"v_mul_f32 v{t+3}, {LOG2E:#x}, v{t+3}")
        e(f"v_mul_f32 v{t+4}, {LOG2E:#x}, v{t+4}")
        e(f"v_exp_f32 v{t+3}, v{t+3}")
        e(f"v_exp_f32 v{t+4}, v{t+4}")
        e(f"s_nop 0")
        e(f"v_add_f32 v{t}, 2.0, v{t+3}")
        e(f"v_add_f32 v{t+5}, 2.0, v{t+4}")
        e(f"v_mul_f32 v{t+3}, v{t+3}, v{t}")
        e(f"v_mul_f32 v{t+4}, v{t+4}, v{t+5}")
        e(f"v_add_f32 v{t}, 2.0, v{t+3}")
        e(f"v_add_f32 v{t+5}, 2.0, v{t+4}")
        e(f"v_rcp_f32 v{t}, v{t}")
        e(f"v_rcp_f32 v{t+5}, v{t+5}")
        e(f"v_mul_f32 v{t+1}, v{t+1}, v{t+3}")
        e(f"v_mul_f32 v{t+2}, v{t+2}, v{t+4}")
        e(f"v_mul_f32 v{t+1}, v{t+1}, v{t}")
        e(f"v_mul_f32 v{t+2}, v{t+2}, v{t+5}")
    e(f"v_cvt_pk_bf16_f32 v{dst}, v{t+1}, v{t+2}")

def mish_quad(ac, T, dst):
    H = [T+4, T+8]; E = [T+6, T+10]; P = [T+12, T+13]
    pr = lambda r: f"v[{r}:{r+1}]"
    for q in range(2): e(f"v_cvt_pk_bf16_f32 v{P[q]}, v{ac+2*q}, v{ac+2*q+1}")
    for q in range(2):
        e(f"v_lshlrev_b32 v{H[q]}, 16, v{P[q]}")
        e(f"v_and_b32 v{H[q]+1}, 0xffff0000, v{P[q]}")
    for q in range(2): e(f"v_pk_add_f32 {pr(H[q])}, {pr(H[q])}, {pr(T+2*q)}")
    for q in range(2): e(f"v_cvt_pk_bf16_f32 v{P[q]}, v{H[q]}, v{H[q]+1}")
    for q in range(2):
        e(f"v_lshlrev_b32 v{H[q]}, 16, v{P[q]}")
        e(f"v_and_b32 v{H[q]+1}, 0xffff0000, v{P[q]}")
    for q in range(2): e(f"v_pk_mul_f32 {pr(E[q])}, {pr(H[q])}, s[46:47]")
    for q in range(2):
        e(f"v_exp_f32 v{E[q]}, v{E[q]}")
        e(f"v_exp_f32 v{E[q]+1}, v{E[q]+1}")
    for q in range(2): e(f"v_pk_add_f32 {pr(E[q])}, {pr(E[q])}, v[40:41]")
    for q in range(2): e(f"v_pk_fma_f32 {pr(E[q])}, {pr(E[q])}, {pr(E[q])}, v[40:41]")
    for q in range(2):
        e(f"v_rcp_f32 v{E[q]}, v{E[q]}")
        e(f"v_rcp_f32 v{E[q]+1}, v{E[q]+1}")
    for q in range(2): e(f"v_pk_fma_f32 {pr(E[q])}, {pr(E[q])}, v[42:43], v[40:41]")
    for q in range(2): e(f"v_pk_mul_f32 {pr(H[q])}, {pr(H[q])}, {pr(E[q])}")
    for q in range(2): e(f"v_cvt_pk_bf16_f32 v{dst+q}, v{H[q]}, v{H[q]+1}")

def gemm_loop(nA, nsteps, KS, NS, frag_reg, acc_reg, voff, srdws, sA0, sB0, stride, spiece, vlds_r_b, vlds_r_lane):
    nR = nA + 4
    npieces = nR * KS
    npw = (npieces + 3) // 4
    SZ = npieces * 1024
    nchunks = nsteps // KS
    assert nsteps % KS == 0
    e(f"s_sub_u32 s{sB0}, s{sB0}, {nA*stride}")
    for i in range(npw):
        g, l = spiece + 2*i, spiece + 2*i + 1
        e(f"s_add_u32 s{l}, s3, {4*i}")
        e(f"s_min_u32 s{l}, s{l}, {npieces-1}")
        sh = {1: 0, 2: 1, 4: 2}[KS]
        e(f"s_lshr_b32 s{g}, s{l}, {sh}")
        e(f"s_cmp_lt_u32 s{g}, {nA}")
        e(f"s_cselect_b32 s6, s{sA0}, s{sB0}")
        e(f"s_mul_i32 s{g}, s{g}, {stride}")
        e(f"s_add_u32 s{g}, s{g}, s6")
        e(f"s_and_b32 s6, s{l}, {KS-1}")
        e(f"s_lshl_b32 s6, s6, 10")
        e(f"s_add_u32 s{g}, s{g}, s6")
        e(f"s_lshl_b32 s{l}, s{l}, 10")
    def dma(c):
        slot = c % NS
        for i in range(npw):
            e(f"s_add_u32 m0, s{spiece+2*i+1}, {slot*SZ}")
            e("s_nop 0")
            e(f"buffer_load_dwordx4 v{voff}, s[{srdws}:{srdws+3}], s{spiece+2*i} offen lds")
        e(f"v_add_u32 v{voff}, {KS*1024}, v{voff}")
    per = nA + 1
    HALF = 2*SZ
    e(f"v_add_u32 v12, {HALF}, v{vlds_r_b}")
    e(f"v_add_u32 v13, {HALF}, v{vlds_r_lane}")
    e(f"v_add_u32 v14, {2*HALF}, v{vlds_r_b}")
    e(f"v_add_u32 v15, {2*HALF}, v{vlds_r_lane}")
    def reads(slot, q):
        fr = frag_reg + 4*per*q
        vb, vl, so = [(vlds_r_b, vlds_r_lane, slot*SZ), (12, 13, slot*SZ - HALF), (14, 15, slot*SZ - 2*HALF)][slot//2]
        e(f"ds_read_b128 v[{fr}:{fr+3}], v{vb} offset:{so + q*1024}")
        for a in range(nA):
            e(f"ds_read_b128 v[{fr+4+4*a}:{fr+7+4*a}], v{vl} offset:{so + a*KS*1024 + q*1024}")
    def mfmas(q):
        fr = frag_reg + 4*per*q
        for a in range(nA):
            ac = acc_reg + 16*a
            e(f"v_mfma_f32_32x32x16_bf16 v[{ac}:{ac+15}], v[{fr+4+4*a}:{fr+7+4*a}], v[{fr}:{fr+3}], v[{ac}:{ac+15}]")
    for c in range(min(NS-1, nchunks)):
        dma(c)
    for c in range(nchunks):
        inflight = min(NS-2, nchunks-1-c)
        e(f"s_waitcnt vmcnt({inflight*npw})")
        e("s_barrier")
        if nA == 2 and c == 0: stamp(2)
        if nA == 2 and c == 1: stamp(3)
        slot = c % NS
        if "rd" not in SKIP:
            for q in range(KS):
                reads(slot, q)
        if c + NS - 1 < nchunks and "dma" not in SKIP:
            dma(c + NS - 1)
        for q in range(KS):
            e(f"s_waitcnt lgkmcnt({(KS-1-q)*per})")
            if "mf" not in SKIP: mfmas(q)


UB2 = CB(7) + CS
HS = 2432
def gen_conv2():
    if "cv" in SKIP: e("s_endpgm")
    if PRIO & 8: e("s_setprio 3")
    srd(8, 60, D*2)
    def dmap(si):
        e(f"s_and_b32 s5, s{si}, 7")
        e("s_lshl_b32 s5, s5, 2")
        e(f"s_bfe_u32 s6, s{si}, 0x20003")
        e("s_or_b32 s5, s5, s6")
        e(f"s_andn2_b32 s4, s{si}, 31")
        e("s_or_b32 s4, s4, s5")
    def cvload():
        dmap(95)
        e("s_lshl_b32 s5, s4, 1")
        e("v_mov_b32 v144, s5")
        e("buffer_load_ushort v128, v144, s[8:11], 0 offen")
        e("s_lshl_b32 s5, s4, 5")
        e("s_add_u32 s5, s5, %d" % WS_XNT)
        e("buffer_load_dwordx4 v[132:135], v145, s[28:31], s5 offen")
        e("s_mul_i32 s6, s4, %d" % KR_STRIDE)
        e("s_add_u32 s6, s6, %d" % WS_KR)
        e("buffer_load_dwordx4 v[136:139], v146, s[28:31], s6 offen")
        e("buffer_load_dwordx4 v[140:143], v146, s[28:31], s6 offen offset:16")
    if CVL:
        e("s_sub_u32 s95, s2, %d" % G1_WGS)
        e("s_mov_b32 s89, -1")
        e("v_lshrrev_b32 v145, 1, v0")
        e("v_mul_u32_u24 v145, 20480, v145")
        e("v_and_b32 v146, 1, v0")
        e("v_lshl_add_u32 v145, v146, 4, v145")
        e("v_lshlrev_b32 v146, 4, v0")
        if DLYC: e(f"s_sleep {DLYC}")
        cvload()
        e("s_waitcnt vmcnt(0)")
        lab("cv_loop")
        e("s_waitcnt vmcnt(2)")
        e("v_mov_b32 v1, v128")
        for r in range(12): e(f"v_mov_b32 v{8+r}, v{132+r}")
        e("s_mov_b32 s93, s95")
        e("s_add_u32 s95, s95, %d" % CV_WGS)
        e("s_cmp_ge_u32 s95, 640")
        e("s_cbranch_scc1 cv_nl")
        cvload()
        lab("cv_nl")
        dmap(93)
        e("s_mov_b32 s93, s4")
        e("v_lshlrev_b32 v4, 4, v0")
    else:
        e("s_sub_u32 s4, s2, %d" % G1_WGS)
        e("s_and_b32 s5, s4, 7")
        e("s_lshl_b32 s5, s5, 2")
        e("s_bfe_u32 s6, s4, 0x20003")
        e("s_or_b32 s5, s5, s6")
        e("s_andn2_b32 s4, s4, 31")
        e("s_or_b32 s4, s4, s5")
        if FUSE: e("s_mov_b32 s93, s4")
        e("s_lshl_b32 s5, s4, 1")
        e("v_mov_b32 v3, s5")
        if DLYC: e(f"s_sleep {DLYC}")
        e("buffer_load_ushort v1, v3, s[8:11], 0 offen")
        e("s_lshl_b32 s5, s4, 5")
        e("s_add_u32 s5, s5, %d" % WS_XNT)
        e("v_lshrrev_b32 v4, 1, v0")
        e("v_mul_u32_u24 v4, 20480, v4")
        e("v_and_b32 v5, 1, v0")
        e("v_lshl_add_u32 v4, v5, 4, v4")
        e("buffer_load_dwordx4 v[8:11], v4, s[28:31], s5 offen")
        e("v_lshlrev_b32 v4, 4, v0")
        e("s_mul_i32 s6, s4, %d" % KR_STRIDE)
        e("s_add_u32 s6, s6, %d" % WS_KR)
        e("buffer_load_dwordx4 v[12:15], v4, s[28:31], s6 offen")
        e("buffer_load_dwordx4 v[16:19], v4, s[28:31], s6 offen offset:16")
    if not CV3:
        e("v_min_u32 v5, 3, v0")
        e("v_lshlrev_b32 v5, 4, v5")
        e("v_add_u32 v5, 4096, v5")
        e("buffer_load_dwordx4 v[20:23], v5, s[28:31], s6 offen")
        e("buffer_load_dwordx4 v[24:27], v5, s[28:31], s6 offen offset:16")
    for k in range(4):
        e(f"v_mov_b32 v{28+k}, 0")
    e("v_min_u32 v6, 31, v0")
    e("v_lshrrev_b32 v7, 4, v6")
    e("v_and_b32 v6, 15, v6")
    e("v_lshlrev_b32 v6, 4, v6")
    e(f"v_mad_u32_u24 v6, v7, {HS}, v6") if False else (e(f"v_mul_u32_u24 v7, {HS}, v7"), e("v_add_u32 v6, v6, v7"))
    if CV3:
        e("s_cmp_lg_u32 s3, 0")
        e("s_cbranch_scc1 cv_nz")
        e(f"v_add_u32 v6, {UB2}, v6")
        e("v_subrev_u32 v7, 32, v0")
        e("v_min_u32 v7, 7, v7")
        e("v_lshrrev_b32 v5, 2, v7")
        e(f"v_mul_u32_u24 v7, {CS}, v7")
        e("v_lshl_add_u32 v7, v5, 5, v7")
        e("v_add_u32 v7, 4096, v7")
        e("v_cmp_gt_u32 vcc, 32, v0")
        e("s_nop 1")
        e("v_cndmask_b32 v6, v7, v6, vcc")
        e("s_mov_b32 exec_hi, 0xff")
        e("ds_write_b128 v6, v[28:31]")
        e("s_mov_b32 exec_hi, -1")
        lab("cv_nz")
    else:
        e(f"ds_write_b128 v6, v[28:31] offset:{UB2}")
    e("v_lshrrev_b32 v6, 1, v0")
    e("v_lshlrev_b32 v6, 4, v6")
    e("v_and_b32 v7, 1, v0")
    e(f"v_mul_u32_u24 v7, {HS}, v7")
    e("v_add_u32 v6, v6, v7")
    if not CVL: e("s_waitcnt vmcnt(%d)" % (2 if CV3 else 4))
    e(f"ds_write_b128 v6, v[8:11] offset:{UB2 + 256}")
    def copies(w, vaddr):
        for c in range(8):
            if c % 2 == 0:
                e(f"ds_write_b128 v{vaddr}, v[{w+c//2}:{w+c//2+3}] offset:{CB(c)}") if (w + c//2) % 2 == 0 else None
                if (w + c//2) % 2:
                    for j in range(4):
                        e(f"v_mov_b32 v{32+j}, v{w+c//2+j}")
                    e(f"ds_write_b128 v{vaddr}, v[32:35] offset:{CB(c)}")
            else:
                for j in range(4):
                    e(f"v_alignbit_b32 v{36+j}, v{w+(c+1)//2+j}, v{w+(c-1)//2+j}, 16")
                e(f"ds_write_b128 v{vaddr}, v[36:39] offset:{CB(c)}")
    if not CVL: e("s_waitcnt vmcnt(%d)" % (0 if CV3 else 2))
    tl(1)
    copies(12, 4)
    if not CV3:
        e("s_waitcnt vmcnt(0)")
        copies(20, 5)
    e("v_and_b32 v3, 15, v2")
    e("v_lshrrev_b32 v4, 4, v2")
    e("v_sub_u32 v5, 7, v3")
    e("v_and_b32 v5, 7, v5")
    e("v_sub_u32 v6, 2031, v3")
    e("v_lshl_add_u32 v6, v4, 3, v6")
    e("v_sub_u32 v6, v6, v5")
    e("v_mul_u32_u24 v7, %d, v5" % CS)
    e("v_lshrrev_b32 v8, 2, v5")
    e("v_lshl_add_u32 v7, v8, 5, v7")
    e("v_lshl_add_u32 v6, v6, 1, v7")
    e("s_lshl_b32 s5, s3, 7")
    e(f"s_add_u32 s5, s5, {64 + 3584}")
    e("v_subrev_u32 v8, s5, v6")
    e("v_and_b32 v5, 1, v4")
    e("v_lshrrev_b32 v6, 1, v4")
    e(f"v_mul_u32_u24 v7, {HS}, v5")
    e("v_add_u32 v9, v3, v6")
    e("v_lshl_add_u32 v9, v9, 4, v7")
    e("s_lshl_b32 s5, s3, 6")
    e(f"s_sub_u32 s5, {UB2 + 16*15 - 32}, s5")
    e("v_add_u32 v9, s5, v9")
    e(f"v_mul_u32_u24 v11, {HS}, v6")
    e("v_lshl_add_u32 v11, v3, 4, v11")
    e("v_lshl_add_u32 v11, v5, 3, v11")
    e("s_lshl_b32 s5, s3, 9")
    e("v_add_u32 v11, s5, v11")
    e("v_lshlrev_b32 v12, 5, v3")
    e("v_lshl_add_u32 v12, v4, 3, v12")
    e("v_lshlrev_b32 v10, 4, v2")
    e("s_lshl_b32 s5, s3, 13")
    e("v_add_u32 v13, s5, v10")
    e("s_lshl_b32 s5, s3, 10")
    e("v_add_u32 v10, s5, v10")
    for r in range(16, 48):
        e(f"v_mov_b32 v{r}, 0")
    e("s_waitcnt lgkmcnt(0)")
    tl(2)
    if CVL:
        e("s_waitcnt vmcnt(4)")
        e("s_cmp_lt_u32 s95, 640")
        e("s_cbranch_scc1 cv_b1")
        e("s_waitcnt vmcnt(0)")
        lab("cv_b1")
    e("s_barrier")
    if CVL:
        e("s_cmp_lg_u32 s3, 0")
        e("s_cbranch_scc1 cv_s1")
        e("s_cmp_eq_u32 s89, -1")
        e("s_cbranch_scc1 cv_s1")
        e("s_mov_b64 exec, 1")
        e("v_mov_b32 v147, 1")
        e("v_mov_b32 v148, 0")
        e("buffer_atomic_add v147, v148, s[28:31], s89 offen sc1")
        e("s_mov_b64 exec, -1")
        lab("cv_s1")
    tl(3)
    free = list(range(48, 128, 4))
    loc = {}
    pend = []
    order = [("A",0),("B",7),("B",0),("A",7),("A",1),("B",6),("B",1),("A",6),("A",2),("B",5),("B",2),("A",5),("A",3),("B",4),("B",3),("A",4)]
    todo = [(st,) + o for st in range(2) for o in order]
    def rd(n):
        for _ in range(n):
            if not todo or not free or len(pend) >= 15: return
            key = todo.pop(0); r = free.pop(0); loc[key] = r
            st, ab, i = key
            if ab == "A": e(f"ds_read_b128 v[{r}:{r+3}], v8 offset:{512*(7-i) + 64*(1-st)}")
            else: e(f"ds_read_b128 v[{r}:{r+3}], v9 offset:{256*i + 32*(1-st)}")
            pend.append(key)
    def need(keys):
        idx = [pend.index(k) for k in keys if k in pend]
        if idx:
            last = max(idx)
            e(f"s_waitcnt lgkmcnt({len(pend) - 1 - last})")
            del pend[:last+1]
    groups = []
    for s_ in (7, 6, 5, 4, 3, 2, 1, 0):
        n = min(s_, 7 - s_)
        g = [(s_, m) for m in range(n + 1)] + [(j, s_) for j in range(min(s_ - 1, 7 - s_) + 1)]
        groups.append((s_, g))
    assert sum(len(g) for _, g in groups) == 36
    rd(20)
    for st in range(2):
        for s_, g in groups:
            need([(st, "B", j) for j, m in g] + [(st, "A", m) for j, m in g])
            for j, m in g:
                ac = 16 + 4*(j + m); a = loc[(st, "A", m)]; b = loc[(st, "B", j)]
                e(f"v_mfma_f32_16x16x32_bf16 v[{ac}:{ac+3}], v[{a}:{a+3}], v[{b}:{b+3}], v[{ac}:{ac+3}]")
            free.append(loc[(st, "A", s_)]); free.append(loc[(st, "B", s_)])
            rd(8)
    assert not todo and not pend
    tl(4)
    e("s_nop 15")
    e("s_barrier")
    for t in range(8):
        if CV3 & 2 and t % 2 == 0:
            e(f"s_cmp_eq_u32 s3, {t//2}")
            e(f"s_cbranch_scc1 cv_sk{t//2}")
        e(f"ds_write_b128 v10, v[{16+4*t}:{19+4*t}] offset:{4096*t}")
        if CV3 & 2 and t % 2 == 1:
            e(f"s_branch cv_nx{t//2}")
            lab(f"cv_sk{t//2}")
            for tt in range(2):
                for r in range(4):
                    e(f"v_mov_b32 v{48+16*tt+r}, v{16+4*(t-1+tt)+r}")
            lab(f"cv_nx{t//2}")
    if CV3 & 2:
        for i in range(1, 4):
            e(f"s_add_u32 s5, s3, {i}")
            e("s_and_b32 s5, s5, 3")
            e("s_lshl_b32 s5, s5, 10")
            e(f"v_add_u32 v{4+i}, s5, v13")
    for tt in range(2):
        e(f"ds_read_b64 v[{80+2*tt}:{81+2*tt}], v11 offset:{UB2 + 256 + 256*tt}")
    e("s_lshl_b32 s5, s4, 12")
    e("s_lshl_b32 s6, s3, 10")
    e("s_add_u32 s5, s5, s6")
    e("s_add_u32 s5, s5, %d" % WS_AT)
    e("v_lshlrev_b32 v1, 16, v1")
    e("s_waitcnt lgkmcnt(0)")
    e("s_barrier")
    for i in range(8):
        if CV3 & 2:
            if i % 4: e(f"ds_read_b128 v[{48+4*i}:{51+4*i}], v{4+i%4} offset:{4096*(i//4)}")
        else:
            e(f"ds_read_b128 v[{48+4*i}:{51+4*i}], v13 offset:{1024*i}")
    for tt in range(2):
        for p_ in range(2):
            u = 80 + 2*tt + p_
            e(f"v_lshlrev_b32 v84, 16, v{u}")
            e(f"v_and_b32 v85, 0xffff0000, v{u}")
            e(f"v_mul_f32 v84, v84, v1")
            e(f"v_mul_f32 v85, v85, v1")
            e(f"v_cvt_pk_bf16_f32 v84, v84, v85")
            e(f"v_lshlrev_b32 v{88+4*tt+2*p_}, 16, v84")
            e(f"v_and_b32 v{89+4*tt+2*p_}, 0xffff0000, v84")
    for tt in range(2):
        e(f"s_waitcnt lgkmcnt({(3 - 3*tt) if CV3 & 2 else (4 - 4*tt)})")
        b0 = 48 + 16*tt
        for r in range(4):
            e(f"v_add_f32 v{b0+r}, v{b0+r}, v{b0+4+r}")
            e(f"v_add_f32 v{b0+8+r}, v{b0+8+r}, v{b0+12+r}")
        for r in range(4):
            e(f"v_add_f32 v{b0+r}, v{b0+r}, v{b0+8+r}")
        for p_ in range(2):
            e(f"v_cvt_pk_bf16_f32 v84, v{b0+2*p_}, v{b0+2*p_+1}")
            e(f"v_lshlrev_b32 v85, 16, v84")
            e(f"v_and_b32 v86, 0xffff0000, v84")
            e(f"v_add_f32 v85, v85, v{88+4*tt+2*p_}")
            e(f"v_add_f32 v86, v86, v{89+4*tt+2*p_}")
            e(f"v_cvt_pk_bf16_f32 v{96+2*tt+p_}, v85, v86")
        e(f"buffer_store_dwordx2 v[{96+2*tt}:{97+2*tt}], v12, s[28:31], s5 offen offset:{512*tt}")
    if FUSE:
        e("s_mul_i32 s7, s93, 205")
        e("s_lshr_b32 s7, s7, 14")
        e("s_add_u32 s7, s7, 16")
        if CVL:
            e("s_lshl_b32 s89, s7, 6")
            e("s_add_u32 s89, s89, %d" % WS_CNT)
            e("s_cmp_ge_u32 s95, 640")
            e("s_cbranch_scc1 cv_last")
            e("s_barrier")
            e("s_branch cv_loop")
            lab("cv_last")
        signal(7, "cv_sig")
    tl(5)
    if TL: e("s_waitcnt vmcnt(0)")
    tl_end(1)

def gen_mid():
    kernel_begin("mid_kernel")
    e("s_cmp_ge_u32 s2, %d" % (MID_WGS - SPL))
    e("s_cbranch_scc1 mid_end")
    if EMU & 2:
        e("s_cmp_lt_u32 s2, 256")
        e("s_cbranch_scc1 mid_end")
    lab("mid_body")
    if FUSE: e("s_mov_b32 s90, s2")
    tl_begin()
    e("s_load_dwordx2 s[56:57], s[0:1], 104")
    e("s_load_dwordx2 s[58:59], s[0:1], 72")
    e("s_load_dwordx2 s[60:61], s[0:1], 48")
    if W1D: e("s_load_dwordx2 s[62:63], s[0:1], 64")
    e("v_lshrrev_b32 v1, 6, v0")
    e("v_and_b32 v2, 63, v0")
    e("s_nop 0")
    e("v_readfirstlane_b32 s3, v1")
    e("s_waitcnt lgkmcnt(0)")
    srd(28, 56, WS_SIZE)
    if W2MID:
        e("s_cmp_ge_u32 s2, %d" % (G1_WGS + CV_WGS))
        e("s_cbranch_scc1 mid_wt")
    e("s_cmp_ge_u32 s2, %d" % G1_WGS)
    e("s_cbranch_scc1 mid_conv")
    if "g1" in SKIP: e("s_endpgm")
    if PRIO & 4: e("s_setprio 3")
    srd(8, 58, F*2)
    if W1D: srd(12, 62, D*F*2)
    tl(1)
    if not EMU & 1: claim_tile(0, 32, 7168*G1_NS, "mcl")
    elif SCL & 1: static_claim()
    tl(2)
    if G1MAP == 0:
        e("s_lshr_b32 s5, s2, 4")
        e("s_and_b32 s4, s2, 15")
    else:
        e("s_lshr_b32 s5, s2, 6")
        e("s_lshl_b32 s5, s5, 2")
        e("s_bfe_u32 s6, s2, 0x20003")
        e("s_add_u32 s5, s5, s6")
        e("s_bfe_u32 s4, s2, 0x10005")
        e("s_lshl_b32 s4, s4, 3")
        e("s_and_b32 s6, s2, 7")
        e("s_add_u32 s4, s4, s6")
    e("s_mul_i32 s6, s4, 7")
    e("s_sub_u32 s7, s4, 12")
    e("s_cmp_lt_u32 s4, 12")
    e("s_cselect_b32 s7, 0, s7")
    e("s_cselect_b32 s26, 7, 6")
    e("s_sub_u32 s4, s6, s7")
    e("v_and_b32 v3, 15, v2")
    e("v_lshrrev_b32 v4, 4, v2")
    e("v_lshrrev_b32 v5, 1, v4")
    e("v_and_b32 v6, 1, v4")
    e("v_lshlrev_b32 v7, 4, v3")
    e("v_lshl_add_u32 v7, v5, 10, v7")
    e("v_lshl_add_u32 v7, v6, 9, v7")
    e("v_mov_b32 v8, v7")
    for k in range(2):
        e(f"s_add_u32 s6, s3, {4*k}")
        e("s_min_u32 s6, s6, 6")
        e(f"s_lshl_b32 s{42+k}, s6, 10")
        if W1D:
            vd = 7 if k == 0 else 11
            e("s_lshl_b32 s6, s6, 6")
            e("v_add_u32 v12, s6, v2")
            e("v_mul_u32_u24 v13, 4682, v12")
            e("v_lshrrev_b32 v13, 16, v13")
            e("v_mul_u32_u24 v14, 14, v13")
            e("v_sub_u32 v12, v12, v14")
            e("v_and_b32 v14, 0x13, v13")
            e("v_bfe_u32 v15, v13, 2, 1")
            e("v_lshl_or_b32 v14, v15, 3, v14")
            e("v_bfe_u32 v15, v13, 3, 1")
            e("v_lshl_or_b32 v14, v15, 2, v14")
            e("v_mul_u32_u24 v14, 3456, v14")
            e(f"v_lshl_add_u32 v{vd}, v12, 4, v14")
            if k == 1: e("s_lshl_b32 s40, s4, 5")
            continue
        e("s_add_u32 s6, s6, s4")
        e("s_min_u32 s6, s6, 107")
        e(f"s_lshr_b32 s{40+k}, s6, 1")
        e(f"s_mul_i32 s{40+k}, s{40+k}, {40*1024}")
        e("s_and_b32 s6, s6, 1")
        e("s_lshl_b32 s6, s6, 8")
        e(f"s_add_u32 s{40+k}, s{40+k}, s6")
        e(f"s_add_u32 s{40+k}, s{40+k}, {WS_W1F}")
    e("s_lshl_b32 s6, s5, 2")
    e("s_add_u32 s27, s6, s3")
    e("s_mul_i32 s44, s27, %d" % (40*1024))
    e("s_add_u32 s44, s44, %d" % WS_XNF)
    if "g1y" in SKIP:
        e("s_xor_b32 s45, s27, 1")
        e("s_mul_i32 s45, s45, %d" % (40*1024))
    e("v_lshlrev_b32 v9, 4, v2")
    if W1D:
        e("v_bfe_u32 v12, v2, 2, 3")
        e("v_lshl_add_u32 v12, v5, 4, v12")
        e("v_mul_u32_u24 v12, 224, v12")
        e("v_and_b32 v9, 3, v2")
        e("v_lshl_add_u32 v9, v9, 3, v12")
    NS, BD, NSTEP = G1_NS, G1_BD, 20
    NB = int(os.environ.get("G1NB", 6))
    AF, BF, ACC, BI = 16, 16 + 4*NB, 16 + 4*NB + 8*G1_BD, 44
    assert ACC + 56 <= 128
    pend = []
    def dma(st):
        for k in range(2):
            e(f"s_add_u32 m0, s{42+k}, {(st % NS)*7168}")
            e("s_nop 0")
            if W1D: e(f"buffer_load_dwordx4 v{7 if k == 0 else 11}, s[12:15], s40 offen lds")
            else: e(f"buffer_load_dwordx4 v7, s[28:31], s{40+k} offen lds")
            pend.append(("a", st))
        if W1D: e("s_add_u32 s40, s40, %d" % (32*3456))
        else: e("v_add_u32 v7, 2048, v7")
    def bld(st):
        r = BF + 8*(st % BD)
        e(f"buffer_load_dwordx4 v[{r}:{r+3}], v8, s[28:31], s44 offen")
        e(f"buffer_load_dwordx4 v[{r+4}:{r+7}], v8, s[28:31], s44 offen offset:256")
        pend.append(("b", st)); pend.append(("b", st))
        if "g1y" in SKIP:
            e(f"buffer_load_dwordx4 v[{r}:{r+3}], v8, s[28:31], s45 offen")
            e(f"buffer_load_dwordx4 v[{r+4}:{r+7}], v8, s[28:31], s45 offen offset:256")
            pend.append(("b", st)); pend.append(("b", st))
        e("v_add_u32 v8, 2048, v8")
    def wait_for(*tags):
        idx = [i for i, p in enumerate(pend) if p in tags]
        if not idx: return
        last = max(idx)
        e(f"s_waitcnt vmcnt({len(pend) - 1 - last})")
        del pend[:last+1]
    def rdA(g):
        st, t = divmod(g, 7)
        if st >= NSTEP: return
        r = AF + 4*(g % NB)
        if W1D:
            e(f"ds_read_b64_tr_b16 v[{r}:{r+1}], v9 offset:{(st % NS)*7168 + 32*t}")
            e(f"ds_read_b64_tr_b16 v[{r+2}:{r+3}], v9 offset:{(st % NS)*7168 + 32*t + 1792}")
        else: e(f"ds_read_b128 v[{r}:{r+3}], v9 offset:{(st % NS)*7168 + 1024*t}")
    for st in range(max(NS-1, BD)):
        if st < NS-1: dma(st)
        if st < BD: bld(st)
    e("s_lshl_b32 s6, s4, 5")
    e("v_lshl_add_u32 v10, v4, 3, s6")
    for r in range(ACC, ACC+56):
        e(f"v_mov_b32 v{r}, 0")
    wait_for(("a", 0))
    e("s_barrier")
    tl(3)
    for t in range(NB): rdA(t)
    for st in range(NSTEP):
        if st + 1 < NSTEP:
            wait_for(("a", st+1), ("b", st))
            e("s_barrier")
            if st - 1 + NS < NSTEP: dma(st - 1 + NS)
        else:
            wait_for(("b", st))
        rb = BF + 8*(st % BD)
        for t in range(7):
            g = 7*st + t
            e(f"s_waitcnt lgkmcnt({(2 if W1D else 1)*min(NB - 1, 7*NSTEP - 1 - g)})")
            ra_ = AF + 4*(g % NB)
            for b_ in range(2):
                ac = ACC + 4*(2*t + b_)
                e(f"v_mfma_f32_16x16x32_bf16 v[{ac}:{ac+3}], v[{ra_}:{ra_+3}], v[{rb+4*b_}:{rb+4*b_+3}], v[{ac}:{ac+3}]")
            rdA(g + NB)
        if st + BD < NSTEP: bld(st + BD)
        if st == NSTEP - 2:
            assert BD >= 3
            free = [BF + 8*((NSTEP-3) % BD), BF + 8*((NSTEP-2) % BD)]
            BIr = [free[0] + 2*k for k in range(4)] + [free[1] + 2*k for k in range(3)]
            for t in range(7):
                e(f"buffer_load_dwordx2 v[{BIr[t]}:{BIr[t]+1}], v10, s[8:11], 0 offen offset:{32*t}")
                pend.append(("c", 0))
    e("s_nop 7")
    e("s_waitcnt vmcnt(0)")
    tl(4)
    e("s_mul_i32 s6, s27, 108")
    e("s_add_u32 s6, s6, s4")
    e("s_lshl_b32 s6, s6, 10")
    e("s_add_u32 s6, s6, %d" % WS_ACT)
    e("v_lshlrev_b32 v9, 4, v3")
    e("v_lshl_add_u32 v9, v5, 9, v9")
    e("v_lshl_add_u32 v9, v6, 3, v9")
    T = 16
    if MISH2 == 2:
        e(f"s_mov_b32 s46, {LOG2E:#x}")
        e(f"s_mov_b32 s47, {LOG2E:#x}")
        e("v_mov_b32 v40, 1.0"); e("v_mov_b32 v41, 1.0")
        e("v_mov_b32 v42, -2.0"); e("v_mov_b32 v43, -2.0")
    for t in range(7):
        if t == 6:
            e("s_cmp_lt_u32 s26, 7")
            e("s_cbranch_scc1 g1_end")
        r = BIr[t]
        e(f"v_lshlrev_b32 v{T}, 16, v{r}")
        e(f"v_and_b32 v{T+1}, 0xffff0000, v{r}")
        e(f"v_lshlrev_b32 v{T+2}, 16, v{r+1}")
        e(f"v_and_b32 v{T+3}, 0xffff0000, v{r+1}")
        for b_ in range(2):
            ac = ACC + 4*(2*t + b_)
            d0 = T + 16 + 2*((2*t + b_) % 4)
            if MISH2 == 2:
                mish_quad(ac, T, d0)
            else:
                mish_pairs(ac, ac+1, T, T+1, d0, T+4)
                mish_pairs(ac+2, ac+3, T+2, T+3, d0+1, T+10)
            off = (t % 4)*1024 + 256*b_
            e(f"buffer_store_dwordx2 v[{d0}:{d0+1}], v9, s[28:31], s6 offen offset:{off}")
        if t == 3: e("s_add_u32 s6, s6, 4096")
    lab("g1_end")
    tl(5)
    if TL: e("s_waitcnt vmcnt(0)")
    tl_end(1)
    if FUSE and not SPL:
        signal(5, "g1_sig")
        e("s_mov_b32 s2, s90")
        e("s_branch fin_body")
    e("s_endpgm")
    lab("mid_conv")
    if CONV2:
        gen_conv2()
    else:
        if "cv" in SKIP: e("s_endpgm")
        if PRIO & 8: e("s_setprio 3")
        srd(8, 60, D*2)
        e("s_sub_u32 s4, s2, %d" % G1_WGS)
        e("s_and_b32 s5, s4, 7")
        e("s_lshl_b32 s5, s5, 2")
        e("s_bfe_u32 s6, s4, 0x20003")
        e("s_or_b32 s5, s5, s6")
        e("s_andn2_b32 s4, s4, 31")
        e("s_or_b32 s4, s4, s5")
        e("s_lshl_b32 s5, s4, 1")
        e("v_mov_b32 v3, s5")
        if DLYC: e(f"s_sleep {DLYC}")
        e("buffer_load_ushort v1, v3, s[8:11], 0 offen")
        e("s_lshl_b32 s5, s4, 5")
        e("s_add_u32 s5, s5, %d" % WS_XNT)
        e("v_lshrrev_b32 v4, 1, v0")
        e("v_mul_u32_u24 v4, 20480, v4")
        e("v_and_b32 v5, 1, v0")
        e("v_lshl_add_u32 v4, v5, 4, v4")
        e("buffer_load_dwordx4 v[8:11], v4, s[28:31], s5 offen")
        e("v_lshlrev_b32 v4, 4, v0")
        e("s_mul_i32 s6, s4, %d" % KR_STRIDE)
        e("s_add_u32 s6, s6, %d" % WS_KR)
        e("buffer_load_dwordx4 v[12:15], v4, s[28:31], s6 offen")
        e("buffer_load_dwordx4 v[16:19], v4, s[28:31], s6 offen offset:16")
        e("v_min_u32 v5, 3, v0")
        e("v_lshlrev_b32 v5, 4, v5")
        e("v_add_u32 v5, 4096, v5")
        e("buffer_load_dwordx4 v[20:23], v5, s[28:31], s6 offen")
        e("buffer_load_dwordx4 v[24:27], v5, s[28:31], s6 offen offset:16")
        for k in range(4):
            e(f"v_mov_b32 v{28+k}, 0")
        e("v_min_u32 v6, 154, v0")
        e("v_lshlrev_b32 v6, 4, v6")
        e(f"ds_write_b128 v6, v[28:31] offset:{UB + 80}")
        e("v_lshrrev_b32 v6, 2, v0")
        e("v_mul_u32_u24 v6, 80, v6")
        e("v_and_b32 v7, 3, v0")
        e("v_lshl_add_u32 v6, v7, 4, v6")
        e("s_waitcnt vmcnt(4)")
        e(f"ds_write_b128 v6, v[8:11] offset:{UB + 32*80}")
        def copies(w, vaddr):
            for c in range(8):
                if c % 2 == 0:
                    e(f"ds_write_b128 v{vaddr}, v[{w+c//2}:{w+c//2+3}] offset:{CB(c)}") if (w + c//2) % 2 == 0 else None
                    if (w + c//2) % 2:
                        for j in range(4):
                            e(f"v_mov_b32 v{32+j}, v{w+c//2+j}")
                        e(f"ds_write_b128 v{vaddr}, v[32:35] offset:{CB(c)}")
                else:
                    for j in range(4):
                        e(f"v_alignbit_b32 v{36+j}, v{w+(c+1)//2+j}, v{w+(c-1)//2+j}, 16")
                    e(f"ds_write_b128 v{vaddr}, v[36:39] offset:{CB(c)}")
        e("s_waitcnt vmcnt(2)")
        tl(1)
        copies(12, 4)
        e("s_waitcnt vmcnt(0)")
        copies(20, 5)
        e("s_waitcnt lgkmcnt(0)")
        tl(2)
        e("s_barrier")
        tl(3)
        e("v_and_b32 v3, 31, v2")
        e("v_lshrrev_b32 v4, 5, v2")
        e("v_sub_u32 v5, 7, v3")
        e("v_and_b32 v5, 7, v5")
        e("v_sub_u32 v6, 2047, v3")
        e("v_lshl_add_u32 v6, v4, 3, v6")
        e("v_sub_u32 v6, v6, v5")
        e("v_mul_u32_u24 v7, %d, v5" % CS)
        e("v_lshrrev_b32 v8, 2, v5")
        e("v_lshl_add_u32 v7, v8, 5, v7")
        e("v_lshl_add_u32 v6, v6, 1, v7")
        e("v_mul_u32_u24 v7, 80, v3")
        e("v_lshl_add_u32 v7, v4, 4, v7")
        e(f"v_add_u32 v7, {UB + 32*80}, v7")
        for r in range(16, 48):
            e(f"v_mov_b32 v{r}, 0")
        e("s_lshl_b32 s5, s3, 9")
        e(f"s_add_u32 s5, s5, {64*7 + 64*32}")
        e("v_subrev_u32 v8, s5, v6")
        e("s_mul_i32 s5, s3, 640")
        e(f"s_add_u32 s5, s5, {80*7}")
        e("v_subrev_u32 v9, s5, v7")
        def rd(q):
            base = 48 + (q & 1)*32
            for t in range(2):
                fa = base + 16*t
                e(f"ds_read_b128 v[{fa}:{fa+3}], v8 offset:{64*(7-q) + 2048 + 32*t}")
                e(f"ds_read_b128 v[{fa+4}:{fa+7}], v9 offset:{80*(7-q) + 32*t}")
                e(f"ds_read_b128 v[{fa+8}:{fa+11}], v9 offset:{80*(7-q) + 2560 + 32*t}")
                e(f"ds_read_b128 v[{fa+12}:{fa+15}], v8 offset:{64*(7-q) + 32*t}")
        def mm(q):
            base = 48 + (q & 1)*32
            for t in range(2):
                fa = base + 16*t
                e(f"v_mfma_f32_32x32x16_bf16 v[16:31], v[{fa}:{fa+3}], v[{fa+4}:{fa+7}], v[16:31]")
                e(f"v_mfma_f32_32x32x16_bf16 v[32:47], v[{fa}:{fa+3}], v[{fa+8}:{fa+11}], v[32:47]")
                e(f"v_mfma_f32_32x32x16_bf16 v[32:47], v[{fa+12}:{fa+15}], v[{fa+4}:{fa+7}], v[32:47]")
        rd(0)
        for q in range(8):
            if q < 7:
                rd(q + 1)
                e("s_waitcnt lgkmcnt(8)")
            else:
                e("s_waitcnt lgkmcnt(0)")
            mm(q)
        tl(4)
        e("s_nop 15")
        e("s_barrier")
        e("v_lshlrev_b32 v10, 4, v2")
        e("s_cmp_eq_u32 s3, 0")
        e("s_cbranch_scc1 cv_w0")
        e("s_sub_u32 s5, s3, 1")
        e("s_lshl_b32 s5, s5, 12")
        e("v_add_u32 v11, s5, v10")
        for r in range(4):
            e(f"ds_write_b128 v11, v[{16+4*r}:{19+4*r}] offset:{1024*r}")
        lab("cv_w0")
        e("s_cmp_eq_u32 s3, 1")
        e("s_cbranch_scc1 cv_w1")
        e("s_sub_u32 s5, s3, 1")
        e("s_max_i32 s5, s5, 0")
        e("s_lshl_b32 s5, s5, 12")
        e("v_add_u32 v11, s5, v10")
        for r in range(4):
            e(f"ds_write_b128 v11, v[{32+4*r}:{35+4*r}] offset:{12288 + 1024*r}")
        e("s_branch cv_w2")
        lab("cv_w1")
        for r in range(16):
            e(f"v_mov_b32 v{16+r}, v{32+r}")
        e("v_add_u32 v10, 12288, v10")
        lab("cv_w2")
        e("s_waitcnt lgkmcnt(0)")
        e("s_barrier")
        e("s_cmp_ge_u32 s3, 2")
        e("s_cbranch_scc1 mid_end")
        for sl in range(3):
            for r in range(4):
                e(f"ds_read_b128 v[{48+16*sl+4*r}:{51+16*sl+4*r}], v10 offset:{4096*sl + 1024*r}")
        for sl in range(3):
            e(f"s_waitcnt lgkmcnt({8-4*sl})")
            for r in range(16):
                e(f"v_add_f32 v{16+r}, v{16+r}, v{48+16*sl+r}")
        lab("cv_epi")
        e("s_mul_i32 s5, s3, %d" % (32*80))
        e("v_mul_u32_u24 v11, 80, v3")
        e("v_lshl_add_u32 v11, v4, 3, v11")
        e("v_add_u32 v11, s5, v11")
        for g in range(4):
            e(f"ds_read_b64 v[{32+2*g}:{33+2*g}], v11 offset:{UB + 32*80 + 16*g}")
        e("s_lshl_b32 s5, s4, 12")
        e("s_lshl_b32 s6, s3, 11")
        e("s_add_u32 s5, s5, s6")
        e("s_add_u32 s5, s5, %d" % WS_AT)
        e("v_lshlrev_b32 v12, 6, v3")
        e("v_lshl_add_u32 v12, v4, 3, v12")
        e("s_waitcnt vmcnt(0) lgkmcnt(0)")
        e("v_lshlrev_b32 v1, 16, v1")
        for g in range(4):
            for p in range(2):
                u = 32 + 2*g + p
                y0 = 16 + 4*g + 2*p
                e(f"v_lshlrev_b32 v44, 16, v{u}")
                e(f"v_and_b32 v45, 0xffff0000, v{u}")
                e(f"v_mul_f32 v44, v44, v1")
                e(f"v_mul_f32 v45, v45, v1")
                e(f"v_cvt_pk_bf16_f32 v44, v44, v45")
                e(f"v_cvt_pk_bf16_f32 v46, v{y0}, v{y0+1}")
                e(f"v_lshlrev_b32 v47, 16, v44")
                e(f"v_and_b32 v48, 0xffff0000, v44")
                e(f"v_lshlrev_b32 v49, 16, v46")
                e(f"v_and_b32 v50, 0xffff0000, v46")
                e(f"v_add_f32 v47, v47, v49")
                e(f"v_add_f32 v48, v48, v50")
                e(f"v_cvt_pk_bf16_f32 v{52+2*g+p}, v47, v48")
            e(f"buffer_store_dwordx2 v[{52+2*g}:{53+2*g}], v12, s[28:31], s5 offen offset:{16*g}")
        tl(5)
        if TL: e("s_waitcnt vmcnt(0)")
        tl_end(1)
    if W2MID:
        e("s_endpgm")
        lab("mid_wt")
        gen_wt(G1_WGS + CV_WGS, 270, 540, "mid_end", 1, int(os.environ.get("DLYW2", 0)))
    lab("mid_end")
    e("s_endpgm")
    if SPL: kernel_desc("mid_kernel", 128)
    elif FUSE == 2: kernel_desc("mid_kernel", 128, agpr=40)
    elif FUSE: kernel_desc("mid_kernel", 160, agpr=80)
    else: kernel_desc("mid_kernel", 128)

G2_WGS = 256
FIN_LDS = 61440 + 64
FDEPTH = 2 if FUSE == 2 else int(os.environ.get('FDEPTH', 4))
def gen_fin():
    if SPL:
        kernel_begin("fin_kernel")
        e("s_cmp_ge_u32 s2, %d" % (G2_WGS + SPL))
        e("s_cbranch_scc1 fin_end")
        e("s_cmp_lt_u32 s2, %d" % G2_WGS)
        e("s_cbranch_scc1 fin_body")
        e("s_add_u32 s2, s2, %d" % (640 - SPL))
        e("s_branch mid_body")
        lab("fin_body")
    elif FUSE:
        out.append(".text"); lab("fin_kernel"); lab("fin_body")
    else:
        kernel_begin("fin_kernel")
        e("s_cmp_ge_u32 s2, %d" % G2_WGS)
        e("s_cbranch_scc1 fin_end")
    e("s_load_dwordx2 s[56:57], s[0:1], 104")
    e("s_load_dwordx2 s[58:59], s[0:1], 0")
    e("s_load_dwordx2 s[60:61], s[0:1], 88")
    e("v_lshrrev_b32 v1, 6, v0")
    e("v_and_b32 v2, 63, v0")
    e("s_nop 0")
    e("v_readfirstlane_b32 s3, v1")
    if FMAP == 2:
        e("s_and_b32 s5, s2, 31")
        e("s_lshr_b32 s4, s2, 5")
    elif FMAP == 3:
        e("s_lshr_b32 s5, s2, 3")
        e("s_and_b32 s4, s2, 7")
    else:
        if SCL & 2: static_claim()
        else:
            e("s_waitcnt lgkmcnt(0)")
            srd(28, 56, WS_SIZE)
            claim_tile(512, 32, 61440, "fcl")
        if FMAP == 0:
            e("s_lshr_b32 s5, s2, 5")
            e("s_lshl_b32 s5, s5, 2")
            e("s_and_b32 s6, s2, 3")
            e("s_add_u32 s5, s5, s6")
            e("s_bfe_u32 s4, s2, 0x30002")
        else:
            e("s_lshr_b32 s5, s2, 6")
            e("s_lshl_b32 s5, s5, 3")
            e("s_and_b32 s6, s2, 7")
            e("s_add_u32 s5, s5, s6")
            e("s_bfe_u32 s4, s2, 0x10005")
            e("s_lshl_b32 s4, s4, 2")
            e("s_bfe_u32 s6, s2, 0x20003")
            e("s_add_u32 s4, s4, s6")
    e("v_and_b32 v3, 15, v2")
    e("v_lshrrev_b32 v4, 4, v2")
    e("v_lshrrev_b32 v5, 1, v4")
    e("v_and_b32 v6, 1, v4")
    e("v_lshlrev_b32 v7, 4, v3")
    e("v_lshl_add_u32 v7, v5, 10, v7")
    e("v_lshl_add_u32 v7, v6, 9, v7")
    e("s_lshl_b32 s6, s3, 11")
    e("v_add_u32 v7, s6, v7")
    e("s_mul_i32 s6, s4, 5")
    for a_ in range(5):
        e(f"s_add_u32 s7, s6, {a_}")
        e(f"s_lshr_b32 s{40+a_}, s7, 1")
        e(f"s_mul_i32 s{40+a_}, s{40+a_}, {108*1024}")
        e(f"s_and_b32 s7, s7, 1")
        e(f"s_lshl_b32 s7, s7, 8")
        e(f"s_add_u32 s{40+a_}, s{40+a_}, s7")
        e(f"s_add_u32 s{40+a_}, s{40+a_}, {WS_W2F}")
    e("s_mul_i32 s6, s5, %d" % (2*108*1024))
    e("s_add_u32 s45, s6, %d" % WS_ACT)
    e("s_add_u32 s46, s45, 256")
    e("s_add_u32 s47, s45, %d" % (108*1024))
    e("s_add_u32 s48, s47, 256")
    e("s_waitcnt lgkmcnt(0)")
    srd(28, 56, WS_SIZE); srd(8, 58, L*D*2); srd(12, 60, L*D*2)
    FR = 16
    ACC = 0
    EP = FR + 36*(FDEPTH - (1 if FUSE else 0))
    if FUSE == 2: EP = 16
    def accr(ac):
        return f"v[{48+ac}:{51+ac}]" if (FUSE == 2 and ac >= 40) else f"a[{ac}:{ac+3}]"
    pend = []
    def issue(m):
        base = FR + 36*(m % FDEPTH)
        for t in range(9):
            e(f"buffer_load_dwordx4 v[{base+4*t}:{base+4*t+3}], v7, s[28:31], s{40+t} offen")
            pend.append(("f", m))
        e("v_add_u32 v7, 8192, v7")
    def wait_for(tag):
        if tag not in pend: return
        last = max(i for i, p in enumerate(pend) if p == tag)
        n = len(pend) - 1 - last
        e(f"s_waitcnt vmcnt({n})")
        del pend[:last+1]
    NST = 14
    if FUSE:
        e("v_mov_b32 v12, v7")
        e("v_mov_b32 v14, 0")
        for m in range(FDEPTH):
            for t in range(5):
                e(f"buffer_load_dwordx4 v[{FR+36*m+4*t}:{FR+36*m+4*t+3}], v12, s[28:31], s{40+t} offen")
                pend.append(("f", m))
            e("v_add_u32 v12, 8192, v12")
        for r in range(ACC, ACC+(0 if SPL else 80)):
            e(f"v_mov_b32 v{48+r}, 0" if (FUSE == 2 and r >= 40) else f"v_accvgpr_write_b32 a{r}, 0")
        e("s_lshr_b32 s6, s5, 1")
        e("s_lshl_b32 s6, s6, %d" % CSH)
        e("s_add_u32 s6, s6, %d" % WS_CNT)
        e("s_lshl_b32 s94, s4, %d" % CSH)
        e("s_add_u32 s94, s94, %d" % (WS_CNT + (16 << CSH)))
        if not SPL:
            e("s_cmp_lg_u32 s3, 0")
            e("s_cbranch_scc1 fp0_d")
            poll(6, int(os.environ.get("FT0", 16)), "fp0")
            e("s_barrier")
        for m in range(FDEPTH):
            for t in range(5, 9):
                e(f"buffer_load_dwordx4 v[{FR+36*m+4*t}:{FR+36*m+4*t+3}], v7, s[28:31], s{40+t} offen")
                pend.append(("f", m))
            e("v_add_u32 v7, 8192, v7")
        for r in range(ACC, ACC+(80 if SPL else 0)):
            e(f"v_mov_b32 v{48+r}, 0" if r >= 40 else f"v_accvgpr_write_b32 a{r}, 0")
    else:
        for m in range(FDEPTH):
            issue(m)
    e("s_lshl_b32 s6, s5, 6")
    e("s_lshl_b32 s7, s3, 4")
    e("s_add_u32 s6, s6, s7")
    e("v_add_u32 v8, s6, v3")
    e("v_mul_u32_u24 v9, 1280, v8")
    e("v_lshl_add_u32 v9, v4, 3, v9")
    e("s_mul_i32 s6, s4, 160")
    e("v_add_u32 v9, s6, v9")
    def eploads():
        for a_ in range(5):
            e(f"buffer_load_dwordx2 v[{EP+2*a_}:{EP+2*a_+1}], v9, s[8:11], 0 offen offset:{32*a_}")
            pend.append(("e", 0))
        e("v_lshlrev_b32 v10, 14, v4")
        e("v_lshl_add_u32 v10, v8, 1, v10")
        e("s_mul_i32 s6, s4, %d" % (80*4096))
        e("s_add_u32 s6, s6, %d" % WS_AT)
        for a_ in range(5):
            for j in range(4):
                e(f"buffer_load_ushort v{EP+10+4*a_+j}, v10, s[28:31], s6 offen")
                pend.append(("e", 0))
                e("s_add_u32 s6, s6, %d" % (4096 if j < 3 else 4096*13))
    if not FUSE:
        eploads()
        for r in range(ACC, ACC+80):
            e(f"v_accvgpr_write_b32 a{r}, 0")
    for m in range(NST):
        if m == NST - 1:
            e("s_cmp_ge_u32 s3, 2")
            e("s_cbranch_scc1 fin_red")
        wait_for(("f", m))
        base = FR + 36*(m % FDEPTH)
        fill = []
        if FEP and FDEPTH + 1 <= m < FDEPTH + 4:
            for a_ in [(0, 1), (2, 3), (4,)][m - FDEPTH - 1]:
                rx = EP + 2*a_; ra = EP + 10 + 4*a_
                for k_ in range(9):
                    for p_ in range(2):
                        t0, t1 = 12 + 2*p_, 13 + 2*p_
                        r0, r1 = ra + 2*p_, ra + 2*p_ + 1
                        fill.append([f"v_lshlrev_b32 v{t0}, 16, v{rx+p_}", f"v_and_b32 v{t1}, 0xffff0000, v{rx+p_}",
                                     f"v_lshlrev_b32 v{r0}, 16, v{r0}", f"v_lshlrev_b32 v{r1}, 16, v{r1}",
                                     f"v_add_f32 v{t0}, v{t0}, v{r0}", f"v_add_f32 v{t1}, v{t1}, v{r1}",
                                     f"v_cvt_pk_bf16_f32 v{t0}, v{t0}, v{t1}",
                                     f"v_lshlrev_b32 v{r0}, 16, v{t0}", f"v_and_b32 v{r1}, 0xffff0000, v{t0}"][k_])
        for b_ in range(4):
            for a_ in range(5):
                ac = ACC + 4*(5*b_ + a_)
                e(f"v_mfma_f32_16x16x32_bf16 {accr(ac)}, v[{base+4*a_}:{base+4*a_+3}], v[{base+20+4*b_}:{base+23+4*b_}], {accr(ac)}")
                for _ in range(2):
                    if fill: e(fill.pop(0))
        assert not fill
        if FUSE and m == int(os.environ.get("GS", 10 if FUSE == 2 else 8)):
            e("buffer_load_dword v13, v14, s[28:31], s94 offen sc0 sc1")
            pend.append(("g", 0))
        if FUSE and m == int(os.environ.get("GD", 12 if FUSE == 2 else 11)):
            if ("g", 0) in pend: wait_for(("g", 0))
            poll(94, int(os.environ.get("FT1", 80)), "fp1", first=False)
            eploads()
        if m + FDEPTH < NST:
            if m + FDEPTH == NST - 1:
                e("s_cmp_ge_u32 s3, 2")
                e("s_cselect_b32 s6, 8192, 0")
                e("v_subrev_u32 v7, s6, v7")
            issue(m + FDEPTH)
    lab("fin_red")
    e("s_nop 15")
    e("s_waitcnt vmcnt(%d)" % (25 if FUSE else 0))
    e("v_lshlrev_b32 v11, 4, v2")
    RB, TB = 16, 96
    if FUSE == 2:
        RB, TB = 46, 108
        e("s_xor_b32 s6, s3, 2")
        e("s_mul_i32 s6, s6, 10240")
        e("v_add_u32 v12, s6, v11")
        e("s_mul_i32 s6, s3, 10240")
        e("v_add_u32 v13, s6, v11")
        e("s_xor_b32 s6, s3, 1")
        e("s_mul_i32 s6, s6, 10240")
        e("v_add_u32 v15, s6, v11")
        e("s_cmp_ge_u32 s3, 2")
        e("s_cbranch_scc1 fr_hi")
        for k in range(10): e(f"ds_write_b128 v12, v[{88+4*k}:{91+4*k}] offset:{1024*k}")
        e("s_waitcnt lgkmcnt(0)")
        for r in range(40): e(f"v_accvgpr_read_b32 v{88+r}, a{r}")
        e("s_branch fr_j")
        lab("fr_hi")
        for k in range(10): e(f"ds_write_b128 v12, a[{4*k}:{4*k+3}] offset:{1024*k}")
        e("s_waitcnt lgkmcnt(0)")
        lab("fr_j")
        e("s_barrier")
        for k in range(10): e(f"ds_read_b128 v[{46+4*k}:{49+4*k}], v13 offset:{1024*k}")
        for k in range(10):
            e(f"s_waitcnt lgkmcnt({9-k})")
            for r in (0, 2): e(f"v_pk_add_f32 v[{46+4*k+r}:{47+4*k+r}], v[{46+4*k+r}:{47+4*k+r}], v[{88+4*k+r}:{89+4*k+r}]")
        e("s_bitcmp1_b32 s3, 0")
        e("s_cbranch_scc1 fr_odd")
        for k in range(5): e(f"ds_write_b128 v13, v[{66+4*k}:{69+4*k}] offset:{1024*k}")
        e("s_branch fr_j2")
        lab("fr_odd")
        for k in range(5): e(f"ds_write_b128 v13, v[{46+4*k}:{49+4*k}] offset:{1024*k}")
        e("s_waitcnt lgkmcnt(0)")
        for r in range(20): e(f"v_mov_b32 v{46+r}, v{66+r}")
        lab("fr_j2")
        e("s_waitcnt lgkmcnt(0)")
        e("s_barrier")
        for k in range(5): e(f"ds_read_b128 v[{88+4*k}:{91+4*k}], v15 offset:{1024*k}")
        for k in range(5):
            e(f"s_waitcnt lgkmcnt({4-k})")
            for r in (0, 2): e(f"v_pk_add_f32 v[{46+4*k+r}:{47+4*k+r}], v[{46+4*k+r}:{47+4*k+r}], v[{88+4*k+r}:{89+4*k+r}]")
    for w in range(0 if FUSE == 2 else 4):
        if w < 3:
            e(f"s_cmp_lg_u32 s3, {w}")
            e(f"s_cbranch_scc1 fin_w{w+1}")
        for b_ in range(4):
            if b_ == w: continue
            slot = w if w < b_ else w - 1
            for a_ in range(5):
                ac = ACC + 4*(5*b_ + a_)
                e(f"ds_write_b128 v11, a[{ac}:{ac+3}] offset:{(b_*3 + slot)*5120 + a_*1024}")
        for r in range(20):
            e(f"v_accvgpr_read_b32 v{16+r}, a{ACC+20*w+r}")
        if w < 3:
            e("s_branch fin_rd")
            lab(f"fin_w{w+1}")
    lab("fin_rd")
    if FUSE != 2:
        e("s_mul_i32 s6, s3, %d" % (3*5120))
        e("v_add_u32 v11, s6, v11")
        e("s_waitcnt lgkmcnt(0)")
        e("s_barrier")
    for sl in range(0 if FUSE == 2 else 3):
        for a_ in range(5):
            r = 36 + 20*sl + 4*a_
            e(f"ds_read_b128 v[{r}:{r+3}], v11 offset:{sl*5120 + a_*1024}")
    for sl in range(0 if FUSE == 2 else 3):
        e(f"s_waitcnt lgkmcnt({10-5*sl})")
        if FEP:
            for r in range(0, 20, 2):
                e(f"v_pk_add_f32 v[{16+r}:{17+r}], v[{16+r}:{17+r}], v[{36+20*sl+r}:{37+20*sl+r}]")
            continue
        for r in range(20):
            e(f"v_add_f32 v{16+r}, v{16+r}, v{36+20*sl+r}")
    e("s_waitcnt vmcnt(0)")
    for a_ in range(5):
        rx = EP + 2*a_
        ra = EP + 10 + 4*a_
        if FEP:
            ac = 16 + 4*a_
            for p in range(2): e(f"v_cvt_pk_bf16_f32 v{96+p}, v{ac+2*p}, v{ac+2*p+1}")
            for p in range(2):
                e(f"v_lshlrev_b32 v{98+2*p}, 16, v{96+p}")
                e(f"v_and_b32 v{99+2*p}, 0xffff0000, v{96+p}")
            for p in range(2): e(f"v_pk_add_f32 v[{98+2*p}:{99+2*p}], v[{98+2*p}:{99+2*p}], v[{ra+2*p}:{ra+2*p+1}]")
            for p in range(2): e(f"v_cvt_pk_bf16_f32 v{rx+p}, v{98+2*p}, v{99+2*p}")
        for p in range(2 if not FEP else 0):
            ac = RB + 4*a_ + 2*p
            e(f"v_lshlrev_b32 v{TB+0}, 16, v{rx+p}")
            e(f"v_and_b32 v{TB+1}, 0xffff0000, v{rx+p}")
            e(f"v_lshlrev_b32 v{TB+2}, 16, v{ra+2*p}")
            e(f"v_lshlrev_b32 v{TB+3}, 16, v{ra+2*p+1}")
            e(f"v_add_f32 v{TB+0}, v{TB+0}, v{TB+2}")
            e(f"v_add_f32 v{TB+1}, v{TB+1}, v{TB+3}")
            e(f"v_cvt_pk_bf16_f32 v{TB+0}, v{TB+0}, v{TB+1}")
            e(f"v_cvt_pk_bf16_f32 v{TB+2}, v{ac}, v{ac+1}")
            e(f"v_lshlrev_b32 v{TB+4}, 16, v{TB+0}")
            e(f"v_and_b32 v{TB+5}, 0xffff0000, v{TB+0}")
            e(f"v_lshlrev_b32 v{TB+6}, 16, v{TB+2}")
            e(f"v_and_b32 v{TB+7}, 0xffff0000, v{TB+2}")
            e(f"v_add_f32 v{TB+4}, v{TB+4}, v{TB+6}")
            e(f"v_add_f32 v{TB+5}, v{TB+5}, v{TB+7}")
            e(f"v_cvt_pk_bf16_f32 v{rx+p}, v{TB+4}, v{TB+5}")
        e(f"buffer_store_dwordx2 v[{rx}:{rx+1}], v9, s[12:15], 0 offen offset:{32*a_}")
    lab("fin_end")
    e("s_endpgm")
    if SPL: kernel_desc("fin_kernel", 128, agpr=40)
    if not FUSE: kernel_desc("fin_kernel", ((EP + 30) + 7)//8*8, agpr=80)

hdr = open("cdna_kernels/%s.s.ref" % NAME).read().split("; Override launch")[0]
text = hdr
text += f"; @launch kernel=prep_kernel grid=({PREP_WGS + (128 if PORD else 0) + (256 if EMU & 2 else 0)},1,1) block=(256,1,1) lds={MID_LDS if EMU & 2 else PREP_LDS}\n"
text += f"; @launch kernel=mid_kernel grid=({MID_WGS - SPL},1,1) block=(256,1,1) lds={FIN_LDS if FUSE == 1 else MID_LDS}\n"
if SPL: text += f"; @launch kernel=fin_kernel grid=({G2_WGS + SPL},1,1) block=(256,1,1) lds={MID_LDS}\n"
if not FUSE: text += f"; @launch kernel=fin_kernel grid=({G2_WGS},1,1) block=(256,1,1) lds={FIN_LDS}\n"
text += '.amdgcn_target "amdgcn-amd-amdhsa--gfx950"\n'
gen_prep(); gen_mid(); gen_fin()
_o = []; _in = False
for _l in out:
    if _l.startswith("fin_kernel:"): _in = True
    if _l.strip().startswith("buffer_store") and not _in and "nosc" not in SKIP: _l += " sc1"
    _o.append(_l)
out = _o
text += "\n".join(out) + "\n"
dst = sys.argv[1] if len(sys.argv) > 1 else "cdna_kernels/%s.s" % NAME
open(dst, "w").write(text)
print("wrote", dst, len(text))
```

```python
import sys, os
SKIP = os.environ.get("SKIP", "").split(",")
ORDER = int(os.environ.get("ORDER", 0))
PRIO = int(os.environ.get("PRIO", 3))
W2MID = int(os.environ.get("W2MID", 0))
CONV2 = int(os.environ.get("CONV2", 1))
CV3 = int(os.environ.get("CV3", 1))
FEP = int(os.environ.get("FEP", 1))
PORD = int(os.environ.get("PORD", 0))
MISH2 = int(os.environ.get("MISH2", 2))
DLYC = int(os.environ.get("DLYC", 24))
G1MAP = int(os.environ.get("G1MAP", 1))
FMAP = int(os.environ.get("FMAP", 1))
DLYL = int(os.environ.get("DLYL", 16))
DLYW = int(os.environ.get("DLYW", 24))
EMU = int(os.environ.get("EMU", 1))
KGR = int(os.environ.get("KGR", 0))
W1D = int(os.environ.get("W1D", 0))
FUSE = int(os.environ.get("FUSE", 0))
if FUSE: FEP = 0
SPL = int(os.environ.get("SPL", 0))
if SPL: FUSE = 2; FEP = 0
CSH = int(os.environ.get("CSH", 6))
MBX = int(os.environ.get("MBX", 0))
WS_MB = 0x1740000
CVL = 1 if FUSE == 1 else 0
NAME = "parallel_sum__ssm_conv_s4d__dense_activation_mish__prompt"
L, D, N, F = 2048, 640, 128, 1728
WS_XNF = 0x0000000
WS_XNT = 0x0280000
WS_W1F = 0x0500000
WS_W2F = WS_W1F + 2160 * 1024
WS_KR = 0x0A00000
KR_STRIDE = 4224
WS_ACT = 0x0D00000
WS_AT = 0x1400000
WS_CNT = 0x1700000
WS_SIZE = 268435456
LOG2E = 0x3fb8aa3b
INV2PI = 0x3e22f983

out = []
def e(s):
    out.append("    " + s)
def lab(s):
    out.append(s + ":")
def cm(s):
    out.append("    ; " + s)

STAMP = os.environ.get("STAMP")
def stamp_init():
    if not STAMP: return
    e("s_load_dwordx2 s[84:85], s[0:1], 96")
    e("s_waitcnt lgkmcnt(0)")
    e("s_mov_b32 s80, s84"); e("s_and_b32 s81, s85, 0xffff"); e("s_mov_b32 s82, 256"); e("s_mov_b32 s83, 0x00020000")
def stamp(i):
    if not STAMP: return
    e("s_memtime s[86:87]")
    e("s_waitcnt lgkmcnt(0)")
    e(f"s_cmp_lg_u32 s2, {int(STAMP)}")
    e(f"s_cbranch_scc1 st_{stamp.n}")
    e(f"v_mov_b32 v255, s86")
    e(f"v_lshrrev_b32 v254, 6, v0")
    e(f"v_lshlrev_b32 v254, 6, v254")
    e(f"v_add_u32 v254, {4*i}, v254")
    e(f"buffer_store_dword v255, v254, s[80:83], 0 offen")
    lab(f"st_{stamp.n}")
    stamp.n += 1
stamp.n = 0


TL = os.environ.get("TL")
WS_TL = 0x1800000
def tl(i):
    if not TL: return
    e("s_memrealtime s[80:81]")
    e("s_waitcnt lgkmcnt(0)")
    e(f"s_mov_b32 s{84+i}, s80")
def tl_begin():
    if not TL: return
    e("s_mov_b32 s83, s2")
    for i in range(8): e(f"s_mov_b32 s{84+i}, 0")
    tl(0)
def tl_end(kern):
    if not TL: return
    tl(7)
    e("s_getreg_b32 s90, hwreg(HW_REG_HW_ID)")
    e("s_getreg_b32 s80, hwreg(HW_REG_XCC_ID)")
    e("s_and_b32 s90, s90, 0xffff")
    e("s_lshl_b32 s80, s80, 16")
    e("s_or_b32 s90, s90, s80")
    e("s_or_b32 s90, s90, 0x40000000")
    e("s_cmp_lg_u32 s3, 0")
    e(f"s_cbranch_scc1 tle_{tl_end.n}")
    e("s_lshl_b32 s83, s83, 5")
    e(f"s_add_u32 s83, s83, {WS_TL + kern*65536}")
    e("v_mov_b32 v1, 0")
    for i in range(8):
        e(f"v_mov_b32 v0, s{84+i}")
        e(f"buffer_store_dword v0, v1, s[28:31], s83 offen offset:{4*i}")
    lab(f"tle_{tl_end.n}")
    tl_end.n += 1
tl_end.n = 0

def srd(dst, ptr, size):
    e(f"s_mov_b32 s{dst}, s{ptr}")
    e(f"s_and_b32 s{dst+1}, s{ptr+1}, 0xffff")
    e(f"s_mov_b32 s{dst+2}, {size}")
    e(f"s_mov_b32 s{dst+3}, 0x00020000")

def kernel_begin(name):
    out.append(".text")
    out.append(f".globl {name}")
    out.append(".p2align 8")
    out.append(f".type {name},@function")
    lab(name)

def kernel_desc(name, vgpr, sgpr=96, agpr=0):
    if STAMP: vgpr = 256
    out.append('.section .rodata,"a"')
    out.append(".p2align 6")
    out.append(f".amdhsa_kernel {name}")
    out.append(f"  .amdhsa_next_free_vgpr {vgpr + agpr}")
    out.append(f"  .amdhsa_next_free_sgpr {sgpr}")
    out.append(f"  .amdhsa_accum_offset {(vgpr+3)//4*4}")
    out.append("  .amdhsa_group_segment_fixed_size 0")
    out.append("  .amdhsa_kernarg_size 112")
    out.append("  .amdhsa_user_sgpr_count 2")
    out.append("  .amdhsa_user_sgpr_kernarg_segment_ptr 1")
    out.append("  .amdhsa_system_sgpr_workgroup_id_x 1")
    out.append(".end_amdhsa_kernel")


SCL = int(os.environ.get("SCL", 3))
def static_claim():
    e("s_and_b32 s4, s2, 7")
    e("s_lshl_b32 s4, s4, 5")
    e("s_lshr_b32 s2, s2, 3")
    e("s_or_b32 s2, s2, s4")

def signal(sidx, lbl):
    e("s_waitcnt vmcnt(0)")
    e("s_barrier")
    e("s_cmp_lg_u32 s3, 0")
    e(f"s_cbranch_scc1 {lbl}")
    e(f"s_lshl_b32 s6, s{sidx}, {CSH}")
    e("s_add_u32 s6, s6, %d" % WS_CNT)
    e("s_mov_b64 exec, 1")
    e("v_mov_b32 v12, 1")
    e("v_mov_b32 v13, 0")
    e("buffer_atomic_add v12, v13, s[28:31], s6 offen sc1")
    e("s_mov_b64 exec, -1")
    lab(lbl)
def poll(soff, target, lbl, first=True):
    e("s_mov_b32 s91, 0")
    if not first: e(f"s_branch {lbl}_c")
    lab(f"{lbl}_p")
    e(f"buffer_load_dword v13, v14, s[28:31], s{soff} offen sc0 sc1")
    e("s_waitcnt vmcnt(0)")
    lab(f"{lbl}_c")
    e("v_readfirstlane_b32 s92, v13")
    e(f"s_cmp_ge_u32 s92, {target}")
    e(f"s_cbranch_scc1 {lbl}_d")
    e("s_add_u32 s91, s91, 1")
    e("s_cmp_ge_u32 s91, 0x20000")
    e(f"s_cbranch_scc1 {lbl}_d")
    e("s_sleep %d" % (int(os.environ.get("PSL", 2)) if first else int(os.environ.get("PSL2", 32))))
    e(f"s_branch {lbl}_p")
    lab(f"{lbl}_d")

def claim_tile(cnt_off, per, lds_off, lbl):
    e("s_cmp_lg_u32 s3, 0")
    e(f"s_cbranch_scc1 {lbl}_w")
    e("s_getreg_b32 s20, hwreg(HW_REG_XCC_ID)")
    e("s_and_b32 s20, s20, 7")
    e("s_mov_b32 s21, 0")
    e("s_mov_b64 s[22:23], exec")
    e("s_mov_b64 exec, 1")
    e("v_mov_b32 v12, 1")
    lab(f"{lbl}_l")
    e("s_lshl_b32 s24, s20, 6")
    e(f"s_add_u32 s24, s24, {WS_CNT + cnt_off}")
    e("v_mov_b32 v13, 0")
    e("v_mov_b32 v14, v12")
    e("buffer_atomic_add v14, v13, s[28:31], s24 offen sc0" + ("" if "asc" in SKIP else " sc1"))
    e("s_waitcnt vmcnt(0)")
    e("v_readfirstlane_b32 s25, v14")
    e(f"s_cmp_lt_u32 s25, {per}")
    e(f"s_cbranch_scc1 {lbl}_f")
    e("s_add_u32 s20, s20, 1")
    e("s_and_b32 s20, s20, 7")
    e("s_add_u32 s21, s21, 1")
    e("s_cmp_lt_u32 s21, 8")
    e(f"s_cbranch_scc1 {lbl}_l")
    e("s_mov_b32 s25, 0")
    lab(f"{lbl}_f")
    e(f"s_mul_i32 s20, s20, {per}")
    e("s_add_u32 s20, s20, s25")
    e("v_mov_b32 v14, s20")
    e(f"v_mov_b32 v13, {lds_off}")
    e("ds_write_b32 v13, v14")
    e("s_mov_b64 exec, s[22:23]")
    e("s_waitcnt lgkmcnt(0)")
    lab(f"{lbl}_w")
    e("s_barrier")
    e(f"v_mov_b32 v13, {lds_off}")
    e("ds_read_b32 v14, v13")
    e("s_waitcnt lgkmcnt(0)")
    e("v_readfirstlane_b32 s2, v14")

LN_WGS, WT_WGS, KG_WGS = 128, (68 if (W2MID or W1D) else 135), 640
PREP_WGS = KG_WGS + LN_WGS + WT_WGS
KG_LDS_WAVE = 512
KG_TAB0 = 2048
KG_TAB = 2688
KG_FIN = KG_TAB0 + 4*KG_TAB
PREP_LDS = 36864
LNS = 36

def gen_wt(wg0, wv0, wvend, endlab, kern, dly):
    if "wt" in SKIP: e("s_endpgm")
    if PRIO & 2: e("s_setprio 3")
    e("s_load_dwordx2 s[40:41], s[0:1], 64")
    e("s_load_dwordx2 s[42:43], s[0:1], 80")
    e("s_sub_u32 s4, s2, %d" % wg0)
    e("s_lshl_b32 s4, s4, 2")
    e("s_add_u32 s4, s4, s3")
    if wv0: e("s_add_u32 s4, s4, %d" % wv0)
    if wvend:
        e("s_cmp_ge_u32 s4, %d" % wvend)
        e("s_cbranch_scc1 %s" % endlab)
    e("s_waitcnt lgkmcnt(0)")
    e("s_cmp_ge_u32 s4, 270")
    e("s_cselect_b32 s40, s42, s40")
    e("s_cselect_b32 s41, s43, s41")
    e("s_mov_b32 s5, 3456")
    e("s_mov_b32 s7, 159072863")
    e("s_mov_b32 s34, %d" % WS_W1F)
    e("s_cselect_b32 s5, 1280, s5")
    e("s_cselect_b32 s6, 10, 27")
    e("s_cselect_b32 s7, 429496730, s7")
    e("s_cselect_b32 s32, 270, 0")
    e("s_cselect_b32 s33, 108, 40")
    e("s_cselect_b32 s34, %d, s34" % WS_W2F)
    srd(8, 40, D*F*2); srd(28, 56, WS_SIZE)
    e("s_sub_u32 s32, s4, s32")
    e("s_lshl_b32 s32, s32, 2")
    e("v_lshrrev_b32 v3, 3, v2")
    e("v_and_b32 v4, 7, v2")
    e("v_mul_lo_u32 v5, v3, s5")
    e("v_lshl_add_u32 v5, v4, 4, v5")
    e("s_lshl_b32 s35, s5, 3")
    e("s_mul_i32 s36, s3, %d" % (4*16*144))
    e("v_mul_u32_u24 v6, 144, v3")
    e("v_lshl_add_u32 v6, v4, 4, v6")
    e("v_add_u32 v6, s36, v6")
    e("v_and_b32 v7, 31, v2")
    e("v_lshrrev_b32 v8, 5, v2")
    e("v_mul_u32_u24 v8, %d, v8" % (8*144))
    e("v_lshl_add_u32 v8, v7, 1, v8")
    e("v_add_u32 v8, s36, v8")
    e("v_lshlrev_b32 v9, 4, v2")
    if dly: e(f"s_sleep {dly}")
    for q in range(4):
        e(f"s_add_u32 s37, s32, {q}")
        e("s_mul_hi_u32 s38, s37, s7")
        e("s_mul_i32 s39, s38, s6")
        e("s_sub_u32 s39, s37, s39")
        e(f"s_lshl_b32 s44, s38, 4")
        e(f"s_mul_i32 s44, s44, s5")
        e(f"s_lshl_b32 s45, s39, 7")
        e(f"s_add_u32 s44, s44, s45")
        e(f"buffer_load_dwordx4 v[{16+8*q}:{19+8*q}], v5, s[8:11], s44 offen")
        e(f"s_add_u32 s44, s44, s35")
        e(f"buffer_load_dwordx4 v[{20+8*q}:{23+8*q}], v5, s[8:11], s44 offen")
        e(f"s_lshl_b32 s45, s39, 1")
        e(f"s_mul_i32 s45, s45, s33")
        e(f"s_add_u32 s45, s45, s38")
        e(f"s_lshl_b32 s45, s45, 10")
        e(f"s_add_u32 s{48+q}, s45, s34")
    e("s_lshl_b32 s33, s33, 10")
    for q in range(4):
        e(f"s_waitcnt vmcnt({6-2*q})")
        e(f"ds_write_b128 v6, v[{16+8*q}:{19+8*q}] offset:{q*16*144}")
        e(f"ds_write_b128 v6, v[{20+8*q}:{23+8*q}] offset:{q*16*144 + 8*144}")
    tl(1)
    for q in range(4):
        e("s_waitcnt lgkmcnt(0)") if q == 0 else None
        for f in range(2):
            for el in range(8):
                e(f"ds_read_u16 v{48+16*(q&1)*2+16*f+el}, v8 offset:{q*16*144 + el*144 + 64*f}")
        if q > 0:
            pass
        e("s_waitcnt lgkmcnt(0)")
        for f in range(2):
            for j in range(4):
                r = 48 + 16*(q&1)*2 + 16*f
                e(f"v_lshl_or_b32 v{112+4*f+j}, v{r+2*j+1}, 16, v{r+2*j}")
            if f == 0:
                e(f"buffer_store_dwordx4 v[112:115], v9, s[28:31], s{48+q} offen")
            else:
                e(f"s_add_u32 s{48+q}, s{48+q}, s33")
                e(f"buffer_store_dwordx4 v[116:119], v9, s[28:31], s{48+q} offen")
        if q < 3:
            e("s_nop 1")
    tl(5)
    if TL: e("s_waitcnt vmcnt(0)")
    tl_end(kern)

def gen_prep():
    kernel_begin("prep_kernel")
    if EMU & 2:
        e("s_cmp_lt_u32 s2, 256")
        e("s_cbranch_scc1 mid_body")
        e("s_sub_u32 s2, s2, 256")
    if PORD:
        e("s_lshr_b32 s4, s2, 7")
        e("s_cmp_eq_u32 s4, 6")
        e("s_cbranch_scc1 prep_end")
        e("s_cmp_gt_u32 s4, 6")
        e("s_cselect_b32 s4, 128, 0")
        e("s_sub_u32 s2, s2, s4")
    e("s_cmp_ge_u32 s2, %d" % PREP_WGS)
    e("s_cbranch_scc1 prep_end")
    e("s_load_dwordx2 s[56:57], s[0:1], 104")
    e("v_lshrrev_b32 v1, 6, v0")
    e("v_and_b32 v2, 63, v0")
    e("s_nop 0")
    e("v_readfirstlane_b32 s3, v1")
    if ORDER:
        e("s_add_u32 s2, s2, %d" % KG_WGS)
        e("s_cmp_ge_u32 s2, %d" % PREP_WGS)
        e("s_cselect_b32 s4, %d, 0" % PREP_WGS)
        e("s_sub_u32 s2, s2, s4")
    tl_begin()
    e("s_cmp_ge_u32 s2, %d" % (KG_WGS + LN_WGS))
    e("s_cbranch_scc1 prep_wt")
    e("s_cmp_ge_u32 s2, %d" % KG_WGS)
    e("s_cbranch_scc1 prep_ln")
    if "kg" in SKIP: e("s_endpgm")
    e("s_load_dwordx4 s[40:43], s[0:1], 8")
    e("s_load_dwordx4 s[44:47], s[0:1], 24")
    e("s_load_dwordx2 s[48:49], s[0:1], 40")
    e("s_mov_b32 s4, s2")
    e("s_mul_i32 s5, s3, %d" % KG_LDS_WAVE)
    e("s_lshl_b32 s6, s4, 8")
    e("s_lshl_b32 s7, s3, 6")
    e("s_add_u32 s6, s6, s7")
    e("v_and_b32 v3, 31, v2")
    e("v_lshl_add_u32 v3, v3, 1, s6")
    e("s_lshl_b32 s7, s4, 1")
    e("v_mov_b32 v4, s7")
    e("s_waitcnt lgkmcnt(0)")
    srd(8, 40, D*N*2); srd(12, 42, D*N*2); srd(16, 44, D*N*2); srd(20, 46, D*N*2)
    srd(24, 48, D*2); srd(28, 56, WS_SIZE)
    for k, sr in enumerate((8, 12, 16, 20)):
        e(f"buffer_load_ushort v{10+k}, v3, s[{sr}:{sr+3}], 0 offen")
    e("buffer_load_ushort v18, v4, s[24:27], 0 offen")
    e("v_and_b32 v8, 15, v2")
    e("v_lshrrev_b32 v9, 4, v2")
    e("v_and_b32 v24, 7, v8")
    e("v_lshrrev_b32 v25, 3, v8")
    e("v_lshl_add_u32 v28, v25, 7, v24")
    e("v_and_b32 v24, 3, v8")
    e("v_lshlrev_b32 v24, 1, v24")
    e("v_bfe_u32 v25, v8, 2, 1")
    e("v_lshl_add_u32 v24, v25, 7, v24")
    e("v_add_u32 v24, 256, v24")
    e("v_and_b32 v25, 1, v8")
    e("v_lshlrev_b32 v25, 2, v25")
    e("v_bfe_u32 v26, v8, 1, 2")
    e("v_lshl_add_u32 v25, v26, 7, v25")
    e("v_add_u32 v25, 512, v25")
    e("v_cmp_gt_u32 vcc, 8, v8")
    e("s_nop 1")
    e("v_cndmask_b32 v29, v25, v24, vcc")
    e("v_lshlrev_b32 v30, 7, v8")
    e("v_add_u32 v30, 0x400, v30")
    e("v_lshlrev_b32 v31, 3, v8")
    for t in range(4):
        e(f"v_cvt_f32_u32 v{28+t}, v{28+t}")
    e("s_mul_i32 s6, s3, %d" % KG_TAB)
    e("s_add_u32 s6, s6, %d" % KG_TAB0)
    e("v_and_b32 v24, 1, v9")
    e("v_lshrrev_b32 v25, 1, v9")
    e("v_lshl_add_u32 v33, v8, 5, s6")
    e("v_lshl_add_u32 v33, v24, 4, v33")
    e("v_lshl_add_u32 v33, v25, 9, v33")
    e("v_lshlrev_b32 v24, 4, v8")
    e("v_lshlrev_b32 v25, 3, v8")
    e("v_cmp_gt_u32 vcc, 2, v9")
    e("s_nop 1")
    e("v_cndmask_b32 v24, v25, v24, vcc")
    e("v_lshl_add_u32 v24, v9, 8, v24")
    e("v_add_u32 v24, s6, v24")
    e("v_add_u32 v34, 1024, v24")
    e("v_mov_b32 v25, 128")
    e("v_cndmask_b32_e64 v24, v25, 8, vcc")
    e("v_add_u32 v36, v34, v24")
    e("v_lshl_add_u32 v38, v8, 2, s6")
    e("v_lshl_add_u32 v38, v9, 8, v38")
    e("v_add_u32 v38, 2048, v38")
    e("v_lshl_add_u32 v39, v9, 4, s5")
    for r in range(40, 52):
        e(f"v_mov_b32 v{r}, 0")
    e("s_waitcnt vmcnt(0)")
    tl(1)
    for r in (10, 11, 12, 13, 18):
        e(f"v_lshlrev_b32 v{r}, 16, v{r}")
    e(f"v_mul_f32 v18, {LOG2E:#x}, v18")
    e(f"v_mul_f32 v10, {LOG2E:#x}, v10")
    e("v_exp_f32 v18, v18")
    e("v_exp_f32 v10, v10")
    e("s_nop 0")
    e("v_cvt_pk_bf16_f32 v18, v18, v18")
    e("v_cvt_pk_bf16_f32 v10, v10, v10")
    e("v_lshlrev_b32 v18, 16, v18")
    e("v_lshlrev_b32 v10, 16, v10")
    e("v_add_f32 v19, v18, v18")
    e("v_and_b32 v5, 31, v2")
    e("v_lshl_add_u32 v5, v5, 4, s5")
    e("v_mul_f32 v20, v10, v18")
    e(f"v_mul_f32 v20, {LOG2E|0x80000000:#x}, v20")
    e("v_mul_f32 v21, v11, v18")
    e(f"v_mul_f32 v21, {INV2PI:#x}, v21")
    e("v_mul_f32 v22, v12, v19")
    e("v_mul_f32 v23, v13, v19")
    e("ds_write_b128 v5, v[20:23]")
    e("s_waitcnt lgkmcnt(0)")
    for st in range(2 if KGR else 8):
        e(f"ds_read_b128 v[{96+4*st}:{99+4*st}], v39 offset:{64*st}")
    if not KGR: e("s_waitcnt lgkmcnt(0)")
    def kg_valu(st):
        P = 96 + 4*st
        O = 72 + 10*(st & 1)
        v = []
        for t in range(4):
            v.append(f"v_mul_f32 v{52+t}, v{P}, v{28+t}")
            v.append(f"v_mul_f32 v{56+t}, v{P+1}, v{28+t}")
        for t in range(4):
            v.append(f"v_exp_f32 v{52+t}, v{52+t}")
            v.append(f"v_fract_f32 v{56+t}, v{56+t}")
        for t in range(4):
            v.append(f"v_cos_f32 v{60+t}, v{56+t}")
            v.append(f"v_sin_f32 v{64+t}, v{56+t}")
        for t in range(4):
            v.append(f"v_mul_f32 v{60+t}, v{52+t}, v{60+t}")
            v.append(f"v_mul_f32 v{64+t}, v{52+t}, v{64+t}")
        v.append(f"v_mul_f32 v55, v63, v{P+2}")
        v.append(f"v_mul_f32_e64 v59, -v63, v{P+3}")
        v.append(f"v_fma_f32 v55, -v67, v{P+3}, v55")
        v.append(f"v_fma_f32 v59, -v67, v{P+2}, v59")
        if KGR: v.append(f"ds_read_b128 v[{P}:{P+3}], v39 offset:{128 + 64*st}")
        def split(xr, xi, H, Lo, t0, t1):
            v.append(f"v_cvt_pk_bf16_f32 v{H}, v{xr}, v{xi}")
            v.append(f"v_lshlrev_b32 v{t0}, 16, v{H}")
            v.append(f"v_and_b32 v{t1}, 0xffff0000, v{H}")
            v.append(f"v_sub_f32 v{t0}, v{xr}, v{t0}")
            v.append(f"v_sub_f32 v{t1}, v{xi}, v{t1}")
            v.append(f"v_cvt_pk_bf16_f32 v{Lo}, v{t0}, v{t1}")
        split(55, 59, O, O+2, 68, 69)
        v.append(f"v_mov_b32 v{O+1}, v{O}")
        v.append(f"v_mov_b32 v{O+3}, v{O+2}")
        for t in range(3):
            split(60+t, 64+t, O+4+2*t, O+5+2*t, 52+t, 56+t)
        return v
    def kg_mfma(st):
        O = 72 + 10*(st & 1)
        m = []
        for h in range(2):
            for t in range(3):
                a = 40 + 4*t
                m.append(f"v_mfma_f32_16x16x16_bf16 v[{a}:{a+3}], v[{O+4+2*t}:{O+5+2*t}], v[{O+2*h}:{O+2*h+1}], v[{a}:{a+3}]")
        return m
    if KGR:
        for r in range(82, 92): e(f"v_mov_b32 v{r}, 0")
        e("s_mov_b32 s7, 4")
        lab("kg_loop")
    for st in ((0, 1, 2) if KGR else range(9)):
        v = kg_valu(st) if st < (2 if KGR else 8) else []
        m = kg_mfma(st-1) if (st > 0 or KGR) else []
        if KGR and st < 2: e("s_waitcnt lgkmcnt(1)")
        if KGR and st == 2:
            e("v_add_u32 v39, 128, v39")
            e("s_sub_u32 s7, s7, 1")
            e("s_cmp_lg_u32 s7, 0")
            e("s_cbranch_scc1 kg_loop")
        if "kgm" in SKIP: m = []
        if "kgv" in SKIP: v = []
        if not v:
            e("s_nop 1")
        vi = 0
        for mi, mm_ in enumerate(m):
            tgt = 2 + 7*mi
            while vi < min(tgt, len(v)):
                e(v[vi]); vi += 1
            e(mm_)
        while vi < len(v):
            e(v[vi]); vi += 1
    e("s_nop 15")
    tl(2)
    for r in range(4):
        e(f"ds_write_b32 v33, v{40+r} offset:{4*r}")
    e("ds_write_b32 v34, v44")
    e("ds_write_b32 v34, v45 offset:4")
    e("ds_write_b32 v36, v46")
    e("ds_write_b32 v36, v47 offset:4")
    e("s_mov_b32 exec_hi, 0xffff")
    e("ds_write_b32 v38, v48")
    e("s_mov_b32 exec_hi, 0")
    for r in range(1, 4):
        e(f"ds_write_b32 v38, v{48+r} offset:{64*r}")
    e("s_mov_b32 exec_hi, -1")
    e("s_mul_i32 s4, s4, %d" % KR_STRIDE)
    e("s_add_u32 s4, s4, %d" % WS_KR)
    e("v_lshlrev_b32 v39, 4, v0")
    e("v_lshlrev_b32 v64, 3, v0")
    e("v_sub_u32 v64, 2047, v64")
    e("v_lshlrev_b32 v65, 2, v0")
    e("v_lshlrev_b32 v66, 1, v0")
    for k in range(8):
        e(f"v_subrev_u32 v{52+k}, {k}, v64")
        e(f"v_cvt_f32_u32 v{72+k}, v{52+k}")
    for k in range(4):
        e(f"v_cvt_pk_bf16_f32 v{80+k}, v{72+2*k}, v{73+2*k}")
        e(f"v_and_b32 v{72+2*k}, 0xffff, v{80+k}")
        e(f"v_lshrrev_b32 v{73+2*k}, 16, v{80+k}")
    for k in range(8):
        e(f"v_subrev_u32 v{72+k}, 17024, v{72+k}")
        e(f"v_cmp_gt_u32 vcc, 256, v{52+k}")
        e("s_nop 1")
        e(f"v_cndmask_b32 v{52+k}, v{72+k}, v{52+k}, vcc")
        e(f"v_lshlrev_b32 v{52+k}, 1, v{52+k}")
    e("s_waitcnt lgkmcnt(0)")
    e("s_barrier")
    tl(3)
    for m in range(3):
        for ww in range(4):
            e(f"ds_read_b32 v{72+4*m+ww}, v65 offset:{KG_TAB0 + ww*KG_TAB + 1024*m}")
    for m in range(3):
        e(f"s_waitcnt lgkmcnt({8-4*m})")
        e(f"v_add_f32 v{72+4*m}, v{72+4*m}, v{73+4*m}")
        e(f"v_add_f32 v{74+4*m}, v{74+4*m}, v{75+4*m}")
        e(f"v_add_f32 v{72+4*m}, v{72+4*m}, v{74+4*m}")
        e(f"v_cvt_pk_bf16_f32 v{72+4*m}, v{72+4*m}, v{72+4*m}")
        e(f"ds_write_b16 v66, v{72+4*m} offset:{KG_FIN + 512*m}")
    e("s_waitcnt lgkmcnt(0)")
    e("s_barrier")
    tl(4)
    for k in range(8):
        e(f"ds_read_u16 v{96+k}, v{52+k} offset:{KG_FIN}")
    e("s_waitcnt lgkmcnt(0)")
    for k in range(4):
        e(f"v_lshl_or_b32 v{112+k}, v{97+2*k}, 16, v{96+2*k}")
    e(f"buffer_store_dwordx4 v[112:115], v39, s[28:31], s4 offen")
    for k in range(4):
        e(f"v_mov_b32 v{116+k}, 0")
    e("v_cmp_gt_u32 vcc, 8, v0")
    e("s_and_saveexec_b64 s[32:33], vcc")
    e("s_cbranch_execz prep_end")
    e("s_add_u32 s4, s4, 4096")
    e("buffer_store_dwordx4 v[116:119], v39, s[28:31], s4 offen")
    if MBX:
        e("s_cmp_ge_u32 s2, 256")
        e("s_cbranch_scc1 prep_end")
        e("v_lshlrev_b32 v40, 3, v0")
        e("s_lshl_b32 s4, s2, %d" % MBX)
        e("s_add_u32 s4, s4, %d" % WS_MB)
        e("buffer_store_dwordx2 v[116:117], v40, s[28:31], s4 offen")
    e("v_lshlrev_b32 v39, %d, v0" % CSH)
    tl(5)
    if TL: e("s_waitcnt vmcnt(0)")
    tl_end(0)
    if FUSE or not (EMU & 1 and (SCL & 2 or FMAP >= 2)):
        e("s_cmp_lg_u32 s2, 0")
        e("s_cbranch_scc1 prep_end")
        e("s_mov_b32 s4, %d" % WS_CNT)
        e("buffer_store_dword v116, v39, s[28:31], s4 offen")
        e("s_add_u32 s4, s4, %d" % (8 << CSH))
        e("buffer_store_dword v116, v39, s[28:31], s4 offen")
        e("s_add_u32 s4, s4, %d" % (8 << CSH))
        e("buffer_store_dword v116, v39, s[28:31], s4 offen")
    e("s_endpgm")
    lab("prep_ln")
    if "ln" in SKIP: e("s_endpgm")
    if PRIO & 1: e("s_setprio 3")
    e("s_load_dwordx2 s[40:41], s[0:1], 0")
    e("s_sub_u32 s2, s2, %d" % KG_WGS)
    e("v_and_b32 v3, 15, v0")
    e("v_lshrrev_b32 v4, 4, v0")
    e("s_lshl_b32 s5, s2, 4")
    e("v_add_u32 v5, s5, v4")
    e("v_mul_u32_u24 v6, 1280, v5")
    e("v_lshl_add_u32 v6, v3, 4, v6")
    e("s_waitcnt lgkmcnt(0)")
    srd(8, 40, L*D*2); srd(28, 56, WS_SIZE)
    if DLYL: e(f"s_sleep {DLYL}")
    for j in range(5):
        e(f"buffer_load_dwordx4 v[{16+4*j}:{19+4*j}], v6, s[8:11], 0 offen offset:{256*j}")
    e("s_lshr_b32 s6, s2, 1")
    e("s_mul_i32 s6, s6, %d" % (40*1024))
    e("s_add_u32 s6, s6, %d" % WS_XNF)
    e("v_lshrrev_b32 v7, 1, v3")
    e("v_lshlrev_b32 v7, 10, v7")
    e("v_and_b32 v8, 1, v3")
    e("v_lshl_add_u32 v7, v8, 9, v7")
    e("v_and_b32 v8, 31, v5")
    e("v_lshl_add_u32 v7, v8, 4, v7")
    e(f"v_mul_u32_u24 v9, {8*LNS}, v3")
    e("v_lshl_add_u32 v9, v4, 1, v9")
    e("s_waitcnt vmcnt(0)")
    tl(1)
    for k in range(20):
        e(f"v_lshlrev_b32 v{40+2*k}, 16, v{16+k}")
        e(f"v_and_b32 v{41+2*k}, 0xffff0000, v{16+k}")
    def lane_sum(srcs, acc):
        for a in range(4):
            e(f"v_add_f32 v{acc+a}, v{srcs[a]}, v{srcs[a+4]}")
        for k in range(8, len(srcs)):
            e(f"v_add_f32 v{acc+(k%4)}, v{acc+(k%4)}, v{srcs[k]}")
        e(f"v_add_f32 v{acc}, v{acc}, v{acc+1}")
        e(f"v_add_f32 v{acc+2}, v{acc+2}, v{acc+3}")
        e(f"v_add_f32 v{acc}, v{acc}, v{acc+2}")
        for sh in (8, 4, 2, 1):
            e("s_nop 1")
            e(f"v_add_f32_dpp v{acc}, v{acc}, v{acc} row_ror:{sh} row_mask:0xf bank_mask:0xf")
    lane_sum(list(range(40, 80)), 10)
    e("v_mul_f32 v14, 0x3acccccd, v10")
    for k in range(40):
        e(f"v_sub_f32 v{80+k}, v{40+k}, v14")
        e(f"v_mul_f32 v{80+k}, v{80+k}, v{80+k}")
    lane_sum(list(range(80, 120)), 10)
    e("v_mul_f32 v10, 0x3acccccd, v10")
    e("v_cvt_pk_bf16_f32 v10, v10, v14")
    e("v_and_b32 v14, 0xffff0000, v10")
    e("v_lshlrev_b32 v10, 16, v10")
    e("v_add_f32 v10, 0x3727c5ac, v10")
    e("v_cvt_pk_bf16_f32 v10, v10, v10")
    e("v_lshlrev_b32 v10, 16, v10")
    e("v_sqrt_f32 v10, v10")
    e("s_nop 0")
    e("v_cvt_pk_bf16_f32 v10, v10, v10")
    e("v_lshlrev_b32 v10, 16, v10")
    e("v_rcp_f32 v11, v10")
    e("s_nop 0")
    e("v_fma_f32 v12, -v10, v11, 2.0")
    e("v_mul_f32 v11, v11, v12")
    for k in range(20):
        e(f"v_sub_f32 v{40+2*k}, v{40+2*k}, v14")
        e(f"v_sub_f32 v{41+2*k}, v{41+2*k}, v14")
        e(f"v_cvt_pk_bf16_f32 v{16+k}, v{40+2*k}, v{41+2*k}")
        e(f"v_lshlrev_b32 v{40+2*k}, 16, v{16+k}")
        e(f"v_and_b32 v{41+2*k}, 0xffff0000, v{16+k}")
        e(f"v_mul_f32 v{40+2*k}, v{40+2*k}, v11")
        e(f"v_mul_f32 v{41+2*k}, v{41+2*k}, v11")
        e(f"v_cvt_pk_bf16_f32 v{16+k}, v{40+2*k}, v{41+2*k}")
    tl(2)
    for j in range(5):
        if "xnf" not in SKIP: e(f"buffer_store_dwordx4 v[{16+4*j}:{19+4*j}], v7, s[28:31], s6 offen")
        if j < 4: e("s_add_u32 s6, s6, 8192")
    for j in range(5):
        for el in range(8):
            r = 16 + 4*j + el//2
            op = "ds_write_b16_d16_hi" if el & 1 else "ds_write_b16"
            e(f"{op} v9, v{r} offset:{(128*j + el)*LNS}")
    e("v_lshrrev_b32 v10, 1, v0")
    e("v_and_b32 v11, 1, v0")
    e(f"v_mul_u32_u24 v12, {LNS}, v10")
    e("v_lshl_add_u32 v12, v11, 4, v12")
    e("v_lshlrev_b32 v13, 4, v0")
    e("s_mul_i32 s6, s2, 20480")
    e("s_add_u32 s6, s6, %d" % WS_XNT)
    e("s_waitcnt lgkmcnt(0)")
    e("s_barrier")
    tl(3)
    for j in range(5):
        e(f"ds_read2_b32 v[{40+4*j}:{41+4*j}], v12 offset0:{(128*j*LNS)//4 % 256} offset1:{(128*j*LNS)//4 % 256 + 1}")
        e(f"ds_read2_b32 v[{42+4*j}:{43+4*j}], v12 offset0:{(128*j*LNS)//4 % 256 + 2} offset1:{(128*j*LNS)//4 % 256 + 3}")
        if j < 4:
            nxt = (128*(j+1)*LNS)//4 // 256 - (128*j*LNS)//4 // 256
            e(f"v_add_u32 v12, {nxt*1024}, v12")
    for j in range(5):
        e(f"s_waitcnt lgkmcnt({2*(4-j)})")
        if "xnt" not in SKIP: e(f"buffer_store_dwordx4 v[{40+4*j}:{43+4*j}], v13, s[28:31], s6 offen")
        if j < 4: e("s_add_u32 s6, s6, %d" % (128*32))
    tl(5)
    if TL: e("s_waitcnt vmcnt(0)")
    tl_end(0)
    e("s_endpgm")
    lab("prep_wt")
    if W1D: gen_wt(KG_WGS + LN_WGS, 270, 540, "prep_end", 0, DLYW)
    else: gen_wt(KG_WGS + LN_WGS, 0, 270 if W2MID else 0, "prep_end", 0, DLYW)
    lab("prep_end")
    e("s_endpgm")
    kernel_desc("prep_kernel", 160 if EMU & 4 else 128)

G1_WGS = 256
CV_WGS = int(os.environ.get("NCV", 256)) if CVL else 640
W2_WGS = 68 if W2MID else 0
MID_WGS = G1_WGS + CV_WGS + W2_WGS
CS = 4160
def CB(c): return c*CS + (32 if c >= 4 else 0)
UB = CB(7) + CS - 80
G1_NS, G1_BD = int(os.environ.get('G1NS', 5)), int(os.environ.get('G1BD', 4))
MID_LDS = max(40960, 7168*G1_NS)

def mish_pairs(acc0, acc1, b0, b1r, dst, t):
    e(f"v_cvt_pk_bf16_f32 v{t}, v{acc0}, v{acc1}")
    e(f"v_lshlrev_b32 v{t+1}, 16, v{t}")
    e(f"v_and_b32 v{t+2}, 0xffff0000, v{t}")
    e(f"v_add_f32 v{t+1}, v{t+1}, v{b0}")
    e(f"v_add_f32 v{t+2}, v{t+2}, v{b1r}")
    e(f"v_cvt_pk_bf16_f32 v{t}, v{t+1}, v{t+2}")
    e(f"v_lshlrev_b32 v{t+1}, 16, v{t}")
    e(f"v_and_b32 v{t+2}, 0xffff0000, v{t}")
    if MISH2:
        e(f"v_mul_f32 v{t+3}, {LOG2E:#x}, v{t+1}")
        e(f"v_mul_f32 v{t+4}, {LOG2E:#x}, v{t+2}")
        e(f"v_exp_f32 v{t+3}, v{t+3}")
        e(f"v_exp_f32 v{t+4}, v{t+4}")
        e(f"s_nop 0")
        e(f"v_add_f32 v{t+3}, 1.0, v{t+3}")
        e(f"v_add_f32 v{t+4}, 1.0, v{t+4}")
        e(f"v_fmaak_f32 v{t+3}, v{t+3}, v{t+3}, 0x3f800000")
        e(f"v_fmaak_f32 v{t+4}, v{t+4}, v{t+4}, 0x3f800000")
        e(f"v_rcp_f32 v{t+3}, v{t+3}")
        e(f"v_rcp_f32 v{t+4}, v{t+4}")
        e(f"s_nop 0")
        e(f"v_fmaak_f32 v{t+3}, -2.0, v{t+3}, 0x3f800000")
        e(f"v_fmaak_f32 v{t+4}, -2.0, v{t+4}, 0x3f800000")
        e(f"v_mul_f32 v{t+1}, v{t+1}, v{t+3}")
        e(f"v_mul_f32 v{t+2}, v{t+2}, v{t+4}")
    else:
        e(f"v_min_f32 v{t+3}, 0x41a00000, v{t+1}")
        e(f"v_min_f32 v{t+4}, 0x41a00000, v{t+2}")
        e(f"v_mul_f32 v{t+3}, {LOG2E:#x}, v{t+3}")
        e(f"v_mul_f32 v{t+4}, {LOG2E:#x}, v{t+4}")
        e(f"v_exp_f32 v{t+3}, v{t+3}")
        e(f"v_exp_f32 v{t+4}, v{t+4}")
        e(f"s_nop 0")
        e(f"v_add_f32 v{t}, 2.0, v{t+3}")
        e(f"v_add_f32 v{t+5}, 2.0, v{t+4}")
        e(f"v_mul_f32 v{t+3}, v{t+3}, v{t}")
        e(f"v_mul_f32 v{t+4}, v{t+4}, v{t+5}")
        e(f"v_add_f32 v{t}, 2.0, v{t+3}")
        e(f"v_add_f32 v{t+5}, 2.0, v{t+4}")
        e(f"v_rcp_f32 v{t}, v{t}")
        e(f"v_rcp_f32 v{t+5}, v{t+5}")
        e(f"v_mul_f32 v{t+1}, v{t+1}, v{t+3}")
        e(f"v_mul_f32 v{t+2}, v{t+2}, v{t+4}")
        e(f"v_mul_f32 v{t+1}, v{t+1}, v{t}")
        e(f"v_mul_f32 v{t+2}, v{t+2}, v{t+5}")
    e(f"v_cvt_pk_bf16_f32 v{dst}, v{t+1}, v{t+2}")

def mish_quad(ac, T, dst):
    H = [T+4, T+8]; E = [T+6, T+10]; P = [T+12, T+13]
    pr = lambda r: f"v[{r}:{r+1}]"
    for q in range(2): e(f"v_cvt_pk_bf16_f32 v{P[q]}, v{ac+2*q}, v{ac+2*q+1}")
    for q in range(2):
        e(f"v_lshlrev_b32 v{H[q]}, 16, v{P[q]}")
        e(f"v_and_b32 v{H[q]+1}, 0xffff0000, v{P[q]}")
    for q in range(2): e(f"v_pk_add_f32 {pr(H[q])}, {pr(H[q])}, {pr(T+2*q)}")
    for q in range(2): e(f"v_cvt_pk_bf16_f32 v{P[q]}, v{H[q]}, v{H[q]+1}")
    for q in range(2):
        e(f"v_lshlrev_b32 v{H[q]}, 16, v{P[q]}")
        e(f"v_and_b32 v{H[q]+1}, 0xffff0000, v{P[q]}")
    for q in range(2): e(f"v_pk_mul_f32 {pr(E[q])}, {pr(H[q])}, s[46:47]")
    for q in range(2):
        e(f"v_exp_f32 v{E[q]}, v{E[q]}")
        e(f"v_exp_f32 v{E[q]+1}, v{E[q]+1}")
    for q in range(2): e(f"v_pk_add_f32 {pr(E[q])}, {pr(E[q])}, v[40:41]")
    for q in range(2): e(f"v_pk_fma_f32 {pr(E[q])}, {pr(E[q])}, {pr(E[q])}, v[40:41]")
    for q in range(2):
        e(f"v_rcp_f32 v{E[q]}, v{E[q]}")
        e(f"v_rcp_f32 v{E[q]+1}, v{E[q]+1}")
    for q in range(2): e(f"v_pk_fma_f32 {pr(E[q])}, {pr(E[q])}, v[42:43], v[40:41]")
    for q in range(2): e(f"v_pk_mul_f32 {pr(H[q])}, {pr(H[q])}, {pr(E[q])}")
    for q in range(2): e(f"v_cvt_pk_bf16_f32 v{dst+q}, v{H[q]}, v{H[q]+1}")

def gemm_loop(nA, nsteps, KS, NS, frag_reg, acc_reg, voff, srdws, sA0, sB0, stride, spiece, vlds_r_b, vlds_r_lane):
    nR = nA + 4
    npieces = nR * KS
    npw = (npieces + 3) // 4
    SZ = npieces * 1024
    nchunks = nsteps // KS
    assert nsteps % KS == 0
    e(f"s_sub_u32 s{sB0}, s{sB0}, {nA*stride}")
    for i in range(npw):
        g, l = spiece + 2*i, spiece + 2*i + 1
        e(f"s_add_u32 s{l}, s3, {4*i}")
        e(f"s_min_u32 s{l}, s{l}, {npieces-1}")
        sh = {1: 0, 2: 1, 4: 2}[KS]
        e(f"s_lshr_b32 s{g}, s{l}, {sh}")
        e(f"s_cmp_lt_u32 s{g}, {nA}")
        e(f"s_cselect_b32 s6, s{sA0}, s{sB0}")
        e(f"s_mul_i32 s{g}, s{g}, {stride}")
        e(f"s_add_u32 s{g}, s{g}, s6")
        e(f"s_and_b32 s6, s{l}, {KS-1}")
        e(f"s_lshl_b32 s6, s6, 10")
        e(f"s_add_u32 s{g}, s{g}, s6")
        e(f"s_lshl_b32 s{l}, s{l}, 10")
    def dma(c):
        slot = c % NS
        for i in range(npw):
            e(f"s_add_u32 m0, s{spiece+2*i+1}, {slot*SZ}")
            e("s_nop 0")
            e(f"buffer_load_dwordx4 v{voff}, s[{srdws}:{srdws+3}], s{spiece+2*i} offen lds")
        e(f"v_add_u32 v{voff}, {KS*1024}, v{voff}")
    per = nA + 1
    HALF = 2*SZ
    e(f"v_add_u32 v12, {HALF}, v{vlds_r_b}")
    e(f"v_add_u32 v13, {HALF}, v{vlds_r_lane}")
    e(f"v_add_u32 v14, {2*HALF}, v{vlds_r_b}")
    e(f"v_add_u32 v15, {2*HALF}, v{vlds_r_lane}")
    def reads(slot, q):
        fr = frag_reg + 4*per*q
        vb, vl, so = [(vlds_r_b, vlds_r_lane, slot*SZ), (12, 13, slot*SZ - HALF), (14, 15, slot*SZ - 2*HALF)][slot//2]
        e(f"ds_read_b128 v[{fr}:{fr+3}], v{vb} offset:{so + q*1024}")
        for a in range(nA):
            e(f"ds_read_b128 v[{fr+4+4*a}:{fr+7+4*a}], v{vl} offset:{so + a*KS*1024 + q*1024}")
    def mfmas(q):
        fr = frag_reg + 4*per*q
        for a in range(nA):
            ac = acc_reg + 16*a
            e(f"v_mfma_f32_32x32x16_bf16 v[{ac}:{ac+15}], v[{fr+4+4*a}:{fr+7+4*a}], v[{fr}:{fr+3}], v[{ac}:{ac+15}]")
    for c in range(min(NS-1, nchunks)):
        dma(c)
    for c in range(nchunks):
        inflight = min(NS-2, nchunks-1-c)
        e(f"s_waitcnt vmcnt({inflight*npw})")
        e("s_barrier")
        if nA == 2 and c == 0: stamp(2)
        if nA == 2 and c == 1: stamp(3)
        slot = c % NS
        if "rd" not in SKIP:
            for q in range(KS):
                reads(slot, q)
        if c + NS - 1 < nchunks and "dma" not in SKIP:
            dma(c + NS - 1)
        for q in range(KS):
            e(f"s_waitcnt lgkmcnt({(KS-1-q)*per})")
            if "mf" not in SKIP: mfmas(q)


UB2 = CB(7) + CS
HS = 2432
def gen_conv2():
    if "cv" in SKIP: e("s_endpgm")
    if PRIO & 8: e("s_setprio 3")
    srd(8, 60, D*2)
    def dmap(si):
        e(f"s_and_b32 s5, s{si}, 7")
        e("s_lshl_b32 s5, s5, 2")
        e(f"s_bfe_u32 s6, s{si}, 0x20003")
        e("s_or_b32 s5, s5, s6")
        e(f"s_andn2_b32 s4, s{si}, 31")
        e("s_or_b32 s4, s4, s5")
    def cvload():
        dmap(95)
        e("s_lshl_b32 s5, s4, 1")
        e("v_mov_b32 v144, s5")
        e("buffer_load_ushort v128, v144, s[8:11], 0 offen")
        e("s_lshl_b32 s5, s4, 5")
        e("s_add_u32 s5, s5, %d" % WS_XNT)
        e("buffer_load_dwordx4 v[132:135], v145, s[28:31], s5 offen")
        e("s_mul_i32 s6, s4, %d" % KR_STRIDE)
        e("s_add_u32 s6, s6, %d" % WS_KR)
        e("buffer_load_dwordx4 v[136:139], v146, s[28:31], s6 offen")
        e("buffer_load_dwordx4 v[140:143], v146, s[28:31], s6 offen offset:16")
    if CVL:
        e("s_sub_u32 s95, s2, %d" % G1_WGS)
        e("s_mov_b32 s89, -1")
        e("v_lshrrev_b32 v145, 1, v0")
        e("v_mul_u32_u24 v145, 20480, v145")
        e("v_and_b32 v146, 1, v0")
        e("v_lshl_add_u32 v145, v146, 4, v145")
        e("v_lshlrev_b32 v146, 4, v0")
        if DLYC: e(f"s_sleep {DLYC}")
        cvload()
        e("s_waitcnt vmcnt(0)")
        lab("cv_loop")
        e("s_waitcnt vmcnt(2)")
        e("v_mov_b32 v1, v128")
        for r in range(12): e(f"v_mov_b32 v{8+r}, v{132+r}")
        e("s_mov_b32 s93, s95")
        e("s_add_u32 s95, s95, %d" % CV_WGS)
        e("s_cmp_ge_u32 s95, 640")
        e("s_cbranch_scc1 cv_nl")
        cvload()
        lab("cv_nl")
        dmap(93)
        e("s_mov_b32 s93, s4")
        e("v_lshlrev_b32 v4, 4, v0")
    else:
        e("s_sub_u32 s4, s2, %d" % G1_WGS)
        e("s_and_b32 s5, s4, 7")
        e("s_lshl_b32 s5, s5, 2")
        e("s_bfe_u32 s6, s4, 0x20003")
        e("s_or_b32 s5, s5, s6")
        e("s_andn2_b32 s4, s4, 31")
        e("s_or_b32 s4, s4, s5")
        if FUSE: e("s_mov_b32 s93, s4")
        e("s_lshl_b32 s5, s4, 1")
        e("v_mov_b32 v3, s5")
        if DLYC: e(f"s_sleep {DLYC}")
        e("buffer_load_ushort v1, v3, s[8:11], 0 offen")
        e("s_lshl_b32 s5, s4, 5")
        e("s_add_u32 s5, s5, %d" % WS_XNT)
        e("v_lshrrev_b32 v4, 1, v0")
        e("v_mul_u32_u24 v4, 20480, v4")
        e("v_and_b32 v5, 1, v0")
        e("v_lshl_add_u32 v4, v5, 4, v4")
        e("buffer_load_dwordx4 v[8:11], v4, s[28:31], s5 offen")
        e("v_lshlrev_b32 v4, 4, v0")
        e("s_mul_i32 s6, s4, %d" % KR_STRIDE)
        e("s_add_u32 s6, s6, %d" % WS_KR)
        e("buffer_load_dwordx4 v[12:15], v4, s[28:31], s6 offen")
        e("buffer_load_dwordx4 v[16:19], v4, s[28:31], s6 offen offset:16")
    if not CV3:
        e("v_min_u32 v5, 3, v0")
        e("v_lshlrev_b32 v5, 4, v5")
        e("v_add_u32 v5, 4096, v5")
        e("buffer_load_dwordx4 v[20:23], v5, s[28:31], s6 offen")
        e("buffer_load_dwordx4 v[24:27], v5, s[28:31], s6 offen offset:16")
    for k in range(4):
        e(f"v_mov_b32 v{28+k}, 0")
    e("v_min_u32 v6, 31, v0")
    e("v_lshrrev_b32 v7, 4, v6")
    e("v_and_b32 v6, 15, v6")
    e("v_lshlrev_b32 v6, 4, v6")
    e(f"v_mad_u32_u24 v6, v7, {HS}, v6") if False else (e(f"v_mul_u32_u24 v7, {HS}, v7"), e("v_add_u32 v6, v6, v7"))
    if CV3:
        e("s_cmp_lg_u32 s3, 0")
        e("s_cbranch_scc1 cv_nz")
        e(f"v_add_u32 v6, {UB2}, v6")
        e("v_subrev_u32 v7, 32, v0")
        e("v_min_u32 v7, 7, v7")
        e("v_lshrrev_b32 v5, 2, v7")
        e(f"v_mul_u32_u24 v7, {CS}, v7")
        e("v_lshl_add_u32 v7, v5, 5, v7")
        e("v_add_u32 v7, 4096, v7")
        e("v_cmp_gt_u32 vcc, 32, v0")
        e("s_nop 1")
        e("v_cndmask_b32 v6, v7, v6, vcc")
        e("s_mov_b32 exec_hi, 0xff")
        e("ds_write_b128 v6, v[28:31]")
        e("s_mov_b32 exec_hi, -1")
        lab("cv_nz")
    else:
        e(f"ds_write_b128 v6, v[28:31] offset:{UB2}")
    e("v_lshrrev_b32 v6, 1, v0")
    e("v_lshlrev_b32 v6, 4, v6")
    e("v_and_b32 v7, 1, v0")
    e(f"v_mul_u32_u24 v7, {HS}, v7")
    e("v_add_u32 v6, v6, v7")
    if not CVL: e("s_waitcnt vmcnt(%d)" % (2 if CV3 else 4))
    e(f"ds_write_b128 v6, v[8:11] offset:{UB2 + 256}")
    def copies(w, vaddr):
        for c in range(8):
            if c % 2 == 0:
                e(f"ds_write_b128 v{vaddr}, v[{w+c//2}:{w+c//2+3}] offset:{CB(c)}") if (w + c//2) % 2 == 0 else None
                if (w + c//2) % 2:
                    for j in range(4):
                        e(f"v_mov_b32 v{32+j}, v{w+c//2+j}")
                    e(f"ds_write_b128 v{vaddr}, v[32:35] offset:{CB(c)}")
            else:
                for j in range(4):
                    e(f"v_alignbit_b32 v{36+j}, v{w+(c+1)//2+j}, v{w+(c-1)//2+j}, 16")
                e(f"ds_write_b128 v{vaddr}, v[36:39] offset:{CB(c)}")
    if not CVL: e("s_waitcnt vmcnt(%d)" % (0 if CV3 else 2))
    tl(1)
    copies(12, 4)
    if not CV3:
        e("s_waitcnt vmcnt(0)")
        copies(20, 5)
    e("v_and_b32 v3, 15, v2")
    e("v_lshrrev_b32 v4, 4, v2")
    e("v_sub_u32 v5, 7, v3")
    e("v_and_b32 v5, 7, v5")
    e("v_sub_u32 v6, 2031, v3")
    e("v_lshl_add_u32 v6, v4, 3, v6")
    e("v_sub_u32 v6, v6, v5")
    e("v_mul_u32_u24 v7, %d, v5" % CS)
    e("v_lshrrev_b32 v8, 2, v5")
    e("v_lshl_add_u32 v7, v8, 5, v7")
    e("v_lshl_add_u32 v6, v6, 1, v7")
    e("s_lshl_b32 s5, s3, 7")
    e(f"s_add_u32 s5, s5, {64 + 3584}")
    e("v_subrev_u32 v8, s5, v6")
    e("v_and_b32 v5, 1, v4")
    e("v_lshrrev_b32 v6, 1, v4")
    e(f"v_mul_u32_u24 v7, {HS}, v5")
    e("v_add_u32 v9, v3, v6")
    e("v_lshl_add_u32 v9, v9, 4, v7")
    e("s_lshl_b32 s5, s3, 6")
    e(f"s_sub_u32 s5, {UB2 + 16*15 - 32}, s5")
    e("v_add_u32 v9, s5, v9")
    e(f"v_mul_u32_u24 v11, {HS}, v6")
    e("v_lshl_add_u32 v11, v3, 4, v11")
    e("v_lshl_add_u32 v11, v5, 3, v11")
    e("s_lshl_b32 s5, s3, 9")
    e("v_add_u32 v11, s5, v11")
    e("v_lshlrev_b32 v12, 5, v3")
    e("v_lshl_add_u32 v12, v4, 3, v12")
    e("v_lshlrev_b32 v10, 4, v2")
    e("s_lshl_b32 s5, s3, 13")
    e("v_add_u32 v13, s5, v10")
    e("s_lshl_b32 s5, s3, 10")
    e("v_add_u32 v10, s5, v10")
    for r in range(16, 48):
        e(f"v_mov_b32 v{r}, 0")
    e("s_waitcnt lgkmcnt(0)")
    tl(2)
    if CVL:
        e("s_waitcnt vmcnt(4)")
        e("s_cmp_lt_u32 s95, 640")
        e("s_cbranch_scc1 cv_b1")
        e("s_waitcnt vmcnt(0)")
        lab("cv_b1")
    e("s_barrier")
    if CVL:
        e("s_cmp_lg_u32 s3, 0")
        e("s_cbranch_scc1 cv_s1")
        e("s_cmp_eq_u32 s89, -1")
        e("s_cbranch_scc1 cv_s1")
        e("s_mov_b64 exec, 1")
        e("v_mov_b32 v147, 1")
        e("v_mov_b32 v148, 0")
        e("buffer_atomic_add v147, v148, s[28:31], s89 offen sc1")
        e("s_mov_b64 exec, -1")
        lab("cv_s1")
    tl(3)
    free = list(range(48, 128, 4))
    loc = {}
    pend = []
    order = [("A",0),("B",7),("B",0),("A",7),("A",1),("B",6),("B",1),("A",6),("A",2),("B",5),("B",2),("A",5),("A",3),("B",4),("B",3),("A",4)]
    todo = [(st,) + o for st in range(2) for o in order]
    def rd(n):
        for _ in range(n):
            if not todo or not free or len(pend) >= 15: return
            key = todo.pop(0); r = free.pop(0); loc[key] = r
            st, ab, i = key
            if ab == "A": e(f"ds_read_b128 v[{r}:{r+3}], v8 offset:{512*(7-i) + 64*(1-st)}")
            else: e(f"ds_read_b128 v[{r}:{r+3}], v9 offset:{256*i + 32*(1-st)}")
            pend.append(key)
    def need(keys):
        idx = [pend.index(k) for k in keys if k in pend]
        if idx:
            last = max(idx)
            e(f"s_waitcnt lgkmcnt({len(pend) - 1 - last})")
            del pend[:last+1]
    groups = []
    for s_ in (7, 6, 5, 4, 3, 2, 1, 0):
        n = min(s_, 7 - s_)
        g = [(s_, m) for m in range(n + 1)] + [(j, s_) for j in range(min(s_ - 1, 7 - s_) + 1)]
        groups.append((s_, g))
    assert sum(len(g) for _, g in groups) == 36
    rd(20)
    for st in range(2):
        for s_, g in groups:
            need([(st, "B", j) for j, m in g] + [(st, "A", m) for j, m in g])
            for j, m in g:
                ac = 16 + 4*(j + m); a = loc[(st, "A", m)]; b = loc[(st, "B", j)]
                e(f"v_mfma_f32_16x16x32_bf16 v[{ac}:{ac+3}], v[{a}:{a+3}], v[{b}:{b+3}], v[{ac}:{ac+3}]")
            free.append(loc[(st, "A", s_)]); free.append(loc[(st, "B", s_)])
            rd(8)
    assert not todo and not pend
    tl(4)
    e("s_nop 15")
    e("s_barrier")
    for t in range(8):
        if CV3 & 2 and t % 2 == 0:
            e(f"s_cmp_eq_u32 s3, {t//2}")
            e(f"s_cbranch_scc1 cv_sk{t//2}")
        e(f"ds_write_b128 v10, v[{16+4*t}:{19+4*t}] offset:{4096*t}")
        if CV3 & 2 and t % 2 == 1:
            e(f"s_branch cv_nx{t//2}")
            lab(f"cv_sk{t//2}")
            for tt in range(2):
                for r in range(4):
                    e(f"v_mov_b32 v{48+16*tt+r}, v{16+4*(t-1+tt)+r}")
            lab(f"cv_nx{t//2}")
    if CV3 & 2:
        for i in range(1, 4):
            e(f"s_add_u32 s5, s3, {i}")
            e("s_and_b32 s5, s5, 3")
            e("s_lshl_b32 s5, s5, 10")
            e(f"v_add_u32 v{4+i}, s5, v13")
    for tt in range(2):
        e(f"ds_read_b64 v[{80+2*tt}:{81+2*tt}], v11 offset:{UB2 + 256 + 256*tt}")
    e("s_lshl_b32 s5, s4, 12")
    e("s_lshl_b32 s6, s3, 10")
    e("s_add_u32 s5, s5, s6")
    e("s_add_u32 s5, s5, %d" % WS_AT)
    e("v_lshlrev_b32 v1, 16, v1")
    e("s_waitcnt lgkmcnt(0)")
    e("s_barrier")
    for i in range(8):
        if CV3 & 2:
            if i % 4: e(f"ds_read_b128 v[{48+4*i}:{51+4*i}], v{4+i%4} offset:{4096*(i//4)}")
        else:
            e(f"ds_read_b128 v[{48+4*i}:{51+4*i}], v13 offset:{1024*i}")
    for tt in range(2):
        for p_ in range(2):
            u = 80 + 2*tt + p_
            e(f"v_lshlrev_b32 v84, 16, v{u}")
            e(f"v_and_b32 v85, 0xffff0000, v{u}")
            e(f"v_mul_f32 v84, v84, v1")
            e(f"v_mul_f32 v85, v85, v1")
            e(f"v_cvt_pk_bf16_f32 v84, v84, v85")
            e(f"v_lshlrev_b32 v{88+4*tt+2*p_}, 16, v84")
            e(f"v_and_b32 v{89+4*tt+2*p_}, 0xffff0000, v84")
    for tt in range(2):
        e(f"s_waitcnt lgkmcnt({(3 - 3*tt) if CV3 & 2 else (4 - 4*tt)})")
        b0 = 48 + 16*tt
        for r in range(4):
            e(f"v_add_f32 v{b0+r}, v{b0+r}, v{b0+4+r}")
            e(f"v_add_f32 v{b0+8+r}, v{b0+8+r}, v{b0+12+r}")
        for r in range(4):
            e(f"v_add_f32 v{b0+r}, v{b0+r}, v{b0+8+r}")
        for p_ in range(2):
            e(f"v_cvt_pk_bf16_f32 v84, v{b0+2*p_}, v{b0+2*p_+1}")
            e(f"v_lshlrev_b32 v85, 16, v84")
            e(f"v_and_b32 v86, 0xffff0000, v84")
            e(f"v_add_f32 v85, v85, v{88+4*tt+2*p_}")
            e(f"v_add_f32 v86, v86, v{89+4*tt+2*p_}")
            e(f"v_cvt_pk_bf16_f32 v{96+2*tt+p_}, v85, v86")
        e(f"buffer_store_dwordx2 v[{96+2*tt}:{97+2*tt}], v12, s[28:31], s5 offen offset:{512*tt}")
    if FUSE:
        e("s_mul_i32 s7, s93, 205")
        e("s_lshr_b32 s7, s7, 14")
        e("s_add_u32 s7, s7, 16")
        if CVL:
            e("s_lshl_b32 s89, s7, 6")
            e("s_add_u32 s89, s89, %d" % WS_CNT)
            e("s_cmp_ge_u32 s95, 640")
            e("s_cbranch_scc1 cv_last")
            e("s_barrier")
            e("s_branch cv_loop")
            lab("cv_last")
        signal(7, "cv_sig")
    tl(5)
    if TL: e("s_waitcnt vmcnt(0)")
    tl_end(1)

def gen_mid():
    kernel_begin("mid_kernel")
    e("s_cmp_ge_u32 s2, %d" % (MID_WGS - SPL))
    e("s_cbranch_scc1 mid_end")
    if EMU & 2:
        e("s_cmp_lt_u32 s2, 256")
        e("s_cbranch_scc1 mid_end")
    lab("mid_body")
    if FUSE: e("s_mov_b32 s90, s2")
    tl_begin()
    e("s_load_dwordx2 s[56:57], s[0:1], 104")
    e("s_load_dwordx2 s[58:59], s[0:1], 72")
    e("s_load_dwordx2 s[60:61], s[0:1], 48")
    if W1D: e("s_load_dwordx2 s[62:63], s[0:1], 64")
    e("v_lshrrev_b32 v1, 6, v0")
    e("v_and_b32 v2, 63, v0")
    e("s_nop 0")
    e("v_readfirstlane_b32 s3, v1")
    e("s_waitcnt lgkmcnt(0)")
    srd(28, 56, WS_SIZE)
    if W2MID:
        e("s_cmp_ge_u32 s2, %d" % (G1_WGS + CV_WGS))
        e("s_cbranch_scc1 mid_wt")
    e("s_cmp_ge_u32 s2, %d" % G1_WGS)
    e("s_cbranch_scc1 mid_conv")
    if "g1" in SKIP: e("s_endpgm")
    if PRIO & 4: e("s_setprio 3")
    srd(8, 58, F*2)
    if W1D: srd(12, 62, D*F*2)
    tl(1)
    if not EMU & 1: claim_tile(0, 32, 7168*G1_NS, "mcl")
    elif SCL & 1: static_claim()
    tl(2)
    if G1MAP == 0:
        e("s_lshr_b32 s5, s2, 4")
        e("s_and_b32 s4, s2, 15")
    else:
        e("s_lshr_b32 s5, s2, 6")
        e("s_lshl_b32 s5, s5, 2")
        e("s_bfe_u32 s6, s2, 0x20003")
        e("s_add_u32 s5, s5, s6")
        e("s_bfe_u32 s4, s2, 0x10005")
        e("s_lshl_b32 s4, s4, 3")
        e("s_and_b32 s6, s2, 7")
        e("s_add_u32 s4, s4, s6")
    if MBX: e("s_lshl_b32 s88, s4, 2")
    e("s_mul_i32 s6, s4, 7")
    e("s_sub_u32 s7, s4, 12")
    e("s_cmp_lt_u32 s4, 12")
    e("s_cselect_b32 s7, 0, s7")
    e("s_cselect_b32 s26, 7, 6")
    e("s_sub_u32 s4, s6, s7")
    e("v_and_b32 v3, 15, v2")
    e("v_lshrrev_b32 v4, 4, v2")
    e("v_lshrrev_b32 v5, 1, v4")
    e("v_and_b32 v6, 1, v4")
    e("v_lshlrev_b32 v7, 4, v3")
    e("v_lshl_add_u32 v7, v5, 10, v7")
    e("v_lshl_add_u32 v7, v6, 9, v7")
    e("v_mov_b32 v8, v7")
    for k in range(2):
        e(f"s_add_u32 s6, s3, {4*k}")
        e("s_min_u32 s6, s6, 6")
        e(f"s_lshl_b32 s{42+k}, s6, 10")
        if W1D:
            vd = 7 if k == 0 else 11
            e("s_lshl_b32 s6, s6, 6")
            e("v_add_u32 v12, s6, v2")
            e("v_mul_u32_u24 v13, 4682, v12")
            e("v_lshrrev_b32 v13, 16, v13")
            e("v_mul_u32_u24 v14, 14, v13")
            e("v_sub_u32 v12, v12, v14")
            e("v_and_b32 v14, 0x13, v13")
            e("v_bfe_u32 v15, v13, 2, 1")
            e("v_lshl_or_b32 v14, v15, 3, v14")
            e("v_bfe_u32 v15, v13, 3, 1")
            e("v_lshl_or_b32 v14, v15, 2, v14")
            e("v_mul_u32_u24 v14, 3456, v14")
            e(f"v_lshl_add_u32 v{vd}, v12, 4, v14")
            if k == 1: e("s_lshl_b32 s40, s4, 5")
            continue
        e("s_add_u32 s6, s6, s4")
        e("s_min_u32 s6, s6, 107")
        e(f"s_lshr_b32 s{40+k}, s6, 1")
        e(f"s_mul_i32 s{40+k}, s{40+k}, {40*1024}")
        e("s_and_b32 s6, s6, 1")
        e("s_lshl_b32 s6, s6, 8")
        e(f"s_add_u32 s{40+k}, s{40+k}, s6")
        e(f"s_add_u32 s{40+k}, s{40+k}, {WS_W1F}")
    e("s_lshl_b32 s6, s5, 2")
    e("s_add_u32 s27, s6, s3")
    e("s_mul_i32 s44, s27, %d" % (40*1024))
    e("s_add_u32 s44, s44, %d" % WS_XNF)
    if "g1y" in SKIP:
        e("s_xor_b32 s45, s27, 1")
        e("s_mul_i32 s45, s45, %d" % (40*1024))
    e("v_lshlrev_b32 v9, 4, v2")
    if W1D:
        e("v_bfe_u32 v12, v2, 2, 3")
        e("v_lshl_add_u32 v12, v5, 4, v12")
        e("v_mul_u32_u24 v12, 224, v12")
        e("v_and_b32 v9, 3, v2")
        e("v_lshl_add_u32 v9, v9, 3, v12")
    NS, BD, NSTEP = G1_NS, G1_BD, 20
    NB = int(os.environ.get("G1NB", 6))
    AF, BF, ACC, BI = 16, 16 + 4*NB, 16 + 4*NB + 8*G1_BD, 44
    assert ACC + 56 <= 128
    pend = []
    def dma(st):
        for k in range(2):
            e(f"s_add_u32 m0, s{42+k}, {(st % NS)*7168}")
            e("s_nop 0")
            if W1D: e(f"buffer_load_dwordx4 v{7 if k == 0 else 11}, s[12:15], s40 offen lds")
            else: e(f"buffer_load_dwordx4 v7, s[28:31], s{40+k} offen lds")
            pend.append(("a", st))
        if W1D: e("s_add_u32 s40, s40, %d" % (32*3456))
        else: e("v_add_u32 v7, 2048, v7")
    def bld(st):
        r = BF + 8*(st % BD)
        e(f"buffer_load_dwordx4 v[{r}:{r+3}], v8, s[28:31], s44 offen")
        e(f"buffer_load_dwordx4 v[{r+4}:{r+7}], v8, s[28:31], s44 offen offset:256")
        pend.append(("b", st)); pend.append(("b", st))
        if "g1y" in SKIP:
            e(f"buffer_load_dwordx4 v[{r}:{r+3}], v8, s[28:31], s45 offen")
            e(f"buffer_load_dwordx4 v[{r+4}:{r+7}], v8, s[28:31], s45 offen offset:256")
            pend.append(("b", st)); pend.append(("b", st))
        e("v_add_u32 v8, 2048, v8")
    def wait_for(*tags):
        idx = [i for i, p in enumerate(pend) if p in tags]
        if not idx: return
        last = max(idx)
        e(f"s_waitcnt vmcnt({len(pend) - 1 - last})")
        del pend[:last+1]
    def rdA(g):
        st, t = divmod(g, 7)
        if st >= NSTEP: return
        r = AF + 4*(g % NB)
        if W1D:
            e(f"ds_read_b64_tr_b16 v[{r}:{r+1}], v9 offset:{(st % NS)*7168 + 32*t}")
            e(f"ds_read_b64_tr_b16 v[{r+2}:{r+3}], v9 offset:{(st % NS)*7168 + 32*t + 1792}")
        else: e(f"ds_read_b128 v[{r}:{r+3}], v9 offset:{(st % NS)*7168 + 1024*t}")
    for st in range(max(NS-1, BD)):
        if st < NS-1: dma(st)
        if st < BD: bld(st)
    e("s_lshl_b32 s6, s4, 5")
    e("v_lshl_add_u32 v10, v4, 3, s6")
    for r in range(ACC, ACC+56):
        e(f"v_mov_b32 v{r}, 0")
    wait_for(("a", 0))
    e("s_barrier")
    tl(3)
    for t in range(NB): rdA(t)
    for st in range(NSTEP):
        if st + 1 < NSTEP:
            wait_for(("a", st+1), ("b", st))
            e("s_barrier")
            if st - 1 + NS < NSTEP: dma(st - 1 + NS)
        else:
            wait_for(("b", st))
        rb = BF + 8*(st % BD)
        for t in range(7):
            g = 7*st + t
            e(f"s_waitcnt lgkmcnt({(2 if W1D else 1)*min(NB - 1, 7*NSTEP - 1 - g)})")
            ra_ = AF + 4*(g % NB)
            for b_ in range(2):
                ac = ACC + 4*(2*t + b_)
                e(f"v_mfma_f32_16x16x32_bf16 v[{ac}:{ac+3}], v[{ra_}:{ra_+3}], v[{rb+4*b_}:{rb+4*b_+3}], v[{ac}:{ac+3}]")
            rdA(g + NB)
        if st + BD < NSTEP: bld(st + BD)
        if st == NSTEP - 2:
            assert BD >= 3
            free = [BF + 8*((NSTEP-3) % BD), BF + 8*((NSTEP-2) % BD)]
            BIr = [free[0] + 2*k for k in range(4)] + [free[1] + 2*k for k in range(3)]
            for t in range(7):
                e(f"buffer_load_dwordx2 v[{BIr[t]}:{BIr[t]+1}], v10, s[8:11], 0 offen offset:{32*t}")
                pend.append(("c", 0))
    e("s_nop 7")
    e("s_waitcnt vmcnt(0)")
    tl(4)
    e("s_mul_i32 s6, s27, 108")
    e("s_add_u32 s6, s6, s4")
    e("s_lshl_b32 s6, s6, 10")
    e("s_add_u32 s6, s6, %d" % WS_ACT)
    e("v_lshlrev_b32 v9, 4, v3")
    e("v_lshl_add_u32 v9, v5, 9, v9")
    e("v_lshl_add_u32 v9, v6, 3, v9")
    T = 16
    if MISH2 == 2:
        e(f"s_mov_b32 s46, {LOG2E:#x}")
        e(f"s_mov_b32 s47, {LOG2E:#x}")
        e("v_mov_b32 v40, 1.0"); e("v_mov_b32 v41, 1.0")
        e("v_mov_b32 v42, -2.0"); e("v_mov_b32 v43, -2.0")
    for t in range(7):
        if t == 6:
            e("s_cmp_lt_u32 s26, 7")
            e("s_cbranch_scc1 g1_end")
        r = BIr[t]
        e(f"v_lshlrev_b32 v{T}, 16, v{r}")
        e(f"v_and_b32 v{T+1}, 0xffff0000, v{r}")
        e(f"v_lshlrev_b32 v{T+2}, 16, v{r+1}")
        e(f"v_and_b32 v{T+3}, 0xffff0000, v{r+1}")
        for b_ in range(2):
            ac = ACC + 4*(2*t + b_)
            d0 = T + 16 + 2*((2*t + b_) % 4)
            if MISH2 == 2:
                mish_quad(ac, T, d0)
            else:
                mish_pairs(ac, ac+1, T, T+1, d0, T+4)
                mish_pairs(ac+2, ac+3, T+2, T+3, d0+1, T+10)
            off = (t % 4)*1024 + 256*b_
            e(f"buffer_store_dwordx2 v[{d0}:{d0+1}], v9, s[28:31], s6 offen offset:{off}")
        if t == 3: e("s_add_u32 s6, s6, 4096")
    lab("g1_end")
    tl(5)
    if TL: e("s_waitcnt vmcnt(0)")
    tl_end(1)
    if FUSE and not SPL:
        if MBX:
            e("s_waitcnt vmcnt(0)")
            e("s_barrier")
            e("s_cmp_lg_u32 s3, 0")
            e("s_cbranch_scc1 g1_sig")
            e("s_lshl_b32 s6, s5, %d" % (MBX + 4))
            e("s_add_u32 s6, s6, s88")
            e("s_add_u32 s6, s6, %d" % WS_MB)
            e("s_mov_b64 exec, 0xffff")
            e("v_mov_b32 v12, 1")
            e("v_lshlrev_b32 v13, %d, v2" % MBX)
            e("buffer_store_dword v12, v13, s[28:31], s6 offen")
            e("s_mov_b64 exec, -1")
            lab("g1_sig")
        else: signal(5, "g1_sig")
        e("s_mov_b32 s2, s90")
        e("s_branch fin_body")
    e("s_endpgm")
    lab("mid_conv")
    if CONV2:
        gen_conv2()
    else:
        if "cv" in SKIP: e("s_endpgm")
        if PRIO & 8: e("s_setprio 3")
        srd(8, 60, D*2)
        e("s_sub_u32 s4, s2, %d" % G1_WGS)
        e("s_and_b32 s5, s4, 7")
        e("s_lshl_b32 s5, s5, 2")
        e("s_bfe_u32 s6, s4, 0x20003")
        e("s_or_b32 s5, s5, s6")
        e("s_andn2_b32 s4, s4, 31")
        e("s_or_b32 s4, s4, s5")
        e("s_lshl_b32 s5, s4, 1")
        e("v_mov_b32 v3, s5")
        if DLYC: e(f"s_sleep {DLYC}")
        e("buffer_load_ushort v1, v3, s[8:11], 0 offen")
        e("s_lshl_b32 s5, s4, 5")
        e("s_add_u32 s5, s5, %d" % WS_XNT)
        e("v_lshrrev_b32 v4, 1, v0")
        e("v_mul_u32_u24 v4, 20480, v4")
        e("v_and_b32 v5, 1, v0")
        e("v_lshl_add_u32 v4, v5, 4, v4")
        e("buffer_load_dwordx4 v[8:11], v4, s[28:31], s5 offen")
        e("v_lshlrev_b32 v4, 4, v0")
        e("s_mul_i32 s6, s4, %d" % KR_STRIDE)
        e("s_add_u32 s6, s6, %d" % WS_KR)
        e("buffer_load_dwordx4 v[12:15], v4, s[28:31], s6 offen")
        e("buffer_load_dwordx4 v[16:19], v4, s[28:31], s6 offen offset:16")
        e("v_min_u32 v5, 3, v0")
        e("v_lshlrev_b32 v5, 4, v5")
        e("v_add_u32 v5, 4096, v5")
        e("buffer_load_dwordx4 v[20:23], v5, s[28:31], s6 offen")
        e("buffer_load_dwordx4 v[24:27], v5, s[28:31], s6 offen offset:16")
        for k in range(4):
            e(f"v_mov_b32 v{28+k}, 0")
        e("v_min_u32 v6, 154, v0")
        e("v_lshlrev_b32 v6, 4, v6")
        e(f"ds_write_b128 v6, v[28:31] offset:{UB + 80}")
        e("v_lshrrev_b32 v6, 2, v0")
        e("v_mul_u32_u24 v6, 80, v6")
        e("v_and_b32 v7, 3, v0")
        e("v_lshl_add_u32 v6, v7, 4, v6")
        e("s_waitcnt vmcnt(4)")
        e(f"ds_write_b128 v6, v[8:11] offset:{UB + 32*80}")
        def copies(w, vaddr):
            for c in range(8):
                if c % 2 == 0:
                    e(f"ds_write_b128 v{vaddr}, v[{w+c//2}:{w+c//2+3}] offset:{CB(c)}") if (w + c//2) % 2 == 0 else None
                    if (w + c//2) % 2:
                        for j in range(4):
                            e(f"v_mov_b32 v{32+j}, v{w+c//2+j}")
                        e(f"ds_write_b128 v{vaddr}, v[32:35] offset:{CB(c)}")
                else:
                    for j in range(4):
                        e(f"v_alignbit_b32 v{36+j}, v{w+(c+1)//2+j}, v{w+(c-1)//2+j}, 16")
                    e(f"ds_write_b128 v{vaddr}, v[36:39] offset:{CB(c)}")
        e("s_waitcnt vmcnt(2)")
        tl(1)
        copies(12, 4)
        e("s_waitcnt vmcnt(0)")
        copies(20, 5)
        e("s_waitcnt lgkmcnt(0)")
        tl(2)
        e("s_barrier")
        tl(3)
        e("v_and_b32 v3, 31, v2")
        e("v_lshrrev_b32 v4, 5, v2")
        e("v_sub_u32 v5, 7, v3")
        e("v_and_b32 v5, 7, v5")
        e("v_sub_u32 v6, 2047, v3")
        e("v_lshl_add_u32 v6, v4, 3, v6")
        e("v_sub_u32 v6, v6, v5")
        e("v_mul_u32_u24 v7, %d, v5" % CS)
        e("v_lshrrev_b32 v8, 2, v5")
        e("v_lshl_add_u32 v7, v8, 5, v7")
        e("v_lshl_add_u32 v6, v6, 1, v7")
        e("v_mul_u32_u24 v7, 80, v3")
        e("v_lshl_add_u32 v7, v4, 4, v7")
        e(f"v_add_u32 v7, {UB + 32*80}, v7")
        for r in range(16, 48):
            e(f"v_mov_b32 v{r}, 0")
        e("s_lshl_b32 s5, s3, 9")
        e(f"s_add_u32 s5, s5, {64*7 + 64*32}")
        e("v_subrev_u32 v8, s5, v6")
        e("s_mul_i32 s5, s3, 640")
        e(f"s_add_u32 s5, s5, {80*7}")
        e("v_subrev_u32 v9, s5, v7")
        def rd(q):
            base = 48 + (q & 1)*32
            for t in range(2):
                fa = base + 16*t
                e(f"ds_read_b128 v[{fa}:{fa+3}], v8 offset:{64*(7-q) + 2048 + 32*t}")
                e(f"ds_read_b128 v[{fa+4}:{fa+7}], v9 offset:{80*(7-q) + 32*t}")
                e(f"ds_read_b128 v[{fa+8}:{fa+11}], v9 offset:{80*(7-q) + 2560 + 32*t}")
                e(f"ds_read_b128 v[{fa+12}:{fa+15}], v8 offset:{64*(7-q) + 32*t}")
        def mm(q):
            base = 48 + (q & 1)*32
            for t in range(2):
                fa = base + 16*t
                e(f"v_mfma_f32_32x32x16_bf16 v[16:31], v[{fa}:{fa+3}], v[{fa+4}:{fa+7}], v[16:31]")
                e(f"v_mfma_f32_32x32x16_bf16 v[32:47], v[{fa}:{fa+3}], v[{fa+8}:{fa+11}], v[32:47]")
                e(f"v_mfma_f32_32x32x16_bf16 v[32:47], v[{fa+12}:{fa+15}], v[{fa+4}:{fa+7}], v[32:47]")
        rd(0)
        for q in range(8):
            if q < 7:
                rd(q + 1)
                e("s_waitcnt lgkmcnt(8)")
            else:
                e("s_waitcnt lgkmcnt(0)")
            mm(q)
        tl(4)
        e("s_nop 15")
        e("s_barrier")
        e("v_lshlrev_b32 v10, 4, v2")
        e("s_cmp_eq_u32 s3, 0")
        e("s_cbranch_scc1 cv_w0")
        e("s_sub_u32 s5, s3, 1")
        e("s_lshl_b32 s5, s5, 12")
        e("v_add_u32 v11, s5, v10")
        for r in range(4):
            e(f"ds_write_b128 v11, v[{16+4*r}:{19+4*r}] offset:{1024*r}")
        lab("cv_w0")
        e("s_cmp_eq_u32 s3, 1")
        e("s_cbranch_scc1 cv_w1")
        e("s_sub_u32 s5, s3, 1")
        e("s_max_i32 s5, s5, 0")
        e("s_lshl_b32 s5, s5, 12")
        e("v_add_u32 v11, s5, v10")
        for r in range(4):
            e(f"ds_write_b128 v11, v[{32+4*r}:{35+4*r}] offset:{12288 + 1024*r}")
        e("s_branch cv_w2")
        lab("cv_w1")
        for r in range(16):
            e(f"v_mov_b32 v{16+r}, v{32+r}")
        e("v_add_u32 v10, 12288, v10")
        lab("cv_w2")
        e("s_waitcnt lgkmcnt(0)")
        e("s_barrier")
        e("s_cmp_ge_u32 s3, 2")
        e("s_cbranch_scc1 mid_end")
        for sl in range(3):
            for r in range(4):
                e(f"ds_read_b128 v[{48+16*sl+4*r}:{51+16*sl+4*r}], v10 offset:{4096*sl + 1024*r}")
        for sl in range(3):
            e(f"s_waitcnt lgkmcnt({8-4*sl})")
            for r in range(16):
                e(f"v_add_f32 v{16+r}, v{16+r}, v{48+16*sl+r}")
        lab("cv_epi")
        e("s_mul_i32 s5, s3, %d" % (32*80))
        e("v_mul_u32_u24 v11, 80, v3")
        e("v_lshl_add_u32 v11, v4, 3, v11")
        e("v_add_u32 v11, s5, v11")
        for g in range(4):
            e(f"ds_read_b64 v[{32+2*g}:{33+2*g}], v11 offset:{UB + 32*80 + 16*g}")
        e("s_lshl_b32 s5, s4, 12")
        e("s_lshl_b32 s6, s3, 11")
        e("s_add_u32 s5, s5, s6")
        e("s_add_u32 s5, s5, %d" % WS_AT)
        e("v_lshlrev_b32 v12, 6, v3")
        e("v_lshl_add_u32 v12, v4, 3, v12")
        e("s_waitcnt vmcnt(0) lgkmcnt(0)")
        e("v_lshlrev_b32 v1, 16, v1")
        for g in range(4):
            for p in range(2):
                u = 32 + 2*g + p
                y0 = 16 + 4*g + 2*p
                e(f"v_lshlrev_b32 v44, 16, v{u}")
                e(f"v_and_b32 v45, 0xffff0000, v{u}")
                e(f"v_mul_f32 v44, v44, v1")
                e(f"v_mul_f32 v45, v45, v1")
                e(f"v_cvt_pk_bf16_f32 v44, v44, v45")
                e(f"v_cvt_pk_bf16_f32 v46, v{y0}, v{y0+1}")
                e(f"v_lshlrev_b32 v47, 16, v44")
                e(f"v_and_b32 v48, 0xffff0000, v44")
                e(f"v_lshlrev_b32 v49, 16, v46")
                e(f"v_and_b32 v50, 0xffff0000, v46")
                e(f"v_add_f32 v47, v47, v49")
                e(f"v_add_f32 v48, v48, v50")
                e(f"v_cvt_pk_bf16_f32 v{52+2*g+p}, v47, v48")
            e(f"buffer_store_dwordx2 v[{52+2*g}:{53+2*g}], v12, s[28:31], s5 offen offset:{16*g}")
        tl(5)
        if TL: e("s_waitcnt vmcnt(0)")
        tl_end(1)
    if W2MID:
        e("s_endpgm")
        lab("mid_wt")
        gen_wt(G1_WGS + CV_WGS, 270, 540, "mid_end", 1, int(os.environ.get("DLYW2", 0)))
    lab("mid_end")
    e("s_endpgm")
    if SPL: kernel_desc("mid_kernel", 128)
    elif FUSE == 2: kernel_desc("mid_kernel", 128, agpr=40)
    elif FUSE: kernel_desc("mid_kernel", 160, agpr=80)
    else: kernel_desc("mid_kernel", 128)

G2_WGS = 256
FIN_LDS = 61440 + 64
FDEPTH = 2 if FUSE == 2 else int(os.environ.get('FDEPTH', 4))
def gen_fin():
    if SPL:
        kernel_begin("fin_kernel")
        e("s_cmp_ge_u32 s2, %d" % (G2_WGS + SPL))
        e("s_cbranch_scc1 fin_end")
        e("s_cmp_lt_u32 s2, %d" % G2_WGS)
        e("s_cbranch_scc1 fin_body")
        e("s_add_u32 s2, s2, %d" % (640 - SPL))
        e("s_branch mid_body")
        lab("fin_body")
    elif FUSE:
        out.append(".text"); lab("fin_kernel"); lab("fin_body")
    else:
        kernel_begin("fin_kernel")
        e("s_cmp_ge_u32 s2, %d" % G2_WGS)
        e("s_cbranch_scc1 fin_end")
    e("s_load_dwordx2 s[56:57], s[0:1], 104")
    e("s_load_dwordx2 s[58:59], s[0:1], 0")
    e("s_load_dwordx2 s[60:61], s[0:1], 88")
    e("v_lshrrev_b32 v1, 6, v0")
    e("v_and_b32 v2, 63, v0")
    e("s_nop 0")
    e("v_readfirstlane_b32 s3, v1")
    if FMAP == 2:
        e("s_and_b32 s5, s2, 31")
        e("s_lshr_b32 s4, s2, 5")
    elif FMAP == 3:
        e("s_lshr_b32 s5, s2, 3")
        e("s_and_b32 s4, s2, 7")
    else:
        if SCL & 2: static_claim()
        else:
            e("s_waitcnt lgkmcnt(0)")
            srd(28, 56, WS_SIZE)
            claim_tile(512, 32, 61440, "fcl")
        if FMAP == 0:
            e("s_lshr_b32 s5, s2, 5")
            e("s_lshl_b32 s5, s5, 2")
            e("s_and_b32 s6, s2, 3")
            e("s_add_u32 s5, s5, s6")
            e("s_bfe_u32 s4, s2, 0x30002")
        else:
            e("s_lshr_b32 s5, s2, 6")
            e("s_lshl_b32 s5, s5, 3")
            e("s_and_b32 s6, s2, 7")
            e("s_add_u32 s5, s5, s6")
            e("s_bfe_u32 s4, s2, 0x10005")
            e("s_lshl_b32 s4, s4, 2")
            e("s_bfe_u32 s6, s2, 0x20003")
            e("s_add_u32 s4, s4, s6")
    e("v_and_b32 v3, 15, v2")
    e("v_lshrrev_b32 v4, 4, v2")
    e("v_lshrrev_b32 v5, 1, v4")
    e("v_and_b32 v6, 1, v4")
    e("v_lshlrev_b32 v7, 4, v3")
    e("v_lshl_add_u32 v7, v5, 10, v7")
    e("v_lshl_add_u32 v7, v6, 9, v7")
    e("s_lshl_b32 s6, s3, 11")
    e("v_add_u32 v7, s6, v7")
    e("s_mul_i32 s6, s4, 5")
    for a_ in range(5):
        e(f"s_add_u32 s7, s6, {a_}")
        e(f"s_lshr_b32 s{40+a_}, s7, 1")
        e(f"s_mul_i32 s{40+a_}, s{40+a_}, {108*1024}")
        e(f"s_and_b32 s7, s7, 1")
        e(f"s_lshl_b32 s7, s7, 8")
        e(f"s_add_u32 s{40+a_}, s{40+a_}, s7")
        e(f"s_add_u32 s{40+a_}, s{40+a_}, {WS_W2F}")
    e("s_mul_i32 s6, s5, %d" % (2*108*1024))
    e("s_add_u32 s45, s6, %d" % WS_ACT)
    e("s_add_u32 s46, s45, 256")
    e("s_add_u32 s47, s45, %d" % (108*1024))
    e("s_add_u32 s48, s47, 256")
    e("s_waitcnt lgkmcnt(0)")
    srd(28, 56, WS_SIZE); srd(8, 58, L*D*2); srd(12, 60, L*D*2)
    FR = 16
    ACC = 0
    EP = FR + 36*(FDEPTH - (1 if FUSE else 0))
    if FUSE == 2: EP = 16
    def accr(ac):
        return f"v[{48+ac}:{51+ac}]" if (FUSE == 2 and ac >= 40) else f"a[{ac}:{ac+3}]"
    pend = []
    def issue(m):
        base = FR + 36*(m % FDEPTH)
        for t in range(9):
            e(f"buffer_load_dwordx4 v[{base+4*t}:{base+4*t+3}], v7, s[28:31], s{40+t} offen")
            pend.append(("f", m))
        e("v_add_u32 v7, 8192, v7")
    def wait_for(tag):
        if tag not in pend: return
        last = max(i for i, p in enumerate(pend) if p == tag)
        n = len(pend) - 1 - last
        e(f"s_waitcnt vmcnt({n})")
        del pend[:last+1]
    NST = 14
    if FUSE:
        e("v_mov_b32 v12, v7")
        e("v_mov_b32 v14, 0")
        for m in range(FDEPTH):
            for t in range(5):
                e(f"buffer_load_dwordx4 v[{FR+36*m+4*t}:{FR+36*m+4*t+3}], v12, s[28:31], s{40+t} offen")
                pend.append(("f", m))
            e("v_add_u32 v12, 8192, v12")
        for r in range(ACC, ACC+(0 if SPL else 80)):
            e(f"v_mov_b32 v{48+r}, 0" if (FUSE == 2 and r >= 40) else f"v_accvgpr_write_b32 a{r}, 0")
        e("s_lshr_b32 s6, s5, 1")
        e("s_lshl_b32 s6, s6, %d" % CSH)
        e("s_add_u32 s6, s6, %d" % WS_CNT)
        e("s_lshl_b32 s94, s4, %d" % CSH)
        e("s_add_u32 s94, s94, %d" % (WS_CNT + (16 << CSH)))
        if not SPL:
            e("s_cmp_lg_u32 s3, 0")
            e("s_cbranch_scc1 fp0_d")
            if MBX:
                e("s_lshl_b32 s6, s5, 3")
                e("s_add_u32 s6, s6, s4")
                e("s_lshl_b32 s6, s6, %d" % MBX)
                e("s_add_u32 s6, s6, %d" % WS_MB)
                e("v_lshlrev_b32 v15, 2, v3")
                e("s_mov_b32 s91, 0")
                lab("fp0_p")
                e("buffer_load_dword v13, v15, s[28:31], s6 offen sc0 sc1")
                e("s_waitcnt vmcnt(0)")
                e("v_cmp_ne_u32 vcc, 1, v13")
                e("s_cmp_eq_u64 vcc, 0")
                e("s_cbranch_scc1 fp0_d")
                e("s_add_u32 s91, s91, 1")
                e("s_cmp_ge_u32 s91, 0x20000")
                e("s_cbranch_scc1 fp0_d")
                e("s_sleep %d" % int(os.environ.get("PSL", 2)))
                e("s_branch fp0_p")
                lab("fp0_d")
            else: poll(6, int(os.environ.get("FT0", 16)), "fp0")
            e("s_barrier")
        for m in range(FDEPTH):
            for t in range(5, 9):
                e(f"buffer_load_dwordx4 v[{FR+36*m+4*t}:{FR+36*m+4*t+3}], v7, s[28:31], s{40+t} offen")
                pend.append(("f", m))
            e("v_add_u32 v7, 8192, v7")
        for r in range(ACC, ACC+(80 if SPL else 0)):
            e(f"v_mov_b32 v{48+r}, 0" if r >= 40 else f"v_accvgpr_write_b32 a{r}, 0")
    else:
        for m in range(FDEPTH):
            issue(m)
    e("s_lshl_b32 s6, s5, 6")
    e("s_lshl_b32 s7, s3, 4")
    e("s_add_u32 s6, s6, s7")
    e("v_add_u32 v8, s6, v3")
    e("v_mul_u32_u24 v9, 1280, v8")
    e("v_lshl_add_u32 v9, v4, 3, v9")
    e("s_mul_i32 s6, s4, 160")
    e("v_add_u32 v9, s6, v9")
    def eploads():
        for a_ in range(5):
            e(f"buffer_load_dwordx2 v[{EP+2*a_}:{EP+2*a_+1}], v9, s[8:11], 0 offen offset:{32*a_}")
            pend.append(("e", 0))
        e("v_lshlrev_b32 v10, 14, v4")
        e("v_lshl_add_u32 v10, v8, 1, v10")
        e("s_mul_i32 s6, s4, %d" % (80*4096))
        e("s_add_u32 s6, s6, %d" % WS_AT)
        for a_ in range(5):
            for j in range(4):
                e(f"buffer_load_ushort v{EP+10+4*a_+j}, v10, s[28:31], s6 offen")
                pend.append(("e", 0))
                e("s_add_u32 s6, s6, %d" % (4096 if j < 3 else 4096*13))
    if not FUSE:
        eploads()
        for r in range(ACC, ACC+80):
            e(f"v_accvgpr_write_b32 a{r}, 0")
    for m in range(NST):
        if m == NST - 1:
            e("s_cmp_ge_u32 s3, 2")
            e("s_cbranch_scc1 fin_red")
        wait_for(("f", m))
        base = FR + 36*(m % FDEPTH)
        fill = []
        if FEP and FDEPTH + 1 <= m < FDEPTH + 4:
            for a_ in [(0, 1), (2, 3), (4,)][m - FDEPTH - 1]:
                rx = EP + 2*a_; ra = EP + 10 + 4*a_
                for k_ in range(9):
                    for p_ in range(2):
                        t0, t1 = 12 + 2*p_, 13 + 2*p_
                        r0, r1 = ra + 2*p_, ra + 2*p_ + 1
                        fill.append([f"v_lshlrev_b32 v{t0}, 16, v{rx+p_}", f"v_and_b32 v{t1}, 0xffff0000, v{rx+p_}",
                                     f"v_lshlrev_b32 v{r0}, 16, v{r0}", f"v_lshlrev_b32 v{r1}, 16, v{r1}",
                                     f"v_add_f32 v{t0}, v{t0}, v{r0}", f"v_add_f32 v{t1}, v{t1}, v{r1}",
                                     f"v_cvt_pk_bf16_f32 v{t0}, v{t0}, v{t1}",
                                     f"v_lshlrev_b32 v{r0}, 16, v{t0}", f"v_and_b32 v{r1}, 0xffff0000, v{t0}"][k_])
        for b_ in range(4):
            for a_ in range(5):
                ac = ACC + 4*(5*b_ + a_)
                e(f"v_mfma_f32_16x16x32_bf16 {accr(ac)}, v[{base+4*a_}:{base+4*a_+3}], v[{base+20+4*b_}:{base+23+4*b_}], {accr(ac)}")
                for _ in range(2):
                    if fill: e(fill.pop(0))
        assert not fill
        if FUSE and m == int(os.environ.get("GS", 10 if FUSE == 2 else 8)):
            e("buffer_load_dword v13, v14, s[28:31], s94 offen sc0 sc1")
            pend.append(("g", 0))
        if FUSE and m == int(os.environ.get("GD", 12 if FUSE == 2 else 11)):
            if ("g", 0) in pend: wait_for(("g", 0))
            poll(94, int(os.environ.get("FT1", 80)), "fp1", first=False)
            eploads()
        if m + FDEPTH < NST:
            if m + FDEPTH == NST - 1:
                e("s_cmp_ge_u32 s3, 2")
                e("s_cselect_b32 s6, 8192, 0")
                e("v_subrev_u32 v7, s6, v7")
            issue(m + FDEPTH)
    lab("fin_red")
    e("s_nop 15")
    e("s_waitcnt vmcnt(%d)" % (25 if FUSE else 0))
    e("v_lshlrev_b32 v11, 4, v2")
    RB, TB = 16, 96
    if FUSE == 2:
        RB, TB = 46, 108
        e("s_xor_b32 s6, s3, 2")
        e("s_mul_i32 s6, s6, 10240")
        e("v_add_u32 v12, s6, v11")
        e("s_mul_i32 s6, s3, 10240")
        e("v_add_u32 v13, s6, v11")
        e("s_xor_b32 s6, s3, 1")
        e("s_mul_i32 s6, s6, 10240")
        e("v_add_u32 v15, s6, v11")
        e("s_cmp_ge_u32 s3, 2")
        e("s_cbranch_scc1 fr_hi")
        for k in range(10): e(f"ds_write_b128 v12, v[{88+4*k}:{91+4*k}] offset:{1024*k}")
        e("s_waitcnt lgkmcnt(0)")
        for r in range(40): e(f"v_accvgpr_read_b32 v{88+r}, a{r}")
        e("s_branch fr_j")
        lab("fr_hi")
        for k in range(10): e(f"ds_write_b128 v12, a[{4*k}:{4*k+3}] offset:{1024*k}")
        e("s_waitcnt lgkmcnt(0)")
        lab("fr_j")
        e("s_barrier")
        for k in range(10): e(f"ds_read_b128 v[{46+4*k}:{49+4*k}], v13 offset:{1024*k}")
        for k in range(10):
            e(f"s_waitcnt lgkmcnt({9-k})")
            for r in (0, 2): e(f"v_pk_add_f32 v[{46+4*k+r}:{47+4*k+r}], v[{46+4*k+r}:{47+4*k+r}], v[{88+4*k+r}:{89+4*k+r}]")
        e("s_bitcmp1_b32 s3, 0")
        e("s_cbranch_scc1 fr_odd")
        for k in range(5): e(f"ds_write_b128 v13, v[{66+4*k}:{69+4*k}] offset:{1024*k}")
        e("s_branch fr_j2")
        lab("fr_odd")
        for k in range(5): e(f"ds_write_b128 v13, v[{46+4*k}:{49+4*k}] offset:{1024*k}")
        e("s_waitcnt lgkmcnt(0)")
        for r in range(20): e(f"v_mov_b32 v{46+r}, v{66+r}")
        lab("fr_j2")
        e("s_waitcnt lgkmcnt(0)")
        e("s_barrier")
        for k in range(5): e(f"ds_read_b128 v[{88+4*k}:{91+4*k}], v15 offset:{1024*k}")
        for k in range(5):
            e(f"s_waitcnt lgkmcnt({4-k})")
            for r in (0, 2): e(f"v_pk_add_f32 v[{46+4*k+r}:{47+4*k+r}], v[{46+4*k+r}:{47+4*k+r}], v[{88+4*k+r}:{89+4*k+r}]")
    for w in range(0 if FUSE == 2 else 4):
        if w < 3:
            e(f"s_cmp_lg_u32 s3, {w}")
            e(f"s_cbranch_scc1 fin_w{w+1}")
        for b_ in range(4):
            if b_ == w: continue
            slot = w if w < b_ else w - 1
            for a_ in range(5):
                ac = ACC + 4*(5*b_ + a_)
                e(f"ds_write_b128 v11, a[{ac}:{ac+3}] offset:{(b_*3 + slot)*5120 + a_*1024}")
        for r in range(20):
            e(f"v_accvgpr_read_b32 v{16+r}, a{ACC+20*w+r}")
        if w < 3:
            e("s_branch fin_rd")
            lab(f"fin_w{w+1}")
    lab("fin_rd")
    if FUSE != 2:
        e("s_mul_i32 s6, s3, %d" % (3*5120))
        e("v_add_u32 v11, s6, v11")
        e("s_waitcnt lgkmcnt(0)")
        e("s_barrier")
    for sl in range(0 if FUSE == 2 else 3):
        for a_ in range(5):
            r = 36 + 20*sl + 4*a_
            e(f"ds_read_b128 v[{r}:{r+3}], v11 offset:{sl*5120 + a_*1024}")
    for sl in range(0 if FUSE == 2 else 3):
        e(f"s_waitcnt lgkmcnt({10-5*sl})")
        if FEP:
            for r in range(0, 20, 2):
                e(f"v_pk_add_f32 v[{16+r}:{17+r}], v[{16+r}:{17+r}], v[{36+20*sl+r}:{37+20*sl+r}]")
            continue
        for r in range(20):
            e(f"v_add_f32 v{16+r}, v{16+r}, v{36+20*sl+r}")
    e("s_waitcnt vmcnt(0)")
    for a_ in range(5):
        rx = EP + 2*a_
        ra = EP + 10 + 4*a_
        if FEP:
            ac = 16 + 4*a_
            for p in range(2): e(f"v_cvt_pk_bf16_f32 v{96+p}, v{ac+2*p}, v{ac+2*p+1}")
            for p in range(2):
                e(f"v_lshlrev_b32 v{98+2*p}, 16, v{96+p}")
                e(f"v_and_b32 v{99+2*p}, 0xffff0000, v{96+p}")
            for p in range(2): e(f"v_pk_add_f32 v[{98+2*p}:{99+2*p}], v[{98+2*p}:{99+2*p}], v[{ra+2*p}:{ra+2*p+1}]")
            for p in range(2): e(f"v_cvt_pk_bf16_f32 v{rx+p}, v{98+2*p}, v{99+2*p}")
        for p in range(2 if not FEP else 0):
            ac = RB + 4*a_ + 2*p
            e(f"v_lshlrev_b32 v{TB+0}, 16, v{rx+p}")
            e(f"v_and_b32 v{TB+1}, 0xffff0000, v{rx+p}")
            e(f"v_lshlrev_b32 v{TB+2}, 16, v{ra+2*p}")
            e(f"v_lshlrev_b32 v{TB+3}, 16, v{ra+2*p+1}")
            e(f"v_add_f32 v{TB+0}, v{TB+0}, v{TB+2}")
            e(f"v_add_f32 v{TB+1}, v{TB+1}, v{TB+3}")
            e(f"v_cvt_pk_bf16_f32 v{TB+0}, v{TB+0}, v{TB+1}")
            e(f"v_cvt_pk_bf16_f32 v{TB+2}, v{ac}, v{ac+1}")
            e(f"v_lshlrev_b32 v{TB+4}, 16, v{TB+0}")
            e(f"v_and_b32 v{TB+5}, 0xffff0000, v{TB+0}")
            e(f"v_lshlrev_b32 v{TB+6}, 16, v{TB+2}")
            e(f"v_and_b32 v{TB+7}, 0xffff0000, v{TB+2}")
            e(f"v_add_f32 v{TB+4}, v{TB+4}, v{TB+6}")
            e(f"v_add_f32 v{TB+5}, v{TB+5}, v{TB+7}")
            e(f"v_cvt_pk_bf16_f32 v{rx+p}, v{TB+4}, v{TB+5}")
        e(f"buffer_store_dwordx2 v[{rx}:{rx+1}], v9, s[12:15], 0 offen offset:{32*a_}")
    lab("fin_end")
    e("s_endpgm")
    if SPL: kernel_desc("fin_kernel", 128, agpr=40)
    if not FUSE: kernel_desc("fin_kernel", ((EP + 30) + 7)//8*8, agpr=80)

hdr = open("cdna_kernels/%s.s.ref" % NAME).read().split("; Override launch")[0]
text = hdr
text += f"; @launch kernel=prep_kernel grid=({PREP_WGS + (128 if PORD else 0) + (256 if EMU & 2 else 0)},1,1) block=(256,1,1) lds={MID_LDS if EMU & 2 else PREP_LDS}\n"
text += f"; @launch kernel=mid_kernel grid=({MID_WGS - SPL},1,1) block=(256,1,1) lds={FIN_LDS if FUSE == 1 else MID_LDS}\n"
if SPL: text += f"; @launch kernel=fin_kernel grid=({G2_WGS + SPL},1,1) block=(256,1,1) lds={MID_LDS}\n"
if not FUSE: text += f"; @launch kernel=fin_kernel grid=({G2_WGS},1,1) block=(256,1,1) lds={FIN_LDS}\n"
text += '.amdgcn_target "amdgcn-amd-amdhsa--gfx950"\n'
gen_prep(); gen_mid(); gen_fin()
_o = []; _in = False
for _l in out:
    if _l.startswith("fin_kernel:"): _in = True
    if _l.strip().startswith("buffer_store") and not _in and "nosc" not in SKIP: _l += " sc1"
    _o.append(_l)
out = _o
text += "\n".join(out) + "\n"
dst = sys.argv[1] if len(sys.argv) > 1 else "cdna_kernels/%s.s" % NAME
open(dst, "w").write(text)
print("wrote", dst, len(text))
```

```python
import sys, os
SKIP = os.environ.get("SKIP", "").split(",")
ORDER = int(os.environ.get("ORDER", 0))
PRIO = int(os.environ.get("PRIO", 3))
W2MID = int(os.environ.get("W2MID", 0))
CONV2 = int(os.environ.get("CONV2", 1))
CV3 = int(os.environ.get("CV3", 1))
FEP = int(os.environ.get("FEP", 1))
PORD = int(os.environ.get("PORD", 0))
MISH2 = int(os.environ.get("MISH2", 2))
DLYC = int(os.environ.get("DLYC", 24))
G1MAP = int(os.environ.get("G1MAP", 1))
FMAP = int(os.environ.get("FMAP", 1))
DLYL = int(os.environ.get("DLYL", 16))
DLYW = int(os.environ.get("DLYW", 24))
EMU = int(os.environ.get("EMU", 1))
KGR = int(os.environ.get("KGR", 0))
W1D = int(os.environ.get("W1D", 0))
FUSE = int(os.environ.get("FUSE", 0))
if FUSE: FEP = 0
SPL = int(os.environ.get("SPL", 0))
if SPL: FUSE = 2; FEP = 0
CSH = int(os.environ.get("CSH", 6))
MBX = int(os.environ.get("MBX", 0))
WS_MB = 0x1740000
MB2 = int(os.environ.get("MB2", 0)); WS_MB2 = 0x1780000
CP2 = int(os.environ.get("CP2", 0))
CVL = 1 if FUSE == 1 else 0
NAME = "parallel_sum__ssm_conv_s4d__dense_activation_mish__prompt"
L, D, N, F = 2048, 640, 128, 1728
WS_XNF = 0x0000000
WS_XNT = 0x0280000
WS_W1F = 0x0500000
WS_W2F = WS_W1F + 2160 * 1024
WS_KR = 0x0A00000
KR_STRIDE = 4224
WS_ACT = 0x0D00000
WS_AT = 0x1400000
WS_CNT = 0x1700000
WS_SIZE = 268435456
LOG2E = 0x3fb8aa3b
INV2PI = 0x3e22f983

out = []
def e(s):
    out.append("    " + s)
def lab(s):
    out.append(s + ":")
def cm(s):
    out.append("    ; " + s)

STAMP = os.environ.get("STAMP")
def stamp_init():
    if not STAMP: return
    e("s_load_dwordx2 s[84:85], s[0:1], 96")
    e("s_waitcnt lgkmcnt(0)")
    e("s_mov_b32 s80, s84"); e("s_and_b32 s81, s85, 0xffff"); e("s_mov_b32 s82, 256"); e("s_mov_b32 s83, 0x00020000")
def stamp(i):
    if not STAMP: return
    e("s_memtime s[86:87]")
    e("s_waitcnt lgkmcnt(0)")
    e(f"s_cmp_lg_u32 s2, {int(STAMP)}")
    e(f"s_cbranch_scc1 st_{stamp.n}")
    e(f"v_mov_b32 v255, s86")
    e(f"v_lshrrev_b32 v254, 6, v0")
    e(f"v_lshlrev_b32 v254, 6, v254")
    e(f"v_add_u32 v254, {4*i}, v254")
    e(f"buffer_store_dword v255, v254, s[80:83], 0 offen")
    lab(f"st_{stamp.n}")
    stamp.n += 1
stamp.n = 0


TL = os.environ.get("TL")
WS_TL = 0x1800000
def tl(i):
    if not TL: return
    e("s_memrealtime s[80:81]")
    e("s_waitcnt lgkmcnt(0)")
    e(f"s_mov_b32 s{84+i}, s80")
def tl_begin():
    if not TL: return
    e("s_mov_b32 s83, s2")
    for i in range(8): e(f"s_mov_b32 s{84+i}, 0")
    tl(0)
def tl_end(kern):
    if not TL: return
    tl(7)
    e("s_getreg_b32 s90, hwreg(HW_REG_HW_ID)")
    e("s_getreg_b32 s80, hwreg(HW_REG_XCC_ID)")
    e("s_and_b32 s90, s90, 0xffff")
    e("s_lshl_b32 s80, s80, 16")
    e("s_or_b32 s90, s90, s80")
    e("s_or_b32 s90, s90, 0x40000000")
    e("s_cmp_lg_u32 s3, 0")
    e(f"s_cbranch_scc1 tle_{tl_end.n}")
    e("s_lshl_b32 s83, s83, 5")
    e(f"s_add_u32 s83, s83, {WS_TL + kern*65536}")
    e("v_mov_b32 v1, 0")
    for i in range(8):
        e(f"v_mov_b32 v0, s{84+i}")
        e(f"buffer_store_dword v0, v1, s[28:31], s83 offen offset:{4*i}")
    lab(f"tle_{tl_end.n}")
    tl_end.n += 1
tl_end.n = 0

def srd(dst, ptr, size):
    e(f"s_mov_b32 s{dst}, s{ptr}")
    e(f"s_and_b32 s{dst+1}, s{ptr+1}, 0xffff")
    e(f"s_mov_b32 s{dst+2}, {size}")
    e(f"s_mov_b32 s{dst+3}, 0x00020000")

def kernel_begin(name):
    out.append(".text")
    out.append(f".globl {name}")
    out.append(".p2align 8")
    out.append(f".type {name},@function")
    lab(name)

def kernel_desc(name, vgpr, sgpr=96, agpr=0):
    if STAMP: vgpr = 256
    out.append('.section .rodata,"a"')
    out.append(".p2align 6")
    out.append(f".amdhsa_kernel {name}")
    out.append(f"  .amdhsa_next_free_vgpr {vgpr + agpr}")
    out.append(f"  .amdhsa_next_free_sgpr {sgpr}")
    out.append(f"  .amdhsa_accum_offset {(vgpr+3)//4*4}")
    out.append("  .amdhsa_group_segment_fixed_size 0")
    out.append("  .amdhsa_kernarg_size 112")
    out.append("  .amdhsa_user_sgpr_count 2")
    out.append("  .amdhsa_user_sgpr_kernarg_segment_ptr 1")
    out.append("  .amdhsa_system_sgpr_workgroup_id_x 1")
    out.append(".end_amdhsa_kernel")


SCL = int(os.environ.get("SCL", 3))
def static_claim():
    e("s_and_b32 s4, s2, 7")
    e("s_lshl_b32 s4, s4, 5")
    e("s_lshr_b32 s2, s2, 3")
    e("s_or_b32 s2, s2, s4")

def signal(sidx, lbl):
    e("s_waitcnt vmcnt(0)")
    e("s_barrier")
    e("s_cmp_lg_u32 s3, 0")
    e(f"s_cbranch_scc1 {lbl}")
    e(f"s_lshl_b32 s6, s{sidx}, {CSH}")
    e("s_add_u32 s6, s6, %d" % WS_CNT)
    e("s_mov_b64 exec, 1")
    e("v_mov_b32 v12, 1")
    e("v_mov_b32 v13, 0")
    e("buffer_atomic_add v12, v13, s[28:31], s6 offen sc1")
    e("s_mov_b64 exec, -1")
    lab(lbl)
def poll(soff, target, lbl, first=True):
    e("s_mov_b32 s91, 0")
    if not first: e(f"s_branch {lbl}_c")
    lab(f"{lbl}_p")
    e(f"buffer_load_dword v13, v14, s[28:31], s{soff} offen sc0 sc1")
    e("s_waitcnt vmcnt(0)")
    lab(f"{lbl}_c")
    e("v_readfirstlane_b32 s92, v13")
    e(f"s_cmp_ge_u32 s92, {target}")
    e(f"s_cbranch_scc1 {lbl}_d")
    e("s_add_u32 s91, s91, 1")
    e("s_cmp_ge_u32 s91, 0x20000")
    e(f"s_cbranch_scc1 {lbl}_d")
    e("s_sleep %d" % (int(os.environ.get("PSL", 2)) if first else int(os.environ.get("PSL2", 32))))
    e(f"s_branch {lbl}_p")
    lab(f"{lbl}_d")

def claim_tile(cnt_off, per, lds_off, lbl):
    e("s_cmp_lg_u32 s3, 0")
    e(f"s_cbranch_scc1 {lbl}_w")
    e("s_getreg_b32 s20, hwreg(HW_REG_XCC_ID)")
    e("s_and_b32 s20, s20, 7")
    e("s_mov_b32 s21, 0")
    e("s_mov_b64 s[22:23], exec")
    e("s_mov_b64 exec, 1")
    e("v_mov_b32 v12, 1")
    lab(f"{lbl}_l")
    e("s_lshl_b32 s24, s20, 6")
    e(f"s_add_u32 s24, s24, {WS_CNT + cnt_off}")
    e("v_mov_b32 v13, 0")
    e("v_mov_b32 v14, v12")
    e("buffer_atomic_add v14, v13, s[28:31], s24 offen sc0" + ("" if "asc" in SKIP else " sc1"))
    e("s_waitcnt vmcnt(0)")
    e("v_readfirstlane_b32 s25, v14")
    e(f"s_cmp_lt_u32 s25, {per}")
    e(f"s_cbranch_scc1 {lbl}_f")
    e("s_add_u32 s20, s20, 1")
    e("s_and_b32 s20, s20, 7")
    e("s_add_u32 s21, s21, 1")
    e("s_cmp_lt_u32 s21, 8")
    e(f"s_cbranch_scc1 {lbl}_l")
    e("s_mov_b32 s25, 0")
    lab(f"{lbl}_f")
    e(f"s_mul_i32 s20, s20, {per}")
    e("s_add_u32 s20, s20, s25")
    e("v_mov_b32 v14, s20")
    e(f"v_mov_b32 v13, {lds_off}")
    e("ds_write_b32 v13, v14")
    e("s_mov_b64 exec, s[22:23]")
    e("s_waitcnt lgkmcnt(0)")
    lab(f"{lbl}_w")
    e("s_barrier")
    e(f"v_mov_b32 v13, {lds_off}")
    e("ds_read_b32 v14, v13")
    e("s_waitcnt lgkmcnt(0)")
    e("v_readfirstlane_b32 s2, v14")

LN_WGS, WT_WGS, KG_WGS = 128, (68 if (W2MID or W1D) else 135), 640
PREP_WGS = KG_WGS + LN_WGS + WT_WGS
KG_LDS_WAVE = 512
KG_TAB0 = 2048
KG_TAB = 2688
KG_FIN = KG_TAB0 + 4*KG_TAB
PREP_LDS = 36864
LNS = 36

def gen_wt(wg0, wv0, wvend, endlab, kern, dly):
    if "wt" in SKIP: e("s_endpgm")
    if PRIO & 2: e("s_setprio 3")
    e("s_load_dwordx2 s[40:41], s[0:1], 64")
    e("s_load_dwordx2 s[42:43], s[0:1], 80")
    e("s_sub_u32 s4, s2, %d" % wg0)
    e("s_lshl_b32 s4, s4, 2")
    e("s_add_u32 s4, s4, s3")
    if wv0: e("s_add_u32 s4, s4, %d" % wv0)
    if wvend:
        e("s_cmp_ge_u32 s4, %d" % wvend)
        e("s_cbranch_scc1 %s" % endlab)
    e("s_waitcnt lgkmcnt(0)")
    e("s_cmp_ge_u32 s4, 270")
    e("s_cselect_b32 s40, s42, s40")
    e("s_cselect_b32 s41, s43, s41")
    e("s_mov_b32 s5, 3456")
    e("s_mov_b32 s7, 159072863")
    e("s_mov_b32 s34, %d" % WS_W1F)
    e("s_cselect_b32 s5, 1280, s5")
    e("s_cselect_b32 s6, 10, 27")
    e("s_cselect_b32 s7, 429496730, s7")
    e("s_cselect_b32 s32, 270, 0")
    e("s_cselect_b32 s33, 108, 40")
    e("s_cselect_b32 s34, %d, s34" % WS_W2F)
    srd(8, 40, D*F*2); srd(28, 56, WS_SIZE)
    e("s_sub_u32 s32, s4, s32")
    e("s_lshl_b32 s32, s32, 2")
    e("v_lshrrev_b32 v3, 3, v2")
    e("v_and_b32 v4, 7, v2")
    e("v_mul_lo_u32 v5, v3, s5")
    e("v_lshl_add_u32 v5, v4, 4, v5")
    e("s_lshl_b32 s35, s5, 3")
    e("s_mul_i32 s36, s3, %d" % (4*16*144))
    e("v_mul_u32_u24 v6, 144, v3")
    e("v_lshl_add_u32 v6, v4, 4, v6")
    e("v_add_u32 v6, s36, v6")
    e("v_and_b32 v7, 31, v2")
    e("v_lshrrev_b32 v8, 5, v2")
    e("v_mul_u32_u24 v8, %d, v8" % (8*144))
    e("v_lshl_add_u32 v8, v7, 1, v8")
    e("v_add_u32 v8, s36, v8")
    e("v_lshlrev_b32 v9, 4, v2")
    if dly: e(f"s_sleep {dly}")
    for q in range(4):
        e(f"s_add_u32 s37, s32, {q}")
        e("s_mul_hi_u32 s38, s37, s7")
        e("s_mul_i32 s39, s38, s6")
        e("s_sub_u32 s39, s37, s39")
        e(f"s_lshl_b32 s44, s38, 4")
        e(f"s_mul_i32 s44, s44, s5")
        e(f"s_lshl_b32 s45, s39, 7")
        e(f"s_add_u32 s44, s44, s45")
        e(f"buffer_load_dwordx4 v[{16+8*q}:{19+8*q}], v5, s[8:11], s44 offen")
        e(f"s_add_u32 s44, s44, s35")
        e(f"buffer_load_dwordx4 v[{20+8*q}:{23+8*q}], v5, s[8:11], s44 offen")
        e(f"s_lshl_b32 s45, s39, 1")
        e(f"s_mul_i32 s45, s45, s33")
        e(f"s_add_u32 s45, s45, s38")
        e(f"s_lshl_b32 s45, s45, 10")
        e(f"s_add_u32 s{48+q}, s45, s34")
    e("s_lshl_b32 s33, s33, 10")
    for q in range(4):
        e(f"s_waitcnt vmcnt({6-2*q})")
        e(f"ds_write_b128 v6, v[{16+8*q}:{19+8*q}] offset:{q*16*144}")
        e(f"ds_write_b128 v6, v[{20+8*q}:{23+8*q}] offset:{q*16*144 + 8*144}")
    tl(1)
    for q in range(4):
        e("s_waitcnt lgkmcnt(0)") if q == 0 else None
        for f in range(2):
            for el in range(8):
                e(f"ds_read_u16 v{48+16*(q&1)*2+16*f+el}, v8 offset:{q*16*144 + el*144 + 64*f}")
        if q > 0:
            pass
        e("s_waitcnt lgkmcnt(0)")
        for f in range(2):
            for j in range(4):
                r = 48 + 16*(q&1)*2 + 16*f
                e(f"v_lshl_or_b32 v{112+4*f+j}, v{r+2*j+1}, 16, v{r+2*j}")
            if f == 0:
                e(f"buffer_store_dwordx4 v[112:115], v9, s[28:31], s{48+q} offen")
            else:
                e(f"s_add_u32 s{48+q}, s{48+q}, s33")
                e(f"buffer_store_dwordx4 v[116:119], v9, s[28:31], s{48+q} offen")
        if q < 3:
            e("s_nop 1")
    tl(5)
    if TL: e("s_waitcnt vmcnt(0)")
    tl_end(kern)

def gen_prep():
    kernel_begin("prep_kernel")
    if EMU & 2:
        e("s_cmp_lt_u32 s2, 256")
        e("s_cbranch_scc1 mid_body")
        e("s_sub_u32 s2, s2, 256")
    if PORD:
        e("s_lshr_b32 s4, s2, 7")
        e("s_cmp_eq_u32 s4, 6")
        e("s_cbranch_scc1 prep_end")
        e("s_cmp_gt_u32 s4, 6")
        e("s_cselect_b32 s4, 128, 0")
        e("s_sub_u32 s2, s2, s4")
    e("s_cmp_ge_u32 s2, %d" % PREP_WGS)
    e("s_cbranch_scc1 prep_end")
    e("s_load_dwordx2 s[56:57], s[0:1], 104")
    e("v_lshrrev_b32 v1, 6, v0")
    e("v_and_b32 v2, 63, v0")
    e("s_nop 0")
    e("v_readfirstlane_b32 s3, v1")
    if ORDER:
        e("s_add_u32 s2, s2, %d" % KG_WGS)
        e("s_cmp_ge_u32 s2, %d" % PREP_WGS)
        e("s_cselect_b32 s4, %d, 0" % PREP_WGS)
        e("s_sub_u32 s2, s2, s4")
    tl_begin()
    e("s_cmp_ge_u32 s2, %d" % (KG_WGS + LN_WGS))
    e("s_cbranch_scc1 prep_wt")
    e("s_cmp_ge_u32 s2, %d" % KG_WGS)
    e("s_cbranch_scc1 prep_ln")
    if "kg" in SKIP: e("s_endpgm")
    e("s_load_dwordx4 s[40:43], s[0:1], 8")
    e("s_load_dwordx4 s[44:47], s[0:1], 24")
    e("s_load_dwordx2 s[48:49], s[0:1], 40")
    e("s_mov_b32 s4, s2")
    e("s_mul_i32 s5, s3, %d" % KG_LDS_WAVE)
    e("s_lshl_b32 s6, s4, 8")
    e("s_lshl_b32 s7, s3, 6")
    e("s_add_u32 s6, s6, s7")
    e("v_and_b32 v3, 31, v2")
    e("v_lshl_add_u32 v3, v3, 1, s6")
    e("s_lshl_b32 s7, s4, 1")
    e("v_mov_b32 v4, s7")
    e("s_waitcnt lgkmcnt(0)")
    srd(8, 40, D*N*2); srd(12, 42, D*N*2); srd(16, 44, D*N*2); srd(20, 46, D*N*2)
    srd(24, 48, D*2); srd(28, 56, WS_SIZE)
    for k, sr in enumerate((8, 12, 16, 20)):
        e(f"buffer_load_ushort v{10+k}, v3, s[{sr}:{sr+3}], 0 offen")
    e("buffer_load_ushort v18, v4, s[24:27], 0 offen")
    e("v_and_b32 v8, 15, v2")
    e("v_lshrrev_b32 v9, 4, v2")
    e("v_and_b32 v24, 7, v8")
    e("v_lshrrev_b32 v25, 3, v8")
    e("v_lshl_add_u32 v28, v25, 7, v24")
    e("v_and_b32 v24, 3, v8")
    e("v_lshlrev_b32 v24, 1, v24")
    e("v_bfe_u32 v25, v8, 2, 1")
    e("v_lshl_add_u32 v24, v25, 7, v24")
    e("v_add_u32 v24, 256, v24")
    e("v_and_b32 v25, 1, v8")
    e("v_lshlrev_b32 v25, 2, v25")
    e("v_bfe_u32 v26, v8, 1, 2")
    e("v_lshl_add_u32 v25, v26, 7, v25")
    e("v_add_u32 v25, 512, v25")
    e("v_cmp_gt_u32 vcc, 8, v8")
    e("s_nop 1")
    e("v_cndmask_b32 v29, v25, v24, vcc")
    e("v_lshlrev_b32 v30, 7, v8")
    e("v_add_u32 v30, 0x400, v30")
    e("v_lshlrev_b32 v31, 3, v8")
    for t in range(4):
        e(f"v_cvt_f32_u32 v{28+t}, v{28+t}")
    e("s_mul_i32 s6, s3, %d" % KG_TAB)
    e("s_add_u32 s6, s6, %d" % KG_TAB0)
    e("v_and_b32 v24, 1, v9")
    e("v_lshrrev_b32 v25, 1, v9")
    e("v_lshl_add_u32 v33, v8, 5, s6")
    e("v_lshl_add_u32 v33, v24, 4, v33")
    e("v_lshl_add_u32 v33, v25, 9, v33")
    e("v_lshlrev_b32 v24, 4, v8")
    e("v_lshlrev_b32 v25, 3, v8")
    e("v_cmp_gt_u32 vcc, 2, v9")
    e("s_nop 1")
    e("v_cndmask_b32 v24, v25, v24, vcc")
    e("v_lshl_add_u32 v24, v9, 8, v24")
    e("v_add_u32 v24, s6, v24")
    e("v_add_u32 v34, 1024, v24")
    e("v_mov_b32 v25, 128")
    e("v_cndmask_b32_e64 v24, v25, 8, vcc")
    e("v_add_u32 v36, v34, v24")
    e("v_lshl_add_u32 v38, v8, 2, s6")
    e("v_lshl_add_u32 v38, v9, 8, v38")
    e("v_add_u32 v38, 2048, v38")
    e("v_lshl_add_u32 v39, v9, 4, s5")
    for r in range(40, 52):
        e(f"v_mov_b32 v{r}, 0")
    e("s_waitcnt vmcnt(0)")
    tl(1)
    for r in (10, 11, 12, 13, 18):
        e(f"v_lshlrev_b32 v{r}, 16, v{r}")
    e(f"v_mul_f32 v18, {LOG2E:#x}, v18")
    e(f"v_mul_f32 v10, {LOG2E:#x}, v10")
    e("v_exp_f32 v18, v18")
    e("v_exp_f32 v10, v10")
    e("s_nop 0")
    e("v_cvt_pk_bf16_f32 v18, v18, v18")
    e("v_cvt_pk_bf16_f32 v10, v10, v10")
    e("v_lshlrev_b32 v18, 16, v18")
    e("v_lshlrev_b32 v10, 16, v10")
    e("v_add_f32 v19, v18, v18")
    e("v_and_b32 v5, 31, v2")
    e("v_lshl_add_u32 v5, v5, 4, s5")
    e("v_mul_f32 v20, v10, v18")
    e(f"v_mul_f32 v20, {LOG2E|0x80000000:#x}, v20")
    e("v_mul_f32 v21, v11, v18")
    e(f"v_mul_f32 v21, {INV2PI:#x}, v21")
    e("v_mul_f32 v22, v12, v19")
    e("v_mul_f32 v23, v13, v19")
    e("ds_write_b128 v5, v[20:23]")
    e("s_waitcnt lgkmcnt(0)")
    for st in range(2 if KGR else 8):
        e(f"ds_read_b128 v[{96+4*st}:{99+4*st}], v39 offset:{64*st}")
    if not KGR: e("s_waitcnt lgkmcnt(0)")
    def kg_valu(st):
        P = 96 + 4*st
        O = 72 + 10*(st & 1)
        v = []
        for t in range(4):
            v.append(f"v_mul_f32 v{52+t}, v{P}, v{28+t}")
            v.append(f"v_mul_f32 v{56+t}, v{P+1}, v{28+t}")
        for t in range(4):
            v.append(f"v_exp_f32 v{52+t}, v{52+t}")
            v.append(f"v_fract_f32 v{56+t}, v{56+t}")
        for t in range(4):
            v.append(f"v_cos_f32 v{60+t}, v{56+t}")
            v.append(f"v_sin_f32 v{64+t}, v{56+t}")
        for t in range(4):
            v.append(f"v_mul_f32 v{60+t}, v{52+t}, v{60+t}")
            v.append(f"v_mul_f32 v{64+t}, v{52+t}, v{64+t}")
        v.append(f"v_mul_f32 v55, v63, v{P+2}")
        v.append(f"v_mul_f32_e64 v59, -v63, v{P+3}")
        v.append(f"v_fma_f32 v55, -v67, v{P+3}, v55")
        v.append(f"v_fma_f32 v59, -v67, v{P+2}, v59")
        if KGR: v.append(f"ds_read_b128 v[{P}:{P+3}], v39 offset:{128 + 64*st}")
        def split(xr, xi, H, Lo, t0, t1):
            v.append(f"v_cvt_pk_bf16_f32 v{H}, v{xr}, v{xi}")
            v.append(f"v_lshlrev_b32 v{t0}, 16, v{H}")
            v.append(f"v_and_b32 v{t1}, 0xffff0000, v{H}")
            v.append(f"v_sub_f32 v{t0}, v{xr}, v{t0}")
            v.append(f"v_sub_f32 v{t1}, v{xi}, v{t1}")
            v.append(f"v_cvt_pk_bf16_f32 v{Lo}, v{t0}, v{t1}")
        split(55, 59, O, O+2, 68, 69)
        v.append(f"v_mov_b32 v{O+1}, v{O}")
        v.append(f"v_mov_b32 v{O+3}, v{O+2}")
        for t in range(3):
            split(60+t, 64+t, O+4+2*t, O+5+2*t, 52+t, 56+t)
        return v
    def kg_mfma(st):
        O = 72 + 10*(st & 1)
        m = []
        for h in range(2):
            for t in range(3):
                a = 40 + 4*t
                m.append(f"v_mfma_f32_16x16x16_bf16 v[{a}:{a+3}], v[{O+4+2*t}:{O+5+2*t}], v[{O+2*h}:{O+2*h+1}], v[{a}:{a+3}]")
        return m
    if KGR:
        for r in range(82, 92): e(f"v_mov_b32 v{r}, 0")
        e("s_mov_b32 s7, 4")
        lab("kg_loop")
    for st in ((0, 1, 2) if KGR else range(9)):
        v = kg_valu(st) if st < (2 if KGR else 8) else []
        m = kg_mfma(st-1) if (st > 0 or KGR) else []
        if KGR and st < 2: e("s_waitcnt lgkmcnt(1)")
        if KGR and st == 2:
            e("v_add_u32 v39, 128, v39")
            e("s_sub_u32 s7, s7, 1")
            e("s_cmp_lg_u32 s7, 0")
            e("s_cbranch_scc1 kg_loop")
        if "kgm" in SKIP: m = []
        if "kgv" in SKIP: v = []
        if not v:
            e("s_nop 1")
        vi = 0
        for mi, mm_ in enumerate(m):
            tgt = 2 + 7*mi
            while vi < min(tgt, len(v)):
                e(v[vi]); vi += 1
            e(mm_)
        while vi < len(v):
            e(v[vi]); vi += 1
    e("s_nop 15")
    tl(2)
    for r in range(4):
        e(f"ds_write_b32 v33, v{40+r} offset:{4*r}")
    e("ds_write_b32 v34, v44")
    e("ds_write_b32 v34, v45 offset:4")
    e("ds_write_b32 v36, v46")
    e("ds_write_b32 v36, v47 offset:4")
    e("s_mov_b32 exec_hi, 0xffff")
    e("ds_write_b32 v38, v48")
    e("s_mov_b32 exec_hi, 0")
    for r in range(1, 4):
        e(f"ds_write_b32 v38, v{48+r} offset:{64*r}")
    e("s_mov_b32 exec_hi, -1")
    e("s_mul_i32 s4, s4, %d" % KR_STRIDE)
    e("s_add_u32 s4, s4, %d" % WS_KR)
    e("v_lshlrev_b32 v39, 4, v0")
    e("v_lshlrev_b32 v64, 3, v0")
    e("v_sub_u32 v64, 2047, v64")
    e("v_lshlrev_b32 v65, 2, v0")
    e("v_lshlrev_b32 v66, 1, v0")
    for k in range(8):
        e(f"v_subrev_u32 v{52+k}, {k}, v64")
        e(f"v_cvt_f32_u32 v{72+k}, v{52+k}")
    for k in range(4):
        e(f"v_cvt_pk_bf16_f32 v{80+k}, v{72+2*k}, v{73+2*k}")
        e(f"v_and_b32 v{72+2*k}, 0xffff, v{80+k}")
        e(f"v_lshrrev_b32 v{73+2*k}, 16, v{80+k}")
    for k in range(8):
        e(f"v_subrev_u32 v{72+k}, 17024, v{72+k}")
        e(f"v_cmp_gt_u32 vcc, 256, v{52+k}")
        e("s_nop 1")
        e(f"v_cndmask_b32 v{52+k}, v{72+k}, v{52+k}, vcc")
        e(f"v_lshlrev_b32 v{52+k}, 1, v{52+k}")
    e("s_waitcnt lgkmcnt(0)")
    e("s_barrier")
    tl(3)
    for m in range(3):
        for ww in range(4):
            e(f"ds_read_b32 v{72+4*m+ww}, v65 offset:{KG_TAB0 + ww*KG_TAB + 1024*m}")
    for m in range(3):
        e(f"s_waitcnt lgkmcnt({8-4*m})")
        e(f"v_add_f32 v{72+4*m}, v{72+4*m}, v{73+4*m}")
        e(f"v_add_f32 v{74+4*m}, v{74+4*m}, v{75+4*m}")
        e(f"v_add_f32 v{72+4*m}, v{72+4*m}, v{74+4*m}")
        e(f"v_cvt_pk_bf16_f32 v{72+4*m}, v{72+4*m}, v{72+4*m}")
        e(f"ds_write_b16 v66, v{72+4*m} offset:{KG_FIN + 512*m}")
    e("s_waitcnt lgkmcnt(0)")
    e("s_barrier")
    tl(4)
    for k in range(8):
        e(f"ds_read_u16 v{96+k}, v{52+k} offset:{KG_FIN}")
    e("s_waitcnt lgkmcnt(0)")
    for k in range(4):
        e(f"v_lshl_or_b32 v{112+k}, v{97+2*k}, 16, v{96+2*k}")
    e(f"buffer_store_dwordx4 v[112:115], v39, s[28:31], s4 offen")
    for k in range(4):
        e(f"v_mov_b32 v{116+k}, 0")
    e("v_cmp_gt_u32 vcc, 8, v0")
    e("s_and_saveexec_b64 s[32:33], vcc")
    e("s_cbranch_execz prep_end")
    e("s_add_u32 s4, s4, 4096")
    e("buffer_store_dwordx4 v[116:119], v39, s[28:31], s4 offen")
    if MBX:
        e("s_cmp_ge_u32 s2, 256")
        e("s_cbranch_scc1 prep_end")
        e("v_lshlrev_b32 v40, 3, v0")
        e("s_lshl_b32 s4, s2, %d" % MBX)
        e("s_add_u32 s4, s4, %d" % WS_MB)
        e("buffer_store_dwordx2 v[116:117], v40, s[28:31], s4 offen")
        if MB2:
            e("v_lshlrev_b32 v40, 4, v0")
            e("s_lshl_b32 s4, s2, 9")
            e("s_add_u32 s4, s4, %d" % WS_MB2)
            for k in range(3): e(f"buffer_store_dwordx4 v[116:119], v40, s[28:31], s4 offen offset:{128*k}")
    e("v_lshlrev_b32 v39, %d, v0" % CSH)
    tl(5)
    if TL: e("s_waitcnt vmcnt(0)")
    tl_end(0)
    if FUSE or not (EMU & 1 and (SCL & 2 or FMAP >= 2)):
        e("s_cmp_lg_u32 s2, 0")
        e("s_cbranch_scc1 prep_end")
        e("s_mov_b32 s4, %d" % WS_CNT)
        e("buffer_store_dword v116, v39, s[28:31], s4 offen")
        e("s_add_u32 s4, s4, %d" % (8 << CSH))
        e("buffer_store_dword v116, v39, s[28:31], s4 offen")
        e("s_add_u32 s4, s4, %d" % (8 << CSH))
        e("buffer_store_dword v116, v39, s[28:31], s4 offen")
    e("s_endpgm")
    lab("prep_ln")
    if "ln" in SKIP: e("s_endpgm")
    if PRIO & 1: e("s_setprio 3")
    e("s_load_dwordx2 s[40:41], s[0:1], 0")
    e("s_sub_u32 s2, s2, %d" % KG_WGS)
    e("v_and_b32 v3, 15, v0")
    e("v_lshrrev_b32 v4, 4, v0")
    e("s_lshl_b32 s5, s2, 4")
    e("v_add_u32 v5, s5, v4")
    e("v_mul_u32_u24 v6, 1280, v5")
    e("v_lshl_add_u32 v6, v3, 4, v6")
    e("s_waitcnt lgkmcnt(0)")
    srd(8, 40, L*D*2); srd(28, 56, WS_SIZE)
    if DLYL: e(f"s_sleep {DLYL}")
    for j in range(5):
        e(f"buffer_load_dwordx4 v[{16+4*j}:{19+4*j}], v6, s[8:11], 0 offen offset:{256*j}")
    e("s_lshr_b32 s6, s2, 1")
    e("s_mul_i32 s6, s6, %d" % (40*1024))
    e("s_add_u32 s6, s6, %d" % WS_XNF)
    e("v_lshrrev_b32 v7, 1, v3")
    e("v_lshlrev_b32 v7, 10, v7")
    e("v_and_b32 v8, 1, v3")
    e("v_lshl_add_u32 v7, v8, 9, v7")
    e("v_and_b32 v8, 31, v5")
    e("v_lshl_add_u32 v7, v8, 4, v7")
    e(f"v_mul_u32_u24 v9, {8*LNS}, v3")
    e("v_lshl_add_u32 v9, v4, 1, v9")
    e("s_waitcnt vmcnt(0)")
    tl(1)
    for k in range(20):
        e(f"v_lshlrev_b32 v{40+2*k}, 16, v{16+k}")
        e(f"v_and_b32 v{41+2*k}, 0xffff0000, v{16+k}")
    def lane_sum(srcs, acc):
        for a in range(4):
            e(f"v_add_f32 v{acc+a}, v{srcs[a]}, v{srcs[a+4]}")
        for k in range(8, len(srcs)):
            e(f"v_add_f32 v{acc+(k%4)}, v{acc+(k%4)}, v{srcs[k]}")
        e(f"v_add_f32 v{acc}, v{acc}, v{acc+1}")
        e(f"v_add_f32 v{acc+2}, v{acc+2}, v{acc+3}")
        e(f"v_add_f32 v{acc}, v{acc}, v{acc+2}")
        for sh in (8, 4, 2, 1):
            e("s_nop 1")
            e(f"v_add_f32_dpp v{acc}, v{acc}, v{acc} row_ror:{sh} row_mask:0xf bank_mask:0xf")
    lane_sum(list(range(40, 80)), 10)
    e("v_mul_f32 v14, 0x3acccccd, v10")
    for k in range(40):
        e(f"v_sub_f32 v{80+k}, v{40+k}, v14")
        e(f"v_mul_f32 v{80+k}, v{80+k}, v{80+k}")
    lane_sum(list(range(80, 120)), 10)
    e("v_mul_f32 v10, 0x3acccccd, v10")
    e("v_cvt_pk_bf16_f32 v10, v10, v14")
    e("v_and_b32 v14, 0xffff0000, v10")
    e("v_lshlrev_b32 v10, 16, v10")
    e("v_add_f32 v10, 0x3727c5ac, v10")
    e("v_cvt_pk_bf16_f32 v10, v10, v10")
    e("v_lshlrev_b32 v10, 16, v10")
    e("v_sqrt_f32 v10, v10")
    e("s_nop 0")
    e("v_cvt_pk_bf16_f32 v10, v10, v10")
    e("v_lshlrev_b32 v10, 16, v10")
    e("v_rcp_f32 v11, v10")
    e("s_nop 0")
    e("v_fma_f32 v12, -v10, v11, 2.0")
    e("v_mul_f32 v11, v11, v12")
    for k in range(20):
        e(f"v_sub_f32 v{40+2*k}, v{40+2*k}, v14")
        e(f"v_sub_f32 v{41+2*k}, v{41+2*k}, v14")
        e(f"v_cvt_pk_bf16_f32 v{16+k}, v{40+2*k}, v{41+2*k}")
        e(f"v_lshlrev_b32 v{40+2*k}, 16, v{16+k}")
        e(f"v_and_b32 v{41+2*k}, 0xffff0000, v{16+k}")
        e(f"v_mul_f32 v{40+2*k}, v{40+2*k}, v11")
        e(f"v_mul_f32 v{41+2*k}, v{41+2*k}, v11")
        e(f"v_cvt_pk_bf16_f32 v{16+k}, v{40+2*k}, v{41+2*k}")
    tl(2)
    for j in range(5):
        if "xnf" not in SKIP: e(f"buffer_store_dwordx4 v[{16+4*j}:{19+4*j}], v7, s[28:31], s6 offen")
        if j < 4: e("s_add_u32 s6, s6, 8192")
    for j in range(5):
        for el in range(8):
            r = 16 + 4*j + el//2
            op = "ds_write_b16_d16_hi" if el & 1 else "ds_write_b16"
            e(f"{op} v9, v{r} offset:{(128*j + el)*LNS}")
    e("v_lshrrev_b32 v10, 1, v0")
    e("v_and_b32 v11, 1, v0")
    e(f"v_mul_u32_u24 v12, {LNS}, v10")
    e("v_lshl_add_u32 v12, v11, 4, v12")
    e("v_lshlrev_b32 v13, 4, v0")
    e("s_mul_i32 s6, s2, 20480")
    e("s_add_u32 s6, s6, %d" % WS_XNT)
    e("s_waitcnt lgkmcnt(0)")
    e("s_barrier")
    tl(3)
    for j in range(5):
        e(f"ds_read2_b32 v[{40+4*j}:{41+4*j}], v12 offset0:{(128*j*LNS)//4 % 256} offset1:{(128*j*LNS)//4 % 256 + 1}")
        e(f"ds_read2_b32 v[{42+4*j}:{43+4*j}], v12 offset0:{(128*j*LNS)//4 % 256 + 2} offset1:{(128*j*LNS)//4 % 256 + 3}")
        if j < 4:
            nxt = (128*(j+1)*LNS)//4 // 256 - (128*j*LNS)//4 // 256
            e(f"v_add_u32 v12, {nxt*1024}, v12")
    for j in range(5):
        e(f"s_waitcnt lgkmcnt({2*(4-j)})")
        if "xnt" not in SKIP: e(f"buffer_store_dwordx4 v[{40+4*j}:{43+4*j}], v13, s[28:31], s6 offen")
        if j < 4: e("s_add_u32 s6, s6, %d" % (128*32))
    tl(5)
    if TL: e("s_waitcnt vmcnt(0)")
    tl_end(0)
    e("s_endpgm")
    lab("prep_wt")
    if W1D: gen_wt(KG_WGS + LN_WGS, 270, 540, "prep_end", 0, DLYW)
    else: gen_wt(KG_WGS + LN_WGS, 0, 270 if W2MID else 0, "prep_end", 0, DLYW)
    lab("prep_end")
    e("s_endpgm")
    kernel_desc("prep_kernel", 160 if EMU & 4 else 128)

G1_WGS = 256
CV_WGS = int(os.environ.get("NCV", 256)) if CVL else 640
W2_WGS = 68 if W2MID else 0
MID_WGS = G1_WGS + CV_WGS + W2_WGS
CS = 4160
def CB(c): return c*CS + (32 if c >= 4 else 0)
UB = CB(7) + CS - 80
G1_NS, G1_BD = int(os.environ.get('G1NS', 5)), int(os.environ.get('G1BD', 4))
MID_LDS = max(40960, 7168*G1_NS)

def mish_pairs(acc0, acc1, b0, b1r, dst, t):
    e(f"v_cvt_pk_bf16_f32 v{t}, v{acc0}, v{acc1}")
    e(f"v_lshlrev_b32 v{t+1}, 16, v{t}")
    e(f"v_and_b32 v{t+2}, 0xffff0000, v{t}")
    e(f"v_add_f32 v{t+1}, v{t+1}, v{b0}")
    e(f"v_add_f32 v{t+2}, v{t+2}, v{b1r}")
    e(f"v_cvt_pk_bf16_f32 v{t}, v{t+1}, v{t+2}")
    e(f"v_lshlrev_b32 v{t+1}, 16, v{t}")
    e(f"v_and_b32 v{t+2}, 0xffff0000, v{t}")
    if MISH2:
        e(f"v_mul_f32 v{t+3}, {LOG2E:#x}, v{t+1}")
        e(f"v_mul_f32 v{t+4}, {LOG2E:#x}, v{t+2}")
        e(f"v_exp_f32 v{t+3}, v{t+3}")
        e(f"v_exp_f32 v{t+4}, v{t+4}")
        e(f"s_nop 0")
        e(f"v_add_f32 v{t+3}, 1.0, v{t+3}")
        e(f"v_add_f32 v{t+4}, 1.0, v{t+4}")
        e(f"v_fmaak_f32 v{t+3}, v{t+3}, v{t+3}, 0x3f800000")
        e(f"v_fmaak_f32 v{t+4}, v{t+4}, v{t+4}, 0x3f800000")
        e(f"v_rcp_f32 v{t+3}, v{t+3}")
        e(f"v_rcp_f32 v{t+4}, v{t+4}")
        e(f"s_nop 0")
        e(f"v_fmaak_f32 v{t+3}, -2.0, v{t+3}, 0x3f800000")
        e(f"v_fmaak_f32 v{t+4}, -2.0, v{t+4}, 0x3f800000")
        e(f"v_mul_f32 v{t+1}, v{t+1}, v{t+3}")
        e(f"v_mul_f32 v{t+2}, v{t+2}, v{t+4}")
    else:
        e(f"v_min_f32 v{t+3}, 0x41a00000, v{t+1}")
        e(f"v_min_f32 v{t+4}, 0x41a00000, v{t+2}")
        e(f"v_mul_f32 v{t+3}, {LOG2E:#x}, v{t+3}")
        e(f"v_mul_f32 v{t+4}, {LOG2E:#x}, v{t+4}")
        e(f"v_exp_f32 v{t+3}, v{t+3}")
        e(f"v_exp_f32 v{t+4}, v{t+4}")
        e(f"s_nop 0")
        e(f"v_add_f32 v{t}, 2.0, v{t+3}")
        e(f"v_add_f32 v{t+5}, 2.0, v{t+4}")
        e(f"v_mul_f32 v{t+3}, v{t+3}, v{t}")
        e(f"v_mul_f32 v{t+4}, v{t+4}, v{t+5}")
        e(f"v_add_f32 v{t}, 2.0, v{t+3}")
        e(f"v_add_f32 v{t+5}, 2.0, v{t+4}")
        e(f"v_rcp_f32 v{t}, v{t}")
        e(f"v_rcp_f32 v{t+5}, v{t+5}")
        e(f"v_mul_f32 v{t+1}, v{t+1}, v{t+3}")
        e(f"v_mul_f32 v{t+2}, v{t+2}, v{t+4}")
        e(f"v_mul_f32 v{t+1}, v{t+1}, v{t}")
        e(f"v_mul_f32 v{t+2}, v{t+2}, v{t+5}")
    e(f"v_cvt_pk_bf16_f32 v{dst}, v{t+1}, v{t+2}")

def mish_quad(ac, T, dst):
    H = [T+4, T+8]; E = [T+6, T+10]; P = [T+12, T+13]
    pr = lambda r: f"v[{r}:{r+1}]"
    for q in range(2): e(f"v_cvt_pk_bf16_f32 v{P[q]}, v{ac+2*q}, v{ac+2*q+1}")
    for q in range(2):
        e(f"v_lshlrev_b32 v{H[q]}, 16, v{P[q]}")
        e(f"v_and_b32 v{H[q]+1}, 0xffff0000, v{P[q]}")
    for q in range(2): e(f"v_pk_add_f32 {pr(H[q])}, {pr(H[q])}, {pr(T+2*q)}")
    for q in range(2): e(f"v_cvt_pk_bf16_f32 v{P[q]}, v{H[q]}, v{H[q]+1}")
    for q in range(2):
        e(f"v_lshlrev_b32 v{H[q]}, 16, v{P[q]}")
        e(f"v_and_b32 v{H[q]+1}, 0xffff0000, v{P[q]}")
    for q in range(2): e(f"v_pk_mul_f32 {pr(E[q])}, {pr(H[q])}, s[46:47]")
    for q in range(2):
        e(f"v_exp_f32 v{E[q]}, v{E[q]}")
        e(f"v_exp_f32 v{E[q]+1}, v{E[q]+1}")
    for q in range(2): e(f"v_pk_add_f32 {pr(E[q])}, {pr(E[q])}, v[40:41]")
    for q in range(2): e(f"v_pk_fma_f32 {pr(E[q])}, {pr(E[q])}, {pr(E[q])}, v[40:41]")
    for q in range(2):
        e(f"v_rcp_f32 v{E[q]}, v{E[q]}")
        e(f"v_rcp_f32 v{E[q]+1}, v{E[q]+1}")
    for q in range(2): e(f"v_pk_fma_f32 {pr(E[q])}, {pr(E[q])}, v[42:43], v[40:41]")
    for q in range(2): e(f"v_pk_mul_f32 {pr(H[q])}, {pr(H[q])}, {pr(E[q])}")
    for q in range(2): e(f"v_cvt_pk_bf16_f32 v{dst+q}, v{H[q]}, v{H[q]+1}")

def gemm_loop(nA, nsteps, KS, NS, frag_reg, acc_reg, voff, srdws, sA0, sB0, stride, spiece, vlds_r_b, vlds_r_lane):
    nR = nA + 4
    npieces = nR * KS
    npw = (npieces + 3) // 4
    SZ = npieces * 1024
    nchunks = nsteps // KS
    assert nsteps % KS == 0
    e(f"s_sub_u32 s{sB0}, s{sB0}, {nA*stride}")
    for i in range(npw):
        g, l = spiece + 2*i, spiece + 2*i + 1
        e(f"s_add_u32 s{l}, s3, {4*i}")
        e(f"s_min_u32 s{l}, s{l}, {npieces-1}")
        sh = {1: 0, 2: 1, 4: 2}[KS]
        e(f"s_lshr_b32 s{g}, s{l}, {sh}")
        e(f"s_cmp_lt_u32 s{g}, {nA}")
        e(f"s_cselect_b32 s6, s{sA0}, s{sB0}")
        e(f"s_mul_i32 s{g}, s{g}, {stride}")
        e(f"s_add_u32 s{g}, s{g}, s6")
        e(f"s_and_b32 s6, s{l}, {KS-1}")
        e(f"s_lshl_b32 s6, s6, 10")
        e(f"s_add_u32 s{g}, s{g}, s6")
        e(f"s_lshl_b32 s{l}, s{l}, 10")
    def dma(c):
        slot = c % NS
        for i in range(npw):
            e(f"s_add_u32 m0, s{spiece+2*i+1}, {slot*SZ}")
            e("s_nop 0")
            e(f"buffer_load_dwordx4 v{voff}, s[{srdws}:{srdws+3}], s{spiece+2*i} offen lds")
        e(f"v_add_u32 v{voff}, {KS*1024}, v{voff}")
    per = nA + 1
    HALF = 2*SZ
    e(f"v_add_u32 v12, {HALF}, v{vlds_r_b}")
    e(f"v_add_u32 v13, {HALF}, v{vlds_r_lane}")
    e(f"v_add_u32 v14, {2*HALF}, v{vlds_r_b}")
    e(f"v_add_u32 v15, {2*HALF}, v{vlds_r_lane}")
    def reads(slot, q):
        fr = frag_reg + 4*per*q
        vb, vl, so = [(vlds_r_b, vlds_r_lane, slot*SZ), (12, 13, slot*SZ - HALF), (14, 15, slot*SZ - 2*HALF)][slot//2]
        e(f"ds_read_b128 v[{fr}:{fr+3}], v{vb} offset:{so + q*1024}")
        for a in range(nA):
            e(f"ds_read_b128 v[{fr+4+4*a}:{fr+7+4*a}], v{vl} offset:{so + a*KS*1024 + q*1024}")
    def mfmas(q):
        fr = frag_reg + 4*per*q
        for a in range(nA):
            ac = acc_reg + 16*a
            e(f"v_mfma_f32_32x32x16_bf16 v[{ac}:{ac+15}], v[{fr+4+4*a}:{fr+7+4*a}], v[{fr}:{fr+3}], v[{ac}:{ac+15}]")
    for c in range(min(NS-1, nchunks)):
        dma(c)
    for c in range(nchunks):
        inflight = min(NS-2, nchunks-1-c)
        e(f"s_waitcnt vmcnt({inflight*npw})")
        e("s_barrier")
        if nA == 2 and c == 0: stamp(2)
        if nA == 2 and c == 1: stamp(3)
        slot = c % NS
        if "rd" not in SKIP:
            for q in range(KS):
                reads(slot, q)
        if c + NS - 1 < nchunks and "dma" not in SKIP:
            dma(c + NS - 1)
        for q in range(KS):
            e(f"s_waitcnt lgkmcnt({(KS-1-q)*per})")
            if "mf" not in SKIP: mfmas(q)


UB2 = CB(7) + CS
HS = 2432
def gen_conv2():
    if "cv" in SKIP: e("s_endpgm")
    if PRIO & 8: e("s_setprio 3")
    if CP2:
        e("s_cmp_lt_u32 s2, %d" % CP2)
        e("s_cbranch_scc1 cv_np")
        e("s_setprio 3")
        lab("cv_np")
    srd(8, 60, D*2)
    def dmap(si):
        e(f"s_and_b32 s5, s{si}, 7")
        e("s_lshl_b32 s5, s5, 2")
        e(f"s_bfe_u32 s6, s{si}, 0x20003")
        e("s_or_b32 s5, s5, s6")
        e(f"s_andn2_b32 s4, s{si}, 31")
        e("s_or_b32 s4, s4, s5")
    def cvload():
        dmap(95)
        e("s_lshl_b32 s5, s4, 1")
        e("v_mov_b32 v144, s5")
        e("buffer_load_ushort v128, v144, s[8:11], 0 offen")
        e("s_lshl_b32 s5, s4, 5")
        e("s_add_u32 s5, s5, %d" % WS_XNT)
        e("buffer_load_dwordx4 v[132:135], v145, s[28:31], s5 offen")
        e("s_mul_i32 s6, s4, %d" % KR_STRIDE)
        e("s_add_u32 s6, s6, %d" % WS_KR)
        e("buffer_load_dwordx4 v[136:139], v146, s[28:31], s6 offen")
        e("buffer_load_dwordx4 v[140:143], v146, s[28:31], s6 offen offset:16")
    if CVL:
        e("s_sub_u32 s95, s2, %d" % G1_WGS)
        e("s_mov_b32 s89, -1")
        e("v_lshrrev_b32 v145, 1, v0")
        e("v_mul_u32_u24 v145, 20480, v145")
        e("v_and_b32 v146, 1, v0")
        e("v_lshl_add_u32 v145, v146, 4, v145")
        e("v_lshlrev_b32 v146, 4, v0")
        if DLYC: e(f"s_sleep {DLYC}")
        cvload()
        e("s_waitcnt vmcnt(0)")
        lab("cv_loop")
        e("s_waitcnt vmcnt(2)")
        e("v_mov_b32 v1, v128")
        for r in range(12): e(f"v_mov_b32 v{8+r}, v{132+r}")
        e("s_mov_b32 s93, s95")
        e("s_add_u32 s95, s95, %d" % CV_WGS)
        e("s_cmp_ge_u32 s95, 640")
        e("s_cbranch_scc1 cv_nl")
        cvload()
        lab("cv_nl")
        dmap(93)
        e("s_mov_b32 s93, s4")
        e("v_lshlrev_b32 v4, 4, v0")
    else:
        e("s_sub_u32 s4, s2, %d" % G1_WGS)
        e("s_and_b32 s5, s4, 7")
        e("s_lshl_b32 s5, s5, 2")
        e("s_bfe_u32 s6, s4, 0x20003")
        e("s_or_b32 s5, s5, s6")
        e("s_andn2_b32 s4, s4, 31")
        e("s_or_b32 s4, s4, s5")
        if FUSE: e("s_mov_b32 s93, s4")
        e("s_lshl_b32 s5, s4, 1")
        e("v_mov_b32 v3, s5")
        if DLYC: e(f"s_sleep {DLYC}")
        e("buffer_load_ushort v1, v3, s[8:11], 0 offen")
        e("s_lshl_b32 s5, s4, 5")
        e("s_add_u32 s5, s5, %d" % WS_XNT)
        e("v_lshrrev_b32 v4, 1, v0")
        e("v_mul_u32_u24 v4, 20480, v4")
        e("v_and_b32 v5, 1, v0")
        e("v_lshl_add_u32 v4, v5, 4, v4")
        e("buffer_load_dwordx4 v[8:11], v4, s[28:31], s5 offen")
        e("v_lshlrev_b32 v4, 4, v0")
        e("s_mul_i32 s6, s4, %d" % KR_STRIDE)
        e("s_add_u32 s6, s6, %d" % WS_KR)
        e("buffer_load_dwordx4 v[12:15], v4, s[28:31], s6 offen")
        e("buffer_load_dwordx4 v[16:19], v4, s[28:31], s6 offen offset:16")
    if not CV3:
        e("v_min_u32 v5, 3, v0")
        e("v_lshlrev_b32 v5, 4, v5")
        e("v_add_u32 v5, 4096, v5")
        e("buffer_load_dwordx4 v[20:23], v5, s[28:31], s6 offen")
        e("buffer_load_dwordx4 v[24:27], v5, s[28:31], s6 offen offset:16")
    for k in range(4):
        e(f"v_mov_b32 v{28+k}, 0")
    e("v_min_u32 v6, 31, v0")
    e("v_lshrrev_b32 v7, 4, v6")
    e("v_and_b32 v6, 15, v6")
    e("v_lshlrev_b32 v6, 4, v6")
    e(f"v_mad_u32_u24 v6, v7, {HS}, v6") if False else (e(f"v_mul_u32_u24 v7, {HS}, v7"), e("v_add_u32 v6, v6, v7"))
    if CV3:
        e("s_cmp_lg_u32 s3, 0")
        e("s_cbranch_scc1 cv_nz")
        e(f"v_add_u32 v6, {UB2}, v6")
        e("v_subrev_u32 v7, 32, v0")
        e("v_min_u32 v7, 7, v7")
        e("v_lshrrev_b32 v5, 2, v7")
        e(f"v_mul_u32_u24 v7, {CS}, v7")
        e("v_lshl_add_u32 v7, v5, 5, v7")
        e("v_add_u32 v7, 4096, v7")
        e("v_cmp_gt_u32 vcc, 32, v0")
        e("s_nop 1")
        e("v_cndmask_b32 v6, v7, v6, vcc")
        e("s_mov_b32 exec_hi, 0xff")
        e("ds_write_b128 v6, v[28:31]")
        e("s_mov_b32 exec_hi, -1")
        lab("cv_nz")
    else:
        e(f"ds_write_b128 v6, v[28:31] offset:{UB2}")
    e("v_lshrrev_b32 v6, 1, v0")
    e("v_lshlrev_b32 v6, 4, v6")
    e("v_and_b32 v7, 1, v0")
    e(f"v_mul_u32_u24 v7, {HS}, v7")
    e("v_add_u32 v6, v6, v7")
    if not CVL: e("s_waitcnt vmcnt(%d)" % (2 if CV3 else 4))
    e(f"ds_write_b128 v6, v[8:11] offset:{UB2 + 256}")
    def copies(w, vaddr):
        for c in range(8):
            if c % 2 == 0:
                e(f"ds_write_b128 v{vaddr}, v[{w+c//2}:{w+c//2+3}] offset:{CB(c)}") if (w + c//2) % 2 == 0 else None
                if (w + c//2) % 2:
                    for j in range(4):
                        e(f"v_mov_b32 v{32+j}, v{w+c//2+j}")
                    e(f"ds_write_b128 v{vaddr}, v[32:35] offset:{CB(c)}")
            else:
                for j in range(4):
                    e(f"v_alignbit_b32 v{36+j}, v{w+(c+1)//2+j}, v{w+(c-1)//2+j}, 16")
                e(f"ds_write_b128 v{vaddr}, v[36:39] offset:{CB(c)}")
    if not CVL: e("s_waitcnt vmcnt(%d)" % (0 if CV3 else 2))
    tl(1)
    copies(12, 4)
    if not CV3:
        e("s_waitcnt vmcnt(0)")
        copies(20, 5)
    e("v_and_b32 v3, 15, v2")
    e("v_lshrrev_b32 v4, 4, v2")
    e("v_sub_u32 v5, 7, v3")
    e("v_and_b32 v5, 7, v5")
    e("v_sub_u32 v6, 2031, v3")
    e("v_lshl_add_u32 v6, v4, 3, v6")
    e("v_sub_u32 v6, v6, v5")
    e("v_mul_u32_u24 v7, %d, v5" % CS)
    e("v_lshrrev_b32 v8, 2, v5")
    e("v_lshl_add_u32 v7, v8, 5, v7")
    e("v_lshl_add_u32 v6, v6, 1, v7")
    e("s_lshl_b32 s5, s3, 7")
    e(f"s_add_u32 s5, s5, {64 + 3584}")
    e("v_subrev_u32 v8, s5, v6")
    e("v_and_b32 v5, 1, v4")
    e("v_lshrrev_b32 v6, 1, v4")
    e(f"v_mul_u32_u24 v7, {HS}, v5")
    e("v_add_u32 v9, v3, v6")
    e("v_lshl_add_u32 v9, v9, 4, v7")
    e("s_lshl_b32 s5, s3, 6")
    e(f"s_sub_u32 s5, {UB2 + 16*15 - 32}, s5")
    e("v_add_u32 v9, s5, v9")
    e(f"v_mul_u32_u24 v11, {HS}, v6")
    e("v_lshl_add_u32 v11, v3, 4, v11")
    e("v_lshl_add_u32 v11, v5, 3, v11")
    e("s_lshl_b32 s5, s3, 9")
    e("v_add_u32 v11, s5, v11")
    e("v_lshlrev_b32 v12, 5, v3")
    e("v_lshl_add_u32 v12, v4, 3, v12")
    e("v_lshlrev_b32 v10, 4, v2")
    e("s_lshl_b32 s5, s3, 13")
    e("v_add_u32 v13, s5, v10")
    e("s_lshl_b32 s5, s3, 10")
    e("v_add_u32 v10, s5, v10")
    for r in range(16, 48):
        e(f"v_mov_b32 v{r}, 0")
    e("s_waitcnt lgkmcnt(0)")
    tl(2)
    if CVL:
        e("s_waitcnt vmcnt(4)")
        e("s_cmp_lt_u32 s95, 640")
        e("s_cbranch_scc1 cv_b1")
        e("s_waitcnt vmcnt(0)")
        lab("cv_b1")
    e("s_barrier")
    if CVL:
        e("s_cmp_lg_u32 s3, 0")
        e("s_cbranch_scc1 cv_s1")
        e("s_cmp_eq_u32 s89, -1")
        e("s_cbranch_scc1 cv_s1")
        e("s_mov_b64 exec, 1")
        e("v_mov_b32 v147, 1")
        e("v_mov_b32 v148, 0")
        e("buffer_atomic_add v147, v148, s[28:31], s89 offen sc1")
        e("s_mov_b64 exec, -1")
        lab("cv_s1")
    tl(3)
    free = list(range(48, 128, 4))
    loc = {}
    pend = []
    order = [("A",0),("B",7),("B",0),("A",7),("A",1),("B",6),("B",1),("A",6),("A",2),("B",5),("B",2),("A",5),("A",3),("B",4),("B",3),("A",4)]
    todo = [(st,) + o for st in range(2) for o in order]
    def rd(n):
        for _ in range(n):
            if not todo or not free or len(pend) >= 15: return
            key = todo.pop(0); r = free.pop(0); loc[key] = r
            st, ab, i = key
            if ab == "A": e(f"ds_read_b128 v[{r}:{r+3}], v8 offset:{512*(7-i) + 64*(1-st)}")
            else: e(f"ds_read_b128 v[{r}:{r+3}], v9 offset:{256*i + 32*(1-st)}")
            pend.append(key)
    def need(keys):
        idx = [pend.index(k) for k in keys if k in pend]
        if idx:
            last = max(idx)
            e(f"s_waitcnt lgkmcnt({len(pend) - 1 - last})")
            del pend[:last+1]
    groups = []
    for s_ in (7, 6, 5, 4, 3, 2, 1, 0):
        n = min(s_, 7 - s_)
        g = [(s_, m) for m in range(n + 1)] + [(j, s_) for j in range(min(s_ - 1, 7 - s_) + 1)]
        groups.append((s_, g))
    assert sum(len(g) for _, g in groups) == 36
    rd(20)
    for st in range(2):
        for s_, g in groups:
            need([(st, "B", j) for j, m in g] + [(st, "A", m) for j, m in g])
            for j, m in g:
                ac = 16 + 4*(j + m); a = loc[(st, "A", m)]; b = loc[(st, "B", j)]
                e(f"v_mfma_f32_16x16x32_bf16 v[{ac}:{ac+3}], v[{a}:{a+3}], v[{b}:{b+3}], v[{ac}:{ac+3}]")
            free.append(loc[(st, "A", s_)]); free.append(loc[(st, "B", s_)])
            rd(8)
    assert not todo and not pend
    tl(4)
    e("s_nop 15")
    e("s_barrier")
    for t in range(8):
        if CV3 & 2 and t % 2 == 0:
            e(f"s_cmp_eq_u32 s3, {t//2}")
            e(f"s_cbranch_scc1 cv_sk{t//2}")
        e(f"ds_write_b128 v10, v[{16+4*t}:{19+4*t}] offset:{4096*t}")
        if CV3 & 2 and t % 2 == 1:
            e(f"s_branch cv_nx{t//2}")
            lab(f"cv_sk{t//2}")
            for tt in range(2):
                for r in range(4):
                    e(f"v_mov_b32 v{48+16*tt+r}, v{16+4*(t-1+tt)+r}")
            lab(f"cv_nx{t//2}")
    if CV3 & 2:
        for i in range(1, 4):
            e(f"s_add_u32 s5, s3, {i}")
            e("s_and_b32 s5, s5, 3")
            e("s_lshl_b32 s5, s5, 10")
            e(f"v_add_u32 v{4+i}, s5, v13")
    for tt in range(2):
        e(f"ds_read_b64 v[{80+2*tt}:{81+2*tt}], v11 offset:{UB2 + 256 + 256*tt}")
    e("s_lshl_b32 s5, s4, 12")
    e("s_lshl_b32 s6, s3, 10")
    e("s_add_u32 s5, s5, s6")
    e("s_add_u32 s5, s5, %d" % WS_AT)
    e("v_lshlrev_b32 v1, 16, v1")
    e("s_waitcnt lgkmcnt(0)")
    e("s_barrier")
    for i in range(8):
        if CV3 & 2:
            if i % 4: e(f"ds_read_b128 v[{48+4*i}:{51+4*i}], v{4+i%4} offset:{4096*(i//4)}")
        else:
            e(f"ds_read_b128 v[{48+4*i}:{51+4*i}], v13 offset:{1024*i}")
    for tt in range(2):
        for p_ in range(2):
            u = 80 + 2*tt + p_
            e(f"v_lshlrev_b32 v84, 16, v{u}")
            e(f"v_and_b32 v85, 0xffff0000, v{u}")
            e(f"v_mul_f32 v84, v84, v1")
            e(f"v_mul_f32 v85, v85, v1")
            e(f"v_cvt_pk_bf16_f32 v84, v84, v85")
            e(f"v_lshlrev_b32 v{88+4*tt+2*p_}, 16, v84")
            e(f"v_and_b32 v{89+4*tt+2*p_}, 0xffff0000, v84")
    for tt in range(2):
        e(f"s_waitcnt lgkmcnt({(3 - 3*tt) if CV3 & 2 else (4 - 4*tt)})")
        b0 = 48 + 16*tt
        for r in range(4):
            e(f"v_add_f32 v{b0+r}, v{b0+r}, v{b0+4+r}")
            e(f"v_add_f32 v{b0+8+r}, v{b0+8+r}, v{b0+12+r}")
        for r in range(4):
            e(f"v_add_f32 v{b0+r}, v{b0+r}, v{b0+8+r}")
        for p_ in range(2):
            e(f"v_cvt_pk_bf16_f32 v84, v{b0+2*p_}, v{b0+2*p_+1}")
            e(f"v_lshlrev_b32 v85, 16, v84")
            e(f"v_and_b32 v86, 0xffff0000, v84")
            e(f"v_add_f32 v85, v85, v{88+4*tt+2*p_}")
            e(f"v_add_f32 v86, v86, v{89+4*tt+2*p_}")
            e(f"v_cvt_pk_bf16_f32 v{96+2*tt+p_}, v85, v86")
        e(f"buffer_store_dwordx2 v[{96+2*tt}:{97+2*tt}], v12, s[28:31], s5 offen offset:{512*tt}")
    if FUSE:
        e("s_mul_i32 s7, s93, 205")
        e("s_lshr_b32 s7, s7, 14")
        e("s_add_u32 s7, s7, 16")
        if CVL:
            e("s_lshl_b32 s89, s7, 6")
            e("s_add_u32 s89, s89, %d" % WS_CNT)
            e("s_cmp_ge_u32 s95, 640")
            e("s_cbranch_scc1 cv_last")
            e("s_barrier")
            e("s_branch cv_loop")
            lab("cv_last")
        if MB2:
            e("s_sub_u32 s7, s7, 16")
            e("s_mul_i32 s6, s7, 80")
            e("s_sub_u32 s6, s93, s6")
            e("s_lshl_b32 s6, s6, 2")
            e("s_lshl_b32 s7, s7, 9")
            e("s_add_u32 s6, s6, s7")
            e("s_add_u32 s6, s6, %d" % WS_MB2)
            e("s_waitcnt vmcnt(0)")
            e("s_barrier")
            e("s_cmp_lg_u32 s3, 0")
            e("s_cbranch_scc1 cv_sig")
            e("s_mov_b32 exec_hi, 0")
            e("v_mov_b32 v12, 1")
            e("v_lshlrev_b32 v13, 12, v2")
            e("buffer_store_dword v12, v13, s[28:31], s6 offen")
            lab("cv_sig")
        else: signal(7, "cv_sig")
    tl(5)
    if TL: e("s_waitcnt vmcnt(0)")
    tl_end(1)

def gen_mid():
    kernel_begin("mid_kernel")
    e("s_cmp_ge_u32 s2, %d" % (MID_WGS - SPL))
    e("s_cbranch_scc1 mid_end")
    if EMU & 2:
        e("s_cmp_lt_u32 s2, 256")
        e("s_cbranch_scc1 mid_end")
    lab("mid_body")
    if FUSE: e("s_mov_b32 s90, s2")
    tl_begin()
    e("s_load_dwordx2 s[56:57], s[0:1], 104")
    e("s_load_dwordx2 s[58:59], s[0:1], 72")
    e("s_load_dwordx2 s[60:61], s[0:1], 48")
    if W1D: e("s_load_dwordx2 s[62:63], s[0:1], 64")
    e("v_lshrrev_b32 v1, 6, v0")
    e("v_and_b32 v2, 63, v0")
    e("s_nop 0")
    e("v_readfirstlane_b32 s3, v1")
    e("s_waitcnt lgkmcnt(0)")
    srd(28, 56, WS_SIZE)
    if W2MID:
        e("s_cmp_ge_u32 s2, %d" % (G1_WGS + CV_WGS))
        e("s_cbranch_scc1 mid_wt")
    e("s_cmp_ge_u32 s2, %d" % G1_WGS)
    e("s_cbranch_scc1 mid_conv")
    if "g1" in SKIP: e("s_endpgm")
    if PRIO & 4: e("s_setprio 3")
    srd(8, 58, F*2)
    if W1D: srd(12, 62, D*F*2)
    tl(1)
    if not EMU & 1: claim_tile(0, 32, 7168*G1_NS, "mcl")
    elif SCL & 1: static_claim()
    tl(2)
    if G1MAP == 0:
        e("s_lshr_b32 s5, s2, 4")
        e("s_and_b32 s4, s2, 15")
    else:
        e("s_lshr_b32 s5, s2, 6")
        e("s_lshl_b32 s5, s5, 2")
        e("s_bfe_u32 s6, s2, 0x20003")
        e("s_add_u32 s5, s5, s6")
        e("s_bfe_u32 s4, s2, 0x10005")
        e("s_lshl_b32 s4, s4, 3")
        e("s_and_b32 s6, s2, 7")
        e("s_add_u32 s4, s4, s6")
    if MBX: e("s_lshl_b32 s88, s4, 2")
    e("s_mul_i32 s6, s4, 7")
    e("s_sub_u32 s7, s4, 12")
    e("s_cmp_lt_u32 s4, 12")
    e("s_cselect_b32 s7, 0, s7")
    e("s_cselect_b32 s26, 7, 6")
    e("s_sub_u32 s4, s6, s7")
    e("v_and_b32 v3, 15, v2")
    e("v_lshrrev_b32 v4, 4, v2")
    e("v_lshrrev_b32 v5, 1, v4")
    e("v_and_b32 v6, 1, v4")
    e("v_lshlrev_b32 v7, 4, v3")
    e("v_lshl_add_u32 v7, v5, 10, v7")
    e("v_lshl_add_u32 v7, v6, 9, v7")
    e("v_mov_b32 v8, v7")
    for k in range(2):
        e(f"s_add_u32 s6, s3, {4*k}")
        e("s_min_u32 s6, s6, 6")
        e(f"s_lshl_b32 s{42+k}, s6, 10")
        if W1D:
            vd = 7 if k == 0 else 11
            e("s_lshl_b32 s6, s6, 6")
            e("v_add_u32 v12, s6, v2")
            e("v_mul_u32_u24 v13, 4682, v12")
            e("v_lshrrev_b32 v13, 16, v13")
            e("v_mul_u32_u24 v14, 14, v13")
            e("v_sub_u32 v12, v12, v14")
            e("v_and_b32 v14, 0x13, v13")
            e("v_bfe_u32 v15, v13, 2, 1")
            e("v_lshl_or_b32 v14, v15, 3, v14")
            e("v_bfe_u32 v15, v13, 3, 1")
            e("v_lshl_or_b32 v14, v15, 2, v14")
            e("v_mul_u32_u24 v14, 3456, v14")
            e(f"v_lshl_add_u32 v{vd}, v12, 4, v14")
            if k == 1: e("s_lshl_b32 s40, s4, 5")
            continue
        e("s_add_u32 s6, s6, s4")
        e("s_min_u32 s6, s6, 107")
        e(f"s_lshr_b32 s{40+k}, s6, 1")
        e(f"s_mul_i32 s{40+k}, s{40+k}, {40*1024}")
        e("s_and_b32 s6, s6, 1")
        e("s_lshl_b32 s6, s6, 8")
        e(f"s_add_u32 s{40+k}, s{40+k}, s6")
        e(f"s_add_u32 s{40+k}, s{40+k}, {WS_W1F}")
    e("s_lshl_b32 s6, s5, 2")
    e("s_add_u32 s27, s6, s3")
    e("s_mul_i32 s44, s27, %d" % (40*1024))
    e("s_add_u32 s44, s44, %d" % WS_XNF)
    if "g1y" in SKIP:
        e("s_xor_b32 s45, s27, 1")
        e("s_mul_i32 s45, s45, %d" % (40*1024))
    e("v_lshlrev_b32 v9, 4, v2")
    if W1D:
        e("v_bfe_u32 v12, v2, 2, 3")
        e("v_lshl_add_u32 v12, v5, 4, v12")
        e("v_mul_u32_u24 v12, 224, v12")
        e("v_and_b32 v9, 3, v2")
        e("v_lshl_add_u32 v9, v9, 3, v12")
    NS, BD, NSTEP = G1_NS, G1_BD, 20
    NB = int(os.environ.get("G1NB", 6))
    AF, BF, ACC, BI = 16, 16 + 4*NB, 16 + 4*NB + 8*G1_BD, 44
    assert ACC + 56 <= 128
    pend = []
    def dma(st):
        for k in range(2):
            e(f"s_add_u32 m0, s{42+k}, {(st % NS)*7168}")
            e("s_nop 0")
            if W1D: e(f"buffer_load_dwordx4 v{7 if k == 0 else 11}, s[12:15], s40 offen lds")
            else: e(f"buffer_load_dwordx4 v7, s[28:31], s{40+k} offen lds")
            pend.append(("a", st))
        if W1D: e("s_add_u32 s40, s40, %d" % (32*3456))
        else: e("v_add_u32 v7, 2048, v7")
    def bld(st):
        r = BF + 8*(st % BD)
        e(f"buffer_load_dwordx4 v[{r}:{r+3}], v8, s[28:31], s44 offen")
        e(f"buffer_load_dwordx4 v[{r+4}:{r+7}], v8, s[28:31], s44 offen offset:256")
        pend.append(("b", st)); pend.append(("b", st))
        if "g1y" in SKIP:
            e(f"buffer_load_dwordx4 v[{r}:{r+3}], v8, s[28:31], s45 offen")
            e(f"buffer_load_dwordx4 v[{r+4}:{r+7}], v8, s[28:31], s45 offen offset:256")
            pend.append(("b", st)); pend.append(("b", st))
        e("v_add_u32 v8, 2048, v8")
    def wait_for(*tags):
        idx = [i for i, p in enumerate(pend) if p in tags]
        if not idx: return
        last = max(idx)
        e(f"s_waitcnt vmcnt({len(pend) - 1 - last})")
        del pend[:last+1]
    def rdA(g):
        st, t = divmod(g, 7)
        if st >= NSTEP: return
        r = AF + 4*(g % NB)
        if W1D:
            e(f"ds_read_b64_tr_b16 v[{r}:{r+1}], v9 offset:{(st % NS)*7168 + 32*t}")
            e(f"ds_read_b64_tr_b16 v[{r+2}:{r+3}], v9 offset:{(st % NS)*7168 + 32*t + 1792}")
        else: e(f"ds_read_b128 v[{r}:{r+3}], v9 offset:{(st % NS)*7168 + 1024*t}")
    for st in range(max(NS-1, BD)):
        if st < NS-1: dma(st)
        if st < BD: bld(st)
    e("s_lshl_b32 s6, s4, 5")
    e("v_lshl_add_u32 v10, v4, 3, s6")
    for r in range(ACC, ACC+56):
        e(f"v_mov_b32 v{r}, 0")
    wait_for(("a", 0))
    e("s_barrier")
    tl(3)
    for t in range(NB): rdA(t)
    for st in range(NSTEP):
        if st + 1 < NSTEP:
            wait_for(("a", st+1), ("b", st))
            e("s_barrier")
            if st - 1 + NS < NSTEP: dma(st - 1 + NS)
        else:
            wait_for(("b", st))
        rb = BF + 8*(st % BD)
        for t in range(7):
            g = 7*st + t
            e(f"s_waitcnt lgkmcnt({(2 if W1D else 1)*min(NB - 1, 7*NSTEP - 1 - g)})")
            ra_ = AF + 4*(g % NB)
            for b_ in range(2):
                ac = ACC + 4*(2*t + b_)
                e(f"v_mfma_f32_16x16x32_bf16 v[{ac}:{ac+3}], v[{ra_}:{ra_+3}], v[{rb+4*b_}:{rb+4*b_+3}], v[{ac}:{ac+3}]")
            rdA(g + NB)
        if st + BD < NSTEP: bld(st + BD)
        if st == NSTEP - 2:
            assert BD >= 3
            free = [BF + 8*((NSTEP-3) % BD), BF + 8*((NSTEP-2) % BD)]
            BIr = [free[0] + 2*k for k in range(4)] + [free[1] + 2*k for k in range(3)]
            for t in range(7):
                e(f"buffer_load_dwordx2 v[{BIr[t]}:{BIr[t]+1}], v10, s[8:11], 0 offen offset:{32*t}")
                pend.append(("c", 0))
    e("s_nop 7")
    e("s_waitcnt vmcnt(0)")
    tl(4)
    e("s_mul_i32 s6, s27, 108")
    e("s_add_u32 s6, s6, s4")
    e("s_lshl_b32 s6, s6, 10")
    e("s_add_u32 s6, s6, %d" % WS_ACT)
    e("v_lshlrev_b32 v9, 4, v3")
    e("v_lshl_add_u32 v9, v5, 9, v9")
    e("v_lshl_add_u32 v9, v6, 3, v9")
    T = 16
    if MISH2 == 2:
        e(f"s_mov_b32 s46, {LOG2E:#x}")
        e(f"s_mov_b32 s47, {LOG2E:#x}")
        e("v_mov_b32 v40, 1.0"); e("v_mov_b32 v41, 1.0")
        e("v_mov_b32 v42, -2.0"); e("v_mov_b32 v43, -2.0")
    for t in range(7):
        if t == 6:
            e("s_cmp_lt_u32 s26, 7")
            e("s_cbranch_scc1 g1_end")
        r = BIr[t]
        e(f"v_lshlrev_b32 v{T}, 16, v{r}")
        e(f"v_and_b32 v{T+1}, 0xffff0000, v{r}")
        e(f"v_lshlrev_b32 v{T+2}, 16, v{r+1}")
        e(f"v_and_b32 v{T+3}, 0xffff0000, v{r+1}")
        for b_ in range(2):
            ac = ACC + 4*(2*t + b_)
            d0 = T + 16 + 2*((2*t + b_) % 4)
            if MISH2 == 2:
                mish_quad(ac, T, d0)
            else:
                mish_pairs(ac, ac+1, T, T+1, d0, T+4)
                mish_pairs(ac+2, ac+3, T+2, T+3, d0+1, T+10)
            off = (t % 4)*1024 + 256*b_
            e(f"buffer_store_dwordx2 v[{d0}:{d0+1}], v9, s[28:31], s6 offen offset:{off}")
        if t == 3: e("s_add_u32 s6, s6, 4096")
    lab("g1_end")
    tl(5)
    if TL: e("s_waitcnt vmcnt(0)")
    tl_end(1)
    if FUSE and not SPL:
        if MBX:
            e("s_waitcnt vmcnt(0)")
            e("s_barrier")
            e("s_cmp_lg_u32 s3, 0")
            e("s_cbranch_scc1 g1_sig")
            e("s_lshl_b32 s6, s5, %d" % (MBX + 4))
            e("s_add_u32 s6, s6, s88")
            e("s_add_u32 s6, s6, %d" % WS_MB)
            e("s_mov_b64 exec, 0xffff")
            e("v_mov_b32 v12, 1")
            e("v_lshlrev_b32 v13, %d, v2" % MBX)
            e("buffer_store_dword v12, v13, s[28:31], s6 offen")
            e("s_mov_b64 exec, -1")
            lab("g1_sig")
        else: signal(5, "g1_sig")
        e("s_mov_b32 s2, s90")
        e("s_branch fin_body")
    e("s_endpgm")
    lab("mid_conv")
    if CONV2:
        gen_conv2()
    else:
        if "cv" in SKIP: e("s_endpgm")
        if PRIO & 8: e("s_setprio 3")
        srd(8, 60, D*2)
        e("s_sub_u32 s4, s2, %d" % G1_WGS)
        e("s_and_b32 s5, s4, 7")
        e("s_lshl_b32 s5, s5, 2")
        e("s_bfe_u32 s6, s4, 0x20003")
        e("s_or_b32 s5, s5, s6")
        e("s_andn2_b32 s4, s4, 31")
        e("s_or_b32 s4, s4, s5")
        e("s_lshl_b32 s5, s4, 1")
        e("v_mov_b32 v3, s5")
        if DLYC: e(f"s_sleep {DLYC}")
        e("buffer_load_ushort v1, v3, s[8:11], 0 offen")
        e("s_lshl_b32 s5, s4, 5")
        e("s_add_u32 s5, s5, %d" % WS_XNT)
        e("v_lshrrev_b32 v4, 1, v0")
        e("v_mul_u32_u24 v4, 20480, v4")
        e("v_and_b32 v5, 1, v0")
        e("v_lshl_add_u32 v4, v5, 4, v4")
        e("buffer_load_dwordx4 v[8:11], v4, s[28:31], s5 offen")
        e("v_lshlrev_b32 v4, 4, v0")
        e("s_mul_i32 s6, s4, %d" % KR_STRIDE)
        e("s_add_u32 s6, s6, %d" % WS_KR)
        e("buffer_load_dwordx4 v[12:15], v4, s[28:31], s6 offen")
        e("buffer_load_dwordx4 v[16:19], v4, s[28:31], s6 offen offset:16")
        e("v_min_u32 v5, 3, v0")
        e("v_lshlrev_b32 v5, 4, v5")
        e("v_add_u32 v5, 4096, v5")
        e("buffer_load_dwordx4 v[20:23], v5, s[28:31], s6 offen")
        e("buffer_load_dwordx4 v[24:27], v5, s[28:31], s6 offen offset:16")
        for k in range(4):
            e(f"v_mov_b32 v{28+k}, 0")
        e("v_min_u32 v6, 154, v0")
        e("v_lshlrev_b32 v6, 4, v6")
        e(f"ds_write_b128 v6, v[28:31] offset:{UB + 80}")
        e("v_lshrrev_b32 v6, 2, v0")
        e("v_mul_u32_u24 v6, 80, v6")
        e("v_and_b32 v7, 3, v0")
        e("v_lshl_add_u32 v6, v7, 4, v6")
        e("s_waitcnt vmcnt(4)")
        e(f"ds_write_b128 v6, v[8:11] offset:{UB + 32*80}")
        def copies(w, vaddr):
            for c in range(8):
                if c % 2 == 0:
                    e(f"ds_write_b128 v{vaddr}, v[{w+c//2}:{w+c//2+3}] offset:{CB(c)}") if (w + c//2) % 2 == 0 else None
                    if (w + c//2) % 2:
                        for j in range(4):
                            e(f"v_mov_b32 v{32+j}, v{w+c//2+j}")
                        e(f"ds_write_b128 v{vaddr}, v[32:35] offset:{CB(c)}")
                else:
                    for j in range(4):
                        e(f"v_alignbit_b32 v{36+j}, v{w+(c+1)//2+j}, v{w+(c-1)//2+j}, 16")
                    e(f"ds_write_b128 v{vaddr}, v[36:39] offset:{CB(c)}")
        e("s_waitcnt vmcnt(2)")
        tl(1)
        copies(12, 4)
        e("s_waitcnt vmcnt(0)")
        copies(20, 5)
        e("s_waitcnt lgkmcnt(0)")
        tl(2)
        e("s_barrier")
        tl(3)
        e("v_and_b32 v3, 31, v2")
        e("v_lshrrev_b32 v4, 5, v2")
        e("v_sub_u32 v5, 7, v3")
        e("v_and_b32 v5, 7, v5")
        e("v_sub_u32 v6, 2047, v3")
        e("v_lshl_add_u32 v6, v4, 3, v6")
        e("v_sub_u32 v6, v6, v5")
        e("v_mul_u32_u24 v7, %d, v5" % CS)
        e("v_lshrrev_b32 v8, 2, v5")
        e("v_lshl_add_u32 v7, v8, 5, v7")
        e("v_lshl_add_u32 v6, v6, 1, v7")
        e("v_mul_u32_u24 v7, 80, v3")
        e("v_lshl_add_u32 v7, v4, 4, v7")
        e(f"v_add_u32 v7, {UB + 32*80}, v7")
        for r in range(16, 48):
            e(f"v_mov_b32 v{r}, 0")
        e("s_lshl_b32 s5, s3, 9")
        e(f"s_add_u32 s5, s5, {64*7 + 64*32}")
        e("v_subrev_u32 v8, s5, v6")
        e("s_mul_i32 s5, s3, 640")
        e(f"s_add_u32 s5, s5, {80*7}")
        e("v_subrev_u32 v9, s5, v7")
        def rd(q):
            base = 48 + (q & 1)*32
            for t in range(2):
                fa = base + 16*t
                e(f"ds_read_b128 v[{fa}:{fa+3}], v8 offset:{64*(7-q) + 2048 + 32*t}")
                e(f"ds_read_b128 v[{fa+4}:{fa+7}], v9 offset:{80*(7-q) + 32*t}")
                e(f"ds_read_b128 v[{fa+8}:{fa+11}], v9 offset:{80*(7-q) + 2560 + 32*t}")
                e(f"ds_read_b128 v[{fa+12}:{fa+15}], v8 offset:{64*(7-q) + 32*t}")
        def mm(q):
            base = 48 + (q & 1)*32
            for t in range(2):
                fa = base + 16*t
                e(f"v_mfma_f32_32x32x16_bf16 v[16:31], v[{fa}:{fa+3}], v[{fa+4}:{fa+7}], v[16:31]")
                e(f"v_mfma_f32_32x32x16_bf16 v[32:47], v[{fa}:{fa+3}], v[{fa+8}:{fa+11}], v[32:47]")
                e(f"v_mfma_f32_32x32x16_bf16 v[32:47], v[{fa+12}:{fa+15}], v[{fa+4}:{fa+7}], v[32:47]")
        rd(0)
        for q in range(8):
            if q < 7:
                rd(q + 1)
                e("s_waitcnt lgkmcnt(8)")
            else:
                e("s_waitcnt lgkmcnt(0)")
            mm(q)
        tl(4)
        e("s_nop 15")
        e("s_barrier")
        e("v_lshlrev_b32 v10, 4, v2")
        e("s_cmp_eq_u32 s3, 0")
        e("s_cbranch_scc1 cv_w0")
        e("s_sub_u32 s5, s3, 1")
        e("s_lshl_b32 s5, s5, 12")
        e("v_add_u32 v11, s5, v10")
        for r in range(4):
            e(f"ds_write_b128 v11, v[{16+4*r}:{19+4*r}] offset:{1024*r}")
        lab("cv_w0")
        e("s_cmp_eq_u32 s3, 1")
        e("s_cbranch_scc1 cv_w1")
        e("s_sub_u32 s5, s3, 1")
        e("s_max_i32 s5, s5, 0")
        e("s_lshl_b32 s5, s5, 12")
        e("v_add_u32 v11, s5, v10")
        for r in range(4):
            e(f"ds_write_b128 v11, v[{32+4*r}:{35+4*r}] offset:{12288 + 1024*r}")
        e("s_branch cv_w2")
        lab("cv_w1")
        for r in range(16):
            e(f"v_mov_b32 v{16+r}, v{32+r}")
        e("v_add_u32 v10, 12288, v10")
        lab("cv_w2")
        e("s_waitcnt lgkmcnt(0)")
        e("s_barrier")
        e("s_cmp_ge_u32 s3, 2")
        e("s_cbranch_scc1 mid_end")
        for sl in range(3):
            for r in range(4):
                e(f"ds_read_b128 v[{48+16*sl+4*r}:{51+16*sl+4*r}], v10 offset:{4096*sl + 1024*r}")
        for sl in range(3):
            e(f"s_waitcnt lgkmcnt({8-4*sl})")
            for r in range(16):
                e(f"v_add_f32 v{16+r}, v{16+r}, v{48+16*sl+r}")
        lab("cv_epi")
        e("s_mul_i32 s5, s3, %d" % (32*80))
        e("v_mul_u32_u24 v11, 80, v3")
        e("v_lshl_add_u32 v11, v4, 3, v11")
        e("v_add_u32 v11, s5, v11")
        for g in range(4):
            e(f"ds_read_b64 v[{32+2*g}:{33+2*g}], v11 offset:{UB + 32*80 + 16*g}")
        e("s_lshl_b32 s5, s4, 12")
        e("s_lshl_b32 s6, s3, 11")
        e("s_add_u32 s5, s5, s6")
        e("s_add_u32 s5, s5, %d" % WS_AT)
        e("v_lshlrev_b32 v12, 6, v3")
        e("v_lshl_add_u32 v12, v4, 3, v12")
        e("s_waitcnt vmcnt(0) lgkmcnt(0)")
        e("v_lshlrev_b32 v1, 16, v1")
        for g in range(4):
            for p in range(2):
                u = 32 + 2*g + p
                y0 = 16 + 4*g + 2*p
                e(f"v_lshlrev_b32 v44, 16, v{u}")
                e(f"v_and_b32 v45, 0xffff0000, v{u}")
                e(f"v_mul_f32 v44, v44, v1")
                e(f"v_mul_f32 v45, v45, v1")
                e(f"v_cvt_pk_bf16_f32 v44, v44, v45")
                e(f"v_cvt_pk_bf16_f32 v46, v{y0}, v{y0+1}")
                e(f"v_lshlrev_b32 v47, 16, v44")
                e(f"v_and_b32 v48, 0xffff0000, v44")
                e(f"v_lshlrev_b32 v49, 16, v46")
                e(f"v_and_b32 v50, 0xffff0000, v46")
                e(f"v_add_f32 v47, v47, v49")
                e(f"v_add_f32 v48, v48, v50")
                e(f"v_cvt_pk_bf16_f32 v{52+2*g+p}, v47, v48")
            e(f"buffer_store_dwordx2 v[{52+2*g}:{53+2*g}], v12, s[28:31], s5 offen offset:{16*g}")
        tl(5)
        if TL: e("s_waitcnt vmcnt(0)")
        tl_end(1)
    if W2MID:
        e("s_endpgm")
        lab("mid_wt")
        gen_wt(G1_WGS + CV_WGS, 270, 540, "mid_end", 1, int(os.environ.get("DLYW2", 0)))
    lab("mid_end")
    e("s_endpgm")
    if SPL: kernel_desc("mid_kernel", 128)
    elif FUSE == 2: kernel_desc("mid_kernel", 128, agpr=40)
    elif FUSE: kernel_desc("mid_kernel", 160, agpr=80)
    else: kernel_desc("mid_kernel", 128)

G2_WGS = 256
FIN_LDS = 61440 + 64
FDEPTH = 2 if FUSE == 2 else int(os.environ.get('FDEPTH', 4))
def gen_fin():
    if SPL:
        kernel_begin("fin_kernel")
        e("s_cmp_ge_u32 s2, %d" % (G2_WGS + SPL))
        e("s_cbranch_scc1 fin_end")
        e("s_cmp_lt_u32 s2, %d" % G2_WGS)
        e("s_cbranch_scc1 fin_body")
        e("s_add_u32 s2, s2, %d" % (640 - SPL))
        e("s_branch mid_body")
        lab("fin_body")
    elif FUSE:
        out.append(".text"); lab("fin_kernel"); lab("fin_body")
    else:
        kernel_begin("fin_kernel")
        e("s_cmp_ge_u32 s2, %d" % G2_WGS)
        e("s_cbranch_scc1 fin_end")
    e("s_load_dwordx2 s[56:57], s[0:1], 104")
    e("s_load_dwordx2 s[58:59], s[0:1], 0")
    e("s_load_dwordx2 s[60:61], s[0:1], 88")
    e("v_lshrrev_b32 v1, 6, v0")
    e("v_and_b32 v2, 63, v0")
    e("s_nop 0")
    e("v_readfirstlane_b32 s3, v1")
    if FMAP == 2:
        e("s_and_b32 s5, s2, 31")
        e("s_lshr_b32 s4, s2, 5")
    elif FMAP == 3:
        e("s_lshr_b32 s5, s2, 3")
        e("s_and_b32 s4, s2, 7")
    else:
        if SCL & 2: static_claim()
        else:
            e("s_waitcnt lgkmcnt(0)")
            srd(28, 56, WS_SIZE)
            claim_tile(512, 32, 61440, "fcl")
        if FMAP == 0:
            e("s_lshr_b32 s5, s2, 5")
            e("s_lshl_b32 s5, s5, 2")
            e("s_and_b32 s6, s2, 3")
            e("s_add_u32 s5, s5, s6")
            e("s_bfe_u32 s4, s2, 0x30002")
        else:
            e("s_lshr_b32 s5, s2, 6")
            e("s_lshl_b32 s5, s5, 3")
            e("s_and_b32 s6, s2, 7")
            e("s_add_u32 s5, s5, s6")
            e("s_bfe_u32 s4, s2, 0x10005")
            e("s_lshl_b32 s4, s4, 2")
            e("s_bfe_u32 s6, s2, 0x20003")
            e("s_add_u32 s4, s4, s6")
    e("v_and_b32 v3, 15, v2")
    e("v_lshrrev_b32 v4, 4, v2")
    e("v_lshrrev_b32 v5, 1, v4")
    e("v_and_b32 v6, 1, v4")
    e("v_lshlrev_b32 v7, 4, v3")
    e("v_lshl_add_u32 v7, v5, 10, v7")
    e("v_lshl_add_u32 v7, v6, 9, v7")
    e("s_lshl_b32 s6, s3, 11")
    e("v_add_u32 v7, s6, v7")
    e("s_mul_i32 s6, s4, 5")
    for a_ in range(5):
        e(f"s_add_u32 s7, s6, {a_}")
        e(f"s_lshr_b32 s{40+a_}, s7, 1")
        e(f"s_mul_i32 s{40+a_}, s{40+a_}, {108*1024}")
        e(f"s_and_b32 s7, s7, 1")
        e(f"s_lshl_b32 s7, s7, 8")
        e(f"s_add_u32 s{40+a_}, s{40+a_}, s7")
        e(f"s_add_u32 s{40+a_}, s{40+a_}, {WS_W2F}")
    e("s_mul_i32 s6, s5, %d" % (2*108*1024))
    e("s_add_u32 s45, s6, %d" % WS_ACT)
    e("s_add_u32 s46, s45, 256")
    e("s_add_u32 s47, s45, %d" % (108*1024))
    e("s_add_u32 s48, s47, 256")
    e("s_waitcnt lgkmcnt(0)")
    srd(28, 56, WS_SIZE); srd(8, 58, L*D*2); srd(12, 60, L*D*2)
    FR = 16
    ACC = 0
    EP = FR + 36*(FDEPTH - (1 if FUSE else 0))
    if FUSE == 2: EP = 16
    def accr(ac):
        return f"v[{48+ac}:{51+ac}]" if (FUSE == 2 and ac >= 40) else f"a[{ac}:{ac+3}]"
    pend = []
    def issue(m):
        base = FR + 36*(m % FDEPTH)
        for t in range(9):
            e(f"buffer_load_dwordx4 v[{base+4*t}:{base+4*t+3}], v7, s[28:31], s{40+t} offen")
            pend.append(("f", m))
        e("v_add_u32 v7, 8192, v7")
    def wait_for(tag):
        if tag not in pend: return
        last = max(i for i, p in enumerate(pend) if p == tag)
        n = len(pend) - 1 - last
        e(f"s_waitcnt vmcnt({n})")
        del pend[:last+1]
    NST = 14
    if FUSE:
        e("v_mov_b32 v12, v7")
        e("v_mov_b32 v14, 0")
        for m in range(FDEPTH):
            for t in range(5):
                e(f"buffer_load_dwordx4 v[{FR+36*m+4*t}:{FR+36*m+4*t+3}], v12, s[28:31], s{40+t} offen")
                pend.append(("f", m))
            e("v_add_u32 v12, 8192, v12")
        for r in range(ACC, ACC+(0 if SPL else 80)):
            e(f"v_mov_b32 v{48+r}, 0" if (FUSE == 2 and r >= 40) else f"v_accvgpr_write_b32 a{r}, 0")
        e("s_lshr_b32 s6, s5, 1")
        e("s_lshl_b32 s6, s6, %d" % CSH)
        e("s_add_u32 s6, s6, %d" % WS_CNT)
        e("s_lshl_b32 s94, s4, %d" % CSH)
        e("s_add_u32 s94, s94, %d" % (WS_CNT + (16 << CSH)))
        if not SPL:
            e("s_cmp_lg_u32 s3, 0")
            e("s_cbranch_scc1 fp0_d")
            if MBX:
                e("s_lshl_b32 s6, s5, 3")
                e("s_add_u32 s6, s6, s4")
                e("s_lshl_b32 s6, s6, %d" % MBX)
                e("s_add_u32 s6, s6, %d" % WS_MB)
                e("v_lshlrev_b32 v15, 2, v3")
                e("s_mov_b32 s91, 0")
                lab("fp0_p")
                e("buffer_load_dword v13, v15, s[28:31], s6 offen sc0 sc1")
                e("s_waitcnt vmcnt(0)")
                e("v_cmp_ne_u32 vcc, 1, v13")
                e("s_cmp_eq_u64 vcc, 0")
                e("s_cbranch_scc1 fp0_d")
                e("s_add_u32 s91, s91, 1")
                e("s_cmp_ge_u32 s91, 0x20000")
                e("s_cbranch_scc1 fp0_d")
                e("s_sleep %d" % int(os.environ.get("PSL", 2)))
                e("s_branch fp0_p")
                lab("fp0_d")
            else: poll(6, int(os.environ.get("FT0", 16)), "fp0")
            e("s_barrier")
        for m in range(FDEPTH):
            for t in range(5, 9):
                e(f"buffer_load_dwordx4 v[{FR+36*m+4*t}:{FR+36*m+4*t+3}], v7, s[28:31], s{40+t} offen")
                pend.append(("f", m))
            e("v_add_u32 v7, 8192, v7")
        for r in range(ACC, ACC+(80 if SPL else 0)):
            e(f"v_mov_b32 v{48+r}, 0" if r >= 40 else f"v_accvgpr_write_b32 a{r}, 0")
    else:
        for m in range(FDEPTH):
            issue(m)
    e("s_lshl_b32 s6, s5, 6")
    e("s_lshl_b32 s7, s3, 4")
    e("s_add_u32 s6, s6, s7")
    e("v_add_u32 v8, s6, v3")
    e("v_mul_u32_u24 v9, 1280, v8")
    e("v_lshl_add_u32 v9, v4, 3, v9")
    e("s_mul_i32 s6, s4, 160")
    e("v_add_u32 v9, s6, v9")
    def eploads():
        for a_ in range(5):
            e(f"buffer_load_dwordx2 v[{EP+2*a_}:{EP+2*a_+1}], v9, s[8:11], 0 offen offset:{32*a_}")
            pend.append(("e", 0))
        e("v_lshlrev_b32 v10, 14, v4")
        e("v_lshl_add_u32 v10, v8, 1, v10")
        e("s_mul_i32 s6, s4, %d" % (80*4096))
        e("s_add_u32 s6, s6, %d" % WS_AT)
        for a_ in range(5):
            for j in range(4):
                e(f"buffer_load_ushort v{EP+10+4*a_+j}, v10, s[28:31], s6 offen")
                pend.append(("e", 0))
                e("s_add_u32 s6, s6, %d" % (4096 if j < 3 else 4096*13))
    if not FUSE:
        eploads()
        for r in range(ACC, ACC+80):
            e(f"v_accvgpr_write_b32 a{r}, 0")
    for m in range(NST):
        if m == NST - 1:
            e("s_cmp_ge_u32 s3, 2")
            e("s_cbranch_scc1 fin_red")
        wait_for(("f", m))
        base = FR + 36*(m % FDEPTH)
        fill = []
        if FEP and FDEPTH + 1 <= m < FDEPTH + 4:
            for a_ in [(0, 1), (2, 3), (4,)][m - FDEPTH - 1]:
                rx = EP + 2*a_; ra = EP + 10 + 4*a_
                for k_ in range(9):
                    for p_ in range(2):
                        t0, t1 = 12 + 2*p_, 13 + 2*p_
                        r0, r1 = ra + 2*p_, ra + 2*p_ + 1
                        fill.append([f"v_lshlrev_b32 v{t0}, 16, v{rx+p_}", f"v_and_b32 v{t1}, 0xffff0000, v{rx+p_}",
                                     f"v_lshlrev_b32 v{r0}, 16, v{r0}", f"v_lshlrev_b32 v{r1}, 16, v{r1}",
                                     f"v_add_f32 v{t0}, v{t0}, v{r0}", f"v_add_f32 v{t1}, v{t1}, v{r1}",
                                     f"v_cvt_pk_bf16_f32 v{t0}, v{t0}, v{t1}",
                                     f"v_lshlrev_b32 v{r0}, 16, v{t0}", f"v_and_b32 v{r1}, 0xffff0000, v{t0}"][k_])
        for b_ in range(4):
            for a_ in range(5):
                ac = ACC + 4*(5*b_ + a_)
                e(f"v_mfma_f32_16x16x32_bf16 {accr(ac)}, v[{base+4*a_}:{base+4*a_+3}], v[{base+20+4*b_}:{base+23+4*b_}], {accr(ac)}")
                for _ in range(2):
                    if fill: e(fill.pop(0))
        assert not fill
        if FUSE and m == int(os.environ.get("GS", 10 if FUSE == 2 else 8)):
            if MB2:
                e("s_lshl_b32 s94, s5, 3")
                e("s_add_u32 s94, s94, s4")
                e("s_lshl_b32 s94, s94, 9")
                e("s_add_u32 s94, s94, %d" % WS_MB2)
                e("v_min_u32 v15, 39, v2")
                e("v_lshlrev_b32 v15, 3, v15")
                e("buffer_load_dwordx2 v[12:13], v15, s[28:31], s94 offen sc0 sc1")
            else: e("buffer_load_dword v13, v14, s[28:31], s94 offen sc0 sc1")
            pend.append(("g", 0))
        if FUSE and m == int(os.environ.get("GD", 12 if FUSE == 2 else 11)):
            if ("g", 0) in pend: wait_for(("g", 0))
            if MB2:
                e("s_mov_b32 s91, 0")
                e("s_branch fp1_c")
                lab("fp1_p")
                e("buffer_load_dwordx2 v[12:13], v15, s[28:31], s94 offen sc0 sc1")
                e("s_waitcnt vmcnt(0)")
                lab("fp1_c")
                e("v_and_b32 v12, v12, v13")
                e("v_cmp_ne_u32 vcc, 1, v12")
                e("s_cmp_eq_u64 vcc, 0")
                e("s_cbranch_scc1 fp1_d")
                e("s_add_u32 s91, s91, 1")
                e("s_cmp_ge_u32 s91, 0x20000")
                e("s_cbranch_scc1 fp1_d")
                e("s_sleep %d" % int(os.environ.get("PSL2", 2)))
                e("s_branch fp1_p")
                lab("fp1_d")
            else: poll(94, int(os.environ.get("FT1", 80)), "fp1", first=False)
            eploads()
        if m + FDEPTH < NST:
            if m + FDEPTH == NST - 1:
                e("s_cmp_ge_u32 s3, 2")
                e("s_cselect_b32 s6, 8192, 0")
                e("v_subrev_u32 v7, s6, v7")
            issue(m + FDEPTH)
    lab("fin_red")
    e("s_nop 15")
    e("s_waitcnt vmcnt(%d)" % (25 if FUSE else 0))
    e("v_lshlrev_b32 v11, 4, v2")
    RB, TB = 16, 96
    if FUSE == 2:
        RB, TB = 46, 108
        e("s_xor_b32 s6, s3, 2")
        e("s_mul_i32 s6, s6, 10240")
        e("v_add_u32 v12, s6, v11")
        e("s_mul_i32 s6, s3, 10240")
        e("v_add_u32 v13, s6, v11")
        e("s_xor_b32 s6, s3, 1")
        e("s_mul_i32 s6, s6, 10240")
        e("v_add_u32 v15, s6, v11")
        e("s_cmp_ge_u32 s3, 2")
        e("s_cbranch_scc1 fr_hi")
        for k in range(10): e(f"ds_write_b128 v12, v[{88+4*k}:{91+4*k}] offset:{1024*k}")
        e("s_waitcnt lgkmcnt(0)")
        for r in range(40): e(f"v_accvgpr_read_b32 v{88+r}, a{r}")
        e("s_branch fr_j")
        lab("fr_hi")
        for k in range(10): e(f"ds_write_b128 v12, a[{4*k}:{4*k+3}] offset:{1024*k}")
        e("s_waitcnt lgkmcnt(0)")
        lab("fr_j")
        e("s_barrier")
        for k in range(10): e(f"ds_read_b128 v[{46+4*k}:{49+4*k}], v13 offset:{1024*k}")
        for k in range(10):
            e(f"s_waitcnt lgkmcnt({9-k})")
            for r in (0, 2): e(f"v_pk_add_f32 v[{46+4*k+r}:{47+4*k+r}], v[{46+4*k+r}:{47+4*k+r}], v[{88+4*k+r}:{89+4*k+r}]")
        e("s_bitcmp1_b32 s3, 0")
        e("s_cbranch_scc1 fr_odd")
        for k in range(5): e(f"ds_write_b128 v13, v[{66+4*k}:{69+4*k}] offset:{1024*k}")
        e("s_branch fr_j2")
        lab("fr_odd")
        for k in range(5): e(f"ds_write_b128 v13, v[{46+4*k}:{49+4*k}] offset:{1024*k}")
        e("s_waitcnt lgkmcnt(0)")
        for r in range(20): e(f"v_mov_b32 v{46+r}, v{66+r}")
        lab("fr_j2")
        e("s_waitcnt lgkmcnt(0)")
        e("s_barrier")
        for k in range(5): e(f"ds_read_b128 v[{88+4*k}:{91+4*k}], v15 offset:{1024*k}")
        for k in range(5):
            e(f"s_waitcnt lgkmcnt({4-k})")
            for r in (0, 2): e(f"v_pk_add_f32 v[{46+4*k+r}:{47+4*k+r}], v[{46+4*k+r}:{47+4*k+r}], v[{88+4*k+r}:{89+4*k+r}]")
    for w in range(0 if FUSE == 2 else 4):
        if w < 3:
            e(f"s_cmp_lg_u32 s3, {w}")
            e(f"s_cbranch_scc1 fin_w{w+1}")
        for b_ in range(4):
            if b_ == w: continue
            slot = w if w < b_ else w - 1
            for a_ in range(5):
                ac = ACC + 4*(5*b_ + a_)
                e(f"ds_write_b128 v11, a[{ac}:{ac+3}] offset:{(b_*3 + slot)*5120 + a_*1024}")
        for r in range(20):
            e(f"v_accvgpr_read_b32 v{16+r}, a{ACC+20*w+r}")
        if w < 3:
            e("s_branch fin_rd")
            lab(f"fin_w{w+1}")
    lab("fin_rd")
    if FUSE != 2:
        e("s_mul_i32 s6, s3, %d" % (3*5120))
        e("v_add_u32 v11, s6, v11")
        e("s_waitcnt lgkmcnt(0)")
        e("s_barrier")
    for sl in range(0 if FUSE == 2 else 3):
        for a_ in range(5):
            r = 36 + 20*sl + 4*a_
            e(f"ds_read_b128 v[{r}:{r+3}], v11 offset:{sl*5120 + a_*1024}")
    for sl in range(0 if FUSE == 2 else 3):
        e(f"s_waitcnt lgkmcnt({10-5*sl})")
        if FEP:
            for r in range(0, 20, 2):
                e(f"v_pk_add_f32 v[{16+r}:{17+r}], v[{16+r}:{17+r}], v[{36+20*sl+r}:{37+20*sl+r}]")
            continue
        for r in range(20):
            e(f"v_add_f32 v{16+r}, v{16+r}, v{36+20*sl+r}")
    e("s_waitcnt vmcnt(0)")
    for a_ in range(5):
        rx = EP + 2*a_
        ra = EP + 10 + 4*a_
        if FEP:
            ac = 16 + 4*a_
            for p in range(2): e(f"v_cvt_pk_bf16_f32 v{96+p}, v{ac+2*p}, v{ac+2*p+1}")
            for p in range(2):
                e(f"v_lshlrev_b32 v{98+2*p}, 16, v{96+p}")
                e(f"v_and_b32 v{99+2*p}, 0xffff0000, v{96+p}")
            for p in range(2): e(f"v_pk_add_f32 v[{98+2*p}:{99+2*p}], v[{98+2*p}:{99+2*p}], v[{ra+2*p}:{ra+2*p+1}]")
            for p in range(2): e(f"v_cvt_pk_bf16_f32 v{rx+p}, v{98+2*p}, v{99+2*p}")
        for p in range(2 if not FEP else 0):
            ac = RB + 4*a_ + 2*p
            e(f"v_lshlrev_b32 v{TB+0}, 16, v{rx+p}")
            e(f"v_and_b32 v{TB+1}, 0xffff0000, v{rx+p}")
            e(f"v_lshlrev_b32 v{TB+2}, 16, v{ra+2*p}")
            e(f"v_lshlrev_b32 v{TB+3}, 16, v{ra+2*p+1}")
            e(f"v_add_f32 v{TB+0}, v{TB+0}, v{TB+2}")
            e(f"v_add_f32 v{TB+1}, v{TB+1}, v{TB+3}")
            e(f"v_cvt_pk_bf16_f32 v{TB+0}, v{TB+0}, v{TB+1}")
            e(f"v_cvt_pk_bf16_f32 v{TB+2}, v{ac}, v{ac+1}")
            e(f"v_lshlrev_b32 v{TB+4}, 16, v{TB+0}")
            e(f"v_and_b32 v{TB+5}, 0xffff0000, v{TB+0}")
            e(f"v_lshlrev_b32 v{TB+6}, 16, v{TB+2}")
            e(f"v_and_b32 v{TB+7}, 0xffff0000, v{TB+2}")
            e(f"v_add_f32 v{TB+4}, v{TB+4}, v{TB+6}")
            e(f"v_add_f32 v{TB+5}, v{TB+5}, v{TB+7}")
            e(f"v_cvt_pk_bf16_f32 v{rx+p}, v{TB+4}, v{TB+5}")
        e(f"buffer_store_dwordx2 v[{rx}:{rx+1}], v9, s[12:15], 0 offen offset:{32*a_}")
    lab("fin_end")
    e("s_endpgm")
    if SPL: kernel_desc("fin_kernel", 128, agpr=40)
    if not FUSE: kernel_desc("fin_kernel", ((EP + 30) + 7)//8*8, agpr=80)

hdr = open("cdna_kernels/%s.s.ref" % NAME).read().split("; Override launch")[0]
text = hdr
text += f"; @launch kernel=prep_kernel grid=({PREP_WGS + (128 if PORD else 0) + (256 if EMU & 2 else 0)},1,1) block=(256,1,1) lds={MID_LDS if EMU & 2 else PREP_LDS}\n"
text += f"; @launch kernel=mid_kernel grid=({MID_WGS - SPL},1,1) block=(256,1,1) lds={FIN_LDS if FUSE == 1 else MID_LDS}\n"
if SPL: text += f"; @launch kernel=fin_kernel grid=({G2_WGS + SPL},1,1) block=(256,1,1) lds={MID_LDS}\n"
if not FUSE: text += f"; @launch kernel=fin_kernel grid=({G2_WGS},1,1) block=(256,1,1) lds={FIN_LDS}\n"
text += '.amdgcn_target "amdgcn-amd-amdhsa--gfx950"\n'
gen_prep(); gen_mid(); gen_fin()
_o = []; _in = False
for _l in out:
    if _l.startswith("fin_kernel:"): _in = True
    if _l.strip().startswith("buffer_store") and not _in and "nosc" not in SKIP: _l += " sc1"
    _o.append(_l)
out = _o
text += "\n".join(out) + "\n"
dst = sys.argv[1] if len(sys.argv) > 1 else "cdna_kernels/%s.s" % NAME
open(dst, "w").write(text)
print("wrote", dst, len(text))
```

```python
import sys, os
SKIP = os.environ.get("SKIP", "").split(",")
ORDER = int(os.environ.get("ORDER", 0))
PRIO = int(os.environ.get("PRIO", 3))
W2MID = int(os.environ.get("W2MID", 0))
CONV2 = int(os.environ.get("CONV2", 1))
CV3 = int(os.environ.get("CV3", 1))
FEP = int(os.environ.get("FEP", 1))
PORD = int(os.environ.get("PORD", 0))
MISH2 = int(os.environ.get("MISH2", 2))
DLYC = int(os.environ.get("DLYC", 24))
G1MAP = int(os.environ.get("G1MAP", 1))
FMAP = int(os.environ.get("FMAP", 1))
DLYL = int(os.environ.get("DLYL", 16))
DLYW = int(os.environ.get("DLYW", 24))
EMU = int(os.environ.get("EMU", 1))
KGR = int(os.environ.get("KGR", 0))
W1D = int(os.environ.get("W1D", 0))
FUSE = int(os.environ.get("FUSE", 0))
if FUSE: FEP = 0
SPL = int(os.environ.get("SPL", 0))
if SPL: FUSE = 2; FEP = 0
CSH = int(os.environ.get("CSH", 6))
MBX = int(os.environ.get("MBX", 0))
WS_MB = 0x1740000
MB2 = int(os.environ.get("MB2", 0)); WS_MB2 = 0x1780000
CP2 = int(os.environ.get("CP2", 0))
CVL = 1 if FUSE == 1 else 0
NAME = "parallel_sum__ssm_conv_s4d__dense_activation_mish__prompt"
L, D, N, F = 2048, 640, 128, 1728
WS_XNF = 0x0000000
WS_XNT = 0x0280000
WS_W1F = 0x0500000
WS_W2F = WS_W1F + 2160 * 1024
WS_KR = 0x0A00000
KR_STRIDE = 4224
WS_ACT = 0x0D00000
WS_AT = 0x1400000
WS_CNT = 0x1700000
WS_SIZE = 268435456
LOG2E = 0x3fb8aa3b
INV2PI = 0x3e22f983

out = []
def e(s):
    out.append("    " + s)
def lab(s):
    out.append(s + ":")
def cm(s):
    out.append("    ; " + s)

STAMP = os.environ.get("STAMP")
def stamp_init():
    if not STAMP: return
    e("s_load_dwordx2 s[84:85], s[0:1], 96")
    e("s_waitcnt lgkmcnt(0)")
    e("s_mov_b32 s80, s84"); e("s_and_b32 s81, s85, 0xffff"); e("s_mov_b32 s82, 256"); e("s_mov_b32 s83, 0x00020000")
def stamp(i):
    if not STAMP: return
    e("s_memtime s[86:87]")
    e("s_waitcnt lgkmcnt(0)")
    e(f"s_cmp_lg_u32 s2, {int(STAMP)}")
    e(f"s_cbranch_scc1 st_{stamp.n}")
    e(f"v_mov_b32 v255, s86")
    e(f"v_lshrrev_b32 v254, 6, v0")
    e(f"v_lshlrev_b32 v254, 6, v254")
    e(f"v_add_u32 v254, {4*i}, v254")
    e(f"buffer_store_dword v255, v254, s[80:83], 0 offen")
    lab(f"st_{stamp.n}")
    stamp.n += 1
stamp.n = 0


TL = os.environ.get("TL")
WS_TL = 0x1800000
def tl(i):
    if not TL: return
    e("s_memrealtime s[80:81]")
    e("s_waitcnt lgkmcnt(0)")
    e(f"s_mov_b32 s{84+i}, s80")
def tl_begin():
    if not TL: return
    e("s_mov_b32 s83, s2")
    for i in range(8): e(f"s_mov_b32 s{84+i}, 0")
    tl(0)
def tl_end(kern):
    if not TL: return
    tl(7)
    e("s_getreg_b32 s90, hwreg(HW_REG_HW_ID)")
    e("s_getreg_b32 s80, hwreg(HW_REG_XCC_ID)")
    e("s_and_b32 s90, s90, 0xffff")
    e("s_lshl_b32 s80, s80, 16")
    e("s_or_b32 s90, s90, s80")
    e("s_or_b32 s90, s90, 0x40000000")
    e("s_cmp_lg_u32 s3, 0")
    e(f"s_cbranch_scc1 tle_{tl_end.n}")
    e("s_lshl_b32 s83, s83, 5")
    e(f"s_add_u32 s83, s83, {WS_TL + kern*65536}")
    e("v_mov_b32 v1, 0")
    for i in range(8):
        e(f"v_mov_b32 v0, s{84+i}")
        e(f"buffer_store_dword v0, v1, s[28:31], s83 offen offset:{4*i}")
    lab(f"tle_{tl_end.n}")
    tl_end.n += 1
tl_end.n = 0

def srd(dst, ptr, size):
    e(f"s_mov_b32 s{dst}, s{ptr}")
    e(f"s_and_b32 s{dst+1}, s{ptr+1}, 0xffff")
    e(f"s_mov_b32 s{dst+2}, {size}")
    e(f"s_mov_b32 s{dst+3}, 0x00020000")

def kernel_begin(name):
    out.append(".text")
    out.append(f".globl {name}")
    out.append(".p2align 8")
    out.append(f".type {name},@function")
    lab(name)

def kernel_desc(name, vgpr, sgpr=96, agpr=0):
    if STAMP: vgpr = 256
    out.append('.section .rodata,"a"')
    out.append(".p2align 6")
    out.append(f".amdhsa_kernel {name}")
    out.append(f"  .amdhsa_next_free_vgpr {vgpr + agpr}")
    out.append(f"  .amdhsa_next_free_sgpr {sgpr}")
    out.append(f"  .amdhsa_accum_offset {(vgpr+3)//4*4}")
    out.append("  .amdhsa_group_segment_fixed_size 0")
    out.append("  .amdhsa_kernarg_size 112")
    out.append("  .amdhsa_user_sgpr_count 2")
    out.append("  .amdhsa_user_sgpr_kernarg_segment_ptr 1")
    out.append("  .amdhsa_system_sgpr_workgroup_id_x 1")
    out.append(".end_amdhsa_kernel")


SCL = int(os.environ.get("SCL", 3))
def static_claim():
    e("s_and_b32 s4, s2, 7")
    e("s_lshl_b32 s4, s4, 5")
    e("s_lshr_b32 s2, s2, 3")
    e("s_or_b32 s2, s2, s4")

def signal(sidx, lbl):
    e("s_waitcnt vmcnt(0)")
    e("s_barrier")
    e("s_cmp_lg_u32 s3, 0")
    e(f"s_cbranch_scc1 {lbl}")
    e(f"s_lshl_b32 s6, s{sidx}, {CSH}")
    e("s_add_u32 s6, s6, %d" % WS_CNT)
    e("s_mov_b64 exec, 1")
    e("v_mov_b32 v12, 1")
    e("v_mov_b32 v13, 0")
    e("buffer_atomic_add v12, v13, s[28:31], s6 offen sc1")
    e("s_mov_b64 exec, -1")
    lab(lbl)
def poll(soff, target, lbl, first=True):
    e("s_mov_b32 s91, 0")
    if not first: e(f"s_branch {lbl}_c")
    lab(f"{lbl}_p")
    e(f"buffer_load_dword v13, v14, s[28:31], s{soff} offen sc0 sc1")
    e("s_waitcnt vmcnt(0)")
    lab(f"{lbl}_c")
    e("v_readfirstlane_b32 s92, v13")
    e(f"s_cmp_ge_u32 s92, {target}")
    e(f"s_cbranch_scc1 {lbl}_d")
    e("s_add_u32 s91, s91, 1")
    e("s_cmp_ge_u32 s91, 0x20000")
    e(f"s_cbranch_scc1 {lbl}_d")
    e("s_sleep %d" % (int(os.environ.get("PSL", 2)) if first else int(os.environ.get("PSL2", 32))))
    e(f"s_branch {lbl}_p")
    lab(f"{lbl}_d")

def claim_tile(cnt_off, per, lds_off, lbl):
    e("s_cmp_lg_u32 s3, 0")
    e(f"s_cbranch_scc1 {lbl}_w")
    e("s_getreg_b32 s20, hwreg(HW_REG_XCC_ID)")
    e("s_and_b32 s20, s20, 7")
    e("s_mov_b32 s21, 0")
    e("s_mov_b64 s[22:23], exec")
    e("s_mov_b64 exec, 1")
    e("v_mov_b32 v12, 1")
    lab(f"{lbl}_l")
    e("s_lshl_b32 s24, s20, %d" % CSH)
    e(f"s_add_u32 s24, s24, {WS_CNT + cnt_off}")
    e("v_mov_b32 v13, 0")
    e("v_mov_b32 v14, v12")
    e("buffer_atomic_add v14, v13, s[28:31], s24 offen sc0" + ("" if "asc" in SKIP else " sc1"))
    e("s_waitcnt vmcnt(0)")
    e("v_readfirstlane_b32 s25, v14")
    e(f"s_cmp_lt_u32 s25, {per}")
    e(f"s_cbranch_scc1 {lbl}_f")
    e("s_add_u32 s20, s20, 1")
    e("s_and_b32 s20, s20, 7")
    e("s_add_u32 s21, s21, 1")
    e("s_cmp_lt_u32 s21, 8")
    e(f"s_cbranch_scc1 {lbl}_l")
    e("s_mov_b32 s25, 0")
    lab(f"{lbl}_f")
    e(f"s_mul_i32 s20, s20, {per}")
    e("s_add_u32 s20, s20, s25")
    e("v_mov_b32 v14, s20")
    e(f"v_mov_b32 v13, {lds_off}")
    e("ds_write_b32 v13, v14")
    e("s_mov_b64 exec, s[22:23]")
    e("s_waitcnt lgkmcnt(0)")
    lab(f"{lbl}_w")
    e("s_barrier")
    e(f"v_mov_b32 v13, {lds_off}")
    e("ds_read_b32 v14, v13")
    e("s_waitcnt lgkmcnt(0)")
    e("v_readfirstlane_b32 s2, v14")

LN_WGS, WT_WGS, KG_WGS = 128, (68 if (W2MID or W1D) else 135), 640
PREP_WGS = KG_WGS + LN_WGS + WT_WGS
KG_LDS_WAVE = 512
KG_TAB0 = 2048
KG_TAB = 2688
KG_FIN = KG_TAB0 + 4*KG_TAB
PREP_LDS = 36864
LNS = 36

def gen_wt(wg0, wv0, wvend, endlab, kern, dly):
    if "wt" in SKIP: e("s_endpgm")
    if PRIO & 2: e("s_setprio 3")
    e("s_load_dwordx2 s[40:41], s[0:1], 64")
    e("s_load_dwordx2 s[42:43], s[0:1], 80")
    e("s_sub_u32 s4, s2, %d" % wg0)
    e("s_lshl_b32 s4, s4, 2")
    e("s_add_u32 s4, s4, s3")
    if wv0: e("s_add_u32 s4, s4, %d" % wv0)
    if wvend:
        e("s_cmp_ge_u32 s4, %d" % wvend)
        e("s_cbranch_scc1 %s" % endlab)
    e("s_waitcnt lgkmcnt(0)")
    e("s_cmp_ge_u32 s4, 270")
    e("s_cselect_b32 s40, s42, s40")
    e("s_cselect_b32 s41, s43, s41")
    e("s_mov_b32 s5, 3456")
    e("s_mov_b32 s7, 159072863")
    e("s_mov_b32 s34, %d" % WS_W1F)
    e("s_cselect_b32 s5, 1280, s5")
    e("s_cselect_b32 s6, 10, 27")
    e("s_cselect_b32 s7, 429496730, s7")
    e("s_cselect_b32 s32, 270, 0")
    e("s_cselect_b32 s33, 108, 40")
    e("s_cselect_b32 s34, %d, s34" % WS_W2F)
    srd(8, 40, D*F*2); srd(28, 56, WS_SIZE)
    e("s_sub_u32 s32, s4, s32")
    e("s_lshl_b32 s32, s32, 2")
    e("v_lshrrev_b32 v3, 3, v2")
    e("v_and_b32 v4, 7, v2")
    e("v_mul_lo_u32 v5, v3, s5")
    e("v_lshl_add_u32 v5, v4, 4, v5")
    e("s_lshl_b32 s35, s5, 3")
    e("s_mul_i32 s36, s3, %d" % (4*16*144))
    e("v_mul_u32_u24 v6, 144, v3")
    e("v_lshl_add_u32 v6, v4, 4, v6")
    e("v_add_u32 v6, s36, v6")
    e("v_and_b32 v7, 31, v2")
    e("v_lshrrev_b32 v8, 5, v2")
    e("v_mul_u32_u24 v8, %d, v8" % (8*144))
    e("v_lshl_add_u32 v8, v7, 1, v8")
    e("v_add_u32 v8, s36, v8")
    e("v_lshlrev_b32 v9, 4, v2")
    if dly: e(f"s_sleep {dly}")
    for q in range(4):
        e(f"s_add_u32 s37, s32, {q}")
        e("s_mul_hi_u32 s38, s37, s7")
        e("s_mul_i32 s39, s38, s6")
        e("s_sub_u32 s39, s37, s39")
        e(f"s_lshl_b32 s44, s38, 4")
        e(f"s_mul_i32 s44, s44, s5")
        e(f"s_lshl_b32 s45, s39, 7")
        e(f"s_add_u32 s44, s44, s45")
        e(f"buffer_load_dwordx4 v[{16+8*q}:{19+8*q}], v5, s[8:11], s44 offen")
        e(f"s_add_u32 s44, s44, s35")
        e(f"buffer_load_dwordx4 v[{20+8*q}:{23+8*q}], v5, s[8:11], s44 offen")
        e(f"s_lshl_b32 s45, s39, 1")
        e(f"s_mul_i32 s45, s45, s33")
        e(f"s_add_u32 s45, s45, s38")
        e(f"s_lshl_b32 s45, s45, 10")
        e(f"s_add_u32 s{48+q}, s45, s34")
    e("s_lshl_b32 s33, s33, 10")
    for q in range(4):
        e(f"s_waitcnt vmcnt({6-2*q})")
        e(f"ds_write_b128 v6, v[{16+8*q}:{19+8*q}] offset:{q*16*144}")
        e(f"ds_write_b128 v6, v[{20+8*q}:{23+8*q}] offset:{q*16*144 + 8*144}")
    tl(1)
    for q in range(4):
        e("s_waitcnt lgkmcnt(0)") if q == 0 else None
        for f in range(2):
            for el in range(8):
                e(f"ds_read_u16 v{48+16*(q&1)*2+16*f+el}, v8 offset:{q*16*144 + el*144 + 64*f}")
        if q > 0:
            pass
        e("s_waitcnt lgkmcnt(0)")
        for f in range(2):
            for j in range(4):
                r = 48 + 16*(q&1)*2 + 16*f
                e(f"v_lshl_or_b32 v{112+4*f+j}, v{r+2*j+1}, 16, v{r+2*j}")
            if f == 0:
                e(f"buffer_store_dwordx4 v[112:115], v9, s[28:31], s{48+q} offen")
            else:
                e(f"s_add_u32 s{48+q}, s{48+q}, s33")
                e(f"buffer_store_dwordx4 v[116:119], v9, s[28:31], s{48+q} offen")
        if q < 3:
            e("s_nop 1")
    tl(5)
    if TL: e("s_waitcnt vmcnt(0)")
    tl_end(kern)

def gen_prep():
    kernel_begin("prep_kernel")
    if EMU & 2:
        e("s_cmp_lt_u32 s2, 256")
        e("s_cbranch_scc1 mid_body")
        e("s_sub_u32 s2, s2, 256")
    if PORD:
        e("s_lshr_b32 s4, s2, 7")
        e("s_cmp_eq_u32 s4, 6")
        e("s_cbranch_scc1 prep_end")
        e("s_cmp_gt_u32 s4, 6")
        e("s_cselect_b32 s4, 128, 0")
        e("s_sub_u32 s2, s2, s4")
    e("s_cmp_ge_u32 s2, %d" % PREP_WGS)
    e("s_cbranch_scc1 prep_end")
    e("s_load_dwordx2 s[56:57], s[0:1], 104")
    e("v_lshrrev_b32 v1, 6, v0")
    e("v_and_b32 v2, 63, v0")
    e("s_nop 0")
    e("v_readfirstlane_b32 s3, v1")
    if ORDER:
        e("s_add_u32 s2, s2, %d" % KG_WGS)
        e("s_cmp_ge_u32 s2, %d" % PREP_WGS)
        e("s_cselect_b32 s4, %d, 0" % PREP_WGS)
        e("s_sub_u32 s2, s2, s4")
    tl_begin()
    e("s_cmp_ge_u32 s2, %d" % (KG_WGS + LN_WGS))
    e("s_cbranch_scc1 prep_wt")
    e("s_cmp_ge_u32 s2, %d" % KG_WGS)
    e("s_cbranch_scc1 prep_ln")
    if "kg" in SKIP: e("s_endpgm")
    e("s_load_dwordx4 s[40:43], s[0:1], 8")
    e("s_load_dwordx4 s[44:47], s[0:1], 24")
    e("s_load_dwordx2 s[48:49], s[0:1], 40")
    e("s_mov_b32 s4, s2")
    e("s_mul_i32 s5, s3, %d" % KG_LDS_WAVE)
    e("s_lshl_b32 s6, s4, 8")
    e("s_lshl_b32 s7, s3, 6")
    e("s_add_u32 s6, s6, s7")
    e("v_and_b32 v3, 31, v2")
    e("v_lshl_add_u32 v3, v3, 1, s6")
    e("s_lshl_b32 s7, s4, 1")
    e("v_mov_b32 v4, s7")
    e("s_waitcnt lgkmcnt(0)")
    srd(8, 40, D*N*2); srd(12, 42, D*N*2); srd(16, 44, D*N*2); srd(20, 46, D*N*2)
    srd(24, 48, D*2); srd(28, 56, WS_SIZE)
    for k, sr in enumerate((8, 12, 16, 20)):
        e(f"buffer_load_ushort v{10+k}, v3, s[{sr}:{sr+3}], 0 offen")
    e("buffer_load_ushort v18, v4, s[24:27], 0 offen")
    e("v_and_b32 v8, 15, v2")
    e("v_lshrrev_b32 v9, 4, v2")
    e("v_and_b32 v24, 7, v8")
    e("v_lshrrev_b32 v25, 3, v8")
    e("v_lshl_add_u32 v28, v25, 7, v24")
    e("v_and_b32 v24, 3, v8")
    e("v_lshlrev_b32 v24, 1, v24")
    e("v_bfe_u32 v25, v8, 2, 1")
    e("v_lshl_add_u32 v24, v25, 7, v24")
    e("v_add_u32 v24, 256, v24")
    e("v_and_b32 v25, 1, v8")
    e("v_lshlrev_b32 v25, 2, v25")
    e("v_bfe_u32 v26, v8, 1, 2")
    e("v_lshl_add_u32 v25, v26, 7, v25")
    e("v_add_u32 v25, 512, v25")
    e("v_cmp_gt_u32 vcc, 8, v8")
    e("s_nop 1")
    e("v_cndmask_b32 v29, v25, v24, vcc")
    e("v_lshlrev_b32 v30, 7, v8")
    e("v_add_u32 v30, 0x400, v30")
    e("v_lshlrev_b32 v31, 3, v8")
    for t in range(4):
        e(f"v_cvt_f32_u32 v{28+t}, v{28+t}")
    e("s_mul_i32 s6, s3, %d" % KG_TAB)
    e("s_add_u32 s6, s6, %d" % KG_TAB0)
    e("v_and_b32 v24, 1, v9")
    e("v_lshrrev_b32 v25, 1, v9")
    e("v_lshl_add_u32 v33, v8, 5, s6")
    e("v_lshl_add_u32 v33, v24, 4, v33")
    e("v_lshl_add_u32 v33, v25, 9, v33")
    e("v_lshlrev_b32 v24, 4, v8")
    e("v_lshlrev_b32 v25, 3, v8")
    e("v_cmp_gt_u32 vcc, 2, v9")
    e("s_nop 1")
    e("v_cndmask_b32 v24, v25, v24, vcc")
    e("v_lshl_add_u32 v24, v9, 8, v24")
    e("v_add_u32 v24, s6, v24")
    e("v_add_u32 v34, 1024, v24")
    e("v_mov_b32 v25, 128")
    e("v_cndmask_b32_e64 v24, v25, 8, vcc")
    e("v_add_u32 v36, v34, v24")
    e("v_lshl_add_u32 v38, v8, 2, s6")
    e("v_lshl_add_u32 v38, v9, 8, v38")
    e("v_add_u32 v38, 2048, v38")
    e("v_lshl_add_u32 v39, v9, 4, s5")
    for r in range(40, 52):
        e(f"v_mov_b32 v{r}, 0")
    e("s_waitcnt vmcnt(0)")
    tl(1)
    for r in (10, 11, 12, 13, 18):
        e(f"v_lshlrev_b32 v{r}, 16, v{r}")
    e(f"v_mul_f32 v18, {LOG2E:#x}, v18")
    e(f"v_mul_f32 v10, {LOG2E:#x}, v10")
    e("v_exp_f32 v18, v18")
    e("v_exp_f32 v10, v10")
    e("s_nop 0")
    e("v_cvt_pk_bf16_f32 v18, v18, v18")
    e("v_cvt_pk_bf16_f32 v10, v10, v10")
    e("v_lshlrev_b32 v18, 16, v18")
    e("v_lshlrev_b32 v10, 16, v10")
    e("v_add_f32 v19, v18, v18")
    e("v_and_b32 v5, 31, v2")
    e("v_lshl_add_u32 v5, v5, 4, s5")
    e("v_mul_f32 v20, v10, v18")
    e(f"v_mul_f32 v20, {LOG2E|0x80000000:#x}, v20")
    e("v_mul_f32 v21, v11, v18")
    e(f"v_mul_f32 v21, {INV2PI:#x}, v21")
    e("v_mul_f32 v22, v12, v19")
    e("v_mul_f32 v23, v13, v19")
    e("ds_write_b128 v5, v[20:23]")
    e("s_waitcnt lgkmcnt(0)")
    for st in range(2 if KGR else 8):
        e(f"ds_read_b128 v[{96+4*st}:{99+4*st}], v39 offset:{64*st}")
    if not KGR: e("s_waitcnt lgkmcnt(0)")
    def kg_valu(st):
        P = 96 + 4*st
        O = 72 + 10*(st & 1)
        v = []
        for t in range(4):
            v.append(f"v_mul_f32 v{52+t}, v{P}, v{28+t}")
            v.append(f"v_mul_f32 v{56+t}, v{P+1}, v{28+t}")
        for t in range(4):
            v.append(f"v_exp_f32 v{52+t}, v{52+t}")
            v.append(f"v_fract_f32 v{56+t}, v{56+t}")
        for t in range(4):
            v.append(f"v_cos_f32 v{60+t}, v{56+t}")
            v.append(f"v_sin_f32 v{64+t}, v{56+t}")
        for t in range(4):
            v.append(f"v_mul_f32 v{60+t}, v{52+t}, v{60+t}")
            v.append(f"v_mul_f32 v{64+t}, v{52+t}, v{64+t}")
        v.append(f"v_mul_f32 v55, v63, v{P+2}")
        v.append(f"v_mul_f32_e64 v59, -v63, v{P+3}")
        v.append(f"v_fma_f32 v55, -v67, v{P+3}, v55")
        v.append(f"v_fma_f32 v59, -v67, v{P+2}, v59")
        if KGR: v.append(f"ds_read_b128 v[{P}:{P+3}], v39 offset:{128 + 64*st}")
        def split(xr, xi, H, Lo, t0, t1):
            v.append(f"v_cvt_pk_bf16_f32 v{H}, v{xr}, v{xi}")
            v.append(f"v_lshlrev_b32 v{t0}, 16, v{H}")
            v.append(f"v_and_b32 v{t1}, 0xffff0000, v{H}")
            v.append(f"v_sub_f32 v{t0}, v{xr}, v{t0}")
            v.append(f"v_sub_f32 v{t1}, v{xi}, v{t1}")
            v.append(f"v_cvt_pk_bf16_f32 v{Lo}, v{t0}, v{t1}")
        split(55, 59, O, O+2, 68, 69)
        v.append(f"v_mov_b32 v{O+1}, v{O}")
        v.append(f"v_mov_b32 v{O+3}, v{O+2}")
        for t in range(3):
            split(60+t, 64+t, O+4+2*t, O+5+2*t, 52+t, 56+t)
        return v
    def kg_mfma(st):
        O = 72 + 10*(st & 1)
        m = []
        for h in range(2):
            for t in range(3):
                a = 40 + 4*t
                m.append(f"v_mfma_f32_16x16x16_bf16 v[{a}:{a+3}], v[{O+4+2*t}:{O+5+2*t}], v[{O+2*h}:{O+2*h+1}], v[{a}:{a+3}]")
        return m
    if KGR:
        for r in range(82, 92): e(f"v_mov_b32 v{r}, 0")
        e("s_mov_b32 s7, 4")
        lab("kg_loop")
    for st in ((0, 1, 2) if KGR else range(9)):
        v = kg_valu(st) if st < (2 if KGR else 8) else []
        m = kg_mfma(st-1) if (st > 0 or KGR) else []
        if KGR and st < 2: e("s_waitcnt lgkmcnt(1)")
        if KGR and st == 2:
            e("v_add_u32 v39, 128, v39")
            e("s_sub_u32 s7, s7, 1")
            e("s_cmp_lg_u32 s7, 0")
            e("s_cbranch_scc1 kg_loop")
        if "kgm" in SKIP: m = []
        if "kgv" in SKIP: v = []
        if not v:
            e("s_nop 1")
        vi = 0
        for mi, mm_ in enumerate(m):
            tgt = 2 + 7*mi
            while vi < min(tgt, len(v)):
                e(v[vi]); vi += 1
            e(mm_)
        while vi < len(v):
            e(v[vi]); vi += 1
    e("s_nop 15")
    tl(2)
    for r in range(4):
        e(f"ds_write_b32 v33, v{40+r} offset:{4*r}")
    e("ds_write_b32 v34, v44")
    e("ds_write_b32 v34, v45 offset:4")
    e("ds_write_b32 v36, v46")
    e("ds_write_b32 v36, v47 offset:4")
    e("s_mov_b32 exec_hi, 0xffff")
    e("ds_write_b32 v38, v48")
    e("s_mov_b32 exec_hi, 0")
    for r in range(1, 4):
        e(f"ds_write_b32 v38, v{48+r} offset:{64*r}")
    e("s_mov_b32 exec_hi, -1")
    e("s_mul_i32 s4, s4, %d" % KR_STRIDE)
    e("s_add_u32 s4, s4, %d" % WS_KR)
    e("v_lshlrev_b32 v39, 4, v0")
    e("v_lshlrev_b32 v64, 3, v0")
    e("v_sub_u32 v64, 2047, v64")
    e("v_lshlrev_b32 v65, 2, v0")
    e("v_lshlrev_b32 v66, 1, v0")
    for k in range(8):
        e(f"v_subrev_u32 v{52+k}, {k}, v64")
        e(f"v_cvt_f32_u32 v{72+k}, v{52+k}")
    for k in range(4):
        e(f"v_cvt_pk_bf16_f32 v{80+k}, v{72+2*k}, v{73+2*k}")
        e(f"v_and_b32 v{72+2*k}, 0xffff, v{80+k}")
        e(f"v_lshrrev_b32 v{73+2*k}, 16, v{80+k}")
    for k in range(8):
        e(f"v_subrev_u32 v{72+k}, 17024, v{72+k}")
        e(f"v_cmp_gt_u32 vcc, 256, v{52+k}")
        e("s_nop 1")
        e(f"v_cndmask_b32 v{52+k}, v{72+k}, v{52+k}, vcc")
        e(f"v_lshlrev_b32 v{52+k}, 1, v{52+k}")
    e("s_waitcnt lgkmcnt(0)")
    e("s_barrier")
    tl(3)
    for m in range(3):
        for ww in range(4):
            e(f"ds_read_b32 v{72+4*m+ww}, v65 offset:{KG_TAB0 + ww*KG_TAB + 1024*m}")
    for m in range(3):
        e(f"s_waitcnt lgkmcnt({8-4*m})")
        e(f"v_add_f32 v{72+4*m}, v{72+4*m}, v{73+4*m}")
        e(f"v_add_f32 v{74+4*m}, v{74+4*m}, v{75+4*m}")
        e(f"v_add_f32 v{72+4*m}, v{72+4*m}, v{74+4*m}")
        e(f"v_cvt_pk_bf16_f32 v{72+4*m}, v{72+4*m}, v{72+4*m}")
        e(f"ds_write_b16 v66, v{72+4*m} offset:{KG_FIN + 512*m}")
    e("s_waitcnt lgkmcnt(0)")
    e("s_barrier")
    tl(4)
    for k in range(8):
        e(f"ds_read_u16 v{96+k}, v{52+k} offset:{KG_FIN}")
    e("s_waitcnt lgkmcnt(0)")
    for k in range(4):
        e(f"v_lshl_or_b32 v{112+k}, v{97+2*k}, 16, v{96+2*k}")
    e(f"buffer_store_dwordx4 v[112:115], v39, s[28:31], s4 offen")
    for k in range(4):
        e(f"v_mov_b32 v{116+k}, 0")
    e("v_cmp_gt_u32 vcc, 8, v0")
    e("s_and_saveexec_b64 s[32:33], vcc")
    e("s_cbranch_execz prep_end")
    e("s_add_u32 s4, s4, 4096")
    e("buffer_store_dwordx4 v[116:119], v39, s[28:31], s4 offen")
    if MBX:
        e("s_cmp_ge_u32 s2, 256")
        e("s_cbranch_scc1 prep_end")
        e("v_lshlrev_b32 v40, 3, v0")
        e("s_lshl_b32 s4, s2, %d" % MBX)
        e("s_add_u32 s4, s4, %d" % WS_MB)
        e("buffer_store_dwordx2 v[116:117], v40, s[28:31], s4 offen")
        if MB2:
            e("v_lshlrev_b32 v40, 4, v0")
            e("s_lshl_b32 s4, s2, 9")
            e("s_add_u32 s4, s4, %d" % WS_MB2)
            for k in range(3): e(f"buffer_store_dwordx4 v[116:119], v40, s[28:31], s4 offen offset:{128*k}")
    e("v_lshlrev_b32 v39, %d, v0" % CSH)
    tl(5)
    if TL: e("s_waitcnt vmcnt(0)")
    tl_end(0)
    if FUSE or not (EMU & 1 and (SCL & 2 or FMAP >= 2)):
        e("s_cmp_lg_u32 s2, 0")
        e("s_cbranch_scc1 prep_end")
        e("s_mov_b32 s4, %d" % WS_CNT)
        e("buffer_store_dword v116, v39, s[28:31], s4 offen")
        e("s_add_u32 s4, s4, %d" % (8 << CSH))
        e("buffer_store_dword v116, v39, s[28:31], s4 offen")
        e("s_add_u32 s4, s4, %d" % (8 << CSH))
        e("buffer_store_dword v116, v39, s[28:31], s4 offen")
    e("s_endpgm")
    lab("prep_ln")
    if "ln" in SKIP: e("s_endpgm")
    if PRIO & 1: e("s_setprio 3")
    e("s_load_dwordx2 s[40:41], s[0:1], 0")
    e("s_sub_u32 s2, s2, %d" % KG_WGS)
    e("v_and_b32 v3, 15, v0")
    e("v_lshrrev_b32 v4, 4, v0")
    e("s_lshl_b32 s5, s2, 4")
    e("v_add_u32 v5, s5, v4")
    e("v_mul_u32_u24 v6, 1280, v5")
    e("v_lshl_add_u32 v6, v3, 4, v6")
    e("s_waitcnt lgkmcnt(0)")
    srd(8, 40, L*D*2); srd(28, 56, WS_SIZE)
    if DLYL: e(f"s_sleep {DLYL}")
    for j in range(5):
        e(f"buffer_load_dwordx4 v[{16+4*j}:{19+4*j}], v6, s[8:11], 0 offen offset:{256*j}")
    e("s_lshr_b32 s6, s2, 1")
    e("s_mul_i32 s6, s6, %d" % (40*1024))
    e("s_add_u32 s6, s6, %d" % WS_XNF)
    e("v_lshrrev_b32 v7, 1, v3")
    e("v_lshlrev_b32 v7, 10, v7")
    e("v_and_b32 v8, 1, v3")
    e("v_lshl_add_u32 v7, v8, 9, v7")
    e("v_and_b32 v8, 31, v5")
    e("v_lshl_add_u32 v7, v8, 4, v7")
    e(f"v_mul_u32_u24 v9, {8*LNS}, v3")
    e("v_lshl_add_u32 v9, v4, 1, v9")
    e("s_waitcnt vmcnt(0)")
    tl(1)
    for k in range(20):
        e(f"v_lshlrev_b32 v{40+2*k}, 16, v{16+k}")
        e(f"v_and_b32 v{41+2*k}, 0xffff0000, v{16+k}")
    def lane_sum(srcs, acc):
        for a in range(4):
            e(f"v_add_f32 v{acc+a}, v{srcs[a]}, v{srcs[a+4]}")
        for k in range(8, len(srcs)):
            e(f"v_add_f32 v{acc+(k%4)}, v{acc+(k%4)}, v{srcs[k]}")
        e(f"v_add_f32 v{acc}, v{acc}, v{acc+1}")
        e(f"v_add_f32 v{acc+2}, v{acc+2}, v{acc+3}")
        e(f"v_add_f32 v{acc}, v{acc}, v{acc+2}")
        for sh in (8, 4, 2, 1):
            e("s_nop 1")
            e(f"v_add_f32_dpp v{acc}, v{acc}, v{acc} row_ror:{sh} row_mask:0xf bank_mask:0xf")
    lane_sum(list(range(40, 80)), 10)
    e("v_mul_f32 v14, 0x3acccccd, v10")
    for k in range(40):
        e(f"v_sub_f32 v{80+k}, v{40+k}, v14")
        e(f"v_mul_f32 v{80+k}, v{80+k}, v{80+k}")
    lane_sum(list(range(80, 120)), 10)
    e("v_mul_f32 v10, 0x3acccccd, v10")
    e("v_cvt_pk_bf16_f32 v10, v10, v14")
    e("v_and_b32 v14, 0xffff0000, v10")
    e("v_lshlrev_b32 v10, 16, v10")
    e("v_add_f32 v10, 0x3727c5ac, v10")
    e("v_cvt_pk_bf16_f32 v10, v10, v10")
    e("v_lshlrev_b32 v10, 16, v10")
    e("v_sqrt_f32 v10, v10")
    e("s_nop 0")
    e("v_cvt_pk_bf16_f32 v10, v10, v10")
    e("v_lshlrev_b32 v10, 16, v10")
    e("v_rcp_f32 v11, v10")
    e("s_nop 0")
    e("v_fma_f32 v12, -v10, v11, 2.0")
    e("v_mul_f32 v11, v11, v12")
    for k in range(20):
        e(f"v_sub_f32 v{40+2*k}, v{40+2*k}, v14")
        e(f"v_sub_f32 v{41+2*k}, v{41+2*k}, v14")
        e(f"v_cvt_pk_bf16_f32 v{16+k}, v{40+2*k}, v{41+2*k}")
        e(f"v_lshlrev_b32 v{40+2*k}, 16, v{16+k}")
        e(f"v_and_b32 v{41+2*k}, 0xffff0000, v{16+k}")
        e(f"v_mul_f32 v{40+2*k}, v{40+2*k}, v11")
        e(f"v_mul_f32 v{41+2*k}, v{41+2*k}, v11")
        e(f"v_cvt_pk_bf16_f32 v{16+k}, v{40+2*k}, v{41+2*k}")
    tl(2)
    for j in range(5):
        if "xnf" not in SKIP: e(f"buffer_store_dwordx4 v[{16+4*j}:{19+4*j}], v7, s[28:31], s6 offen")
        if j < 4: e("s_add_u32 s6, s6, 8192")
    for j in range(5):
        for el in range(8):
            r = 16 + 4*j + el//2
            op = "ds_write_b16_d16_hi" if el & 1 else "ds_write_b16"
            e(f"{op} v9, v{r} offset:{(128*j + el)*LNS}")
    e("v_lshrrev_b32 v10, 1, v0")
    e("v_and_b32 v11, 1, v0")
    e(f"v_mul_u32_u24 v12, {LNS}, v10")
    e("v_lshl_add_u32 v12, v11, 4, v12")
    e("v_lshlrev_b32 v13, 4, v0")
    e("s_mul_i32 s6, s2, 20480")
    e("s_add_u32 s6, s6, %d" % WS_XNT)
    e("s_waitcnt lgkmcnt(0)")
    e("s_barrier")
    tl(3)
    for j in range(5):
        e(f"ds_read2_b32 v[{40+4*j}:{41+4*j}], v12 offset0:{(128*j*LNS)//4 % 256} offset1:{(128*j*LNS)//4 % 256 + 1}")
        e(f"ds_read2_b32 v[{42+4*j}:{43+4*j}], v12 offset0:{(128*j*LNS)//4 % 256 + 2} offset1:{(128*j*LNS)//4 % 256 + 3}")
        if j < 4:
            nxt = (128*(j+1)*LNS)//4 // 256 - (128*j*LNS)//4 // 256
            e(f"v_add_u32 v12, {nxt*1024}, v12")
    for j in range(5):
        e(f"s_waitcnt lgkmcnt({2*(4-j)})")
        if "xnt" not in SKIP: e(f"buffer_store_dwordx4 v[{40+4*j}:{43+4*j}], v13, s[28:31], s6 offen")
        if j < 4: e("s_add_u32 s6, s6, %d" % (128*32))
    tl(5)
    if TL: e("s_waitcnt vmcnt(0)")
    tl_end(0)
    e("s_endpgm")
    lab("prep_wt")
    if W1D: gen_wt(KG_WGS + LN_WGS, 270, 540, "prep_end", 0, DLYW)
    else: gen_wt(KG_WGS + LN_WGS, 0, 270 if W2MID else 0, "prep_end", 0, DLYW)
    lab("prep_end")
    e("s_endpgm")
    kernel_desc("prep_kernel", 160 if EMU & 4 else 128)

G1_WGS = 256
CV_WGS = int(os.environ.get("NCV", 256)) if CVL else 640
W2_WGS = 68 if W2MID else 0
MID_WGS = G1_WGS + CV_WGS + W2_WGS
CS = 4160
def CB(c): return c*CS + (32 if c >= 4 else 0)
UB = CB(7) + CS - 80
G1_NS, G1_BD = int(os.environ.get('G1NS', 5)), int(os.environ.get('G1BD', 4))
MID_LDS = max(40960, 7168*G1_NS)

def mish_pairs(acc0, acc1, b0, b1r, dst, t):
    e(f"v_cvt_pk_bf16_f32 v{t}, v{acc0}, v{acc1}")
    e(f"v_lshlrev_b32 v{t+1}, 16, v{t}")
    e(f"v_and_b32 v{t+2}, 0xffff0000, v{t}")
    e(f"v_add_f32 v{t+1}, v{t+1}, v{b0}")
    e(f"v_add_f32 v{t+2}, v{t+2}, v{b1r}")
    e(f"v_cvt_pk_bf16_f32 v{t}, v{t+1}, v{t+2}")
    e(f"v_lshlrev_b32 v{t+1}, 16, v{t}")
    e(f"v_and_b32 v{t+2}, 0xffff0000, v{t}")
    if MISH2:
        e(f"v_mul_f32 v{t+3}, {LOG2E:#x}, v{t+1}")
        e(f"v_mul_f32 v{t+4}, {LOG2E:#x}, v{t+2}")
        e(f"v_exp_f32 v{t+3}, v{t+3}")
        e(f"v_exp_f32 v{t+4}, v{t+4}")
        e(f"s_nop 0")
        e(f"v_add_f32 v{t+3}, 1.0, v{t+3}")
        e(f"v_add_f32 v{t+4}, 1.0, v{t+4}")
        e(f"v_fmaak_f32 v{t+3}, v{t+3}, v{t+3}, 0x3f800000")
        e(f"v_fmaak_f32 v{t+4}, v{t+4}, v{t+4}, 0x3f800000")
        e(f"v_rcp_f32 v{t+3}, v{t+3}")
        e(f"v_rcp_f32 v{t+4}, v{t+4}")
        e(f"s_nop 0")
        e(f"v_fmaak_f32 v{t+3}, -2.0, v{t+3}, 0x3f800000")
        e(f"v_fmaak_f32 v{t+4}, -2.0, v{t+4}, 0x3f800000")
        e(f"v_mul_f32 v{t+1}, v{t+1}, v{t+3}")
        e(f"v_mul_f32 v{t+2}, v{t+2}, v{t+4}")
    else:
        e(f"v_min_f32 v{t+3}, 0x41a00000, v{t+1}")
        e(f"v_min_f32 v{t+4}, 0x41a00000, v{t+2}")
        e(f"v_mul_f32 v{t+3}, {LOG2E:#x}, v{t+3}")
        e(f"v_mul_f32 v{t+4}, {LOG2E:#x}, v{t+4}")
        e(f"v_exp_f32 v{t+3}, v{t+3}")
        e(f"v_exp_f32 v{t+4}, v{t+4}")
        e(f"s_nop 0")
        e(f"v_add_f32 v{t}, 2.0, v{t+3}")
        e(f"v_add_f32 v{t+5}, 2.0, v{t+4}")
        e(f"v_mul_f32 v{t+3}, v{t+3}, v{t}")
        e(f"v_mul_f32 v{t+4}, v{t+4}, v{t+5}")
        e(f"v_add_f32 v{t}, 2.0, v{t+3}")
        e(f"v_add_f32 v{t+5}, 2.0, v{t+4}")
        e(f"v_rcp_f32 v{t}, v{t}")
        e(f"v_rcp_f32 v{t+5}, v{t+5}")
        e(f"v_mul_f32 v{t+1}, v{t+1}, v{t+3}")
        e(f"v_mul_f32 v{t+2}, v{t+2}, v{t+4}")
        e(f"v_mul_f32 v{t+1}, v{t+1}, v{t}")
        e(f"v_mul_f32 v{t+2}, v{t+2}, v{t+5}")
    e(f"v_cvt_pk_bf16_f32 v{dst}, v{t+1}, v{t+2}")

def mish_quad(ac, T, dst):
    H = [T+4, T+8]; E = [T+6, T+10]; P = [T+12, T+13]
    pr = lambda r: f"v[{r}:{r+1}]"
    for q in range(2): e(f"v_cvt_pk_bf16_f32 v{P[q]}, v{ac+2*q}, v{ac+2*q+1}")
    for q in range(2):
        e(f"v_lshlrev_b32 v{H[q]}, 16, v{P[q]}")
        e(f"v_and_b32 v{H[q]+1}, 0xffff0000, v{P[q]}")
    for q in range(2): e(f"v_pk_add_f32 {pr(H[q])}, {pr(H[q])}, {pr(T+2*q)}")
    for q in range(2): e(f"v_cvt_pk_bf16_f32 v{P[q]}, v{H[q]}, v{H[q]+1}")
    for q in range(2):
        e(f"v_lshlrev_b32 v{H[q]}, 16, v{P[q]}")
        e(f"v_and_b32 v{H[q]+1}, 0xffff0000, v{P[q]}")
    for q in range(2): e(f"v_pk_mul_f32 {pr(E[q])}, {pr(H[q])}, s[46:47]")
    for q in range(2):
        e(f"v_exp_f32 v{E[q]}, v{E[q]}")
        e(f"v_exp_f32 v{E[q]+1}, v{E[q]+1}")
    for q in range(2): e(f"v_pk_add_f32 {pr(E[q])}, {pr(E[q])}, v[40:41]")
    for q in range(2): e(f"v_pk_fma_f32 {pr(E[q])}, {pr(E[q])}, {pr(E[q])}, v[40:41]")
    for q in range(2):
        e(f"v_rcp_f32 v{E[q]}, v{E[q]}")
        e(f"v_rcp_f32 v{E[q]+1}, v{E[q]+1}")
    for q in range(2): e(f"v_pk_fma_f32 {pr(E[q])}, {pr(E[q])}, v[42:43], v[40:41]")
    for q in range(2): e(f"v_pk_mul_f32 {pr(H[q])}, {pr(H[q])}, {pr(E[q])}")
    for q in range(2): e(f"v_cvt_pk_bf16_f32 v{dst+q}, v{H[q]}, v{H[q]+1}")

def gemm_loop(nA, nsteps, KS, NS, frag_reg, acc_reg, voff, srdws, sA0, sB0, stride, spiece, vlds_r_b, vlds_r_lane):
    nR = nA + 4
    npieces = nR * KS
    npw = (npieces + 3) // 4
    SZ = npieces * 1024
    nchunks = nsteps // KS
    assert nsteps % KS == 0
    e(f"s_sub_u32 s{sB0}, s{sB0}, {nA*stride}")
    for i in range(npw):
        g, l = spiece + 2*i, spiece + 2*i + 1
        e(f"s_add_u32 s{l}, s3, {4*i}")
        e(f"s_min_u32 s{l}, s{l}, {npieces-1}")
        sh = {1: 0, 2: 1, 4: 2}[KS]
        e(f"s_lshr_b32 s{g}, s{l}, {sh}")
        e(f"s_cmp_lt_u32 s{g}, {nA}")
        e(f"s_cselect_b32 s6, s{sA0}, s{sB0}")
        e(f"s_mul_i32 s{g}, s{g}, {stride}")
        e(f"s_add_u32 s{g}, s{g}, s6")
        e(f"s_and_b32 s6, s{l}, {KS-1}")
        e(f"s_lshl_b32 s6, s6, 10")
        e(f"s_add_u32 s{g}, s{g}, s6")
        e(f"s_lshl_b32 s{l}, s{l}, 10")
    def dma(c):
        slot = c % NS
        for i in range(npw):
            e(f"s_add_u32 m0, s{spiece+2*i+1}, {slot*SZ}")
            e("s_nop 0")
            e(f"buffer_load_dwordx4 v{voff}, s[{srdws}:{srdws+3}], s{spiece+2*i} offen lds")
        e(f"v_add_u32 v{voff}, {KS*1024}, v{voff}")
    per = nA + 1
    HALF = 2*SZ
    e(f"v_add_u32 v12, {HALF}, v{vlds_r_b}")
    e(f"v_add_u32 v13, {HALF}, v{vlds_r_lane}")
    e(f"v_add_u32 v14, {2*HALF}, v{vlds_r_b}")
    e(f"v_add_u32 v15, {2*HALF}, v{vlds_r_lane}")
    def reads(slot, q):
        fr = frag_reg + 4*per*q
        vb, vl, so = [(vlds_r_b, vlds_r_lane, slot*SZ), (12, 13, slot*SZ - HALF), (14, 15, slot*SZ - 2*HALF)][slot//2]
        e(f"ds_read_b128 v[{fr}:{fr+3}], v{vb} offset:{so + q*1024}")
        for a in range(nA):
            e(f"ds_read_b128 v[{fr+4+4*a}:{fr+7+4*a}], v{vl} offset:{so + a*KS*1024 + q*1024}")
    def mfmas(q):
        fr = frag_reg + 4*per*q
        for a in range(nA):
            ac = acc_reg + 16*a
            e(f"v_mfma_f32_32x32x16_bf16 v[{ac}:{ac+15}], v[{fr+4+4*a}:{fr+7+4*a}], v[{fr}:{fr+3}], v[{ac}:{ac+15}]")
    for c in range(min(NS-1, nchunks)):
        dma(c)
    for c in range(nchunks):
        inflight = min(NS-2, nchunks-1-c)
        e(f"s_waitcnt vmcnt({inflight*npw})")
        e("s_barrier")
        if nA == 2 and c == 0: stamp(2)
        if nA == 2 and c == 1: stamp(3)
        slot = c % NS
        if "rd" not in SKIP:
            for q in range(KS):
                reads(slot, q)
        if c + NS - 1 < nchunks and "dma" not in SKIP:
            dma(c + NS - 1)
        for q in range(KS):
            e(f"s_waitcnt lgkmcnt({(KS-1-q)*per})")
            if "mf" not in SKIP: mfmas(q)


UB2 = CB(7) + CS
HS = 2432
def gen_conv2():
    if "cv" in SKIP: e("s_endpgm")
    if PRIO & 8: e("s_setprio 3")
    if CP2:
        e("s_cmp_lt_u32 s2, %d" % CP2)
        e("s_cbranch_scc1 cv_np")
        e("s_setprio 3")
        lab("cv_np")
    srd(8, 60, D*2)
    def dmap(si):
        e(f"s_and_b32 s5, s{si}, 7")
        e("s_lshl_b32 s5, s5, 2")
        e(f"s_bfe_u32 s6, s{si}, 0x20003")
        e("s_or_b32 s5, s5, s6")
        e(f"s_andn2_b32 s4, s{si}, 31")
        e("s_or_b32 s4, s4, s5")
    def cvload():
        dmap(95)
        e("s_lshl_b32 s5, s4, 1")
        e("v_mov_b32 v144, s5")
        e("buffer_load_ushort v128, v144, s[8:11], 0 offen")
        e("s_lshl_b32 s5, s4, 5")
        e("s_add_u32 s5, s5, %d" % WS_XNT)
        e("buffer_load_dwordx4 v[132:135], v145, s[28:31], s5 offen")
        e("s_mul_i32 s6, s4, %d" % KR_STRIDE)
        e("s_add_u32 s6, s6, %d" % WS_KR)
        e("buffer_load_dwordx4 v[136:139], v146, s[28:31], s6 offen")
        e("buffer_load_dwordx4 v[140:143], v146, s[28:31], s6 offen offset:16")
    if CVL:
        e("s_sub_u32 s95, s2, %d" % G1_WGS)
        e("s_mov_b32 s89, -1")
        e("v_lshrrev_b32 v145, 1, v0")
        e("v_mul_u32_u24 v145, 20480, v145")
        e("v_and_b32 v146, 1, v0")
        e("v_lshl_add_u32 v145, v146, 4, v145")
        e("v_lshlrev_b32 v146, 4, v0")
        if DLYC: e(f"s_sleep {DLYC}")
        cvload()
        e("s_waitcnt vmcnt(0)")
        lab("cv_loop")
        e("s_waitcnt vmcnt(2)")
        e("v_mov_b32 v1, v128")
        for r in range(12): e(f"v_mov_b32 v{8+r}, v{132+r}")
        e("s_mov_b32 s93, s95")
        e("s_add_u32 s95, s95, %d" % CV_WGS)
        e("s_cmp_ge_u32 s95, 640")
        e("s_cbranch_scc1 cv_nl")
        cvload()
        lab("cv_nl")
        dmap(93)
        e("s_mov_b32 s93, s4")
        e("v_lshlrev_b32 v4, 4, v0")
    else:
        e("s_sub_u32 s4, s2, %d" % G1_WGS)
        e("s_and_b32 s5, s4, 7")
        e("s_lshl_b32 s5, s5, 2")
        e("s_bfe_u32 s6, s4, 0x20003")
        e("s_or_b32 s5, s5, s6")
        e("s_andn2_b32 s4, s4, 31")
        e("s_or_b32 s4, s4, s5")
        if FUSE: e("s_mov_b32 s93, s4")
        e("s_lshl_b32 s5, s4, 1")
        e("v_mov_b32 v3, s5")
        if DLYC: e(f"s_sleep {DLYC}")
        e("buffer_load_ushort v1, v3, s[8:11], 0 offen")
        e("s_lshl_b32 s5, s4, 5")
        e("s_add_u32 s5, s5, %d" % WS_XNT)
        e("v_lshrrev_b32 v4, 1, v0")
        e("v_mul_u32_u24 v4, 20480, v4")
        e("v_and_b32 v5, 1, v0")
        e("v_lshl_add_u32 v4, v5, 4, v4")
        e("buffer_load_dwordx4 v[8:11], v4, s[28:31], s5 offen")
        e("v_lshlrev_b32 v4, 4, v0")
        e("s_mul_i32 s6, s4, %d" % KR_STRIDE)
        e("s_add_u32 s6, s6, %d" % WS_KR)
        e("buffer_load_dwordx4 v[12:15], v4, s[28:31], s6 offen")
        e("buffer_load_dwordx4 v[16:19], v4, s[28:31], s6 offen offset:16")
    if not CV3:
        e("v_min_u32 v5, 3, v0")
        e("v_lshlrev_b32 v5, 4, v5")
        e("v_add_u32 v5, 4096, v5")
        e("buffer_load_dwordx4 v[20:23], v5, s[28:31], s6 offen")
        e("buffer_load_dwordx4 v[24:27], v5, s[28:31], s6 offen offset:16")
    for k in range(4):
        e(f"v_mov_b32 v{28+k}, 0")
    e("v_min_u32 v6, 31, v0")
    e("v_lshrrev_b32 v7, 4, v6")
    e("v_and_b32 v6, 15, v6")
    e("v_lshlrev_b32 v6, 4, v6")
    e(f"v_mad_u32_u24 v6, v7, {HS}, v6") if False else (e(f"v_mul_u32_u24 v7, {HS}, v7"), e("v_add_u32 v6, v6, v7"))
    if CV3:
        e("s_cmp_lg_u32 s3, 0")
        e("s_cbranch_scc1 cv_nz")
        e(f"v_add_u32 v6, {UB2}, v6")
        e("v_subrev_u32 v7, 32, v0")
        e("v_min_u32 v7, 7, v7")
        e("v_lshrrev_b32 v5, 2, v7")
        e(f"v_mul_u32_u24 v7, {CS}, v7")
        e("v_lshl_add_u32 v7, v5, 5, v7")
        e("v_add_u32 v7, 4096, v7")
        e("v_cmp_gt_u32 vcc, 32, v0")
        e("s_nop 1")
        e("v_cndmask_b32 v6, v7, v6, vcc")
        e("s_mov_b32 exec_hi, 0xff")
        e("ds_write_b128 v6, v[28:31]")
        e("s_mov_b32 exec_hi, -1")
        lab("cv_nz")
    else:
        e(f"ds_write_b128 v6, v[28:31] offset:{UB2}")
    e("v_lshrrev_b32 v6, 1, v0")
    e("v_lshlrev_b32 v6, 4, v6")
    e("v_and_b32 v7, 1, v0")
    e(f"v_mul_u32_u24 v7, {HS}, v7")
    e("v_add_u32 v6, v6, v7")
    if not CVL: e("s_waitcnt vmcnt(%d)" % (2 if CV3 else 4))
    e(f"ds_write_b128 v6, v[8:11] offset:{UB2 + 256}")
    def copies(w, vaddr):
        for c in range(8):
            if c % 2 == 0:
                e(f"ds_write_b128 v{vaddr}, v[{w+c//2}:{w+c//2+3}] offset:{CB(c)}") if (w + c//2) % 2 == 0 else None
                if (w + c//2) % 2:
                    for j in range(4):
                        e(f"v_mov_b32 v{32+j}, v{w+c//2+j}")
                    e(f"ds_write_b128 v{vaddr}, v[32:35] offset:{CB(c)}")
            else:
                for j in range(4):
                    e(f"v_alignbit_b32 v{36+j}, v{w+(c+1)//2+j}, v{w+(c-1)//2+j}, 16")
                e(f"ds_write_b128 v{vaddr}, v[36:39] offset:{CB(c)}")
    if not CVL: e("s_waitcnt vmcnt(%d)" % (0 if CV3 else 2))
    tl(1)
    copies(12, 4)
    if not CV3:
        e("s_waitcnt vmcnt(0)")
        copies(20, 5)
    e("v_and_b32 v3, 15, v2")
    e("v_lshrrev_b32 v4, 4, v2")
    e("v_sub_u32 v5, 7, v3")
    e("v_and_b32 v5, 7, v5")
    e("v_sub_u32 v6, 2031, v3")
    e("v_lshl_add_u32 v6, v4, 3, v6")
    e("v_sub_u32 v6, v6, v5")
    e("v_mul_u32_u24 v7, %d, v5" % CS)
    e("v_lshrrev_b32 v8, 2, v5")
    e("v_lshl_add_u32 v7, v8, 5, v7")
    e("v_lshl_add_u32 v6, v6, 1, v7")
    e("s_lshl_b32 s5, s3, 7")
    e(f"s_add_u32 s5, s5, {64 + 3584}")
    e("v_subrev_u32 v8, s5, v6")
    e("v_and_b32 v5, 1, v4")
    e("v_lshrrev_b32 v6, 1, v4")
    e(f"v_mul_u32_u24 v7, {HS}, v5")
    e("v_add_u32 v9, v3, v6")
    e("v_lshl_add_u32 v9, v9, 4, v7")
    e("s_lshl_b32 s5, s3, 6")
    e(f"s_sub_u32 s5, {UB2 + 16*15 - 32}, s5")
    e("v_add_u32 v9, s5, v9")
    e(f"v_mul_u32_u24 v11, {HS}, v6")
    e("v_lshl_add_u32 v11, v3, 4, v11")
    e("v_lshl_add_u32 v11, v5, 3, v11")
    e("s_lshl_b32 s5, s3, 9")
    e("v_add_u32 v11, s5, v11")
    e("v_lshlrev_b32 v12, 5, v3")
    e("v_lshl_add_u32 v12, v4, 3, v12")
    e("v_lshlrev_b32 v10, 4, v2")
    e("s_lshl_b32 s5, s3, 13")
    e("v_add_u32 v13, s5, v10")
    e("s_lshl_b32 s5, s3, 10")
    e("v_add_u32 v10, s5, v10")
    for r in range(16, 48):
        e(f"v_mov_b32 v{r}, 0")
    e("s_waitcnt lgkmcnt(0)")
    tl(2)
    if CVL:
        e("s_waitcnt vmcnt(4)")
        e("s_cmp_lt_u32 s95, 640")
        e("s_cbranch_scc1 cv_b1")
        e("s_waitcnt vmcnt(0)")
        lab("cv_b1")
    e("s_barrier")
    if CVL:
        e("s_cmp_lg_u32 s3, 0")
        e("s_cbranch_scc1 cv_s1")
        e("s_cmp_eq_u32 s89, -1")
        e("s_cbranch_scc1 cv_s1")
        e("s_mov_b64 exec, 1")
        e("v_mov_b32 v147, 1")
        e("v_mov_b32 v148, 0")
        e("buffer_atomic_add v147, v148, s[28:31], s89 offen sc1")
        e("s_mov_b64 exec, -1")
        lab("cv_s1")
    tl(3)
    free = list(range(48, 128, 4))
    loc = {}
    pend = []
    order = [("A",0),("B",7),("B",0),("A",7),("A",1),("B",6),("B",1),("A",6),("A",2),("B",5),("B",2),("A",5),("A",3),("B",4),("B",3),("A",4)]
    todo = [(st,) + o for st in range(2) for o in order]
    def rd(n):
        for _ in range(n):
            if not todo or not free or len(pend) >= 15: return
            key = todo.pop(0); r = free.pop(0); loc[key] = r
            st, ab, i = key
            if ab == "A": e(f"ds_read_b128 v[{r}:{r+3}], v8 offset:{512*(7-i) + 64*(1-st)}")
            else: e(f"ds_read_b128 v[{r}:{r+3}], v9 offset:{256*i + 32*(1-st)}")
            pend.append(key)
    def need(keys):
        idx = [pend.index(k) for k in keys if k in pend]
        if idx:
            last = max(idx)
            e(f"s_waitcnt lgkmcnt({len(pend) - 1 - last})")
            del pend[:last+1]
    groups = []
    for s_ in (7, 6, 5, 4, 3, 2, 1, 0):
        n = min(s_, 7 - s_)
        g = [(s_, m) for m in range(n + 1)] + [(j, s_) for j in range(min(s_ - 1, 7 - s_) + 1)]
        groups.append((s_, g))
    assert sum(len(g) for _, g in groups) == 36
    rd(20)
    for st in range(2):
        for s_, g in groups:
            need([(st, "B", j) for j, m in g] + [(st, "A", m) for j, m in g])
            for j, m in g:
                ac = 16 + 4*(j + m); a = loc[(st, "A", m)]; b = loc[(st, "B", j)]
                e(f"v_mfma_f32_16x16x32_bf16 v[{ac}:{ac+3}], v[{a}:{a+3}], v[{b}:{b+3}], v[{ac}:{ac+3}]")
            free.append(loc[(st, "A", s_)]); free.append(loc[(st, "B", s_)])
            rd(8)
    assert not todo and not pend
    tl(4)
    e("s_nop 15")
    e("s_barrier")
    for t in range(8):
        if CV3 & 2 and t % 2 == 0:
            e(f"s_cmp_eq_u32 s3, {t//2}")
            e(f"s_cbranch_scc1 cv_sk{t//2}")
        e(f"ds_write_b128 v10, v[{16+4*t}:{19+4*t}] offset:{4096*t}")
        if CV3 & 2 and t % 2 == 1:
            e(f"s_branch cv_nx{t//2}")
            lab(f"cv_sk{t//2}")
            for tt in range(2):
                for r in range(4):
                    e(f"v_mov_b32 v{48+16*tt+r}, v{16+4*(t-1+tt)+r}")
            lab(f"cv_nx{t//2}")
    if CV3 & 2:
        for i in range(1, 4):
            e(f"s_add_u32 s5, s3, {i}")
            e("s_and_b32 s5, s5, 3")
            e("s_lshl_b32 s5, s5, 10")
            e(f"v_add_u32 v{4+i}, s5, v13")
    for tt in range(2):
        e(f"ds_read_b64 v[{80+2*tt}:{81+2*tt}], v11 offset:{UB2 + 256 + 256*tt}")
    e("s_lshl_b32 s5, s4, 12")
    e("s_lshl_b32 s6, s3, 10")
    e("s_add_u32 s5, s5, s6")
    e("s_add_u32 s5, s5, %d" % WS_AT)
    e("v_lshlrev_b32 v1, 16, v1")
    e("s_waitcnt lgkmcnt(0)")
    e("s_barrier")
    for i in range(8):
        if CV3 & 2:
            if i % 4: e(f"ds_read_b128 v[{48+4*i}:{51+4*i}], v{4+i%4} offset:{4096*(i//4)}")
        else:
            e(f"ds_read_b128 v[{48+4*i}:{51+4*i}], v13 offset:{1024*i}")
    for tt in range(2):
        for p_ in range(2):
            u = 80 + 2*tt + p_
            e(f"v_lshlrev_b32 v84, 16, v{u}")
            e(f"v_and_b32 v85, 0xffff0000, v{u}")
            e(f"v_mul_f32 v84, v84, v1")
            e(f"v_mul_f32 v85, v85, v1")
            e(f"v_cvt_pk_bf16_f32 v84, v84, v85")
            e(f"v_lshlrev_b32 v{88+4*tt+2*p_}, 16, v84")
            e(f"v_and_b32 v{89+4*tt+2*p_}, 0xffff0000, v84")
    for tt in range(2):
        e(f"s_waitcnt lgkmcnt({(3 - 3*tt) if CV3 & 2 else (4 - 4*tt)})")
        b0 = 48 + 16*tt
        for r in range(4):
            e(f"v_add_f32 v{b0+r}, v{b0+r}, v{b0+4+r}")
            e(f"v_add_f32 v{b0+8+r}, v{b0+8+r}, v{b0+12+r}")
        for r in range(4):
            e(f"v_add_f32 v{b0+r}, v{b0+r}, v{b0+8+r}")
        for p_ in range(2):
            e(f"v_cvt_pk_bf16_f32 v84, v{b0+2*p_}, v{b0+2*p_+1}")
            e(f"v_lshlrev_b32 v85, 16, v84")
            e(f"v_and_b32 v86, 0xffff0000, v84")
            e(f"v_add_f32 v85, v85, v{88+4*tt+2*p_}")
            e(f"v_add_f32 v86, v86, v{89+4*tt+2*p_}")
            e(f"v_cvt_pk_bf16_f32 v{96+2*tt+p_}, v85, v86")
        e(f"buffer_store_dwordx2 v[{96+2*tt}:{97+2*tt}], v12, s[28:31], s5 offen offset:{512*tt}")
    if FUSE:
        e("s_mul_i32 s7, s93, 205")
        e("s_lshr_b32 s7, s7, 14")
        e("s_add_u32 s7, s7, 16")
        if CVL:
            e("s_lshl_b32 s89, s7, 6")
            e("s_add_u32 s89, s89, %d" % WS_CNT)
            e("s_cmp_ge_u32 s95, 640")
            e("s_cbranch_scc1 cv_last")
            e("s_barrier")
            e("s_branch cv_loop")
            lab("cv_last")
        if MB2:
            e("s_sub_u32 s7, s7, 16")
            e("s_mul_i32 s6, s7, 80")
            e("s_sub_u32 s6, s93, s6")
            e("s_lshl_b32 s6, s6, 2")
            e("s_lshl_b32 s7, s7, 9")
            e("s_add_u32 s6, s6, s7")
            e("s_add_u32 s6, s6, %d" % WS_MB2)
            e("s_waitcnt vmcnt(0)")
            e("s_barrier")
            e("s_cmp_lg_u32 s3, 0")
            e("s_cbranch_scc1 cv_sig")
            e("s_mov_b32 exec_hi, 0")
            e("v_mov_b32 v12, 1")
            e("v_lshlrev_b32 v13, 12, v2")
            e("buffer_store_dword v12, v13, s[28:31], s6 offen")
            lab("cv_sig")
        else: signal(7, "cv_sig")
    tl(5)
    if TL: e("s_waitcnt vmcnt(0)")
    tl_end(1)

def gen_mid():
    kernel_begin("mid_kernel")
    e("s_cmp_ge_u32 s2, %d" % (MID_WGS - SPL))
    e("s_cbranch_scc1 mid_end")
    if EMU & 2:
        e("s_cmp_lt_u32 s2, 256")
        e("s_cbranch_scc1 mid_end")
    lab("mid_body")
    if FUSE: e("s_mov_b32 s90, s2")
    tl_begin()
    e("s_load_dwordx2 s[56:57], s[0:1], 104")
    e("s_load_dwordx2 s[58:59], s[0:1], 72")
    e("s_load_dwordx2 s[60:61], s[0:1], 48")
    if W1D: e("s_load_dwordx2 s[62:63], s[0:1], 64")
    e("v_lshrrev_b32 v1, 6, v0")
    e("v_and_b32 v2, 63, v0")
    e("s_nop 0")
    e("v_readfirstlane_b32 s3, v1")
    e("s_waitcnt lgkmcnt(0)")
    srd(28, 56, WS_SIZE)
    if W2MID:
        e("s_cmp_ge_u32 s2, %d" % (G1_WGS + CV_WGS))
        e("s_cbranch_scc1 mid_wt")
    e("s_cmp_ge_u32 s2, %d" % G1_WGS)
    e("s_cbranch_scc1 mid_conv")
    if "g1" in SKIP: e("s_endpgm")
    if PRIO & 4: e("s_setprio 3")
    srd(8, 58, F*2)
    if W1D: srd(12, 62, D*F*2)
    tl(1)
    if not EMU & 1: claim_tile(0, 32, 7168*G1_NS, "mcl")
    elif SCL & 1: static_claim()
    if FUSE and not SPL: e("s_mov_b32 s90, s2")
    tl(2)
    if G1MAP == 0:
        e("s_lshr_b32 s5, s2, 4")
        e("s_and_b32 s4, s2, 15")
    else:
        e("s_lshr_b32 s5, s2, 6")
        e("s_lshl_b32 s5, s5, 2")
        e("s_bfe_u32 s6, s2, 0x20003")
        e("s_add_u32 s5, s5, s6")
        e("s_bfe_u32 s4, s2, 0x10005")
        e("s_lshl_b32 s4, s4, 3")
        e("s_and_b32 s6, s2, 7")
        e("s_add_u32 s4, s4, s6")
    if MBX: e("s_lshl_b32 s88, s4, 2")
    e("s_mul_i32 s6, s4, 7")
    e("s_sub_u32 s7, s4, 12")
    e("s_cmp_lt_u32 s4, 12")
    e("s_cselect_b32 s7, 0, s7")
    e("s_cselect_b32 s26, 7, 6")
    e("s_sub_u32 s4, s6, s7")
    e("v_and_b32 v3, 15, v2")
    e("v_lshrrev_b32 v4, 4, v2")
    e("v_lshrrev_b32 v5, 1, v4")
    e("v_and_b32 v6, 1, v4")
    e("v_lshlrev_b32 v7, 4, v3")
    e("v_lshl_add_u32 v7, v5, 10, v7")
    e("v_lshl_add_u32 v7, v6, 9, v7")
    e("v_mov_b32 v8, v7")
    for k in range(2):
        e(f"s_add_u32 s6, s3, {4*k}")
        e("s_min_u32 s6, s6, 6")
        e(f"s_lshl_b32 s{42+k}, s6, 10")
        if W1D:
            vd = 7 if k == 0 else 11
            e("s_lshl_b32 s6, s6, 6")
            e("v_add_u32 v12, s6, v2")
            e("v_mul_u32_u24 v13, 4682, v12")
            e("v_lshrrev_b32 v13, 16, v13")
            e("v_mul_u32_u24 v14, 14, v13")
            e("v_sub_u32 v12, v12, v14")
            e("v_and_b32 v14, 0x13, v13")
            e("v_bfe_u32 v15, v13, 2, 1")
            e("v_lshl_or_b32 v14, v15, 3, v14")
            e("v_bfe_u32 v15, v13, 3, 1")
            e("v_lshl_or_b32 v14, v15, 2, v14")
            e("v_mul_u32_u24 v14, 3456, v14")
            e(f"v_lshl_add_u32 v{vd}, v12, 4, v14")
            if k == 1: e("s_lshl_b32 s40, s4, 5")
            continue
        e("s_add_u32 s6, s6, s4")
        e("s_min_u32 s6, s6, 107")
        e(f"s_lshr_b32 s{40+k}, s6, 1")
        e(f"s_mul_i32 s{40+k}, s{40+k}, {40*1024}")
        e("s_and_b32 s6, s6, 1")
        e("s_lshl_b32 s6, s6, 8")
        e(f"s_add_u32 s{40+k}, s{40+k}, s6")
        e(f"s_add_u32 s{40+k}, s{40+k}, {WS_W1F}")
    e("s_lshl_b32 s6, s5, 2")
    e("s_add_u32 s27, s6, s3")
    e("s_mul_i32 s44, s27, %d" % (40*1024))
    e("s_add_u32 s44, s44, %d" % WS_XNF)
    if "g1y" in SKIP:
        e("s_xor_b32 s45, s27, 1")
        e("s_mul_i32 s45, s45, %d" % (40*1024))
    e("v_lshlrev_b32 v9, 4, v2")
    if W1D:
        e("v_bfe_u32 v12, v2, 2, 3")
        e("v_lshl_add_u32 v12, v5, 4, v12")
        e("v_mul_u32_u24 v12, 224, v12")
        e("v_and_b32 v9, 3, v2")
        e("v_lshl_add_u32 v9, v9, 3, v12")
    NS, BD, NSTEP = G1_NS, G1_BD, 20
    NB = int(os.environ.get("G1NB", 6))
    AF, BF, ACC, BI = 16, 16 + 4*NB, 16 + 4*NB + 8*G1_BD, 44
    assert ACC + 56 <= 128
    pend = []
    def dma(st):
        for k in range(2):
            e(f"s_add_u32 m0, s{42+k}, {(st % NS)*7168}")
            e("s_nop 0")
            if W1D: e(f"buffer_load_dwordx4 v{7 if k == 0 else 11}, s[12:15], s40 offen lds")
            else: e(f"buffer_load_dwordx4 v7, s[28:31], s{40+k} offen lds")
            pend.append(("a", st))
        if W1D: e("s_add_u32 s40, s40, %d" % (32*3456))
        else: e("v_add_u32 v7, 2048, v7")
    def bld(st):
        r = BF + 8*(st % BD)
        e(f"buffer_load_dwordx4 v[{r}:{r+3}], v8, s[28:31], s44 offen")
        e(f"buffer_load_dwordx4 v[{r+4}:{r+7}], v8, s[28:31], s44 offen offset:256")
        pend.append(("b", st)); pend.append(("b", st))
        if "g1y" in SKIP:
            e(f"buffer_load_dwordx4 v[{r}:{r+3}], v8, s[28:31], s45 offen")
            e(f"buffer_load_dwordx4 v[{r+4}:{r+7}], v8, s[28:31], s45 offen offset:256")
            pend.append(("b", st)); pend.append(("b", st))
        e("v_add_u32 v8, 2048, v8")
    def wait_for(*tags):
        idx = [i for i, p in enumerate(pend) if p in tags]
        if not idx: return
        last = max(idx)
        e(f"s_waitcnt vmcnt({len(pend) - 1 - last})")
        del pend[:last+1]
    def rdA(g):
        st, t = divmod(g, 7)
        if st >= NSTEP: return
        r = AF + 4*(g % NB)
        if W1D:
            e(f"ds_read_b64_tr_b16 v[{r}:{r+1}], v9 offset:{(st % NS)*7168 + 32*t}")
            e(f"ds_read_b64_tr_b16 v[{r+2}:{r+3}], v9 offset:{(st % NS)*7168 + 32*t + 1792}")
        else: e(f"ds_read_b128 v[{r}:{r+3}], v9 offset:{(st % NS)*7168 + 1024*t}")
    for st in range(max(NS-1, BD)):
        if st < NS-1: dma(st)
        if st < BD: bld(st)
    e("s_lshl_b32 s6, s4, 5")
    e("v_lshl_add_u32 v10, v4, 3, s6")
    for r in range(ACC, ACC+56):
        e(f"v_mov_b32 v{r}, 0")
    wait_for(("a", 0))
    e("s_barrier")
    tl(3)
    for t in range(NB): rdA(t)
    for st in range(NSTEP):
        if st + 1 < NSTEP:
            wait_for(("a", st+1), ("b", st))
            e("s_barrier")
            if st - 1 + NS < NSTEP: dma(st - 1 + NS)
        else:
            wait_for(("b", st))
        rb = BF + 8*(st % BD)
        for t in range(7):
            g = 7*st + t
            e(f"s_waitcnt lgkmcnt({(2 if W1D else 1)*min(NB - 1, 7*NSTEP - 1 - g)})")
            ra_ = AF + 4*(g % NB)
            for b_ in range(2):
                ac = ACC + 4*(2*t + b_)
                e(f"v_mfma_f32_16x16x32_bf16 v[{ac}:{ac+3}], v[{ra_}:{ra_+3}], v[{rb+4*b_}:{rb+4*b_+3}], v[{ac}:{ac+3}]")
            rdA(g + NB)
        if st + BD < NSTEP: bld(st + BD)
        if st == NSTEP - 2:
            assert BD >= 3
            free = [BF + 8*((NSTEP-3) % BD), BF + 8*((NSTEP-2) % BD)]
            BIr = [free[0] + 2*k for k in range(4)] + [free[1] + 2*k for k in range(3)]
            for t in range(7):
                e(f"buffer_load_dwordx2 v[{BIr[t]}:{BIr[t]+1}], v10, s[8:11], 0 offen offset:{32*t}")
                pend.append(("c", 0))
    e("s_nop 7")
    e("s_waitcnt vmcnt(0)")
    tl(4)
    e("s_mul_i32 s6, s27, 108")
    e("s_add_u32 s6, s6, s4")
    e("s_lshl_b32 s6, s6, 10")
    e("s_add_u32 s6, s6, %d" % WS_ACT)
    e("v_lshlrev_b32 v9, 4, v3")
    e("v_lshl_add_u32 v9, v5, 9, v9")
    e("v_lshl_add_u32 v9, v6, 3, v9")
    T = 16
    if MISH2 == 2:
        e(f"s_mov_b32 s46, {LOG2E:#x}")
        e(f"s_mov_b32 s47, {LOG2E:#x}")
        e("v_mov_b32 v40, 1.0"); e("v_mov_b32 v41, 1.0")
        e("v_mov_b32 v42, -2.0"); e("v_mov_b32 v43, -2.0")
    for t in range(7):
        if t == 6:
            e("s_cmp_lt_u32 s26, 7")
            e("s_cbranch_scc1 g1_end")
        r = BIr[t]
        e(f"v_lshlrev_b32 v{T}, 16, v{r}")
        e(f"v_and_b32 v{T+1}, 0xffff0000, v{r}")
        e(f"v_lshlrev_b32 v{T+2}, 16, v{r+1}")
        e(f"v_and_b32 v{T+3}, 0xffff0000, v{r+1}")
        for b_ in range(2):
            ac = ACC + 4*(2*t + b_)
            d0 = T + 16 + 2*((2*t + b_) % 4)
            if MISH2 == 2:
                mish_quad(ac, T, d0)
            else:
                mish_pairs(ac, ac+1, T, T+1, d0, T+4)
                mish_pairs(ac+2, ac+3, T+2, T+3, d0+1, T+10)
            off = (t % 4)*1024 + 256*b_
            e(f"buffer_store_dwordx2 v[{d0}:{d0+1}], v9, s[28:31], s6 offen offset:{off}")
        if t == 3: e("s_add_u32 s6, s6, 4096")
    lab("g1_end")
    tl(5)
    if TL: e("s_waitcnt vmcnt(0)")
    tl_end(1)
    if FUSE and not SPL:
        if MBX:
            e("s_waitcnt vmcnt(0)")
            e("s_barrier")
            e("s_cmp_lg_u32 s3, 0")
            e("s_cbranch_scc1 g1_sig")
            e("s_lshl_b32 s6, s5, %d" % (MBX + 4))
            e("s_add_u32 s6, s6, s88")
            e("s_add_u32 s6, s6, %d" % WS_MB)
            e("s_mov_b64 exec, 0xffff")
            e("v_mov_b32 v12, 1")
            e("v_lshlrev_b32 v13, %d, v2" % MBX)
            e("buffer_store_dword v12, v13, s[28:31], s6 offen")
            e("s_mov_b64 exec, -1")
            lab("g1_sig")
        else: signal(5, "g1_sig")
        e("s_mov_b32 s2, s90")
        e("s_branch fin_body")
    e("s_endpgm")
    lab("mid_conv")
    if CONV2:
        gen_conv2()
    else:
        if "cv" in SKIP: e("s_endpgm")
        if PRIO & 8: e("s_setprio 3")
        srd(8, 60, D*2)
        e("s_sub_u32 s4, s2, %d" % G1_WGS)
        e("s_and_b32 s5, s4, 7")
        e("s_lshl_b32 s5, s5, 2")
        e("s_bfe_u32 s6, s4, 0x20003")
        e("s_or_b32 s5, s5, s6")
        e("s_andn2_b32 s4, s4, 31")
        e("s_or_b32 s4, s4, s5")
        e("s_lshl_b32 s5, s4, 1")
        e("v_mov_b32 v3, s5")
        if DLYC: e(f"s_sleep {DLYC}")
        e("buffer_load_ushort v1, v3, s[8:11], 0 offen")
        e("s_lshl_b32 s5, s4, 5")
        e("s_add_u32 s5, s5, %d" % WS_XNT)
        e("v_lshrrev_b32 v4, 1, v0")
        e("v_mul_u32_u24 v4, 20480, v4")
        e("v_and_b32 v5, 1, v0")
        e("v_lshl_add_u32 v4, v5, 4, v4")
        e("buffer_load_dwordx4 v[8:11], v4, s[28:31], s5 offen")
        e("v_lshlrev_b32 v4, 4, v0")
        e("s_mul_i32 s6, s4, %d" % KR_STRIDE)
        e("s_add_u32 s6, s6, %d" % WS_KR)
        e("buffer_load_dwordx4 v[12:15], v4, s[28:31], s6 offen")
        e("buffer_load_dwordx4 v[16:19], v4, s[28:31], s6 offen offset:16")
        e("v_min_u32 v5, 3, v0")
        e("v_lshlrev_b32 v5, 4, v5")
        e("v_add_u32 v5, 4096, v5")
        e("buffer_load_dwordx4 v[20:23], v5, s[28:31], s6 offen")
        e("buffer_load_dwordx4 v[24:27], v5, s[28:31], s6 offen offset:16")
        for k in range(4):
            e(f"v_mov_b32 v{28+k}, 0")
        e("v_min_u32 v6, 154, v0")
        e("v_lshlrev_b32 v6, 4, v6")
        e(f"ds_write_b128 v6, v[28:31] offset:{UB + 80}")
        e("v_lshrrev_b32 v6, 2, v0")
        e("v_mul_u32_u24 v6, 80, v6")
        e("v_and_b32 v7, 3, v0")
        e("v_lshl_add_u32 v6, v7, 4, v6")
        e("s_waitcnt vmcnt(4)")
        e(f"ds_write_b128 v6, v[8:11] offset:{UB + 32*80}")
        def copies(w, vaddr):
            for c in range(8):
                if c % 2 == 0:
                    e(f"ds_write_b128 v{vaddr}, v[{w+c//2}:{w+c//2+3}] offset:{CB(c)}") if (w + c//2) % 2 == 0 else None
                    if (w + c//2) % 2:
                        for j in range(4):
                            e(f"v_mov_b32 v{32+j}, v{w+c//2+j}")
                        e(f"ds_write_b128 v{vaddr}, v[32:35] offset:{CB(c)}")
                else:
                    for j in range(4):
                        e(f"v_alignbit_b32 v{36+j}, v{w+(c+1)//2+j}, v{w+(c-1)//2+j}, 16")
                    e(f"ds_write_b128 v{vaddr}, v[36:39] offset:{CB(c)}")
        e("s_waitcnt vmcnt(2)")
        tl(1)
        copies(12, 4)
        e("s_waitcnt vmcnt(0)")
        copies(20, 5)
        e("s_waitcnt lgkmcnt(0)")
        tl(2)
        e("s_barrier")
        tl(3)
        e("v_and_b32 v3, 31, v2")
        e("v_lshrrev_b32 v4, 5, v2")
        e("v_sub_u32 v5, 7, v3")
        e("v_and_b32 v5, 7, v5")
        e("v_sub_u32 v6, 2047, v3")
        e("v_lshl_add_u32 v6, v4, 3, v6")
        e("v_sub_u32 v6, v6, v5")
        e("v_mul_u32_u24 v7, %d, v5" % CS)
        e("v_lshrrev_b32 v8, 2, v5")
        e("v_lshl_add_u32 v7, v8, 5, v7")
        e("v_lshl_add_u32 v6, v6, 1, v7")
        e("v_mul_u32_u24 v7, 80, v3")
        e("v_lshl_add_u32 v7, v4, 4, v7")
        e(f"v_add_u32 v7, {UB + 32*80}, v7")
        for r in range(16, 48):
            e(f"v_mov_b32 v{r}, 0")
        e("s_lshl_b32 s5, s3, 9")
        e(f"s_add_u32 s5, s5, {64*7 + 64*32}")
        e("v_subrev_u32 v8, s5, v6")
        e("s_mul_i32 s5, s3, 640")
        e(f"s_add_u32 s5, s5, {80*7}")
        e("v_subrev_u32 v9, s5, v7")
        def rd(q):
            base = 48 + (q & 1)*32
            for t in range(2):
                fa = base + 16*t
                e(f"ds_read_b128 v[{fa}:{fa+3}], v8 offset:{64*(7-q) + 2048 + 32*t}")
                e(f"ds_read_b128 v[{fa+4}:{fa+7}], v9 offset:{80*(7-q) + 32*t}")
                e(f"ds_read_b128 v[{fa+8}:{fa+11}], v9 offset:{80*(7-q) + 2560 + 32*t}")
                e(f"ds_read_b128 v[{fa+12}:{fa+15}], v8 offset:{64*(7-q) + 32*t}")
        def mm(q):
            base = 48 + (q & 1)*32
            for t in range(2):
                fa = base + 16*t
                e(f"v_mfma_f32_32x32x16_bf16 v[16:31], v[{fa}:{fa+3}], v[{fa+4}:{fa+7}], v[16:31]")
                e(f"v_mfma_f32_32x32x16_bf16 v[32:47], v[{fa}:{fa+3}], v[{fa+8}:{fa+11}], v[32:47]")
                e(f"v_mfma_f32_32x32x16_bf16 v[32:47], v[{fa+12}:{fa+15}], v[{fa+4}:{fa+7}], v[32:47]")
        rd(0)
        for q in range(8):
            if q < 7:
                rd(q + 1)
                e("s_waitcnt lgkmcnt(8)")
            else:
                e("s_waitcnt lgkmcnt(0)")
            mm(q)
        tl(4)
        e("s_nop 15")
        e("s_barrier")
        e("v_lshlrev_b32 v10, 4, v2")
        e("s_cmp_eq_u32 s3, 0")
        e("s_cbranch_scc1 cv_w0")
        e("s_sub_u32 s5, s3, 1")
        e("s_lshl_b32 s5, s5, 12")
        e("v_add_u32 v11, s5, v10")
        for r in range(4):
            e(f"ds_write_b128 v11, v[{16+4*r}:{19+4*r}] offset:{1024*r}")
        lab("cv_w0")
        e("s_cmp_eq_u32 s3, 1")
        e("s_cbranch_scc1 cv_w1")
        e("s_sub_u32 s5, s3, 1")
        e("s_max_i32 s5, s5, 0")
        e("s_lshl_b32 s5, s5, 12")
        e("v_add_u32 v11, s5, v10")
        for r in range(4):
            e(f"ds_write_b128 v11, v[{32+4*r}:{35+4*r}] offset:{12288 + 1024*r}")
        e("s_branch cv_w2")
        lab("cv_w1")
        for r in range(16):
            e(f"v_mov_b32 v{16+r}, v{32+r}")
        e("v_add_u32 v10, 12288, v10")
        lab("cv_w2")
        e("s_waitcnt lgkmcnt(0)")
        e("s_barrier")
        e("s_cmp_ge_u32 s3, 2")
        e("s_cbranch_scc1 mid_end")
        for sl in range(3):
            for r in range(4):
                e(f"ds_read_b128 v[{48+16*sl+4*r}:{51+16*sl+4*r}], v10 offset:{4096*sl + 1024*r}")
        for sl in range(3):
            e(f"s_waitcnt lgkmcnt({8-4*sl})")
            for r in range(16):
                e(f"v_add_f32 v{16+r}, v{16+r}, v{48+16*sl+r}")
        lab("cv_epi")
        e("s_mul_i32 s5, s3, %d" % (32*80))
        e("v_mul_u32_u24 v11, 80, v3")
        e("v_lshl_add_u32 v11, v4, 3, v11")
        e("v_add_u32 v11, s5, v11")
        for g in range(4):
            e(f"ds_read_b64 v[{32+2*g}:{33+2*g}], v11 offset:{UB + 32*80 + 16*g}")
        e("s_lshl_b32 s5, s4, 12")
        e("s_lshl_b32 s6, s3, 11")
        e("s_add_u32 s5, s5, s6")
        e("s_add_u32 s5, s5, %d" % WS_AT)
        e("v_lshlrev_b32 v12, 6, v3")
        e("v_lshl_add_u32 v12, v4, 3, v12")
        e("s_waitcnt vmcnt(0) lgkmcnt(0)")
        e("v_lshlrev_b32 v1, 16, v1")
        for g in range(4):
            for p in range(2):
                u = 32 + 2*g + p
                y0 = 16 + 4*g + 2*p
                e(f"v_lshlrev_b32 v44, 16, v{u}")
                e(f"v_and_b32 v45, 0xffff0000, v{u}")
                e(f"v_mul_f32 v44, v44, v1")
                e(f"v_mul_f32 v45, v45, v1")
                e(f"v_cvt_pk_bf16_f32 v44, v44, v45")
                e(f"v_cvt_pk_bf16_f32 v46, v{y0}, v{y0+1}")
                e(f"v_lshlrev_b32 v47, 16, v44")
                e(f"v_and_b32 v48, 0xffff0000, v44")
                e(f"v_lshlrev_b32 v49, 16, v46")
                e(f"v_and_b32 v50, 0xffff0000, v46")
                e(f"v_add_f32 v47, v47, v49")
                e(f"v_add_f32 v48, v48, v50")
                e(f"v_cvt_pk_bf16_f32 v{52+2*g+p}, v47, v48")
            e(f"buffer_store_dwordx2 v[{52+2*g}:{53+2*g}], v12, s[28:31], s5 offen offset:{16*g}")
        tl(5)
        if TL: e("s_waitcnt vmcnt(0)")
        tl_end(1)
    if W2MID:
        e("s_endpgm")
        lab("mid_wt")
        gen_wt(G1_WGS + CV_WGS, 270, 540, "mid_end", 1, int(os.environ.get("DLYW2", 0)))
    lab("mid_end")
    e("s_endpgm")
    if SPL: kernel_desc("mid_kernel", 128)
    elif FUSE == 2: kernel_desc("mid_kernel", 128, agpr=40)
    elif FUSE: kernel_desc("mid_kernel", 160, agpr=80)
    else: kernel_desc("mid_kernel", 128)

G2_WGS = 256
FIN_LDS = 61440 + 64
FDEPTH = 2 if FUSE == 2 else int(os.environ.get('FDEPTH', 4))
def gen_fin():
    if SPL:
        kernel_begin("fin_kernel")
        e("s_cmp_ge_u32 s2, %d" % (G2_WGS + SPL))
        e("s_cbranch_scc1 fin_end")
        e("s_cmp_lt_u32 s2, %d" % G2_WGS)
        e("s_cbranch_scc1 fin_body")
        e("s_add_u32 s2, s2, %d" % (640 - SPL))
        e("s_branch mid_body")
        lab("fin_body")
    elif FUSE:
        out.append(".text"); lab("fin_kernel"); lab("fin_body")
    else:
        kernel_begin("fin_kernel")
        e("s_cmp_ge_u32 s2, %d" % G2_WGS)
        e("s_cbranch_scc1 fin_end")
    e("s_load_dwordx2 s[56:57], s[0:1], 104")
    e("s_load_dwordx2 s[58:59], s[0:1], 0")
    e("s_load_dwordx2 s[60:61], s[0:1], 88")
    e("v_lshrrev_b32 v1, 6, v0")
    e("v_and_b32 v2, 63, v0")
    e("s_nop 0")
    e("v_readfirstlane_b32 s3, v1")
    if FMAP == 2:
        e("s_and_b32 s5, s2, 31")
        e("s_lshr_b32 s4, s2, 5")
    elif FMAP == 3:
        e("s_lshr_b32 s5, s2, 3")
        e("s_and_b32 s4, s2, 7")
    else:
        if FUSE and not SPL: pass
        elif SCL & 2: static_claim()
        else:
            e("s_waitcnt lgkmcnt(0)")
            srd(28, 56, WS_SIZE)
            claim_tile(8 << CSH, 32, 61440, "fcl")
        if FMAP == 0:
            e("s_lshr_b32 s5, s2, 5")
            e("s_lshl_b32 s5, s5, 2")
            e("s_and_b32 s6, s2, 3")
            e("s_add_u32 s5, s5, s6")
            e("s_bfe_u32 s4, s2, 0x30002")
        else:
            e("s_lshr_b32 s5, s2, 6")
            e("s_lshl_b32 s5, s5, 3")
            e("s_and_b32 s6, s2, 7")
            e("s_add_u32 s5, s5, s6")
            e("s_bfe_u32 s4, s2, 0x10005")
            e("s_lshl_b32 s4, s4, 2")
            e("s_bfe_u32 s6, s2, 0x20003")
            e("s_add_u32 s4, s4, s6")
    e("v_and_b32 v3, 15, v2")
    e("v_lshrrev_b32 v4, 4, v2")
    e("v_lshrrev_b32 v5, 1, v4")
    e("v_and_b32 v6, 1, v4")
    e("v_lshlrev_b32 v7, 4, v3")
    e("v_lshl_add_u32 v7, v5, 10, v7")
    e("v_lshl_add_u32 v7, v6, 9, v7")
    e("s_lshl_b32 s6, s3, 11")
    e("v_add_u32 v7, s6, v7")
    e("s_mul_i32 s6, s4, 5")
    for a_ in range(5):
        e(f"s_add_u32 s7, s6, {a_}")
        e(f"s_lshr_b32 s{40+a_}, s7, 1")
        e(f"s_mul_i32 s{40+a_}, s{40+a_}, {108*1024}")
        e(f"s_and_b32 s7, s7, 1")
        e(f"s_lshl_b32 s7, s7, 8")
        e(f"s_add_u32 s{40+a_}, s{40+a_}, s7")
        e(f"s_add_u32 s{40+a_}, s{40+a_}, {WS_W2F}")
    e("s_mul_i32 s6, s5, %d" % (2*108*1024))
    e("s_add_u32 s45, s6, %d" % WS_ACT)
    e("s_add_u32 s46, s45, 256")
    e("s_add_u32 s47, s45, %d" % (108*1024))
    e("s_add_u32 s48, s47, 256")
    e("s_waitcnt lgkmcnt(0)")
    srd(28, 56, WS_SIZE); srd(8, 58, L*D*2); srd(12, 60, L*D*2)
    FR = 16
    ACC = 0
    EP = FR + 36*(FDEPTH - (1 if FUSE else 0))
    if FUSE == 2: EP = 16
    def accr(ac):
        return f"v[{48+ac}:{51+ac}]" if (FUSE == 2 and ac >= 40) else f"a[{ac}:{ac+3}]"
    pend = []
    def issue(m):
        base = FR + 36*(m % FDEPTH)
        for t in range(9):
            e(f"buffer_load_dwordx4 v[{base+4*t}:{base+4*t+3}], v7, s[28:31], s{40+t} offen")
            pend.append(("f", m))
        e("v_add_u32 v7, 8192, v7")
    def wait_for(tag):
        if tag not in pend: return
        last = max(i for i, p in enumerate(pend) if p == tag)
        n = len(pend) - 1 - last
        e(f"s_waitcnt vmcnt({n})")
        del pend[:last+1]
    NST = 14
    if FUSE:
        e("v_mov_b32 v12, v7")
        e("v_mov_b32 v14, 0")
        for m in range(FDEPTH):
            for t in range(5):
                e(f"buffer_load_dwordx4 v[{FR+36*m+4*t}:{FR+36*m+4*t+3}], v12, s[28:31], s{40+t} offen")
                pend.append(("f", m))
            e("v_add_u32 v12, 8192, v12")
        for r in range(ACC, ACC+(0 if SPL else 80)):
            e(f"v_mov_b32 v{48+r}, 0" if (FUSE == 2 and r >= 40) else f"v_accvgpr_write_b32 a{r}, 0")
        e("s_lshr_b32 s6, s5, 1")
        e("s_lshl_b32 s6, s6, %d" % CSH)
        e("s_add_u32 s6, s6, %d" % WS_CNT)
        e("s_lshl_b32 s94, s4, %d" % CSH)
        e("s_add_u32 s94, s94, %d" % (WS_CNT + (16 << CSH)))
        if not SPL:
            e("s_cmp_lg_u32 s3, 0")
            e("s_cbranch_scc1 fp0_d")
            if MBX:
                e("s_lshl_b32 s6, s5, 3")
                e("s_add_u32 s6, s6, s4")
                e("s_lshl_b32 s6, s6, %d" % MBX)
                e("s_add_u32 s6, s6, %d" % WS_MB)
                e("v_lshlrev_b32 v15, 2, v3")
                e("s_mov_b32 s91, 0")
                lab("fp0_p")
                e("buffer_load_dword v13, v15, s[28:31], s6 offen sc0 sc1")
                e("s_waitcnt vmcnt(0)")
                e("v_cmp_ne_u32 vcc, 1, v13")
                e("s_cmp_eq_u64 vcc, 0")
                e("s_cbranch_scc1 fp0_d")
                e("s_add_u32 s91, s91, 1")
                e("s_cmp_ge_u32 s91, 0x20000")
                e("s_cbranch_scc1 fp0_d")
                e("s_sleep %d" % int(os.environ.get("PSL", 2)))
                e("s_branch fp0_p")
                lab("fp0_d")
            else: poll(6, int(os.environ.get("FT0", 16)), "fp0")
            e("s_barrier")
        for m in range(FDEPTH):
            for t in range(5, 9):
                e(f"buffer_load_dwordx4 v[{FR+36*m+4*t}:{FR+36*m+4*t+3}], v7, s[28:31], s{40+t} offen")
                pend.append(("f", m))
            e("v_add_u32 v7, 8192, v7")
        for r in range(ACC, ACC+(80 if SPL else 0)):
            e(f"v_mov_b32 v{48+r}, 0" if r >= 40 else f"v_accvgpr_write_b32 a{r}, 0")
    else:
        for m in range(FDEPTH):
            issue(m)
    e("s_lshl_b32 s6, s5, 6")
    e("s_lshl_b32 s7, s3, 4")
    e("s_add_u32 s6, s6, s7")
    e("v_add_u32 v8, s6, v3")
    e("v_mul_u32_u24 v9, 1280, v8")
    e("v_lshl_add_u32 v9, v4, 3, v9")
    e("s_mul_i32 s6, s4, 160")
    e("v_add_u32 v9, s6, v9")
    def eploads():
        for a_ in range(5):
            e(f"buffer_load_dwordx2 v[{EP+2*a_}:{EP+2*a_+1}], v9, s[8:11], 0 offen offset:{32*a_}")
            pend.append(("e", 0))
        e("v_lshlrev_b32 v10, 14, v4")
        e("v_lshl_add_u32 v10, v8, 1, v10")
        e("s_mul_i32 s6, s4, %d" % (80*4096))
        e("s_add_u32 s6, s6, %d" % WS_AT)
        for a_ in range(5):
            for j in range(4):
                e(f"buffer_load_ushort v{EP+10+4*a_+j}, v10, s[28:31], s6 offen")
                pend.append(("e", 0))
                e("s_add_u32 s6, s6, %d" % (4096 if j < 3 else 4096*13))
    if not FUSE:
        eploads()
        for r in range(ACC, ACC+80):
            e(f"v_accvgpr_write_b32 a{r}, 0")
    for m in range(NST):
        if m == NST - 1:
            e("s_cmp_ge_u32 s3, 2")
            e("s_cbranch_scc1 fin_red")
        wait_for(("f", m))
        base = FR + 36*(m % FDEPTH)
        fill = []
        if FEP and FDEPTH + 1 <= m < FDEPTH + 4:
            for a_ in [(0, 1), (2, 3), (4,)][m - FDEPTH - 1]:
                rx = EP + 2*a_; ra = EP + 10 + 4*a_
                for k_ in range(9):
                    for p_ in range(2):
                        t0, t1 = 12 + 2*p_, 13 + 2*p_
                        r0, r1 = ra + 2*p_, ra + 2*p_ + 1
                        fill.append([f"v_lshlrev_b32 v{t0}, 16, v{rx+p_}", f"v_and_b32 v{t1}, 0xffff0000, v{rx+p_}",
                                     f"v_lshlrev_b32 v{r0}, 16, v{r0}", f"v_lshlrev_b32 v{r1}, 16, v{r1}",
                                     f"v_add_f32 v{t0}, v{t0}, v{r0}", f"v_add_f32 v{t1}, v{t1}, v{r1}",
                                     f"v_cvt_pk_bf16_f32 v{t0}, v{t0}, v{t1}",
                                     f"v_lshlrev_b32 v{r0}, 16, v{t0}", f"v_and_b32 v{r1}, 0xffff0000, v{t0}"][k_])
        for b_ in range(4):
            for a_ in range(5):
                ac = ACC + 4*(5*b_ + a_)
                e(f"v_mfma_f32_16x16x32_bf16 {accr(ac)}, v[{base+4*a_}:{base+4*a_+3}], v[{base+20+4*b_}:{base+23+4*b_}], {accr(ac)}")
                for _ in range(2):
                    if fill: e(fill.pop(0))
        assert not fill
        if FUSE and m == int(os.environ.get("GS", 10 if FUSE == 2 else 8)):
            if MB2:
                e("s_lshl_b32 s94, s5, 3")
                e("s_add_u32 s94, s94, s4")
                e("s_lshl_b32 s94, s94, 9")
                e("s_add_u32 s94, s94, %d" % WS_MB2)
                e("v_min_u32 v15, 39, v2")
                e("v_lshlrev_b32 v15, 3, v15")
                e("buffer_load_dwordx2 v[12:13], v15, s[28:31], s94 offen sc0 sc1")
            else: e("buffer_load_dword v13, v14, s[28:31], s94 offen sc0 sc1")
            pend.append(("g", 0))
        if FUSE and m == int(os.environ.get("GD", 12 if FUSE == 2 else 11)):
            if ("g", 0) in pend: wait_for(("g", 0))
            if MB2:
                e("s_mov_b32 s91, 0")
                e("s_branch fp1_c")
                lab("fp1_p")
                e("buffer_load_dwordx2 v[12:13], v15, s[28:31], s94 offen sc0 sc1")
                e("s_waitcnt vmcnt(0)")
                lab("fp1_c")
                e("v_and_b32 v12, v12, v13")
                e("v_cmp_ne_u32 vcc, 1, v12")
                e("s_cmp_eq_u64 vcc, 0")
                e("s_cbranch_scc1 fp1_d")
                e("s_add_u32 s91, s91, 1")
                e("s_cmp_ge_u32 s91, 0x20000")
                e("s_cbranch_scc1 fp1_d")
                e("s_sleep %d" % int(os.environ.get("PSL2", 2)))
                e("s_branch fp1_p")
                lab("fp1_d")
            else: poll(94, int(os.environ.get("FT1", 80)), "fp1", first=False)
            eploads()
        if m + FDEPTH < NST:
            if m + FDEPTH == NST - 1:
                e("s_cmp_ge_u32 s3, 2")
                e("s_cselect_b32 s6, 8192, 0")
                e("v_subrev_u32 v7, s6, v7")
            issue(m + FDEPTH)
    lab("fin_red")
    e("s_nop 15")
    e("s_waitcnt vmcnt(%d)" % (25 if FUSE else 0))
    e("v_lshlrev_b32 v11, 4, v2")
    RB, TB = 16, 96
    if FUSE == 2:
        RB, TB = 46, 108
        e("s_xor_b32 s6, s3, 2")
        e("s_mul_i32 s6, s6, 10240")
        e("v_add_u32 v12, s6, v11")
        e("s_mul_i32 s6, s3, 10240")
        e("v_add_u32 v13, s6, v11")
        e("s_xor_b32 s6, s3, 1")
        e("s_mul_i32 s6, s6, 10240")
        e("v_add_u32 v15, s6, v11")
        e("s_cmp_ge_u32 s3, 2")
        e("s_cbranch_scc1 fr_hi")
        for k in range(10): e(f"ds_write_b128 v12, v[{88+4*k}:{91+4*k}] offset:{1024*k}")
        e("s_waitcnt lgkmcnt(0)")
        for r in range(40): e(f"v_accvgpr_read_b32 v{88+r}, a{r}")
        e("s_branch fr_j")
        lab("fr_hi")
        for k in range(10): e(f"ds_write_b128 v12, a[{4*k}:{4*k+3}] offset:{1024*k}")
        e("s_waitcnt lgkmcnt(0)")
        lab("fr_j")
        e("s_barrier")
        for k in range(10): e(f"ds_read_b128 v[{46+4*k}:{49+4*k}], v13 offset:{1024*k}")
        for k in range(10):
            e(f"s_waitcnt lgkmcnt({9-k})")
            for r in (0, 2): e(f"v_pk_add_f32 v[{46+4*k+r}:{47+4*k+r}], v[{46+4*k+r}:{47+4*k+r}], v[{88+4*k+r}:{89+4*k+r}]")
        e("s_bitcmp1_b32 s3, 0")
        e("s_cbranch_scc1 fr_odd")
        for k in range(5): e(f"ds_write_b128 v13, v[{66+4*k}:{69+4*k}] offset:{1024*k}")
        e("s_branch fr_j2")
        lab("fr_odd")
        for k in range(5): e(f"ds_write_b128 v13, v[{46+4*k}:{49+4*k}] offset:{1024*k}")
        e("s_waitcnt lgkmcnt(0)")
        for r in range(20): e(f"v_mov_b32 v{46+r}, v{66+r}")
        lab("fr_j2")
        e("s_waitcnt lgkmcnt(0)")
        e("s_barrier")
        for k in range(5): e(f"ds_read_b128 v[{88+4*k}:{91+4*k}], v15 offset:{1024*k}")
        for k in range(5):
            e(f"s_waitcnt lgkmcnt({4-k})")
            for r in (0, 2): e(f"v_pk_add_f32 v[{46+4*k+r}:{47+4*k+r}], v[{46+4*k+r}:{47+4*k+r}], v[{88+4*k+r}:{89+4*k+r}]")
    for w in range(0 if FUSE == 2 else 4):
        if w < 3:
            e(f"s_cmp_lg_u32 s3, {w}")
            e(f"s_cbranch_scc1 fin_w{w+1}")
        for b_ in range(4):
            if b_ == w: continue
            slot = w if w < b_ else w - 1
            for a_ in range(5):
                ac = ACC + 4*(5*b_ + a_)
                e(f"ds_write_b128 v11, a[{ac}:{ac+3}] offset:{(b_*3 + slot)*5120 + a_*1024}")
        for r in range(20):
            e(f"v_accvgpr_read_b32 v{16+r}, a{ACC+20*w+r}")
        if w < 3:
            e("s_branch fin_rd")
            lab(f"fin_w{w+1}")
    lab("fin_rd")
    if FUSE != 2:
        e("s_mul_i32 s6, s3, %d" % (3*5120))
        e("v_add_u32 v11, s6, v11")
        e("s_waitcnt lgkmcnt(0)")
        e("s_barrier")
    for sl in range(0 if FUSE == 2 else 3):
        for a_ in range(5):
            r = 36 + 20*sl + 4*a_
            e(f"ds_read_b128 v[{r}:{r+3}], v11 offset:{sl*5120 + a_*1024}")
    for sl in range(0 if FUSE == 2 else 3):
        e(f"s_waitcnt lgkmcnt({10-5*sl})")
        if FEP:
            for r in range(0, 20, 2):
                e(f"v_pk_add_f32 v[{16+r}:{17+r}], v[{16+r}:{17+r}], v[{36+20*sl+r}:{37+20*sl+r}]")
            continue
        for r in range(20):
            e(f"v_add_f32 v{16+r}, v{16+r}, v{36+20*sl+r}")
    e("s_waitcnt vmcnt(0)")
    for a_ in range(5):
        rx = EP + 2*a_
        ra = EP + 10 + 4*a_
        if FEP:
            ac = 16 + 4*a_
            for p in range(2): e(f"v_cvt_pk_bf16_f32 v{96+p}, v{ac+2*p}, v{ac+2*p+1}")
            for p in range(2):
                e(f"v_lshlrev_b32 v{98+2*p}, 16, v{96+p}")
                e(f"v_and_b32 v{99+2*p}, 0xffff0000, v{96+p}")
            for p in range(2): e(f"v_pk_add_f32 v[{98+2*p}:{99+2*p}], v[{98+2*p}:{99+2*p}], v[{ra+2*p}:{ra+2*p+1}]")
            for p in range(2): e(f"v_cvt_pk_bf16_f32 v{rx+p}, v{98+2*p}, v{99+2*p}")
        for p in range(2 if not FEP else 0):
            ac = RB + 4*a_ + 2*p
            e(f"v_lshlrev_b32 v{TB+0}, 16, v{rx+p}")
            e(f"v_and_b32 v{TB+1}, 0xffff0000, v{rx+p}")
            e(f"v_lshlrev_b32 v{TB+2}, 16, v{ra+2*p}")
            e(f"v_lshlrev_b32 v{TB+3}, 16, v{ra+2*p+1}")
            e(f"v_add_f32 v{TB+0}, v{TB+0}, v{TB+2}")
            e(f"v_add_f32 v{TB+1}, v{TB+1}, v{TB+3}")
            e(f"v_cvt_pk_bf16_f32 v{TB+0}, v{TB+0}, v{TB+1}")
            e(f"v_cvt_pk_bf16_f32 v{TB+2}, v{ac}, v{ac+1}")
            e(f"v_lshlrev_b32 v{TB+4}, 16, v{TB+0}")
            e(f"v_and_b32 v{TB+5}, 0xffff0000, v{TB+0}")
            e(f"v_lshlrev_b32 v{TB+6}, 16, v{TB+2}")
            e(f"v_and_b32 v{TB+7}, 0xffff0000, v{TB+2}")
            e(f"v_add_f32 v{TB+4}, v{TB+4}, v{TB+6}")
            e(f"v_add_f32 v{TB+5}, v{TB+5}, v{TB+7}")
            e(f"v_cvt_pk_bf16_f32 v{rx+p}, v{TB+4}, v{TB+5}")
        e(f"buffer_store_dwordx2 v[{rx}:{rx+1}], v9, s[12:15], 0 offen offset:{32*a_}")
    lab("fin_end")
    e("s_endpgm")
    if SPL: kernel_desc("fin_kernel", 128, agpr=40)
    if not FUSE: kernel_desc("fin_kernel", ((EP + 30) + 7)//8*8, agpr=80)

hdr = open("cdna_kernels/%s.s.ref" % NAME).read().split("; Override launch")[0]
text = hdr
text += f"; @launch kernel=prep_kernel grid=({PREP_WGS + (128 if PORD else 0) + (256 if EMU & 2 else 0)},1,1) block=(256,1,1) lds={MID_LDS if EMU & 2 else PREP_LDS}\n"
text += f"; @launch kernel=mid_kernel grid=({MID_WGS - SPL},1,1) block=(256,1,1) lds={FIN_LDS if FUSE == 1 else MID_LDS}\n"
if SPL: text += f"; @launch kernel=fin_kernel grid=({G2_WGS + SPL},1,1) block=(256,1,1) lds={MID_LDS}\n"
if not FUSE: text += f"; @launch kernel=fin_kernel grid=({G2_WGS},1,1) block=(256,1,1) lds={FIN_LDS}\n"
text += '.amdgcn_target "amdgcn-amd-amdhsa--gfx950"\n'
gen_prep(); gen_mid(); gen_fin()
_o = []; _in = False
for _l in out:
    if _l.startswith("fin_kernel:"): _in = True
    if _l.strip().startswith("buffer_store") and not _in and "nosc" not in SKIP: _l += " sc1"
    _o.append(_l)
out = _o
text += "\n".join(out) + "\n"
dst = sys.argv[1] if len(sys.argv) > 1 else "cdna_kernels/%s.s" % NAME
open(dst, "w").write(text)
print("wrote", dst, len(text))
```

```python
import sys, os
SKIP = os.environ.get("SKIP", "").split(",")
ORDER = int(os.environ.get("ORDER", 0))
PRIO = int(os.environ.get("PRIO", 3))
W2MID = int(os.environ.get("W2MID", 0))
CONV2 = int(os.environ.get("CONV2", 1))
CV3 = int(os.environ.get("CV3", 1))
FEP = int(os.environ.get("FEP", 1))
PORD = int(os.environ.get("PORD", 0))
MISH2 = int(os.environ.get("MISH2", 2))
DLYC = int(os.environ.get("DLYC", 24))
G1MAP = int(os.environ.get("G1MAP", 1))
FMAP = int(os.environ.get("FMAP", 1))
DLYL = int(os.environ.get("DLYL", 16))
DLYW = int(os.environ.get("DLYW", 24))
EMU = int(os.environ.get("EMU", 1))
KGR = int(os.environ.get("KGR", 0))
W1D = int(os.environ.get("W1D", 0))
FUSE = int(os.environ.get("FUSE", 0))
if FUSE: FEP = 0
SPL = int(os.environ.get("SPL", 0))
if SPL: FUSE = 2; FEP = 0
CSH = int(os.environ.get("CSH", 6))
MBX = int(os.environ.get("MBX", 0))
WS_MB = 0x1740000
MB2 = int(os.environ.get("MB2", 0)); WS_MB2 = 0x1780000
CP2 = int(os.environ.get("CP2", 0))
CVL = 1 if FUSE == 1 else 0
NAME = "parallel_sum__ssm_conv_s4d__dense_activation_mish__prompt"
L, D, N, F = 2048, 640, 128, 1728
WS_XNF = 0x0000000
WS_XNT = 0x0280000
WS_W1F = 0x0500000
WS_W2F = WS_W1F + 2160 * 1024
WS_KR = 0x0A00000
KR_STRIDE = 4224
WS_ACT = 0x0D00000
WS_AT = 0x1400000
WS_CNT = 0x1700000
WS_SIZE = 268435456
LOG2E = 0x3fb8aa3b
INV2PI = 0x3e22f983

out = []
def e(s):
    out.append("    " + s)
def lab(s):
    out.append(s + ":")
def cm(s):
    out.append("    ; " + s)

STAMP = os.environ.get("STAMP")
def stamp_init():
    if not STAMP: return
    e("s_load_dwordx2 s[84:85], s[0:1], 96")
    e("s_waitcnt lgkmcnt(0)")
    e("s_mov_b32 s80, s84"); e("s_and_b32 s81, s85, 0xffff"); e("s_mov_b32 s82, 256"); e("s_mov_b32 s83, 0x00020000")
def stamp(i):
    if not STAMP: return
    e("s_memtime s[86:87]")
    e("s_waitcnt lgkmcnt(0)")
    e(f"s_cmp_lg_u32 s2, {int(STAMP)}")
    e(f"s_cbranch_scc1 st_{stamp.n}")
    e(f"v_mov_b32 v255, s86")
    e(f"v_lshrrev_b32 v254, 6, v0")
    e(f"v_lshlrev_b32 v254, 6, v254")
    e(f"v_add_u32 v254, {4*i}, v254")
    e(f"buffer_store_dword v255, v254, s[80:83], 0 offen")
    lab(f"st_{stamp.n}")
    stamp.n += 1
stamp.n = 0


TL = os.environ.get("TL")
WS_TL = 0x1800000
def tl(i):
    if not TL: return
    e("s_memrealtime s[80:81]")
    e("s_waitcnt lgkmcnt(0)")
    e(f"s_mov_b32 s{84+i}, s80")
def tl_begin():
    if not TL: return
    e("s_mov_b32 s83, s2")
    for i in range(8): e(f"s_mov_b32 s{84+i}, 0")
    tl(0)
def tl_end(kern):
    if not TL: return
    tl(7)
    e("s_getreg_b32 s90, hwreg(HW_REG_HW_ID)")
    e("s_getreg_b32 s80, hwreg(HW_REG_XCC_ID)")
    e("s_and_b32 s90, s90, 0xffff")
    e("s_lshl_b32 s80, s80, 16")
    e("s_or_b32 s90, s90, s80")
    e("s_or_b32 s90, s90, 0x40000000")
    e("s_cmp_lg_u32 s3, 0")
    e(f"s_cbranch_scc1 tle_{tl_end.n}")
    e("s_lshl_b32 s83, s83, 5")
    e(f"s_add_u32 s83, s83, {WS_TL + kern*65536}")
    e("v_mov_b32 v1, 0")
    for i in range(8):
        e(f"v_mov_b32 v0, s{84+i}")
        e(f"buffer_store_dword v0, v1, s[28:31], s83 offen offset:{4*i}")
    lab(f"tle_{tl_end.n}")
    tl_end.n += 1
tl_end.n = 0

def srd(dst, ptr, size):
    e(f"s_mov_b32 s{dst}, s{ptr}")
    e(f"s_and_b32 s{dst+1}, s{ptr+1}, 0xffff")
    e(f"s_mov_b32 s{dst+2}, {size}")
    e(f"s_mov_b32 s{dst+3}, 0x00020000")

def kernel_begin(name):
    out.append(".text")
    out.append(f".globl {name}")
    out.append(".p2align 8")
    out.append(f".type {name},@function")
    lab(name)

def kernel_desc(name, vgpr, sgpr=96, agpr=0):
    if STAMP: vgpr = 256
    out.append('.section .rodata,"a"')
    out.append(".p2align 6")
    out.append(f".amdhsa_kernel {name}")
    out.append(f"  .amdhsa_next_free_vgpr {vgpr + agpr}")
    out.append(f"  .amdhsa_next_free_sgpr {sgpr}")
    out.append(f"  .amdhsa_accum_offset {(vgpr+3)//4*4}")
    out.append("  .amdhsa_group_segment_fixed_size 0")
    out.append("  .amdhsa_kernarg_size 112")
    out.append("  .amdhsa_user_sgpr_count 2")
    out.append("  .amdhsa_user_sgpr_kernarg_segment_ptr 1")
    out.append("  .amdhsa_system_sgpr_workgroup_id_x 1")
    out.append(".end_amdhsa_kernel")


SCL = int(os.environ.get("SCL", 3))
def static_claim():
    e("s_and_b32 s4, s2, 7")
    e("s_lshl_b32 s4, s4, 5")
    e("s_lshr_b32 s2, s2, 3")
    e("s_or_b32 s2, s2, s4")

def signal(sidx, lbl):
    e("s_waitcnt vmcnt(0)")
    e("s_barrier")
    e("s_cmp_lg_u32 s3, 0")
    e(f"s_cbranch_scc1 {lbl}")
    e(f"s_lshl_b32 s6, s{sidx}, {CSH}")
    e("s_add_u32 s6, s6, %d" % WS_CNT)
    e("s_mov_b64 exec, 1")
    e("v_mov_b32 v12, 1")
    e("v_mov_b32 v13, 0")
    e("buffer_atomic_add v12, v13, s[28:31], s6 offen sc1")
    e("s_mov_b64 exec, -1")
    lab(lbl)
def poll(soff, target, lbl, first=True):
    e("s_mov_b32 s91, 0")
    if not first: e(f"s_branch {lbl}_c")
    lab(f"{lbl}_p")
    e(f"buffer_load_dword v13, v14, s[28:31], s{soff} offen sc0 sc1")
    e("s_waitcnt vmcnt(0)")
    lab(f"{lbl}_c")
    e("v_readfirstlane_b32 s92, v13")
    e(f"s_cmp_ge_u32 s92, {target}")
    e(f"s_cbranch_scc1 {lbl}_d")
    e("s_add_u32 s91, s91, 1")
    e("s_cmp_ge_u32 s91, 0x20000")
    e(f"s_cbranch_scc1 {lbl}_d")
    e("s_sleep %d" % (int(os.environ.get("PSL", 2)) if first else int(os.environ.get("PSL2", 32))))
    e(f"s_branch {lbl}_p")
    lab(f"{lbl}_d")

LCL = int(os.environ.get("LCL", 0))
def claim_tile(cnt_off, per, lds_off, lbl, part1=False):
    e("s_cmp_lg_u32 s3, 0")
    e(f"s_cbranch_scc1 {lbl}_w")
    e("s_getreg_b32 s20, hwreg(HW_REG_XCC_ID)")
    e("s_and_b32 s20, s20, 7")
    e("s_mov_b32 s21, 0")
    e("s_mov_b64 s[22:23], exec")
    e("s_mov_b64 exec, 1")
    e("v_mov_b32 v12, 1")
    lab(f"{lbl}_l")
    e("s_lshl_b32 s24, s20, %d" % CSH)
    e(f"s_add_u32 s24, s24, {WS_CNT + cnt_off}")
    e("v_mov_b32 v13, 0")
    e("v_mov_b32 v14, v12")
    e("buffer_atomic_add v14, v13, s[28:31], s24 offen sc0" + ("" if "asc" in SKIP else " sc1"))
    e("s_waitcnt vmcnt(0)")
    e("v_readfirstlane_b32 s25, v14")
    e(f"s_cmp_lt_u32 s25, {per}")
    e(f"s_cbranch_scc1 {lbl}_f")
    e("s_add_u32 s20, s20, 1")
    e("s_and_b32 s20, s20, 7")
    e("s_add_u32 s21, s21, 1")
    e("s_cmp_lt_u32 s21, 8")
    e(f"s_cbranch_scc1 {lbl}_l")
    e("s_mov_b32 s25, 0")
    lab(f"{lbl}_f")
    e(f"s_mul_i32 s20, s20, {per}")
    e("s_add_u32 s20, s20, s25")
    e("v_mov_b32 v14, s20")
    e(f"v_mov_b32 v13, {lds_off}")
    e("ds_write_b32 v13, v14")
    e("s_mov_b64 exec, s[22:23]")
    e("s_waitcnt lgkmcnt(0)")
    lab(f"{lbl}_w")
    if part1: return
    e("s_barrier")
    e(f"v_mov_b32 v13, {lds_off}")
    e("ds_read_b32 v14, v13")
    e("s_waitcnt lgkmcnt(0)")
    e("v_readfirstlane_b32 s2, v14")

LN_WGS, WT_WGS, KG_WGS = 128, (68 if (W2MID or W1D) else 135), 640
PREP_WGS = KG_WGS + LN_WGS + WT_WGS
KG_LDS_WAVE = 512
KG_TAB0 = 2048
KG_TAB = 2688
KG_FIN = KG_TAB0 + 4*KG_TAB
PREP_LDS = 36864
LNS = 36

def gen_wt(wg0, wv0, wvend, endlab, kern, dly):
    if "wt" in SKIP: e("s_endpgm")
    if PRIO & 2: e("s_setprio 3")
    e("s_load_dwordx2 s[40:41], s[0:1], 64")
    e("s_load_dwordx2 s[42:43], s[0:1], 80")
    e("s_sub_u32 s4, s2, %d" % wg0)
    e("s_lshl_b32 s4, s4, 2")
    e("s_add_u32 s4, s4, s3")
    if wv0: e("s_add_u32 s4, s4, %d" % wv0)
    if wvend:
        e("s_cmp_ge_u32 s4, %d" % wvend)
        e("s_cbranch_scc1 %s" % endlab)
    e("s_waitcnt lgkmcnt(0)")
    e("s_cmp_ge_u32 s4, 270")
    e("s_cselect_b32 s40, s42, s40")
    e("s_cselect_b32 s41, s43, s41")
    e("s_mov_b32 s5, 3456")
    e("s_mov_b32 s7, 159072863")
    e("s_mov_b32 s34, %d" % WS_W1F)
    e("s_cselect_b32 s5, 1280, s5")
    e("s_cselect_b32 s6, 10, 27")
    e("s_cselect_b32 s7, 429496730, s7")
    e("s_cselect_b32 s32, 270, 0")
    e("s_cselect_b32 s33, 108, 40")
    e("s_cselect_b32 s34, %d, s34" % WS_W2F)
    srd(8, 40, D*F*2); srd(28, 56, WS_SIZE)
    e("s_sub_u32 s32, s4, s32")
    e("s_lshl_b32 s32, s32, 2")
    e("v_lshrrev_b32 v3, 3, v2")
    e("v_and_b32 v4, 7, v2")
    e("v_mul_lo_u32 v5, v3, s5")
    e("v_lshl_add_u32 v5, v4, 4, v5")
    e("s_lshl_b32 s35, s5, 3")
    e("s_mul_i32 s36, s3, %d" % (4*16*144))
    e("v_mul_u32_u24 v6, 144, v3")
    e("v_lshl_add_u32 v6, v4, 4, v6")
    e("v_add_u32 v6, s36, v6")
    e("v_and_b32 v7, 31, v2")
    e("v_lshrrev_b32 v8, 5, v2")
    e("v_mul_u32_u24 v8, %d, v8" % (8*144))
    e("v_lshl_add_u32 v8, v7, 1, v8")
    e("v_add_u32 v8, s36, v8")
    e("v_lshlrev_b32 v9, 4, v2")
    if dly: e(f"s_sleep {dly}")
    for q in range(4):
        e(f"s_add_u32 s37, s32, {q}")
        e("s_mul_hi_u32 s38, s37, s7")
        e("s_mul_i32 s39, s38, s6")
        e("s_sub_u32 s39, s37, s39")
        e(f"s_lshl_b32 s44, s38, 4")
        e(f"s_mul_i32 s44, s44, s5")
        e(f"s_lshl_b32 s45, s39, 7")
        e(f"s_add_u32 s44, s44, s45")
        e(f"buffer_load_dwordx4 v[{16+8*q}:{19+8*q}], v5, s[8:11], s44 offen")
        e(f"s_add_u32 s44, s44, s35")
        e(f"buffer_load_dwordx4 v[{20+8*q}:{23+8*q}], v5, s[8:11], s44 offen")
        e(f"s_lshl_b32 s45, s39, 1")
        e(f"s_mul_i32 s45, s45, s33")
        e(f"s_add_u32 s45, s45, s38")
        e(f"s_lshl_b32 s45, s45, 10")
        e(f"s_add_u32 s{48+q}, s45, s34")
    e("s_lshl_b32 s33, s33, 10")
    for q in range(4):
        e(f"s_waitcnt vmcnt({6-2*q})")
        e(f"ds_write_b128 v6, v[{16+8*q}:{19+8*q}] offset:{q*16*144}")
        e(f"ds_write_b128 v6, v[{20+8*q}:{23+8*q}] offset:{q*16*144 + 8*144}")
    tl(1)
    for q in range(4):
        e("s_waitcnt lgkmcnt(0)") if q == 0 else None
        for f in range(2):
            for el in range(8):
                e(f"ds_read_u16 v{48+16*(q&1)*2+16*f+el}, v8 offset:{q*16*144 + el*144 + 64*f}")
        if q > 0:
            pass
        e("s_waitcnt lgkmcnt(0)")
        for f in range(2):
            for j in range(4):
                r = 48 + 16*(q&1)*2 + 16*f
                e(f"v_lshl_or_b32 v{112+4*f+j}, v{r+2*j+1}, 16, v{r+2*j}")
            if f == 0:
                e(f"buffer_store_dwordx4 v[112:115], v9, s[28:31], s{48+q} offen")
            else:
                e(f"s_add_u32 s{48+q}, s{48+q}, s33")
                e(f"buffer_store_dwordx4 v[116:119], v9, s[28:31], s{48+q} offen")
        if q < 3:
            e("s_nop 1")
    tl(5)
    if TL: e("s_waitcnt vmcnt(0)")
    tl_end(kern)

def gen_prep():
    kernel_begin("prep_kernel")
    if EMU & 2:
        e("s_cmp_lt_u32 s2, 256")
        e("s_cbranch_scc1 mid_body")
        e("s_sub_u32 s2, s2, 256")
    if PORD:
        e("s_lshr_b32 s4, s2, 7")
        e("s_cmp_eq_u32 s4, 6")
        e("s_cbranch_scc1 prep_end")
        e("s_cmp_gt_u32 s4, 6")
        e("s_cselect_b32 s4, 128, 0")
        e("s_sub_u32 s2, s2, s4")
    e("s_cmp_ge_u32 s2, %d" % PREP_WGS)
    e("s_cbranch_scc1 prep_end")
    e("s_load_dwordx2 s[56:57], s[0:1], 104")
    e("v_lshrrev_b32 v1, 6, v0")
    e("v_and_b32 v2, 63, v0")
    e("s_nop 0")
    e("v_readfirstlane_b32 s3, v1")
    if ORDER:
        e("s_add_u32 s2, s2, %d" % KG_WGS)
        e("s_cmp_ge_u32 s2, %d" % PREP_WGS)
        e("s_cselect_b32 s4, %d, 0" % PREP_WGS)
        e("s_sub_u32 s2, s2, s4")
    tl_begin()
    e("s_cmp_ge_u32 s2, %d" % (KG_WGS + LN_WGS))
    e("s_cbranch_scc1 prep_wt")
    e("s_cmp_ge_u32 s2, %d" % KG_WGS)
    e("s_cbranch_scc1 prep_ln")
    if "kg" in SKIP: e("s_endpgm")
    e("s_load_dwordx4 s[40:43], s[0:1], 8")
    e("s_load_dwordx4 s[44:47], s[0:1], 24")
    e("s_load_dwordx2 s[48:49], s[0:1], 40")
    e("s_mov_b32 s4, s2")
    e("s_mul_i32 s5, s3, %d" % KG_LDS_WAVE)
    e("s_lshl_b32 s6, s4, 8")
    e("s_lshl_b32 s7, s3, 6")
    e("s_add_u32 s6, s6, s7")
    e("v_and_b32 v3, 31, v2")
    e("v_lshl_add_u32 v3, v3, 1, s6")
    e("s_lshl_b32 s7, s4, 1")
    e("v_mov_b32 v4, s7")
    e("s_waitcnt lgkmcnt(0)")
    srd(8, 40, D*N*2); srd(12, 42, D*N*2); srd(16, 44, D*N*2); srd(20, 46, D*N*2)
    srd(24, 48, D*2); srd(28, 56, WS_SIZE)
    for k, sr in enumerate((8, 12, 16, 20)):
        e(f"buffer_load_ushort v{10+k}, v3, s[{sr}:{sr+3}], 0 offen")
    e("buffer_load_ushort v18, v4, s[24:27], 0 offen")
    e("v_and_b32 v8, 15, v2")
    e("v_lshrrev_b32 v9, 4, v2")
    e("v_and_b32 v24, 7, v8")
    e("v_lshrrev_b32 v25, 3, v8")
    e("v_lshl_add_u32 v28, v25, 7, v24")
    e("v_and_b32 v24, 3, v8")
    e("v_lshlrev_b32 v24, 1, v24")
    e("v_bfe_u32 v25, v8, 2, 1")
    e("v_lshl_add_u32 v24, v25, 7, v24")
    e("v_add_u32 v24, 256, v24")
    e("v_and_b32 v25, 1, v8")
    e("v_lshlrev_b32 v25, 2, v25")
    e("v_bfe_u32 v26, v8, 1, 2")
    e("v_lshl_add_u32 v25, v26, 7, v25")
    e("v_add_u32 v25, 512, v25")
    e("v_cmp_gt_u32 vcc, 8, v8")
    e("s_nop 1")
    e("v_cndmask_b32 v29, v25, v24, vcc")
    e("v_lshlrev_b32 v30, 7, v8")
    e("v_add_u32 v30, 0x400, v30")
    e("v_lshlrev_b32 v31, 3, v8")
    for t in range(4):
        e(f"v_cvt_f32_u32 v{28+t}, v{28+t}")
    e("s_mul_i32 s6, s3, %d" % KG_TAB)
    e("s_add_u32 s6, s6, %d" % KG_TAB0)
    e("v_and_b32 v24, 1, v9")
    e("v_lshrrev_b32 v25, 1, v9")
    e("v_lshl_add_u32 v33, v8, 5, s6")
    e("v_lshl_add_u32 v33, v24, 4, v33")
    e("v_lshl_add_u32 v33, v25, 9, v33")
    e("v_lshlrev_b32 v24, 4, v8")
    e("v_lshlrev_b32 v25, 3, v8")
    e("v_cmp_gt_u32 vcc, 2, v9")
    e("s_nop 1")
    e("v_cndmask_b32 v24, v25, v24, vcc")
    e("v_lshl_add_u32 v24, v9, 8, v24")
    e("v_add_u32 v24, s6, v24")
    e("v_add_u32 v34, 1024, v24")
    e("v_mov_b32 v25, 128")
    e("v_cndmask_b32_e64 v24, v25, 8, vcc")
    e("v_add_u32 v36, v34, v24")
    e("v_lshl_add_u32 v38, v8, 2, s6")
    e("v_lshl_add_u32 v38, v9, 8, v38")
    e("v_add_u32 v38, 2048, v38")
    e("v_lshl_add_u32 v39, v9, 4, s5")
    for r in range(40, 52):
        e(f"v_mov_b32 v{r}, 0")
    e("s_waitcnt vmcnt(0)")
    tl(1)
    for r in (10, 11, 12, 13, 18):
        e(f"v_lshlrev_b32 v{r}, 16, v{r}")
    e(f"v_mul_f32 v18, {LOG2E:#x}, v18")
    e(f"v_mul_f32 v10, {LOG2E:#x}, v10")
    e("v_exp_f32 v18, v18")
    e("v_exp_f32 v10, v10")
    e("s_nop 0")
    e("v_cvt_pk_bf16_f32 v18, v18, v18")
    e("v_cvt_pk_bf16_f32 v10, v10, v10")
    e("v_lshlrev_b32 v18, 16, v18")
    e("v_lshlrev_b32 v10, 16, v10")
    e("v_add_f32 v19, v18, v18")
    e("v_and_b32 v5, 31, v2")
    e("v_lshl_add_u32 v5, v5, 4, s5")
    e("v_mul_f32 v20, v10, v18")
    e(f"v_mul_f32 v20, {LOG2E|0x80000000:#x}, v20")
    e("v_mul_f32 v21, v11, v18")
    e(f"v_mul_f32 v21, {INV2PI:#x}, v21")
    e("v_mul_f32 v22, v12, v19")
    e("v_mul_f32 v23, v13, v19")
    e("ds_write_b128 v5, v[20:23]")
    e("s_waitcnt lgkmcnt(0)")
    for st in range(2 if KGR else 8):
        e(f"ds_read_b128 v[{96+4*st}:{99+4*st}], v39 offset:{64*st}")
    if not KGR: e("s_waitcnt lgkmcnt(0)")
    def kg_valu(st):
        P = 96 + 4*st
        O = 72 + 10*(st & 1)
        v = []
        for t in range(4):
            v.append(f"v_mul_f32 v{52+t}, v{P}, v{28+t}")
            v.append(f"v_mul_f32 v{56+t}, v{P+1}, v{28+t}")
        for t in range(4):
            v.append(f"v_exp_f32 v{52+t}, v{52+t}")
            v.append(f"v_fract_f32 v{56+t}, v{56+t}")
        for t in range(4):
            v.append(f"v_cos_f32 v{60+t}, v{56+t}")
            v.append(f"v_sin_f32 v{64+t}, v{56+t}")
        for t in range(4):
            v.append(f"v_mul_f32 v{60+t}, v{52+t}, v{60+t}")
            v.append(f"v_mul_f32 v{64+t}, v{52+t}, v{64+t}")
        v.append(f"v_mul_f32 v55, v63, v{P+2}")
        v.append(f"v_mul_f32_e64 v59, -v63, v{P+3}")
        v.append(f"v_fma_f32 v55, -v67, v{P+3}, v55")
        v.append(f"v_fma_f32 v59, -v67, v{P+2}, v59")
        if KGR: v.append(f"ds_read_b128 v[{P}:{P+3}], v39 offset:{128 + 64*st}")
        def split(xr, xi, H, Lo, t0, t1):
            v.append(f"v_cvt_pk_bf16_f32 v{H}, v{xr}, v{xi}")
            v.append(f"v_lshlrev_b32 v{t0}, 16, v{H}")
            v.append(f"v_and_b32 v{t1}, 0xffff0000, v{H}")
            v.append(f"v_sub_f32 v{t0}, v{xr}, v{t0}")
            v.append(f"v_sub_f32 v{t1}, v{xi}, v{t1}")
            v.append(f"v_cvt_pk_bf16_f32 v{Lo}, v{t0}, v{t1}")
        split(55, 59, O, O+2, 68, 69)
        v.append(f"v_mov_b32 v{O+1}, v{O}")
        v.append(f"v_mov_b32 v{O+3}, v{O+2}")
        for t in range(3):
            split(60+t, 64+t, O+4+2*t, O+5+2*t, 52+t, 56+t)
        return v
    def kg_mfma(st):
        O = 72 + 10*(st & 1)
        m = []
        for h in range(2):
            for t in range(3):
                a = 40 + 4*t
                m.append(f"v_mfma_f32_16x16x16_bf16 v[{a}:{a+3}], v[{O+4+2*t}:{O+5+2*t}], v[{O+2*h}:{O+2*h+1}], v[{a}:{a+3}]")
        return m
    if KGR:
        for r in range(82, 92): e(f"v_mov_b32 v{r}, 0")
        e("s_mov_b32 s7, 4")
        lab("kg_loop")
    for st in ((0, 1, 2) if KGR else range(9)):
        v = kg_valu(st) if st < (2 if KGR else 8) else []
        m = kg_mfma(st-1) if (st > 0 or KGR) else []
        if KGR and st < 2: e("s_waitcnt lgkmcnt(1)")
        if KGR and st == 2:
            e("v_add_u32 v39, 128, v39")
            e("s_sub_u32 s7, s7, 1")
            e("s_cmp_lg_u32 s7, 0")
            e("s_cbranch_scc1 kg_loop")
        if "kgm" in SKIP: m = []
        if "kgv" in SKIP: v = []
        if not v:
            e("s_nop 1")
        vi = 0
        for mi, mm_ in enumerate(m):
            tgt = 2 + 7*mi
            while vi < min(tgt, len(v)):
                e(v[vi]); vi += 1
            e(mm_)
        while vi < len(v):
            e(v[vi]); vi += 1
    e("s_nop 15")
    tl(2)
    for r in range(4):
        e(f"ds_write_b32 v33, v{40+r} offset:{4*r}")
    e("ds_write_b32 v34, v44")
    e("ds_write_b32 v34, v45 offset:4")
    e("ds_write_b32 v36, v46")
    e("ds_write_b32 v36, v47 offset:4")
    e("s_mov_b32 exec_hi, 0xffff")
    e("ds_write_b32 v38, v48")
    e("s_mov_b32 exec_hi, 0")
    for r in range(1, 4):
        e(f"ds_write_b32 v38, v{48+r} offset:{64*r}")
    e("s_mov_b32 exec_hi, -1")
    e("s_mul_i32 s4, s4, %d" % KR_STRIDE)
    e("s_add_u32 s4, s4, %d" % WS_KR)
    e("v_lshlrev_b32 v39, 4, v0")
    e("v_lshlrev_b32 v64, 3, v0")
    e("v_sub_u32 v64, 2047, v64")
    e("v_lshlrev_b32 v65, 2, v0")
    e("v_lshlrev_b32 v66, 1, v0")
    for k in range(8):
        e(f"v_subrev_u32 v{52+k}, {k}, v64")
        e(f"v_cvt_f32_u32 v{72+k}, v{52+k}")
    for k in range(4):
        e(f"v_cvt_pk_bf16_f32 v{80+k}, v{72+2*k}, v{73+2*k}")
        e(f"v_and_b32 v{72+2*k}, 0xffff, v{80+k}")
        e(f"v_lshrrev_b32 v{73+2*k}, 16, v{80+k}")
    for k in range(8):
        e(f"v_subrev_u32 v{72+k}, 17024, v{72+k}")
        e(f"v_cmp_gt_u32 vcc, 256, v{52+k}")
        e("s_nop 1")
        e(f"v_cndmask_b32 v{52+k}, v{72+k}, v{52+k}, vcc")
        e(f"v_lshlrev_b32 v{52+k}, 1, v{52+k}")
    e("s_waitcnt lgkmcnt(0)")
    e("s_barrier")
    tl(3)
    for m in range(3):
        for ww in range(4):
            e(f"ds_read_b32 v{72+4*m+ww}, v65 offset:{KG_TAB0 + ww*KG_TAB + 1024*m}")
    for m in range(3):
        e(f"s_waitcnt lgkmcnt({8-4*m})")
        e(f"v_add_f32 v{72+4*m}, v{72+4*m}, v{73+4*m}")
        e(f"v_add_f32 v{74+4*m}, v{74+4*m}, v{75+4*m}")
        e(f"v_add_f32 v{72+4*m}, v{72+4*m}, v{74+4*m}")
        e(f"v_cvt_pk_bf16_f32 v{72+4*m}, v{72+4*m}, v{72+4*m}")
        e(f"ds_write_b16 v66, v{72+4*m} offset:{KG_FIN + 512*m}")
    e("s_waitcnt lgkmcnt(0)")
    e("s_barrier")
    tl(4)
    for k in range(8):
        e(f"ds_read_u16 v{96+k}, v{52+k} offset:{KG_FIN}")
    e("s_waitcnt lgkmcnt(0)")
    for k in range(4):
        e(f"v_lshl_or_b32 v{112+k}, v{97+2*k}, 16, v{96+2*k}")
    e(f"buffer_store_dwordx4 v[112:115], v39, s[28:31], s4 offen")
    for k in range(4):
        e(f"v_mov_b32 v{116+k}, 0")
    e("v_cmp_gt_u32 vcc, 8, v0")
    e("s_and_saveexec_b64 s[32:33], vcc")
    e("s_cbranch_execz prep_end")
    e("s_add_u32 s4, s4, 4096")
    e("buffer_store_dwordx4 v[116:119], v39, s[28:31], s4 offen")
    if MBX:
        e("s_cmp_ge_u32 s2, 256")
        e("s_cbranch_scc1 prep_end")
        e("v_lshlrev_b32 v40, 3, v0")
        e("s_lshl_b32 s4, s2, %d" % MBX)
        e("s_add_u32 s4, s4, %d" % WS_MB)
        e("buffer_store_dwordx2 v[116:117], v40, s[28:31], s4 offen")
        if MB2:
            e("v_lshlrev_b32 v40, 4, v0")
            e("s_lshl_b32 s4, s2, 9")
            e("s_add_u32 s4, s4, %d" % WS_MB2)
            for k in range(3): e(f"buffer_store_dwordx4 v[116:119], v40, s[28:31], s4 offen offset:{128*k}")
    e("v_lshlrev_b32 v39, %d, v0" % CSH)
    tl(5)
    if TL: e("s_waitcnt vmcnt(0)")
    tl_end(0)
    if FUSE or not (EMU & 1 and (SCL & 2 or FMAP >= 2)):
        e("s_cmp_lg_u32 s2, 0")
        e("s_cbranch_scc1 prep_end")
        e("s_mov_b32 s4, %d" % WS_CNT)
        e("buffer_store_dword v116, v39, s[28:31], s4 offen")
        e("s_add_u32 s4, s4, %d" % (8 << CSH))
        e("buffer_store_dword v116, v39, s[28:31], s4 offen")
        e("s_add_u32 s4, s4, %d" % (8 << CSH))
        e("buffer_store_dword v116, v39, s[28:31], s4 offen")
    e("s_endpgm")
    lab("prep_ln")
    if "ln" in SKIP: e("s_endpgm")
    if PRIO & 1: e("s_setprio 3")
    e("s_load_dwordx2 s[40:41], s[0:1], 0")
    e("s_sub_u32 s2, s2, %d" % KG_WGS)
    e("v_and_b32 v3, 15, v0")
    e("v_lshrrev_b32 v4, 4, v0")
    e("s_lshl_b32 s5, s2, 4")
    e("v_add_u32 v5, s5, v4")
    e("v_mul_u32_u24 v6, 1280, v5")
    e("v_lshl_add_u32 v6, v3, 4, v6")
    e("s_waitcnt lgkmcnt(0)")
    srd(8, 40, L*D*2); srd(28, 56, WS_SIZE)
    if DLYL: e(f"s_sleep {DLYL}")
    for j in range(5):
        e(f"buffer_load_dwordx4 v[{16+4*j}:{19+4*j}], v6, s[8:11], 0 offen offset:{256*j}")
    e("s_lshr_b32 s6, s2, 1")
    e("s_mul_i32 s6, s6, %d" % (40*1024))
    e("s_add_u32 s6, s6, %d" % WS_XNF)
    e("v_lshrrev_b32 v7, 1, v3")
    e("v_lshlrev_b32 v7, 10, v7")
    e("v_and_b32 v8, 1, v3")
    e("v_lshl_add_u32 v7, v8, 9, v7")
    e("v_and_b32 v8, 31, v5")
    e("v_lshl_add_u32 v7, v8, 4, v7")
    e(f"v_mul_u32_u24 v9, {8*LNS}, v3")
    e("v_lshl_add_u32 v9, v4, 1, v9")
    e("s_waitcnt vmcnt(0)")
    tl(1)
    for k in range(20):
        e(f"v_lshlrev_b32 v{40+2*k}, 16, v{16+k}")
        e(f"v_and_b32 v{41+2*k}, 0xffff0000, v{16+k}")
    def lane_sum(srcs, acc):
        for a in range(4):
            e(f"v_add_f32 v{acc+a}, v{srcs[a]}, v{srcs[a+4]}")
        for k in range(8, len(srcs)):
            e(f"v_add_f32 v{acc+(k%4)}, v{acc+(k%4)}, v{srcs[k]}")
        e(f"v_add_f32 v{acc}, v{acc}, v{acc+1}")
        e(f"v_add_f32 v{acc+2}, v{acc+2}, v{acc+3}")
        e(f"v_add_f32 v{acc}, v{acc}, v{acc+2}")
        for sh in (8, 4, 2, 1):
            e("s_nop 1")
            e(f"v_add_f32_dpp v{acc}, v{acc}, v{acc} row_ror:{sh} row_mask:0xf bank_mask:0xf")
    lane_sum(list(range(40, 80)), 10)
    e("v_mul_f32 v14, 0x3acccccd, v10")
    for k in range(40):
        e(f"v_sub_f32 v{80+k}, v{40+k}, v14")
        e(f"v_mul_f32 v{80+k}, v{80+k}, v{80+k}")
    lane_sum(list(range(80, 120)), 10)
    e("v_mul_f32 v10, 0x3acccccd, v10")
    e("v_cvt_pk_bf16_f32 v10, v10, v14")
    e("v_and_b32 v14, 0xffff0000, v10")
    e("v_lshlrev_b32 v10, 16, v10")
    e("v_add_f32 v10, 0x3727c5ac, v10")
    e("v_cvt_pk_bf16_f32 v10, v10, v10")
    e("v_lshlrev_b32 v10, 16, v10")
    e("v_sqrt_f32 v10, v10")
    e("s_nop 0")
    e("v_cvt_pk_bf16_f32 v10, v10, v10")
    e("v_lshlrev_b32 v10, 16, v10")
    e("v_rcp_f32 v11, v10")
    e("s_nop 0")
    e("v_fma_f32 v12, -v10, v11, 2.0")
    e("v_mul_f32 v11, v11, v12")
    for k in range(20):
        e(f"v_sub_f32 v{40+2*k}, v{40+2*k}, v14")
        e(f"v_sub_f32 v{41+2*k}, v{41+2*k}, v14")
        e(f"v_cvt_pk_bf16_f32 v{16+k}, v{40+2*k}, v{41+2*k}")
        e(f"v_lshlrev_b32 v{40+2*k}, 16, v{16+k}")
        e(f"v_and_b32 v{41+2*k}, 0xffff0000, v{16+k}")
        e(f"v_mul_f32 v{40+2*k}, v{40+2*k}, v11")
        e(f"v_mul_f32 v{41+2*k}, v{41+2*k}, v11")
        e(f"v_cvt_pk_bf16_f32 v{16+k}, v{40+2*k}, v{41+2*k}")
    tl(2)
    for j in range(5):
        if "xnf" not in SKIP: e(f"buffer_store_dwordx4 v[{16+4*j}:{19+4*j}], v7, s[28:31], s6 offen")
        if j < 4: e("s_add_u32 s6, s6, 8192")
    for j in range(5):
        for el in range(8):
            r = 16 + 4*j + el//2
            op = "ds_write_b16_d16_hi" if el & 1 else "ds_write_b16"
            e(f"{op} v9, v{r} offset:{(128*j + el)*LNS}")
    e("v_lshrrev_b32 v10, 1, v0")
    e("v_and_b32 v11, 1, v0")
    e(f"v_mul_u32_u24 v12, {LNS}, v10")
    e("v_lshl_add_u32 v12, v11, 4, v12")
    e("v_lshlrev_b32 v13, 4, v0")
    e("s_mul_i32 s6, s2, 20480")
    e("s_add_u32 s6, s6, %d" % WS_XNT)
    e("s_waitcnt lgkmcnt(0)")
    e("s_barrier")
    tl(3)
    for j in range(5):
        e(f"ds_read2_b32 v[{40+4*j}:{41+4*j}], v12 offset0:{(128*j*LNS)//4 % 256} offset1:{(128*j*LNS)//4 % 256 + 1}")
        e(f"ds_read2_b32 v[{42+4*j}:{43+4*j}], v12 offset0:{(128*j*LNS)//4 % 256 + 2} offset1:{(128*j*LNS)//4 % 256 + 3}")
        if j < 4:
            nxt = (128*(j+1)*LNS)//4 // 256 - (128*j*LNS)//4 // 256
            e(f"v_add_u32 v12, {nxt*1024}, v12")
    for j in range(5):
        e(f"s_waitcnt lgkmcnt({2*(4-j)})")
        if "xnt" not in SKIP: e(f"buffer_store_dwordx4 v[{40+4*j}:{43+4*j}], v13, s[28:31], s6 offen")
        if j < 4: e("s_add_u32 s6, s6, %d" % (128*32))
    tl(5)
    if TL: e("s_waitcnt vmcnt(0)")
    tl_end(0)
    e("s_endpgm")
    lab("prep_wt")
    if W1D: gen_wt(KG_WGS + LN_WGS, 270, 540, "prep_end", 0, DLYW)
    else: gen_wt(KG_WGS + LN_WGS, 0, 270 if W2MID else 0, "prep_end", 0, DLYW)
    lab("prep_end")
    e("s_endpgm")
    kernel_desc("prep_kernel", 160 if EMU & 4 else 128)

G1_WGS = 256
CV_WGS = int(os.environ.get("NCV", 256)) if CVL else 640
W2_WGS = 68 if W2MID else 0
MID_WGS = G1_WGS + CV_WGS + W2_WGS
CS = 4160
def CB(c): return c*CS + (32 if c >= 4 else 0)
UB = CB(7) + CS - 80
G1_NS, G1_BD = int(os.environ.get('G1NS', 5)), int(os.environ.get('G1BD', 4))
MID_LDS = max(40960, 7168*G1_NS)

def mish_pairs(acc0, acc1, b0, b1r, dst, t):
    e(f"v_cvt_pk_bf16_f32 v{t}, v{acc0}, v{acc1}")
    e(f"v_lshlrev_b32 v{t+1}, 16, v{t}")
    e(f"v_and_b32 v{t+2}, 0xffff0000, v{t}")
    e(f"v_add_f32 v{t+1}, v{t+1}, v{b0}")
    e(f"v_add_f32 v{t+2}, v{t+2}, v{b1r}")
    e(f"v_cvt_pk_bf16_f32 v{t}, v{t+1}, v{t+2}")
    e(f"v_lshlrev_b32 v{t+1}, 16, v{t}")
    e(f"v_and_b32 v{t+2}, 0xffff0000, v{t}")
    if MISH2:
        e(f"v_mul_f32 v{t+3}, {LOG2E:#x}, v{t+1}")
        e(f"v_mul_f32 v{t+4}, {LOG2E:#x}, v{t+2}")
        e(f"v_exp_f32 v{t+3}, v{t+3}")
        e(f"v_exp_f32 v{t+4}, v{t+4}")
        e(f"s_nop 0")
        e(f"v_add_f32 v{t+3}, 1.0, v{t+3}")
        e(f"v_add_f32 v{t+4}, 1.0, v{t+4}")
        e(f"v_fmaak_f32 v{t+3}, v{t+3}, v{t+3}, 0x3f800000")
        e(f"v_fmaak_f32 v{t+4}, v{t+4}, v{t+4}, 0x3f800000")
        e(f"v_rcp_f32 v{t+3}, v{t+3}")
        e(f"v_rcp_f32 v{t+4}, v{t+4}")
        e(f"s_nop 0")
        e(f"v_fmaak_f32 v{t+3}, -2.0, v{t+3}, 0x3f800000")
        e(f"v_fmaak_f32 v{t+4}, -2.0, v{t+4}, 0x3f800000")
        e(f"v_mul_f32 v{t+1}, v{t+1}, v{t+3}")
        e(f"v_mul_f32 v{t+2}, v{t+2}, v{t+4}")
    else:
        e(f"v_min_f32 v{t+3}, 0x41a00000, v{t+1}")
        e(f"v_min_f32 v{t+4}, 0x41a00000, v{t+2}")
        e(f"v_mul_f32 v{t+3}, {LOG2E:#x}, v{t+3}")
        e(f"v_mul_f32 v{t+4}, {LOG2E:#x}, v{t+4}")
        e(f"v_exp_f32 v{t+3}, v{t+3}")
        e(f"v_exp_f32 v{t+4}, v{t+4}")
        e(f"s_nop 0")
        e(f"v_add_f32 v{t}, 2.0, v{t+3}")
        e(f"v_add_f32 v{t+5}, 2.0, v{t+4}")
        e(f"v_mul_f32 v{t+3}, v{t+3}, v{t}")
        e(f"v_mul_f32 v{t+4}, v{t+4}, v{t+5}")
        e(f"v_add_f32 v{t}, 2.0, v{t+3}")
        e(f"v_add_f32 v{t+5}, 2.0, v{t+4}")
        e(f"v_rcp_f32 v{t}, v{t}")
        e(f"v_rcp_f32 v{t+5}, v{t+5}")
        e(f"v_mul_f32 v{t+1}, v{t+1}, v{t+3}")
        e(f"v_mul_f32 v{t+2}, v{t+2}, v{t+4}")
        e(f"v_mul_f32 v{t+1}, v{t+1}, v{t}")
        e(f"v_mul_f32 v{t+2}, v{t+2}, v{t+5}")
    e(f"v_cvt_pk_bf16_f32 v{dst}, v{t+1}, v{t+2}")

def mish_quad(ac, T, dst):
    H = [T+4, T+8]; E = [T+6, T+10]; P = [T+12, T+13]
    pr = lambda r: f"v[{r}:{r+1}]"
    for q in range(2): e(f"v_cvt_pk_bf16_f32 v{P[q]}, v{ac+2*q}, v{ac+2*q+1}")
    for q in range(2):
        e(f"v_lshlrev_b32 v{H[q]}, 16, v{P[q]}")
        e(f"v_and_b32 v{H[q]+1}, 0xffff0000, v{P[q]}")
    for q in range(2): e(f"v_pk_add_f32 {pr(H[q])}, {pr(H[q])}, {pr(T+2*q)}")
    for q in range(2): e(f"v_cvt_pk_bf16_f32 v{P[q]}, v{H[q]}, v{H[q]+1}")
    for q in range(2):
        e(f"v_lshlrev_b32 v{H[q]}, 16, v{P[q]}")
        e(f"v_and_b32 v{H[q]+1}, 0xffff0000, v{P[q]}")
    for q in range(2): e(f"v_pk_mul_f32 {pr(E[q])}, {pr(H[q])}, s[46:47]")
    for q in range(2):
        e(f"v_exp_f32 v{E[q]}, v{E[q]}")
        e(f"v_exp_f32 v{E[q]+1}, v{E[q]+1}")
    for q in range(2): e(f"v_pk_add_f32 {pr(E[q])}, {pr(E[q])}, v[40:41]")
    for q in range(2): e(f"v_pk_fma_f32 {pr(E[q])}, {pr(E[q])}, {pr(E[q])}, v[40:41]")
    for q in range(2):
        e(f"v_rcp_f32 v{E[q]}, v{E[q]}")
        e(f"v_rcp_f32 v{E[q]+1}, v{E[q]+1}")
    for q in range(2): e(f"v_pk_fma_f32 {pr(E[q])}, {pr(E[q])}, v[42:43], v[40:41]")
    for q in range(2): e(f"v_pk_mul_f32 {pr(H[q])}, {pr(H[q])}, {pr(E[q])}")
    for q in range(2): e(f"v_cvt_pk_bf16_f32 v{dst+q}, v{H[q]}, v{H[q]+1}")

def gemm_loop(nA, nsteps, KS, NS, frag_reg, acc_reg, voff, srdws, sA0, sB0, stride, spiece, vlds_r_b, vlds_r_lane):
    nR = nA + 4
    npieces = nR * KS
    npw = (npieces + 3) // 4
    SZ = npieces * 1024
    nchunks = nsteps // KS
    assert nsteps % KS == 0
    e(f"s_sub_u32 s{sB0}, s{sB0}, {nA*stride}")
    for i in range(npw):
        g, l = spiece + 2*i, spiece + 2*i + 1
        e(f"s_add_u32 s{l}, s3, {4*i}")
        e(f"s_min_u32 s{l}, s{l}, {npieces-1}")
        sh = {1: 0, 2: 1, 4: 2}[KS]
        e(f"s_lshr_b32 s{g}, s{l}, {sh}")
        e(f"s_cmp_lt_u32 s{g}, {nA}")
        e(f"s_cselect_b32 s6, s{sA0}, s{sB0}")
        e(f"s_mul_i32 s{g}, s{g}, {stride}")
        e(f"s_add_u32 s{g}, s{g}, s6")
        e(f"s_and_b32 s6, s{l}, {KS-1}")
        e(f"s_lshl_b32 s6, s6, 10")
        e(f"s_add_u32 s{g}, s{g}, s6")
        e(f"s_lshl_b32 s{l}, s{l}, 10")
    def dma(c):
        slot = c % NS
        for i in range(npw):
            e(f"s_add_u32 m0, s{spiece+2*i+1}, {slot*SZ}")
            e("s_nop 0")
            e(f"buffer_load_dwordx4 v{voff}, s[{srdws}:{srdws+3}], s{spiece+2*i} offen lds")
        e(f"v_add_u32 v{voff}, {KS*1024}, v{voff}")
    per = nA + 1
    HALF = 2*SZ
    e(f"v_add_u32 v12, {HALF}, v{vlds_r_b}")
    e(f"v_add_u32 v13, {HALF}, v{vlds_r_lane}")
    e(f"v_add_u32 v14, {2*HALF}, v{vlds_r_b}")
    e(f"v_add_u32 v15, {2*HALF}, v{vlds_r_lane}")
    def reads(slot, q):
        fr = frag_reg + 4*per*q
        vb, vl, so = [(vlds_r_b, vlds_r_lane, slot*SZ), (12, 13, slot*SZ - HALF), (14, 15, slot*SZ - 2*HALF)][slot//2]
        e(f"ds_read_b128 v[{fr}:{fr+3}], v{vb} offset:{so + q*1024}")
        for a in range(nA):
            e(f"ds_read_b128 v[{fr+4+4*a}:{fr+7+4*a}], v{vl} offset:{so + a*KS*1024 + q*1024}")
    def mfmas(q):
        fr = frag_reg + 4*per*q
        for a in range(nA):
            ac = acc_reg + 16*a
            e(f"v_mfma_f32_32x32x16_bf16 v[{ac}:{ac+15}], v[{fr+4+4*a}:{fr+7+4*a}], v[{fr}:{fr+3}], v[{ac}:{ac+15}]")
    for c in range(min(NS-1, nchunks)):
        dma(c)
    for c in range(nchunks):
        inflight = min(NS-2, nchunks-1-c)
        e(f"s_waitcnt vmcnt({inflight*npw})")
        e("s_barrier")
        if nA == 2 and c == 0: stamp(2)
        if nA == 2 and c == 1: stamp(3)
        slot = c % NS
        if "rd" not in SKIP:
            for q in range(KS):
                reads(slot, q)
        if c + NS - 1 < nchunks and "dma" not in SKIP:
            dma(c + NS - 1)
        for q in range(KS):
            e(f"s_waitcnt lgkmcnt({(KS-1-q)*per})")
            if "mf" not in SKIP: mfmas(q)


UB2 = CB(7) + CS
HS = 2432
def gen_conv2():
    if "cv" in SKIP: e("s_endpgm")
    if PRIO & 8: e("s_setprio 3")
    if CP2:
        e("s_cmp_lt_u32 s2, %d" % CP2)
        e("s_cbranch_scc1 cv_np")
        e("s_setprio 3")
        lab("cv_np")
    srd(8, 60, D*2)
    def dmap(si):
        e(f"s_and_b32 s5, s{si}, 7")
        e("s_lshl_b32 s5, s5, 2")
        e(f"s_bfe_u32 s6, s{si}, 0x20003")
        e("s_or_b32 s5, s5, s6")
        e(f"s_andn2_b32 s4, s{si}, 31")
        e("s_or_b32 s4, s4, s5")
    def cvload():
        dmap(95)
        e("s_lshl_b32 s5, s4, 1")
        e("v_mov_b32 v144, s5")
        e("buffer_load_ushort v128, v144, s[8:11], 0 offen")
        e("s_lshl_b32 s5, s4, 5")
        e("s_add_u32 s5, s5, %d" % WS_XNT)
        e("buffer_load_dwordx4 v[132:135], v145, s[28:31], s5 offen")
        e("s_mul_i32 s6, s4, %d" % KR_STRIDE)
        e("s_add_u32 s6, s6, %d" % WS_KR)
        e("buffer_load_dwordx4 v[136:139], v146, s[28:31], s6 offen")
        e("buffer_load_dwordx4 v[140:143], v146, s[28:31], s6 offen offset:16")
    if CVL:
        e("s_sub_u32 s95, s2, %d" % G1_WGS)
        e("s_mov_b32 s89, -1")
        e("v_lshrrev_b32 v145, 1, v0")
        e("v_mul_u32_u24 v145, 20480, v145")
        e("v_and_b32 v146, 1, v0")
        e("v_lshl_add_u32 v145, v146, 4, v145")
        e("v_lshlrev_b32 v146, 4, v0")
        if DLYC: e(f"s_sleep {DLYC}")
        cvload()
        e("s_waitcnt vmcnt(0)")
        lab("cv_loop")
        e("s_waitcnt vmcnt(2)")
        e("v_mov_b32 v1, v128")
        for r in range(12): e(f"v_mov_b32 v{8+r}, v{132+r}")
        e("s_mov_b32 s93, s95")
        e("s_add_u32 s95, s95, %d" % CV_WGS)
        e("s_cmp_ge_u32 s95, 640")
        e("s_cbranch_scc1 cv_nl")
        cvload()
        lab("cv_nl")
        dmap(93)
        e("s_mov_b32 s93, s4")
        e("v_lshlrev_b32 v4, 4, v0")
    else:
        e("s_sub_u32 s4, s2, %d" % G1_WGS)
        e("s_and_b32 s5, s4, 7")
        e("s_lshl_b32 s5, s5, 2")
        e("s_bfe_u32 s6, s4, 0x20003")
        e("s_or_b32 s5, s5, s6")
        e("s_andn2_b32 s4, s4, 31")
        e("s_or_b32 s4, s4, s5")
        if FUSE: e("s_mov_b32 s93, s4")
        e("s_lshl_b32 s5, s4, 1")
        e("v_mov_b32 v3, s5")
        if DLYC: e(f"s_sleep {DLYC}")
        e("buffer_load_ushort v1, v3, s[8:11], 0 offen")
        e("s_lshl_b32 s5, s4, 5")
        e("s_add_u32 s5, s5, %d" % WS_XNT)
        e("v_lshrrev_b32 v4, 1, v0")
        e("v_mul_u32_u24 v4, 20480, v4")
        e("v_and_b32 v5, 1, v0")
        e("v_lshl_add_u32 v4, v5, 4, v4")
        e("buffer_load_dwordx4 v[8:11], v4, s[28:31], s5 offen")
        e("v_lshlrev_b32 v4, 4, v0")
        e("s_mul_i32 s6, s4, %d" % KR_STRIDE)
        e("s_add_u32 s6, s6, %d" % WS_KR)
        e("buffer_load_dwordx4 v[12:15], v4, s[28:31], s6 offen")
        e("buffer_load_dwordx4 v[16:19], v4, s[28:31], s6 offen offset:16")
    if not CV3:
        e("v_min_u32 v5, 3, v0")
        e("v_lshlrev_b32 v5, 4, v5")
        e("v_add_u32 v5, 4096, v5")
        e("buffer_load_dwordx4 v[20:23], v5, s[28:31], s6 offen")
        e("buffer_load_dwordx4 v[24:27], v5, s[28:31], s6 offen offset:16")
    for k in range(4):
        e(f"v_mov_b32 v{28+k}, 0")
    e("v_min_u32 v6, 31, v0")
    e("v_lshrrev_b32 v7, 4, v6")
    e("v_and_b32 v6, 15, v6")
    e("v_lshlrev_b32 v6, 4, v6")
    e(f"v_mad_u32_u24 v6, v7, {HS}, v6") if False else (e(f"v_mul_u32_u24 v7, {HS}, v7"), e("v_add_u32 v6, v6, v7"))
    if CV3:
        e("s_cmp_lg_u32 s3, 0")
        e("s_cbranch_scc1 cv_nz")
        e(f"v_add_u32 v6, {UB2}, v6")
        e("v_subrev_u32 v7, 32, v0")
        e("v_min_u32 v7, 7, v7")
        e("v_lshrrev_b32 v5, 2, v7")
        e(f"v_mul_u32_u24 v7, {CS}, v7")
        e("v_lshl_add_u32 v7, v5, 5, v7")
        e("v_add_u32 v7, 4096, v7")
        e("v_cmp_gt_u32 vcc, 32, v0")
        e("s_nop 1")
        e("v_cndmask_b32 v6, v7, v6, vcc")
        e("s_mov_b32 exec_hi, 0xff")
        e("ds_write_b128 v6, v[28:31]")
        e("s_mov_b32 exec_hi, -1")
        lab("cv_nz")
    else:
        e(f"ds_write_b128 v6, v[28:31] offset:{UB2}")
    e("v_lshrrev_b32 v6, 1, v0")
    e("v_lshlrev_b32 v6, 4, v6")
    e("v_and_b32 v7, 1, v0")
    e(f"v_mul_u32_u24 v7, {HS}, v7")
    e("v_add_u32 v6, v6, v7")
    if not CVL: e("s_waitcnt vmcnt(%d)" % (2 if CV3 else 4))
    e(f"ds_write_b128 v6, v[8:11] offset:{UB2 + 256}")
    def copies(w, vaddr):
        for c in range(8):
            if c % 2 == 0:
                e(f"ds_write_b128 v{vaddr}, v[{w+c//2}:{w+c//2+3}] offset:{CB(c)}") if (w + c//2) % 2 == 0 else None
                if (w + c//2) % 2:
                    for j in range(4):
                        e(f"v_mov_b32 v{32+j}, v{w+c//2+j}")
                    e(f"ds_write_b128 v{vaddr}, v[32:35] offset:{CB(c)}")
            else:
                for j in range(4):
                    e(f"v_alignbit_b32 v{36+j}, v{w+(c+1)//2+j}, v{w+(c-1)//2+j}, 16")
                e(f"ds_write_b128 v{vaddr}, v[36:39] offset:{CB(c)}")
    if not CVL: e("s_waitcnt vmcnt(%d)" % (0 if CV3 else 2))
    tl(1)
    copies(12, 4)
    if not CV3:
        e("s_waitcnt vmcnt(0)")
        copies(20, 5)
    e("v_and_b32 v3, 15, v2")
    e("v_lshrrev_b32 v4, 4, v2")
    e("v_sub_u32 v5, 7, v3")
    e("v_and_b32 v5, 7, v5")
    e("v_sub_u32 v6, 2031, v3")
    e("v_lshl_add_u32 v6, v4, 3, v6")
    e("v_sub_u32 v6, v6, v5")
    e("v_mul_u32_u24 v7, %d, v5" % CS)
    e("v_lshrrev_b32 v8, 2, v5")
    e("v_lshl_add_u32 v7, v8, 5, v7")
    e("v_lshl_add_u32 v6, v6, 1, v7")
    e("s_lshl_b32 s5, s3, 7")
    e(f"s_add_u32 s5, s5, {64 + 3584}")
    e("v_subrev_u32 v8, s5, v6")
    e("v_and_b32 v5, 1, v4")
    e("v_lshrrev_b32 v6, 1, v4")
    e(f"v_mul_u32_u24 v7, {HS}, v5")
    e("v_add_u32 v9, v3, v6")
    e("v_lshl_add_u32 v9, v9, 4, v7")
    e("s_lshl_b32 s5, s3, 6")
    e(f"s_sub_u32 s5, {UB2 + 16*15 - 32}, s5")
    e("v_add_u32 v9, s5, v9")
    e(f"v_mul_u32_u24 v11, {HS}, v6")
    e("v_lshl_add_u32 v11, v3, 4, v11")
    e("v_lshl_add_u32 v11, v5, 3, v11")
    e("s_lshl_b32 s5, s3, 9")
    e("v_add_u32 v11, s5, v11")
    e("v_lshlrev_b32 v12, 5, v3")
    e("v_lshl_add_u32 v12, v4, 3, v12")
    e("v_lshlrev_b32 v10, 4, v2")
    e("s_lshl_b32 s5, s3, 13")
    e("v_add_u32 v13, s5, v10")
    e("s_lshl_b32 s5, s3, 10")
    e("v_add_u32 v10, s5, v10")
    for r in range(16, 48):
        e(f"v_mov_b32 v{r}, 0")
    e("s_waitcnt lgkmcnt(0)")
    tl(2)
    if CVL:
        e("s_waitcnt vmcnt(4)")
        e("s_cmp_lt_u32 s95, 640")
        e("s_cbranch_scc1 cv_b1")
        e("s_waitcnt vmcnt(0)")
        lab("cv_b1")
    e("s_barrier")
    if CVL:
        e("s_cmp_lg_u32 s3, 0")
        e("s_cbranch_scc1 cv_s1")
        e("s_cmp_eq_u32 s89, -1")
        e("s_cbranch_scc1 cv_s1")
        e("s_mov_b64 exec, 1")
        e("v_mov_b32 v147, 1")
        e("v_mov_b32 v148, 0")
        e("buffer_atomic_add v147, v148, s[28:31], s89 offen sc1")
        e("s_mov_b64 exec, -1")
        lab("cv_s1")
    tl(3)
    free = list(range(48, 128, 4))
    loc = {}
    pend = []
    order = [("A",0),("B",7),("B",0),("A",7),("A",1),("B",6),("B",1),("A",6),("A",2),("B",5),("B",2),("A",5),("A",3),("B",4),("B",3),("A",4)]
    todo = [(st,) + o for st in range(2) for o in order]
    def rd(n):
        for _ in range(n):
            if not todo or not free or len(pend) >= 15: return
            key = todo.pop(0); r = free.pop(0); loc[key] = r
            st, ab, i = key
            if ab == "A": e(f"ds_read_b128 v[{r}:{r+3}], v8 offset:{512*(7-i) + 64*(1-st)}")
            else: e(f"ds_read_b128 v[{r}:{r+3}], v9 offset:{256*i + 32*(1-st)}")
            pend.append(key)
    def need(keys):
        idx = [pend.index(k) for k in keys if k in pend]
        if idx:
            last = max(idx)
            e(f"s_waitcnt lgkmcnt({len(pend) - 1 - last})")
            del pend[:last+1]
    groups = []
    for s_ in (7, 6, 5, 4, 3, 2, 1, 0):
        n = min(s_, 7 - s_)
        g = [(s_, m) for m in range(n + 1)] + [(j, s_) for j in range(min(s_ - 1, 7 - s_) + 1)]
        groups.append((s_, g))
    assert sum(len(g) for _, g in groups) == 36
    rd(20)
    for st in range(2):
        for s_, g in groups:
            need([(st, "B", j) for j, m in g] + [(st, "A", m) for j, m in g])
            for j, m in g:
                ac = 16 + 4*(j + m); a = loc[(st, "A", m)]; b = loc[(st, "B", j)]
                e(f"v_mfma_f32_16x16x32_bf16 v[{ac}:{ac+3}], v[{a}:{a+3}], v[{b}:{b+3}], v[{ac}:{ac+3}]")
            free.append(loc[(st, "A", s_)]); free.append(loc[(st, "B", s_)])
            rd(8)
    assert not todo and not pend
    tl(4)
    e("s_nop 15")
    e("s_barrier")
    for t in range(8):
        if CV3 & 2 and t % 2 == 0:
            e(f"s_cmp_eq_u32 s3, {t//2}")
            e(f"s_cbranch_scc1 cv_sk{t//2}")
        e(f"ds_write_b128 v10, v[{16+4*t}:{19+4*t}] offset:{4096*t}")
        if CV3 & 2 and t % 2 == 1:
            e(f"s_branch cv_nx{t//2}")
            lab(f"cv_sk{t//2}")
            for tt in range(2):
                for r in range(4):
                    e(f"v_mov_b32 v{48+16*tt+r}, v{16+4*(t-1+tt)+r}")
            lab(f"cv_nx{t//2}")
    if CV3 & 2:
        for i in range(1, 4):
            e(f"s_add_u32 s5, s3, {i}")
            e("s_and_b32 s5, s5, 3")
            e("s_lshl_b32 s5, s5, 10")
            e(f"v_add_u32 v{4+i}, s5, v13")
    for tt in range(2):
        e(f"ds_read_b64 v[{80+2*tt}:{81+2*tt}], v11 offset:{UB2 + 256 + 256*tt}")
    e("s_lshl_b32 s5, s4, 12")
    e("s_lshl_b32 s6, s3, 10")
    e("s_add_u32 s5, s5, s6")
    e("s_add_u32 s5, s5, %d" % WS_AT)
    e("v_lshlrev_b32 v1, 16, v1")
    e("s_waitcnt lgkmcnt(0)")
    e("s_barrier")
    for i in range(8):
        if CV3 & 2:
            if i % 4: e(f"ds_read_b128 v[{48+4*i}:{51+4*i}], v{4+i%4} offset:{4096*(i//4)}")
        else:
            e(f"ds_read_b128 v[{48+4*i}:{51+4*i}], v13 offset:{1024*i}")
    for tt in range(2):
        for p_ in range(2):
            u = 80 + 2*tt + p_
            e(f"v_lshlrev_b32 v84, 16, v{u}")
            e(f"v_and_b32 v85, 0xffff0000, v{u}")
            e(f"v_mul_f32 v84, v84, v1")
            e(f"v_mul_f32 v85, v85, v1")
            e(f"v_cvt_pk_bf16_f32 v84, v84, v85")
            e(f"v_lshlrev_b32 v{88+4*tt+2*p_}, 16, v84")
            e(f"v_and_b32 v{89+4*tt+2*p_}, 0xffff0000, v84")
    for tt in range(2):
        e(f"s_waitcnt lgkmcnt({(3 - 3*tt) if CV3 & 2 else (4 - 4*tt)})")
        b0 = 48 + 16*tt
        for r in range(4):
            e(f"v_add_f32 v{b0+r}, v{b0+r}, v{b0+4+r}")
            e(f"v_add_f32 v{b0+8+r}, v{b0+8+r}, v{b0+12+r}")
        for r in range(4):
            e(f"v_add_f32 v{b0+r}, v{b0+r}, v{b0+8+r}")
        for p_ in range(2):
            e(f"v_cvt_pk_bf16_f32 v84, v{b0+2*p_}, v{b0+2*p_+1}")
            e(f"v_lshlrev_b32 v85, 16, v84")
            e(f"v_and_b32 v86, 0xffff0000, v84")
            e(f"v_add_f32 v85, v85, v{88+4*tt+2*p_}")
            e(f"v_add_f32 v86, v86, v{89+4*tt+2*p_}")
            e(f"v_cvt_pk_bf16_f32 v{96+2*tt+p_}, v85, v86")
        e(f"buffer_store_dwordx2 v[{96+2*tt}:{97+2*tt}], v12, s[28:31], s5 offen offset:{512*tt}")
    if FUSE:
        e("s_mul_i32 s7, s93, 205")
        e("s_lshr_b32 s7, s7, 14")
        e("s_add_u32 s7, s7, 16")
        if CVL:
            e("s_lshl_b32 s89, s7, 6")
            e("s_add_u32 s89, s89, %d" % WS_CNT)
            e("s_cmp_ge_u32 s95, 640")
            e("s_cbranch_scc1 cv_last")
            e("s_barrier")
            e("s_branch cv_loop")
            lab("cv_last")
        if MB2:
            e("s_sub_u32 s7, s7, 16")
            e("s_mul_i32 s6, s7, 80")
            e("s_sub_u32 s6, s93, s6")
            e("s_lshl_b32 s6, s6, 2")
            e("s_lshl_b32 s7, s7, 9")
            e("s_add_u32 s6, s6, s7")
            e("s_add_u32 s6, s6, %d" % WS_MB2)
            e("s_waitcnt vmcnt(0)")
            e("s_barrier")
            e("s_cmp_lg_u32 s3, 0")
            e("s_cbranch_scc1 cv_sig")
            e("s_mov_b32 exec_hi, 0")
            e("v_mov_b32 v12, 1")
            e("v_lshlrev_b32 v13, 12, v2")
            e("buffer_store_dword v12, v13, s[28:31], s6 offen")
            lab("cv_sig")
        else: signal(7, "cv_sig")
    tl(5)
    if TL: e("s_waitcnt vmcnt(0)")
    tl_end(1)

def gen_mid():
    kernel_begin("mid_kernel")
    e("s_cmp_ge_u32 s2, %d" % (MID_WGS - SPL))
    e("s_cbranch_scc1 mid_end")
    if EMU & 2:
        e("s_cmp_lt_u32 s2, 256")
        e("s_cbranch_scc1 mid_end")
    lab("mid_body")
    if FUSE: e("s_mov_b32 s90, s2")
    tl_begin()
    e("s_load_dwordx2 s[56:57], s[0:1], 104")
    e("s_load_dwordx2 s[58:59], s[0:1], 72")
    e("s_load_dwordx2 s[60:61], s[0:1], 48")
    if W1D: e("s_load_dwordx2 s[62:63], s[0:1], 64")
    e("v_lshrrev_b32 v1, 6, v0")
    e("v_and_b32 v2, 63, v0")
    e("s_nop 0")
    e("v_readfirstlane_b32 s3, v1")
    e("s_waitcnt lgkmcnt(0)")
    srd(28, 56, WS_SIZE)
    if W2MID:
        e("s_cmp_ge_u32 s2, %d" % (G1_WGS + CV_WGS))
        e("s_cbranch_scc1 mid_wt")
    e("s_cmp_ge_u32 s2, %d" % G1_WGS)
    e("s_cbranch_scc1 mid_conv")
    if "g1" in SKIP: e("s_endpgm")
    if PRIO & 4: e("s_setprio 3")
    srd(8, 58, F*2)
    if W1D: srd(12, 62, D*F*2)
    tl(1)
    if not EMU & 1: claim_tile(0, 32, 7168*G1_NS, "mcl")
    elif SCL & 1: static_claim()
    if FUSE and not SPL: e("s_mov_b32 s90, s2")
    tl(2)
    if G1MAP == 0:
        e("s_lshr_b32 s5, s2, 4")
        e("s_and_b32 s4, s2, 15")
    else:
        e("s_lshr_b32 s5, s2, 6")
        e("s_lshl_b32 s5, s5, 2")
        e("s_bfe_u32 s6, s2, 0x20003")
        e("s_add_u32 s5, s5, s6")
        e("s_bfe_u32 s4, s2, 0x10005")
        e("s_lshl_b32 s4, s4, 3")
        e("s_and_b32 s6, s2, 7")
        e("s_add_u32 s4, s4, s6")
    if MBX: e("s_lshl_b32 s88, s4, 2")
    e("s_mul_i32 s6, s4, 7")
    e("s_sub_u32 s7, s4, 12")
    e("s_cmp_lt_u32 s4, 12")
    e("s_cselect_b32 s7, 0, s7")
    e("s_cselect_b32 s26, 7, 6")
    e("s_sub_u32 s4, s6, s7")
    e("v_and_b32 v3, 15, v2")
    e("v_lshrrev_b32 v4, 4, v2")
    e("v_lshrrev_b32 v5, 1, v4")
    e("v_and_b32 v6, 1, v4")
    e("v_lshlrev_b32 v7, 4, v3")
    e("v_lshl_add_u32 v7, v5, 10, v7")
    e("v_lshl_add_u32 v7, v6, 9, v7")
    e("v_mov_b32 v8, v7")
    for k in range(2):
        e(f"s_add_u32 s6, s3, {4*k}")
        e("s_min_u32 s6, s6, 6")
        e(f"s_lshl_b32 s{42+k}, s6, 10")
        if W1D:
            vd = 7 if k == 0 else 11
            e("s_lshl_b32 s6, s6, 6")
            e("v_add_u32 v12, s6, v2")
            e("v_mul_u32_u24 v13, 4682, v12")
            e("v_lshrrev_b32 v13, 16, v13")
            e("v_mul_u32_u24 v14, 14, v13")
            e("v_sub_u32 v12, v12, v14")
            e("v_and_b32 v14, 0x13, v13")
            e("v_bfe_u32 v15, v13, 2, 1")
            e("v_lshl_or_b32 v14, v15, 3, v14")
            e("v_bfe_u32 v15, v13, 3, 1")
            e("v_lshl_or_b32 v14, v15, 2, v14")
            e("v_mul_u32_u24 v14, 3456, v14")
            e(f"v_lshl_add_u32 v{vd}, v12, 4, v14")
            if k == 1: e("s_lshl_b32 s40, s4, 5")
            continue
        e("s_add_u32 s6, s6, s4")
        e("s_min_u32 s6, s6, 107")
        e(f"s_lshr_b32 s{40+k}, s6, 1")
        e(f"s_mul_i32 s{40+k}, s{40+k}, {40*1024}")
        e("s_and_b32 s6, s6, 1")
        e("s_lshl_b32 s6, s6, 8")
        e(f"s_add_u32 s{40+k}, s{40+k}, s6")
        e(f"s_add_u32 s{40+k}, s{40+k}, {WS_W1F}")
    e("s_lshl_b32 s6, s5, 2")
    e("s_add_u32 s27, s6, s3")
    e("s_mul_i32 s44, s27, %d" % (40*1024))
    e("s_add_u32 s44, s44, %d" % WS_XNF)
    if "g1y" in SKIP:
        e("s_xor_b32 s45, s27, 1")
        e("s_mul_i32 s45, s45, %d" % (40*1024))
    e("v_lshlrev_b32 v9, 4, v2")
    if W1D:
        e("v_bfe_u32 v12, v2, 2, 3")
        e("v_lshl_add_u32 v12, v5, 4, v12")
        e("v_mul_u32_u24 v12, 224, v12")
        e("v_and_b32 v9, 3, v2")
        e("v_lshl_add_u32 v9, v9, 3, v12")
    NS, BD, NSTEP = G1_NS, G1_BD, 20
    NB = int(os.environ.get("G1NB", 6))
    AF, BF, ACC, BI = 16, 16 + 4*NB, 16 + 4*NB + 8*G1_BD, 44
    assert ACC + 56 <= 128
    pend = []
    def dma(st):
        for k in range(2):
            e(f"s_add_u32 m0, s{42+k}, {(st % NS)*7168}")
            e("s_nop 0")
            if W1D: e(f"buffer_load_dwordx4 v{7 if k == 0 else 11}, s[12:15], s40 offen lds")
            else: e(f"buffer_load_dwordx4 v7, s[28:31], s{40+k} offen lds")
            pend.append(("a", st))
        if W1D: e("s_add_u32 s40, s40, %d" % (32*3456))
        else: e("v_add_u32 v7, 2048, v7")
    def bld(st):
        r = BF + 8*(st % BD)
        e(f"buffer_load_dwordx4 v[{r}:{r+3}], v8, s[28:31], s44 offen")
        e(f"buffer_load_dwordx4 v[{r+4}:{r+7}], v8, s[28:31], s44 offen offset:256")
        pend.append(("b", st)); pend.append(("b", st))
        if "g1y" in SKIP:
            e(f"buffer_load_dwordx4 v[{r}:{r+3}], v8, s[28:31], s45 offen")
            e(f"buffer_load_dwordx4 v[{r+4}:{r+7}], v8, s[28:31], s45 offen offset:256")
            pend.append(("b", st)); pend.append(("b", st))
        e("v_add_u32 v8, 2048, v8")
    def wait_for(*tags):
        idx = [i for i, p in enumerate(pend) if p in tags]
        if not idx: return
        last = max(idx)
        e(f"s_waitcnt vmcnt({len(pend) - 1 - last})")
        del pend[:last+1]
    def rdA(g):
        st, t = divmod(g, 7)
        if st >= NSTEP: return
        r = AF + 4*(g % NB)
        if W1D:
            e(f"ds_read_b64_tr_b16 v[{r}:{r+1}], v9 offset:{(st % NS)*7168 + 32*t}")
            e(f"ds_read_b64_tr_b16 v[{r+2}:{r+3}], v9 offset:{(st % NS)*7168 + 32*t + 1792}")
        else: e(f"ds_read_b128 v[{r}:{r+3}], v9 offset:{(st % NS)*7168 + 1024*t}")
    for st in range(max(NS-1, BD)):
        if st < NS-1: dma(st)
        if st < BD: bld(st)
    e("s_lshl_b32 s6, s4, 5")
    e("v_lshl_add_u32 v10, v4, 3, s6")
    for r in range(ACC, ACC+56):
        e(f"v_mov_b32 v{r}, 0")
    if LCL: claim_tile(0, 32, 7168*G1_NS, "mcl", part1=True)
    wait_for(("a", 0))
    e("s_barrier")
    tl(3)
    for t in range(NB): rdA(t)
    for st in range(NSTEP):
        if st + 1 < NSTEP:
            wait_for(("a", st+1), ("b", st))
            e("s_barrier")
            if st - 1 + NS < NSTEP: dma(st - 1 + NS)
        else:
            wait_for(("b", st))
        rb = BF + 8*(st % BD)
        for t in range(7):
            g = 7*st + t
            e(f"s_waitcnt lgkmcnt({(2 if W1D else 1)*min(NB - 1, 7*NSTEP - 1 - g)})")
            ra_ = AF + 4*(g % NB)
            for b_ in range(2):
                ac = ACC + 4*(2*t + b_)
                e(f"v_mfma_f32_16x16x32_bf16 v[{ac}:{ac+3}], v[{ra_}:{ra_+3}], v[{rb+4*b_}:{rb+4*b_+3}], v[{ac}:{ac+3}]")
            rdA(g + NB)
        if st + BD < NSTEP: bld(st + BD)
        if st == NSTEP - 2:
            assert BD >= 3
            free = [BF + 8*((NSTEP-3) % BD), BF + 8*((NSTEP-2) % BD)]
            BIr = [free[0] + 2*k for k in range(4)] + [free[1] + 2*k for k in range(3)]
            for t in range(7):
                e(f"buffer_load_dwordx2 v[{BIr[t]}:{BIr[t]+1}], v10, s[8:11], 0 offen offset:{32*t}")
                pend.append(("c", 0))
    e("s_nop 7")
    e("s_waitcnt vmcnt(0)")
    tl(4)
    e("s_mul_i32 s6, s27, 108")
    e("s_add_u32 s6, s6, s4")
    e("s_lshl_b32 s6, s6, 10")
    e("s_add_u32 s6, s6, %d" % WS_ACT)
    e("v_lshlrev_b32 v9, 4, v3")
    e("v_lshl_add_u32 v9, v5, 9, v9")
    e("v_lshl_add_u32 v9, v6, 3, v9")
    T = 16
    if MISH2 == 2:
        e(f"s_mov_b32 s46, {LOG2E:#x}")
        e(f"s_mov_b32 s47, {LOG2E:#x}")
        e("v_mov_b32 v40, 1.0"); e("v_mov_b32 v41, 1.0")
        e("v_mov_b32 v42, -2.0"); e("v_mov_b32 v43, -2.0")
    for t in range(7):
        if t == 6:
            e("s_cmp_lt_u32 s26, 7")
            e("s_cbranch_scc1 g1_end")
        r = BIr[t]
        e(f"v_lshlrev_b32 v{T}, 16, v{r}")
        e(f"v_and_b32 v{T+1}, 0xffff0000, v{r}")
        e(f"v_lshlrev_b32 v{T+2}, 16, v{r+1}")
        e(f"v_and_b32 v{T+3}, 0xffff0000, v{r+1}")
        for b_ in range(2):
            ac = ACC + 4*(2*t + b_)
            d0 = T + 16 + 2*((2*t + b_) % 4)
            if MISH2 == 2:
                mish_quad(ac, T, d0)
            else:
                mish_pairs(ac, ac+1, T, T+1, d0, T+4)
                mish_pairs(ac+2, ac+3, T+2, T+3, d0+1, T+10)
            off = (t % 4)*1024 + 256*b_
            e(f"buffer_store_dwordx2 v[{d0}:{d0+1}], v9, s[28:31], s6 offen offset:{off}")
        if t == 3: e("s_add_u32 s6, s6, 4096")
    lab("g1_end")
    tl(5)
    if TL: e("s_waitcnt vmcnt(0)")
    tl_end(1)
    if FUSE and not SPL:
        if MBX:
            e("s_waitcnt vmcnt(0)")
            e("s_barrier")
            e("s_cmp_lg_u32 s3, 0")
            e("s_cbranch_scc1 g1_sig")
            e("s_lshl_b32 s6, s5, %d" % (MBX + 4))
            e("s_add_u32 s6, s6, s88")
            e("s_add_u32 s6, s6, %d" % WS_MB)
            e("s_mov_b64 exec, 0xffff")
            e("v_mov_b32 v12, 1")
            e("v_lshlrev_b32 v13, %d, v2" % MBX)
            e("buffer_store_dword v12, v13, s[28:31], s6 offen")
            e("s_mov_b64 exec, -1")
            lab("g1_sig")
        else: signal(5, "g1_sig")
        e("s_mov_b32 s2, s90")
        e("s_branch fin_body")
    e("s_endpgm")
    lab("mid_conv")
    if CONV2:
        gen_conv2()
    else:
        if "cv" in SKIP: e("s_endpgm")
        if PRIO & 8: e("s_setprio 3")
        srd(8, 60, D*2)
        e("s_sub_u32 s4, s2, %d" % G1_WGS)
        e("s_and_b32 s5, s4, 7")
        e("s_lshl_b32 s5, s5, 2")
        e("s_bfe_u32 s6, s4, 0x20003")
        e("s_or_b32 s5, s5, s6")
        e("s_andn2_b32 s4, s4, 31")
        e("s_or_b32 s4, s4, s5")
        e("s_lshl_b32 s5, s4, 1")
        e("v_mov_b32 v3, s5")
        if DLYC: e(f"s_sleep {DLYC}")
        e("buffer_load_ushort v1, v3, s[8:11], 0 offen")
        e("s_lshl_b32 s5, s4, 5")
        e("s_add_u32 s5, s5, %d" % WS_XNT)
        e("v_lshrrev_b32 v4, 1, v0")
        e("v_mul_u32_u24 v4, 20480, v4")
        e("v_and_b32 v5, 1, v0")
        e("v_lshl_add_u32 v4, v5, 4, v4")
        e("buffer_load_dwordx4 v[8:11], v4, s[28:31], s5 offen")
        e("v_lshlrev_b32 v4, 4, v0")
        e("s_mul_i32 s6, s4, %d" % KR_STRIDE)
        e("s_add_u32 s6, s6, %d" % WS_KR)
        e("buffer_load_dwordx4 v[12:15], v4, s[28:31], s6 offen")
        e("buffer_load_dwordx4 v[16:19], v4, s[28:31], s6 offen offset:16")
        e("v_min_u32 v5, 3, v0")
        e("v_lshlrev_b32 v5, 4, v5")
        e("v_add_u32 v5, 4096, v5")
        e("buffer_load_dwordx4 v[20:23], v5, s[28:31], s6 offen")
        e("buffer_load_dwordx4 v[24:27], v5, s[28:31], s6 offen offset:16")
        for k in range(4):
            e(f"v_mov_b32 v{28+k}, 0")
        e("v_min_u32 v6, 154, v0")
        e("v_lshlrev_b32 v6, 4, v6")
        e(f"ds_write_b128 v6, v[28:31] offset:{UB + 80}")
        e("v_lshrrev_b32 v6, 2, v0")
        e("v_mul_u32_u24 v6, 80, v6")
        e("v_and_b32 v7, 3, v0")
        e("v_lshl_add_u32 v6, v7, 4, v6")
        e("s_waitcnt vmcnt(4)")
        e(f"ds_write_b128 v6, v[8:11] offset:{UB + 32*80}")
        def copies(w, vaddr):
            for c in range(8):
                if c % 2 == 0:
                    e(f"ds_write_b128 v{vaddr}, v[{w+c//2}:{w+c//2+3}] offset:{CB(c)}") if (w + c//2) % 2 == 0 else None
                    if (w + c//2) % 2:
                        for j in range(4):
                            e(f"v_mov_b32 v{32+j}, v{w+c//2+j}")
                        e(f"ds_write_b128 v{vaddr}, v[32:35] offset:{CB(c)}")
                else:
                    for j in range(4):
                        e(f"v_alignbit_b32 v{36+j}, v{w+(c+1)//2+j}, v{w+(c-1)//2+j}, 16")
                    e(f"ds_write_b128 v{vaddr}, v[36:39] offset:{CB(c)}")
        e("s_waitcnt vmcnt(2)")
        tl(1)
        copies(12, 4)
        e("s_waitcnt vmcnt(0)")
        copies(20, 5)
        e("s_waitcnt lgkmcnt(0)")
        tl(2)
        e("s_barrier")
        tl(3)
        e("v_and_b32 v3, 31, v2")
        e("v_lshrrev_b32 v4, 5, v2")
        e("v_sub_u32 v5, 7, v3")
        e("v_and_b32 v5, 7, v5")
        e("v_sub_u32 v6, 2047, v3")
        e("v_lshl_add_u32 v6, v4, 3, v6")
        e("v_sub_u32 v6, v6, v5")
        e("v_mul_u32_u24 v7, %d, v5" % CS)
        e("v_lshrrev_b32 v8, 2, v5")
        e("v_lshl_add_u32 v7, v8, 5, v7")
        e("v_lshl_add_u32 v6, v6, 1, v7")
        e("v_mul_u32_u24 v7, 80, v3")
        e("v_lshl_add_u32 v7, v4, 4, v7")
        e(f"v_add_u32 v7, {UB + 32*80}, v7")
        for r in range(16, 48):
            e(f"v_mov_b32 v{r}, 0")
        e("s_lshl_b32 s5, s3, 9")
        e(f"s_add_u32 s5, s5, {64*7 + 64*32}")
        e("v_subrev_u32 v8, s5, v6")
        e("s_mul_i32 s5, s3, 640")
        e(f"s_add_u32 s5, s5, {80*7}")
        e("v_subrev_u32 v9, s5, v7")
        def rd(q):
            base = 48 + (q & 1)*32
            for t in range(2):
                fa = base + 16*t
                e(f"ds_read_b128 v[{fa}:{fa+3}], v8 offset:{64*(7-q) + 2048 + 32*t}")
                e(f"ds_read_b128 v[{fa+4}:{fa+7}], v9 offset:{80*(7-q) + 32*t}")
                e(f"ds_read_b128 v[{fa+8}:{fa+11}], v9 offset:{80*(7-q) + 2560 + 32*t}")
                e(f"ds_read_b128 v[{fa+12}:{fa+15}], v8 offset:{64*(7-q) + 32*t}")
        def mm(q):
            base = 48 + (q & 1)*32
            for t in range(2):
                fa = base + 16*t
                e(f"v_mfma_f32_32x32x16_bf16 v[16:31], v[{fa}:{fa+3}], v[{fa+4}:{fa+7}], v[16:31]")
                e(f"v_mfma_f32_32x32x16_bf16 v[32:47], v[{fa}:{fa+3}], v[{fa+8}:{fa+11}], v[32:47]")
                e(f"v_mfma_f32_32x32x16_bf16 v[32:47], v[{fa+12}:{fa+15}], v[{fa+4}:{fa+7}], v[32:47]")
        rd(0)
        for q in range(8):
            if q < 7:
                rd(q + 1)
                e("s_waitcnt lgkmcnt(8)")
            else:
                e("s_waitcnt lgkmcnt(0)")
            mm(q)
        tl(4)
        e("s_nop 15")
        e("s_barrier")
        e("v_lshlrev_b32 v10, 4, v2")
        e("s_cmp_eq_u32 s3, 0")
        e("s_cbranch_scc1 cv_w0")
        e("s_sub_u32 s5, s3, 1")
        e("s_lshl_b32 s5, s5, 12")
        e("v_add_u32 v11, s5, v10")
        for r in range(4):
            e(f"ds_write_b128 v11, v[{16+4*r}:{19+4*r}] offset:{1024*r}")
        lab("cv_w0")
        e("s_cmp_eq_u32 s3, 1")
        e("s_cbranch_scc1 cv_w1")
        e("s_sub_u32 s5, s3, 1")
        e("s_max_i32 s5, s5, 0")
        e("s_lshl_b32 s5, s5, 12")
        e("v_add_u32 v11, s5, v10")
        for r in range(4):
            e(f"ds_write_b128 v11, v[{32+4*r}:{35+4*r}] offset:{12288 + 1024*r}")
        e("s_branch cv_w2")
        lab("cv_w1")
        for r in range(16):
            e(f"v_mov_b32 v{16+r}, v{32+r}")
        e("v_add_u32 v10, 12288, v10")
        lab("cv_w2")
        e("s_waitcnt lgkmcnt(0)")
        e("s_barrier")
        e("s_cmp_ge_u32 s3, 2")
        e("s_cbranch_scc1 mid_end")
        for sl in range(3):
            for r in range(4):
                e(f"ds_read_b128 v[{48+16*sl+4*r}:{51+16*sl+4*r}], v10 offset:{4096*sl + 1024*r}")
        for sl in range(3):
            e(f"s_waitcnt lgkmcnt({8-4*sl})")
            for r in range(16):
                e(f"v_add_f32 v{16+r}, v{16+r}, v{48+16*sl+r}")
        lab("cv_epi")
        e("s_mul_i32 s5, s3, %d" % (32*80))
        e("v_mul_u32_u24 v11, 80, v3")
        e("v_lshl_add_u32 v11, v4, 3, v11")
        e("v_add_u32 v11, s5, v11")
        for g in range(4):
            e(f"ds_read_b64 v[{32+2*g}:{33+2*g}], v11 offset:{UB + 32*80 + 16*g}")
        e("s_lshl_b32 s5, s4, 12")
        e("s_lshl_b32 s6, s3, 11")
        e("s_add_u32 s5, s5, s6")
        e("s_add_u32 s5, s5, %d" % WS_AT)
        e("v_lshlrev_b32 v12, 6, v3")
        e("v_lshl_add_u32 v12, v4, 3, v12")
        e("s_waitcnt vmcnt(0) lgkmcnt(0)")
        e("v_lshlrev_b32 v1, 16, v1")
        for g in range(4):
            for p in range(2):
                u = 32 + 2*g + p
                y0 = 16 + 4*g + 2*p
                e(f"v_lshlrev_b32 v44, 16, v{u}")
                e(f"v_and_b32 v45, 0xffff0000, v{u}")
                e(f"v_mul_f32 v44, v44, v1")
                e(f"v_mul_f32 v45, v45, v1")
                e(f"v_cvt_pk_bf16_f32 v44, v44, v45")
                e(f"v_cvt_pk_bf16_f32 v46, v{y0}, v{y0+1}")
                e(f"v_lshlrev_b32 v47, 16, v44")
                e(f"v_and_b32 v48, 0xffff0000, v44")
                e(f"v_lshlrev_b32 v49, 16, v46")
                e(f"v_and_b32 v50, 0xffff0000, v46")
                e(f"v_add_f32 v47, v47, v49")
                e(f"v_add_f32 v48, v48, v50")
                e(f"v_cvt_pk_bf16_f32 v{52+2*g+p}, v47, v48")
            e(f"buffer_store_dwordx2 v[{52+2*g}:{53+2*g}], v12, s[28:31], s5 offen offset:{16*g}")
        tl(5)
        if TL: e("s_waitcnt vmcnt(0)")
        tl_end(1)
    if W2MID:
        e("s_endpgm")
        lab("mid_wt")
        gen_wt(G1_WGS + CV_WGS, 270, 540, "mid_end", 1, int(os.environ.get("DLYW2", 0)))
    lab("mid_end")
    e("s_endpgm")
    if SPL: kernel_desc("mid_kernel", 128)
    elif FUSE == 2: kernel_desc("mid_kernel", 128, agpr=40)
    elif FUSE: kernel_desc("mid_kernel", 160, agpr=80)
    else: kernel_desc("mid_kernel", 128)

G2_WGS = 256
FIN_LDS = 61440 + 64
FDEPTH = 2 if FUSE == 2 else int(os.environ.get('FDEPTH', 4))
def gen_fin():
    if SPL:
        kernel_begin("fin_kernel")
        e("s_cmp_ge_u32 s2, %d" % (G2_WGS + SPL))
        e("s_cbranch_scc1 fin_end")
        e("s_cmp_lt_u32 s2, %d" % G2_WGS)
        e("s_cbranch_scc1 fin_body")
        e("s_add_u32 s2, s2, %d" % (640 - SPL))
        e("s_branch mid_body")
        lab("fin_body")
    elif FUSE:
        out.append(".text"); lab("fin_kernel"); lab("fin_body")
    else:
        kernel_begin("fin_kernel")
        e("s_cmp_ge_u32 s2, %d" % G2_WGS)
        e("s_cbranch_scc1 fin_end")
    e("s_load_dwordx2 s[56:57], s[0:1], 104")
    e("s_load_dwordx2 s[58:59], s[0:1], 0")
    e("s_load_dwordx2 s[60:61], s[0:1], 88")
    e("v_lshrrev_b32 v1, 6, v0")
    e("v_and_b32 v2, 63, v0")
    e("s_nop 0")
    e("v_readfirstlane_b32 s3, v1")
    if FMAP == 2:
        e("s_and_b32 s5, s2, 31")
        e("s_lshr_b32 s4, s2, 5")
    elif FMAP == 3:
        e("s_lshr_b32 s5, s2, 3")
        e("s_and_b32 s4, s2, 7")
    else:
        if LCL:
            e(f"v_mov_b32 v13, {7168*G1_NS}")
            e("ds_read_b32 v14, v13")
            e("s_waitcnt lgkmcnt(0)")
            e("v_readfirstlane_b32 s2, v14")
        elif FUSE and not SPL: pass
        elif SCL & 2: static_claim()
        else:
            e("s_waitcnt lgkmcnt(0)")
            srd(28, 56, WS_SIZE)
            claim_tile(8 << CSH, 32, 61440, "fcl")
        if FMAP == 0:
            e("s_lshr_b32 s5, s2, 5")
            e("s_lshl_b32 s5, s5, 2")
            e("s_and_b32 s6, s2, 3")
            e("s_add_u32 s5, s5, s6")
            e("s_bfe_u32 s4, s2, 0x30002")
        else:
            e("s_lshr_b32 s5, s2, 6")
            e("s_lshl_b32 s5, s5, 3")
            e("s_and_b32 s6, s2, 7")
            e("s_add_u32 s5, s5, s6")
            e("s_bfe_u32 s4, s2, 0x10005")
            e("s_lshl_b32 s4, s4, 2")
            e("s_bfe_u32 s6, s2, 0x20003")
            e("s_add_u32 s4, s4, s6")
    e("v_and_b32 v3, 15, v2")
    e("v_lshrrev_b32 v4, 4, v2")
    e("v_lshrrev_b32 v5, 1, v4")
    e("v_and_b32 v6, 1, v4")
    e("v_lshlrev_b32 v7, 4, v3")
    e("v_lshl_add_u32 v7, v5, 10, v7")
    e("v_lshl_add_u32 v7, v6, 9, v7")
    e("s_lshl_b32 s6, s3, 11")
    e("v_add_u32 v7, s6, v7")
    e("s_mul_i32 s6, s4, 5")
    for a_ in range(5):
        e(f"s_add_u32 s7, s6, {a_}")
        e(f"s_lshr_b32 s{40+a_}, s7, 1")
        e(f"s_mul_i32 s{40+a_}, s{40+a_}, {108*1024}")
        e(f"s_and_b32 s7, s7, 1")
        e(f"s_lshl_b32 s7, s7, 8")
        e(f"s_add_u32 s{40+a_}, s{40+a_}, s7")
        e(f"s_add_u32 s{40+a_}, s{40+a_}, {WS_W2F}")
    e("s_mul_i32 s6, s5, %d" % (2*108*1024))
    e("s_add_u32 s45, s6, %d" % WS_ACT)
    e("s_add_u32 s46, s45, 256")
    e("s_add_u32 s47, s45, %d" % (108*1024))
    e("s_add_u32 s48, s47, 256")
    e("s_waitcnt lgkmcnt(0)")
    srd(28, 56, WS_SIZE); srd(8, 58, L*D*2); srd(12, 60, L*D*2)
    FR = 16
    ACC = 0
    EP = FR + 36*(FDEPTH - (1 if FUSE else 0))
    if FUSE == 2: EP = 16
    def accr(ac):
        return f"v[{48+ac}:{51+ac}]" if (FUSE == 2 and ac >= 40) else f"a[{ac}:{ac+3}]"
    pend = []
    def issue(m):
        base = FR + 36*(m % FDEPTH)
        for t in range(9):
            e(f"buffer_load_dwordx4 v[{base+4*t}:{base+4*t+3}], v7, s[28:31], s{40+t} offen")
            pend.append(("f", m))
        e("v_add_u32 v7, 8192, v7")
    def wait_for(tag):
        if tag not in pend: return
        last = max(i for i, p in enumerate(pend) if p == tag)
        n = len(pend) - 1 - last
        e(f"s_waitcnt vmcnt({n})")
        del pend[:last+1]
    NST = 14
    if FUSE:
        e("v_mov_b32 v12, v7")
        e("v_mov_b32 v14, 0")
        for m in range(FDEPTH):
            for t in range(5):
                e(f"buffer_load_dwordx4 v[{FR+36*m+4*t}:{FR+36*m+4*t+3}], v12, s[28:31], s{40+t} offen")
                pend.append(("f", m))
            e("v_add_u32 v12, 8192, v12")
        for r in range(ACC, ACC+(0 if SPL else 80)):
            e(f"v_mov_b32 v{48+r}, 0" if (FUSE == 2 and r >= 40) else f"v_accvgpr_write_b32 a{r}, 0")
        e("s_lshr_b32 s6, s5, 1")
        e("s_lshl_b32 s6, s6, %d" % CSH)
        e("s_add_u32 s6, s6, %d" % WS_CNT)
        e("s_lshl_b32 s94, s4, %d" % CSH)
        e("s_add_u32 s94, s94, %d" % (WS_CNT + (16 << CSH)))
        if not SPL:
            e("s_cmp_lg_u32 s3, 0")
            e("s_cbranch_scc1 fp0_d")
            if MBX:
                e("s_lshl_b32 s6, s5, 3")
                e("s_add_u32 s6, s6, s4")
                e("s_lshl_b32 s6, s6, %d" % MBX)
                e("s_add_u32 s6, s6, %d" % WS_MB)
                e("v_lshlrev_b32 v15, 2, v3")
                e("s_mov_b32 s91, 0")
                lab("fp0_p")
                e("buffer_load_dword v13, v15, s[28:31], s6 offen sc0 sc1")
                e("s_waitcnt vmcnt(0)")
                e("v_cmp_ne_u32 vcc, 1, v13")
                e("s_cmp_eq_u64 vcc, 0")
                e("s_cbranch_scc1 fp0_d")
                e("s_add_u32 s91, s91, 1")
                e("s_cmp_ge_u32 s91, 0x20000")
                e("s_cbranch_scc1 fp0_d")
                e("s_sleep %d" % int(os.environ.get("PSL", 2)))
                e("s_branch fp0_p")
                lab("fp0_d")
            else: poll(6, int(os.environ.get("FT0", 16)), "fp0")
            e("s_barrier")
        for m in range(FDEPTH):
            for t in range(5, 9):
                e(f"buffer_load_dwordx4 v[{FR+36*m+4*t}:{FR+36*m+4*t+3}], v7, s[28:31], s{40+t} offen")
                pend.append(("f", m))
            e("v_add_u32 v7, 8192, v7")
        for r in range(ACC, ACC+(80 if SPL else 0)):
            e(f"v_mov_b32 v{48+r}, 0" if r >= 40 else f"v_accvgpr_write_b32 a{r}, 0")
    else:
        for m in range(FDEPTH):
            issue(m)
    e("s_lshl_b32 s6, s5, 6")
    e("s_lshl_b32 s7, s3, 4")
    e("s_add_u32 s6, s6, s7")
    e("v_add_u32 v8, s6, v3")
    e("v_mul_u32_u24 v9, 1280, v8")
    e("v_lshl_add_u32 v9, v4, 3, v9")
    e("s_mul_i32 s6, s4, 160")
    e("v_add_u32 v9, s6, v9")
    def eploads():
        for a_ in range(5):
            e(f"buffer_load_dwordx2 v[{EP+2*a_}:{EP+2*a_+1}], v9, s[8:11], 0 offen offset:{32*a_}")
            pend.append(("e", 0))
        e("v_lshlrev_b32 v10, 14, v4")
        e("v_lshl_add_u32 v10, v8, 1, v10")
        e("s_mul_i32 s6, s4, %d" % (80*4096))
        e("s_add_u32 s6, s6, %d" % WS_AT)
        for a_ in range(5):
            for j in range(4):
                e(f"buffer_load_ushort v{EP+10+4*a_+j}, v10, s[28:31], s6 offen")
                pend.append(("e", 0))
                e("s_add_u32 s6, s6, %d" % (4096 if j < 3 else 4096*13))
    if not FUSE:
        eploads()
        for r in range(ACC, ACC+80):
            e(f"v_accvgpr_write_b32 a{r}, 0")
    for m in range(NST):
        if m == NST - 1:
            e("s_cmp_ge_u32 s3, 2")
            e("s_cbranch_scc1 fin_red")
        wait_for(("f", m))
        base = FR + 36*(m % FDEPTH)
        fill = []
        if FEP and FDEPTH + 1 <= m < FDEPTH + 4:
            for a_ in [(0, 1), (2, 3), (4,)][m - FDEPTH - 1]:
                rx = EP + 2*a_; ra = EP + 10 + 4*a_
                for k_ in range(9):
                    for p_ in range(2):
                        t0, t1 = 12 + 2*p_, 13 + 2*p_
                        r0, r1 = ra + 2*p_, ra + 2*p_ + 1
                        fill.append([f"v_lshlrev_b32 v{t0}, 16, v{rx+p_}", f"v_and_b32 v{t1}, 0xffff0000, v{rx+p_}",
                                     f"v_lshlrev_b32 v{r0}, 16, v{r0}", f"v_lshlrev_b32 v{r1}, 16, v{r1}",
                                     f"v_add_f32 v{t0}, v{t0}, v{r0}", f"v_add_f32 v{t1}, v{t1}, v{r1}",
                                     f"v_cvt_pk_bf16_f32 v{t0}, v{t0}, v{t1}",
                                     f"v_lshlrev_b32 v{r0}, 16, v{t0}", f"v_and_b32 v{r1}, 0xffff0000, v{t0}"][k_])
        for b_ in range(4):
            for a_ in range(5):
                ac = ACC + 4*(5*b_ + a_)
                e(f"v_mfma_f32_16x16x32_bf16 {accr(ac)}, v[{base+4*a_}:{base+4*a_+3}], v[{base+20+4*b_}:{base+23+4*b_}], {accr(ac)}")
                for _ in range(2):
                    if fill: e(fill.pop(0))
        assert not fill
        if FUSE and m == int(os.environ.get("GS", 10 if FUSE == 2 else 8)):
            if MB2:
                e("s_lshl_b32 s94, s5, 3")
                e("s_add_u32 s94, s94, s4")
                e("s_lshl_b32 s94, s94, 9")
                e("s_add_u32 s94, s94, %d" % WS_MB2)
                e("v_min_u32 v15, 39, v2")
                e("v_lshlrev_b32 v15, 3, v15")
                e("buffer_load_dwordx2 v[12:13], v15, s[28:31], s94 offen sc0 sc1")
            else: e("buffer_load_dword v13, v14, s[28:31], s94 offen sc0 sc1")
            pend.append(("g", 0))
        if FUSE and m == int(os.environ.get("GD", 12 if FUSE == 2 else 11)):
            if ("g", 0) in pend: wait_for(("g", 0))
            if MB2:
                e("s_mov_b32 s91, 0")
                e("s_branch fp1_c")
                lab("fp1_p")
                e("buffer_load_dwordx2 v[12:13], v15, s[28:31], s94 offen sc0 sc1")
                e("s_waitcnt vmcnt(0)")
                lab("fp1_c")
                e("v_and_b32 v12, v12, v13")
                e("v_cmp_ne_u32 vcc, 1, v12")
                e("s_cmp_eq_u64 vcc, 0")
                e("s_cbranch_scc1 fp1_d")
                e("s_add_u32 s91, s91, 1")
                e("s_cmp_ge_u32 s91, 0x20000")
                e("s_cbranch_scc1 fp1_d")
                e("s_sleep %d" % int(os.environ.get("PSL2", 2)))
                e("s_branch fp1_p")
                lab("fp1_d")
            else: poll(94, int(os.environ.get("FT1", 80)), "fp1", first=False)
            eploads()
        if m + FDEPTH < NST:
            if m + FDEPTH == NST - 1:
                e("s_cmp_ge_u32 s3, 2")
                e("s_cselect_b32 s6, 8192, 0")
                e("v_subrev_u32 v7, s6, v7")
            issue(m + FDEPTH)
    lab("fin_red")
    e("s_nop 15")
    e("s_waitcnt vmcnt(%d)" % (25 if FUSE else 0))
    e("v_lshlrev_b32 v11, 4, v2")
    RB, TB = 16, 96
    if FUSE == 2:
        RB, TB = 46, 108
        e("s_xor_b32 s6, s3, 2")
        e("s_mul_i32 s6, s6, 10240")
        e("v_add_u32 v12, s6, v11")
        e("s_mul_i32 s6, s3, 10240")
        e("v_add_u32 v13, s6, v11")
        e("s_xor_b32 s6, s3, 1")
        e("s_mul_i32 s6, s6, 10240")
        e("v_add_u32 v15, s6, v11")
        e("s_cmp_ge_u32 s3, 2")
        e("s_cbranch_scc1 fr_hi")
        for k in range(10): e(f"ds_write_b128 v12, v[{88+4*k}:{91+4*k}] offset:{1024*k}")
        e("s_waitcnt lgkmcnt(0)")
        for r in range(40): e(f"v_accvgpr_read_b32 v{88+r}, a{r}")
        e("s_branch fr_j")
        lab("fr_hi")
        for k in range(10): e(f"ds_write_b128 v12, a[{4*k}:{4*k+3}] offset:{1024*k}")
        e("s_waitcnt lgkmcnt(0)")
        lab("fr_j")
        e("s_barrier")
        for k in range(10): e(f"ds_read_b128 v[{46+4*k}:{49+4*k}], v13 offset:{1024*k}")
        for k in range(10):
            e(f"s_waitcnt lgkmcnt({9-k})")
            for r in (0, 2): e(f"v_pk_add_f32 v[{46+4*k+r}:{47+4*k+r}], v[{46+4*k+r}:{47+4*k+r}], v[{88+4*k+r}:{89+4*k+r}]")
        e("s_bitcmp1_b32 s3, 0")
        e("s_cbranch_scc1 fr_odd")
        for k in range(5): e(f"ds_write_b128 v13, v[{66+4*k}:{69+4*k}] offset:{1024*k}")
        e("s_branch fr_j2")
        lab("fr_odd")
        for k in range(5): e(f"ds_write_b128 v13, v[{46+4*k}:{49+4*k}] offset:{1024*k}")
        e("s_waitcnt lgkmcnt(0)")
        for r in range(20): e(f"v_mov_b32 v{46+r}, v{66+r}")
        lab("fr_j2")
        e("s_waitcnt lgkmcnt(0)")
        e("s_barrier")
        for k in range(5): e(f"ds_read_b128 v[{88+4*k}:{91+4*k}], v15 offset:{1024*k}")
        for k in range(5):
            e(f"s_waitcnt lgkmcnt({4-k})")
            for r in (0, 2): e(f"v_pk_add_f32 v[{46+4*k+r}:{47+4*k+r}], v[{46+4*k+r}:{47+4*k+r}], v[{88+4*k+r}:{89+4*k+r}]")
    for w in range(0 if FUSE == 2 else 4):
        if w < 3:
            e(f"s_cmp_lg_u32 s3, {w}")
            e(f"s_cbranch_scc1 fin_w{w+1}")
        for b_ in range(4):
            if b_ == w: continue
            slot = w if w < b_ else w - 1
            for a_ in range(5):
                ac = ACC + 4*(5*b_ + a_)
                e(f"ds_write_b128 v11, a[{ac}:{ac+3}] offset:{(b_*3 + slot)*5120 + a_*1024}")
        for r in range(20):
            e(f"v_accvgpr_read_b32 v{16+r}, a{ACC+20*w+r}")
        if w < 3:
            e("s_branch fin_rd")
            lab(f"fin_w{w+1}")
    lab("fin_rd")
    if FUSE != 2:
        e("s_mul_i32 s6, s3, %d" % (3*5120))
        e("v_add_u32 v11, s6, v11")
        e("s_waitcnt lgkmcnt(0)")
        e("s_barrier")
    for sl in range(0 if FUSE == 2 else 3):
        for a_ in range(5):
            r = 36 + 20*sl + 4*a_
            e(f"ds_read_b128 v[{r}:{r+3}], v11 offset:{sl*5120 + a_*1024}")
    for sl in range(0 if FUSE == 2 else 3):
        e(f"s_waitcnt lgkmcnt({10-5*sl})")
        if FEP:
            for r in range(0, 20, 2):
                e(f"v_pk_add_f32 v[{16+r}:{17+r}], v[{16+r}:{17+r}], v[{36+20*sl+r}:{37+20*sl+r}]")
            continue
        for r in range(20):
            e(f"v_add_f32 v{16+r}, v{16+r}, v{36+20*sl+r}")
    e("s_waitcnt vmcnt(0)")
    for a_ in range(5):
        rx = EP + 2*a_
        ra = EP + 10 + 4*a_
        if FEP:
            ac = 16 + 4*a_
            for p in range(2): e(f"v_cvt_pk_bf16_f32 v{96+p}, v{ac+2*p}, v{ac+2*p+1}")
            for p in range(2):
                e(f"v_lshlrev_b32 v{98+2*p}, 16, v{96+p}")
                e(f"v_and_b32 v{99+2*p}, 0xffff0000, v{96+p}")
            for p in range(2): e(f"v_pk_add_f32 v[{98+2*p}:{99+2*p}], v[{98+2*p}:{99+2*p}], v[{ra+2*p}:{ra+2*p+1}]")
            for p in range(2): e(f"v_cvt_pk_bf16_f32 v{rx+p}, v{98+2*p}, v{99+2*p}")
        for p in range(2 if not FEP else 0):
            ac = RB + 4*a_ + 2*p
            e(f"v_lshlrev_b32 v{TB+0}, 16, v{rx+p}")
            e(f"v_and_b32 v{TB+1}, 0xffff0000, v{rx+p}")
            e(f"v_lshlrev_b32 v{TB+2}, 16, v{ra+2*p}")
            e(f"v_lshlrev_b32 v{TB+3}, 16, v{ra+2*p+1}")
            e(f"v_add_f32 v{TB+0}, v{TB+0}, v{TB+2}")
            e(f"v_add_f32 v{TB+1}, v{TB+1}, v{TB+3}")
            e(f"v_cvt_pk_bf16_f32 v{TB+0}, v{TB+0}, v{TB+1}")
            e(f"v_cvt_pk_bf16_f32 v{TB+2}, v{ac}, v{ac+1}")
            e(f"v_lshlrev_b32 v{TB+4}, 16, v{TB+0}")
            e(f"v_and_b32 v{TB+5}, 0xffff0000, v{TB+0}")
            e(f"v_lshlrev_b32 v{TB+6}, 16, v{TB+2}")
            e(f"v_and_b32 v{TB+7}, 0xffff0000, v{TB+2}")
            e(f"v_add_f32 v{TB+4}, v{TB+4}, v{TB+6}")
            e(f"v_add_f32 v{TB+5}, v{TB+5}, v{TB+7}")
            e(f"v_cvt_pk_bf16_f32 v{rx+p}, v{TB+4}, v{TB+5}")
        e(f"buffer_store_dwordx2 v[{rx}:{rx+1}], v9, s[12:15], 0 offen offset:{32*a_}")
    lab("fin_end")
    e("s_endpgm")
    if SPL: kernel_desc("fin_kernel", 128, agpr=40)
    if not FUSE: kernel_desc("fin_kernel", ((EP + 30) + 7)//8*8, agpr=80)

hdr = open("cdna_kernels/%s.s.ref" % NAME).read().split("; Override launch")[0]
text = hdr
text += f"; @launch kernel=prep_kernel grid=({PREP_WGS + (128 if PORD else 0) + (256 if EMU & 2 else 0)},1,1) block=(256,1,1) lds={MID_LDS if EMU & 2 else PREP_LDS}\n"
text += f"; @launch kernel=mid_kernel grid=({MID_WGS - SPL},1,1) block=(256,1,1) lds={FIN_LDS if FUSE == 1 else MID_LDS}\n"
if SPL: text += f"; @launch kernel=fin_kernel grid=({G2_WGS + SPL},1,1) block=(256,1,1) lds={MID_LDS}\n"
if not FUSE: text += f"; @launch kernel=fin_kernel grid=({G2_WGS},1,1) block=(256,1,1) lds={FIN_LDS}\n"
text += '.amdgcn_target "amdgcn-amd-amdhsa--gfx950"\n'
gen_prep(); gen_mid(); gen_fin()
_o = []; _in = False
for _l in out:
    if _l.startswith("fin_kernel:"): _in = True
    if _l.strip().startswith("buffer_store") and not _in and "nosc" not in SKIP: _l += " sc1"
    _o.append(_l)
out = _o
text += "\n".join(out) + "\n"
dst = sys.argv[1] if len(sys.argv) > 1 else "cdna_kernels/%s.s" % NAME
open(dst, "w").write(text)
print("wrote", dst, len(text))
```
